```python
import torch

def _softmax(x, axis=-1):
    return torch.softmax(x, dim=axis)
def _gelu(x):
    return torch.nn.functional.gelu(x, approximate="tanh")
def _silu(x):
    return torch.nn.functional.silu(x)
def _sigmoid(x):
    return torch.sigmoid(x)
def _layernorm(x, axis=-1, eps=1e-5):
    m = x.mean(dim=axis, keepdim=True)
    v = x.var(dim=axis, keepdim=True, unbiased=False)
    return (x - m) / torch.sqrt(v + eps)
def _scatter_add(tgt, idx, src, axis=0):
    return tgt.clone().index_add_(axis, idx, src)
def _segment_sum(src, seg, n):
    out = torch.zeros((n,) + src.shape[1:], dtype=src.dtype)
    return out.index_add_(0, seg, src)
def _pad(x, pw):
    flat = tuple(v for pair in reversed(pw) for v in pair)
    return torch.nn.functional.pad(x, flat)

kernel_name = 'concat_heads__spectral_gfnet__ssm_conv_s5__prompt'

def setup_inputs():

    _w = (lambda a: (lambda t: t.to(torch.bfloat16) if t.is_floating_point() else t)(torch.as_tensor(a)))
    def _A_setup():
        B, S, D = 1, 2048, 1024
        Df = D // 2 + 1
        return {
            "x": _w((lambda *s: torch.randn(*s, dtype=torch.bfloat16) * 0.05)(B, S, D)),
            "w_r": _w((lambda *s: torch.randn(*s, dtype=torch.bfloat16) * 0.8)(S, Df) * 0.02),
            "w_i": _w((lambda *s: torch.randn(*s, dtype=torch.bfloat16) * 0.8)(S, Df) * 0.02),
        }
    _A_in = _A_setup()

    def _B_setup():
        B, S, D = 1, 2048, 1024
        P = D
        Lambda_re = -0.5 * (lambda _x: torch.exp(torch.as_tensor(_x)))((lambda *s: torch.randn(*s, dtype=torch.bfloat16) * 0.2)(P))
        Lambda_im = (lambda *s: torch.randn(*s, dtype=torch.bfloat16) * 0.4)(P) * 1.0
        B_re = (lambda *s: torch.randn(*s, dtype=torch.bfloat16) * 0.2)(P, D) * (D ** -0.5)
        B_im = (lambda *s: torch.randn(*s, dtype=torch.bfloat16) * 0.2)(P, D) * (D ** -0.5)
        C_re = (lambda *s: torch.randn(*s, dtype=torch.bfloat16) * 0.2)(D, P) * (P ** -0.5)
        C_im = (lambda *s: torch.randn(*s, dtype=torch.bfloat16) * 0.2)(D, P) * (P ** -0.5)
        log_dt = (lambda *s: torch.randn(*s, dtype=torch.bfloat16) * 0.2)(P) * 0.3 - 2.0
        Dskip = (lambda *s: torch.randn(*s, dtype=torch.bfloat16) * 0.05)(D)
        return {
            "x": _w((lambda *s: torch.randn(*s, dtype=torch.bfloat16) * 0.05)(B, S, D)),
            "Lambda_re": _w(Lambda_re),
            "Lambda_im": _w(Lambda_im),
            "B_re": _w(B_re),
            "B_im": _w(B_im),
            "C_re": _w(C_re),
            "C_im": _w(C_im),
            "log_dt": _w(log_dt),
            "Dskip": _w(Dskip),
        }
    _B_in = _B_setup()

    return {
        "A_x": _A_in["x"],
        "A_w_r": _A_in["w_r"],
        "A_w_i": _A_in["w_i"],
        "B_x": _B_in["x"],
        "B_Lambda_re": _B_in["Lambda_re"],
        "B_Lambda_im": _B_in["Lambda_im"],
        "B_B_re": _B_in["B_re"],
        "B_B_im": _B_in["B_im"],
        "B_C_re": _B_in["C_re"],
        "B_C_im": _B_in["C_im"],
        "B_log_dt": _B_in["log_dt"],
        "B_Dskip": _B_in["Dskip"],
    }

def reference(A_x, A_w_r, A_w_i, B_x, B_Lambda_re, B_Lambda_im, B_B_re, B_B_im, B_C_re, B_C_im, B_log_dt, B_Dskip):
    def _A_ref(x, w_r, w_i):
        B, S, D = x.shape
        X = (lambda x, axes=(-2,-1): torch.fft.rfft2(x.float(), dim=axes))(x, axes=(-2, -1))
        W = w_r + 1j * w_i
        X = X * W
        y = (lambda x, s, axes=(-2,-1): torch.fft.irfft2(x, s=s, dim=axes).to(torch.bfloat16))(X, (S, D), axes=(-2, -1))
        return y

    def _B_ref(x, Lambda_re, Lambda_im, B_re, B_im, C_re, C_im, log_dt, Dskip):
        Bsz, L, H = x.shape
        Lam = Lambda_re + 1j * Lambda_im
        Bmat = B_re + 1j * B_im
        Cmat = C_re + 1j * C_im
        dt = torch.exp(log_dt)
        Lam_bar = torch.exp(dt * Lam)
        B_bar = ((Lam_bar - 1.0) / Lam)[:, None] * Bmat
        Bu = torch.einsum("bld,pd->blp", x + 0j, B_bar)
        h = torch.zeros_like(Bu[:, 0, :])
        hs = []
        for t in range(L):
            h = Lam_bar[None, :] * h + Bu[:, t, :]
            hs.append(h)
        hseq = torch.stack(hs, 1)
        y = 2.0 * torch.einsum("blp,dp->bld", hseq, Cmat).real + x * Dskip[None, None, :]
        return y

    a = _A_ref(A_x, A_w_r, A_w_i)
    b = _B_ref(B_x, B_Lambda_re, B_Lambda_im, B_B_re, B_B_im, B_C_re, B_C_im, B_log_dt, B_Dskip)
    return torch.concatenate([a, b], axis=-1)
```

```python
import re

REG_RE = re.compile(r"^(-|abs\()?([vas])(?:(\d+)|\[(\d+):(\d+)\])\)?$")
TRANS = ("v_exp_f32", "v_log_f32", "v_rcp_f32", "v_rsq_f32", "v_sqrt_f32", "v_sin_f32", "v_cos_f32")


def regs_of(op):
    op = op.strip()
    if op == "vcc":
        return {("s", "vcc")}
    if op == "exec":
        return {("s", "exec")}
    if op == "m0":
        return {("s", "m0")}
    m = REG_RE.match(op)
    if not m:
        return set()
    k = m.group(2)
    if m.group(3) is not None:
        return {(k, int(m.group(3)))}
    return {(k, i) for i in range(int(m.group(4)), int(m.group(5)) + 1)}


def split_ops(s):
    out, depth, cur = [], 0, ""
    for ch in s:
        if ch == "[":
            depth += 1
        elif ch == "]":
            depth -= 1
        if ch == "," and depth == 0:
            out.append(cur.strip())
            cur = ""
        else:
            cur += ch
    if cur.strip():
        out.append(cur.strip())
    return out


class Ins:
    def __init__(self, text):
        self.text = text
        t = text.split(";")[0].strip()
        self.label = None
        self.mn = None
        self.defs = set()
        self.uses = set()
        self.kind = None
        self.srcc = set()
        self.srcab = set()
        self.mods = ""
        self.target = None
        if not t or t.startswith("."):
            self.kind = "dir"
            return
        if t.endswith(":"):
            self.label = t[:-1]
            self.kind = "label"
            return
        p = t.split(None, 1)
        mn = p[0]
        self.mn = mn
        rest = p[1] if len(p) > 1 else ""
        ops = split_ops(rest)
        if ops:
            last = ops[-1].split()
            ops[-1] = last[0]
            self.mods = " ".join(last[1:])
        self.ops = ops
        R = [regs_of(o) for o in ops]
        U = lambda idx: set().union(*[R[i] for i in idx]) if idx else set()
        n = len(ops)
        base = re.sub(r"_(e32|e64|dpp)$", "", mn)
        self.base = base
        if base.startswith("v_mfma"):
            self.kind = "mfma"
            self.defs = R[0]
            self.srcab = R[1] | R[2]
            self.srcc = R[3]
            self.uses = self.srcab | self.srcc
            self.passes = 8 if "32x32x16" in base else 4 if "16x16x32" in base else None
            assert self.passes, base
        elif base.startswith("v_"):
            self.kind = "valu"
            if base in ("v_swap_b32", "v_permlane32_swap_b32", "v_permlane16_swap_b32"):
                self.defs = R[0] | R[1]
                self.uses = R[0] | R[1]
            elif base in ("v_add_co_u32", "v_sub_co_u32", "v_addc_co_u32"):
                self.defs = R[0] | R[1]
                self.uses = U(range(2, n))
            elif base == "v_nop":
                pass
            else:
                self.defs = R[0]
                self.uses = U(range(1, n))
                if base.startswith("v_fmac") or base == "v_writelane_b32":
                    self.uses |= R[0]
        elif base.startswith(("buffer_load", "global_load")):
            self.kind = "vmem"
            if "lds" in self.mods.split() or "_lds_" in base:
                self.uses = U(range(n)) | {("s", "m0")}
                self.ldsdma = True
            else:
                self.defs = R[0]
                self.uses = U(range(1, n))
        elif base.startswith(("buffer_store", "global_store", "buffer_atomic", "global_atomic")):
            self.kind = "vmem"
            self.uses = U(range(n))
            if base.startswith("buffer_"):
                self.sdata = R[0]
                if "atomic" in base and "sc0" in self.mods.split():
                    self.defs = R[0]
            else:
                if "atomic" in base and "sc0" in self.mods.split():
                    self.defs = R[0]
                    self.uses = U(range(1, n))
                    self.sdata = R[2]
                else:
                    self.sdata = R[1]
            self.wide = base.endswith(("x3", "x4"))
        elif base.startswith(("buffer_wbl2", "buffer_inv")):
            self.kind = "vmem"
        elif base.startswith("ds_"):
            self.kind = "ds"
            if base.startswith(("ds_read", "ds_bpermute", "ds_permute", "ds_swizzle")) or "_rtn" in base:
                self.defs = R[0]
                self.uses = U(range(1, n))
            else:
                self.uses = U(range(n))
        elif base.startswith("s_"):
            self.kind = "salu"
            if base in ("s_branch",) or base.startswith("s_cbranch"):
                self.target = ops[0]
                if "vcc" in base:
                    self.uses = {("s", "vcc")}
            elif base.startswith(("s_cmp", "s_waitcnt", "s_nop", "s_barrier", "s_endpgm", "s_setprio", "s_sleep", "s_bitcmp")):
                self.uses = U(range(n)) if base.startswith(("s_cmp", "s_bitcmp")) else set()
            else:
                self.defs = R[0] if n else set()
                self.uses = U(range(1, n))
                if "saveexec" in base:
                    self.defs |= {("s", "exec")}
        else:
            raise ValueError("unknown instruction: " + text)

    def states(self):
        if self.kind in ("dir", "label"):
            return 0
        if self.base == "s_nop":
            return int(self.ops[0], 0) + 1
        return 1


def vec(rs):
    return {r for r in rs if r[0] in "va"}


def sca(rs):
    return {r for r in rs if r[0] == "s"}


def need(p, c):
    n = 0
    pk, ck = p.kind, c.kind
    if pk == "valu":
        vd = vec(p.defs)
        sd = sca(p.defs)
        if ck == "mfma" and vd & c.uses:
            n = max(n, 2)
        if ck == "valu":
            if c.base in ("v_readfirstlane_b32", "v_readlane_b32") and vd & c.uses:
                n = max(n, 1)
            if c.base.startswith("v_permlane") and vd & c.uses:
                n = max(n, 2)
            if ("dpp" in c.mods or "row_" in c.mods or "quad_perm" in c.mods) and vd & c.uses:
                n = max(n, 2)
            if sd & c.uses:
                n = max(n, 4 if c.base in ("v_readlane_b32", "v_writelane_b32") else 2)
            if p.base in TRANS and vd & c.uses:
                n = max(n, 1)
        if ck == "vmem" and sd & c.uses:
            n = max(n, 5)
        if ck == "salu" and sd & c.uses:
            n = max(n, 1)
    if pk == "mfma":
        big = {4: 8, 8: 12}[p.passes]
        ovl = {4: 6, 8: 10}[p.passes]
        war = {4: 3, 8: 7}[p.passes]
        if ck == "mfma":
            if p.defs & c.srcab:
                n = max(n, big)
            if p.defs & c.srcc:
                if not (p.defs == c.srcc and p.passes == c.passes):
                    n = max(n, ovl)
            elif p.defs & c.defs:
                n = max(n, ovl)
        elif ck in ("valu", "vmem", "ds"):
            if p.defs & (c.uses | c.defs):
                n = max(n, big)
            if ck == "valu" and p.srcc & c.defs:
                n = max(n, war)
    if pk == "salu" and ("s", "m0") in p.defs and ck == "vmem" and getattr(c, "ldsdma", False):
        n = max(n, 1)
    if pk == "vmem" and getattr(p, "wide", False) and p.sdata & c.defs:
        n = max(n, 2 if ck == "valu" else 1)
    if pk == "ds" and p.base in ("ds_write_b128", "ds_write_b96") and vec(p.uses) & c.defs and ck == "valu":
        n = max(n, 1)
    return n


MAXD = 20


def pad(lines):
    ins = [Ins(l) for l in lines]
    changed = True
    total = 0
    while changed:
        changed = False
        def mkjumps():
            jumps = {}
            for i, x in enumerate(ins):
                if x.target is not None:
                    jumps.setdefault(x.target, []).append(i)
            return jumps
        jumps = mkjumps()
        i = 0
        while i < len(ins):
            c = ins[i]
            if c.kind in ("dir", "label"):
                i += 1
                continue
            worst = 0
            stack = [(i - 1, 0)]
            seen = set()
            while stack:
                j, d = stack.pop()
                while j >= 0 and d < MAXD:
                    if (j, d) in seen:
                        break
                    seen.add((j, d))
                    p = ins[j]
                    if p.kind == "label":
                        for b in jumps.get(p.label, []):
                            stack.append((b, d))
                        k = j - 1
                        while k >= 0 and ins[k].kind in ("dir", "label"):
                            if ins[k].kind == "label":
                                for b in jumps.get(ins[k].label, []):
                                    stack.append((b, d))
                            k -= 1
                        if k >= 0 and ins[k].mn in ("s_branch", "s_endpgm", "s_setpc_b64"):
                            break
                        j = k
                        continue
                    if p.kind == "dir":
                        j -= 1
                        continue
                    r = need(p, c)
                    if r > d:
                        worst = max(worst, r - d)
                    d += p.states()
                    j -= 1
            if worst > 0:
                total += worst
                new = []
                w = worst
                while w > 0:
                    k = min(w, 16)
                    new.append(Ins(f"s_nop {k-1}"))
                    w -= k
                ins[i:i] = new
                changed = True
                jumps = mkjumps()
                i += len(new)
            i += 1
    return [x.text for x in ins], total


class Asm:
    def __init__(self):
        self.lines = []

    def __call__(self, s):
        for l in s.split("\n"):
            l = l.strip()
            if l:
                self.lines.append(l)

    def label(self, name):
        self.lines.append(name + ":")


def v(a, n=1):
    return f"v{a}" if n == 1 else f"v[{a}:{a+n-1}]"


def s(a, n=1):
    return f"s{a}" if n == 1 else f"s[{a}:{a+n-1}]"


def kdesc(name, vgpr=256, sgpr=102, accum=None):
    accum = accum or min(256, (vgpr + 3) // 4 * 4)
    return f""".section .rodata,"a"
.p2align 6
.amdhsa_kernel {name}
  .amdhsa_next_free_vgpr {vgpr}
  .amdhsa_next_free_sgpr {sgpr}
  .amdhsa_accum_offset {accum}
  .amdhsa_group_segment_fixed_size 0
  .amdhsa_kernarg_size 120
  .amdhsa_user_sgpr_count 2
  .amdhsa_user_sgpr_kernarg_segment_ptr 1
  .amdhsa_system_sgpr_workgroup_id_x 1
.end_amdhsa_kernel
.text"""


class VmCounter:
    def __init__(self, A):
        self.A = A
        self.issued = []

    def op(self, text, tag=None):
        self.A(text)
        self.issued.append(tag)

    def wait_for(self, tag, emit=True):
        idx = max(i for i, t in enumerate(self.issued) if t == tag)
        n = len(self.issued) - 1 - idx
        n = min(n, 63)
        if emit:
            self.A(f"s_waitcnt vmcnt({n})")
        return n
```

```python
import os, struct, math
import numpy as np
STAMP = int(os.environ.get("STAMP", "0"))
WS_NONCE = 0
WS_EG = 0x10000
WS_HT = int(os.environ.get('HTOFF', '0x100000'), 0)
WS_Z1 = 0x1000000
WS_Z3 = WS_Z1 if int(os.environ.get('ZINP', '1')) else 0x1400000
WS_WT = 0x1800000
WS_XB = 0x2000000
WS_STAMP = 0x2800000
WS_ZW = 0x3000000
SPIN_MAX = 200000
TBL_PERM = 0
TBL_F = 2048
TBL_T = TBL_F + 8192
TBL_TT = TBL_T + 8192
TBL_END = TBL_TT + 8192

NMARK = 10
DIAGC = int(os.environ.get('DIAGC', '0'))
TM = 's_memtime' if DIAGC else 's_memrealtime'
def stamp_begin(A):
    if STAMP:
        A("s_memrealtime s[96:97]")
        A("s_memtime s[70:71]")
        for i in range(1, NMARK):
            A(f"s_mov_b64 s[{70+2*i}:{71+2*i}], 0")

def mark(A, i, wait=True):
    if STAMP in (3, 4):
        if i == int(os.environ.get("DIAGM", "0")):
            A(f"{TM} s[72:73]\ns_waitcnt lgkmcnt(0)")
    elif STAMP:
        A(f"s_memtime s[{70+2*i}:{71+2*i}]")
        if wait:
            A("s_waitcnt lgkmcnt(0)")

def stamp_end(A, kidx, swave):
    if STAMP == 4:
        import random
        lab = f"L_se{random.randrange(1 << 30)}"
        m, k = int(os.environ.get("DIAGM", "0")), int(os.environ.get("DIAGK", "4"))
        dw, st = int(os.environ.get("DW", "0")), os.environ.get("DIAGS", "max")
        if m == 9:
            A("s_waitcnt vmcnt(0)\ns_memrealtime s[72:73]")
        if m == 0:
            A("s_waitcnt lgkmcnt(0)\ns_mov_b32 s72, s96")
        A("s_load_dwordx2 s[94:95], s[0:1], 112")
        A(f"s_waitcnt lgkmcnt(0)\ns_cmp_lg_u32 s{swave}, {dw}\ns_cbranch_scc1 {lab}")
        A(f"s_lshl_b32 s93, s2, 3\ns_add_u32 s93, s93, {WS_STAMP}\nv_mov_b32 v0, s96\nv_mov_b32 v1, s72\nv_mov_b32 v2, s93")
        A("global_store_dwordx2 v2, v[0:1], s[94:95] sc1")
        A(f"s_cmp_lg_u32 s2, 100\ns_cbranch_scc1 {lab}")
        A.label(lab + "w")
        A(f"s_memrealtime s[98:99]\ns_waitcnt lgkmcnt(0)\ns_sub_u32 s98, s98, s96\ns_cmp_lt_u32 s98, 4800\ns_cbranch_scc1 {lab}w")
        A(f"v_mbcnt_lo_u32_b32 v3, -1, 0\nv_mbcnt_hi_u32_b32 v3, -1, v3\nv_lshlrev_b32 v3, 5, v3\nv_add_u32 v3, {WS_STAMP}, v3")
        A("global_load_dwordx4 v[4:7], v3, s[94:95] sc1\nglobal_load_dwordx4 v[8:11], v3, s[94:95] offset:16 sc1\ns_waitcnt vmcnt(0)")
        A("s_sub_u32 s93, s96, 2000")
        for r in range(4, 12):
            A(f"v_subrev_u32 v{r}, s93, v{r}")
        op = "max" if st == "max" else "min"
        A("v_min_u32 v4, v4, v6\nv_min3_u32 v4, v4, v8, v10")
        A(f"v_{op}_u32 v5, v5, v7\nv_{op}3_u32 v5, v5, v9, v11")
        A(f"s_mov_b32 s92, -1\ns_mov_b32 s91, {0 if op == 'max' else -1}")
        for l in range(64):
            A(f"v_readlane_b32 s90, v4, {l}\ns_min_u32 s92, s92, s90\nv_readlane_b32 s90, v5, {l}\ns_{op}_u32 s91, s91, s90")
        A(f"s_sub_u32 s93, s91, s92\ns_mul_i32 s93, s93, {k}\ns_min_u32 s93, s93, 50000\ns_add_u32 s93, s93, 5000")
        A.label(lab + "x")
        A(f"s_memrealtime s[98:99]\ns_waitcnt lgkmcnt(0)\ns_sub_u32 s98, s98, s96\ns_cmp_lt_u32 s98, s93\ns_cbranch_scc1 {lab}x")
        A.label(lab)
    elif STAMP == 3:
        import random
        lab = f"L_se{random.randrange(1 << 30)}"
        m, k = int(os.environ.get("DIAGM", "0")), int(os.environ.get("DIAGK", "6000"))
        if m == 9:
            A(f"s_waitcnt vmcnt(0)\n{TM} s[72:73]")
        A(f"s_waitcnt lgkmcnt(0)\ns_lshl_b32 s93, s2, 3\ns_add_u32 s93, s93, s{swave}\ns_cmp_lg_u32 s93, {int(os.environ.get('DBGW', '800'))}\ns_cbranch_scc1 {lab}")
        if m and DIAGC:
            A(f"s_sub_u32 s93, s72, s70\ns_mul_i32 s93, s93, {k}\ns_lshr_b32 s93, s93, 6\ns_min_u32 s93, s93, 100000")
        elif m:
            A(f"s_sub_u32 s93, s72, s96\ns_mul_i32 s93, s93, {k}\ns_min_u32 s93, s93, 100000")
        else:
            A(f"s_mov_b32 s93, {k}")
        A.label(lab + "x")
        A(f"s_memrealtime s[98:99]\ns_waitcnt lgkmcnt(0)\ns_sub_u32 s98, s98, s96\ns_cmp_lt_u32 s98, s93\ns_cbranch_scc1 {lab}x")
        A.label(lab)
    elif STAMP == 2:
        import random
        lab = f"L_se{random.randrange(1 << 30)}"
        A("s_waitcnt vmcnt(0) lgkmcnt(0)")
        A("s_memrealtime s[98:99]")
        A(f"s_memtime s[{70+2*(NMARK-1)}:{71+2*(NMARK-1)}]")
        A("s_load_dwordx2 s[94:95], s[0:1], 104")
        A("s_waitcnt lgkmcnt(0)")
        A("s_not_b32 s93, s96\nv_mov_b32 v0, s98\nv_mov_b32 v1, s93\nv_mov_b32 v16, 0\ns_mov_b64 exec, 1")
        A("global_atomic_umax v16, v0, s[94:95] offset:4 sc1\nglobal_atomic_umax v16, v1, s[94:95] offset:8 sc1")
        A(f"s_lshl_b32 s93, s2, 3\ns_add_u32 s93, s93, s{swave}\ns_cmp_lg_u32 s93, {int(os.environ.get('DBGW', '800'))}\ns_cbranch_scc1 {lab}")
        for i in range(1, NMARK):
            A(f"s_sub_u32 s93, s{70+2*i}, s70\nv_mov_b32 v0, s93\nglobal_store_dword v16, v0, s[94:95] offset:{8+4*i} sc1")
        A(f"s_sub_u32 s93, s98, s96\nv_mov_b32 v0, s93\nglobal_store_dword v16, v0, s[94:95] offset:{8+4*NMARK} sc1")
        A.label(lab)
        A("s_mov_b64 exec, -1")
    elif STAMP:
        A("s_waitcnt vmcnt(0) lgkmcnt(0)")
        A("s_memrealtime s[98:99]")
        A(f"s_memtime s[{70+2*(NMARK-1)}:{71+2*(NMARK-1)}]")
        A("s_load_dwordx2 s[94:95], s[0:1], 112")
        A(f"s_lshl_b32 s93, s2, 4\ns_add_u32 s93, s93, s{swave}\ns_lshl_b32 s93, s93, 6\ns_add_u32 s93, s93, {WS_STAMP + kidx*0x100000}")
        A("s_waitcnt lgkmcnt(0)")
        A("v_mov_b32 v0, s96\nv_mov_b32 v1, s97\nv_mov_b32 v2, s98\nv_mov_b32 v3, s99\nv_mov_b32 v16, s93")
        for i in range(NMARK):
            A(f"v_mov_b32 v{4+i}, s{70+2*i}")
        A("s_getreg_b32 s93, hwreg(HW_REG_XCC_ID)\nv_mov_b32 v14, s93\ns_getreg_b32 s93, hwreg(HW_REG_HW_ID)\nv_mov_b32 v15, s93")
        for q in range(4):
            A(f"global_store_dwordx4 v16, v[{4*q}:{4*q+3}], s[94:95] offset:{16*q}")

_pc = [0]
def table_base(A, sreg, name):
    _pc[0] += 1
    lab = f"L_pc{_pc[0]}"
    A(f"s_getpc_b64 s[{sreg}:{sreg+1}]")
    A.label(lab)
    A(f"s_add_u32 s{sreg}, s{sreg}, tables-{lab}")
    A(f"s_addc_u32 s{sreg+1}, s{sreg+1}, 0")

def bf16_bits(x):
    u = struct.unpack("<I", struct.pack("<f", x))[0]
    return ((u + 0x7FFF + ((u >> 16) & 1)) >> 16) & 0xFFFF
def f32_bits(x):
    return struct.unpack("<I", struct.pack("<f", x))[0]

def tables():
    w = np.zeros(TBL_END//4, dtype=np.uint32)
    def put(off, chunk, lane, j, val):
        w[(off + chunk*1024 + lane*16)//4 + j] = val
    for l in range(64):
        n, h = l & 31, l >> 5
        for u in range(2):
            for jj in range(4):
                val = 0
                if n == 16*h + 4*u + jj: val = 0x3F80
                if n == 16*h + 8 + 4*u + jj: val = 0x3F800000
                put(TBL_PERM, u, l, jj, val)
        for s_ in range(4):
            for q in range(4):
                m = 8*s_ + 4*h + q
                th = 2*math.pi*((n*m) % 32)/32
                c, sn = math.cos(th), math.sin(th)
                if abs(c) < 1e-12: c = 0.0
                if abs(sn) < 1e-12: sn = 0.0
                put(TBL_F, s_, l, q, bf16_bits(c) | bf16_bits(sn) << 16)
                put(TBL_F, 4+s_, l, q, bf16_bits(-sn) | bf16_bits(c) << 16)
                th = 2*math.pi*(n*m)/1024
                put(TBL_T, s_, l, q, f32_bits(math.cos(th)))
                put(TBL_T, 4+s_, l, q, f32_bits(-math.sin(th)))
                th = 2*math.pi*(n + 32*m)/2048
                put(TBL_TT, s_, l, q, f32_bits(math.cos(th)))
                put(TBL_TT, 4+s_, l, q, f32_bits(-math.sin(th)))
    L = [".p2align 8", ".type tables,@object", "tables:"]
    for i in range(0, len(w), 8):
        L.append(".long " + ",".join(hex(int(x)) for x in w[i:i+8]))
    L.append(f".size tables, {TBL_END}")
    return "\n".join(L)


TRACE = int(os.environ.get("TRACE", "0"))
WS_TRACE = 0x2a00000
def trace_init(A, vr):
    if TRACE:
        A(f"v_mov_b32 v{vr}, 0")
TSKIP = [int(x) for x in os.environ.get("TSKIP", "").split(",") if x]
def trace(A, vr, idx):
    if TRACE and idx not in TSKIP:
        A(f"s_memtime s[98:99]\ns_waitcnt lgkmcnt(0)\ns_sub_u32 s98, s98, s70\nv_writelane_b32 v{vr}, s98, {idx}")
def trace_dump(A, vr, swave, t=0):
    if TRACE:
        A("s_load_dwordx2 s[94:95], s[0:1], 112")
        A(f"s_lshl_b32 s93, s2, 3\ns_add_u32 s93, s93, s{swave}\ns_lshl_b32 s93, s93, 8\ns_add_u32 s93, s93, {WS_TRACE}")
        A(f"v_mbcnt_lo_u32_b32 v{t}, -1, 0\nv_mbcnt_hi_u32_b32 v{t}, -1, v{t}\nv_lshlrev_b32 v{t}, 2, v{t}\nv_add_u32 v{t}, s93, v{t}\ns_waitcnt lgkmcnt(0)")
        A(f"global_store_dword v{t}, v{vr}, s[94:95]")
```

```python
import os
from asmlib import *
from common import *

E_ = lambda k, d: int(os.environ.get(k, str(d)))
XO, NP, RI, RJ = E_("XO", 0), E_("NP", 1), E_("RI", 1), E_("RJ", 1)
XO2, NP2 = E_("XO2", 2), E_("NP2", 1)
PRO = E_("PRO", 2)
HD = E_("HD", 24)
CD = E_("CD", 4)
NOAUX = E_("NOAUX", 0)
CODEPF = E_("CODEPF", 1)
NS = E_('NS', 3)
LASW = E_('LASW', 99)
R = 7
LA = E_('LA', 2)
FORCE_REMOTE = E_('FORCE_REMOTE', 0)
MF = "v_mfma_f32_32x32x16_bf16"
N0 = "neg_lo:[1,0,0] neg_hi:[1,0,0]"

AX, WR, WI, BX, LRE, LIM, BRE, BIM, CRE, CIM, LDT, DSK, OUT, DBG, WS = 4, 6, 8, 10, 12, 14, 16, 18, 20, 22, 24, 26, 28, 30, 32
WAVE, TI, TJ, NONCE, TBL = 34, 35, 36, 37, 38
S0, S1, S2, S3, S4 = 40, 44, 48, 52, 56
T0, T1, T2, T3, T4, T5, T6, T7, T8, T9 = range(60, 70)
MSK, CNT, LOCAL, PG = 90, 92, 100, 101
L_XCH = 122880
L_SYNC = 126976
L_AX = 131072
L_W = 147456
WS_CNT = 0x1000
CNT_A, CNT_B, CNT_W = WS_CNT, WS_CNT + 16*128, WS_CNT + 32*128
FLG_A, FLG_B, FLG_W = 0x84000, 0x86000, 0x88000
FLG_X = 0x8000
FLG_H = 0x60000
CPRO1 = E_("CPRO1", 2)
CPRO2 = E_("CPRO2", 2)
CTOUCH = E_("CTOUCH", 4)
TBS = 131072 + E_("TBPAD", 0)
FTOUCH = E_("FTOUCH", 1)
XTOUCH = E_("XTOUCH", 0)
NREP = E_("NREP", 32)
NDEF = E_("NDEF", 12)
HTAG = E_("HTAG", 0)
HDLY = E_("HDLY", 0)
HFI, HFC = E_("HFI", 7), E_("HFC", 10)
XPOLL = E_("XPOLL", 2)
OWNFIRST = E_("OWNFIRST", 1) and not HTAG
C01, C23 = E_("C01", 1), E_("C23", 1)
INOUT = E_("INOUT", 0)
KS_ = 32768 if INOUT else 8192
ISH = 16384 if INOUT else 4096
CTK, CPOLL, CPRE, HPRE = E_("CTK", 13), E_("CPOLL", 6), E_("CPRE", 7), E_("HPRE", 8)
HLOC, HLK = E_("HLOC", 0), E_("HLK", 13)
LBAT = E_("LBAT", 16)
XBF = E_("XBF", 1)
SLP_H, SLP_A = E_("SLP_H", 4), E_("SLP_A", 6)
NT = " nt" if E_("NT", 1) else ""
NTX = " nt"
OST = {0: "", 1: " nt", 2: " sc1", 3: " sc1 nt", 4: " sc0 sc1 nt", 5: " sc0 nt"}[E_("OST", 1)]
NTK = E_("NTK", 0)
OSTB = {0: "", 1: " nt", 2: " sc1", 3: " sc1 nt", 4: " sc0 sc1 nt", 5: " sc0 nt"}[E_("OSTB", 1)]
NTC = " nt" if E_("NTC", 0) else ""


def sp(a):
    return f"s[{a}:{a+1}]"


def srd(A, d, base, soff=None, const=0, size=None, size_s=None):
    if soff is None and const == 0:
        A(f"s_mov_b32 s{d}, s{base}\ns_mov_b32 s{d+1}, s{base+1}")
    else:
        if soff is not None and const:
            A(f"s_add_u32 s{d+2}, s{soff}, {const}")
            o = f"s{d+2}"
        elif soff is not None:
            o = f"s{soff}"
        else:
            o = str(const)
        A(f"s_add_u32 s{d}, s{base}, {o}\ns_addc_u32 s{d+1}, s{base+1}, 0")
    if size_s is not None:
        A(f"s_sub_u32 s{d+2}, {size}, s{size_s}")
    else:
        A(f"s_mov_b32 s{d+2}, {size}")
    A(f"s_mov_b32 s{d+3}, 0x20000")


def r4(d):
    return f"s[{d}:{d+3}]"


_u = [0]


def uid(p):
    _u[0] += 1
    return f"L_{p}{_u[0]}"


def get_nonce(A, vt):
    l, d = uid("n"), uid("nd")
    A(f"v_mov_b32 v{vt}, 0")
    A.label(l)
    A(f"global_load_dword v{vt+1}, v{vt}, {sp(DBG)} sc1")
    A("s_waitcnt vmcnt(0)")
    A(f"v_readfirstlane_b32 s{NONCE}, v{vt+1}")
    A(f"s_cmp_eq_u32 s{NONCE}, 0")
    A(f"s_cbranch_scc1 {l}")


def signal(A, sshard, cnt, flg, expect, vt):
    d = uid("sg")
    A(f"s_lshl_b32 s{CNT}, s{sshard}, 7\ns_add_u32 s{CNT}, s{CNT}, {cnt}")
    A(f"v_mov_b32 v{vt}, s{CNT}\nv_mov_b32 v{vt+1}, 1")
    A("s_waitcnt vmcnt(0)")
    A("s_mov_b64 exec, 1")
    A(f"global_atomic_add v{vt+2}, v{vt}, v{vt+1}, {sp(WS)} sc0 sc1")
    A(f"v_add_u32 v{vt}, {flg - cnt}, v{vt}\nv_mov_b32 v{vt+1}, s{NONCE}")
    A("s_waitcnt vmcnt(0)")
    A(f"v_readfirstlane_b32 s{CNT}, v{vt+2}")
    A(f"s_add_u32 s{CNT}, s{CNT}, 1\ns_cmp_lg_u32 s{CNT}, {expect}")
    A(f"s_cbranch_scc1 {d}")
    A(f"global_store_dword v{vt}, v{vt+1}, {sp(WS)} sc1")
    A.label(d)
    A("s_mov_b64 exec, -1")


def set_flag(A, soff, vt):
    A(f"v_mov_b32 v{vt}, s{soff}\nv_mov_b32 v{vt+1}, s{NONCE}")
    A("s_waitcnt vmcnt(0)")
    A("s_mov_b64 exec, 1")
    A(f"global_store_dword v{vt}, v{vt+1}, {sp(WS)} sc1")
    A("s_mov_b64 exec, -1")


def wait_cnt(A, vaddr, vt, sleep):
    l, d = uid("w"), uid("wd")
    A(f"s_mov_b32 s{CNT}, 0")
    A.label(l)
    A(f"global_load_dword v{vt}, v{vaddr}, {sp(WS)} sc1")
    A("s_waitcnt vmcnt(0)")
    A(f"v_cmp_ne_u32 vcc, s{NONCE}, v{vt}")
    A(f"s_cbranch_vccz {d}")
    if sleep:
        A(f"s_sleep {sleep}")
    A(f"s_add_u32 s{CNT}, s{CNT}, 1\ns_cmp_lt_u32 s{CNT}, {SPIN_MAX}")
    A(f"s_cbranch_scc1 {l}")
    A.label(d)


F, T = 192, 224


import struct as _st


def fl(x):
    return hex(_st.unpack("<I", _st.pack("<f", x))[0])


def lane_float(A, vn, vh, t):
    A(f"v_and_b32 v{t}, 31, v1\nv_cvt_f32_u32 v{t}, v{t}\nv_lshrrev_b32 v{t+1}, 5, v1\nv_lshlrev_b32 v{t+1}, 2, v{t+1}\nv_cvt_f32_u32 v{t+1}, v{t+1}")


def make_F(A, t):
    lane_float(A, None, None, t)
    A(f"v_mul_f32 v{t+1}, v{t}, v{t+1}\nv_mul_f32 v{t+1}, {fl(1/32)}, v{t+1}")
    for i in range(16):
        c = 8*(i >> 2) + (i & 3)
        a = t + 2 + 3*(i & 1)
        A(f"v_fmamk_f32 v{a}, v{t}, {fl(c/32)}, v{t+1}\nv_fract_f32 v{a}, v{a}")
        A(f"v_cos_f32 v{a+1}, v{a}\nv_sin_f32 v{a+2}, v{a}")
        A(f"v_cvt_pk_bf16_f32 v{F+i}, v{a+1}, v{a+2}\nv_cvt_pk_bf16_f32 v{F+16+i}, -v{a+2}, v{a+1}")


def make_T(A, dst, t, half):
    lane_float(A, None, None, t)
    if not half:
        A(f"v_mul_f32 v{t+1}, v{t}, v{t+1}\nv_mul_f32 v{t+1}, {fl(1/1024)}, v{t+1}")
    else:
        A(f"v_mul_f32 v{t}, {fl(1/2048)}, v{t}\nv_fmamk_f32 v{t+1}, v{t+1}, {fl(1/64)}, v{t}")
    for i in range(16):
        c = 8*(i >> 2) + (i & 3)
        a = t + 2 + (i & 1)
        if not half:
            A(f"v_fmamk_f32 v{a}, v{t}, {fl(c/1024)}, v{t+1}")
        else:
            A(f"v_add_f32 v{a}, {fl(c/64)}, v{t+1}")
        A(f"v_cos_f32 v{dst+i}, v{a}\nv_sin_f32 v{dst+16+i}, -v{a}")


def stage1(A, src, D, stride=4):
    if "m" in os.environ.get("SK", ""):
        return
    for c in range(2):
        for s_ in range(4):
            cc = "0" if s_ == 0 else v(D+16*c, 16)
            A(f"{MF} {v(D+16*c,16)}, {v(src+stride*s_,4)}, {v(F+16*c+4*s_,4)}, {cc}")


def twiddle(A, D, dst, tmp, rng=range(16)):
    for i in (rng if "t" not in os.environ.get("SK", "") else []):
        re, im, tr, ti = D+i, D+16+i, T+i, T+16+i
        t = tmp + 2*(i & 3)
        A(f"v_mul_f32 v{t}, v{re}, v{tr}\nv_mul_f32 v{t+1}, v{re}, v{ti}")
        A(f"v_fma_f32 v{t}, -v{im}, v{ti}, v{t}\nv_fmac_f32 v{t+1}, v{im}, v{tr}")
        A(f"v_cvt_pk_bf16_f32 v{dst+i}, v{t}, v{t+1}")


def stage2(A, src, D):
    if "m" in os.environ.get("SK", ""):
        return
    for c in range(2):
        for s_ in range(4):
            cc = "0" if s_ == 0 else v(D+16*c, 16)
            A(f"{MF} {v(D+16*c,16)}, {v(F+16*c+4*s_,4)}, {v(src+4*s_,4)}, {cc}")


W_ = T6
NBW = 2048*513*2
SQ, SO, ST = 184, 185, 186
VA1, VA2, VA8, VLIN = 4, 5, 6, 7
_ph = [0]


def l_arrive(A):
    _ph[0] += 1
    A(f"v_mov_b32 v{ST+4}, {_ph[0]}")
    A(f"s_mov_b64 exec, 1\nds_write_b32 v{SO}, v{ST+4}\ns_mov_b64 exec, -1")
    return _ph[0]


def l_check(A, n, delta=0):
    l, d = uid("lc"), uid("lcd")
    if delta:
        A(f"v_add_u32 v{ST+5}, {delta}, v{SQ}")
    A.label(l)
    A(f"ds_read_b128 {v(ST,4)}, v{ST+5 if delta else SQ}\ns_waitcnt lgkmcnt(0)")
    A(f"v_min3_u32 v{ST}, v{ST}, v{ST+1}, v{ST+2}\nv_min_u32 v{ST}, v{ST}, v{ST+3}")
    A(f"v_readfirstlane_b32 s{CNT}, v{ST}")
    A(f"s_cmp_ge_u32 s{CNT}, {n}")
    A(f"s_cbranch_scc1 {d}")
    A(f"s_sleep 1\ns_branch {l}")
    A.label(d)


def l_sync(A):
    l_check(A, l_arrive(A))


def aux_setup(A):
    srd(A, S2, WR, size=NBW)
    srd(A, S3, WI, size=NBW)
    A(f"s_and_b32 s{T0}, s2, 31\ns_lshr_b32 s{T1}, s2, 5\ns_lshl_b32 s{T1}, s{T1}, 7\ns_add_u32 s{T0}, s{T0}, s{T1}")
    A(f"s_lshl_b32 s{T1}, s{W_}, 5\ns_add_u32 s{T7}, s{T0}, s{T1}\ns_lshl_b32 s{T0}, s{T7}, 12")
    srd(A, AX, AX, T0, 0, 0x1000)
    A("v_lshlrev_b32 v2, 4, v1\nv_xor_b32 v3, 128, v2")
    A(f"s_lshl_b32 s{T8}, s{W_}, 12\ns_add_u32 s{T8}, s{T8}, {L_AX}")
    A(f"s_and_b32 s{T0}, s2, 7\ns_bfe_u32 s{T1}, s2, 0x10003\ns_bfe_u32 s{T2}, s2, 0x20004\ns_lshr_b32 s{T3}, s2, 6")
    A(f"s_lshr_b32 s{T4}, s{T0}, 1\ns_lshl_b32 s{T4}, s{T4}, 3\ns_lshl_b32 s{T5}, s{T1}, 2\ns_add_u32 s{T4}, s{T4}, s{T5}")
    A(f"s_and_b32 s{T5}, s{T0}, 1\ns_lshl_b32 s{T5}, s{T5}, 1\ns_add_u32 s{T4}, s{T4}, s{T5}\ns_lshl_b32 s{T4}, s{T4}, 5")
    A(f"s_lshl_b32 s{T5}, s{T2}, 3\ns_add_u32 s{T4}, s{T4}, s{T5}\ns_lshl_b32 s{T5}, s{W_}, 1\ns_add_u32 s{T4}, s{T4}, s{T5}\ns_mul_i32 s{T4}, s{T4}, 1026")
    A(f"s_lshl_b32 s{T5}, s{T3}, 8\ns_add_u32 s{T9}, s{T4}, s{T5}")
    A("v_bfe_u32 v8, v1, 4, 1\nv_mul_u32_u24 v8, 32832, v8")
    A(f"v_lshrrev_b32 v9, 5, v1\ns_mov_b32 s{T5}, 1050624\nv_mul_lo_u32 v9, s{T5}, v9\nv_add_u32 v8, v8, v9")
    A(f"v_and_b32 v9, 15, v1\ns_lshl_b32 s{T5}, s{W_}, 1\nv_xor_b32 v9, s{T5}, v9")
    A("v_lshl_add_u32 v18, v9, 4, v8\nv_xor_b32 v9, 1, v9\nv_lshl_add_u32 v19, v9, 4, v8\nv_add_u32 v19, 1026, v19")
    A(f"s_bfe_u32 s{T4}, s2, 0x20005\ns_lshl_b32 s{T4}, s{T4}, 8\ns_bfe_u32 s{T5}, s2, 0x10004\ns_lshl_b32 s{T5}, s{T5}, 6\ns_add_u32 s{T4}, s{T4}, s{T5}")
    A(f"s_bfe_u32 s{T5}, s2, 0x10003\ns_lshl_b32 s{T5}, s{T5}, 7\ns_add_u32 s{T4}, s{T4}, s{T5}\ns_and_b32 s{T5}, s2, 7\ns_lshl_b32 s{T5}, s{T5}, 2\ns_add_u32 s{T4}, s{T4}, s{T5}")
    A(f"v_bfe_u32 v8, v1, 3, 2\nv_add_u32 v8, s{T4}, v8\nv_bfe_u32 v9, v1, 2, 1\nv_lshl_add_u32 v8, v9, 5, v8\nv_bfe_u32 v9, v1, 1, 1\nv_lshl_add_u32 v8, v9, 10, v8")
    A("v_sub_u32 v9, 2048, v8\nv_and_b32 v9, 2047, v9\nv_and_b32 v10, 1, v1\nv_cmp_eq_u32 vcc, 1, v10\nv_cndmask_b32 v8, v8, v9, vcc")
    A(f"v_mul_u32_u24 v17, 1026, v8\ns_lshr_b32 s{T4}, s2, 7\ns_lshl_b32 s{T4}, s{T4}, 10\nv_add_u32 v17, s{T4}, v17")


def aux_issue(A, vm):
    for c in range(2):
        A(f"s_add_u32 m0, s{T8}, {c*2048}")
        A(f"s_mov_b32 s{CNT}, {c*2048}")
        for u in range(2):
            vm.op(f"buffer_load_dwordx4 v{2+c}, {r4(AX)}, s{CNT} offen offset:{u*1024}{NT} lds", "ax")


def w_issue(A, vm):
    for bb in range(2):
        for arr in range(2):
            A(f"s_add_u32 m0, s{T8}, {L_W - L_AX + bb*2048 + arr*1024}")
            vm.op(f"buffer_load_dwordx4 v{18+bb}, {r4(S2 if arr == 0 else S3)}, s{T9} offen{NT} lds" if "1" not in SK else f"buffer_load_dword v23, v2, {r4(AX)}, 0 offen offset:4092", "w")
    nw = uid("nw")
    A(f"s_cmp_lg_u32 s{W_}, {3 if not ('1' in SK or 'p' in SK) else 9}\ns_cbranch_scc1 {nw}")
    A("s_mov_b32 exec_hi, 0")
    A(f"buffer_load_ushort v{WSP}, v17, {r4(S2)}, 0 offen{NT}")
    A(f"buffer_load_ushort v{WSP+1}, v17, {r4(S3)}, 0 offen{NT}")
    A("s_mov_b64 exec, -1")
    A.label(nw)


WSP, IN, D, MID, TMP = 88, 24, 40, 72, 168
DY, W, TT = 72, 104, 136
M_, SPC, CJ, SGN = T0, T1, T2, T3
AUXK = E_("AUXK", 2)
GATE = E_("GATE", 0)
WK = E_("WK", 0)
WMID = WK <= 12
WSK = E_("WSK", 9)
A1K = E_("A1K", 0)
FINE = E_("FINE", 1)
ZSK = E_("ZSK", A1K + 3 + FINE)
LATE = A1K >= 6
A2G = E_("A2G", 1)
POLLK = E_("POLLK", 15)
VTLB, VTN, VTF = E_("VTLB", 0), E_("VTN", 1), (" nt" if E_("VTF", 1) else "")
TLBW = E_("TLBW", 0)
WEARLY = E_("WEARLY", 0)
KA, KA0, KA1, KAG = E_("KA", 0), E_("KA0", 1), E_("KA1", 15), E_("KAG", 0)
SK = os.environ.get("SK", "")
A2C = E_("A2C", 0)
LPRIO3 = E_("LPRIO3", 3)
LPRIO0 = E_("LPRIO0", 3)
LPRIO, LPRIO2 = E_('LPRIO', 3), E_('LPRIO2', 3)
L_IMG = 98304
LIMG_FREE = 2


def img(i):
    ka = 8*(i >> 2) + (i & 3)
    return (VA1, ka*1024) if i < 8 else (VA8, 0) if i == 8 else (VA2, (27 - ka)*1024)


def aux_pre(A):
    A(f"v_mov_b32 v{SQ}, {L_SYNC + 16}\ns_lshl_b32 s{T4}, s{W_}, 2\nv_add_u32 v{SO}, s{T4}, v{SQ}")
    A("v_and_b32 v8, 31, v1\nv_lshrrev_b32 v9, 5, v1\nv_and_b32 v10, 1, v1")
    A(f"v_lshrrev_b32 v11, 1, v8\nv_lshlrev_b32 v{VA1}, 6, v11\nv_lshl_add_u32 v{VA1}, v10, 4, v{VA1}\nv_lshl_add_u32 v{VA1}, v9, 12, v{VA1}")
    A(f"v_add_u32 v11, v11, v10\nv_lshlrev_b32 v11, 6, v11\nv_lshl_add_u32 v11, v10, 4, v11\nv_lshl_add_u32 v11, v9, 12, v11\nv_sub_u32 v{VA2}, {5120 + 48}, v11")
    for r in (VA1, VA2):
        A(f"v_bfe_u32 v11, v{r}, 7, 1\nv_lshlrev_b32 v11, 5, v11\nv_xor_b32 v{r}, v{r}, v11")
    A(f"v_add_u32 v{VA8}, 11264, v{VA2}\nv_and_b32 v{VA8}, 0x3fff, v{VA8}")
    A(f"s_add_u32 s{T4}, s{T4}, {L_IMG}")
    for r in (VA1, VA2, VA8):
        A(f"v_add_u32 v{r}, s{T4}, v{r}")
    A(f"v_bfe_u32 v11, v1, 3, 1\nv_lshlrev_b32 v11, 5, v11\nv_xor_b32 v{VLIN}, v2, v11")

    A("v_bfe_u32 v12, v1, 2, 1\nv_mul_u32_u24 v12, 2176, v12")
    A("v_bfe_u32 v13, v1, 3, 1\nv_lshl_add_u32 v12, v13, 6, v12\nv_lshl_add_u32 v12, v9, 8, v12")
    A("v_bfe_u32 v13, v1, 4, 1\nv_lshl_add_u32 v12, v13, 5, v12\nv_and_b32 v13, 3, v1\nv_lshl_add_u32 v12, v13, 3, v12")
    A(f"v_add_u32 v12, s{T8}, v12\nv_xor_b32 v13, 128, v12")
    if INOUT:
        A(f"s_lshl_b32 s{T4}, s{T7}, 14")
        srd(A, S0, OUT, T4, 0, 0x1000)
        srd(A, S1, OUT, T4, 0, 0x1000)
    else:
        A(f"s_lshl_b32 s{T4}, s2, 14\ns_lshl_b32 s{T5}, s{W_}, 12\ns_add_u32 s{T4}, s{T4}, s{T5}")
        srd(A, S0, WS, T4, WS_Z1, 0x1000)
        srd(A, S1, WS, T4, WS_Z3, 0x1000)
    A(f"v_and_b32 v14, 7, v1\nv_lshrrev_b32 v15, 3, v1\nv_xor_b32 v16, v14, v15\nv_lshlrev_b32 v16, 4, v16\nv_lshl_add_u32 v16, v14, 11, v16")
    A(f"s_lshr_b32 s{T4}, s{W_}, 1\ns_lshl_b32 s{T4}, s{T4}, 7\ns_and_b32 s{T5}, s{W_}, 1\ns_lshl_b32 s{T5}, s{T5}, 3\ns_add_u32 s{T4}, s{T4}, s{T5}\ns_add_u32 s{T4}, s{T4}, {L_W}")
    A(f"v_add_u32 v16, s{T4}, v16")
    A(f"v_lshlrev_b32 v15, {18 if INOUT else 16}, v15\nv_lshl_add_u32 v15, v14, 4, v15")
    A(f"s_lshl_b32 s{T4}, s{T3}, 7\ns_lshr_b32 s{T5}, s{W_}, 1\ns_lshl_b32 s{T5}, s{T5}, 6\ns_add_u32 s{T4}, s{T4}, s{T5}")
    A(f"s_and_b32 s{T5}, s{W_}, 1\ns_lshl_b32 s{T5}, s{T5}, 2\ns_add_u32 s{T4}, s{T4}, s{T5}\ns_mul_i32 s{T4}, s{T4}, {KS_}")
    A(f"s_lshr_b32 s{T5}, s{T0}, 2\ns_mul_i32 s{T5}, s{T5}, {ISH - 4096}\ns_add_u32 s{T4}, s{T4}, s{T5}")
    A(f"s_lshl_b32 s{T5}, s{T0}, 10\ns_add_u32 s{T4}, s{T4}, s{T5}\ns_lshl_b32 s{T5}, s{T1}, 9\ns_add_u32 s{T4}, s{T4}, s{T5}\ns_lshl_b32 s{T5}, s{T2}, 7\ns_add_u32 s{T4}, s{T4}, s{T5}")
    if INOUT:
        A(f"s_add_u32 s{T4}, s{T4}, 8192")
        srd(A, S4, OUT, T4, 0, 0x1000000, T4)
    else:
        srd(A, S4, WS, T4, WS_WT + 2*KS_, 0x400000, T4)
    make_F(A, 104)
    make_T(A, T, 104, 0)
    make_T(A, TT, 104, 1)


def aux_hook(A, vm, k):
    if k == (3 if A1K or WEARLY else 7):
        A("v_mov_b32 v20, 0")
        vm.op(f"global_load_dword v21, v20, {sp(DBG)} sc1", "nonce")
    if k == AUXK:
        aux_issue(A, vm)
    if k == WK:
        w_issue(A, vm)
    if WMID and k == WK + LA + 1 + (WK >= LASW):
        wt_read(A)
        A("s_waitcnt lgkmcnt(0)")
        wt_perm(A)
    if A1K:
        if k == A1K:
            vm.wait_for("ax")
            mark(A, 6)
            for s_ in range(4):
                for u in range(2):
                    A(f"ds_read_b64_tr_b16 {v(IN+4*s_+2*u,2)}, v{12+u} offset:{s_*512}")
            A("s_waitcnt lgkmcnt(0)")
            stage1(A, IN, D)
        if k == A1K + 1:
            twiddle(A, D, MID, TMP, range(8 if FINE else 16))
        if k == A1K + 1 + FINE:
            if FINE:
                twiddle(A, D, MID, TMP, range(8, 16))
            stage2(A, MID, D)
        if k == A1K + 2 + FINE:
            A(f"s_lshl_b32 s{CNT}, s{W_}, 12\ns_add_u32 s{CNT}, s{CNT}, {L_IMG}\nv_add_u32 v8, s{CNT}, v{VLIN}")
            for i in range(16):
                A(f"v_cvt_pk_bf16_f32 v{MID+i}, v{D+i}, v{D+16+i}")
                a, o = img(i)
                A(f"ds_write_b32 v{a}, v{MID+i} offset:{o}")
            A("s_waitcnt lgkmcnt(0)")
        if k == A1K + 3 + FINE:
            for u in range(4):
                A(f"ds_read_b128 {v(MID+4*u,4)}, v8 offset:{u*1024}")
            for r in (VA1, VA2, VA8):
                A(f"v_add_u32 v{r}, {L_AX - L_IMG}, v{r}")
            A("s_waitcnt lgkmcnt(0)")
            l_arrive(A)
            assert l_arrive(A) == LIMG_FREE
        if k == ZSK:
            for u in range(4):
                vm.op(f"buffer_store_dwordx4 {v(MID+4*u,4)}, v2, {r4(S0)}, 0 offen offset:{u*1024} sc1", "zst")
            mark(A, 2)
    if WMID and k == WSK:
        wt_store(A, vm)
    if (A1K and not LATE) or WEARLY:
        KS = (max(ZSK, WSK) if A1K else WSK) + LA + 1
        cnt, flg = (CNT_A, FLG_A) if A1K else (CNT_W, FLG_W)
        assert WMID and KS + 2 <= 13 and (not A1K or ZSK >= A1K + 3 + FINE)
        if k == KS - 1 and A1K:
            a2_setup(A)
        if k == KS:
            x, y = uid("sg"), uid("sg")
            A(f"v_readfirstlane_b32 s{NONCE}, v21\ns_cmp_lg_u32 s{NONCE}, 0\ns_cbranch_scc1 {y}")
            get_nonce(A, 20)
            A.label(y)
            A(f"s_cmp_lg_u32 s{W_}, 0\ns_cbranch_scc1 {x}")
            A(f"s_and_b32 s{T4}, s2, 15\ns_lshl_b32 s{T5}, s{T4}, 7\ns_add_u32 s{T5}, s{T5}, {cnt}")
            A(f"s_add_u32 s{MSK}, s{WS}, s{T5}\ns_addc_u32 s{MSK+1}, s{WS+1}, 0\ns_mov_b32 s27, 1")
            A(f"s_atomic_add s27, {sp(MSK)}, 0x0 glc")
            A.label(x)
        if k == KS + 2:
            x = uid("sg")
            A(f"s_cmp_lg_u32 s{W_}, 0\ns_cbranch_scc1 {x}")
            A(f"s_waitcnt lgkmcnt(0)\ns_cmp_lg_u32 s27, 15\ns_cbranch_scc1 {x}")
            A(f"s_and_b32 s27, s2, 15\ns_lshl_b32 s27, s27, 2\ns_add_u32 s27, s27, {flg}\nv_lshl_add_u32 v22, v1, 7, s27\nv_mov_b32 v23, s{NONCE}")
            A(f"global_store_dword v22, v23, {sp(WS)} sc1")
            A.label(x)
        if k == POLLK and A1K:
            flag_poll(A, flg)


def flag_poll(A, flg):
    A(f"s_lshl_b32 s{T4}, s2, 2\ns_add_u32 s{T4}, s{T4}, s{W_}\ns_lshr_b32 s{T4}, s{T4}, 4\ns_lshl_b32 s{T4}, s{T4}, 7\ns_add_u32 s{T4}, s{T4}, {flg}")
    A(f"s_add_u32 s24, s{WS}, s{T4}\ns_addc_u32 s25, s{WS+1}, 0")
    A(f"s_load_dwordx16 s[4:19], s[24:25], 0x0 glc")


def flag_wait(A):
    late, go, pl_ = uid("late"), uid("go"), uid("sp")
    A(f"s_mov_b32 s26, s{NONCE}\ns_mov_b32 s27, s{NONCE}\ns_mov_b32 s{CNT}, 0\ns_branch {pl_}")
    A.label(late)
    A(f"s_add_u32 s{CNT}, s{CNT}, 1\ns_cmp_ge_u32 s{CNT}, {SPIN_MAX}\ns_cbranch_scc1 {go}")
    A(f"s_sleep 8\ns_load_dwordx16 s[4:19], s[24:25], 0x0 glc")
    A.label(pl_)
    A("s_waitcnt lgkmcnt(0)")
    for q in range(8):
        A(f"s_cmp_eq_u64 s[{4+2*q}:{5+2*q}], s[26:27]\ns_cbranch_scc0 {late}")
    A.label(go)


RR = lambda arr, kind: 104 + (arr*4 + kind)*2


def wt_read(A):
    for arr in range(2):
        for kind in range(4):
            A(f"ds_read_b64 {v(RR(arr,kind),2)}, v16 offset:{arr*1024 + kind*256}")
    A(f"s_mov_b32 s{T4}, 0x05040100\ns_mov_b32 s{T5}, 0x07060302")
    A(f"v_lshlrev_b32 v{WSP}, 16, v{WSP}\nv_lshlrev_b32 v{WSP+1}, 16, v{WSP+1}\nv_lshlrev_b32 v9, 1, v1")
    A(f"v_add_f32_dpp v{WSP+2}, v{WSP}, v{WSP} quad_perm:[1,0,3,2] row_mask:0xf bank_mask:0xf")
    A(f"v_subrev_f32_dpp v{WSP+3}, v{WSP+1}, v{WSP+1} quad_perm:[1,0,3,2] row_mask:0xf bank_mask:0xf")
    A(f"v_mul_f32 v{WSP+2}, 0.5, v{WSP+2}\nv_mul_f32 v{WSP+3}, 0.5, v{WSP+3}")
    A(f"v_cvt_pk_bf16_f32 v{WSP}, v{WSP+2}, v{WSP+3}")


def wt_perm(A):
    for kap in range(4):
        o = 120 + 4*kap
        for e in range(2):
            for h2 in range(2):
                kind = e + 2*h2
                A(f"v_perm_b32 v{o+2*e+h2}, v{RR(1,kind)+kap//2}, v{RR(0,kind)+kap//2}, s{T4 + kap % 2}")


def wt_store(A, vm):
    nw = uid("nw")
    A(f"s_cmp_lg_u32 s{W_}, 3\ns_cbranch_scc1 {nw}")
    A(f"s_lshr_b32 s{T4}, s2, 7\ns_mul_i32 s{T4}, s{T4}, {KS_}\ns_bfe_u32 s{T5}, s2, 0x10006\ns_mul_i32 s{T5}, s{T5}, {ISH}\ns_add_u32 s{T4}, s{T4}, s{T5}")
    A(f"s_and_b32 s{T5}, s2, 63\ns_lshl_b32 s{T5}, s{T5}, 6\ns_add_u32 s{T4}, s{T4}, s{T5}")
    srd(A, S3, WS, T4, WS_WT, 64)
    A("s_mov_b32 exec_lo, 0x55555555\ns_mov_b32 exec_hi, 0")
    if not E_("SKIPS", 0):
        A(f"buffer_store_dword v{WSP}, v9, {r4(S3)}, 0 offen sc1")
    A("s_mov_b64 exec, -1")
    A.label(nw)
    for kap in range(0 if "2" in SK else 4):
        A(f"s_mov_b32 s{CNT}, {kap*KS_}")
        vm.op(f"buffer_store_dwordx4 {v(120+4*kap,4)}, v15, {r4(S4)}, s{CNT} offen sc1", "wst")


def a1_task(A, vm):
    y = uid("sg")
    A(f"v_readfirstlane_b32 s{NONCE}, v21\ns_cmp_lg_u32 s{NONCE}, 0\ns_cbranch_scc1 {y}")
    get_nonce(A, 20)
    A.label(y)
    if WK == 17:
        w_issue(A, vm)
    vm.wait_for("ax")
    mark(A, 6)
    for s_ in range(4):
        for u in range(2):
            A(f"ds_read_b64_tr_b16 {v(IN+4*s_+2*u,2)}, v{12+u} offset:{s_*512}")
    A("s_waitcnt lgkmcnt(0)")
    stage1(A, IN, D)
    twiddle(A, D, MID, TMP)
    stage2(A, MID, D)
    if WK == 18:
        w_issue(A, vm)
    A(f"s_lshl_b32 s{CNT}, s{W_}, 12\ns_add_u32 s{CNT}, s{CNT}, {L_IMG}\nv_add_u32 v8, s{CNT}, v{VLIN}")
    for i in range(16):
        A(f"v_cvt_pk_bf16_f32 v{MID+i}, v{D+i}, v{D+16+i}")
        a, o = img(i)
        A(f"ds_write_b32 v{a}, v{MID+i} offset:{o}")
    together = not WMID and WK < 17
    if together:
        vm.wait_for("w")
    A("s_waitcnt lgkmcnt(0)")
    l_sync(A)
    for u in range(4):
        A(f"ds_read_b128 {v(MID+4*u,4)}, v8 offset:{u*1024}")
    if together:
        wt_read(A)
    for r in (VA1, VA2, VA8):
        A(f"v_add_u32 v{r}, {L_AX - L_IMG}, v{r}")
    A("s_waitcnt lgkmcnt(0)")
    p = l_arrive(A)
    assert p == LIMG_FREE
    if together:
        wt_perm(A)
    if GATE:
        l_check(A, 2, -16)
    for u in range(0 if "3" in SK else 4):
        vm.op(f"buffer_store_dwordx4 {v(MID+4*u,4)}, v2, {r4(S0)}, 0 offen offset:{u*1024} sc1", "zst")
    if not WMID and not together:
        vm.wait_for("w")
        l_sync(A)
        wt_read(A)
        A("s_waitcnt lgkmcnt(0)")
        wt_perm(A)
    if not WMID or WSK > 15:
        wt_store(A, vm)
    mark(A, 2)


def a2_setup(A):
    A(f"s_and_b32 s{M_}, s2, 7\ns_lshl_b32 s{M_}, s{M_}, 5\ns_lshr_b32 s{T4}, s2, 3\ns_add_u32 s{M_}, s{M_}, s{T4}")
    A(f"s_lshr_b32 s{T4}, s{W_}, 1\ns_xor_b32 s{T4}, s{T4}, s{W_}\ns_and_b32 s{T4}, s{T4}, 1")
    A(f"s_or_b32 s{T5}, s{T4}, s{M_}\ns_cmp_eq_u32 s{T5}, 0\ns_cselect_b32 s{SPC}, 1, 0")
    A(f"s_lshl_b32 s{T5}, s{M_}, 1\ns_add_u32 s{T4}, s{T4}, s{T5}")
    A(f"s_mul_i32 s{T4}, s{T4}, {KS_}\ns_add_u32 s{T4}, s{T4}, {8192 if INOUT else WS_WT + 2*KS_}")
    A(f"s_lshr_b32 s{T5}, s{W_}, 1\ns_mul_i32 s{T9}, s{T5}, {KS_}\ns_add_u32 s{T9}, s{T9}, {WS_WT}")
    A(f"s_cmp_eq_u32 s{SPC}, 1\ns_cselect_b32 s{T4}, s{T9}, s{T4}\ns_cselect_b32 s{T5}, 0, s{T5}")
    A(f"s_cselect_b32 s{MSK}, s{WS}, s{OUT if INOUT else WS}\ns_cselect_b32 s{MSK+1}, s{WS+1}, s{(OUT if INOUT else WS)+1}")
    A(f"s_lshl_b32 s{CJ}, s{T5}, 31\ns_or_b32 s{SGN}, s{CJ}, 0x3f800000")
    srd(A, S2, MSK, T4, 0, ISH + 4096)
    if INOUT:
        A(f"s_lshl_b32 s{T4}, s{W_}, 22\ns_lshr_b32 s{T5}, s{M_}, 6\ns_lshl_b32 s{T5}, s{T5}, 19\ns_add_u32 s{T4}, s{T4}, s{T5}")
        A(f"s_and_b32 s{T5}, s{M_}, 63\ns_lshl_b32 s{T5}, s{T5}, 6\ns_add_u32 s{T4}, s{T4}, s{T5}")
        srd(A, S3, OUT, T4, 0, 160*16384, T5)
        srd(A, S4, OUT, T4, 0, 160*16384, T5)
    else:
        A(f"s_lshl_b32 s{T4}, s{W_}, 20\ns_lshl_b32 s{T5}, s{M_}, 6\ns_add_u32 s{T4}, s{T4}, s{T5}")
        srd(A, S3, WS, T4, WS_Z1, 0x100000, T5)
        srd(A, S4, WS, T4, WS_Z3, 0x100000, T5)
    A("v_lshrrev_b32 v8, 2, v1\nv_lshlrev_b32 v8, 14, v8\nv_and_b32 v9, 3, v1\nv_lshrrev_b32 v10, 4, v1\nv_xor_b32 v9, v9, v10\nv_lshl_add_u32 v14, v9, 4, v8")
    A(f"v_and_b32 v8, 31, v1\nv_bfe_u32 v9, v1, 2, 2\nv_xor_b32 v9, s{W_}, v9\nv_lshlrev_b32 v9, 4, v9\nv_lshl_add_u32 v9, v8, 6, v9")
    A(f"v_lshrrev_b32 v8, 5, v1\nv_lshl_add_u32 v9, v8, 11, v9\nv_add_u32 v15, {L_AX}, v9")
    A(f"s_lshl_b32 s{T4}, s{W_}, 13\ns_add_u32 s{T4}, s{T4}, {L_AX}\nv_add_u32 v16, s{T4}, v2")
    A(f"s_xor_b32 s{T5}, s{T4}, {3 << 13}\ns_cmp_eq_u32 s{SPC}, 1\ns_cselect_b32 s{T5}, s{T4}, s{T5}\nv_add_u32 v17, s{T5}, v2")
    A(f"v_add_u32 v18, s{T8}, v2")
    for kk in range(32):
        A(f"v_mul_f32 v{TT+kk}, s{SGN}, v{TT+kk}")


ZU = lambda u: (16*(u & 1) + 128*(u >> 1))*16384 if INOUT else u << 18


def a2_loads(A, z=True, w=True):
    for u in range(4 if z and '5' not in SK else 0):
        A(f"s_add_u32 m0, s{T8}, {u*1024}\ns_mov_b32 s{T4}, {ZU(u)}")
        A(f"buffer_load_dwordx4 v14, {r4(S3)}, s{T4} offen sc1 lds")
    A(f"s_movk_i32 s{T4}, {ISH}")
    for it in range(8 if w and '4' not in SK else 0):
        A(f"buffer_load_dwordx4 {v(W+4*it,4)}, v2, {r4(S2)}, {'0' if it < 4 else f's{T4}'} offen offset:{(it & 3)*1024} sc1")


def aux_rest(A, vm):
    def phase(cnt, flg, young=0):
        A(f"s_waitcnt vmcnt({young})")
        if E_("AM", 0) and cnt == CNT_A:
            mark(A, 5)
        p = l_arrive(A)
        x = uid("ph")
        A(f"s_cmp_lg_u32 s{W_}, 0\ns_cbranch_scc1 {x}")
        l_check(A, p)
        y, pl_, nok = uid("sg"), uid("sp"), uid("nok")
        A(f"s_and_b32 s{T4}, s2, 15\ns_lshl_b32 s{T5}, s{T4}, 7\ns_add_u32 s{T5}, s{T5}, {cnt}")
        A(f"s_add_u32 s{MSK}, s{WS}, s{T5}\ns_addc_u32 s{MSK+1}, s{WS+1}, 0\ns_mov_b32 s{T5}, 1")
        A(f"s_atomic_add s{T5}, {sp(MSK)}, 0x0 glc")
        A(f"s_lshl_b32 s{T4}, s{T4}, 2\ns_add_u32 s{T4}, s{T4}, {flg}\nv_lshl_add_u32 v20, v1, 7, s{T4}\nv_mov_b32 v21, s{NONCE}")
        if NREP:
            A(f"s_add_u32 s4, s{WS}, s{T4}\ns_addc_u32 s5, s{WS+1}, 0")
        A(f"s_and_b32 s{T4}, s2, {(NREP or 64) - 1}\ns_lshl_b32 s{T4}, s{T4}, 7\ns_add_u32 s{T4}, s{T4}, {flg}")
        A("s_waitcnt lgkmcnt(0)")
        A(f"s_cmp_lg_u32 s{T5}, 15\ns_cbranch_scc1 {y}")
        if NREP:
            for r in range(NREP):
                A(f"s_atomic_swap s{NONCE}, s[4:5], {hex(r*128)}")
            A("s_waitcnt lgkmcnt(0)")
        else:
            A(f"global_store_dword v20, v21, {sp(WS)} sc1")
        A.label(y)
        if E_("AM", 0) and cnt == CNT_A:
            mark(A, 8 if E_("AM", 0) == 3 else 6)
        A(f"s_add_u32 s{MSK}, s{WS}, s{T4}\ns_addc_u32 s{MSK+1}, s{WS+1}, 0\ns_mov_b32 s{T4}, s{NONCE}\ns_mov_b32 s{T5}, s{NONCE}\ns_mov_b32 s{CNT}, 0")
        A(f"s_branch {pl_}")
        A.label(nok)
        A(f"s_add_u32 s{CNT}, s{CNT}, 1\ns_cmp_ge_u32 s{CNT}, {SPIN_MAX}\ns_cbranch_scc1 {x}")
        if SLP_A:
            A(f"s_sleep {SLP_A}")
        A.label(pl_)
        A(f"s_load_dwordx16 s[4:19], {sp(MSK)}, 0x0 glc\ns_waitcnt lgkmcnt(0)")
        for q in range(8):
            A(f"s_cmp_eq_u64 s[{4+2*q}:{5+2*q}], {sp(T4)}\ns_cbranch_scc0 {nok}")
        A.label(x)
        l_sync(A)
    if LATE:
        y = uid("sg")
        A(f"v_readfirstlane_b32 s{NONCE}, v21\ns_cmp_lg_u32 s{NONCE}, 0\ns_cbranch_scc1 {y}")
        get_nonce(A, 20)
        A.label(y)
        a2_setup(A)
        A("s_barrier\ns_barrier")
        phase(CNT_A, FLG_A, len(vm.issued) - 1 - max(i for i, t in enumerate(vm.issued) if t in ("zst", "wst")))
        A(f"s_setprio {LPRIO2}")
        if A2G:
            l_check(A, A2G, -16)
        a2_loads(A)
    elif A1K:
        A(f"s_setprio {LPRIO2}\ns_barrier\ns_barrier")
        flag_wait(A)
        if A2G:
            l_check(A, A2G, -16)
        a2_loads(A)
        A(f"s_setprio {LPRIO2}")
    else:
        A("s_barrier\ns_barrier")
        A(f"s_setprio {LPRIO}")
        a1_task(A, vm)
        if WEARLY:
            flag_poll(A, FLG_W)
        a2_setup(A)
        if WEARLY:
            flag_wait(A)
            a2_loads(A, z=False)
        phase(CNT_A, FLG_A, 8 if WEARLY else 0)
        A(f"s_setprio {LPRIO2}")
        a2_loads(A, w=not WEARLY)
    mark(A, 7)
    A(f"s_waitcnt vmcnt({0 if (WEARLY and not A1K) or '4' in SK else 8})")
    if E_("AM", 0) in (1, 2):
        mark(A, 1)
    l_sync(A)
    INS = 72
    for s_ in range(4):
        A(f"ds_read_b128 {v(INS+4*s_,4)}, v15 offset:{s_*4096}")
    A("s_waitcnt lgkmcnt(0)")
    if E_("AM", 0) == 2:
        mark(A, 2)
    p6 = l_arrive(A)
    if A2C:
        l_check(A, A2C, -16)
    A(f"s_lshl_b32 s{T4}, s{SPC}, 31\ns_or_b32 s{T4}, s{T4}, s{CJ}")
    fl, nwr = uid("fft"), uid("nwr")
    A.label(fl)
    for i in range(16):
        A(f"v_xor_b32 v{IN+i}, s{T4}, v{INS+i}")
    stage1(A, IN, D)
    twiddle(A, D, IN, TMP)
    stage2(A, IN, D)
    l_check(A, p6)
    if E_("AM", 0) == 2:
        mark(A, 5)
    A(f"s_cmp_eq_u32 s{SPC}, 2\ns_cbranch_scc1 {nwr}")
    for c in range(8):
        A(f"ds_write_b128 v16, {v(D+4*c,4)} offset:{c*1024}")
    A(f"s_cmp_eq_u32 s{SPC}, 0\ns_cbranch_scc1 {nwr}")
    A(f"s_mov_b32 s{SPC}, 2\ns_mov_b32 s{T4}, 0\ns_branch {fl}")
    A.label(nwr)
    A("s_waitcnt lgkmcnt(0)")
    l_sync(A)
    for c in range(8):
        A(f"ds_read_b128 {v(DY+4*c,4)}, v17 offset:{c*1024}")
    A("s_waitcnt vmcnt(0) lgkmcnt(0)")
    if E_("AM", 0) in (1, 2):
        mark(A, 4)
    p8 = l_arrive(A)
    for i in range(16 if "w" not in SK else 0):
        w = W + 2*i
        r1, i1, r2, i2, Ar, Ai, Or, Oi = (TMP + 8*(i & 1) + c for c in range(8))
        A(f"v_lshlrev_b32 v{r1}, 16, v{w}\nv_and_b32 v{i1}, 0xffff0000, v{w}")
        A(f"v_lshlrev_b32 v{r2}, 16, v{w+1}\nv_and_b32 v{i2}, 0xffff0000, v{w+1}")
        Dr, Di, Gr, Gi = r1, i1, r2, i2
        Xr, Xi, Yr, Yi, rho, sg = D+i, D+16+i, DY+i, DY+16+i, TT+i, TT+16+i
        A(f"v_add_f32 v{Ar}, v{r1}, v{r2}\nv_add_f32 v{Ai}, v{i1}, v{i2}")
        A(f"v_sub_f32 v{Dr}, v{r1}, v{r2}\nv_sub_f32 v{Di}, v{i1}, v{i2}")
        A(f"v_mul_f32 v{Gr}, v{sg}, v{Xr}\nv_mul_f32 v{Gi}, v{sg}, v{Xi}")
        A(f"v_mul_f32 v{Or}, v{Ar}, v{Xr}\nv_mul_f32 v{Oi}, v{Ar}, v{Xi}")
        A(f"v_fma_f32 v{Gr}, -v{rho}, v{Yi}, v{Gr}\nv_fmac_f32 v{Gi}, v{rho}, v{Yr}")
        A(f"v_fma_f32 v{Or}, -v{Ai}, v{Xi}, v{Or}\nv_fmac_f32 v{Oi}, v{Ai}, v{Xr}")
        A(f"v_fmac_f32 v{Or}, v{Dr}, v{Gr}\nv_fmac_f32 v{Oi}, v{Dr}, v{Gi}")
        A(f"v_fma_f32 v{Or}, -v{Di}, v{Gi}, v{Or}\nv_fmac_f32 v{Oi}, v{Di}, v{Gr}")
        A(f"v_cvt_pk_bf16_f32 v{IN+i}, v{Oi}, v{Or}")
    if E_("AM", 0) == 2:
        mark(A, 6)
    stage1(A, IN, D)
    twiddle(A, D, IN, TMP)
    stage2(A, IN, D)
    A(f"s_lshr_b32 s{T4}, s{CJ}, 16")
    l_check(A, p8)
    for s_ in range(4):
        for r in range(4):
            i = 4*s_ + r
            A(f"v_cvt_pk_bf16_f32 v{IN+i}, v{D+i}, v{D+16+i}\nv_xor_b32 v{IN+i}, s{T4}, v{IN+i}")
        A(f"ds_write_b128 v15, {v(IN+4*s_,4)} offset:{s_*4096}")
    A("s_waitcnt lgkmcnt(0)")
    if E_("AM", 0) == 2:
        mark(A, 7)
    l_sync(A)
    for u in range(4):
        A(f"ds_read_b128 {v(IN+4*u,4)}, v18 offset:{u*1024}")
    for u in range(4):
        A(f"s_mov_b32 s{T4}, {ZU(u)}\ns_waitcnt lgkmcnt({3-u})")
        if "6" not in SK:
            A(f"buffer_store_dwordx4 {v(IN+4*u,4)}, v14, {r4(S4)}, s{T4} offen sc1")
    if E_("AM", 0) != 3:
        mark(A, 3)
    A(f"s_lshl_b32 s{T4}, s{T7}, 14")
    srd(A, S0, OUT, T4, 0, 0x4000)
    A("v_and_b32 v8, 31, v1\nv_lshrrev_b32 v9, 5, v1\nv_lshlrev_b32 v14, 2, v8\nv_lshl_add_u32 v14, v9, 9, v14")
    A(f"s_mov_b32 s{T4}, 0x35000000")
    for k in range(32):
        A(f"v_mul_f32 v{T+k}, s{T4}, v{T+k}")
    phase(CNT_B, FLG_B)
    A(f"s_setprio {LPRIO3}")
    if E_("AM", 0) != 3:
        mark(A, 8)
    A(f"s_mov_b32 m0, s{T8}")
    for u in range(4):
        if "7" not in SK:
            A(f"buffer_load_dwordx4 v{VLIN}, {r4(S1)}, 0 offen offset:{u*1024} sc1 lds")
    A("s_waitcnt vmcnt(0)")
    l_sync(A)
    for i in range(16):
        a, o = img(i)
        A(f"ds_read_b32 v{IN+i}, v{a} offset:{o}")
    A("s_waitcnt lgkmcnt(0)")
    stage1(A, IN, D)
    twiddle(A, D, IN, TMP)
    stage2(A, IN, D)
    A(f"s_movk_i32 s{T4}, 0x2000")
    O = 72
    for i in range(16):
        o = O + 2*i
        A(f"v_cvt_pk_bf16_f32 v{o+1}, v{D+16+i}, v{D+i}")
        A(f"v_lshlrev_b32 v{o}, 16, v{o+1}\nv_and_b32 v{o+1}, 0xffff0000, v{o+1}")
        off = (i >> 2)*1024 + (i & 3)*128
        if "8" not in SK:
            A(f"buffer_store_dword v{o}, v14, {r4(S0)}, 0 offen offset:{off}{OST}")
            A(f"buffer_store_dword v{o+1}, v14, {r4(S0)}, s{T4} offen offset:{off}{OST}")


def cmul_sq(A, d, a, t):
    A(f"v_mul_f32 {v(t)}, {v(a+1)}, {v(a+1)}")
    A(f"v_mul_f32 {v(t+1)}, {v(a)}, {v(a+1)}")
    A(f"v_fma_f32 {v(d)}, {v(a)}, {v(a)}, -{v(t)}")
    A(f"v_add_f32 {v(d+1)}, {v(t+1)}, {v(t+1)}")


def horner(A, dr, di, L, pr, pi, er, ei, t):
    assert dr not in (pr, pi) and di not in (pr, pi)
    A(f"v_fma_f32 {v(t)}, {v(L)}, {v(pr)}, {v(er)}")
    A(f"v_fma_f32 {v(t+1)}, {v(L)}, {v(pi)}, {v(ei)}")
    A(f"v_fma_f32 {v(dr)}, -{v(L+1)}, {v(pi)}, {v(t)}")
    A(f"v_fma_f32 {v(di)}, {v(L+1)}, {v(pr)}, {v(t+1)}")


def loader(A, name, kidx):
    RA, RB, ROT, M0B, SOF, RV = 12, 20, 24, 25, 26, 176
    A(f"s_sub_u32 s{W_}, s{WAVE}, 4")
    A("v_lshrrev_b32 v2, 5, v1\nv_bfe_u32 v3, v1, 3, 2")
    A("v_and_b32 v4, 1, v3\nv_lshrrev_b32 v5, 1, v3")
    A("v_lshlrev_b32 v6, 5, v2\nv_lshl_add_u32 v6, v4, 4, v6\nv_add_u32 v6, v6, v5")
    A(f"s_lshr_b32 s{T0}, s{W_}, 1\ns_lshl_b32 s{T1}, s{T0}, 6\ns_and_b32 s{T2}, s{W_}, 1\ns_lshl_b32 s{T2}, s{T2}, 3\ns_add_u32 s{T1}, s{T1}, s{T2}")
    A(f"v_add_u32 v6, s{T1}, v6\nv_lshlrev_b32 v6, 11, v6")
    A(f"s_lshl_b32 s{T1}, s{T0}, 5")
    A(f"v_lshl_add_u32 v7, v2, 3, v3\nv_add_u32 v7, s{T1}, v7\nv_lshlrev_b32 v7, 11, v7")
    A("v_and_b32 v4, 7, v1\nv_lshrrev_b32 v5, 4, v1\nv_xor_b32 v4, v4, v5\nv_lshlrev_b32 v4, 4, v4")
    A("v_xor_b32 v5, 64, v4")
    for u in range(4):
        ch = 4 if u % 2 == 0 else 5
        A(f"v_add_u32 v{RV+u}, v6, v{ch}")
        if u:
            A(f"v_add_u32 v{RV+u}, {u*4096 - u*1024}, v{RV+u}")
        A(f"v_add_u32 v{RV+4+u}, v7, v{ch}")
        if u:
            A(f"v_add_u32 v{RV+4+u}, {(16*(u>>1) + 4*(u&1))*2048 - u*1024}, v{RV+4+u}")
    A(f"s_and_b32 s{T4}, s2, 7\ns_mul_i32 s{T4}, s{T4}, {XO*128}")
    A(f"s_add_u32 s{T0}, s{TI}, s{TJ}\ns_and_b32 s{T0}, s{T0}, {NP-1}\ns_mul_i32 s{T0}, s{T0}, {2048//NP}\ns_add_u32 s{T4}, s{T4}, s{T0}")
    if RI or RJ:
        A(f"s_mul_i32 s{T0}, s{TI}, {RI*128}\ns_add_u32 s{T4}, s{T4}, s{T0}\ns_mul_i32 s{T0}, s{TJ}, {RJ*128}\ns_add_u32 s{T4}, s{T4}, s{T0}")
    A(f"s_lshl_b32 s{T0}, s{TI}, 18\ns_lshl_b32 s{T1}, s{TJ}, 17")
    A("s_waitcnt lgkmcnt(0)")
    A(f"s_lshl_b32 s{M0B}, s{W_}, 12\ns_mov_b32 s{ROT}, s{T4}")
    srd(A, RA, BX, T0, 0, 0x40000)
    A(f"s_bitcmp1_b32 s{W_}, 0\ns_cselect_b32 s{T2}, s{BIM}, s{BRE}\ns_cselect_b32 s{T3}, s{BIM+1}, s{BRE+1}")
    A(f"s_cselect_b32 s100, s{CIM}, s{CRE}\ns_cselect_b32 s101, s{CIM+1}, s{CRE+1}")
    srd(A, RB, T2, T1, 0, 0x20000)
    mark(A, 5)
    vm = VmCounter(A)

    def issue(k):
        slot = k % NS
        A(f"s_add_u32 m0, s{M0B}, {slot*32768}")
        A(f"s_add_u32 s{SOF}, s{ROT}, {k*128}\ns_and_b32 s{SOF}, s{SOF}, 0x7ff")
        for u in range(4):
            vm.op(f"buffer_load_dwordx4 v{RV+u}, {r4(RA)}, s{SOF} offen offset:{u*1024}{NTX if k < NTK else ''} lds", ("st", k))
        A(f"s_add_u32 m0, s{M0B}, {slot*32768 + 16384}")
        for u in range(4):
            vm.op(f"buffer_load_dwordx4 v{RV+4+u}, {r4(RB)}, s{SOF} offen offset:{u*1024}{NTX if k < NTK else ''} lds", ("st", k))
    issue(0)
    A(f"s_setprio {LPRIO0}")
    if TLBW:
        A(f"s_lshr_b32 s27, s2, 3\ns_lshl_b32 s27, s27, 2\ns_add_u32 s27, s27, s{W_}")
        for base, off, size in ((WS, WS_HT, 8 << 20), (WS, WS_Z1, 4 << 20), (WS, WS_WT, 4 << 20), (WS, WS_XB, 8 << 20), (OUT, 0, 16 << 20), (WS, 0, 1 << 20), (100, 0, 2 << 20)):
            share = size // 128
            A(f"s_mul_i32 s{SOF}, s27, {share}\ns_add_u32 s{SOF}, s{SOF}, {off}")
            for o in range(0, share, max(TLBW*1024, 1)):
                A(f"s_load_dword s3, {sp(base)}, s{SOF} offset:{o}")
    issued = 1
    if not NOAUX:
        aux_setup(A)
        aux_pre(A)
    for k in range(-1, 16):
        if k >= 0:
            vm.wait_for(("st", k))
            A("s_barrier")
        if k in (0, 12):
            mark(A, 1 + k//4)
        while issued < min(16, k + LA + 1 + (k >= LASW)):
            issue(issued)
            issued += 1
        if not NOAUX:
            aux_hook(A, vm, k)
        if KA and KA0 <= k <= KA1 and (NOAUX or k != WK + LA):
            if k == KA0:
                A(f"s_lshl_b32 s27, s2, 2\ns_add_u32 s27, s27, s{W_}\ns_lshr_b32 s27, s27, 1\ns_lshl_b32 s27, s27, 12")
            for n in range(KA):
                A(f"s_load_dword s3, s[100:101], s27 offset:{((k*KA + n)*128) % 4096}{' glc' if KAG else ''}")
        if CTOUCH == 4 and k == CTK:
            A(f"s_and_b32 s{SOF}, s2, 1\ns_lshl_b32 s{SOF}, s{SOF}, 10\ns_bfe_u32 s{CNT}, s2, 0x20001\ns_lshl_b32 s{CNT}, s{CNT}, 19\ns_add_u32 s{SOF}, s{SOF}, s{CNT}")
            A(f"s_lshr_b32 s{CNT}, s2, 3\ns_lshl_b32 s{CNT}, s{CNT}, 14\ns_add_u32 s{SOF}, s{SOF}, s{CNT}")
            A(f"s_lshr_b32 s{CNT}, s{W_}, 1\ns_lshl_b32 s{CNT}, s{CNT}, 13\ns_add_u32 s{SOF}, s{SOF}, s{CNT}")
            A(f"v_bfe_u32 v22, v1, 3, 2\nv_lshlrev_b32 v22, 11, v22\nv_and_b32 v23, 7, v1\nv_lshl_add_u32 v22, v23, 7, v22\nv_add_u32 v22, s{SOF}, v22")
            A("s_mov_b32 exec_hi, 0")
            vm.op(f"global_load_dword v23, v22, s[100:101]", "touch")
            A("s_mov_b64 exec, -1")
    assert issued == 16
    if NOAUX:
        A("s_barrier\ns_barrier")
    else:
        aux_rest(A, vm)
    stamp_end(A, kidx, WAVE)
    A("s_endpgm")


def gemm_waves(A, name, kidx):
    ACC = lambda T_, c: 64 + (T_*2 + c)*16
    FR = lambda X, f: 32 + X*16 + f*4
    AD = lambda st, op, ks: 128 + st*8 + op*4 + ks
    LAM, KC, L16, L128, L256 = 24, 26, 28, 30, 2
    WT_, WP = T8, T6
    A(f"s_lshr_b32 s{WT_}, s{WAVE}, 1\ns_and_b32 s{WP}, s{WAVE}, 1")
    A("v_and_b32 v6, 31, v1\nv_lshrrev_b32 v5, 5, v1")
    A("v_and_b32 v4, 0x13, v6")
    A("v_bfe_u32 v7, v6, 2, 1\nv_lshl_or_b32 v4, v7, 3, v4")
    A("v_bfe_u32 v7, v6, 3, 1\nv_lshl_or_b32 v4, v7, 2, v4")
    A(f"s_lshl_b32 s{T0}, s{TJ}, 6\ns_lshl_b32 s{T1}, s{WP}, 5\ns_add_u32 s{T0}, s{T0}, s{T1}")
    A(f"v_add_u32 v4, s{T0}, v4")
    A("v_lshlrev_b32 v7, 1, v4\nv_lshlrev_b32 v11, 4, v1")
    A("s_waitcnt lgkmcnt(0)")
    A(f"global_load_ushort v8, v7, {sp(LRE)}\nglobal_load_ushort v9, v7, {sp(LIM)}\nglobal_load_ushort v10, v7, {sp(LDT)}")
    nn = uid("nn")
    A(f"s_lshl_b32 s{T0}, s2, 3\ns_add_u32 s{T0}, s{T0}, s{WAVE}\ns_cmp_lg_u32 s{T0}, 1")
    A(f"s_cbranch_scc1 {nn}")
    A(f"s_load_dword s{T0}, {sp(WS)}, {WS_NONCE}")
    A(f"v_mov_b32 v16, 0\nv_lshlrev_b32 v17, 7, v1\nv_add_u32 v17, {WS_CNT}, v17")
    A(f"global_store_dword v17, v16, {sp(WS)} sc1")
    A("s_waitcnt vmcnt(0) lgkmcnt(0)")
    A(f"s_add_u32 s{T0}, s{T0}, 1\ns_cmp_eq_u32 s{T0}, 0\ns_cselect_b32 s{T0}, 1, s{T0}")
    A(f"v_mov_b32 v17, s{T0}")
    A(f"s_mov_b64 exec, 1\nglobal_store_dword v16, v17, {sp(DBG)} sc1")
    A(f"global_store_dword v16, v17, {sp(WS)} offset:{WS_NONCE}\ns_mov_b64 exec, -1")
    A.label(nn)
    if CODEPF:
        pf = uid("pf")
        A(f"s_cmp_lg_u32 s{WAVE}, 0")
        A(f"s_cbranch_scc1 {pf}")
        A(f"s_lshr_b32 s{T0}, s2, 3\ns_lshl_b32 s{T0}, s{T0}, 11\nv_and_b32 v12, 15, v1\nv_lshl_add_u32 v12, v12, 7, s{T0}")
        A(f"v_min_u32 v12, L_{name}_end-{name}, v12")
        pc = uid("pc")
        A(f"s_getpc_b64 {sp(T0)}")
        A.label(pc)
        A(f"s_sub_u32 s{T0}, s{T0}, {pc}-{name}\ns_subb_u32 s{T1}, s{T1}, 0")
        A(f"global_load_dword v247, v12, {sp(T0)}")
        A.label(pf)
    if VTLB:
        vt = uid("vt")
        sh = {64: 16, 256: 18, 512: 19, 1024: 20, 2048: 21}[VTLB]
        assert VTLB >= 1024
        A(f"s_cmp_lt_u32 s{WAVE}, 2\ns_cbranch_scc1 {vt}")
        A(f"s_lshr_b32 s{T0}, s2, 3\ns_cmp_ge_u32 s{T0}, {VTN}\ns_cbranch_scc1 {vt}")
        A(f"s_lshl_b32 s{T0}, s2, 7\nv_lshlrev_b32 v12, {sh}, v1\nv_add_u32 v12, s{T0}, v12")
        a_ = uid("vt")
        A(f"s_cmp_eq_u32 s{WAVE}, 3\ns_cbranch_scc1 {a_}")
        A(f"v_min_u32 v13, {0x2800000 - 128}, v12\nglobal_load_dword v246, v13, {sp(WS)}{VTF}\ns_branch {vt}")
        A.label(a_)
        A(f"v_min_u32 v13, {0x1000000 - 128}, v12\nglobal_load_dword v246, v13, {sp(OUT)}{VTF}")
        A(f"v_min_u32 v13, {0x200000 - 128}, v12\nglobal_load_dword v245, v13, {sp(CRE)}{VTF}\nglobal_load_dword v244, v13, {sp(CIM)}{VTF}")
        A.label(vt)
    A("v_bfe_u32 v7, v6, 1, 3\nv_xor_b32 v7, v7, v5\nv_lshlrev_b32 v7, 4, v7\nv_lshl_add_u32 v7, v6, 7, v7")
    A(f"s_lshl_b32 s{T0}, s{WT_}, 13\ns_lshl_b32 s{T1}, s{WP}, 13\ns_add_u32 s{T1}, s{T1}, 16384")
    for ks in range(4):
        A(f"v_xor_b32 v12, {ks << 5}, v7")
        A(f"v_add_u32 v{AD(0,0,ks)}, s{T0}, v12\nv_add_u32 v{AD(0,1,ks)}, s{T1}, v12")
        A(f"v_add_u32 v{AD(1,0,ks)}, 0x10000, v{AD(0,0,ks)}\nv_add_u32 v{AD(1,1,ks)}, 0x10000, v{AD(0,1,ks)}")
    for r in range(64, 128, 2):
        A(f"v_mov_b64 v[{r}:{r+1}], 0")
    def sync_init():
        A(f"v_mov_b32 v34, {L_SYNC}\nv_mov_b64 v[36:37], 0\nv_mov_b64 v[38:39], 0")
        A("s_mov_b64 exec, 1\nds_write_b128 v34, v[36:39]\nds_write_b128 v34, v[36:39] offset:16\ns_mov_b64 exec, -1")
    if NS == 3:
        sync_init()
    A("v_lshlrev_b32 v12, 4, v5\nv_sub_u32 v12, v6, v12\nv_mov_b32 v13, 0x3f80\nv_mov_b32 v14, 1.0")
    for c in range(8):
        A(f"v_cmp_eq_u32 vcc, {c}, v12\nv_cmp_eq_u32 {sp(T0)}, {c+8}, v12")
        A(f"v_cndmask_b32 v{248+c}, 0, v13, vcc\nv_cndmask_b32 v{248+c}, v{248+c}, v14, {sp(T0)}")
    srd(A, S0, WS, None, WS_EG, 0x40000)
    srd(A, S1, WS, None, WS_HT, 64*TBS)
    A("s_waitcnt vmcnt(0)")
    A("v_lshlrev_b32 v8, 16, v8\nv_lshlrev_b32 v9, 16, v9\nv_lshlrev_b32 v10, 16, v10")
    A("v_mul_f32 v10, 0x3fb8aa3b, v10\nv_exp_f32 v10, v10")
    A("v_cvt_pk_bf16_f32 v10, v10, v10\nv_lshlrev_b32 v10, 16, v10")
    A("v_mul_f32 v12, v10, v8\nv_mul_f32 v13, v10, v9")
    A("v_mul_f32 v12, 0x3fb8aa3b, v12\nv_exp_f32 v12, v12")
    A("v_mul_f32 v13, 0.15915494, v13\nv_rndne_f32 v14, v13\nv_sub_f32 v13, v13, v14")
    A("v_cos_f32 v14, v13\nv_sin_f32 v15, v13")
    A(f"v_mul_f32 v{LAM}, v12, v14\nv_mul_f32 v{LAM+1}, v12, v15")
    A(f"v_add_f32 v12, -1.0, v{LAM}")
    A("v_mul_f32 v13, v8, v8\nv_fma_f32 v13, v9, v9, v13\nv_rcp_f32 v13, v13")
    A("v_add_f32 v13, v13, v13")
    A(f"v_mul_f32 v14, v12, v8\nv_fma_f32 v14, v{LAM+1}, v9, v14\nv_mul_f32 v{KC}, v14, v13")
    A(f"v_mul_f32 v14, v{LAM+1}, v8\nv_fma_f32 v14, -v12, v9, v14\nv_mul_f32 v{KC+1}, v14, v13")
    L32 = 20
    cmul_sq(A, L16, LAM, 12)
    for _ in range(3):
        cmul_sq(A, L16, L16, 12)
    cmul_sq(A, L32, L16, 12)
    cmul_sq(A, L128, L32, 12)
    cmul_sq(A, L128, L128, 12)
    cmul_sq(A, L256, L128, 12)

    def reads(k, ks, which):
        slot = k % NS
        st, off = slot >> 1, (slot & 1)*32768
        X = ks & 1
        for f in which:
            op = 0 if f in (0, 3) else 1
            hi = 4096 if f in (2, 3) else 0
            A(f"ds_read_b128 {v(FR(X, f), 4)}, v{AD(st, op, ks)} offset:{off + hi}")

    def mfma(T_, c, X):
        a = FR(X, 0 if T_ == 0 else 3)
        b = FR(X, 1 if c == 0 else 2)
        if E_("HACK16", 0) & 1:
            for z in range(2):
                d = ACC(T_, c) + 8*X + 4*z
                A(f"v_mfma_f32_16x16x32_bf16 {v(d,4)}, {v(a,4)}, {v(b,4)}, {v(d,4)}")
        else:
            A(f"{MF} {v(ACC(T_,c),16)}, {v(a,4)}, {v(b,4)}, {v(ACC(T_,c),16)}")
    A("s_waitcnt lgkmcnt(0)\ns_barrier")
    reads(0, 0, [0, 1, 2, 3])
    for k in range(16):
        for ks in range(4):
            X = ks & 1
            nk, nks = (k, ks+1) if ks < 3 else (k+1, 0)
            have = nk < 16
            if ks == 3:
                A("s_waitcnt lgkmcnt(0)\ns_barrier")
            else:
                A("s_waitcnt lgkmcnt(2)")
            if ks == 0 and str(k) in os.environ.get("PZ", "").split(","):
                A(f"s_sleep {E_('PZN', 10)}")
            if k == 12 and ks == 0:
                A("v_mov_b32 v12, 0")
                A(f"global_load_dword v13, v12, {sp(DBG)} sc1")
            mfma(0, 0, X)
            if have:
                reads(nk, nks, [0, 1])
            if ks != 3:
                A("s_waitcnt lgkmcnt(3)")
            mfma(0, 1, X)
            if have:
                reads(nk, nks, [2, 3])
            if ks != 3:
                A("s_waitcnt lgkmcnt(4)")
            mfma(1, 0, X)
            mfma(1, 1, X)
    mark(A, 1)
    U = lambda c, idx: ACC(idx >> 3, c) + 2*(idx & 7)
    bc_a = "op_sel_hi:[0,1,1]"
    bc_b = "op_sel:[1,0,0]"
    TT = 40

    def pk_step(L, dr, di, pr, pi, ur, ui):
        A(f"v_pk_fma_f32 {v(TT,2)}, {v(L,2)}, {v(pr,2)}, {v(ur,2)} {bc_a}")
        A(f"v_pk_fma_f32 {v(TT+2,2)}, {v(L,2)}, {v(pi,2)}, {v(ui,2)} {bc_a}")
        A(f"v_pk_fma_f32 {v(dr,2)}, {v(L,2)}, {v(pi,2)}, {v(TT,2)} {bc_b} {N0}")
        A(f"v_pk_fma_f32 {v(di,2)}, {v(L,2)}, {v(pr,2)}, {v(TT+2,2)} {bc_b}")
    A(f"s_lshl_b32 s{T0}, s{WP}, 10\ns_add_u32 s{T0}, s{T0}, {L_XCH}\ns_lshl_b32 s{T1}, s{WT_}, 4")
    A(f"v_lshl_add_u32 v14, v6, 5, s{T0}")
    A(f"v_lshl_add_u32 v15, v5, 3, v14\nv_add_u32 v15, s{T1}, v15")
    for idx in range(1, 16):
        pk_step(LAM, U(0, idx), U(1, idx), U(0, idx-1), U(1, idx-1), U(0, idx), U(1, idx))
    EA = (U(0, 15), U(1, 15))
    horner(A, 32, 33, L16, EA[0], EA[1], EA[0]+1, EA[1]+1, TT)
    A("ds_write_b64 v15, v[32:33]")
    if NS == 4:
        assert not A1K
        sync_init()
    A(f"s_sub_u32 s{T0}, s{TI}, 1\ns_lshl_b32 s{T0}, s{T0}, 14")
    A("v_lshlrev_b32 v16, 4, v4\nv_lshlrev_b32 v17, 14, v5\nv_sub_u32 v17, v16, v17")
    A(f"v_add_u32 v128, s{T0}, v17")
    A(f"s_lshl_b32 s{T0}, s{TI}, 14\nv_add_u32 v16, s{T0}, v16")
    A("v_lshlrev_b32 v17, 30, v5\nv_or_b32 v16, v16, v17")
    A("s_waitcnt lgkmcnt(0)\ns_barrier")
    SG = 144
    A(f"ds_read_b128 {v(SG,4)}, v14\nds_read_b128 {v(SG+4,4)}, v14 offset:16")
    nl, ng = uid("n"), uid("ng")
    A.label(nl)
    A("s_waitcnt vmcnt(0)")
    A(f"v_readfirstlane_b32 s{NONCE}, v13")
    A(f"s_cmp_lg_u32 s{NONCE}, 0")
    A(f"s_cbranch_scc1 {ng}")
    A(f"global_load_dword v13, v12, {sp(DBG)} sc1")
    A(f"s_branch {nl}")
    A.label(ng)
    P = 44
    A(f"v_mov_b32 v{P+2}, s{NONCE}\nv_mov_b32 v{P+3}, s{NONCE}")
    A(f"s_getreg_b32 s{T0}, hwreg(HW_REG_XCC_ID, 0, 4)\ns_lshl_b32 s{T1}, s{NONCE}, 4\ns_or_b32 s{LOCAL}, s{T0}, s{T1}\nv_mov_b32 v60, s{LOCAL}")
    A(f"s_lshr_b32 s{PG}, s{TJ}, 3")
    A(f"s_lshl_b32 s{T0}, s{TI}, 11\ns_add_u32 s{T0}, s{T0}, {FLG_X}\ns_lshl_b32 s{T1}, s{TJ}, 7\ns_add_u32 s{T1}, s{T1}, s{T0}\nv_mov_b32 v61, s{T1}")
    A(f"s_lshl_b32 s{T1}, s{PG}, 10\ns_add_u32 s{T0}, s{T0}, s{T1}\nv_and_b32 v62, 7, v1\nv_lshl_add_u32 v62, v62, 7, s{T0}")
    A("s_waitcnt lgkmcnt(0)")
    horner(A, 48, 49, L32, SG, SG+1, SG+2, SG+3, TT)
    horner(A, 50, 51, L32, 48, 49, SG+4, SG+5, TT)
    horner(A, P, P+1, L32, 50, 51, SG+6, SG+7, TT)
    np_ = uid("np")
    A(f"s_cmp_lg_u32 s{WT_}, 0")
    A(f"s_cbranch_scc1 {np_}")
    A(f"buffer_store_dwordx4 {v(P,4)}, v16, {r4(S0)}, 0 offen sc1")
    A(f"s_cmp_lg_u32 s{WP}, 0")
    A(f"s_cbranch_scc1 {np_}")
    A(f"s_mov_b64 exec, 1\nglobal_store_dword v61, v60, {sp(WS)} sc1\ns_mov_b64 exec, -1")
    A.label(np_)
    mark(A, 2)
    LB = 160
    A("v_mov_b32 v17, 0x40000000")
    for u in range(1, 8):
        A(f"v_subrev_u32 v{128+u}, {u*32768}, v128")
    for u in range(8):
        A(f"v_cmp_le_i32 vcc, 0, v{128+u}")
        A(f"v_cndmask_b32 v{136+u}, 0, v{P+2}, vcc")
        A(f"v_cndmask_b32 v{128+u}, v17, v{128+u}, vcc")
    def lbloads():
        for u in range(8):
            A(f"buffer_load_dwordx4 {v(LB+4*u,4)}, v{128+u}, {r4(S0)}, 0 offen sc1")
        A(f"global_load_dword v63, v62, {sp(WS)} sc1")
    A(f"s_lshl_b32 s{T0}, s{TI}, 1\ns_add_u32 s{T0}, s{T0}, s{WT_}\ns_lshl_b32 s{T0}, s{T0}, 12\ns_add_u32 s{T0}, s{T0}, {FLG_H}")
    A(f"s_lshl_b32 s{T1}, s{PG}, 11\ns_add_u32 s{T1}, s{T1}, s{T0}\nv_and_b32 v18, 15, v1\nv_lshl_add_u32 v18, v18, 7, s{T1}")
    A(f"s_lshl_b32 s{T1}, s{TJ}, 8\ns_add_u32 s{T0}, s{T0}, s{T1}\ns_lshl_b32 s{T1}, s{WP}, 7\ns_add_u32 s{T0}, s{T0}, s{T1}\nv_mov_b32 v19, s{T0}")
    if FTOUCH:
        A(f"global_load_dword v243, v18, {sp(WS)} sc1")
    if LBAT == 0:
        lbloads()
    O = 52
    PW = lambda idx: 208 + 2*idx
    A(f"v_mul_f32 v{O}, v{KC+1}, v{LAM+1}\nv_mul_f32 v{O+1}, v{KC+1}, v{LAM}")
    A(f"v_fma_f32 v{PW(0)}, v{KC}, v{LAM}, -v{O}\nv_fma_f32 v{PW(0)+1}, v{KC}, v{LAM+1}, v{O+1}")
    for idx in range(16):
        d = (U(0, idx), U(1, idx))
        A(f"v_pk_mul_f32 {v(O,2)}, {v(KC,2)}, {v(d[0],2)} op_sel_hi:[0,1]")
        A(f"v_pk_mul_f32 {v(O+2,2)}, {v(KC,2)}, {v(d[1],2)} op_sel_hi:[0,1] neg_lo:[1,0] neg_hi:[1,0]")
        if idx == 15:
            A(f"v_mov_b32 v56, v{d[0]}\nv_mov_b32 v57, v{d[1]}")
        if idx < 15:
            A(f"v_mul_f32 v58, v{PW(idx)+1}, v{LAM+1}\nv_mul_f32 v59, v{PW(idx)+1}, v{LAM}")
        A(f"v_pk_fma_f32 {v(O+2,2)}, {v(KC,2)}, {v(d[0],2)}, {v(O+2,2)} {bc_b} {N0}")
        A(f"v_pk_fma_f32 {v(d[0],2)}, {v(KC,2)}, {v(d[1],2)}, {v(O,2)} {bc_b} {N0}")
        A(f"v_mov_b64 {v(d[1],2)}, {v(O+2,2)}")
        if idx < 15:
            A(f"v_fma_f32 v{PW(idx+1)}, v{PW(idx)}, v{LAM}, -v58\nv_fma_f32 v{PW(idx+1)+1}, v{PW(idx)}, v{LAM+1}, v59")
        if idx + 1 == LBAT:
            lbloads()
            A(f"v_mov_b32 v12, {L_SYNC}\ns_lshl_b32 s{T0}, s{WAVE}, 2\nv_add_u32 v13, s{T0}, v12\nv_mov_b32 v14, 1")
            A("s_mov_b64 exec, 1\nds_write_b32 v13, v14\ns_mov_b64 exec, -1")
    M0B, RH, RCc, SH, SC = T7, T5, T4, T3, T2
    ACC2 = lambda nt: 32 + 16*nt
    CF = lambda X, nt: 96 + 16*X + 4*nt
    XR, CV = 128, 244
    HR = lambda s_: 148 + 4*(s_ % HD)
    HT_ = LRE
    A(f"s_mov_b32 s{HT_}, 0\ns_mov_b32 s{HT_+1}, 0x10001")
    for c in range(2):
        A(f"s_bfe_u32 s{HT_+2+c}, s{NONCE}, {hex(0x20000 + 2*c)}\ns_mul_i32 s{HT_+2+c}, s{HT_+2+c}, 0x8001\ns_and_b32 s{HT_+2+c}, s{HT_+2+c}, 0x10001")
    L_OWN = 65536
    A(f"s_xor_b32 s{T0}, s{WT_}, s{PG}\ns_xor_b32 s{T0}, s{T0}, 1\ns_lshl_b32 s{T0}, s{T0}, 6\ns_add_u32 s{T0}, s{T0}, s{WP}")
    A(f"v_lshrrev_b32 v8, 3, v1\nv_lshl_add_u32 v8, v8, 1, s{T0}\nv_lshlrev_b32 v8, 11, v8")
    A("v_and_b32 v9, 7, v1\nv_lshrrev_b32 v10, 4, v1\nv_xor_b32 v9, v9, v10\nv_lshlrev_b32 v9, 4, v9\nv_xor_b32 v10, 64, v9")
    for u in range(4):
        A(f"v_add_u32 v{CV+u}, v8, v{9 + (u & 1)}")
        if u:
            A(f"v_add_u32 v{CV+u}, {u*(16*2048 - 1024)}, v{CV+u}")
    A(f"s_and_b32 s{RCc}, s{TJ}, 7\ns_lshl_b32 s{T0}, s{RCc}, 18\ns_lshl_b32 s{T1}, s{PG}, 10\ns_add_u32 s{T0}, s{T0}, s{T1}")
    srd(A, S2, CRE, T0, 0, 0x40000, T1)
    srd(A, S3, CIM, T0, 0, 0x40000, T1)
    A(f"s_lshl_b32 s{T1}, s{RCc}, 1\ns_add_u32 s{T1}, s{T1}, s{PG}\ns_lshl_b32 s{T1}, s{T1}, 7")
    A(f"s_lshl_b32 s{SH}, s{TI}, 1\ns_add_u32 s{SH}, s{SH}, s{WT_}\ns_lshl_b32 s{T0}, s{SH}, 17\ns_add_u32 s{T0}, s{T0}, s{T1}")
    srd(A, S4, BX, T0, 0, 0x20000, T1)
    A(f"s_add_u32 s{DSK}, s{DSK}, s{T1}\ns_addc_u32 s{DSK+1}, s{DSK+1}, 0")
    A(f"s_lshl_b32 s{T1}, s{T1}, 1\ns_add_u32 s{T1}, s{T1}, 4096\ns_lshl_b32 s{T0}, s{SH}, 19\ns_add_u32 s{T0}, s{T0}, s{T1}")
    A(f"s_add_u32 s{OUT}, s{OUT}, s{T0}\ns_addc_u32 s{OUT+1}, s{OUT+1}, 0\ns_sub_u32 s{LDT}, 0x80000, s{T1}")
    A(f"s_lshl_b32 s{M0B}, s{WAVE}, 12\ns_lshl_b32 s{RH}, s{RCc}, 13\ns_lshl_b32 s{RCc}, s{RCc}, 7")
    A(f"s_lshl_b32 s{T0}, s{WT_}, 14\ns_lshl_b32 s{T1}, s{WP}, 11\ns_add_u32 s{T0}, s{T0}, s{T1}\ns_add_u32 s{T0}, s{T0}, {L_OWN}\nv_add_u32 v16, s{T0}, v11")
    A(f"s_lshl_b32 s{T0}, s{WAVE}, 13\ns_add_u32 s{T0}, s{T0}, {L_OWN}\nv_add_u32 v17, s{T0}, v11")
    A(f"s_mov_b32 s{T9}, 0")
    pl, pd = uid("poll"), uid("polled")
    A.label(pl)
    A(f"s_mov_b64 {sp(T0)}, 0")
    for u in range(8):
        A(f"s_waitcnt vmcnt({8-u})")
        A(f"v_cmp_ne_u32 vcc, v{LB+4*u+2}, v{136+u}")
        A(f"s_or_b64 {sp(T0)}, {sp(T0)}, vcc")
        A(f"v_cmp_ne_u32 vcc, v{LB+4*u+3}, v{136+u}")
        A(f"s_or_b64 {sp(T0)}, {sp(T0)}, vcc")
    A(f"s_waitcnt vmcnt(0)\nv_xor_b32 v63, v60, v63\nv_cmp_lt_u32 vcc, 15, v63")
    A(f"s_or_b64 {sp(T0)}, {sp(T0)}, vcc")
    A(f"s_add_u32 s{T9}, s{T9}, 1")
    A(f"s_cmp_eq_u64 {sp(T0)}, 0")
    A(f"s_cbranch_scc1 {pd}")
    A(f"s_cmp_ge_u32 s{T9}, {SPIN_MAX}")
    A(f"s_cbranch_scc1 {pd}")
    lbloads()
    A(f"s_branch {pl}")
    A.label(pd)
    A(f"v_cmp_ne_u32 vcc, 0, v63\ns_cmp_eq_u64 vcc, 0\ns_cselect_b32 s{LOCAL}, {0 if FORCE_REMOTE else 1}, 0")
    mark(A, 3)
    A("v_mov_b32 v14, 2\ns_mov_b64 exec, 1\nds_write_b32 v13, v14\ns_mov_b64 exec, -1")
    vm = VmCounter(A)

    def cdma(g, us):
        for u in us:
            if u == 0:
                A(f"s_add_u32 m0, s{M0B}, {(g % R)*16384}")
                if g % 2 == 0:
                    A(f"s_add_u32 s{SC}, s{RCc}, {(g >> 1)*128}\ns_and_b32 s{SC}, s{SC}, 0x3ff")
            vm.op(f"buffer_load_dwordx4 v{CV+u}, {r4(S2 if g % 2 == 0 else S3)}, s{SC} offen offset:{u*1024}{NTC} lds", ("c", g))

    def ctouch():
        A(f"s_lshl_b32 s{MSK}, s{PG}, 10\ns_bfe_u32 s{CNT}, s2, 0x20001\ns_lshl_b32 s{CNT}, s{CNT}, 19\ns_add_u32 s{MSK}, s{MSK}, s{CNT}")
        A(f"s_lshr_b32 s{CNT}, s2, 3\ns_lshl_b32 s{CNT}, s{CNT}, 14\ns_add_u32 s{MSK}, s{MSK}, s{CNT}\ns_lshl_b32 s{CNT}, s{WT_}, 13\ns_add_u32 s{CNT}, s{MSK}, s{CNT}")
        A(f"v_bfe_u32 v8, v1, 3, 2\nv_lshlrev_b32 v8, 11, v8\nv_and_b32 v9, 7, v1\nv_lshl_add_u32 v8, v9, 7, v8\nv_add_u32 v8, s{CNT}, v8")
        A(f"s_cmp_eq_u32 s{WP}, 0\ns_cselect_b32 s{MSK}, s{CRE}, s{CIM}\ns_cselect_b32 s{MSK+1}, s{CRE+1}, s{CIM+1}\ns_mov_b32 exec_hi, 0")
        vm.op(f"global_load_dword v243, v8, {sp(MSK)}", "touch")
        A("s_mov_b64 exec, -1")

    def xtouch(n):
        if n == 0:
            A(f"s_and_b32 s{CNT}, s{TI}, 3\ns_lshl_b32 s{CNT}, s{CNT}, 16\nv_lshl_add_u32 v242, v6, 11, s{CNT}")
        A(f"s_lshl_b32 s{CNT}, s{WT_}, 8\ns_add_u32 s{CNT}, s{CNT}, s{RCc}\ns_add_u32 s{CNT}, s{CNT}, {128 + n*512}")
        A(f"v_lshl_add_u32 v8, v5, 7, s{CNT}\nv_and_b32 v8, 0x3ff, v8\nv_add_u32 v8, v8, v242")
        a, b = uid("xt"), uid("xd")
        A(f"s_cmp_eq_u32 s{WP}, 0\ns_cbranch_scc0 {a}")
        A(f"buffer_load_dword v243, v8, {r4(S2)}, 0 offen\ns_branch {b}")
        A.label(a)
        vm.op(f"buffer_load_dword v243, v8, {r4(S3)}, 0 offen", "touch")
        A.label(b)
    if CTOUCH == 1:
        ctouch()
    if C01:
        cdma(0, range(4))
        cdma(1, range(4))
    if CTOUCH == 3:
        ctouch()
    H0, H1 = LB + 28, 48
    cur = (H0, H0+1)
    for u in range(6, -1, -1):
        d = (48, 49) if cur[0] == H0 else (H0, H0+1)
        horner(A, d[0], d[1], L256, cur[0], cur[1], LB+4*u, LB+4*u+1, TT)
        cur = d
    assert cur == (48, 49)
    A(f"v_mov_b32 v50, v48\nv_mov_b32 v51, v49")
    A(f"v_permlane32_swap_b32 v48, v50\nv_permlane32_swap_b32 v49, v51")
    PS = 192
    horner(A, PS, PS+1, L128, 50, 51, 48, 49, TT)
    for u in range(1, 4):
        horner(A, PS+2*u, PS+2*u+1, L32, PS+2*u-2, PS+2*u-1, SG+2*u-2, SG+2*u-1, TT)
    w0 = uid("wt0")
    A(f"s_cmp_eq_u32 s{WT_}, 0")
    A(f"s_cbranch_scc1 {w0}")
    A(f"v_mov_b64 {v(PS,2)}, {v(PS+4,2)}\nv_mov_b64 {v(PS+2,2)}, {v(PS+6,2)}")
    A.label(w0)
    A("v_cmp_eq_u32 vcc, 1, v5")
    G = 48
    A(f"v_cndmask_b32 v{G}, v{PS}, v{PS+2}, vcc")
    A(f"v_cndmask_b32 v{G+2}, v{PS+1}, v{PS+3}, vcc")
    horner(A, G+1, G+3, L16, G, G+2, 56, 57, TT)
    PK = lambda c, idx: 128 + 16*c + idx
    D = lambda c, X: 160 + 16*c if X == 0 else (192 if c == 0 else 32)
    A(f"s_lshl_b32 s{T0}, s{TI}, 1\ns_add_u32 s{T9}, s{T0}, s{WT_}\ns_mul_i32 s{T0}, s{T9}, {2*TBS}")
    A(f"s_lshl_b32 s{T1}, s{TJ}, 13\ns_add_u32 s{T0}, s{T0}, s{T1}\ns_lshl_b32 s{T1}, s{WP}, 11\ns_add_u32 s{T0}, s{T0}, s{T1}")

    def fix(idx):
        d = (U(0, idx), U(1, idx))
        pw = v(PW(idx), 2)
        A(f"v_pk_fma_f32 {v(d[0],2)}, {pw}, {v(G,2)}, {v(d[0],2)} {bc_a}")
        A(f"v_pk_fma_f32 {v(d[1],2)}, {pw}, {v(G+2,2)}, {v(d[1],2)} {bc_a} {N0}")
        A(f"v_pk_fma_f32 {v(d[0],2)}, {pw}, {v(G+2,2)}, {v(d[0],2)} {bc_b} {N0}")
        A(f"v_pk_fma_f32 {v(d[1],2)}, {pw}, {v(G,2)}, {v(d[1],2)} {bc_b} {N0}")
        A(f"v_cvt_pk_bf16_f32 v{PK(0,idx)}, v{d[0]}, v{d[0]+1}")
        A(f"v_cvt_pk_bf16_f32 v{PK(1,idx)}, v{d[1]}, v{d[1]+1}")

    def tr(X):
        for c in range(2):
            A(f"{MF} {v(D(c,X),16)}, {v(PK(c,8*X),4)}, v[248:251], 0")
            A(f"{MF} {v(D(c,X),16)}, {v(PK(c,8*X+4),4)}, v[252:255], {v(D(c,X),16)}")

    def st(X, c):
        A(f"s_add_u32 s{T1}, s{T0}, {X*TBS + c*4096}")
        q = 64 + (X*2 + c)*8
        for jj in range(8):
            A(f"v_cvt_pk_bf16_f32 v{q+jj}, v{D(c,X)+2*jj}, v{D(c,X)+2*jj+1}")
            if HTAG:
                A(f"v_and_or_b32 v{q+jj}, v{q+jj}, v3, s{HT_+(jj & 3)}")
        vm.op(f"buffer_store_dwordx4 {v(q,4)}, v11, {r4(S1)}, s{T1} offen sc1", "hst")
        vm.op(f"buffer_store_dwordx4 {v(q+4,4)}, v11, {r4(S1)}, s{T1} offen offset:1024 sc1", "hst")
        A(f"ds_write_b128 v16, {v(q,4)} offset:{X*8192 + c*4096}\nds_write_b128 v16, {v(q+4,4)} offset:{X*8192 + c*4096 + 1024}")
    A("v_mov_b32 v3, 0xfffefffe")
    for ks in range(4):
        A(f"v_xor_b32 v{20+ks}, {ks << 5}, v7\nv_add_u32 v{24+ks}, 0x10000, v{20+ks}")
    for idx in range(8):
        fix(idx)
    tr(0)
    for idx in range(8, 12):
        fix(idx)
    st(0, 0)
    st(0, 1)
    for idx in range(12, 16):
        fix(idx)
    tr(1)
    st(1, 0)
    st(1, 1)
    mark(A, 4)
    if not C01:
        cdma(0, range(4))
        cdma(1, range(4))
    if CTOUCH == 2:
        ctouch()
    if CTOUCH in (5, 6):
        xtouch(0)
    if CTOUCH == 6:
        xtouch(1)
    NK = 64

    def arrive(val):
        A(f"v_mov_b32 v14, {val}")
        A("s_mov_b64 exec, 1\nds_write_b32 v13, v14\ns_mov_b64 exec, -1")

    def check(val, off=0, first=False):
        l, d = uid("ck"), uid("ckd")
        if first:
            A(f"ds_read_b128 v[8:11], v12 offset:{off}\ns_waitcnt lgkmcnt(0)")
        A.label(l)
        A("v_min3_u32 v15, v8, v9, v10\nv_min_u32 v15, v15, v11")
        A(f"v_readfirstlane_b32 s{T0}, v15")
        A(f"s_cmp_ge_u32 s{T0}, {val}")
        A(f"s_cbranch_scc1 {d}")
        A(f"ds_read_b128 v[8:11], v12 offset:{off}\ns_waitcnt lgkmcnt(0)")
        A(f"s_branch {l}")
        A.label(d)

    def hload(s_):
        if s_ % 4 == 0:
            A(f"s_add_u32 s{SH}, s{RH}, {(s_ >> 2)*4096}\ns_and_b32 s{SH}, s{SH}, 0xffff")
        vm.op(f"buffer_load_dwordx4 {v(HR(s_),4)}, v2, {r4(S0)}, s{SH} offen offset:{(s_ & 3)*1024} sc1", ("h", s_))

    def rd2(s_, nts):
        g, ks = s_ >> 2, s_ & 3
        slot = g % R
        base = 20 if slot < 4 else 24
        for nt in nts:
            A(f"ds_read_b128 {v(CF(s_ & 1, nt),4)}, v{base+ks} offset:{(slot & 3)*16384 + nt*4096}")

    def mf(s_, nt):
        c = "0" if s_ == 0 else v(ACC2(nt), 16)
        if E_("HACK16", 0) & 2:
            for z in range(2):
                d = ACC2(nt) + 8*(s_ & 1) + 4*z
                A(f"v_mfma_f32_16x16x32_bf16 {v(d,4)}, {v(HR(s_),4)}, {v(CF(s_ & 1, nt),4)}, {'0' if s_ < 2 else v(d,4)}")
        else:
            A(f"{MF} {v(ACC2(nt),16)}, {v(HR(s_),4)}, {v(CF(s_ & 1, nt),4)}, {c}")
    A("v_mov_b32 v2, v11")
    A(f"s_lshl_b32 s{T0}, s{TI}, 2\ns_add_u32 s{T0}, s{T0}, s{WAVE}\ns_mul_i32 s{T0}, s{T0}, {TBS}\ns_lshl_b32 s{T1}, s{PG}, 16\ns_add_u32 s{T0}, s{T0}, s{T1}")
    srd(A, S0, WS, T0, WS_HT, 0x10000)
    if not OWNFIRST and C23:
        cdma(2, range(4))
        cdma(3, range(4))
    A(f"s_waitcnt vmcnt({vm.wait_for(('c', 1), emit=False)}) lgkmcnt(0)")
    arrive(3)
    check(3, first=True)
    for s_ in range(8):
        A(f"ds_read_b128 {v(HR(s_),4)}, v17 offset:{s_*1024}")
    hn = [8]

    def pause():
        A(f"s_lshl_b32 s{T0}, s{WP}, 3\nv_lshl_add_u32 v17, v5, 2, s{T0}")
        A("v_lshlrev_b32 v28, 11, v17\nv_lshl_add_u32 v28, v6, 2, v28")
        A("v_lshlrev_b32 v29, 13, v17\nv_lshl_add_u32 v29, v6, 3, v29")
        A(f"v_lshlrev_b32 v30, 2, v6\nv_mov_b32 v15, s{NONCE}")
        a, b = uid("rs"), uid("rd")
        vm.wait_for("hst")
        A(f"s_mov_b64 exec, 1\ns_cmp_eq_u32 s{LOCAL}, 0\ns_cbranch_scc1 {a}")
        A(f"global_store_dword v19, v15, {sp(WS)}\ns_branch {b}")
        A.label(a)
        A(f"global_store_dword v19, v15, {sp(WS)} sc1")
        A.label(b)
        A("s_mov_b64 exec, -1")
        mark(A, 5)
        check(4, first=True)
        if not NOAUX:
            check(LIMG_FREE, 16, first=True)
        if CTOUCH == 5:
            xtouch(1)
        if CTOUCH == 8:
            ctouch()
        for gg in range(4 if C23 else 2, CPOLL):
            cdma(gg, range(4))
        wait_cnt(A, 18, 8, SLP_H)
        vm.issued = []
        mark(A, 6)
        if OWNFIRST:
            arrive(5)
        gg = max(4, CPOLL)
        while hn[0] < 8 + HPRE:
            hload(hn[0])
            hn[0] += 1
            if hn[0] % 4 == 0 and gg < CPRE:
                cdma(gg, range(4))
                gg += 1
        assert gg == CPRE
        if OWNFIRST:
            check(5, first=True)
        rd2(8 if OWNFIRST else 0, range(4))

    def flag_store():
        a, b = uid("rs"), uid("rd")
        A(f"s_mov_b64 exec, 1\ns_cmp_eq_u32 s{LOCAL}, 0\ns_cbranch_scc1 {a}")
        A(f"global_store_dword v19, v15, {sp(WS)}\ns_branch {b}")
        A.label(a)
        vm.op(f"global_store_dword v19, v15, {sp(WS)} sc1", "flag")
        A.label(b)
        A("s_mov_b64 exec, -1")
    if HTAG:
        A("s_waitcnt lgkmcnt(0)")
        arrive(4)
        A(f"s_lshl_b32 s{T0}, s{WP}, 3\nv_lshl_add_u32 v17, v5, 2, s{T0}")
        A("v_lshlrev_b32 v28, 11, v17\nv_lshl_add_u32 v28, v6, 2, v28")
        A("v_lshlrev_b32 v29, 13, v17\nv_lshl_add_u32 v29, v6, 3, v29")
        A(f"v_lshlrev_b32 v30, 2, v6\nv_mov_b32 v15, s{NONCE}")
        if HTAG == 1:
            wl, wd = uid("hw"), uid("hwd")
            A(f"s_add_u32 s{T1}, s{RH}, 8192\ns_and_b32 s{T1}, s{T1}, 0xffff\ns_mov_b32 s{CNT}, 0\ns_waitcnt lgkmcnt(0)")
            A.label(wl)
            A(f"s_load_dwordx4 s[4:7], {sp(S0)}, s{T1} offset:{4096 + 1024 + 1008} glc\ns_load_dwordx4 s[8:11], {sp(S0)}, s{T1} offset:{4096 + 3072 + 1008} glc")
            A(f"s_add_u32 s{CNT}, s{CNT}, 1\ns_waitcnt lgkmcnt(0)")
            for q in range(2):
                A(f"s_xor_b64 s[{4+2*q}:{5+2*q}], s[{4+2*q}:{5+2*q}], s[{HT_+2*q}:{HT_+2*q+1}]\ns_xor_b64 s[{8+2*q}:{9+2*q}], s[{8+2*q}:{9+2*q}], s[{HT_+2*q}:{HT_+2*q+1}]")
            A("s_or_b64 s[4:5], s[4:5], s[6:7]\ns_or_b64 s[8:9], s[8:9], s[10:11]\ns_or_b64 s[4:5], s[4:5], s[8:9]\ns_or_b32 s4, s4, s5\ns_and_b32 s4, s4, 0x10001")
            A(f"s_cbranch_scc0 {wd}\ns_cmp_lt_u32 s{CNT}, {SPIN_MAX}\ns_cbranch_scc1 {wl}")
            A.label(wd)
        if HTAG == 3:
            vm.wait_for('hst')
            flag_store()
        if HTAG == 2 and HDLY:
            A(f"s_waitcnt vmcnt({vm.wait_for('hst', emit=False) + HDLY})")
        mark(A, 6)
        for s_ in range(8, 16):
            hload(s_)
        hn[0] = 16
        if HTAG != 3:
            vm.wait_for("hst")
            flag_store()
        mark(A, 5)
        check(4, first=True)
        if not NOAUX:
            check(LIMG_FREE, 16, first=True)
        for gg in range(4, CPOLL):
            cdma(gg, range(4))
        rd2(0, range(4))
    elif OWNFIRST:
        rd2(0, range(4))
        A("s_waitcnt lgkmcnt(4)")
        arrive(4)
    else:
        A("s_waitcnt lgkmcnt(0)")
        arrive(4)
        pause()
    have_c = lambda g: any(t == ("c", g) for t in vm.issued)
    for s_ in range(NK):
        g, ks = s_ >> 2, s_ & 3
        nxt = s_ + 1
        more = nxt < NK and not (nxt == 8 and OWNFIRST)
        ws = []
        if s_ >= 8:
            ws.append(vm.wait_for(("h", s_), emit=False))
        arr = (s_ + 4) % 8 == 0 and s_ + 4 < NK and (s_ >= 8 or not OWNFIRST)
        if arr:
            gl = ((s_ + 4) >> 2) + 1
            if have_c(gl):
                ws.append(vm.wait_for(("c", gl), emit=False))
        wv = f"vmcnt({min(ws)}) " if ws else ""
        newgrp = more and nxt % 8 == 0
        full = newgrp or not more or s_ == 0
        nc = 2 if s_ >= NK - NDEF else 4
        nn = (2 if nxt >= NK - NDEF else 4) if more else 0
        if full:
            A(f"s_waitcnt {wv}lgkmcnt(0)")
            if newgrp:
                check((nxt >> 3) + 4)
                if nxt == 32:
                    mark(A, 7)
        else:
            A(f"s_waitcnt {wv}lgkmcnt({nc-1})")
        extra = 0
        if arr:
            arrive(((s_ + 4) >> 3) + 4)
            extra = 1
        issued_n = 0
        for nt in range(nc):
            if nt and not full:
                A(f"s_waitcnt lgkmcnt({nc - 1 - nt + extra + issued_n})")
            mf(s_, nt)
            if nt < 2 and issued_n < nn and (nt == 0 or nn == 4):
                rd2(nxt, [issued_n, issued_n + 1])
                issued_n += 2
            if nt == nc - 2:
                if s_ < 8 and OWNFIRST:
                    if C23:
                        cdma(2 + g, [ks])
                elif CPRE <= g + CD < NK//4:
                    cdma(g + CD, [ks])
        assert issued_n == nn
        if HTAG:
            if s_ < 4*(CPRE - CPOLL):
                cdma(CPOLL + g, [ks])
            if s_ == 6:
                tl, td = uid("ht"), uid("htd")
                A(f"s_mov_b32 s{CNT}, 0")
                vm.wait_for(("h", 15))
                A.label(tl)
                A("v_mov_b32 v4, 0")
                for r in range(32):
                    A(f"v_bitop3_b32 v4, v4, v{HR(8)+r}, s{HT_+(r & 3)} bitop3:0xf6")
                A(f"v_and_b32 v4, 0x10001, v4\nv_cmp_ne_u32 vcc, 0, v4\ns_cbranch_vccz {td}")
                A(f"s_add_u32 s{CNT}, s{CNT}, 1\ns_cmp_ge_u32 s{CNT}, {SPIN_MAX}\ns_cbranch_scc1 {td}")
                keep = list(vm.issued)
                for s2_ in range(8, 16):
                    hload(s2_)
                vm.issued = keep
                A(f"s_waitcnt vmcnt(0)\ns_branch {tl}")
                A.label(td)
                if STAMP == 1:
                    A(f"s_add_u32 s72, s70, s{CNT}")
            if s_ == HFI:
                vm.op(f"global_load_dword v16, v18, {sp(WS)} sc1", "fp")
            if s_ == HFC:
                fd = uid("hf")
                vm.wait_for("fp")
                A(f"v_cmp_ne_u32 vcc, s{NONCE}, v16\ns_cbranch_vccz {fd}")
                wait_cnt(A, 18, 16, 1)
                A.label(fd)
        if (s_ >= (HFC if HTAG else 8) or not (OWNFIRST or HTAG)) and hn[0] < NK:
            for _ in range(3 if HTAG else 2):
                if hn[0] < NK and hn[0] <= s_ + HD:
                    hload(hn[0])
                    hn[0] += 1
        if (s_ + 2) % 8 == 0 and s_ + 2 < NK and (s_ >= 8 or not OWNFIRST):
            A("ds_read_b128 v[8:11], v12")
        if s_ == NK - 18:
            vm.op(f"global_load_dword v31, v30, {sp(DSK)}", "dsk")
        if NK - 17 <= s_ < NK - 1:
            e = s_ - (NK - 17)
            q, r = e >> 2, e & 3
            A(f"s_mov_b32 s{T0}, {q*32768 + (r >> 1)*4096}")
            vm.op(f"buffer_load_dword v{XR+e}, v28, {r4(S4)}, s{T0} offen offset:{(r & 1)*2048}", ("x", e))
        if s_ == 7 and OWNFIRST:
            pause()
    mark(A, 8)
    TG = T0
    A(f"s_mul_i32 s{TG}, s{NONCE}, 0x9e3779b1\ns_and_b32 s{TG}, s{TG}, 0xbfff0000\ns_or_b32 s{TG}, s{TG}, 0x20000000")
    A(f"s_sub_u32 s{T1}, s{NONCE}, 1\ns_xor_b32 s{T1}, s{T1}, s{TG}\ns_cmp_lt_u32 s{T1}, 0x10000\ns_cselect_b32 s{T1}, 0x10000, 0\ns_xor_b32 s{TG}, s{TG}, s{T1}")
    if INOUT:
        A(f"s_lshl_b32 s{T4}, s{PG}, 9\ns_sub_i32 s{T4}, 256, s{T4}\ns_ashr_i32 s{T5}, s{T4}, 31")
        A(f"s_add_u32 s{S2}, s{OUT}, s{T4}\ns_addc_u32 s{S2+1}, s{OUT+1}, s{T5}\ns_sub_u32 s{S2+2}, s{LDT}, s{T4}\ns_mov_b32 s{S2+3}, 0x20000")
        A(f"s_mov_b32 s{S3}, s{OUT}\ns_mov_b32 s{S3+1}, s{OUT+1}\ns_mov_b32 s{S3+2}, s{LDT}\ns_mov_b32 s{S3+3}, 0x20000")
        A(f"s_lshl_b32 s{T4}, s{WP}, 16\nv_lshrrev_b32 v3, 4, v1\nv_lshlrev_b32 v3, 13, v3\nv_and_b32 v4, 15, v1\nv_lshl_add_u32 v3, v4, 4, v3\nv_add_u32 v3, s{T4}, v3")
        xad = lambda gq: (f"s_mov_b32 s{T4}, {(16*(gq >> 1) + 4*(gq & 1))*8192}\n", f"v3, SRD, s{T4} offen")
    else:
        A(f"s_lshl_b32 s{T4}, s{TI}, 4\ns_add_u32 s{T4}, s{T4}, s{TJ}\ns_lshl_b32 s{T4}, s{T4}, 2\ns_add_u32 s{T4}, s{T4}, s{WAVE}\ns_lshl_b32 s{T4}, s{T4}, 13")
        srd(A, S2, WS, T4, WS_XB, 0x2000)
        A(f"s_xor_b32 s{T4}, s{T4}, {8 << 15}")
        srd(A, S3, WS, T4, WS_XB, 0x2000)
        A(f"s_movk_i32 s{T4}, 0x1000")
        xad = lambda gq: ("", f"v2, SRD, {'0' if gq < 4 else f's{T4}'} offen offset:{(gq & 3)*1024}")
    val = lambda n: ACC2(n & 1) + (n >> 1)
    TXR, RX = [96, 100, 244, 248, 252], 180
    for gq in range(5):
        for c in range(4):
            n = 7*gq + 2*c
            lo = f"v{val(min(n, 31))}"
            hi = f"s{TG}" if c == 3 else f"v{val(min(n+1, 31))}"
            A(f"v_cvt_pk_bf16_f32 v{TXR[gq]+c}, {lo}, {hi}")
        A(f"{xad(gq)[0]}buffer_store_dwordx4 {v(TXR[gq],4)}, {xad(gq)[1].replace('SRD', r4(S2))} sc1")

    def rx():
        for gq in range(5):
            A(f"{xad(gq)[0]}buffer_load_dwordx4 {v(RX+4*gq,4)}, {xad(gq)[1].replace('SRD', r4(S3))} sc1")
    if NDEF:
        rd2(NK - NDEF, [2, 3])
        for s_ in range(NK - NDEF, NK):
            if s_ + 1 < NK:
                rd2(s_ + 1, [2, 3])
                A("s_waitcnt lgkmcnt(2)")
            else:
                A("s_waitcnt lgkmcnt(0)")
            mf(s_, 2)
            mf(s_, 3)
    if E_("XM", 0):
        mark(A, 3)
    A("s_waitcnt vmcnt(5)")
    if E_("XM", 0):
        mark(A, 5)
    A("v_lshlrev_b32 v8, 16, v31\nv_and_b32 v9, 0xffff0000, v31")
    YO = lambda e: 148 + 2*e
    for e in range(16):
        t = YO(e)
        A(f"v_lshlrev_b32 v{t}, 16, v{XR+e}\nv_and_b32 v{t+1}, 0xffff0000, v{XR+e}")
        A(f"v_pk_mul_f32 {v(t,2)}, {v(t,2)}, v[8:9]")
        A(f"v_cvt_pk_bf16_f32 v10, v{t}, v{t+1}")
        A(f"v_lshlrev_b32 v{t}, 16, v10\nv_and_b32 v{t+1}, 0xffff0000, v10")
        A(f"v_add_f32 v{t}, v{t}, v{ACC2(2)+e}\nv_add_f32 v{t+1}, v{t+1}, v{ACC2(3)+e}")
    A(f"s_mov_b32 s{S1}, s{OUT}\ns_mov_b32 s{S1+1}, s{OUT+1}\ns_mov_b32 s{S1+2}, s{LDT}\ns_mov_b32 s{S1+3}, 0x20000")
    xl, xd = uid("xl"), uid("xd")
    A(f"s_mov_b32 s{CNT}, 0")
    if XPOLL:
        assert not INOUT
        wl, wd = uid("xw"), uid("xwd")
        A.label(wl)
        A(f"s_load_dword s{T1}, {sp(S3)}, {0x1000 + 63*16 + 12} glc\ns_add_u32 s{CNT}, s{CNT}, 1\ns_waitcnt lgkmcnt(0)")
        A(f"s_xor_b32 s{T1}, s{T1}, s{TG}\ns_cmp_lt_u32 s{T1}, 0x10000\ns_cbranch_scc1 {wd}")
        A(f"s_cmp_lt_u32 s{CNT}, {SPIN_MAX}\ns_cbranch_scc1 {wl}")
        A.label(wd)
        A(f"s_mov_b32 s{CNT}, 0")
    if XPOLL != 2:
        A(f"s_waitcnt vmcnt({E_('XW', 0)})")
    if E_("XM", 0):
        mark(A, 6)
    rx()
    A.label(xl)
    A("v_mov_b32 v10, 0")
    for gq in range(5):
        A(f"s_waitcnt vmcnt({4-gq})")
        A(f"v_bitop3_b32 v10, v10, v{RX+4*gq+3}, s{TG} bitop3:0xf6")
    A("v_cmp_lt_u32 vcc, 0xffff, v10")
    A(f"s_cbranch_vccz {xd}")
    A(f"s_add_u32 s{CNT}, s{CNT}, 1\ns_cmp_ge_u32 s{CNT}, {SPIN_MAX}")
    A(f"s_cbranch_scc1 {xd}")
    rx()
    A(f"s_branch {xl}")
    A.label(xd)
    if STAMP:
        A(f"s_add_u32 s74, s70, s{CNT}\ns_lshl_b32 s{CNT}, s{LOCAL}, 8\ns_add_u32 s74, s74, s{CNT}")
        mark(A, 4)
    for e in range(16):
        q, r = e >> 2, e & 3
        t = YO(e)
        for nt in range(2):
            n = 2*e + nt
            src = RX + 4*(n // 7) + (n % 7)//2
            if (n % 7) % 2 == 0:
                A(f"v_lshlrev_b32 v{10+nt}, 16, v{src}")
            else:
                A(f"v_and_b32 v{10+nt}, 0xffff0000, v{src}")
        A(f"v_pk_add_f32 {v(t,2)}, {v(t,2)}, v[10:11]")
        A(f"s_mov_b32 s{T4}, {(16*q + r)*8192}")
        A(f"buffer_store_dwordx2 {v(t,2)}, v29, {r4(S1)}, s{T4} offen{OSTB}")
    stamp_end(A, kidx, WAVE)


def gen_fused(A, name, kidx):
    A(f".globl {name}\n.p2align 8\n.type {name},@function")
    A.label(name)
    A("s_cmp_ge_u32 s2, 256")
    A(f"s_cbranch_scc1 L_{name}_end")
    A("s_load_dwordx16 s[4:19], s[0:1], 0")
    A("s_load_dwordx8 s[20:27], s[0:1], 64")
    A("s_load_dwordx4 s[28:31], s[0:1], 96")
    A("s_load_dwordx2 s[32:33], s[0:1], 112")
    stamp_begin(A)
    A("v_lshrrev_b32 v2, 6, v0\nv_and_b32 v1, 63, v0")
    A(f"v_readfirstlane_b32 s{WAVE}, v2")
    A(f"s_and_b32 s{T0}, s2, 7\ns_lshr_b32 s{T1}, s2, 3")
    A(f"s_lshr_b32 s{TI}, s{T0}, 1\ns_lshl_b32 s{TI}, s{TI}, 2\ns_lshr_b32 s{T2}, s{T1}, 3\ns_add_u32 s{TI}, s{TI}, s{T2}")
    A(f"s_and_b32 s{TJ}, s{T0}, 1\ns_lshl_b32 s{TJ}, s{TJ}, 3\ns_and_b32 s{T2}, s{T1}, 7\ns_add_u32 s{TJ}, s{TJ}, s{T2}")
    A(f"s_cmp_ge_u32 s{WAVE}, 4")
    A(f"s_cbranch_scc0 L_{name}_gemm")
    loader(A, name, kidx)
    A.label(f"L_{name}_gemm")
    gemm_waves(A, name, kidx)
    A.label(f"L_{name}_end")
    A("s_endpgm")
    return kdesc(name, 256)
```

```python
import os
from asmlib import *
from common import *

E_ = lambda k, d: int(os.environ.get(k, str(d)))
XO, NP, RI, RJ = E_("XO", 0), E_("NP", 1), E_("RI", 1), E_("RJ", 1)
XO2, NP2 = E_("XO2", 2), E_("NP2", 1)
PRO = E_("PRO", 2)
HD = E_("HD", 24)
CD = E_("CD", 4)
NOAUX = E_("NOAUX", 0)
CODEPF = E_("CODEPF", 1)
NS = E_('NS', 3)
LASW = E_('LASW', 99)
R = 7
LA = E_('LA', 2)
FORCE_REMOTE = E_('FORCE_REMOTE', 0)
MF = "v_mfma_f32_32x32x16_bf16"
N0 = "neg_lo:[1,0,0] neg_hi:[1,0,0]"

AX, WR, WI, BX, LRE, LIM, BRE, BIM, CRE, CIM, LDT, DSK, OUT, DBG, WS = 4, 6, 8, 10, 12, 14, 16, 18, 20, 22, 24, 26, 28, 30, 32
WAVE, TI, TJ, NONCE, TBL = 34, 35, 36, 37, 38
S0, S1, S2, S3, S4 = 40, 44, 48, 52, 56
T0, T1, T2, T3, T4, T5, T6, T7, T8, T9 = range(60, 70)
MSK, CNT, LOCAL, PG = 90, 92, 100, 101
L_XCH = 122880
L_SYNC = 126976
L_AX = 131072
L_W = 147456
WS_CNT = 0x1000
CNT_A, CNT_B, CNT_W = WS_CNT, WS_CNT + 16*128, WS_CNT + 32*128
FLG_A, FLG_B, FLG_W = 0x84000, 0x86000, 0x88000
FLG_X = 0x8000
FLG_H = 0x60000
CPRO1 = E_("CPRO1", 2)
CPRO2 = E_("CPRO2", 2)
CTOUCH = E_("CTOUCH", 4)
TBS = 131072 + E_("TBPAD", 0)
FTOUCH = E_("FTOUCH", 1)
XTOUCH = E_("XTOUCH", 0)
NREP = E_("NREP", 32)
NDEF = E_("NDEF", 12)
HTAG = 0
HDLY = E_("HDLY", 0)
HFI, HFC = E_("HFI", 7), E_("HFC", 10)
XPOLL = E_("XPOLL", 2)
OWNFIRST = E_("OWNFIRST", 1) and not HTAG
C01, C23 = E_("C01", 1), E_("C23", 1)
INOUT = E_("INOUT", 0)
KS_ = 32768 if INOUT else 8192
ISH = 16384 if INOUT else 4096
CTK, CPOLL, CPRE, HPRE = E_("CTK", 13), E_("CPOLL", 6), E_("CPRE", 7), E_("HPRE", 8)
HLOC, HLK = E_("HLOC", 0), E_("HLK", 13)
LBAT = E_("LBAT", 16)
XBF = E_("XBF", 1)
SLP_H, SLP_A = E_("SLP_H", 4), E_("SLP_A", 10)
NT = " nt" if E_("NT", 1) else ""
NTX = " nt"
OST = {0: "", 1: " nt", 2: " sc1", 3: " sc1 nt", 4: " sc0 sc1 nt", 5: " sc0 nt"}[E_("OST", 1)]
NTK = E_("NTK", 0)
OSTB = {0: "", 1: " nt", 2: " sc1", 3: " sc1 nt", 4: " sc0 sc1 nt", 5: " sc0 nt"}[E_("OSTB", 1)]
NTC = " nt" if E_("NTC", 0) else ""


def sp(a):
    return f"s[{a}:{a+1}]"


def srd(A, d, base, soff=None, const=0, size=None, size_s=None):
    if soff is None and const == 0:
        A(f"s_mov_b32 s{d}, s{base}\ns_mov_b32 s{d+1}, s{base+1}")
    else:
        if soff is not None and const:
            A(f"s_add_u32 s{d+2}, s{soff}, {const}")
            o = f"s{d+2}"
        elif soff is not None:
            o = f"s{soff}"
        else:
            o = str(const)
        A(f"s_add_u32 s{d}, s{base}, {o}\ns_addc_u32 s{d+1}, s{base+1}, 0")
    if size_s is not None:
        A(f"s_sub_u32 s{d+2}, {size}, s{size_s}")
    else:
        A(f"s_mov_b32 s{d+2}, {size}")
    A(f"s_mov_b32 s{d+3}, 0x20000")


def r4(d):
    return f"s[{d}:{d+3}]"


_u = [0]


def uid(p):
    _u[0] += 1
    return f"L_{p}{_u[0]}"


def get_nonce(A, vt):
    l, d = uid("n"), uid("nd")
    A(f"v_mov_b32 v{vt}, 0")
    A.label(l)
    A(f"global_load_dword v{vt+1}, v{vt}, {sp(DBG)} sc1")
    A("s_waitcnt vmcnt(0)")
    A(f"v_readfirstlane_b32 s{NONCE}, v{vt+1}")
    A(f"s_cmp_eq_u32 s{NONCE}, 0")
    A(f"s_cbranch_scc1 {l}")


def signal(A, sshard, cnt, flg, expect, vt):
    d = uid("sg")
    A(f"s_lshl_b32 s{CNT}, s{sshard}, 7\ns_add_u32 s{CNT}, s{CNT}, {cnt}")
    A(f"v_mov_b32 v{vt}, s{CNT}\nv_mov_b32 v{vt+1}, 1")
    A("s_waitcnt vmcnt(0)")
    A("s_mov_b64 exec, 1")
    A(f"global_atomic_add v{vt+2}, v{vt}, v{vt+1}, {sp(WS)} sc0 sc1")
    A(f"v_add_u32 v{vt}, {flg - cnt}, v{vt}\nv_mov_b32 v{vt+1}, s{NONCE}")
    A("s_waitcnt vmcnt(0)")
    A(f"v_readfirstlane_b32 s{CNT}, v{vt+2}")
    A(f"s_add_u32 s{CNT}, s{CNT}, 1\ns_cmp_lg_u32 s{CNT}, {expect}")
    A(f"s_cbranch_scc1 {d}")
    A(f"global_store_dword v{vt}, v{vt+1}, {sp(WS)} sc1")
    A.label(d)
    A("s_mov_b64 exec, -1")


def set_flag(A, soff, vt):
    A(f"v_mov_b32 v{vt}, s{soff}\nv_mov_b32 v{vt+1}, s{NONCE}")
    A("s_waitcnt vmcnt(0)")
    A("s_mov_b64 exec, 1")
    A(f"global_store_dword v{vt}, v{vt+1}, {sp(WS)} sc1")
    A("s_mov_b64 exec, -1")


def wait_cnt(A, vaddr, vt, sleep):
    l, d = uid("w"), uid("wd")
    A(f"s_mov_b32 s{CNT}, 0")
    A.label(l)
    A(f"global_load_dword v{vt}, v{vaddr}, {sp(WS)} sc1")
    A("s_waitcnt vmcnt(0)")
    A(f"v_cmp_ne_u32 vcc, s{NONCE}, v{vt}")
    A(f"s_cbranch_vccz {d}")
    if sleep:
        A(f"s_sleep {sleep}")
    A(f"s_add_u32 s{CNT}, s{CNT}, 1\ns_cmp_lt_u32 s{CNT}, {SPIN_MAX}")
    A(f"s_cbranch_scc1 {l}")
    A.label(d)


F, T = 192, 224


import struct as _st


def fl(x):
    return hex(_st.unpack("<I", _st.pack("<f", x))[0])


def lane_float(A, vn, vh, t):
    A(f"v_and_b32 v{t}, 31, v1\nv_cvt_f32_u32 v{t}, v{t}\nv_lshrrev_b32 v{t+1}, 5, v1\nv_lshlrev_b32 v{t+1}, 2, v{t+1}\nv_cvt_f32_u32 v{t+1}, v{t+1}")


def make_F(A, t):
    lane_float(A, None, None, t)
    A(f"v_mul_f32 v{t+1}, v{t}, v{t+1}\nv_mul_f32 v{t+1}, {fl(1/32)}, v{t+1}")
    for i in range(16):
        c = 8*(i >> 2) + (i & 3)
        a = t + 2 + 3*(i & 1)
        A(f"v_fmamk_f32 v{a}, v{t}, {fl(c/32)}, v{t+1}\nv_fract_f32 v{a}, v{a}")
        A(f"v_cos_f32 v{a+1}, v{a}\nv_sin_f32 v{a+2}, v{a}")
        A(f"v_cvt_pk_bf16_f32 v{F+i}, v{a+1}, v{a+2}\nv_cvt_pk_bf16_f32 v{F+16+i}, -v{a+2}, v{a+1}")


def make_T(A, dst, t, half):
    lane_float(A, None, None, t)
    if not half:
        A(f"v_mul_f32 v{t+1}, v{t}, v{t+1}\nv_mul_f32 v{t+1}, {fl(1/1024)}, v{t+1}")
    else:
        A(f"v_mul_f32 v{t}, {fl(1/2048)}, v{t}\nv_fmamk_f32 v{t+1}, v{t+1}, {fl(1/64)}, v{t}")
    for i in range(16):
        c = 8*(i >> 2) + (i & 3)
        a = t + 2 + (i & 1)
        if not half:
            A(f"v_fmamk_f32 v{a}, v{t}, {fl(c/1024)}, v{t+1}")
        else:
            A(f"v_add_f32 v{a}, {fl(c/64)}, v{t+1}")
        A(f"v_cos_f32 v{dst+i}, v{a}\nv_sin_f32 v{dst+16+i}, -v{a}")


def stage1(A, src, D, stride=4):
    if "m" in os.environ.get("SK", ""):
        return
    for c in range(2):
        for s_ in range(4):
            cc = "0" if s_ == 0 else v(D+16*c, 16)
            A(f"{MF} {v(D+16*c,16)}, {v(src+stride*s_,4)}, {v(F+16*c+4*s_,4)}, {cc}")


def twiddle(A, D, dst, tmp, rng=range(16)):
    for i in (rng if "t" not in os.environ.get("SK", "") else []):
        re, im, tr, ti = D+i, D+16+i, T+i, T+16+i
        t = tmp + 2*(i & 3)
        A(f"v_mul_f32 v{t}, v{re}, v{tr}\nv_mul_f32 v{t+1}, v{re}, v{ti}")
        A(f"v_fma_f32 v{t}, -v{im}, v{ti}, v{t}\nv_fmac_f32 v{t+1}, v{im}, v{tr}")
        A(f"v_cvt_pk_bf16_f32 v{dst+i}, v{t}, v{t+1}")


def stage2(A, src, D):
    if "m" in os.environ.get("SK", ""):
        return
    for c in range(2):
        for s_ in range(4):
            cc = "0" if s_ == 0 else v(D+16*c, 16)
            A(f"{MF} {v(D+16*c,16)}, {v(F+16*c+4*s_,4)}, {v(src+4*s_,4)}, {cc}")


W_ = T6
NBW = 2048*513*2
SQ, SO, ST = 184, 185, 186
VA1, VA2, VA8, VLIN = 4, 5, 6, 7
_ph = [0]


def l_arrive(A):
    _ph[0] += 1
    A(f"v_mov_b32 v{ST+4}, {_ph[0]}")
    A(f"s_mov_b64 exec, 1\nds_write_b32 v{SO}, v{ST+4}\ns_mov_b64 exec, -1")
    return _ph[0]


def l_check(A, n, delta=0, slp=1):
    l, d = uid("lc"), uid("lcd")
    if delta:
        A(f"v_add_u32 v{ST+5}, {delta}, v{SQ}")
    A.label(l)
    A(f"ds_read_b128 {v(ST,4)}, v{ST+5 if delta else SQ}\ns_waitcnt lgkmcnt(0)")
    A(f"v_min3_u32 v{ST}, v{ST}, v{ST+1}, v{ST+2}\nv_min_u32 v{ST}, v{ST}, v{ST+3}")
    A(f"v_readfirstlane_b32 s{CNT}, v{ST}")
    A(f"s_cmp_ge_u32 s{CNT}, {n}")
    A(f"s_cbranch_scc1 {d}")
    A(f"s_sleep {slp}\ns_branch {l}")
    A.label(d)


def l_sync(A):
    l_check(A, l_arrive(A))


def aux_setup(A):
    srd(A, S2, WR, size=NBW)
    srd(A, S3, WI, size=NBW)
    A(f"s_and_b32 s{T0}, s2, 31\ns_lshr_b32 s{T1}, s2, 5\ns_lshl_b32 s{T1}, s{T1}, 7\ns_add_u32 s{T0}, s{T0}, s{T1}")
    A(f"s_lshl_b32 s{T1}, s{W_}, 5\ns_add_u32 s{T7}, s{T0}, s{T1}\ns_lshl_b32 s{T0}, s{T7}, 12")
    srd(A, AX, AX, T0, 0, 0x1000)
    A("v_lshlrev_b32 v2, 4, v1\nv_xor_b32 v3, 128, v2")
    A(f"s_lshl_b32 s{T8}, s{W_}, 12\ns_add_u32 s{T8}, s{T8}, {L_AX}")
    A(f"s_and_b32 s{T0}, s2, 7\ns_bfe_u32 s{T1}, s2, 0x10003\ns_bfe_u32 s{T2}, s2, 0x20004\ns_lshr_b32 s{T3}, s2, 6")
    A(f"s_lshr_b32 s{T4}, s{T0}, 1\ns_lshl_b32 s{T4}, s{T4}, 3\ns_lshl_b32 s{T5}, s{T1}, 2\ns_add_u32 s{T4}, s{T4}, s{T5}")
    A(f"s_and_b32 s{T5}, s{T0}, 1\ns_lshl_b32 s{T5}, s{T5}, 1\ns_add_u32 s{T4}, s{T4}, s{T5}\ns_lshl_b32 s{T4}, s{T4}, 5")
    A(f"s_lshl_b32 s{T5}, s{T2}, 3\ns_add_u32 s{T4}, s{T4}, s{T5}\ns_lshl_b32 s{T5}, s{W_}, 1\ns_add_u32 s{T4}, s{T4}, s{T5}\ns_mul_i32 s{T4}, s{T4}, 1026")
    A(f"s_lshl_b32 s{T5}, s{T3}, 8\ns_add_u32 s{T9}, s{T4}, s{T5}")
    A("v_bfe_u32 v8, v1, 4, 1\nv_mul_u32_u24 v8, 32832, v8")
    A(f"v_lshrrev_b32 v9, 5, v1\ns_mov_b32 s{T5}, 1050624\nv_mul_lo_u32 v9, s{T5}, v9\nv_add_u32 v8, v8, v9")
    A(f"v_and_b32 v9, 15, v1\ns_lshl_b32 s{T5}, s{W_}, 1\nv_xor_b32 v9, s{T5}, v9")
    A("v_lshl_add_u32 v18, v9, 4, v8\nv_xor_b32 v9, 1, v9\nv_lshl_add_u32 v19, v9, 4, v8\nv_add_u32 v19, 1026, v19")
    A(f"s_bfe_u32 s{T4}, s2, 0x20005\ns_lshl_b32 s{T4}, s{T4}, 8\ns_bfe_u32 s{T5}, s2, 0x10004\ns_lshl_b32 s{T5}, s{T5}, 6\ns_add_u32 s{T4}, s{T4}, s{T5}")
    A(f"s_bfe_u32 s{T5}, s2, 0x10003\ns_lshl_b32 s{T5}, s{T5}, 7\ns_add_u32 s{T4}, s{T4}, s{T5}\ns_and_b32 s{T5}, s2, 7\ns_lshl_b32 s{T5}, s{T5}, 2\ns_add_u32 s{T4}, s{T4}, s{T5}")
    A(f"v_bfe_u32 v8, v1, 3, 2\nv_add_u32 v8, s{T4}, v8\nv_bfe_u32 v9, v1, 2, 1\nv_lshl_add_u32 v8, v9, 5, v8\nv_bfe_u32 v9, v1, 1, 1\nv_lshl_add_u32 v8, v9, 10, v8")
    A("v_sub_u32 v9, 2048, v8\nv_and_b32 v9, 2047, v9\nv_and_b32 v10, 1, v1\nv_cmp_eq_u32 vcc, 1, v10\nv_cndmask_b32 v8, v8, v9, vcc")
    A(f"v_mul_u32_u24 v17, 1026, v8\ns_lshr_b32 s{T4}, s2, 7\ns_lshl_b32 s{T4}, s{T4}, 10\nv_add_u32 v17, s{T4}, v17")


def aux_issue(A, vm):
    for c in range(2):
        A(f"s_add_u32 m0, s{T8}, {c*2048}")
        A(f"s_mov_b32 s{CNT}, {c*2048}")
        for u in range(2):
            vm.op(f"buffer_load_dwordx4 v{2+c}, {r4(AX)}, s{CNT} offen offset:{u*1024}{NT} lds", "ax")


def w_issue(A, vm):
    for bb in range(2):
        for arr in range(2):
            A(f"s_add_u32 m0, s{T8}, {L_W - L_AX + bb*2048 + arr*1024}")
            vm.op(f"buffer_load_dwordx4 v{18+bb}, {r4(S2 if arr == 0 else S3)}, s{T9} offen{NT} lds" if "1" not in SK else f"buffer_load_dword v23, v2, {r4(AX)}, 0 offen offset:4092", "w")
    nw = uid("nw")
    A(f"s_cmp_lg_u32 s{W_}, {3 if not ('1' in SK or 'p' in SK) else 9}\ns_cbranch_scc1 {nw}")
    A("s_mov_b32 exec_hi, 0")
    A(f"buffer_load_ushort v{WSP}, v17, {r4(S2)}, 0 offen{NT}")
    A(f"buffer_load_ushort v{WSP+1}, v17, {r4(S3)}, 0 offen{NT}")
    A("s_mov_b64 exec, -1")
    A.label(nw)


WSP, IN, D, MID, TMP = 88, 24, 40, 72, 168
DY, W, TT = 72, 104, 136
M_, SPC, CJ, SGN = T0, T1, T2, T3
AUXK = E_("AUXK", 5)
GATE = E_("GATE", 0)
WK = E_("WK", 1)
WMID = WK <= 12
WSK = E_("WSK", 9)
A1K = E_("A1K", 0)
FINE = E_("FINE", 1)
ZSK = E_("ZSK", A1K + 3 + FINE)
LATE = A1K >= 6
A2G = E_("A2G", 1)
POLLK = E_("POLLK", 15)
VTLB, VTN, VTF = E_("VTLB", 0), E_("VTN", 1), (" nt" if E_("VTF", 1) else "")
TLBW = E_("TLBW", 0)
DEFER = E_("DEFER", 0)
LDEF = E_("LDEF", 0)
LSLP = E_("LSLP", 1)
WSH = E_("WSH", 1)
PRE1, PRE2 = E_("PRE1", 6), E_("PRE2", 12)
HALF = E_("HALF", 0)
WEARLY = E_("WEARLY", 0)
KA, KA0, KA1, KAG = E_("KA", 0), E_("KA0", 1), E_("KA1", 15), E_("KAG", 0)
G1X = os.environ.get("G1X", "")
PHM, PHR = E_("PHM", 0), E_("PHR", 16)
SK = os.environ.get("SK", "")
A2C = E_("A2C", 0)
LPRIO3 = E_("LPRIO3", 3)
LPRIO0 = E_("LPRIO0", 3)
LPRIO, LPRIO2 = E_('LPRIO', 3), E_('LPRIO2', 3)
L_IMG = 98304
LIMG_FREE = 2


def img(i):
    ka = 8*(i >> 2) + (i & 3)
    return (VA1, ka*1024) if i < 8 else (VA8, 0) if i == 8 else (VA2, (27 - ka)*1024)


def aux_pre(A):
    A(f"v_mov_b32 v{SQ}, {L_SYNC + 16}\ns_lshl_b32 s{T4}, s{W_}, 2\nv_add_u32 v{SO}, s{T4}, v{SQ}")
    A("v_and_b32 v8, 31, v1\nv_lshrrev_b32 v9, 5, v1\nv_and_b32 v10, 1, v1")
    A(f"v_lshrrev_b32 v11, 1, v8\nv_lshlrev_b32 v{VA1}, 6, v11\nv_lshl_add_u32 v{VA1}, v10, 4, v{VA1}\nv_lshl_add_u32 v{VA1}, v9, 12, v{VA1}")
    A(f"v_add_u32 v11, v11, v10\nv_lshlrev_b32 v11, 6, v11\nv_lshl_add_u32 v11, v10, 4, v11\nv_lshl_add_u32 v11, v9, 12, v11\nv_sub_u32 v{VA2}, {5120 + 48}, v11")
    for r in (VA1, VA2):
        A(f"v_bfe_u32 v11, v{r}, 7, 1\nv_lshlrev_b32 v11, 5, v11\nv_xor_b32 v{r}, v{r}, v11")
    A(f"v_add_u32 v{VA8}, 11264, v{VA2}\nv_and_b32 v{VA8}, 0x3fff, v{VA8}")
    A(f"s_add_u32 s{T4}, s{T4}, {L_IMG}")
    for r in (VA1, VA2, VA8):
        A(f"v_add_u32 v{r}, s{T4}, v{r}")
    A(f"v_bfe_u32 v11, v1, 3, 1\nv_lshlrev_b32 v11, 5, v11\nv_xor_b32 v{VLIN}, v2, v11")

    A("v_bfe_u32 v12, v1, 2, 1\nv_mul_u32_u24 v12, 2176, v12")
    A("v_bfe_u32 v13, v1, 3, 1\nv_lshl_add_u32 v12, v13, 6, v12\nv_lshl_add_u32 v12, v9, 8, v12")
    A("v_bfe_u32 v13, v1, 4, 1\nv_lshl_add_u32 v12, v13, 5, v12\nv_and_b32 v13, 3, v1\nv_lshl_add_u32 v12, v13, 3, v12")
    A(f"v_add_u32 v12, s{T8}, v12\nv_xor_b32 v13, 128, v12")
    if INOUT:
        A(f"s_lshl_b32 s{T4}, s{T7}, 14")
        srd(A, S0, OUT, T4, 0, 0x1000)
        srd(A, S1, OUT, T4, 0, 0x1000)
    else:
        A(f"s_lshl_b32 s{T4}, s2, 14\ns_lshl_b32 s{T5}, s{W_}, 12\ns_add_u32 s{T4}, s{T4}, s{T5}")
        srd(A, S0, WS, T4, WS_Z1, 0x1000)
        srd(A, S1, WS, T4, WS_Z3, 0x1000)
    A(f"v_and_b32 v14, 7, v1\nv_lshrrev_b32 v15, 3, v1\nv_xor_b32 v16, v14, v15\nv_lshlrev_b32 v16, 4, v16\nv_lshl_add_u32 v16, v14, 11, v16")
    A(f"s_lshr_b32 s{T4}, s{W_}, 1\ns_lshl_b32 s{T4}, s{T4}, 7\ns_and_b32 s{T5}, s{W_}, 1\ns_lshl_b32 s{T5}, s{T5}, 3\ns_add_u32 s{T4}, s{T4}, s{T5}\ns_add_u32 s{T4}, s{T4}, {L_W}")
    A(f"v_add_u32 v16, s{T4}, v16")
    A(f"v_lshlrev_b32 v15, {18 if INOUT else 16}, v15\nv_lshl_add_u32 v15, v14, 4, v15")
    A(f"s_lshl_b32 s{T4}, s{T3}, 7\ns_lshr_b32 s{T5}, s{W_}, 1\ns_lshl_b32 s{T5}, s{T5}, 6\ns_add_u32 s{T4}, s{T4}, s{T5}")
    A(f"s_and_b32 s{T5}, s{W_}, 1\ns_lshl_b32 s{T5}, s{T5}, 2\ns_add_u32 s{T4}, s{T4}, s{T5}\ns_mul_i32 s{T4}, s{T4}, {KS_}")
    A(f"s_lshr_b32 s{T5}, s{T0}, 2\ns_mul_i32 s{T5}, s{T5}, {ISH - 4096}\ns_add_u32 s{T4}, s{T4}, s{T5}")
    A(f"s_lshl_b32 s{T5}, s{T0}, 10\ns_add_u32 s{T4}, s{T4}, s{T5}\ns_lshl_b32 s{T5}, s{T1}, 9\ns_add_u32 s{T4}, s{T4}, s{T5}\ns_lshl_b32 s{T5}, s{T2}, 7\ns_add_u32 s{T4}, s{T4}, s{T5}")
    if INOUT:
        A(f"s_add_u32 s{T4}, s{T4}, 8192")
        srd(A, S4, OUT, T4, 0, 0x1000000, T4)
    else:
        srd(A, S4, WS, T4, WS_WT + 2*KS_, 0x400000, T4)
    make_F(A, 92)
    make_T(A, T, 92, 0)
    make_T(A, TT, 92, 1)


def aux_hook(A, vm, k):
    if k == (3 if A1K or WEARLY else 7):
        A("v_mov_b32 v20, 0")
        vm.op(f"global_load_dword v21, v20, {sp(DBG)} sc1", "nonce")
    if k == AUXK:
        aux_issue(A, vm)
    if k == WK:
        w_issue(A, vm)
    if WMID and k == WK + LA + 1 + (WK >= LASW):
        wt_read(A)
        A("s_waitcnt lgkmcnt(0)")
        wt_perm(A)
    if A1K:
        if k == A1K:
            vm.wait_for("ax")
            mark(A, 6)
            for s_ in range(4):
                for u in range(2):
                    A(f"ds_read_b64_tr_b16 {v(IN+4*s_+2*u,2)}, v{12+u} offset:{s_*512}")
            A("s_waitcnt lgkmcnt(0)")
            stage1(A, IN, D)
        if k == A1K + 1:
            twiddle(A, D, MID, TMP, range(8 if FINE else 16))
        if k == A1K + 1 + FINE:
            if FINE:
                twiddle(A, D, MID, TMP, range(8, 16))
            stage2(A, MID, D)
        if k == A1K + 2 + FINE:
            A(f"s_lshl_b32 s{CNT}, s{W_}, 12\ns_add_u32 s{CNT}, s{CNT}, {L_IMG}\nv_add_u32 v8, s{CNT}, v{VLIN}")
            for i in range(16):
                A(f"v_cvt_pk_bf16_f32 v{MID+i}, v{D+i}, v{D+16+i}")
                a, o = img(i)
                A(f"ds_write_b32 v{a}, v{MID+i} offset:{o}")
            A("s_waitcnt lgkmcnt(0)")
        if k == A1K + 3 + FINE:
            for u in range(4):
                A(f"ds_read_b128 {v(MID+4*u,4)}, v8 offset:{u*1024}")
            for r in (VA1, VA2, VA8):
                A(f"v_add_u32 v{r}, {L_AX - L_IMG}, v{r}")
            A("s_waitcnt lgkmcnt(0)")
            l_arrive(A)
            assert l_arrive(A) == LIMG_FREE
        if k == ZSK:
            for u in range(4):
                vm.op(f"buffer_store_dwordx4 {v(MID+4*u,4)}, v2, {r4(S0)}, 0 offen offset:{u*1024} sc1", "zst")
            mark(A, 2)
    if WMID and k == WSK:
        wt_store(A, vm)
    if (A1K and not LATE) or WEARLY:
        KS = (max(ZSK, WSK) if A1K else WSK) + LA + 1
        cnt, flg = (CNT_A, FLG_A) if A1K else (CNT_W, FLG_W)
        assert WMID and KS + 2 <= 13 and (not A1K or ZSK >= A1K + 3 + FINE)
        if k == KS - 1 and A1K:
            a2_setup(A)
        if k == KS:
            x, y = uid("sg"), uid("sg")
            A(f"v_readfirstlane_b32 s{NONCE}, v21\ns_cmp_lg_u32 s{NONCE}, 0\ns_cbranch_scc1 {y}")
            get_nonce(A, 20)
            A.label(y)
            A(f"s_cmp_lg_u32 s{W_}, 0\ns_cbranch_scc1 {x}")
            A(f"s_and_b32 s{T4}, s2, 15\ns_lshl_b32 s{T5}, s{T4}, 7\ns_add_u32 s{T5}, s{T5}, {cnt}")
            A(f"s_add_u32 s{MSK}, s{WS}, s{T5}\ns_addc_u32 s{MSK+1}, s{WS+1}, 0\ns_mov_b32 s27, 1")
            A(f"s_atomic_add s27, {sp(MSK)}, 0x0 glc")
            A.label(x)
        if k == KS + 2:
            x = uid("sg")
            A(f"s_cmp_lg_u32 s{W_}, 0\ns_cbranch_scc1 {x}")
            A(f"s_waitcnt lgkmcnt(0)\ns_cmp_lg_u32 s27, 15\ns_cbranch_scc1 {x}")
            A(f"s_and_b32 s27, s2, 15\ns_lshl_b32 s27, s27, 2\ns_add_u32 s27, s27, {flg}\nv_lshl_add_u32 v22, v1, 7, s27\nv_mov_b32 v23, s{NONCE}")
            A(f"global_store_dword v22, v23, {sp(WS)} sc1")
            A.label(x)
        if k == POLLK and A1K:
            flag_poll(A, flg)


def flag_poll(A, flg):
    A(f"s_lshl_b32 s{T4}, s2, 2\ns_add_u32 s{T4}, s{T4}, s{W_}\ns_lshr_b32 s{T4}, s{T4}, 4\ns_lshl_b32 s{T4}, s{T4}, 7\ns_add_u32 s{T4}, s{T4}, {flg}")
    A(f"s_add_u32 s24, s{WS}, s{T4}\ns_addc_u32 s25, s{WS+1}, 0")
    A(f"s_load_dwordx16 s[4:19], s[24:25], 0x0 glc")


def flag_wait(A):
    late, go, pl_ = uid("late"), uid("go"), uid("sp")
    A(f"s_mov_b32 s26, s{NONCE}\ns_mov_b32 s27, s{NONCE}\ns_mov_b32 s{CNT}, 0\ns_branch {pl_}")
    A.label(late)
    A(f"s_add_u32 s{CNT}, s{CNT}, 1\ns_cmp_ge_u32 s{CNT}, {SPIN_MAX}\ns_cbranch_scc1 {go}")
    A(f"s_sleep 8\ns_load_dwordx16 s[4:19], s[24:25], 0x0 glc")
    A.label(pl_)
    A("s_waitcnt lgkmcnt(0)")
    for q in range(8):
        A(f"s_cmp_eq_u64 s[{4+2*q}:{5+2*q}], s[26:27]\ns_cbranch_scc0 {late}")
    A.label(go)


RR = lambda arr, kind: 104 + (arr*4 + kind)*2


def wt_read(A):
    for arr in range(2):
        for kind in range(4):
            A(f"ds_read_b64 {v(RR(arr,kind),2)}, v16 offset:{arr*1024 + kind*256}")
    A(f"s_mov_b32 s{T4}, 0x05040100\ns_mov_b32 s{T5}, 0x07060302")
    A(f"v_lshlrev_b32 v{WSP}, 16, v{WSP}\nv_lshlrev_b32 v{WSP+1}, 16, v{WSP+1}\nv_lshlrev_b32 v9, 1, v1")
    A(f"v_add_f32_dpp v{WSP+2}, v{WSP}, v{WSP} quad_perm:[1,0,3,2] row_mask:0xf bank_mask:0xf")
    A(f"v_subrev_f32_dpp v{WSP+3}, v{WSP+1}, v{WSP+1} quad_perm:[1,0,3,2] row_mask:0xf bank_mask:0xf")
    A(f"v_mul_f32 v{WSP+2}, 0.5, v{WSP+2}\nv_mul_f32 v{WSP+3}, 0.5, v{WSP+3}")
    A(f"v_cvt_pk_bf16_f32 v{WSP}, v{WSP+2}, v{WSP+3}")


def wt_perm(A):
    for kap in range(4):
        o = 120 + 4*kap
        for e in range(2):
            for h2 in range(2):
                kind = e + 2*h2
                A(f"v_perm_b32 v{o+2*e+h2}, v{RR(1,kind)+kap//2}, v{RR(0,kind)+kap//2}, s{T4 + kap % 2}")


def wt_store(A, vm):
    nw = uid("nw")
    A(f"s_cmp_lg_u32 s{W_}, 3\ns_cbranch_scc1 {nw}")
    A(f"s_lshr_b32 s{T4}, s2, 7\ns_mul_i32 s{T4}, s{T4}, {KS_}\ns_bfe_u32 s{T5}, s2, 0x10006\ns_mul_i32 s{T5}, s{T5}, {ISH}\ns_add_u32 s{T4}, s{T4}, s{T5}")
    A(f"s_and_b32 s{T5}, s2, 63\ns_lshl_b32 s{T5}, s{T5}, 6\ns_add_u32 s{T4}, s{T4}, s{T5}")
    srd(A, S3, WS, T4, WS_WT, 64)
    A("s_mov_b32 exec_lo, 0x55555555\ns_mov_b32 exec_hi, 0")
    if not E_("SKIPS", 0):
        A(f"buffer_store_dword v{WSP}, v9, {r4(S3)}, 0 offen sc1")
    A("s_mov_b64 exec, -1")
    A.label(nw)
    for kap in range(0 if "2" in SK else 4):
        A(f"s_mov_b32 s{CNT}, {kap*KS_}")
        vm.op(f"buffer_store_dwordx4 {v(120+4*kap,4)}, v15, {r4(S4)}, s{CNT} offen sc1", "wst")


def a1_task(A, vm):
    y = uid("sg")
    A(f"v_readfirstlane_b32 s{NONCE}, v21\ns_cmp_lg_u32 s{NONCE}, 0\ns_cbranch_scc1 {y}")
    get_nonce(A, 20)
    A.label(y)
    if WK == 17:
        w_issue(A, vm)
    trace(A, 191, 32)
    vm.wait_for("ax")
    trace(A, 191, 33)
    mark(A, 6)
    for s_ in range(4):
        for u in range(2):
            A(f"ds_read_b64_tr_b16 {v(IN+4*s_+2*u,2)}, v{12+u} offset:{s_*512}")
    A("s_waitcnt lgkmcnt(0)")
    stage1(A, IN, D)
    twiddle(A, D, MID, TMP)
    stage2(A, MID, D)
    if WK == 18:
        w_issue(A, vm)
    A(f"s_lshl_b32 s{CNT}, s{W_}, 12\ns_add_u32 s{CNT}, s{CNT}, {L_IMG}\nv_add_u32 v8, s{CNT}, v{VLIN}")
    for i in range(16):
        A(f"v_cvt_pk_bf16_f32 v{MID+i}, v{D+i}, v{D+16+i}")
        a, o = img(i)
        A(f"ds_write_b32 v{a}, v{MID+i} offset:{o}")
    together = not WMID and WK < 17
    if together:
        vm.wait_for("w")
    A("s_waitcnt lgkmcnt(0)")
    l_sync(A)
    for u in range(4):
        A(f"ds_read_b128 {v(MID+4*u,4)}, v8 offset:{u*1024}")
    if together:
        wt_read(A)
    for r in (VA1, VA2, VA8):
        A(f"v_add_u32 v{r}, {L_AX - L_IMG}, v{r}")
    A("s_waitcnt lgkmcnt(0)")
    p = l_arrive(A)
    assert p == LIMG_FREE
    if together:
        wt_perm(A)
    if GATE:
        l_check(A, 2, -16)
    for u in range(0 if "3" in SK else 4):
        vm.op(f"buffer_store_dwordx4 {v(MID+4*u,4)}, v2, {r4(S0)}, 0 offen offset:{u*1024} sc1", "zst")
    if not WMID and not together:
        vm.wait_for("w")
        l_sync(A)
        wt_read(A)
        A("s_waitcnt lgkmcnt(0)")
        wt_perm(A)
    if not WMID or WSK > 15:
        wt_store(A, vm)
    trace(A, 191, 34)
    mark(A, 2)


def a2_setup(A):
    A(f"s_and_b32 s{M_}, s2, 7\ns_lshl_b32 s{M_}, s{M_}, 5\ns_lshr_b32 s{T4}, s2, 3\ns_add_u32 s{M_}, s{M_}, s{T4}")
    A(f"s_lshr_b32 s{T4}, s{W_}, 1\ns_xor_b32 s{T4}, s{T4}, s{W_}\ns_and_b32 s{T4}, s{T4}, 1")
    A(f"s_or_b32 s{T5}, s{T4}, s{M_}\ns_cmp_eq_u32 s{T5}, 0\ns_cselect_b32 s{SPC}, 1, 0")
    A(f"s_lshl_b32 s{T5}, s{M_}, 1\ns_add_u32 s{T4}, s{T4}, s{T5}")
    A(f"s_mul_i32 s{T4}, s{T4}, {KS_}\ns_add_u32 s{T4}, s{T4}, {8192 if INOUT else WS_WT + 2*KS_}")
    A(f"s_lshr_b32 s{T5}, s{W_}, 1\ns_mul_i32 s{T9}, s{T5}, {KS_}\ns_add_u32 s{T9}, s{T9}, {WS_WT}")
    A(f"s_cmp_eq_u32 s{SPC}, 1\ns_cselect_b32 s{T4}, s{T9}, s{T4}\ns_cselect_b32 s{T5}, 0, s{T5}")
    A(f"s_cselect_b32 s{MSK}, s{WS}, s{OUT if INOUT else WS}\ns_cselect_b32 s{MSK+1}, s{WS+1}, s{(OUT if INOUT else WS)+1}")
    A(f"s_lshl_b32 s{CJ}, s{T5}, 31\ns_or_b32 s{SGN}, s{CJ}, 0x3f800000")
    srd(A, S2, MSK, T4, 0, ISH + 4096)
    if INOUT:
        A(f"s_lshl_b32 s{T4}, s{W_}, 22\ns_lshr_b32 s{T5}, s{M_}, 6\ns_lshl_b32 s{T5}, s{T5}, 19\ns_add_u32 s{T4}, s{T4}, s{T5}")
        A(f"s_and_b32 s{T5}, s{M_}, 63\ns_lshl_b32 s{T5}, s{T5}, 6\ns_add_u32 s{T4}, s{T4}, s{T5}")
        srd(A, S3, OUT, T4, 0, 160*16384, T5)
        srd(A, S4, OUT, T4, 0, 160*16384, T5)
    else:
        A(f"s_lshl_b32 s{T4}, s{W_}, 20\ns_lshl_b32 s{T5}, s{M_}, 6\ns_add_u32 s{T4}, s{T4}, s{T5}")
        srd(A, S3, WS, T4, WS_Z1, 0x100000, T5)
        srd(A, S4, WS, T4, WS_Z3, 0x100000, T5)
    A("v_lshrrev_b32 v8, 2, v1\nv_lshlrev_b32 v8, 14, v8\nv_and_b32 v9, 3, v1\nv_lshrrev_b32 v10, 4, v1\nv_xor_b32 v9, v9, v10\nv_lshl_add_u32 v14, v9, 4, v8")
    A(f"v_and_b32 v8, 31, v1\nv_bfe_u32 v9, v1, 2, 2\nv_xor_b32 v9, s{W_}, v9\nv_lshlrev_b32 v9, 4, v9\nv_lshl_add_u32 v9, v8, 6, v9")
    A(f"v_lshrrev_b32 v8, 5, v1\nv_lshl_add_u32 v9, v8, 11, v9\nv_add_u32 v15, {L_AX}, v9")
    A(f"s_lshl_b32 s{T4}, s{W_}, 13\ns_add_u32 s{T4}, s{T4}, {L_AX}\nv_add_u32 v16, s{T4}, v2")
    A(f"s_xor_b32 s{T5}, s{T4}, {3 << 13}\ns_cmp_eq_u32 s{SPC}, 1\ns_cselect_b32 s{T5}, s{T4}, s{T5}\nv_add_u32 v17, s{T5}, v2")
    A(f"v_add_u32 v18, s{T8}, v2")
    A(f"s_lshr_b32 s{T4}, s{W_}, 1\ns_xor_b32 s{T4}, s{T4}, s{W_}\ns_and_b32 s{T4}, s{T4}, 1\ns_lshl_b32 s{T9}, s{T4}, 13\ns_add_u32 s{T9}, s{T9}, {L_W}\nv_add_u32 v19, s{T9}, v2")
    for kk in range(32):
        A(f"v_mul_f32 v{TT+kk}, s{SGN}, v{TT+kk}")


ZU = lambda u: (16*(u & 1) + 128*(u >> 1))*16384 if INOUT else u << 18


def a2_loads(A, z=True, w=True):
    for u in range(4 if z and '5' not in SK else 0):
        A(f"s_add_u32 m0, s{T8}, {u*1024}\ns_mov_b32 s{T4}, {ZU(u)}")
        A(f"buffer_load_dwordx4 v14, {r4(S3)}, s{T4} offen sc1 lds")
    if WSH:
        a, b = uid("ws"), uid("wd")
        A(f"s_cmp_eq_u32 s{SPC}, 1\ns_cbranch_scc1 {a}")
        A(f"s_lshr_b32 s{T4}, s{W_}, 1\ns_lshl_b32 s{T5}, s{T4}, 12\ns_mul_i32 s{T4}, s{T4}, {ISH}\ns_add_u32 m0, s{T9}, s{T5}")
        for u in range(4):
            A(f"buffer_load_dwordx4 v2, {r4(S2)}, s{T4} offen offset:{u*1024} sc1 lds")
        A(f"s_waitcnt vmcnt(0)\ns_branch {b}")
        A.label(a)
    A(f"s_movk_i32 s{T4}, {ISH}")
    for it in range(8 if w and '4' not in SK else 0):
        A(f"buffer_load_dwordx4 {v(W+4*it,4)}, v2, {r4(S2)}, {'0' if it < 4 else f's{T4}'} offen offset:{(it & 3)*1024} sc1")
    if WSH:
        A.label(b)


def aux_rest(A, vm):
    def phase(cnt, flg, young=0):
        tb = 36 if cnt == CNT_A else 48
        trace(A, 191, tb)
        A(f"s_waitcnt vmcnt({young})")
        trace(A, 191, tb+1)
        if E_("AM", 0) and cnt == (CNT_B if E_("AM", 0) == 4 else CNT_A):
            mark(A, 5)
        p = l_arrive(A)
        x = uid("ph")
        A(f"s_cmp_lg_u32 s{W_}, 0\ns_cbranch_scc1 {x}")
        l_check(A, p)
        trace(A, 191, tb+2)
        if PHM:
            base = WS_CNT + (0 if cnt == CNT_A else 32*128)
            pl_, nok = uid("sp"), uid("nok")
            if PHM == 1:
                A(f"v_lshlrev_b32 v20, 7, v1\nv_add_u32 v20, {base}, v20\nv_mov_b32 v21, 1\ns_mov_b32 exec_hi, 0\ns_mov_b32 exec_lo, {hex((1 << PHR) - 1)}")
                A(f"global_atomic_add v20, v21, {sp(WS)} sc1\ns_mov_b64 exec, -1")
            else:
                A(f"s_add_u32 s4, s{WS}, {base}\ns_addc_u32 s5, s{WS+1}, 0\ns_mov_b32 s{T5}, 1")
                for r in range(PHR):
                    A(f"s_atomic_add s{T5}, s[4:5], {hex(r*128)}")
            A(f"s_and_b32 s{T4}, s2, {PHR - 1}\ns_lshl_b32 s{T4}, s{T4}, 7\ns_add_u32 s{T4}, s{T4}, {base}")
            A(f"s_add_u32 s{MSK}, s{WS}, s{T4}\ns_addc_u32 s{MSK+1}, s{WS+1}, 0\ns_mov_b32 s{CNT}, 0")
            trace(A, 191, tb+4)
            A(f"s_branch {pl_}")
            A.label(nok)
            A(f"s_add_u32 s{CNT}, s{CNT}, 1\ns_cmp_ge_u32 s{CNT}, {SPIN_MAX}\ns_cbranch_scc1 {x}")
            if SLP_A:
                A(f"s_sleep {SLP_A}")
            A.label(pl_)
            A(f"s_load_dword s4, {sp(MSK)}, 0x0 glc\ns_waitcnt lgkmcnt(0)")
            A(f"s_cmp_lt_u32 s4, 256\ns_cbranch_scc1 {nok}")
            trace(A, 191, tb+5)
            if TRACE:
                A(f"v_writelane_b32 v191, s{CNT}, {tb+7}")
            A.label(x)
            l_check(A, l_arrive(A), slp=LSLP)
            trace(A, 191, tb+6)
            return
        y, pl_, nok = uid("sg"), uid("sp"), uid("nok")
        A(f"s_and_b32 s{T4}, s2, 15\ns_lshl_b32 s{T5}, s{T4}, 7\ns_add_u32 s{T5}, s{T5}, {cnt}")
        A(f"s_add_u32 s{MSK}, s{WS}, s{T5}\ns_addc_u32 s{MSK+1}, s{WS+1}, 0\ns_mov_b32 s{T5}, 1")
        A(f"s_atomic_add s{T5}, {sp(MSK)}, 0x0 glc")
        A(f"s_lshl_b32 s{T4}, s{T4}, 2\ns_add_u32 s{T4}, s{T4}, {flg}\nv_lshl_add_u32 v20, v1, 7, s{T4}\nv_mov_b32 v21, s{NONCE}")
        if NREP:
            A(f"s_add_u32 s4, s{WS}, s{T4}\ns_addc_u32 s5, s{WS+1}, 0")
        A(f"s_and_b32 s{T4}, s2, {(NREP or 64) - 1}\ns_lshl_b32 s{T4}, s{T4}, 7\ns_add_u32 s{T4}, s{T4}, {flg}")
        A("s_waitcnt lgkmcnt(0)")
        if TRACE:
            A(f"s_mov_b32 s3, s{T5}")
            trace(A, 191, tb+3)
            A(f"s_mov_b32 s{T5}, s3")
        A(f"s_cmp_lg_u32 s{T5}, 15\ns_cbranch_scc1 {y}")
        if NREP:
            for r in range(NREP):
                A(f"s_atomic_swap s{NONCE}, s[4:5], {hex(r*128)}")
            A("s_waitcnt lgkmcnt(0)")
        else:
            A(f"global_store_dword v20, v21, {sp(WS)} sc1")
        A.label(y)
        trace(A, 191, tb+4)
        if E_("AM", 0) and cnt == (CNT_B if E_("AM", 0) == 4 else CNT_A):
            mark(A, 8 if E_("AM", 0) == 3 else 6)
        A(f"s_add_u32 s{MSK}, s{WS}, s{T4}\ns_addc_u32 s{MSK+1}, s{WS+1}, 0\ns_mov_b32 s{T4}, s{NONCE}\ns_mov_b32 s{T5}, s{NONCE}\ns_mov_b32 s{CNT}, 0")
        A(f"s_branch {pl_}")
        A.label(nok)
        A(f"s_add_u32 s{CNT}, s{CNT}, 1\ns_cmp_ge_u32 s{CNT}, {SPIN_MAX}\ns_cbranch_scc1 {x}")
        if SLP_A:
            A(f"s_sleep {SLP_A}")
        A.label(pl_)
        A(f"s_load_dwordx16 s[4:19], {sp(MSK)}, 0x0 glc\ns_waitcnt lgkmcnt(0)")
        for q in range(8):
            A(f"s_cmp_eq_u64 s[{4+2*q}:{5+2*q}], {sp(T4)}\ns_cbranch_scc0 {nok}")
        trace(A, 191, tb+5)
        if TRACE:
            A(f"v_writelane_b32 v191, s{CNT}, {tb+7}")
        A.label(x)
        l_check(A, l_arrive(A), slp=LSLP)
        trace(A, 191, tb+6)
    if LATE:
        y = uid("sg")
        A(f"v_readfirstlane_b32 s{NONCE}, v21\ns_cmp_lg_u32 s{NONCE}, 0\ns_cbranch_scc1 {y}")
        get_nonce(A, 20)
        A.label(y)
        a2_setup(A)
        A("s_barrier\ns_barrier")
        phase(CNT_A, FLG_A, len(vm.issued) - 1 - max(i for i, t in enumerate(vm.issued) if t in ("zst", "wst")))
        A(f"s_setprio {LPRIO2}")
        if A2G:
            l_check(A, A2G, -16)
        a2_loads(A)
    elif A1K:
        A(f"s_setprio {LPRIO2}\ns_barrier\ns_barrier")
        flag_wait(A)
        if A2G:
            l_check(A, A2G, -16)
        a2_loads(A)
        A(f"s_setprio {LPRIO2}")
    else:
        A("s_barrier\ns_barrier")
        A(f"s_setprio {LPRIO}")
        a1_task(A, vm)
        if WEARLY:
            flag_poll(A, FLG_W)
        a2_setup(A)
        if WEARLY:
            flag_wait(A)
            a2_loads(A, z=False)
        phase(CNT_A, FLG_A, 8 if WEARLY else 0)
        A(f"s_setprio {LPRIO2}")
        a2_loads(A, w=not WEARLY)
    mark(A, 7)
    A(f"s_waitcnt vmcnt({0 if (WEARLY and not A1K) or '4' in SK else 8})")
    if E_("AM", 0) in (1, 2):
        mark(A, 1)
    trace(A, 191, 44)
    l_sync(A)
    INS = 72
    for s_ in range(4):
        A(f"ds_read_b128 {v(INS+4*s_,4)}, v15 offset:{s_*4096}")
    if WSH:
        a = uid("wr")
        A(f"s_cmp_eq_u32 s{SPC}, 1\ns_cbranch_scc1 {a}")
        for it in range(8):
            A(f"ds_read_b128 {v(W+4*it,4)}, v19 offset:{it*1024}")
        A.label(a)
    A("s_waitcnt lgkmcnt(0)")
    if E_("AM", 0) == 2:
        mark(A, 2)
    p6 = l_arrive(A)
    if A2C:
        l_check(A, A2C, -16)
    A(f"s_lshl_b32 s{T4}, s{SPC}, 31\ns_or_b32 s{T4}, s{T4}, s{CJ}")
    fl, nwr = uid("fft"), uid("nwr")
    A.label(fl)
    for i in range(16):
        A(f"v_xor_b32 v{IN+i}, s{T4}, v{INS+i}")

    def pre(rng):
        for i in rng:
            w, rho, sg = W + 2*i, TT + i, TT + 16 + i
            r1, i1, r2, i2, Ar, Ai = (TMP + 8 + c for c in range(6))
            A(f"v_lshlrev_b32 v{r1}, 16, v{w}\nv_and_b32 v{i1}, 0xffff0000, v{w}")
            A(f"v_lshlrev_b32 v{r2}, 16, v{w+1}\nv_and_b32 v{i2}, 0xffff0000, v{w+1}")
            A(f"v_add_f32 v{Ar}, v{r1}, v{r2}\nv_add_f32 v{Ai}, v{i1}, v{i2}")
            A(f"v_sub_f32 v{r1}, v{r1}, v{r2}\nv_sub_f32 v{i1}, v{i1}, v{i2}")
            A(f"v_mul_f32 v{w}, v{rho}, v{r1}\nv_mul_f32 v{w+1}, v{rho}, v{i1}")
            A(f"v_fma_f32 v{rho}, v{sg}, v{r1}, v{Ar}\nv_fma_f32 v{sg}, v{sg}, v{i1}, v{Ai}")

    def once(rng):
        a = uid("once")
        A(f"s_cmp_eq_u32 s{SPC}, 2\ns_cbranch_scc1 {a}\ns_waitcnt vmcnt(0)")
        pre(rng)
        A.label(a)
    stage1(A, IN, D)
    once(range(0, PRE1))
    twiddle(A, D, IN, TMP)
    stage2(A, IN, D)
    once(range(PRE1, PRE2))
    l_check(A, p6)
    if E_("AM", 0) == 2:
        mark(A, 5)
    A(f"s_cmp_eq_u32 s{SPC}, 2\ns_cbranch_scc1 {nwr}")
    for c in range(8):
        A(f"ds_write_b128 v16, {v(D+4*c,4)} offset:{c*1024}")
    A(f"s_cmp_eq_u32 s{SPC}, 0\ns_cbranch_scc1 {nwr}")
    A(f"s_mov_b32 s{SPC}, 2\ns_mov_b32 s{T4}, 0\ns_branch {fl}")
    A.label(nwr)
    pre(range(PRE2, min(16, PRE2 + 2)))
    A("s_waitcnt lgkmcnt(0)")
    p7 = l_arrive(A)
    pre(range(min(16, PRE2 + 2), 16))

    def own(rng):
        for i in rng:
            Xr, Xi, mr, mi, t = D+i, D+16+i, TT+i, TT+16+i, TMP + (i & 1)
            A(f"v_mul_f32 v{t}, v{mi}, v{Xi}\nv_mul_f32 v{Xi}, v{mr}, v{Xi}")
            A(f"v_fmac_f32 v{Xi}, v{mi}, v{Xr}\nv_fma_f32 v{Xr}, v{mr}, v{Xr}, -v{t}")
    own(range(0, 6))
    l_check(A, p7)
    for c in range(8):
        A(f"ds_read_b128 {v(DY+4*c,4)}, v17 offset:{c*1024}")
    own(range(6, 16))
    A("s_waitcnt lgkmcnt(0)")
    if E_("AM", 0) in (1, 2):
        mark(A, 4)
    p8 = l_arrive(A)
    for i in range(16):
        Pr, Pi, Yr, Yi, gr, gi = D+i, D+16+i, DY+i, DY+16+i, W+2*i, W+2*i+1
        A(f"v_fma_f32 v{Pr}, -v{gr}, v{Yi}, v{Pr}\nv_fmac_f32 v{Pi}, v{gr}, v{Yr}")
        A(f"v_fma_f32 v{Pr}, -v{gi}, v{Yr}, v{Pr}\nv_fma_f32 v{Pi}, -v{gi}, v{Yi}, v{Pi}")
        A(f"v_cvt_pk_bf16_f32 v{IN+i}, v{Pi}, v{Pr}")
    if E_("AM", 0) == 2:
        mark(A, 6)
    stage1(A, IN, D)
    twiddle(A, D, IN, TMP)
    stage2(A, IN, D)
    A(f"s_lshr_b32 s{T4}, s{CJ}, 16")
    l_check(A, p8)
    for s_ in range(4):
        for r in range(4):
            i = 4*s_ + r
            A(f"v_cvt_pk_bf16_f32 v{IN+i}, v{D+i}, v{D+16+i}\nv_xor_b32 v{IN+i}, s{T4}, v{IN+i}")
        A(f"ds_write_b128 v15, {v(IN+4*s_,4)} offset:{s_*4096}")
    A("s_waitcnt lgkmcnt(0)")
    if E_("AM", 0) == 2:
        mark(A, 7)
    l_sync(A)
    for u in range(4):
        A(f"ds_read_b128 {v(IN+4*u,4)}, v18 offset:{u*1024}")
    for u in range(4):
        A(f"s_mov_b32 s{T4}, {ZU(u)}\ns_waitcnt lgkmcnt({3-u})")
        if "6" not in SK:
            A(f"buffer_store_dwordx4 {v(IN+4*u,4)}, v14, {r4(S4)}, s{T4} offen sc1")
    trace(A, 191, 46)
    if E_("AM", 0) != 3 and not E_("GM", 0):
        mark(A, 3)
    A(f"s_lshl_b32 s{T4}, s{T7}, 14")
    srd(A, S0, OUT, T4, 0, 0x4000)
    A("v_and_b32 v8, 31, v1\nv_lshrrev_b32 v9, 5, v1\nv_lshlrev_b32 v14, 2, v8\nv_lshl_add_u32 v14, v9, 9, v14")
    A(f"s_mov_b32 s{T4}, 0x35000000")
    for k in range(32):
        A(f"v_mul_f32 v{T+k}, s{T4}, v{T+k}")
    phase(CNT_B, FLG_B)
    A(f"s_setprio {LPRIO3}")
    if E_("AM", 0) != 3:
        mark(A, 8)
    A(f"s_mov_b32 m0, s{T8}")
    for u in range(4):
        if "7" not in SK:
            A(f"buffer_load_dwordx4 v{VLIN}, {r4(S1)}, 0 offen offset:{u*1024} sc1 lds")
    trace(A, 191, 56)
    A("s_waitcnt vmcnt(0)")
    trace(A, 191, 57)
    l_sync(A)
    for i in range(16):
        a, o = img(i)
        A(f"ds_read_b32 v{IN+i}, v{a} offset:{o}")
    A("s_waitcnt lgkmcnt(0)")
    stage1(A, IN, D)
    twiddle(A, D, IN, TMP)
    stage2(A, IN, D)
    A(f"s_movk_i32 s{T4}, 0x2000")
    O = 72
    for i in range(16):
        o = O + 2*i
        A(f"v_cvt_pk_bf16_f32 v{o+1}, v{D+16+i}, v{D+i}")
        A(f"v_lshlrev_b32 v{o}, 16, v{o+1}\nv_and_b32 v{o+1}, 0xffff0000, v{o+1}")
        off = (i >> 2)*1024 + (i & 3)*128
        if "8" not in SK:
            A(f"buffer_store_dword v{o}, v14, {r4(S0)}, 0 offen offset:{off}{OST}")
            A(f"buffer_store_dword v{o+1}, v14, {r4(S0)}, s{T4} offen offset:{off}{OST}")


def cmul_sq(A, d, a, t):
    A(f"v_mul_f32 {v(t)}, {v(a+1)}, {v(a+1)}")
    A(f"v_mul_f32 {v(t+1)}, {v(a)}, {v(a+1)}")
    A(f"v_fma_f32 {v(d)}, {v(a)}, {v(a)}, -{v(t)}")
    A(f"v_add_f32 {v(d+1)}, {v(t+1)}, {v(t+1)}")


def horner(A, dr, di, L, pr, pi, er, ei, t):
    assert dr not in (pr, pi) and di not in (pr, pi)
    A(f"v_fma_f32 {v(t)}, {v(L)}, {v(pr)}, {v(er)}")
    A(f"v_fma_f32 {v(t+1)}, {v(L)}, {v(pi)}, {v(ei)}")
    A(f"v_fma_f32 {v(dr)}, -{v(L+1)}, {v(pi)}, {v(t)}")
    A(f"v_fma_f32 {v(di)}, {v(L+1)}, {v(pr)}, {v(t+1)}")


def loader(A, name, kidx):
    RA, RB, ROT, M0B, SOF, RV = 12, 20, 24, 25, 26, 176
    A(f"s_sub_u32 s{W_}, s{WAVE}, 4")
    A("v_lshrrev_b32 v2, 5, v1\nv_bfe_u32 v3, v1, 3, 2")
    A("v_and_b32 v4, 1, v3\nv_lshrrev_b32 v5, 1, v3")
    A("v_lshlrev_b32 v6, 4, v2\nv_lshl_add_u32 v6, v4, 3, v6\nv_add_u32 v6, v6, v5")
    A(f"s_lshr_b32 s{T0}, s{W_}, 1\ns_lshl_b32 s{T1}, s{T0}, 6\ns_and_b32 s{T2}, s{W_}, 1\ns_lshl_b32 s{T2}, s{T2}, 2\ns_add_u32 s{T1}, s{T1}, s{T2}")
    A(f"v_add_u32 v6, s{T1}, v6\nv_lshlrev_b32 v6, 11, v6")
    A(f"s_lshl_b32 s{T1}, s{T0}, 5")
    A(f"v_lshl_add_u32 v7, v2, 3, v3\nv_add_u32 v7, s{T1}, v7\nv_lshlrev_b32 v7, 11, v7")
    A("v_and_b32 v4, 7, v1\nv_lshrrev_b32 v5, 4, v1\nv_xor_b32 v4, v4, v5\nv_lshlrev_b32 v4, 4, v4")
    A("v_xor_b32 v5, 64, v4")
    for u in range(4):
        ch = 4 if u % 2 == 0 else 5
        A(f"v_add_u32 v{RV+u}, v6, v{ch}")
        if u:
            A(f"v_add_u32 v{RV+u}, {(32*(u & 1) + 2*(u >> 1))*2048 - u*1024}, v{RV+u}")
        A(f"v_add_u32 v{RV+4+u}, v7, v{ch}")
        if u:
            A(f"v_add_u32 v{RV+4+u}, {(16*(u & 1) + 4*(u >> 1))*2048 - u*1024}, v{RV+4+u}")
    A(f"s_and_b32 s{T4}, s2, 7\ns_mul_i32 s{T4}, s{T4}, {XO*128}")
    A(f"s_add_u32 s{T0}, s{TI}, s{TJ}\ns_and_b32 s{T0}, s{T0}, {NP-1}\ns_mul_i32 s{T0}, s{T0}, {2048//NP}\ns_add_u32 s{T4}, s{T4}, s{T0}")
    if RI or RJ:
        A(f"s_mul_i32 s{T0}, s{TI}, {RI*128}\ns_add_u32 s{T4}, s{T4}, s{T0}\ns_mul_i32 s{T0}, s{TJ}, {RJ*128}\ns_add_u32 s{T4}, s{T4}, s{T0}")
    A(f"s_lshl_b32 s{T0}, s{TI}, 18\ns_lshl_b32 s{T1}, s{TJ}, 17")
    A("s_waitcnt lgkmcnt(0)")
    A(f"s_lshl_b32 s{M0B}, s{W_}, 12\ns_mov_b32 s{ROT}, s{T4}")
    srd(A, RA, BX, T0, 0, 0x40000)
    A(f"s_bitcmp1_b32 s{W_}, 0\ns_cselect_b32 s{T2}, s{BIM}, s{BRE}\ns_cselect_b32 s{T3}, s{BIM+1}, s{BRE+1}")
    A(f"s_cselect_b32 s100, s{CIM}, s{CRE}\ns_cselect_b32 s101, s{CIM+1}, s{CRE+1}")
    srd(A, RB, T2, T1, 0, 0x20000)
    mark(A, 5)
    trace_init(A, 191)
    vm = VmCounter(A)

    def issue(k):
        slot = k % NS
        A(f"s_add_u32 m0, s{M0B}, {slot*32768}")
        if HALF:
            gs = 16//HALF
            A(f"s_add_u32 s{SOF}, s{ROT}, {k*128}\ns_and_b32 s{SOF}, s{SOF}, {gs*128 - 1}\ns_add_u32 s{SOF}, s{SOF}, {(k//gs)*gs*128}")
        else:
            A(f"s_add_u32 s{SOF}, s{ROT}, {k*128}\ns_and_b32 s{SOF}, s{SOF}, 0x7ff")
        for u in range(4 if "a" not in G1X else 1):
            vm.op(f"buffer_load_dwordx4 v{RV+u}, {r4(RA)}, s{SOF} offen offset:{u*1024}{NTX if k < NTK else ''} lds", ("st", k))
        A(f"s_add_u32 m0, s{M0B}, {slot*32768 + 16384}")
        for u in range(4 if "b" not in G1X else 1):
            vm.op(f"buffer_load_dwordx4 v{RV+4+u}, {r4(RB)}, s{SOF} offen offset:{u*1024}{NTX if k < NTK else ''} lds", ("st", k))
    issue(0)
    A(f"s_setprio {LPRIO0}")
    if TLBW:
        A(f"s_lshr_b32 s27, s2, 3\ns_lshl_b32 s27, s27, 2\ns_add_u32 s27, s27, s{W_}")
        for base, off, size in ((WS, WS_HT, 8 << 20), (WS, WS_Z1, 4 << 20), (WS, WS_WT, 4 << 20), (WS, WS_XB, 8 << 20), (OUT, 0, 16 << 20), (WS, 0, 1 << 20), (100, 0, 2 << 20)):
            share = size // 128
            A(f"s_mul_i32 s{SOF}, s27, {share}\ns_add_u32 s{SOF}, s{SOF}, {off}")
            for o in range(0, share, max(TLBW*1024, 1)):
                A(f"s_load_dword s3, {sp(base)}, s{SOF} offset:{o}")
    issued = 1
    if not NOAUX:
        aux_setup(A)
        Ltmp = Asm()
        aux_pre(Ltmp)
        ldef = Ltmp.lines
        if not LDEF:
            for l in ldef:
                A(l)
            ldef = []
    for k in range(-1, 16):
        if k >= 0:
            vm.wait_for(("st", k))
            trace(A, 191, 2*k)
            if k == 0 and E_("GM", 0):
                mark(A, 3)
            A("s_barrier")
            trace(A, 191, 2*k+1)
        if k in (0, 12):
            mark(A, 1 + k//4)
        while issued < min(16, k + LA + 1 + (k >= LASW)):
            issue(issued)
            issued += 1
        if not NOAUX:
            aux_hook(A, vm, k)
            if k == 0 and ldef:
                last = max(i for i, l in enumerate(ldef) if l.startswith("s_"))
                for _ in range(last + 1):
                    A(ldef.pop(0))
            elif k > 0 and k != WK + LA + 1:
                for _ in range(LDEF):
                    if ldef:
                        A(ldef.pop(0))
            if k == 13:
                assert not ldef, len(ldef)
        if KA and KA0 <= k <= KA1 and (NOAUX or k != WK + LA):
            if k == KA0:
                A(f"s_lshl_b32 s27, s2, 2\ns_add_u32 s27, s27, s{W_}\ns_lshr_b32 s27, s27, 1\ns_lshl_b32 s27, s27, 12")
            for n in range(KA):
                A(f"s_load_dword s3, s[100:101], s27 offset:{((k*KA + n)*128) % 4096}{' glc' if KAG else ''}")
        if CTOUCH == 4 and k == CTK:
            A(f"s_and_b32 s{SOF}, s2, 1\ns_lshl_b32 s{SOF}, s{SOF}, 10\ns_bfe_u32 s{CNT}, s2, 0x20001\ns_lshl_b32 s{CNT}, s{CNT}, 19\ns_add_u32 s{SOF}, s{SOF}, s{CNT}")
            A(f"s_lshr_b32 s{CNT}, s2, 3\ns_lshl_b32 s{CNT}, s{CNT}, 14\ns_add_u32 s{SOF}, s{SOF}, s{CNT}")
            A(f"s_lshr_b32 s{CNT}, s{W_}, 1\ns_lshl_b32 s{CNT}, s{CNT}, 13\ns_add_u32 s{SOF}, s{SOF}, s{CNT}")
            A(f"v_bfe_u32 v22, v1, 3, 2\nv_lshlrev_b32 v22, 11, v22\nv_and_b32 v23, 7, v1\nv_lshl_add_u32 v22, v23, 7, v22\nv_add_u32 v22, s{SOF}, v22")
            A("s_mov_b32 exec_hi, 0")
            vm.op(f"global_load_dword v23, v22, s[100:101]", "touch")
            A("s_mov_b64 exec, -1")
    assert issued == 16
    if NOAUX:
        A("s_barrier\ns_barrier")
    else:
        aux_rest(A, vm)
    trace(A, 191, 58)
    if TRACE:
        A("s_waitcnt vmcnt(0)")
    trace(A, 191, 59)
    trace_dump(A, 191, WAVE)
    stamp_end(A, kidx, WAVE)
    A("s_endpgm")


M16 = "v_mfma_f32_16x16x32_bf16"
XRW = 144
L_XC = 114688


def cpow(A, d, zr, zi, n, t):
    if isinstance(n, str):
        A(f"v_mul_f32 v{t}, {n}, v{zr}\nv_mul_f32 v{t+1}, {n}, v{zi}")
    else:
        A(f"v_mul_f32 v{t}, {fl(n)}, v{zr}\nv_mul_f32 v{t+1}, {fl(n)}, v{zi}")
    A(f"v_exp_f32 v{t}, v{t}\nv_rndne_f32 v{t+2}, v{t+1}\nv_sub_f32 v{t+1}, v{t+1}, v{t+2}")
    A(f"v_cos_f32 v{t+2}, v{t+1}\nv_sin_f32 v{t+1}, v{t+1}")
    A(f"v_mul_f32 v{d}, v{t}, v{t+2}\nv_mul_f32 v{d+1}, v{t}, v{t+1}")


def gemm_waves(A, name, kidx):
    U = lambda pg, c, idx: 64 + (pg*2 + c)*16 + 2*idx
    ACC = lambda mt, nt: 64 + ((nt & 1)*2 + (nt >> 1))*16 + 4*mt
    FR = lambda X, f: (32 if X == 0 else 144) + 4*f
    AD = lambda st, op, k2: 128 + st*4 + op*2 + k2
    LAM = lambda pg: 20 + 2*pg
    KC = lambda pg: 24 + 2*pg
    L8 = lambda pg: 176 + 2*pg
    L16 = lambda pg: 180 + 2*pg
    PP = lambda pg: 184 + 4*pg
    PW = lambda pg, idx: 208 + 16*pg + 2*idx
    Q16, Q64, Q128, Q256 = 28, 192, 30, 2
    WT_, WP = T8, T6
    A(f"s_lshr_b32 s{WT_}, s{WAVE}, 1\ns_and_b32 s{WP}, s{WAVE}, 1\ns_lshr_b32 s{PG}, s{TJ}, 3")
    A("v_and_b32 v6, 31, v1\nv_lshrrev_b32 v5, 5, v1\nv_lshlrev_b32 v11, 4, v1")
    A("v_bfe_u32 v4, v1, 2, 2\nv_lshlrev_b32 v4, 3, v4\nv_and_b32 v7, 3, v1\nv_add_u32 v4, v4, v7")
    A(f"s_lshl_b32 s{T0}, s{TJ}, 6\ns_lshl_b32 s{T1}, s{WP}, 5\ns_add_u32 s{T0}, s{T0}, s{T1}")
    A(f"v_add_u32 v4, s{T0}, v4\nv_lshlrev_b32 v7, 1, v4")
    A("s_waitcnt lgkmcnt(0)")
    for pg in range(2):
        A(f"global_load_ushort v{240+3*pg}, v7, {sp(LRE)} offset:{8*pg}\nglobal_load_ushort v{241+3*pg}, v7, {sp(LIM)} offset:{8*pg}\nglobal_load_ushort v{242+3*pg}, v7, {sp(LDT)} offset:{8*pg}")
    A("v_bfe_u32 v7, v1, 4, 1\nv_lshl_add_u32 v4, v7, 2, v4")
    nn = uid("nn")
    A(f"s_lshl_b32 s{T0}, s2, 3\ns_add_u32 s{T0}, s{T0}, s{WAVE}\ns_cmp_lg_u32 s{T0}, 1")
    A(f"s_cbranch_scc1 {nn}")
    A(f"s_load_dword s{T0}, {sp(WS)}, {WS_NONCE}")
    A(f"v_mov_b32 v16, 0\nv_lshlrev_b32 v17, 7, v1\nv_add_u32 v17, {WS_CNT}, v17")
    A(f"global_store_dword v17, v16, {sp(WS)} sc1")
    A("s_waitcnt vmcnt(0) lgkmcnt(0)")
    A(f"s_add_u32 s{T0}, s{T0}, 1\ns_cmp_eq_u32 s{T0}, 0\ns_cselect_b32 s{T0}, 1, s{T0}")
    A(f"v_mov_b32 v17, s{T0}")
    A(f"s_mov_b64 exec, 1\nglobal_store_dword v16, v17, {sp(DBG)} sc1")
    A(f"global_store_dword v16, v17, {sp(WS)} offset:{WS_NONCE}\ns_mov_b64 exec, -1")
    A.label(nn)
    if CODEPF:
        pf, pc = uid("pf"), uid("pc")
        A(f"s_cmp_lg_u32 s{WAVE}, 0")
        A(f"s_cbranch_scc1 {pf}")
        A(f"s_lshr_b32 s{T0}, s2, 3\ns_lshl_b32 s{T0}, s{T0}, 11\nv_and_b32 v12, 15, v1\nv_lshl_add_u32 v12, v12, 7, s{T0}")
        A(f"v_min_u32 v12, L_{name}_end-{name}, v12")
        A(f"s_getpc_b64 {sp(T0)}")
        A.label(pc)
        A(f"s_sub_u32 s{T0}, s{T0}, {pc}-{name}\ns_subb_u32 s{T1}, s{T1}, 0")
        A(f"global_load_dword v247, v12, {sp(T0)}")
        A.label(pf)
    A("v_bfe_u32 v7, v6, 1, 3\nv_xor_b32 v7, v7, v5\nv_lshlrev_b32 v7, 4, v7\nv_lshl_add_u32 v7, v6, 7, v7")
    A("v_and_b32 v8, 15, v1\nv_lshrrev_b32 v9, 4, v1")
    A("v_lshrrev_b32 v12, 1, v8\nv_xor_b32 v12, v12, v9\nv_lshlrev_b32 v12, 4, v12\nv_lshl_add_u32 v12, v8, 7, v12")
    A(f"s_lshl_b32 s{T0}, s{WT_}, 13\ns_lshl_b32 s{T1}, s{WP}, 13\ns_add_u32 s{T1}, s{T1}, 16384")
    for k2 in range(2):
        A(f"v_xor_b32 v13, {k2 << 6}, v12")
        A(f"v_add_u32 v{AD(0,0,k2)}, s{T0}, v13\nv_add_u32 v{AD(0,1,k2)}, s{T1}, v13")
        A(f"v_add_u32 v{AD(1,0,k2)}, 0x10000, v{AD(0,0,k2)}\nv_add_u32 v{AD(1,1,k2)}, 0x10000, v{AD(0,1,k2)}")
    A("v_mov_b64 v[64:65], 0\nv_mov_b64 v[66:67], 0")
    A(f"s_mul_i32 s{T0}, s{WAVE}, {16*XRW}\ns_add_u32 s{T0}, s{T0}, {L_XC}\nv_add_u32 v13, s{T0}, v11\nv_mov_b32 v12, {L_SYNC}")
    A("ds_write_b128 v13, v[64:67]\nds_write_b128 v13, v[64:67] offset:1024\nds_write_b128 v13, v[64:67] offset:2048")
    A("s_mov_b64 exec, 1\nds_write_b128 v12, v[64:67]\nds_write_b128 v12, v[64:67] offset:16\ns_mov_b64 exec, -1")
    A(f"s_lshl_b32 s{T0}, s{WAVE}, 2\nv_add_u32 v13, s{T0}, v12")
    Areal, A = A, Asm()
    A("v_lshlrev_b32 v14, 2, v9\nv_sub_u32 v14, v8, v14\nv_mov_b32 v15, 0x3f80\nv_mov_b32 v16, 1.0")
    for c in range(4):
        A(f"v_cmp_eq_u32 vcc, {c}, v14\nv_cndmask_b32 v{248+c}, 0, v15, vcc\nv_cndmask_b32 v{252+c}, 0, v16, vcc")
    srd(A, S0, WS, None, WS_EG, 0x40000)
    srd(A, S1, WS, None, WS_HT, 64*TBS)
    A(f"s_mul_i32 s{T0}, s{WP}, {32*XRW}\ns_add_u32 s{T0}, s{T0}, {L_XC + 64}\ns_lshl_b32 s{T1}, s{WT_}, 5\ns_add_u32 s{T1}, s{T1}, s{T0}")
    A(f"v_mul_u32_u24 v14, {XRW}, v6\nv_add_u32 v14, s{T0}, v14\nv_lshl_add_u32 v14, v5, 5, v14")
    A(f"v_mul_u32_u24 v15, {XRW}, v8\nv_add_u32 v15, s{T1}, v15\nv_lshl_add_u32 v15, v9, 3, v15")
    A(f"s_lshl_b32 s{T0}, s{TI}, 14\nv_lshl_add_u32 v16, v4, 4, s{T0}")
    A("v_mov_b32 v17, 0x40000000\nv_lshlrev_b32 v10, 14, v5\nv_sub_u32 v10, v16, v10")
    LA_, LX = 194, 200
    for u in range(8):
        A(f"v_subrev_u32 v{136+u}, {16384 + u*32768}, v10\nv_cmp_le_i32 vcc, 0, v{136+u}\nv_cndmask_b32 v{136+u}, v17, v{136+u}, vcc")
    A("v_lshlrev_b32 v17, 30, v5\nv_or_b32 v16, v16, v17")
    A(f"s_lshl_b32 s{T0}, s{TI}, 11\ns_add_u32 s{T0}, s{T0}, {FLG_X}\ns_lshl_b32 s{T1}, s{TJ}, 7\ns_add_u32 s{T1}, s{T1}, s{T0}\nv_mov_b32 v195, s{T1}")
    A(f"s_lshl_b32 s{T1}, s{PG}, 10\ns_add_u32 s{T0}, s{T0}, s{T1}\nv_and_b32 v196, 7, v1\nv_lshl_add_u32 v196, v196, 7, s{T0}")
    A(f"s_lshl_b32 s{T0}, s{TI}, 1\ns_add_u32 s{T0}, s{T0}, s{WT_}\ns_lshl_b32 s{T0}, s{T0}, 12\ns_add_u32 s{T0}, s{T0}, {FLG_H}")
    A(f"s_lshl_b32 s{T1}, s{PG}, 11\ns_add_u32 s{T1}, s{T1}, s{T0}\nv_lshl_add_u32 v18, v8, 7, s{T1}")
    A(f"s_lshl_b32 s{T1}, s{TJ}, 8\ns_add_u32 s{T0}, s{T0}, s{T1}\ns_lshl_b32 s{T1}, s{WP}, 7\ns_add_u32 s{T0}, s{T0}, s{T1}\nv_mov_b32 v19, s{T0}")
    A("v_lshrrev_b32 v10, 1, v9\nv_lshlrev_b32 v10, 10, v10\nv_and_b32 v17, 1, v9\nv_lshl_add_u32 v10, v17, 9, v10\nv_lshl_add_u32 v10, v8, 4, v10")
    A(f"s_lshl_b32 s{T0}, s{WT_}, 2\nv_add_u32 v9, s{T0}, v9\nv_cvt_f32_u32 v9, v9\nv_mul_f32 v9, 0x41800000, v9\nv_add_f32 v8, 0x41000000, v9")
    A("s_waitcnt vmcnt(0)")
    ZR, ZI = 204, 206
    for pg in range(2):
        lr, li, dt, t = 240+3*pg, 241+3*pg, 242+3*pg, 197
        A(f"v_lshlrev_b32 v{lr}, 16, v{lr}\nv_lshlrev_b32 v{li}, 16, v{li}\nv_lshlrev_b32 v{dt}, 16, v{dt}")
        A(f"v_mul_f32 v{dt}, 0x3fb8aa3b, v{dt}\nv_exp_f32 v{dt}, v{dt}")
        A(f"v_cvt_pk_bf16_f32 v{dt}, v{dt}, v{dt}\nv_lshlrev_b32 v{dt}, 16, v{dt}")
        A(f"v_mul_f32 v{ZR+pg}, v{dt}, v{lr}\nv_mul_f32 v{ZI+pg}, v{dt}, v{li}")
        A(f"v_mul_f32 v{ZR+pg}, 0x3fb8aa3b, v{ZR+pg}\nv_mul_f32 v{ZI+pg}, 0.15915494, v{ZI+pg}")
        cpow(A, LAM(pg), ZR+pg, ZI+pg, 1.0, t)
        A(f"v_add_f32 v{t}, -1.0, v{LAM(pg)}")
        A(f"v_mul_f32 v{t+1}, v{lr}, v{lr}\nv_fma_f32 v{t+1}, v{li}, v{li}, v{t+1}\nv_rcp_f32 v{t+1}, v{t+1}")
        A(f"v_add_f32 v{t+1}, v{t+1}, v{t+1}")
        A(f"v_mul_f32 v{t+2}, v{t}, v{lr}\nv_fma_f32 v{t+2}, v{LAM(pg)+1}, v{li}, v{t+2}\nv_mul_f32 v{KC(pg)}, v{t+2}, v{t+1}")
        A(f"v_mul_f32 v{t+2}, v{LAM(pg)+1}, v{lr}\nv_fma_f32 v{t+2}, -v{t}, v{li}, v{t+2}\nv_mul_f32 v{KC(pg)+1}, v{t+2}, v{t+1}")
        cpow(A, L8(pg), ZR+pg, ZI+pg, 8.0, t)
        cpow(A, L16(pg), ZR+pg, ZI+pg, 16.0, t)
        for e in range(2):
            cpow(A, 200, ZR+pg, ZI+pg, f"v{9-e}", t)
            A(f"v_mov_b32 v{PP(pg)+e}, v200\nv_mov_b32 v{PP(pg)+2+e}, v201")
        for idx in range(8):
            sr, si = (KC(pg), KC(pg)+1) if idx == 0 else (PW(pg, idx-1), PW(pg, idx-1)+1)
            A(f"v_mul_f32 v{t}, v{si}, v{LAM(pg)+1}\nv_mul_f32 v{t+1}, v{si}, v{LAM(pg)}")
            A(f"v_fma_f32 v{PW(pg,idx)}, v{sr}, v{LAM(pg)}, -v{t}\nv_fma_f32 v{PW(pg,idx)+1}, v{sr}, v{LAM(pg)+1}, v{t+1}")
    A(f"v_and_b32 v197, 16, v1\nv_cmp_ne_u32 vcc, 0, v197\nv_cndmask_b32 v{ZR}, v{ZR}, v{ZR+1}, vcc\nv_cndmask_b32 v{ZI}, v{ZI}, v{ZI+1}, vcc")
    for d, n in ((Q16, 16.0), (Q64, 64.0), (Q128, 128.0), (Q256, 256.0)):
        cpow(A, d, ZR, ZI, n, 197)

    deferred, A = A.lines, Areal
    if not DEFER:
        for l in deferred:
            A(l)
        deferred = []
    order = [0, 4, 5, 6, 7, 1, 2, 3]
    need = {0: 2, 1: 3, 2: 4, 3: 5, 4: 6, 8: 7, 12: 8}

    def rd(k, k2, f):
        slot = k % NS
        st, off = slot >> 1, (slot & 1)*32768
        A(f"ds_read_b128 {v(FR(k2, f), 4)}, v{AD(st, f >> 2, k2)} offset:{off + (f & 3)*2048}")
    if E_("GM", 0):
        mark(A, 7)
    trace_init(A, 0)
    trace(A, 0, 0)
    A("s_waitcnt lgkmcnt(0)\ns_barrier")
    trace(A, 0, 1)
    for f in order:
        rd(0, 0, f)
    for k in range(16):
        for k2 in range(2):
            nk, nk2 = (k, 1) if k2 == 0 else (k+1, 0)
            have = nk < 16
            if k2 == 1:
                A("s_waitcnt lgkmcnt(0)\ns_barrier")
            if k == 13 and k2 == 0:
                assert not deferred, len(deferred)
                A(f"v_mov_b32 v8, 0\nglobal_load_dword v9, v8, {sp(DBG)} sc1")
            n = 0
            for m in range(16):
                if k2 == 0 and m in need:
                    A(f"s_waitcnt lgkmcnt({8 - need[m] + n})")
                mt, nt = m >> 2, m & 3
                if "m" not in G1X or k + k2 == 0:
                    A(f"{M16} {v(ACC(mt,nt),4)}, {v(FR(k2,mt),4)}, {v(FR(k2,4+nt),4)}, {'0' if k + k2 == 0 else v(ACC(mt,nt),4)}")
                if have and n < 8:
                    if "r" not in G1X:
                        rd(nk, nk2, order[n])
                    n += 1
                elif k >= 1:
                    for _ in range(DEFER):
                        if deferred:
                            A(deferred.pop(0))
            if k == 15 and k2 == 0:
                nl, ng = uid("n"), uid("ng")
                A.label(nl)
                A(f"s_waitcnt vmcnt(0)\nv_readfirstlane_b32 s{NONCE}, v9\ns_cmp_lg_u32 s{NONCE}, 0\ns_cbranch_scc1 {ng}")
                A(f"global_load_dword v9, v8, {sp(DBG)} sc1\ns_branch {nl}")
                A.label(ng)
                A(f"s_getreg_b32 s{T0}, hwreg(HW_REG_XCC_ID, 0, 4)\ns_lshl_b32 s{T1}, s{NONCE}, 4\ns_or_b32 s{LOCAL}, s{T0}, s{T1}")
                A(f"v_mov_b32 v194, s{LOCAL}\nv_mov_b32 v202, s{NONCE}\nv_mov_b32 v203, s{NONCE}")
    mark(A, 1)
    trace(A, 0, 2)
    bc_a = "op_sel_hi:[0,1,1]"
    bc_b = "op_sel:[1,0,0]"
    TT = 40
    for idx in range(1, 8):
        for half in range(2):
            for pg in range(2):
                L, t = v(LAM(pg), 2), TT + 4*pg
                pr, pi, ur, ui = (v(x, 2) for x in (U(pg, 0, idx-1), U(pg, 1, idx-1), U(pg, 0, idx), U(pg, 1, idx)))
                if half == 0:
                    A(f"v_pk_fma_f32 {v(t,2)}, {L}, {pr}, {ur} {bc_a}\nv_pk_fma_f32 {v(t+2,2)}, {L}, {pi}, {ui} {bc_a}")
                else:
                    A(f"v_pk_fma_f32 {ur}, {L}, {pi}, {v(t,2)} {bc_b} {N0}\nv_pk_fma_f32 {ui}, {L}, {pr}, {v(t+2,2)} {bc_b}")
    for pg in range(2):
        er, ei = U(pg, 0, 7), U(pg, 1, 7)
        horner(A, 32+2*pg, 33+2*pg, L8(pg), er, ei, er+1, ei+1, TT)
        A(f"ds_write_b64 v15, {v(32+2*pg,2)} offset:{16*XRW*pg}")
    trace(A, 0, 3)
    A("s_waitcnt lgkmcnt(0)\ns_barrier")
    trace(A, 0, 4)
    SG = 48
    A(f"ds_read_b128 {v(SG,4)}, v14\nds_read_b128 {v(SG+4,4)}, v14 offset:16")
    P = 200
    A("s_waitcnt lgkmcnt(1)")
    horner(A, 32, 33, Q16, SG, SG+1, SG+2, SG+3, TT)
    A("s_waitcnt lgkmcnt(0)")
    horner(A, 34, 35, Q16, 32, 33, SG+4, SG+5, TT)
    horner(A, 32, 33, Q16, 34, 35, SG+6, SG+7, TT)
    A("v_mov_b32 v34, v32\nv_mov_b32 v35, v33\nv_permlane32_swap_b32 v32, v34\nv_permlane32_swap_b32 v33, v35")
    horner(A, P, P+1, Q64, 32, 33, 34, 35, TT)
    np_ = uid("np")
    A(f"s_cmp_lg_u32 s{WT_}, 0")
    A(f"s_cbranch_scc1 {np_}")
    A(f"buffer_store_dwordx4 {v(P,4)}, v16, {r4(S0)}, 0 offen sc1")
    A(f"s_cmp_lg_u32 s{WP}, 0")
    A(f"s_cbranch_scc1 {np_}")
    A(f"s_mov_b64 exec, 1\nglobal_store_dword v195, v194, {sp(WS)} sc1\ns_mov_b64 exec, -1")
    A.label(np_)
    mark(A, 2)
    trace(A, 0, 5)
    A(f"global_load_dword v243, v18, {sp(WS)} sc1")
    LB = 144

    def lbloads():
        for u in range(8):
            A(f"buffer_load_dwordx4 {v(LB+4*u,4)}, v{136+u}, {r4(S0)}, 0 offen sc1")
        A(f"global_load_dword v197, v196, {sp(WS)} sc1")
    QS = 32
    A("v_add_u32 v15, -56, v15")
    for pg in range(2):
        for w in range(7):
            A(f"ds_read_b64 {v(QS+14*pg+2*w,2)}, v15 offset:{16*XRW*pg + 8*w}")
    QQ = lambda pg: 128 + 4*pg
    TQ = 60
    A("s_waitcnt lgkmcnt(0)")
    for pg in range(2):
        b = QS + 14*pg
        for w in range(1, 6):
            horner(A, b+2*w, b+2*w+1, L16(pg), b+2*w-2, b+2*w-1, b+2*w, b+2*w+1, TQ)
        horner(A, QQ(pg), QQ(pg)+2, L16(pg), b+10, b+11, b+12, b+13, TQ)
        horner(A, QQ(pg)+1, QQ(pg)+3, L8(pg), QQ(pg), QQ(pg)+2, U(pg, 0, 7), U(pg, 1, 7), TQ)
    trace(A, 0, 6)
    O = 32
    cnt = 0
    if LBAT == 0:
        lbloads()
    for idx in range(8):
        for pg in range(2):
            d0, d1, K_, o = v(U(pg, 0, idx), 2), v(U(pg, 1, idx), 2), v(KC(pg), 2), O + 4*pg
            A(f"v_pk_mul_f32 {v(o,2)}, {K_}, {d0} op_sel_hi:[0,1]")
            A(f"v_pk_mul_f32 {v(o+2,2)}, {K_}, {d1} op_sel_hi:[0,1] neg_lo:[1,0] neg_hi:[1,0]")
            A(f"v_pk_fma_f32 {v(o+2,2)}, {K_}, {d0}, {v(o+2,2)} {bc_b} {N0}")
            A(f"v_pk_fma_f32 {d0}, {K_}, {d1}, {v(o,2)} {bc_b} {N0}")
            A(f"v_mov_b64 {d1}, {v(o+2,2)}")
            cnt += 1
            if cnt == LBAT:
                lbloads()
    trace(A, 0, 7)
    A("v_mov_b32 v14, 1\ns_mov_b64 exec, 1\nds_write_b32 v13, v14\ns_mov_b64 exec, -1")
    M0B, RH, RCc, SH, SC = T7, T5, T4, T3, T2
    ACC2 = lambda nt: 32 + 16*nt
    CF = lambda X, nt: 96 + 16*X + 4*nt
    XR, CV = 128, 244
    HR = lambda s_: 148 + 4*(s_ % HD)
    L_OWN = 65536
    A(f"s_xor_b32 s{T0}, s{WT_}, s{PG}\ns_xor_b32 s{T0}, s{T0}, 1\ns_lshl_b32 s{T0}, s{T0}, 6\ns_add_u32 s{T0}, s{T0}, s{WP}")
    A(f"v_lshrrev_b32 v8, 3, v1\nv_lshl_add_u32 v8, v8, 1, s{T0}\nv_lshlrev_b32 v8, 11, v8")
    A("v_and_b32 v14, 7, v1\nv_lshrrev_b32 v15, 4, v1\nv_xor_b32 v14, v14, v15\nv_lshlrev_b32 v14, 4, v14\nv_xor_b32 v15, 64, v14")
    for u in range(4):
        A(f"v_add_u32 v{CV+u}, v8, v{14 + (u & 1)}")
        if u:
            A(f"v_add_u32 v{CV+u}, {u*(16*2048 - 1024)}, v{CV+u}")
    A(f"s_and_b32 s{RCc}, s{TJ}, 7\ns_lshl_b32 s{T0}, s{RCc}, 18\ns_lshl_b32 s{T1}, s{PG}, 10\ns_add_u32 s{T0}, s{T0}, s{T1}")
    srd(A, S2, CRE, T0, 0, 0x40000, T1)
    srd(A, S3, CIM, T0, 0, 0x40000, T1)
    A(f"s_lshl_b32 s{T1}, s{RCc}, 1\ns_add_u32 s{T1}, s{T1}, s{PG}\ns_lshl_b32 s{T1}, s{T1}, 7")
    A(f"s_lshl_b32 s{SH}, s{TI}, 1\ns_add_u32 s{SH}, s{SH}, s{WT_}\ns_lshl_b32 s{T0}, s{SH}, 17\ns_add_u32 s{T0}, s{T0}, s{T1}")
    srd(A, S4, BX, T0, 0, 0x20000, T1)
    A(f"s_add_u32 s{DSK}, s{DSK}, s{T1}\ns_addc_u32 s{DSK+1}, s{DSK+1}, 0")
    A(f"s_lshl_b32 s{T1}, s{T1}, 1\ns_add_u32 s{T1}, s{T1}, 4096\ns_lshl_b32 s{T0}, s{SH}, 19\ns_add_u32 s{T0}, s{T0}, s{T1}")
    A(f"s_add_u32 s{OUT}, s{OUT}, s{T0}\ns_addc_u32 s{OUT+1}, s{OUT+1}, 0\ns_sub_u32 s{LDT}, 0x80000, s{T1}")
    A(f"s_lshl_b32 s{M0B}, s{WAVE}, 12\ns_lshl_b32 s{RH}, s{RCc}, 13\ns_lshl_b32 s{RCc}, s{RCc}, 7")
    A(f"s_lshl_b32 s{T0}, s{WT_}, 14\ns_lshl_b32 s{T1}, s{WP}, 11\ns_add_u32 s{T0}, s{T0}, s{T1}\ns_add_u32 s{T0}, s{T0}, {L_OWN}\nv_add_u32 v16, s{T0}, v10")
    A(f"s_lshl_b32 s{T0}, s{WAVE}, 13\ns_add_u32 s{T0}, s{T0}, {L_OWN}\nv_add_u32 v17, s{T0}, v11")
    for ks in range(4):
        A(f"v_xor_b32 v{20+ks}, {ks << 5}, v7\nv_add_u32 v{24+ks}, 0x10000, v{20+ks}")
    HB = LIM
    A(f"s_mul_i32 s{HB}, s{SH}, {2*TBS}\ns_lshl_b32 s{T1}, s{TJ}, 13\ns_add_u32 s{HB}, s{HB}, s{T1}\ns_lshl_b32 s{T1}, s{WP}, 11\ns_add_u32 s{HB}, s{HB}, s{T1}")
    for u in range(8):
        A(f"v_cmp_gt_u32 vcc, 0x40000, v{136+u}\nv_cndmask_b32 v{40+u}, 0, v202, vcc")
    A(f"s_mov_b32 s{T9}, 0")
    trace(A, 0, 8)
    pl, pd = uid("poll"), uid("polled")
    A.label(pl)
    A("v_mov_b32 v8, 0")
    for u in range(8):
        A(f"s_waitcnt vmcnt({8-u})")
        A(f"v_bitop3_b32 v8, v8, v{LB+4*u+2}, v{40+u} bitop3:0xf6\nv_bitop3_b32 v8, v8, v{LB+4*u+3}, v{40+u} bitop3:0xf6")
    A("s_waitcnt vmcnt(0)\nv_xor_b32 v197, v194, v197\nv_lshrrev_b32 v9, 4, v197\nv_or_b32 v8, v8, v9\nv_cmp_ne_u32 vcc, 0, v8")
    A(f"s_cbranch_vccz {pd}")
    A(f"s_add_u32 s{T9}, s{T9}, 1\ns_cmp_ge_u32 s{T9}, {SPIN_MAX}")
    A(f"s_cbranch_scc1 {pd}")
    lbloads()
    A(f"s_branch {pl}")
    A.label(pd)
    A(f"v_cmp_ne_u32 vcc, 0, v197\ns_cmp_eq_u64 vcc, 0\ns_cselect_b32 s{LOCAL}, {0 if FORCE_REMOTE else 1}, 0")
    mark(A, 3)
    trace(A, 0, 9)
    if TRACE:
        A(f"v_writelane_b32 v0, s{T9}, 63")
    vm = VmCounter(A)

    def cdma(g, us):
        for u in us:
            if u == 0:
                A(f"s_add_u32 m0, s{M0B}, {(g % R)*16384}")
                if g % 2 == 0:
                    A(f"s_add_u32 s{SC}, s{RCc}, {(g >> 1)*128}\ns_and_b32 s{SC}, s{SC}, 0x3ff")
            vm.op(f"buffer_load_dwordx4 v{CV+u}, {r4(S2 if g % 2 == 0 else S3)}, s{SC} offen offset:{u*1024}{NTC} lds", ("c", g))
    cdma(0, range(4))
    cdma(1, range(4))
    A("v_mov_b32 v14, 2\ns_mov_b64 exec, 1\nds_write_b32 v13, v14\ns_mov_b64 exec, -1")
    H0 = LB + 28
    cur = (H0, H0+1)
    for u in range(6, -1, -1):
        d = (48, 49) if cur[0] == H0 else (H0, H0+1)
        horner(A, d[0], d[1], Q256, cur[0], cur[1], LB+4*u, LB+4*u+1, TT)
        cur = d
    assert cur == (48, 49)
    A("v_mov_b32 v50, v48\nv_mov_b32 v51, v49\nv_permlane32_swap_b32 v48, v50\nv_permlane32_swap_b32 v49, v51")
    horner(A, 52, 53, Q128, 50, 51, 48, 49, TT)
    A("v_mov_b32 v54, v52\nv_mov_b32 v55, v53\nv_permlane16_swap_b32 v52, v54\nv_permlane16_swap_b32 v53, v55")
    trace(A, 0, 10)
    G = lambda pg: QQ(pg)
    for pg in range(2):
        Hh, gr, gi, pr, pi = v(52+2*pg, 2), v(G(pg), 2), v(G(pg)+2, 2), v(PP(pg), 2), v(PP(pg)+2, 2)
        A(f"v_pk_fma_f32 {gr}, {Hh}, {pr}, {gr} {bc_a}\nv_pk_fma_f32 {gi}, {Hh}, {pi}, {gi} {bc_a}")
        A(f"v_pk_fma_f32 {gr}, {Hh}, {pi}, {gr} {bc_b} {N0}\nv_pk_fma_f32 {gi}, {Hh}, {pr}, {gi} {bc_b}")
    PK = lambda pg, c, idx: 144 + (pg*2 + c)*8 + idx
    D = lambda c, X, pg: 32 + ((c*2 + X)*2 + pg)*4

    def fix(pg, idx):
        d0, d1, pw, gr, gi = v(U(pg, 0, idx), 2), v(U(pg, 1, idx), 2), v(PW(pg, idx), 2), v(G(pg), 2), v(G(pg)+2, 2)
        A(f"v_pk_fma_f32 {d0}, {pw}, {gr}, {d0} {bc_a}")
        A(f"v_pk_fma_f32 {d1}, {pw}, {gi}, {d1} {bc_a} {N0}")
        A(f"v_pk_fma_f32 {d0}, {pw}, {gi}, {d0} {bc_b} {N0}")
        A(f"v_pk_fma_f32 {d1}, {pw}, {gr}, {d1} {bc_b} {N0}")
        for c in range(2):
            A(f"v_cvt_pk_bf16_f32 v{PK(pg,c,idx)}, v{U(pg,c,idx)}, v{U(pg,c,idx)+1}")

    def tr(u):
        for c in range(2):
            for X in range(2):
                for pg in range(2):
                    A(f"{M16} {v(D(c,X,pg),4)}, {v(PK(pg,c,4*u),4)}, {v(248+4*X,4)}, 0")

    def st(u):
        for c in range(2):
            for X in range(2):
                q = 176 + 16*u + (c*2 + X)*4
                A(f"s_add_u32 s{T1}, s{HB}, {X*TBS + c*4096}")
                for jj in range(4):
                    A(f"v_cvt_pk_bf16_f32 v{q+jj}, v{D(c,X,0)+2*jj}, v{D(c,X,0)+2*jj+1}")
                vm.op(f"buffer_store_dwordx4 {v(q,4)}, v10, {r4(S1)}, s{T1} offen offset:{u*256} sc1", "hst")
                A(f"ds_write_b128 v16, {v(q,4)} offset:{X*8192 + c*4096 + u*256}")
    for u in range(2):
        for idx in range(4*u, 4*u + 4):
            for pg in range(2):
                fix(pg, idx)
            if u == 1 and idx == 5:
                st(0)
                trace(A, 0, 12)
        tr(u)
        if u == 0:
            trace(A, 0, 11)
    st(1)
    mark(A, 4)
    trace(A, 0, 13)
    NK = 64

    def arrive(val):
        A(f"v_mov_b32 v14, {val}")
        A("s_mov_b64 exec, 1\nds_write_b32 v13, v14\ns_mov_b64 exec, -1")

    def check(val, off=0, first=False):
        l, d = uid("ck"), uid("ckd")
        if first:
            A(f"ds_read_b128 v[8:11], v12 offset:{off}\ns_waitcnt lgkmcnt(0)")
        A.label(l)
        A("v_min3_u32 v15, v8, v9, v10\nv_min_u32 v15, v15, v11")
        A(f"v_readfirstlane_b32 s{T0}, v15")
        A(f"s_cmp_ge_u32 s{T0}, {val}")
        A(f"s_cbranch_scc1 {d}")
        A(f"ds_read_b128 v[8:11], v12 offset:{off}\ns_waitcnt lgkmcnt(0)")
        A(f"s_branch {l}")
        A.label(d)

    def hload(s_):
        if s_ % 4 == 0:
            A(f"s_add_u32 s{SH}, s{RH}, {(s_ >> 2)*4096}\ns_and_b32 s{SH}, s{SH}, 0xffff")
        vm.op(f"buffer_load_dwordx4 {v(HR(s_),4)}, v2, {r4(S0)}, s{SH} offen offset:{(s_ & 3)*1024} sc1", ("h", s_))

    def rd2(s_, nts):
        g, ks = s_ >> 2, s_ & 3
        slot = g % R
        base = 20 if slot < 4 else 24
        for nt in nts:
            A(f"ds_read_b128 {v(CF(s_ & 1, nt),4)}, v{base+ks} offset:{(slot & 3)*16384 + nt*4096}")

    def mf(s_, nt):
        c = "0" if s_ == 0 else v(ACC2(nt), 16)
        if E_("HACK16", 0) & 2:
            for z in range(2):
                d = ACC2(nt) + 8*(s_ & 1) + 4*z
                A(f"v_mfma_f32_16x16x32_bf16 {v(d,4)}, {v(HR(s_),4)}, {v(CF(s_ & 1, nt),4)}, {'0' if s_ < 2 else v(d,4)}")
        else:
            A(f"{MF} {v(ACC2(nt),16)}, {v(HR(s_),4)}, {v(CF(s_ & 1, nt),4)}, {c}")
    A("v_mov_b32 v2, v11")
    A(f"s_lshl_b32 s{T0}, s{TI}, 2\ns_add_u32 s{T0}, s{T0}, s{WAVE}\ns_mul_i32 s{T0}, s{T0}, {TBS}\ns_lshl_b32 s{T1}, s{PG}, 16\ns_add_u32 s{T0}, s{T0}, s{T1}")
    srd(A, S0, WS, T0, WS_HT, 0x10000)
    if not OWNFIRST and C23:
        cdma(2, range(4))
        cdma(3, range(4))
    A(f"s_waitcnt vmcnt({vm.wait_for(('c', 1), emit=False)}) lgkmcnt(0)")
    trace(A, 0, 14)
    arrive(3)
    check(3, first=True)
    trace(A, 0, 15)
    for s_ in range(8):
        A(f"ds_read_b128 {v(HR(s_),4)}, v17 offset:{s_*1024}")
    hn = [8]

    def pause():
        A(f"s_lshl_b32 s{T0}, s{WP}, 3\nv_lshl_add_u32 v17, v5, 4, s{T0}")
        A("v_lshlrev_b32 v28, 11, v17\nv_lshl_add_u32 v28, v6, 2, v28")
        A("v_lshlrev_b32 v29, 13, v17\nv_lshl_add_u32 v29, v6, 3, v29")
        A(f"v_lshlrev_b32 v30, 2, v6\nv_mov_b32 v15, s{NONCE}")
        a, b = uid("rs"), uid("rd")
        trace(A, 0, 16)
        vm.wait_for("hst")
        trace(A, 0, 17)
        A(f"s_mov_b64 exec, 1\ns_cmp_eq_u32 s{LOCAL}, 0\ns_cbranch_scc1 {a}")
        A(f"global_store_dword v19, v15, {sp(WS)}\ns_branch {b}")
        A.label(a)
        A(f"global_store_dword v19, v15, {sp(WS)} sc1")
        A.label(b)
        A("s_mov_b64 exec, -1")
        if not E_("GM", 0):
            mark(A, 5)
        check(4, first=True)
        if not NOAUX:
            check(LIMG_FREE, 16, first=True)
        if CTOUCH == 5:
            xtouch(1)
        if CTOUCH == 8:
            ctouch()
        for gg in range(4 if C23 else 2, CPOLL):
            cdma(gg, range(4))
        trace(A, 0, 18)
        wait_cnt(A, 18, 8, SLP_H)
        trace(A, 0, 19)
        vm.issued = []
        if not E_("GM", 0):
            mark(A, 6)
        if OWNFIRST:
            arrive(5)
        gg = max(4, CPOLL)
        while hn[0] < 8 + HPRE:
            hload(hn[0])
            hn[0] += 1
            if hn[0] % 4 == 0 and gg < CPRE:
                cdma(gg, range(4))
                gg += 1
        assert gg == CPRE
        if OWNFIRST:
            check(5, first=True)
        trace(A, 0, 20)
        rd2(8 if OWNFIRST else 0, range(4))

    def flag_store():
        a, b = uid("rs"), uid("rd")
        A(f"s_mov_b64 exec, 1\ns_cmp_eq_u32 s{LOCAL}, 0\ns_cbranch_scc1 {a}")
        A(f"global_store_dword v19, v15, {sp(WS)}\ns_branch {b}")
        A.label(a)
        vm.op(f"global_store_dword v19, v15, {sp(WS)} sc1", "flag")
        A.label(b)
        A("s_mov_b64 exec, -1")
    if HTAG:
        A("s_waitcnt lgkmcnt(0)")
        arrive(4)
        A(f"s_lshl_b32 s{T0}, s{WP}, 3\nv_lshl_add_u32 v17, v5, 4, s{T0}")
        A("v_lshlrev_b32 v28, 11, v17\nv_lshl_add_u32 v28, v6, 2, v28")
        A("v_lshlrev_b32 v29, 13, v17\nv_lshl_add_u32 v29, v6, 3, v29")
        A(f"v_lshlrev_b32 v30, 2, v6\nv_mov_b32 v15, s{NONCE}")
        if HTAG == 1:
            wl, wd = uid("hw"), uid("hwd")
            A(f"s_add_u32 s{T1}, s{RH}, 8192\ns_and_b32 s{T1}, s{T1}, 0xffff\ns_mov_b32 s{CNT}, 0\ns_waitcnt lgkmcnt(0)")
            A.label(wl)
            A(f"s_load_dwordx4 s[4:7], {sp(S0)}, s{T1} offset:{4096 + 1024 + 1008} glc\ns_load_dwordx4 s[8:11], {sp(S0)}, s{T1} offset:{4096 + 3072 + 1008} glc")
            A(f"s_add_u32 s{CNT}, s{CNT}, 1\ns_waitcnt lgkmcnt(0)")
            for q in range(2):
                A(f"s_xor_b64 s[{4+2*q}:{5+2*q}], s[{4+2*q}:{5+2*q}], s[{HT_+2*q}:{HT_+2*q+1}]\ns_xor_b64 s[{8+2*q}:{9+2*q}], s[{8+2*q}:{9+2*q}], s[{HT_+2*q}:{HT_+2*q+1}]")
            A("s_or_b64 s[4:5], s[4:5], s[6:7]\ns_or_b64 s[8:9], s[8:9], s[10:11]\ns_or_b64 s[4:5], s[4:5], s[8:9]\ns_or_b32 s4, s4, s5\ns_and_b32 s4, s4, 0x10001")
            A(f"s_cbranch_scc0 {wd}\ns_cmp_lt_u32 s{CNT}, {SPIN_MAX}\ns_cbranch_scc1 {wl}")
            A.label(wd)
        if HTAG == 3:
            vm.wait_for('hst')
            flag_store()
        if HTAG == 2 and HDLY:
            A(f"s_waitcnt vmcnt({vm.wait_for('hst', emit=False) + HDLY})")
        mark(A, 6)
        for s_ in range(8, 16):
            hload(s_)
        hn[0] = 16
        if HTAG != 3:
            vm.wait_for("hst")
            flag_store()
        if not E_("GM", 0):
            mark(A, 5)
        check(4, first=True)
        if not NOAUX:
            check(LIMG_FREE, 16, first=True)
        for gg in range(4, CPOLL):
            cdma(gg, range(4))
        rd2(0, range(4))
    elif OWNFIRST:
        rd2(0, range(4))
        A("s_waitcnt lgkmcnt(4)")
        arrive(4)
    else:
        A("s_waitcnt lgkmcnt(0)")
        arrive(4)
        pause()
    have_c = lambda g: any(t == ("c", g) for t in vm.issued)
    for s_ in range(NK):
        g, ks = s_ >> 2, s_ & 3
        nxt = s_ + 1
        more = nxt < NK and not (nxt == 8 and OWNFIRST)
        ws = []
        if s_ >= 8:
            ws.append(vm.wait_for(("h", s_), emit=False))
        arr = (s_ + 4) % 8 == 0 and s_ + 4 < NK and (s_ >= 8 or not OWNFIRST)
        if arr:
            gl = ((s_ + 4) >> 2) + 1
            if have_c(gl):
                ws.append(vm.wait_for(("c", gl), emit=False))
        wv = f"vmcnt({min(ws)}) " if ws else ""
        newgrp = more and nxt % 8 == 0
        full = newgrp or not more or s_ == 0
        nc = 2 if s_ >= NK - NDEF else 4
        nn = (2 if nxt >= NK - NDEF else 4) if more else 0
        if full:
            A(f"s_waitcnt {wv}lgkmcnt(0)")
            if newgrp:
                check((nxt >> 3) + 4)
                trace(A, 0, 20 + (nxt >> 3))
                if nxt == 32 and not E_('GM', 0):
                    mark(A, 7)
        else:
            A(f"s_waitcnt {wv}lgkmcnt({nc-1})")
        extra = 0
        if arr:
            arrive(((s_ + 4) >> 3) + 4)
            extra = 1
        issued_n = 0
        for nt in range(nc):
            if nt and not full:
                A(f"s_waitcnt lgkmcnt({nc - 1 - nt + extra + issued_n})")
            mf(s_, nt)
            if nt < 2 and issued_n < nn and (nt == 0 or nn == 4):
                rd2(nxt, [issued_n, issued_n + 1])
                issued_n += 2
            if nt == nc - 2:
                if s_ < 8 and OWNFIRST:
                    if C23:
                        cdma(2 + g, [ks])
                elif CPRE <= g + CD < NK//4:
                    cdma(g + CD, [ks])
        assert issued_n == nn
        if HTAG:
            if s_ < 4*(CPRE - CPOLL):
                cdma(CPOLL + g, [ks])
            if s_ == 6:
                tl, td = uid("ht"), uid("htd")
                A(f"s_mov_b32 s{CNT}, 0")
                vm.wait_for(("h", 15))
                A.label(tl)
                A("v_mov_b32 v4, 0")
                for r in range(32):
                    A(f"v_bitop3_b32 v4, v4, v{HR(8)+r}, s{HT_+(r & 3)} bitop3:0xf6")
                A(f"v_and_b32 v4, 0x10001, v4\nv_cmp_ne_u32 vcc, 0, v4\ns_cbranch_vccz {td}")
                A(f"s_add_u32 s{CNT}, s{CNT}, 1\ns_cmp_ge_u32 s{CNT}, {SPIN_MAX}\ns_cbranch_scc1 {td}")
                keep = list(vm.issued)
                for s2_ in range(8, 16):
                    hload(s2_)
                vm.issued = keep
                A(f"s_waitcnt vmcnt(0)\ns_branch {tl}")
                A.label(td)
                if STAMP == 1:
                    A(f"s_add_u32 s72, s70, s{CNT}")
            if s_ == HFI:
                vm.op(f"global_load_dword v16, v18, {sp(WS)} sc1", "fp")
            if s_ == HFC:
                fd = uid("hf")
                vm.wait_for("fp")
                A(f"v_cmp_ne_u32 vcc, s{NONCE}, v16\ns_cbranch_vccz {fd}")
                wait_cnt(A, 18, 16, 1)
                A.label(fd)
        if (s_ >= (HFC if HTAG else 8) or not (OWNFIRST or HTAG)) and hn[0] < NK:
            for _ in range(3 if HTAG else 2):
                if hn[0] < NK and hn[0] <= s_ + HD:
                    hload(hn[0])
                    hn[0] += 1
        if (s_ + 2) % 8 == 0 and s_ + 2 < NK and (s_ >= 8 or not OWNFIRST):
            A("ds_read_b128 v[8:11], v12")
        if s_ == NK - 18:
            vm.op(f"global_load_dword v31, v30, {sp(DSK)}", "dsk")
        if NK - 17 <= s_ < NK - 1:
            e = s_ - (NK - 17)
            q, r = e >> 2, e & 3
            A(f"s_mov_b32 s{T0}, {(32*(q & 1) + 4*(q >> 1) + (r & 2))*2048}")
            vm.op(f"buffer_load_dword v{XR+e}, v28, {r4(S4)}, s{T0} offen offset:{(r & 1)*2048}", ("x", e))
        if s_ == 7 and OWNFIRST:
            pause()
    mark(A, 8)
    trace(A, 0, 28)
    TG = T0
    A(f"s_mul_i32 s{TG}, s{NONCE}, 0x9e3779b1\ns_and_b32 s{TG}, s{TG}, 0xbfff0000\ns_or_b32 s{TG}, s{TG}, 0x20000000")
    A(f"s_sub_u32 s{T1}, s{NONCE}, 1\ns_xor_b32 s{T1}, s{T1}, s{TG}\ns_cmp_lt_u32 s{T1}, 0x10000\ns_cselect_b32 s{T1}, 0x10000, 0\ns_xor_b32 s{TG}, s{TG}, s{T1}")
    if INOUT:
        A(f"s_lshl_b32 s{T4}, s{PG}, 9\ns_sub_i32 s{T4}, 256, s{T4}\ns_ashr_i32 s{T5}, s{T4}, 31")
        A(f"s_add_u32 s{S2}, s{OUT}, s{T4}\ns_addc_u32 s{S2+1}, s{OUT+1}, s{T5}\ns_sub_u32 s{S2+2}, s{LDT}, s{T4}\ns_mov_b32 s{S2+3}, 0x20000")
        A(f"s_mov_b32 s{S3}, s{OUT}\ns_mov_b32 s{S3+1}, s{OUT+1}\ns_mov_b32 s{S3+2}, s{LDT}\ns_mov_b32 s{S3+3}, 0x20000")
        A(f"s_lshl_b32 s{T4}, s{WP}, 16\nv_lshrrev_b32 v3, 4, v1\nv_lshlrev_b32 v3, 13, v3\nv_and_b32 v4, 15, v1\nv_lshl_add_u32 v3, v4, 4, v3\nv_add_u32 v3, s{T4}, v3")
        xad = lambda gq: (f"s_mov_b32 s{T4}, {(16*(gq >> 1) + 4*(gq & 1))*8192}\n", f"v3, SRD, s{T4} offen")
    else:
        A(f"s_lshl_b32 s{T4}, s{TI}, 4\ns_add_u32 s{T4}, s{T4}, s{TJ}\ns_lshl_b32 s{T4}, s{T4}, 2\ns_add_u32 s{T4}, s{T4}, s{WAVE}\ns_lshl_b32 s{T4}, s{T4}, 13")
        srd(A, S2, WS, T4, WS_XB, 0x2000)
        A(f"s_xor_b32 s{T4}, s{T4}, {8 << 15}")
        srd(A, S3, WS, T4, WS_XB, 0x2000)
        A(f"s_movk_i32 s{T4}, 0x1000")
        xad = lambda gq: ("", f"v2, SRD, {'0' if gq < 4 else f's{T4}'} offen offset:{(gq & 3)*1024}")
    val = lambda n: ACC2(n & 1) + (n >> 1)
    TXR, RX = [96, 100, 244, 248, 252], 180
    for gq in range(5):
        for c in range(4):
            n = 7*gq + 2*c
            lo = f"v{val(min(n, 31))}"
            hi = f"s{TG}" if c == 3 else f"v{val(min(n+1, 31))}"
            A(f"v_cvt_pk_bf16_f32 v{TXR[gq]+c}, {lo}, {hi}")
        A(f"{xad(gq)[0]}buffer_store_dwordx4 {v(TXR[gq],4)}, {xad(gq)[1].replace('SRD', r4(S2))} sc1")

    def rx():
        for gq in range(5):
            A(f"{xad(gq)[0]}buffer_load_dwordx4 {v(RX+4*gq,4)}, {xad(gq)[1].replace('SRD', r4(S3))} sc1")
    if NDEF:
        rd2(NK - NDEF, [2, 3])
        for s_ in range(NK - NDEF, NK):
            if s_ + 1 < NK:
                rd2(s_ + 1, [2, 3])
                A("s_waitcnt lgkmcnt(2)")
            else:
                A("s_waitcnt lgkmcnt(0)")
            mf(s_, 2)
            mf(s_, 3)
    trace(A, 0, 29)
    if E_("XM", 0):
        mark(A, 3)
    A("s_waitcnt vmcnt(5)")
    if E_("XM", 0):
        mark(A, 5)
    trace(A, 0, 30)
    A("v_lshlrev_b32 v8, 16, v31\nv_and_b32 v9, 0xffff0000, v31")
    YO = lambda e: 148 + 2*e
    for e in range(16):
        t = YO(e)
        A(f"v_lshlrev_b32 v{t}, 16, v{XR+e}\nv_and_b32 v{t+1}, 0xffff0000, v{XR+e}")
        A(f"v_pk_mul_f32 {v(t,2)}, {v(t,2)}, v[8:9]")
        A(f"v_cvt_pk_bf16_f32 v10, v{t}, v{t+1}")
        A(f"v_lshlrev_b32 v{t}, 16, v10\nv_and_b32 v{t+1}, 0xffff0000, v10")
        A(f"v_add_f32 v{t}, v{t}, v{ACC2(2)+e}\nv_add_f32 v{t+1}, v{t+1}, v{ACC2(3)+e}")
    A(f"s_mov_b32 s{S1}, s{OUT}\ns_mov_b32 s{S1+1}, s{OUT+1}\ns_mov_b32 s{S1+2}, s{LDT}\ns_mov_b32 s{S1+3}, 0x20000")
    xl, xd = uid("xl"), uid("xd")
    A(f"s_mov_b32 s{CNT}, 0")
    if XPOLL:
        assert not INOUT
        wl, wd = uid("xw"), uid("xwd")
        A.label(wl)
        A(f"s_load_dword s{T1}, {sp(S3)}, {0x1000 + 63*16 + 12} glc\ns_add_u32 s{CNT}, s{CNT}, 1\ns_waitcnt lgkmcnt(0)")
        A(f"s_xor_b32 s{T1}, s{T1}, s{TG}\ns_cmp_lt_u32 s{T1}, 0x10000\ns_cbranch_scc1 {wd}")
        A(f"s_cmp_lt_u32 s{CNT}, {SPIN_MAX}\ns_cbranch_scc1 {wl}")
        A.label(wd)
        A(f"s_mov_b32 s{CNT}, 0")
    trace(A, 0, 31)
    if XPOLL != 2:
        A(f"s_waitcnt vmcnt({E_('XW', 0)})")
    if E_("XM", 0):
        mark(A, 6)
    rx()
    A.label(xl)
    A("v_mov_b32 v10, 0")
    for gq in range(5):
        A(f"s_waitcnt vmcnt({4-gq})")
        A(f"v_bitop3_b32 v10, v10, v{RX+4*gq+3}, s{TG} bitop3:0xf6")
    A("v_cmp_lt_u32 vcc, 0xffff, v10")
    A(f"s_cbranch_vccz {xd}")
    A(f"s_add_u32 s{CNT}, s{CNT}, 1\ns_cmp_ge_u32 s{CNT}, {SPIN_MAX}")
    A(f"s_cbranch_scc1 {xd}")
    rx()
    A(f"s_branch {xl}")
    A.label(xd)
    trace(A, 0, 32)
    if STAMP:
        A(f"s_add_u32 s74, s70, s{CNT}\ns_lshl_b32 s{CNT}, s{LOCAL}, 8\ns_add_u32 s74, s74, s{CNT}")
        mark(A, 4)
    for e in range(16):
        q, r = e >> 2, e & 3
        t = YO(e)
        for nt in range(2):
            n = 2*e + nt
            src = RX + 4*(n // 7) + (n % 7)//2
            if (n % 7) % 2 == 0:
                A(f"v_lshlrev_b32 v{10+nt}, 16, v{src}")
            else:
                A(f"v_and_b32 v{10+nt}, 0xffff0000, v{src}")
        A(f"v_pk_add_f32 {v(t,2)}, {v(t,2)}, v[10:11]")
        A(f"s_mov_b32 s{T4}, {(32*(q & 1) + 4*(q >> 1) + r)*8192}")
        A(f"buffer_store_dwordx2 {v(t,2)}, v29, {r4(S1)}, s{T4} offen{OSTB}")
    trace(A, 0, 33)
    if TRACE:
        A("s_waitcnt vmcnt(0)")
    trace(A, 0, 34)
    trace_dump(A, 0, WAVE, 1)
    stamp_end(A, kidx, WAVE)


def gen_fused(A, name, kidx):
    A(f".globl {name}\n.p2align 8\n.type {name},@function")
    A.label(name)
    A("s_cmp_ge_u32 s2, 256")
    A(f"s_cbranch_scc1 L_{name}_end")
    A("s_load_dwordx16 s[4:19], s[0:1], 0")
    A("s_load_dwordx8 s[20:27], s[0:1], 64")
    A("s_load_dwordx4 s[28:31], s[0:1], 96")
    A("s_load_dwordx2 s[32:33], s[0:1], 112")
    stamp_begin(A)
    A("v_lshrrev_b32 v2, 6, v0\nv_and_b32 v1, 63, v0")
    A(f"v_readfirstlane_b32 s{WAVE}, v2")
    A(f"s_and_b32 s{T0}, s2, 7\ns_lshr_b32 s{T1}, s2, 3")
    A(f"s_lshr_b32 s{TI}, s{T0}, 1\ns_lshl_b32 s{TI}, s{TI}, 2\ns_lshr_b32 s{T2}, s{T1}, 3\ns_add_u32 s{TI}, s{TI}, s{T2}")
    A(f"s_and_b32 s{TJ}, s{T0}, 1\ns_lshl_b32 s{TJ}, s{TJ}, 3\ns_and_b32 s{T2}, s{T1}, 7\ns_add_u32 s{TJ}, s{TJ}, s{T2}")
    A(f"s_cmp_ge_u32 s{WAVE}, 4")
    A(f"s_cbranch_scc0 L_{name}_gemm")
    loader(A, name, kidx)
    A.label(f"L_{name}_gemm")
    gemm_waves(A, name, kidx)
    A.label(f"L_{name}_end")
    A("s_endpgm")
    return kdesc(name, 256)
```

```python
import os
from asmlib import *
from common import *

E_ = lambda k, d: int(os.environ.get(k, str(d)))
XO, NP, RI, RJ = E_("XO", 0), E_("NP", 1), E_("RI", 1), E_("RJ", 1)
XO2, NP2 = E_("XO2", 2), E_("NP2", 1)
PRO = E_("PRO", 2)
HD = E_("HD", 24)
CD = E_("CD", 4)
NOAUX = E_("NOAUX", 0)
CODEPF = E_("CODEPF", 1)
NS = E_('NS', 3)
LASW = E_('LASW', 99)
R = 7
LA = E_('LA', 2)
FORCE_REMOTE = E_('FORCE_REMOTE', 0)
MF = "v_mfma_f32_32x32x16_bf16"
N0 = "neg_lo:[1,0,0] neg_hi:[1,0,0]"

AX, WR, WI, BX, LRE, LIM, BRE, BIM, CRE, CIM, LDT, DSK, OUT, DBG, WS = 4, 6, 8, 10, 12, 14, 16, 18, 20, 22, 24, 26, 28, 30, 32
WAVE, TI, TJ, NONCE, TBL = 34, 35, 36, 37, 38
S0, S1, S2, S3, S4 = 40, 44, 48, 52, 56
T0, T1, T2, T3, T4, T5, T6, T7, T8, T9 = range(60, 70)
MSK, CNT, LOCAL, PG = 90, 92, 100, 101
L_XCH = 122880
L_SYNC = 126976
L_AX = 131072
L_W = 147456
WS_CNT = 0x1000
CNT_A, CNT_B, CNT_W = WS_CNT, WS_CNT + 16*128, WS_CNT + 32*128
FLG_A, FLG_B, FLG_W = 0x84000, 0x86000, 0x88000
FLG_X = 0x8000
FLG_H = 0x60000
CPRO1 = E_("CPRO1", 2)
CPRO2 = E_("CPRO2", 2)
CTOUCH = E_("CTOUCH", 4)
TBS = 131072 + E_("TBPAD", 0)
FTOUCH = E_("FTOUCH", 1)
XTOUCH = E_("XTOUCH", 0)
NREP = E_("NREP", 32)
NDEF = E_("NDEF", 12)
HTAG = 0
HDLY = E_("HDLY", 0)
HFI, HFC = E_("HFI", 7), E_("HFC", 10)
XPOLL = E_("XPOLL", 2)
OWNFIRST = E_("OWNFIRST", 1) and not HTAG
C01, C23 = E_("C01", 1), E_("C23", 1)
INOUT = E_("INOUT", 0)
KS_ = 32768 if INOUT else 8192
ISH = 16384 if INOUT else 4096
CTK, CPOLL, CPRE, HPRE = E_("CTK", 13), E_("CPOLL", 6), E_("CPRE", 7), E_("HPRE", 8)
HLOC, HLK = E_("HLOC", 0), E_("HLK", 13)
LBAT = E_("LBAT", 16)
XBF = E_("XBF", 1)
SLP_H, SLP_A = E_("SLP_H", 4), E_("SLP_A", 10)
NT = " nt" if E_("NT", 1) else ""
NTX = " nt"
OST = {0: "", 1: " nt", 2: " sc1", 3: " sc1 nt", 4: " sc0 sc1 nt", 5: " sc0 nt"}[E_("OST", 1)]
NTK = E_("NTK", 0)
OSTB = {0: "", 1: " nt", 2: " sc1", 3: " sc1 nt", 4: " sc0 sc1 nt", 5: " sc0 nt"}[E_("OSTB", 1)]
NTC = " nt" if E_("NTC", 0) else ""


def sp(a):
    return f"s[{a}:{a+1}]"


def srd(A, d, base, soff=None, const=0, size=None, size_s=None):
    if soff is None and const == 0:
        A(f"s_mov_b32 s{d}, s{base}\ns_mov_b32 s{d+1}, s{base+1}")
    else:
        if soff is not None and const:
            A(f"s_add_u32 s{d+2}, s{soff}, {const}")
            o = f"s{d+2}"
        elif soff is not None:
            o = f"s{soff}"
        else:
            o = str(const)
        A(f"s_add_u32 s{d}, s{base}, {o}\ns_addc_u32 s{d+1}, s{base+1}, 0")
    if size_s is not None:
        A(f"s_sub_u32 s{d+2}, {size}, s{size_s}")
    else:
        A(f"s_mov_b32 s{d+2}, {size}")
    A(f"s_mov_b32 s{d+3}, 0x20000")


def r4(d):
    return f"s[{d}:{d+3}]"


_u = [0]


def uid(p):
    _u[0] += 1
    return f"L_{p}{_u[0]}"


def get_nonce(A, vt):
    l, d = uid("n"), uid("nd")
    A(f"v_mov_b32 v{vt}, 0")
    A.label(l)
    A(f"global_load_dword v{vt+1}, v{vt}, {sp(DBG)} sc1")
    A("s_waitcnt vmcnt(0)")
    A(f"v_readfirstlane_b32 s{NONCE}, v{vt+1}")
    A(f"s_cmp_eq_u32 s{NONCE}, 0")
    A(f"s_cbranch_scc1 {l}")


def signal(A, sshard, cnt, flg, expect, vt):
    d = uid("sg")
    A(f"s_lshl_b32 s{CNT}, s{sshard}, 7\ns_add_u32 s{CNT}, s{CNT}, {cnt}")
    A(f"v_mov_b32 v{vt}, s{CNT}\nv_mov_b32 v{vt+1}, 1")
    A("s_waitcnt vmcnt(0)")
    A("s_mov_b64 exec, 1")
    A(f"global_atomic_add v{vt+2}, v{vt}, v{vt+1}, {sp(WS)} sc0 sc1")
    A(f"v_add_u32 v{vt}, {flg - cnt}, v{vt}\nv_mov_b32 v{vt+1}, s{NONCE}")
    A("s_waitcnt vmcnt(0)")
    A(f"v_readfirstlane_b32 s{CNT}, v{vt+2}")
    A(f"s_add_u32 s{CNT}, s{CNT}, 1\ns_cmp_lg_u32 s{CNT}, {expect}")
    A(f"s_cbranch_scc1 {d}")
    A(f"global_store_dword v{vt}, v{vt+1}, {sp(WS)} sc1")
    A.label(d)
    A("s_mov_b64 exec, -1")


def set_flag(A, soff, vt):
    A(f"v_mov_b32 v{vt}, s{soff}\nv_mov_b32 v{vt+1}, s{NONCE}")
    A("s_waitcnt vmcnt(0)")
    A("s_mov_b64 exec, 1")
    A(f"global_store_dword v{vt}, v{vt+1}, {sp(WS)} sc1")
    A("s_mov_b64 exec, -1")


def wait_cnt(A, vaddr, vt, sleep):
    l, d = uid("w"), uid("wd")
    A(f"s_mov_b32 s{CNT}, 0")
    A.label(l)
    A(f"global_load_dword v{vt}, v{vaddr}, {sp(WS)} sc1")
    A("s_waitcnt vmcnt(0)")
    A(f"v_cmp_ne_u32 vcc, s{NONCE}, v{vt}")
    A(f"s_cbranch_vccz {d}")
    if sleep:
        A(f"s_sleep {sleep}")
    A(f"s_add_u32 s{CNT}, s{CNT}, 1\ns_cmp_lt_u32 s{CNT}, {SPIN_MAX}")
    A(f"s_cbranch_scc1 {l}")
    A.label(d)


F, T = 192, 224


import struct as _st


def fl(x):
    return hex(_st.unpack("<I", _st.pack("<f", x))[0])


def lane_float(A, vn, vh, t):
    A(f"v_and_b32 v{t}, 31, v1\nv_cvt_f32_u32 v{t}, v{t}\nv_lshrrev_b32 v{t+1}, 5, v1\nv_lshlrev_b32 v{t+1}, 2, v{t+1}\nv_cvt_f32_u32 v{t+1}, v{t+1}")


def make_F(A, t):
    lane_float(A, None, None, t)
    A(f"v_mul_f32 v{t+1}, v{t}, v{t+1}\nv_mul_f32 v{t+1}, {fl(1/32)}, v{t+1}")
    for i in range(16):
        c = 8*(i >> 2) + (i & 3)
        a = t + 2 + 3*(i & 1)
        A(f"v_fmamk_f32 v{a}, v{t}, {fl(c/32)}, v{t+1}\nv_fract_f32 v{a}, v{a}")
        A(f"v_cos_f32 v{a+1}, v{a}\nv_sin_f32 v{a+2}, v{a}")
        A(f"v_cvt_pk_bf16_f32 v{F+i}, v{a+1}, v{a+2}\nv_cvt_pk_bf16_f32 v{F+16+i}, -v{a+2}, v{a+1}")


def make_T(A, dst, t, half):
    lane_float(A, None, None, t)
    if not half:
        A(f"v_mul_f32 v{t+1}, v{t}, v{t+1}\nv_mul_f32 v{t+1}, {fl(1/1024)}, v{t+1}")
    else:
        A(f"v_mul_f32 v{t}, {fl(1/2048)}, v{t}\nv_fmamk_f32 v{t+1}, v{t+1}, {fl(1/64)}, v{t}")
    for i in range(16):
        c = 8*(i >> 2) + (i & 3)
        a = t + 2 + (i & 1)
        if not half:
            A(f"v_fmamk_f32 v{a}, v{t}, {fl(c/1024)}, v{t+1}")
        else:
            A(f"v_add_f32 v{a}, {fl(c/64)}, v{t+1}")
        A(f"v_cos_f32 v{dst+i}, v{a}\nv_sin_f32 v{dst+16+i}, -v{a}")


def stage1(A, src, D, stride=4):
    if "m" in os.environ.get("SK", ""):
        return
    for c in range(2):
        for s_ in range(4):
            cc = "0" if s_ == 0 else v(D+16*c, 16)
            A(f"{MF} {v(D+16*c,16)}, {v(src+stride*s_,4)}, {v(F+16*c+4*s_,4)}, {cc}")


def twiddle(A, D, dst, tmp, rng=range(16)):
    for i in (rng if "t" not in os.environ.get("SK", "") else []):
        re, im, tr, ti = D+i, D+16+i, T+i, T+16+i
        t = tmp + 2*(i & 3)
        A(f"v_mul_f32 v{t}, v{re}, v{tr}\nv_mul_f32 v{t+1}, v{re}, v{ti}")
        A(f"v_fma_f32 v{t}, -v{im}, v{ti}, v{t}\nv_fmac_f32 v{t+1}, v{im}, v{tr}")
        A(f"v_cvt_pk_bf16_f32 v{dst+i}, v{t}, v{t+1}")


def stage2(A, src, D):
    if "m" in os.environ.get("SK", ""):
        return
    for c in range(2):
        for s_ in range(4):
            cc = "0" if s_ == 0 else v(D+16*c, 16)
            A(f"{MF} {v(D+16*c,16)}, {v(F+16*c+4*s_,4)}, {v(src+4*s_,4)}, {cc}")


W_ = T6
NBW = 2048*513*2
SQ, SO, ST = 184, 185, 186
VA1, VA2, VA8, VLIN = 4, 5, 6, 7
_ph = [0]


def l_arrive(A):
    _ph[0] += 1
    A(f"v_mov_b32 v{ST+4}, {_ph[0]}")
    A(f"s_mov_b64 exec, 1\nds_write_b32 v{SO}, v{ST+4}\ns_mov_b64 exec, -1")
    return _ph[0]


def l_check(A, n, delta=0, slp=1):
    l, d = uid("lc"), uid("lcd")
    if delta:
        A(f"v_add_u32 v{ST+5}, {delta}, v{SQ}")
    A.label(l)
    A(f"ds_read_b128 {v(ST,4)}, v{ST+5 if delta else SQ}\ns_waitcnt lgkmcnt(0)")
    A(f"v_min3_u32 v{ST}, v{ST}, v{ST+1}, v{ST+2}\nv_min_u32 v{ST}, v{ST}, v{ST+3}")
    A(f"v_readfirstlane_b32 s{CNT}, v{ST}")
    A(f"s_cmp_ge_u32 s{CNT}, {n}")
    A(f"s_cbranch_scc1 {d}")
    A(f"s_sleep {slp}\ns_branch {l}")
    A.label(d)


def l_sync(A):
    l_check(A, l_arrive(A))


def aux_setup1(A):
    srd(A, S2, WR, size=NBW)
    srd(A, S3, WI, size=NBW)
    A(f"s_and_b32 s{T0}, s2, 31\ns_lshr_b32 s{T1}, s2, 5\ns_lshl_b32 s{T1}, s{T1}, 7\ns_add_u32 s{T0}, s{T0}, s{T1}")
    A(f"s_lshl_b32 s{T1}, s{W_}, 5\ns_add_u32 s{T7}, s{T0}, s{T1}\ns_lshl_b32 s{T0}, s{T7}, 12")
    srd(A, AX, AX, T0, 0, 0x1000)
    A("v_lshlrev_b32 v2, 4, v1\nv_xor_b32 v3, 128, v2")
    A(f"s_lshl_b32 s{T8}, s{W_}, 12\ns_add_u32 s{T8}, s{T8}, {L_AX}")
    A(f"s_and_b32 s{T0}, s2, 7\ns_bfe_u32 s{T1}, s2, 0x10003\ns_bfe_u32 s{T2}, s2, 0x20004\ns_lshr_b32 s{T3}, s2, 6")
    A(f"s_lshr_b32 s{T4}, s{T0}, 1\ns_lshl_b32 s{T4}, s{T4}, 3\ns_lshl_b32 s{T5}, s{T1}, 2\ns_add_u32 s{T4}, s{T4}, s{T5}")
    A(f"s_and_b32 s{T5}, s{T0}, 1\ns_lshl_b32 s{T5}, s{T5}, 1\ns_add_u32 s{T4}, s{T4}, s{T5}\ns_lshl_b32 s{T4}, s{T4}, 5")
    A(f"s_lshl_b32 s{T5}, s{T2}, 3\ns_add_u32 s{T4}, s{T4}, s{T5}\ns_lshl_b32 s{T5}, s{W_}, 1\ns_add_u32 s{T4}, s{T4}, s{T5}\ns_mul_i32 s{T4}, s{T4}, 1026")
    A(f"s_lshl_b32 s{T5}, s{T3}, 8\ns_add_u32 s{T9}, s{T4}, s{T5}")
    A("v_bfe_u32 v8, v1, 4, 1\nv_mul_u32_u24 v8, 32832, v8")
    A(f"v_lshrrev_b32 v9, 5, v1\ns_mov_b32 s{T5}, 1050624\nv_mul_lo_u32 v9, s{T5}, v9\nv_add_u32 v8, v8, v9")
    A(f"v_and_b32 v9, 15, v1\ns_lshl_b32 s{T5}, s{W_}, 1\nv_xor_b32 v9, s{T5}, v9")
    A("v_lshl_add_u32 v18, v9, 4, v8\nv_xor_b32 v9, 1, v9\nv_lshl_add_u32 v19, v9, 4, v8\nv_add_u32 v19, 1026, v19")
    A(f"s_bfe_u32 s{T4}, s2, 0x20005\ns_lshl_b32 s{T4}, s{T4}, 8\ns_bfe_u32 s{T5}, s2, 0x10004\ns_lshl_b32 s{T5}, s{T5}, 6\ns_add_u32 s{T4}, s{T4}, s{T5}")
    A(f"s_bfe_u32 s{T5}, s2, 0x10003\ns_lshl_b32 s{T5}, s{T5}, 7\ns_add_u32 s{T4}, s{T4}, s{T5}\ns_and_b32 s{T5}, s2, 7\ns_lshl_b32 s{T5}, s{T5}, 2\ns_add_u32 s{T4}, s{T4}, s{T5}")
    A(f"v_bfe_u32 v8, v1, 3, 2\nv_add_u32 v8, s{T4}, v8\nv_bfe_u32 v9, v1, 2, 1\nv_lshl_add_u32 v8, v9, 5, v8\nv_bfe_u32 v9, v1, 1, 1\nv_lshl_add_u32 v8, v9, 10, v8")
    A("v_sub_u32 v9, 2048, v8\nv_and_b32 v9, 2047, v9\nv_and_b32 v10, 1, v1\nv_cmp_eq_u32 vcc, 1, v10\nv_cndmask_b32 v8, v8, v9, vcc")
    A(f"v_mul_u32_u24 v17, 1026, v8\ns_lshr_b32 s{T4}, s2, 7\ns_lshl_b32 s{T4}, s{T4}, 10\nv_add_u32 v17, s{T4}, v17")


def aux_setup2(A):
    make_F(A, 92)
    make_T(A, T, 92, 0)
    make_T(A, TT, 92, 1)


def aux_issue(A, vm):
    for c in range(2):
        A(f"s_add_u32 m0, s{T8}, {c*2048}")
        A(f"s_mov_b32 s{CNT}, {c*2048}")
        for u in range(2):
            vm.op(f"buffer_load_dwordx4 v{2+c}, {r4(AX)}, s{CNT} offen offset:{u*1024}{NT} lds", "ax")


def w_issue(A, vm):
    for bb in range(2):
        for arr in range(2):
            A(f"s_add_u32 m0, s{T8}, {L_W - L_AX + bb*2048 + arr*1024}")
            vm.op(f"buffer_load_dwordx4 v{18+bb}, {r4(S2 if arr == 0 else S3)}, s{T9} offen{NT} lds" if "1" not in SK else f"buffer_load_dword v23, v2, {r4(AX)}, 0 offen offset:4092", "w")
    nw = uid("nw")
    A(f"s_cmp_lg_u32 s{W_}, {3 if not ('1' in SK or 'p' in SK) else 9}\ns_cbranch_scc1 {nw}")
    A("s_mov_b32 exec_hi, 0")
    A(f"buffer_load_ushort v{WSP}, v17, {r4(S2)}, 0 offen{NT}")
    A(f"buffer_load_ushort v{WSP+1}, v17, {r4(S3)}, 0 offen{NT}")
    A("s_mov_b64 exec, -1")
    A.label(nw)


WSP, IN, D, MID, TMP = 88, 24, 40, 72, 168
DY, W, TT = 72, 104, 136
M_, SPC, CJ, SGN = T0, T1, T2, T3
AUXK = E_("AUXK", 5)
GATE = E_("GATE", 0)
WK = E_("WK", 1)
WMID = WK <= 12
WSK = E_("WSK", 9)
A1K = E_("A1K", 0)
FINE = E_("FINE", 1)
ZSK = E_("ZSK", A1K + 3 + FINE)
LATE = A1K >= 6
A2G = E_("A2G", 0)
A3G = E_("A3G", 0)
ZG = E_("ZG", 0)
CTW = E_("CTW", 1)
POLLK = E_("POLLK", 15)
VTLB, VTN, VTF = E_("VTLB", 0), E_("VTN", 1), (" nt" if E_("VTF", 1) else "")
TLBW = E_("TLBW", 0)
DEFER = E_("DEFER", 0)
NPRE = E_("NPRE", 3)
P1, P2A, P2B = E_("P1", 0), E_("P2A", 50), E_("P2B", 95)
LDEF = E_("LDEF", 0)
LSLP = E_("LSLP", 1)
WSH = E_("WSH", 1)
PRE1, PRE2 = E_("PRE1", 6), E_("PRE2", 12)
HALF = E_("HALF", 0)
WEARLY = E_("WEARLY", 0)
KA, KA0, KA1, KAG = E_("KA", 0), E_("KA0", 1), E_("KA1", 15), E_("KAG", 0)
G1X = os.environ.get("G1X", "")
AXT = E_("AXT", 2)
APRIO, GPRIO = E_("APRIO", 0), E_("GPRIO", 1)
FM, CM = E_("FM", 12), E_("CM", 4)
DMAP = os.environ.get("DMAP", "5,9,13,17,21,25,29,33")
SK = os.environ.get("SK", "")
A2C = E_("A2C", 0)
LPRIO3 = E_("LPRIO3", 0)
LPRIO0 = E_("LPRIO0", 3)
LPRIO, LPRIO2 = E_('LPRIO', 0), E_('LPRIO2', 0)
L_IMG = 98304
LIMG_FREE = 2


def img(i):
    ka = 8*(i >> 2) + (i & 3)
    return (VA1, ka*1024) if i < 8 else (VA8, 0) if i == 8 else (VA2, (27 - ka)*1024)


def aux_pre(A):
    A(f"v_mov_b32 v{SQ}, {L_SYNC + 16}\ns_lshl_b32 s{T4}, s{W_}, 2\nv_add_u32 v{SO}, s{T4}, v{SQ}")
    A("v_and_b32 v8, 31, v1\nv_lshrrev_b32 v9, 5, v1\nv_and_b32 v10, 1, v1")
    A(f"v_lshrrev_b32 v11, 1, v8\nv_lshlrev_b32 v{VA1}, 6, v11\nv_lshl_add_u32 v{VA1}, v10, 4, v{VA1}\nv_lshl_add_u32 v{VA1}, v9, 12, v{VA1}")
    A(f"v_add_u32 v11, v11, v10\nv_lshlrev_b32 v11, 6, v11\nv_lshl_add_u32 v11, v10, 4, v11\nv_lshl_add_u32 v11, v9, 12, v11\nv_sub_u32 v{VA2}, {5120 + 48}, v11")
    for r in (VA1, VA2):
        A(f"v_bfe_u32 v11, v{r}, 7, 1\nv_lshlrev_b32 v11, 5, v11\nv_xor_b32 v{r}, v{r}, v11")
    A(f"v_add_u32 v{VA8}, 11264, v{VA2}\nv_and_b32 v{VA8}, 0x3fff, v{VA8}")
    A(f"s_add_u32 s{T4}, s{T4}, {L_IMG}")
    for r in (VA1, VA2, VA8):
        A(f"v_add_u32 v{r}, s{T4}, v{r}")
    A(f"v_bfe_u32 v11, v1, 3, 1\nv_lshlrev_b32 v11, 5, v11\nv_xor_b32 v{VLIN}, v2, v11")

    A("v_bfe_u32 v12, v1, 2, 1\nv_mul_u32_u24 v12, 2176, v12")
    A("v_bfe_u32 v13, v1, 3, 1\nv_lshl_add_u32 v12, v13, 6, v12\nv_lshl_add_u32 v12, v9, 8, v12")
    A("v_bfe_u32 v13, v1, 4, 1\nv_lshl_add_u32 v12, v13, 5, v12\nv_and_b32 v13, 3, v1\nv_lshl_add_u32 v12, v13, 3, v12")
    A(f"v_add_u32 v12, s{T8}, v12\nv_xor_b32 v13, 128, v12")
    if INOUT:
        A(f"s_lshl_b32 s{T4}, s{T7}, 14")
        srd(A, S0, OUT, T4, 0, 0x1000)
        srd(A, S1, OUT, T4, 0, 0x1000)
    else:
        A(f"s_lshl_b32 s{T4}, s2, 14\ns_lshl_b32 s{T5}, s{W_}, 12\ns_add_u32 s{T4}, s{T4}, s{T5}")
        srd(A, S0, WS, T4, WS_Z1, 0x1000)
        srd(A, S1, WS, T4, WS_Z3, 0x1000)
    A(f"v_and_b32 v14, 7, v1\nv_lshrrev_b32 v15, 3, v1\nv_xor_b32 v16, v14, v15\nv_lshlrev_b32 v16, 4, v16\nv_lshl_add_u32 v16, v14, 11, v16")
    A(f"s_lshr_b32 s{T4}, s{W_}, 1\ns_lshl_b32 s{T4}, s{T4}, 7\ns_and_b32 s{T5}, s{W_}, 1\ns_lshl_b32 s{T5}, s{T5}, 3\ns_add_u32 s{T4}, s{T4}, s{T5}\ns_add_u32 s{T4}, s{T4}, {L_W}")
    A(f"v_add_u32 v16, s{T4}, v16")
    A(f"v_lshlrev_b32 v15, {18 if INOUT else 16}, v15\nv_lshl_add_u32 v15, v14, 4, v15")
    A(f"s_lshl_b32 s{T4}, s{T3}, 7\ns_lshr_b32 s{T5}, s{W_}, 1\ns_lshl_b32 s{T5}, s{T5}, 6\ns_add_u32 s{T4}, s{T4}, s{T5}")
    A(f"s_and_b32 s{T5}, s{W_}, 1\ns_lshl_b32 s{T5}, s{T5}, 2\ns_add_u32 s{T4}, s{T4}, s{T5}\ns_mul_i32 s{T4}, s{T4}, {KS_}")
    A(f"s_lshr_b32 s{T5}, s{T0}, 2\ns_mul_i32 s{T5}, s{T5}, {ISH - 4096}\ns_add_u32 s{T4}, s{T4}, s{T5}")
    A(f"s_lshl_b32 s{T5}, s{T0}, 10\ns_add_u32 s{T4}, s{T4}, s{T5}\ns_lshl_b32 s{T5}, s{T1}, 9\ns_add_u32 s{T4}, s{T4}, s{T5}\ns_lshl_b32 s{T5}, s{T2}, 7\ns_add_u32 s{T4}, s{T4}, s{T5}")
    if INOUT:
        A(f"s_add_u32 s{T4}, s{T4}, 8192")
        srd(A, S4, OUT, T4, 0, 0x1000000, T4)
    else:
        srd(A, S4, WS, T4, WS_WT + 2*KS_, 0x400000, T4)


def c_touch(A, vm):
    A(f"s_and_b32 s{T4}, s2, 1\ns_lshl_b32 s{T4}, s{T4}, 10\ns_bfe_u32 s{CNT}, s2, 0x20001\ns_lshl_b32 s{CNT}, s{CNT}, 19\ns_add_u32 s{T4}, s{T4}, s{CNT}")
    A(f"s_lshr_b32 s{CNT}, s2, 3\ns_lshl_b32 s{CNT}, s{CNT}, 14\ns_add_u32 s{T4}, s{T4}, s{CNT}")
    A(f"s_lshr_b32 s{CNT}, s{W_}, 1\ns_lshl_b32 s{CNT}, s{CNT}, 13\ns_add_u32 s{T4}, s{T4}, s{CNT}")
    A(f"v_bfe_u32 v22, v1, 3, 2\nv_lshlrev_b32 v22, 11, v22\nv_and_b32 v23, 7, v1\nv_lshl_add_u32 v22, v23, 7, v22\nv_add_u32 v22, s{T4}, v22")
    A("s_mov_b32 exec_hi, 0")
    vm.op(f"global_load_dword v23, v22, s[100:101]", "touch")
    A("s_mov_b64 exec, -1")


def flag_poll(A, flg):
    A(f"s_lshl_b32 s{T4}, s2, 2\ns_add_u32 s{T4}, s{T4}, s{W_}\ns_lshr_b32 s{T4}, s{T4}, 4\ns_lshl_b32 s{T4}, s{T4}, 7\ns_add_u32 s{T4}, s{T4}, {flg}")
    A(f"s_add_u32 s24, s{WS}, s{T4}\ns_addc_u32 s25, s{WS+1}, 0")
    A(f"s_load_dwordx16 s[4:19], s[24:25], 0x0 glc")


def flag_wait(A):
    late, go, pl_ = uid("late"), uid("go"), uid("sp")
    A(f"s_mov_b32 s26, s{NONCE}\ns_mov_b32 s27, s{NONCE}\ns_mov_b32 s{CNT}, 0\ns_branch {pl_}")
    A.label(late)
    A(f"s_add_u32 s{CNT}, s{CNT}, 1\ns_cmp_ge_u32 s{CNT}, {SPIN_MAX}\ns_cbranch_scc1 {go}")
    A(f"s_sleep 8\ns_load_dwordx16 s[4:19], s[24:25], 0x0 glc")
    A.label(pl_)
    A("s_waitcnt lgkmcnt(0)")
    for q in range(8):
        A(f"s_cmp_eq_u64 s[{4+2*q}:{5+2*q}], s[26:27]\ns_cbranch_scc0 {late}")
    A.label(go)


RR = lambda arr, kind: 104 + (arr*4 + kind)*2


def wt_read(A, fin=True):
    for arr in range(2):
        for kind in range(4):
            A(f"ds_read_b64 {v(RR(arr,kind),2)}, v16 offset:{arr*1024 + kind*256}")


def wt_sym(A):
    A(f"s_mov_b32 s{T4}, 0x05040100\ns_mov_b32 s{T5}, 0x07060302")
    A(f"v_lshlrev_b32 v{WSP}, 16, v{WSP}\nv_lshlrev_b32 v{WSP+1}, 16, v{WSP+1}\nv_lshlrev_b32 v9, 1, v1")
    A(f"v_add_f32_dpp v{WSP+2}, v{WSP}, v{WSP} quad_perm:[1,0,3,2] row_mask:0xf bank_mask:0xf")
    A(f"v_subrev_f32_dpp v{WSP+3}, v{WSP+1}, v{WSP+1} quad_perm:[1,0,3,2] row_mask:0xf bank_mask:0xf")
    A(f"v_mul_f32 v{WSP+2}, 0.5, v{WSP+2}\nv_mul_f32 v{WSP+3}, 0.5, v{WSP+3}")
    A(f"v_cvt_pk_bf16_f32 v{WSP}, v{WSP+2}, v{WSP+3}")


def wt_perm(A):
    for kap in range(4):
        o = 120 + 4*kap
        for e in range(2):
            for h2 in range(2):
                kind = e + 2*h2
                A(f"v_perm_b32 v{o+2*e+h2}, v{RR(1,kind)+kap//2}, v{RR(0,kind)+kap//2}, s{T4 + kap % 2}")


def wt_store(A, vm):
    nw = uid("nw")
    A(f"s_cmp_lg_u32 s{W_}, 3\ns_cbranch_scc1 {nw}")
    A(f"s_lshr_b32 s{T4}, s2, 7\ns_mul_i32 s{T4}, s{T4}, {KS_}\ns_bfe_u32 s{T5}, s2, 0x10006\ns_mul_i32 s{T5}, s{T5}, {ISH}\ns_add_u32 s{T4}, s{T4}, s{T5}")
    A(f"s_and_b32 s{T5}, s2, 63\ns_lshl_b32 s{T5}, s{T5}, 6\ns_add_u32 s{T4}, s{T4}, s{T5}")
    srd(A, S3, WS, T4, WS_WT, 64)
    A("s_mov_b32 exec_lo, 0x55555555\ns_mov_b32 exec_hi, 0")
    if not E_("SKIPS", 0):
        A(f"buffer_store_dword v{WSP}, v9, {r4(S3)}, 0 offen sc1")
    A("s_mov_b64 exec, -1")
    A.label(nw)
    for kap in range(0 if "2" in SK else 4):
        A(f"s_mov_b32 s{CNT}, {kap*KS_}")
        vm.op(f"buffer_store_dwordx4 {v(120+4*kap,4)}, v15, {r4(S4)}, s{CNT} offen sc1", "wst")


def a1_task(A, vm):
    vm.wait_for("ax")
    trace(A, 191, 2)
    for s_ in range(4):
        for u in range(2):
            A(f"ds_read_b64_tr_b16 {v(IN+4*s_+2*u,2)}, v{12+u} offset:{s_*512}")
    A("s_waitcnt lgkmcnt(0)")
    stage1(A, IN, D)
    twiddle(A, D, MID, TMP)
    stage2(A, MID, D)
    A(f"s_lshl_b32 s{CNT}, s{W_}, 12\ns_add_u32 s{CNT}, s{CNT}, {L_IMG}\nv_add_u32 v8, s{CNT}, v{VLIN}")
    for i in range(16):
        A(f"v_cvt_pk_bf16_f32 v{MID+i}, v{D+i}, v{D+16+i}")
        a, o = img(i)
        A(f"ds_write_b32 v{a}, v{MID+i} offset:{o}")
    trace(A, 191, 3)
    vm.wait_for("w")
    A("s_waitcnt lgkmcnt(0)")
    l_sync(A)
    trace(A, 191, 4)
    for u in range(4):
        A(f"ds_read_b128 {v(MID+4*u,4)}, v8 offset:{u*1024}")
    wt_read(A, fin=False)
    for r in (VA1, VA2, VA8):
        A(f"v_add_u32 v{r}, {L_AX - L_IMG}, v{r}")
    A("s_waitcnt lgkmcnt(0)")
    p = l_arrive(A)
    assert p == LIMG_FREE
    if ZG:
        l_check(A, ZG, 16)
    for u in range(0 if "3" in SK else 4):
        vm.op(f"buffer_store_dwordx4 {v(MID+4*u,4)}, v2, {r4(S0)}, 0 offen offset:{u*1024} sc1", "zst")
    wt_sym(A)
    wt_perm(A)
    wt_store(A, vm)
    trace(A, 191, 5)
    y = uid("sg")
    A(f"v_readfirstlane_b32 s{NONCE}, v21\ns_cmp_lg_u32 s{NONCE}, 0\ns_cbranch_scc1 {y}")
    get_nonce(A, 20)
    A.label(y)


def a2_setup(A):
    A(f"s_and_b32 s{M_}, s2, 7\ns_lshl_b32 s{M_}, s{M_}, 5\ns_lshr_b32 s{T4}, s2, 3\ns_add_u32 s{M_}, s{M_}, s{T4}")
    A(f"s_lshr_b32 s{T4}, s{W_}, 1\ns_xor_b32 s{T4}, s{T4}, s{W_}\ns_and_b32 s{T4}, s{T4}, 1")
    A(f"s_or_b32 s{T5}, s{T4}, s{M_}\ns_cmp_eq_u32 s{T5}, 0\ns_cselect_b32 s{SPC}, 1, 0")
    A(f"s_lshl_b32 s{T5}, s{M_}, 1\ns_add_u32 s{T4}, s{T4}, s{T5}")
    A(f"s_mul_i32 s{T4}, s{T4}, {KS_}\ns_add_u32 s{T4}, s{T4}, {8192 if INOUT else WS_WT + 2*KS_}")
    A(f"s_lshr_b32 s{T5}, s{W_}, 1\ns_mul_i32 s{T9}, s{T5}, {KS_}\ns_add_u32 s{T9}, s{T9}, {WS_WT}")
    A(f"s_cmp_eq_u32 s{SPC}, 1\ns_cselect_b32 s{T4}, s{T9}, s{T4}\ns_cselect_b32 s{T5}, 0, s{T5}")
    A(f"s_cselect_b32 s{MSK}, s{WS}, s{OUT if INOUT else WS}\ns_cselect_b32 s{MSK+1}, s{WS+1}, s{(OUT if INOUT else WS)+1}")
    A(f"s_lshl_b32 s{CJ}, s{T5}, 31\ns_or_b32 s{SGN}, s{CJ}, 0x3f800000")
    srd(A, S2, MSK, T4, 0, ISH + 4096)
    if INOUT:
        A(f"s_lshl_b32 s{T4}, s{W_}, 22\ns_lshr_b32 s{T5}, s{M_}, 6\ns_lshl_b32 s{T5}, s{T5}, 19\ns_add_u32 s{T4}, s{T4}, s{T5}")
        A(f"s_and_b32 s{T5}, s{M_}, 63\ns_lshl_b32 s{T5}, s{T5}, 6\ns_add_u32 s{T4}, s{T4}, s{T5}")
        srd(A, S3, OUT, T4, 0, 160*16384, T5)
        srd(A, S4, OUT, T4, 0, 160*16384, T5)
    else:
        A(f"s_lshl_b32 s{T4}, s{W_}, 20\ns_lshl_b32 s{T5}, s{M_}, 6\ns_add_u32 s{T4}, s{T4}, s{T5}")
        srd(A, S3, WS, T4, WS_Z1, 0x100000, T5)
        srd(A, S4, WS, T4, WS_Z3, 0x100000, T5)
    A("v_lshrrev_b32 v8, 2, v1\nv_lshlrev_b32 v8, 14, v8\nv_and_b32 v9, 3, v1\nv_lshrrev_b32 v10, 4, v1\nv_xor_b32 v9, v9, v10\nv_lshl_add_u32 v14, v9, 4, v8")
    A(f"v_and_b32 v8, 31, v1\nv_bfe_u32 v9, v1, 2, 2\nv_xor_b32 v9, s{W_}, v9\nv_lshlrev_b32 v9, 4, v9\nv_lshl_add_u32 v9, v8, 6, v9")
    A(f"v_lshrrev_b32 v8, 5, v1\nv_lshl_add_u32 v9, v8, 11, v9\nv_add_u32 v15, {L_AX}, v9")
    A(f"s_lshl_b32 s{T4}, s{W_}, 13\ns_add_u32 s{T4}, s{T4}, {L_AX}\nv_add_u32 v16, s{T4}, v2")
    A(f"s_xor_b32 s{T5}, s{T4}, {3 << 13}\ns_cmp_eq_u32 s{SPC}, 1\ns_cselect_b32 s{T5}, s{T4}, s{T5}\nv_add_u32 v17, s{T5}, v2")
    A(f"v_add_u32 v18, s{T8}, v2")
    A(f"s_lshr_b32 s{T4}, s{W_}, 1\ns_xor_b32 s{T4}, s{T4}, s{W_}\ns_and_b32 s{T4}, s{T4}, 1\ns_lshl_b32 s{T9}, s{T4}, 13\ns_add_u32 s{T9}, s{T9}, {L_W}\nv_add_u32 v19, s{T9}, v2")
    for kk in range(32):
        A(f"v_mul_f32 v{TT+kk}, s{SGN}, v{TT+kk}")


ZU = lambda u: (16*(u & 1) + 128*(u >> 1))*16384 if INOUT else u << 18


def a2_loads(A, z=True, w=True):
    for u in range(4 if z and '5' not in SK else 0):
        A(f"s_add_u32 m0, s{T8}, {u*1024}\ns_mov_b32 s{T4}, {ZU(u)}")
        A(f"buffer_load_dwordx4 v14, {r4(S3)}, s{T4} offen sc1 lds")
    if WSH:
        a, b = uid("ws"), uid("wd")
        A(f"s_cmp_eq_u32 s{SPC}, 1\ns_cbranch_scc1 {a}")
        A(f"s_lshr_b32 s{T4}, s{W_}, 1\ns_lshl_b32 s{T5}, s{T4}, 12\ns_mul_i32 s{T4}, s{T4}, {ISH}\ns_add_u32 m0, s{T9}, s{T5}")
        for u in range(4):
            A(f"buffer_load_dwordx4 v2, {r4(S2)}, s{T4} offen offset:{u*1024} sc1 lds")
        A(f"s_waitcnt vmcnt(0)\ns_branch {b}")
        A.label(a)
    A(f"s_movk_i32 s{T4}, {ISH}")
    for it in range(8 if w and '4' not in SK else 0):
        A(f"buffer_load_dwordx4 {v(W+4*it,4)}, v2, {r4(S2)}, {'0' if it < 4 else f's{T4}'} offen offset:{(it & 3)*1024} sc1")
    if WSH:
        A.label(b)


def aux_rest(A, vm):
    def phase(cnt, flg, young=0):
        A(f"s_waitcnt vmcnt({young})")
        if E_("AM", 0) and cnt == (CNT_B if E_("AM", 0) == 4 else CNT_A):
            mark(A, 5)
        p = l_arrive(A)
        x = uid("ph")
        A(f"s_cmp_lg_u32 s{W_}, 0\ns_cbranch_scc1 {x}")
        l_check(A, p)
        y, pl_, nok = uid("sg"), uid("sp"), uid("nok")
        A(f"s_and_b32 s{T4}, s2, 15\ns_lshl_b32 s{T5}, s{T4}, 7\ns_add_u32 s{T5}, s{T5}, {cnt}")
        A(f"s_add_u32 s{MSK}, s{WS}, s{T5}\ns_addc_u32 s{MSK+1}, s{WS+1}, 0\ns_mov_b32 s{T5}, 1")
        A(f"s_atomic_add s{T5}, {sp(MSK)}, 0x0 glc")
        A(f"s_lshl_b32 s{T4}, s{T4}, 2\ns_add_u32 s{T4}, s{T4}, {flg}\nv_lshl_add_u32 v20, v1, 7, s{T4}\nv_mov_b32 v21, s{NONCE}")
        if NREP:
            A(f"s_add_u32 s4, s{WS}, s{T4}\ns_addc_u32 s5, s{WS+1}, 0")
        A(f"s_and_b32 s{T4}, s2, {(NREP or 64) - 1}\ns_lshl_b32 s{T4}, s{T4}, 7\ns_add_u32 s{T4}, s{T4}, {flg}")
        A("s_waitcnt lgkmcnt(0)")
        A(f"s_cmp_lg_u32 s{T5}, 15\ns_cbranch_scc1 {y}")
        if NREP:
            for r in range(NREP):
                A(f"s_atomic_swap s{NONCE}, s[4:5], {hex(r*128)}")
            A("s_waitcnt lgkmcnt(0)")
        else:
            A(f"global_store_dword v20, v21, {sp(WS)} sc1")
        A.label(y)
        if E_("AM", 0) and cnt == (CNT_B if E_("AM", 0) == 4 else CNT_A):
            mark(A, 8 if E_("AM", 0) == 3 else 6)
        A(f"s_add_u32 s{MSK}, s{WS}, s{T4}\ns_addc_u32 s{MSK+1}, s{WS+1}, 0\ns_mov_b32 s{T4}, s{NONCE}\ns_mov_b32 s{T5}, s{NONCE}\ns_mov_b32 s{CNT}, 0")
        A(f"s_branch {pl_}")
        A.label(nok)
        A(f"s_add_u32 s{CNT}, s{CNT}, 1\ns_cmp_ge_u32 s{CNT}, {SPIN_MAX}\ns_cbranch_scc1 {x}")
        if SLP_A:
            A(f"s_sleep {SLP_A}")
        A.label(pl_)
        A(f"s_load_dwordx16 s[4:19], {sp(MSK)}, 0x0 glc\ns_waitcnt lgkmcnt(0)")
        for q in range(8):
            A(f"s_cmp_eq_u64 s[{4+2*q}:{5+2*q}], {sp(T4)}\ns_cbranch_scc0 {nok}")
        A.label(x)
        l_check(A, l_arrive(A), slp=LSLP)
    a1_task(A, vm)
    if CTW == 1:
        c_touch(A, vm)
    mark(A, 2)
    a2_setup(A)
    trace(A, 191, 6)
    phase(CNT_A, FLG_A, 0)
    trace(A, 191, 7)
    A(f"s_setprio {LPRIO2}")
    if A2G:
        l_check(A, A2G % 100, 16 if A2G < 100 else -16)
    if CTW == 2:
        c_touch(A, vm)
    trace(A, 191, 8)
    a2_loads(A)
    mark(A, 7)
    A(f"s_waitcnt vmcnt({0 if '4' in SK else 8})")
    trace(A, 191, 9)
    if E_("AM", 0) in (1, 2):
        mark(A, 1)
    l_sync(A)
    INS = 72
    for s_ in range(4):
        A(f"ds_read_b128 {v(INS+4*s_,4)}, v15 offset:{s_*4096}")
    if WSH:
        a = uid("wr")
        A(f"s_cmp_eq_u32 s{SPC}, 1\ns_cbranch_scc1 {a}")
        for it in range(8):
            A(f"ds_read_b128 {v(W+4*it,4)}, v19 offset:{it*1024}")
        A.label(a)
    A("s_waitcnt lgkmcnt(0)")
    if E_("AM", 0) == 2:
        mark(A, 2)
    p6 = l_arrive(A)
    if A2C:
        l_check(A, A2C, -16)
    A(f"s_lshl_b32 s{T4}, s{SPC}, 31\ns_or_b32 s{T4}, s{T4}, s{CJ}")
    fl, nwr = uid("fft"), uid("nwr")
    A.label(fl)
    for i in range(16):
        A(f"v_xor_b32 v{IN+i}, s{T4}, v{INS+i}")

    def pre(rng):
        for i in rng:
            w, rho, sg = W + 2*i, TT + i, TT + 16 + i
            r1, i1, r2, i2, Ar, Ai = (TMP + 8 + c for c in range(6))
            A(f"v_lshlrev_b32 v{r1}, 16, v{w}\nv_and_b32 v{i1}, 0xffff0000, v{w}")
            A(f"v_lshlrev_b32 v{r2}, 16, v{w+1}\nv_and_b32 v{i2}, 0xffff0000, v{w+1}")
            A(f"v_add_f32 v{Ar}, v{r1}, v{r2}\nv_add_f32 v{Ai}, v{i1}, v{i2}")
            A(f"v_sub_f32 v{r1}, v{r1}, v{r2}\nv_sub_f32 v{i1}, v{i1}, v{i2}")
            A(f"v_mul_f32 v{w}, v{rho}, v{r1}\nv_mul_f32 v{w+1}, v{rho}, v{i1}")
            A(f"v_fma_f32 v{rho}, v{sg}, v{r1}, v{Ar}\nv_fma_f32 v{sg}, v{sg}, v{i1}, v{Ai}")

    def once(rng):
        a = uid("once")
        A(f"s_cmp_eq_u32 s{SPC}, 2\ns_cbranch_scc1 {a}\ns_waitcnt vmcnt(0)")
        pre(rng)
        A.label(a)
    stage1(A, IN, D)
    once(range(0, PRE1))
    twiddle(A, D, IN, TMP)
    stage2(A, IN, D)
    once(range(PRE1, PRE2))
    l_check(A, p6)
    if E_("AM", 0) == 2:
        mark(A, 5)
    A(f"s_cmp_eq_u32 s{SPC}, 2\ns_cbranch_scc1 {nwr}")
    for c in range(8):
        A(f"ds_write_b128 v16, {v(D+4*c,4)} offset:{c*1024}")
    A(f"s_cmp_eq_u32 s{SPC}, 0\ns_cbranch_scc1 {nwr}")
    A(f"s_mov_b32 s{SPC}, 2\ns_mov_b32 s{T4}, 0\ns_branch {fl}")
    A.label(nwr)
    pre(range(PRE2, min(16, PRE2 + 2)))
    A("s_waitcnt lgkmcnt(0)")
    p7 = l_arrive(A)
    pre(range(min(16, PRE2 + 2), 16))

    def own(rng):
        for i in rng:
            Xr, Xi, mr, mi, t = D+i, D+16+i, TT+i, TT+16+i, TMP + (i & 1)
            A(f"v_mul_f32 v{t}, v{mi}, v{Xi}\nv_mul_f32 v{Xi}, v{mr}, v{Xi}")
            A(f"v_fmac_f32 v{Xi}, v{mi}, v{Xr}\nv_fma_f32 v{Xr}, v{mr}, v{Xr}, -v{t}")
    own(range(0, 6))
    l_check(A, p7)
    for c in range(8):
        A(f"ds_read_b128 {v(DY+4*c,4)}, v17 offset:{c*1024}")
    own(range(6, 16))
    A("s_waitcnt lgkmcnt(0)")
    if E_("AM", 0) in (1, 2):
        mark(A, 4)
    p8 = l_arrive(A)
    for i in range(16):
        Pr, Pi, Yr, Yi, gr, gi = D+i, D+16+i, DY+i, DY+16+i, W+2*i, W+2*i+1
        A(f"v_fma_f32 v{Pr}, -v{gr}, v{Yi}, v{Pr}\nv_fmac_f32 v{Pi}, v{gr}, v{Yr}")
        A(f"v_fma_f32 v{Pr}, -v{gi}, v{Yr}, v{Pr}\nv_fma_f32 v{Pi}, -v{gi}, v{Yi}, v{Pi}")
        A(f"v_cvt_pk_bf16_f32 v{IN+i}, v{Pi}, v{Pr}")
    if E_("AM", 0) == 2:
        mark(A, 6)
    stage1(A, IN, D)
    twiddle(A, D, IN, TMP)
    stage2(A, IN, D)
    A(f"s_lshr_b32 s{T4}, s{CJ}, 16")
    l_check(A, p8)
    for s_ in range(4):
        for r in range(4):
            i = 4*s_ + r
            A(f"v_cvt_pk_bf16_f32 v{IN+i}, v{D+i}, v{D+16+i}\nv_xor_b32 v{IN+i}, s{T4}, v{IN+i}")
        A(f"ds_write_b128 v15, {v(IN+4*s_,4)} offset:{s_*4096}")
    A("s_waitcnt lgkmcnt(0)")
    if E_("AM", 0) == 2:
        mark(A, 7)
    l_sync(A)
    for u in range(4):
        A(f"ds_read_b128 {v(IN+4*u,4)}, v18 offset:{u*1024}")
    for u in range(4):
        A(f"s_mov_b32 s{T4}, {ZU(u)}\ns_waitcnt lgkmcnt({3-u})")
        if "6" not in SK:
            A(f"buffer_store_dwordx4 {v(IN+4*u,4)}, v14, {r4(S4)}, s{T4} offen sc1")
    if E_("AM", 0) != 3 and not E_("GM", 0):
        mark(A, 3)
    A(f"s_lshl_b32 s{T4}, s{T7}, 14")
    srd(A, S0, OUT, T4, 0, 0x4000)
    A("v_and_b32 v8, 31, v1\nv_lshrrev_b32 v9, 5, v1\nv_lshlrev_b32 v14, 2, v8\nv_lshl_add_u32 v14, v9, 9, v14")
    A(f"s_mov_b32 s{T4}, 0x35000000")
    for k in range(32):
        A(f"v_mul_f32 v{T+k}, s{T4}, v{T+k}")
    phase(CNT_B, FLG_B)
    A(f"s_setprio {LPRIO3}")
    if E_("AM", 0) != 3:
        mark(A, 8)
    A(f"s_mov_b32 m0, s{T8}")
    for u in range(4):
        if "7" not in SK:
            A(f"buffer_load_dwordx4 v{VLIN}, {r4(S1)}, 0 offen offset:{u*1024} sc1 lds")
    A("s_waitcnt vmcnt(0)")
    l_sync(A)
    for i in range(16):
        a, o = img(i)
        A(f"ds_read_b32 v{IN+i}, v{a} offset:{o}")
    A("s_waitcnt lgkmcnt(0)")
    stage1(A, IN, D)
    twiddle(A, D, IN, TMP)
    stage2(A, IN, D)
    A(f"s_movk_i32 s{T4}, 0x2000")
    O = 72
    for i in range(16):
        o = O + 2*i
        A(f"v_cvt_pk_bf16_f32 v{o+1}, v{D+16+i}, v{D+i}")
        A(f"v_lshlrev_b32 v{o}, 16, v{o+1}\nv_and_b32 v{o+1}, 0xffff0000, v{o+1}")
        off = (i >> 2)*1024 + (i & 3)*128
        if "8" not in SK:
            A(f"buffer_store_dword v{o}, v14, {r4(S0)}, 0 offen offset:{off}{OST}")
            A(f"buffer_store_dword v{o+1}, v14, {r4(S0)}, s{T4} offen offset:{off}{OST}")


def cmul_sq(A, d, a, t):
    A(f"v_mul_f32 {v(t)}, {v(a+1)}, {v(a+1)}")
    A(f"v_mul_f32 {v(t+1)}, {v(a)}, {v(a+1)}")
    A(f"v_fma_f32 {v(d)}, {v(a)}, {v(a)}, -{v(t)}")
    A(f"v_add_f32 {v(d+1)}, {v(t+1)}, {v(t+1)}")


def horner(A, dr, di, L, pr, pi, er, ei, t):
    assert dr not in (pr, pi) and di not in (pr, pi)
    A(f"v_fma_f32 {v(t)}, {v(L)}, {v(pr)}, {v(er)}")
    A(f"v_fma_f32 {v(t+1)}, {v(L)}, {v(pi)}, {v(ei)}")
    A(f"v_fma_f32 {v(dr)}, -{v(L+1)}, {v(pi)}, {v(t)}")
    A(f"v_fma_f32 {v(di)}, {v(L+1)}, {v(pr)}, {v(t+1)}")


def aux_waves(A, name, kidx):
    A(f"s_sub_u32 s{W_}, s{WAVE}, 4")
    A(f"s_setprio {APRIO}")
    A("s_waitcnt lgkmcnt(0)")
    A(f"s_mov_b32 s100, s{CRE}\ns_mov_b32 s101, s{CRE+1}")
    A(f"s_bitcmp1_b32 s{W_}, 0\ns_cselect_b32 s100, s{CIM}, s{CRE}\ns_cselect_b32 s101, s{CIM+1}, s{CRE+1}")
    trace_init(A, 191)
    vm = VmCounter(A)
    if CODEPF:
        pf, pc = uid("pf"), uid("pc")
        A(f"s_cmp_lg_u32 s{W_}, 1")
        A(f"s_cbranch_scc1 {pf}")
        A(f"s_lshr_b32 s{T0}, s2, 3\ns_lshl_b32 s{T0}, s{T0}, 11\nv_and_b32 v12, 15, v1\nv_lshl_add_u32 v12, v12, 7, s{T0}")
        A(f"v_min_u32 v12, L_{name}_end-{name}, v12")
        A(f"s_getpc_b64 {sp(T0)}")
        A.label(pc)
        A(f"s_sub_u32 s{T0}, s{T0}, {pc}-{name}\ns_subb_u32 s{T1}, s{T1}, 0")
        A(f"global_load_dword v23, v12, {sp(T0)}")
        A.label(pf)
    nn = uid("nn")
    A(f"s_lshl_b32 s{T0}, s2, 3\ns_add_u32 s{T0}, s{T0}, s{WAVE}\ns_cmp_lg_u32 s{T0}, 4")
    A(f"s_cbranch_scc1 {nn}")
    A(f"s_load_dword s3, {sp(WS)}, {WS_NONCE}")
    A(f"v_mov_b32 v22, 0\nv_lshlrev_b32 v23, 7, v1\nv_add_u32 v23, {WS_CNT}, v23")
    A(f"global_store_dword v23, v22, {sp(WS)} sc1")
    A.label(nn)

    def publish_nonce(young):
        nn = uid("nn")
        A(f"s_lshl_b32 s{CNT}, s2, 3\ns_add_u32 s{CNT}, s{CNT}, s{WAVE}\ns_cmp_lg_u32 s{CNT}, 4")
        A(f"s_cbranch_scc1 {nn}")
        A(f"s_waitcnt vmcnt({young}) lgkmcnt(0)")
        A(f"s_add_u32 s3, s3, 1\ns_cmp_eq_u32 s3, 0\ns_cselect_b32 s3, 1, s3")
        A(f"v_mov_b32 v23, s3\nv_mov_b32 v22, 0")
        A(f"s_mov_b64 exec, 1\nglobal_store_dword v22, v23, {sp(DBG)} sc1")
        A(f"global_store_dword v22, v23, {sp(WS)} offset:{WS_NONCE}\ns_mov_b64 exec, -1")
        A.label(nn)
    if NOAUX:
        A("s_barrier")
        publish_nonce(0)
        if CTW:
            for _ in range(E_("CTD", 100)):
                A("s_sleep 1")
            c_touch(A, vm)
        A("s_endpgm")
        return
    aux_setup1(A)
    if AXT == 0:
        aux_issue(A, vm)
        w_issue(A, vm)
    A("s_barrier")
    trace(A, 191, 0)
    aux_setup2(A)
    publish_nonce(len(vm.issued))
    if AXT == 1:
        aux_issue(A, vm)
        w_issue(A, vm)
    aux_pre(A)
    if AXT == 2:
        aux_issue(A, vm)
        w_issue(A, vm)
    if AXT >= 10:
        l_check(A, AXT - 10 + 1, 16)
        aux_issue(A, vm)
        w_issue(A, vm)
    A("v_mov_b32 v20, 0")
    vm.op(f"global_load_dword v21, v20, {sp(DBG)} sc1", "nonce")
    trace(A, 191, 1)
    aux_rest(A, vm)
    trace_dump(A, 191, WAVE)
    stamp_end(A, kidx, WAVE)
    A("s_endpgm")


M16 = "v_mfma_f32_16x16x32_bf16"
XRW = 144
L_XC = 114688


def cpow(A, d, zr, zi, n, t):
    if isinstance(n, str):
        A(f"v_mul_f32 v{t}, {n}, v{zr}\nv_mul_f32 v{t+1}, {n}, v{zi}")
    else:
        A(f"v_mul_f32 v{t}, {fl(n)}, v{zr}\nv_mul_f32 v{t+1}, {fl(n)}, v{zi}")
    A(f"v_exp_f32 v{t}, v{t}\nv_rndne_f32 v{t+2}, v{t+1}\nv_sub_f32 v{t+1}, v{t+1}, v{t+2}")
    A(f"v_cos_f32 v{t+2}, v{t+1}\nv_sin_f32 v{t+1}, v{t+1}")
    A(f"v_mul_f32 v{d}, v{t}, v{t+2}\nv_mul_f32 v{d+1}, v{t}, v{t+1}")


def gemm_waves(A, name, kidx):
    U = lambda pg, c, idx: 64 + (pg*2 + c)*16 + 2*idx
    ACC = lambda mt, nt: 64 + ((nt & 1)*2 + (nt >> 1))*16 + 4*mt
    FR = lambda X, f: (32 if X == 0 else 144) + 4*f
    AD = lambda st, op, k2: 128 + st*4 + op*2 + k2
    LAM = lambda pg: 20 + 2*pg
    KC = lambda pg: 24 + 2*pg
    L8 = lambda pg: 176 + 2*pg
    L16 = lambda pg: 180 + 2*pg
    PP = lambda pg: 184 + 4*pg
    PW = lambda pg, idx: 208 + 16*pg + 2*idx
    Q16, Q64, Q128, Q256 = 28, 192, 30, 2
    WT_, WP = T8, T6
    A(f"s_lshr_b32 s{WT_}, s{WAVE}, 1\ns_and_b32 s{WP}, s{WAVE}, 1\ns_lshr_b32 s{PG}, s{TJ}, 3")
    A("v_and_b32 v6, 31, v1\nv_lshrrev_b32 v5, 5, v1\nv_lshlrev_b32 v11, 4, v1")
    A("v_bfe_u32 v4, v1, 2, 2\nv_lshlrev_b32 v4, 3, v4\nv_and_b32 v7, 3, v1\nv_add_u32 v4, v4, v7")
    A(f"s_lshl_b32 s{T0}, s{TJ}, 6\ns_lshl_b32 s{T1}, s{WP}, 5\ns_add_u32 s{T0}, s{T0}, s{T1}")
    A(f"v_add_u32 v4, s{T0}, v4\nv_lshlrev_b32 v7, 1, v4")
    RA, RB, ROT, M0B, SOF, RV = S2, S3, 38, 39, T2, 244
    A("v_bfe_u32 v13, v1, 3, 2\nv_and_b32 v14, 1, v13\nv_lshrrev_b32 v15, 1, v13")
    A("v_lshlrev_b32 v16, 4, v5\nv_lshl_add_u32 v16, v14, 3, v16\nv_add_u32 v16, v16, v15")
    A(f"s_lshl_b32 s{T1}, s{WT_}, 6\ns_lshl_b32 s{T2}, s{WP}, 2\ns_add_u32 s{T1}, s{T1}, s{T2}")
    A(f"v_add_u32 v16, s{T1}, v16\nv_lshlrev_b32 v16, 11, v16")
    A(f"s_lshl_b32 s{T1}, s{WT_}, 5")
    A(f"v_lshl_add_u32 v17, v5, 3, v13\nv_add_u32 v17, s{T1}, v17\nv_lshlrev_b32 v17, 11, v17")
    A("v_and_b32 v14, 7, v1\nv_lshrrev_b32 v15, 4, v1\nv_xor_b32 v14, v14, v15\nv_lshlrev_b32 v14, 4, v14\nv_xor_b32 v15, 64, v14")
    A(f"v_add_u32 v{RV}, v16, v14\nv_add_u32 v{RV+1}, v16, v15\nv_add_u32 v{RV+1}, {32*2048 - 1024}, v{RV+1}")
    A(f"v_add_u32 v{RV+2}, v17, v14\nv_add_u32 v{RV+3}, v17, v15\nv_add_u32 v{RV+3}, {16*2048 - 1024}, v{RV+3}")
    A(f"s_mul_i32 s{ROT}, s{TI}, {RI*128}\ns_mul_i32 s{T0}, s{TJ}, {RJ*128}\ns_add_u32 s{ROT}, s{ROT}, s{T0}")
    A(f"s_lshl_b32 s{T0}, s{TI}, 18\ns_lshl_b32 s{T1}, s{TJ}, 17\ns_lshl_b32 s{M0B}, s{WAVE}, 12")
    A("s_waitcnt lgkmcnt(0)")
    PRM = 32
    for pg in range(2):
        A(f"global_load_ushort v{PRM+3*pg}, v7, {sp(LRE)} offset:{8*pg}\nglobal_load_ushort v{PRM+1+3*pg}, v7, {sp(LIM)} offset:{8*pg}\nglobal_load_ushort v{PRM+2+3*pg}, v7, {sp(LDT)} offset:{8*pg}")
    srd(A, RA, BX, T0, 0, 0x40000)
    A(f"s_cmp_eq_u32 s{WP}, 1\ns_cselect_b32 s{T2}, s{BIM}, s{BRE}\ns_cselect_b32 s{T3}, s{BIM+1}, s{BRE+1}")
    srd(A, RB, T2, T1, 0, 0x20000)
    vm1 = VmCounter(A)

    def piece(k, n):
        slot, u = k % NS, n & 3
        if n == 0:
            A(f"s_add_u32 s{SOF}, s{ROT}, {k*128}\ns_and_b32 s{SOF}, s{SOF}, 0x7ff")
            A(f"s_add_u32 s{SOF+1}, s{SOF}, 2048\ns_add_u32 s{SOF+2}, s{SOF}, 6144")
        if u == 0:
            A(f"s_add_u32 m0, s{M0B}, {slot*32768 + (n >> 2)*16384}")
        so = SOF if u < 2 else SOF + 1 + (n >> 2)
        if ("a" in G1X and 0 < n < 4) or ("b" in G1X and n > 4):
            return
        vm1.op(f"buffer_load_dwordx4 v{RV + 2*(n >> 2) + (u & 1)}, {r4(RA if n < 4 else RB)}, s{so} offen offset:{u*1024} lds", ("st", k))
    for n in range(8):
        piece(0, n)
    A("v_bfe_u32 v7, v1, 4, 1\nv_lshl_add_u32 v4, v7, 2, v4")
    A("v_bfe_u32 v7, v6, 1, 3\nv_xor_b32 v7, v7, v5\nv_lshlrev_b32 v7, 4, v7\nv_lshl_add_u32 v7, v6, 7, v7")
    A("v_and_b32 v8, 15, v1\nv_lshrrev_b32 v9, 4, v1")
    A("v_lshrrev_b32 v12, 1, v8\nv_xor_b32 v12, v12, v9\nv_lshlrev_b32 v12, 4, v12\nv_lshl_add_u32 v12, v8, 7, v12")
    A(f"s_lshl_b32 s{T0}, s{WT_}, 13\ns_lshl_b32 s{T1}, s{WP}, 13\ns_add_u32 s{T1}, s{T1}, 16384")
    for k2 in range(2):
        A(f"v_xor_b32 v13, {k2 << 6}, v12")
        A(f"v_add_u32 v{AD(0,0,k2)}, s{T0}, v13\nv_add_u32 v{AD(0,1,k2)}, s{T1}, v13")
        A(f"v_add_u32 v{AD(1,0,k2)}, 0x10000, v{AD(0,0,k2)}\nv_add_u32 v{AD(1,1,k2)}, 0x10000, v{AD(0,1,k2)}")
    A("v_mov_b64 v[64:65], 0\nv_mov_b64 v[66:67], 0")
    A(f"s_mul_i32 s{T0}, s{WAVE}, {16*XRW}\ns_add_u32 s{T0}, s{T0}, {L_XC}\nv_add_u32 v13, s{T0}, v11\nv_mov_b32 v12, {L_SYNC}")
    A("ds_write_b128 v13, v[64:67]\nds_write_b128 v13, v[64:67] offset:1024\nds_write_b128 v13, v[64:67] offset:2048")
    A("s_mov_b64 exec, 1\nds_write_b128 v12, v[64:67]\nds_write_b128 v12, v[64:67] offset:16\nds_write_b128 v12, v[64:67] offset:32\ns_mov_b64 exec, -1")
    A(f"s_lshl_b32 s{T0}, s{WAVE}, 2\nv_add_u32 v13, s{T0}, v12")
    A("s_waitcnt lgkmcnt(0)\ns_barrier")
    Areal, A = A, Asm()
    A("v_lshlrev_b32 v14, 2, v9\nv_sub_u32 v14, v8, v14\nv_mov_b32 v15, 0x3f80\nv_mov_b32 v16, 1.0")
    for c in range(4):
        A(f"v_cmp_eq_u32 vcc, {c}, v14\nv_cndmask_b32 v{248+c}, 0, v15, vcc\nv_cndmask_b32 v{252+c}, 0, v16, vcc")
    srd(A, S0, WS, None, WS_EG, 0x40000)
    srd(A, S1, WS, None, WS_HT, 64*TBS)
    A(f"s_mul_i32 s{T0}, s{WP}, {32*XRW}\ns_add_u32 s{T0}, s{T0}, {L_XC + 64}\ns_lshl_b32 s{T1}, s{WT_}, 5\ns_add_u32 s{T1}, s{T1}, s{T0}")
    A(f"v_mul_u32_u24 v14, {XRW}, v6\nv_add_u32 v14, s{T0}, v14\nv_lshl_add_u32 v14, v5, 5, v14")
    A(f"v_mul_u32_u24 v15, {XRW}, v8\nv_add_u32 v15, s{T1}, v15\nv_lshl_add_u32 v15, v9, 3, v15")
    A(f"s_lshl_b32 s{T0}, s{TI}, 14\nv_lshl_add_u32 v16, v4, 4, s{T0}")
    A("v_mov_b32 v17, 0x40000000\nv_lshlrev_b32 v10, 14, v5\nv_sub_u32 v10, v16, v10")
    LA_, LX = 194, 200
    for u in range(8):
        A(f"v_subrev_u32 v{136+u}, {16384 + u*32768}, v10\nv_cmp_le_i32 vcc, 0, v{136+u}\nv_cndmask_b32 v{136+u}, v17, v{136+u}, vcc")
    A("v_lshlrev_b32 v17, 30, v5\nv_or_b32 v16, v16, v17")
    A(f"s_lshl_b32 s{T0}, s{TI}, 11\ns_add_u32 s{T0}, s{T0}, {FLG_X}\ns_lshl_b32 s{T1}, s{TJ}, 7\ns_add_u32 s{T1}, s{T1}, s{T0}\nv_mov_b32 v195, s{T1}")
    A(f"s_lshl_b32 s{T1}, s{PG}, 10\ns_add_u32 s{T0}, s{T0}, s{T1}\nv_and_b32 v196, 7, v1\nv_lshl_add_u32 v196, v196, 7, s{T0}")
    A(f"s_lshl_b32 s{T0}, s{TI}, 1\ns_add_u32 s{T0}, s{T0}, s{WT_}\ns_lshl_b32 s{T0}, s{T0}, 12\ns_add_u32 s{T0}, s{T0}, {FLG_H}")
    A(f"s_lshl_b32 s{T1}, s{PG}, 11\ns_add_u32 s{T1}, s{T1}, s{T0}\nv_lshl_add_u32 v18, v8, 7, s{T1}")
    A(f"s_lshl_b32 s{T1}, s{TJ}, 8\ns_add_u32 s{T0}, s{T0}, s{T1}\ns_lshl_b32 s{T1}, s{WP}, 7\ns_add_u32 s{T0}, s{T0}, s{T1}\nv_mov_b32 v19, s{T0}")
    A("v_lshrrev_b32 v10, 1, v9\nv_lshlrev_b32 v10, 10, v10\nv_and_b32 v17, 1, v9\nv_lshl_add_u32 v10, v17, 9, v10\nv_lshl_add_u32 v10, v8, 4, v10")
    A(f"s_lshl_b32 s{T0}, s{WT_}, 2\nv_add_u32 v9, s{T0}, v9\nv_cvt_f32_u32 v9, v9\nv_mul_f32 v9, 0x41800000, v9\nv_add_f32 v8, 0x41000000, v9")
    A("PARAMWAIT")
    ZR, ZI = 204, 206
    for pg in range(2):
        lr, li, dt, t = PRM+3*pg, PRM+1+3*pg, PRM+2+3*pg, 197
        A(f"v_lshlrev_b32 v{lr}, 16, v{lr}\nv_lshlrev_b32 v{li}, 16, v{li}\nv_lshlrev_b32 v{dt}, 16, v{dt}")
        A(f"v_mul_f32 v{dt}, 0x3fb8aa3b, v{dt}\nv_exp_f32 v{dt}, v{dt}")
        A(f"v_cvt_pk_bf16_f32 v{dt}, v{dt}, v{dt}\nv_lshlrev_b32 v{dt}, 16, v{dt}")
        A(f"v_mul_f32 v{ZR+pg}, v{dt}, v{lr}\nv_mul_f32 v{ZI+pg}, v{dt}, v{li}")
        A(f"v_mul_f32 v{ZR+pg}, 0x3fb8aa3b, v{ZR+pg}\nv_mul_f32 v{ZI+pg}, 0.15915494, v{ZI+pg}")
        cpow(A, LAM(pg), ZR+pg, ZI+pg, 1.0, t)
        A(f"v_add_f32 v{t}, -1.0, v{LAM(pg)}")
        A(f"v_mul_f32 v{t+1}, v{lr}, v{lr}\nv_fma_f32 v{t+1}, v{li}, v{li}, v{t+1}\nv_rcp_f32 v{t+1}, v{t+1}")
        A(f"v_add_f32 v{t+1}, v{t+1}, v{t+1}")
        A(f"v_mul_f32 v{t+2}, v{t}, v{lr}\nv_fma_f32 v{t+2}, v{LAM(pg)+1}, v{li}, v{t+2}\nv_mul_f32 v{KC(pg)}, v{t+2}, v{t+1}")
        A(f"v_mul_f32 v{t+2}, v{LAM(pg)+1}, v{lr}\nv_fma_f32 v{t+2}, -v{t}, v{li}, v{t+2}\nv_mul_f32 v{KC(pg)+1}, v{t+2}, v{t+1}")
        cpow(A, L8(pg), ZR+pg, ZI+pg, 8.0, t)
        cpow(A, L16(pg), ZR+pg, ZI+pg, 16.0, t)
        for e in range(2):
            cpow(A, 200, ZR+pg, ZI+pg, f"v{9-e}", t)
            A(f"v_mov_b32 v{PP(pg)+e}, v200\nv_mov_b32 v{PP(pg)+2+e}, v201")
        for idx in range(8):
            sr, si = (KC(pg), KC(pg)+1) if idx == 0 else (PW(pg, idx-1), PW(pg, idx-1)+1)
            A(f"v_mul_f32 v{t}, v{si}, v{LAM(pg)+1}\nv_mul_f32 v{t+1}, v{si}, v{LAM(pg)}")
            A(f"v_fma_f32 v{PW(pg,idx)}, v{sr}, v{LAM(pg)}, -v{t}\nv_fma_f32 v{PW(pg,idx)+1}, v{sr}, v{LAM(pg)+1}, v{t+1}")
    A(f"v_and_b32 v197, 16, v1\nv_cmp_ne_u32 vcc, 0, v197\nv_cndmask_b32 v{ZR}, v{ZR}, v{ZR+1}, vcc\nv_cndmask_b32 v{ZI}, v{ZI}, v{ZI+1}, vcc")
    for d, n in ((Q16, 16.0), (Q64, 64.0), (Q128, 128.0), (Q256, 256.0)):
        cpow(A, d, ZR, ZI, n, 197)

    deferred, A = A.lines, Areal
    pw = deferred.index("PARAMWAIT")
    for l in deferred[:pw]:
        A(l)
    deferred = deferred[pw+1:]
    npre = 8
    if P1 == 0:
        for n in range(8):
            piece(1, n)
        npre = 16
    A(f"s_waitcnt vmcnt({npre})")
    rest = [(k, n) for k in range(npre//8, NPRE) for n in range(8)]
    lo, hi = int(len(deferred)*P2A/100), int(len(deferred)*P2B/100)
    at = [lo + (hi - lo)*q//max(1, len(rest)) for q in range(len(rest))]
    for i, l in enumerate(deferred):
        while at and at[0] <= i and l.startswith("v_") and not l.startswith("v_cnd"):
            at.pop(0)
            piece(*rest.pop(0))
        A(l)
    for r_ in rest:
        piece(*r_)
    deferred = []
    order = [0, 4, 5, 6, 7, 1, 2, 3]
    need = {0: 2, 1: 3, 2: 4, 3: 5, 4: 6, 8: 7, 12: 8}

    def rd(k, k2, f):
        slot = k % NS
        st, off = slot >> 1, (slot & 1)*32768
        A(f"ds_read_b128 {v(FR(k2, f), 4)}, v{AD(st, f >> 2, k2)} offset:{off + (f & 3)*2048}")
    trace_init(A, 0)
    trace(A, 0, 0)
    A(f"s_setprio {GPRIO}")
    RING = 32

    def ring_arrive(k):
        A(f"v_mov_b32 v14, {k+1}") if False else None
        A(f"v_mov_b32 v197, {k+1}")
        A(f"s_mov_b64 exec, 1\nds_write_b32 v13, v197 offset:{RING}\ns_mov_b64 exec, -1")

    def ring_read():
        A(f"ds_read_b128 v[198:201], v12 offset:{RING}")

    def ring_check(k):
        l, d = uid("rk"), uid("rkd")
        A.label(l)
        A("v_min3_u32 v197, v198, v199, v200\nv_min_u32 v197, v197, v201")
        A(f"v_readfirstlane_b32 s{T0}, v197")
        A(f"s_cmp_ge_u32 s{T0}, {k+1}")
        A(f"s_cbranch_scc1 {d}")
        ring_read()
        A(f"s_waitcnt lgkmcnt(0)\ns_branch {l}")
        A.label(d)
    vm1.wait_for(("st", 0))
    ring_arrive(0)
    ring_read()
    A("s_waitcnt lgkmcnt(0)")
    ring_check(0)
    trace(A, 0, 1)
    for f in order:
        rd(0, 0, f)
    dslots = [int(x) for x in DMAP.split(",")]
    pend = [(k, n) for k in range(NPRE, 16) for n in range(8)]
    for k in range(16):
        for k2 in range(2):
            nk, nk2 = (k, 1) if k2 == 0 else (k+1, 0)
            have = nk < 16
            if k == 13 and k2 == 0:
                assert not deferred, len(deferred)
                vm1.op(f"v_mov_b32 v8, 0\nglobal_load_dword v9, v8, {sp(DBG)} sc1", "nonce")
            n = 0
            for m in range(16):
                if k2 == 0 and m in need and m < FM:
                    A(f"s_waitcnt lgkmcnt({8 - need[m] + n})")
                if k2 == 0 and m == FM:
                    if k + 1 < 16:
                        w = vm1.wait_for(("st", k+1), emit=False)
                        A(f"s_waitcnt vmcnt({w}) lgkmcnt(0)")
                        ring_arrive(k+1)
                    else:
                        A("s_waitcnt lgkmcnt(0)")
                if k2 == 1 and m == 0 and have:
                    ring_read()
                if k2 == 1 and m == CM and have:
                    A("s_waitcnt lgkmcnt(0)")
                    ring_check(k+1)
                mt, nt = m >> 2, m & 3
                if "m" not in G1X or k + k2 == 0:
                    A(f"{M16} {v(ACC(mt,nt),4)}, {v(FR(k2,mt),4)}, {v(FR(k2,4+nt),4)}, {'0' if k + k2 == 0 else v(ACC(mt,nt),4)}")
                if have and n < 8 and (k2 == 0 or m >= CM):
                    if "r" not in G1X:
                        rd(nk, nk2, order[n])
                    n += 1
                elif k >= 1:
                    for _ in range(DEFER):
                        if deferred:
                            A(deferred.pop(0))
                for q, ds in enumerate(dslots):
                    kk, mm = (k, ds) if ds < 16 else ((k - 1, ds) if k2 == 0 else (k - 1, ds - 16))
                    pos = m if (k2 == 1 and ds < 16) else (m + 16 if k2 == 0 else m + 32)
                    if k2 == 1 and ds < 16:
                        hit, kk = (m == ds), k
                    elif k2 == 0:
                        hit, kk = (16 <= ds < 32 and m + 16 == ds), k - 1
                    else:
                        hit, kk = (ds >= 32 and m + 32 == ds), k - 1
                    if k2 == 1 and ds >= 32:
                        hit, kk = (m + 32 == ds), k - 1
                    if hit and kk >= 0 and kk + NS < 16 and kk + NS >= NPRE:
                        assert pend[0] == (kk + NS, q), (pend[0], kk, q)
                        piece(*pend.pop(0))
            if k == 15 and k2 == 0:
                nl, ng = uid("n"), uid("ng")
                A.label(nl)
                A(f"s_waitcnt vmcnt(0)\nv_readfirstlane_b32 s{NONCE}, v9\ns_cmp_lg_u32 s{NONCE}, 0\ns_cbranch_scc1 {ng}")
                A(f"global_load_dword v9, v8, {sp(DBG)} sc1\ns_branch {nl}")
                A.label(ng)
                A(f"s_getreg_b32 s{T0}, hwreg(HW_REG_XCC_ID, 0, 4)\ns_lshl_b32 s{T1}, s{NONCE}, 4\ns_or_b32 s{LOCAL}, s{T0}, s{T1}")
                A(f"v_mov_b32 v194, s{LOCAL}\nv_mov_b32 v202, s{NONCE}\nv_mov_b32 v203, s{NONCE}")
            if TRACE == 2 and k2 == 1:
                trace(A, 0, 40 + k)
    assert not pend, pend
    mark(A, 1)
    trace(A, 0, 2)
    bc_a = "op_sel_hi:[0,1,1]"
    bc_b = "op_sel:[1,0,0]"
    TT = 40
    for idx in range(1, 8):
        for half in range(2):
            for pg in range(2):
                L, t = v(LAM(pg), 2), TT + 4*pg
                pr, pi, ur, ui = (v(x, 2) for x in (U(pg, 0, idx-1), U(pg, 1, idx-1), U(pg, 0, idx), U(pg, 1, idx)))
                if half == 0:
                    A(f"v_pk_fma_f32 {v(t,2)}, {L}, {pr}, {ur} {bc_a}\nv_pk_fma_f32 {v(t+2,2)}, {L}, {pi}, {ui} {bc_a}")
                else:
                    A(f"v_pk_fma_f32 {ur}, {L}, {pi}, {v(t,2)} {bc_b} {N0}\nv_pk_fma_f32 {ui}, {L}, {pr}, {v(t+2,2)} {bc_b}")
    for pg in range(2):
        er, ei = U(pg, 0, 7), U(pg, 1, 7)
        horner(A, 32+2*pg, 33+2*pg, L8(pg), er, ei, er+1, ei+1, TT)
        A(f"ds_write_b64 v15, {v(32+2*pg,2)} offset:{16*XRW*pg}")
    trace(A, 0, 3)
    A("s_waitcnt lgkmcnt(0)")
    ring_arrive(16)
    ring_read()
    A("s_waitcnt lgkmcnt(0)")
    ring_check(16)
    trace(A, 0, 4)
    SG = 48
    A(f"ds_read_b128 {v(SG,4)}, v14\nds_read_b128 {v(SG+4,4)}, v14 offset:16")
    P = 200
    A("s_waitcnt lgkmcnt(1)")
    horner(A, 32, 33, Q16, SG, SG+1, SG+2, SG+3, TT)
    A("s_waitcnt lgkmcnt(0)")
    horner(A, 34, 35, Q16, 32, 33, SG+4, SG+5, TT)
    horner(A, 32, 33, Q16, 34, 35, SG+6, SG+7, TT)
    A("v_mov_b32 v34, v32\nv_mov_b32 v35, v33\nv_permlane32_swap_b32 v32, v34\nv_permlane32_swap_b32 v33, v35")
    horner(A, P, P+1, Q64, 32, 33, 34, 35, TT)
    np_ = uid("np")
    A(f"s_cmp_lg_u32 s{WT_}, 0")
    A(f"s_cbranch_scc1 {np_}")
    A(f"buffer_store_dwordx4 {v(P,4)}, v16, {r4(S0)}, 0 offen sc1")
    A(f"s_cmp_lg_u32 s{WP}, 0")
    A(f"s_cbranch_scc1 {np_}")
    A(f"s_mov_b64 exec, 1\nglobal_store_dword v195, v194, {sp(WS)} sc1\ns_mov_b64 exec, -1")
    A.label(np_)
    mark(A, 2)
    trace(A, 0, 5)
    A(f"global_load_dword v243, v18, {sp(WS)} sc1")
    LB = 144

    def lbloads():
        for u in range(8):
            A(f"buffer_load_dwordx4 {v(LB+4*u,4)}, v{136+u}, {r4(S0)}, 0 offen sc1")
        A(f"global_load_dword v197, v196, {sp(WS)} sc1")
    QS = 32
    A("v_add_u32 v15, -56, v15")
    for pg in range(2):
        for w in range(7):
            A(f"ds_read_b64 {v(QS+14*pg+2*w,2)}, v15 offset:{16*XRW*pg + 8*w}")
    QQ = lambda pg: 128 + 4*pg
    TQ = 60
    A("s_waitcnt lgkmcnt(0)")
    for pg in range(2):
        b = QS + 14*pg
        for w in range(1, 6):
            horner(A, b+2*w, b+2*w+1, L16(pg), b+2*w-2, b+2*w-1, b+2*w, b+2*w+1, TQ)
        horner(A, QQ(pg), QQ(pg)+2, L16(pg), b+10, b+11, b+12, b+13, TQ)
        horner(A, QQ(pg)+1, QQ(pg)+3, L8(pg), QQ(pg), QQ(pg)+2, U(pg, 0, 7), U(pg, 1, 7), TQ)
    trace(A, 0, 6)
    O = 32
    cnt = 0
    if LBAT == 0:
        lbloads()
    for idx in range(8):
        for pg in range(2):
            d0, d1, K_, o = v(U(pg, 0, idx), 2), v(U(pg, 1, idx), 2), v(KC(pg), 2), O + 4*pg
            A(f"v_pk_mul_f32 {v(o,2)}, {K_}, {d0} op_sel_hi:[0,1]")
            A(f"v_pk_mul_f32 {v(o+2,2)}, {K_}, {d1} op_sel_hi:[0,1] neg_lo:[1,0] neg_hi:[1,0]")
            A(f"v_pk_fma_f32 {v(o+2,2)}, {K_}, {d0}, {v(o+2,2)} {bc_b} {N0}")
            A(f"v_pk_fma_f32 {d0}, {K_}, {d1}, {v(o,2)} {bc_b} {N0}")
            A(f"v_mov_b64 {d1}, {v(o+2,2)}")
            cnt += 1
            if cnt == LBAT:
                lbloads()
    trace(A, 0, 7)
    A("v_mov_b32 v14, 1\ns_mov_b64 exec, 1\nds_write_b32 v13, v14\ns_mov_b64 exec, -1")
    M0B, RH, RCc, SH, SC = T7, T5, T4, T3, T2
    ACC2 = lambda nt: 32 + 16*nt
    CF = lambda X, nt: 96 + 16*X + 4*nt
    XR, CV = 128, 244
    HR = lambda s_: 148 + 4*(s_ % HD)
    L_OWN = 65536
    A(f"s_xor_b32 s{T0}, s{WT_}, s{PG}\ns_xor_b32 s{T0}, s{T0}, 1\ns_lshl_b32 s{T0}, s{T0}, 6\ns_add_u32 s{T0}, s{T0}, s{WP}")
    A(f"v_lshrrev_b32 v8, 3, v1\nv_lshl_add_u32 v8, v8, 1, s{T0}\nv_lshlrev_b32 v8, 11, v8")
    A("v_and_b32 v14, 7, v1\nv_lshrrev_b32 v15, 4, v1\nv_xor_b32 v14, v14, v15\nv_lshlrev_b32 v14, 4, v14\nv_xor_b32 v15, 64, v14")
    for u in range(4):
        A(f"v_add_u32 v{CV+u}, v8, v{14 + (u & 1)}")
        if u:
            A(f"v_add_u32 v{CV+u}, {u*(16*2048 - 1024)}, v{CV+u}")
    A(f"s_and_b32 s{RCc}, s{TJ}, 7\ns_lshl_b32 s{T0}, s{RCc}, 18\ns_lshl_b32 s{T1}, s{PG}, 10\ns_add_u32 s{T0}, s{T0}, s{T1}")
    srd(A, S2, CRE, T0, 0, 0x40000, T1)
    srd(A, S3, CIM, T0, 0, 0x40000, T1)
    A(f"s_lshl_b32 s{T1}, s{RCc}, 1\ns_add_u32 s{T1}, s{T1}, s{PG}\ns_lshl_b32 s{T1}, s{T1}, 7")
    A(f"s_lshl_b32 s{SH}, s{TI}, 1\ns_add_u32 s{SH}, s{SH}, s{WT_}\ns_lshl_b32 s{T0}, s{SH}, 17\ns_add_u32 s{T0}, s{T0}, s{T1}")
    srd(A, S4, BX, T0, 0, 0x20000, T1)
    A(f"s_add_u32 s{DSK}, s{DSK}, s{T1}\ns_addc_u32 s{DSK+1}, s{DSK+1}, 0")
    A(f"s_lshl_b32 s{T1}, s{T1}, 1\ns_add_u32 s{T1}, s{T1}, 4096\ns_lshl_b32 s{T0}, s{SH}, 19\ns_add_u32 s{T0}, s{T0}, s{T1}")
    A(f"s_add_u32 s{OUT}, s{OUT}, s{T0}\ns_addc_u32 s{OUT+1}, s{OUT+1}, 0\ns_sub_u32 s{LDT}, 0x80000, s{T1}")
    A(f"s_lshl_b32 s{M0B}, s{WAVE}, 12\ns_lshl_b32 s{RH}, s{RCc}, 13\ns_lshl_b32 s{RCc}, s{RCc}, 7")
    A(f"s_lshl_b32 s{T0}, s{WT_}, 14\ns_lshl_b32 s{T1}, s{WP}, 11\ns_add_u32 s{T0}, s{T0}, s{T1}\ns_add_u32 s{T0}, s{T0}, {L_OWN}\nv_add_u32 v16, s{T0}, v10")
    A(f"s_lshl_b32 s{T0}, s{WAVE}, 13\ns_add_u32 s{T0}, s{T0}, {L_OWN}\nv_add_u32 v17, s{T0}, v11")
    for ks in range(4):
        A(f"v_xor_b32 v{20+ks}, {ks << 5}, v7\nv_add_u32 v{24+ks}, 0x10000, v{20+ks}")
    HB = LIM
    A(f"s_mul_i32 s{HB}, s{SH}, {2*TBS}\ns_lshl_b32 s{T1}, s{TJ}, 13\ns_add_u32 s{HB}, s{HB}, s{T1}\ns_lshl_b32 s{T1}, s{WP}, 11\ns_add_u32 s{HB}, s{HB}, s{T1}")
    for u in range(8):
        A(f"v_cmp_gt_u32 vcc, 0x40000, v{136+u}\nv_cndmask_b32 v{40+u}, 0, v202, vcc")
    A(f"s_mov_b32 s{T9}, 0")
    trace(A, 0, 8)
    pl, pd = uid("poll"), uid("polled")
    A.label(pl)
    A("v_mov_b32 v8, 0")
    for u in range(8):
        A(f"s_waitcnt vmcnt({8-u})")
        A(f"v_bitop3_b32 v8, v8, v{LB+4*u+2}, v{40+u} bitop3:0xf6\nv_bitop3_b32 v8, v8, v{LB+4*u+3}, v{40+u} bitop3:0xf6")
    A("s_waitcnt vmcnt(0)\nv_xor_b32 v197, v194, v197\nv_lshrrev_b32 v9, 4, v197\nv_or_b32 v8, v8, v9\nv_cmp_ne_u32 vcc, 0, v8")
    A(f"s_cbranch_vccz {pd}")
    A(f"s_add_u32 s{T9}, s{T9}, 1\ns_cmp_ge_u32 s{T9}, {SPIN_MAX}")
    A(f"s_cbranch_scc1 {pd}")
    lbloads()
    A(f"s_branch {pl}")
    A.label(pd)
    A(f"v_cmp_ne_u32 vcc, 0, v197\ns_cmp_eq_u64 vcc, 0\ns_cselect_b32 s{LOCAL}, {0 if FORCE_REMOTE else 1}, 0")
    mark(A, 3)
    trace(A, 0, 9)
    if TRACE:
        A(f"v_writelane_b32 v0, s{T9}, 63")
    vm = VmCounter(A)

    def cdma(g, us):
        for u in us:
            if u == 0:
                A(f"s_add_u32 m0, s{M0B}, {(g % R)*16384}")
                if g % 2 == 0:
                    A(f"s_add_u32 s{SC}, s{RCc}, {(g >> 1)*128}\ns_and_b32 s{SC}, s{SC}, 0x3ff")
            vm.op(f"buffer_load_dwordx4 v{CV+u}, {r4(S2 if g % 2 == 0 else S3)}, s{SC} offen offset:{u*1024}{NTC} lds", ("c", g))
    cdma(0, range(4))
    cdma(1, range(4))
    A("v_mov_b32 v14, 2\ns_mov_b64 exec, 1\nds_write_b32 v13, v14\ns_mov_b64 exec, -1")
    H0 = LB + 28
    cur = (H0, H0+1)
    for u in range(6, -1, -1):
        d = (48, 49) if cur[0] == H0 else (H0, H0+1)
        horner(A, d[0], d[1], Q256, cur[0], cur[1], LB+4*u, LB+4*u+1, TT)
        cur = d
    assert cur == (48, 49)
    A("v_mov_b32 v50, v48\nv_mov_b32 v51, v49\nv_permlane32_swap_b32 v48, v50\nv_permlane32_swap_b32 v49, v51")
    horner(A, 52, 53, Q128, 50, 51, 48, 49, TT)
    A("v_mov_b32 v54, v52\nv_mov_b32 v55, v53\nv_permlane16_swap_b32 v52, v54\nv_permlane16_swap_b32 v53, v55")
    trace(A, 0, 10)
    G = lambda pg: QQ(pg)
    for pg in range(2):
        Hh, gr, gi, pr, pi = v(52+2*pg, 2), v(G(pg), 2), v(G(pg)+2, 2), v(PP(pg), 2), v(PP(pg)+2, 2)
        A(f"v_pk_fma_f32 {gr}, {Hh}, {pr}, {gr} {bc_a}\nv_pk_fma_f32 {gi}, {Hh}, {pi}, {gi} {bc_a}")
        A(f"v_pk_fma_f32 {gr}, {Hh}, {pi}, {gr} {bc_b} {N0}\nv_pk_fma_f32 {gi}, {Hh}, {pr}, {gi} {bc_b}")
    PK = lambda pg, c, idx: 144 + (pg*2 + c)*8 + idx
    D = lambda c, X, pg: 32 + ((c*2 + X)*2 + pg)*4

    def fix(pg, idx):
        d0, d1, pw, gr, gi = v(U(pg, 0, idx), 2), v(U(pg, 1, idx), 2), v(PW(pg, idx), 2), v(G(pg), 2), v(G(pg)+2, 2)
        A(f"v_pk_fma_f32 {d0}, {pw}, {gr}, {d0} {bc_a}")
        A(f"v_pk_fma_f32 {d1}, {pw}, {gi}, {d1} {bc_a} {N0}")
        A(f"v_pk_fma_f32 {d0}, {pw}, {gi}, {d0} {bc_b} {N0}")
        A(f"v_pk_fma_f32 {d1}, {pw}, {gr}, {d1} {bc_b} {N0}")
        for c in range(2):
            A(f"v_cvt_pk_bf16_f32 v{PK(pg,c,idx)}, v{U(pg,c,idx)}, v{U(pg,c,idx)+1}")

    def tr(u):
        for c in range(2):
            for X in range(2):
                for pg in range(2):
                    A(f"{M16} {v(D(c,X,pg),4)}, {v(PK(pg,c,4*u),4)}, {v(248+4*X,4)}, 0")

    def st(u):
        for c in range(2):
            for X in range(2):
                q = 176 + 16*u + (c*2 + X)*4
                A(f"s_add_u32 s{T1}, s{HB}, {X*TBS + c*4096}")
                for jj in range(4):
                    A(f"v_cvt_pk_bf16_f32 v{q+jj}, v{D(c,X,0)+2*jj}, v{D(c,X,0)+2*jj+1}")
                vm.op(f"buffer_store_dwordx4 {v(q,4)}, v10, {r4(S1)}, s{T1} offen offset:{u*256} sc1", "hst")
                A(f"ds_write_b128 v16, {v(q,4)} offset:{X*8192 + c*4096 + u*256}")
    for u in range(2):
        for idx in range(4*u, 4*u + 4):
            for pg in range(2):
                fix(pg, idx)
            if u == 1 and idx == 5:
                st(0)
                trace(A, 0, 12)
        tr(u)
        if u == 0:
            trace(A, 0, 11)
    st(1)
    mark(A, 4)
    trace(A, 0, 13)
    NK = 64

    def arrive(val):
        A(f"v_mov_b32 v14, {val}")
        A("s_mov_b64 exec, 1\nds_write_b32 v13, v14\ns_mov_b64 exec, -1")

    def check(val, off=0, first=False):
        l, d = uid("ck"), uid("ckd")
        if first:
            A(f"ds_read_b128 v[8:11], v12 offset:{off}\ns_waitcnt lgkmcnt(0)")
        A.label(l)
        A("v_min3_u32 v15, v8, v9, v10\nv_min_u32 v15, v15, v11")
        A(f"v_readfirstlane_b32 s{T0}, v15")
        A(f"s_cmp_ge_u32 s{T0}, {val}")
        A(f"s_cbranch_scc1 {d}")
        A(f"ds_read_b128 v[8:11], v12 offset:{off}\ns_waitcnt lgkmcnt(0)")
        A(f"s_branch {l}")
        A.label(d)

    def hload(s_):
        if s_ % 4 == 0:
            A(f"s_add_u32 s{SH}, s{RH}, {(s_ >> 2)*4096}\ns_and_b32 s{SH}, s{SH}, 0xffff")
        vm.op(f"buffer_load_dwordx4 {v(HR(s_),4)}, v2, {r4(S0)}, s{SH} offen offset:{(s_ & 3)*1024} sc1", ("h", s_))

    def rd2(s_, nts):
        g, ks = s_ >> 2, s_ & 3
        slot = g % R
        base = 20 if slot < 4 else 24
        for nt in nts:
            A(f"ds_read_b128 {v(CF(s_ & 1, nt),4)}, v{base+ks} offset:{(slot & 3)*16384 + nt*4096}")

    def mf(s_, nt):
        c = "0" if s_ == 0 else v(ACC2(nt), 16)
        if E_("HACK16", 0) & 2:
            for z in range(2):
                d = ACC2(nt) + 8*(s_ & 1) + 4*z
                A(f"v_mfma_f32_16x16x32_bf16 {v(d,4)}, {v(HR(s_),4)}, {v(CF(s_ & 1, nt),4)}, {'0' if s_ < 2 else v(d,4)}")
        else:
            A(f"{MF} {v(ACC2(nt),16)}, {v(HR(s_),4)}, {v(CF(s_ & 1, nt),4)}, {c}")
    A("v_mov_b32 v2, v11")
    A(f"s_lshl_b32 s{T0}, s{TI}, 2\ns_add_u32 s{T0}, s{T0}, s{WAVE}\ns_mul_i32 s{T0}, s{T0}, {TBS}\ns_lshl_b32 s{T1}, s{PG}, 16\ns_add_u32 s{T0}, s{T0}, s{T1}")
    srd(A, S0, WS, T0, WS_HT, 0x10000)
    if not OWNFIRST and C23:
        cdma(2, range(4))
        cdma(3, range(4))
    A(f"s_waitcnt vmcnt({vm.wait_for(('c', 1), emit=False)}) lgkmcnt(0)")
    trace(A, 0, 14)
    arrive(3)
    check(3, first=True)
    trace(A, 0, 15)
    for s_ in range(8):
        A(f"ds_read_b128 {v(HR(s_),4)}, v17 offset:{s_*1024}")
    hn = [8]

    def pause():
        A(f"s_lshl_b32 s{T0}, s{WP}, 3\nv_lshl_add_u32 v17, v5, 4, s{T0}")
        A("v_lshlrev_b32 v28, 11, v17\nv_lshl_add_u32 v28, v6, 2, v28")
        A("v_lshlrev_b32 v29, 13, v17\nv_lshl_add_u32 v29, v6, 3, v29")
        A(f"v_lshlrev_b32 v30, 2, v6\nv_mov_b32 v15, s{NONCE}")
        a, b = uid("rs"), uid("rd")
        trace(A, 0, 16)
        vm.wait_for("hst")
        trace(A, 0, 17)
        A(f"s_mov_b64 exec, 1\ns_cmp_eq_u32 s{LOCAL}, 0\ns_cbranch_scc1 {a}")
        A(f"global_store_dword v19, v15, {sp(WS)}\ns_branch {b}")
        A.label(a)
        A(f"global_store_dword v19, v15, {sp(WS)} sc1")
        A.label(b)
        A("s_mov_b64 exec, -1")
        if not E_("GM", 0):
            mark(A, 5)
        check(4, first=True)
        if not NOAUX:
            check(LIMG_FREE, 16, first=True)
        if CTOUCH == 5:
            xtouch(1)
        if CTOUCH == 8:
            ctouch()
        for gg in range(4 if C23 else 2, CPOLL):
            cdma(gg, range(4))
        trace(A, 0, 18)
        wait_cnt(A, 18, 8, SLP_H)
        trace(A, 0, 19)
        vm.issued = []
        if not E_("GM", 0):
            mark(A, 6)
        if OWNFIRST:
            arrive(5)
        gg = max(4, CPOLL)
        while hn[0] < 8 + HPRE:
            hload(hn[0])
            hn[0] += 1
            if hn[0] % 4 == 0 and gg < CPRE:
                cdma(gg, range(4))
                gg += 1
        assert gg == CPRE
        if OWNFIRST:
            check(5, first=True)
        trace(A, 0, 20)
        rd2(8 if OWNFIRST else 0, range(4))

    def flag_store():
        a, b = uid("rs"), uid("rd")
        A(f"s_mov_b64 exec, 1\ns_cmp_eq_u32 s{LOCAL}, 0\ns_cbranch_scc1 {a}")
        A(f"global_store_dword v19, v15, {sp(WS)}\ns_branch {b}")
        A.label(a)
        vm.op(f"global_store_dword v19, v15, {sp(WS)} sc1", "flag")
        A.label(b)
        A("s_mov_b64 exec, -1")
    if HTAG:
        A("s_waitcnt lgkmcnt(0)")
        arrive(4)
        A(f"s_lshl_b32 s{T0}, s{WP}, 3\nv_lshl_add_u32 v17, v5, 4, s{T0}")
        A("v_lshlrev_b32 v28, 11, v17\nv_lshl_add_u32 v28, v6, 2, v28")
        A("v_lshlrev_b32 v29, 13, v17\nv_lshl_add_u32 v29, v6, 3, v29")
        A(f"v_lshlrev_b32 v30, 2, v6\nv_mov_b32 v15, s{NONCE}")
        if HTAG == 1:
            wl, wd = uid("hw"), uid("hwd")
            A(f"s_add_u32 s{T1}, s{RH}, 8192\ns_and_b32 s{T1}, s{T1}, 0xffff\ns_mov_b32 s{CNT}, 0\ns_waitcnt lgkmcnt(0)")
            A.label(wl)
            A(f"s_load_dwordx4 s[4:7], {sp(S0)}, s{T1} offset:{4096 + 1024 + 1008} glc\ns_load_dwordx4 s[8:11], {sp(S0)}, s{T1} offset:{4096 + 3072 + 1008} glc")
            A(f"s_add_u32 s{CNT}, s{CNT}, 1\ns_waitcnt lgkmcnt(0)")
            for q in range(2):
                A(f"s_xor_b64 s[{4+2*q}:{5+2*q}], s[{4+2*q}:{5+2*q}], s[{HT_+2*q}:{HT_+2*q+1}]\ns_xor_b64 s[{8+2*q}:{9+2*q}], s[{8+2*q}:{9+2*q}], s[{HT_+2*q}:{HT_+2*q+1}]")
            A("s_or_b64 s[4:5], s[4:5], s[6:7]\ns_or_b64 s[8:9], s[8:9], s[10:11]\ns_or_b64 s[4:5], s[4:5], s[8:9]\ns_or_b32 s4, s4, s5\ns_and_b32 s4, s4, 0x10001")
            A(f"s_cbranch_scc0 {wd}\ns_cmp_lt_u32 s{CNT}, {SPIN_MAX}\ns_cbranch_scc1 {wl}")
            A.label(wd)
        if HTAG == 3:
            vm.wait_for('hst')
            flag_store()
        if HTAG == 2 and HDLY:
            A(f"s_waitcnt vmcnt({vm.wait_for('hst', emit=False) + HDLY})")
        mark(A, 6)
        for s_ in range(8, 16):
            hload(s_)
        hn[0] = 16
        if HTAG != 3:
            vm.wait_for("hst")
            flag_store()
        if not E_("GM", 0):
            mark(A, 5)
        check(4, first=True)
        if not NOAUX:
            check(LIMG_FREE, 16, first=True)
        for gg in range(4, CPOLL):
            cdma(gg, range(4))
        rd2(0, range(4))
    elif OWNFIRST:
        rd2(0, range(4))
        A("s_waitcnt lgkmcnt(4)")
        arrive(4)
    else:
        A("s_waitcnt lgkmcnt(0)")
        arrive(4)
        pause()
    have_c = lambda g: any(t == ("c", g) for t in vm.issued)
    for s_ in range(NK):
        g, ks = s_ >> 2, s_ & 3
        nxt = s_ + 1
        more = nxt < NK and not (nxt == 8 and OWNFIRST)
        ws = []
        if s_ >= 8:
            ws.append(vm.wait_for(("h", s_), emit=False))
        arr = (s_ + 4) % 8 == 0 and s_ + 4 < NK and (s_ >= 8 or not OWNFIRST)
        if arr:
            gl = ((s_ + 4) >> 2) + 1
            if have_c(gl):
                ws.append(vm.wait_for(("c", gl), emit=False))
        wv = f"vmcnt({min(ws)}) " if ws else ""
        newgrp = more and nxt % 8 == 0
        full = newgrp or not more or s_ == 0
        nc = 2 if s_ >= NK - NDEF else 4
        nn = (2 if nxt >= NK - NDEF else 4) if more else 0
        if full:
            A(f"s_waitcnt {wv}lgkmcnt(0)")
            if newgrp:
                check((nxt >> 3) + 4)
                trace(A, 0, 20 + (nxt >> 3))
                if nxt == 32 and not E_('GM', 0):
                    mark(A, 7)
        else:
            A(f"s_waitcnt {wv}lgkmcnt({nc-1})")
        extra = 0
        if arr:
            arrive(((s_ + 4) >> 3) + 4)
            extra = 1
        issued_n = 0
        for nt in range(nc):
            if nt and not full:
                A(f"s_waitcnt lgkmcnt({nc - 1 - nt + extra + issued_n})")
            mf(s_, nt)
            if nt < 2 and issued_n < nn and (nt == 0 or nn == 4):
                rd2(nxt, [issued_n, issued_n + 1])
                issued_n += 2
            if nt == nc - 2:
                if s_ < 8 and OWNFIRST:
                    if C23:
                        cdma(2 + g, [ks])
                elif CPRE <= g + CD < NK//4:
                    cdma(g + CD, [ks])
        assert issued_n == nn
        if HTAG:
            if s_ < 4*(CPRE - CPOLL):
                cdma(CPOLL + g, [ks])
            if s_ == 6:
                tl, td = uid("ht"), uid("htd")
                A(f"s_mov_b32 s{CNT}, 0")
                vm.wait_for(("h", 15))
                A.label(tl)
                A("v_mov_b32 v4, 0")
                for r in range(32):
                    A(f"v_bitop3_b32 v4, v4, v{HR(8)+r}, s{HT_+(r & 3)} bitop3:0xf6")
                A(f"v_and_b32 v4, 0x10001, v4\nv_cmp_ne_u32 vcc, 0, v4\ns_cbranch_vccz {td}")
                A(f"s_add_u32 s{CNT}, s{CNT}, 1\ns_cmp_ge_u32 s{CNT}, {SPIN_MAX}\ns_cbranch_scc1 {td}")
                keep = list(vm.issued)
                for s2_ in range(8, 16):
                    hload(s2_)
                vm.issued = keep
                A(f"s_waitcnt vmcnt(0)\ns_branch {tl}")
                A.label(td)
                if STAMP == 1:
                    A(f"s_add_u32 s72, s70, s{CNT}")
            if s_ == HFI:
                vm.op(f"global_load_dword v16, v18, {sp(WS)} sc1", "fp")
            if s_ == HFC:
                fd = uid("hf")
                vm.wait_for("fp")
                A(f"v_cmp_ne_u32 vcc, s{NONCE}, v16\ns_cbranch_vccz {fd}")
                wait_cnt(A, 18, 16, 1)
                A.label(fd)
        if (s_ >= (HFC if HTAG else 8) or not (OWNFIRST or HTAG)) and hn[0] < NK:
            for _ in range(3 if HTAG else 2):
                if hn[0] < NK and hn[0] <= s_ + HD:
                    hload(hn[0])
                    hn[0] += 1
        if (s_ + 2) % 8 == 0 and s_ + 2 < NK and (s_ >= 8 or not OWNFIRST):
            A("ds_read_b128 v[8:11], v12")
        if s_ == NK - 18:
            vm.op(f"global_load_dword v31, v30, {sp(DSK)}", "dsk")
        if NK - 17 <= s_ < NK - 1:
            e = s_ - (NK - 17)
            q, r = e >> 2, e & 3
            A(f"s_mov_b32 s{T0}, {(32*(q & 1) + 4*(q >> 1) + (r & 2))*2048}")
            vm.op(f"buffer_load_dword v{XR+e}, v28, {r4(S4)}, s{T0} offen offset:{(r & 1)*2048}", ("x", e))
        if s_ == 7 and OWNFIRST:
            pause()
    mark(A, 8)
    trace(A, 0, 28)
    TG = T0
    A(f"s_mul_i32 s{TG}, s{NONCE}, 0x9e3779b1\ns_and_b32 s{TG}, s{TG}, 0xbfff0000\ns_or_b32 s{TG}, s{TG}, 0x20000000")
    A(f"s_sub_u32 s{T1}, s{NONCE}, 1\ns_xor_b32 s{T1}, s{T1}, s{TG}\ns_cmp_lt_u32 s{T1}, 0x10000\ns_cselect_b32 s{T1}, 0x10000, 0\ns_xor_b32 s{TG}, s{TG}, s{T1}")
    if INOUT:
        A(f"s_lshl_b32 s{T4}, s{PG}, 9\ns_sub_i32 s{T4}, 256, s{T4}\ns_ashr_i32 s{T5}, s{T4}, 31")
        A(f"s_add_u32 s{S2}, s{OUT}, s{T4}\ns_addc_u32 s{S2+1}, s{OUT+1}, s{T5}\ns_sub_u32 s{S2+2}, s{LDT}, s{T4}\ns_mov_b32 s{S2+3}, 0x20000")
        A(f"s_mov_b32 s{S3}, s{OUT}\ns_mov_b32 s{S3+1}, s{OUT+1}\ns_mov_b32 s{S3+2}, s{LDT}\ns_mov_b32 s{S3+3}, 0x20000")
        A(f"s_lshl_b32 s{T4}, s{WP}, 16\nv_lshrrev_b32 v3, 4, v1\nv_lshlrev_b32 v3, 13, v3\nv_and_b32 v4, 15, v1\nv_lshl_add_u32 v3, v4, 4, v3\nv_add_u32 v3, s{T4}, v3")
        xad = lambda gq: (f"s_mov_b32 s{T4}, {(16*(gq >> 1) + 4*(gq & 1))*8192}\n", f"v3, SRD, s{T4} offen")
    else:
        A(f"s_lshl_b32 s{T4}, s{TI}, 4\ns_add_u32 s{T4}, s{T4}, s{TJ}\ns_lshl_b32 s{T4}, s{T4}, 2\ns_add_u32 s{T4}, s{T4}, s{WAVE}\ns_lshl_b32 s{T4}, s{T4}, 13")
        srd(A, S2, WS, T4, WS_XB, 0x2000)
        A(f"s_xor_b32 s{T4}, s{T4}, {8 << 15}")
        srd(A, S3, WS, T4, WS_XB, 0x2000)
        A(f"s_movk_i32 s{T4}, 0x1000")
        xad = lambda gq: ("", f"v2, SRD, {'0' if gq < 4 else f's{T4}'} offen offset:{(gq & 3)*1024}")
    val = lambda n: ACC2(n & 1) + (n >> 1)
    TXR, RX = [96, 100, 244, 248, 252], 180
    for gq in range(5):
        for c in range(4):
            n = 7*gq + 2*c
            lo = f"v{val(min(n, 31))}"
            hi = f"s{TG}" if c == 3 else f"v{val(min(n+1, 31))}"
            A(f"v_cvt_pk_bf16_f32 v{TXR[gq]+c}, {lo}, {hi}")
        A(f"{xad(gq)[0]}buffer_store_dwordx4 {v(TXR[gq],4)}, {xad(gq)[1].replace('SRD', r4(S2))} sc1")

    def rx():
        for gq in range(5):
            A(f"{xad(gq)[0]}buffer_load_dwordx4 {v(RX+4*gq,4)}, {xad(gq)[1].replace('SRD', r4(S3))} sc1")
    if NDEF:
        rd2(NK - NDEF, [2, 3])
        for s_ in range(NK - NDEF, NK):
            if s_ + 1 < NK:
                rd2(s_ + 1, [2, 3])
                A("s_waitcnt lgkmcnt(2)")
            else:
                A("s_waitcnt lgkmcnt(0)")
            mf(s_, 2)
            mf(s_, 3)
    trace(A, 0, 29)
    if E_("XM", 0):
        mark(A, 3)
    A("s_waitcnt vmcnt(5)")
    if E_("XM", 0):
        mark(A, 5)
    trace(A, 0, 30)
    A("v_lshlrev_b32 v8, 16, v31\nv_and_b32 v9, 0xffff0000, v31")
    YO = lambda e: 148 + 2*e
    for e in range(16):
        t = YO(e)
        A(f"v_lshlrev_b32 v{t}, 16, v{XR+e}\nv_and_b32 v{t+1}, 0xffff0000, v{XR+e}")
        A(f"v_pk_mul_f32 {v(t,2)}, {v(t,2)}, v[8:9]")
        A(f"v_cvt_pk_bf16_f32 v10, v{t}, v{t+1}")
        A(f"v_lshlrev_b32 v{t}, 16, v10\nv_and_b32 v{t+1}, 0xffff0000, v10")
        A(f"v_add_f32 v{t}, v{t}, v{ACC2(2)+e}\nv_add_f32 v{t+1}, v{t+1}, v{ACC2(3)+e}")
    A(f"s_mov_b32 s{S1}, s{OUT}\ns_mov_b32 s{S1+1}, s{OUT+1}\ns_mov_b32 s{S1+2}, s{LDT}\ns_mov_b32 s{S1+3}, 0x20000")
    xl, xd = uid("xl"), uid("xd")
    A(f"s_mov_b32 s{CNT}, 0")
    if XPOLL:
        assert not INOUT
        wl, wd = uid("xw"), uid("xwd")
        A.label(wl)
        A(f"s_load_dword s{T1}, {sp(S3)}, {0x1000 + 63*16 + 12} glc\ns_add_u32 s{CNT}, s{CNT}, 1\ns_waitcnt lgkmcnt(0)")
        A(f"s_xor_b32 s{T1}, s{T1}, s{TG}\ns_cmp_lt_u32 s{T1}, 0x10000\ns_cbranch_scc1 {wd}")
        A(f"s_cmp_lt_u32 s{CNT}, {SPIN_MAX}\ns_cbranch_scc1 {wl}")
        A.label(wd)
        A(f"s_mov_b32 s{CNT}, 0")
    trace(A, 0, 31)
    if XPOLL != 2:
        A(f"s_waitcnt vmcnt({E_('XW', 0)})")
    if E_("XM", 0):
        mark(A, 6)
    rx()
    A.label(xl)
    A("v_mov_b32 v10, 0")
    for gq in range(5):
        A(f"s_waitcnt vmcnt({4-gq})")
        A(f"v_bitop3_b32 v10, v10, v{RX+4*gq+3}, s{TG} bitop3:0xf6")
    A("v_cmp_lt_u32 vcc, 0xffff, v10")
    A(f"s_cbranch_vccz {xd}")
    A(f"s_add_u32 s{CNT}, s{CNT}, 1\ns_cmp_ge_u32 s{CNT}, {SPIN_MAX}")
    A(f"s_cbranch_scc1 {xd}")
    rx()
    A(f"s_branch {xl}")
    A.label(xd)
    trace(A, 0, 32)
    if STAMP:
        A(f"s_add_u32 s74, s70, s{CNT}\ns_lshl_b32 s{CNT}, s{LOCAL}, 8\ns_add_u32 s74, s74, s{CNT}")
        mark(A, 4)
    for e in range(16):
        q, r = e >> 2, e & 3
        t = YO(e)
        for nt in range(2):
            n = 2*e + nt
            src = RX + 4*(n // 7) + (n % 7)//2
            if (n % 7) % 2 == 0:
                A(f"v_lshlrev_b32 v{10+nt}, 16, v{src}")
            else:
                A(f"v_and_b32 v{10+nt}, 0xffff0000, v{src}")
        A(f"v_pk_add_f32 {v(t,2)}, {v(t,2)}, v[10:11]")
        A(f"s_mov_b32 s{T4}, {(32*(q & 1) + 4*(q >> 1) + r)*8192}")
        A(f"buffer_store_dwordx2 {v(t,2)}, v29, {r4(S1)}, s{T4} offen{OSTB}")
    trace(A, 0, 33)
    if TRACE:
        A("s_waitcnt vmcnt(0)")
    trace(A, 0, 34)
    trace_dump(A, 0, WAVE, 1)
    stamp_end(A, kidx, WAVE)


def gen_fused(A, name, kidx):
    A(f".globl {name}\n.p2align 8\n.type {name},@function")
    A.label(name)
    A("s_cmp_ge_u32 s2, 256")
    A(f"s_cbranch_scc1 L_{name}_end")
    A("s_load_dwordx16 s[4:19], s[0:1], 0")
    A("s_load_dwordx8 s[20:27], s[0:1], 64")
    A("s_load_dwordx4 s[28:31], s[0:1], 96")
    A("s_load_dwordx2 s[32:33], s[0:1], 112")
    stamp_begin(A)
    A("v_lshrrev_b32 v2, 6, v0\nv_and_b32 v1, 63, v0")
    A(f"v_readfirstlane_b32 s{WAVE}, v2")
    A(f"s_and_b32 s{T0}, s2, 7\ns_lshr_b32 s{T1}, s2, 3")
    A(f"s_lshr_b32 s{TI}, s{T0}, 1\ns_lshl_b32 s{TI}, s{TI}, 2\ns_lshr_b32 s{T2}, s{T1}, 3\ns_add_u32 s{TI}, s{TI}, s{T2}")
    A(f"s_and_b32 s{TJ}, s{T0}, 1\ns_lshl_b32 s{TJ}, s{TJ}, 3\ns_and_b32 s{T2}, s{T1}, 7\ns_add_u32 s{TJ}, s{TJ}, s{T2}")
    A(f"s_cmp_ge_u32 s{WAVE}, 4")
    A(f"s_cbranch_scc0 L_{name}_gemm")
    aux_waves(A, name, kidx)
    A.label(f"L_{name}_gemm")
    gemm_waves(A, name, kidx)
    A.label(f"L_{name}_end")
    A("s_endpgm")
    return kdesc(name, 256)
```

```python
import os
from asmlib import *
from common import *

E_ = lambda k, d: int(os.environ.get(k, str(d)))
XO, NP, RI, RJ = E_("XO", 0), E_("NP", 1), E_("RI", 1), E_("RJ", 1)
XO2, NP2 = E_("XO2", 2), E_("NP2", 1)
PRO = E_("PRO", 2)
HD = E_("HD", 24)
CD = E_("CD", 4)
NOAUX = E_("NOAUX", 0)
CODEPF = E_("CODEPF", 1)
NS = E_('NS', 3)
LASW = E_('LASW', 99)
R = 7
LA = E_('LA', 2)
FORCE_REMOTE = E_('FORCE_REMOTE', 0)
MF = "v_mfma_f32_32x32x16_bf16"
N0 = "neg_lo:[1,0,0] neg_hi:[1,0,0]"

AX, WR, WI, BX, LRE, LIM, BRE, BIM, CRE, CIM, LDT, DSK, OUT, DBG, WS = 4, 6, 8, 10, 12, 14, 16, 18, 20, 22, 24, 26, 28, 30, 32
WAVE, TI, TJ, NONCE, TBL = 34, 35, 36, 37, 38
S0, S1, S2, S3, S4 = 40, 44, 48, 52, 56
T0, T1, T2, T3, T4, T5, T6, T7, T8, T9 = range(60, 70)
MSK, CNT, LOCAL, PG = 90, 92, 100, 101
L_XCH = 122880
L_SYNC = 126976
L_AX = 131072
L_W = 147456
WS_CNT = 0x1000
CNT_A, CNT_B, CNT_W = WS_CNT, WS_CNT + 16*128, WS_CNT + 32*128
FLG_A, FLG_B, FLG_W = 0x84000, 0x86000, 0x88000
FLG_X = 0x8000
FLG_H = 0x60000
CPRO1 = E_("CPRO1", 2)
CPRO2 = E_("CPRO2", 2)
CTOUCH = E_("CTOUCH", 4)
TBS = 131072 + E_("TBPAD", 0)
FTOUCH = E_("FTOUCH", 1)
XTOUCH = E_("XTOUCH", 0)
NREP = E_("NREP", 32)
NDEF = E_("NDEF", 12)
HTAG = 0
HDLY = E_("HDLY", 0)
HFI, HFC = E_("HFI", 7), E_("HFC", 10)
XPOLL = E_("XPOLL", 2)
OWNFIRST = E_("OWNFIRST", 1) and not HTAG
C01, C23 = E_("C01", 1), E_("C23", 1)
INOUT = E_("INOUT", 0)
KS_ = 32768 if INOUT else 8192
ISH = 16384 if INOUT else 4096
CTK, CPOLL, CPRE, HPRE = E_("CTK", 13), E_("CPOLL", 6), E_("CPRE", 7), E_("HPRE", 8)
HLOC, HLK = E_("HLOC", 0), E_("HLK", 13)
LBAT = E_("LBAT", 16)
XBF = E_("XBF", 1)
SLP_H, SLP_A = E_("SLP_H", 4), E_("SLP_A", 10)
NT = " nt" if E_("NT", 1) else ""
NTX = " nt"
OST = {0: "", 1: " nt", 2: " sc1", 3: " sc1 nt", 4: " sc0 sc1 nt", 5: " sc0 nt"}[E_("OST", 1)]
NTK = E_("NTK", 0)
OSTB = {0: "", 1: " nt", 2: " sc1", 3: " sc1 nt", 4: " sc0 sc1 nt", 5: " sc0 nt"}[E_("OSTB", 1)]
NTC = " nt" if E_("NTC", 0) else ""


def sp(a):
    return f"s[{a}:{a+1}]"


def srd(A, d, base, soff=None, const=0, size=None, size_s=None):
    if soff is None and const == 0:
        A(f"s_mov_b32 s{d}, s{base}\ns_mov_b32 s{d+1}, s{base+1}")
    else:
        if soff is not None and const:
            A(f"s_add_u32 s{d+2}, s{soff}, {const}")
            o = f"s{d+2}"
        elif soff is not None:
            o = f"s{soff}"
        else:
            o = str(const)
        A(f"s_add_u32 s{d}, s{base}, {o}\ns_addc_u32 s{d+1}, s{base+1}, 0")
    if size_s is not None:
        A(f"s_sub_u32 s{d+2}, {size}, s{size_s}")
    else:
        A(f"s_mov_b32 s{d+2}, {size}")
    A(f"s_mov_b32 s{d+3}, 0x20000")


def r4(d):
    return f"s[{d}:{d+3}]"


_u = [0]


def uid(p):
    _u[0] += 1
    return f"L_{p}{_u[0]}"


def get_nonce(A, vt):
    l, d = uid("n"), uid("nd")
    A(f"v_mov_b32 v{vt}, 0")
    A.label(l)
    A(f"global_load_dword v{vt+1}, v{vt}, {sp(DBG)} sc1")
    A("s_waitcnt vmcnt(0)")
    A(f"v_readfirstlane_b32 s{NONCE}, v{vt+1}")
    A(f"s_cmp_eq_u32 s{NONCE}, 0")
    A(f"s_cbranch_scc1 {l}")


def signal(A, sshard, cnt, flg, expect, vt):
    d = uid("sg")
    A(f"s_lshl_b32 s{CNT}, s{sshard}, 7\ns_add_u32 s{CNT}, s{CNT}, {cnt}")
    A(f"v_mov_b32 v{vt}, s{CNT}\nv_mov_b32 v{vt+1}, 1")
    A("s_waitcnt vmcnt(0)")
    A("s_mov_b64 exec, 1")
    A(f"global_atomic_add v{vt+2}, v{vt}, v{vt+1}, {sp(WS)} sc0 sc1")
    A(f"v_add_u32 v{vt}, {flg - cnt}, v{vt}\nv_mov_b32 v{vt+1}, s{NONCE}")
    A("s_waitcnt vmcnt(0)")
    A(f"v_readfirstlane_b32 s{CNT}, v{vt+2}")
    A(f"s_add_u32 s{CNT}, s{CNT}, 1\ns_cmp_lg_u32 s{CNT}, {expect}")
    A(f"s_cbranch_scc1 {d}")
    A(f"global_store_dword v{vt}, v{vt+1}, {sp(WS)} sc1")
    A.label(d)
    A("s_mov_b64 exec, -1")


def set_flag(A, soff, vt):
    A(f"v_mov_b32 v{vt}, s{soff}\nv_mov_b32 v{vt+1}, s{NONCE}")
    A("s_waitcnt vmcnt(0)")
    A("s_mov_b64 exec, 1")
    A(f"global_store_dword v{vt}, v{vt+1}, {sp(WS)} sc1")
    A("s_mov_b64 exec, -1")


def wait_cnt(A, vaddr, vt, sleep):
    l, d = uid("w"), uid("wd")
    A(f"s_mov_b32 s{CNT}, 0")
    A.label(l)
    A(f"global_load_dword v{vt}, v{vaddr}, {sp(WS)} sc1")
    A("s_waitcnt vmcnt(0)")
    A(f"v_cmp_ne_u32 vcc, s{NONCE}, v{vt}")
    A(f"s_cbranch_vccz {d}")
    if sleep:
        A(f"s_sleep {sleep}")
    A(f"s_add_u32 s{CNT}, s{CNT}, 1\ns_cmp_lt_u32 s{CNT}, {SPIN_MAX}")
    A(f"s_cbranch_scc1 {l}")
    A.label(d)


F, T = 192, 224


import struct as _st


def fl(x):
    return hex(_st.unpack("<I", _st.pack("<f", x))[0])


def lane_float(A, vn, vh, t):
    A(f"v_and_b32 v{t}, 31, v1\nv_cvt_f32_u32 v{t}, v{t}\nv_lshrrev_b32 v{t+1}, 5, v1\nv_lshlrev_b32 v{t+1}, 2, v{t+1}\nv_cvt_f32_u32 v{t+1}, v{t+1}")


def make_F(A, t):
    lane_float(A, None, None, t)
    A(f"v_mul_f32 v{t+1}, v{t}, v{t+1}\nv_mul_f32 v{t+1}, {fl(1/32)}, v{t+1}")
    for i in range(16):
        c = 8*(i >> 2) + (i & 3)
        a = t + 2 + 3*(i & 1)
        A(f"v_fmamk_f32 v{a}, v{t}, {fl(c/32)}, v{t+1}\nv_fract_f32 v{a}, v{a}")
        A(f"v_cos_f32 v{a+1}, v{a}\nv_sin_f32 v{a+2}, v{a}")
        A(f"v_cvt_pk_bf16_f32 v{F+i}, v{a+1}, v{a+2}\nv_cvt_pk_bf16_f32 v{F+16+i}, -v{a+2}, v{a+1}")


def make_T(A, dst, t, half):
    lane_float(A, None, None, t)
    if not half:
        A(f"v_mul_f32 v{t+1}, v{t}, v{t+1}\nv_mul_f32 v{t+1}, {fl(1/1024)}, v{t+1}")
    else:
        A(f"v_mul_f32 v{t}, {fl(1/2048)}, v{t}\nv_fmamk_f32 v{t+1}, v{t+1}, {fl(1/64)}, v{t}")
    for i in range(16):
        c = 8*(i >> 2) + (i & 3)
        a = t + 2 + (i & 1)
        if not half:
            A(f"v_fmamk_f32 v{a}, v{t}, {fl(c/1024)}, v{t+1}")
        else:
            A(f"v_add_f32 v{a}, {fl(c/64)}, v{t+1}")
        A(f"v_cos_f32 v{dst+i}, v{a}\nv_sin_f32 v{dst+16+i}, -v{a}")


def stage1(A, src, D, stride=4):
    if "m" in os.environ.get("SK", ""):
        return
    for c in range(2):
        for s_ in range(4):
            cc = "0" if s_ == 0 else v(D+16*c, 16)
            A(f"{MF} {v(D+16*c,16)}, {v(src+stride*s_,4)}, {v(F+16*c+4*s_,4)}, {cc}")


def twiddle(A, D, dst, tmp, rng=range(16)):
    for i in (rng if "t" not in os.environ.get("SK", "") else []):
        re, im, tr, ti = D+i, D+16+i, T+i, T+16+i
        t = tmp + 2*(i & 3)
        A(f"v_mul_f32 v{t}, v{re}, v{tr}\nv_mul_f32 v{t+1}, v{re}, v{ti}")
        A(f"v_fma_f32 v{t}, -v{im}, v{ti}, v{t}\nv_fmac_f32 v{t+1}, v{im}, v{tr}")
        A(f"v_cvt_pk_bf16_f32 v{dst+i}, v{t}, v{t+1}")


def stage2(A, src, D):
    if "m" in os.environ.get("SK", ""):
        return
    for c in range(2):
        for s_ in range(4):
            cc = "0" if s_ == 0 else v(D+16*c, 16)
            A(f"{MF} {v(D+16*c,16)}, {v(F+16*c+4*s_,4)}, {v(src+4*s_,4)}, {cc}")


W_ = T6
NBW = 2048*513*2
SQ, SO, ST = 184, 185, 186
VA1, VA2, VA8, VLIN = 4, 5, 6, 7
_ph = [0]


def l_arrive(A):
    _ph[0] += 1
    A(f"v_mov_b32 v{ST+4}, {_ph[0]}")
    A(f"s_mov_b64 exec, 1\nds_write_b32 v{SO}, v{ST+4}\ns_mov_b64 exec, -1")
    return _ph[0]


def l_check(A, n, delta=0, slp=1):
    l, d = uid("lc"), uid("lcd")
    if delta:
        A(f"v_add_u32 v{ST+5}, {delta}, v{SQ}")
    A.label(l)
    A(f"ds_read_b128 {v(ST,4)}, v{ST+5 if delta else SQ}\ns_waitcnt lgkmcnt(0)")
    A(f"v_min3_u32 v{ST}, v{ST}, v{ST+1}, v{ST+2}\nv_min_u32 v{ST}, v{ST}, v{ST+3}")
    A(f"v_readfirstlane_b32 s{CNT}, v{ST}")
    A(f"s_cmp_ge_u32 s{CNT}, {n}")
    A(f"s_cbranch_scc1 {d}")
    A(f"s_sleep {slp}\ns_branch {l}")
    A.label(d)


def l_check_loose(A, n, delta):
    l = uid("ll")
    A(f"v_add_u32 v{ST+5}, {delta}, v{SQ}")
    for i in range(4):
        A(f"v_mov_b32 v{ST+i}, 0")
    A.label(l)
    A(f"ds_read_b128 {v(ST,4)}, v{ST+5}\ns_sleep 1")
    A(f"v_min3_u32 v{ST+4}, v{ST}, v{ST+1}, v{ST+2}\nv_min_u32 v{ST+4}, v{ST+4}, v{ST+3}")
    A(f"v_readfirstlane_b32 s{CNT}, v{ST+4}")
    A(f"s_cmp_lt_u32 s{CNT}, {n}")
    A(f"s_cbranch_scc1 {l}")


def l_sync(A):
    l_check(A, l_arrive(A))


def aux_setup1(A):
    srd(A, S2, WR, size=NBW)
    srd(A, S3, WI, size=NBW)
    A(f"s_and_b32 s{T0}, s2, 31\ns_lshr_b32 s{T1}, s2, 5\ns_lshl_b32 s{T1}, s{T1}, 7\ns_add_u32 s{T0}, s{T0}, s{T1}")
    A(f"s_lshl_b32 s{T1}, s{W_}, 5\ns_add_u32 s{T7}, s{T0}, s{T1}\ns_lshl_b32 s{T0}, s{T7}, 12")
    srd(A, AX, AX, T0, 0, 0x1000)
    A("v_lshlrev_b32 v2, 4, v1\nv_xor_b32 v3, 128, v2")
    A(f"s_lshl_b32 s{T8}, s{W_}, 12\ns_add_u32 s{T8}, s{T8}, {L_AX}")
    A(f"s_and_b32 s{T0}, s2, 7\ns_bfe_u32 s{T1}, s2, 0x10003\ns_bfe_u32 s{T2}, s2, 0x20004\ns_lshr_b32 s{T3}, s2, 6")
    A(f"s_lshr_b32 s{T4}, s{T0}, 1\ns_lshl_b32 s{T4}, s{T4}, 3\ns_lshl_b32 s{T5}, s{T1}, 2\ns_add_u32 s{T4}, s{T4}, s{T5}")
    A(f"s_and_b32 s{T5}, s{T0}, 1\ns_lshl_b32 s{T5}, s{T5}, 1\ns_add_u32 s{T4}, s{T4}, s{T5}\ns_lshl_b32 s{T4}, s{T4}, 5")
    A(f"s_lshl_b32 s{T5}, s{T2}, 3\ns_add_u32 s{T4}, s{T4}, s{T5}\ns_lshl_b32 s{T5}, s{W_}, 1\ns_add_u32 s{T4}, s{T4}, s{T5}\ns_mul_i32 s{T4}, s{T4}, 1026")
    A(f"s_lshl_b32 s{T5}, s{T3}, 8\ns_add_u32 s{T9}, s{T4}, s{T5}")
    A("v_bfe_u32 v8, v1, 4, 1\nv_mul_u32_u24 v8, 32832, v8")
    A(f"v_lshrrev_b32 v9, 5, v1\ns_mov_b32 s{T5}, 1050624\nv_mul_lo_u32 v9, s{T5}, v9\nv_add_u32 v8, v8, v9")
    A(f"v_and_b32 v9, 15, v1\ns_lshl_b32 s{T5}, s{W_}, 1\nv_xor_b32 v9, s{T5}, v9")
    A("v_lshl_add_u32 v18, v9, 4, v8\nv_xor_b32 v9, 1, v9\nv_lshl_add_u32 v19, v9, 4, v8\nv_add_u32 v19, 1026, v19")
    A(f"s_bfe_u32 s{T4}, s2, 0x20005\ns_lshl_b32 s{T4}, s{T4}, 8\ns_bfe_u32 s{T5}, s2, 0x10004\ns_lshl_b32 s{T5}, s{T5}, 6\ns_add_u32 s{T4}, s{T4}, s{T5}")
    A(f"s_bfe_u32 s{T5}, s2, 0x10003\ns_lshl_b32 s{T5}, s{T5}, 7\ns_add_u32 s{T4}, s{T4}, s{T5}\ns_and_b32 s{T5}, s2, 7\ns_lshl_b32 s{T5}, s{T5}, 2\ns_add_u32 s{T4}, s{T4}, s{T5}")
    A(f"v_bfe_u32 v8, v1, 3, 2\nv_add_u32 v8, s{T4}, v8\nv_bfe_u32 v9, v1, 2, 1\nv_lshl_add_u32 v8, v9, 5, v8\nv_bfe_u32 v9, v1, 1, 1\nv_lshl_add_u32 v8, v9, 10, v8")
    A("v_sub_u32 v9, 2048, v8\nv_and_b32 v9, 2047, v9\nv_and_b32 v10, 1, v1\nv_cmp_eq_u32 vcc, 1, v10\nv_cndmask_b32 v8, v8, v9, vcc")
    A(f"v_mul_u32_u24 v17, 1026, v8\ns_lshr_b32 s{T4}, s2, 7\ns_lshl_b32 s{T4}, s{T4}, 10\nv_add_u32 v17, s{T4}, v17")


def aux_setup2(A):
    make_F(A, 92)
    make_T(A, T, 92, 0)
    make_T(A, TT, 92, 1)


def aux_issue(A, vm):
    for c in range(2):
        A(f"s_add_u32 m0, s{T8}, {c*2048}")
        A(f"s_mov_b32 s{CNT}, {c*2048}")
        for u in range(2):
            vm.op(f"buffer_load_dwordx4 v{2+c}, {r4(AX)}, s{CNT} offen offset:{u*1024}{NT} lds", "ax")


def w_issue(A, vm):
    for bb in range(2):
        for arr in range(2):
            A(f"s_add_u32 m0, s{T8}, {L_W - L_AX + bb*2048 + arr*1024}")
            vm.op(f"buffer_load_dwordx4 v{18+bb}, {r4(S2 if arr == 0 else S3)}, s{T9} offen{NT} lds" if "1" not in SK else f"buffer_load_dword v23, v2, {r4(AX)}, 0 offen offset:4092", "w")
    nw = uid("nw")
    A(f"s_cmp_lg_u32 s{W_}, {3 if not ('1' in SK or 'p' in SK) else 9}\ns_cbranch_scc1 {nw}")
    A("s_mov_b32 exec_hi, 0")
    A(f"buffer_load_ushort v{WSP}, v17, {r4(S2)}, 0 offen{NT}")
    A(f"buffer_load_ushort v{WSP+1}, v17, {r4(S3)}, 0 offen{NT}")
    A("s_mov_b64 exec, -1")
    A.label(nw)


WSP, IN, D, MID, TMP = 88, 24, 40, 72, 168
DY, W, TT = 72, 104, 136
M_, SPC, CJ, SGN = T0, T1, T2, T3
AUXK = E_("AUXK", 5)
GATE = E_("GATE", 0)
WK = E_("WK", 1)
WMID = WK <= 12
WSK = E_("WSK", 9)
A1K = E_("A1K", 0)
FINE = E_("FINE", 1)
ZSK = E_("ZSK", A1K + 3 + FINE)
LATE = A1K >= 6
A2G = E_("A2G", 0)
A3G = E_("A3G", 0)
ZG = E_("ZG", 0)
CTW = E_("CTW", 0)
POLLK = E_("POLLK", 15)
VTLB, VTN, VTF = E_("VTLB", 0), E_("VTN", 1), (" nt" if E_("VTF", 1) else "")
TLBW = E_("TLBW", 0)
DEFER = E_("DEFER", 2)
DK0 = E_("DK0", 0)
LPOS = E_("LPOS", 6)
BARP = E_("BARP", 1)
NPRE = E_("NPRE", 3)
KS0 = E_("KS0", 3)
P1, P2A, P2B = E_("P1", 0), E_("P2A", 50), E_("P2B", 95)
LDEF = E_("LDEF", 0)
LSLP = E_("LSLP", 1)
WSH = E_("WSH", 1)
PRE1, PRE2 = E_("PRE1", 6), E_("PRE2", 12)
HALF = E_("HALF", 0)
WEARLY = E_("WEARLY", 0)
KA, KA0, KA1, KAG = E_("KA", 0), E_("KA0", 1), E_("KA1", 15), E_("KAG", 0)
G1X = os.environ.get("G1X", "")
WXT = E_("WXT", 0)
RSLP = E_("RSLP", 1)
PAL = E_("PAL", 0)
NREPA = E_("NREPA", 8)
AXT = E_("AXT", 0)
APRIO, GPRIO = E_("APRIO", 0), E_("GPRIO", 1)
FM, CM = E_("FM", 12), E_("CM", 4)
DMAP = os.environ.get("DMAP", "5,9,13,17,21,25,29,33")
SK = os.environ.get("SK", "")
A2C = E_("A2C", 0)
LPRIO3 = E_("LPRIO3", 0)
LPRIO0 = E_("LPRIO0", 3)
LPRIO, LPRIO2 = E_('LPRIO', 0), E_('LPRIO2', 0)
L_IMG = 98304
LIMG_FREE = 2


def img(i):
    ka = 8*(i >> 2) + (i & 3)
    return (VA1, ka*1024) if i < 8 else (VA8, 0) if i == 8 else (VA2, (27 - ka)*1024)


def aux_pre(A):
    A(f"v_mov_b32 v{SQ}, {L_SYNC + 16}\ns_lshl_b32 s{T4}, s{W_}, 2\nv_add_u32 v{SO}, s{T4}, v{SQ}")
    A("v_and_b32 v8, 31, v1\nv_lshrrev_b32 v9, 5, v1\nv_and_b32 v10, 1, v1")
    A(f"v_lshrrev_b32 v11, 1, v8\nv_lshlrev_b32 v{VA1}, 6, v11\nv_lshl_add_u32 v{VA1}, v10, 4, v{VA1}\nv_lshl_add_u32 v{VA1}, v9, 12, v{VA1}")
    A(f"v_add_u32 v11, v11, v10\nv_lshlrev_b32 v11, 6, v11\nv_lshl_add_u32 v11, v10, 4, v11\nv_lshl_add_u32 v11, v9, 12, v11\nv_sub_u32 v{VA2}, {5120 + 48}, v11")
    for r in (VA1, VA2):
        A(f"v_bfe_u32 v11, v{r}, 7, 1\nv_lshlrev_b32 v11, 5, v11\nv_xor_b32 v{r}, v{r}, v11")
    A(f"v_add_u32 v{VA8}, 11264, v{VA2}\nv_and_b32 v{VA8}, 0x3fff, v{VA8}")
    A(f"s_add_u32 s{T4}, s{T4}, {L_IMG}")
    for r in (VA1, VA2, VA8):
        A(f"v_add_u32 v{r}, s{T4}, v{r}")
    A(f"v_bfe_u32 v11, v1, 3, 1\nv_lshlrev_b32 v11, 5, v11\nv_xor_b32 v{VLIN}, v2, v11")

    A("v_bfe_u32 v12, v1, 2, 1\nv_mul_u32_u24 v12, 2176, v12")
    A("v_bfe_u32 v13, v1, 3, 1\nv_lshl_add_u32 v12, v13, 6, v12\nv_lshl_add_u32 v12, v9, 8, v12")
    A("v_bfe_u32 v13, v1, 4, 1\nv_lshl_add_u32 v12, v13, 5, v12\nv_and_b32 v13, 3, v1\nv_lshl_add_u32 v12, v13, 3, v12")
    A(f"v_add_u32 v12, s{T8}, v12\nv_xor_b32 v13, 128, v12")
    if INOUT:
        A(f"s_lshl_b32 s{T4}, s{T7}, 14")
        srd(A, S0, OUT, T4, 0, 0x1000)
        srd(A, S1, OUT, T4, 0, 0x1000)
    else:
        A(f"s_lshl_b32 s{T4}, s2, 14\ns_lshl_b32 s{T5}, s{W_}, 12\ns_add_u32 s{T4}, s{T4}, s{T5}")
        srd(A, S0, WS, T4, WS_Z1, 0x1000)
        srd(A, S1, WS, T4, WS_Z3, 0x1000)
    A(f"v_and_b32 v14, 7, v1\nv_lshrrev_b32 v15, 3, v1\nv_xor_b32 v16, v14, v15\nv_lshlrev_b32 v16, 4, v16\nv_lshl_add_u32 v16, v14, 11, v16")
    A(f"s_lshr_b32 s{T4}, s{W_}, 1\ns_lshl_b32 s{T4}, s{T4}, 7\ns_and_b32 s{T5}, s{W_}, 1\ns_lshl_b32 s{T5}, s{T5}, 3\ns_add_u32 s{T4}, s{T4}, s{T5}\ns_add_u32 s{T4}, s{T4}, {L_W}")
    A(f"v_add_u32 v16, s{T4}, v16")
    A(f"v_lshlrev_b32 v15, {18 if INOUT else 16}, v15\nv_lshl_add_u32 v15, v14, 4, v15")
    A(f"s_lshl_b32 s{T4}, s{T3}, 7\ns_lshr_b32 s{T5}, s{W_}, 1\ns_lshl_b32 s{T5}, s{T5}, 6\ns_add_u32 s{T4}, s{T4}, s{T5}")
    A(f"s_and_b32 s{T5}, s{W_}, 1\ns_lshl_b32 s{T5}, s{T5}, 2\ns_add_u32 s{T4}, s{T4}, s{T5}\ns_mul_i32 s{T4}, s{T4}, {KS_}")
    A(f"s_lshr_b32 s{T5}, s{T0}, 2\ns_mul_i32 s{T5}, s{T5}, {ISH - 4096}\ns_add_u32 s{T4}, s{T4}, s{T5}")
    A(f"s_lshl_b32 s{T5}, s{T0}, 10\ns_add_u32 s{T4}, s{T4}, s{T5}\ns_lshl_b32 s{T5}, s{T1}, 9\ns_add_u32 s{T4}, s{T4}, s{T5}\ns_lshl_b32 s{T5}, s{T2}, 7\ns_add_u32 s{T4}, s{T4}, s{T5}")
    if INOUT:
        A(f"s_add_u32 s{T4}, s{T4}, 8192")
        srd(A, S4, OUT, T4, 0, 0x1000000, T4)
    else:
        srd(A, S4, WS, T4, WS_WT + 2*KS_, 0x400000, T4)


def c_touch(A, vm):
    A(f"s_and_b32 s{T4}, s2, 1\ns_lshl_b32 s{T4}, s{T4}, 10\ns_bfe_u32 s{CNT}, s2, 0x20001\ns_lshl_b32 s{CNT}, s{CNT}, 19\ns_add_u32 s{T4}, s{T4}, s{CNT}")
    A(f"s_lshr_b32 s{CNT}, s2, 3\ns_lshl_b32 s{CNT}, s{CNT}, 14\ns_add_u32 s{T4}, s{T4}, s{CNT}")
    A(f"s_lshr_b32 s{CNT}, s{W_}, 1\ns_lshl_b32 s{CNT}, s{CNT}, 13\ns_add_u32 s{T4}, s{T4}, s{CNT}")
    A(f"v_bfe_u32 v22, v1, 3, 2\nv_lshlrev_b32 v22, 11, v22\nv_and_b32 v23, 7, v1\nv_lshl_add_u32 v22, v23, 7, v22\nv_add_u32 v22, s{T4}, v22")
    A("s_mov_b32 exec_hi, 0")
    vm.op(f"global_load_dword v23, v22, s[100:101]", "touch")
    A("s_mov_b64 exec, -1")


def flag_poll(A, flg):
    A(f"s_lshl_b32 s{T4}, s2, 2\ns_add_u32 s{T4}, s{T4}, s{W_}\ns_lshr_b32 s{T4}, s{T4}, 4\ns_lshl_b32 s{T4}, s{T4}, 7\ns_add_u32 s{T4}, s{T4}, {flg}")
    A(f"s_add_u32 s24, s{WS}, s{T4}\ns_addc_u32 s25, s{WS+1}, 0")
    A(f"s_load_dwordx16 s[4:19], s[24:25], 0x0 glc")


def flag_wait(A):
    late, go, pl_ = uid("late"), uid("go"), uid("sp")
    A(f"s_mov_b32 s26, s{NONCE}\ns_mov_b32 s27, s{NONCE}\ns_mov_b32 s{CNT}, 0\ns_branch {pl_}")
    A.label(late)
    A(f"s_add_u32 s{CNT}, s{CNT}, 1\ns_cmp_ge_u32 s{CNT}, {SPIN_MAX}\ns_cbranch_scc1 {go}")
    A(f"s_sleep 8\ns_load_dwordx16 s[4:19], s[24:25], 0x0 glc")
    A.label(pl_)
    A("s_waitcnt lgkmcnt(0)")
    for q in range(8):
        A(f"s_cmp_eq_u64 s[{4+2*q}:{5+2*q}], s[26:27]\ns_cbranch_scc0 {late}")
    A.label(go)


RR = lambda arr, kind: 104 + (arr*4 + kind)*2


def wt_read(A, fin=True):
    for arr in range(2):
        for kind in range(4):
            A(f"ds_read_b64 {v(RR(arr,kind),2)}, v16 offset:{arr*1024 + kind*256}")


def wt_sym(A):
    A(f"s_mov_b32 s{T4}, 0x05040100\ns_mov_b32 s{T5}, 0x07060302")
    A(f"v_lshlrev_b32 v{WSP}, 16, v{WSP}\nv_lshlrev_b32 v{WSP+1}, 16, v{WSP+1}\nv_lshlrev_b32 v9, 1, v1")
    A(f"v_add_f32_dpp v{WSP+2}, v{WSP}, v{WSP} quad_perm:[1,0,3,2] row_mask:0xf bank_mask:0xf")
    A(f"v_subrev_f32_dpp v{WSP+3}, v{WSP+1}, v{WSP+1} quad_perm:[1,0,3,2] row_mask:0xf bank_mask:0xf")
    A(f"v_mul_f32 v{WSP+2}, 0.5, v{WSP+2}\nv_mul_f32 v{WSP+3}, 0.5, v{WSP+3}")
    A(f"v_cvt_pk_bf16_f32 v{WSP}, v{WSP+2}, v{WSP+3}")


def wt_perm(A):
    for kap in range(4):
        o = 120 + 4*kap
        for e in range(2):
            for h2 in range(2):
                kind = e + 2*h2
                A(f"v_perm_b32 v{o+2*e+h2}, v{RR(1,kind)+kap//2}, v{RR(0,kind)+kap//2}, s{T4 + kap % 2}")


def wt_store(A, vm):
    nw = uid("nw")
    A(f"s_cmp_lg_u32 s{W_}, 3\ns_cbranch_scc1 {nw}")
    A(f"s_lshr_b32 s{T4}, s2, 7\ns_mul_i32 s{T4}, s{T4}, {KS_}\ns_bfe_u32 s{T5}, s2, 0x10006\ns_mul_i32 s{T5}, s{T5}, {ISH}\ns_add_u32 s{T4}, s{T4}, s{T5}")
    A(f"s_and_b32 s{T5}, s2, 63\ns_lshl_b32 s{T5}, s{T5}, 6\ns_add_u32 s{T4}, s{T4}, s{T5}")
    srd(A, S3, WS, T4, WS_WT, 64)
    A("s_mov_b32 exec_lo, 0x55555555\ns_mov_b32 exec_hi, 0")
    if not E_("SKIPS", 0):
        A(f"buffer_store_dword v{WSP}, v9, {r4(S3)}, 0 offen sc1")
    A("s_mov_b64 exec, -1")
    A.label(nw)
    for kap in range(0 if "2" in SK else 4):
        A(f"s_mov_b32 s{CNT}, {kap*KS_}")
        vm.op(f"buffer_store_dwordx4 {v(120+4*kap,4)}, v15, {r4(S4)}, s{CNT} offen sc1", "wst")


def a1_task(A, vm):
    vm.wait_for("ax")
    trace(A, 0, 2)
    for s_ in range(4):
        for u in range(2):
            A(f"ds_read_b64_tr_b16 {v(IN+4*s_+2*u,2)}, v{12+u} offset:{s_*512}")
    A("s_waitcnt lgkmcnt(0)")
    stage1(A, IN, D)
    twiddle(A, D, MID, TMP)
    stage2(A, MID, D)
    A(f"s_lshl_b32 s{CNT}, s{W_}, 12\ns_add_u32 s{CNT}, s{CNT}, {L_IMG}\nv_add_u32 v8, s{CNT}, v{VLIN}")
    for i in range(16):
        A(f"v_cvt_pk_bf16_f32 v{MID+i}, v{D+i}, v{D+16+i}")
        a, o = img(i)
        A(f"ds_write_b32 v{a}, v{MID+i} offset:{o}")
    trace(A, 0, 3)
    vm.wait_for("w")
    A("s_waitcnt lgkmcnt(0)")
    l_sync(A)
    trace(A, 0, 4)
    for u in range(4):
        A(f"ds_read_b128 {v(MID+4*u,4)}, v8 offset:{u*1024}")
    wt_read(A, fin=False)
    for r in (VA1, VA2, VA8):
        A(f"v_add_u32 v{r}, {L_AX - L_IMG}, v{r}")
    A("s_waitcnt lgkmcnt(0)")
    p = l_arrive(A)
    assert p == LIMG_FREE
    if ZG:
        l_check(A, ZG, RING_LG - 16)
    for u in range(0 if "3" in SK else 4):
        vm.op(f"buffer_store_dwordx4 {v(MID+4*u,4)}, v2, {r4(S0)}, 0 offen offset:{u*1024} sc1", "zst")
    wt_sym(A)
    wt_perm(A)
    wt_store(A, vm)
    trace(A, 0, 5)


def a2_setup(A):
    A(f"s_and_b32 s{M_}, s2, 7\ns_lshl_b32 s{M_}, s{M_}, 5\ns_lshr_b32 s{T4}, s2, 3\ns_add_u32 s{M_}, s{M_}, s{T4}")
    A(f"s_lshr_b32 s{T4}, s{W_}, 1\ns_xor_b32 s{T4}, s{T4}, s{W_}\ns_and_b32 s{T4}, s{T4}, 1")
    A(f"s_or_b32 s{T5}, s{T4}, s{M_}\ns_cmp_eq_u32 s{T5}, 0\ns_cselect_b32 s{SPC}, 1, 0")
    A(f"s_lshl_b32 s{T5}, s{M_}, 1\ns_add_u32 s{T4}, s{T4}, s{T5}")
    A(f"s_mul_i32 s{T4}, s{T4}, {KS_}\ns_add_u32 s{T4}, s{T4}, {8192 if INOUT else WS_WT + 2*KS_}")
    A(f"s_lshr_b32 s{T5}, s{W_}, 1\ns_mul_i32 s{T9}, s{T5}, {KS_}\ns_add_u32 s{T9}, s{T9}, {WS_WT}")
    A(f"s_cmp_eq_u32 s{SPC}, 1\ns_cselect_b32 s{T4}, s{T9}, s{T4}\ns_cselect_b32 s{T5}, 0, s{T5}")
    A(f"s_cselect_b32 s{MSK}, s{WS}, s{OUT if INOUT else WS}\ns_cselect_b32 s{MSK+1}, s{WS+1}, s{(OUT if INOUT else WS)+1}")
    A(f"s_lshl_b32 s{CJ}, s{T5}, 31\ns_or_b32 s{SGN}, s{CJ}, 0x3f800000")
    srd(A, S2, MSK, T4, 0, ISH + 4096)
    if INOUT:
        A(f"s_lshl_b32 s{T4}, s{W_}, 22\ns_lshr_b32 s{T5}, s{M_}, 6\ns_lshl_b32 s{T5}, s{T5}, 19\ns_add_u32 s{T4}, s{T4}, s{T5}")
        A(f"s_and_b32 s{T5}, s{M_}, 63\ns_lshl_b32 s{T5}, s{T5}, 6\ns_add_u32 s{T4}, s{T4}, s{T5}")
        srd(A, S3, OUT, T4, 0, 160*16384, T5)
        srd(A, S4, OUT, T4, 0, 160*16384, T5)
    else:
        A(f"s_lshl_b32 s{T4}, s{W_}, 20\ns_lshl_b32 s{T5}, s{M_}, 6\ns_add_u32 s{T4}, s{T4}, s{T5}")
        srd(A, S3, WS, T4, WS_Z1, 0x100000, T5)
        srd(A, S4, WS, T4, WS_Z3, 0x100000, T5)
    A("v_lshrrev_b32 v8, 2, v1\nv_lshlrev_b32 v8, 14, v8\nv_and_b32 v9, 3, v1\nv_lshrrev_b32 v10, 4, v1\nv_xor_b32 v9, v9, v10\nv_lshl_add_u32 v14, v9, 4, v8")
    A(f"v_and_b32 v8, 31, v1\nv_bfe_u32 v9, v1, 2, 2\nv_xor_b32 v9, s{W_}, v9\nv_lshlrev_b32 v9, 4, v9\nv_lshl_add_u32 v9, v8, 6, v9")
    A(f"v_lshrrev_b32 v8, 5, v1\nv_lshl_add_u32 v9, v8, 11, v9\nv_add_u32 v15, {L_AX}, v9")
    A(f"s_lshl_b32 s{T4}, s{W_}, 13\ns_add_u32 s{T4}, s{T4}, {L_AX}\nv_add_u32 v16, s{T4}, v2")
    A(f"s_xor_b32 s{T5}, s{T4}, {3 << 13}\ns_cmp_eq_u32 s{SPC}, 1\ns_cselect_b32 s{T5}, s{T4}, s{T5}\nv_add_u32 v17, s{T5}, v2")
    A(f"v_add_u32 v18, s{T8}, v2")
    A(f"s_lshr_b32 s{T4}, s{W_}, 1\ns_xor_b32 s{T4}, s{T4}, s{W_}\ns_and_b32 s{T4}, s{T4}, 1\ns_lshl_b32 s{T9}, s{T4}, 13\ns_add_u32 s{T9}, s{T9}, {L_W}\nv_add_u32 v19, s{T9}, v2")
    for kk in range(32):
        A(f"v_mul_f32 v{TT+kk}, s{SGN}, v{TT+kk}")


ZU = lambda u: (16*(u & 1) + 128*(u >> 1))*16384 if INOUT else u << 18


def a2_loads(A, z=True, w=True):
    for u in range(4 if z and '5' not in SK else 0):
        A(f"s_add_u32 m0, s{T8}, {u*1024}\ns_mov_b32 s{T4}, {ZU(u)}")
        A(f"buffer_load_dwordx4 v14, {r4(S3)}, s{T4} offen sc1 lds")
    if WSH:
        a, b = uid("ws"), uid("wd")
        A(f"s_cmp_eq_u32 s{SPC}, 1\ns_cbranch_scc1 {a}")
        A(f"s_lshr_b32 s{T4}, s{W_}, 1\ns_lshl_b32 s{T5}, s{T4}, 12\ns_mul_i32 s{T4}, s{T4}, {ISH}\ns_add_u32 m0, s{T9}, s{T5}")
        for u in range(4):
            A(f"buffer_load_dwordx4 v2, {r4(S2)}, s{T4} offen offset:{u*1024} sc1 lds")
        A(f"s_waitcnt vmcnt(0)\ns_branch {b}")
        A.label(a)
    A(f"s_movk_i32 s{T4}, {ISH}")
    for it in range(8 if w and '4' not in SK else 0):
        A(f"buffer_load_dwordx4 {v(W+4*it,4)}, v2, {r4(S2)}, {'0' if it < 4 else f's{T4}'} offen offset:{(it & 3)*1024} sc1")
    if WSH:
        A.label(b)


PH_RES = 18


def phase_atomic(A, cnt, p):
    x = uid("ph")
    A(f"s_cmp_lg_u32 s{W_}, 0\ns_cbranch_scc1 {x}")
    l_check(A, p)
    A(f"s_and_b32 s{T4}, s2, 15\ns_lshl_b32 s{T5}, s{T4}, 7\ns_add_u32 s{T5}, s{T5}, {cnt}")
    A(f"s_add_u32 s{MSK}, s{WS}, s{T5}\ns_addc_u32 s{MSK+1}, s{WS+1}, 0\ns_mov_b32 s{PH_RES}, 1")
    A(f"s_atomic_add s{PH_RES}, {sp(MSK)}, 0x0 glc")
    A.label(x)


def phase_last(A, flg, wait=True, nrep=None):
    y = uid("sg")
    A(f"s_cmp_lg_u32 s{W_}, 0\ns_cbranch_scc1 {y}")
    A(f"s_and_b32 s{T4}, s2, 15\ns_lshl_b32 s{T4}, s{T4}, 2\ns_add_u32 s{T4}, s{T4}, {flg}")
    A(f"s_add_u32 s4, s{WS}, s{T4}\ns_addc_u32 s5, s{WS+1}, 0")
    A("s_waitcnt lgkmcnt(0)")
    A(f"s_cmp_lg_u32 s{PH_RES}, 15\ns_cbranch_scc1 {y}")
    for r in range(nrep or NREP):
        A(f"s_atomic_swap s{NONCE}, s[4:5], {hex(r*128)}")
    if wait:
        A("s_waitcnt lgkmcnt(0)")
    A.label(y)


def phase_wait(A, flg, tb, nrep=None):
    x, pl_, nok = uid("ph"), uid("sp"), uid("nok")
    A(f"s_cmp_lg_u32 s{W_}, 0\ns_cbranch_scc1 {x}")
    A(f"s_and_b32 s{T4}, s2, {(nrep or NREP) - 1}\ns_lshl_b32 s{T4}, s{T4}, 7\ns_add_u32 s{T4}, s{T4}, {flg}")
    A(f"s_add_u32 s{MSK}, s{WS}, s{T4}\ns_addc_u32 s{MSK+1}, s{WS+1}, 0\ns_mov_b32 s{T4}, s{NONCE}\ns_mov_b32 s{T5}, s{NONCE}\ns_mov_b32 s{CNT}, 0")
    A(f"s_branch {pl_}")
    A.label(nok)
    A(f"s_add_u32 s{CNT}, s{CNT}, 1\ns_cmp_ge_u32 s{CNT}, {SPIN_MAX}\ns_cbranch_scc1 {x}")
    if SLP_A:
        A(f"s_sleep {SLP_A}")
    A.label(pl_)
    A(f"s_load_dwordx16 s[4:19], {sp(MSK)}, 0x0 glc\ns_waitcnt lgkmcnt(0)")
    for q in range(8):
        A(f"s_cmp_eq_u64 s[{4+2*q}:{5+2*q}], {sp(T4)}\ns_cbranch_scc0 {nok}")
    if TRACE:
        A(f"v_writelane_b32 v0, s{CNT}, {tb}")
    A.label(x)
    l_check(A, l_arrive(A), slp=LSLP)


def aux_rest(A, vm):
    def phase(cnt, flg, young=0):
        trace(A, 0, 48)
        A(f"s_waitcnt vmcnt({young})")
        trace(A, 0, 49)
        p = l_arrive(A)
        phase_atomic(A, cnt, p)
        phase_last(A, flg)
        trace(A, 0, 50)
        phase_wait(A, flg, 62)
        trace(A, 0, 51)
    phase_wait(A, FLG_A, 61, NREPA)
    trace(A, 0, 7)
    A(f"s_setprio {LPRIO2}")
    if A2G:
        l_check(A, A2G % 100, RING_D - 16 if A2G < 100 else -16)
    if CTW == 2:
        c_touch(A, vm)
    trace(A, 0, 8)
    a2_loads(A)
    mark(A, 7)
    A(f"s_waitcnt vmcnt({0 if '4' in SK else 8})")
    trace(A, 0, 9)
    if E_("AM", 0) in (1, 2):
        mark(A, 1)
    l_sync(A)
    trace(A, 0, 10)
    INS = 72
    for s_ in range(4):
        A(f"ds_read_b128 {v(INS+4*s_,4)}, v15 offset:{s_*4096}")
    if WSH:
        a = uid("wr")
        A(f"s_cmp_eq_u32 s{SPC}, 1\ns_cbranch_scc1 {a}")
        for it in range(8):
            A(f"ds_read_b128 {v(W+4*it,4)}, v19 offset:{it*1024}")
        A.label(a)
    A("s_waitcnt lgkmcnt(0)")
    if E_("AM", 0) == 2:
        mark(A, 2)
    p6 = l_arrive(A)
    if A2C:
        l_check(A, A2C, -16)
    A(f"s_lshl_b32 s{T4}, s{SPC}, 31\ns_or_b32 s{T4}, s{T4}, s{CJ}")
    fl, nwr = uid("fft"), uid("nwr")
    A.label(fl)
    for i in range(16):
        A(f"v_xor_b32 v{IN+i}, s{T4}, v{INS+i}")

    def pre(rng):
        for i in rng:
            w, rho, sg = W + 2*i, TT + i, TT + 16 + i
            r1, i1, r2, i2, Ar, Ai = (TMP + 8 + c for c in range(6))
            A(f"v_lshlrev_b32 v{r1}, 16, v{w}\nv_and_b32 v{i1}, 0xffff0000, v{w}")
            A(f"v_lshlrev_b32 v{r2}, 16, v{w+1}\nv_and_b32 v{i2}, 0xffff0000, v{w+1}")
            A(f"v_add_f32 v{Ar}, v{r1}, v{r2}\nv_add_f32 v{Ai}, v{i1}, v{i2}")
            A(f"v_sub_f32 v{r1}, v{r1}, v{r2}\nv_sub_f32 v{i1}, v{i1}, v{i2}")
            A(f"v_mul_f32 v{w}, v{rho}, v{r1}\nv_mul_f32 v{w+1}, v{rho}, v{i1}")
            A(f"v_fma_f32 v{rho}, v{sg}, v{r1}, v{Ar}\nv_fma_f32 v{sg}, v{sg}, v{i1}, v{Ai}")

    def once(rng):
        a = uid("once")
        A(f"s_cmp_eq_u32 s{SPC}, 2\ns_cbranch_scc1 {a}\ns_waitcnt vmcnt(0)")
        pre(rng)
        A.label(a)
    stage1(A, IN, D)
    once(range(0, PRE1))
    twiddle(A, D, IN, TMP)
    stage2(A, IN, D)
    once(range(PRE1, PRE2))
    l_check(A, p6)
    if E_("AM", 0) == 2:
        mark(A, 5)
    A(f"s_cmp_eq_u32 s{SPC}, 2\ns_cbranch_scc1 {nwr}")
    for c in range(8):
        A(f"ds_write_b128 v16, {v(D+4*c,4)} offset:{c*1024}")
    A(f"s_cmp_eq_u32 s{SPC}, 0\ns_cbranch_scc1 {nwr}")
    A(f"s_mov_b32 s{SPC}, 2\ns_mov_b32 s{T4}, 0\ns_branch {fl}")
    A.label(nwr)
    pre(range(PRE2, min(16, PRE2 + 2)))
    A("s_waitcnt lgkmcnt(0)")
    p7 = l_arrive(A)
    pre(range(min(16, PRE2 + 2), 16))

    def own(rng):
        for i in rng:
            Xr, Xi, mr, mi, t = D+i, D+16+i, TT+i, TT+16+i, TMP + (i & 1)
            A(f"v_mul_f32 v{t}, v{mi}, v{Xi}\nv_mul_f32 v{Xi}, v{mr}, v{Xi}")
            A(f"v_fmac_f32 v{Xi}, v{mi}, v{Xr}\nv_fma_f32 v{Xr}, v{mr}, v{Xr}, -v{t}")
    own(range(0, 6))
    l_check(A, p7)
    for c in range(8):
        A(f"ds_read_b128 {v(DY+4*c,4)}, v17 offset:{c*1024}")
    own(range(6, 16))
    A("s_waitcnt lgkmcnt(0)")
    if E_("AM", 0) in (1, 2):
        mark(A, 4)
    p8 = l_arrive(A)
    for i in range(16):
        Pr, Pi, Yr, Yi, gr, gi = D+i, D+16+i, DY+i, DY+16+i, W+2*i, W+2*i+1
        A(f"v_fma_f32 v{Pr}, -v{gr}, v{Yi}, v{Pr}\nv_fmac_f32 v{Pi}, v{gr}, v{Yr}")
        A(f"v_fma_f32 v{Pr}, -v{gi}, v{Yr}, v{Pr}\nv_fma_f32 v{Pi}, -v{gi}, v{Yi}, v{Pi}")
        A(f"v_cvt_pk_bf16_f32 v{IN+i}, v{Pi}, v{Pr}")
    if E_("AM", 0) == 2:
        mark(A, 6)
    stage1(A, IN, D)
    twiddle(A, D, IN, TMP)
    stage2(A, IN, D)
    A(f"s_lshr_b32 s{T4}, s{CJ}, 16")
    l_check(A, p8)
    for s_ in range(4):
        for r in range(4):
            i = 4*s_ + r
            A(f"v_cvt_pk_bf16_f32 v{IN+i}, v{D+i}, v{D+16+i}\nv_xor_b32 v{IN+i}, s{T4}, v{IN+i}")
        A(f"ds_write_b128 v15, {v(IN+4*s_,4)} offset:{s_*4096}")
    A("s_waitcnt lgkmcnt(0)")
    if E_("AM", 0) == 2:
        mark(A, 7)
    l_sync(A)
    for u in range(4):
        A(f"ds_read_b128 {v(IN+4*u,4)}, v18 offset:{u*1024}")
    for u in range(4):
        A(f"s_mov_b32 s{T4}, {ZU(u)}\ns_waitcnt lgkmcnt({3-u})")
        if "6" not in SK:
            A(f"buffer_store_dwordx4 {v(IN+4*u,4)}, v14, {r4(S4)}, s{T4} offen sc1")
    trace(A, 0, 11)
    if E_("AM", 0) != 3 and not E_("GM", 0):
        mark(A, 3)
    A(f"s_lshl_b32 s{T4}, s{T7}, 14")
    srd(A, S0, OUT, T4, 0, 0x4000)
    A("v_and_b32 v8, 31, v1\nv_lshrrev_b32 v9, 5, v1\nv_lshlrev_b32 v14, 2, v8\nv_lshl_add_u32 v14, v9, 9, v14")
    A(f"s_mov_b32 s{T4}, 0x35000000")
    for k in range(32):
        A(f"v_mul_f32 v{T+k}, s{T4}, v{T+k}")
    phase(CNT_B, FLG_B)
    A(f"s_setprio {LPRIO3}")
    if A3G:
        l_check(A, A3G, -16)
    trace(A, 0, 12)
    if E_("AM", 0) != 3:
        mark(A, 8)
    A(f"s_mov_b32 m0, s{T8}")
    for u in range(4):
        if "7" not in SK:
            A(f"buffer_load_dwordx4 v{VLIN}, {r4(S1)}, 0 offen offset:{u*1024} sc1 lds")
    A("s_waitcnt vmcnt(0)")
    trace(A, 0, 13)
    l_sync(A)
    for i in range(16):
        a, o = img(i)
        A(f"ds_read_b32 v{IN+i}, v{a} offset:{o}")
    A("s_waitcnt lgkmcnt(0)")
    stage1(A, IN, D)
    twiddle(A, D, IN, TMP)
    stage2(A, IN, D)
    A(f"s_movk_i32 s{T4}, 0x2000")
    O = 72
    for i in range(16):
        o = O + 2*i
        A(f"v_cvt_pk_bf16_f32 v{o+1}, v{D+16+i}, v{D+i}")
        A(f"v_lshlrev_b32 v{o}, 16, v{o+1}\nv_and_b32 v{o+1}, 0xffff0000, v{o+1}")
        off = (i >> 2)*1024 + (i & 3)*128
        if "8" not in SK:
            A(f"buffer_store_dword v{o}, v14, {r4(S0)}, 0 offen offset:{off}{OST}")
            A(f"buffer_store_dword v{o+1}, v14, {r4(S0)}, s{T4} offen offset:{off}{OST}")


def cmul_sq(A, d, a, t):
    A(f"v_mul_f32 {v(t)}, {v(a+1)}, {v(a+1)}")
    A(f"v_mul_f32 {v(t+1)}, {v(a)}, {v(a+1)}")
    A(f"v_fma_f32 {v(d)}, {v(a)}, {v(a)}, -{v(t)}")
    A(f"v_add_f32 {v(d+1)}, {v(t+1)}, {v(t+1)}")


def horner(A, dr, di, L, pr, pi, er, ei, t):
    assert dr not in (pr, pi) and di not in (pr, pi)
    A(f"v_fma_f32 {v(t)}, {v(L)}, {v(pr)}, {v(er)}")
    A(f"v_fma_f32 {v(t+1)}, {v(L)}, {v(pi)}, {v(ei)}")
    A(f"v_fma_f32 {v(dr)}, -{v(L+1)}, {v(pi)}, {v(t)}")
    A(f"v_fma_f32 {v(di)}, {v(L+1)}, {v(pr)}, {v(t+1)}")


RING_D, RING_LG, RING_LA = 32, 48, 64


def dma_setup(A, swt, swp, RV, t, ta, tb):
    l5, a, b_, c, d, e = (t + i for i in range(6))
    A(f"v_lshrrev_b32 v{l5}, 5, v1\nv_bfe_u32 v{a}, v1, 3, 2\nv_and_b32 v{b_}, 1, v{a}\nv_lshrrev_b32 v{c}, 1, v{a}")
    A(f"v_lshlrev_b32 v{d}, 4, v{l5}\nv_lshl_add_u32 v{d}, v{b_}, 3, v{d}\nv_add_u32 v{d}, v{d}, v{c}")
    A(f"s_lshl_b32 s{ta}, s{swt}, 6\ns_lshl_b32 s{tb}, s{swp}, 2\ns_add_u32 s{ta}, s{ta}, s{tb}")
    A(f"v_add_u32 v{d}, s{ta}, v{d}\nv_lshlrev_b32 v{d}, 11, v{d}")
    A(f"s_lshl_b32 s{ta}, s{swt}, 5")
    A(f"v_lshl_add_u32 v{e}, v{l5}, 3, v{a}\nv_add_u32 v{e}, s{ta}, v{e}\nv_lshlrev_b32 v{e}, 11, v{e}")
    A(f"v_and_b32 v{b_}, 7, v1\nv_lshrrev_b32 v{c}, 4, v1\nv_xor_b32 v{b_}, v{b_}, v{c}\nv_lshlrev_b32 v{b_}, 4, v{b_}\nv_xor_b32 v{c}, 64, v{b_}")
    A(f"v_add_u32 v{RV}, v{d}, v{b_}\nv_add_u32 v{RV+1}, v{d}, v{c}\nv_add_u32 v{RV+1}, {32*2048 - 1024}, v{RV+1}")
    A(f"v_add_u32 v{RV+2}, v{e}, v{b_}\nv_add_u32 v{RV+3}, v{e}, v{c}\nv_add_u32 v{RV+3}, {16*2048 - 1024}, v{RV+3}")


def make_piece(A, vm, RA, RB, ROT, M0B, SOF, RV):
    def piece(k, n):
        slot, u = k % NS, n & 3
        if n == 0:
            A(f"s_add_u32 s{SOF}, s{ROT}, {k*128}\ns_and_b32 s{SOF}, s{SOF}, 0x7ff")
            A(f"s_add_u32 s{SOF+1}, s{SOF}, 2048\ns_add_u32 s{SOF+2}, s{SOF}, 6144")
        if u == 0:
            A(f"s_add_u32 m0, s{M0B}, {slot*32768 + (n >> 2)*16384}")
        so = SOF if u < 2 else SOF + 1 + (n >> 2)
        if ("a" in G1X and 0 < n < 4) or ("b" in G1X and n > 4):
            return
        vm.op(f"buffer_load_dwordx4 v{RV + 2*(n >> 2) + (u & 1)}, {r4(RA if n < 4 else RB)}, s{so} offen offset:{u*1024} lds", ("st", k))
    return piece


def rot_setup(A, ROT, t):
    A(f"s_mul_i32 s{ROT}, s{TI}, {RI*128}\ns_mul_i32 s{t}, s{TJ}, {RJ*128}\ns_add_u32 s{ROT}, s{ROT}, s{t}")


def aux_waves(A, name, kidx):
    A(f"s_sub_u32 s{W_}, s{WAVE}, 4")
    A(f"s_setprio {APRIO}")
    if BARP == 0:
        A("s_barrier")
    A("s_waitcnt lgkmcnt(0)")
    A(f"s_mov_b32 s100, s{CRE}\ns_mov_b32 s101, s{CRE+1}")
    A(f"s_bitcmp1_b32 s{W_}, 0\ns_cselect_b32 s100, s{CIM}, s{CRE}\ns_cselect_b32 s101, s{CIM+1}, s{CRE+1}")
    trace_init(A, 0)
    vm = VmCounter(A)
    if CODEPF:
        pf, pc = uid("pf"), uid("pc")
        A(f"s_cmp_lg_u32 s{W_}, 1")
        A(f"s_cbranch_scc1 {pf}")
        A(f"s_lshr_b32 s{T0}, s2, 3\ns_lshl_b32 s{T0}, s{T0}, 11\nv_and_b32 v12, 15, v1\nv_lshl_add_u32 v12, v12, 7, s{T0}")
        A(f"v_min_u32 v12, L_{name}_end-{name}, v12")
        A(f"s_getpc_b64 {sp(T0)}")
        A.label(pc)
        A(f"s_sub_u32 s{T0}, s{T0}, {pc}-{name}\ns_subb_u32 s{T1}, s{T1}, 0")
        A(f"global_load_dword v23, v12, {sp(T0)}")
        A.label(pf)
    nn = uid("nn")
    A(f"s_lshl_b32 s{T0}, s2, 3\ns_add_u32 s{T0}, s{T0}, s{WAVE}\ns_cmp_lg_u32 s{T0}, 4")
    A(f"s_cbranch_scc1 {nn}")
    A(f"s_load_dword s3, {sp(WS)}, {WS_NONCE}")
    A(f"v_mov_b32 v22, 0\nv_lshlrev_b32 v23, 7, v1\nv_add_u32 v23, {WS_CNT}, v23")
    A(f"global_store_dword v23, v22, {sp(WS)} sc1")
    A.label(nn)

    def publish_nonce(young):
        nn = uid("nn")
        A(f"s_lshl_b32 s{CNT}, s2, 3\ns_add_u32 s{CNT}, s{CNT}, s{WAVE}\ns_cmp_lg_u32 s{CNT}, 4")
        A(f"s_cbranch_scc1 {nn}")
        A(f"s_waitcnt vmcnt({young}) lgkmcnt(0)")
        A(f"s_add_u32 s3, s3, 1\ns_cmp_eq_u32 s3, 0\ns_cselect_b32 s3, 1, s3")
        A(f"v_mov_b32 v23, s3\nv_mov_b32 v22, 0")
        A(f"s_mov_b64 exec, 1\nglobal_store_dword v22, v23, {sp(DBG)} sc1")
        A(f"global_store_dword v22, v23, {sp(WS)} offset:{WS_NONCE}\ns_mov_b64 exec, -1")
        A.label(nn)
    if NOAUX:
        if BARP:
            A("s_barrier")
        publish_nonce(0)
        if CTW:
            for _ in range(E_("CTD", 100)):
                A("s_sleep 1")
            c_touch(A, vm)
        A("s_endpgm")
        return
    aux_setup1(A)
    if AXT == 0:
        aux_issue(A, vm)
        if WXT == 0:
            w_issue(A, vm)
    RA, RB, ROT, M0B, SOF, RV = 12, 20, 16, 17, 8, 176
    A(f"s_lshr_b32 s{T4}, s{W_}, 1\ns_and_b32 s{T5}, s{W_}, 1")
    dma_setup(A, T4, T5, RV, 8, CNT, 3) if False else None
    A(f"s_lshl_b32 s{T4}, s{TI}, 18\ns_lshl_b32 s{T5}, s{TJ}, 17")
    srd(A, RA, BX, T4, 0, 0x40000)
    A(f"s_bitcmp1_b32 s{W_}, 0\ns_cselect_b32 s8, s{BIM}, s{BRE}\ns_cselect_b32 s9, s{BIM+1}, s{BRE+1}")
    srd(A, RB, 8, T5, 0, 0x20000)
    rot_setup(A, ROT, T4)
    A(f"s_lshl_b32 s{M0B}, s{W_}, 12")
    piece = make_piece(A, vm, RA, RB, ROT, M0B, SOF, RV)
    if BARP == 1:
        A("s_barrier")
    trace(A, 0, 0)
    make_F(A, 92)
    make_T(A, T, 92, 0)
    aux_pre(A)
    if AXT == 2:
        aux_issue(A, vm)
    if AXT >= 10:
        l_check(A, AXT - 10 + 1, RING_LG - 16)
        aux_issue(A, vm)
    if WXT == 2 or (WXT == 0 and AXT != 0):
        w_issue(A, vm)
    A(f"s_lshr_b32 s{T4}, s{W_}, 1\ns_and_b32 s{T5}, s{W_}, 1")
    dma_setup(A, T4, T5, RV, 24, CNT, 19)
    publish_nonce(len(vm.issued))
    A("v_mov_b32 v20, 0")
    vm.op(f"global_load_dword v21, v20, {sp(DBG)} sc1", "nonce")
    trace(A, 0, 1)
    a1_task(A, vm)
    Lt = Asm()
    make_T(Lt, TT, 92, 1)
    later = Lt.lines
    own = f"v{SO}"

    def landed(k):
        vm.wait_for(("st", k))
        A(f"v_mov_b32 v{ST+4}, {k+1}\ns_mov_b64 exec, 1\nds_write_b32 {own}, v{ST+4} offset:{RING_LA - 16}\ns_mov_b64 exec, -1")
    pa = None
    for q in range(KS0, 16):
        if q >= NS:
            if PAL == 0 and KS0 + 3 <= q <= KS0 + 6:
                l_check_loose(A, q - NS + 1, RING_D - 16)
            else:
                l_check(A, q - NS + 1, RING_D - 16, slp=RSLP)
        trace(A, 0, 16 + q)
        for n in range(8):
            if n == LPOS and q > KS0:
                landed(q - 1)
            piece(q, n)
        if LPOS == 8 and q > KS0:
            landed(q - 1)
        if q == KS0 + 1:
            y = uid("sg")
            A(f"v_readfirstlane_b32 s{NONCE}, v21\ns_cmp_lg_u32 s{NONCE}, 0\ns_cbranch_scc1 {y}")
            get_nonce(A, 20)
            A.label(y)
            pa = l_arrive(A)
        if q == KS0 + 2 and PAL == 0:
            phase_atomic(A, CNT_A, pa)
        if q == KS0 + 4 and PAL == 0:
            phase_last(A, FLG_A, wait=False, nrep=NREPA)
        if q == CTK and CTW == 0:
            c_touch(A, vm)
        if q >= KS0 + 1:
            npart = -(-len(later) // max(1, 14 - q))
            for _ in range(npart if q < 14 else len(later)):
                if later:
                    A(later.pop(0))
        if q == 14:
            a2_setup(A)
    assert not later
    landed(15)
    if PAL:
        phase_atomic(A, CNT_A, pa)
        phase_last(A, FLG_A, nrep=NREPA)
    trace(A, 0, 6)
    aux_rest(A, vm)
    trace(A, 0, 14)
    if TRACE:
        A("s_waitcnt vmcnt(0)")
    trace(A, 0, 15)
    trace_dump(A, 0, WAVE, 1)
    stamp_end(A, kidx, WAVE)
    A("s_endpgm")


M16 = "v_mfma_f32_16x16x32_bf16"
XRW = 144
L_XC = 114688


def cpow(A, d, zr, zi, n, t):
    if isinstance(n, str):
        A(f"v_mul_f32 v{t}, {n}, v{zr}\nv_mul_f32 v{t+1}, {n}, v{zi}")
    else:
        A(f"v_mul_f32 v{t}, {fl(n)}, v{zr}\nv_mul_f32 v{t+1}, {fl(n)}, v{zi}")
    A(f"v_exp_f32 v{t}, v{t}\nv_rndne_f32 v{t+2}, v{t+1}\nv_sub_f32 v{t+1}, v{t+1}, v{t+2}")
    A(f"v_cos_f32 v{t+2}, v{t+1}\nv_sin_f32 v{t+1}, v{t+1}")
    A(f"v_mul_f32 v{d}, v{t}, v{t+2}\nv_mul_f32 v{d+1}, v{t}, v{t+1}")


def gemm_waves(A, name, kidx):
    U = lambda pg, c, idx: 64 + (pg*2 + c)*16 + 2*idx
    ACC = lambda mt, nt: 64 + ((nt & 1)*2 + (nt >> 1))*16 + 4*mt
    FR = lambda X, f: (32 if X == 0 else 144) + 4*f
    AD = lambda st, op, k2: 128 + st*4 + op*2 + k2
    LAM = lambda pg: 20 + 2*pg
    KC = lambda pg: 24 + 2*pg
    L8 = lambda pg: 176 + 2*pg
    L16 = lambda pg: 180 + 2*pg
    PP = lambda pg: 184 + 4*pg
    PW = lambda pg, idx: 208 + 16*pg + 2*idx
    Q16, Q64, Q128, Q256 = 28, 192, 30, 2
    WT_, WP = T8, T6
    A(f"s_lshr_b32 s{WT_}, s{WAVE}, 1\ns_and_b32 s{WP}, s{WAVE}, 1\ns_lshr_b32 s{PG}, s{TJ}, 3")
    A("v_and_b32 v6, 31, v1\nv_lshrrev_b32 v5, 5, v1\nv_lshlrev_b32 v11, 4, v1")
    A("v_mov_b64 v[64:65], 0\nv_mov_b64 v[66:67], 0")
    A(f"s_mul_i32 s{T0}, s{WAVE}, {16*XRW}\ns_add_u32 s{T0}, s{T0}, {L_XC}\nv_add_u32 v13, s{T0}, v11\nv_mov_b32 v12, {L_SYNC}")
    A("ds_write_b128 v13, v[64:67]\nds_write_b128 v13, v[64:67] offset:1024\nds_write_b128 v13, v[64:67] offset:2048")
    A("s_mov_b64 exec, 1\nds_write_b128 v12, v[64:67]\nds_write_b128 v12, v[64:67] offset:16\nds_write_b128 v12, v[64:67] offset:32\nds_write_b128 v12, v[64:67] offset:48\nds_write_b128 v12, v[64:67] offset:64\ns_mov_b64 exec, -1")
    A(f"s_lshl_b32 s{T0}, s{WAVE}, 2\nv_add_u32 v13, s{T0}, v12")
    A("s_waitcnt lgkmcnt(0)\ns_barrier")
    A("v_bfe_u32 v4, v1, 2, 2\nv_lshlrev_b32 v4, 3, v4\nv_and_b32 v7, 3, v1\nv_add_u32 v4, v4, v7")
    A(f"s_lshl_b32 s{T0}, s{TJ}, 6\ns_lshl_b32 s{T1}, s{WP}, 5\ns_add_u32 s{T0}, s{T0}, s{T1}")
    A(f"v_add_u32 v4, s{T0}, v4\nv_lshlrev_b32 v7, 1, v4")
    RA, RB, ROT, M0B, SOF, RV = S2, S3, 38, 39, T2, 244
    dma_setup(A, WT_, WP, RV, 14, T1, T2)
    rot_setup(A, ROT, T0)
    A(f"s_lshl_b32 s{T0}, s{TI}, 18\ns_lshl_b32 s{T1}, s{TJ}, 17\ns_lshl_b32 s{M0B}, s{WAVE}, 12")
    A("s_waitcnt lgkmcnt(0)")
    PRM = 248
    for pg in range(2):
        A(f"global_load_ushort v{PRM+3*pg}, v7, {sp(LRE)} offset:{8*pg}\nglobal_load_ushort v{PRM+1+3*pg}, v7, {sp(LIM)} offset:{8*pg}\nglobal_load_ushort v{PRM+2+3*pg}, v7, {sp(LDT)} offset:{8*pg}")
    srd(A, RA, BX, T0, 0, 0x40000)
    A(f"s_cmp_eq_u32 s{WP}, 1\ns_cselect_b32 s{T2}, s{BIM}, s{BRE}\ns_cselect_b32 s{T3}, s{BIM+1}, s{BRE+1}")
    srd(A, RB, T2, T1, 0, 0x20000)
    vm1 = VmCounter(A)

    piece = make_piece(A, vm1, RA, RB, ROT, M0B, SOF, RV)
    for n in range(8):
        piece(0, n)
    A("v_bfe_u32 v7, v1, 4, 1\nv_lshl_add_u32 v4, v7, 2, v4")
    A("v_bfe_u32 v7, v6, 1, 3\nv_xor_b32 v7, v7, v5\nv_lshlrev_b32 v7, 4, v7\nv_lshl_add_u32 v7, v6, 7, v7")
    A("v_and_b32 v8, 15, v1\nv_lshrrev_b32 v9, 4, v1")
    A("v_lshrrev_b32 v14, 1, v8\nv_xor_b32 v14, v14, v9\nv_lshlrev_b32 v14, 4, v14\nv_lshl_add_u32 v14, v8, 7, v14")
    A(f"s_lshl_b32 s{T0}, s{WT_}, 13\ns_lshl_b32 s{T1}, s{WP}, 13\ns_add_u32 s{T1}, s{T1}, 16384")
    for k2 in range(2):
        A(f"v_xor_b32 v15, {k2 << 6}, v14")
        A(f"v_add_u32 v{AD(0,0,k2)}, s{T0}, v15\nv_add_u32 v{AD(0,1,k2)}, s{T1}, v15")
        A(f"v_add_u32 v{AD(1,0,k2)}, 0x10000, v{AD(0,0,k2)}\nv_add_u32 v{AD(1,1,k2)}, 0x10000, v{AD(0,1,k2)}")
    Areal, A = A, Asm()
    srd(A, S0, WS, None, WS_EG, 0x40000)
    srd(A, S1, WS, None, WS_HT, 64*TBS)
    A(f"s_mul_i32 s{T0}, s{WP}, {32*XRW}\ns_add_u32 s{T0}, s{T0}, {L_XC + 64}\ns_lshl_b32 s{T1}, s{WT_}, 5\ns_add_u32 s{T1}, s{T1}, s{T0}")
    A(f"v_mul_u32_u24 v14, {XRW}, v6\nv_add_u32 v14, s{T0}, v14\nv_lshl_add_u32 v14, v5, 5, v14")
    A(f"v_mul_u32_u24 v15, {XRW}, v8\nv_add_u32 v15, s{T1}, v15\nv_lshl_add_u32 v15, v9, 3, v15")
    A(f"s_lshl_b32 s{T0}, s{TI}, 14\nv_lshl_add_u32 v16, v4, 4, s{T0}")
    A("v_mov_b32 v17, 0x40000000\nv_lshlrev_b32 v10, 14, v5\nv_sub_u32 v10, v16, v10")
    LA_, LX = 194, 200
    for u in range(8):
        A(f"v_subrev_u32 v{136+u}, {16384 + u*32768}, v10\nv_cmp_le_i32 vcc, 0, v{136+u}\nv_cndmask_b32 v{136+u}, v17, v{136+u}, vcc")
    A("v_lshlrev_b32 v17, 30, v5\nv_or_b32 v16, v16, v17")
    A(f"s_lshl_b32 s{T0}, s{TI}, 11\ns_add_u32 s{T0}, s{T0}, {FLG_X}\ns_lshl_b32 s{T1}, s{TJ}, 7\ns_add_u32 s{T1}, s{T1}, s{T0}\nv_mov_b32 v195, s{T1}")
    A(f"s_lshl_b32 s{T1}, s{PG}, 10\ns_add_u32 s{T0}, s{T0}, s{T1}\nv_and_b32 v196, 7, v1\nv_lshl_add_u32 v196, v196, 7, s{T0}")
    A(f"s_lshl_b32 s{T0}, s{TI}, 1\ns_add_u32 s{T0}, s{T0}, s{WT_}\ns_lshl_b32 s{T0}, s{T0}, 12\ns_add_u32 s{T0}, s{T0}, {FLG_H}")
    A(f"s_lshl_b32 s{T1}, s{PG}, 11\ns_add_u32 s{T1}, s{T1}, s{T0}\nv_lshl_add_u32 v18, v8, 7, s{T1}")
    A(f"s_lshl_b32 s{T1}, s{TJ}, 8\ns_add_u32 s{T0}, s{T0}, s{T1}\ns_lshl_b32 s{T1}, s{WP}, 7\ns_add_u32 s{T0}, s{T0}, s{T1}\nv_mov_b32 v19, s{T0}")
    A("v_lshrrev_b32 v10, 1, v9\nv_lshlrev_b32 v10, 10, v10\nv_and_b32 v17, 1, v9\nv_lshl_add_u32 v10, v17, 9, v10\nv_lshl_add_u32 v10, v8, 4, v10")
    A(f"s_lshl_b32 s{T0}, s{WT_}, 2\nv_add_u32 v9, s{T0}, v9\nv_cvt_f32_u32 v9, v9\nv_mul_f32 v9, 0x41800000, v9\nv_add_f32 v8, 0x41000000, v9")
    A("PARAMWAIT")
    ZR, ZI = 204, 206
    for pg in range(2):
        lr, li, dt, t = PRM+3*pg, PRM+1+3*pg, PRM+2+3*pg, 197
        A(f"v_lshlrev_b32 v{lr}, 16, v{lr}\nv_lshlrev_b32 v{li}, 16, v{li}\nv_lshlrev_b32 v{dt}, 16, v{dt}")
        A(f"v_mul_f32 v{dt}, 0x3fb8aa3b, v{dt}\nv_exp_f32 v{dt}, v{dt}")
        A(f"v_cvt_pk_bf16_f32 v{dt}, v{dt}, v{dt}\nv_lshlrev_b32 v{dt}, 16, v{dt}")
        A(f"v_mul_f32 v{ZR+pg}, v{dt}, v{lr}\nv_mul_f32 v{ZI+pg}, v{dt}, v{li}")
        A(f"v_mul_f32 v{ZR+pg}, 0x3fb8aa3b, v{ZR+pg}\nv_mul_f32 v{ZI+pg}, 0.15915494, v{ZI+pg}")
        cpow(A, LAM(pg), ZR+pg, ZI+pg, 1.0, t)
        A(f"v_add_f32 v{t}, -1.0, v{LAM(pg)}")
        A(f"v_mul_f32 v{t+1}, v{lr}, v{lr}\nv_fma_f32 v{t+1}, v{li}, v{li}, v{t+1}\nv_rcp_f32 v{t+1}, v{t+1}")
        A(f"v_add_f32 v{t+1}, v{t+1}, v{t+1}")
        A(f"v_mul_f32 v{t+2}, v{t}, v{lr}\nv_fma_f32 v{t+2}, v{LAM(pg)+1}, v{li}, v{t+2}\nv_mul_f32 v{KC(pg)}, v{t+2}, v{t+1}")
        A(f"v_mul_f32 v{t+2}, v{LAM(pg)+1}, v{lr}\nv_fma_f32 v{t+2}, -v{t}, v{li}, v{t+2}\nv_mul_f32 v{KC(pg)+1}, v{t+2}, v{t+1}")
        cpow(A, L8(pg), ZR+pg, ZI+pg, 8.0, t)
        cpow(A, L16(pg), ZR+pg, ZI+pg, 16.0, t)
        for e in range(2):
            cpow(A, 200, ZR+pg, ZI+pg, f"v{9-e}", t)
            A(f"v_mov_b32 v{PP(pg)+e}, v200\nv_mov_b32 v{PP(pg)+2+e}, v201")
        for idx in range(8):
            sr, si = (KC(pg), KC(pg)+1) if idx == 0 else (PW(pg, idx-1), PW(pg, idx-1)+1)
            A(f"v_mul_f32 v{t}, v{si}, v{LAM(pg)+1}\nv_mul_f32 v{t+1}, v{si}, v{LAM(pg)}")
            A(f"v_fma_f32 v{PW(pg,idx)}, v{sr}, v{LAM(pg)}, -v{t}\nv_fma_f32 v{PW(pg,idx)+1}, v{sr}, v{LAM(pg)+1}, v{t+1}")
    A(f"v_and_b32 v197, 16, v1\nv_cmp_ne_u32 vcc, 0, v197\nv_cndmask_b32 v{ZR}, v{ZR}, v{ZR+1}, vcc\nv_cndmask_b32 v{ZI}, v{ZI}, v{ZI+1}, vcc")
    for d, n in ((Q16, 16.0), (Q64, 64.0), (Q128, 128.0), (Q256, 256.0)):
        cpow(A, d, ZR, ZI, n, 197)
    A("v_lshrrev_b32 v197, 4, v1\nv_lshlrev_b32 v197, 2, v197\nv_and_b32 v198, 15, v1\nv_sub_u32 v197, v198, v197\nv_mov_b32 v198, 0x3f80\nv_mov_b32 v199, 1.0")
    for c in range(4):
        A(f"v_cmp_eq_u32 vcc, {c}, v197\nv_cndmask_b32 v{248+c}, 0, v198, vcc\nv_cndmask_b32 v{252+c}, 0, v199, vcc")

    deferred, A = A.lines, Areal
    pw = deferred.index("PARAMWAIT")
    for l in deferred[:pw]:
        A(l)
    deferred = deferred[pw+1:]
    assert KS0 <= NPRE
    if DEFER:
        for k in range(1, KS0):
            for n in range(8):
                piece(k, n)
    else:
        npre = 8
        if P1 == 0 and KS0 > 1:
            for n in range(8):
                piece(1, n)
            npre = 16
        A(f"s_waitcnt vmcnt({npre})")
        rest = [(k, n) for k in range(npre//8, KS0) for n in range(8)]
        lo, hi = int(len(deferred)*P2A/100), int(len(deferred)*P2B/100)
        at = [lo + (hi - lo)*q//max(1, len(rest)) for q in range(len(rest))]
        for i, l in enumerate(deferred):
            while at and at[0] <= i and l.startswith("v_") and not l.startswith("v_cnd"):
                at.pop(0)
                piece(*rest.pop(0))
            A(l)
        for r_ in rest:
            piece(*r_)
        deferred = []
    order = [0, 4, 5, 6, 7, 1, 2, 3]
    need = {0: 2, 1: 3, 2: 4, 3: 5, 4: 6, 8: 7, 12: 8}

    def rd(k, k2, f):
        slot = k % NS
        st, off = slot >> 1, (slot & 1)*32768
        A(f"ds_read_b128 {v(FR(k2, f), 4)}, v{AD(st, f >> 2, k2)} offset:{off + (f & 3)*2048}")
    trace_init(A, 0)
    trace(A, 0, 0)
    A(f"s_setprio {GPRIO}")
    def ring_arrive(k, done, landed, t=202):
        A("s_mov_b64 exec, 1")
        if done:
            A(f"v_mov_b32 v{t}, {k}\nds_write_b32 v13, v{t} offset:{RING_D}")
        if landed:
            A(f"v_mov_b32 v{t+1}, {k+1}\nds_write_b32 v13, v{t+1} offset:{RING_LG}")
        A("s_mov_b64 exec, -1")

    def ring_read(k, done):
        assert not done
        A(f"ds_read_b128 v[240:243], v12 offset:{RING_LG if k < KS0 else RING_LA}")

    def ring_check(k, done):
        l, d = uid("rk"), uid("rkd")
        A.label(l)
        A("v_min3_u32 v202, v240, v241, v242\nv_min_u32 v202, v202, v243")
        A(f"v_readfirstlane_b32 s{T0}, v202")
        A(f"s_cmp_ge_u32 s{T0}, {k+1}")
        A(f"s_cbranch_scc1 {d}")
        ring_read(k, done)
        A(f"s_waitcnt lgkmcnt(0)\ns_branch {l}")
        A.label(d)
    vm1.wait_for(("st", 0))
    ring_arrive(0, False, True)
    ring_read(0, False)
    A("s_waitcnt lgkmcnt(0)")
    ring_check(0, False)
    trace(A, 0, 1)
    for f in order:
        rd(0, 0, f)
    dslots = [int(x) for x in DMAP.split(",")]
    pend = [(k, n) for k in range(NPRE, KS0) for n in range(8)]
    for k in range(16):
        for k2 in range(2):
            nk, nk2 = (k, 1) if k2 == 0 else (k+1, 0)
            have = nk < 16
            if k == 13 and k2 == 0:
                assert not deferred, len(deferred)
                vm1.op(f"v_mov_b32 v8, 0\nglobal_load_dword v9, v8, {sp(DBG)} sc1", "nonce")
            n = 0
            for m in range(16):
                if k2 == 0 and m in need and m < FM:
                    A(f"s_waitcnt lgkmcnt({8 - need[m] + n})")
                if k2 == 0 and m == FM:
                    if k + 1 < KS0:
                        w = vm1.wait_for(("st", k+1), emit=False)
                        A(f"s_waitcnt vmcnt({w}) lgkmcnt(0)")
                        ring_arrive(k+1, True, True)
                    else:
                        A("s_waitcnt lgkmcnt(0)")
                        if k + NS < 16 or k == 15:
                            ring_arrive(k+1, True, False)
                if k2 == 1 and m == 0 and have:
                    ring_read(k+1, k + NS < KS0)
                if k2 == 1 and m == CM and have:
                    A("s_waitcnt lgkmcnt(0)")
                    ring_check(k+1, k + NS < KS0)
                mt, nt = m >> 2, m & 3
                if "m" not in G1X or k + k2 == 0:
                    A(f"{M16} {v(ACC(mt,nt),4)}, {v(FR(k2,mt),4)}, {v(FR(k2,4+nt),4)}, {'0' if k + k2 == 0 else v(ACC(mt,nt),4)}")
                if have and n < 8 and (k2 == 0 or m >= CM):
                    if "r" not in G1X:
                        rd(nk, nk2, order[n])
                    n += 1
                elif k >= DK0:
                    for _ in range(DEFER):
                        if deferred:
                            A(deferred.pop(0))
                for q, ds in enumerate(dslots):
                    kk, mm = (k, ds) if ds < 16 else ((k - 1, ds) if k2 == 0 else (k - 1, ds - 16))
                    pos = m if (k2 == 1 and ds < 16) else (m + 16 if k2 == 0 else m + 32)
                    if k2 == 1 and ds < 16:
                        hit, kk = (m == ds), k
                    elif k2 == 0:
                        hit, kk = (16 <= ds < 32 and m + 16 == ds), k - 1
                    else:
                        hit, kk = (ds >= 32 and m + 32 == ds), k - 1
                    if k2 == 1 and ds >= 32:
                        hit, kk = (m + 32 == ds), k - 1
                    if hit and kk >= 0 and kk + NS < KS0 and kk + NS >= NPRE:
                        assert pend[0] == (kk + NS, q), (pend[0], kk, q)
                        piece(*pend.pop(0))
            if k == 15 and k2 == 0:
                nl, ng = uid("n"), uid("ng")
                A.label(nl)
                A(f"s_waitcnt vmcnt(0)\nv_readfirstlane_b32 s{NONCE}, v9\ns_cmp_lg_u32 s{NONCE}, 0\ns_cbranch_scc1 {ng}")
                A(f"global_load_dword v9, v8, {sp(DBG)} sc1\ns_branch {nl}")
                A.label(ng)
                A(f"s_getreg_b32 s{T0}, hwreg(HW_REG_XCC_ID, 0, 4)\ns_lshl_b32 s{T1}, s{NONCE}, 4\ns_or_b32 s{LOCAL}, s{T0}, s{T1}")
                A(f"v_mov_b32 v194, s{LOCAL}\nv_mov_b32 v202, s{NONCE}\nv_mov_b32 v203, s{NONCE}")
            if TRACE == 2 and k2 == 1:
                trace(A, 0, 40 + k)
    assert not pend, pend
    mark(A, 1)
    trace(A, 0, 2)
    bc_a = "op_sel_hi:[0,1,1]"
    bc_b = "op_sel:[1,0,0]"
    TT = 40
    for idx in range(1, 8):
        for half in range(2):
            for pg in range(2):
                L, t = v(LAM(pg), 2), TT + 4*pg
                pr, pi, ur, ui = (v(x, 2) for x in (U(pg, 0, idx-1), U(pg, 1, idx-1), U(pg, 0, idx), U(pg, 1, idx)))
                if half == 0:
                    A(f"v_pk_fma_f32 {v(t,2)}, {L}, {pr}, {ur} {bc_a}\nv_pk_fma_f32 {v(t+2,2)}, {L}, {pi}, {ui} {bc_a}")
                else:
                    A(f"v_pk_fma_f32 {ur}, {L}, {pi}, {v(t,2)} {bc_b} {N0}\nv_pk_fma_f32 {ui}, {L}, {pr}, {v(t+2,2)} {bc_b}")
    for pg in range(2):
        er, ei = U(pg, 0, 7), U(pg, 1, 7)
        horner(A, 32+2*pg, 33+2*pg, L8(pg), er, ei, er+1, ei+1, TT)
        A(f"ds_write_b64 v15, {v(32+2*pg,2)} offset:{16*XRW*pg}")
    trace(A, 0, 3)
    A("s_waitcnt lgkmcnt(0)")
    ring_arrive(17, True, False, t=197)
    l_, d_ = uid("ek"), uid("ekd")
    A.label(l_)
    A(f"ds_read_b128 v[198:201], v12 offset:{RING_D}\ns_waitcnt lgkmcnt(0)")
    A("v_min3_u32 v197, v198, v199, v200\nv_min_u32 v197, v197, v201")
    A(f"v_readfirstlane_b32 s{T0}, v197\ns_cmp_lt_u32 s{T0}, 17\ns_cbranch_scc1 {l_}")
    trace(A, 0, 4)
    SG = 48
    A(f"ds_read_b128 {v(SG,4)}, v14\nds_read_b128 {v(SG+4,4)}, v14 offset:16")
    P = 200
    A("s_waitcnt lgkmcnt(1)")
    horner(A, 32, 33, Q16, SG, SG+1, SG+2, SG+3, TT)
    A("s_waitcnt lgkmcnt(0)")
    horner(A, 34, 35, Q16, 32, 33, SG+4, SG+5, TT)
    horner(A, 32, 33, Q16, 34, 35, SG+6, SG+7, TT)
    A("v_mov_b32 v34, v32\nv_mov_b32 v35, v33\nv_permlane32_swap_b32 v32, v34\nv_permlane32_swap_b32 v33, v35")
    horner(A, P, P+1, Q64, 32, 33, 34, 35, TT)
    np_ = uid("np")
    A(f"s_cmp_lg_u32 s{WT_}, 0")
    A(f"s_cbranch_scc1 {np_}")
    A(f"buffer_store_dwordx4 {v(P,4)}, v16, {r4(S0)}, 0 offen sc1")
    A(f"s_cmp_lg_u32 s{WP}, 0")
    A(f"s_cbranch_scc1 {np_}")
    A(f"s_mov_b64 exec, 1\nglobal_store_dword v195, v194, {sp(WS)} sc1\ns_mov_b64 exec, -1")
    A.label(np_)
    mark(A, 2)
    trace(A, 0, 5)
    A(f"global_load_dword v243, v18, {sp(WS)} sc1")
    LB = 144

    def lbloads():
        for u in range(8):
            A(f"buffer_load_dwordx4 {v(LB+4*u,4)}, v{136+u}, {r4(S0)}, 0 offen sc1")
        A(f"global_load_dword v197, v196, {sp(WS)} sc1")
    QS = 32
    A("v_add_u32 v15, -56, v15")
    for pg in range(2):
        for w in range(7):
            A(f"ds_read_b64 {v(QS+14*pg+2*w,2)}, v15 offset:{16*XRW*pg + 8*w}")
    QQ = lambda pg: 128 + 4*pg
    TQ = 60
    A("s_waitcnt lgkmcnt(0)")
    for pg in range(2):
        b = QS + 14*pg
        for w in range(1, 6):
            horner(A, b+2*w, b+2*w+1, L16(pg), b+2*w-2, b+2*w-1, b+2*w, b+2*w+1, TQ)
        horner(A, QQ(pg), QQ(pg)+2, L16(pg), b+10, b+11, b+12, b+13, TQ)
        horner(A, QQ(pg)+1, QQ(pg)+3, L8(pg), QQ(pg), QQ(pg)+2, U(pg, 0, 7), U(pg, 1, 7), TQ)
    trace(A, 0, 6)
    O = 32
    cnt = 0
    if LBAT == 0:
        lbloads()
    for idx in range(8):
        for pg in range(2):
            d0, d1, K_, o = v(U(pg, 0, idx), 2), v(U(pg, 1, idx), 2), v(KC(pg), 2), O + 4*pg
            A(f"v_pk_mul_f32 {v(o,2)}, {K_}, {d0} op_sel_hi:[0,1]")
            A(f"v_pk_mul_f32 {v(o+2,2)}, {K_}, {d1} op_sel_hi:[0,1] neg_lo:[1,0] neg_hi:[1,0]")
            A(f"v_pk_fma_f32 {v(o+2,2)}, {K_}, {d0}, {v(o+2,2)} {bc_b} {N0}")
            A(f"v_pk_fma_f32 {d0}, {K_}, {d1}, {v(o,2)} {bc_b} {N0}")
            A(f"v_mov_b64 {d1}, {v(o+2,2)}")
            cnt += 1
            if cnt == LBAT:
                lbloads()
    trace(A, 0, 7)
    A("v_mov_b32 v14, 1\ns_mov_b64 exec, 1\nds_write_b32 v13, v14\ns_mov_b64 exec, -1")
    M0B, RH, RCc, SH, SC = T7, T5, T4, T3, T2
    ACC2 = lambda nt: 32 + 16*nt
    CF = lambda X, nt: 96 + 16*X + 4*nt
    XR, CV = 128, 244
    HR = lambda s_: 148 + 4*(s_ % HD)
    L_OWN = 65536
    A(f"s_xor_b32 s{T0}, s{WT_}, s{PG}\ns_xor_b32 s{T0}, s{T0}, 1\ns_lshl_b32 s{T0}, s{T0}, 6\ns_add_u32 s{T0}, s{T0}, s{WP}")
    A(f"v_lshrrev_b32 v8, 3, v1\nv_lshl_add_u32 v8, v8, 1, s{T0}\nv_lshlrev_b32 v8, 11, v8")
    A("v_and_b32 v14, 7, v1\nv_lshrrev_b32 v15, 4, v1\nv_xor_b32 v14, v14, v15\nv_lshlrev_b32 v14, 4, v14\nv_xor_b32 v15, 64, v14")
    for u in range(4):
        A(f"v_add_u32 v{CV+u}, v8, v{14 + (u & 1)}")
        if u:
            A(f"v_add_u32 v{CV+u}, {u*(16*2048 - 1024)}, v{CV+u}")
    A(f"s_and_b32 s{RCc}, s{TJ}, 7\ns_lshl_b32 s{T0}, s{RCc}, 18\ns_lshl_b32 s{T1}, s{PG}, 10\ns_add_u32 s{T0}, s{T0}, s{T1}")
    srd(A, S2, CRE, T0, 0, 0x40000, T1)
    srd(A, S3, CIM, T0, 0, 0x40000, T1)
    A(f"s_lshl_b32 s{T1}, s{RCc}, 1\ns_add_u32 s{T1}, s{T1}, s{PG}\ns_lshl_b32 s{T1}, s{T1}, 7")
    A(f"s_lshl_b32 s{SH}, s{TI}, 1\ns_add_u32 s{SH}, s{SH}, s{WT_}\ns_lshl_b32 s{T0}, s{SH}, 17\ns_add_u32 s{T0}, s{T0}, s{T1}")
    srd(A, S4, BX, T0, 0, 0x20000, T1)
    A(f"s_add_u32 s{DSK}, s{DSK}, s{T1}\ns_addc_u32 s{DSK+1}, s{DSK+1}, 0")
    A(f"s_lshl_b32 s{T1}, s{T1}, 1\ns_add_u32 s{T1}, s{T1}, 4096\ns_lshl_b32 s{T0}, s{SH}, 19\ns_add_u32 s{T0}, s{T0}, s{T1}")
    A(f"s_add_u32 s{OUT}, s{OUT}, s{T0}\ns_addc_u32 s{OUT+1}, s{OUT+1}, 0\ns_sub_u32 s{LDT}, 0x80000, s{T1}")
    A(f"s_lshl_b32 s{M0B}, s{WAVE}, 12\ns_lshl_b32 s{RH}, s{RCc}, 13\ns_lshl_b32 s{RCc}, s{RCc}, 7")
    A(f"s_lshl_b32 s{T0}, s{WT_}, 14\ns_lshl_b32 s{T1}, s{WP}, 11\ns_add_u32 s{T0}, s{T0}, s{T1}\ns_add_u32 s{T0}, s{T0}, {L_OWN}\nv_add_u32 v16, s{T0}, v10")
    A(f"s_lshl_b32 s{T0}, s{WAVE}, 13\ns_add_u32 s{T0}, s{T0}, {L_OWN}\nv_add_u32 v17, s{T0}, v11")
    for ks in range(4):
        A(f"v_xor_b32 v{20+ks}, {ks << 5}, v7\nv_add_u32 v{24+ks}, 0x10000, v{20+ks}")
    HB = LIM
    A(f"s_mul_i32 s{HB}, s{SH}, {2*TBS}\ns_lshl_b32 s{T1}, s{TJ}, 13\ns_add_u32 s{HB}, s{HB}, s{T1}\ns_lshl_b32 s{T1}, s{WP}, 11\ns_add_u32 s{HB}, s{HB}, s{T1}")
    for u in range(8):
        A(f"v_cmp_gt_u32 vcc, 0x40000, v{136+u}\nv_cndmask_b32 v{40+u}, 0, v202, vcc")
    A(f"s_mov_b32 s{T9}, 0")
    trace(A, 0, 8)
    pl, pd = uid("poll"), uid("polled")
    A.label(pl)
    A("v_mov_b32 v8, 0")
    for u in range(8):
        A(f"s_waitcnt vmcnt({8-u})")
        A(f"v_bitop3_b32 v8, v8, v{LB+4*u+2}, v{40+u} bitop3:0xf6\nv_bitop3_b32 v8, v8, v{LB+4*u+3}, v{40+u} bitop3:0xf6")
    A("s_waitcnt vmcnt(0)\nv_xor_b32 v197, v194, v197\nv_lshrrev_b32 v9, 4, v197\nv_or_b32 v8, v8, v9\nv_cmp_ne_u32 vcc, 0, v8")
    A(f"s_cbranch_vccz {pd}")
    A(f"s_add_u32 s{T9}, s{T9}, 1\ns_cmp_ge_u32 s{T9}, {SPIN_MAX}")
    A(f"s_cbranch_scc1 {pd}")
    lbloads()
    A(f"s_branch {pl}")
    A.label(pd)
    A(f"v_cmp_ne_u32 vcc, 0, v197\ns_cmp_eq_u64 vcc, 0\ns_cselect_b32 s{LOCAL}, {0 if FORCE_REMOTE else 1}, 0")
    mark(A, 3)
    trace(A, 0, 9)
    if TRACE:
        A(f"v_writelane_b32 v0, s{T9}, 63")
    vm = VmCounter(A)

    def cdma(g, us):
        for u in us:
            if u == 0:
                A(f"s_add_u32 m0, s{M0B}, {(g % R)*16384}")
                if g % 2 == 0:
                    A(f"s_add_u32 s{SC}, s{RCc}, {(g >> 1)*128}\ns_and_b32 s{SC}, s{SC}, 0x3ff")
            vm.op(f"buffer_load_dwordx4 v{CV+u}, {r4(S2 if g % 2 == 0 else S3)}, s{SC} offen offset:{u*1024}{NTC} lds", ("c", g))
    cdma(0, range(4))
    cdma(1, range(4))
    A("v_mov_b32 v14, 2\ns_mov_b64 exec, 1\nds_write_b32 v13, v14\ns_mov_b64 exec, -1")
    H0 = LB + 28
    cur = (H0, H0+1)
    for u in range(6, -1, -1):
        d = (48, 49) if cur[0] == H0 else (H0, H0+1)
        horner(A, d[0], d[1], Q256, cur[0], cur[1], LB+4*u, LB+4*u+1, TT)
        cur = d
    assert cur == (48, 49)
    A("v_mov_b32 v50, v48\nv_mov_b32 v51, v49\nv_permlane32_swap_b32 v48, v50\nv_permlane32_swap_b32 v49, v51")
    horner(A, 52, 53, Q128, 50, 51, 48, 49, TT)
    A("v_mov_b32 v54, v52\nv_mov_b32 v55, v53\nv_permlane16_swap_b32 v52, v54\nv_permlane16_swap_b32 v53, v55")
    trace(A, 0, 10)
    G = lambda pg: QQ(pg)
    for pg in range(2):
        Hh, gr, gi, pr, pi = v(52+2*pg, 2), v(G(pg), 2), v(G(pg)+2, 2), v(PP(pg), 2), v(PP(pg)+2, 2)
        A(f"v_pk_fma_f32 {gr}, {Hh}, {pr}, {gr} {bc_a}\nv_pk_fma_f32 {gi}, {Hh}, {pi}, {gi} {bc_a}")
        A(f"v_pk_fma_f32 {gr}, {Hh}, {pi}, {gr} {bc_b} {N0}\nv_pk_fma_f32 {gi}, {Hh}, {pr}, {gi} {bc_b}")
    PK = lambda pg, c, idx: 144 + (pg*2 + c)*8 + idx
    D = lambda c, X, pg: 32 + ((c*2 + X)*2 + pg)*4

    def fix(pg, idx):
        d0, d1, pw, gr, gi = v(U(pg, 0, idx), 2), v(U(pg, 1, idx), 2), v(PW(pg, idx), 2), v(G(pg), 2), v(G(pg)+2, 2)
        A(f"v_pk_fma_f32 {d0}, {pw}, {gr}, {d0} {bc_a}")
        A(f"v_pk_fma_f32 {d1}, {pw}, {gi}, {d1} {bc_a} {N0}")
        A(f"v_pk_fma_f32 {d0}, {pw}, {gi}, {d0} {bc_b} {N0}")
        A(f"v_pk_fma_f32 {d1}, {pw}, {gr}, {d1} {bc_b} {N0}")
        for c in range(2):
            A(f"v_cvt_pk_bf16_f32 v{PK(pg,c,idx)}, v{U(pg,c,idx)}, v{U(pg,c,idx)+1}")

    def tr(u):
        for c in range(2):
            for X in range(2):
                for pg in range(2):
                    A(f"{M16} {v(D(c,X,pg),4)}, {v(PK(pg,c,4*u),4)}, {v(248+4*X,4)}, 0")

    def st(u):
        for c in range(2):
            for X in range(2):
                q = 176 + 16*u + (c*2 + X)*4
                A(f"s_add_u32 s{T1}, s{HB}, {X*TBS + c*4096}")
                for jj in range(4):
                    A(f"v_cvt_pk_bf16_f32 v{q+jj}, v{D(c,X,0)+2*jj}, v{D(c,X,0)+2*jj+1}")
                vm.op(f"buffer_store_dwordx4 {v(q,4)}, v10, {r4(S1)}, s{T1} offen offset:{u*256} sc1", "hst")
                A(f"ds_write_b128 v16, {v(q,4)} offset:{X*8192 + c*4096 + u*256}")
    for u in range(2):
        for idx in range(4*u, 4*u + 4):
            for pg in range(2):
                fix(pg, idx)
            if u == 1 and idx == 5:
                st(0)
                trace(A, 0, 12)
        tr(u)
        if u == 0:
            trace(A, 0, 11)
    st(1)
    mark(A, 4)
    trace(A, 0, 13)
    NK = 64

    def arrive(val):
        A(f"v_mov_b32 v14, {val}")
        A("s_mov_b64 exec, 1\nds_write_b32 v13, v14\ns_mov_b64 exec, -1")

    def check(val, off=0, first=False):
        l, d = uid("ck"), uid("ckd")
        if first:
            A(f"ds_read_b128 v[8:11], v12 offset:{off}\ns_waitcnt lgkmcnt(0)")
        A.label(l)
        A("v_min3_u32 v15, v8, v9, v10\nv_min_u32 v15, v15, v11")
        A(f"v_readfirstlane_b32 s{T0}, v15")
        A(f"s_cmp_ge_u32 s{T0}, {val}")
        A(f"s_cbranch_scc1 {d}")
        A(f"ds_read_b128 v[8:11], v12 offset:{off}\ns_waitcnt lgkmcnt(0)")
        A(f"s_branch {l}")
        A.label(d)

    def hload(s_):
        if s_ % 4 == 0:
            A(f"s_add_u32 s{SH}, s{RH}, {(s_ >> 2)*4096}\ns_and_b32 s{SH}, s{SH}, 0xffff")
        vm.op(f"buffer_load_dwordx4 {v(HR(s_),4)}, v2, {r4(S0)}, s{SH} offen offset:{(s_ & 3)*1024} sc1", ("h", s_))

    def rd2(s_, nts):
        g, ks = s_ >> 2, s_ & 3
        slot = g % R
        base = 20 if slot < 4 else 24
        for nt in nts:
            A(f"ds_read_b128 {v(CF(s_ & 1, nt),4)}, v{base+ks} offset:{(slot & 3)*16384 + nt*4096}")

    def mf(s_, nt):
        c = "0" if s_ == 0 else v(ACC2(nt), 16)
        if E_("HACK16", 0) & 2:
            for z in range(2):
                d = ACC2(nt) + 8*(s_ & 1) + 4*z
                A(f"v_mfma_f32_16x16x32_bf16 {v(d,4)}, {v(HR(s_),4)}, {v(CF(s_ & 1, nt),4)}, {'0' if s_ < 2 else v(d,4)}")
        else:
            A(f"{MF} {v(ACC2(nt),16)}, {v(HR(s_),4)}, {v(CF(s_ & 1, nt),4)}, {c}")
    A("v_mov_b32 v2, v11")
    A(f"s_lshl_b32 s{T0}, s{TI}, 2\ns_add_u32 s{T0}, s{T0}, s{WAVE}\ns_mul_i32 s{T0}, s{T0}, {TBS}\ns_lshl_b32 s{T1}, s{PG}, 16\ns_add_u32 s{T0}, s{T0}, s{T1}")
    srd(A, S0, WS, T0, WS_HT, 0x10000)
    if not OWNFIRST and C23:
        cdma(2, range(4))
        cdma(3, range(4))
    A(f"s_waitcnt vmcnt({vm.wait_for(('c', 1), emit=False)}) lgkmcnt(0)")
    trace(A, 0, 14)
    arrive(3)
    check(3, first=True)
    trace(A, 0, 15)
    for s_ in range(8):
        A(f"ds_read_b128 {v(HR(s_),4)}, v17 offset:{s_*1024}")
    hn = [8]

    def pause():
        A(f"s_lshl_b32 s{T0}, s{WP}, 3\nv_lshl_add_u32 v17, v5, 4, s{T0}")
        A("v_lshlrev_b32 v28, 11, v17\nv_lshl_add_u32 v28, v6, 2, v28")
        A("v_lshlrev_b32 v29, 13, v17\nv_lshl_add_u32 v29, v6, 3, v29")
        A(f"v_lshlrev_b32 v30, 2, v6\nv_mov_b32 v15, s{NONCE}")
        a, b = uid("rs"), uid("rd")
        trace(A, 0, 16)
        vm.wait_for("hst")
        trace(A, 0, 17)
        A(f"s_mov_b64 exec, 1\ns_cmp_eq_u32 s{LOCAL}, 0\ns_cbranch_scc1 {a}")
        A(f"global_store_dword v19, v15, {sp(WS)}\ns_branch {b}")
        A.label(a)
        A(f"global_store_dword v19, v15, {sp(WS)} sc1")
        A.label(b)
        A("s_mov_b64 exec, -1")
        if not E_("GM", 0):
            mark(A, 5)
        check(4, first=True)
        if not NOAUX:
            check(LIMG_FREE, 16, first=True)
        if CTOUCH == 5:
            xtouch(1)
        if CTOUCH == 8:
            ctouch()
        for gg in range(4 if C23 else 2, CPOLL):
            cdma(gg, range(4))
        trace(A, 0, 18)
        wait_cnt(A, 18, 8, SLP_H)
        trace(A, 0, 19)
        vm.issued = []
        if not E_("GM", 0):
            mark(A, 6)
        if OWNFIRST:
            arrive(5)
        gg = max(4, CPOLL)
        while hn[0] < 8 + HPRE:
            hload(hn[0])
            hn[0] += 1
            if hn[0] % 4 == 0 and gg < CPRE:
                cdma(gg, range(4))
                gg += 1
        assert gg == CPRE
        if OWNFIRST:
            check(5, first=True)
        trace(A, 0, 20)
        rd2(8 if OWNFIRST else 0, range(4))

    def flag_store():
        a, b = uid("rs"), uid("rd")
        A(f"s_mov_b64 exec, 1\ns_cmp_eq_u32 s{LOCAL}, 0\ns_cbranch_scc1 {a}")
        A(f"global_store_dword v19, v15, {sp(WS)}\ns_branch {b}")
        A.label(a)
        vm.op(f"global_store_dword v19, v15, {sp(WS)} sc1", "flag")
        A.label(b)
        A("s_mov_b64 exec, -1")
    if HTAG:
        A("s_waitcnt lgkmcnt(0)")
        arrive(4)
        A(f"s_lshl_b32 s{T0}, s{WP}, 3\nv_lshl_add_u32 v17, v5, 4, s{T0}")
        A("v_lshlrev_b32 v28, 11, v17\nv_lshl_add_u32 v28, v6, 2, v28")
        A("v_lshlrev_b32 v29, 13, v17\nv_lshl_add_u32 v29, v6, 3, v29")
        A(f"v_lshlrev_b32 v30, 2, v6\nv_mov_b32 v15, s{NONCE}")
        if HTAG == 1:
            wl, wd = uid("hw"), uid("hwd")
            A(f"s_add_u32 s{T1}, s{RH}, 8192\ns_and_b32 s{T1}, s{T1}, 0xffff\ns_mov_b32 s{CNT}, 0\ns_waitcnt lgkmcnt(0)")
            A.label(wl)
            A(f"s_load_dwordx4 s[4:7], {sp(S0)}, s{T1} offset:{4096 + 1024 + 1008} glc\ns_load_dwordx4 s[8:11], {sp(S0)}, s{T1} offset:{4096 + 3072 + 1008} glc")
            A(f"s_add_u32 s{CNT}, s{CNT}, 1\ns_waitcnt lgkmcnt(0)")
            for q in range(2):
                A(f"s_xor_b64 s[{4+2*q}:{5+2*q}], s[{4+2*q}:{5+2*q}], s[{HT_+2*q}:{HT_+2*q+1}]\ns_xor_b64 s[{8+2*q}:{9+2*q}], s[{8+2*q}:{9+2*q}], s[{HT_+2*q}:{HT_+2*q+1}]")
            A("s_or_b64 s[4:5], s[4:5], s[6:7]\ns_or_b64 s[8:9], s[8:9], s[10:11]\ns_or_b64 s[4:5], s[4:5], s[8:9]\ns_or_b32 s4, s4, s5\ns_and_b32 s4, s4, 0x10001")
            A(f"s_cbranch_scc0 {wd}\ns_cmp_lt_u32 s{CNT}, {SPIN_MAX}\ns_cbranch_scc1 {wl}")
            A.label(wd)
        if HTAG == 3:
            vm.wait_for('hst')
            flag_store()
        if HTAG == 2 and HDLY:
            A(f"s_waitcnt vmcnt({vm.wait_for('hst', emit=False) + HDLY})")
        mark(A, 6)
        for s_ in range(8, 16):
            hload(s_)
        hn[0] = 16
        if HTAG != 3:
            vm.wait_for("hst")
            flag_store()
        if not E_("GM", 0):
            mark(A, 5)
        check(4, first=True)
        if not NOAUX:
            check(LIMG_FREE, 16, first=True)
        for gg in range(4, CPOLL):
            cdma(gg, range(4))
        rd2(0, range(4))
    elif OWNFIRST:
        rd2(0, range(4))
        A("s_waitcnt lgkmcnt(4)")
        arrive(4)
    else:
        A("s_waitcnt lgkmcnt(0)")
        arrive(4)
        pause()
    have_c = lambda g: any(t == ("c", g) for t in vm.issued)
    for s_ in range(NK):
        g, ks = s_ >> 2, s_ & 3
        nxt = s_ + 1
        more = nxt < NK and not (nxt == 8 and OWNFIRST)
        ws = []
        if s_ >= 8:
            ws.append(vm.wait_for(("h", s_), emit=False))
        arr = (s_ + 4) % 8 == 0 and s_ + 4 < NK and (s_ >= 8 or not OWNFIRST)
        if arr:
            gl = ((s_ + 4) >> 2) + 1
            if have_c(gl):
                ws.append(vm.wait_for(("c", gl), emit=False))
        wv = f"vmcnt({min(ws)}) " if ws else ""
        newgrp = more and nxt % 8 == 0
        full = newgrp or not more or s_ == 0
        nc = 2 if s_ >= NK - NDEF else 4
        nn = (2 if nxt >= NK - NDEF else 4) if more else 0
        if full:
            A(f"s_waitcnt {wv}lgkmcnt(0)")
            if newgrp:
                check((nxt >> 3) + 4)
                trace(A, 0, 20 + (nxt >> 3))
                if nxt == 32 and not E_('GM', 0):
                    mark(A, 7)
        else:
            A(f"s_waitcnt {wv}lgkmcnt({nc-1})")
        extra = 0
        if arr:
            arrive(((s_ + 4) >> 3) + 4)
            extra = 1
        issued_n = 0
        for nt in range(nc):
            if nt and not full:
                A(f"s_waitcnt lgkmcnt({nc - 1 - nt + extra + issued_n})")
            mf(s_, nt)
            if nt < 2 and issued_n < nn and (nt == 0 or nn == 4):
                rd2(nxt, [issued_n, issued_n + 1])
                issued_n += 2
            if nt == nc - 2:
                if s_ < 8 and OWNFIRST:
                    if C23:
                        cdma(2 + g, [ks])
                elif CPRE <= g + CD < NK//4:
                    cdma(g + CD, [ks])
        assert issued_n == nn
        if HTAG:
            if s_ < 4*(CPRE - CPOLL):
                cdma(CPOLL + g, [ks])
            if s_ == 6:
                tl, td = uid("ht"), uid("htd")
                A(f"s_mov_b32 s{CNT}, 0")
                vm.wait_for(("h", 15))
                A.label(tl)
                A("v_mov_b32 v4, 0")
                for r in range(32):
                    A(f"v_bitop3_b32 v4, v4, v{HR(8)+r}, s{HT_+(r & 3)} bitop3:0xf6")
                A(f"v_and_b32 v4, 0x10001, v4\nv_cmp_ne_u32 vcc, 0, v4\ns_cbranch_vccz {td}")
                A(f"s_add_u32 s{CNT}, s{CNT}, 1\ns_cmp_ge_u32 s{CNT}, {SPIN_MAX}\ns_cbranch_scc1 {td}")
                keep = list(vm.issued)
                for s2_ in range(8, 16):
                    hload(s2_)
                vm.issued = keep
                A(f"s_waitcnt vmcnt(0)\ns_branch {tl}")
                A.label(td)
                if STAMP == 1:
                    A(f"s_add_u32 s72, s70, s{CNT}")
            if s_ == HFI:
                vm.op(f"global_load_dword v16, v18, {sp(WS)} sc1", "fp")
            if s_ == HFC:
                fd = uid("hf")
                vm.wait_for("fp")
                A(f"v_cmp_ne_u32 vcc, s{NONCE}, v16\ns_cbranch_vccz {fd}")
                wait_cnt(A, 18, 16, 1)
                A.label(fd)
        if (s_ >= (HFC if HTAG else 8) or not (OWNFIRST or HTAG)) and hn[0] < NK:
            for _ in range(3 if HTAG else 2):
                if hn[0] < NK and hn[0] <= s_ + HD:
                    hload(hn[0])
                    hn[0] += 1
        if (s_ + 2) % 8 == 0 and s_ + 2 < NK and (s_ >= 8 or not OWNFIRST):
            A("ds_read_b128 v[8:11], v12")
        if s_ == NK - 18:
            vm.op(f"global_load_dword v31, v30, {sp(DSK)}", "dsk")
        if NK - 17 <= s_ < NK - 1:
            e = s_ - (NK - 17)
            q, r = e >> 2, e & 3
            A(f"s_mov_b32 s{T0}, {(32*(q & 1) + 4*(q >> 1) + (r & 2))*2048}")
            vm.op(f"buffer_load_dword v{XR+e}, v28, {r4(S4)}, s{T0} offen offset:{(r & 1)*2048}", ("x", e))
        if s_ == 7 and OWNFIRST:
            pause()
    mark(A, 8)
    trace(A, 0, 28)
    TG = T0
    A(f"s_mul_i32 s{TG}, s{NONCE}, 0x9e3779b1\ns_and_b32 s{TG}, s{TG}, 0xbfff0000\ns_or_b32 s{TG}, s{TG}, 0x20000000")
    A(f"s_sub_u32 s{T1}, s{NONCE}, 1\ns_xor_b32 s{T1}, s{T1}, s{TG}\ns_cmp_lt_u32 s{T1}, 0x10000\ns_cselect_b32 s{T1}, 0x10000, 0\ns_xor_b32 s{TG}, s{TG}, s{T1}")
    if INOUT:
        A(f"s_lshl_b32 s{T4}, s{PG}, 9\ns_sub_i32 s{T4}, 256, s{T4}\ns_ashr_i32 s{T5}, s{T4}, 31")
        A(f"s_add_u32 s{S2}, s{OUT}, s{T4}\ns_addc_u32 s{S2+1}, s{OUT+1}, s{T5}\ns_sub_u32 s{S2+2}, s{LDT}, s{T4}\ns_mov_b32 s{S2+3}, 0x20000")
        A(f"s_mov_b32 s{S3}, s{OUT}\ns_mov_b32 s{S3+1}, s{OUT+1}\ns_mov_b32 s{S3+2}, s{LDT}\ns_mov_b32 s{S3+3}, 0x20000")
        A(f"s_lshl_b32 s{T4}, s{WP}, 16\nv_lshrrev_b32 v3, 4, v1\nv_lshlrev_b32 v3, 13, v3\nv_and_b32 v4, 15, v1\nv_lshl_add_u32 v3, v4, 4, v3\nv_add_u32 v3, s{T4}, v3")
        xad = lambda gq: (f"s_mov_b32 s{T4}, {(16*(gq >> 1) + 4*(gq & 1))*8192}\n", f"v3, SRD, s{T4} offen")
    else:
        A(f"s_lshl_b32 s{T4}, s{TI}, 4\ns_add_u32 s{T4}, s{T4}, s{TJ}\ns_lshl_b32 s{T4}, s{T4}, 2\ns_add_u32 s{T4}, s{T4}, s{WAVE}\ns_lshl_b32 s{T4}, s{T4}, 13")
        srd(A, S2, WS, T4, WS_XB, 0x2000)
        A(f"s_xor_b32 s{T4}, s{T4}, {8 << 15}")
        srd(A, S3, WS, T4, WS_XB, 0x2000)
        A(f"s_movk_i32 s{T4}, 0x1000")
        xad = lambda gq: ("", f"v2, SRD, {'0' if gq < 4 else f's{T4}'} offen offset:{(gq & 3)*1024}")
    val = lambda n: ACC2(n & 1) + (n >> 1)
    TXR, RX = [96, 100, 244, 248, 252], 180
    for gq in range(5):
        for c in range(4):
            n = 7*gq + 2*c
            lo = f"v{val(min(n, 31))}"
            hi = f"s{TG}" if c == 3 else f"v{val(min(n+1, 31))}"
            A(f"v_cvt_pk_bf16_f32 v{TXR[gq]+c}, {lo}, {hi}")
        A(f"{xad(gq)[0]}buffer_store_dwordx4 {v(TXR[gq],4)}, {xad(gq)[1].replace('SRD', r4(S2))} sc1")

    def rx():
        for gq in range(5):
            A(f"{xad(gq)[0]}buffer_load_dwordx4 {v(RX+4*gq,4)}, {xad(gq)[1].replace('SRD', r4(S3))} sc1")
    if NDEF:
        rd2(NK - NDEF, [2, 3])
        for s_ in range(NK - NDEF, NK):
            if s_ + 1 < NK:
                rd2(s_ + 1, [2, 3])
                A("s_waitcnt lgkmcnt(2)")
            else:
                A("s_waitcnt lgkmcnt(0)")
            mf(s_, 2)
            mf(s_, 3)
    trace(A, 0, 29)
    if E_("XM", 0):
        mark(A, 3)
    A("s_waitcnt vmcnt(5)")
    if E_("XM", 0):
        mark(A, 5)
    trace(A, 0, 30)
    A("v_lshlrev_b32 v8, 16, v31\nv_and_b32 v9, 0xffff0000, v31")
    YO = lambda e: 148 + 2*e
    for e in range(16):
        t = YO(e)
        A(f"v_lshlrev_b32 v{t}, 16, v{XR+e}\nv_and_b32 v{t+1}, 0xffff0000, v{XR+e}")
        A(f"v_pk_mul_f32 {v(t,2)}, {v(t,2)}, v[8:9]")
        A(f"v_cvt_pk_bf16_f32 v10, v{t}, v{t+1}")
        A(f"v_lshlrev_b32 v{t}, 16, v10\nv_and_b32 v{t+1}, 0xffff0000, v10")
        A(f"v_add_f32 v{t}, v{t}, v{ACC2(2)+e}\nv_add_f32 v{t+1}, v{t+1}, v{ACC2(3)+e}")
    A(f"s_mov_b32 s{S1}, s{OUT}\ns_mov_b32 s{S1+1}, s{OUT+1}\ns_mov_b32 s{S1+2}, s{LDT}\ns_mov_b32 s{S1+3}, 0x20000")
    xl, xd = uid("xl"), uid("xd")
    A(f"s_mov_b32 s{CNT}, 0")
    if XPOLL:
        assert not INOUT
        wl, wd = uid("xw"), uid("xwd")
        A.label(wl)
        A(f"s_load_dword s{T1}, {sp(S3)}, {0x1000 + 63*16 + 12} glc\ns_add_u32 s{CNT}, s{CNT}, 1\ns_waitcnt lgkmcnt(0)")
        A(f"s_xor_b32 s{T1}, s{T1}, s{TG}\ns_cmp_lt_u32 s{T1}, 0x10000\ns_cbranch_scc1 {wd}")
        A(f"s_cmp_lt_u32 s{CNT}, {SPIN_MAX}\ns_cbranch_scc1 {wl}")
        A.label(wd)
        A(f"s_mov_b32 s{CNT}, 0")
    trace(A, 0, 31)
    if XPOLL != 2:
        A(f"s_waitcnt vmcnt({E_('XW', 0)})")
    if E_("XM", 0):
        mark(A, 6)
    rx()
    A.label(xl)
    A("v_mov_b32 v10, 0")
    for gq in range(5):
        A(f"s_waitcnt vmcnt({4-gq})")
        A(f"v_bitop3_b32 v10, v10, v{RX+4*gq+3}, s{TG} bitop3:0xf6")
    A("v_cmp_lt_u32 vcc, 0xffff, v10")
    A(f"s_cbranch_vccz {xd}")
    A(f"s_add_u32 s{CNT}, s{CNT}, 1\ns_cmp_ge_u32 s{CNT}, {SPIN_MAX}")
    A(f"s_cbranch_scc1 {xd}")
    rx()
    A(f"s_branch {xl}")
    A.label(xd)
    trace(A, 0, 32)
    if STAMP:
        A(f"s_add_u32 s74, s70, s{CNT}\ns_lshl_b32 s{CNT}, s{LOCAL}, 8\ns_add_u32 s74, s74, s{CNT}")
        mark(A, 4)
    for e in range(16):
        q, r = e >> 2, e & 3
        t = YO(e)
        for nt in range(2):
            n = 2*e + nt
            src = RX + 4*(n // 7) + (n % 7)//2
            if (n % 7) % 2 == 0:
                A(f"v_lshlrev_b32 v{10+nt}, 16, v{src}")
            else:
                A(f"v_and_b32 v{10+nt}, 0xffff0000, v{src}")
        A(f"v_pk_add_f32 {v(t,2)}, {v(t,2)}, v[10:11]")
        A(f"s_mov_b32 s{T4}, {(32*(q & 1) + 4*(q >> 1) + r)*8192}")
        A(f"buffer_store_dwordx2 {v(t,2)}, v29, {r4(S1)}, s{T4} offen{OSTB}")
    trace(A, 0, 33)
    if TRACE:
        A("s_waitcnt vmcnt(0)")
    trace(A, 0, 34)
    trace_dump(A, 0, WAVE, 1)
    stamp_end(A, kidx, WAVE)


def gen_fused(A, name, kidx):
    A(f".globl {name}\n.p2align 8\n.type {name},@function")
    A.label(name)
    A("s_cmp_ge_u32 s2, 256")
    A(f"s_cbranch_scc1 L_{name}_end")
    A("s_load_dwordx16 s[4:19], s[0:1], 0")
    A("s_load_dwordx8 s[20:27], s[0:1], 64")
    A("s_load_dwordx4 s[28:31], s[0:1], 96")
    A("s_load_dwordx2 s[32:33], s[0:1], 112")
    stamp_begin(A)
    A("v_lshrrev_b32 v2, 6, v0\nv_and_b32 v1, 63, v0")
    A(f"v_readfirstlane_b32 s{WAVE}, v2")
    A(f"s_and_b32 s{T0}, s2, 7\ns_lshr_b32 s{T1}, s2, 3")
    A(f"s_lshr_b32 s{TI}, s{T0}, 1\ns_lshl_b32 s{TI}, s{TI}, 2\ns_lshr_b32 s{T2}, s{T1}, 3\ns_add_u32 s{TI}, s{TI}, s{T2}")
    A(f"s_and_b32 s{TJ}, s{T0}, 1\ns_lshl_b32 s{TJ}, s{TJ}, 3\ns_and_b32 s{T2}, s{T1}, 7\ns_add_u32 s{TJ}, s{TJ}, s{T2}")
    A(f"s_cmp_ge_u32 s{WAVE}, 4")
    A(f"s_cbranch_scc0 L_{name}_gemm")
    aux_waves(A, name, kidx)
    A.label(f"L_{name}_gemm")
    gemm_waves(A, name, kidx)
    A.label(f"L_{name}_end")
    A("s_endpgm")
    return kdesc(name, 256)
```

```python
from asmlib import *
from common import *

MF = "v_mfma_f32_32x32x16_bf16"
N0 = "neg_lo:[1,0,0] neg_hi:[1,0,0]"


def load_tbl(A, dst, off, nchunk, vlane16, sbase, vtmp):
    for c in range(nchunk):
        o = off + c*1024
        if c % 4 == 0:
            A(f"v_add_u32 v{vtmp}, {o}, v{vlane16}")
        A(f"global_load_dwordx4 {v(dst+4*c,4)}, v{vtmp}, s[{sbase}:{sbase+1}] offset:{(c % 4)*1024}")


def stage1(A, F, src, D):
    for c in range(2):
        for s_ in range(4):
            cc = "0" if s_ == 0 else v(D+16*c, 16)
            A(f"{MF} {v(D+16*c,16)}, {v(src+4*s_,4)}, {v(F+16*c+4*s_,4)}, {cc}")


def twiddle(A, T, D, dst, tmp):
    for k in range(8):
        re, im, tr, ti = D+2*k, D+16+2*k, T+2*k, T+16+2*k
        t = tmp + 4*(k & 1)
        A(f"v_pk_mul_f32 {v(t,2)}, {v(re,2)}, {v(tr,2)}")
        A(f"v_pk_mul_f32 {v(t+2,2)}, {v(re,2)}, {v(ti,2)}")
        A(f"v_pk_fma_f32 {v(t,2)}, {v(im,2)}, {v(ti,2)}, {v(t,2)} {N0}")
        A(f"v_pk_fma_f32 {v(t+2,2)}, {v(im,2)}, {v(tr,2)}, {v(t+2,2)}")
        A(f"v_cvt_pk_bf16_f32 v{dst+2*k}, v{t}, v{t+2}")
        A(f"v_cvt_pk_bf16_f32 v{dst+2*k+1}, v{t+1}, v{t+3}")


def stage2(A, F, src, D):
    for c in range(2):
        for s_ in range(4):
            cc = "0" if s_ == 0 else v(D+16*c, 16)
            A(f"{MF} {v(D+16*c,16)}, {v(F+16*c+4*s_,4)}, {v(src+4*s_,4)}, {cc}")


def prologue(A, name, ntask_wg):
    A(f".globl {name}\n.p2align 8\n.type {name},@function")
    A.label(name)
    A(f"s_cmp_ge_u32 s2, {ntask_wg}")
    A(f"s_cbranch_scc1 L_{name}_end")
    stamp_begin(A)
    A("v_lshrrev_b32 v2, 6, v0\nv_and_b32 v1, 63, v0\nv_readfirstlane_b32 s20, v2")


def epilogue(A, name, kidx):
    stamp_end(A, kidx, 20)
    A.label(f"L_{name}_end")
    A("s_endpgm")
    return kdesc(name, 256)


F, T = 192, 224


def task_a1(A, sg, slds):
    PITCH = 4352
    A(f"s_and_b32 s44, s{sg}, 31\ns_lshr_b32 s45, s{sg}, 5\ns_lshl_b32 s45, s45, 7\ns_add_u32 s44, s44, s45\ns_lshl_b32 s44, s44, 12")
    A("s_add_u32 s24, s4, s44\ns_addc_u32 s25, s5, 0\ns_sub_u32 s26, 0x400000, s44\ns_mov_b32 s27, 0x20000")
    A("v_lshlrev_b32 v2, 4, v1")
    for q in range(4):
        for c in range(2):
            A(f"s_add_u32 m0, s{slds}, {q*PITCH + c*2176}")
            A(f"s_mov_b32 s48, {q*131072 + c*2048}")
            for u in range(2):
                A(f"buffer_load_dwordx4 v2, s[24:27], s48 offen offset:{u*1024} lds")
    load_tbl(A, F, TBL_F, 8, 2, 52, 3)
    load_tbl(A, T, TBL_T, 8, 2, 52, 3)
    A("v_bfe_u32 v4, v1, 2, 1\nv_mul_u32_u24 v4, 2176, v4")
    A("v_bfe_u32 v5, v1, 3, 1\nv_lshl_add_u32 v4, v5, 6, v4")
    A("v_lshrrev_b32 v5, 5, v1\nv_lshl_add_u32 v4, v5, 8, v4")
    A("v_bfe_u32 v5, v1, 4, 1\nv_lshl_add_u32 v4, v5, 5, v4")
    A("v_and_b32 v5, 3, v1\nv_lshl_add_u32 v4, v5, 3, v4")
    A(f"v_add_u32 v4, s{slds}, v4")
    A("v_and_b32 v5, 31, v1\nv_lshlrev_b32 v5, 4, v5\nv_lshrrev_b32 v6, 5, v1\nv_lshl_add_u32 v5, v6, 11, v5")
    A(f"s_lshl_b32 s44, s{sg}, 14\ns_add_u32 s44, s44, {WS_Z1}")
    A("s_add_u32 s28, s18, s44\ns_addc_u32 s29, s19, 0\ns_mov_b32 s30, 0x4000\ns_mov_b32 s31, 0x20000")
    IN = lambda q: 8 + 16*(q & 1)
    D1 = lambda q: 40 + 32*(q & 1)
    OUT = 128
    MID, TMP, D2 = 104, 120, None

    def rd(q):
        for s_ in range(4):
            for u in range(2):
                A(f"ds_read_b64_tr_b16 {v(IN(q)+4*s_+2*u,2)}, v4 offset:{q*PITCH + s_*512 + u*128}")
    A("s_waitcnt vmcnt(0)")
    rd(0)
    rd(1)
    A("s_waitcnt lgkmcnt(8)")
    stage1(A, F, IN(0), D1(0))
    for q in range(4):
        if q + 1 < 4:
            A("s_waitcnt lgkmcnt(0)")
            stage1(A, F, IN(q+1), D1(q+1))
        if q + 2 < 4:
            rd(q+2)
        twiddle(A, T, D1(q), MID, TMP)
        stage2(A, F, MID, D1(q))
        for i in range(16):
            A(f"v_cvt_pk_bf16_f32 v{OUT+4*i+q}, v{D1(q)+i}, v{D1(q)+16+i}")
    for i in range(16):
        if i % 4 == 0:
            A(f"s_mov_b32 s48, {(i >> 2)*4096}")
        A(f"buffer_store_dwordx4 {v(OUT+4*i,4)}, v5, s[28:31], s48 offen offset:{(i & 3)*512}")


def gen_a1(A, name, kidx):
    prologue(A, name, 256)
    A("s_load_dwordx2 s[4:5], s[0:1], 0\ns_load_dwordx2 s[18:19], s[0:1], 112")
    table_base(A, 52, name)
    A("s_mov_b32 s21, 0\ns_waitcnt lgkmcnt(0)")
    task_a1(A, 2, 21)
    return epilogue(A, name, kidx)


def task_wt(A, sg, slds):
    NB = 2048*513*2
    A(f"s_mov_b32 s24, s8\ns_mov_b32 s25, s9\ns_mov_b32 s26, {NB}\ns_mov_b32 s27, 0x20000")
    A(f"s_mov_b32 s28, s10\ns_mov_b32 s29, s11\ns_mov_b32 s30, {NB}\ns_mov_b32 s31, 0x20000")
    A(f"s_and_b32 s44, s{sg}, 7")
    A(f"s_bfe_u32 s45, s{sg}, 0x10003")
    A(f"s_bfe_u32 s46, s{sg}, 0x20004")
    A(f"s_lshr_b32 s47, s{sg}, 6")
    A("s_lshr_b32 s48, s44, 1\ns_lshl_b32 s48, s48, 3\ns_lshl_b32 s49, s45, 2\ns_add_u32 s48, s48, s49")
    A("s_and_b32 s49, s44, 1\ns_lshl_b32 s49, s49, 1\ns_add_u32 s48, s48, s49\ns_lshl_b32 s48, s48, 5")
    A("s_lshl_b32 s49, s46, 3\ns_add_u32 s48, s48, s49\ns_mul_i32 s48, s48, 1026")
    A("s_lshl_b32 s49, s47, 8\ns_add_u32 s48, s48, s49")
    A("v_bfe_u32 v2, v1, 4, 1\nv_mul_u32_u24 v2, 32832, v2")
    A("v_lshrrev_b32 v3, 5, v1\ns_mov_b32 s49, 1050624\nv_mul_lo_u32 v3, s49, v3")
    A("v_and_b32 v4, 15, v1\nv_lshl_add_u32 v2, v4, 4, v2\nv_add_u32 v2, v2, v3")
    for b in range(8):
        for arr in range(2):
            A(f"s_add_u32 m0, s{slds}, {b*2064 + arr*1024}")
            if arr == 0:
                A(f"s_add_u32 s49, s48, {b*1026}")
            else:
                A("s_nop 0")
            A(f"buffer_load_dwordx4 v2, s[{24+4*arr}:{27+4*arr}], s49 offen lds")
    A("v_and_b32 v3, 7, v1\nv_mul_u32_u24 v4, 2064, v3\nv_lshrrev_b32 v5, 3, v1\nv_lshl_add_u32 v4, v5, 4, v4")
    A(f"v_add_u32 v4, s{slds}, v4")
    A("v_lshlrev_b32 v5, 16, v5\nv_lshl_add_u32 v5, v3, 4, v5")
    A("s_lshl_b32 s48, s47, 20\ns_lshl_b32 s49, s44, 10\ns_add_u32 s48, s48, s49\ns_lshl_b32 s49, s45, 9\ns_add_u32 s48, s48, s49")
    A("s_lshl_b32 s49, s46, 7\ns_add_u32 s48, s48, s49")
    A(f"s_add_u32 s49, s48, {WS_WT}\ns_add_u32 s32, s18, s49\ns_addc_u32 s33, s19, 0\ns_sub_u32 s34, 0x400000, s48\ns_mov_b32 s35, 0x20000")
    A("s_mov_b32 s46, 0x05040100\ns_mov_b32 s47, 0x07060302")
    A("s_waitcnt vmcnt(0)")
    R = lambda rnd, arr, kind: 8 + rnd*32 + (arr*4 + kind)*4
    for rnd in range(2):
        for arr in range(2):
            for kind in range(4):
                A(f"ds_read_b128 {v(R(rnd,arr,kind),4)}, v4 offset:{arr*1024 + kind*256 + rnd*128}")
    for rnd in range(2):
        A(f"s_waitcnt lgkmcnt({8*(1-rnd)})")
        for kap in range(8):
            o = 72 + 4*(rnd*8 + kap)
            for e in range(2):
                for h2 in range(2):
                    kind = e + 2*h2
                    sel = "s46" if kap % 2 == 0 else "s47"
                    A(f"v_perm_b32 v{o+2*e+h2}, v{R(rnd,1,kind)+kap//2}, v{R(rnd,0,kind)+kap//2}, {sel}")
            A(f"s_mov_b32 s48, {(64*rnd + kap)*8192}")
            A(f"buffer_store_dwordx4 {v(o,4)}, v5, s[32:35], s48 offen")


def task_wsp(A, sg):
    NB = 2048*513*2
    A(f"s_mov_b32 s24, s8\ns_mov_b32 s25, s9\ns_mov_b32 s26, {NB}\ns_mov_b32 s27, 0x20000")
    A(f"s_mov_b32 s28, s10\ns_mov_b32 s29, s11\ns_mov_b32 s30, {NB}\ns_mov_b32 s31, 0x20000")
    A(f"s_and_b32 s44, s{sg}, 7\ns_lshr_b32 s45, s{sg}, 3")
    A("s_lshr_b32 s48, s44, 1\ns_lshl_b32 s48, s48, 3\ns_and_b32 s49, s44, 1\ns_lshl_b32 s49, s49, 1\ns_add_u32 s48, s48, s49\ns_lshl_b32 s48, s48, 5")
    A("v_and_b32 v2, 31, v1\nv_lshrrev_b32 v3, 5, v1\nv_lshl_add_u32 v2, v3, 7, v2\nv_add_u32 v2, s48, v2")
    A("s_lshl_b32 s46, s45, 10\ns_movk_i32 s47, 1026")
    n = 0
    for e in range(2):
        for h2 in range(2):
            A(f"v_add_u32 v4, {32*e + 1024*h2}, v2")
            A("v_sub_u32 v5, 2048, v4\nv_and_b32 v5, 2047, v5")
            A("v_mul_lo_u32 v4, s47, v4\nv_mul_lo_u32 v5, s47, v5")
            b = 8 + 4*n
            A(f"buffer_load_ushort v{b}, v4, s[24:27], s46 offen")
            A(f"buffer_load_ushort v{b+1}, v4, s[28:31], s46 offen")
            A(f"buffer_load_ushort v{b+2}, v5, s[24:27], s46 offen")
            A(f"buffer_load_ushort v{b+3}, v5, s[28:31], s46 offen")
            n += 1
    A("s_sub_u32 s45, 513, s45\ns_lshl_b32 s45, s45, 13\ns_lshl_b32 s44, s44, 10\ns_add_u32 s45, s45, s44")
    A(f"s_add_u32 s45, s45, {WS_WT}\ns_add_u32 s32, s18, s45\ns_addc_u32 s33, s19, 0\ns_mov_b32 s34, 0x400\ns_mov_b32 s35, 0x20000")
    A("v_lshlrev_b32 v6, 4, v1")
    A("s_waitcnt vmcnt(0)")
    for n in range(4):
        b = 8 + 4*n
        for r in range(4):
            A(f"v_lshlrev_b32 v{b+r}, 16, v{b+r}")
        A(f"v_add_f32 v{b}, v{b}, v{b+2}\nv_sub_f32 v{b+1}, v{b+1}, v{b+3}")
        A(f"v_mul_f32 v{b}, 0.5, v{b}\nv_mul_f32 v{b+1}, 0.5, v{b+1}")
        A(f"v_cvt_pk_bf16_f32 v{24+n}, v{b}, v{b+1}")
    A("buffer_store_dwordx4 v[24:27], v6, s[32:35], 0 offen")


def gen_wt(A, name, kidx):
    prologue(A, name, 272)
    A("s_load_dwordx4 s[8:11], s[0:1], 8\ns_load_dwordx2 s[18:19], s[0:1], 112")
    A("s_mov_b32 s21, 0\ns_waitcnt lgkmcnt(0)")
    A("s_cmp_ge_u32 s2, 256")
    A(f"s_cbranch_scc1 L_{name}_sp")
    task_wt(A, 2, 21)
    A(f"s_branch L_{name}_fin")
    A.label(f"L_{name}_sp")
    A("s_sub_u32 s22, s2, 256")
    task_wsp(A, 22)
    A.label(f"L_{name}_fin")
    return epilogue(A, name, kidx)


def task_a2(A, sk):
    A(f"s_add_u32 s24, s18, {WS_Z1}\ns_addc_u32 s25, s19, 0\ns_mov_b32 s26, 0x400000\ns_mov_b32 s27, 0x20000")
    A(f"s_add_u32 s28, s18, {WS_Z3}\ns_addc_u32 s29, s19, 0\ns_mov_b32 s30, 0x400000\ns_mov_b32 s31, 0x20000")
    A(f"s_cmp_eq_u32 s{sk}, 0\ns_cselect_b32 s44, 513, s{sk}\ns_lshl_b32 s44, s44, 13\ns_add_u32 s44, s44, {WS_WT}")
    A("s_add_u32 s32, s18, s44\ns_addc_u32 s33, s19, 0\ns_mov_b32 s34, 0x2000\ns_mov_b32 s35, 0x20000")
    A("v_and_b32 v2, 31, v1\nv_lshlrev_b32 v2, 14, v2\nv_lshrrev_b32 v3, 5, v1\nv_lshl_add_u32 v2, v3, 19, v2")
    A(f"s_lshl_b32 s44, s{sk}, 4\ns_sub_u32 s45, 1024, s{sk}\ns_and_b32 s45, s45, 1023\ns_lshl_b32 s45, s45, 4")
    A("v_add_u32 v3, s45, v2\nv_add_u32 v2, s44, v2")
    INU, INV = 8, 24
    DU, DV = 40, 72
    W = 104
    TT = 136
    TMP = 168
    for s_ in range(4):
        A(f"s_mov_b32 s48, {s_ << 20}")
        A(f"buffer_load_dwordx4 {v(INU+4*s_,4)}, v2, s[24:27], s48 offen")
        A(f"buffer_load_dwordx4 {v(INV+4*s_,4)}, v3, s[24:27], s48 offen")
    A("v_lshlrev_b32 v4, 4, v1")
    load_tbl(A, F, TBL_F, 8, 4, 52, 5)
    load_tbl(A, T, TBL_T, 8, 4, 52, 5)
    load_tbl(A, TT, TBL_TT, 8, 4, 52, 5)
    for it in range(8):
        if it % 4 == 0:
            A(f"s_mov_b32 s48, {it*1024}")
        A(f"buffer_load_dwordx4 {v(W+4*it,4)}, v4, s[32:35], s48 offen offset:{(it & 3)*1024}")
    A("s_waitcnt vmcnt(24)")
    for i in range(16):
        A(f"v_xor_b32 v{INV+i}, 0x80000000, v{INV+i}")
    stage1(A, F, INU, DU)
    stage1(A, F, INV, DV)
    A("s_waitcnt vmcnt(16)")
    twiddle(A, T, DU, INU, TMP)
    stage2(A, F, INU, DU)
    twiddle(A, T, DV, INV, TMP)
    stage2(A, F, INV, DV)
    A("s_waitcnt vmcnt(0)")
    for it in range(8):
        w = W + 4*it
        r1, i1, r2, i2 = TMP, TMP+2, TMP+4, TMP+6
        for e in range(2):
            A(f"v_lshlrev_b32 v{r1+e}, 16, v{w+2*e}\nv_and_b32 v{i1+e}, 0xffff0000, v{w+2*e}")
            A(f"v_lshlrev_b32 v{r2+e}, 16, v{w+2*e+1}\nv_and_b32 v{i2+e}, 0xffff0000, v{w+2*e+1}")
        Ar, Ai, Dr, Di = TMP+8, TMP+10, r1, i1
        A(f"v_pk_add_f32 {v(Ar,2)}, {v(r1,2)}, {v(r2,2)}")
        A(f"v_pk_add_f32 {v(Ai,2)}, {v(i1,2)}, {v(i2,2)}")
        A(f"v_pk_add_f32 {v(Dr,2)}, {v(r1,2)}, {v(r2,2)} neg_lo:[0,1] neg_hi:[0,1]")
        A(f"v_pk_add_f32 {v(Di,2)}, {v(i1,2)}, {v(i2,2)} neg_lo:[0,1] neg_hi:[0,1]")
        Ur, Ui, Vr, Vi = DU+2*it, DU+16+2*it, DV+2*it, DV+16+2*it
        rho, sg = TT+2*it, TT+16+2*it
        G1r, G1i, G2r, G2i = r2, i2, TMP+12, TMP+14
        A(f"v_pk_mul_f32 {v(G1r,2)}, {v(sg,2)}, {v(Ur,2)}")
        A(f"v_pk_mul_f32 {v(G1i,2)}, {v(sg,2)}, {v(Ui,2)}")
        A(f"v_pk_mul_f32 {v(G2r,2)}, {v(sg,2)}, {v(Vr,2)}")
        A(f"v_pk_mul_f32 {v(G2i,2)}, {v(sg,2)}, {v(Vi,2)}")
        A(f"v_pk_fma_f32 {v(G1r,2)}, {v(rho,2)}, {v(Vi,2)}, {v(G1r,2)} {N0}")
        A(f"v_pk_fma_f32 {v(G1i,2)}, {v(rho,2)}, {v(Vr,2)}, {v(G1i,2)}")
        A(f"v_pk_fma_f32 {v(G2r,2)}, {v(rho,2)}, {v(Ui,2)}, {v(G2r,2)} {N0}")
        A(f"v_pk_fma_f32 {v(G2i,2)}, {v(rho,2)}, {v(Ur,2)}, {v(G2i,2)}")
        Or, Oi, Pr, Pi = TMP+16, TMP+18, TMP+20, TMP+22
        A(f"v_pk_mul_f32 {v(Or,2)}, {v(Ar,2)}, {v(Ur,2)}")
        A(f"v_pk_mul_f32 {v(Oi,2)}, {v(Ar,2)}, {v(Ui,2)}")
        A(f"v_pk_mul_f32 {v(Pr,2)}, {v(Ar,2)}, {v(Vr,2)}")
        A(f"v_pk_mul_f32 {v(Pi,2)}, {v(Ar,2)}, {v(Vi,2)}")
        A(f"v_pk_fma_f32 {v(Or,2)}, {v(Ai,2)}, {v(Ui,2)}, {v(Or,2)} {N0}")
        A(f"v_pk_fma_f32 {v(Oi,2)}, {v(Ai,2)}, {v(Ur,2)}, {v(Oi,2)}")
        A(f"v_pk_fma_f32 {v(Pr,2)}, {v(Ai,2)}, {v(Vi,2)}, {v(Pr,2)} {N0}")
        A(f"v_pk_fma_f32 {v(Pi,2)}, {v(Ai,2)}, {v(Vr,2)}, {v(Pi,2)}")
        A(f"v_pk_fma_f32 {v(Or,2)}, {v(Dr,2)}, {v(G1r,2)}, {v(Or,2)}")
        A(f"v_pk_fma_f32 {v(Oi,2)}, {v(Dr,2)}, {v(G1i,2)}, {v(Oi,2)}")
        A(f"v_pk_fma_f32 {v(Pr,2)}, {v(Dr,2)}, {v(G2r,2)}, {v(Pr,2)} {N0}")
        A(f"v_pk_fma_f32 {v(Pi,2)}, {v(Dr,2)}, {v(G2i,2)}, {v(Pi,2)} {N0}")
        A(f"v_pk_fma_f32 {v(Or,2)}, {v(Di,2)}, {v(G1i,2)}, {v(Or,2)} {N0}")
        A(f"v_pk_fma_f32 {v(Oi,2)}, {v(Di,2)}, {v(G1r,2)}, {v(Oi,2)}")
        A(f"v_pk_fma_f32 {v(Pr,2)}, {v(Di,2)}, {v(G2i,2)}, {v(Pr,2)}")
        A(f"v_pk_fma_f32 {v(Pi,2)}, {v(Di,2)}, {v(G2r,2)}, {v(Pi,2)} {N0}")
        for e in range(2):
            A(f"v_cvt_pk_bf16_f32 v{INU+2*it+e}, v{Oi+e}, v{Or+e}")
            A(f"v_cvt_pk_bf16_f32 v{INV+2*it+e}, v{Pi+e}, v{Pr+e}")
    stage1(A, F, INU, DU)
    stage1(A, F, INV, DV)
    twiddle(A, T, DU, INU, TMP)
    stage2(A, F, INU, DU)
    twiddle(A, T, DV, INV, TMP)
    stage2(A, F, INV, DV)
    for i in range(16):
        A(f"v_cvt_pk_bf16_f32 v{INU+i}, v{DU+i}, v{DU+16+i}")
    for s_ in range(4):
        A(f"s_mov_b32 s48, {s_ << 20}")
        A(f"buffer_store_dwordx4 {v(INU+4*s_,4)}, v2, s[28:31], s48 offen")
    for i in range(16):
        A(f"v_cvt_pk_bf16_f32 v{INV+i}, -v{DV+i}, v{DV+16+i}")
    for s_ in range(4):
        A(f"s_mov_b32 s48, {s_ << 20}")
        A(f"buffer_store_dwordx4 {v(INV+4*s_,4)}, v3, s[28:31], s48 offen")


def gen_a2(A, name, kidx):
    prologue(A, name, 257)
    A("s_load_dwordx2 s[18:19], s[0:1], 112")
    table_base(A, 52, name)
    A("s_and_b32 s44, s2, 7\ns_lshr_b32 s45, s2, 3\ns_lshl_b32 s44, s44, 5\ns_add_u32 s44, s44, s45")
    A("s_cmp_eq_u32 s2, 256\ns_cselect_b32 s44, 256, s44")
    A("s_lshl_b32 s22, s44, 1\ns_add_u32 s22, s22, s20")
    A("s_waitcnt lgkmcnt(0)")
    A("s_cmp_gt_u32 s22, 512")
    A(f"s_cbranch_scc1 L_{name}_fin")
    task_a2(A, 22)
    A.label(f"L_{name}_fin")
    return epilogue(A, name, kidx)


def task_a3(A, sg):
    A(f"s_lshl_b32 s44, s{sg}, 14\ns_add_u32 s44, s44, {WS_Z3}")
    A("s_add_u32 s24, s18, s44\ns_addc_u32 s25, s19, 0\ns_mov_b32 s26, 0x4000\ns_mov_b32 s27, 0x20000")
    A("v_and_b32 v2, 31, v1\nv_lshrrev_b32 v3, 5, v1\nv_lshlrev_b32 v5, 4, v2\nv_lshl_add_u32 v5, v3, 11, v5")
    IN = 8
    for s_ in range(4):
        A(f"s_mov_b32 s48, {s_*4096}")
        for q in range(4):
            A(f"buffer_load_dwordx4 {v(IN+16*s_+4*q,4)}, v5, s[24:27], s48 offen offset:{q*512}")
    A("v_lshlrev_b32 v4, 4, v1")
    load_tbl(A, F, TBL_F, 8, 4, 52, 6)
    load_tbl(A, T, TBL_T, 8, 4, 52, 6)
    A(f"s_and_b32 s44, s{sg}, 31\ns_lshr_b32 s45, s{sg}, 5\ns_lshl_b32 s45, s45, 7\ns_add_u32 s44, s44, s45\ns_lshl_b32 s44, s44, 14")
    A("s_add_u32 s28, s14, s44\ns_addc_u32 s29, s15, 0\ns_sub_u32 s30, 0x1000000, s44\ns_mov_b32 s31, 0x20000")
    A("v_lshlrev_b32 v7, 2, v2\nv_lshl_add_u32 v7, v3, 9, v7")
    A("s_waitcnt vmcnt(16)")
    for s_ in range(4):
        for a in range(4):
            for b in range(a+1, 4):
                A(f"v_swap_b32 v{IN+16*s_+4*a+b}, v{IN+16*s_+4*b+a}")
    A("s_waitcnt vmcnt(0)")
    A("s_mov_b32 s46, 0x35000000\ns_mov_b32 s47, 0x35000000")
    for k in range(16):
        A(f"v_pk_mul_f32 {v(T+2*k,2)}, s[46:47], {v(T+2*k,2)}")
    D1 = lambda q: 72 + 32*(q & 1)
    MID, TMP, O = 136, 152, 160

    def st1(q):
        for c in range(2):
            for s_ in range(4):
                cc = "0" if s_ == 0 else v(D1(q)+16*c, 16)
                A(f"{MF} {v(D1(q)+16*c,16)}, {v(IN+16*s_+4*q,4)}, {v(F+16*c+4*s_,4)}, {cc}")
    st1(0)
    for q in range(4):
        if q + 1 < 4:
            st1(q+1)
        twiddle(A, T, D1(q), MID, TMP)
        stage2(A, F, MID, D1(q))
        A(f"s_mov_b32 s48, {q*32*16384}\ns_mov_b32 s49, {q*32*16384 + 8192}")
        for i in range(16):
            o = O + 2*i
            A(f"v_cvt_pk_bf16_f32 v{o+1}, v{D1(q)+16+i}, v{D1(q)+i}")
            A(f"v_lshlrev_b32 v{o}, 16, v{o+1}\nv_and_b32 v{o+1}, 0xffff0000, v{o+1}")
            off = (i >> 2)*1024 + (i & 3)*128
            A(f"buffer_store_dword v{o}, v7, s[28:31], s48 offen offset:{off}")
            A(f"buffer_store_dword v{o+1}, v7, s[28:31], s49 offen offset:{off}")


def gen_a3(A, name, kidx):
    prologue(A, name, 256)
    A("s_load_dwordx2 s[14:15], s[0:1], 96\ns_load_dwordx2 s[18:19], s[0:1], 112")
    table_base(A, 52, name)
    A("s_waitcnt lgkmcnt(0)")
    task_a3(A, 2)
    return epilogue(A, name, kidx)


PARTS = {
    "a1": ("a1_kernel", gen_a1, 256, 64, 17408),
    "wt": ("wt_kernel", gen_wt, 272, 64, 16640),
    "a2": ("a2_kernel", gen_a2, 257, 128, 0),
    "a3": ("a3_kernel", gen_a3, 256, 64, 0),
}
```

```python
from asmlib import *
from common import *


def cmul_sq(A, d, a, t):
    A(f"v_mul_f32 {v(t)}, {v(a+1)}, {v(a+1)}")
    A(f"v_mul_f32 {v(t+1)}, {v(a)}, {v(a+1)}")
    A(f"v_fma_f32 {v(d)}, {v(a)}, {v(a)}, -{v(t)}")
    A(f"v_add_f32 {v(d+1)}, {v(t+1)}, {v(t+1)}")


def horner(A, dr, di, L, pr, pi, er, ei, t):
    A(f"v_fma_f32 {v(t)}, {v(L)}, {v(pr)}, {v(er)}")
    A(f"v_fma_f32 {v(t+1)}, {v(L)}, {v(pi)}, {v(ei)}")
    A(f"v_fma_f32 {v(t)}, -{v(L+1)}, {v(pi)}, {v(t)}")
    A(f"v_fma_f32 {v(di)}, {v(L+1)}, {v(pr)}, {v(t+1)}")
    A(f"v_mov_b32 {v(dr)}, {v(t)}")


ROT = int(os.environ.get('ROT', '1'))
PRO = int(os.environ.get('PRO', '2'))
TOUCH = int(os.environ.get('TOUCH', '0'))
XO = int(os.environ.get('XO', '2'))
NP = int(os.environ.get('NP', '1'))
XO2 = int(os.environ.get('XO2', '2'))
NP2 = int(os.environ.get('NP2', '1'))
HACK16 = int(os.environ.get('HACK16', '0'))
RI = int(os.environ.get('RI', '0'))
RJ = int(os.environ.get('RJ', '0'))
G1_NS = int(os.environ.get('G1_NS', '4'))


def gen_g1(A, name="g1_kernel", kidx=0):
    NS = G1_NS
    A(f".globl {name}\n.p2align 8\n.type {name},@function")
    A.label(name)
    A("s_cmp_ge_u32 s2, 256")
    A(f"s_cbranch_scc1 L_{name}_end")
    stamp_begin(A)
    A("s_load_dwordx2 s[4:5], s[0:1], 24")
    A("s_load_dwordx4 s[8:11], s[0:1], 32")
    A("s_load_dwordx4 s[12:15], s[0:1], 48")
    A("s_load_dwordx2 s[6:7], s[0:1], 80")
    A("s_load_dwordx4 s[16:19], s[0:1], 104")
    A("v_lshrrev_b32 v2, 6, v0")
    A("v_and_b32 v1, 63, v0")
    A("v_readfirstlane_b32 s20, v2")
    A("s_and_b32 s44, s2, 7\ns_lshr_b32 s45, s2, 3")
    A("s_lshr_b32 s21, s44, 1\ns_lshl_b32 s21, s21, 2\ns_lshr_b32 s46, s45, 3\ns_add_u32 s21, s21, s46")
    A("s_and_b32 s22, s44, 1\ns_lshl_b32 s22, s22, 3\ns_and_b32 s46, s45, 7\ns_add_u32 s22, s22, s46")
    A("s_waitcnt lgkmcnt(0)")
    A("s_cmp_ge_u32 s20, 4")
    A(f"s_cbranch_scc0 L_{name}_compute")
    A("s_sub_u32 s23, s20, 4")
    A("s_lshl_b32 s44, s21, 18\ns_add_u32 s24, s4, s44\ns_addc_u32 s25, s5, 0\ns_mov_b32 s26, 0x40000\ns_mov_b32 s27, 0x20000")
    A("s_bitcmp1_b32 s23, 0\ns_cselect_b32 s28, s14, s12\ns_cselect_b32 s29, s15, s13")
    A("s_lshl_b32 s44, s22, 17\ns_add_u32 s28, s28, s44\ns_addc_u32 s29, s29, 0\ns_mov_b32 s30, 0x20000\ns_mov_b32 s31, 0x20000")
    A("v_lshrrev_b32 v2, 5, v1")
    A("v_bfe_u32 v3, v1, 3, 2")
    A("v_and_b32 v4, 1, v3\nv_lshrrev_b32 v5, 1, v3")
    A("v_lshlrev_b32 v6, 5, v2\nv_lshl_add_u32 v6, v4, 4, v6\nv_add_u32 v6, v6, v5")
    A("s_lshr_b32 s44, s23, 1\ns_lshl_b32 s45, s44, 6\ns_and_b32 s46, s23, 1\ns_lshl_b32 s46, s46, 3\ns_add_u32 s45, s45, s46")
    A("v_add_u32 v6, s45, v6\nv_lshlrev_b32 v6, 11, v6")
    A("s_lshl_b32 s45, s44, 5")
    A("v_lshl_add_u32 v7, v2, 3, v3\nv_add_u32 v7, s45, v7\nv_lshlrev_b32 v7, 11, v7")
    A("v_and_b32 v4, 7, v1\nv_lshrrev_b32 v5, 4, v1\nv_xor_b32 v4, v4, v5\nv_lshlrev_b32 v4, 4, v4")
    A("v_xor_b32 v5, 64, v4")
    for u in range(4):
        ch = 4 if u % 2 == 0 else 5
        A(f"v_add_u32 v{8+u}, v6, v{ch}")
        if u:
            A(f"v_add_u32 v{8+u}, {u*4096 - u*1024}, v{8+u}")
        A(f"v_add_u32 v{12+u}, v7, v{ch}")
        if u:
            A(f"v_add_u32 v{12+u}, {(16*(u>>1) + 4*(u&1))*2048 - u*1024}, v{12+u}")
    A("s_lshl_b32 s47, s23, 12")
    A(f"s_and_b32 s49, s2, 7\ns_mul_i32 s49, s49, {XO*128}")
    A(f"s_add_u32 s44, s21, s22\ns_and_b32 s44, s44, {NP-1}\ns_mul_i32 s44, s44, {2048//NP}\ns_add_u32 s49, s49, s44")
    A(f"s_mul_i32 s44, s21, {RI*128}\ns_add_u32 s49, s49, s44\ns_mul_i32 s44, s22, {RJ*128}\ns_add_u32 s49, s49, s44")
    mark(A, 6)
    A("s_or_b32 s44, s2, s23\ns_cmp_lg_u32 s44, 0")
    A(f"s_cbranch_scc1 L_{name}_nononce")
    A(f"s_load_dword s50, s[18:19], {WS_NONCE}")
    A("v_mov_b32 v16, 0\ns_waitcnt lgkmcnt(0)")
    A("s_add_u32 s50, s50, 1\ns_cmp_eq_u32 s50, 0\ns_cselect_b32 s50, 1, s50")
    A("v_mov_b32 v17, s50")
    A("global_store_dword v16, v17, s[16:17] sc0 sc1")
    A(f"global_store_dword v16, v17, s[18:19] offset:{WS_NONCE}")
    A.label(f"L_{name}_nononce")

    def issue(k):
        slot = k % NS
        A(f"s_add_u32 m0, s47, {slot*32768}")
        if ROT:
            A(f"s_add_u32 s48, s49, {k*128}\ns_and_b32 s48, s48, 0x7ff")
        else:
            A(f"s_mov_b32 s48, {k*128}")
        for u in range(4):
            A(f"buffer_load_dwordx4 v{8+u}, s[24:27], s48 offen offset:{u*1024} lds")
        A(f"s_add_u32 m0, s47, {slot*32768 + 16384}")
        for u in range(4):
            A(f"buffer_load_dwordx4 v{12+u}, s[28:31], s48 offen offset:{u*1024} lds")
    issued = 0
    for k in range(min(PRO, NS-1)):
        issue(k); issued += 1
    for k in range(16):
        A(f"s_waitcnt vmcnt({8*(issued - 1 - k)})")
        A("s_barrier")
        if k % 4 == 0:
            mark(A, 1 + k//4)
        while issued < min(16, k + NS):
            issue(issued); issued += 1
    A("s_barrier")
    stamp_end(A, kidx, 20)
    A("s_endpgm")
    A.label(f"L_{name}_compute")
    ACC = lambda T, c: 64 + (T*2 + c)*16
    FR = lambda X, f: 32 + X*16 + f*4
    NSET = (NS + 1)//2
    AD = lambda st, op, ks: 128 + st*8 + op*4 + ks
    LAM, KC, L16, L128, L256 = 24, 26, 28, 30, 2
    A("s_lshr_b32 s23, s20, 1\ns_and_b32 s44, s20, 1")
    A("s_mov_b32 s51, s44")
    A("v_and_b32 v6, 31, v1\nv_lshrrev_b32 v5, 5, v1")
    A("v_and_b32 v4, 0x13, v6")
    A("v_bfe_u32 v7, v6, 2, 1\nv_lshl_or_b32 v4, v7, 3, v4")
    A("v_bfe_u32 v7, v6, 3, 1\nv_lshl_or_b32 v4, v7, 2, v4")
    A("s_lshl_b32 s45, s22, 6\ns_lshl_b32 s46, s44, 5\ns_add_u32 s45, s45, s46")
    A("v_add_u32 v4, s45, v4")
    A("v_lshlrev_b32 v7, 1, v4")
    A("global_load_ushort v8, v7, s[8:9]\nglobal_load_ushort v9, v7, s[10:11]\nglobal_load_ushort v10, v7, s[6:7]")
    table_base(A, 52, name)
    A("v_lshlrev_b32 v11, 4, v1")
    A(f"global_load_dwordx4 v[248:251], v11, s[52:53] offset:{TBL_PERM}")
    A(f"global_load_dwordx4 v[252:255], v11, s[52:53] offset:{TBL_PERM+1024}")
    if TOUCH == 1:
        A("s_and_b32 s56, s2, 7\ns_lshr_b32 s57, s2, 3\ns_lshl_b32 s57, s57, 4\ns_lshl_b32 s58, s20, 2\ns_add_u32 s57, s57, s58")
        A("v_lshrrev_b32 v12, 4, v1\nv_add_u32 v12, s57, v12\nv_lshlrev_b32 v12, 11, v12\nv_and_b32 v13, 15, v1\nv_lshl_add_u32 v12, v13, 7, v12")
        A("s_lshr_b32 s58, s56, 1\ns_lshl_b32 s58, s58, 20\nv_add_u32 v13, s58, v12")
        A("global_load_dword v244, v13, s[4:5]")
        A("s_and_b32 s58, s56, 1\ns_lshl_b32 s58, s58, 20\nv_add_u32 v13, s58, v12")
        A("global_load_dword v245, v13, s[12:13]")
        A("global_load_dword v246, v13, s[14:15]")
    if TOUCH == 2:
        A("s_and_b32 s56, s2, 7\ns_lshr_b32 s57, s2, 3\ns_lshl_b32 s57, s57, 2\ns_add_u32 s57, s57, s20")
        A("s_and_b32 s58, s57, 7\ns_lshl_b32 s58, s58, 17\ns_lshr_b32 s57, s57, 3\ns_lshl_b32 s59, s56, 1\ns_add_u32 s57, s57, s59")
        A("s_and_b32 s57, s57, 15\ns_lshl_b32 s57, s57, 7\ns_add_u32 s57, s57, s58")
        A("v_lshlrev_b32 v12, 11, v1\nv_add_u32 v12, s57, v12")
        A("s_lshr_b32 s58, s56, 1\ns_lshl_b32 s58, s58, 20\nv_add_u32 v13, s58, v12")
        A("global_load_dword v244, v13, s[4:5]")
        A("s_and_b32 s58, s56, 1\ns_lshl_b32 s58, s58, 20\nv_add_u32 v13, s58, v12")
        A("global_load_dword v245, v13, s[12:13]")
        A("global_load_dword v246, v13, s[14:15]")
    A("v_bfe_u32 v7, v6, 1, 3\nv_xor_b32 v7, v7, v5\nv_lshlrev_b32 v7, 4, v7\nv_lshl_add_u32 v7, v6, 7, v7")
    A("s_lshl_b32 s45, s23, 13\ns_lshl_b32 s46, s44, 13\ns_add_u32 s46, s46, 16384")
    for ks in range(4):
        A(f"v_xor_b32 v12, {ks << 5}, v7")
        A(f"v_add_u32 v{AD(0,0,ks)}, s45, v12\nv_add_u32 v{AD(0,1,ks)}, s46, v12")
        for st in range(1, NSET):
            A(f"v_add_u32 v{AD(st,0,ks)}, {st*65536}, v{AD(0,0,ks)}")
            A(f"v_add_u32 v{AD(st,1,ks)}, {st*65536}, v{AD(0,1,ks)}")
    for r in range(64, 128, 2):
        A(f"v_mov_b64 v[{r}:{r+1}], 0")
    A(f"s_add_u32 s32, s18, {WS_EG}\ns_addc_u32 s33, s19, 0\ns_mov_b32 s34, 0x40000\ns_mov_b32 s35, 0x20000")
    A(f"s_add_u32 s36, s18, {WS_HT}\ns_addc_u32 s37, s19, 0\ns_mov_b32 s38, 0x800000\ns_mov_b32 s39, 0x20000")
    A(f"s_waitcnt vmcnt({5 if TOUCH else 2})")
    A("v_lshlrev_b32 v8, 16, v8\nv_lshlrev_b32 v9, 16, v9\nv_lshlrev_b32 v10, 16, v10")
    A("v_mul_f32 v10, 0x3fb8aa3b, v10\nv_exp_f32 v10, v10")
    A("v_cvt_pk_bf16_f32 v10, v10, v10\nv_lshlrev_b32 v10, 16, v10")
    A("v_mul_f32 v12, v10, v8\nv_mul_f32 v13, v10, v9")
    A("v_mul_f32 v12, 0x3fb8aa3b, v12\nv_exp_f32 v12, v12")
    A("v_mul_f32 v13, 0.15915494, v13\nv_rndne_f32 v14, v13\nv_sub_f32 v13, v13, v14")
    A("v_cos_f32 v14, v13\nv_sin_f32 v15, v13")
    A(f"v_mul_f32 v{LAM}, v12, v14\nv_mul_f32 v{LAM+1}, v12, v15")
    A(f"v_add_f32 v12, -1.0, v{LAM}")
    A("v_mul_f32 v13, v8, v8\nv_fma_f32 v13, v9, v9, v13\nv_rcp_f32 v13, v13")
    A("v_add_f32 v13, v13, v13")
    A(f"v_mul_f32 v14, v12, v8\nv_fma_f32 v14, v{LAM+1}, v9, v14\nv_mul_f32 v{KC}, v14, v13")
    A(f"v_mul_f32 v14, v{LAM+1}, v8\nv_fma_f32 v14, -v12, v9, v14\nv_mul_f32 v{KC+1}, v14, v13")
    cmul_sq(A, L16, LAM, 12)
    for _ in range(3):
        cmul_sq(A, L16, L16, 12)
    cmul_sq(A, L128, L16, 12)
    for _ in range(2):
        cmul_sq(A, L128, L128, 12)
    cmul_sq(A, L256, L128, 12)

    def reads(k, ks, which):
        slot = k % NS
        st, off = slot >> 1, (slot & 1)*32768
        X = ks & 1
        for f in which:
            op = 0 if f in (0, 3) else 1
            hi = 4096 if f in (2, 3) else 0
            A(f"ds_read_b128 {v(FR(X, f), 4)}, v{AD(st, op, ks)} offset:{off + hi}")

    def mfma(T, c, X):
        a = FR(X, 0 if T == 0 else 3)
        b = FR(X, 1 if c == 0 else 2)
        if HACK16:
            for z in range(2):
                d = ACC(T, c) + 8*X + 4*z
                A(f"v_mfma_f32_16x16x32_bf16 {v(d,4)}, {v(a,4)}, {v(b,4)}, {v(d,4)}")
        else:
            A(f"v_mfma_f32_32x32x16_bf16 {v(ACC(T,c),16)}, {v(a,4)}, {v(b,4)}, {v(ACC(T,c),16)}")
    A("s_barrier")
    reads(0, 0, [0, 1, 2, 3])
    for k in range(16):
        for ks in range(4):
            X = ks & 1
            nk, nks = (k, ks+1) if ks < 3 else (k+1, 0)
            have = nk < 16
            if ks == 3:
                A("s_waitcnt lgkmcnt(0)\ns_barrier")
            else:
                A("s_waitcnt lgkmcnt(2)")
            if k == 15 and ks == 0:
                A("v_mov_b32 v12, 0")
                A("global_load_dword v13, v12, s[16:17] sc1")
            mfma(0, 0, X)
            if have:
                reads(nk, nks, [0, 1])
            if ks != 3:
                A("s_waitcnt lgkmcnt(3)")
            mfma(0, 1, X)
            if have:
                reads(nk, nks, [2, 3])
            if ks != 3:
                A("s_waitcnt lgkmcnt(4)")
            mfma(1, 0, X)
            mfma(1, 1, X)
    mark(A, 1)
    U = lambda c, idx: ACC(idx >> 3, c) + 2*(idx & 7)
    bc_a = "op_sel_hi:[0,1,1]"
    bc_b = "op_sel:[1,0,0]"
    neg0 = "neg_lo:[1,0,0] neg_hi:[1,0,0]"
    E = 32
    TT = 40

    def scan_step(dr, di, pr, pi, ur, ui):
        A(f"v_pk_fma_f32 {v(TT,2)}, {v(LAM,2)}, {v(pr,2)}, {v(ur,2)} {bc_a}")
        A(f"v_pk_fma_f32 {v(TT+2,2)}, {v(LAM,2)}, {v(pi,2)}, {v(ui,2)} {bc_a}")
        A(f"v_pk_fma_f32 {v(dr,2)}, {v(LAM,2)}, {v(pi,2)}, {v(TT,2)} {bc_b} {neg0}")
        A(f"v_pk_fma_f32 {v(di,2)}, {v(LAM,2)}, {v(pr,2)}, {v(TT+2,2)} {bc_b}")
    cur = (U(0, 0), U(1, 0))
    for idx in range(1, 16):
        d = E + 4*(idx & 1 ^ 1)
        scan_step(d, d+2, cur[0], cur[1], U(0, idx), U(1, idx))
        cur = (d, d+2)
    assert cur[0] == E
    A("s_lshl_b32 s45, s51, 11\ns_lshl_b32 s46, s23, 5")
    A("v_lshl_add_u32 v14, v6, 6, s45")
    A("v_lshl_add_u32 v15, v5, 4, v14\nv_add_u32 v15, s46, v15")
    A(f"ds_write_b128 v15, {v(E,4)}")
    A("s_sub_u32 s45, s21, 1\ns_lshl_b32 s45, s45, 14")
    A("v_lshlrev_b32 v16, 4, v4\nv_lshlrev_b32 v17, 14, v5\nv_sub_u32 v17, v16, v17")
    A(f"v_add_u32 v128, s45, v17")
    for u in range(1, 8):
        A(f"v_subrev_u32 v{128+u}, {u*32768}, v128")
    A("s_lshl_b32 s45, s21, 14\nv_add_u32 v16, s45, v16")
    A("v_lshlrev_b32 v17, 30, v5\nv_or_b32 v16, v16, v17")
    A("s_waitcnt lgkmcnt(0)\ns_barrier")
    mark(A, 2)
    SG = 144
    for u in range(4):
        A(f"ds_read_b128 {v(SG+4*u,4)}, v14 offset:{u*16}")
    A.label(f"L_{name}_nonce")
    A("s_waitcnt vmcnt(0)")
    A("v_readfirstlane_b32 s50, v13")
    A("s_cmp_lg_u32 s50, 0")
    A(f"s_cbranch_scc1 L_{name}_gotnonce")
    A("global_load_dword v13, v12, s[16:17] sc1")
    A(f"s_branch L_{name}_nonce")
    A.label(f"L_{name}_gotnonce")
    A("s_waitcnt lgkmcnt(0)")
    seg = lambda sidx: (SG + 4*(sidx >> 1) + (sidx & 1), SG + 4*(sidx >> 1) + 2 + (sidx & 1))
    P = 44
    A(f"v_mov_b32 v{P}, v{seg(0)[0]}\nv_mov_b32 v{P+1}, v{seg(0)[1]}")
    for sidx in range(1, 8):
        horner(A, P, P+1, L16, P, P+1, seg(sidx)[0], seg(sidx)[1], TT)
    A(f"v_mov_b32 v{P+2}, s50\nv_mov_b32 v{P+3}, s50")
    A("s_cmp_lg_u32 s23, 0")
    A(f"s_cbranch_scc1 L_{name}_nopub")
    A(f"buffer_store_dwordx4 {v(P,4)}, v16, s[32:35], 0 offen sc0 sc1")
    A.label(f"L_{name}_nopub")
    mark(A, 3)
    LB = 160
    A("v_mov_b32 v17, 0x40000000")
    for u in range(8):
        A(f"v_cmp_le_i32 vcc, 0, v{128+u}")
        A(f"v_cndmask_b32 v{136+u}, 0, v{P+2}, vcc")
        A(f"v_cndmask_b32 v{128+u}, v17, v{128+u}, vcc")
    A("s_mov_b32 s46, 0")
    A.label(f"L_{name}_poll")
    for u in range(8):
        A(f"buffer_load_dwordx4 {v(LB+4*u,4)}, v{128+u}, s[32:35], 0 offen sc1")
    A("s_mov_b64 s[54:55], 0")
    for u in range(8):
        A(f"s_waitcnt vmcnt({7-u})")
        A(f"v_cmp_ne_u32 vcc, v{LB+4*u+2}, v{136+u}")
        A("s_or_b64 s[54:55], s[54:55], vcc")
        A(f"v_cmp_ne_u32 vcc, v{LB+4*u+3}, v{136+u}")
        A("s_or_b64 s[54:55], s[54:55], vcc")
    A("s_add_u32 s46, s46, 1")
    A("s_cmp_eq_u64 s[54:55], 0")
    A(f"s_cbranch_scc1 L_{name}_polled")
    A(f"s_cmp_lt_u32 s46, {SPIN_MAX}")
    A(f"s_cbranch_scc1 L_{name}_poll")
    A.label(f"L_{name}_polled")
    mark(A, 4)
    if STAMP:
        A("s_mov_b32 s86, s46\ns_add_u32 s86, s86, s70")
    H = LB + 28
    for u in range(6, -1, -1):
        horner(A, H, H+1, L256, H, H+1, LB+4*u, LB+4*u+1, TT)
    A(f"v_mov_b32 v48, v{H}\nv_mov_b32 v49, v{H+1}")
    A(f"v_permlane32_swap_b32 v{H}, v48\nv_permlane32_swap_b32 v{H+1}, v49")
    PS = 192
    horner(A, PS, PS+1, L128, 48, 49, H, H+1, TT)
    for sidx in range(1, 8):
        pr = PS + 2*(sidx-1)
        horner(A, pr+2, pr+3, L16, pr, pr+1, seg(sidx-1)[0], seg(sidx-1)[1], TT)
    A("s_cmp_eq_u32 s23, 0")
    A(f"s_cbranch_scc1 L_{name}_wt0")
    for r in range(8):
        A(f"v_mov_b32 v{PS+r}, v{PS+8+r}")
    A.label(f"L_{name}_wt0")
    A("v_cmp_eq_u32 vcc, 1, v5")
    G = 48
    A(f"v_cndmask_b32 v{G}, v{PS}, v{PS+4}, vcc")
    A(f"v_cndmask_b32 v{G+1}, v{PS+2}, v{PS+6}, vcc")
    A(f"v_cndmask_b32 v{G+2}, v{PS+1}, v{PS+5}, vcc")
    A(f"v_cndmask_b32 v{G+3}, v{PS+3}, v{PS+7}, vcc")
    PK = lambda c, idx: 128 + 16*c + idx
    cur = (G, G+2)
    O = 52
    for idx in range(16):
        d = (U(0, idx), U(1, idx))
        scan_step(d[0], d[1], cur[0], cur[1], d[0], d[1])
        cur = d
        A(f"v_pk_mul_f32 {v(O,2)}, {v(KC,2)}, {v(d[0],2)} op_sel_hi:[0,1]")
        A(f"v_pk_mul_f32 {v(O+2,2)}, {v(KC,2)}, {v(d[1],2)} op_sel_hi:[0,1] neg_lo:[1,0] neg_hi:[1,0]")
        A(f"v_pk_fma_f32 {v(O,2)}, {v(KC,2)}, {v(d[1],2)}, {v(O,2)} {bc_b} {neg0}")
        A(f"v_pk_fma_f32 {v(O+2,2)}, {v(KC,2)}, {v(d[0],2)}, {v(O+2,2)} {bc_b} {neg0}")
        A(f"v_cvt_pk_bf16_f32 v{PK(0,idx)}, v{O}, v{O+1}")
        A(f"v_cvt_pk_bf16_f32 v{PK(1,idx)}, v{O+2}, v{O+3}")
    mark(A, 5)
    D = lambda c, X: 160 + (c*2 + X)*16
    for c in range(2):
        for X in range(2):
            A(f"v_mfma_f32_32x32x16_bf16 {v(D(c,X),16)}, {v(PK(c,8*X),4)}, v[248:251], 0")
            A(f"v_mfma_f32_32x32x16_bf16 {v(D(c,X),16)}, {v(PK(c,8*X+4),4)}, v[252:255], {v(D(c,X),16)}")
    A("s_lshl_b32 s45, s21, 1\ns_add_u32 s45, s45, s23\ns_lshl_b32 s45, s45, 18")
    A("s_lshl_b32 s46, s22, 13\ns_add_u32 s45, s45, s46\ns_lshl_b32 s46, s51, 11\ns_add_u32 s45, s45, s46")
    for c in range(2):
        for X in range(2):
            A(f"s_add_u32 s46, s45, {X*131072 + c*4096}")
            q = 64 + (c*2 + X)*8
            for jj in range(8):
                A(f"v_cvt_pk_bf16_f32 v{q+jj}, v{D(c,X)+2*jj}, v{D(c,X)+2*jj+1}")
            A(f"buffer_store_dwordx4 {v(q,4)}, v11, s[36:39], s46 offen")
            A(f"buffer_store_dwordx4 {v(q+4,4)}, v11, s[36:39], s46 offen offset:1024")
    stamp_end(A, kidx, 20)
    A.label(f"L_{name}_end")
    A("s_endpgm")
    return kdesc(name, 256)


def gen_g2(A, name="g2_kernel", kidx=1):
    HD = 32
    CD = 10
    R = 16
    BG = 2
    A(f".globl {name}\n.p2align 8\n.type {name},@function")
    A.label(name)
    A("s_cmp_ge_u32 s2, 256")
    A(f"s_cbranch_scc1 L_{name}_end")
    stamp_begin(A)
    A("s_load_dwordx2 s[4:5], s[0:1], 24")
    A("s_load_dwordx4 s[8:11], s[0:1], 64")
    A("s_load_dwordx4 s[12:15], s[0:1], 88")
    A("s_load_dwordx2 s[18:19], s[0:1], 112")
    A("v_lshrrev_b32 v2, 6, v0")
    A("v_and_b32 v1, 63, v0")
    A("v_readfirstlane_b32 s20, v2")
    A("s_and_b32 s44, s2, 7\ns_lshr_b32 s45, s2, 3")
    A("s_lshr_b32 s21, s44, 1\ns_lshl_b32 s21, s21, 2\ns_lshr_b32 s46, s45, 3\ns_add_u32 s21, s21, s46")
    A("s_and_b32 s22, s44, 1\ns_lshl_b32 s22, s22, 3\ns_and_b32 s46, s45, 7\ns_add_u32 s22, s22, s46")
    A("v_lshlrev_b32 v2, 4, v1")
    A("v_lshrrev_b32 v3, 3, v1")
    A("s_and_b32 s44, s20, 1\ns_lshl_b32 s44, s44, 5\ns_lshr_b32 s45, s20, 1\ns_add_u32 s44, s44, s45")
    A("v_lshl_add_u32 v3, v3, 1, s44\nv_lshlrev_b32 v3, 11, v3")
    A("v_and_b32 v12, 7, v1\nv_lshrrev_b32 v13, 4, v1\nv_xor_b32 v12, v12, v13\nv_lshlrev_b32 v12, 4, v12")
    A("v_xor_b32 v13, 64, v12")
    A("v_add_u32 v14, v3, v12")
    A(f"v_add_u32 v15, v3, v13\nv_add_u32 v15, {16*2048 - 1024}, v15")
    A("s_waitcnt lgkmcnt(0)")
    A("s_lshl_b32 s44, s21, 2\ns_add_u32 s44, s44, s20\ns_lshl_b32 s44, s44, 17")
    A(f"s_add_u32 s44, s44, {WS_HT}")
    A("s_add_u32 s24, s18, s44\ns_addc_u32 s25, s19, 0\ns_mov_b32 s26, 0x20000\ns_mov_b32 s27, 0x20000")
    A("s_lshl_b32 s44, s22, 17")
    A("s_add_u32 s28, s8, s44\ns_addc_u32 s29, s9, 0\ns_mov_b32 s30, 0x20000\ns_mov_b32 s31, 0x20000")
    A("s_add_u32 s32, s10, s44\ns_addc_u32 s33, s11, 0\ns_mov_b32 s34, 0x20000\ns_mov_b32 s35, 0x20000")
    A("s_lshl_b32 s47, s20, 11")
    A(f"s_and_b32 s57, s2, 7\ns_mul_i32 s57, s57, {XO2*128}")
    A(f"s_add_u32 s44, s21, s22\ns_and_b32 s44, s44, {NP2-1}\ns_mul_i32 s44, s44, {2048//NP2}\ns_add_u32 s57, s57, s44")
    A("s_lshl_b32 s56, s57, 6")
    mark(A, 7)
    vm = VmCounter(A)
    HR = lambda s_: 64 + 4*(s_ % HD)

    def hload(s_):
        if s_ % 4 == 0:
            if ROT:
                A(f"s_add_u32 s48, s56, {(s_ >> 2)*4096}\ns_and_b32 s48, s48, 0x1ffff")
            else:
                A(f"s_mov_b32 s48, {(s_ >> 2)*4096}")
        vm.op(f"buffer_load_dwordx4 {v(HR(s_),4)}, v2, s[24:27], s48 offen offset:{(s_ & 3)*1024}", ("h", s_))

    def cdma(g, u):
        srd = "s[28:31]" if g % 2 == 0 else "s[32:35]"
        if u == 0:
            A(f"s_add_u32 m0, s47, {(g % R)*8192}")
            if ROT:
                A(f"s_add_u32 s49, s57, {(g >> 1)*128}\ns_and_b32 s49, s49, 0x7ff")
            else:
                A(f"s_mov_b32 s49, {(g >> 1)*128}")
        vm.op(f"buffer_load_dwordx4 v{14+u}, {srd}, s49 offen offset:{u*1024} lds", ("c", g))
    for g in range(CD):
        cdma(g, 0)
        cdma(g, 1)
        if g < HD//4:
            for ks in range(4):
                hload(4*g + ks)
    A("v_and_b32 v16, 31, v1\nv_lshrrev_b32 v17, 5, v1")
    A("v_bfe_u32 v18, v16, 1, 3\nv_xor_b32 v18, v18, v17\nv_lshlrev_b32 v18, 4, v18\nv_lshl_add_u32 v18, v16, 7, v18")
    for ks in range(4):
        A(f"v_xor_b32 v{4+ks}, {ks << 5}, v18")
        A(f"v_add_u32 v{8+ks}, 0x10000, v{4+ks}")
    A("s_and_b32 s44, s20, 1\ns_lshl_b32 s44, s44, 3")
    A("v_lshl_add_u32 v17, v17, 2, s44")
    A("v_lshlrev_b32 v208, 11, v17\nv_lshl_add_u32 v208, v16, 2, v208")
    A("v_lshlrev_b32 v209, 13, v17\nv_lshl_add_u32 v209, v16, 3, v209")
    A("v_lshlrev_b32 v210, 2, v16")
    A("s_lshl_b32 s44, s21, 1\ns_lshr_b32 s45, s20, 1\ns_add_u32 s44, s44, s45")
    A("s_lshl_b32 s45, s44, 17\ns_lshl_b32 s46, s22, 7\ns_add_u32 s45, s45, s46")
    A("s_add_u32 s36, s4, s45\ns_addc_u32 s37, s5, 0\ns_sub_u32 s38, 0x20000, s46\ns_mov_b32 s39, 0x20000")
    A("s_add_u32 s12, s12, s46\ns_addc_u32 s13, s13, 0")
    A("s_lshl_b32 s45, s44, 19\ns_lshl_b32 s46, s22, 8\ns_add_u32 s46, s46, 4096\ns_add_u32 s45, s45, s46")
    A("s_add_u32 s40, s14, s45\ns_addc_u32 s41, s15, 0\ns_sub_u32 s42, 0x80000, s46\ns_mov_b32 s43, 0x20000")
    ACC = lambda nt: 16 + 16*nt
    CF = lambda X, nt: 48 + 8*X + 4*nt

    def reads(s_):
        g, ks = s_ >> 2, s_ & 3
        slot = g % R
        base = 4 if slot < 8 else 8
        for nt in range(2):
            A(f"ds_read_b128 {v(CF(s_ & 1, nt),4)}, v{base+ks} offset:{(slot & 7)*8192 + nt*4096}")
    mark(A, 1)
    vm.wait_for(("c", BG-1))
    A("s_barrier")
    mark(A, 2)
    reads(0)
    for s_ in range(128):
        g, ks = s_ >> 2, s_ & 3
        nxt = s_ + 1
        newgrp = nxt < 128 and nxt % (4*BG) == 0
        wh = vm.wait_for(("h", s_), emit=False)
        if newgrp:
            wc = vm.wait_for(("c", (nxt >> 2) + BG - 1), emit=False)
            A(f"s_waitcnt vmcnt({min(wh, wc)}) lgkmcnt(0)\ns_barrier")
            if nxt % 32 == 0:
                mark(A, 2 + nxt//32)
            reads(nxt)
        else:
            if nxt < 128:
                reads(nxt)
                A(f"s_waitcnt vmcnt({wh}) lgkmcnt(2)")
            else:
                A(f"s_waitcnt vmcnt({wh}) lgkmcnt(0)")
        for nt in range(2):
            c = "0" if s_ == 0 else v(ACC(nt), 16)
            if HACK16:
                for z in range(2):
                    a = ACC(nt) + 8*(s_ & 1) + 4*z
                    A(f"v_mfma_f32_16x16x32_bf16 {v(a,4)}, {v(HR(s_),4)}, {v(CF(s_ & 1, nt),4)}, {v(a,4)}")
            else:
                A(f"v_mfma_f32_32x32x16_bf16 {v(ACC(nt),16)}, {v(HR(s_),4)}, {v(CF(s_ & 1, nt),4)}, {c}")
        if s_ + HD < 128:
            hload(s_ + HD)
        if ks in (0, 2) and g + CD < 32:
            cdma(g + CD, ks >> 1)
        if s_ == 128 - HD:
            vm.op("global_load_dword v211, v210, s[12:13]", "dsk")
        if 128 - HD <= s_ < 128 - HD + 16:
            e = s_ - (128 - HD)
            q, r = e >> 2, e & 3
            A(f"s_mov_b32 s50, {q*32768 + (r >> 1)*4096}")
            vm.op(f"buffer_load_dword v{192+e}, v208, s[36:39], s50 offen offset:{(r & 1)*2048}", ("x", e))
    mark(A, 6)
    A("s_waitcnt vmcnt(0)")
    A("v_lshlrev_b32 v212, 16, v211\nv_and_b32 v213, 0xffff0000, v211")
    for e in range(16):
        q, r = e >> 2, e & 3
        t = 64 + 4*e
        A(f"v_lshlrev_b32 v{t}, 16, v{192+e}\nv_and_b32 v{t+1}, 0xffff0000, v{192+e}")
        A(f"v_pk_mul_f32 {v(t,2)}, {v(t,2)}, v[212:213]")
        A(f"v_cvt_pk_bf16_f32 v{t+2}, v{t}, v{t+1}")
        A(f"v_lshlrev_b32 v{t}, 16, v{t+2}\nv_and_b32 v{t+1}, 0xffff0000, v{t+2}")
        A(f"v_add_f32 v{t}, v{t}, v{ACC(0)+e}\nv_add_f32 v{t+1}, v{t+1}, v{ACC(1)+e}")
        A(f"s_mov_b32 s50, {(16*q + r)*8192}")
        A(f"buffer_store_dwordx2 {v(t,2)}, v209, s[40:43], s50 offen")
    stamp_end(A, kidx, 20)
    A.label(f"L_{name}_end")
    A("s_endpgm")
    return kdesc(name, 256)
```

```python
import os
from asmlib import *
from common import *

E_ = lambda k, d: int(os.environ.get(k, str(d)))
XO, NP, RI, RJ = E_("XO", 3), E_("NP", 2), E_("RI", 0), E_("RJ", 0)
XO2, NP2 = E_("XO2", 2), E_("NP2", 1)
PRO = E_("PRO", 2)
HD = E_("HD", 12)
CD = E_("CD", 4)
NOAUX = E_("NOAUX", 0)
CODEPF = E_("CODEPF", 1)
NS = 3
SPLITK = E_('SPLITK', 0)
POL = {0: '', 1: ' nt', 2: ' sc1', 3: ' sc1 nt', 4: ' sc0 sc1 nt', 5: ' sc0 nt'}
HST, ZST = POL[E_('HST', 0)], POL[E_('ZST', 0)]
LA = E_('LA', 2)
FORCE_REMOTE = E_('FORCE_REMOTE', 0)
MF = "v_mfma_f32_32x32x16_bf16"
N0 = "neg_lo:[1,0,0] neg_hi:[1,0,0]"

AX, WR, WI, BX, LRE, LIM, BRE, BIM, CRE, CIM, LDT, DSK, OUT, DBG, WS = 4, 6, 8, 10, 12, 14, 16, 18, 20, 22, 24, 26, 28, 30, 32
WAVE, TI, TJ, NONCE, TBL = 34, 35, 36, 37, 38
S0, S1, S2, S3, S4 = 40, 44, 48, 52, 56
T0, T1, T2, T3, T4, T5, T6, T7, T8, T9 = range(60, 70)
MSK, CNT, LOCAL, PG = 90, 92, 100, 101
L_XCH = 122880
L_SYNC = 126976
L_AX = 131072
L_W = 147456
WS_CNT = 0x1000
CNT_A, CNT_B = WS_CNT, WS_CNT + 16*128
FLG_A, FLG_B = 0x84000, 0x86000
FLG_X = 0x8000
FLG_H = 0x60000
CPRO1 = E_("CPRO1", 2)
CPRO2 = E_("CPRO2", 2)
CTOUCH = E_("CTOUCH", 1)
FTOUCH = E_("FTOUCH", 1)
LBAT = E_("LBAT", 16)
XBF = E_("XBF", 1)
SLP_H, SLP_A = E_("SLP_H", 4), E_("SLP_A", 2)
NT = " nt" if E_("NT", 1) else ""
NTX = " nt"
OST = {0: "", 1: " nt", 2: " sc1", 3: " sc1 nt", 4: " sc0 sc1 nt", 5: " sc0 nt"}[E_("OST", 1)]
NTK = E_("NTK", 0)
OSTB = POL[E_("OSTB", 1)]
CD2 = E_("CD2", 6)
RJ2 = E_("RJ2", 0)
NTC = " nt" if E_("NTC", 0) else ""


def sp(a):
    return f"s[{a}:{a+1}]"


def srd(A, d, base, soff=None, const=0, size=None, size_s=None):
    if soff is None and const == 0:
        A(f"s_mov_b32 s{d}, s{base}\ns_mov_b32 s{d+1}, s{base+1}")
    else:
        if soff is not None and const:
            A(f"s_add_u32 s{d+2}, s{soff}, {const}")
            o = f"s{d+2}"
        elif soff is not None:
            o = f"s{soff}"
        else:
            o = str(const)
        A(f"s_add_u32 s{d}, s{base}, {o}\ns_addc_u32 s{d+1}, s{base+1}, 0")
    if size_s is not None:
        A(f"s_sub_u32 s{d+2}, {size}, s{size_s}")
    else:
        A(f"s_mov_b32 s{d+2}, {size}")
    A(f"s_mov_b32 s{d+3}, 0x20000")


def r4(d):
    return f"s[{d}:{d+3}]"


_u = [0]


def uid(p):
    _u[0] += 1
    return f"L_{p}{_u[0]}"


def get_nonce(A, vt):
    l, d = uid("n"), uid("nd")
    A(f"v_mov_b32 v{vt}, 0")
    A.label(l)
    A(f"global_load_dword v{vt+1}, v{vt}, {sp(DBG)} sc1")
    A("s_waitcnt vmcnt(0)")
    A(f"v_readfirstlane_b32 s{NONCE}, v{vt+1}")
    A(f"s_cmp_eq_u32 s{NONCE}, 0")
    A(f"s_cbranch_scc1 {l}")


def signal(A, sshard, cnt, flg, expect, vt):
    d = uid("sg")
    A(f"s_lshl_b32 s{CNT}, s{sshard}, 7\ns_add_u32 s{CNT}, s{CNT}, {cnt}")
    A(f"v_mov_b32 v{vt}, s{CNT}\nv_mov_b32 v{vt+1}, 1")
    A("s_waitcnt vmcnt(0)")
    A("s_mov_b64 exec, 1")
    A(f"global_atomic_add v{vt+2}, v{vt}, v{vt+1}, {sp(WS)} sc0 sc1")
    A(f"v_add_u32 v{vt}, {flg - cnt}, v{vt}\nv_mov_b32 v{vt+1}, s{NONCE}")
    A("s_waitcnt vmcnt(0)")
    A(f"v_readfirstlane_b32 s{CNT}, v{vt+2}")
    A(f"s_add_u32 s{CNT}, s{CNT}, 1\ns_cmp_lg_u32 s{CNT}, {expect}")
    A(f"s_cbranch_scc1 {d}")
    A(f"global_store_dword v{vt}, v{vt+1}, {sp(WS)} sc1")
    A.label(d)
    A("s_mov_b64 exec, -1")


def set_flag(A, soff, vt):
    A(f"v_mov_b32 v{vt}, s{soff}\nv_mov_b32 v{vt+1}, s{NONCE}")
    A("s_waitcnt vmcnt(0)")
    A("s_mov_b64 exec, 1")
    A(f"global_store_dword v{vt}, v{vt+1}, {sp(WS)} sc1")
    A("s_mov_b64 exec, -1")


def wait_cnt(A, vaddr, vt, sleep):
    l, d = uid("w"), uid("wd")
    A(f"s_mov_b32 s{CNT}, 0")
    A.label(l)
    A(f"global_load_dword v{vt}, v{vaddr}, {sp(WS)} sc1")
    A("s_waitcnt vmcnt(0)")
    A(f"v_cmp_ne_u32 vcc, s{NONCE}, v{vt}")
    A(f"s_cbranch_vccz {d}")
    if sleep:
        A(f"s_sleep {sleep}")
    A(f"s_add_u32 s{CNT}, s{CNT}, 1\ns_cmp_lt_u32 s{CNT}, {SPIN_MAX}")
    A(f"s_cbranch_scc1 {l}")
    A.label(d)


F, T = 192, 224


import struct as _st


def fl(x):
    return hex(_st.unpack("<I", _st.pack("<f", x))[0])


def lane_float(A, vn, vh, t):
    A(f"v_and_b32 v{t}, 31, v1\nv_cvt_f32_u32 v{t}, v{t}\nv_lshrrev_b32 v{t+1}, 5, v1\nv_lshlrev_b32 v{t+1}, 2, v{t+1}\nv_cvt_f32_u32 v{t+1}, v{t+1}")


def make_F(A, t):
    lane_float(A, None, None, t)
    A(f"v_mul_f32 v{t+1}, v{t}, v{t+1}\nv_mul_f32 v{t+1}, {fl(1/32)}, v{t+1}")
    for i in range(16):
        c = 8*(i >> 2) + (i & 3)
        a = t + 2 + 3*(i & 1)
        A(f"v_fmamk_f32 v{a}, v{t}, {fl(c/32)}, v{t+1}\nv_fract_f32 v{a}, v{a}")
        A(f"v_cos_f32 v{a+1}, v{a}\nv_sin_f32 v{a+2}, v{a}")
        A(f"v_cvt_pk_bf16_f32 v{F+i}, v{a+1}, v{a+2}\nv_cvt_pk_bf16_f32 v{F+16+i}, -v{a+2}, v{a+1}")


def make_T(A, dst, t, half):
    lane_float(A, None, None, t)
    if not half:
        A(f"v_mul_f32 v{t+1}, v{t}, v{t+1}\nv_mul_f32 v{t+1}, {fl(1/1024)}, v{t+1}")
    else:
        A(f"v_mul_f32 v{t}, {fl(1/2048)}, v{t}\nv_fmamk_f32 v{t+1}, v{t+1}, {fl(1/64)}, v{t}")
    for i in range(16):
        c = 8*(i >> 2) + (i & 3)
        a = t + 2 + (i & 1)
        if not half:
            A(f"v_fmamk_f32 v{a}, v{t}, {fl(c/1024)}, v{t+1}")
        else:
            A(f"v_add_f32 v{a}, {fl(c/64)}, v{t+1}")
        A(f"v_cos_f32 v{dst+i}, v{a}\nv_sin_f32 v{dst+16+i}, -v{a}")


def stage1(A, src, D, stride=4):
    for c in range(2):
        for s_ in range(4):
            cc = "0" if s_ == 0 else v(D+16*c, 16)
            A(f"{MF} {v(D+16*c,16)}, {v(src+stride*s_,4)}, {v(F+16*c+4*s_,4)}, {cc}")


def twiddle(A, D, dst, tmp):
    for i in range(16):
        re, im, tr, ti = D+i, D+16+i, T+i, T+16+i
        t = tmp + 2*(i & 3)
        A(f"v_mul_f32 v{t}, v{re}, v{tr}\nv_mul_f32 v{t+1}, v{re}, v{ti}")
        A(f"v_fma_f32 v{t}, -v{im}, v{ti}, v{t}\nv_fmac_f32 v{t+1}, v{im}, v{tr}")
        A(f"v_cvt_pk_bf16_f32 v{dst+i}, v{t}, v{t+1}")


def stage2(A, src, D):
    for c in range(2):
        for s_ in range(4):
            cc = "0" if s_ == 0 else v(D+16*c, 16)
            A(f"{MF} {v(D+16*c,16)}, {v(F+16*c+4*s_,4)}, {v(src+4*s_,4)}, {cc}")


W_ = T6
NBW = 2048*513*2
SQ, SO, ST = 184, 185, 186
VA1, VA2, VA8, VLIN = 4, 5, 6, 7
_ph = [0]


def l_arrive(A):
    _ph[0] += 1
    A(f"v_mov_b32 v{ST+4}, {_ph[0]}")
    A(f"s_mov_b64 exec, 1\nds_write_b32 v{SO}, v{ST+4}\ns_mov_b64 exec, -1")
    return _ph[0]


def l_check(A, n, delta=0):
    l, d = uid("lc"), uid("lcd")
    if delta:
        A(f"v_add_u32 v{ST+5}, {delta}, v{SQ}")
    A.label(l)
    A(f"ds_read_b128 {v(ST,4)}, v{ST+5 if delta else SQ}\ns_waitcnt lgkmcnt(0)")
    A(f"v_min3_u32 v{ST}, v{ST}, v{ST+1}, v{ST+2}\nv_min_u32 v{ST}, v{ST}, v{ST+3}")
    A(f"v_readfirstlane_b32 s{CNT}, v{ST}")
    A(f"s_cmp_ge_u32 s{CNT}, {n}")
    A(f"s_cbranch_scc1 {d}")
    A(f"s_sleep 1\ns_branch {l}")
    A.label(d)


def l_sync(A):
    l_check(A, l_arrive(A))


def aux_setup(A):
    srd(A, S2, WR, size=NBW)
    srd(A, S3, WI, size=NBW)
    A(f"s_and_b32 s{T0}, s2, 31\ns_lshr_b32 s{T1}, s2, 5\ns_lshl_b32 s{T1}, s{T1}, 7\ns_add_u32 s{T0}, s{T0}, s{T1}")
    A(f"s_lshl_b32 s{T1}, s{W_}, 5\ns_add_u32 s{T7}, s{T0}, s{T1}\ns_lshl_b32 s{T0}, s{T7}, 12")
    srd(A, AX, AX, T0, 0, 0x1000)
    A("v_lshlrev_b32 v2, 4, v1\nv_xor_b32 v3, 128, v2")
    A(f"s_lshl_b32 s{T8}, s{W_}, 12\ns_add_u32 s{T8}, s{T8}, {L_AX}")
    A(f"s_and_b32 s{T0}, s2, 7\ns_bfe_u32 s{T1}, s2, 0x10003\ns_bfe_u32 s{T2}, s2, 0x20004\ns_lshr_b32 s{T3}, s2, 6")
    A(f"s_lshr_b32 s{T4}, s{T0}, 1\ns_lshl_b32 s{T4}, s{T4}, 3\ns_lshl_b32 s{T5}, s{T1}, 2\ns_add_u32 s{T4}, s{T4}, s{T5}")
    A(f"s_and_b32 s{T5}, s{T0}, 1\ns_lshl_b32 s{T5}, s{T5}, 1\ns_add_u32 s{T4}, s{T4}, s{T5}\ns_lshl_b32 s{T4}, s{T4}, 5")
    A(f"s_lshl_b32 s{T5}, s{T2}, 3\ns_add_u32 s{T4}, s{T4}, s{T5}\ns_lshl_b32 s{T5}, s{W_}, 1\ns_add_u32 s{T4}, s{T4}, s{T5}\ns_mul_i32 s{T4}, s{T4}, 1026")
    A(f"s_lshl_b32 s{T5}, s{T3}, 8\ns_add_u32 s{T9}, s{T4}, s{T5}")
    A("v_bfe_u32 v8, v1, 4, 1\nv_mul_u32_u24 v8, 32832, v8")
    A(f"v_lshrrev_b32 v9, 5, v1\ns_mov_b32 s{T5}, 1050624\nv_mul_lo_u32 v9, s{T5}, v9\nv_add_u32 v8, v8, v9")
    A(f"v_and_b32 v9, 15, v1\ns_lshl_b32 s{T5}, s{W_}, 1\nv_xor_b32 v9, s{T5}, v9")
    A("v_lshl_add_u32 v18, v9, 4, v8\nv_xor_b32 v9, 1, v9\nv_lshl_add_u32 v19, v9, 4, v8\nv_add_u32 v19, 1026, v19")
    A(f"s_bfe_u32 s{T4}, s2, 0x20005\ns_lshl_b32 s{T4}, s{T4}, 8\ns_bfe_u32 s{T5}, s2, 0x10004\ns_lshl_b32 s{T5}, s{T5}, 6\ns_add_u32 s{T4}, s{T4}, s{T5}")
    A(f"s_bfe_u32 s{T5}, s2, 0x10003\ns_lshl_b32 s{T5}, s{T5}, 7\ns_add_u32 s{T4}, s{T4}, s{T5}\ns_and_b32 s{T5}, s2, 7\ns_lshl_b32 s{T5}, s{T5}, 2\ns_add_u32 s{T4}, s{T4}, s{T5}")
    A(f"v_bfe_u32 v8, v1, 3, 2\nv_add_u32 v8, s{T4}, v8\nv_bfe_u32 v9, v1, 2, 1\nv_lshl_add_u32 v8, v9, 5, v8\nv_bfe_u32 v9, v1, 1, 1\nv_lshl_add_u32 v8, v9, 10, v8")
    A("v_sub_u32 v9, 2048, v8\nv_and_b32 v9, 2047, v9\nv_and_b32 v10, 1, v1\nv_cmp_eq_u32 vcc, 1, v10\nv_cndmask_b32 v8, v8, v9, vcc")
    A(f"v_mul_u32_u24 v17, 1026, v8\ns_lshr_b32 s{T4}, s2, 7\ns_lshl_b32 s{T4}, s{T4}, 10\nv_add_u32 v17, s{T4}, v17")


def aux_issue(A, vm):
    for c in range(2):
        A(f"s_add_u32 m0, s{T8}, {c*2048}")
        A(f"s_mov_b32 s{CNT}, {c*2048}")
        for u in range(2):
            vm.op(f"buffer_load_dwordx4 v{2+c}, {r4(AX)}, s{CNT} offen offset:{u*1024}{NT} lds", "aux")
    for bb in range(2):
        for arr in range(2):
            A(f"s_add_u32 m0, s{T8}, {L_W - L_AX + bb*2048 + arr*1024}")
            vm.op(f"buffer_load_dwordx4 v{18+bb}, {r4(S2 if arr == 0 else S3)}, s{T9} offen{NT} lds", "aux")
    nw = uid("nw")
    A(f"s_cmp_lg_u32 s{W_}, 3\ns_cbranch_scc1 {nw}")
    A("s_mov_b32 exec_hi, 0")
    A(f"buffer_load_ushort v{WSP}, v17, {r4(S2)}, 0 offen{NT}")
    A(f"buffer_load_ushort v{WSP+1}, v17, {r4(S3)}, 0 offen{NT}")
    A("s_mov_b64 exec, -1")
    A.label(nw)


WSP, IN, D, MID, TMP = 88, 24, 40, 72, 168
DY, W, TT = 72, 104, 136
M_, SPC, CJ, SGN = T0, T1, T2, T3
A2LATE = E_("A2LATE", 0)
AUXK = E_("AUXK", 14)
GATE = E_("GATE", 0)
LPRIO, LPRIO2 = E_('LPRIO', 3), E_('LPRIO2', 3)
L_IMG = 98304
LIMG_FREE = 2


def img(i):
    ka = 8*(i >> 2) + (i & 3)
    return (VA1, ka*1024) if i < 8 else (VA8, 0) if i == 8 else (VA2, (27 - ka)*1024)


def img_addr(A, base):
    A(f"v_mov_b32 v{SQ}, {L_SYNC + 16}\ns_lshl_b32 s{T4}, s{W_}, 2\nv_add_u32 v{SO}, s{T4}, v{SQ}")
    A("v_and_b32 v8, 31, v1\nv_lshrrev_b32 v9, 5, v1\nv_and_b32 v10, 1, v1")
    A(f"v_lshrrev_b32 v11, 1, v8\nv_lshlrev_b32 v{VA1}, 6, v11\nv_lshl_add_u32 v{VA1}, v10, 4, v{VA1}\nv_lshl_add_u32 v{VA1}, v9, 12, v{VA1}")
    A(f"v_add_u32 v11, v11, v10\nv_lshlrev_b32 v11, 6, v11\nv_lshl_add_u32 v11, v10, 4, v11\nv_lshl_add_u32 v11, v9, 12, v11\nv_sub_u32 v{VA2}, {5120 + 48}, v11")
    for r in (VA1, VA2):
        A(f"v_bfe_u32 v11, v{r}, 7, 1\nv_lshlrev_b32 v11, 5, v11\nv_xor_b32 v{r}, v{r}, v11")
    A(f"v_add_u32 v{VA8}, 11264, v{VA2}\nv_and_b32 v{VA8}, 0x3fff, v{VA8}")
    A(f"s_add_u32 s{T4}, s{T4}, {base}")
    for r in (VA1, VA2, VA8):
        A(f"v_add_u32 v{r}, s{T4}, v{r}")
    A(f"v_bfe_u32 v11, v1, 3, 1\nv_lshlrev_b32 v11, 5, v11\nv_xor_b32 v{VLIN}, v2, v11")


def aux_pre(A):
    img_addr(A, L_IMG)
    A("v_bfe_u32 v12, v1, 2, 1\nv_mul_u32_u24 v12, 2176, v12")
    A("v_bfe_u32 v13, v1, 3, 1\nv_lshl_add_u32 v12, v13, 6, v12\nv_lshl_add_u32 v12, v9, 8, v12")
    A("v_bfe_u32 v13, v1, 4, 1\nv_lshl_add_u32 v12, v13, 5, v12\nv_and_b32 v13, 3, v1\nv_lshl_add_u32 v12, v13, 3, v12")
    A(f"v_add_u32 v12, s{T8}, v12\nv_xor_b32 v13, 128, v12")
    A(f"s_lshl_b32 s{T4}, s2, 14\ns_lshl_b32 s{T5}, s{W_}, 12\ns_add_u32 s{T4}, s{T4}, s{T5}")
    srd(A, S0, WS, T4, WS_Z1, 0x1000)
    A(f"v_and_b32 v14, 7, v1\nv_lshrrev_b32 v15, 3, v1\nv_xor_b32 v16, v14, v15\nv_lshlrev_b32 v16, 4, v16\nv_lshl_add_u32 v16, v14, 11, v16")
    A(f"s_lshr_b32 s{T4}, s{W_}, 1\ns_lshl_b32 s{T4}, s{T4}, 7\ns_and_b32 s{T5}, s{W_}, 1\ns_lshl_b32 s{T5}, s{T5}, 3\ns_add_u32 s{T4}, s{T4}, s{T5}\ns_add_u32 s{T4}, s{T4}, {L_W}")
    A(f"v_add_u32 v16, s{T4}, v16")
    A("v_lshlrev_b32 v15, 16, v15\nv_lshl_add_u32 v15, v14, 4, v15")
    A(f"s_lshl_b32 s{T4}, s{T3}, 7\ns_lshr_b32 s{T5}, s{W_}, 1\ns_lshl_b32 s{T5}, s{T5}, 6\ns_add_u32 s{T4}, s{T4}, s{T5}")
    A(f"s_and_b32 s{T5}, s{W_}, 1\ns_lshl_b32 s{T5}, s{T5}, 2\ns_add_u32 s{T4}, s{T4}, s{T5}\ns_lshl_b32 s{T4}, s{T4}, 13")
    A(f"s_lshl_b32 s{T5}, s{T0}, 10\ns_add_u32 s{T4}, s{T4}, s{T5}\ns_lshl_b32 s{T5}, s{T1}, 9\ns_add_u32 s{T4}, s{T4}, s{T5}\ns_lshl_b32 s{T5}, s{T2}, 7\ns_add_u32 s{T4}, s{T4}, s{T5}")
    srd(A, S4, WS, T4, WS_WT, 0x400000, T4)
    make_F(A, 104)
    make_T(A, T, 104, 0)


def aux_hook(A, vm, k):
    if k == AUXK:
        aux_issue(A, vm)


def a1_task(A):
    RR = lambda arr, kind: 104 + (arr*4 + kind)*2
    A("s_waitcnt vmcnt(4)")
    mark(A, 6)
    for s_ in range(4):
        for u in range(2):
            A(f"ds_read_b64_tr_b16 {v(IN+4*s_+2*u,2)}, v{12+u} offset:{s_*512}")
    A("s_waitcnt lgkmcnt(0)")
    stage1(A, IN, D)
    twiddle(A, D, MID, TMP)
    stage2(A, MID, D)
    A(f"s_mov_b32 s{T4}, 0x05040100\ns_mov_b32 s{T5}, 0x07060302")
    A(f"s_lshl_b32 s{CNT}, s{W_}, 12\ns_add_u32 s{CNT}, s{CNT}, {L_IMG}\nv_add_u32 v8, s{CNT}, v{VLIN}")
    for i in range(16):
        A(f"v_cvt_pk_bf16_f32 v{MID+i}, v{D+i}, v{D+16+i}")
        a, o = img(i)
        A(f"ds_write_b32 v{a}, v{MID+i} offset:{o}")
    A("s_waitcnt vmcnt(0) lgkmcnt(0)")
    l_sync(A)
    for u in range(4):
        A(f"ds_read_b128 {v(MID+4*u,4)}, v8 offset:{u*1024}")
    for arr in range(2):
        for kind in range(4):
            A(f"ds_read_b64 {v(RR(arr,kind),2)}, v16 offset:{arr*1024 + kind*256}")
    A(f"v_lshlrev_b32 v{WSP}, 16, v{WSP}\nv_lshlrev_b32 v{WSP+1}, 16, v{WSP+1}\nv_lshlrev_b32 v9, 1, v1")
    A(f"v_add_f32_dpp v{WSP+2}, v{WSP}, v{WSP} quad_perm:[1,0,3,2] row_mask:0xf bank_mask:0xf")
    A(f"v_subrev_f32_dpp v{WSP+3}, v{WSP+1}, v{WSP+1} quad_perm:[1,0,3,2] row_mask:0xf bank_mask:0xf")
    A(f"v_mul_f32 v{WSP+2}, 0.5, v{WSP+2}\nv_mul_f32 v{WSP+3}, 0.5, v{WSP+3}")
    A(f"v_cvt_pk_bf16_f32 v{WSP}, v{WSP+2}, v{WSP+3}")
    A("s_waitcnt lgkmcnt(0)")
    for kap in range(4):
        o = 120 + 4*kap
        for e in range(2):
            for h2 in range(2):
                kind = e + 2*h2
                A(f"v_perm_b32 v{o+2*e+h2}, v{RR(1,kind)+kap//2}, v{RR(0,kind)+kap//2}, s{T4 + kap % 2}")
    if GATE:
        l_check(A, 1, -16)
    for u in range(4):
        A(f"buffer_store_dwordx4 {v(MID+4*u,4)}, v2, {r4(S0)}, 0 offen offset:{u*1024}{ZST}")
    for kap in range(4):
        A(f"s_mov_b32 s{CNT}, {kap*8192}")
        A(f"buffer_store_dwordx4 {v(120+4*kap,4)}, v15, {r4(S4)}, s{CNT} offen{ZST}")
    nw = uid("nw")
    A(f"s_cmp_lg_u32 s{W_}, 3\ns_cbranch_scc1 {nw}")
    A(f"s_lshr_b32 s{T4}, s2, 7\ns_sub_u32 s{T4}, 513, s{T4}\ns_lshl_b32 s{T4}, s{T4}, 13\ns_and_b32 s{T5}, s2, 127\ns_lshl_b32 s{T5}, s{T5}, 6\ns_add_u32 s{T4}, s{T4}, s{T5}")
    srd(A, S4, WS, T4, WS_WT, 64)
    A("s_mov_b32 exec_lo, 0x55555555\ns_mov_b32 exec_hi, 0")
    A(f"buffer_store_dword v{WSP}, v9, {r4(S4)}, 0 offen{ZST}")
    A("s_mov_b64 exec, -1")
    A.label(nw)
    mark(A, 2)


def a2_setup(A):
    A(f"s_and_b32 s{M_}, s2, 7\ns_lshl_b32 s{M_}, s{M_}, 5\ns_lshr_b32 s{T4}, s2, 3\ns_add_u32 s{M_}, s{M_}, s{T4}")
    A(f"s_lshr_b32 s{T4}, s{W_}, 1\ns_xor_b32 s{T4}, s{T4}, s{W_}\ns_and_b32 s{T4}, s{T4}, 1")
    A(f"s_or_b32 s{T5}, s{T4}, s{M_}\ns_cmp_eq_u32 s{T5}, 0\ns_cselect_b32 s{SPC}, 1, 0")
    A(f"s_lshl_b32 s{T5}, s{M_}, 1\ns_add_u32 s{T4}, s{T4}, s{T5}")
    A(f"s_lshr_b32 s{T5}, s{W_}, 1\ns_sub_u32 s{T9}, 513, s{T5}\ns_cmp_eq_u32 s{SPC}, 1\ns_cselect_b32 s{T4}, s{T9}, s{T4}\ns_cselect_b32 s{T5}, 0, s{T5}")
    A(f"s_lshl_b32 s{CJ}, s{T5}, 31\ns_or_b32 s{SGN}, s{CJ}, 0x3f800000\ns_lshl_b32 s{T4}, s{T4}, 13")
    A("s_waitcnt lgkmcnt(0)")
    srd(A, S2, WS, T4, WS_WT, 0x2000)
    A(f"s_lshl_b32 s{T4}, s{W_}, 20\ns_lshl_b32 s{T5}, s{M_}, 6\ns_add_u32 s{T4}, s{T4}, s{T5}")
    srd(A, S3, WS, T4, WS_Z1, 0x100000, T5)
    srd(A, S4, WS, T4, WS_Z3, 0x100000, T5)
    A("v_lshrrev_b32 v8, 2, v1\nv_lshlrev_b32 v8, 14, v8\nv_and_b32 v9, 3, v1\nv_lshrrev_b32 v10, 4, v1\nv_xor_b32 v9, v9, v10\nv_lshl_add_u32 v14, v9, 4, v8")
    A(f"v_and_b32 v8, 31, v1\nv_bfe_u32 v9, v1, 2, 2\nv_xor_b32 v9, s{W_}, v9\nv_lshlrev_b32 v9, 4, v9\nv_lshl_add_u32 v9, v8, 6, v9")
    A(f"v_lshrrev_b32 v8, 5, v1\nv_lshl_add_u32 v9, v8, 11, v9\nv_add_u32 v15, {L_AX}, v9")
    A(f"s_lshl_b32 s{T4}, s{W_}, 13\ns_add_u32 s{T4}, s{T4}, {L_AX}\nv_add_u32 v16, s{T4}, v2")
    A(f"s_xor_b32 s{T5}, s{T4}, {3 << 13}\ns_cmp_eq_u32 s{SPC}, 1\ns_cselect_b32 s{T5}, s{T4}, s{T5}\nv_add_u32 v17, s{T5}, v2")
    A(f"v_add_u32 v18, s{T8}, v2")


def a2_loads(A):
    for u in range(4):
        A(f"s_add_u32 m0, s{T8}, {u*1024}\ns_mov_b32 s{T4}, {u << 18}")
        A(f"buffer_load_dwordx4 v14, {r4(S3)}, s{T4} offen lds")
    A(f"s_movk_i32 s{T4}, 0x1000")
    for it in range(8):
        A(f"buffer_load_dwordx4 {v(W+4*it,4)}, v2, {r4(S2)}, {'0' if it < 4 else f's{T4}'} offen offset:{(it & 3)*1024}")


def aux_k2(A):
    def phase(cnt, flg):
        A("s_waitcnt vmcnt(0)")
        if E_("AM", 0) and cnt == CNT_A:
            mark(A, 5)
        p = l_arrive(A)
        x = uid("ph")
        A(f"s_cmp_lg_u32 s{W_}, 0\ns_cbranch_scc1 {x}")
        l_check(A, p)
        y, pl_, nok = uid("sg"), uid("sp"), uid("nok")
        A(f"s_and_b32 s{T4}, s2, 15\ns_lshl_b32 s{T5}, s{T4}, 7\ns_add_u32 s{T5}, s{T5}, {cnt}")
        A(f"s_add_u32 s{MSK}, s{WS}, s{T5}\ns_addc_u32 s{MSK+1}, s{WS+1}, 0\ns_mov_b32 s{T5}, 1")
        A(f"s_atomic_add s{T5}, {sp(MSK)}, 0x0 glc")
        A(f"s_lshl_b32 s{T4}, s{T4}, 2\ns_add_u32 s{T4}, s{T4}, {flg}\nv_lshl_add_u32 v20, v1, 7, s{T4}\nv_mov_b32 v21, s{NONCE}")
        A(f"s_and_b32 s{T4}, s2, 63\ns_lshl_b32 s{T4}, s{T4}, 7\ns_add_u32 s{T4}, s{T4}, {flg}")
        A("s_waitcnt lgkmcnt(0)")
        A(f"s_cmp_lg_u32 s{T5}, 15\ns_cbranch_scc1 {y}")
        A(f"global_store_dword v20, v21, {sp(WS)} sc1")
        A.label(y)
        if E_("AM", 0) and cnt == CNT_A:
            mark(A, 6)
        A(f"s_add_u32 s{MSK}, s{WS}, s{T4}\ns_addc_u32 s{MSK+1}, s{WS+1}, 0\ns_mov_b32 s{T4}, s{NONCE}\ns_mov_b32 s{T5}, s{NONCE}\ns_mov_b32 s{CNT}, 0")
        A(f"s_branch {pl_}")
        A.label(nok)
        A(f"s_add_u32 s{CNT}, s{CNT}, 1\ns_cmp_ge_u32 s{CNT}, {SPIN_MAX}\ns_cbranch_scc1 {x}")
        if SLP_A:
            A(f"s_sleep {SLP_A}")
        A.label(pl_)
        A(f"s_load_dwordx16 s[4:19], {sp(MSK)}, 0x0 glc\ns_waitcnt lgkmcnt(0)")
        for q in range(8):
            A(f"s_cmp_eq_u64 s[{4+2*q}:{5+2*q}], {sp(T4)}\ns_cbranch_scc0 {nok}")
        A.label(x)
        l_sync(A)
    A(f"s_sub_u32 s{W_}, s{WAVE}, 4\nv_lshlrev_b32 v2, 4, v1")
    A(f"s_lshl_b32 s{T8}, s{W_}, 12\ns_add_u32 s{T8}, s{T8}, {L_AX}")
    a2_setup(A)
    if not A2LATE:
        a2_loads(A)
    A(f"s_load_dword s{NONCE}, {sp(WS)}, {WS_NONCE}")
    A("s_barrier")
    if A2LATE:
        a2_loads(A)
    A(f"s_setprio {LPRIO2}")
    A(f"s_and_b32 s{T4}, s2, 31\ns_lshr_b32 s{T5}, s2, 5\ns_lshl_b32 s{T5}, s{T5}, 7\ns_add_u32 s{T4}, s{T4}, s{T5}")
    A(f"s_lshl_b32 s{T5}, s{W_}, 5\ns_add_u32 s{T7}, s{T4}, s{T5}")
    A(f"s_lshl_b32 s{T4}, s2, 14\ns_lshl_b32 s{T5}, s{W_}, 12\ns_add_u32 s{T4}, s{T4}, s{T5}")
    srd(A, S1, WS, T4, WS_Z3, 0x1000)
    img_addr(A, L_AX)
    make_F(A, 24)
    make_T(A, T, 24, 0)
    make_T(A, TT, 24, 1)
    for kk in range(32):
        A(f"v_mul_f32 v{TT+kk}, s{SGN}, v{TT+kk}")
    A("s_waitcnt lgkmcnt(0)")
    mark(A, 7)
    A("s_waitcnt vmcnt(8)")
    if E_("AM", 0):
        mark(A, 1)
    l_sync(A)
    INS = 72
    for s_ in range(4):
        A(f"ds_read_b128 {v(INS+4*s_,4)}, v15 offset:{s_*4096}")
    A("s_waitcnt lgkmcnt(0)")
    if E_("AM", 0) == 2:
        mark(A, 2)
    p6 = l_arrive(A)
    A(f"s_lshl_b32 s{T4}, s{SPC}, 31\ns_or_b32 s{T4}, s{T4}, s{CJ}")
    fl, nwr = uid("fft"), uid("nwr")
    A.label(fl)
    for i in range(16):
        A(f"v_xor_b32 v{IN+i}, s{T4}, v{INS+i}")
    stage1(A, IN, D)
    twiddle(A, D, IN, TMP)
    stage2(A, IN, D)
    l_check(A, p6)
    if E_("AM", 0) == 2:
        mark(A, 5)
    A(f"s_cmp_eq_u32 s{SPC}, 2\ns_cbranch_scc1 {nwr}")
    for c in range(8):
        A(f"ds_write_b128 v16, {v(D+4*c,4)} offset:{c*1024}")
    A(f"s_cmp_eq_u32 s{SPC}, 0\ns_cbranch_scc1 {nwr}")
    A(f"s_mov_b32 s{SPC}, 2\ns_mov_b32 s{T4}, 0\ns_branch {fl}")
    A.label(nwr)
    A("s_waitcnt lgkmcnt(0)")
    l_sync(A)
    for c in range(8):
        A(f"ds_read_b128 {v(DY+4*c,4)}, v17 offset:{c*1024}")
    A("s_waitcnt vmcnt(0) lgkmcnt(0)")
    if E_("AM", 0):
        mark(A, 4)
    p8 = l_arrive(A)
    for i in range(16):
        w = W + 2*i
        r1, i1, r2, i2, Ar, Ai, Or, Oi = (TMP + 8*(i & 1) + c for c in range(8))
        A(f"v_lshlrev_b32 v{r1}, 16, v{w}\nv_and_b32 v{i1}, 0xffff0000, v{w}")
        A(f"v_lshlrev_b32 v{r2}, 16, v{w+1}\nv_and_b32 v{i2}, 0xffff0000, v{w+1}")
        Dr, Di, Gr, Gi = r1, i1, r2, i2
        Xr, Xi, Yr, Yi, rho, sg = D+i, D+16+i, DY+i, DY+16+i, TT+i, TT+16+i
        A(f"v_add_f32 v{Ar}, v{r1}, v{r2}\nv_add_f32 v{Ai}, v{i1}, v{i2}")
        A(f"v_sub_f32 v{Dr}, v{r1}, v{r2}\nv_sub_f32 v{Di}, v{i1}, v{i2}")
        A(f"v_mul_f32 v{Gr}, v{sg}, v{Xr}\nv_mul_f32 v{Gi}, v{sg}, v{Xi}")
        A(f"v_mul_f32 v{Or}, v{Ar}, v{Xr}\nv_mul_f32 v{Oi}, v{Ar}, v{Xi}")
        A(f"v_fma_f32 v{Gr}, -v{rho}, v{Yi}, v{Gr}\nv_fmac_f32 v{Gi}, v{rho}, v{Yr}")
        A(f"v_fma_f32 v{Or}, -v{Ai}, v{Xi}, v{Or}\nv_fmac_f32 v{Oi}, v{Ai}, v{Xr}")
        A(f"v_fmac_f32 v{Or}, v{Dr}, v{Gr}\nv_fmac_f32 v{Oi}, v{Dr}, v{Gi}")
        A(f"v_fma_f32 v{Or}, -v{Di}, v{Gi}, v{Or}\nv_fmac_f32 v{Oi}, v{Di}, v{Gr}")
        A(f"v_cvt_pk_bf16_f32 v{IN+i}, v{Oi}, v{Or}")
    if E_("AM", 0) == 2:
        mark(A, 6)
    stage1(A, IN, D)
    twiddle(A, D, IN, TMP)
    stage2(A, IN, D)
    A(f"s_lshr_b32 s{T4}, s{CJ}, 16")
    l_check(A, p8)
    for s_ in range(4):
        for r in range(4):
            i = 4*s_ + r
            A(f"v_cvt_pk_bf16_f32 v{IN+i}, v{D+i}, v{D+16+i}\nv_xor_b32 v{IN+i}, s{T4}, v{IN+i}")
        A(f"ds_write_b128 v15, {v(IN+4*s_,4)} offset:{s_*4096}")
    A("s_waitcnt lgkmcnt(0)")
    if E_("AM", 0) == 2:
        mark(A, 7)
    l_sync(A)
    for u in range(4):
        A(f"ds_read_b128 {v(IN+4*u,4)}, v18 offset:{u*1024}")
    for u in range(4):
        A(f"s_mov_b32 s{T4}, {u << 18}\ns_waitcnt lgkmcnt({3-u})")
        A(f"buffer_store_dwordx4 {v(IN+4*u,4)}, v14, {r4(S4)}, s{T4} offen sc1")
    mark(A, 3)
    A(f"s_lshl_b32 s{T4}, s{T7}, 14")
    srd(A, S0, OUT, T4, 0, 0x4000)
    A("v_and_b32 v8, 31, v1\nv_lshrrev_b32 v9, 5, v1\nv_lshlrev_b32 v14, 2, v8\nv_lshl_add_u32 v14, v9, 9, v14")
    A(f"s_mov_b32 s{T4}, 0x35000000")
    for k in range(32):
        A(f"v_mul_f32 v{T+k}, s{T4}, v{T+k}")
    phase(CNT_B, FLG_B)
    mark(A, 8)
    A(f"s_mov_b32 m0, s{T8}")
    for u in range(4):
        A(f"buffer_load_dwordx4 v{VLIN}, {r4(S1)}, 0 offen offset:{u*1024} sc1 lds")
    A("s_waitcnt vmcnt(0)")
    l_sync(A)
    for i in range(16):
        a, o = img(i)
        A(f"ds_read_b32 v{IN+i}, v{a} offset:{o}")
    A("s_waitcnt lgkmcnt(0)")
    stage1(A, IN, D)
    twiddle(A, D, IN, TMP)
    stage2(A, IN, D)
    A(f"s_movk_i32 s{T4}, 0x2000")
    O = 72
    for i in range(16):
        o = O + 2*i
        A(f"v_cvt_pk_bf16_f32 v{o+1}, v{D+16+i}, v{D+i}")
        A(f"v_lshlrev_b32 v{o}, 16, v{o+1}\nv_and_b32 v{o+1}, 0xffff0000, v{o+1}")
        off = (i >> 2)*1024 + (i & 3)*128
        A(f"buffer_store_dword v{o}, v14, {r4(S0)}, 0 offen offset:{off}{OST}")
        A(f"buffer_store_dword v{o+1}, v14, {r4(S0)}, s{T4} offen offset:{off}{OST}")


def cmul_sq(A, d, a, t):
    A(f"v_mul_f32 {v(t)}, {v(a+1)}, {v(a+1)}")
    A(f"v_mul_f32 {v(t+1)}, {v(a)}, {v(a+1)}")
    A(f"v_fma_f32 {v(d)}, {v(a)}, {v(a)}, -{v(t)}")
    A(f"v_add_f32 {v(d+1)}, {v(t+1)}, {v(t+1)}")


def horner(A, dr, di, L, pr, pi, er, ei, t):
    assert dr not in (pr, pi) and di not in (pr, pi)
    A(f"v_fma_f32 {v(t)}, {v(L)}, {v(pr)}, {v(er)}")
    A(f"v_fma_f32 {v(t+1)}, {v(L)}, {v(pi)}, {v(ei)}")
    A(f"v_fma_f32 {v(dr)}, -{v(L+1)}, {v(pi)}, {v(t)}")
    A(f"v_fma_f32 {v(di)}, {v(L+1)}, {v(pr)}, {v(t+1)}")


def code_prefetch(A, name, vt, wave=0):
    if not CODEPF:
        return
    pf, pc = uid("pf"), uid("pc")
    A(f"s_cmp_lg_u32 s{WAVE}, {wave}")
    A(f"s_cbranch_scc1 {pf}")
    A(f"s_lshr_b32 s{T0}, s2, 3\ns_lshl_b32 s{T0}, s{T0}, 10\nv_and_b32 v{vt}, 7, v1\nv_lshl_add_u32 v{vt}, v{vt}, 7, s{T0}")
    A(f"v_min_u32 v{vt}, L_{name}_end-{name}, v{vt}")
    A(f"s_getpc_b64 {sp(T0)}")
    A.label(pc)
    if wave:
        A(f"s_add_u32 s{T0}, s{T0}, {name}-{pc}\ns_addc_u32 s{T1}, s{T1}, 0")
    else:
        A(f"s_sub_u32 s{T0}, s{T0}, {pc}-{name}\ns_subb_u32 s{T1}, s{T1}, 0")
    A(f"global_load_dword v247, v{vt}, {sp(T0)}")
    A.label(pf)


def loader(A, name, kidx):
    RA, RB, ROT, M0B, SOF, RV = 12, 20, 24, 25, 26, 176
    A(f"s_sub_u32 s{W_}, s{WAVE}, 4")
    A("v_lshrrev_b32 v2, 5, v1\nv_bfe_u32 v3, v1, 3, 2")
    A("v_and_b32 v4, 1, v3\nv_lshrrev_b32 v5, 1, v3")
    A("v_lshlrev_b32 v6, 5, v2\nv_lshl_add_u32 v6, v4, 4, v6\nv_add_u32 v6, v6, v5")
    A(f"s_lshr_b32 s{T0}, s{W_}, 1\ns_lshl_b32 s{T1}, s{T0}, 6\ns_and_b32 s{T2}, s{W_}, 1\ns_lshl_b32 s{T2}, s{T2}, 3\ns_add_u32 s{T1}, s{T1}, s{T2}")
    A(f"v_add_u32 v6, s{T1}, v6\nv_lshlrev_b32 v6, 11, v6")
    A(f"s_lshl_b32 s{T1}, s{T0}, 5")
    A(f"v_lshl_add_u32 v7, v2, 3, v3\nv_add_u32 v7, s{T1}, v7\nv_lshlrev_b32 v7, 11, v7")
    A("v_and_b32 v4, 7, v1\nv_lshrrev_b32 v5, 4, v1\nv_xor_b32 v4, v4, v5\nv_lshlrev_b32 v4, 4, v4")
    A("v_xor_b32 v5, 64, v4")
    for u in range(4):
        ch = 4 if u % 2 == 0 else 5
        A(f"v_add_u32 v{RV+u}, v6, v{ch}")
        if u:
            A(f"v_add_u32 v{RV+u}, {u*4096 - u*1024}, v{RV+u}")
        A(f"v_add_u32 v{RV+4+u}, v7, v{ch}")
        if u:
            A(f"v_add_u32 v{RV+4+u}, {(16*(u>>1) + 4*(u&1))*2048 - u*1024}, v{RV+4+u}")
    A(f"s_and_b32 s{T4}, s2, 7\ns_mul_i32 s{T4}, s{T4}, {XO*128}")
    A(f"s_add_u32 s{T0}, s{TI}, s{TJ}\ns_and_b32 s{T0}, s{T0}, {NP-1}\ns_mul_i32 s{T0}, s{T0}, {2048//NP}\ns_add_u32 s{T4}, s{T4}, s{T0}")
    if RI or RJ:
        A(f"s_mul_i32 s{T0}, s{TI}, {RI*128}\ns_add_u32 s{T4}, s{T4}, s{T0}\ns_mul_i32 s{T0}, s{TJ}, {RJ*128}\ns_add_u32 s{T4}, s{T4}, s{T0}")
    A(f"s_lshl_b32 s{T0}, s{TI}, 18\ns_lshl_b32 s{T1}, s{TJ}, 17")
    A("s_waitcnt lgkmcnt(0)")
    A(f"s_lshl_b32 s{M0B}, s{W_}, 12\ns_mov_b32 s{ROT}, s{T4}")
    srd(A, RA, BX, T0, 0, 0x40000)
    A(f"s_bitcmp1_b32 s{W_}, 0\ns_cselect_b32 s{T2}, s{BIM}, s{BRE}\ns_cselect_b32 s{T3}, s{BIM+1}, s{BRE+1}")
    srd(A, RB, T2, T1, 0, 0x20000)
    mark(A, 5)
    vm = VmCounter(A)

    def issue(k):
        slot = k % NS
        A(f"s_add_u32 m0, s{M0B}, {slot*32768}")
        A(f"s_add_u32 s{SOF}, s{ROT}, {k*128}\ns_and_b32 s{SOF}, s{SOF}, 0x7ff")
        for u in range(4):
            vm.op(f"buffer_load_dwordx4 v{RV+u}, {r4(RA)}, s{SOF} offen offset:{u*1024}{NTX if k < NTK else ''} lds", ("st", k))
        A(f"s_add_u32 m0, s{M0B}, {slot*32768 + 16384}")
        for u in range(4):
            vm.op(f"buffer_load_dwordx4 v{RV+4+u}, {r4(RB)}, s{SOF} offen offset:{u*1024}{NTX if k < NTK else ''} lds", ("st", k))
    issue(0)
    issued = 1
    if not NOAUX:
        aux_setup(A)
        aux_pre(A)
    for k in range(-1, 16):
        if k >= 0:
            vm.wait_for(("st", k))
            A("s_barrier")
        if k in (0, 12):
            mark(A, 1 + k//4)
        while issued < min(16, k + LA + 1):
            issue(issued)
            issued += 1
        if not NOAUX and k >= 0:
            aux_hook(A, vm, k)
    assert issued == 16
    if NOAUX:
        A("s_barrier\ns_barrier")
    else:
        A("s_barrier\ns_barrier")
        A(f"s_setprio {LPRIO}")
        a1_task(A)
    stamp_end(A, kidx, WAVE)
    A("s_endpgm")


def gemm_waves(A, name, kidx):
    ACC = lambda T_, c: 64 + (T_*2 + c)*16
    FR = lambda X, f: 32 + X*16 + f*4
    AD = lambda st, op, ks: 128 + st*8 + op*4 + ks
    LAM, KC, L16, L128, L256 = 24, 26, 28, 30, 2
    WT_, WP = T8, T6
    A(f"s_lshr_b32 s{WT_}, s{WAVE}, 1\ns_and_b32 s{WP}, s{WAVE}, 1")
    A("v_and_b32 v6, 31, v1\nv_lshrrev_b32 v5, 5, v1")
    A("v_and_b32 v4, 0x13, v6")
    A("v_bfe_u32 v7, v6, 2, 1\nv_lshl_or_b32 v4, v7, 3, v4")
    A("v_bfe_u32 v7, v6, 3, 1\nv_lshl_or_b32 v4, v7, 2, v4")
    A(f"s_lshl_b32 s{T0}, s{TJ}, 6\ns_lshl_b32 s{T1}, s{WP}, 5\ns_add_u32 s{T0}, s{T0}, s{T1}")
    A(f"v_add_u32 v4, s{T0}, v4")
    A("v_lshlrev_b32 v7, 1, v4\nv_lshlrev_b32 v11, 4, v1")
    A("s_waitcnt lgkmcnt(0)")
    A(f"global_load_ushort v8, v7, {sp(LRE)}\nglobal_load_ushort v9, v7, {sp(LIM)}\nglobal_load_ushort v10, v7, {sp(LDT)}")
    nn = uid("nn")
    A(f"s_lshl_b32 s{T0}, s2, 3\ns_add_u32 s{T0}, s{T0}, s{WAVE}\ns_cmp_lg_u32 s{T0}, 1")
    A(f"s_cbranch_scc1 {nn}")
    A(f"s_load_dword s{T0}, {sp(WS)}, {WS_NONCE}")
    A(f"v_mov_b32 v16, 0\nv_and_b32 v17, 31, v1\nv_lshlrev_b32 v17, 7, v17\nv_add_u32 v17, {WS_CNT}, v17")
    A(f"global_store_dword v17, v16, {sp(WS)} sc1")
    A("s_waitcnt vmcnt(0) lgkmcnt(0)")
    A(f"s_add_u32 s{T0}, s{T0}, 1\ns_cmp_eq_u32 s{T0}, 0\ns_cselect_b32 s{T0}, 1, s{T0}")
    A(f"v_mov_b32 v17, s{T0}")
    A(f"s_mov_b64 exec, 1\nglobal_store_dword v16, v17, {sp(DBG)} sc1")
    A(f"global_store_dword v16, v17, {sp(WS)} offset:{WS_NONCE}\ns_mov_b64 exec, -1")
    A.label(nn)
    code_prefetch(A, name, 12)
    A("v_bfe_u32 v7, v6, 1, 3\nv_xor_b32 v7, v7, v5\nv_lshlrev_b32 v7, 4, v7\nv_lshl_add_u32 v7, v6, 7, v7")
    A(f"s_lshl_b32 s{T0}, s{WT_}, 13\ns_lshl_b32 s{T1}, s{WP}, 13\ns_add_u32 s{T1}, s{T1}, 16384")
    for ks in range(4):
        A(f"v_xor_b32 v12, {ks << 5}, v7")
        A(f"v_add_u32 v{AD(0,0,ks)}, s{T0}, v12\nv_add_u32 v{AD(0,1,ks)}, s{T1}, v12")
        A(f"v_add_u32 v{AD(1,0,ks)}, 0x10000, v{AD(0,0,ks)}\nv_add_u32 v{AD(1,1,ks)}, 0x10000, v{AD(0,1,ks)}")
    for r in range(64, 128, 2):
        A(f"v_mov_b64 v[{r}:{r+1}], 0")
    A(f"v_mov_b32 v34, {L_SYNC}\nv_mov_b64 v[36:37], 0\nv_mov_b64 v[38:39], 0")
    A("s_mov_b64 exec, 1\nds_write_b128 v34, v[36:39]\nds_write_b128 v34, v[36:39] offset:16\ns_mov_b64 exec, -1")
    A("v_lshlrev_b32 v12, 4, v5\nv_sub_u32 v12, v6, v12\nv_mov_b32 v13, 0x3f80\nv_mov_b32 v14, 1.0")
    for c in range(8):
        A(f"v_cmp_eq_u32 vcc, {c}, v12\nv_cmp_eq_u32 {sp(T0)}, {c+8}, v12")
        A(f"v_cndmask_b32 v{248+c}, 0, v13, vcc\nv_cndmask_b32 v{248+c}, v{248+c}, v14, {sp(T0)}")
    srd(A, S0, WS, None, WS_EG, 0x40000)
    srd(A, S1, WS, None, WS_HT, 0x800000)
    A("s_waitcnt vmcnt(0)")
    A("v_lshlrev_b32 v8, 16, v8\nv_lshlrev_b32 v9, 16, v9\nv_lshlrev_b32 v10, 16, v10")
    A("v_mul_f32 v10, 0x3fb8aa3b, v10\nv_exp_f32 v10, v10")
    A("v_cvt_pk_bf16_f32 v10, v10, v10\nv_lshlrev_b32 v10, 16, v10")
    A("v_mul_f32 v12, v10, v8\nv_mul_f32 v13, v10, v9")
    A("v_mul_f32 v12, 0x3fb8aa3b, v12\nv_exp_f32 v12, v12")
    A("v_mul_f32 v13, 0.15915494, v13\nv_rndne_f32 v14, v13\nv_sub_f32 v13, v13, v14")
    A("v_cos_f32 v14, v13\nv_sin_f32 v15, v13")
    A(f"v_mul_f32 v{LAM}, v12, v14\nv_mul_f32 v{LAM+1}, v12, v15")
    A(f"v_add_f32 v12, -1.0, v{LAM}")
    A("v_mul_f32 v13, v8, v8\nv_fma_f32 v13, v9, v9, v13\nv_rcp_f32 v13, v13")
    A("v_add_f32 v13, v13, v13")
    A(f"v_mul_f32 v14, v12, v8\nv_fma_f32 v14, v{LAM+1}, v9, v14\nv_mul_f32 v{KC}, v14, v13")
    A(f"v_mul_f32 v14, v{LAM+1}, v8\nv_fma_f32 v14, -v12, v9, v14\nv_mul_f32 v{KC+1}, v14, v13")
    L32 = 20
    cmul_sq(A, L16, LAM, 12)
    for _ in range(3):
        cmul_sq(A, L16, L16, 12)
    cmul_sq(A, L32, L16, 12)
    cmul_sq(A, L128, L32, 12)
    cmul_sq(A, L128, L128, 12)
    cmul_sq(A, L256, L128, 12)

    def reads(k, ks, which):
        slot = k % NS
        st, off = slot >> 1, (slot & 1)*32768
        X = ks & 1
        for f in which:
            op = 0 if f in (0, 3) else 1
            hi = 4096 if f in (2, 3) else 0
            A(f"ds_read_b128 {v(FR(X, f), 4)}, v{AD(st, op, ks)} offset:{off + hi}")

    def mfma(T_, c, X):
        a = FR(X, 0 if T_ == 0 else 3)
        b = FR(X, 1 if c == 0 else 2)
        A(f"{MF} {v(ACC(T_,c),16)}, {v(a,4)}, {v(b,4)}, {v(ACC(T_,c),16)}")
    A("s_waitcnt lgkmcnt(0)\ns_barrier")
    reads(0, 0, [0, 1, 2, 3])
    for k in range(16):
        for ks in range(4):
            X = ks & 1
            nk, nks = (k, ks+1) if ks < 3 else (k+1, 0)
            have = nk < 16
            if ks == 3:
                A("s_waitcnt lgkmcnt(0)\ns_barrier")
            else:
                A("s_waitcnt lgkmcnt(2)")
            if k == 12 and ks == 0:
                A("v_mov_b32 v12, 0")
                A(f"global_load_dword v13, v12, {sp(DBG)} sc1")
            mfma(0, 0, X)
            if have:
                reads(nk, nks, [0, 1])
            if ks != 3:
                A("s_waitcnt lgkmcnt(3)")
            mfma(0, 1, X)
            if have:
                reads(nk, nks, [2, 3])
            if ks != 3:
                A("s_waitcnt lgkmcnt(4)")
            mfma(1, 0, X)
            mfma(1, 1, X)
    mark(A, 1)
    U = lambda c, idx: ACC(idx >> 3, c) + 2*(idx & 7)
    bc_a = "op_sel_hi:[0,1,1]"
    bc_b = "op_sel:[1,0,0]"
    TT = 40

    def pk_step(L, dr, di, pr, pi, ur, ui):
        A(f"v_pk_fma_f32 {v(TT,2)}, {v(L,2)}, {v(pr,2)}, {v(ur,2)} {bc_a}")
        A(f"v_pk_fma_f32 {v(TT+2,2)}, {v(L,2)}, {v(pi,2)}, {v(ui,2)} {bc_a}")
        A(f"v_pk_fma_f32 {v(dr,2)}, {v(L,2)}, {v(pi,2)}, {v(TT,2)} {bc_b} {N0}")
        A(f"v_pk_fma_f32 {v(di,2)}, {v(L,2)}, {v(pr,2)}, {v(TT+2,2)} {bc_b}")
    A(f"s_lshl_b32 s{T0}, s{WP}, 10\ns_add_u32 s{T0}, s{T0}, {L_XCH}\ns_lshl_b32 s{T1}, s{WT_}, 4")
    A(f"v_lshl_add_u32 v14, v6, 5, s{T0}")
    A(f"v_lshl_add_u32 v15, v5, 3, v14\nv_add_u32 v15, s{T1}, v15")
    for idx in range(1, 16):
        pk_step(LAM, U(0, idx), U(1, idx), U(0, idx-1), U(1, idx-1), U(0, idx), U(1, idx))
    EA = (U(0, 15), U(1, 15))
    horner(A, 32, 33, L16, EA[0], EA[1], EA[0]+1, EA[1]+1, TT)
    A("ds_write_b64 v15, v[32:33]")
    A(f"s_sub_u32 s{T0}, s{TI}, 1\ns_lshl_b32 s{T0}, s{T0}, 14")
    A("v_lshlrev_b32 v16, 4, v4\nv_lshlrev_b32 v17, 14, v5\nv_sub_u32 v17, v16, v17")
    A(f"v_add_u32 v128, s{T0}, v17")
    A(f"s_lshl_b32 s{T0}, s{TI}, 14\nv_add_u32 v16, s{T0}, v16")
    A("v_lshlrev_b32 v17, 30, v5\nv_or_b32 v16, v16, v17")
    A("s_waitcnt lgkmcnt(0)\ns_barrier")
    SG = 144
    A(f"ds_read_b128 {v(SG,4)}, v14\nds_read_b128 {v(SG+4,4)}, v14 offset:16")
    nl, ng = uid("n"), uid("ng")
    A.label(nl)
    A("s_waitcnt vmcnt(0)")
    A(f"v_readfirstlane_b32 s{NONCE}, v13")
    A(f"s_cmp_lg_u32 s{NONCE}, 0")
    A(f"s_cbranch_scc1 {ng}")
    A(f"global_load_dword v13, v12, {sp(DBG)} sc1")
    A(f"s_branch {nl}")
    A.label(ng)
    P = 44
    A(f"v_mov_b32 v{P+2}, s{NONCE}\nv_mov_b32 v{P+3}, s{NONCE}")
    A("s_waitcnt lgkmcnt(0)")
    horner(A, 48, 49, L32, SG, SG+1, SG+2, SG+3, TT)
    horner(A, 50, 51, L32, 48, 49, SG+4, SG+5, TT)
    horner(A, P, P+1, L32, 50, 51, SG+6, SG+7, TT)
    np_ = uid("np")
    A(f"s_cmp_lg_u32 s{WT_}, 0")
    A(f"s_cbranch_scc1 {np_}")
    A(f"buffer_store_dwordx4 {v(P,4)}, v16, {r4(S0)}, 0 offen sc1")
    A.label(np_)
    mark(A, 2)
    LB = 160
    A("v_mov_b32 v17, 0x40000000")
    for u in range(1, 8):
        A(f"v_subrev_u32 v{128+u}, {u*32768}, v128")
    for u in range(8):
        A(f"v_cmp_le_i32 vcc, 0, v{128+u}")
        A(f"v_cndmask_b32 v{136+u}, 0, v{P+2}, vcc")
        A(f"v_cndmask_b32 v{128+u}, v17, v{128+u}, vcc")
    def lbloads():
        for u in range(8):
            A(f"buffer_load_dwordx4 {v(LB+4*u,4)}, v{128+u}, {r4(S0)}, 0 offen sc1")
    if LBAT == 0:
        lbloads()
    O = 52
    PW = lambda idx: 208 + 2*idx
    A(f"v_mul_f32 v{O}, v{KC+1}, v{LAM+1}\nv_mul_f32 v{O+1}, v{KC+1}, v{LAM}")
    A(f"v_fma_f32 v{PW(0)}, v{KC}, v{LAM}, -v{O}\nv_fma_f32 v{PW(0)+1}, v{KC}, v{LAM+1}, v{O+1}")
    for idx in range(16):
        d = (U(0, idx), U(1, idx))
        A(f"v_pk_mul_f32 {v(O,2)}, {v(KC,2)}, {v(d[0],2)} op_sel_hi:[0,1]")
        A(f"v_pk_mul_f32 {v(O+2,2)}, {v(KC,2)}, {v(d[1],2)} op_sel_hi:[0,1] neg_lo:[1,0] neg_hi:[1,0]")
        if idx == 15:
            A(f"v_mov_b32 v56, v{d[0]}\nv_mov_b32 v57, v{d[1]}")
        if idx < 15:
            A(f"v_mul_f32 v58, v{PW(idx)+1}, v{LAM+1}\nv_mul_f32 v59, v{PW(idx)+1}, v{LAM}")
        A(f"v_pk_fma_f32 {v(O+2,2)}, {v(KC,2)}, {v(d[0],2)}, {v(O+2,2)} {bc_b} {N0}")
        A(f"v_pk_fma_f32 {v(d[0],2)}, {v(KC,2)}, {v(d[1],2)}, {v(O,2)} {bc_b} {N0}")
        A(f"v_mov_b64 {v(d[1],2)}, {v(O+2,2)}")
        if idx < 15:
            A(f"v_fma_f32 v{PW(idx+1)}, v{PW(idx)}, v{LAM}, -v58\nv_fma_f32 v{PW(idx+1)+1}, v{PW(idx)}, v{LAM+1}, v59")
        if idx + 1 == LBAT:
            lbloads()
    A(f"s_mov_b32 s{T9}, 0")
    pl, pd = uid("poll"), uid("polled")
    A.label(pl)
    A(f"s_mov_b64 {sp(T0)}, 0")
    for u in range(8):
        A(f"s_waitcnt vmcnt({7-u})")
        A(f"v_cmp_ne_u32 vcc, v{LB+4*u+2}, v{136+u}")
        A(f"s_or_b64 {sp(T0)}, {sp(T0)}, vcc")
        A(f"v_cmp_ne_u32 vcc, v{LB+4*u+3}, v{136+u}")
        A(f"s_or_b64 {sp(T0)}, {sp(T0)}, vcc")
    A(f"s_add_u32 s{T9}, s{T9}, 1")
    A(f"s_cmp_eq_u64 {sp(T0)}, 0")
    A(f"s_cbranch_scc1 {pd}")
    A(f"s_cmp_ge_u32 s{T9}, {SPIN_MAX}")
    A(f"s_cbranch_scc1 {pd}")
    lbloads()
    A(f"s_branch {pl}")
    A.label(pd)
    mark(A, 3)
    A(f"v_mov_b32 v12, {L_SYNC}\ns_lshl_b32 s{T0}, s{WAVE}, 2\nv_add_u32 v13, s{T0}, v12\nv_mov_b32 v14, 1")
    A("s_mov_b64 exec, 1\nds_write_b32 v13, v14\ns_mov_b64 exec, -1")
    H0, H1 = LB + 28, 48
    cur = (H0, H0+1)
    for u in range(6, -1, -1):
        d = (48, 49) if cur[0] == H0 else (H0, H0+1)
        horner(A, d[0], d[1], L256, cur[0], cur[1], LB+4*u, LB+4*u+1, TT)
        cur = d
    assert cur == (48, 49)
    A(f"v_mov_b32 v50, v48\nv_mov_b32 v51, v49")
    A(f"v_permlane32_swap_b32 v48, v50\nv_permlane32_swap_b32 v49, v51")
    PS = 192
    horner(A, PS, PS+1, L128, 50, 51, 48, 49, TT)
    for u in range(1, 4):
        horner(A, PS+2*u, PS+2*u+1, L32, PS+2*u-2, PS+2*u-1, SG+2*u-2, SG+2*u-1, TT)
    w0 = uid("wt0")
    A(f"s_cmp_eq_u32 s{WT_}, 0")
    A(f"s_cbranch_scc1 {w0}")
    A(f"v_mov_b64 {v(PS,2)}, {v(PS+4,2)}\nv_mov_b64 {v(PS+2,2)}, {v(PS+6,2)}")
    A.label(w0)
    A("v_cmp_eq_u32 vcc, 1, v5")
    G = 48
    A(f"v_cndmask_b32 v{G}, v{PS}, v{PS+2}, vcc")
    A(f"v_cndmask_b32 v{G+2}, v{PS+1}, v{PS+3}, vcc")
    horner(A, G+1, G+3, L16, G, G+2, 56, 57, TT)
    PK = lambda c, idx: 128 + 16*c + idx
    D = lambda c, X: 160 + 16*c if X == 0 else (192 if c == 0 else 32)
    A(f"s_lshl_b32 s{T0}, s{TI}, 1\ns_add_u32 s{T9}, s{T0}, s{WT_}\ns_lshl_b32 s{T0}, s{T9}, 18")
    A(f"s_lshl_b32 s{T1}, s{TJ}, 13\ns_add_u32 s{T0}, s{T0}, s{T1}\ns_lshl_b32 s{T1}, s{WP}, 11\ns_add_u32 s{T0}, s{T0}, s{T1}")

    def fix(idx):
        d = (U(0, idx), U(1, idx))
        pw = v(PW(idx), 2)
        A(f"v_pk_fma_f32 {v(d[0],2)}, {pw}, {v(G,2)}, {v(d[0],2)} {bc_a}")
        A(f"v_pk_fma_f32 {v(d[1],2)}, {pw}, {v(G+2,2)}, {v(d[1],2)} {bc_a} {N0}")
        A(f"v_pk_fma_f32 {v(d[0],2)}, {pw}, {v(G+2,2)}, {v(d[0],2)} {bc_b} {N0}")
        A(f"v_pk_fma_f32 {v(d[1],2)}, {pw}, {v(G,2)}, {v(d[1],2)} {bc_b} {N0}")
        A(f"v_cvt_pk_bf16_f32 v{PK(0,idx)}, v{d[0]}, v{d[0]+1}")
        A(f"v_cvt_pk_bf16_f32 v{PK(1,idx)}, v{d[1]}, v{d[1]+1}")

    def tr(X):
        for c in range(2):
            A(f"{MF} {v(D(c,X),16)}, {v(PK(c,8*X),4)}, v[248:251], 0")
            A(f"{MF} {v(D(c,X),16)}, {v(PK(c,8*X+4),4)}, v[252:255], {v(D(c,X),16)}")

    def st(X, c):
        A(f"s_add_u32 s{T1}, s{T0}, {X*131072 + c*4096}")
        q = 64 + (X*2 + c)*8
        for jj in range(8):
            A(f"v_cvt_pk_bf16_f32 v{q+jj}, v{D(c,X)+2*jj}, v{D(c,X)+2*jj+1}")
        A(f"buffer_store_dwordx4 {v(q,4)}, v11, {r4(S1)}, s{T1} offen{HST}")
        A(f"buffer_store_dwordx4 {v(q+4,4)}, v11, {r4(S1)}, s{T1} offen offset:1024{HST}")
    for idx in range(8):
        fix(idx)
    tr(0)
    for idx in range(8, 12):
        fix(idx)
    st(0, 0)
    st(0, 1)
    for idx in range(12, 16):
        fix(idx)
    tr(1)
    st(1, 0)
    st(1, 1)
    mark(A, 4)
    if CTOUCH:
        ct = uid("ct")
        A(f"s_cmp_lt_u32 s{WAVE}, 2\ns_cbranch_scc1 {ct}")
        if SPLITK:
            A(f"s_and_b32 s{T0}, s2, 1\ns_lshl_b32 s{T0}, s{T0}, 10\ns_bfe_u32 s{T1}, s2, 0x20001\ns_lshl_b32 s{T1}, s{T1}, 19\ns_add_u32 s{T0}, s{T0}, s{T1}")
            A(f"s_lshr_b32 s{T1}, s2, 3\ns_lshl_b32 s{T1}, s{T1}, 14\ns_add_u32 s{T0}, s{T0}, s{T1}")
            A(f"v_lshrrev_b32 v8, 3, v1\nv_lshlrev_b32 v8, 11, v8\nv_and_b32 v9, 7, v1\nv_lshl_add_u32 v8, v9, 7, v8\nv_add_u32 v8, s{T0}, v8")
        else:
            A(f"s_and_b32 s{T0}, s2, 1\ns_lshl_b32 s{T0}, s{T0}, 20\ns_bfe_u32 s{T1}, s2, 0x20001\ns_lshl_b32 s{T1}, s{T1}, 18\ns_add_u32 s{T0}, s{T0}, s{T1}")
            A(f"s_lshr_b32 s{T1}, s2, 3\ns_lshl_b32 s{T1}, s{T1}, 13\ns_add_u32 s{T0}, s{T0}, s{T1}\nv_lshl_add_u32 v8, v1, 7, s{T0}")
        A(f"s_cmp_eq_u32 s{WP}, 0\ns_cselect_b32 s{T0}, s{CRE}, s{CIM}\ns_cselect_b32 s{T1}, s{CRE+1}, s{CIM+1}")
        A(f"global_load_dword v246, v8, {sp(T0)}")
        A.label(ct)
    code_prefetch(A, "k2_kernel", 12, 1)
    stamp_end(A, kidx, WAVE)


def gemm2_waves(A, name, kidx):
    NTL = 4 if SPLITK else 2
    NK = 64 if SPLITK else 128
    SB = NTL*4096
    R = 114688 // SB
    CDd = CD if SPLITK else CD2
    WT_, WP = T8, T6
    M0B, RH, RCc, SH, SC = T7, T5, T4, T3, T2
    ACC2 = lambda nt: 32 + 16*nt
    CF = lambda X, nt: 96 + 16*X + 4*nt
    XR, CV = 128, 144
    HR = lambda s_: 148 + 4*(s_ % HD)
    vm = VmCounter(A)
    A(f"s_lshr_b32 s{WT_}, s{WAVE}, 1\ns_and_b32 s{WP}, s{WAVE}, 1\ns_lshr_b32 s{PG}, s{TJ}, 3")
    A(f"s_lshl_b32 s{T0}, s{TI}, 1\ns_add_u32 s{T9}, s{T0}, s{WT_}")
    A("v_lshlrev_b32 v2, 4, v1")
    if SPLITK:
        A(f"s_xor_b32 s{T0}, s{WT_}, s{PG}\ns_xor_b32 s{T0}, s{T0}, 1\ns_lshl_b32 s{T0}, s{T0}, 6\ns_add_u32 s{T0}, s{T0}, s{WP}")
    else:
        A(f"s_lshl_b32 s{T0}, s{WP}, 5\ns_add_u32 s{T0}, s{T0}, s{WT_}")
    A(f"v_lshrrev_b32 v8, 3, v1\nv_lshl_add_u32 v8, v8, 1, s{T0}\nv_lshlrev_b32 v8, 11, v8")
    A("v_and_b32 v9, 7, v1\nv_lshrrev_b32 v10, 4, v1\nv_xor_b32 v9, v9, v10\nv_lshlrev_b32 v9, 4, v9\nv_xor_b32 v10, 64, v9")
    for u in range(NTL):
        A(f"v_add_u32 v{CV+u}, v8, v{9 + (u & 1)}")
        if u:
            A(f"v_add_u32 v{CV+u}, {u*(16*2048 - 1024)}, v{CV+u}")
    A(f"s_lshl_b32 s{M0B}, s{WAVE}, {12 if SPLITK else 11}")
    KB = 1024 if SPLITK else 2048
    if SPLITK:
        A(f"s_lshr_b32 s{RCc}, s{TI}, 2\ns_mul_i32 s{RCc}, s{RCc}, {XO2*128}")
        A(f"s_and_b32 s{T0}, s{TI}, {NP2-1}\ns_mul_i32 s{T0}, s{T0}, {KB//NP2}\ns_add_u32 s{RCc}, s{RCc}, s{T0}")
    else:
        A(f"s_and_b32 s{RCc}, s2, 7\ns_mul_i32 s{RCc}, s{RCc}, {XO2*128}")
        A(f"s_add_u32 s{T0}, s{TI}, s{TJ}\ns_and_b32 s{T0}, s{T0}, {NP2-1}\ns_mul_i32 s{T0}, s{T0}, {KB//NP2}\ns_add_u32 s{RCc}, s{RCc}, s{T0}")
    if RJ2:
        A(f"s_mul_i32 s{T0}, s{TJ}, {RJ2*128}\ns_add_u32 s{RCc}, s{RCc}, s{T0}")
    A(f"s_lshl_b32 s{RH}, s{RCc}, 6")
    A(f"v_mov_b32 v12, {L_SYNC}\ns_lshl_b32 s{T0}, s{WAVE}, 2\nv_add_u32 v13, s{T0}, v12\nv_mov_b64 v[8:9], 0\nv_mov_b64 v[10:11], 0")
    A("s_mov_b64 exec, 1\nds_write_b128 v12, v[8:11]\nds_write_b128 v12, v[8:11] offset:16\ns_mov_b64 exec, -1")
    A("s_waitcnt lgkmcnt(0)")
    if SPLITK:
        A(f"s_load_dword s{NONCE}, {sp(WS)}, {WS_NONCE}")
        A(f"s_and_b32 s{T0}, s{TJ}, 7\ns_lshl_b32 s{T0}, s{T0}, 18\ns_lshl_b32 s{T1}, s{PG}, 10\ns_add_u32 s{T0}, s{T0}, s{T1}")
        srd(A, S2, CRE, T0, 0, 0x40000, T1)
        srd(A, S3, CIM, T0, 0, 0x40000, T1)
    else:
        A(f"s_lshl_b32 s{T0}, s{TJ}, 17")
        srd(A, S2, CRE, T0, 0, 0x20000)
        srd(A, S3, CIM, T0, 0, 0x20000)
    A(f"s_lshl_b32 s{T0}, s{TI}, 2\ns_add_u32 s{T0}, s{T0}, s{WAVE}\ns_lshl_b32 s{T0}, s{T0}, 17")
    if SPLITK:
        A(f"s_lshl_b32 s{T1}, s{PG}, 16\ns_add_u32 s{T0}, s{T0}, s{T1}")
    srd(A, S0, WS, T0, WS_HT, NK*1024)

    def cdma(g, us):
        for u in us:
            if u == 0:
                A(f"s_add_u32 m0, s{M0B}, {(g % R)*SB}")
                if g % 2 == 0:
                    A(f"s_add_u32 s{SC}, s{RCc}, {(g >> 1)*128}\ns_and_b32 s{SC}, s{SC}, {KB-1}")
            vm.op(f"buffer_load_dwordx4 v{CV+u}, {r4(S2 if g % 2 == 0 else S3)}, s{SC} offen offset:{u*1024}{NTC} lds", ("c", g))

    def hload(s_):
        if s_ % 4 == 0:
            A(f"s_add_u32 s{SH}, s{RH}, {(s_ >> 2)*4096}\ns_and_b32 s{SH}, s{SH}, {NK*1024-1}")
        vm.op(f"buffer_load_dwordx4 {v(HR(s_),4)}, v2, {r4(S0)}, s{SH} offen offset:{(s_ & 3)*1024}", ("h", s_))
    mark(A, 5)
    cdma(0, range(NTL))
    for s_ in range(4):
        hload(s_)
    cdma(1, range(NTL))
    A("s_barrier")
    A("v_and_b32 v6, 31, v1\nv_lshrrev_b32 v5, 5, v1")
    A("v_bfe_u32 v7, v6, 1, 3\nv_xor_b32 v7, v7, v5\nv_lshlrev_b32 v7, 4, v7\nv_lshl_add_u32 v7, v6, 7, v7")
    for ks in range(4):
        A(f"v_xor_b32 v{20+ks}, {ks << 5}, v7")
        A(f"v_add_u32 v{24+ks}, 0x10000, v{20+ks}")
    A(f"s_lshl_b32 s{T0}, s{WP}, 3")
    A(f"v_lshl_add_u32 v17, v5, 2, s{T0}")
    A("v_lshlrev_b32 v28, 11, v17\nv_lshl_add_u32 v28, v6, 2, v28")
    A("v_lshlrev_b32 v29, 13, v17\nv_lshl_add_u32 v29, v6, 3, v29")
    A("v_lshlrev_b32 v30, 2, v6")
    if SPLITK:
        A(f"s_and_b32 s{T1}, s{TJ}, 7\ns_lshl_b32 s{T1}, s{T1}, 1\ns_add_u32 s{T1}, s{T1}, s{PG}\ns_lshl_b32 s{T1}, s{T1}, 7")
    else:
        A(f"s_lshl_b32 s{T1}, s{TJ}, 7")
    A(f"s_lshl_b32 s{T0}, s{T9}, 17\ns_add_u32 s{T0}, s{T0}, s{T1}")
    srd(A, S4, BX, T0, 0, 0x20000, T1)
    A(f"s_add_u32 s{DSK}, s{DSK}, s{T1}\ns_addc_u32 s{DSK+1}, s{DSK+1}, 0")
    A(f"s_lshl_b32 s{T1}, s{T1}, 1\ns_add_u32 s{T1}, s{T1}, 4096\ns_lshl_b32 s{T0}, s{T9}, 19\ns_add_u32 s{T0}, s{T0}, s{T1}")
    srd(A, S1, OUT, T0, 0, 0x80000, T1)
    if E_("K2PF", 0):
        code_prefetch(A, name, 14)

    def arrive(b):
        A(f"v_mov_b32 v14, {b+1}")
        A("s_mov_b64 exec, 1\nds_write_b32 v13, v14\ns_mov_b64 exec, -1")

    def check(b):
        l, d = uid("ck"), uid("ckd")
        A.label(l)
        A("v_min3_u32 v15, v8, v9, v10\nv_min_u32 v15, v15, v11")
        A(f"v_readfirstlane_b32 s{T0}, v15")
        A(f"s_cmp_ge_u32 s{T0}, {b+1}")
        A(f"s_cbranch_scc1 {d}")
        A(f"ds_read_b128 v[8:11], v12\ns_waitcnt lgkmcnt(0)")
        A(f"s_branch {l}")
        A.label(d)

    def rd2(s_, nts):
        g, ks = s_ >> 2, s_ & 3
        off = (g % R)*SB
        base = 20 if off < 65536 else 24
        for nt in nts:
            A(f"ds_read_b128 {v(CF(s_ & 1, nt),4)}, v{base+ks} offset:{(off & 65535) + nt*4096}")
    cg = 2
    for s_ in range(4, HD):
        hload(s_)
        if s_ % 4 == 3 and cg < CDd:
            cdma(cg, range(NTL))
            cg += 1
    while cg < CDd:
        cdma(cg, range(NTL))
        cg += 1
    vm.wait_for(("c", 1))
    arrive(0)
    A("ds_read_b128 v[8:11], v12\ns_waitcnt lgkmcnt(0)")
    check(0)
    mark(A, 6)
    rd2(0, range(NTL))

    def mf(s_, nt):
        c = "0" if s_ == 0 else v(ACC2(nt), 16)
        A(f"{MF} {v(ACC2(nt),16)}, {v(HR(s_),4)}, {v(CF(s_ & 1, nt),4)}, {c}")
    for s_ in range(NK):
        g, ks = s_ >> 2, s_ & 3
        nxt = s_ + 1
        more = nxt < NK
        wv = vm.wait_for(("h", s_), emit=False)
        arr = (s_ + 4) % 8 == 0 and s_ + 4 < NK
        if arr:
            wv = min(wv, vm.wait_for(("c", ((s_ + 4) >> 2) + 1), emit=False))
        newgrp = more and nxt % 8 == 0
        full = newgrp or not more
        extra = 1 if arr else 0
        if full:
            A(f"s_waitcnt vmcnt({wv}) lgkmcnt(0)")
            if newgrp:
                check(nxt >> 3)
                if nxt == NK//2:
                    mark(A, 7)
        else:
            A(f"s_waitcnt vmcnt({wv}) lgkmcnt({NTL-1})")
        if arr:
            arrive((s_ + 4) >> 3)
        if SPLITK:
            mf(s_, 0)
            if more:
                rd2(nxt, [0, 1])
            if not full:
                A(f"s_waitcnt lgkmcnt({4 + extra})")
            mf(s_, 1)
            if more:
                rd2(nxt, [2, 3])
            if not full:
                A(f"s_waitcnt lgkmcnt({5 + extra})")
            mf(s_, 2)
            if g + CDd < NK//4:
                cdma(g + CDd, [ks])
            if not full:
                A(f"s_waitcnt lgkmcnt({4 + extra})")
            mf(s_, 3)
        else:
            mf(s_, 0)
            if more:
                rd2(nxt, [0, 1])
            if not full:
                A(f"s_waitcnt lgkmcnt({2 + extra})")
            mf(s_, 1)
            if g + CDd < NK//4 and ks in (0, 2):
                cdma(g + CDd, [ks >> 1])
        if s_ + HD < NK:
            hload(s_ + HD)
        if (s_ + 2) % 8 == 0 and s_ + 2 < NK:
            A("ds_read_b128 v[8:11], v12")
        if s_ == NK - 18:
            vm.op(f"global_load_dword v31, v30, {sp(DSK)}", "dsk")
        if NK - 17 <= s_ < NK - 1:
            e = s_ - (NK - 17)
            q, r = e >> 2, e & 3
            A(f"s_mov_b32 s{T0}, {q*32768 + (r >> 1)*4096}")
            vm.op(f"buffer_load_dword v{XR+e}, v28, {r4(S4)}, s{T0} offen offset:{(r & 1)*2048}", ("x", e))
    if not SPLITK:
        mark(A, 8)
        A("s_waitcnt vmcnt(0)")
        A("v_lshlrev_b32 v8, 16, v31\nv_and_b32 v9, 0xffff0000, v31")
        for e in range(16):
            q, r = e >> 2, e & 3
            t = 148 + 2*e
            A(f"v_lshlrev_b32 v{t}, 16, v{XR+e}\nv_and_b32 v{t+1}, 0xffff0000, v{XR+e}")
            A(f"v_mul_f32 v{t}, v{t}, v8\nv_mul_f32 v{t+1}, v{t+1}, v9")
            A(f"v_cvt_pk_bf16_f32 v10, v{t}, v{t+1}")
            A(f"v_lshlrev_b32 v{t}, 16, v10\nv_and_b32 v{t+1}, 0xffff0000, v10")
            A(f"v_add_f32 v{t}, v{t}, v{ACC2(0)+e}\nv_add_f32 v{t+1}, v{t+1}, v{ACC2(1)+e}")
            A(f"s_mov_b32 s{T4}, {(16*q + r)*8192}")
            A(f"buffer_store_dwordx2 {v(t,2)}, v29, {r4(S1)}, s{T4} offen{OSTB}")
        stamp_end(A, kidx, WAVE)
        return
    mark(A, 8)
    TG = T0
    A(f"s_mul_i32 s{TG}, s{NONCE}, 0x9e3779b1\ns_and_b32 s{TG}, s{TG}, 0xbfff0000\ns_or_b32 s{TG}, s{TG}, 0x20000000")
    A(f"s_lshl_b32 s{T4}, s{TI}, 4\ns_add_u32 s{T4}, s{T4}, s{TJ}\ns_lshl_b32 s{T4}, s{T4}, 2\ns_add_u32 s{T4}, s{T4}, s{WAVE}\ns_lshl_b32 s{T4}, s{T4}, 13")
    srd(A, S2, WS, T4, WS_XB, 0x2000)
    A(f"s_xor_b32 s{T4}, s{T4}, {8 << 15}")
    srd(A, S3, WS, T4, WS_XB, 0x2000)
    A(f"s_movk_i32 s{T4}, 0x1000")
    val = lambda n: ACC2(n & 1) + (n >> 1)
    TX, RX = 96, 180
    for gq in range(5):
        for c in range(4):
            n = 7*gq + 2*c
            lo = f"v{val(min(n, 31))}"
            hi = f"s{TG}" if c == 3 else f"v{val(min(n+1, 31))}"
            A(f"v_cvt_pk_bf16_f32 v{TX+4*gq+c}, {lo}, {hi}")
        A(f"buffer_store_dwordx4 {v(TX+4*gq,4)}, v2, {r4(S2)}, {'0' if gq < 4 else f's{T4}'} offen offset:{(gq & 3)*1024} sc1")

    def rx():
        for gq in range(5):
            A(f"buffer_load_dwordx4 {v(RX+4*gq,4)}, v2, {r4(S3)}, {'0' if gq < 4 else f's{T4}'} offen offset:{(gq & 3)*1024} sc1")
    if E_("XM", 0):
        mark(A, 3)
    A("s_waitcnt vmcnt(5)")
    if E_("XM", 0):
        mark(A, 5)
    A("v_lshlrev_b32 v8, 16, v31\nv_and_b32 v9, 0xffff0000, v31")
    YO = lambda e: 148 + 2*e
    for e in range(16):
        t = YO(e)
        A(f"v_lshlrev_b32 v{t}, 16, v{XR+e}\nv_and_b32 v{t+1}, 0xffff0000, v{XR+e}")
        A(f"v_pk_mul_f32 {v(t,2)}, {v(t,2)}, v[8:9]")
        A(f"v_cvt_pk_bf16_f32 v10, v{t}, v{t+1}")
        A(f"v_lshlrev_b32 v{t}, 16, v10\nv_and_b32 v{t+1}, 0xffff0000, v10")
        A(f"v_add_f32 v{t}, v{t}, v{ACC2(2)+e}\nv_add_f32 v{t+1}, v{t+1}, v{ACC2(3)+e}")
    xl, xd = uid("xl"), uid("xd")
    A(f"s_mov_b32 s{CNT}, 0")
    A(f"s_waitcnt vmcnt({E_('XW', 0)})")
    if E_("XM", 0):
        mark(A, 6)
    rx()
    A.label(xl)
    A("v_mov_b32 v10, 0")
    for gq in range(5):
        A(f"s_waitcnt vmcnt({4-gq})")
        A(f"v_bitop3_b32 v10, v10, v{RX+4*gq+3}, s{TG} bitop3:0xf6")
    A("v_cmp_lt_u32 vcc, 0xffff, v10")
    A(f"s_cbranch_vccz {xd}")
    A(f"s_add_u32 s{CNT}, s{CNT}, 1\ns_cmp_ge_u32 s{CNT}, {SPIN_MAX}")
    A(f"s_cbranch_scc1 {xd}")
    rx()
    A(f"s_branch {xl}")
    A.label(xd)
    if STAMP:
        A(f"s_add_u32 s74, s70, s{CNT}")
        mark(A, 4)
    for e in range(16):
        q, r = e >> 2, e & 3
        t = YO(e)
        for nt in range(2):
            n = 2*e + nt
            src = RX + 4*(n // 7) + (n % 7)//2
            if (n % 7) % 2 == 0:
                A(f"v_lshlrev_b32 v{10+nt}, 16, v{src}")
            else:
                A(f"v_and_b32 v{10+nt}, 0xffff0000, v{src}")
        A(f"v_pk_add_f32 {v(t,2)}, {v(t,2)}, v[10:11]")
        A(f"s_mov_b32 s{T4}, {(16*q + r)*8192}")
        A(f"buffer_store_dwordx2 {v(t,2)}, v29, {r4(S1)}, s{T4} offen{OSTB}")
    stamp_end(A, kidx, WAVE)


def gen(A, name, kidx, part):
    _ph[0] = 0
    A(f".globl {name}\n.p2align 8\n.type {name},@function")
    A.label(name)
    A("s_cmp_ge_u32 s2, 256")
    A(f"s_cbranch_scc1 L_{name}_end")
    A("s_load_dwordx16 s[4:19], s[0:1], 0")
    A("s_load_dwordx8 s[20:27], s[0:1], 64")
    A("s_load_dwordx4 s[28:31], s[0:1], 96")
    A("s_load_dwordx2 s[32:33], s[0:1], 112")
    stamp_begin(A)
    A("v_lshrrev_b32 v2, 6, v0\nv_and_b32 v1, 63, v0")
    A(f"v_readfirstlane_b32 s{WAVE}, v2")
    A(f"s_and_b32 s{T0}, s2, 7\ns_lshr_b32 s{T1}, s2, 3")
    A(f"s_lshr_b32 s{TI}, s{T0}, 1\ns_lshl_b32 s{TI}, s{TI}, 2\ns_lshr_b32 s{T2}, s{T1}, 3\ns_add_u32 s{TI}, s{TI}, s{T2}")
    A(f"s_and_b32 s{TJ}, s{T0}, 1\ns_lshl_b32 s{TJ}, s{TJ}, 3\ns_and_b32 s{T2}, s{T1}, 7\ns_add_u32 s{TJ}, s{TJ}, s{T2}")
    A(f"s_cmp_ge_u32 s{WAVE}, 4")
    A(f"s_cbranch_scc0 L_{name}_gemm")
    if part == 1:
        loader(A, name, kidx)
    else:
        if NOAUX:
            A("s_barrier")
        else:
            aux_k2(A)
        stamp_end(A, kidx, WAVE)
        A("s_endpgm")
    A.label(f"L_{name}_gemm")
    (gemm_waves if part == 1 else gemm2_waves)(A, name, kidx)
    A.label(f"L_{name}_end")
    A("s_endpgm")
    return kdesc(name, 256)


def gen_k1(A, name, kidx):
    return gen(A, name, kidx, 1)


def gen_k2(A, name, kidx):
    return gen(A, name, kidx, 2)
```

```python
import sys
from asmlib import *
from common import *
import partb

HEADER = open("concat_heads__spectral_gfnet__ssm_conv_s5__prompt.s.ref").read().split("; Override launch")[0]

KNAME = "concat_heads__spectral_gfnet__ssm_conv_s5__prompt_kernel"
def build(parts):
    launches, bodies, descs = [], [], []
    for kidx, (name, gen, grid, block, lds) in enumerate(parts):
        A = Asm()
        d = gen(A, name, kidx)
        lines, npad = pad(A.lines)
        print(f"; {name}: {len(lines)} lines, {npad} pad states", file=sys.stderr)
        launches.append(f"; @launch {'' if name == KNAME else 'kernel=' + name + ' '}grid=({grid},1,1) block=({block},1,1) lds={lds}")
        bodies.append("\n".join(lines)); descs.append(d)
    out = HEADER + "\n".join(launches) + '\n.amdgcn_target "amdgcn-amd-amdhsa--gfx950"\n.text\n'
    out += "\n".join(bodies) + "\n" + (tables() if "tables" in "".join(bodies) else "") + "\n" + "\n".join(descs) + "\n"
    return out

if __name__ == "__main__":
    which = sys.argv[1]
    P = {
        "g1": ("g1_kernel", partb.gen_g1, 256, 512, partb.G1_NS*32768),
        "g2": ("g2_kernel", partb.gen_g2, 256, 256, 131072),
    }
    import fused
    P["fused"] = (KNAME, fused.gen_fused, 256, 512, 163840)
    P["fusedl"] = ("fused_kernel", fused.gen_fused, 256, 512, 163840)
    import k16
    P["k16"] = (KNAME, k16.gen_fused, 256, 512, 163840)
    import k18
    P["k18"] = (KNAME, k18.gen_fused, 256, 512, 163840)
    import k19
    P["k19"] = (KNAME, k19.gen_fused, 256, 512, 163840)
    import k20
    P["k20"] = (KNAME, k20.gen_fused, 256, 512, 163840)
    import two
    P["k1"] = ("k1_kernel", two.gen_k1, 256, 512, 163840)
    P["k2"] = ("k2_kernel", two.gen_k2, 256, 512, 163840)
    def gen_empty(A, name, kidx):
        A(f".globl {name}\n.p2align 8\n.type {name},@function")
        A.label(name)
        A("s_endpgm")
        return kdesc(name, 256)
    for i in range(8):
        P[f"e{i}"] = (f"e{i}_kernel", gen_empty, 256, 64, 0)
    try:
        import parta
        P.update(parta.PARTS)
    except ImportError:
        pass
    open(sys.argv[2], "w").write(build([P[k] for k in which.split(",")]))
```

```python
import os
from asmlib import *
from common import *

E_ = lambda k, d: int(os.environ.get(k, str(d)))
XO, NP, RI, RJ = E_("XO", 0), E_("NP", 1), E_("RI", 1), E_("RJ", 1)
RIS, RJS = E_("RIS", 0), E_("RJS", 0)
G2R = E_("G2R", 0)
XO2, NP2 = E_("XO2", 2), E_("NP2", 1)
PRO = E_("PRO", 2)
HD = E_("HD", 24)
CD = E_("CD", 4)
NOAUX = E_("NOAUX", 0)
CODEPF = E_("CODEPF", 1)
NS = E_('NS', 3)
LASW = E_('LASW', 99)
R = 7
LA = E_('LA', 2)
FORCE_REMOTE = E_('FORCE_REMOTE', 0)
MF = "v_mfma_f32_32x32x16_bf16"
N0 = "neg_lo:[1,0,0] neg_hi:[1,0,0]"

AX, WR, WI, BX, LRE, LIM, BRE, BIM, CRE, CIM, LDT, DSK, OUT, DBG, WS = 4, 6, 8, 10, 12, 14, 16, 18, 20, 22, 24, 26, 28, 30, 32
WAVE, TI, TJ, NONCE, TBL = 34, 35, 36, 37, 38
S0, S1, S2, S3, S4 = 40, 44, 48, 52, 56
T0, T1, T2, T3, T4, T5, T6, T7, T8, T9 = range(60, 70)
MSK, CNT, LOCAL, PG = 90, 92, 100, 101
L_XCH = 122880
L_SYNC = 126976
L_AX = 131072
L_W = 147456
WS_CNT = 0x1000
CNT_A, CNT_B, CNT_W = WS_CNT, WS_CNT + 16*128, WS_CNT + 32*128
FLG_A, FLG_B, FLG_W = 0x84000, 0x86000, 0x88000
FLG_X = 0x8000
FLG_H = 0x60000
CPRO1 = E_("CPRO1", 2)
CPRO2 = E_("CPRO2", 2)
CTOUCH = E_("CTOUCH", 4)
TBS = 131072 + E_("TBPAD", 0)
FTOUCH = E_("FTOUCH", 1)
XTOUCH = E_("XTOUCH", 0)
NREP = E_("NREP", 32)
NDEF = E_("NDEF", 12)
HTAG = 0
HDLY = E_("HDLY", 0)
HFI, HFC = E_("HFI", 7), E_("HFC", 10)
XPOLL = E_("XPOLL", 2)
OWNFIRST = E_("OWNFIRST", 1) and not HTAG
C01, C23 = E_("C01", 1), E_("C23", 1)
INOUT = E_("INOUT", 0)
KS_ = 32768 if INOUT else 8192
ISH = 16384 if INOUT else 4096
CTK, CPOLL, CPRE, HPRE = E_("CTK", 13), E_("CPOLL", 6), E_("CPRE", 7), E_("HPRE", 8)
HLOC, HLK = E_("HLOC", 0), E_("HLK", 13)
LBAT = E_("LBAT", 16)
XBF = E_("XBF", 1)
SLP_H, SLP_A = E_("SLP_H", 4), E_("SLP_A", 10)
NT = " nt" if E_("NT", 1) else ""
NTX = " nt"
OST = {0: "", 1: " nt", 2: " sc1", 3: " sc1 nt", 4: " sc0 sc1 nt", 5: " sc0 nt"}[E_("OST", 1)]
NTK = E_("NTK", 0)
OSTB = {0: "", 1: " nt", 2: " sc1", 3: " sc1 nt", 4: " sc0 sc1 nt", 5: " sc0 nt"}[E_("OSTB", 1)]
NTC = " nt" if E_("NTC", 0) else ""


def sp(a):
    return f"s[{a}:{a+1}]"


def srd(A, d, base, soff=None, const=0, size=None, size_s=None):
    if soff is None and const == 0:
        A(f"s_mov_b32 s{d}, s{base}\ns_mov_b32 s{d+1}, s{base+1}")
    else:
        if soff is not None and const:
            A(f"s_add_u32 s{d+2}, s{soff}, {const}")
            o = f"s{d+2}"
        elif soff is not None:
            o = f"s{soff}"
        else:
            o = str(const)
        A(f"s_add_u32 s{d}, s{base}, {o}\ns_addc_u32 s{d+1}, s{base+1}, 0")
    if size_s is not None:
        A(f"s_sub_u32 s{d+2}, {size}, s{size_s}")
    else:
        A(f"s_mov_b32 s{d+2}, {size}")
    A(f"s_mov_b32 s{d+3}, 0x20000")


def r4(d):
    return f"s[{d}:{d+3}]"


_u = [0]


def uid(p):
    _u[0] += 1
    return f"L_{p}{_u[0]}"


def get_nonce(A, vt):
    l, d = uid("n"), uid("nd")
    A(f"v_mov_b32 v{vt}, 0")
    A.label(l)
    A(f"global_load_dword v{vt+1}, v{vt}, {sp(DBG)} sc1")
    A("s_waitcnt vmcnt(0)")
    A(f"v_readfirstlane_b32 s{NONCE}, v{vt+1}")
    A(f"s_cmp_eq_u32 s{NONCE}, 0")
    A(f"s_cbranch_scc1 {l}")


def signal(A, sshard, cnt, flg, expect, vt):
    d = uid("sg")
    A(f"s_lshl_b32 s{CNT}, s{sshard}, 7\ns_add_u32 s{CNT}, s{CNT}, {cnt}")
    A(f"v_mov_b32 v{vt}, s{CNT}\nv_mov_b32 v{vt+1}, 1")
    A("s_waitcnt vmcnt(0)")
    A("s_mov_b64 exec, 1")
    A(f"global_atomic_add v{vt+2}, v{vt}, v{vt+1}, {sp(WS)} sc0 sc1")
    A(f"v_add_u32 v{vt}, {flg - cnt}, v{vt}\nv_mov_b32 v{vt+1}, s{NONCE}")
    A("s_waitcnt vmcnt(0)")
    A(f"v_readfirstlane_b32 s{CNT}, v{vt+2}")
    A(f"s_add_u32 s{CNT}, s{CNT}, 1\ns_cmp_lg_u32 s{CNT}, {expect}")
    A(f"s_cbranch_scc1 {d}")
    A(f"global_store_dword v{vt}, v{vt+1}, {sp(WS)} sc1")
    A.label(d)
    A("s_mov_b64 exec, -1")


def set_flag(A, soff, vt):
    A(f"v_mov_b32 v{vt}, s{soff}\nv_mov_b32 v{vt+1}, s{NONCE}")
    A("s_waitcnt vmcnt(0)")
    A("s_mov_b64 exec, 1")
    A(f"global_store_dword v{vt}, v{vt+1}, {sp(WS)} sc1")
    A("s_mov_b64 exec, -1")


def wait_cnt(A, vaddr, vt, sleep):
    l, d = uid("w"), uid("wd")
    A(f"s_mov_b32 s{CNT}, 0")
    A.label(l)
    A(f"global_load_dword v{vt}, v{vaddr}, {sp(WS)} sc1")
    A("s_waitcnt vmcnt(0)")
    A(f"v_cmp_ne_u32 vcc, s{NONCE}, v{vt}")
    A(f"s_cbranch_vccz {d}")
    if sleep:
        A(f"s_sleep {sleep}")
    A(f"s_add_u32 s{CNT}, s{CNT}, 1\ns_cmp_lt_u32 s{CNT}, {SPIN_MAX}")
    A(f"s_cbranch_scc1 {l}")
    A.label(d)


F, T = 192, 224


import struct as _st


def fl(x):
    return hex(_st.unpack("<I", _st.pack("<f", x))[0])


def lane_float(A, vn, vh, t):
    A(f"v_and_b32 v{t}, 31, v1\nv_cvt_f32_u32 v{t}, v{t}\nv_lshrrev_b32 v{t+1}, 5, v1\nv_lshlrev_b32 v{t+1}, 2, v{t+1}\nv_cvt_f32_u32 v{t+1}, v{t+1}")


def make_F(A, t):
    lane_float(A, None, None, t)
    A(f"v_mul_f32 v{t+1}, v{t}, v{t+1}\nv_mul_f32 v{t+1}, {fl(1/32)}, v{t+1}")
    for i in range(16):
        c = 8*(i >> 2) + (i & 3)
        a = t + 2 + 3*(i & 1)
        A(f"v_fmamk_f32 v{a}, v{t}, {fl(c/32)}, v{t+1}\nv_fract_f32 v{a}, v{a}")
        A(f"v_cos_f32 v{a+1}, v{a}\nv_sin_f32 v{a+2}, v{a}")
        A(f"v_cvt_pk_bf16_f32 v{F+i}, v{a+1}, v{a+2}\nv_cvt_pk_bf16_f32 v{F+16+i}, -v{a+2}, v{a+1}")


def make_T(A, dst, t, half):
    lane_float(A, None, None, t)
    if not half:
        A(f"v_mul_f32 v{t+1}, v{t}, v{t+1}\nv_mul_f32 v{t+1}, {fl(1/1024)}, v{t+1}")
    else:
        A(f"v_mul_f32 v{t}, {fl(1/2048)}, v{t}\nv_fmamk_f32 v{t+1}, v{t+1}, {fl(1/64)}, v{t}")
    for i in range(16):
        c = 8*(i >> 2) + (i & 3)
        a = t + 2 + (i & 1)
        if not half:
            A(f"v_fmamk_f32 v{a}, v{t}, {fl(c/1024)}, v{t+1}")
        else:
            A(f"v_add_f32 v{a}, {fl(c/64)}, v{t+1}")
        A(f"v_cos_f32 v{dst+i}, v{a}\nv_sin_f32 v{dst+16+i}, -v{a}")


def stage1(A, src, D, stride=4):
    if "m" in os.environ.get("SK", ""):
        return
    for c in range(2):
        for s_ in range(4):
            cc = "0" if s_ == 0 else v(D+16*c, 16)
            A(f"{MF} {v(D+16*c,16)}, {v(src+stride*s_,4)}, {v(F+16*c+4*s_,4)}, {cc}")


def twiddle(A, D, dst, tmp, rng=range(16)):
    for i in (rng if "t" not in os.environ.get("SK", "") else []):
        re, im, tr, ti = D+i, D+16+i, T+i, T+16+i
        t = tmp + 2*(i & 3)
        A(f"v_mul_f32 v{t}, v{re}, v{tr}\nv_mul_f32 v{t+1}, v{re}, v{ti}")
        A(f"v_fma_f32 v{t}, -v{im}, v{ti}, v{t}\nv_fmac_f32 v{t+1}, v{im}, v{tr}")
        A(f"v_cvt_pk_bf16_f32 v{dst+i}, v{t}, v{t+1}")


def stage2(A, src, D):
    if "m" in os.environ.get("SK", ""):
        return
    for c in range(2):
        for s_ in range(4):
            cc = "0" if s_ == 0 else v(D+16*c, 16)
            A(f"{MF} {v(D+16*c,16)}, {v(F+16*c+4*s_,4)}, {v(src+4*s_,4)}, {cc}")


W_ = T6
NBW = 2048*513*2
SQ, SO, ST = 184, 185, 186
VA1, VA2, VA8, VLIN = 4, 5, 6, 7
_ph = [0]


def l_arrive(A):
    _ph[0] += 1
    A(f"v_mov_b32 v{ST+4}, {_ph[0]}")
    A(f"s_mov_b64 exec, 1\nds_write_b32 v{SO}, v{ST+4}\ns_mov_b64 exec, -1")
    return _ph[0]


def l_check(A, n, delta=0, slp=1):
    l, d = uid("lc"), uid("lcd")
    if delta:
        A(f"v_add_u32 v{ST+5}, {delta}, v{SQ}")
    A.label(l)
    A(f"ds_read_b128 {v(ST,4)}, v{ST+5 if delta else SQ}\ns_waitcnt lgkmcnt(0)")
    A(f"v_min3_u32 v{ST}, v{ST}, v{ST+1}, v{ST+2}\nv_min_u32 v{ST}, v{ST}, v{ST+3}")
    A(f"v_readfirstlane_b32 s{CNT}, v{ST}")
    A(f"s_cmp_ge_u32 s{CNT}, {n}")
    A(f"s_cbranch_scc1 {d}")
    A(f"s_sleep {slp}\ns_branch {l}")
    A.label(d)


def l_sync(A):
    l_check(A, l_arrive(A))


def aux_setup(A):
    srd(A, S2, WR, size=NBW)
    srd(A, S3, WI, size=NBW)
    A(f"s_and_b32 s{T0}, s2, 31\ns_lshr_b32 s{T1}, s2, 5\ns_lshl_b32 s{T1}, s{T1}, 7\ns_add_u32 s{T0}, s{T0}, s{T1}")
    A(f"s_lshl_b32 s{T1}, s{W_}, 5\ns_add_u32 s{T7}, s{T0}, s{T1}\ns_lshl_b32 s{T0}, s{T7}, 12")
    srd(A, AX, AX, T0, 0, 0x1000)
    A("v_lshlrev_b32 v2, 4, v1\nv_xor_b32 v3, 128, v2")
    A(f"s_lshl_b32 s{T8}, s{W_}, 12\ns_add_u32 s{T8}, s{T8}, {L_AX}")
    A(f"s_and_b32 s{T0}, s2, 7\ns_bfe_u32 s{T1}, s2, 0x10003\ns_bfe_u32 s{T2}, s2, 0x20004\ns_lshr_b32 s{T3}, s2, 6")
    A(f"s_lshr_b32 s{T4}, s{T0}, 1\ns_lshl_b32 s{T4}, s{T4}, 3\ns_lshl_b32 s{T5}, s{T1}, 2\ns_add_u32 s{T4}, s{T4}, s{T5}")
    A(f"s_and_b32 s{T5}, s{T0}, 1\ns_lshl_b32 s{T5}, s{T5}, 1\ns_add_u32 s{T4}, s{T4}, s{T5}\ns_lshl_b32 s{T4}, s{T4}, 5")
    A(f"s_lshl_b32 s{T5}, s{T2}, 3\ns_add_u32 s{T4}, s{T4}, s{T5}\ns_lshl_b32 s{T5}, s{W_}, 1\ns_add_u32 s{T4}, s{T4}, s{T5}\ns_mul_i32 s{T4}, s{T4}, 1026")
    A(f"s_lshl_b32 s{T5}, s{T3}, 8\ns_add_u32 s{T9}, s{T4}, s{T5}")
    A("v_bfe_u32 v8, v1, 4, 1\nv_mul_u32_u24 v8, 32832, v8")
    A(f"v_lshrrev_b32 v9, 5, v1\ns_mov_b32 s{T5}, 1050624\nv_mul_lo_u32 v9, s{T5}, v9\nv_add_u32 v8, v8, v9")
    A(f"v_and_b32 v9, 15, v1\ns_lshl_b32 s{T5}, s{W_}, 1\nv_xor_b32 v9, s{T5}, v9")
    A("v_lshl_add_u32 v18, v9, 4, v8\nv_xor_b32 v9, 1, v9\nv_lshl_add_u32 v19, v9, 4, v8\nv_add_u32 v19, 1026, v19")
    A(f"s_bfe_u32 s{T4}, s2, 0x20005\ns_lshl_b32 s{T4}, s{T4}, 8\ns_bfe_u32 s{T5}, s2, 0x10004\ns_lshl_b32 s{T5}, s{T5}, 6\ns_add_u32 s{T4}, s{T4}, s{T5}")
    A(f"s_bfe_u32 s{T5}, s2, 0x10003\ns_lshl_b32 s{T5}, s{T5}, 7\ns_add_u32 s{T4}, s{T4}, s{T5}\ns_and_b32 s{T5}, s2, 7\ns_lshl_b32 s{T5}, s{T5}, 2\ns_add_u32 s{T4}, s{T4}, s{T5}")
    A(f"v_bfe_u32 v8, v1, 3, 2\nv_add_u32 v8, s{T4}, v8\nv_bfe_u32 v9, v1, 2, 1\nv_lshl_add_u32 v8, v9, 5, v8\nv_bfe_u32 v9, v1, 1, 1\nv_lshl_add_u32 v8, v9, 10, v8")
    A("v_sub_u32 v9, 2048, v8\nv_and_b32 v9, 2047, v9\nv_and_b32 v10, 1, v1\nv_cmp_eq_u32 vcc, 1, v10\nv_cndmask_b32 v8, v8, v9, vcc")
    A(f"v_mul_u32_u24 v17, 1026, v8\ns_lshr_b32 s{T4}, s2, 7\ns_lshl_b32 s{T4}, s{T4}, 10\nv_add_u32 v17, s{T4}, v17")


def aux_issue(A, vm):
    for c in range(2):
        A(f"s_add_u32 m0, s{T8}, {c*2048}")
        A(f"s_mov_b32 s{CNT}, {c*2048}")
        for u in range(2):
            vm.op(f"buffer_load_dwordx4 v{2+c}, {r4(AX)}, s{CNT} offen offset:{u*1024}{NT} lds", "ax")


def w_issue(A, vm):
    for bb in range(2):
        for arr in range(2):
            A(f"s_add_u32 m0, s{T8}, {L_W - L_AX + bb*2048 + arr*1024}")
            vm.op(f"buffer_load_dwordx4 v{18+bb}, {r4(S2 if arr == 0 else S3)}, s{T9} offen{NT} lds" if "1" not in SK else f"buffer_load_dword v23, v2, {r4(AX)}, 0 offen offset:4092", "w")
    nw = uid("nw")
    A(f"s_cmp_lg_u32 s{W_}, {3 if not ('1' in SK or 'p' in SK) else 9}\ns_cbranch_scc1 {nw}")
    A("s_mov_b32 exec_hi, 0")
    A(f"buffer_load_ushort v{WSP}, v17, {r4(S2)}, 0 offen{NT}")
    A(f"buffer_load_ushort v{WSP+1}, v17, {r4(S3)}, 0 offen{NT}")
    A("s_mov_b64 exec, -1")
    A.label(nw)


WSP, IN, D, MID, TMP = 88, 24, 40, 72, 168
DY, W, TT = 72, 104, 136
M_, SPC, CJ, SGN = T0, T1, T2, T3
AUXK = E_("AUXK", 5)
GATE = E_("GATE", 0)
WK = E_("WK", 1)
WMID = WK <= 12
WSK = E_("WSK", 9)
A1K = E_("A1K", 0)
FINE = E_("FINE", 1)
ZSK = E_("ZSK", A1K + 3 + FINE)
LATE = A1K >= 6
A2G = E_("A2G", 1)
POLLK = E_("POLLK", 15)
VTLB, VTN, VTF = E_("VTLB", 0), E_("VTN", 1), (" nt" if E_("VTF", 1) else "")
TLBW = E_("TLBW", 0)
DEFER = E_("DEFER", 0)
LDEF = E_("LDEF", 0)
LSLP = E_("LSLP", 1)
WSH = E_("WSH", 1)
PRE1, PRE2 = E_("PRE1", 6), E_("PRE2", 12)
HALF = E_("HALF", 0)
WEARLY = E_("WEARLY", 0)
KA, KA0, KA1, KAG = E_("KA", 0), E_("KA0", 1), E_("KA1", 15), E_("KAG", 0)
G1X = os.environ.get("G1X", "")
PHM, PHR = E_("PHM", 0), E_("PHR", 16)
CPK = [int(x) for x in os.environ.get("CPK", "").split(",") if x]
CPP = E_("CPP", 0)
CSP, CSP0, CSB = E_("CSP", 0), E_("CSP0", 1), E_("CSB", 12)
SK = os.environ.get("SK", "")
A2C = E_("A2C", 0)
LPRIO3 = E_("LPRIO3", 3)
LPRIO0 = E_("LPRIO0", 3)
LPRIO, LPRIO2 = E_('LPRIO', 3), E_('LPRIO2', 3)
L_IMG = 98304
LIMG_FREE = 2


def img(i):
    ka = 8*(i >> 2) + (i & 3)
    return (VA1, ka*1024) if i < 8 else (VA8, 0) if i == 8 else (VA2, (27 - ka)*1024)


def aux_pre(A):
    A(f"v_mov_b32 v{SQ}, {L_SYNC + 16}\ns_lshl_b32 s{T4}, s{W_}, 2\nv_add_u32 v{SO}, s{T4}, v{SQ}")
    A("v_and_b32 v8, 31, v1\nv_lshrrev_b32 v9, 5, v1\nv_and_b32 v10, 1, v1")
    A(f"v_lshrrev_b32 v11, 1, v8\nv_lshlrev_b32 v{VA1}, 6, v11\nv_lshl_add_u32 v{VA1}, v10, 4, v{VA1}\nv_lshl_add_u32 v{VA1}, v9, 12, v{VA1}")
    A(f"v_add_u32 v11, v11, v10\nv_lshlrev_b32 v11, 6, v11\nv_lshl_add_u32 v11, v10, 4, v11\nv_lshl_add_u32 v11, v9, 12, v11\nv_sub_u32 v{VA2}, {5120 + 48}, v11")
    for r in (VA1, VA2):
        A(f"v_bfe_u32 v11, v{r}, 7, 1\nv_lshlrev_b32 v11, 5, v11\nv_xor_b32 v{r}, v{r}, v11")
    A(f"v_add_u32 v{VA8}, 11264, v{VA2}\nv_and_b32 v{VA8}, 0x3fff, v{VA8}")
    A(f"s_add_u32 s{T4}, s{T4}, {L_IMG}")
    for r in (VA1, VA2, VA8):
        A(f"v_add_u32 v{r}, s{T4}, v{r}")
    A(f"v_bfe_u32 v11, v1, 3, 1\nv_lshlrev_b32 v11, 5, v11\nv_xor_b32 v{VLIN}, v2, v11")

    A("v_bfe_u32 v12, v1, 2, 1\nv_mul_u32_u24 v12, 2176, v12")
    A("v_bfe_u32 v13, v1, 3, 1\nv_lshl_add_u32 v12, v13, 6, v12\nv_lshl_add_u32 v12, v9, 8, v12")
    A("v_bfe_u32 v13, v1, 4, 1\nv_lshl_add_u32 v12, v13, 5, v12\nv_and_b32 v13, 3, v1\nv_lshl_add_u32 v12, v13, 3, v12")
    A(f"v_add_u32 v12, s{T8}, v12\nv_xor_b32 v13, 128, v12")
    if INOUT:
        A(f"s_lshl_b32 s{T4}, s{T7}, 14")
        srd(A, S0, OUT, T4, 0, 0x1000)
        srd(A, S1, OUT, T4, 0, 0x1000)
    else:
        A(f"s_lshl_b32 s{T4}, s2, 14\ns_lshl_b32 s{T5}, s{W_}, 12\ns_add_u32 s{T4}, s{T4}, s{T5}")
        srd(A, S0, WS, T4, WS_Z1, 0x1000)
        srd(A, S1, WS, T4, WS_Z3, 0x1000)
    A(f"v_and_b32 v14, 7, v1\nv_lshrrev_b32 v15, 3, v1\nv_xor_b32 v16, v14, v15\nv_lshlrev_b32 v16, 4, v16\nv_lshl_add_u32 v16, v14, 11, v16")
    A(f"s_lshr_b32 s{T4}, s{W_}, 1\ns_lshl_b32 s{T4}, s{T4}, 7\ns_and_b32 s{T5}, s{W_}, 1\ns_lshl_b32 s{T5}, s{T5}, 3\ns_add_u32 s{T4}, s{T4}, s{T5}\ns_add_u32 s{T4}, s{T4}, {L_W}")
    A(f"v_add_u32 v16, s{T4}, v16")
    A(f"v_lshlrev_b32 v15, {18 if INOUT else 16}, v15\nv_lshl_add_u32 v15, v14, 4, v15")
    A(f"s_lshl_b32 s{T4}, s{T3}, 7\ns_lshr_b32 s{T5}, s{W_}, 1\ns_lshl_b32 s{T5}, s{T5}, 6\ns_add_u32 s{T4}, s{T4}, s{T5}")
    A(f"s_and_b32 s{T5}, s{W_}, 1\ns_lshl_b32 s{T5}, s{T5}, 2\ns_add_u32 s{T4}, s{T4}, s{T5}\ns_mul_i32 s{T4}, s{T4}, {KS_}")
    A(f"s_lshr_b32 s{T5}, s{T0}, 2\ns_mul_i32 s{T5}, s{T5}, {ISH - 4096}\ns_add_u32 s{T4}, s{T4}, s{T5}")
    A(f"s_lshl_b32 s{T5}, s{T0}, 10\ns_add_u32 s{T4}, s{T4}, s{T5}\ns_lshl_b32 s{T5}, s{T1}, 9\ns_add_u32 s{T4}, s{T4}, s{T5}\ns_lshl_b32 s{T5}, s{T2}, 7\ns_add_u32 s{T4}, s{T4}, s{T5}")
    if INOUT:
        A(f"s_add_u32 s{T4}, s{T4}, 8192")
        srd(A, S4, OUT, T4, 0, 0x1000000, T4)
    else:
        srd(A, S4, WS, T4, WS_WT + 2*KS_, 0x400000, T4)
    make_F(A, 92)
    make_T(A, T, 92, 0)
    make_T(A, TT, 92, 1)


def aux_hook(A, vm, k):
    if k == (3 if A1K or WEARLY else 7):
        A("v_mov_b32 v20, 0")
        vm.op(f"global_load_dword v21, v20, {sp(DBG)} sc1", "nonce")
    if k in CPK:
        code_touch(A, MSK)
    if k == AUXK:
        aux_issue(A, vm)
    if k == WK:
        w_issue(A, vm)
    if WMID and k == WK + LA + 1 + (WK >= LASW):
        wt_read(A)
        A("s_waitcnt lgkmcnt(0)")
        wt_perm(A)
    if A1K:
        if k == A1K:
            vm.wait_for("ax")
            mark(A, 6)
            for s_ in range(4):
                for u in range(2):
                    A(f"ds_read_b64_tr_b16 {v(IN+4*s_+2*u,2)}, v{12+u} offset:{s_*512}")
            A("s_waitcnt lgkmcnt(0)")
            stage1(A, IN, D)
        if k == A1K + 1:
            twiddle(A, D, MID, TMP, range(8 if FINE else 16))
        if k == A1K + 1 + FINE:
            if FINE:
                twiddle(A, D, MID, TMP, range(8, 16))
            stage2(A, MID, D)
        if k == A1K + 2 + FINE:
            A(f"s_lshl_b32 s{CNT}, s{W_}, 12\ns_add_u32 s{CNT}, s{CNT}, {L_IMG}\nv_add_u32 v8, s{CNT}, v{VLIN}")
            for i in range(16):
                A(f"v_cvt_pk_bf16_f32 v{MID+i}, v{D+i}, v{D+16+i}")
                a, o = img(i)
                A(f"ds_write_b32 v{a}, v{MID+i} offset:{o}")
            A("s_waitcnt lgkmcnt(0)")
        if k == A1K + 3 + FINE:
            for u in range(4):
                A(f"ds_read_b128 {v(MID+4*u,4)}, v8 offset:{u*1024}")
            for r in (VA1, VA2, VA8):
                A(f"v_add_u32 v{r}, {L_AX - L_IMG}, v{r}")
            A("s_waitcnt lgkmcnt(0)")
            l_arrive(A)
            assert l_arrive(A) == LIMG_FREE
        if k == ZSK:
            for u in range(4):
                vm.op(f"buffer_store_dwordx4 {v(MID+4*u,4)}, v2, {r4(S0)}, 0 offen offset:{u*1024} sc1", "zst")
            mark(A, 2)
    if WMID and k == WSK:
        wt_store(A, vm)
    if (A1K and not LATE) or WEARLY:
        KS = (max(ZSK, WSK) if A1K else WSK) + LA + 1
        cnt, flg = (CNT_A, FLG_A) if A1K else (CNT_W, FLG_W)
        assert WMID and KS + 2 <= 13 and (not A1K or ZSK >= A1K + 3 + FINE)
        if k == KS - 1 and A1K:
            a2_setup(A)
        if k == KS:
            x, y = uid("sg"), uid("sg")
            A(f"v_readfirstlane_b32 s{NONCE}, v21\ns_cmp_lg_u32 s{NONCE}, 0\ns_cbranch_scc1 {y}")
            get_nonce(A, 20)
            A.label(y)
            A(f"s_cmp_lg_u32 s{W_}, 0\ns_cbranch_scc1 {x}")
            A(f"s_and_b32 s{T4}, s2, 15\ns_lshl_b32 s{T5}, s{T4}, 7\ns_add_u32 s{T5}, s{T5}, {cnt}")
            A(f"s_add_u32 s{MSK}, s{WS}, s{T5}\ns_addc_u32 s{MSK+1}, s{WS+1}, 0\ns_mov_b32 s27, 1")
            A(f"s_atomic_add s27, {sp(MSK)}, 0x0 glc")
            A.label(x)
        if k == KS + 2:
            x = uid("sg")
            A(f"s_cmp_lg_u32 s{W_}, 0\ns_cbranch_scc1 {x}")
            A(f"s_waitcnt lgkmcnt(0)\ns_cmp_lg_u32 s27, 15\ns_cbranch_scc1 {x}")
            A(f"s_and_b32 s27, s2, 15\ns_lshl_b32 s27, s27, 2\ns_add_u32 s27, s27, {flg}\nv_lshl_add_u32 v22, v1, 7, s27\nv_mov_b32 v23, s{NONCE}")
            A(f"global_store_dword v22, v23, {sp(WS)} sc1")
            A.label(x)
        if k == POLLK and A1K:
            flag_poll(A, flg)


KNAME_ = [None]


def code_touch(A, t0, lo=None, hi=None):
    name = KNAME_[0]
    lo = lo or name
    hi = hi or f"L_{name}_end"
    pc = uid("pc")
    per = E_("CTN", 6)
    A(f"s_getpc_b64 {sp(t0)}")
    A.label(pc)
    A(f"s_sub_u32 s{t0}, s{t0}, {pc}-{lo}\ns_subb_u32 s{t0+1}, s{t0+1}, 0")
    A(f"s_lshr_b32 s{CNT}, s2, 3\ns_lshl_b32 s{CNT}, s{CNT}, 2\ns_add_u32 s{CNT}, s{CNT}, s{W_}\ns_mul_i32 s{CNT}, s{CNT}, {per*64}")
    A(f"s_min_u32 s{CNT}, s{CNT}, {hi}-{lo}-{per*64}")
    for q in range(per):
        A(f"s_load_dword s3, {sp(t0)}, s{CNT} offset:{q*64}")


def c_prefetch(A, p, done):
    A(f"s_load_dwordx4 s[8:11], s[0:1], 64")
    A(f"s_and_b32 s12, s{TJ}, 7\ns_lshl_b32 s13, s12, 7\ns_and_b32 s14, s{TI}, 3\ns_lshl_b32 s14, s14, 5\ns_add_u32 s13, s13, s14")
    A(f"s_sub_u32 s14, s{W_}, 1\ns_mul_i32 s14, s14, 11\ns_min_u32 s14, s14, 21\ns_add_u32 s13, s13, s14\ns_lshl_b32 s13, s13, 11")
    A(f"s_lshr_b32 s14, s{TJ}, 3\ns_lshl_b32 s14, s14, 10\ns_add_u32 s13, s13, s14\ns_waitcnt lgkmcnt(0)")
    A("s_add_u32 s4, s8, s13\ns_addc_u32 s5, s9, 0\ns_add_u32 s6, s10, s13\ns_addc_u32 s7, s11, 0")
    cnt = 0
    for n in range(CSP0, CSP0 + CSP):
        A(f"s_add_u32 s15, s12, {n}\ns_and_b32 s15, s15, 7\ns_lshl_b32 s15, s15, 7")
        for r in range(11):
            for arr in range(2):
                for sec in range(2):
                    A(f"s_load_dword s3, s[{4+2*arr}:{5+2*arr}], s15 offset:{r*2048 + sec*64}")
                    cnt += 1
                    if cnt % CSB == 0:
                        A(f"ds_read_b128 {v(ST,4)}, v{SQ}\ns_waitcnt lgkmcnt(0)")
                        A(f"v_min3_u32 v{ST}, v{ST}, v{ST+1}, v{ST+2}\nv_min_u32 v{ST}, v{ST}, v{ST+3}")
                        A(f"v_readfirstlane_b32 s{CNT}, v{ST}\ns_cmp_ge_u32 s{CNT}, {p}\ns_cbranch_scc1 {done}")


def flag_poll(A, flg):
    A(f"s_lshl_b32 s{T4}, s2, 2\ns_add_u32 s{T4}, s{T4}, s{W_}\ns_lshr_b32 s{T4}, s{T4}, 4\ns_lshl_b32 s{T4}, s{T4}, 7\ns_add_u32 s{T4}, s{T4}, {flg}")
    A(f"s_add_u32 s24, s{WS}, s{T4}\ns_addc_u32 s25, s{WS+1}, 0")
    A(f"s_load_dwordx16 s[4:19], s[24:25], 0x0 glc")


def flag_wait(A):
    late, go, pl_ = uid("late"), uid("go"), uid("sp")
    A(f"s_mov_b32 s26, s{NONCE}\ns_mov_b32 s27, s{NONCE}\ns_mov_b32 s{CNT}, 0\ns_branch {pl_}")
    A.label(late)
    A(f"s_add_u32 s{CNT}, s{CNT}, 1\ns_cmp_ge_u32 s{CNT}, {SPIN_MAX}\ns_cbranch_scc1 {go}")
    A(f"s_sleep 8\ns_load_dwordx16 s[4:19], s[24:25], 0x0 glc")
    A.label(pl_)
    A("s_waitcnt lgkmcnt(0)")
    for q in range(8):
        A(f"s_cmp_eq_u64 s[{4+2*q}:{5+2*q}], s[26:27]\ns_cbranch_scc0 {late}")
    A.label(go)


RR = lambda arr, kind: 104 + (arr*4 + kind)*2


def wt_read(A):
    for arr in range(2):
        for kind in range(4):
            A(f"ds_read_b64 {v(RR(arr,kind),2)}, v16 offset:{arr*1024 + kind*256}")
    A(f"s_mov_b32 s{T4}, 0x05040100\ns_mov_b32 s{T5}, 0x07060302")
    A(f"v_lshlrev_b32 v{WSP}, 16, v{WSP}\nv_lshlrev_b32 v{WSP+1}, 16, v{WSP+1}\nv_lshlrev_b32 v9, 1, v1")
    A(f"v_add_f32_dpp v{WSP+2}, v{WSP}, v{WSP} quad_perm:[1,0,3,2] row_mask:0xf bank_mask:0xf")
    A(f"v_subrev_f32_dpp v{WSP+3}, v{WSP+1}, v{WSP+1} quad_perm:[1,0,3,2] row_mask:0xf bank_mask:0xf")
    A(f"v_mul_f32 v{WSP+2}, 0.5, v{WSP+2}\nv_mul_f32 v{WSP+3}, 0.5, v{WSP+3}")
    A(f"v_cvt_pk_bf16_f32 v{WSP}, v{WSP+2}, v{WSP+3}")


def wt_perm(A):
    for kap in range(4):
        o = 120 + 4*kap
        for e in range(2):
            for h2 in range(2):
                kind = e + 2*h2
                A(f"v_perm_b32 v{o+2*e+h2}, v{RR(1,kind)+kap//2}, v{RR(0,kind)+kap//2}, s{T4 + kap % 2}")


def wt_store(A, vm):
    nw = uid("nw")
    A(f"s_cmp_lg_u32 s{W_}, 3\ns_cbranch_scc1 {nw}")
    A(f"s_lshr_b32 s{T4}, s2, 7\ns_mul_i32 s{T4}, s{T4}, {KS_}\ns_bfe_u32 s{T5}, s2, 0x10006\ns_mul_i32 s{T5}, s{T5}, {ISH}\ns_add_u32 s{T4}, s{T4}, s{T5}")
    A(f"s_and_b32 s{T5}, s2, 63\ns_lshl_b32 s{T5}, s{T5}, 6\ns_add_u32 s{T4}, s{T4}, s{T5}")
    srd(A, S3, WS, T4, WS_WT, 64)
    A("s_mov_b32 exec_lo, 0x55555555\ns_mov_b32 exec_hi, 0")
    if not E_("SKIPS", 0):
        A(f"buffer_store_dword v{WSP}, v9, {r4(S3)}, 0 offen sc1")
    A("s_mov_b64 exec, -1")
    A.label(nw)
    for kap in range(0 if "2" in SK else 4):
        A(f"s_mov_b32 s{CNT}, {kap*KS_}")
        vm.op(f"buffer_store_dwordx4 {v(120+4*kap,4)}, v15, {r4(S4)}, s{CNT} offen sc1", "wst")


def a1_task(A, vm):
    y = uid("sg")
    A(f"v_readfirstlane_b32 s{NONCE}, v21\ns_cmp_lg_u32 s{NONCE}, 0\ns_cbranch_scc1 {y}")
    get_nonce(A, 20)
    A.label(y)
    if WK == 17:
        w_issue(A, vm)
    trace(A, 191, 32)
    vm.wait_for("ax")
    trace(A, 191, 33)
    mark(A, 6)
    for s_ in range(4):
        for u in range(2):
            A(f"ds_read_b64_tr_b16 {v(IN+4*s_+2*u,2)}, v{12+u} offset:{s_*512}")
    A("s_waitcnt lgkmcnt(0)")
    stage1(A, IN, D)
    twiddle(A, D, MID, TMP)
    stage2(A, MID, D)
    if WK == 18:
        w_issue(A, vm)
    A(f"s_lshl_b32 s{CNT}, s{W_}, 12\ns_add_u32 s{CNT}, s{CNT}, {L_IMG}\nv_add_u32 v8, s{CNT}, v{VLIN}")
    for i in range(16):
        A(f"v_cvt_pk_bf16_f32 v{MID+i}, v{D+i}, v{D+16+i}")
        a, o = img(i)
        A(f"ds_write_b32 v{a}, v{MID+i} offset:{o}")
    together = not WMID and WK < 17
    if together:
        vm.wait_for("w")
    A("s_waitcnt lgkmcnt(0)")
    l_sync(A)
    for u in range(4):
        A(f"ds_read_b128 {v(MID+4*u,4)}, v8 offset:{u*1024}")
    if together:
        wt_read(A)
    for r in (VA1, VA2, VA8):
        A(f"v_add_u32 v{r}, {L_AX - L_IMG}, v{r}")
    A("s_waitcnt lgkmcnt(0)")
    p = l_arrive(A)
    assert p == LIMG_FREE
    if together:
        wt_perm(A)
    if GATE:
        l_check(A, 2, -16)
    for u in range(0 if "3" in SK else 4):
        vm.op(f"buffer_store_dwordx4 {v(MID+4*u,4)}, v2, {r4(S0)}, 0 offen offset:{u*1024} sc1", "zst")
    if not WMID and not together:
        vm.wait_for("w")
        l_sync(A)
        wt_read(A)
        A("s_waitcnt lgkmcnt(0)")
        wt_perm(A)
    if not WMID or WSK > 15:
        wt_store(A, vm)
    trace(A, 191, 34)
    mark(A, 2)


def a2_setup(A):
    A(f"s_and_b32 s{M_}, s2, 7\ns_lshl_b32 s{M_}, s{M_}, 5\ns_lshr_b32 s{T4}, s2, 3\ns_add_u32 s{M_}, s{M_}, s{T4}")
    A(f"s_lshr_b32 s{T4}, s{W_}, 1\ns_xor_b32 s{T4}, s{T4}, s{W_}\ns_and_b32 s{T4}, s{T4}, 1")
    A(f"s_or_b32 s{T5}, s{T4}, s{M_}\ns_cmp_eq_u32 s{T5}, 0\ns_cselect_b32 s{SPC}, 1, 0")
    A(f"s_lshl_b32 s{T5}, s{M_}, 1\ns_add_u32 s{T4}, s{T4}, s{T5}")
    A(f"s_mul_i32 s{T4}, s{T4}, {KS_}\ns_add_u32 s{T4}, s{T4}, {8192 if INOUT else WS_WT + 2*KS_}")
    A(f"s_lshr_b32 s{T5}, s{W_}, 1\ns_mul_i32 s{T9}, s{T5}, {KS_}\ns_add_u32 s{T9}, s{T9}, {WS_WT}")
    A(f"s_cmp_eq_u32 s{SPC}, 1\ns_cselect_b32 s{T4}, s{T9}, s{T4}\ns_cselect_b32 s{T5}, 0, s{T5}")
    A(f"s_cselect_b32 s{MSK}, s{WS}, s{OUT if INOUT else WS}\ns_cselect_b32 s{MSK+1}, s{WS+1}, s{(OUT if INOUT else WS)+1}")
    A(f"s_lshl_b32 s{CJ}, s{T5}, 31\ns_or_b32 s{SGN}, s{CJ}, 0x3f800000")
    srd(A, S2, MSK, T4, 0, ISH + 4096)
    if INOUT:
        A(f"s_lshl_b32 s{T4}, s{W_}, 22\ns_lshr_b32 s{T5}, s{M_}, 6\ns_lshl_b32 s{T5}, s{T5}, 19\ns_add_u32 s{T4}, s{T4}, s{T5}")
        A(f"s_and_b32 s{T5}, s{M_}, 63\ns_lshl_b32 s{T5}, s{T5}, 6\ns_add_u32 s{T4}, s{T4}, s{T5}")
        srd(A, S3, OUT, T4, 0, 160*16384, T5)
        srd(A, S4, OUT, T4, 0, 160*16384, T5)
    else:
        A(f"s_lshl_b32 s{T4}, s{W_}, 20\ns_lshl_b32 s{T5}, s{M_}, 6\ns_add_u32 s{T4}, s{T4}, s{T5}")
        srd(A, S3, WS, T4, WS_Z1, 0x100000, T5)
        srd(A, S4, WS, T4, WS_Z3, 0x100000, T5)
    A("v_lshrrev_b32 v8, 2, v1\nv_lshlrev_b32 v8, 14, v8\nv_and_b32 v9, 3, v1\nv_lshrrev_b32 v10, 4, v1\nv_xor_b32 v9, v9, v10\nv_lshl_add_u32 v14, v9, 4, v8")
    A(f"v_and_b32 v8, 31, v1\nv_bfe_u32 v9, v1, 2, 2\nv_xor_b32 v9, s{W_}, v9\nv_lshlrev_b32 v9, 4, v9\nv_lshl_add_u32 v9, v8, 6, v9")
    A(f"v_lshrrev_b32 v8, 5, v1\nv_lshl_add_u32 v9, v8, 11, v9\nv_add_u32 v15, {L_AX}, v9")
    A(f"s_lshl_b32 s{T4}, s{W_}, 13\ns_add_u32 s{T4}, s{T4}, {L_AX}\nv_add_u32 v16, s{T4}, v2")
    A(f"s_xor_b32 s{T5}, s{T4}, {3 << 13}\ns_cmp_eq_u32 s{SPC}, 1\ns_cselect_b32 s{T5}, s{T4}, s{T5}\nv_add_u32 v17, s{T5}, v2")
    A(f"v_add_u32 v18, s{T8}, v2")
    A(f"s_lshr_b32 s{T4}, s{W_}, 1\ns_xor_b32 s{T4}, s{T4}, s{W_}\ns_and_b32 s{T4}, s{T4}, 1\ns_lshl_b32 s{T9}, s{T4}, 13\ns_add_u32 s{T9}, s{T9}, {L_W}\nv_add_u32 v19, s{T9}, v2")
    for kk in range(32):
        A(f"v_mul_f32 v{TT+kk}, s{SGN}, v{TT+kk}")


ZU = lambda u: (16*(u & 1) + 128*(u >> 1))*16384 if INOUT else u << 18


def a2_loads(A, z=True, w=True):
    for u in range(4 if z and '5' not in SK else 0):
        A(f"s_add_u32 m0, s{T8}, {u*1024}\ns_mov_b32 s{T4}, {ZU(u)}")
        A(f"buffer_load_dwordx4 v14, {r4(S3)}, s{T4} offen sc1 lds")
    if WSH:
        a, b = uid("ws"), uid("wd")
        A(f"s_cmp_eq_u32 s{SPC}, 1\ns_cbranch_scc1 {a}")
        A(f"s_lshr_b32 s{T4}, s{W_}, 1\ns_lshl_b32 s{T5}, s{T4}, 12\ns_mul_i32 s{T4}, s{T4}, {ISH}\ns_add_u32 m0, s{T9}, s{T5}")
        for u in range(4):
            A(f"buffer_load_dwordx4 v2, {r4(S2)}, s{T4} offen offset:{u*1024} sc1 lds")
        A(f"s_waitcnt vmcnt(0)\ns_branch {b}")
        A.label(a)
    A(f"s_movk_i32 s{T4}, {ISH}")
    for it in range(8 if w and '4' not in SK else 0):
        A(f"buffer_load_dwordx4 {v(W+4*it,4)}, v2, {r4(S2)}, {'0' if it < 4 else f's{T4}'} offen offset:{(it & 3)*1024} sc1")
    if WSH:
        A.label(b)


def aux_rest(A, vm):
    def phase(cnt, flg, young=0):
        tb = 36 if cnt == CNT_A else 48
        trace(A, 191, tb)
        A(f"s_waitcnt vmcnt({young})")
        trace(A, 191, tb+1)
        if E_("AM", 0) and cnt == (CNT_B if E_("AM", 0) == 4 else CNT_A):
            mark(A, 5)
        p = l_arrive(A)
        x = uid("ph")
        if CPP & (1 if cnt == CNT_A else 2):
            code_touch(A, MSK)
        A(f"s_cmp_lg_u32 s{W_}, 0\ns_cbranch_scc1 {x}")
        l_check(A, p)
        trace(A, 191, tb+2)
        if PHM:
            base = WS_CNT + (0 if cnt == CNT_A else 32*128)
            pl_, nok = uid("sp"), uid("nok")
            if PHM == 1:
                A(f"v_lshlrev_b32 v20, 7, v1\nv_add_u32 v20, {base}, v20\nv_mov_b32 v21, 1\ns_mov_b32 exec_hi, 0\ns_mov_b32 exec_lo, {hex((1 << PHR) - 1)}")
                A(f"global_atomic_add v20, v21, {sp(WS)} sc1\ns_mov_b64 exec, -1")
            else:
                A(f"s_add_u32 s4, s{WS}, {base}\ns_addc_u32 s5, s{WS+1}, 0\ns_mov_b32 s{T5}, 1")
                for r in range(PHR):
                    A(f"s_atomic_add s{T5}, s[4:5], {hex(r*128)}")
            A(f"s_and_b32 s{T4}, s2, {PHR - 1}\ns_lshl_b32 s{T4}, s{T4}, 7\ns_add_u32 s{T4}, s{T4}, {base}")
            A(f"s_add_u32 s{MSK}, s{WS}, s{T4}\ns_addc_u32 s{MSK+1}, s{WS+1}, 0\ns_mov_b32 s{CNT}, 0")
            trace(A, 191, tb+4)
            A(f"s_branch {pl_}")
            A.label(nok)
            A(f"s_add_u32 s{CNT}, s{CNT}, 1\ns_cmp_ge_u32 s{CNT}, {SPIN_MAX}\ns_cbranch_scc1 {x}")
            if SLP_A:
                A(f"s_sleep {SLP_A}")
            A.label(pl_)
            A(f"s_load_dword s4, {sp(MSK)}, 0x0 glc\ns_waitcnt lgkmcnt(0)")
            A(f"s_cmp_lt_u32 s4, 256\ns_cbranch_scc1 {nok}")
            trace(A, 191, tb+5)
            if TRACE:
                A(f"v_writelane_b32 v191, s{CNT}, {tb+7}")
            A.label(x)
            l_check(A, l_arrive(A), slp=LSLP)
            trace(A, 191, tb+6)
            return
        y, pl_, nok = uid("sg"), uid("sp"), uid("nok")
        A(f"s_and_b32 s{T4}, s2, 15\ns_lshl_b32 s{T5}, s{T4}, 7\ns_add_u32 s{T5}, s{T5}, {cnt}")
        A(f"s_add_u32 s{MSK}, s{WS}, s{T5}\ns_addc_u32 s{MSK+1}, s{WS+1}, 0\ns_mov_b32 s{T5}, 1")
        A(f"s_atomic_add s{T5}, {sp(MSK)}, 0x0 glc")
        A(f"s_lshl_b32 s{T4}, s{T4}, 2\ns_add_u32 s{T4}, s{T4}, {flg}\nv_lshl_add_u32 v20, v1, 7, s{T4}\nv_mov_b32 v21, s{NONCE}")
        if NREP:
            A(f"s_add_u32 s4, s{WS}, s{T4}\ns_addc_u32 s5, s{WS+1}, 0")
        A(f"s_and_b32 s{T4}, s2, {(NREP or 64) - 1}\ns_lshl_b32 s{T4}, s{T4}, 7\ns_add_u32 s{T4}, s{T4}, {flg}")
        A("s_waitcnt lgkmcnt(0)")
        if TRACE:
            A(f"s_mov_b32 s3, s{T5}")
            trace(A, 191, tb+3)
            A(f"s_mov_b32 s{T5}, s3")
        A(f"s_cmp_lg_u32 s{T5}, 15\ns_cbranch_scc1 {y}")
        if NREP:
            for r in range(NREP):
                A(f"s_atomic_swap s{NONCE}, s[4:5], {hex(r*128)}")
            A("s_waitcnt lgkmcnt(0)")
        else:
            A(f"global_store_dword v20, v21, {sp(WS)} sc1")
        A.label(y)
        trace(A, 191, tb+4)
        if E_("AM", 0) and cnt == (CNT_B if E_("AM", 0) == 4 else CNT_A):
            mark(A, 8 if E_("AM", 0) == 3 else 6)
        A(f"s_add_u32 s{MSK}, s{WS}, s{T4}\ns_addc_u32 s{MSK+1}, s{WS+1}, 0\ns_mov_b32 s{T4}, s{NONCE}\ns_mov_b32 s{T5}, s{NONCE}\ns_mov_b32 s{CNT}, 0")
        A(f"s_branch {pl_}")
        A.label(nok)
        A(f"s_add_u32 s{CNT}, s{CNT}, 1\ns_cmp_ge_u32 s{CNT}, {SPIN_MAX}\ns_cbranch_scc1 {x}")
        if SLP_A:
            A(f"s_sleep {SLP_A}")
        A.label(pl_)
        if not (E_("NOWAIT", 0) & (1 if cnt == CNT_A else 2)):
            A(f"s_load_dwordx16 s[4:19], {sp(MSK)}, 0x0 glc\ns_waitcnt lgkmcnt(0)")
            for q in range(8):
                A(f"s_cmp_eq_u64 s[{4+2*q}:{5+2*q}], {sp(T4)}\ns_cbranch_scc0 {nok}")
        trace(A, 191, tb+5)
        if TRACE:
            A(f"v_writelane_b32 v191, s{CNT}, {tb+7}")
        A.label(x)
        p2 = l_arrive(A)
        if CSP and cnt == CNT_A:
            dn = uid("csp")
            A(f"s_cmp_eq_u32 s{W_}, 0\ns_cbranch_scc1 {dn}")
            c_prefetch(A, p2, dn)
            A.label(dn)
        l_check(A, p2, slp=LSLP)
        trace(A, 191, tb+6)
    if LATE:
        y = uid("sg")
        A(f"v_readfirstlane_b32 s{NONCE}, v21\ns_cmp_lg_u32 s{NONCE}, 0\ns_cbranch_scc1 {y}")
        get_nonce(A, 20)
        A.label(y)
        a2_setup(A)
        A("s_barrier\ns_barrier")
        phase(CNT_A, FLG_A, len(vm.issued) - 1 - max(i for i, t in enumerate(vm.issued) if t in ("zst", "wst")))
        A(f"s_setprio {LPRIO2}")
        if A2G:
            l_check(A, A2G, -16)
        a2_loads(A)
    elif A1K:
        A(f"s_setprio {LPRIO2}\ns_barrier\ns_barrier")
        flag_wait(A)
        if A2G:
            l_check(A, A2G, -16)
        a2_loads(A)
        A(f"s_setprio {LPRIO2}")
    else:
        A("s_barrier\ns_barrier")
        A(f"s_setprio {LPRIO}")
        a1_task(A, vm)
        if WEARLY:
            flag_poll(A, FLG_W)
        a2_setup(A)
        if WEARLY:
            flag_wait(A)
            a, b = uid("we"), uid("wf")
            A(f"s_cmp_eq_u32 s{SPC}, 1\ns_cbranch_scc1 {a}")
            A(f"s_lshr_b32 s{T4}, s{W_}, 1\ns_lshl_b32 s{T5}, s{T4}, 12\ns_mul_i32 s{T4}, s{T4}, {ISH}\ns_add_u32 m0, s{T9}, s{T5}")
            for u in range(4):
                A(f"buffer_load_dwordx4 v2, {r4(S2)}, s{T4} offen offset:{u*1024} sc1 lds")
            A(f"s_waitcnt vmcnt(4)\ns_branch {b}")
            A.label(a)
            A("s_waitcnt vmcnt(0)")
            A.label(b)
            phase(CNT_A, FLG_A, 63)
            A(f"s_setprio {LPRIO2}")
            for u in range(4):
                A(f"s_add_u32 m0, s{T8}, {u*1024}\ns_mov_b32 s{T4}, {ZU(u)}")
                A(f"buffer_load_dwordx4 v14, {r4(S3)}, s{T4} offen sc1 lds")
            a, b = uid("we"), uid("wf")
            A(f"s_cmp_eq_u32 s{SPC}, 1\ns_cbranch_scc1 {a}\ns_waitcnt vmcnt(0)\ns_branch {b}")
            A.label(a)
            A(f"s_movk_i32 s{T4}, {ISH}")
            for it in range(8):
                A(f"buffer_load_dwordx4 {v(W+4*it,4)}, v2, {r4(S2)}, {'0' if it < 4 else f's{T4}'} offen offset:{(it & 3)*1024} sc1")
            A.label(b)
        else:
            phase(CNT_A, FLG_A, 0)
            A(f"s_setprio {LPRIO2}")
            a2_loads(A)
    mark(A, 7)
    A(f"s_waitcnt vmcnt({0 if '4' in SK else 8})")
    if E_("AM", 0) in (1, 2):
        mark(A, 1)
    trace(A, 191, 44)
    l_sync(A)
    INS = 72
    for s_ in range(4):
        A(f"ds_read_b128 {v(INS+4*s_,4)}, v15 offset:{s_*4096}")
    if WSH:
        a = uid("wr")
        A(f"s_cmp_eq_u32 s{SPC}, 1\ns_cbranch_scc1 {a}")
        for it in range(8):
            A(f"ds_read_b128 {v(W+4*it,4)}, v19 offset:{it*1024}")
        A.label(a)
    A("s_waitcnt lgkmcnt(0)")
    if E_("AM", 0) == 2:
        mark(A, 2)
    p6 = l_arrive(A)
    if A2C:
        l_check(A, A2C, -16)
    A(f"s_lshl_b32 s{T4}, s{SPC}, 31\ns_or_b32 s{T4}, s{T4}, s{CJ}")
    fl, nwr = uid("fft"), uid("nwr")
    A.label(fl)
    for i in range(16):
        A(f"v_xor_b32 v{IN+i}, s{T4}, v{INS+i}")

    def pre(rng):
        for i in rng:
            w, rho, sg = W + 2*i, TT + i, TT + 16 + i
            r1, i1, r2, i2, Ar, Ai = (TMP + 8 + c for c in range(6))
            A(f"v_lshlrev_b32 v{r1}, 16, v{w}\nv_and_b32 v{i1}, 0xffff0000, v{w}")
            A(f"v_lshlrev_b32 v{r2}, 16, v{w+1}\nv_and_b32 v{i2}, 0xffff0000, v{w+1}")
            A(f"v_add_f32 v{Ar}, v{r1}, v{r2}\nv_add_f32 v{Ai}, v{i1}, v{i2}")
            A(f"v_sub_f32 v{r1}, v{r1}, v{r2}\nv_sub_f32 v{i1}, v{i1}, v{i2}")
            A(f"v_mul_f32 v{w}, v{rho}, v{r1}\nv_mul_f32 v{w+1}, v{rho}, v{i1}")
            A(f"v_fma_f32 v{rho}, v{sg}, v{r1}, v{Ar}\nv_fma_f32 v{sg}, v{sg}, v{i1}, v{Ai}")

    def once(rng):
        a = uid("once")
        A(f"s_cmp_eq_u32 s{SPC}, 2\ns_cbranch_scc1 {a}\ns_waitcnt vmcnt(0)")
        pre(rng)
        A.label(a)
    stage1(A, IN, D)
    once(range(0, PRE1))
    twiddle(A, D, IN, TMP)
    stage2(A, IN, D)
    once(range(PRE1, PRE2))
    l_check(A, p6)
    if E_("AM", 0) == 2:
        mark(A, 5)
    A(f"s_cmp_eq_u32 s{SPC}, 2\ns_cbranch_scc1 {nwr}")
    for c in range(8):
        A(f"ds_write_b128 v16, {v(D+4*c,4)} offset:{c*1024}")
    A(f"s_cmp_eq_u32 s{SPC}, 0\ns_cbranch_scc1 {nwr}")
    A(f"s_mov_b32 s{SPC}, 2\ns_mov_b32 s{T4}, 0\ns_branch {fl}")
    A.label(nwr)
    pre(range(PRE2, min(16, PRE2 + 2)))
    A("s_waitcnt lgkmcnt(0)")
    p7 = l_arrive(A)
    pre(range(min(16, PRE2 + 2), 16))

    def own(rng):
        for i in rng:
            Xr, Xi, mr, mi, t = D+i, D+16+i, TT+i, TT+16+i, TMP + (i & 1)
            A(f"v_mul_f32 v{t}, v{mi}, v{Xi}\nv_mul_f32 v{Xi}, v{mr}, v{Xi}")
            A(f"v_fmac_f32 v{Xi}, v{mi}, v{Xr}\nv_fma_f32 v{Xr}, v{mr}, v{Xr}, -v{t}")
    own(range(0, 6))
    l_check(A, p7)
    for c in range(8):
        A(f"ds_read_b128 {v(DY+4*c,4)}, v17 offset:{c*1024}")
    own(range(6, 16))
    A("s_waitcnt lgkmcnt(0)")
    if E_("AM", 0) in (1, 2):
        mark(A, 4)
    p8 = l_arrive(A)
    for i in range(16):
        Pr, Pi, Yr, Yi, gr, gi = D+i, D+16+i, DY+i, DY+16+i, W+2*i, W+2*i+1
        A(f"v_fma_f32 v{Pr}, -v{gr}, v{Yi}, v{Pr}\nv_fmac_f32 v{Pi}, v{gr}, v{Yr}")
        A(f"v_fma_f32 v{Pr}, -v{gi}, v{Yr}, v{Pr}\nv_fma_f32 v{Pi}, -v{gi}, v{Yi}, v{Pi}")
        A(f"v_cvt_pk_bf16_f32 v{IN+i}, v{Pi}, v{Pr}")
    if E_("AM", 0) == 2:
        mark(A, 6)
    stage1(A, IN, D)
    twiddle(A, D, IN, TMP)
    stage2(A, IN, D)
    A(f"s_lshr_b32 s{T4}, s{CJ}, 16")
    l_check(A, p8)
    for s_ in range(4):
        for r in range(4):
            i = 4*s_ + r
            A(f"v_cvt_pk_bf16_f32 v{IN+i}, v{D+i}, v{D+16+i}\nv_xor_b32 v{IN+i}, s{T4}, v{IN+i}")
        A(f"ds_write_b128 v15, {v(IN+4*s_,4)} offset:{s_*4096}")
    A("s_waitcnt lgkmcnt(0)")
    if E_("AM", 0) == 2:
        mark(A, 7)
    l_sync(A)
    for u in range(4):
        A(f"ds_read_b128 {v(IN+4*u,4)}, v18 offset:{u*1024}")
    for u in range(4):
        A(f"s_mov_b32 s{T4}, {ZU(u)}\ns_waitcnt lgkmcnt({3-u})")
        if "6" not in SK:
            A(f"buffer_store_dwordx4 {v(IN+4*u,4)}, v14, {r4(S4)}, s{T4} offen sc1")
    trace(A, 191, 46)
    if E_("AM", 0) != 3 and not E_("GM", 0):
        mark(A, 3)
    A(f"s_lshl_b32 s{T4}, s{T7}, 14")
    srd(A, S0, OUT, T4, 0, 0x4000)
    A("v_and_b32 v8, 31, v1\nv_lshrrev_b32 v9, 5, v1\nv_lshlrev_b32 v14, 2, v8\nv_lshl_add_u32 v14, v9, 9, v14")
    A(f"s_mov_b32 s{T4}, 0x35000000")
    for k in range(32):
        A(f"v_mul_f32 v{T+k}, s{T4}, v{T+k}")
    phase(CNT_B, FLG_B)
    A(f"s_setprio {LPRIO3}")
    if E_("AM", 0) != 3:
        mark(A, 8)
    A(f"s_mov_b32 m0, s{T8}")
    for u in range(4):
        if "7" not in SK:
            A(f"buffer_load_dwordx4 v{VLIN}, {r4(S1)}, 0 offen offset:{u*1024} sc1 lds")
    trace(A, 191, 56)
    A("s_waitcnt vmcnt(0)")
    trace(A, 191, 57)
    l_sync(A)
    for i in range(16):
        a, o = img(i)
        A(f"ds_read_b32 v{IN+i}, v{a} offset:{o}")
    A("s_waitcnt lgkmcnt(0)")
    stage1(A, IN, D)
    twiddle(A, D, IN, TMP)
    stage2(A, IN, D)
    A(f"s_movk_i32 s{T4}, 0x2000")
    O = 72
    for i in range(16):
        o = O + 2*i
        A(f"v_cvt_pk_bf16_f32 v{o+1}, v{D+16+i}, v{D+i}")
        A(f"v_lshlrev_b32 v{o}, 16, v{o+1}\nv_and_b32 v{o+1}, 0xffff0000, v{o+1}")
        off = (i >> 2)*1024 + (i & 3)*128
        if "8" not in SK:
            A(f"buffer_store_dword v{o}, v14, {r4(S0)}, 0 offen offset:{off}{OST}")
            A(f"buffer_store_dword v{o+1}, v14, {r4(S0)}, s{T4} offen offset:{off}{OST}")


def cmul_sq(A, d, a, t):
    A(f"v_mul_f32 {v(t)}, {v(a+1)}, {v(a+1)}")
    A(f"v_mul_f32 {v(t+1)}, {v(a)}, {v(a+1)}")
    A(f"v_fma_f32 {v(d)}, {v(a)}, {v(a)}, -{v(t)}")
    A(f"v_add_f32 {v(d+1)}, {v(t+1)}, {v(t+1)}")


def horner(A, dr, di, L, pr, pi, er, ei, t):
    assert dr not in (pr, pi) and di not in (pr, pi)
    A(f"v_fma_f32 {v(t)}, {v(L)}, {v(pr)}, {v(er)}")
    A(f"v_fma_f32 {v(t+1)}, {v(L)}, {v(pi)}, {v(ei)}")
    A(f"v_fma_f32 {v(dr)}, -{v(L+1)}, {v(pi)}, {v(t)}")
    A(f"v_fma_f32 {v(di)}, {v(L+1)}, {v(pr)}, {v(t+1)}")


def loader(A, name, kidx):
    RA, RB, ROT, M0B, SOF, RV = 12, 20, 24, 25, 26, 176
    A(f"s_sub_u32 s{W_}, s{WAVE}, 4")
    A("v_lshrrev_b32 v2, 5, v1\nv_bfe_u32 v3, v1, 3, 2")
    A("v_and_b32 v4, 1, v3\nv_lshrrev_b32 v5, 1, v3")
    A("v_lshlrev_b32 v6, 4, v2\nv_lshl_add_u32 v6, v4, 3, v6\nv_add_u32 v6, v6, v5")
    A(f"s_lshr_b32 s{T0}, s{W_}, 1\ns_lshl_b32 s{T1}, s{T0}, 6\ns_and_b32 s{T2}, s{W_}, 1\ns_lshl_b32 s{T2}, s{T2}, 2\ns_add_u32 s{T1}, s{T1}, s{T2}")
    A(f"v_add_u32 v6, s{T1}, v6\nv_lshlrev_b32 v6, 11, v6")
    A(f"s_lshl_b32 s{T1}, s{T0}, 5")
    A(f"v_lshl_add_u32 v7, v2, 3, v3\nv_add_u32 v7, s{T1}, v7\nv_lshlrev_b32 v7, 11, v7")
    A("v_and_b32 v4, 7, v1\nv_lshrrev_b32 v5, 4, v1\nv_xor_b32 v4, v4, v5\nv_lshlrev_b32 v4, 4, v4")
    A("v_xor_b32 v5, 64, v4")
    for u in range(4):
        ch = 4 if u % 2 == 0 else 5
        A(f"v_add_u32 v{RV+u}, v6, v{ch}")
        if u:
            A(f"v_add_u32 v{RV+u}, {(32*(u & 1) + 2*(u >> 1))*2048 - u*1024}, v{RV+u}")
        A(f"v_add_u32 v{RV+4+u}, v7, v{ch}")
        if u:
            A(f"v_add_u32 v{RV+4+u}, {(16*(u & 1) + 4*(u >> 1))*2048 - u*1024}, v{RV+4+u}")
    A(f"s_and_b32 s{T4}, s2, 7\ns_mul_i32 s{T4}, s{T4}, {XO*128}")
    A(f"s_add_u32 s{T0}, s{TI}, s{TJ}\ns_and_b32 s{T0}, s{T0}, {NP-1}\ns_mul_i32 s{T0}, s{T0}, {2048//NP}\ns_add_u32 s{T4}, s{T4}, s{T0}")
    if RI or RJ:
        mi, mj = E_("RMI", 15), E_("RMJ", 15)
        A(f"s_and_b32 s{T0}, s{TI}, {mi}\ns_lshr_b32 s{T0}, s{T0}, {RIS}\ns_mul_i32 s{T0}, s{T0}, {RI*128}\ns_add_u32 s{T4}, s{T4}, s{T0}\ns_and_b32 s{T0}, s{TJ}, {mj}\ns_lshr_b32 s{T0}, s{T0}, {RJS}\ns_mul_i32 s{T0}, s{T0}, {RJ*128}\ns_add_u32 s{T4}, s{T4}, s{T0}")
    A(f"s_lshl_b32 s{T0}, s{TI}, 18\ns_lshl_b32 s{T1}, s{TJ}, 17")
    A("s_waitcnt lgkmcnt(0)")
    A(f"s_lshl_b32 s{M0B}, s{W_}, 12\ns_mov_b32 s{ROT}, s{T4}")
    srd(A, RA, BX, T0, 0, 0x40000)
    A(f"s_bitcmp1_b32 s{W_}, 0\ns_cselect_b32 s{T2}, s{BIM}, s{BRE}\ns_cselect_b32 s{T3}, s{BIM+1}, s{BRE+1}")
    A(f"s_cselect_b32 s100, s{CIM}, s{CRE}\ns_cselect_b32 s101, s{CIM+1}, s{CRE+1}")
    srd(A, RB, T2, T1, 0, 0x20000)
    mark(A, 5)
    trace_init(A, 191)
    vm = VmCounter(A)

    def issue(k):
        slot = k % NS
        A(f"s_add_u32 m0, s{M0B}, {slot*32768}")
        if HALF:
            gs = 16//HALF
            A(f"s_add_u32 s{SOF}, s{ROT}, {k*128}\ns_and_b32 s{SOF}, s{SOF}, {gs*128 - 1}\ns_add_u32 s{SOF}, s{SOF}, {(k//gs)*gs*128}")
        else:
            A(f"s_add_u32 s{SOF}, s{ROT}, {k*128}\ns_and_b32 s{SOF}, s{SOF}, 0x7ff")
        for u in range(4 if "a" not in G1X else 1):
            vm.op(f"buffer_load_dwordx4 v{RV+u}, {r4(RA)}, s{SOF} offen offset:{u*1024}{NTX if k < NTK else ''} lds", ("st", k))
        A(f"s_add_u32 m0, s{M0B}, {slot*32768 + 16384}")
        for u in range(4 if "b" not in G1X else 1):
            vm.op(f"buffer_load_dwordx4 v{RV+4+u}, {r4(RB)}, s{SOF} offen offset:{u*1024}{NTX if k < NTK else ''} lds", ("st", k))
    issue(0)
    A(f"s_setprio {LPRIO0}")
    if TLBW:
        A(f"s_lshr_b32 s27, s2, 3\ns_lshl_b32 s27, s27, 2\ns_add_u32 s27, s27, s{W_}")
        for base, off, size in ((WS, WS_HT, 8 << 20), (WS, WS_Z1, 4 << 20), (WS, WS_WT, 4 << 20), (WS, WS_XB, 8 << 20), (OUT, 0, 16 << 20), (WS, 0, 1 << 20), (100, 0, 2 << 20)):
            share = size // 128
            A(f"s_mul_i32 s{SOF}, s27, {share}\ns_add_u32 s{SOF}, s{SOF}, {off}")
            for o in range(0, share, max(TLBW*1024, 1)):
                A(f"s_load_dword s3, {sp(base)}, s{SOF} offset:{o}")
    issued = 1
    if not NOAUX:
        aux_setup(A)
        Ltmp = Asm()
        aux_pre(Ltmp)
        ldef = Ltmp.lines
        if not LDEF:
            for l in ldef:
                A(l)
            ldef = []
    for k in range(-1, 16):
        if k >= 0:
            vm.wait_for(("st", k))
            trace(A, 191, 2*k)
            if k == 0 and E_("GM", 0):
                mark(A, 3)
            A("s_barrier")
            trace(A, 191, 2*k+1)
        if k in (0, 12):
            mark(A, 1 + k//4)
        while issued < min(16, k + LA + 1 + (k >= LASW)):
            issue(issued)
            issued += 1
        if not NOAUX:
            aux_hook(A, vm, k)
            if k == 0 and ldef:
                last = max(i for i, l in enumerate(ldef) if l.startswith("s_"))
                for _ in range(last + 1):
                    A(ldef.pop(0))
            elif k > 0 and k != WK + LA + 1:
                for _ in range(LDEF):
                    if ldef:
                        A(ldef.pop(0))
            if k == 13:
                assert not ldef, len(ldef)
        if KA and KA0 <= k <= KA1 and (NOAUX or k != WK + LA):
            if k == KA0:
                A(f"s_lshl_b32 s27, s2, 2\ns_add_u32 s27, s27, s{W_}\ns_lshr_b32 s27, s27, 1\ns_lshl_b32 s27, s27, 12")
            for n in range(KA):
                A(f"s_load_dword s3, s[100:101], s27 offset:{((k*KA + n)*128) % 4096}{' glc' if KAG else ''}")
        if CTOUCH == 4 and k == CTK:
            A(f"s_and_b32 s{SOF}, s2, 1\ns_lshl_b32 s{SOF}, s{SOF}, 10\ns_bfe_u32 s{CNT}, s2, 0x20001\ns_lshl_b32 s{CNT}, s{CNT}, 19\ns_add_u32 s{SOF}, s{SOF}, s{CNT}")
            A(f"s_lshr_b32 s{CNT}, s2, 3\ns_lshl_b32 s{CNT}, s{CNT}, 14\ns_add_u32 s{SOF}, s{SOF}, s{CNT}")
            A(f"s_lshr_b32 s{CNT}, s{W_}, 1\ns_lshl_b32 s{CNT}, s{CNT}, 13\ns_add_u32 s{SOF}, s{SOF}, s{CNT}")
            A(f"v_bfe_u32 v22, v1, 3, 2\nv_lshlrev_b32 v22, 11, v22\nv_and_b32 v23, 7, v1\nv_lshl_add_u32 v22, v23, 7, v22\nv_add_u32 v22, s{SOF}, v22")
            A("s_mov_b32 exec_hi, 0")
            vm.op(f"global_load_dword v23, v22, s[100:101]", "touch")
            A("s_mov_b64 exec, -1")
    assert issued == 16
    if NOAUX:
        A("s_barrier\ns_barrier")
    else:
        aux_rest(A, vm)
    trace(A, 191, 58)
    if TRACE:
        A("s_waitcnt vmcnt(0)")
    trace(A, 191, 59)
    trace_dump(A, 191, WAVE)
    stamp_end(A, kidx, WAVE)
    A("s_endpgm")


M16 = "v_mfma_f32_16x16x32_bf16"
XRW = 144
L_XC = 114688


def cpow(A, d, zr, zi, n, t):
    if isinstance(n, str):
        A(f"v_mul_f32 v{t}, {n}, v{zr}\nv_mul_f32 v{t+1}, {n}, v{zi}")
    else:
        A(f"v_mul_f32 v{t}, {fl(n)}, v{zr}\nv_mul_f32 v{t+1}, {fl(n)}, v{zi}")
    A(f"v_exp_f32 v{t}, v{t}\nv_rndne_f32 v{t+2}, v{t+1}\nv_sub_f32 v{t+1}, v{t+1}, v{t+2}")
    A(f"v_cos_f32 v{t+2}, v{t+1}\nv_sin_f32 v{t+1}, v{t+1}")
    A(f"v_mul_f32 v{d}, v{t}, v{t+2}\nv_mul_f32 v{d+1}, v{t}, v{t+1}")


def gemm_waves(A, name, kidx):
    U = lambda pg, c, idx: 64 + (pg*2 + c)*16 + 2*idx
    ACC = lambda mt, nt: 64 + ((nt & 1)*2 + (nt >> 1))*16 + 4*mt
    FR = lambda X, f: (32 if X == 0 else 144) + 4*f
    AD = lambda st, op, k2: 128 + st*4 + op*2 + k2
    LAM = lambda pg: 20 + 2*pg
    KC = lambda pg: 24 + 2*pg
    L8 = lambda pg: 176 + 2*pg
    L16 = lambda pg: 180 + 2*pg
    PP = lambda pg: 184 + 4*pg
    PW = lambda pg, idx: 208 + 16*pg + 2*idx
    Q16, Q64, Q128, Q256 = 28, 192, 30, 2
    WT_, WP = T8, T6
    A(f"s_lshr_b32 s{WT_}, s{WAVE}, 1\ns_and_b32 s{WP}, s{WAVE}, 1\ns_lshr_b32 s{PG}, s{TJ}, 3")
    A("v_and_b32 v6, 31, v1\nv_lshrrev_b32 v5, 5, v1\nv_lshlrev_b32 v11, 4, v1")
    A("v_bfe_u32 v4, v1, 2, 2\nv_lshlrev_b32 v4, 3, v4\nv_and_b32 v7, 3, v1\nv_add_u32 v4, v4, v7")
    A(f"s_lshl_b32 s{T0}, s{TJ}, 6\ns_lshl_b32 s{T1}, s{WP}, 5\ns_add_u32 s{T0}, s{T0}, s{T1}")
    A(f"v_add_u32 v4, s{T0}, v4\nv_lshlrev_b32 v7, 1, v4")
    A("s_waitcnt lgkmcnt(0)")
    for pg in range(2):
        A(f"global_load_ushort v{240+3*pg}, v7, {sp(LRE)} offset:{8*pg}\nglobal_load_ushort v{241+3*pg}, v7, {sp(LIM)} offset:{8*pg}\nglobal_load_ushort v{242+3*pg}, v7, {sp(LDT)} offset:{8*pg}")
    A("v_bfe_u32 v7, v1, 4, 1\nv_lshl_add_u32 v4, v7, 2, v4")
    nn = uid("nn")
    A(f"s_lshl_b32 s{T0}, s2, 3\ns_add_u32 s{T0}, s{T0}, s{WAVE}\ns_cmp_lg_u32 s{T0}, 1")
    A(f"s_cbranch_scc1 {nn}")
    A(f"s_load_dword s{T0}, {sp(WS)}, {WS_NONCE}")
    A(f"v_mov_b32 v16, 0\nv_lshlrev_b32 v17, 7, v1\nv_add_u32 v17, {WS_CNT}, v17")
    A(f"global_store_dword v17, v16, {sp(WS)} sc1")
    A("s_waitcnt vmcnt(0) lgkmcnt(0)")
    A(f"s_add_u32 s{T0}, s{T0}, 1\ns_cmp_eq_u32 s{T0}, 0\ns_cselect_b32 s{T0}, 1, s{T0}")
    A(f"v_mov_b32 v17, s{T0}")
    A(f"s_mov_b64 exec, 1\nglobal_store_dword v16, v17, {sp(DBG)} sc1")
    A(f"global_store_dword v16, v17, {sp(WS)} offset:{WS_NONCE}\ns_mov_b64 exec, -1")
    A.label(nn)
    if CODEPF:
        pf, pc = uid("pf"), uid("pc")
        A(f"s_cmp_lg_u32 s{WAVE}, 0")
        A(f"s_cbranch_scc1 {pf}")
        A(f"s_lshr_b32 s{T0}, s2, 3\ns_lshl_b32 s{T0}, s{T0}, 11\nv_and_b32 v12, 15, v1\nv_lshl_add_u32 v12, v12, 7, s{T0}")
        A(f"v_min_u32 v12, L_{name}_end-{name}, v12")
        A(f"s_getpc_b64 {sp(T0)}")
        A.label(pc)
        A(f"s_sub_u32 s{T0}, s{T0}, {pc}-{name}\ns_subb_u32 s{T1}, s{T1}, 0")
        A(f"global_load_dword v247, v12, {sp(T0)}")
        A.label(pf)
    A("v_bfe_u32 v7, v6, 1, 3\nv_xor_b32 v7, v7, v5\nv_lshlrev_b32 v7, 4, v7\nv_lshl_add_u32 v7, v6, 7, v7")
    A("v_and_b32 v8, 15, v1\nv_lshrrev_b32 v9, 4, v1")
    A("v_lshrrev_b32 v12, 1, v8\nv_xor_b32 v12, v12, v9\nv_lshlrev_b32 v12, 4, v12\nv_lshl_add_u32 v12, v8, 7, v12")
    A(f"s_lshl_b32 s{T0}, s{WT_}, 13\ns_lshl_b32 s{T1}, s{WP}, 13\ns_add_u32 s{T1}, s{T1}, 16384")
    for k2 in range(2):
        A(f"v_xor_b32 v13, {k2 << 6}, v12")
        A(f"v_add_u32 v{AD(0,0,k2)}, s{T0}, v13\nv_add_u32 v{AD(0,1,k2)}, s{T1}, v13")
        A(f"v_add_u32 v{AD(1,0,k2)}, 0x10000, v{AD(0,0,k2)}\nv_add_u32 v{AD(1,1,k2)}, 0x10000, v{AD(0,1,k2)}")
    A("v_mov_b64 v[64:65], 0\nv_mov_b64 v[66:67], 0")
    A(f"s_mul_i32 s{T0}, s{WAVE}, {16*XRW}\ns_add_u32 s{T0}, s{T0}, {L_XC}\nv_add_u32 v13, s{T0}, v11\nv_mov_b32 v12, {L_SYNC}")
    A("ds_write_b128 v13, v[64:67]\nds_write_b128 v13, v[64:67] offset:1024\nds_write_b128 v13, v[64:67] offset:2048")
    A("s_mov_b64 exec, 1\nds_write_b128 v12, v[64:67]\nds_write_b128 v12, v[64:67] offset:16\ns_mov_b64 exec, -1")
    A(f"s_lshl_b32 s{T0}, s{WAVE}, 2\nv_add_u32 v13, s{T0}, v12")
    Areal, A = A, Asm()
    A("v_lshlrev_b32 v14, 2, v9\nv_sub_u32 v14, v8, v14\nv_mov_b32 v15, 0x3f80\nv_mov_b32 v16, 1.0")
    for c in range(4):
        A(f"v_cmp_eq_u32 vcc, {c}, v14\nv_cndmask_b32 v{248+c}, 0, v15, vcc\nv_cndmask_b32 v{252+c}, 0, v16, vcc")
    srd(A, S0, WS, None, WS_EG, 0x40000)
    srd(A, S1, WS, None, WS_HT, 64*TBS)
    A(f"s_mul_i32 s{T0}, s{WP}, {32*XRW}\ns_add_u32 s{T0}, s{T0}, {L_XC + 64}\ns_lshl_b32 s{T1}, s{WT_}, 5\ns_add_u32 s{T1}, s{T1}, s{T0}")
    A(f"v_mul_u32_u24 v14, {XRW}, v6\nv_add_u32 v14, s{T0}, v14\nv_lshl_add_u32 v14, v5, 5, v14")
    A(f"v_mul_u32_u24 v15, {XRW}, v8\nv_add_u32 v15, s{T1}, v15\nv_lshl_add_u32 v15, v9, 3, v15")
    A(f"s_lshl_b32 s{T0}, s{TI}, 14\nv_lshl_add_u32 v16, v4, 4, s{T0}")
    A("v_mov_b32 v17, 0x40000000\nv_lshlrev_b32 v10, 14, v5\nv_sub_u32 v10, v16, v10")
    LA_, LX = 194, 200
    for u in range(8):
        A(f"v_subrev_u32 v{136+u}, {16384 + u*32768}, v10\nv_cmp_le_i32 vcc, 0, v{136+u}\nv_cndmask_b32 v{136+u}, v17, v{136+u}, vcc")
    A("v_lshlrev_b32 v17, 30, v5\nv_or_b32 v16, v16, v17")
    A(f"s_lshl_b32 s{T0}, s{TI}, 11\ns_add_u32 s{T0}, s{T0}, {FLG_X}\ns_lshl_b32 s{T1}, s{TJ}, 7\ns_add_u32 s{T1}, s{T1}, s{T0}\nv_mov_b32 v195, s{T1}")
    A(f"s_lshl_b32 s{T1}, s{PG}, 10\ns_add_u32 s{T0}, s{T0}, s{T1}\nv_and_b32 v196, 7, v1\nv_lshl_add_u32 v196, v196, 7, s{T0}")
    A(f"s_lshl_b32 s{T0}, s{TI}, 1\ns_add_u32 s{T0}, s{T0}, s{WT_}\ns_lshl_b32 s{T0}, s{T0}, 12\ns_add_u32 s{T0}, s{T0}, {FLG_H}")
    A(f"s_lshl_b32 s{T1}, s{PG}, 11\ns_add_u32 s{T1}, s{T1}, s{T0}\nv_lshl_add_u32 v18, v8, 7, s{T1}")
    A(f"s_lshl_b32 s{T1}, s{TJ}, 8\ns_add_u32 s{T0}, s{T0}, s{T1}\ns_lshl_b32 s{T1}, s{WP}, 7\ns_add_u32 s{T0}, s{T0}, s{T1}\nv_mov_b32 v19, s{T0}")
    A("v_lshrrev_b32 v10, 1, v9\nv_lshlrev_b32 v10, 10, v10\nv_and_b32 v17, 1, v9\nv_lshl_add_u32 v10, v17, 9, v10\nv_lshl_add_u32 v10, v8, 4, v10")
    A(f"s_lshl_b32 s{T0}, s{WT_}, 2\nv_add_u32 v9, s{T0}, v9\nv_cvt_f32_u32 v9, v9\nv_mul_f32 v9, 0x41800000, v9\nv_add_f32 v8, 0x41000000, v9")
    A("s_waitcnt vmcnt(0)")
    ZR, ZI = 204, 206
    for pg in range(2):
        lr, li, dt, t = 240+3*pg, 241+3*pg, 242+3*pg, 197
        A(f"v_lshlrev_b32 v{lr}, 16, v{lr}\nv_lshlrev_b32 v{li}, 16, v{li}\nv_lshlrev_b32 v{dt}, 16, v{dt}")
        A(f"v_mul_f32 v{dt}, 0x3fb8aa3b, v{dt}\nv_exp_f32 v{dt}, v{dt}")
        A(f"v_cvt_pk_bf16_f32 v{dt}, v{dt}, v{dt}\nv_lshlrev_b32 v{dt}, 16, v{dt}")
        A(f"v_mul_f32 v{ZR+pg}, v{dt}, v{lr}\nv_mul_f32 v{ZI+pg}, v{dt}, v{li}")
        A(f"v_mul_f32 v{ZR+pg}, 0x3fb8aa3b, v{ZR+pg}\nv_mul_f32 v{ZI+pg}, 0.15915494, v{ZI+pg}")
        cpow(A, LAM(pg), ZR+pg, ZI+pg, 1.0, t)
        A(f"v_add_f32 v{t}, -1.0, v{LAM(pg)}")
        A(f"v_mul_f32 v{t+1}, v{lr}, v{lr}\nv_fma_f32 v{t+1}, v{li}, v{li}, v{t+1}\nv_rcp_f32 v{t+1}, v{t+1}")
        A(f"v_add_f32 v{t+1}, v{t+1}, v{t+1}")
        A(f"v_mul_f32 v{t+2}, v{t}, v{lr}\nv_fma_f32 v{t+2}, v{LAM(pg)+1}, v{li}, v{t+2}\nv_mul_f32 v{KC(pg)}, v{t+2}, v{t+1}")
        A(f"v_mul_f32 v{t+2}, v{LAM(pg)+1}, v{lr}\nv_fma_f32 v{t+2}, -v{t}, v{li}, v{t+2}\nv_mul_f32 v{KC(pg)+1}, v{t+2}, v{t+1}")
        cpow(A, L8(pg), ZR+pg, ZI+pg, 8.0, t)
        cpow(A, L16(pg), ZR+pg, ZI+pg, 16.0, t)
        for e in range(2):
            cpow(A, 200, ZR+pg, ZI+pg, f"v{9-e}", t)
            A(f"v_mov_b32 v{PP(pg)+e}, v200\nv_mov_b32 v{PP(pg)+2+e}, v201")
        for idx in range(8):
            sr, si = (KC(pg), KC(pg)+1) if idx == 0 else (PW(pg, idx-1), PW(pg, idx-1)+1)
            A(f"v_mul_f32 v{t}, v{si}, v{LAM(pg)+1}\nv_mul_f32 v{t+1}, v{si}, v{LAM(pg)}")
            A(f"v_fma_f32 v{PW(pg,idx)}, v{sr}, v{LAM(pg)}, -v{t}\nv_fma_f32 v{PW(pg,idx)+1}, v{sr}, v{LAM(pg)+1}, v{t+1}")
    A(f"v_and_b32 v197, 16, v1\nv_cmp_ne_u32 vcc, 0, v197\nv_cndmask_b32 v{ZR}, v{ZR}, v{ZR+1}, vcc\nv_cndmask_b32 v{ZI}, v{ZI}, v{ZI+1}, vcc")
    for d, n in ((Q16, 16.0), (Q64, 64.0), (Q128, 128.0), (Q256, 256.0)):
        cpow(A, d, ZR, ZI, n, 197)

    deferred, A = A.lines, Areal
    if not DEFER:
        for l in deferred:
            A(l)
        deferred = []
    order = [0, 4, 5, 6, 7, 1, 2, 3]
    need = {0: 2, 1: 3, 2: 4, 3: 5, 4: 6, 8: 7, 12: 8}

    def rd(k, k2, f):
        slot = k % NS
        st, off = slot >> 1, (slot & 1)*32768
        A(f"ds_read_b128 {v(FR(k2, f), 4)}, v{AD(st, f >> 2, k2)} offset:{off + (f & 3)*2048}")
    if E_("GM", 0):
        mark(A, 7)
    trace_init(A, 0)
    trace(A, 0, 0)
    A("s_waitcnt lgkmcnt(0)\ns_barrier")
    trace(A, 0, 1)
    for f in order:
        rd(0, 0, f)
    for k in range(16):
        for k2 in range(2):
            nk, nk2 = (k, 1) if k2 == 0 else (k+1, 0)
            have = nk < 16
            if k2 == 1:
                A("s_waitcnt lgkmcnt(0)\ns_barrier")
            if k == 13 and k2 == 0:
                assert not deferred, len(deferred)
                A(f"v_mov_b32 v8, 0\nglobal_load_dword v9, v8, {sp(DBG)} sc1")
            n = 0
            for m in range(16):
                if k2 == 0 and m in need:
                    A(f"s_waitcnt lgkmcnt({8 - need[m] + n})")
                mt, nt = m >> 2, m & 3
                if "m" not in G1X or k + k2 == 0:
                    A(f"{M16} {v(ACC(mt,nt),4)}, {v(FR(k2,mt),4)}, {v(FR(k2,4+nt),4)}, {'0' if k + k2 == 0 else v(ACC(mt,nt),4)}")
                if have and n < 8:
                    if "r" not in G1X:
                        rd(nk, nk2, order[n])
                    n += 1
                elif k >= 1:
                    for _ in range(DEFER):
                        if deferred:
                            A(deferred.pop(0))
            if k == 15 and k2 == 0:
                nl, ng = uid("n"), uid("ng")
                A.label(nl)
                A(f"s_waitcnt vmcnt(0)\nv_readfirstlane_b32 s{NONCE}, v9\ns_cmp_lg_u32 s{NONCE}, 0\ns_cbranch_scc1 {ng}")
                A(f"global_load_dword v9, v8, {sp(DBG)} sc1\ns_branch {nl}")
                A.label(ng)
                A(f"s_getreg_b32 s{T0}, hwreg(HW_REG_XCC_ID, 0, 4)\ns_lshl_b32 s{T1}, s{NONCE}, 4\ns_or_b32 s{LOCAL}, s{T0}, s{T1}")
                A(f"v_mov_b32 v194, s{LOCAL}\nv_mov_b32 v202, s{NONCE}\nv_mov_b32 v203, s{NONCE}")
    mark(A, 1)
    trace(A, 0, 2)
    bc_a = "op_sel_hi:[0,1,1]"
    bc_b = "op_sel:[1,0,0]"
    TT = 40
    for idx in range(1, 8):
        for half in range(2):
            for pg in range(2):
                L, t = v(LAM(pg), 2), TT + 4*pg
                pr, pi, ur, ui = (v(x, 2) for x in (U(pg, 0, idx-1), U(pg, 1, idx-1), U(pg, 0, idx), U(pg, 1, idx)))
                if half == 0:
                    A(f"v_pk_fma_f32 {v(t,2)}, {L}, {pr}, {ur} {bc_a}\nv_pk_fma_f32 {v(t+2,2)}, {L}, {pi}, {ui} {bc_a}")
                else:
                    A(f"v_pk_fma_f32 {ur}, {L}, {pi}, {v(t,2)} {bc_b} {N0}\nv_pk_fma_f32 {ui}, {L}, {pr}, {v(t+2,2)} {bc_b}")
    for pg in range(2):
        er, ei = U(pg, 0, 7), U(pg, 1, 7)
        horner(A, 32+2*pg, 33+2*pg, L8(pg), er, ei, er+1, ei+1, TT)
        A(f"ds_write_b64 v15, {v(32+2*pg,2)} offset:{16*XRW*pg}")
    trace(A, 0, 3)
    A("s_waitcnt lgkmcnt(0)\ns_barrier")
    trace(A, 0, 4)
    SG = 48
    A(f"ds_read_b128 {v(SG,4)}, v14\nds_read_b128 {v(SG+4,4)}, v14 offset:16")
    P = 200
    A("s_waitcnt lgkmcnt(1)")
    horner(A, 32, 33, Q16, SG, SG+1, SG+2, SG+3, TT)
    A("s_waitcnt lgkmcnt(0)")
    horner(A, 34, 35, Q16, 32, 33, SG+4, SG+5, TT)
    horner(A, 32, 33, Q16, 34, 35, SG+6, SG+7, TT)
    A("v_mov_b32 v34, v32\nv_mov_b32 v35, v33\nv_permlane32_swap_b32 v32, v34\nv_permlane32_swap_b32 v33, v35")
    horner(A, P, P+1, Q64, 32, 33, 34, 35, TT)
    np_ = uid("np")
    A(f"s_cmp_lg_u32 s{WT_}, 0")
    A(f"s_cbranch_scc1 {np_}")
    A(f"buffer_store_dwordx4 {v(P,4)}, v16, {r4(S0)}, 0 offen sc1")
    A(f"s_cmp_lg_u32 s{WP}, 0")
    A(f"s_cbranch_scc1 {np_}")
    A(f"s_mov_b64 exec, 1\nglobal_store_dword v195, v194, {sp(WS)} sc1\ns_mov_b64 exec, -1")
    A.label(np_)
    mark(A, 2)
    trace(A, 0, 5)
    A(f"global_load_dword v243, v18, {sp(WS)} sc1")
    LB = 144

    def lbloads():
        for u in range(8):
            A(f"buffer_load_dwordx4 {v(LB+4*u,4)}, v{136+u}, {r4(S0)}, 0 offen sc1")
        A(f"global_load_dword v197, v196, {sp(WS)} sc1")
    QS = 32
    A("v_add_u32 v15, -56, v15")
    for pg in range(2):
        for w in range(7):
            A(f"ds_read_b64 {v(QS+14*pg+2*w,2)}, v15 offset:{16*XRW*pg + 8*w}")
    QQ = lambda pg: 128 + 4*pg
    TQ = 60
    A("s_waitcnt lgkmcnt(0)")
    for pg in range(2):
        b = QS + 14*pg
        for w in range(1, 6):
            horner(A, b+2*w, b+2*w+1, L16(pg), b+2*w-2, b+2*w-1, b+2*w, b+2*w+1, TQ)
        horner(A, QQ(pg), QQ(pg)+2, L16(pg), b+10, b+11, b+12, b+13, TQ)
        horner(A, QQ(pg)+1, QQ(pg)+3, L8(pg), QQ(pg), QQ(pg)+2, U(pg, 0, 7), U(pg, 1, 7), TQ)
    trace(A, 0, 6)
    O = 32
    cnt = 0
    if LBAT == 0:
        lbloads()
    for idx in range(8):
        for pg in range(2):
            d0, d1, K_, o = v(U(pg, 0, idx), 2), v(U(pg, 1, idx), 2), v(KC(pg), 2), O + 4*pg
            A(f"v_pk_mul_f32 {v(o,2)}, {K_}, {d0} op_sel_hi:[0,1]")
            A(f"v_pk_mul_f32 {v(o+2,2)}, {K_}, {d1} op_sel_hi:[0,1] neg_lo:[1,0] neg_hi:[1,0]")
            A(f"v_pk_fma_f32 {v(o+2,2)}, {K_}, {d0}, {v(o+2,2)} {bc_b} {N0}")
            A(f"v_pk_fma_f32 {d0}, {K_}, {d1}, {v(o,2)} {bc_b} {N0}")
            A(f"v_mov_b64 {d1}, {v(o+2,2)}")
            cnt += 1
            if cnt == LBAT:
                lbloads()
    trace(A, 0, 7)
    A("v_mov_b32 v14, 1\ns_mov_b64 exec, 1\nds_write_b32 v13, v14\ns_mov_b64 exec, -1")
    M0B, RH, RCc, SH, SC = T7, T5, T4, T3, T2
    ACC2 = lambda nt: 32 + 16*nt
    CF = lambda X, nt: 96 + 16*X + 4*nt
    XR, CV = 128, 244
    HR = lambda s_: 148 + 4*(s_ % HD)
    L_OWN = 65536
    A(f"s_xor_b32 s{T0}, s{WT_}, s{PG}\ns_xor_b32 s{T0}, s{T0}, 1\ns_lshl_b32 s{T0}, s{T0}, 6\ns_add_u32 s{T0}, s{T0}, s{WP}")
    A(f"v_lshrrev_b32 v8, 3, v1\nv_lshl_add_u32 v8, v8, 1, s{T0}\nv_lshlrev_b32 v8, 11, v8")
    A("v_and_b32 v14, 7, v1\nv_lshrrev_b32 v15, 4, v1\nv_xor_b32 v14, v14, v15\nv_lshlrev_b32 v14, 4, v14\nv_xor_b32 v15, 64, v14")
    for u in range(4):
        A(f"v_add_u32 v{CV+u}, v8, v{14 + (u & 1)}")
        if u:
            A(f"v_add_u32 v{CV+u}, {u*(16*2048 - 1024)}, v{CV+u}")
    A(f"s_and_b32 s{RCc}, s{TJ}, 7\ns_lshl_b32 s{T0}, s{RCc}, 18\ns_lshl_b32 s{T1}, s{PG}, 10\ns_add_u32 s{T0}, s{T0}, s{T1}")
    srd(A, S2, CRE, T0, 0, 0x40000, T1)
    srd(A, S3, CIM, T0, 0, 0x40000, T1)
    A(f"s_lshl_b32 s{T1}, s{RCc}, 1\ns_add_u32 s{T1}, s{T1}, s{PG}\ns_lshl_b32 s{T1}, s{T1}, 7")
    A(f"s_lshl_b32 s{SH}, s{TI}, 1\ns_add_u32 s{SH}, s{SH}, s{WT_}\ns_lshl_b32 s{T0}, s{SH}, 17\ns_add_u32 s{T0}, s{T0}, s{T1}")
    srd(A, S4, BX, T0, 0, 0x20000, T1)
    A(f"s_add_u32 s{DSK}, s{DSK}, s{T1}\ns_addc_u32 s{DSK+1}, s{DSK+1}, 0")
    A(f"s_lshl_b32 s{T1}, s{T1}, 1\ns_add_u32 s{T1}, s{T1}, 4096\ns_lshl_b32 s{T0}, s{SH}, 19\ns_add_u32 s{T0}, s{T0}, s{T1}")
    A(f"s_add_u32 s{OUT}, s{OUT}, s{T0}\ns_addc_u32 s{OUT+1}, s{OUT+1}, 0\ns_sub_u32 s{LDT}, 0x80000, s{T1}")
    A(f"s_lshl_b32 s{M0B}, s{WAVE}, 12\ns_lshl_b32 s{RH}, s{RCc}, 13\ns_lshl_b32 s{RCc}, s{RCc}, 7")
    A(f"s_lshl_b32 s{T0}, s{WT_}, 14\ns_lshl_b32 s{T1}, s{WP}, 11\ns_add_u32 s{T0}, s{T0}, s{T1}\ns_add_u32 s{T0}, s{T0}, {L_OWN}\nv_add_u32 v16, s{T0}, v10")
    A(f"s_lshl_b32 s{T0}, s{WAVE}, 13\ns_add_u32 s{T0}, s{T0}, {L_OWN}\nv_add_u32 v17, s{T0}, v11")
    for ks in range(4):
        A(f"v_xor_b32 v{20+ks}, {ks << 5}, v7\nv_add_u32 v{24+ks}, 0x10000, v{20+ks}")
    HB = LIM
    A(f"s_mul_i32 s{HB}, s{SH}, {2*TBS}\ns_lshl_b32 s{T1}, s{TJ}, 13\ns_add_u32 s{HB}, s{HB}, s{T1}\ns_lshl_b32 s{T1}, s{WP}, 11\ns_add_u32 s{HB}, s{HB}, s{T1}")
    for u in range(8):
        A(f"v_cmp_gt_u32 vcc, 0x40000, v{136+u}\nv_cndmask_b32 v{40+u}, 0, v202, vcc")
    A(f"s_mov_b32 s{T9}, 0")
    trace(A, 0, 8)
    pl, pd = uid("poll"), uid("polled")
    A.label(pl)
    A("v_mov_b32 v8, 0")
    for u in range(8):
        A(f"s_waitcnt vmcnt({8-u})")
        A(f"v_bitop3_b32 v8, v8, v{LB+4*u+2}, v{40+u} bitop3:0xf6\nv_bitop3_b32 v8, v8, v{LB+4*u+3}, v{40+u} bitop3:0xf6")
    A("s_waitcnt vmcnt(0)\nv_xor_b32 v197, v194, v197\nv_lshrrev_b32 v9, 4, v197\nv_or_b32 v8, v8, v9\nv_cmp_ne_u32 vcc, 0, v8")
    A(f"s_cbranch_vccz {pd}")
    A(f"s_add_u32 s{T9}, s{T9}, 1\ns_cmp_ge_u32 s{T9}, {SPIN_MAX}")
    A(f"s_cbranch_scc1 {pd}")
    lbloads()
    A(f"s_branch {pl}")
    A.label(pd)
    A(f"v_cmp_ne_u32 vcc, 0, v197\ns_cmp_eq_u64 vcc, 0\ns_cselect_b32 s{LOCAL}, {0 if FORCE_REMOTE else 1}, 0")
    mark(A, 3)
    trace(A, 0, 9)
    if TRACE:
        A(f"v_writelane_b32 v0, s{T9}, 63")
    vm = VmCounter(A)

    R2 = 3

    def blk(n, d, own, sh):
        hack = E_("G2HACK", 0)
        if (hack & 1 and sh == 7) or (hack & 2 and sh == 13):
            A(f"s_add_u32 s{d}, s{own}, {(1 if sh == 13 else 0) << sh}")
        elif n == 0 or not G2R:
            A(f"s_add_u32 s{d}, s{own}, {n << sh}")
        else:
            A(f"s_add_u32 s{d}, s{R2}, {n - 1}\ns_cmp_ge_u32 s{d}, 7\ns_cselect_b32 s{CNT}, 7, 0\ns_sub_u32 s{d}, s{d}, s{CNT}")
            A(f"s_add_u32 s{d}, s{d}, 1\ns_lshl_b32 s{d}, s{d}, {sh}\ns_add_u32 s{d}, s{d}, s{own}")
        A(f"s_and_b32 s{d}, s{d}, {hex((8 << sh) - 1)}")
    if G2R:
        A(f"s_and_b32 s{R2}, s{TI}, 3\ns_mul_i32 s{R2}, s{R2}, {G2R}\ns_cmp_ge_u32 s{R2}, 7\ns_cselect_b32 s{CNT}, 7, 0\ns_sub_u32 s{R2}, s{R2}, s{CNT}")

    def cdma(g, us):
        for u in us:
            if u == 0:
                A(f"s_add_u32 m0, s{M0B}, {(g % R)*16384}")
                if g % 2 == 0:
                    blk(g >> 1, SC, RCc, 7)
            vm.op(f"buffer_load_dwordx4 v{CV+u}, {r4(S2 if g % 2 == 0 else S3)}, s{SC} offen offset:{u*1024}{NTC} lds", ("c", g))
    cdma(0, range(4))
    cdma(1, range(4))
    A("v_mov_b32 v14, 2\ns_mov_b64 exec, 1\nds_write_b32 v13, v14\ns_mov_b64 exec, -1")
    H0 = LB + 28
    cur = (H0, H0+1)
    for u in range(6, -1, -1):
        d = (48, 49) if cur[0] == H0 else (H0, H0+1)
        horner(A, d[0], d[1], Q256, cur[0], cur[1], LB+4*u, LB+4*u+1, TT)
        cur = d
    assert cur == (48, 49)
    A("v_mov_b32 v50, v48\nv_mov_b32 v51, v49\nv_permlane32_swap_b32 v48, v50\nv_permlane32_swap_b32 v49, v51")
    horner(A, 52, 53, Q128, 50, 51, 48, 49, TT)
    A("v_mov_b32 v54, v52\nv_mov_b32 v55, v53\nv_permlane16_swap_b32 v52, v54\nv_permlane16_swap_b32 v53, v55")
    trace(A, 0, 10)
    G = lambda pg: QQ(pg)
    for pg in range(2):
        Hh, gr, gi, pr, pi = v(52+2*pg, 2), v(G(pg), 2), v(G(pg)+2, 2), v(PP(pg), 2), v(PP(pg)+2, 2)
        A(f"v_pk_fma_f32 {gr}, {Hh}, {pr}, {gr} {bc_a}\nv_pk_fma_f32 {gi}, {Hh}, {pi}, {gi} {bc_a}")
        A(f"v_pk_fma_f32 {gr}, {Hh}, {pi}, {gr} {bc_b} {N0}\nv_pk_fma_f32 {gi}, {Hh}, {pr}, {gi} {bc_b}")
    PK = lambda pg, c, idx: 144 + (pg*2 + c)*8 + idx
    D = lambda c, X, pg: 32 + ((c*2 + X)*2 + pg)*4

    def fix(pg, idx):
        d0, d1, pw, gr, gi = v(U(pg, 0, idx), 2), v(U(pg, 1, idx), 2), v(PW(pg, idx), 2), v(G(pg), 2), v(G(pg)+2, 2)
        A(f"v_pk_fma_f32 {d0}, {pw}, {gr}, {d0} {bc_a}")
        A(f"v_pk_fma_f32 {d1}, {pw}, {gi}, {d1} {bc_a} {N0}")
        A(f"v_pk_fma_f32 {d0}, {pw}, {gi}, {d0} {bc_b} {N0}")
        A(f"v_pk_fma_f32 {d1}, {pw}, {gr}, {d1} {bc_b} {N0}")
        for c in range(2):
            A(f"v_cvt_pk_bf16_f32 v{PK(pg,c,idx)}, v{U(pg,c,idx)}, v{U(pg,c,idx)+1}")

    def tr(u):
        for c in range(2):
            for X in range(2):
                for pg in range(2):
                    A(f"{M16} {v(D(c,X,pg),4)}, {v(PK(pg,c,4*u),4)}, {v(248+4*X,4)}, 0")

    def st(u):
        for c in range(2):
            for X in range(2):
                q = 176 + 16*u + (c*2 + X)*4
                A(f"s_add_u32 s{T1}, s{HB}, {X*TBS + c*4096}")
                for jj in range(4):
                    A(f"v_cvt_pk_bf16_f32 v{q+jj}, v{D(c,X,0)+2*jj}, v{D(c,X,0)+2*jj+1}")
                vm.op(f"buffer_store_dwordx4 {v(q,4)}, v10, {r4(S1)}, s{T1} offen offset:{u*256} sc1", "hst")
                A(f"ds_write_b128 v16, {v(q,4)} offset:{X*8192 + c*4096 + u*256}")
    for u in range(2):
        for idx in range(4*u, 4*u + 4):
            for pg in range(2):
                fix(pg, idx)
            if u == 1 and idx == 5:
                st(0)
                trace(A, 0, 12)
        tr(u)
        if u == 0:
            trace(A, 0, 11)
    st(1)
    mark(A, 4)
    trace(A, 0, 13)
    NK = 64

    def arrive(val):
        A(f"v_mov_b32 v14, {val}")
        A("s_mov_b64 exec, 1\nds_write_b32 v13, v14\ns_mov_b64 exec, -1")

    def check(val, off=0, first=False):
        l, d = uid("ck"), uid("ckd")
        if first:
            A(f"ds_read_b128 v[8:11], v12 offset:{off}\ns_waitcnt lgkmcnt(0)")
        A.label(l)
        A("v_min3_u32 v15, v8, v9, v10\nv_min_u32 v15, v15, v11")
        A(f"v_readfirstlane_b32 s{T0}, v15")
        A(f"s_cmp_ge_u32 s{T0}, {val}")
        A(f"s_cbranch_scc1 {d}")
        A(f"ds_read_b128 v[8:11], v12 offset:{off}\ns_waitcnt lgkmcnt(0)")
        A(f"s_branch {l}")
        A.label(d)

    def hload(s_):
        if s_ % 8 == 0:
            blk(s_ >> 3, SH, RH, 13)
        elif s_ % 4 == 0:
            A(f"s_add_u32 s{SH}, s{SH}, 4096")
        vm.op(f"buffer_load_dwordx4 {v(HR(s_),4)}, v2, {r4(S0)}, s{SH} offen offset:{(s_ & 3)*1024} sc1", ("h", s_))

    def rd2(s_, nts):
        g, ks = s_ >> 2, s_ & 3
        slot = g % R
        base = 20 if slot < 4 else 24
        for nt in nts:
            A(f"ds_read_b128 {v(CF(s_ & 1, nt),4)}, v{base+ks} offset:{(slot & 3)*16384 + nt*4096}")

    def mf(s_, nt):
        c = "0" if s_ == 0 else v(ACC2(nt), 16)
        if E_("HACK16", 0) & 2:
            for z in range(2):
                d = ACC2(nt) + 8*(s_ & 1) + 4*z
                A(f"v_mfma_f32_16x16x32_bf16 {v(d,4)}, {v(HR(s_),4)}, {v(CF(s_ & 1, nt),4)}, {'0' if s_ < 2 else v(d,4)}")
        else:
            A(f"{MF} {v(ACC2(nt),16)}, {v(HR(s_),4)}, {v(CF(s_ & 1, nt),4)}, {c}")
    A("v_mov_b32 v2, v11")
    A(f"s_lshl_b32 s{T0}, s{TI}, 2\ns_add_u32 s{T0}, s{T0}, s{WAVE}\ns_mul_i32 s{T0}, s{T0}, {TBS}\ns_lshl_b32 s{T1}, s{PG}, 16\ns_add_u32 s{T0}, s{T0}, s{T1}")
    srd(A, S0, WS, T0, WS_HT, 0x10000)
    if not OWNFIRST and C23:
        cdma(2, range(4))
        cdma(3, range(4))
    A(f"s_waitcnt vmcnt({vm.wait_for(('c', 1), emit=False)}) lgkmcnt(0)")
    trace(A, 0, 14)
    arrive(3)
    check(3, first=True)
    trace(A, 0, 15)
    for s_ in range(8):
        A(f"ds_read_b128 {v(HR(s_),4)}, v17 offset:{s_*1024}")
    hn = [8]

    def pause():
        A(f"s_lshl_b32 s{T0}, s{WP}, 3\nv_lshl_add_u32 v17, v5, 4, s{T0}")
        A("v_lshlrev_b32 v28, 11, v17\nv_lshl_add_u32 v28, v6, 2, v28")
        A("v_lshlrev_b32 v29, 13, v17\nv_lshl_add_u32 v29, v6, 3, v29")
        A(f"v_lshlrev_b32 v30, 2, v6\nv_mov_b32 v15, s{NONCE}")
        a, b = uid("rs"), uid("rd")
        trace(A, 0, 16)
        vm.wait_for("hst")
        trace(A, 0, 17)
        A(f"s_mov_b64 exec, 1\ns_cmp_eq_u32 s{LOCAL}, 0\ns_cbranch_scc1 {a}")
        A(f"global_store_dword v19, v15, {sp(WS)}\ns_branch {b}")
        A.label(a)
        A(f"global_store_dword v19, v15, {sp(WS)} sc1")
        A.label(b)
        A("s_mov_b64 exec, -1")
        if not E_("GM", 0):
            mark(A, 5)
        check(4, first=True)
        if not NOAUX:
            check(LIMG_FREE, 16, first=True)
        if CTOUCH == 5:
            xtouch(1)
        if CTOUCH == 8:
            ctouch()
        for gg in range(4 if C23 else 2, CPOLL):
            cdma(gg, range(4))
        trace(A, 0, 18)
        wait_cnt(A, 18, 8, SLP_H)
        trace(A, 0, 19)
        vm.issued = []
        if not E_("GM", 0):
            mark(A, 6)
        if OWNFIRST:
            arrive(5)
        gg = max(4, CPOLL)
        while hn[0] < 8 + HPRE:
            hload(hn[0])
            hn[0] += 1
            if hn[0] % 4 == 0 and gg < CPRE:
                cdma(gg, range(4))
                gg += 1
        assert gg == CPRE
        if OWNFIRST:
            check(5, first=True)
        trace(A, 0, 20)
        rd2(8 if OWNFIRST else 0, range(4))

    def flag_store():
        a, b = uid("rs"), uid("rd")
        A(f"s_mov_b64 exec, 1\ns_cmp_eq_u32 s{LOCAL}, 0\ns_cbranch_scc1 {a}")
        A(f"global_store_dword v19, v15, {sp(WS)}\ns_branch {b}")
        A.label(a)
        vm.op(f"global_store_dword v19, v15, {sp(WS)} sc1", "flag")
        A.label(b)
        A("s_mov_b64 exec, -1")
    if HTAG:
        A("s_waitcnt lgkmcnt(0)")
        arrive(4)
        A(f"s_lshl_b32 s{T0}, s{WP}, 3\nv_lshl_add_u32 v17, v5, 4, s{T0}")
        A("v_lshlrev_b32 v28, 11, v17\nv_lshl_add_u32 v28, v6, 2, v28")
        A("v_lshlrev_b32 v29, 13, v17\nv_lshl_add_u32 v29, v6, 3, v29")
        A(f"v_lshlrev_b32 v30, 2, v6\nv_mov_b32 v15, s{NONCE}")
        if HTAG == 1:
            wl, wd = uid("hw"), uid("hwd")
            A(f"s_add_u32 s{T1}, s{RH}, 8192\ns_and_b32 s{T1}, s{T1}, 0xffff\ns_mov_b32 s{CNT}, 0\ns_waitcnt lgkmcnt(0)")
            A.label(wl)
            A(f"s_load_dwordx4 s[4:7], {sp(S0)}, s{T1} offset:{4096 + 1024 + 1008} glc\ns_load_dwordx4 s[8:11], {sp(S0)}, s{T1} offset:{4096 + 3072 + 1008} glc")
            A(f"s_add_u32 s{CNT}, s{CNT}, 1\ns_waitcnt lgkmcnt(0)")
            for q in range(2):
                A(f"s_xor_b64 s[{4+2*q}:{5+2*q}], s[{4+2*q}:{5+2*q}], s[{HT_+2*q}:{HT_+2*q+1}]\ns_xor_b64 s[{8+2*q}:{9+2*q}], s[{8+2*q}:{9+2*q}], s[{HT_+2*q}:{HT_+2*q+1}]")
            A("s_or_b64 s[4:5], s[4:5], s[6:7]\ns_or_b64 s[8:9], s[8:9], s[10:11]\ns_or_b64 s[4:5], s[4:5], s[8:9]\ns_or_b32 s4, s4, s5\ns_and_b32 s4, s4, 0x10001")
            A(f"s_cbranch_scc0 {wd}\ns_cmp_lt_u32 s{CNT}, {SPIN_MAX}\ns_cbranch_scc1 {wl}")
            A.label(wd)
        if HTAG == 3:
            vm.wait_for('hst')
            flag_store()
        if HTAG == 2 and HDLY:
            A(f"s_waitcnt vmcnt({vm.wait_for('hst', emit=False) + HDLY})")
        mark(A, 6)
        for s_ in range(8, 16):
            hload(s_)
        hn[0] = 16
        if HTAG != 3:
            vm.wait_for("hst")
            flag_store()
        if not E_("GM", 0):
            mark(A, 5)
        check(4, first=True)
        if not NOAUX:
            check(LIMG_FREE, 16, first=True)
        for gg in range(4, CPOLL):
            cdma(gg, range(4))
        rd2(0, range(4))
    elif OWNFIRST:
        rd2(0, range(4))
        A("s_waitcnt lgkmcnt(4)")
        arrive(4)
    else:
        A("s_waitcnt lgkmcnt(0)")
        arrive(4)
        pause()
    have_c = lambda g: any(t == ("c", g) for t in vm.issued)
    for s_ in range(NK):
        g, ks = s_ >> 2, s_ & 3
        nxt = s_ + 1
        more = nxt < NK and not (nxt == 8 and OWNFIRST)
        ws = []
        if s_ >= 8:
            ws.append(vm.wait_for(("h", s_), emit=False))
        arr = (s_ + 4) % 8 == 0 and s_ + 4 < NK and (s_ >= 8 or not OWNFIRST)
        if arr:
            gl = ((s_ + 4) >> 2) + 1
            if have_c(gl):
                ws.append(vm.wait_for(("c", gl), emit=False))
        wv = f"vmcnt({min(ws)}) " if ws else ""
        newgrp = more and nxt % 8 == 0
        full = newgrp or not more or s_ == 0
        nc = 2 if s_ >= NK - NDEF else 4
        nn = (2 if nxt >= NK - NDEF else 4) if more else 0
        if full:
            A(f"s_waitcnt {wv}lgkmcnt(0)")
            if newgrp:
                check((nxt >> 3) + 4)
                trace(A, 0, 20 + (nxt >> 3))
                if nxt == 32 and not E_('GM', 0):
                    mark(A, 7)
        else:
            A(f"s_waitcnt {wv}lgkmcnt({nc-1})")
        extra = 0
        if arr:
            arrive(((s_ + 4) >> 3) + 4)
            extra = 1
        issued_n = 0
        for nt in range(nc):
            if nt and not full:
                A(f"s_waitcnt lgkmcnt({nc - 1 - nt + extra + issued_n})")
            mf(s_, nt)
            if nt < 2 and issued_n < nn and (nt == 0 or nn == 4):
                rd2(nxt, [issued_n, issued_n + 1])
                issued_n += 2
            if nt == nc - 2:
                if s_ < 8 and OWNFIRST:
                    if C23:
                        cdma(2 + g, [ks])
                elif CPRE <= g + CD < NK//4:
                    cdma(g + CD, [ks])
        assert issued_n == nn
        if HTAG:
            if s_ < 4*(CPRE - CPOLL):
                cdma(CPOLL + g, [ks])
            if s_ == 6:
                tl, td = uid("ht"), uid("htd")
                A(f"s_mov_b32 s{CNT}, 0")
                vm.wait_for(("h", 15))
                A.label(tl)
                A("v_mov_b32 v4, 0")
                for r in range(32):
                    A(f"v_bitop3_b32 v4, v4, v{HR(8)+r}, s{HT_+(r & 3)} bitop3:0xf6")
                A(f"v_and_b32 v4, 0x10001, v4\nv_cmp_ne_u32 vcc, 0, v4\ns_cbranch_vccz {td}")
                A(f"s_add_u32 s{CNT}, s{CNT}, 1\ns_cmp_ge_u32 s{CNT}, {SPIN_MAX}\ns_cbranch_scc1 {td}")
                keep = list(vm.issued)
                for s2_ in range(8, 16):
                    hload(s2_)
                vm.issued = keep
                A(f"s_waitcnt vmcnt(0)\ns_branch {tl}")
                A.label(td)
                if STAMP == 1:
                    A(f"s_add_u32 s72, s70, s{CNT}")
            if s_ == HFI:
                vm.op(f"global_load_dword v16, v18, {sp(WS)} sc1", "fp")
            if s_ == HFC:
                fd = uid("hf")
                vm.wait_for("fp")
                A(f"v_cmp_ne_u32 vcc, s{NONCE}, v16\ns_cbranch_vccz {fd}")
                wait_cnt(A, 18, 16, 1)
                A.label(fd)
        if (s_ >= (HFC if HTAG else 8) or not (OWNFIRST or HTAG)) and hn[0] < NK:
            for _ in range(3 if HTAG else 2):
                if hn[0] < NK and hn[0] <= s_ + HD:
                    hload(hn[0])
                    hn[0] += 1
        if (s_ + 2) % 8 == 0 and s_ + 2 < NK and (s_ >= 8 or not OWNFIRST):
            A("ds_read_b128 v[8:11], v12")
        if s_ == NK - 18:
            vm.op(f"global_load_dword v31, v30, {sp(DSK)}", "dsk")
        if NK - 17 <= s_ < NK - 1:
            e = s_ - (NK - 17)
            q, r = e >> 2, e & 3
            A(f"s_mov_b32 s{T0}, {(32*(q & 1) + 4*(q >> 1) + (r & 2))*2048}")
            vm.op(f"buffer_load_dword v{XR+e}, v28, {r4(S4)}, s{T0} offen offset:{(r & 1)*2048}", ("x", e))
        if s_ == 7 and OWNFIRST:
            pause()
    mark(A, 8)
    trace(A, 0, 28)
    TG = T0
    A(f"s_mul_i32 s{TG}, s{NONCE}, 0x9e3779b1\ns_and_b32 s{TG}, s{TG}, 0xbfff0000\ns_or_b32 s{TG}, s{TG}, 0x20000000")
    A(f"s_sub_u32 s{T1}, s{NONCE}, 1\ns_xor_b32 s{T1}, s{T1}, s{TG}\ns_cmp_lt_u32 s{T1}, 0x10000\ns_cselect_b32 s{T1}, 0x10000, 0\ns_xor_b32 s{TG}, s{TG}, s{T1}")
    if INOUT:
        A(f"s_lshl_b32 s{T4}, s{PG}, 9\ns_sub_i32 s{T4}, 256, s{T4}\ns_ashr_i32 s{T5}, s{T4}, 31")
        A(f"s_add_u32 s{S2}, s{OUT}, s{T4}\ns_addc_u32 s{S2+1}, s{OUT+1}, s{T5}\ns_sub_u32 s{S2+2}, s{LDT}, s{T4}\ns_mov_b32 s{S2+3}, 0x20000")
        A(f"s_mov_b32 s{S3}, s{OUT}\ns_mov_b32 s{S3+1}, s{OUT+1}\ns_mov_b32 s{S3+2}, s{LDT}\ns_mov_b32 s{S3+3}, 0x20000")
        A(f"s_lshl_b32 s{T4}, s{WP}, 16\nv_lshrrev_b32 v3, 4, v1\nv_lshlrev_b32 v3, 13, v3\nv_and_b32 v4, 15, v1\nv_lshl_add_u32 v3, v4, 4, v3\nv_add_u32 v3, s{T4}, v3")
        xad = lambda gq: (f"s_mov_b32 s{T4}, {(16*(gq >> 1) + 4*(gq & 1))*8192}\n", f"v3, SRD, s{T4} offen")
    else:
        A(f"s_lshl_b32 s{T4}, s{TI}, 4\ns_add_u32 s{T4}, s{T4}, s{TJ}\ns_lshl_b32 s{T4}, s{T4}, 2\ns_add_u32 s{T4}, s{T4}, s{WAVE}\ns_lshl_b32 s{T4}, s{T4}, 13")
        srd(A, S2, WS, T4, WS_XB, 0x2000)
        A(f"s_xor_b32 s{T4}, s{T4}, {8 << 15}")
        srd(A, S3, WS, T4, WS_XB, 0x2000)
        A(f"s_movk_i32 s{T4}, 0x1000")
        xad = lambda gq: ("", f"v2, SRD, {'0' if gq < 4 else f's{T4}'} offen offset:{(gq & 3)*1024}")
    val = lambda n: ACC2(n & 1) + (n >> 1)
    TXR, RX = [96, 100, 244, 248, 252], 180
    for gq in range(5):
        for c in range(4):
            n = 7*gq + 2*c
            lo = f"v{val(min(n, 31))}"
            hi = f"s{TG}" if c == 3 else f"v{val(min(n+1, 31))}"
            A(f"v_cvt_pk_bf16_f32 v{TXR[gq]+c}, {lo}, {hi}")
        A(f"{xad(gq)[0]}buffer_store_dwordx4 {v(TXR[gq],4)}, {xad(gq)[1].replace('SRD', r4(S2))} sc1")

    def rx():
        for gq in range(5):
            A(f"{xad(gq)[0]}buffer_load_dwordx4 {v(RX+4*gq,4)}, {xad(gq)[1].replace('SRD', r4(S3))} sc1")
    if NDEF:
        rd2(NK - NDEF, [2, 3])
        for s_ in range(NK - NDEF, NK):
            if s_ + 1 < NK:
                rd2(s_ + 1, [2, 3])
                A("s_waitcnt lgkmcnt(2)")
            else:
                A("s_waitcnt lgkmcnt(0)")
            mf(s_, 2)
            mf(s_, 3)
    trace(A, 0, 29)
    if E_("XM", 0):
        mark(A, 3)
    A("s_waitcnt vmcnt(5)")
    if E_("XM", 0):
        mark(A, 5)
    trace(A, 0, 30)
    A("v_lshlrev_b32 v8, 16, v31\nv_and_b32 v9, 0xffff0000, v31")
    YO = lambda e: 148 + 2*e
    for e in range(16):
        t = YO(e)
        A(f"v_lshlrev_b32 v{t}, 16, v{XR+e}\nv_and_b32 v{t+1}, 0xffff0000, v{XR+e}")
        A(f"v_pk_mul_f32 {v(t,2)}, {v(t,2)}, v[8:9]")
        A(f"v_cvt_pk_bf16_f32 v10, v{t}, v{t+1}")
        A(f"v_lshlrev_b32 v{t}, 16, v10\nv_and_b32 v{t+1}, 0xffff0000, v10")
        A(f"v_add_f32 v{t}, v{t}, v{ACC2(2)+e}\nv_add_f32 v{t+1}, v{t+1}, v{ACC2(3)+e}")
    A(f"s_mov_b32 s{S1}, s{OUT}\ns_mov_b32 s{S1+1}, s{OUT+1}\ns_mov_b32 s{S1+2}, s{LDT}\ns_mov_b32 s{S1+3}, 0x20000")
    xl, xd = uid("xl"), uid("xd")
    A(f"s_mov_b32 s{CNT}, 0")
    if XPOLL:
        assert not INOUT
        wl, wd = uid("xw"), uid("xwd")
        A.label(wl)
        A(f"s_load_dword s{T1}, {sp(S3)}, {0x1000 + 63*16 + 12} glc\ns_add_u32 s{CNT}, s{CNT}, 1\ns_waitcnt lgkmcnt(0)")
        A(f"s_xor_b32 s{T1}, s{T1}, s{TG}\ns_cmp_lt_u32 s{T1}, 0x10000\ns_cbranch_scc1 {wd}")
        A(f"s_cmp_lt_u32 s{CNT}, {SPIN_MAX}\ns_cbranch_scc1 {wl}")
        A.label(wd)
        A(f"s_mov_b32 s{CNT}, 0")
    trace(A, 0, 31)
    if XPOLL != 2:
        A(f"s_waitcnt vmcnt({E_('XW', 0)})")
    if E_("XM", 0):
        mark(A, 6)
    rx()
    A.label(xl)
    A("v_mov_b32 v10, 0")
    for gq in range(5):
        A(f"s_waitcnt vmcnt({4-gq})")
        A(f"v_bitop3_b32 v10, v10, v{RX+4*gq+3}, s{TG} bitop3:0xf6")
    A("v_cmp_lt_u32 vcc, 0xffff, v10")
    A(f"s_cbranch_vccz {xd}")
    A(f"s_add_u32 s{CNT}, s{CNT}, 1\ns_cmp_ge_u32 s{CNT}, {SPIN_MAX}")
    A(f"s_cbranch_scc1 {xd}")
    rx()
    A(f"s_branch {xl}")
    A.label(xd)
    trace(A, 0, 32)
    if STAMP:
        A(f"s_add_u32 s74, s70, s{CNT}\ns_lshl_b32 s{CNT}, s{LOCAL}, 8\ns_add_u32 s74, s74, s{CNT}")
        mark(A, 4)
    for e in range(16):
        q, r = e >> 2, e & 3
        t = YO(e)
        for nt in range(2):
            n = 2*e + nt
            src = RX + 4*(n // 7) + (n % 7)//2
            if (n % 7) % 2 == 0:
                A(f"v_lshlrev_b32 v{10+nt}, 16, v{src}")
            else:
                A(f"v_and_b32 v{10+nt}, 0xffff0000, v{src}")
        A(f"v_pk_add_f32 {v(t,2)}, {v(t,2)}, v[10:11]")
        A(f"s_mov_b32 s{T4}, {(32*(q & 1) + 4*(q >> 1) + r)*8192}")
        A(f"buffer_store_dwordx2 {v(t,2)}, v29, {r4(S1)}, s{T4} offen{OSTB}")
    trace(A, 0, 33)
    if TRACE:
        A("s_waitcnt vmcnt(0)")
    trace(A, 0, 34)
    trace_dump(A, 0, WAVE, 1)
    stamp_end(A, kidx, WAVE)


def gen_fused(A, name, kidx):
    KNAME_[0] = name
    A(f".globl {name}\n.p2align 8\n.type {name},@function")
    A.label(name)
    A("s_cmp_ge_u32 s2, 256")
    A(f"s_cbranch_scc1 L_{name}_end")
    A("s_load_dwordx16 s[4:19], s[0:1], 0")
    A("s_load_dwordx8 s[20:27], s[0:1], 64")
    A("s_load_dwordx4 s[28:31], s[0:1], 96")
    A("s_load_dwordx2 s[32:33], s[0:1], 112")
    stamp_begin(A)
    A("v_lshrrev_b32 v2, 6, v0\nv_and_b32 v1, 63, v0")
    A(f"v_readfirstlane_b32 s{WAVE}, v2")
    A(f"s_and_b32 s{T0}, s2, 7\ns_lshr_b32 s{T1}, s2, 3")
    A(f"s_lshr_b32 s{TI}, s{T0}, 1\ns_lshl_b32 s{TI}, s{TI}, 2\ns_lshr_b32 s{T2}, s{T1}, 3\ns_add_u32 s{TI}, s{TI}, s{T2}")
    A(f"s_and_b32 s{TJ}, s{T0}, 1\ns_lshl_b32 s{TJ}, s{TJ}, 3\ns_and_b32 s{T2}, s{T1}, 7\ns_add_u32 s{TJ}, s{TJ}, s{T2}")
    A(f"s_cmp_ge_u32 s{WAVE}, 4")
    A(f"s_cbranch_scc0 L_{name}_gemm")
    loader(A, name, kidx)
    A.label(f"L_{name}_gemm")
    gemm_waves(A, name, kidx)
    A.label(f"L_{name}_end")
    A("s_endpgm")
    return kdesc(name, 256)
```

```python
import os
from asmlib import *
from common import *

E_ = lambda k, d: int(os.environ.get(k, str(d)))
XO, NP, RI, RJ = E_("XO", 0), E_("NP", 1), E_("RI", 1), E_("RJ", 1)
XO2, NP2 = E_("XO2", 2), E_("NP2", 1)
PRO = E_("PRO", 2)
HD = E_("HD", 24)
CD = E_("CD", 4)
NOAUX = E_("NOAUX", 0)
CODEPF = E_("CODEPF", 1)
NS = E_('NS', 3)
LASW = E_('LASW', 99)
R = 7
LA = E_('LA', 2)
FORCE_REMOTE = E_('FORCE_REMOTE', 0)
MF = "v_mfma_f32_32x32x16_bf16"
N0 = "neg_lo:[1,0,0] neg_hi:[1,0,0]"

AX, WR, WI, BX, LRE, LIM, BRE, BIM, CRE, CIM, LDT, DSK, OUT, DBG, WS = 4, 6, 8, 10, 12, 14, 16, 18, 20, 22, 24, 26, 28, 30, 32
WAVE, TI, TJ, NONCE, TBL = 34, 35, 36, 37, 38
S0, S1, S2, S3, S4 = 40, 44, 48, 52, 56
T0, T1, T2, T3, T4, T5, T6, T7, T8, T9 = range(60, 70)
MSK, CNT, LOCAL, PG = 90, 92, 100, 101
L_XCH = 122880
L_SYNC = 126976
L_AX = 131072
L_W = 147456
WS_CNT = 0x1000
CNT_A, CNT_B, CNT_W = WS_CNT, WS_CNT + 16*128, WS_CNT + 32*128
FLG_A, FLG_B, FLG_W = 0x84000, 0x86000, 0x88000
FLG_X = 0x8000
FLG_H = 0x60000
CPRO1 = E_("CPRO1", 2)
CPRO2 = E_("CPRO2", 2)
CTOUCH = E_("CTOUCH", 4)
TBS = 131072 + E_("TBPAD", 0)
FTOUCH = E_("FTOUCH", 1)
XTOUCH = E_("XTOUCH", 0)
NREP = E_("NREP", 32)
NDEF = E_("NDEF", 12)
HTAG = 0
HDLY = E_("HDLY", 0)
HFI, HFC = E_("HFI", 7), E_("HFC", 10)
XPOLL = E_("XPOLL", 2)
OWNFIRST = E_("OWNFIRST", 1) and not HTAG
C01, C23 = E_("C01", 1), E_("C23", 1)
INOUT = E_("INOUT", 0)
KS_ = 32768 if INOUT else 8192
ISH = 16384 if INOUT else 4096
CTK, CPOLL, CPRE, HPRE = E_("CTK", 13), E_("CPOLL", 6), E_("CPRE", 7), E_("HPRE", 8)
HLOC, HLK = E_("HLOC", 0), E_("HLK", 13)
LBAT = E_("LBAT", 16)
XBF = E_("XBF", 1)
SLP_H, SLP_A = E_("SLP_H", 4), E_("SLP_A", 10)
NT = " nt" if E_("NT", 1) else ""
NTX = " nt"
OST = {0: "", 1: " nt", 2: " sc1", 3: " sc1 nt", 4: " sc0 sc1 nt", 5: " sc0 nt"}[E_("OST", 1)]
NTK = E_("NTK", 0)
OSTB = {0: "", 1: " nt", 2: " sc1", 3: " sc1 nt", 4: " sc0 sc1 nt", 5: " sc0 nt"}[E_("OSTB", 1)]
NTC = " nt" if E_("NTC", 0) else ""


def sp(a):
    return f"s[{a}:{a+1}]"


def srd(A, d, base, soff=None, const=0, size=None, size_s=None):
    if soff is None and const == 0:
        A(f"s_mov_b32 s{d}, s{base}\ns_mov_b32 s{d+1}, s{base+1}")
    else:
        if soff is not None and const:
            A(f"s_add_u32 s{d+2}, s{soff}, {const}")
            o = f"s{d+2}"
        elif soff is not None:
            o = f"s{soff}"
        else:
            o = str(const)
        A(f"s_add_u32 s{d}, s{base}, {o}\ns_addc_u32 s{d+1}, s{base+1}, 0")
    if size_s is not None:
        A(f"s_sub_u32 s{d+2}, {size}, s{size_s}")
    else:
        A(f"s_mov_b32 s{d+2}, {size}")
    A(f"s_mov_b32 s{d+3}, 0x20000")


def r4(d):
    return f"s[{d}:{d+3}]"


_u = [0]


def uid(p):
    _u[0] += 1
    return f"L_{p}{_u[0]}"


def get_nonce(A, vt):
    l, d = uid("n"), uid("nd")
    A(f"v_mov_b32 v{vt}, 0")
    A.label(l)
    A(f"global_load_dword v{vt+1}, v{vt}, {sp(DBG)} sc1")
    A("s_waitcnt vmcnt(0)")
    A(f"v_readfirstlane_b32 s{NONCE}, v{vt+1}")
    A(f"s_cmp_eq_u32 s{NONCE}, 0")
    A(f"s_cbranch_scc1 {l}")


def signal(A, sshard, cnt, flg, expect, vt):
    d = uid("sg")
    A(f"s_lshl_b32 s{CNT}, s{sshard}, 7\ns_add_u32 s{CNT}, s{CNT}, {cnt}")
    A(f"v_mov_b32 v{vt}, s{CNT}\nv_mov_b32 v{vt+1}, 1")
    A("s_waitcnt vmcnt(0)")
    A("s_mov_b64 exec, 1")
    A(f"global_atomic_add v{vt+2}, v{vt}, v{vt+1}, {sp(WS)} sc0 sc1")
    A(f"v_add_u32 v{vt}, {flg - cnt}, v{vt}\nv_mov_b32 v{vt+1}, s{NONCE}")
    A("s_waitcnt vmcnt(0)")
    A(f"v_readfirstlane_b32 s{CNT}, v{vt+2}")
    A(f"s_add_u32 s{CNT}, s{CNT}, 1\ns_cmp_lg_u32 s{CNT}, {expect}")
    A(f"s_cbranch_scc1 {d}")
    A(f"global_store_dword v{vt}, v{vt+1}, {sp(WS)} sc1")
    A.label(d)
    A("s_mov_b64 exec, -1")


def set_flag(A, soff, vt):
    A(f"v_mov_b32 v{vt}, s{soff}\nv_mov_b32 v{vt+1}, s{NONCE}")
    A("s_waitcnt vmcnt(0)")
    A("s_mov_b64 exec, 1")
    A(f"global_store_dword v{vt}, v{vt+1}, {sp(WS)} sc1")
    A("s_mov_b64 exec, -1")


def wait_cnt(A, vaddr, vt, sleep):
    l, d = uid("w"), uid("wd")
    A(f"s_mov_b32 s{CNT}, 0")
    A.label(l)
    A(f"global_load_dword v{vt}, v{vaddr}, {sp(WS)} sc1")
    A("s_waitcnt vmcnt(0)")
    A(f"v_cmp_ne_u32 vcc, s{NONCE}, v{vt}")
    A(f"s_cbranch_vccz {d}")
    if sleep:
        A(f"s_sleep {sleep}")
    A(f"s_add_u32 s{CNT}, s{CNT}, 1\ns_cmp_lt_u32 s{CNT}, {SPIN_MAX}")
    A(f"s_cbranch_scc1 {l}")
    A.label(d)


F, T = 192, 224


import struct as _st


def fl(x):
    return hex(_st.unpack("<I", _st.pack("<f", x))[0])


def lane_float(A, vn, vh, t):
    A(f"v_and_b32 v{t}, 31, v1\nv_cvt_f32_u32 v{t}, v{t}\nv_lshrrev_b32 v{t+1}, 5, v1\nv_lshlrev_b32 v{t+1}, 2, v{t+1}\nv_cvt_f32_u32 v{t+1}, v{t+1}")


def make_F(A, t):
    lane_float(A, None, None, t)
    A(f"v_mul_f32 v{t+1}, v{t}, v{t+1}\nv_mul_f32 v{t+1}, {fl(1/32)}, v{t+1}")
    for i in range(16):
        c = 8*(i >> 2) + (i & 3)
        a = t + 2 + 3*(i & 1)
        A(f"v_fmamk_f32 v{a}, v{t}, {fl(c/32)}, v{t+1}\nv_fract_f32 v{a}, v{a}")
        A(f"v_cos_f32 v{a+1}, v{a}\nv_sin_f32 v{a+2}, v{a}")
        A(f"v_cvt_pk_bf16_f32 v{F+i}, v{a+1}, v{a+2}\nv_cvt_pk_bf16_f32 v{F+16+i}, -v{a+2}, v{a+1}")


def make_T(A, dst, t, half):
    lane_float(A, None, None, t)
    if not half:
        A(f"v_mul_f32 v{t+1}, v{t}, v{t+1}\nv_mul_f32 v{t+1}, {fl(1/1024)}, v{t+1}")
    else:
        A(f"v_mul_f32 v{t}, {fl(1/2048)}, v{t}\nv_fmamk_f32 v{t+1}, v{t+1}, {fl(1/64)}, v{t}")
    for i in range(16):
        c = 8*(i >> 2) + (i & 3)
        a = t + 2 + (i & 1)
        if not half:
            A(f"v_fmamk_f32 v{a}, v{t}, {fl(c/1024)}, v{t+1}")
        else:
            A(f"v_add_f32 v{a}, {fl(c/64)}, v{t+1}")
        A(f"v_cos_f32 v{dst+i}, v{a}\nv_sin_f32 v{dst+16+i}, -v{a}")


def stage1(A, src, D, stride=4):
    if "m" in os.environ.get("SK", ""):
        return
    for c in range(2):
        for s_ in range(4):
            cc = "0" if s_ == 0 else v(D+16*c, 16)
            A(f"{MF} {v(D+16*c,16)}, {v(src+stride*s_,4)}, {v(F+16*c+4*s_,4)}, {cc}")


def twiddle(A, D, dst, tmp, rng=range(16)):
    for i in (rng if "t" not in os.environ.get("SK", "") else []):
        re, im, tr, ti = D+i, D+16+i, T+i, T+16+i
        t = tmp + 2*(i & 3)
        A(f"v_mul_f32 v{t}, v{re}, v{tr}\nv_mul_f32 v{t+1}, v{re}, v{ti}")
        A(f"v_fma_f32 v{t}, -v{im}, v{ti}, v{t}\nv_fmac_f32 v{t+1}, v{im}, v{tr}")
        A(f"v_cvt_pk_bf16_f32 v{dst+i}, v{t}, v{t+1}")


def stage2(A, src, D):
    if "m" in os.environ.get("SK", ""):
        return
    for c in range(2):
        for s_ in range(4):
            cc = "0" if s_ == 0 else v(D+16*c, 16)
            A(f"{MF} {v(D+16*c,16)}, {v(F+16*c+4*s_,4)}, {v(src+4*s_,4)}, {cc}")


W_ = T6
NBW = 2048*513*2
SQ, SO, ST = 184, 185, 186
VA1, VA2, VA8, VLIN = 4, 5, 6, 7
_ph = [0]


def l_arrive(A):
    _ph[0] += 1
    A(f"v_mov_b32 v{ST+4}, {_ph[0]}")
    A(f"s_mov_b64 exec, 1\nds_write_b32 v{SO}, v{ST+4}\ns_mov_b64 exec, -1")
    return _ph[0]


def l_check(A, n, delta=0, slp=1):
    l, d = uid("lc"), uid("lcd")
    if delta:
        A(f"v_add_u32 v{ST+5}, {delta}, v{SQ}")
    A.label(l)
    A(f"ds_read_b128 {v(ST,4)}, v{ST+5 if delta else SQ}\ns_waitcnt lgkmcnt(0)")
    A(f"v_min3_u32 v{ST}, v{ST}, v{ST+1}, v{ST+2}\nv_min_u32 v{ST}, v{ST}, v{ST+3}")
    A(f"v_readfirstlane_b32 s{CNT}, v{ST}")
    A(f"s_cmp_ge_u32 s{CNT}, {n}")
    A(f"s_cbranch_scc1 {d}")
    A(f"s_sleep {slp}\ns_branch {l}")
    A.label(d)


def l_check_loose(A, n, delta):
    l = uid("ll")
    A(f"v_add_u32 v{ST+5}, {delta}, v{SQ}")
    for i in range(4):
        A(f"v_mov_b32 v{ST+i}, 0")
    A.label(l)
    A(f"ds_read_b128 {v(ST,4)}, v{ST+5}\ns_sleep 1")
    A(f"v_min3_u32 v{ST+4}, v{ST}, v{ST+1}, v{ST+2}\nv_min_u32 v{ST+4}, v{ST+4}, v{ST+3}")
    A(f"v_readfirstlane_b32 s{CNT}, v{ST+4}")
    A(f"s_cmp_lt_u32 s{CNT}, {n}")
    A(f"s_cbranch_scc1 {l}")


def l_sync(A):
    l_check(A, l_arrive(A))


def aux_setup_ax(A):
    srd(A, S2, WR, size=NBW)
    srd(A, S3, WI, size=NBW)
    A(f"s_and_b32 s{T0}, s2, 31\ns_lshr_b32 s{T1}, s2, 5\ns_lshl_b32 s{T1}, s{T1}, 7\ns_add_u32 s{T0}, s{T0}, s{T1}")
    A(f"s_lshl_b32 s{T1}, s{W_}, 5\ns_add_u32 s{T7}, s{T0}, s{T1}\ns_lshl_b32 s{T0}, s{T7}, 12")
    srd(A, AX, AX, T0, 0, 0x1000)
    A("v_lshlrev_b32 v2, 4, v1\nv_xor_b32 v3, 128, v2")
    A(f"s_lshl_b32 s{T8}, s{W_}, 12\ns_add_u32 s{T8}, s{T8}, {L_AX}")


def aux_setup_w(A):
    A(f"s_and_b32 s{T0}, s2, 7\ns_bfe_u32 s{T1}, s2, 0x10003\ns_bfe_u32 s{T2}, s2, 0x20004\ns_lshr_b32 s{T3}, s2, 6")
    A(f"s_lshr_b32 s{T4}, s{T0}, 1\ns_lshl_b32 s{T4}, s{T4}, 3\ns_lshl_b32 s{T5}, s{T1}, 2\ns_add_u32 s{T4}, s{T4}, s{T5}")
    A(f"s_and_b32 s{T5}, s{T0}, 1\ns_lshl_b32 s{T5}, s{T5}, 1\ns_add_u32 s{T4}, s{T4}, s{T5}\ns_lshl_b32 s{T4}, s{T4}, 5")
    A(f"s_lshl_b32 s{T5}, s{T2}, 3\ns_add_u32 s{T4}, s{T4}, s{T5}\ns_lshl_b32 s{T5}, s{W_}, 1\ns_add_u32 s{T4}, s{T4}, s{T5}\ns_mul_i32 s{T4}, s{T4}, 1026")
    A(f"s_lshl_b32 s{T5}, s{T3}, 8\ns_add_u32 s{T9}, s{T4}, s{T5}")
    A("v_bfe_u32 v8, v1, 4, 1\nv_mul_u32_u24 v8, 32832, v8")
    A(f"v_lshrrev_b32 v9, 5, v1\ns_mov_b32 s{T5}, 1050624\nv_mul_lo_u32 v9, s{T5}, v9\nv_add_u32 v8, v8, v9")
    A(f"v_and_b32 v9, 15, v1\ns_lshl_b32 s{T5}, s{W_}, 1\nv_xor_b32 v9, s{T5}, v9")
    A("v_lshl_add_u32 v18, v9, 4, v8\nv_xor_b32 v9, 1, v9\nv_lshl_add_u32 v19, v9, 4, v8\nv_add_u32 v19, 1026, v19")
    A(f"s_bfe_u32 s{T4}, s2, 0x20005\ns_lshl_b32 s{T4}, s{T4}, 8\ns_bfe_u32 s{T5}, s2, 0x10004\ns_lshl_b32 s{T5}, s{T5}, 6\ns_add_u32 s{T4}, s{T4}, s{T5}")
    A(f"s_bfe_u32 s{T5}, s2, 0x10003\ns_lshl_b32 s{T5}, s{T5}, 7\ns_add_u32 s{T4}, s{T4}, s{T5}\ns_and_b32 s{T5}, s2, 7\ns_lshl_b32 s{T5}, s{T5}, 2\ns_add_u32 s{T4}, s{T4}, s{T5}")
    A(f"v_bfe_u32 v8, v1, 3, 2\nv_add_u32 v8, s{T4}, v8\nv_bfe_u32 v9, v1, 2, 1\nv_lshl_add_u32 v8, v9, 5, v8\nv_bfe_u32 v9, v1, 1, 1\nv_lshl_add_u32 v8, v9, 10, v8")
    A("v_sub_u32 v9, 2048, v8\nv_and_b32 v9, 2047, v9\nv_and_b32 v10, 1, v1\nv_cmp_eq_u32 vcc, 1, v10\nv_cndmask_b32 v8, v8, v9, vcc")
    A(f"v_mul_u32_u24 v17, 1026, v8\ns_lshr_b32 s{T4}, s2, 7\ns_lshl_b32 s{T4}, s{T4}, 10\nv_add_u32 v17, s{T4}, v17")


def aux_setup2(A):
    make_F(A, 92)
    make_T(A, T, 92, 0)
    make_T(A, TT, 92, 1)


def aux_issue(A, vm):
    for c in range(2):
        A(f"s_add_u32 m0, s{T8}, {c*2048}")
        A(f"s_mov_b32 s{CNT}, {c*2048}")
        for u in range(2):
            vm.op(f"buffer_load_dwordx4 v{2+c}, {r4(AX)}, s{CNT} offen offset:{u*1024}{NT} lds", "ax")


def w_issue(A, vm):
    for bb in range(2):
        for arr in range(2):
            A(f"s_add_u32 m0, s{T8}, {L_W - L_AX + bb*2048 + arr*1024}")
            vm.op(f"buffer_load_dwordx4 v{18+bb}, {r4(S2 if arr == 0 else S3)}, s{T9} offen{NT} lds" if "1" not in SK else f"buffer_load_dword v23, v2, {r4(AX)}, 0 offen offset:4092", "w")
    nw = uid("nw")
    A(f"s_cmp_lg_u32 s{W_}, {3 if not ('1' in SK or 'p' in SK) else 9}\ns_cbranch_scc1 {nw}")
    A("s_mov_b32 exec_hi, 0")
    A(f"buffer_load_ushort v{WSP}, v17, {r4(S2)}, 0 offen{NT}")
    A(f"buffer_load_ushort v{WSP+1}, v17, {r4(S3)}, 0 offen{NT}")
    A("s_mov_b64 exec, -1")
    A.label(nw)


WSP, IN, D, MID, TMP = 88, 24, 40, 72, 168
DY, W, TT = 72, 104, 136
M_, SPC, CJ, SGN = T0, T1, T2, T3
AUXK = E_("AUXK", 5)
GATE = E_("GATE", 0)
WK = E_("WK", 1)
WMID = WK <= 12
WSK = E_("WSK", 8)
A1K = E_("A1K", 0)
FINE = E_("FINE", 1)
ZSK = E_("ZSK", A1K + 3 + FINE)
LATE = A1K >= 6
A2G = E_("A2G", 0)
A3G = E_("A3G", 0)
ZG = E_("ZG", 0)
CTW = E_("CTW", 0)
POLLK = E_("POLLK", 15)
VTLB, VTN, VTF = E_("VTLB", 0), E_("VTN", 1), (" nt" if E_("VTF", 1) else "")
TLBW = E_("TLBW", 0)
DEFER = E_("DEFER", 2)
DK0 = E_("DK0", 0)
LPOS = E_("LPOS", 6)
BARP = E_("BARP", 1)
SWAP = E_("SWAP", 1)
WPOS = E_("WPOS", 0)
ZPOS = E_("ZPOS", 1)
PRES = E_("PRES", 1)
NPRE = E_("NPRE", 3)
KS0 = E_("KS0", 2)
P1, P2A, P2B = E_("P1", 0), E_("P2A", 50), E_("P2B", 95)
LDEF = E_("LDEF", 0)
LSLP = E_("LSLP", 1)
WSH = E_("WSH", 1)
PRE1, PRE2 = E_("PRE1", 6), E_("PRE2", 12)
HALF = E_("HALF", 0)
WEARLY = E_("WEARLY", 0)
KA, KA0, KA1, KAG = E_("KA", 0), E_("KA0", 1), E_("KA1", 15), E_("KAG", 0)
G1X = os.environ.get("G1X", "")
WMODE = E_("WMODE", 0)
CPK = [int(x) for x in os.environ.get("CPK", "").split(",") if x]
WXT = E_("WXT", 0)
RSLP = E_("RSLP", 1)
PAL = E_("PAL", 0)
NREPA = E_("NREPA", 8)
AXT = E_("AXT", 0)
APRIO, GPRIO = E_("APRIO", 0), E_("GPRIO", 0)
FM, CM = E_("FM", 12), E_("CM", 4)
DMAP = os.environ.get("DMAP", "5,9,13,17,21,25,29,33")
SK = os.environ.get("SK", "")
A2C = E_("A2C", 0)
LPRIO3 = E_("LPRIO3", 0)
LPRIO0 = E_("LPRIO0", 3)
LPRIO, LPRIO2 = E_('LPRIO', 0), E_('LPRIO2', 0)
L_IMG = 98304
LIMG_FREE = 2


def img(i):
    ka = 8*(i >> 2) + (i & 3)
    return (VA1, ka*1024) if i < 8 else (VA8, 0) if i == 8 else (VA2, (27 - ka)*1024)


def aux_pre_a(A):
    A(f"v_mov_b32 v{SQ}, {L_SYNC + 16}\ns_lshl_b32 s{T4}, s{W_}, 2\nv_add_u32 v{SO}, s{T4}, v{SQ}")
    A("v_and_b32 v8, 31, v1\nv_lshrrev_b32 v9, 5, v1\nv_and_b32 v10, 1, v1")
    A(f"v_lshrrev_b32 v11, 1, v8\nv_lshlrev_b32 v{VA1}, 6, v11\nv_lshl_add_u32 v{VA1}, v10, 4, v{VA1}\nv_lshl_add_u32 v{VA1}, v9, 12, v{VA1}")
    A(f"v_add_u32 v11, v11, v10\nv_lshlrev_b32 v11, 6, v11\nv_lshl_add_u32 v11, v10, 4, v11\nv_lshl_add_u32 v11, v9, 12, v11\nv_sub_u32 v{VA2}, {5120 + 48}, v11")
    for r in (VA1, VA2):
        A(f"v_bfe_u32 v11, v{r}, 7, 1\nv_lshlrev_b32 v11, 5, v11\nv_xor_b32 v{r}, v{r}, v11")
    A(f"v_add_u32 v{VA8}, 11264, v{VA2}\nv_and_b32 v{VA8}, 0x3fff, v{VA8}")
    A(f"s_add_u32 s{T4}, s{T4}, {L_IMG}")
    for r in (VA1, VA2, VA8):
        A(f"v_add_u32 v{r}, s{T4}, v{r}")
    A(f"v_bfe_u32 v11, v1, 3, 1\nv_lshlrev_b32 v11, 5, v11\nv_xor_b32 v{VLIN}, v2, v11")

    A("v_bfe_u32 v12, v1, 2, 1\nv_mul_u32_u24 v12, 2176, v12")
    A("v_bfe_u32 v13, v1, 3, 1\nv_lshl_add_u32 v12, v13, 6, v12\nv_lshl_add_u32 v12, v9, 8, v12")
    A("v_bfe_u32 v13, v1, 4, 1\nv_lshl_add_u32 v12, v13, 5, v12\nv_and_b32 v13, 3, v1\nv_lshl_add_u32 v12, v13, 3, v12")
    A(f"v_add_u32 v12, s{T8}, v12\nv_xor_b32 v13, 128, v12")
    if INOUT:
        A(f"s_lshl_b32 s{T4}, s{T7}, 14")
        srd(A, S0, OUT, T4, 0, 0x1000)
        srd(A, S1, OUT, T4, 0, 0x1000)
    else:
        A(f"s_lshl_b32 s{T4}, s2, 14\ns_lshl_b32 s{T5}, s{W_}, 12\ns_add_u32 s{T4}, s{T4}, s{T5}")
        srd(A, S0, WS, T4, WS_Z1, 0x1000)
        srd(A, S1, WS, T4, WS_Z3, 0x1000)


def aux_pre_w(A):
    A(f"v_and_b32 v14, 7, v1\nv_lshrrev_b32 v15, 3, v1\nv_xor_b32 v16, v14, v15\nv_lshlrev_b32 v16, 4, v16\nv_lshl_add_u32 v16, v14, 11, v16")
    A(f"s_lshr_b32 s{T4}, s{W_}, 1\ns_lshl_b32 s{T4}, s{T4}, 7\ns_and_b32 s{T5}, s{W_}, 1\ns_lshl_b32 s{T5}, s{T5}, 3\ns_add_u32 s{T4}, s{T4}, s{T5}\ns_add_u32 s{T4}, s{T4}, {L_W}")
    A(f"v_add_u32 v16, s{T4}, v16")
    A(f"v_lshlrev_b32 v15, {18 if INOUT else 16}, v15\nv_lshl_add_u32 v15, v14, 4, v15")
    A(f"s_lshl_b32 s{T4}, s{T3}, 7\ns_lshr_b32 s{T5}, s{W_}, 1\ns_lshl_b32 s{T5}, s{T5}, 6\ns_add_u32 s{T4}, s{T4}, s{T5}")
    A(f"s_and_b32 s{T5}, s{W_}, 1\ns_lshl_b32 s{T5}, s{T5}, 2\ns_add_u32 s{T4}, s{T4}, s{T5}\ns_mul_i32 s{T4}, s{T4}, {KS_}")
    A(f"s_lshr_b32 s{T5}, s{T0}, 2\ns_mul_i32 s{T5}, s{T5}, {ISH - 4096}\ns_add_u32 s{T4}, s{T4}, s{T5}")
    A(f"s_lshl_b32 s{T5}, s{T0}, 10\ns_add_u32 s{T4}, s{T4}, s{T5}\ns_lshl_b32 s{T5}, s{T1}, 9\ns_add_u32 s{T4}, s{T4}, s{T5}\ns_lshl_b32 s{T5}, s{T2}, 7\ns_add_u32 s{T4}, s{T4}, s{T5}")
    if INOUT:
        A(f"s_add_u32 s{T4}, s{T4}, 8192")
        srd(A, S4, OUT, T4, 0, 0x1000000, T4)
    else:
        srd(A, S4, WS, T4, WS_WT + 2*KS_, 0x400000, T4)


KNAME_ = [None]


def code_touch(A, t0):
    name = KNAME_[0]
    pc = uid("pc")
    per = 6
    A(f"s_getpc_b64 {sp(t0)}")
    A.label(pc)
    A(f"s_sub_u32 s{t0}, s{t0}, {pc}-{name}\ns_subb_u32 s{t0+1}, s{t0+1}, 0")
    A(f"s_lshr_b32 s{CNT}, s2, 3\ns_lshl_b32 s{CNT}, s{CNT}, 2\ns_add_u32 s{CNT}, s{CNT}, s{W_}\ns_mul_i32 s{CNT}, s{CNT}, {per*64}")
    A(f"s_min_u32 s{CNT}, s{CNT}, L_{name}_end-{name}-{per*64}")
    for q in range(per):
        A(f"s_load_dword s3, {sp(t0)}, s{CNT} offset:{q*64}")


def c_touch(A, vm):
    A(f"s_and_b32 s{T4}, s2, 1\ns_lshl_b32 s{T4}, s{T4}, 10\ns_bfe_u32 s{CNT}, s2, 0x20001\ns_lshl_b32 s{CNT}, s{CNT}, 19\ns_add_u32 s{T4}, s{T4}, s{CNT}")
    A(f"s_lshr_b32 s{CNT}, s2, 3\ns_lshl_b32 s{CNT}, s{CNT}, 14\ns_add_u32 s{T4}, s{T4}, s{CNT}")
    A(f"s_lshr_b32 s{CNT}, s{W_}, 1\ns_lshl_b32 s{CNT}, s{CNT}, 13\ns_add_u32 s{T4}, s{T4}, s{CNT}")
    A(f"v_bfe_u32 v22, v1, 3, 2\nv_lshlrev_b32 v22, 11, v22\nv_and_b32 v23, 7, v1\nv_lshl_add_u32 v22, v23, 7, v22\nv_add_u32 v22, s{T4}, v22")
    A("s_mov_b32 exec_hi, 0")
    vm.op(f"global_load_dword v23, v22, s[100:101]", "touch")
    A("s_mov_b64 exec, -1")


def flag_poll(A, flg):
    A(f"s_lshl_b32 s{T4}, s2, 2\ns_add_u32 s{T4}, s{T4}, s{W_}\ns_lshr_b32 s{T4}, s{T4}, 4\ns_lshl_b32 s{T4}, s{T4}, 7\ns_add_u32 s{T4}, s{T4}, {flg}")
    A(f"s_add_u32 s24, s{WS}, s{T4}\ns_addc_u32 s25, s{WS+1}, 0")
    A(f"s_load_dwordx16 s[4:19], s[24:25], 0x0 glc")


def flag_wait(A):
    late, go, pl_ = uid("late"), uid("go"), uid("sp")
    A(f"s_mov_b32 s26, s{NONCE}\ns_mov_b32 s27, s{NONCE}\ns_mov_b32 s{CNT}, 0\ns_branch {pl_}")
    A.label(late)
    A(f"s_add_u32 s{CNT}, s{CNT}, 1\ns_cmp_ge_u32 s{CNT}, {SPIN_MAX}\ns_cbranch_scc1 {go}")
    A(f"s_sleep 8\ns_load_dwordx16 s[4:19], s[24:25], 0x0 glc")
    A.label(pl_)
    A("s_waitcnt lgkmcnt(0)")
    for q in range(8):
        A(f"s_cmp_eq_u64 s[{4+2*q}:{5+2*q}], s[26:27]\ns_cbranch_scc0 {late}")
    A.label(go)


RR = lambda arr, kind: 104 + (arr*4 + kind)*2


def wt_read(A, fin=True):
    for arr in range(2):
        for kind in range(4):
            A(f"ds_read_b64 {v(RR(arr,kind),2)}, v16 offset:{arr*1024 + kind*256}")


def wt_sym(A):
    A(f"s_mov_b32 s{T4}, 0x05040100\ns_mov_b32 s{T5}, 0x07060302")
    A(f"v_lshlrev_b32 v{WSP}, 16, v{WSP}\nv_lshlrev_b32 v{WSP+1}, 16, v{WSP+1}\nv_lshlrev_b32 v9, 1, v1")
    A(f"v_add_f32_dpp v{WSP+2}, v{WSP}, v{WSP} quad_perm:[1,0,3,2] row_mask:0xf bank_mask:0xf")
    A(f"v_subrev_f32_dpp v{WSP+3}, v{WSP+1}, v{WSP+1} quad_perm:[1,0,3,2] row_mask:0xf bank_mask:0xf")
    A(f"v_mul_f32 v{WSP+2}, 0.5, v{WSP+2}\nv_mul_f32 v{WSP+3}, 0.5, v{WSP+3}")
    A(f"v_cvt_pk_bf16_f32 v{WSP}, v{WSP+2}, v{WSP+3}")


def wt_perm(A):
    for kap in range(4):
        o = 120 + 4*kap
        for e in range(2):
            for h2 in range(2):
                kind = e + 2*h2
                A(f"v_perm_b32 v{o+2*e+h2}, v{RR(1,kind)+kap//2}, v{RR(0,kind)+kap//2}, s{T4 + kap % 2}")


def wt_store(A, vm):
    nw = uid("nw")
    A(f"s_cmp_lg_u32 s{W_}, 3\ns_cbranch_scc1 {nw}")
    A(f"s_lshr_b32 s{T4}, s2, 7\ns_mul_i32 s{T4}, s{T4}, {KS_}\ns_bfe_u32 s{T5}, s2, 0x10006\ns_mul_i32 s{T5}, s{T5}, {ISH}\ns_add_u32 s{T4}, s{T4}, s{T5}")
    A(f"s_and_b32 s{T5}, s2, 63\ns_lshl_b32 s{T5}, s{T5}, 6\ns_add_u32 s{T4}, s{T4}, s{T5}")
    srd(A, S3, WS, T4, WS_WT, 64)
    A("s_mov_b32 exec_lo, 0x55555555\ns_mov_b32 exec_hi, 0")
    if not E_("SKIPS", 0):
        A(f"buffer_store_dword v{WSP}, v9, {r4(S3)}, 0 offen sc1")
    A("s_mov_b64 exec, -1")
    A.label(nw)
    for kap in range(0 if "2" in SK else 4):
        A(f"s_mov_b32 s{CNT}, {kap*KS_}")
        vm.op(f"buffer_store_dwordx4 {v(120+4*kap,4)}, v15, {r4(S4)}, s{CNT} offen sc1", "wst")


def a1_stores(A, vm):
    for u in range(0 if "3" in SK else 4):
        vm.op(f"buffer_store_dwordx4 {v(MID+4*u,4)}, v2, {r4(S0)}, 0 offen offset:{u*1024} sc1", "zst")
    if WMODE == 0:
        wt_store(A, vm)


def a1_task(A, vm):
    vm.wait_for("ax")
    trace(A, 0, 2)
    for s_ in range(4):
        for u in range(2):
            A(f"ds_read_b64_tr_b16 {v(IN+4*s_+2*u,2)}, v{12+u} offset:{s_*512}")
    A("s_waitcnt lgkmcnt(0)")
    stage1(A, IN, D)
    twiddle(A, D, MID, TMP)
    stage2(A, MID, D)
    A(f"s_lshl_b32 s{CNT}, s{W_}, 12\ns_add_u32 s{CNT}, s{CNT}, {L_IMG}\nv_add_u32 v8, s{CNT}, v{VLIN}")
    for i in range(16):
        A(f"v_cvt_pk_bf16_f32 v{MID+i}, v{D+i}, v{D+16+i}")
        a, o = img(i)
        A(f"ds_write_b32 v{a}, v{MID+i} offset:{o}")
    trace(A, 0, 3)
    if WMODE == 0:
        vm.wait_for("w")
    A("s_waitcnt lgkmcnt(0)")
    l_sync(A)
    trace(A, 0, 4)
    for u in range(4):
        A(f"ds_read_b128 {v(MID+4*u,4)}, v8 offset:{u*1024}")
    if WMODE == 0:
        wt_read(A)
    for r in (VA1, VA2, VA8):
        A(f"v_add_u32 v{r}, {L_AX - L_IMG}, v{r}")
    A("s_waitcnt lgkmcnt(0)")
    p = l_arrive(A)
    assert p == LIMG_FREE
    if WMODE == 0:
        wt_sym(A)
        wt_perm(A)
    if ZPOS < 0:
        a1_stores(A, vm)
    trace(A, 0, 5)


def a2_setup(A):
    A(f"s_and_b32 s{M_}, s2, 7\ns_lshl_b32 s{M_}, s{M_}, 5\ns_lshr_b32 s{T4}, s2, 3\ns_add_u32 s{M_}, s{M_}, s{T4}")
    A(f"s_lshr_b32 s{T4}, s{W_}, 1\ns_xor_b32 s{T4}, s{T4}, s{W_}\ns_and_b32 s{T4}, s{T4}, 1")
    A(f"s_or_b32 s{T5}, s{T4}, s{M_}\ns_cmp_eq_u32 s{T5}, 0\ns_cselect_b32 s{SPC}, 1, 0")
    A(f"s_lshl_b32 s{T5}, s{M_}, 1\ns_add_u32 s{T4}, s{T4}, s{T5}")
    A(f"s_mul_i32 s{T4}, s{T4}, {KS_}\ns_add_u32 s{T4}, s{T4}, {8192 if INOUT else WS_WT + 2*KS_}")
    A(f"s_lshr_b32 s{T5}, s{W_}, 1\ns_mul_i32 s{T9}, s{T5}, {KS_}\ns_add_u32 s{T9}, s{T9}, {WS_WT}")
    A(f"s_cmp_eq_u32 s{SPC}, 1\ns_cselect_b32 s{T4}, s{T9}, s{T4}\ns_cselect_b32 s{T5}, 0, s{T5}")
    A(f"s_cselect_b32 s{MSK}, s{WS}, s{OUT if INOUT else WS}\ns_cselect_b32 s{MSK+1}, s{WS+1}, s{(OUT if INOUT else WS)+1}")
    A(f"s_lshl_b32 s{CJ}, s{T5}, 31\ns_or_b32 s{SGN}, s{CJ}, 0x3f800000")
    srd(A, S2, MSK, T4, 0, ISH + 4096)
    if INOUT:
        A(f"s_lshl_b32 s{T4}, s{W_}, 22\ns_lshr_b32 s{T5}, s{M_}, 6\ns_lshl_b32 s{T5}, s{T5}, 19\ns_add_u32 s{T4}, s{T4}, s{T5}")
        A(f"s_and_b32 s{T5}, s{M_}, 63\ns_lshl_b32 s{T5}, s{T5}, 6\ns_add_u32 s{T4}, s{T4}, s{T5}")
        srd(A, S3, OUT, T4, 0, 160*16384, T5)
        srd(A, S4, OUT, T4, 0, 160*16384, T5)
    else:
        A(f"s_lshl_b32 s{T4}, s{W_}, 20\ns_lshl_b32 s{T5}, s{M_}, 6\ns_add_u32 s{T4}, s{T4}, s{T5}")
        srd(A, S3, WS, T4, WS_Z1, 0x100000, T5)
        srd(A, S4, WS, T4, WS_Z3, 0x100000, T5)
    A("v_lshrrev_b32 v8, 2, v1\nv_lshlrev_b32 v8, 14, v8\nv_and_b32 v9, 3, v1\nv_lshrrev_b32 v10, 4, v1\nv_xor_b32 v9, v9, v10\nv_lshl_add_u32 v14, v9, 4, v8")
    A(f"v_and_b32 v8, 31, v1\nv_bfe_u32 v9, v1, 2, 2\nv_xor_b32 v9, s{W_}, v9\nv_lshlrev_b32 v9, 4, v9\nv_lshl_add_u32 v9, v8, 6, v9")
    A(f"v_lshrrev_b32 v8, 5, v1\nv_lshl_add_u32 v9, v8, 11, v9\nv_add_u32 v15, {L_AX}, v9")
    A(f"s_lshl_b32 s{T4}, s{W_}, 13\ns_add_u32 s{T4}, s{T4}, {L_AX}\nv_add_u32 v16, s{T4}, v2")
    A(f"s_xor_b32 s{T5}, s{T4}, {3 << 13}\ns_cmp_eq_u32 s{SPC}, 1\ns_cselect_b32 s{T5}, s{T4}, s{T5}\nv_add_u32 v17, s{T5}, v2")
    A(f"v_add_u32 v18, s{T8}, v2")
    A(f"s_lshr_b32 s{T4}, s{W_}, 1\ns_xor_b32 s{T4}, s{T4}, s{W_}\ns_and_b32 s{T4}, s{T4}, 1\ns_lshl_b32 s{T9}, s{T4}, 13\ns_add_u32 s{T9}, s{T9}, {L_W}\nv_add_u32 v19, s{T9}, v2")
    for kk in range(32):
        A(f"v_mul_f32 v{TT+kk}, s{SGN}, v{TT+kk}")


ZU = lambda u: (16*(u & 1) + 128*(u >> 1))*16384 if INOUT else u << 18


def a2_loads(A, z=True, w=True):
    for u in range(4 if z and '5' not in SK else 0):
        A(f"s_add_u32 m0, s{T8}, {u*1024}\ns_mov_b32 s{T4}, {ZU(u)}")
        A(f"buffer_load_dwordx4 v14, {r4(S3)}, s{T4} offen sc1 lds")
    if WSH:
        a, b = uid("ws"), uid("wd")
        A(f"s_cmp_eq_u32 s{SPC}, 1\ns_cbranch_scc1 {a}")
        A(f"s_lshr_b32 s{T4}, s{W_}, 1\ns_lshl_b32 s{T5}, s{T4}, 12\ns_mul_i32 s{T4}, s{T4}, {ISH}\ns_add_u32 m0, s{T9}, s{T5}")
        for u in range(4):
            A(f"buffer_load_dwordx4 v2, {r4(S2)}, s{T4} offen offset:{u*1024} sc1 lds")
        A(f"s_waitcnt vmcnt(0)\ns_branch {b}")
        A.label(a)
    A(f"s_movk_i32 s{T4}, {ISH}")
    for it in range(8 if w and '4' not in SK else 0):
        A(f"buffer_load_dwordx4 {v(W+4*it,4)}, v2, {r4(S2)}, {'0' if it < 4 else f's{T4}'} offen offset:{(it & 3)*1024} sc1")
    if WSH:
        A.label(b)


PH_RES = 18


def phase_atomic(A, cnt, p):
    x = uid("ph")
    A(f"s_cmp_lg_u32 s{W_}, 0\ns_cbranch_scc1 {x}")
    l_check(A, p)
    A(f"s_and_b32 s{T4}, s2, 15\ns_lshl_b32 s{T5}, s{T4}, 7\ns_add_u32 s{T5}, s{T5}, {cnt}")
    A(f"s_add_u32 s{MSK}, s{WS}, s{T5}\ns_addc_u32 s{MSK+1}, s{WS+1}, 0\ns_mov_b32 s{PH_RES}, 1")
    A(f"s_atomic_add s{PH_RES}, {sp(MSK)}, 0x0 glc")
    A.label(x)


def phase_last(A, flg, wait=True, nrep=None):
    y = uid("sg")
    A(f"s_cmp_lg_u32 s{W_}, 0\ns_cbranch_scc1 {y}")
    A(f"s_and_b32 s{T4}, s2, 15\ns_lshl_b32 s{T4}, s{T4}, 2\ns_add_u32 s{T4}, s{T4}, {flg}")
    A(f"s_add_u32 s4, s{WS}, s{T4}\ns_addc_u32 s5, s{WS+1}, 0")
    A("s_waitcnt lgkmcnt(0)")
    A(f"s_cmp_lg_u32 s{PH_RES}, 15\ns_cbranch_scc1 {y}")
    for r in range(nrep or NREP):
        A(f"s_atomic_swap s{NONCE}, s[4:5], {hex(r*128)}")
    if wait:
        A("s_waitcnt lgkmcnt(0)")
    A.label(y)


def phase_wait(A, flg, tb, nrep=None):
    x, pl_, nok = uid("ph"), uid("sp"), uid("nok")
    A(f"s_cmp_lg_u32 s{W_}, 0\ns_cbranch_scc1 {x}")
    A(f"s_and_b32 s{T4}, s2, {(nrep or NREP) - 1}\ns_lshl_b32 s{T4}, s{T4}, 7\ns_add_u32 s{T4}, s{T4}, {flg}")
    A(f"s_add_u32 s{MSK}, s{WS}, s{T4}\ns_addc_u32 s{MSK+1}, s{WS+1}, 0\ns_mov_b32 s{T4}, s{NONCE}\ns_mov_b32 s{T5}, s{NONCE}\ns_mov_b32 s{CNT}, 0")
    A(f"s_branch {pl_}")
    A.label(nok)
    A(f"s_add_u32 s{CNT}, s{CNT}, 1\ns_cmp_ge_u32 s{CNT}, {SPIN_MAX}\ns_cbranch_scc1 {x}")
    if SLP_A:
        A(f"s_sleep {SLP_A}")
    A.label(pl_)
    A(f"s_load_dwordx16 s[4:19], {sp(MSK)}, 0x0 glc\ns_waitcnt lgkmcnt(0)")
    for q in range(8):
        A(f"s_cmp_eq_u64 s[{4+2*q}:{5+2*q}], {sp(T4)}\ns_cbranch_scc0 {nok}")
    if TRACE:
        A(f"v_writelane_b32 v0, s{CNT}, {tb}")
    A.label(x)
    l_check(A, l_arrive(A), slp=LSLP)


def aux_rest(A, vm):
    def phase(cnt, flg, young=0):
        trace(A, 0, 48)
        A(f"s_waitcnt vmcnt({young})")
        trace(A, 0, 49)
        p = l_arrive(A)
        phase_atomic(A, cnt, p)
        phase_last(A, flg)
        trace(A, 0, 50)
        phase_wait(A, flg, 62)
        trace(A, 0, 51)
    phase_wait(A, FLG_A, 61, 64)
    trace(A, 0, 7)
    A(f"s_setprio {LPRIO2}")
    if A2G:
        l_check(A, A2G % 100, RING_D - 16 if A2G < 100 else -16)
    if CTW == 2:
        c_touch(A, vm)
    trace(A, 0, 8)
    a2_loads(A)
    mark(A, 7)
    A(f"s_waitcnt vmcnt({0 if '4' in SK else 8})")
    trace(A, 0, 9)
    if E_("AM", 0) in (1, 2):
        mark(A, 1)
    l_sync(A)
    trace(A, 0, 10)
    INS = 72
    for s_ in range(4):
        A(f"ds_read_b128 {v(INS+4*s_,4)}, v15 offset:{s_*4096}")
    if WSH:
        a = uid("wr")
        A(f"s_cmp_eq_u32 s{SPC}, 1\ns_cbranch_scc1 {a}")
        for it in range(8):
            A(f"ds_read_b128 {v(W+4*it,4)}, v19 offset:{it*1024}")
        A.label(a)
    A("s_waitcnt lgkmcnt(0)")
    if E_("AM", 0) == 2:
        mark(A, 2)
    p6 = l_arrive(A)
    if A2C:
        l_check(A, A2C, -16)
    A(f"s_lshl_b32 s{T4}, s{SPC}, 31\ns_or_b32 s{T4}, s{T4}, s{CJ}")
    fl, nwr = uid("fft"), uid("nwr")
    A.label(fl)
    for i in range(16):
        A(f"v_xor_b32 v{IN+i}, s{T4}, v{INS+i}")

    def pre(rng):
        for i in rng:
            w, rho, sg = W + 2*i, TT + i, TT + 16 + i
            r1, i1, r2, i2, Ar, Ai = (TMP + 8 + c for c in range(6))
            A(f"v_lshlrev_b32 v{r1}, 16, v{w}\nv_and_b32 v{i1}, 0xffff0000, v{w}")
            A(f"v_lshlrev_b32 v{r2}, 16, v{w+1}\nv_and_b32 v{i2}, 0xffff0000, v{w+1}")
            A(f"v_add_f32 v{Ar}, v{r1}, v{r2}\nv_add_f32 v{Ai}, v{i1}, v{i2}")
            A(f"v_sub_f32 v{r1}, v{r1}, v{r2}\nv_sub_f32 v{i1}, v{i1}, v{i2}")
            A(f"v_mul_f32 v{w}, v{rho}, v{r1}\nv_mul_f32 v{w+1}, v{rho}, v{i1}")
            A(f"v_fma_f32 v{rho}, v{sg}, v{r1}, v{Ar}\nv_fma_f32 v{sg}, v{sg}, v{i1}, v{Ai}")

    def once(rng):
        a = uid("once")
        A(f"s_cmp_eq_u32 s{SPC}, 2\ns_cbranch_scc1 {a}\ns_waitcnt vmcnt(0)")
        pre(rng)
        A.label(a)
    stage1(A, IN, D)
    once(range(0, PRE1))
    twiddle(A, D, IN, TMP)
    stage2(A, IN, D)
    once(range(PRE1, PRE2))
    l_check(A, p6)
    if E_("AM", 0) == 2:
        mark(A, 5)
    A(f"s_cmp_eq_u32 s{SPC}, 2\ns_cbranch_scc1 {nwr}")
    for c in range(8):
        A(f"ds_write_b128 v16, {v(D+4*c,4)} offset:{c*1024}")
    A(f"s_cmp_eq_u32 s{SPC}, 0\ns_cbranch_scc1 {nwr}")
    A(f"s_mov_b32 s{SPC}, 2\ns_mov_b32 s{T4}, 0\ns_branch {fl}")
    A.label(nwr)
    pre(range(PRE2, min(16, PRE2 + 2)))
    A("s_waitcnt lgkmcnt(0)")
    p7 = l_arrive(A)
    pre(range(min(16, PRE2 + 2), 16))

    def own(rng):
        for i in rng:
            Xr, Xi, mr, mi, t = D+i, D+16+i, TT+i, TT+16+i, TMP + (i & 1)
            A(f"v_mul_f32 v{t}, v{mi}, v{Xi}\nv_mul_f32 v{Xi}, v{mr}, v{Xi}")
            A(f"v_fmac_f32 v{Xi}, v{mi}, v{Xr}\nv_fma_f32 v{Xr}, v{mr}, v{Xr}, -v{t}")
    own(range(0, 6))
    l_check(A, p7)
    for c in range(8):
        A(f"ds_read_b128 {v(DY+4*c,4)}, v17 offset:{c*1024}")
    own(range(6, 16))
    A("s_waitcnt lgkmcnt(0)")
    if E_("AM", 0) in (1, 2):
        mark(A, 4)
    p8 = l_arrive(A)
    for i in range(16):
        Pr, Pi, Yr, Yi, gr, gi = D+i, D+16+i, DY+i, DY+16+i, W+2*i, W+2*i+1
        A(f"v_fma_f32 v{Pr}, -v{gr}, v{Yi}, v{Pr}\nv_fmac_f32 v{Pi}, v{gr}, v{Yr}")
        A(f"v_fma_f32 v{Pr}, -v{gi}, v{Yr}, v{Pr}\nv_fma_f32 v{Pi}, -v{gi}, v{Yi}, v{Pi}")
        A(f"v_cvt_pk_bf16_f32 v{IN+i}, v{Pi}, v{Pr}")
    if E_("AM", 0) == 2:
        mark(A, 6)
    stage1(A, IN, D)
    twiddle(A, D, IN, TMP)
    stage2(A, IN, D)
    A(f"s_lshr_b32 s{T4}, s{CJ}, 16")
    l_check(A, p8)
    for s_ in range(4):
        for r in range(4):
            i = 4*s_ + r
            A(f"v_cvt_pk_bf16_f32 v{IN+i}, v{D+i}, v{D+16+i}\nv_xor_b32 v{IN+i}, s{T4}, v{IN+i}")
        A(f"ds_write_b128 v15, {v(IN+4*s_,4)} offset:{s_*4096}")
    A("s_waitcnt lgkmcnt(0)")
    if E_("AM", 0) == 2:
        mark(A, 7)
    l_sync(A)
    for u in range(4):
        A(f"ds_read_b128 {v(IN+4*u,4)}, v18 offset:{u*1024}")
    for u in range(4):
        A(f"s_mov_b32 s{T4}, {ZU(u)}\ns_waitcnt lgkmcnt({3-u})")
        if "6" not in SK:
            A(f"buffer_store_dwordx4 {v(IN+4*u,4)}, v14, {r4(S4)}, s{T4} offen sc1")
    trace(A, 0, 11)
    if E_("AM", 0) != 3 and not E_("GM", 0):
        mark(A, 3)
    A(f"s_lshl_b32 s{T4}, s{T7}, 14")
    srd(A, S0, OUT, T4, 0, 0x4000)
    A("v_and_b32 v8, 31, v1\nv_lshrrev_b32 v9, 5, v1\nv_lshlrev_b32 v14, 2, v8\nv_lshl_add_u32 v14, v9, 9, v14")
    A(f"s_mov_b32 s{T4}, 0x35000000")
    for k in range(32):
        A(f"v_mul_f32 v{T+k}, s{T4}, v{T+k}")
    phase(CNT_B, FLG_B)
    A(f"s_setprio {LPRIO3}")
    if A3G:
        l_check(A, A3G, -16)
    trace(A, 0, 12)
    if E_("AM", 0) != 3:
        mark(A, 8)
    A(f"s_mov_b32 m0, s{T8}")
    for u in range(4):
        if "7" not in SK:
            A(f"buffer_load_dwordx4 v{VLIN}, {r4(S1)}, 0 offen offset:{u*1024} sc1 lds")
    A("s_waitcnt vmcnt(0)")
    trace(A, 0, 13)
    l_sync(A)
    for i in range(16):
        a, o = img(i)
        A(f"ds_read_b32 v{IN+i}, v{a} offset:{o}")
    A("s_waitcnt lgkmcnt(0)")
    stage1(A, IN, D)
    twiddle(A, D, IN, TMP)
    stage2(A, IN, D)
    A(f"s_movk_i32 s{T4}, 0x2000")
    O = 72
    for i in range(16):
        o = O + 2*i
        A(f"v_cvt_pk_bf16_f32 v{o+1}, v{D+16+i}, v{D+i}")
        A(f"v_lshlrev_b32 v{o}, 16, v{o+1}\nv_and_b32 v{o+1}, 0xffff0000, v{o+1}")
        off = (i >> 2)*1024 + (i & 3)*128
        if "8" not in SK:
            A(f"buffer_store_dword v{o}, v14, {r4(S0)}, 0 offen offset:{off}{OST}")
            A(f"buffer_store_dword v{o+1}, v14, {r4(S0)}, s{T4} offen offset:{off}{OST}")


def cmul_sq(A, d, a, t):
    A(f"v_mul_f32 {v(t)}, {v(a+1)}, {v(a+1)}")
    A(f"v_mul_f32 {v(t+1)}, {v(a)}, {v(a+1)}")
    A(f"v_fma_f32 {v(d)}, {v(a)}, {v(a)}, -{v(t)}")
    A(f"v_add_f32 {v(d+1)}, {v(t+1)}, {v(t+1)}")


def horner(A, dr, di, L, pr, pi, er, ei, t):
    assert dr not in (pr, pi) and di not in (pr, pi)
    A(f"v_fma_f32 {v(t)}, {v(L)}, {v(pr)}, {v(er)}")
    A(f"v_fma_f32 {v(t+1)}, {v(L)}, {v(pi)}, {v(ei)}")
    A(f"v_fma_f32 {v(dr)}, -{v(L+1)}, {v(pi)}, {v(t)}")
    A(f"v_fma_f32 {v(di)}, {v(L+1)}, {v(pr)}, {v(t+1)}")


RING_D, RING_LG, RING_LA = 32, 48, 64


def dma_setup(A, swt, swp, RV, t, ta, tb):
    l5, a, b_, c, d, e = (t + i for i in range(6))
    A(f"v_lshrrev_b32 v{l5}, 5, v1\nv_bfe_u32 v{a}, v1, 3, 2\nv_and_b32 v{b_}, 1, v{a}\nv_lshrrev_b32 v{c}, 1, v{a}")
    A(f"v_lshlrev_b32 v{d}, 4, v{l5}\nv_lshl_add_u32 v{d}, v{b_}, 3, v{d}\nv_add_u32 v{d}, v{d}, v{c}")
    A(f"s_lshl_b32 s{ta}, s{swt}, 6\ns_lshl_b32 s{tb}, s{swp}, 2\ns_add_u32 s{ta}, s{ta}, s{tb}")
    A(f"v_add_u32 v{d}, s{ta}, v{d}\nv_lshlrev_b32 v{d}, 11, v{d}")
    A(f"s_lshl_b32 s{ta}, s{swt}, 5")
    A(f"v_lshl_add_u32 v{e}, v{l5}, 3, v{a}\nv_add_u32 v{e}, s{ta}, v{e}\nv_lshlrev_b32 v{e}, 11, v{e}")
    A(f"v_and_b32 v{b_}, 7, v1\nv_lshrrev_b32 v{c}, 4, v1\nv_xor_b32 v{b_}, v{b_}, v{c}\nv_lshlrev_b32 v{b_}, 4, v{b_}\nv_xor_b32 v{c}, 64, v{b_}")
    A(f"v_add_u32 v{RV}, v{d}, v{b_}\nv_add_u32 v{RV+1}, v{d}, v{c}\nv_add_u32 v{RV+1}, {32*2048 - 1024}, v{RV+1}")
    A(f"v_add_u32 v{RV+2}, v{e}, v{b_}\nv_add_u32 v{RV+3}, v{e}, v{c}\nv_add_u32 v{RV+3}, {16*2048 - 1024}, v{RV+3}")


def make_piece(A, vm, RA, RB, ROT, M0B, SOF, RV):
    def piece(k, n):
        slot, u = k % NS, n & 3
        if n == 0:
            A(f"s_add_u32 s{SOF}, s{ROT}, {k*128}\ns_and_b32 s{SOF}, s{SOF}, 0x7ff")
            A(f"s_add_u32 s{SOF+1}, s{SOF}, 2048\ns_add_u32 s{SOF+2}, s{SOF}, 6144")
        if u == 0:
            A(f"s_add_u32 m0, s{M0B}, {slot*32768 + (n >> 2)*16384}")
        so = SOF if u < 2 else SOF + 1 + (n >> 2)
        if ("a" in G1X and 0 < n < 4) or ("b" in G1X and n > 4):
            return
        vm.op(f"buffer_load_dwordx4 v{RV + 2*(n >> 2) + (u & 1)}, {r4(RA if n < 4 else RB)}, s{so} offen offset:{u*1024} lds", ("st", k))
    return piece


def rot_setup(A, ROT, t):
    A(f"s_mul_i32 s{ROT}, s{TI}, {RI*128}\ns_mul_i32 s{t}, s{TJ}, {RJ*128}\ns_add_u32 s{ROT}, s{ROT}, s{t}")


def aux_waves(A, name, kidx):
    A(f"s_sub_u32 s{W_}, s{WAVE}, 4")
    A(f"s_setprio {APRIO}")
    if BARP == 0:
        A("s_barrier")
    A("s_waitcnt lgkmcnt(0)")
    A(f"s_mov_b32 s100, s{CRE}\ns_mov_b32 s101, s{CRE+1}")
    A(f"s_bitcmp1_b32 s{W_}, 0\ns_cselect_b32 s100, s{CIM}, s{CRE}\ns_cselect_b32 s101, s{CIM+1}, s{CRE+1}")
    trace_init(A, 0)
    vm = VmCounter(A)
    if CODEPF:
        pf, pc = uid("pf"), uid("pc")
        A(f"s_cmp_lg_u32 s{W_}, 1")
        A(f"s_cbranch_scc1 {pf}")
        A(f"s_lshr_b32 s{T0}, s2, 3\ns_lshl_b32 s{T0}, s{T0}, 11\nv_and_b32 v12, 15, v1\nv_lshl_add_u32 v12, v12, 7, s{T0}")
        A(f"v_min_u32 v12, L_{name}_end-{name}, v12")
        A(f"s_getpc_b64 {sp(T0)}")
        A.label(pc)
        A(f"s_sub_u32 s{T0}, s{T0}, {pc}-{name}\ns_subb_u32 s{T1}, s{T1}, 0")
        A(f"global_load_dword v23, v12, {sp(T0)}")
        A.label(pf)
    nn = uid("nn")
    A(f"s_lshl_b32 s{T0}, s2, 3\ns_add_u32 s{T0}, s{T0}, s{WAVE}\ns_cmp_lg_u32 s{T0}, 4")
    A(f"s_cbranch_scc1 {nn}")
    A(f"s_load_dword s3, {sp(WS)}, {WS_NONCE}")
    A(f"v_mov_b32 v22, 0\nv_lshlrev_b32 v23, 7, v1\nv_add_u32 v23, {WS_CNT}, v23")
    A(f"global_store_dword v23, v22, {sp(WS)} sc1")
    A.label(nn)

    def publish_nonce(young):
        nn = uid("nn")
        A(f"s_lshl_b32 s{CNT}, s2, 3\ns_add_u32 s{CNT}, s{CNT}, s{WAVE}\ns_cmp_lg_u32 s{CNT}, 4")
        A(f"s_cbranch_scc1 {nn}")
        A(f"s_waitcnt vmcnt({young}) lgkmcnt(0)")
        A(f"s_add_u32 s3, s3, 1\ns_cmp_eq_u32 s3, 0\ns_cselect_b32 s3, 1, s3")
        A(f"v_mov_b32 v23, s3\nv_mov_b32 v22, 0")
        A(f"s_mov_b64 exec, 1\nglobal_store_dword v22, v23, {sp(DBG)} sc1")
        A(f"global_store_dword v22, v23, {sp(WS)} offset:{WS_NONCE}\ns_mov_b64 exec, -1")
        A.label(nn)
    if NOAUX:
        if BARP:
            A("s_barrier")
        publish_nonce(0)
        if CTW:
            for _ in range(E_("CTD", 100)):
                A("s_sleep 1")
            c_touch(A, vm)
        A("s_endpgm")
        return
    RA, RB, ROT, M0B, SOF, RV = 12, 20, 16, 17, 8, 176
    piece = make_piece(A, vm, RA, RB, ROT, M0B, SOF, RV)

    def loader_setup():
        A(f"s_lshl_b32 s{T4}, s{TI}, 18\ns_lshl_b32 s{T5}, s{TJ}, 17")
        srd(A, RA, BX, T4, 0, 0x40000)
        A(f"s_bitcmp1_b32 s{W_}, 0\ns_cselect_b32 s8, s{BIM}, s{BRE}\ns_cselect_b32 s9, s{BIM+1}, s{BRE+1}")
        srd(A, RB, 8, T5, 0, 0x20000)
        rot_setup(A, ROT, T4)
        A(f"s_lshl_b32 s{M0B}, s{W_}, 12")
        A(f"s_lshr_b32 s{T4}, s{W_}, 1\ns_and_b32 s{T5}, s{W_}, 1")
        dma_setup(A, T4, T5, RV, 96, CNT, 19)
    aux_setup_ax(A)
    aux_issue(A, vm)
    if WMODE == 0 and WPOS == 0:
        aux_setup_w(A)
        w_issue(A, vm)
    if BARP == 1:
        A("s_barrier")
    trace(A, 0, 0)
    make_F(A, 92)
    if WMODE == 0 and WPOS == 1:
        aux_setup_w(A)
        w_issue(A, vm)
    make_T(A, T, 92, 0)
    if WMODE == 0 and WPOS == 2:
        aux_setup_w(A)
        w_issue(A, vm)
    aux_pre_a(A)
    if WMODE == 0:
        aux_pre_w(A)
    if PRES:
        loader_setup()
    publish_nonce(len(vm.issued))
    trace(A, 0, 1)
    a1_task(A, vm)
    if WMODE:
        aux_setup_w(A)
        aux_pre_w(A)
    if not PRES:
        loader_setup()
    Lt = Asm()
    make_T(Lt, TT, 92, 1)
    later = Lt.lines
    issued = KS0
    if KS0 < NS and E_("PREK", 0):
        for n in range(8):
            piece(issued, n)
        issued += 1
    trace(A, 0, 6)
    A(f"s_setprio {LPRIO0}")
    KS = max(WSK if WMODE else KS0, ZPOS) + LA + 1
    assert KS + 2 <= 13
    for k in range(16):
        if k >= KS0:
            vm.wait_for(("st", k))
        trace(A, 0, 16 + k)
        A("s_barrier")
        while issued < min(16, k + LA + 1):
            for n in range(8):
                piece(issued, n)
            issued += 1
        if k == ZPOS:
            a1_stores(A, vm)
        if k == 2:
            A("v_mov_b32 v20, 0")
            vm.op(f"global_load_dword v21, v20, {sp(DBG)} sc1", "nonce")
        if k in CPK:
            code_touch(A, MSK)
        if WMODE:
            if k == WK:
                w_issue(A, vm)
            if k == WK + LA + 1:
                wt_read(A)
                A("s_waitcnt lgkmcnt(0)")
                wt_sym(A)
                wt_perm(A)
            if k == WSK:
                wt_store(A, vm)
        if k == KS - 1:
            assert not later
            a2_setup(A)
        if k == KS:
            x, y = uid("sg"), uid("sg")
            A(f"v_readfirstlane_b32 s{NONCE}, v21\ns_cmp_lg_u32 s{NONCE}, 0\ns_cbranch_scc1 {y}")
            get_nonce(A, 20)
            A.label(y)
            A(f"s_cmp_lg_u32 s{W_}, 0\ns_cbranch_scc1 {x}")
            A(f"s_and_b32 s{T4}, s2, 15\ns_lshl_b32 s{T5}, s{T4}, 7\ns_add_u32 s{T5}, s{T5}, {CNT_A}")
            A(f"s_add_u32 s{MSK}, s{WS}, s{T5}\ns_addc_u32 s{MSK+1}, s{WS+1}, 0\ns_mov_b32 s{PH_RES}, 1")
            A(f"s_atomic_add s{PH_RES}, {sp(MSK)}, 0x0 glc")
            A.label(x)
        if k == KS + 2:
            x = uid("sg")
            A(f"s_cmp_lg_u32 s{W_}, 0\ns_cbranch_scc1 {x}")
            A(f"s_waitcnt lgkmcnt(0)\ns_cmp_lg_u32 s{PH_RES}, 15\ns_cbranch_scc1 {x}")
            A(f"s_and_b32 s{T4}, s2, 15\ns_lshl_b32 s{T4}, s{T4}, 2\ns_add_u32 s{T4}, s{T4}, {FLG_A}\nv_lshl_add_u32 v22, v1, 7, s{T4}\nv_mov_b32 v23, s{NONCE}")
            A(f"global_store_dword v22, v23, {sp(WS)} sc1")
            A.label(x)
        if k == CTK and CTW == 0:
            c_touch(A, vm)
        if k < KS - 1:
            for _ in range(-(-len(later) // (KS - 1 - k))):
                A(later.pop(0))
    assert issued == 16
    A(f"s_setprio {LPRIO}")
    aux_rest(A, vm)
    trace(A, 0, 14)
    if TRACE:
        A("s_waitcnt vmcnt(0)")
    trace(A, 0, 15)
    trace_dump(A, 0, WAVE, 1)
    stamp_end(A, kidx, WAVE)
    A("s_endpgm")


M16 = "v_mfma_f32_16x16x32_bf16"
XRW = 144
L_XC = 114688


def cpow(A, d, zr, zi, n, t):
    if isinstance(n, str):
        A(f"v_mul_f32 v{t}, {n}, v{zr}\nv_mul_f32 v{t+1}, {n}, v{zi}")
    else:
        A(f"v_mul_f32 v{t}, {fl(n)}, v{zr}\nv_mul_f32 v{t+1}, {fl(n)}, v{zi}")
    A(f"v_exp_f32 v{t}, v{t}\nv_rndne_f32 v{t+2}, v{t+1}\nv_sub_f32 v{t+1}, v{t+1}, v{t+2}")
    A(f"v_cos_f32 v{t+2}, v{t+1}\nv_sin_f32 v{t+1}, v{t+1}")
    A(f"v_mul_f32 v{d}, v{t}, v{t+2}\nv_mul_f32 v{d+1}, v{t}, v{t+1}")


def gemm_waves(A, name, kidx):
    U = lambda pg, c, idx: 64 + (pg*2 + c)*16 + 2*idx
    ACC = lambda mt, nt: 64 + ((nt & 1)*2 + (nt >> 1))*16 + 4*mt
    FR = lambda X, f: (32 if X == 0 else 144) + 4*f
    AD = lambda st, op, k2: 128 + st*4 + op*2 + k2
    LAM = lambda pg: 20 + 2*pg
    KC = lambda pg: 24 + 2*pg
    L8 = lambda pg: 176 + 2*pg
    L16 = lambda pg: 180 + 2*pg
    PP = lambda pg: 184 + 4*pg
    PW = lambda pg, idx: 208 + 16*pg + 2*idx
    Q16, Q64, Q128, Q256 = 28, 192, 30, 2
    WT_, WP = T8, T6
    A(f"s_lshr_b32 s{WT_}, s{WAVE}, 1\ns_and_b32 s{WP}, s{WAVE}, 1\ns_lshr_b32 s{PG}, s{TJ}, 3")
    A("v_and_b32 v6, 31, v1\nv_lshrrev_b32 v5, 5, v1\nv_lshlrev_b32 v11, 4, v1")
    A("v_mov_b64 v[64:65], 0\nv_mov_b64 v[66:67], 0")
    A(f"s_mul_i32 s{T0}, s{WAVE}, {16*XRW}\ns_add_u32 s{T0}, s{T0}, {L_XC}\nv_add_u32 v13, s{T0}, v11\nv_mov_b32 v12, {L_SYNC}")
    A("ds_write_b128 v13, v[64:67]\nds_write_b128 v13, v[64:67] offset:1024\nds_write_b128 v13, v[64:67] offset:2048")
    A("s_mov_b64 exec, 1\nds_write_b128 v12, v[64:67]\nds_write_b128 v12, v[64:67] offset:16\nds_write_b128 v12, v[64:67] offset:32\nds_write_b128 v12, v[64:67] offset:48\nds_write_b128 v12, v[64:67] offset:64\ns_mov_b64 exec, -1")
    A(f"s_lshl_b32 s{T0}, s{WAVE}, 2\nv_add_u32 v13, s{T0}, v12")
    A("s_waitcnt lgkmcnt(0)\ns_barrier")
    A("v_bfe_u32 v4, v1, 2, 2\nv_lshlrev_b32 v4, 3, v4\nv_and_b32 v7, 3, v1\nv_add_u32 v4, v4, v7")
    A(f"s_lshl_b32 s{T0}, s{TJ}, 6\ns_lshl_b32 s{T1}, s{WP}, 5\ns_add_u32 s{T0}, s{T0}, s{T1}")
    A(f"v_add_u32 v4, s{T0}, v4\nv_lshlrev_b32 v7, 1, v4")
    RA, RB, ROT, M0B, SOF, RV = S2, S3, 38, 39, T2, 244
    dma_setup(A, WT_, WP, RV, 14, T1, T2)
    rot_setup(A, ROT, T0)
    A(f"s_lshl_b32 s{T0}, s{TI}, 18\ns_lshl_b32 s{T1}, s{TJ}, 17\ns_lshl_b32 s{M0B}, s{WAVE}, 12")
    A("s_waitcnt lgkmcnt(0)")
    PRM = 248
    for pg in range(2):
        A(f"global_load_ushort v{PRM+3*pg}, v7, {sp(LRE)} offset:{8*pg}\nglobal_load_ushort v{PRM+1+3*pg}, v7, {sp(LIM)} offset:{8*pg}\nglobal_load_ushort v{PRM+2+3*pg}, v7, {sp(LDT)} offset:{8*pg}")
    srd(A, RA, BX, T0, 0, 0x40000)
    A(f"s_cmp_eq_u32 s{WP}, 1\ns_cselect_b32 s{T2}, s{BIM}, s{BRE}\ns_cselect_b32 s{T3}, s{BIM+1}, s{BRE+1}")
    srd(A, RB, T2, T1, 0, 0x20000)
    vm1 = VmCounter(A)

    piece = make_piece(A, vm1, RA, RB, ROT, M0B, SOF, RV)
    for n in range(8):
        piece(0, n)
    A("v_bfe_u32 v7, v1, 4, 1\nv_lshl_add_u32 v4, v7, 2, v4")
    A("v_bfe_u32 v7, v6, 1, 3\nv_xor_b32 v7, v7, v5\nv_lshlrev_b32 v7, 4, v7\nv_lshl_add_u32 v7, v6, 7, v7")
    A("v_and_b32 v8, 15, v1\nv_lshrrev_b32 v9, 4, v1")
    A("v_lshrrev_b32 v14, 1, v8\nv_xor_b32 v14, v14, v9\nv_lshlrev_b32 v14, 4, v14\nv_lshl_add_u32 v14, v8, 7, v14")
    A(f"s_lshl_b32 s{T0}, s{WT_}, 13\ns_lshl_b32 s{T1}, s{WP}, 13\ns_add_u32 s{T1}, s{T1}, 16384")
    for k2 in range(2):
        A(f"v_xor_b32 v15, {k2 << 6}, v14")
        A(f"v_add_u32 v{AD(0,0,k2)}, s{T0}, v15\nv_add_u32 v{AD(0,1,k2)}, s{T1}, v15")
        A(f"v_add_u32 v{AD(1,0,k2)}, 0x10000, v{AD(0,0,k2)}\nv_add_u32 v{AD(1,1,k2)}, 0x10000, v{AD(0,1,k2)}")
    Areal, A = A, Asm()
    srd(A, S0, WS, None, WS_EG, 0x40000)
    srd(A, S1, WS, None, WS_HT, 64*TBS)
    A(f"s_mul_i32 s{T0}, s{WP}, {32*XRW}\ns_add_u32 s{T0}, s{T0}, {L_XC + 64}\ns_lshl_b32 s{T1}, s{WT_}, 5\ns_add_u32 s{T1}, s{T1}, s{T0}")
    A(f"v_mul_u32_u24 v14, {XRW}, v6\nv_add_u32 v14, s{T0}, v14\nv_lshl_add_u32 v14, v5, 5, v14")
    A(f"v_mul_u32_u24 v15, {XRW}, v8\nv_add_u32 v15, s{T1}, v15\nv_lshl_add_u32 v15, v9, 3, v15")
    A(f"s_lshl_b32 s{T0}, s{TI}, 14\nv_lshl_add_u32 v16, v4, 4, s{T0}")
    A("v_mov_b32 v17, 0x40000000\nv_lshlrev_b32 v10, 14, v5\nv_sub_u32 v10, v16, v10")
    LA_, LX = 194, 200
    for u in range(8):
        A(f"v_subrev_u32 v{136+u}, {16384 + u*32768}, v10\nv_cmp_le_i32 vcc, 0, v{136+u}\nv_cndmask_b32 v{136+u}, v17, v{136+u}, vcc")
    A("v_lshlrev_b32 v17, 30, v5\nv_or_b32 v16, v16, v17")
    A(f"s_lshl_b32 s{T0}, s{TI}, 11\ns_add_u32 s{T0}, s{T0}, {FLG_X}\ns_lshl_b32 s{T1}, s{TJ}, 7\ns_add_u32 s{T1}, s{T1}, s{T0}\nv_mov_b32 v195, s{T1}")
    A(f"s_lshl_b32 s{T1}, s{PG}, 10\ns_add_u32 s{T0}, s{T0}, s{T1}\nv_and_b32 v196, 7, v1\nv_lshl_add_u32 v196, v196, 7, s{T0}")
    A(f"s_lshl_b32 s{T0}, s{TI}, 1\ns_add_u32 s{T0}, s{T0}, s{WT_}\ns_lshl_b32 s{T0}, s{T0}, 12\ns_add_u32 s{T0}, s{T0}, {FLG_H}")
    A(f"s_lshl_b32 s{T1}, s{PG}, 11\ns_add_u32 s{T1}, s{T1}, s{T0}\nv_lshl_add_u32 v18, v8, 7, s{T1}")
    A(f"s_lshl_b32 s{T1}, s{TJ}, 8\ns_add_u32 s{T0}, s{T0}, s{T1}\ns_lshl_b32 s{T1}, s{WP}, 7\ns_add_u32 s{T0}, s{T0}, s{T1}\nv_mov_b32 v19, s{T0}")
    A("v_lshrrev_b32 v10, 1, v9\nv_lshlrev_b32 v10, 10, v10\nv_and_b32 v17, 1, v9\nv_lshl_add_u32 v10, v17, 9, v10\nv_lshl_add_u32 v10, v8, 4, v10")
    A(f"s_lshl_b32 s{T0}, s{WT_}, 2\nv_add_u32 v9, s{T0}, v9\nv_cvt_f32_u32 v9, v9\nv_mul_f32 v9, 0x41800000, v9\nv_add_f32 v8, 0x41000000, v9")
    A("PARAMWAIT")
    ZR, ZI = 204, 206
    for pg in range(2):
        lr, li, dt, t = PRM+3*pg, PRM+1+3*pg, PRM+2+3*pg, 197
        A(f"v_lshlrev_b32 v{lr}, 16, v{lr}\nv_lshlrev_b32 v{li}, 16, v{li}\nv_lshlrev_b32 v{dt}, 16, v{dt}")
        A(f"v_mul_f32 v{dt}, 0x3fb8aa3b, v{dt}\nv_exp_f32 v{dt}, v{dt}")
        A(f"v_cvt_pk_bf16_f32 v{dt}, v{dt}, v{dt}\nv_lshlrev_b32 v{dt}, 16, v{dt}")
        A(f"v_mul_f32 v{ZR+pg}, v{dt}, v{lr}\nv_mul_f32 v{ZI+pg}, v{dt}, v{li}")
        A(f"v_mul_f32 v{ZR+pg}, 0x3fb8aa3b, v{ZR+pg}\nv_mul_f32 v{ZI+pg}, 0.15915494, v{ZI+pg}")
        cpow(A, LAM(pg), ZR+pg, ZI+pg, 1.0, t)
        A(f"v_add_f32 v{t}, -1.0, v{LAM(pg)}")
        A(f"v_mul_f32 v{t+1}, v{lr}, v{lr}\nv_fma_f32 v{t+1}, v{li}, v{li}, v{t+1}\nv_rcp_f32 v{t+1}, v{t+1}")
        A(f"v_add_f32 v{t+1}, v{t+1}, v{t+1}")
        A(f"v_mul_f32 v{t+2}, v{t}, v{lr}\nv_fma_f32 v{t+2}, v{LAM(pg)+1}, v{li}, v{t+2}\nv_mul_f32 v{KC(pg)}, v{t+2}, v{t+1}")
        A(f"v_mul_f32 v{t+2}, v{LAM(pg)+1}, v{lr}\nv_fma_f32 v{t+2}, -v{t}, v{li}, v{t+2}\nv_mul_f32 v{KC(pg)+1}, v{t+2}, v{t+1}")
        cpow(A, L8(pg), ZR+pg, ZI+pg, 8.0, t)
        cpow(A, L16(pg), ZR+pg, ZI+pg, 16.0, t)
        for e in range(2):
            cpow(A, 200, ZR+pg, ZI+pg, f"v{9-e}", t)
            A(f"v_mov_b32 v{PP(pg)+e}, v200\nv_mov_b32 v{PP(pg)+2+e}, v201")
        for idx in range(8):
            sr, si = (KC(pg), KC(pg)+1) if idx == 0 else (PW(pg, idx-1), PW(pg, idx-1)+1)
            A(f"v_mul_f32 v{t}, v{si}, v{LAM(pg)+1}\nv_mul_f32 v{t+1}, v{si}, v{LAM(pg)}")
            A(f"v_fma_f32 v{PW(pg,idx)}, v{sr}, v{LAM(pg)}, -v{t}\nv_fma_f32 v{PW(pg,idx)+1}, v{sr}, v{LAM(pg)+1}, v{t+1}")
    A(f"v_and_b32 v197, 16, v1\nv_cmp_ne_u32 vcc, 0, v197\nv_cndmask_b32 v{ZR}, v{ZR}, v{ZR+1}, vcc\nv_cndmask_b32 v{ZI}, v{ZI}, v{ZI+1}, vcc")
    for d, n in ((Q16, 16.0), (Q64, 64.0), (Q128, 128.0), (Q256, 256.0)):
        cpow(A, d, ZR, ZI, n, 197)
    A("v_lshrrev_b32 v197, 4, v1\nv_lshlrev_b32 v197, 2, v197\nv_and_b32 v198, 15, v1\nv_sub_u32 v197, v198, v197\nv_mov_b32 v198, 0x3f80\nv_mov_b32 v199, 1.0")
    for c in range(4):
        A(f"v_cmp_eq_u32 vcc, {c}, v197\nv_cndmask_b32 v{248+c}, 0, v198, vcc\nv_cndmask_b32 v{252+c}, 0, v199, vcc")

    deferred, A = A.lines, Areal
    pw = deferred.index("PARAMWAIT")
    for l in deferred[:pw]:
        A(l)
    deferred = deferred[pw+1:]
    assert KS0 <= NPRE
    if DEFER:
        for k in range(1, KS0):
            for n in range(8):
                piece(k, n)
    else:
        npre = 8
        if P1 == 0 and KS0 > 1:
            for n in range(8):
                piece(1, n)
            npre = 16
        A(f"s_waitcnt vmcnt({npre})")
        rest = [(k, n) for k in range(npre//8, KS0) for n in range(8)]
        lo, hi = int(len(deferred)*P2A/100), int(len(deferred)*P2B/100)
        at = [lo + (hi - lo)*q//max(1, len(rest)) for q in range(len(rest))]
        for i, l in enumerate(deferred):
            while at and at[0] <= i and l.startswith("v_") and not l.startswith("v_cnd"):
                at.pop(0)
                piece(*rest.pop(0))
            A(l)
        for r_ in rest:
            piece(*r_)
        deferred = []
    order = [0, 4, 5, 6, 7, 1, 2, 3]
    need = {0: 2, 1: 3, 2: 4, 3: 5, 4: 6, 8: 7, 12: 8}

    def rd(k, k2, f):
        slot = k % NS
        st, off = slot >> 1, (slot & 1)*32768
        A(f"ds_read_b128 {v(FR(k2, f), 4)}, v{AD(st, f >> 2, k2)} offset:{off + (f & 3)*2048}")
    trace_init(A, 0)
    trace(A, 0, 0)
    A(f"s_setprio {GPRIO}")
    def ring_arrive(k, t=197):
        A(f"s_mov_b64 exec, 1\nv_mov_b32 v{t}, {k}\nds_write_b32 v13, v{t} offset:{RING_D}\ns_mov_b64 exec, -1")
    vm1.wait_for(("st", 0))
    A("s_barrier")
    trace(A, 0, 1)
    for f in order:
        rd(0, 0, f)
    for k in range(16):
        for k2 in range(2):
            nk, nk2 = (k, 1) if k2 == 0 else (k+1, 0)
            have = nk < 16
            if k2 == 1:
                w = f"vmcnt({vm1.wait_for(('st', k+1), emit=False)}) " if k + 1 < KS0 else ""
                A(f"s_waitcnt {w}lgkmcnt(0)")
                if have:
                    A("s_barrier")
            if k == 13 and k2 == 0:
                assert not deferred, len(deferred)
                A(f"v_mov_b32 v8, 0\nglobal_load_dword v9, v8, {sp(DBG)} sc1")
            n = 0
            for m in range(16):
                if k2 == 0 and m in need:
                    A(f"s_waitcnt lgkmcnt({8 - need[m] + n})")
                mt, nt = m >> 2, m & 3
                if "m" not in G1X or k + k2 == 0:
                    A(f"{M16} {v(ACC(mt,nt),4)}, {v(FR(k2,mt),4)}, {v(FR(k2,4+nt),4)}, {'0' if k + k2 == 0 else v(ACC(mt,nt),4)}")
                if have and n < 8:
                    if "r" not in G1X:
                        rd(nk, nk2, order[n])
                    n += 1
                elif k >= DK0:
                    for _ in range(DEFER):
                        if deferred:
                            A(deferred.pop(0))
            if k == 15 and k2 == 0:
                nl, ng = uid("n"), uid("ng")
                A.label(nl)
                A(f"s_waitcnt vmcnt(0)\nv_readfirstlane_b32 s{NONCE}, v9\ns_cmp_lg_u32 s{NONCE}, 0\ns_cbranch_scc1 {ng}")
                A(f"global_load_dword v9, v8, {sp(DBG)} sc1\ns_branch {nl}")
                A.label(ng)
                A(f"s_getreg_b32 s{T0}, hwreg(HW_REG_XCC_ID, 0, 4)\ns_lshl_b32 s{T1}, s{NONCE}, 4\ns_or_b32 s{LOCAL}, s{T0}, s{T1}")
                A(f"v_mov_b32 v194, s{LOCAL}\nv_mov_b32 v202, s{NONCE}\nv_mov_b32 v203, s{NONCE}")
            if TRACE == 2 and k2 == 1:
                trace(A, 0, 40 + k)
    mark(A, 1)
    trace(A, 0, 2)
    bc_a = "op_sel_hi:[0,1,1]"
    bc_b = "op_sel:[1,0,0]"
    TT = 40
    for idx in range(1, 8):
        for half in range(2):
            for pg in range(2):
                L, t = v(LAM(pg), 2), TT + 4*pg
                pr, pi, ur, ui = (v(x, 2) for x in (U(pg, 0, idx-1), U(pg, 1, idx-1), U(pg, 0, idx), U(pg, 1, idx)))
                if half == 0:
                    A(f"v_pk_fma_f32 {v(t,2)}, {L}, {pr}, {ur} {bc_a}\nv_pk_fma_f32 {v(t+2,2)}, {L}, {pi}, {ui} {bc_a}")
                else:
                    A(f"v_pk_fma_f32 {ur}, {L}, {pi}, {v(t,2)} {bc_b} {N0}\nv_pk_fma_f32 {ui}, {L}, {pr}, {v(t+2,2)} {bc_b}")
    for pg in range(2):
        er, ei = U(pg, 0, 7), U(pg, 1, 7)
        horner(A, 32+2*pg, 33+2*pg, L8(pg), er, ei, er+1, ei+1, TT)
        A(f"ds_write_b64 v15, {v(32+2*pg,2)} offset:{16*XRW*pg}")
    trace(A, 0, 3)
    A("s_waitcnt lgkmcnt(0)")
    ring_arrive(17)
    l_, d_ = uid("ek"), uid("ekd")
    A.label(l_)
    A(f"ds_read_b128 v[198:201], v12 offset:{RING_D}\ns_waitcnt lgkmcnt(0)")
    A("v_min3_u32 v197, v198, v199, v200\nv_min_u32 v197, v197, v201")
    A(f"v_readfirstlane_b32 s{T0}, v197\ns_cmp_lt_u32 s{T0}, 17\ns_cbranch_scc1 {l_}")
    trace(A, 0, 4)
    SG = 48
    A(f"ds_read_b128 {v(SG,4)}, v14\nds_read_b128 {v(SG+4,4)}, v14 offset:16")
    P = 200
    A("s_waitcnt lgkmcnt(1)")
    horner(A, 32, 33, Q16, SG, SG+1, SG+2, SG+3, TT)
    A("s_waitcnt lgkmcnt(0)")
    horner(A, 34, 35, Q16, 32, 33, SG+4, SG+5, TT)
    horner(A, 32, 33, Q16, 34, 35, SG+6, SG+7, TT)
    A("v_mov_b32 v34, v32\nv_mov_b32 v35, v33\nv_permlane32_swap_b32 v32, v34\nv_permlane32_swap_b32 v33, v35")
    horner(A, P, P+1, Q64, 32, 33, 34, 35, TT)
    np_ = uid("np")
    A(f"s_cmp_lg_u32 s{WT_}, 0")
    A(f"s_cbranch_scc1 {np_}")
    A(f"buffer_store_dwordx4 {v(P,4)}, v16, {r4(S0)}, 0 offen sc1")
    A(f"s_cmp_lg_u32 s{WP}, 0")
    A(f"s_cbranch_scc1 {np_}")
    A(f"s_mov_b64 exec, 1\nglobal_store_dword v195, v194, {sp(WS)} sc1\ns_mov_b64 exec, -1")
    A.label(np_)
    mark(A, 2)
    trace(A, 0, 5)
    A(f"global_load_dword v243, v18, {sp(WS)} sc1")
    LB = 144

    def lbloads():
        for u in range(8):
            A(f"buffer_load_dwordx4 {v(LB+4*u,4)}, v{136+u}, {r4(S0)}, 0 offen sc1")
        A(f"global_load_dword v197, v196, {sp(WS)} sc1")
    QS = 32
    A("v_add_u32 v15, -56, v15")
    for pg in range(2):
        for w in range(7):
            A(f"ds_read_b64 {v(QS+14*pg+2*w,2)}, v15 offset:{16*XRW*pg + 8*w}")
    QQ = lambda pg: 128 + 4*pg
    TQ = 60
    A("s_waitcnt lgkmcnt(0)")
    for pg in range(2):
        b = QS + 14*pg
        for w in range(1, 6):
            horner(A, b+2*w, b+2*w+1, L16(pg), b+2*w-2, b+2*w-1, b+2*w, b+2*w+1, TQ)
        horner(A, QQ(pg), QQ(pg)+2, L16(pg), b+10, b+11, b+12, b+13, TQ)
        horner(A, QQ(pg)+1, QQ(pg)+3, L8(pg), QQ(pg), QQ(pg)+2, U(pg, 0, 7), U(pg, 1, 7), TQ)
    trace(A, 0, 6)
    O = 32
    cnt = 0
    if LBAT == 0:
        lbloads()
    for idx in range(8):
        for pg in range(2):
            d0, d1, K_, o = v(U(pg, 0, idx), 2), v(U(pg, 1, idx), 2), v(KC(pg), 2), O + 4*pg
            A(f"v_pk_mul_f32 {v(o,2)}, {K_}, {d0} op_sel_hi:[0,1]")
            A(f"v_pk_mul_f32 {v(o+2,2)}, {K_}, {d1} op_sel_hi:[0,1] neg_lo:[1,0] neg_hi:[1,0]")
            A(f"v_pk_fma_f32 {v(o+2,2)}, {K_}, {d0}, {v(o+2,2)} {bc_b} {N0}")
            A(f"v_pk_fma_f32 {d0}, {K_}, {d1}, {v(o,2)} {bc_b} {N0}")
            A(f"v_mov_b64 {d1}, {v(o+2,2)}")
            cnt += 1
            if cnt == LBAT:
                lbloads()
    trace(A, 0, 7)
    A("v_mov_b32 v14, 1\ns_mov_b64 exec, 1\nds_write_b32 v13, v14\ns_mov_b64 exec, -1")
    M0B, RH, RCc, SH, SC = T7, T5, T4, T3, T2
    ACC2 = lambda nt: 32 + 16*nt
    CF = lambda X, nt: 96 + 16*X + 4*nt
    XR, CV = 128, 244
    HR = lambda s_: 148 + 4*(s_ % HD)
    L_OWN = 65536
    A(f"s_xor_b32 s{T0}, s{WT_}, s{PG}\ns_xor_b32 s{T0}, s{T0}, 1\ns_lshl_b32 s{T0}, s{T0}, 6\ns_add_u32 s{T0}, s{T0}, s{WP}")
    A(f"v_lshrrev_b32 v8, 3, v1\nv_lshl_add_u32 v8, v8, 1, s{T0}\nv_lshlrev_b32 v8, 11, v8")
    A("v_and_b32 v14, 7, v1\nv_lshrrev_b32 v15, 4, v1\nv_xor_b32 v14, v14, v15\nv_lshlrev_b32 v14, 4, v14\nv_xor_b32 v15, 64, v14")
    for u in range(4):
        A(f"v_add_u32 v{CV+u}, v8, v{14 + (u & 1)}")
        if u:
            A(f"v_add_u32 v{CV+u}, {u*(16*2048 - 1024)}, v{CV+u}")
    A(f"s_and_b32 s{RCc}, s{TJ}, 7\ns_lshl_b32 s{T0}, s{RCc}, 18\ns_lshl_b32 s{T1}, s{PG}, 10\ns_add_u32 s{T0}, s{T0}, s{T1}")
    srd(A, S2, CRE, T0, 0, 0x40000, T1)
    srd(A, S3, CIM, T0, 0, 0x40000, T1)
    A(f"s_lshl_b32 s{T1}, s{RCc}, 1\ns_add_u32 s{T1}, s{T1}, s{PG}\ns_lshl_b32 s{T1}, s{T1}, 7")
    A(f"s_lshl_b32 s{SH}, s{TI}, 1\ns_add_u32 s{SH}, s{SH}, s{WT_}\ns_lshl_b32 s{T0}, s{SH}, 17\ns_add_u32 s{T0}, s{T0}, s{T1}")
    srd(A, S4, BX, T0, 0, 0x20000, T1)
    A(f"s_add_u32 s{DSK}, s{DSK}, s{T1}\ns_addc_u32 s{DSK+1}, s{DSK+1}, 0")
    A(f"s_lshl_b32 s{T1}, s{T1}, 1\ns_add_u32 s{T1}, s{T1}, 4096\ns_lshl_b32 s{T0}, s{SH}, 19\ns_add_u32 s{T0}, s{T0}, s{T1}")
    A(f"s_add_u32 s{OUT}, s{OUT}, s{T0}\ns_addc_u32 s{OUT+1}, s{OUT+1}, 0\ns_sub_u32 s{LDT}, 0x80000, s{T1}")
    A(f"s_lshl_b32 s{M0B}, s{WAVE}, 12\ns_lshl_b32 s{RH}, s{RCc}, 13\ns_lshl_b32 s{RCc}, s{RCc}, 7")
    A(f"s_lshl_b32 s{T0}, s{WT_}, 14\ns_lshl_b32 s{T1}, s{WP}, 11\ns_add_u32 s{T0}, s{T0}, s{T1}\ns_add_u32 s{T0}, s{T0}, {L_OWN}\nv_add_u32 v16, s{T0}, v10")
    A(f"s_lshl_b32 s{T0}, s{WAVE}, 13\ns_add_u32 s{T0}, s{T0}, {L_OWN}\nv_add_u32 v17, s{T0}, v11")
    for ks in range(4):
        A(f"v_xor_b32 v{20+ks}, {ks << 5}, v7\nv_add_u32 v{24+ks}, 0x10000, v{20+ks}")
    HB = LIM
    A(f"s_mul_i32 s{HB}, s{SH}, {2*TBS}\ns_lshl_b32 s{T1}, s{TJ}, 13\ns_add_u32 s{HB}, s{HB}, s{T1}\ns_lshl_b32 s{T1}, s{WP}, 11\ns_add_u32 s{HB}, s{HB}, s{T1}")
    for u in range(8):
        A(f"v_cmp_gt_u32 vcc, 0x40000, v{136+u}\nv_cndmask_b32 v{40+u}, 0, v202, vcc")
    A(f"s_mov_b32 s{T9}, 0")
    trace(A, 0, 8)
    pl, pd = uid("poll"), uid("polled")
    A.label(pl)
    A("v_mov_b32 v8, 0")
    for u in range(8):
        A(f"s_waitcnt vmcnt({8-u})")
        A(f"v_bitop3_b32 v8, v8, v{LB+4*u+2}, v{40+u} bitop3:0xf6\nv_bitop3_b32 v8, v8, v{LB+4*u+3}, v{40+u} bitop3:0xf6")
    A("s_waitcnt vmcnt(0)\nv_xor_b32 v197, v194, v197\nv_lshrrev_b32 v9, 4, v197\nv_or_b32 v8, v8, v9\nv_cmp_ne_u32 vcc, 0, v8")
    A(f"s_cbranch_vccz {pd}")
    A(f"s_add_u32 s{T9}, s{T9}, 1\ns_cmp_ge_u32 s{T9}, {SPIN_MAX}")
    A(f"s_cbranch_scc1 {pd}")
    lbloads()
    A(f"s_branch {pl}")
    A.label(pd)
    A(f"v_cmp_ne_u32 vcc, 0, v197\ns_cmp_eq_u64 vcc, 0\ns_cselect_b32 s{LOCAL}, {0 if FORCE_REMOTE else 1}, 0")
    mark(A, 3)
    trace(A, 0, 9)
    if TRACE:
        A(f"v_writelane_b32 v0, s{T9}, 63")
    vm = VmCounter(A)

    def cdma(g, us):
        for u in us:
            if u == 0:
                A(f"s_add_u32 m0, s{M0B}, {(g % R)*16384}")
                if g % 2 == 0:
                    A(f"s_add_u32 s{SC}, s{RCc}, {(g >> 1)*128}\ns_and_b32 s{SC}, s{SC}, 0x3ff")
            vm.op(f"buffer_load_dwordx4 v{CV+u}, {r4(S2 if g % 2 == 0 else S3)}, s{SC} offen offset:{u*1024}{NTC} lds", ("c", g))
    cdma(0, range(4))
    cdma(1, range(4))
    A("v_mov_b32 v14, 2\ns_mov_b64 exec, 1\nds_write_b32 v13, v14\ns_mov_b64 exec, -1")
    H0 = LB + 28
    cur = (H0, H0+1)
    for u in range(6, -1, -1):
        d = (48, 49) if cur[0] == H0 else (H0, H0+1)
        horner(A, d[0], d[1], Q256, cur[0], cur[1], LB+4*u, LB+4*u+1, TT)
        cur = d
    assert cur == (48, 49)
    A("v_mov_b32 v50, v48\nv_mov_b32 v51, v49\nv_permlane32_swap_b32 v48, v50\nv_permlane32_swap_b32 v49, v51")
    horner(A, 52, 53, Q128, 50, 51, 48, 49, TT)
    A("v_mov_b32 v54, v52\nv_mov_b32 v55, v53\nv_permlane16_swap_b32 v52, v54\nv_permlane16_swap_b32 v53, v55")
    trace(A, 0, 10)
    G = lambda pg: QQ(pg)
    for pg in range(2):
        Hh, gr, gi, pr, pi = v(52+2*pg, 2), v(G(pg), 2), v(G(pg)+2, 2), v(PP(pg), 2), v(PP(pg)+2, 2)
        A(f"v_pk_fma_f32 {gr}, {Hh}, {pr}, {gr} {bc_a}\nv_pk_fma_f32 {gi}, {Hh}, {pi}, {gi} {bc_a}")
        A(f"v_pk_fma_f32 {gr}, {Hh}, {pi}, {gr} {bc_b} {N0}\nv_pk_fma_f32 {gi}, {Hh}, {pr}, {gi} {bc_b}")
    PK = lambda pg, c, idx: 144 + (pg*2 + c)*8 + idx
    D = lambda c, X, pg: 32 + ((c*2 + X)*2 + pg)*4

    def fix(pg, idx):
        d0, d1, pw, gr, gi = v(U(pg, 0, idx), 2), v(U(pg, 1, idx), 2), v(PW(pg, idx), 2), v(G(pg), 2), v(G(pg)+2, 2)
        A(f"v_pk_fma_f32 {d0}, {pw}, {gr}, {d0} {bc_a}")
        A(f"v_pk_fma_f32 {d1}, {pw}, {gi}, {d1} {bc_a} {N0}")
        A(f"v_pk_fma_f32 {d0}, {pw}, {gi}, {d0} {bc_b} {N0}")
        A(f"v_pk_fma_f32 {d1}, {pw}, {gr}, {d1} {bc_b} {N0}")
        for c in range(2):
            A(f"v_cvt_pk_bf16_f32 v{PK(pg,c,idx)}, v{U(pg,c,idx)}, v{U(pg,c,idx)+1}")

    def tr(u):
        for c in range(2):
            for X in range(2):
                for pg in range(2):
                    A(f"{M16} {v(D(c,X,pg),4)}, {v(PK(pg,c,4*u),4)}, {v(248+4*X,4)}, 0")

    def st(u):
        for c in range(2):
            for X in range(2):
                q = 176 + 16*u + (c*2 + X)*4
                A(f"s_add_u32 s{T1}, s{HB}, {X*TBS + c*4096}")
                for jj in range(4):
                    A(f"v_cvt_pk_bf16_f32 v{q+jj}, v{D(c,X,0)+2*jj}, v{D(c,X,0)+2*jj+1}")
                vm.op(f"buffer_store_dwordx4 {v(q,4)}, v10, {r4(S1)}, s{T1} offen offset:{u*256} sc1", "hst")
                A(f"ds_write_b128 v16, {v(q,4)} offset:{X*8192 + c*4096 + u*256}")
    for u in range(2):
        for idx in range(4*u, 4*u + 4):
            for pg in range(2):
                fix(pg, idx)
            if u == 1 and idx == 5:
                st(0)
                trace(A, 0, 12)
        tr(u)
        if u == 0:
            trace(A, 0, 11)
    st(1)
    mark(A, 4)
    trace(A, 0, 13)
    NK = 64

    def arrive(val):
        A(f"v_mov_b32 v14, {val}")
        A("s_mov_b64 exec, 1\nds_write_b32 v13, v14\ns_mov_b64 exec, -1")

    def check(val, off=0, first=False):
        l, d = uid("ck"), uid("ckd")
        if first:
            A(f"ds_read_b128 v[8:11], v12 offset:{off}\ns_waitcnt lgkmcnt(0)")
        A.label(l)
        A("v_min3_u32 v15, v8, v9, v10\nv_min_u32 v15, v15, v11")
        A(f"v_readfirstlane_b32 s{T0}, v15")
        A(f"s_cmp_ge_u32 s{T0}, {val}")
        A(f"s_cbranch_scc1 {d}")
        A(f"ds_read_b128 v[8:11], v12 offset:{off}\ns_waitcnt lgkmcnt(0)")
        A(f"s_branch {l}")
        A.label(d)

    def hload(s_):
        if s_ % 4 == 0:
            A(f"s_add_u32 s{SH}, s{RH}, {(s_ >> 2)*4096}\ns_and_b32 s{SH}, s{SH}, 0xffff")
        vm.op(f"buffer_load_dwordx4 {v(HR(s_),4)}, v2, {r4(S0)}, s{SH} offen offset:{(s_ & 3)*1024} sc1", ("h", s_))

    def rd2(s_, nts):
        g, ks = s_ >> 2, s_ & 3
        slot = g % R
        base = 20 if slot < 4 else 24
        for nt in nts:
            A(f"ds_read_b128 {v(CF(s_ & 1, nt),4)}, v{base+ks} offset:{(slot & 3)*16384 + nt*4096}")

    def mf(s_, nt):
        c = "0" if s_ == 0 else v(ACC2(nt), 16)
        if E_("HACK16", 0) & 2:
            for z in range(2):
                d = ACC2(nt) + 8*(s_ & 1) + 4*z
                A(f"v_mfma_f32_16x16x32_bf16 {v(d,4)}, {v(HR(s_),4)}, {v(CF(s_ & 1, nt),4)}, {'0' if s_ < 2 else v(d,4)}")
        else:
            A(f"{MF} {v(ACC2(nt),16)}, {v(HR(s_),4)}, {v(CF(s_ & 1, nt),4)}, {c}")
    A("v_mov_b32 v2, v11")
    A(f"s_lshl_b32 s{T0}, s{TI}, 2\ns_add_u32 s{T0}, s{T0}, s{WAVE}\ns_mul_i32 s{T0}, s{T0}, {TBS}\ns_lshl_b32 s{T1}, s{PG}, 16\ns_add_u32 s{T0}, s{T0}, s{T1}")
    srd(A, S0, WS, T0, WS_HT, 0x10000)
    if not OWNFIRST and C23:
        cdma(2, range(4))
        cdma(3, range(4))
    A(f"s_waitcnt vmcnt({vm.wait_for(('c', 1), emit=False)}) lgkmcnt(0)")
    trace(A, 0, 14)
    arrive(3)
    check(3, first=True)
    trace(A, 0, 15)
    for s_ in range(8):
        A(f"ds_read_b128 {v(HR(s_),4)}, v17 offset:{s_*1024}")
    hn = [8]

    def pause():
        A(f"s_lshl_b32 s{T0}, s{WP}, 3\nv_lshl_add_u32 v17, v5, 4, s{T0}")
        A("v_lshlrev_b32 v28, 11, v17\nv_lshl_add_u32 v28, v6, 2, v28")
        A("v_lshlrev_b32 v29, 13, v17\nv_lshl_add_u32 v29, v6, 3, v29")
        A(f"v_lshlrev_b32 v30, 2, v6\nv_mov_b32 v15, s{NONCE}")
        a, b = uid("rs"), uid("rd")
        trace(A, 0, 16)
        vm.wait_for("hst")
        trace(A, 0, 17)
        A(f"s_mov_b64 exec, 1\ns_cmp_eq_u32 s{LOCAL}, 0\ns_cbranch_scc1 {a}")
        A(f"global_store_dword v19, v15, {sp(WS)}\ns_branch {b}")
        A.label(a)
        A(f"global_store_dword v19, v15, {sp(WS)} sc1")
        A.label(b)
        A("s_mov_b64 exec, -1")
        if not E_("GM", 0):
            mark(A, 5)
        check(4, first=True)
        if not NOAUX:
            check(LIMG_FREE, 16, first=True)
        if CTOUCH == 5:
            xtouch(1)
        if CTOUCH == 8:
            ctouch()
        for gg in range(4 if C23 else 2, CPOLL):
            cdma(gg, range(4))
        trace(A, 0, 18)
        wait_cnt(A, 18, 8, SLP_H)
        trace(A, 0, 19)
        vm.issued = []
        if not E_("GM", 0):
            mark(A, 6)
        if OWNFIRST:
            arrive(5)
        gg = max(4, CPOLL)
        while hn[0] < 8 + HPRE:
            hload(hn[0])
            hn[0] += 1
            if hn[0] % 4 == 0 and gg < CPRE:
                cdma(gg, range(4))
                gg += 1
        assert gg == CPRE
        if OWNFIRST:
            check(5, first=True)
        trace(A, 0, 20)
        rd2(8 if OWNFIRST else 0, range(4))

    def flag_store():
        a, b = uid("rs"), uid("rd")
        A(f"s_mov_b64 exec, 1\ns_cmp_eq_u32 s{LOCAL}, 0\ns_cbranch_scc1 {a}")
        A(f"global_store_dword v19, v15, {sp(WS)}\ns_branch {b}")
        A.label(a)
        vm.op(f"global_store_dword v19, v15, {sp(WS)} sc1", "flag")
        A.label(b)
        A("s_mov_b64 exec, -1")
    if HTAG:
        A("s_waitcnt lgkmcnt(0)")
        arrive(4)
        A(f"s_lshl_b32 s{T0}, s{WP}, 3\nv_lshl_add_u32 v17, v5, 4, s{T0}")
        A("v_lshlrev_b32 v28, 11, v17\nv_lshl_add_u32 v28, v6, 2, v28")
        A("v_lshlrev_b32 v29, 13, v17\nv_lshl_add_u32 v29, v6, 3, v29")
        A(f"v_lshlrev_b32 v30, 2, v6\nv_mov_b32 v15, s{NONCE}")
        if HTAG == 1:
            wl, wd = uid("hw"), uid("hwd")
            A(f"s_add_u32 s{T1}, s{RH}, 8192\ns_and_b32 s{T1}, s{T1}, 0xffff\ns_mov_b32 s{CNT}, 0\ns_waitcnt lgkmcnt(0)")
            A.label(wl)
            A(f"s_load_dwordx4 s[4:7], {sp(S0)}, s{T1} offset:{4096 + 1024 + 1008} glc\ns_load_dwordx4 s[8:11], {sp(S0)}, s{T1} offset:{4096 + 3072 + 1008} glc")
            A(f"s_add_u32 s{CNT}, s{CNT}, 1\ns_waitcnt lgkmcnt(0)")
            for q in range(2):
                A(f"s_xor_b64 s[{4+2*q}:{5+2*q}], s[{4+2*q}:{5+2*q}], s[{HT_+2*q}:{HT_+2*q+1}]\ns_xor_b64 s[{8+2*q}:{9+2*q}], s[{8+2*q}:{9+2*q}], s[{HT_+2*q}:{HT_+2*q+1}]")
            A("s_or_b64 s[4:5], s[4:5], s[6:7]\ns_or_b64 s[8:9], s[8:9], s[10:11]\ns_or_b64 s[4:5], s[4:5], s[8:9]\ns_or_b32 s4, s4, s5\ns_and_b32 s4, s4, 0x10001")
            A(f"s_cbranch_scc0 {wd}\ns_cmp_lt_u32 s{CNT}, {SPIN_MAX}\ns_cbranch_scc1 {wl}")
            A.label(wd)
        if HTAG == 3:
            vm.wait_for('hst')
            flag_store()
        if HTAG == 2 and HDLY:
            A(f"s_waitcnt vmcnt({vm.wait_for('hst', emit=False) + HDLY})")
        mark(A, 6)
        for s_ in range(8, 16):
            hload(s_)
        hn[0] = 16
        if HTAG != 3:
            vm.wait_for("hst")
            flag_store()
        if not E_("GM", 0):
            mark(A, 5)
        check(4, first=True)
        if not NOAUX:
            check(LIMG_FREE, 16, first=True)
        for gg in range(4, CPOLL):
            cdma(gg, range(4))
        rd2(0, range(4))
    elif OWNFIRST:
        rd2(0, range(4))
        A("s_waitcnt lgkmcnt(4)")
        arrive(4)
    else:
        A("s_waitcnt lgkmcnt(0)")
        arrive(4)
        pause()
    have_c = lambda g: any(t == ("c", g) for t in vm.issued)
    for s_ in range(NK):
        g, ks = s_ >> 2, s_ & 3
        nxt = s_ + 1
        more = nxt < NK and not (nxt == 8 and OWNFIRST)
        ws = []
        if s_ >= 8:
            ws.append(vm.wait_for(("h", s_), emit=False))
        arr = (s_ + 4) % 8 == 0 and s_ + 4 < NK and (s_ >= 8 or not OWNFIRST)
        if arr:
            gl = ((s_ + 4) >> 2) + 1
            if have_c(gl):
                ws.append(vm.wait_for(("c", gl), emit=False))
        wv = f"vmcnt({min(ws)}) " if ws else ""
        newgrp = more and nxt % 8 == 0
        full = newgrp or not more or s_ == 0
        nc = 2 if s_ >= NK - NDEF else 4
        nn = (2 if nxt >= NK - NDEF else 4) if more else 0
        if full:
            A(f"s_waitcnt {wv}lgkmcnt(0)")
            if newgrp:
                check((nxt >> 3) + 4)
                trace(A, 0, 20 + (nxt >> 3))
                if nxt == 32 and not E_('GM', 0):
                    mark(A, 7)
        else:
            A(f"s_waitcnt {wv}lgkmcnt({nc-1})")
        extra = 0
        if arr:
            arrive(((s_ + 4) >> 3) + 4)
            extra = 1
        issued_n = 0
        for nt in range(nc):
            if nt and not full:
                A(f"s_waitcnt lgkmcnt({nc - 1 - nt + extra + issued_n})")
            mf(s_, nt)
            if nt < 2 and issued_n < nn and (nt == 0 or nn == 4):
                rd2(nxt, [issued_n, issued_n + 1])
                issued_n += 2
            if nt == nc - 2:
                if s_ < 8 and OWNFIRST:
                    if C23:
                        cdma(2 + g, [ks])
                elif CPRE <= g + CD < NK//4:
                    cdma(g + CD, [ks])
        assert issued_n == nn
        if HTAG:
            if s_ < 4*(CPRE - CPOLL):
                cdma(CPOLL + g, [ks])
            if s_ == 6:
                tl, td = uid("ht"), uid("htd")
                A(f"s_mov_b32 s{CNT}, 0")
                vm.wait_for(("h", 15))
                A.label(tl)
                A("v_mov_b32 v4, 0")
                for r in range(32):
                    A(f"v_bitop3_b32 v4, v4, v{HR(8)+r}, s{HT_+(r & 3)} bitop3:0xf6")
                A(f"v_and_b32 v4, 0x10001, v4\nv_cmp_ne_u32 vcc, 0, v4\ns_cbranch_vccz {td}")
                A(f"s_add_u32 s{CNT}, s{CNT}, 1\ns_cmp_ge_u32 s{CNT}, {SPIN_MAX}\ns_cbranch_scc1 {td}")
                keep = list(vm.issued)
                for s2_ in range(8, 16):
                    hload(s2_)
                vm.issued = keep
                A(f"s_waitcnt vmcnt(0)\ns_branch {tl}")
                A.label(td)
                if STAMP == 1:
                    A(f"s_add_u32 s72, s70, s{CNT}")
            if s_ == HFI:
                vm.op(f"global_load_dword v16, v18, {sp(WS)} sc1", "fp")
            if s_ == HFC:
                fd = uid("hf")
                vm.wait_for("fp")
                A(f"v_cmp_ne_u32 vcc, s{NONCE}, v16\ns_cbranch_vccz {fd}")
                wait_cnt(A, 18, 16, 1)
                A.label(fd)
        if (s_ >= (HFC if HTAG else 8) or not (OWNFIRST or HTAG)) and hn[0] < NK:
            for _ in range(3 if HTAG else 2):
                if hn[0] < NK and hn[0] <= s_ + HD:
                    hload(hn[0])
                    hn[0] += 1
        if (s_ + 2) % 8 == 0 and s_ + 2 < NK and (s_ >= 8 or not OWNFIRST):
            A("ds_read_b128 v[8:11], v12")
        if s_ == NK - 18:
            vm.op(f"global_load_dword v31, v30, {sp(DSK)}", "dsk")
        if NK - 17 <= s_ < NK - 1:
            e = s_ - (NK - 17)
            q, r = e >> 2, e & 3
            A(f"s_mov_b32 s{T0}, {(32*(q & 1) + 4*(q >> 1) + (r & 2))*2048}")
            vm.op(f"buffer_load_dword v{XR+e}, v28, {r4(S4)}, s{T0} offen offset:{(r & 1)*2048}", ("x", e))
        if s_ == 7 and OWNFIRST:
            pause()
    mark(A, 8)
    trace(A, 0, 28)
    TG = T0
    A(f"s_mul_i32 s{TG}, s{NONCE}, 0x9e3779b1\ns_and_b32 s{TG}, s{TG}, 0xbfff0000\ns_or_b32 s{TG}, s{TG}, 0x20000000")
    A(f"s_sub_u32 s{T1}, s{NONCE}, 1\ns_xor_b32 s{T1}, s{T1}, s{TG}\ns_cmp_lt_u32 s{T1}, 0x10000\ns_cselect_b32 s{T1}, 0x10000, 0\ns_xor_b32 s{TG}, s{TG}, s{T1}")
    if INOUT:
        A(f"s_lshl_b32 s{T4}, s{PG}, 9\ns_sub_i32 s{T4}, 256, s{T4}\ns_ashr_i32 s{T5}, s{T4}, 31")
        A(f"s_add_u32 s{S2}, s{OUT}, s{T4}\ns_addc_u32 s{S2+1}, s{OUT+1}, s{T5}\ns_sub_u32 s{S2+2}, s{LDT}, s{T4}\ns_mov_b32 s{S2+3}, 0x20000")
        A(f"s_mov_b32 s{S3}, s{OUT}\ns_mov_b32 s{S3+1}, s{OUT+1}\ns_mov_b32 s{S3+2}, s{LDT}\ns_mov_b32 s{S3+3}, 0x20000")
        A(f"s_lshl_b32 s{T4}, s{WP}, 16\nv_lshrrev_b32 v3, 4, v1\nv_lshlrev_b32 v3, 13, v3\nv_and_b32 v4, 15, v1\nv_lshl_add_u32 v3, v4, 4, v3\nv_add_u32 v3, s{T4}, v3")
        xad = lambda gq: (f"s_mov_b32 s{T4}, {(16*(gq >> 1) + 4*(gq & 1))*8192}\n", f"v3, SRD, s{T4} offen")
    else:
        A(f"s_lshl_b32 s{T4}, s{TI}, 4\ns_add_u32 s{T4}, s{T4}, s{TJ}\ns_lshl_b32 s{T4}, s{T4}, 2\ns_add_u32 s{T4}, s{T4}, s{WAVE}\ns_lshl_b32 s{T4}, s{T4}, 13")
        srd(A, S2, WS, T4, WS_XB, 0x2000)
        A(f"s_xor_b32 s{T4}, s{T4}, {8 << 15}")
        srd(A, S3, WS, T4, WS_XB, 0x2000)
        A(f"s_movk_i32 s{T4}, 0x1000")
        xad = lambda gq: ("", f"v2, SRD, {'0' if gq < 4 else f's{T4}'} offen offset:{(gq & 3)*1024}")
    val = lambda n: ACC2(n & 1) + (n >> 1)
    TXR, RX = [96, 100, 244, 248, 252], 180
    for gq in range(5):
        for c in range(4):
            n = 7*gq + 2*c
            lo = f"v{val(min(n, 31))}"
            hi = f"s{TG}" if c == 3 else f"v{val(min(n+1, 31))}"
            A(f"v_cvt_pk_bf16_f32 v{TXR[gq]+c}, {lo}, {hi}")
        A(f"{xad(gq)[0]}buffer_store_dwordx4 {v(TXR[gq],4)}, {xad(gq)[1].replace('SRD', r4(S2))} sc1")

    def rx():
        for gq in range(5):
            A(f"{xad(gq)[0]}buffer_load_dwordx4 {v(RX+4*gq,4)}, {xad(gq)[1].replace('SRD', r4(S3))} sc1")
    if NDEF:
        rd2(NK - NDEF, [2, 3])
        for s_ in range(NK - NDEF, NK):
            if s_ + 1 < NK:
                rd2(s_ + 1, [2, 3])
                A("s_waitcnt lgkmcnt(2)")
            else:
                A("s_waitcnt lgkmcnt(0)")
            mf(s_, 2)
            mf(s_, 3)
    trace(A, 0, 29)
    if E_("XM", 0):
        mark(A, 3)
    A("s_waitcnt vmcnt(5)")
    if E_("XM", 0):
        mark(A, 5)
    trace(A, 0, 30)
    A("v_lshlrev_b32 v8, 16, v31\nv_and_b32 v9, 0xffff0000, v31")
    YO = lambda e: 148 + 2*e
    for e in range(16):
        t = YO(e)
        A(f"v_lshlrev_b32 v{t}, 16, v{XR+e}\nv_and_b32 v{t+1}, 0xffff0000, v{XR+e}")
        A(f"v_pk_mul_f32 {v(t,2)}, {v(t,2)}, v[8:9]")
        A(f"v_cvt_pk_bf16_f32 v10, v{t}, v{t+1}")
        A(f"v_lshlrev_b32 v{t}, 16, v10\nv_and_b32 v{t+1}, 0xffff0000, v10")
        A(f"v_add_f32 v{t}, v{t}, v{ACC2(2)+e}\nv_add_f32 v{t+1}, v{t+1}, v{ACC2(3)+e}")
    A(f"s_mov_b32 s{S1}, s{OUT}\ns_mov_b32 s{S1+1}, s{OUT+1}\ns_mov_b32 s{S1+2}, s{LDT}\ns_mov_b32 s{S1+3}, 0x20000")
    xl, xd = uid("xl"), uid("xd")
    A(f"s_mov_b32 s{CNT}, 0")
    if XPOLL:
        assert not INOUT
        wl, wd = uid("xw"), uid("xwd")
        A.label(wl)
        A(f"s_load_dword s{T1}, {sp(S3)}, {0x1000 + 63*16 + 12} glc\ns_add_u32 s{CNT}, s{CNT}, 1\ns_waitcnt lgkmcnt(0)")
        A(f"s_xor_b32 s{T1}, s{T1}, s{TG}\ns_cmp_lt_u32 s{T1}, 0x10000\ns_cbranch_scc1 {wd}")
        A(f"s_cmp_lt_u32 s{CNT}, {SPIN_MAX}\ns_cbranch_scc1 {wl}")
        A.label(wd)
        A(f"s_mov_b32 s{CNT}, 0")
    trace(A, 0, 31)
    if XPOLL != 2:
        A(f"s_waitcnt vmcnt({E_('XW', 0)})")
    if E_("XM", 0):
        mark(A, 6)
    rx()
    A.label(xl)
    A("v_mov_b32 v10, 0")
    for gq in range(5):
        A(f"s_waitcnt vmcnt({4-gq})")
        A(f"v_bitop3_b32 v10, v10, v{RX+4*gq+3}, s{TG} bitop3:0xf6")
    A("v_cmp_lt_u32 vcc, 0xffff, v10")
    A(f"s_cbranch_vccz {xd}")
    A(f"s_add_u32 s{CNT}, s{CNT}, 1\ns_cmp_ge_u32 s{CNT}, {SPIN_MAX}")
    A(f"s_cbranch_scc1 {xd}")
    rx()
    A(f"s_branch {xl}")
    A.label(xd)
    trace(A, 0, 32)
    if STAMP:
        A(f"s_add_u32 s74, s70, s{CNT}\ns_lshl_b32 s{CNT}, s{LOCAL}, 8\ns_add_u32 s74, s74, s{CNT}")
        mark(A, 4)
    for e in range(16):
        q, r = e >> 2, e & 3
        t = YO(e)
        for nt in range(2):
            n = 2*e + nt
            src = RX + 4*(n // 7) + (n % 7)//2
            if (n % 7) % 2 == 0:
                A(f"v_lshlrev_b32 v{10+nt}, 16, v{src}")
            else:
                A(f"v_and_b32 v{10+nt}, 0xffff0000, v{src}")
        A(f"v_pk_add_f32 {v(t,2)}, {v(t,2)}, v[10:11]")
        A(f"s_mov_b32 s{T4}, {(32*(q & 1) + 4*(q >> 1) + r)*8192}")
        A(f"buffer_store_dwordx2 {v(t,2)}, v29, {r4(S1)}, s{T4} offen{OSTB}")
    trace(A, 0, 33)
    if TRACE:
        A("s_waitcnt vmcnt(0)")
    trace(A, 0, 34)
    trace_dump(A, 0, WAVE, 1)
    stamp_end(A, kidx, WAVE)


def gen_fused(A, name, kidx):
    KNAME_[0] = name
    A(f".globl {name}\n.p2align 8\n.type {name},@function")
    A.label(name)
    A("s_cmp_ge_u32 s2, 256")
    A(f"s_cbranch_scc1 L_{name}_end")
    A("s_load_dwordx16 s[4:19], s[0:1], 0")
    A("s_load_dwordx8 s[20:27], s[0:1], 64")
    A("s_load_dwordx4 s[28:31], s[0:1], 96")
    A("s_load_dwordx2 s[32:33], s[0:1], 112")
    stamp_begin(A)
    A("v_lshrrev_b32 v2, 6, v0\nv_and_b32 v1, 63, v0")
    A(f"v_readfirstlane_b32 s{WAVE}, v2")
    A(f"s_and_b32 s{T0}, s2, 7\ns_lshr_b32 s{T1}, s2, 3")
    A(f"s_lshr_b32 s{TI}, s{T0}, 1\ns_lshl_b32 s{TI}, s{TI}, 2\ns_lshr_b32 s{T2}, s{T1}, 3\ns_add_u32 s{TI}, s{TI}, s{T2}")
    A(f"s_and_b32 s{TJ}, s{T0}, 1\ns_lshl_b32 s{TJ}, s{TJ}, 3\ns_and_b32 s{T2}, s{T1}, 7\ns_add_u32 s{TJ}, s{TJ}, s{T2}")
    if SWAP:
        A(f"s_xor_b32 s{WAVE}, s{WAVE}, 4")
    A(f"s_cmp_ge_u32 s{WAVE}, 4")
    A(f"s_cbranch_scc0 L_{name}_gemm")
    aux_waves(A, name, kidx)
    A.label(f"L_{name}_gemm")
    gemm_waves(A, name, kidx)
    A.label(f"L_{name}_end")
    A("s_endpgm")
    return kdesc(name, 256)
```

```python
import os
from asmlib import *
from common import *

E_ = lambda k, d: int(os.environ.get(k, str(d)))
XO, NP, RI, RJ = E_("XO", 0), E_("NP", 1), E_("RI", 1), E_("RJ", 1)
XO2, NP2 = E_("XO2", 2), E_("NP2", 1)
PRO = E_("PRO", 2)
HD = E_("HD", 24)
CD = E_("CD", 4)
NOAUX = E_("NOAUX", 0)
CODEPF = E_("CODEPF", 1)
NS = E_('NS', 3)
LASW = E_('LASW', 99)
R = 7
LA = E_('LA', 2)
FORCE_REMOTE = E_('FORCE_REMOTE', 0)
MF = "v_mfma_f32_32x32x16_bf16"
N0 = "neg_lo:[1,0,0] neg_hi:[1,0,0]"

AX, WR, WI, BX, LRE, LIM, BRE, BIM, CRE, CIM, LDT, DSK, OUT, DBG, WS = 4, 6, 8, 10, 12, 14, 16, 18, 20, 22, 24, 26, 28, 30, 32
WAVE, TI, TJ, NONCE, TBL = 34, 35, 36, 37, 38
S0, S1, S2, S3, S4 = 40, 44, 48, 52, 56
T0, T1, T2, T3, T4, T5, T6, T7, T8, T9 = range(60, 70)
MSK, CNT, LOCAL, PG = 90, 92, 100, 101
L_XCH = 122880
L_SYNC = 126976
L_AX = 131072
L_W = 147456
WS_CNT = 0x1000
CNT_A, CNT_B, CNT_W = WS_CNT, WS_CNT + 16*128, WS_CNT + 32*128
FLG_A, FLG_B, FLG_W = 0x84000, 0x86000, 0x88000
FLG_X = 0x8000
FLG_H = 0x60000
CPRO1 = E_("CPRO1", 2)
CPRO2 = E_("CPRO2", 2)
CTOUCH = E_("CTOUCH", 4)
TBS = 131072 + E_("TBPAD", 0)
FTOUCH = E_("FTOUCH", 1)
XTOUCH = E_("XTOUCH", 0)
NREP = E_("NREP", 32)
NDEF = E_("NDEF", 12)
HTAG = 0
HDLY = E_("HDLY", 0)
HFI, HFC = E_("HFI", 7), E_("HFC", 10)
XPOLL = E_("XPOLL", 2)
OWNFIRST = E_("OWNFIRST", 1) and not HTAG
C01, C23 = E_("C01", 1), E_("C23", 1)
INOUT = E_("INOUT", 0)
KS_ = 32768 if INOUT else 8192
ISH = 16384 if INOUT else 4096
CTK, CPOLL, CPRE, HPRE = E_("CTK", 13), E_("CPOLL", 6), E_("CPRE", 7), E_("HPRE", 8)
HLOC, HLK = E_("HLOC", 0), E_("HLK", 13)
LBAT = E_("LBAT", 16)
XBF = E_("XBF", 1)
SLP_H, SLP_A = E_("SLP_H", 4), E_("SLP_A", 10)
NT = " nt" if E_("NT", 1) else ""
NTX = " nt"
OST = {0: "", 1: " nt", 2: " sc1", 3: " sc1 nt", 4: " sc0 sc1 nt", 5: " sc0 nt"}[E_("OST", 1)]
NTK = E_("NTK", 0)
OSTB = {0: "", 1: " nt", 2: " sc1", 3: " sc1 nt", 4: " sc0 sc1 nt", 5: " sc0 nt"}[E_("OSTB", 1)]
NTC = " nt" if E_("NTC", 0) else ""


def sp(a):
    return f"s[{a}:{a+1}]"


def srd(A, d, base, soff=None, const=0, size=None, size_s=None):
    if soff is None and const == 0:
        A(f"s_mov_b32 s{d}, s{base}\ns_mov_b32 s{d+1}, s{base+1}")
    else:
        if soff is not None and const:
            A(f"s_add_u32 s{d+2}, s{soff}, {const}")
            o = f"s{d+2}"
        elif soff is not None:
            o = f"s{soff}"
        else:
            o = str(const)
        A(f"s_add_u32 s{d}, s{base}, {o}\ns_addc_u32 s{d+1}, s{base+1}, 0")
    if size_s is not None:
        A(f"s_sub_u32 s{d+2}, {size}, s{size_s}")
    else:
        A(f"s_mov_b32 s{d+2}, {size}")
    A(f"s_mov_b32 s{d+3}, 0x20000")


def r4(d):
    return f"s[{d}:{d+3}]"


_u = [0]


def uid(p):
    _u[0] += 1
    return f"L_{p}{_u[0]}"


def get_nonce(A, vt):
    l, d = uid("n"), uid("nd")
    A(f"v_mov_b32 v{vt}, 0")
    A.label(l)
    A(f"global_load_dword v{vt+1}, v{vt}, {sp(DBG)} sc1")
    A("s_waitcnt vmcnt(0)")
    A(f"v_readfirstlane_b32 s{NONCE}, v{vt+1}")
    A(f"s_cmp_eq_u32 s{NONCE}, 0")
    A(f"s_cbranch_scc1 {l}")


def signal(A, sshard, cnt, flg, expect, vt):
    d = uid("sg")
    A(f"s_lshl_b32 s{CNT}, s{sshard}, 7\ns_add_u32 s{CNT}, s{CNT}, {cnt}")
    A(f"v_mov_b32 v{vt}, s{CNT}\nv_mov_b32 v{vt+1}, 1")
    A("s_waitcnt vmcnt(0)")
    A("s_mov_b64 exec, 1")
    A(f"global_atomic_add v{vt+2}, v{vt}, v{vt+1}, {sp(WS)} sc0 sc1")
    A(f"v_add_u32 v{vt}, {flg - cnt}, v{vt}\nv_mov_b32 v{vt+1}, s{NONCE}")
    A("s_waitcnt vmcnt(0)")
    A(f"v_readfirstlane_b32 s{CNT}, v{vt+2}")
    A(f"s_add_u32 s{CNT}, s{CNT}, 1\ns_cmp_lg_u32 s{CNT}, {expect}")
    A(f"s_cbranch_scc1 {d}")
    A(f"global_store_dword v{vt}, v{vt+1}, {sp(WS)} sc1")
    A.label(d)
    A("s_mov_b64 exec, -1")


def set_flag(A, soff, vt):
    A(f"v_mov_b32 v{vt}, s{soff}\nv_mov_b32 v{vt+1}, s{NONCE}")
    A("s_waitcnt vmcnt(0)")
    A("s_mov_b64 exec, 1")
    A(f"global_store_dword v{vt}, v{vt+1}, {sp(WS)} sc1")
    A("s_mov_b64 exec, -1")


def wait_cnt(A, vaddr, vt, sleep):
    l, d = uid("w"), uid("wd")
    A(f"s_mov_b32 s{CNT}, 0")
    A.label(l)
    A(f"global_load_dword v{vt}, v{vaddr}, {sp(WS)} sc1")
    A("s_waitcnt vmcnt(0)")
    A(f"v_cmp_ne_u32 vcc, s{NONCE}, v{vt}")
    A(f"s_cbranch_vccz {d}")
    if sleep:
        A(f"s_sleep {sleep}")
    A(f"s_add_u32 s{CNT}, s{CNT}, 1\ns_cmp_lt_u32 s{CNT}, {SPIN_MAX}")
    A(f"s_cbranch_scc1 {l}")
    A.label(d)


F, T = 192, 224


import struct as _st


def fl(x):
    return hex(_st.unpack("<I", _st.pack("<f", x))[0])


def lane_float(A, vn, vh, t):
    A(f"v_and_b32 v{t}, 31, v1\nv_cvt_f32_u32 v{t}, v{t}\nv_lshrrev_b32 v{t+1}, 5, v1\nv_lshlrev_b32 v{t+1}, 2, v{t+1}\nv_cvt_f32_u32 v{t+1}, v{t+1}")


def make_F(A, t):
    lane_float(A, None, None, t)
    A(f"v_mul_f32 v{t+1}, v{t}, v{t+1}\nv_mul_f32 v{t+1}, {fl(1/32)}, v{t+1}")
    for i in range(16):
        c = 8*(i >> 2) + (i & 3)
        a = t + 2 + 3*(i & 1)
        A(f"v_fmamk_f32 v{a}, v{t}, {fl(c/32)}, v{t+1}\nv_fract_f32 v{a}, v{a}")
        A(f"v_cos_f32 v{a+1}, v{a}\nv_sin_f32 v{a+2}, v{a}")
        A(f"v_cvt_pk_bf16_f32 v{F+i}, v{a+1}, v{a+2}\nv_cvt_pk_bf16_f32 v{F+16+i}, -v{a+2}, v{a+1}")


def make_T(A, dst, t, half):
    lane_float(A, None, None, t)
    if not half:
        A(f"v_mul_f32 v{t+1}, v{t}, v{t+1}\nv_mul_f32 v{t+1}, {fl(1/1024)}, v{t+1}")
    else:
        A(f"v_mul_f32 v{t}, {fl(1/2048)}, v{t}\nv_fmamk_f32 v{t+1}, v{t+1}, {fl(1/64)}, v{t}")
    for i in range(16):
        c = 8*(i >> 2) + (i & 3)
        a = t + 2 + (i & 1)
        if not half:
            A(f"v_fmamk_f32 v{a}, v{t}, {fl(c/1024)}, v{t+1}")
        else:
            A(f"v_add_f32 v{a}, {fl(c/64)}, v{t+1}")
        A(f"v_cos_f32 v{dst+i}, v{a}\nv_sin_f32 v{dst+16+i}, -v{a}")


def stage1(A, src, D, stride=4):
    if "m" in os.environ.get("SK", ""):
        return
    for c in range(2):
        for s_ in range(4):
            cc = "0" if s_ == 0 else v(D+16*c, 16)
            A(f"{MF} {v(D+16*c,16)}, {v(src+stride*s_,4)}, {v(F+16*c+4*s_,4)}, {cc}")


def twiddle(A, D, dst, tmp, rng=range(16)):
    for i in (rng if "t" not in os.environ.get("SK", "") else []):
        re, im, tr, ti = D+i, D+16+i, T+i, T+16+i
        t = tmp + 2*(i & 3)
        A(f"v_mul_f32 v{t}, v{re}, v{tr}\nv_mul_f32 v{t+1}, v{re}, v{ti}")
        A(f"v_fma_f32 v{t}, -v{im}, v{ti}, v{t}\nv_fmac_f32 v{t+1}, v{im}, v{tr}")
        A(f"v_cvt_pk_bf16_f32 v{dst+i}, v{t}, v{t+1}")


def stage2(A, src, D):
    if "m" in os.environ.get("SK", ""):
        return
    for c in range(2):
        for s_ in range(4):
            cc = "0" if s_ == 0 else v(D+16*c, 16)
            A(f"{MF} {v(D+16*c,16)}, {v(F+16*c+4*s_,4)}, {v(src+4*s_,4)}, {cc}")


W_ = T6
NBW = 2048*513*2
SQ, SO, ST = 184, 185, 186
VA1, VA2, VA8, VLIN = 4, 5, 6, 7
_ph = [0]


def l_arrive(A):
    _ph[0] += 1
    A(f"v_mov_b32 v{ST+4}, {_ph[0]}")
    A(f"s_mov_b64 exec, 1\nds_write_b32 v{SO}, v{ST+4}\ns_mov_b64 exec, -1")
    return _ph[0]


def l_check(A, n, delta=0, slp=1):
    l, d = uid("lc"), uid("lcd")
    if delta:
        A(f"v_add_u32 v{ST+5}, {delta}, v{SQ}")
    A.label(l)
    A(f"ds_read_b128 {v(ST,4)}, v{ST+5 if delta else SQ}\ns_waitcnt lgkmcnt(0)")
    A(f"v_min3_u32 v{ST}, v{ST}, v{ST+1}, v{ST+2}\nv_min_u32 v{ST}, v{ST}, v{ST+3}")
    A(f"v_readfirstlane_b32 s{CNT}, v{ST}")
    A(f"s_cmp_ge_u32 s{CNT}, {n}")
    A(f"s_cbranch_scc1 {d}")
    A(f"s_sleep {slp}\ns_branch {l}")
    A.label(d)


def l_check_loose(A, n, delta):
    l = uid("ll")
    A(f"v_add_u32 v{ST+5}, {delta}, v{SQ}")
    for i in range(4):
        A(f"v_mov_b32 v{ST+i}, 0")
    A.label(l)
    A(f"ds_read_b128 {v(ST,4)}, v{ST+5}\ns_sleep 1")
    A(f"v_min3_u32 v{ST+4}, v{ST}, v{ST+1}, v{ST+2}\nv_min_u32 v{ST+4}, v{ST+4}, v{ST+3}")
    A(f"v_readfirstlane_b32 s{CNT}, v{ST+4}")
    A(f"s_cmp_lt_u32 s{CNT}, {n}")
    A(f"s_cbranch_scc1 {l}")


def l_sync(A):
    l_check(A, l_arrive(A))


def aux_setup_ax(A):
    srd(A, S2, WR, size=NBW)
    srd(A, S3, WI, size=NBW)
    A(f"s_and_b32 s{T0}, s2, 31\ns_lshr_b32 s{T1}, s2, 5\ns_lshl_b32 s{T1}, s{T1}, 7\ns_add_u32 s{T0}, s{T0}, s{T1}")
    A(f"s_lshl_b32 s{T1}, s{W_}, 5\ns_add_u32 s{T7}, s{T0}, s{T1}\ns_lshl_b32 s{T0}, s{T7}, 12")
    srd(A, AX, AX, T0, 0, 0x1000)
    A("v_lshlrev_b32 v2, 4, v1\nv_xor_b32 v3, 128, v2")
    A(f"s_lshl_b32 s{T8}, s{W_}, 12\ns_add_u32 s{T8}, s{T8}, {L_AX}")


def aux_setup_w(A):
    A(f"s_and_b32 s{T0}, s2, 7\ns_bfe_u32 s{T1}, s2, 0x10003\ns_bfe_u32 s{T2}, s2, 0x20004\ns_lshr_b32 s{T3}, s2, 6")
    A(f"s_lshr_b32 s{T4}, s{T0}, 1\ns_lshl_b32 s{T4}, s{T4}, 3\ns_lshl_b32 s{T5}, s{T1}, 2\ns_add_u32 s{T4}, s{T4}, s{T5}")
    A(f"s_and_b32 s{T5}, s{T0}, 1\ns_lshl_b32 s{T5}, s{T5}, 1\ns_add_u32 s{T4}, s{T4}, s{T5}\ns_lshl_b32 s{T4}, s{T4}, 5")
    A(f"s_lshl_b32 s{T5}, s{T2}, 3\ns_add_u32 s{T4}, s{T4}, s{T5}\ns_lshl_b32 s{T5}, s{W_}, 1\ns_add_u32 s{T4}, s{T4}, s{T5}\ns_mul_i32 s{T4}, s{T4}, 1026")
    A(f"s_lshl_b32 s{T5}, s{T3}, 8\ns_add_u32 s{T9}, s{T4}, s{T5}")
    A("v_bfe_u32 v8, v1, 4, 1\nv_mul_u32_u24 v8, 32832, v8")
    A(f"v_lshrrev_b32 v9, 5, v1\ns_mov_b32 s{T5}, 1050624\nv_mul_lo_u32 v9, s{T5}, v9\nv_add_u32 v8, v8, v9")
    A(f"v_and_b32 v9, 15, v1\ns_lshl_b32 s{T5}, s{W_}, 1\nv_xor_b32 v9, s{T5}, v9")
    A("v_lshl_add_u32 v18, v9, 4, v8\nv_xor_b32 v9, 1, v9\nv_lshl_add_u32 v19, v9, 4, v8\nv_add_u32 v19, 1026, v19")
    A(f"s_bfe_u32 s{T4}, s2, 0x20005\ns_lshl_b32 s{T4}, s{T4}, 8\ns_bfe_u32 s{T5}, s2, 0x10004\ns_lshl_b32 s{T5}, s{T5}, 6\ns_add_u32 s{T4}, s{T4}, s{T5}")
    A(f"s_bfe_u32 s{T5}, s2, 0x10003\ns_lshl_b32 s{T5}, s{T5}, 7\ns_add_u32 s{T4}, s{T4}, s{T5}\ns_and_b32 s{T5}, s2, 7\ns_lshl_b32 s{T5}, s{T5}, 2\ns_add_u32 s{T4}, s{T4}, s{T5}")
    A(f"v_bfe_u32 v8, v1, 3, 2\nv_add_u32 v8, s{T4}, v8\nv_bfe_u32 v9, v1, 2, 1\nv_lshl_add_u32 v8, v9, 5, v8\nv_bfe_u32 v9, v1, 1, 1\nv_lshl_add_u32 v8, v9, 10, v8")
    A("v_sub_u32 v9, 2048, v8\nv_and_b32 v9, 2047, v9\nv_and_b32 v10, 1, v1\nv_cmp_eq_u32 vcc, 1, v10\nv_cndmask_b32 v8, v8, v9, vcc")
    A(f"v_mul_u32_u24 v17, 1026, v8\ns_lshr_b32 s{T4}, s2, 7\ns_lshl_b32 s{T4}, s{T4}, 10\nv_add_u32 v17, s{T4}, v17")


def aux_setup2(A):
    make_F(A, 92)
    make_T(A, T, 92, 0)
    make_T(A, TT, 92, 1)


def aux_issue(A, vm):
    for c in range(2):
        A(f"s_add_u32 m0, s{T8}, {c*2048}")
        A(f"s_mov_b32 s{CNT}, {c*2048}")
        for u in range(2):
            vm.op(f"buffer_load_dwordx4 v{2+c}, {r4(AX)}, s{CNT} offen offset:{u*1024}{NT} lds", "ax")


def w_issue(A, vm):
    for bb in range(2):
        for arr in range(2):
            A(f"s_add_u32 m0, s{T8}, {L_W - L_AX + bb*2048 + arr*1024}")
            vm.op(f"buffer_load_dwordx4 v{18+bb}, {r4(S2 if arr == 0 else S3)}, s{T9} offen{NT} lds" if "1" not in SK else f"buffer_load_dword v23, v2, {r4(AX)}, 0 offen offset:4092", "w")
    nw = uid("nw")
    A(f"s_cmp_lg_u32 s{W_}, {3 if not ('1' in SK or 'p' in SK) else 9}\ns_cbranch_scc1 {nw}")
    A("s_mov_b32 exec_hi, 0")
    A(f"buffer_load_ushort v{WSP}, v17, {r4(S2)}, 0 offen{NT}")
    A(f"buffer_load_ushort v{WSP+1}, v17, {r4(S3)}, 0 offen{NT}")
    A("s_mov_b64 exec, -1")
    A.label(nw)


WSP, IN, D, MID, TMP = 88, 24, 40, 72, 168
DY, W, TT = 72, 104, 136
M_, SPC, CJ, SGN = T0, T1, T2, T3
AUXK = E_("AUXK", 5)
GATE = E_("GATE", 0)
WK = E_("WK", 1)
WMID = WK <= 12
WSK = E_("WSK", 8)
A1K = E_("A1K", 0)
FINE = E_("FINE", 1)
ZSK = E_("ZSK", A1K + 3 + FINE)
LATE = A1K >= 6
A2G = E_("A2G", 0)
A3G = E_("A3G", 0)
ZG = E_("ZG", 0)
CTW = E_("CTW", 0)
POLLK = E_("POLLK", 15)
VTLB, VTN, VTF = E_("VTLB", 0), E_("VTN", 1), (" nt" if E_("VTF", 1) else "")
TLBW = E_("TLBW", 0)
DEFER = E_("DEFER", 2)
DK0 = E_("DK0", 0)
LPOS = E_("LPOS", 6)
BARP = E_("BARP", 1)
SWAP = E_("SWAP", 1)
WPOS = E_("WPOS", 0)
ZPOS = E_("ZPOS", -1)
WTK = E_("WTK", 3)
EARLY2 = E_("EARLY2", 1)
SNON = E_("SNON", 0)
PRES = E_("PRES", 1)
NPRE = E_("NPRE", 3)
KS0 = E_("KS0", 2)
P1, P2A, P2B = E_("P1", 0), E_("P2A", 50), E_("P2B", 95)
LDEF = E_("LDEF", 0)
LSLP = E_("LSLP", 1)
WSH = E_("WSH", 1)
PRE1, PRE2 = E_("PRE1", 6), E_("PRE2", 12)
HALF = E_("HALF", 0)
WEARLY = E_("WEARLY", 0)
KA, KA0, KA1, KAG = E_("KA", 0), E_("KA0", 1), E_("KA1", 15), E_("KAG", 0)
G1X = os.environ.get("G1X", "")
WMODE = E_("WMODE", 0)
CPK = [int(x) for x in os.environ.get("CPK", "").split(",") if x]
WXT = E_("WXT", 0)
RSLP = E_("RSLP", 1)
PAL = E_("PAL", 0)
NREPA = E_("NREPA", 8)
AXT = E_("AXT", 0)
APRIO, GPRIO = E_("APRIO", 0), E_("GPRIO", 0)
FM, CM = E_("FM", 12), E_("CM", 4)
DMAP = os.environ.get("DMAP", "5,9,13,17,21,25,29,33")
CSP, CSP0, CSB, CSPH = E_("CSP", 0), E_("CSP0", 2), E_("CSB", 12), E_("CSPH", 1)
SK = os.environ.get("SK", "")
A2C = E_("A2C", 0)
LPRIO3 = E_("LPRIO3", 0)
LPRIO0 = E_("LPRIO0", 3)
LPRIO, LPRIO2 = E_('LPRIO', 0), E_('LPRIO2', 0)
L_IMG = 98304
LIMG_FREE = 2


def img(i):
    ka = 8*(i >> 2) + (i & 3)
    return (VA1, ka*1024) if i < 8 else (VA8, 0) if i == 8 else (VA2, (27 - ka)*1024)


def aux_pre_a(A):
    A(f"v_mov_b32 v{SQ}, {L_SYNC + 16}\ns_lshl_b32 s{T4}, s{W_}, 2\nv_add_u32 v{SO}, s{T4}, v{SQ}")
    A("v_and_b32 v8, 31, v1\nv_lshrrev_b32 v9, 5, v1\nv_and_b32 v10, 1, v1")
    A(f"v_lshrrev_b32 v11, 1, v8\nv_lshlrev_b32 v{VA1}, 6, v11\nv_lshl_add_u32 v{VA1}, v10, 4, v{VA1}\nv_lshl_add_u32 v{VA1}, v9, 12, v{VA1}")
    A(f"v_add_u32 v11, v11, v10\nv_lshlrev_b32 v11, 6, v11\nv_lshl_add_u32 v11, v10, 4, v11\nv_lshl_add_u32 v11, v9, 12, v11\nv_sub_u32 v{VA2}, {5120 + 48}, v11")
    for r in (VA1, VA2):
        A(f"v_bfe_u32 v11, v{r}, 7, 1\nv_lshlrev_b32 v11, 5, v11\nv_xor_b32 v{r}, v{r}, v11")
    A(f"v_add_u32 v{VA8}, 11264, v{VA2}\nv_and_b32 v{VA8}, 0x3fff, v{VA8}")
    A(f"s_add_u32 s{T4}, s{T4}, {L_IMG}")
    for r in (VA1, VA2, VA8):
        A(f"v_add_u32 v{r}, s{T4}, v{r}")
    A(f"v_bfe_u32 v11, v1, 3, 1\nv_lshlrev_b32 v11, 5, v11\nv_xor_b32 v{VLIN}, v2, v11")

    A("v_bfe_u32 v12, v1, 2, 1\nv_mul_u32_u24 v12, 2176, v12")
    A("v_bfe_u32 v13, v1, 3, 1\nv_lshl_add_u32 v12, v13, 6, v12\nv_lshl_add_u32 v12, v9, 8, v12")
    A("v_bfe_u32 v13, v1, 4, 1\nv_lshl_add_u32 v12, v13, 5, v12\nv_and_b32 v13, 3, v1\nv_lshl_add_u32 v12, v13, 3, v12")
    A(f"v_add_u32 v12, s{T8}, v12\nv_xor_b32 v13, 128, v12")
    if INOUT:
        A(f"s_lshl_b32 s{T4}, s{T7}, 14")
        srd(A, S0, OUT, T4, 0, 0x1000)
        srd(A, S1, OUT, T4, 0, 0x1000)
    else:
        A(f"s_lshl_b32 s{T4}, s2, 14\ns_lshl_b32 s{T5}, s{W_}, 12\ns_add_u32 s{T4}, s{T4}, s{T5}")
        srd(A, S0, WS, T4, WS_Z1, 0x1000)
        srd(A, S1, WS, T4, WS_Z3, 0x1000)


def aux_pre_w(A):
    A(f"v_and_b32 v14, 7, v1\nv_lshrrev_b32 v15, 3, v1\nv_xor_b32 v16, v14, v15\nv_lshlrev_b32 v16, 4, v16\nv_lshl_add_u32 v16, v14, 11, v16")
    A(f"s_lshr_b32 s{T4}, s{W_}, 1\ns_lshl_b32 s{T4}, s{T4}, 7\ns_and_b32 s{T5}, s{W_}, 1\ns_lshl_b32 s{T5}, s{T5}, 3\ns_add_u32 s{T4}, s{T4}, s{T5}\ns_add_u32 s{T4}, s{T4}, {L_W}")
    A(f"v_add_u32 v16, s{T4}, v16")
    A(f"v_lshlrev_b32 v15, {18 if INOUT else 16}, v15\nv_lshl_add_u32 v22, v14, 4, v15")
    A(f"s_lshl_b32 s{T4}, s{T3}, 7\ns_lshr_b32 s{T5}, s{W_}, 1\ns_lshl_b32 s{T5}, s{T5}, 6\ns_add_u32 s{T4}, s{T4}, s{T5}")
    A(f"s_and_b32 s{T5}, s{W_}, 1\ns_lshl_b32 s{T5}, s{T5}, 2\ns_add_u32 s{T4}, s{T4}, s{T5}\ns_mul_i32 s{T4}, s{T4}, {KS_}")
    A(f"s_lshr_b32 s{T5}, s{T0}, 2\ns_mul_i32 s{T5}, s{T5}, {ISH - 4096}\ns_add_u32 s{T4}, s{T4}, s{T5}")
    A(f"s_lshl_b32 s{T5}, s{T0}, 10\ns_add_u32 s{T4}, s{T4}, s{T5}\ns_lshl_b32 s{T5}, s{T1}, 9\ns_add_u32 s{T4}, s{T4}, s{T5}\ns_lshl_b32 s{T5}, s{T2}, 7\ns_add_u32 s{T4}, s{T4}, s{T5}")
    if INOUT:
        A(f"s_add_u32 s{T4}, s{T4}, 8192")
        srd(A, S4, OUT, T4, 0, 0x1000000, T4)
    else:
        srd(A, S4, WS, T4, WS_WT + 2*KS_, 0x400000, T4)


KNAME_ = [None]


def code_touch(A, t0):
    name = KNAME_[0]
    pc = uid("pc")
    per = 6
    A(f"s_getpc_b64 {sp(t0)}")
    A.label(pc)
    A(f"s_sub_u32 s{t0}, s{t0}, {pc}-{name}\ns_subb_u32 s{t0+1}, s{t0+1}, 0")
    A(f"s_lshr_b32 s{CNT}, s2, 3\ns_lshl_b32 s{CNT}, s{CNT}, 2\ns_add_u32 s{CNT}, s{CNT}, s{W_}\ns_mul_i32 s{CNT}, s{CNT}, {per*64}")
    A(f"s_min_u32 s{CNT}, s{CNT}, L_{name}_end-{name}-{per*64}")
    for q in range(per):
        A(f"s_load_dword s3, {sp(t0)}, s{CNT} offset:{q*64}")


def c_prefetch(A, p, done):
    A(f"s_load_dwordx4 s[8:11], s[0:1], 64")
    A(f"s_and_b32 s12, s{TJ}, 7\ns_lshl_b32 s13, s12, 7\ns_and_b32 s14, s{TI}, 3\ns_lshl_b32 s14, s14, 5\ns_add_u32 s13, s13, s14")
    A(f"s_sub_u32 s14, s{W_}, 1\ns_mul_i32 s14, s14, 11\ns_min_u32 s14, s14, 21\ns_add_u32 s13, s13, s14\ns_lshl_b32 s13, s13, 11")
    A(f"s_lshr_b32 s14, s{TJ}, 3\ns_lshl_b32 s14, s14, 10\ns_add_u32 s13, s13, s14\ns_waitcnt lgkmcnt(0)")
    A("s_add_u32 s4, s8, s13\ns_addc_u32 s5, s9, 0\ns_add_u32 s6, s10, s13\ns_addc_u32 s7, s11, 0")
    cnt = 0
    for n in range(CSP0, CSP0 + CSP):
        A(f"s_add_u32 s15, s12, {n}\ns_and_b32 s15, s15, 7\ns_lshl_b32 s15, s15, 7")
        for r in range(11):
            for arr in range(2):
                for sec in range(2):
                    A(f"s_load_dword s3, s[{4+2*arr}:{5+2*arr}], s15 offset:{r*2048 + sec*64}")
                    cnt += 1
                    if cnt % CSB == 0:
                        A(f"ds_read_b128 {v(ST,4)}, v{SQ}\ns_waitcnt lgkmcnt(0)")
                        A(f"v_min3_u32 v{ST}, v{ST}, v{ST+1}, v{ST+2}\nv_min_u32 v{ST}, v{ST}, v{ST+3}")
                        A(f"v_readfirstlane_b32 s{CNT}, v{ST}\ns_cmp_ge_u32 s{CNT}, {p}\ns_cbranch_scc1 {done}")


def c_touch(A, vm):
    A(f"s_and_b32 s{T4}, s2, 1\ns_lshl_b32 s{T4}, s{T4}, 10\ns_bfe_u32 s{CNT}, s2, 0x20001\ns_lshl_b32 s{CNT}, s{CNT}, 19\ns_add_u32 s{T4}, s{T4}, s{CNT}")
    A(f"s_lshr_b32 s{CNT}, s2, 3\ns_lshl_b32 s{CNT}, s{CNT}, 14\ns_add_u32 s{T4}, s{T4}, s{CNT}")
    A(f"s_lshr_b32 s{CNT}, s{W_}, 1\ns_lshl_b32 s{CNT}, s{CNT}, 13\ns_add_u32 s{T4}, s{T4}, s{CNT}")
    A(f"v_bfe_u32 v22, v1, 3, 2\nv_lshlrev_b32 v22, 11, v22\nv_and_b32 v23, 7, v1\nv_lshl_add_u32 v22, v23, 7, v22\nv_add_u32 v22, s{T4}, v22")
    A("s_mov_b32 exec_hi, 0")
    vm.op(f"global_load_dword v23, v22, s[100:101]", "touch")
    A("s_mov_b64 exec, -1")


def flag_poll(A, flg):
    A(f"s_lshl_b32 s{T4}, s2, 2\ns_add_u32 s{T4}, s{T4}, s{W_}\ns_lshr_b32 s{T4}, s{T4}, 4\ns_lshl_b32 s{T4}, s{T4}, 7\ns_add_u32 s{T4}, s{T4}, {flg}")
    A(f"s_add_u32 s24, s{WS}, s{T4}\ns_addc_u32 s25, s{WS+1}, 0")
    A(f"s_load_dwordx16 s[4:19], s[24:25], 0x0 glc")


def flag_wait(A):
    late, go, pl_ = uid("late"), uid("go"), uid("sp")
    A(f"s_mov_b32 s26, s{NONCE}\ns_mov_b32 s27, s{NONCE}\ns_mov_b32 s{CNT}, 0\ns_branch {pl_}")
    A.label(late)
    A(f"s_add_u32 s{CNT}, s{CNT}, 1\ns_cmp_ge_u32 s{CNT}, {SPIN_MAX}\ns_cbranch_scc1 {go}")
    A(f"s_sleep 8\ns_load_dwordx16 s[4:19], s[24:25], 0x0 glc")
    A.label(pl_)
    A("s_waitcnt lgkmcnt(0)")
    for q in range(8):
        A(f"s_cmp_eq_u64 s[{4+2*q}:{5+2*q}], s[26:27]\ns_cbranch_scc0 {late}")
    A.label(go)


RR = lambda arr, kind: 104 + (arr*4 + kind)*2


def wt_read(A, fin=True):
    for arr in range(2):
        for kind in range(4):
            A(f"ds_read_b64 {v(RR(arr,kind),2)}, v16 offset:{arr*1024 + kind*256}")


def wt_sym(A):
    A(f"s_mov_b32 s{T4}, 0x05040100\ns_mov_b32 s{T5}, 0x07060302")
    A(f"v_lshlrev_b32 v{WSP}, 16, v{WSP}\nv_lshlrev_b32 v{WSP+1}, 16, v{WSP+1}\nv_lshlrev_b32 v23, 1, v1")
    A(f"v_add_f32_dpp v{WSP+2}, v{WSP}, v{WSP} quad_perm:[1,0,3,2] row_mask:0xf bank_mask:0xf")
    A(f"v_subrev_f32_dpp v{WSP+3}, v{WSP+1}, v{WSP+1} quad_perm:[1,0,3,2] row_mask:0xf bank_mask:0xf")
    A(f"v_mul_f32 v{WSP+2}, 0.5, v{WSP+2}\nv_mul_f32 v{WSP+3}, 0.5, v{WSP+3}")
    A(f"v_cvt_pk_bf16_f32 v{WSP}, v{WSP+2}, v{WSP+3}")


def wt_perm(A):
    for kap in range(4):
        o = 120 + 4*kap
        for e in range(2):
            for h2 in range(2):
                kind = e + 2*h2
                A(f"v_perm_b32 v{o+2*e+h2}, v{RR(1,kind)+kap//2}, v{RR(0,kind)+kap//2}, s{T4 + kap % 2}")


def wt_store(A, vm):
    nw = uid("nw")
    A(f"s_cmp_lg_u32 s{W_}, 3\ns_cbranch_scc1 {nw}")
    A(f"s_lshr_b32 s{T4}, s2, 7\ns_mul_i32 s{T4}, s{T4}, {KS_}\ns_bfe_u32 s{T5}, s2, 0x10006\ns_mul_i32 s{T5}, s{T5}, {ISH}\ns_add_u32 s{T4}, s{T4}, s{T5}")
    A(f"s_and_b32 s{T5}, s2, 63\ns_lshl_b32 s{T5}, s{T5}, 6\ns_add_u32 s{T4}, s{T4}, s{T5}")
    srd(A, 4, WS, T4, WS_WT, 64)
    A("s_mov_b32 exec_lo, 0x55555555\ns_mov_b32 exec_hi, 0")
    if not E_("SKIPS", 0):
        A(f"buffer_store_dword v{WSP}, v23, {r4(4)}, 0 offen sc1")
    A("s_mov_b64 exec, -1")
    A.label(nw)
    for kap in range(0 if "2" in SK else 4):
        A(f"s_mov_b32 s{CNT}, {kap*KS_}")
        vm.op(f"buffer_store_dwordx4 {v(120+4*kap,4)}, v22, {r4(S4)}, s{CNT} offen sc1", "wst")


def a1_stores(A, vm):
    for u in range(0 if "3" in SK else 4):
        vm.op(f"buffer_store_dwordx4 {v(MID+4*u,4)}, v2, {r4(S0)}, 0 offen offset:{u*1024} sc1", "zst")
    if WMODE == 0 and WTK == ZPOS:
        wt_store(A, vm)


def a1_task(A, vm):
    vm.wait_for("ax")
    trace(A, 0, 2)
    for s_ in range(4):
        for u in range(2):
            A(f"ds_read_b64_tr_b16 {v(IN+4*s_+2*u,2)}, v{12+u} offset:{s_*512}")
    A("s_waitcnt lgkmcnt(0)")
    stage1(A, IN, D)
    twiddle(A, D, MID, TMP)
    stage2(A, MID, D)
    A(f"s_lshl_b32 s{CNT}, s{W_}, 12\ns_add_u32 s{CNT}, s{CNT}, {L_IMG}\nv_add_u32 v8, s{CNT}, v{VLIN}")
    for i in range(16):
        A(f"v_cvt_pk_bf16_f32 v{MID+i}, v{D+i}, v{D+16+i}")
        a, o = img(i)
        A(f"ds_write_b32 v{a}, v{MID+i} offset:{o}")
    trace(A, 0, 3)
    if WMODE == 0:
        vm.wait_for("w")
    A("s_waitcnt lgkmcnt(0)")
    l_sync(A)
    trace(A, 0, 4)
    for u in range(4):
        A(f"ds_read_b128 {v(MID+4*u,4)}, v8 offset:{u*1024}")
    if WMODE == 0:
        wt_read(A)
    for r in (VA1, VA2, VA8):
        A(f"v_add_u32 v{r}, {L_AX - L_IMG}, v{r}")
    A("s_waitcnt lgkmcnt(0)")
    p = l_arrive(A)
    assert p == LIMG_FREE
    if WMODE == 0:
        wt_sym(A)
        wt_perm(A)
    if EARLY2:
        make_T(A, TT, 92, 1)
        a2_setup(A)
    if ZPOS < 0:
        a1_stores(A, vm)
    trace(A, 0, 5)


def a2_setup(A):
    A(f"s_and_b32 s{M_}, s2, 7\ns_lshl_b32 s{M_}, s{M_}, 5\ns_lshr_b32 s{T4}, s2, 3\ns_add_u32 s{M_}, s{M_}, s{T4}")
    A(f"s_lshr_b32 s{T4}, s{W_}, 1\ns_xor_b32 s{T4}, s{T4}, s{W_}\ns_and_b32 s{T4}, s{T4}, 1")
    A(f"s_or_b32 s{T5}, s{T4}, s{M_}\ns_cmp_eq_u32 s{T5}, 0\ns_cselect_b32 s{SPC}, 1, 0")
    A(f"s_lshl_b32 s{T5}, s{M_}, 1\ns_add_u32 s{T4}, s{T4}, s{T5}")
    A(f"s_mul_i32 s{T4}, s{T4}, {KS_}\ns_add_u32 s{T4}, s{T4}, {8192 if INOUT else WS_WT + 2*KS_}")
    A(f"s_lshr_b32 s{T5}, s{W_}, 1\ns_mul_i32 s{T9}, s{T5}, {KS_}\ns_add_u32 s{T9}, s{T9}, {WS_WT}")
    A(f"s_cmp_eq_u32 s{SPC}, 1\ns_cselect_b32 s{T4}, s{T9}, s{T4}\ns_cselect_b32 s{T5}, 0, s{T5}")
    A(f"s_cselect_b32 s{MSK}, s{WS}, s{OUT if INOUT else WS}\ns_cselect_b32 s{MSK+1}, s{WS+1}, s{(OUT if INOUT else WS)+1}")
    A(f"s_lshl_b32 s{CJ}, s{T5}, 31\ns_or_b32 s{SGN}, s{CJ}, 0x3f800000")
    srd(A, S2, MSK, T4, 0, ISH + 4096)
    if INOUT:
        A(f"s_lshl_b32 s{T4}, s{W_}, 22\ns_lshr_b32 s{T5}, s{M_}, 6\ns_lshl_b32 s{T5}, s{T5}, 19\ns_add_u32 s{T4}, s{T4}, s{T5}")
        A(f"s_and_b32 s{T5}, s{M_}, 63\ns_lshl_b32 s{T5}, s{T5}, 6\ns_add_u32 s{T4}, s{T4}, s{T5}")
        srd(A, S3, OUT, T4, 0, 160*16384, T5)
        srd(A, S4, OUT, T4, 0, 160*16384, T5)
    else:
        A(f"s_lshl_b32 s{T4}, s{W_}, 20\ns_lshl_b32 s{T5}, s{M_}, 6\ns_add_u32 s{T4}, s{T4}, s{T5}")
        assert WS_Z1 == WS_Z3
        srd(A, S3, WS, T4, WS_Z1, 0x100000, T5)
    A("v_lshrrev_b32 v8, 2, v1\nv_lshlrev_b32 v8, 14, v8\nv_and_b32 v9, 3, v1\nv_lshrrev_b32 v10, 4, v1\nv_xor_b32 v9, v9, v10\nv_lshl_add_u32 v14, v9, 4, v8")
    A(f"v_and_b32 v8, 31, v1\nv_bfe_u32 v9, v1, 2, 2\nv_xor_b32 v9, s{W_}, v9\nv_lshlrev_b32 v9, 4, v9\nv_lshl_add_u32 v9, v8, 6, v9")
    A(f"v_lshrrev_b32 v8, 5, v1\nv_lshl_add_u32 v9, v8, 11, v9\nv_add_u32 v15, {L_AX}, v9")
    A(f"s_lshl_b32 s{T4}, s{W_}, 13\ns_add_u32 s{T4}, s{T4}, {L_AX}\nv_add_u32 v16, s{T4}, v2")
    A(f"s_xor_b32 s{T5}, s{T4}, {3 << 13}\ns_cmp_eq_u32 s{SPC}, 1\ns_cselect_b32 s{T5}, s{T4}, s{T5}\nv_add_u32 v17, s{T5}, v2")
    A(f"v_add_u32 v18, s{T8}, v2")
    A(f"s_lshr_b32 s{T4}, s{W_}, 1\ns_xor_b32 s{T4}, s{T4}, s{W_}\ns_and_b32 s{T4}, s{T4}, 1\ns_lshl_b32 s{T9}, s{T4}, 13\ns_add_u32 s{T9}, s{T9}, {L_W}\nv_add_u32 v19, s{T9}, v2")
    for kk in range(32):
        A(f"v_mul_f32 v{TT+kk}, s{SGN}, v{TT+kk}")


ZU = lambda u: (16*(u & 1) + 128*(u >> 1))*16384 if INOUT else u << 18


def a2_loads(A, z=True, w=True):
    for u in range(4 if z and '5' not in SK else 0):
        A(f"s_add_u32 m0, s{T8}, {u*1024}\ns_mov_b32 s{T4}, {ZU(u)}")
        A(f"buffer_load_dwordx4 v14, {r4(S3)}, s{T4} offen sc1 lds")
    if WSH:
        a, b = uid("ws"), uid("wd")
        A(f"s_cmp_eq_u32 s{SPC}, 1\ns_cbranch_scc1 {a}")
        A(f"s_lshr_b32 s{T4}, s{W_}, 1\ns_lshl_b32 s{T5}, s{T4}, 12\ns_mul_i32 s{T4}, s{T4}, {ISH}\ns_add_u32 m0, s{T9}, s{T5}")
        for u in range(4):
            A(f"buffer_load_dwordx4 v2, {r4(S2)}, s{T4} offen offset:{u*1024} sc1 lds")
        A(f"s_waitcnt vmcnt(0)\ns_branch {b}")
        A.label(a)
    A(f"s_movk_i32 s{T4}, {ISH}")
    for it in range(8 if w and '4' not in SK else 0):
        A(f"buffer_load_dwordx4 {v(W+4*it,4)}, v2, {r4(S2)}, {'0' if it < 4 else f's{T4}'} offen offset:{(it & 3)*1024} sc1")
    if WSH:
        A.label(b)


PH_RES = 18


def phase_atomic(A, cnt, p):
    x = uid("ph")
    A(f"s_cmp_lg_u32 s{W_}, 0\ns_cbranch_scc1 {x}")
    l_check(A, p)
    A(f"s_and_b32 s{T4}, s2, 15\ns_lshl_b32 s{T5}, s{T4}, 7\ns_add_u32 s{T5}, s{T5}, {cnt}")
    A(f"s_add_u32 s{MSK}, s{WS}, s{T5}\ns_addc_u32 s{MSK+1}, s{WS+1}, 0\ns_mov_b32 s{PH_RES}, 1")
    A(f"s_atomic_add s{PH_RES}, {sp(MSK)}, 0x0 glc")
    A.label(x)


def phase_last(A, flg, wait=True, nrep=None):
    y = uid("sg")
    A(f"s_cmp_lg_u32 s{W_}, 0\ns_cbranch_scc1 {y}")
    A(f"s_and_b32 s{T4}, s2, 15\ns_lshl_b32 s{T4}, s{T4}, 2\ns_add_u32 s{T4}, s{T4}, {flg}")
    A(f"s_add_u32 s4, s{WS}, s{T4}\ns_addc_u32 s5, s{WS+1}, 0")
    A("s_waitcnt lgkmcnt(0)")
    A(f"s_cmp_lg_u32 s{PH_RES}, 15\ns_cbranch_scc1 {y}")
    for r in range(nrep or NREP):
        A(f"s_atomic_swap s{NONCE}, s[4:5], {hex(r*128)}")
    if wait:
        A("s_waitcnt lgkmcnt(0)")
    A.label(y)


def phase_wait(A, flg, tb, nrep=None):
    x, pl_, nok = uid("ph"), uid("sp"), uid("nok")
    A(f"s_cmp_lg_u32 s{W_}, 0\ns_cbranch_scc1 {x}")
    A(f"s_and_b32 s{T4}, s2, {(nrep or NREP) - 1}\ns_lshl_b32 s{T4}, s{T4}, 7\ns_add_u32 s{T4}, s{T4}, {flg}")
    A(f"s_add_u32 s{MSK}, s{WS}, s{T4}\ns_addc_u32 s{MSK+1}, s{WS+1}, 0\ns_mov_b32 s{T4}, s{NONCE}\ns_mov_b32 s{T5}, s{NONCE}\ns_mov_b32 s{CNT}, 0")
    A(f"s_branch {pl_}")
    A.label(nok)
    A(f"s_add_u32 s{CNT}, s{CNT}, 1\ns_cmp_ge_u32 s{CNT}, {SPIN_MAX}\ns_cbranch_scc1 {x}")
    if SLP_A:
        A(f"s_sleep {SLP_A}")
    A.label(pl_)
    A(f"s_load_dwordx16 s[4:19], {sp(MSK)}, 0x0 glc\ns_waitcnt lgkmcnt(0)")
    for q in range(8):
        A(f"s_cmp_eq_u64 s[{4+2*q}:{5+2*q}], {sp(T4)}\ns_cbranch_scc0 {nok}")
    if TRACE:
        A(f"v_writelane_b32 v0, s{CNT}, {tb}")
    A.label(x)
    p2 = l_arrive(A)
    if CSP and flg == (FLG_A if CSPH == 0 else FLG_B):
        dn = uid("csp")
        A(f"s_cmp_eq_u32 s{W_}, 0\ns_cbranch_scc1 {dn}")
        c_prefetch(A, p2, dn)
        A.label(dn)
    l_check(A, p2, slp=LSLP)


def aux_rest(A, vm):
    def phase(cnt, flg, young=0):
        trace(A, 0, 48)
        A(f"s_waitcnt vmcnt({young})")
        trace(A, 0, 49)
        p = l_arrive(A)
        phase_atomic(A, cnt, p)
        phase_last(A, flg)
        trace(A, 0, 50)
        phase_wait(A, flg, 62)
        trace(A, 0, 51)
    if ZPOS >= 11:
        phase(CNT_A, FLG_A)
    else:
        phase_wait(A, FLG_A, 61, 64)
    trace(A, 0, 7)
    A(f"s_setprio {LPRIO2}")
    if A2G:
        l_check(A, A2G % 100, RING_D - 16 if A2G < 100 else -16)
    if CTW == 2:
        c_touch(A, vm)
    trace(A, 0, 8)
    a2_loads(A)
    mark(A, 7)
    A(f"s_waitcnt vmcnt({0 if '4' in SK else 8})")
    trace(A, 0, 9)
    if E_("AM", 0) in (1, 2):
        mark(A, 1)
    l_sync(A)
    trace(A, 0, 10)
    INS = 72
    for s_ in range(4):
        A(f"ds_read_b128 {v(INS+4*s_,4)}, v15 offset:{s_*4096}")
    if WSH:
        a = uid("wr")
        A(f"s_cmp_eq_u32 s{SPC}, 1\ns_cbranch_scc1 {a}")
        for it in range(8):
            A(f"ds_read_b128 {v(W+4*it,4)}, v19 offset:{it*1024}")
        A.label(a)
    A("s_waitcnt lgkmcnt(0)")
    if E_("AM", 0) == 2:
        mark(A, 2)
    p6 = l_arrive(A)
    if A2C:
        l_check(A, A2C, -16)
    A(f"s_lshl_b32 s{T4}, s{SPC}, 31\ns_or_b32 s{T4}, s{T4}, s{CJ}")
    fl, nwr = uid("fft"), uid("nwr")
    A.label(fl)
    for i in range(16):
        A(f"v_xor_b32 v{IN+i}, s{T4}, v{INS+i}")

    def pre(rng):
        for i in rng:
            w, rho, sg = W + 2*i, TT + i, TT + 16 + i
            r1, i1, r2, i2, Ar, Ai = (TMP + 8 + c for c in range(6))
            A(f"v_lshlrev_b32 v{r1}, 16, v{w}\nv_and_b32 v{i1}, 0xffff0000, v{w}")
            A(f"v_lshlrev_b32 v{r2}, 16, v{w+1}\nv_and_b32 v{i2}, 0xffff0000, v{w+1}")
            A(f"v_add_f32 v{Ar}, v{r1}, v{r2}\nv_add_f32 v{Ai}, v{i1}, v{i2}")
            A(f"v_sub_f32 v{r1}, v{r1}, v{r2}\nv_sub_f32 v{i1}, v{i1}, v{i2}")
            A(f"v_mul_f32 v{w}, v{rho}, v{r1}\nv_mul_f32 v{w+1}, v{rho}, v{i1}")
            A(f"v_fma_f32 v{rho}, v{sg}, v{r1}, v{Ar}\nv_fma_f32 v{sg}, v{sg}, v{i1}, v{Ai}")

    def once(rng):
        a = uid("once")
        A(f"s_cmp_eq_u32 s{SPC}, 2\ns_cbranch_scc1 {a}\ns_waitcnt vmcnt(0)")
        pre(rng)
        A.label(a)
    stage1(A, IN, D)
    once(range(0, PRE1))
    twiddle(A, D, IN, TMP)
    stage2(A, IN, D)
    once(range(PRE1, PRE2))
    l_check(A, p6)
    if E_("AM", 0) == 2:
        mark(A, 5)
    A(f"s_cmp_eq_u32 s{SPC}, 2\ns_cbranch_scc1 {nwr}")
    for c in range(8):
        A(f"ds_write_b128 v16, {v(D+4*c,4)} offset:{c*1024}")
    A(f"s_cmp_eq_u32 s{SPC}, 0\ns_cbranch_scc1 {nwr}")
    A(f"s_mov_b32 s{SPC}, 2\ns_mov_b32 s{T4}, 0\ns_branch {fl}")
    A.label(nwr)
    pre(range(PRE2, min(16, PRE2 + 2)))
    A("s_waitcnt lgkmcnt(0)")
    p7 = l_arrive(A)
    pre(range(min(16, PRE2 + 2), 16))

    def own(rng):
        for i in rng:
            Xr, Xi, mr, mi, t = D+i, D+16+i, TT+i, TT+16+i, TMP + (i & 1)
            A(f"v_mul_f32 v{t}, v{mi}, v{Xi}\nv_mul_f32 v{Xi}, v{mr}, v{Xi}")
            A(f"v_fmac_f32 v{Xi}, v{mi}, v{Xr}\nv_fma_f32 v{Xr}, v{mr}, v{Xr}, -v{t}")
    own(range(0, 6))
    l_check(A, p7)
    for c in range(8):
        A(f"ds_read_b128 {v(DY+4*c,4)}, v17 offset:{c*1024}")
    own(range(6, 16))
    A("s_waitcnt lgkmcnt(0)")
    if E_("AM", 0) in (1, 2):
        mark(A, 4)
    p8 = l_arrive(A)
    for i in range(16):
        Pr, Pi, Yr, Yi, gr, gi = D+i, D+16+i, DY+i, DY+16+i, W+2*i, W+2*i+1
        A(f"v_fma_f32 v{Pr}, -v{gr}, v{Yi}, v{Pr}\nv_fmac_f32 v{Pi}, v{gr}, v{Yr}")
        A(f"v_fma_f32 v{Pr}, -v{gi}, v{Yr}, v{Pr}\nv_fma_f32 v{Pi}, -v{gi}, v{Yi}, v{Pi}")
        A(f"v_cvt_pk_bf16_f32 v{IN+i}, v{Pi}, v{Pr}")
    if E_("AM", 0) == 2:
        mark(A, 6)
    stage1(A, IN, D)
    twiddle(A, D, IN, TMP)
    stage2(A, IN, D)
    A(f"s_lshr_b32 s{T4}, s{CJ}, 16")
    l_check(A, p8)
    for s_ in range(4):
        for r in range(4):
            i = 4*s_ + r
            A(f"v_cvt_pk_bf16_f32 v{IN+i}, v{D+i}, v{D+16+i}\nv_xor_b32 v{IN+i}, s{T4}, v{IN+i}")
        A(f"ds_write_b128 v15, {v(IN+4*s_,4)} offset:{s_*4096}")
    A("s_waitcnt lgkmcnt(0)")
    if E_("AM", 0) == 2:
        mark(A, 7)
    l_sync(A)
    for u in range(4):
        A(f"ds_read_b128 {v(IN+4*u,4)}, v18 offset:{u*1024}")
    for u in range(4):
        A(f"s_mov_b32 s{T4}, {ZU(u)}\ns_waitcnt lgkmcnt({3-u})")
        if "6" not in SK:
            A(f"buffer_store_dwordx4 {v(IN+4*u,4)}, v14, {r4(S3)}, s{T4} offen sc1")
    trace(A, 0, 11)
    if E_("AM", 0) != 3 and not E_("GM", 0):
        mark(A, 3)
    A(f"s_lshl_b32 s{T4}, s{T7}, 14")
    srd(A, S0, OUT, T4, 0, 0x4000)
    A("v_and_b32 v8, 31, v1\nv_lshrrev_b32 v9, 5, v1\nv_lshlrev_b32 v14, 2, v8\nv_lshl_add_u32 v14, v9, 9, v14")
    A(f"s_mov_b32 s{T4}, 0x35000000")
    for k in range(32):
        A(f"v_mul_f32 v{T+k}, s{T4}, v{T+k}")
    phase(CNT_B, FLG_B)
    A(f"s_setprio {LPRIO3}")
    if A3G:
        l_check(A, A3G, -16)
    trace(A, 0, 12)
    if E_("AM", 0) != 3:
        mark(A, 8)
    A(f"s_mov_b32 m0, s{T8}")
    for u in range(4):
        if "7" not in SK:
            A(f"buffer_load_dwordx4 v{VLIN}, {r4(S1)}, 0 offen offset:{u*1024} sc1 lds")
    A("s_waitcnt vmcnt(0)")
    trace(A, 0, 13)
    l_sync(A)
    for i in range(16):
        a, o = img(i)
        A(f"ds_read_b32 v{IN+i}, v{a} offset:{o}")
    A("s_waitcnt lgkmcnt(0)")
    stage1(A, IN, D)
    twiddle(A, D, IN, TMP)
    stage2(A, IN, D)
    A(f"s_movk_i32 s{T4}, 0x2000")
    O = 72
    for i in range(16):
        o = O + 2*i
        A(f"v_cvt_pk_bf16_f32 v{o+1}, v{D+16+i}, v{D+i}")
        A(f"v_lshlrev_b32 v{o}, 16, v{o+1}\nv_and_b32 v{o+1}, 0xffff0000, v{o+1}")
        off = (i >> 2)*1024 + (i & 3)*128
        if "8" not in SK:
            A(f"buffer_store_dword v{o}, v14, {r4(S0)}, 0 offen offset:{off}{OST}")
            A(f"buffer_store_dword v{o+1}, v14, {r4(S0)}, s{T4} offen offset:{off}{OST}")


def cmul_sq(A, d, a, t):
    A(f"v_mul_f32 {v(t)}, {v(a+1)}, {v(a+1)}")
    A(f"v_mul_f32 {v(t+1)}, {v(a)}, {v(a+1)}")
    A(f"v_fma_f32 {v(d)}, {v(a)}, {v(a)}, -{v(t)}")
    A(f"v_add_f32 {v(d+1)}, {v(t+1)}, {v(t+1)}")


def horner(A, dr, di, L, pr, pi, er, ei, t):
    assert dr not in (pr, pi) and di not in (pr, pi)
    A(f"v_fma_f32 {v(t)}, {v(L)}, {v(pr)}, {v(er)}")
    A(f"v_fma_f32 {v(t+1)}, {v(L)}, {v(pi)}, {v(ei)}")
    A(f"v_fma_f32 {v(dr)}, -{v(L+1)}, {v(pi)}, {v(t)}")
    A(f"v_fma_f32 {v(di)}, {v(L+1)}, {v(pr)}, {v(t+1)}")


RING_D, RING_LG, RING_LA = 32, 48, 64


def dma_setup(A, swt, swp, RV, t, ta, tb):
    l5, a, b_, c, d, e = (t + i for i in range(6))
    A(f"v_lshrrev_b32 v{l5}, 5, v1\nv_bfe_u32 v{a}, v1, 3, 2\nv_and_b32 v{b_}, 1, v{a}\nv_lshrrev_b32 v{c}, 1, v{a}")
    A(f"v_lshlrev_b32 v{d}, 4, v{l5}\nv_lshl_add_u32 v{d}, v{b_}, 3, v{d}\nv_add_u32 v{d}, v{d}, v{c}")
    A(f"s_lshl_b32 s{ta}, s{swt}, 6\ns_lshl_b32 s{tb}, s{swp}, 2\ns_add_u32 s{ta}, s{ta}, s{tb}")
    A(f"v_add_u32 v{d}, s{ta}, v{d}\nv_lshlrev_b32 v{d}, 11, v{d}")
    A(f"s_lshl_b32 s{ta}, s{swt}, 5")
    A(f"v_lshl_add_u32 v{e}, v{l5}, 3, v{a}\nv_add_u32 v{e}, s{ta}, v{e}\nv_lshlrev_b32 v{e}, 11, v{e}")
    A(f"v_and_b32 v{b_}, 7, v1\nv_lshrrev_b32 v{c}, 4, v1\nv_xor_b32 v{b_}, v{b_}, v{c}\nv_lshlrev_b32 v{b_}, 4, v{b_}\nv_xor_b32 v{c}, 64, v{b_}")
    A(f"v_add_u32 v{RV}, v{d}, v{b_}\nv_add_u32 v{RV+1}, v{d}, v{c}\nv_add_u32 v{RV+1}, {32*2048 - 1024}, v{RV+1}")
    A(f"v_add_u32 v{RV+2}, v{e}, v{b_}\nv_add_u32 v{RV+3}, v{e}, v{c}\nv_add_u32 v{RV+3}, {16*2048 - 1024}, v{RV+3}")


def make_piece(A, vm, RA, RB, ROT, M0B, SOF, RV):
    def piece(k, n):
        slot, u = k % NS, n & 3
        if n == 0:
            A(f"s_add_u32 s{SOF}, s{ROT}, {k*128}\ns_and_b32 s{SOF}, s{SOF}, 0x7ff")
            A(f"s_add_u32 s{SOF+1}, s{SOF}, 2048\ns_add_u32 s{SOF+2}, s{SOF}, 6144")
        if u == 0:
            A(f"s_add_u32 m0, s{M0B}, {slot*32768 + (n >> 2)*16384}")
        so = SOF if u < 2 else SOF + 1 + (n >> 2)
        if ("a" in G1X and 0 < n < 4) or ("b" in G1X and n > 4):
            return
        vm.op(f"buffer_load_dwordx4 v{RV + 2*(n >> 2) + (u & 1)}, {r4(RA if n < 4 else RB)}, s{so} offen offset:{u*1024} lds", ("st", k))
    return piece


def rot_setup(A, ROT, t):
    A(f"s_mul_i32 s{ROT}, s{TI}, {RI*128}\ns_mul_i32 s{t}, s{TJ}, {RJ*128}\ns_add_u32 s{ROT}, s{ROT}, s{t}")


def aux_waves(A, name, kidx):
    A(f"s_sub_u32 s{W_}, s{WAVE}, 4")
    A(f"s_setprio {APRIO}")
    if BARP == 0:
        A("s_barrier")
    A("s_waitcnt lgkmcnt(0)")
    A(f"s_mov_b32 s100, s{CRE}\ns_mov_b32 s101, s{CRE+1}")
    A(f"s_bitcmp1_b32 s{W_}, 0\ns_cselect_b32 s100, s{CIM}, s{CRE}\ns_cselect_b32 s101, s{CIM+1}, s{CRE+1}")
    trace_init(A, 0)
    vm = VmCounter(A)
    if CODEPF:
        pf, pc = uid("pf"), uid("pc")
        A(f"s_cmp_lg_u32 s{W_}, 1")
        A(f"s_cbranch_scc1 {pf}")
        A(f"s_lshr_b32 s{T0}, s2, 3\ns_lshl_b32 s{T0}, s{T0}, 11\nv_and_b32 v12, 15, v1\nv_lshl_add_u32 v12, v12, 7, s{T0}")
        A(f"v_min_u32 v12, L_{name}_end-{name}, v12")
        A(f"s_getpc_b64 {sp(T0)}")
        A.label(pc)
        A(f"s_sub_u32 s{T0}, s{T0}, {pc}-{name}\ns_subb_u32 s{T1}, s{T1}, 0")
        A(f"global_load_dword v23, v12, {sp(T0)}")
        A.label(pf)
    nn = uid("nn")
    A(f"s_lshl_b32 s{T0}, s2, 3\ns_add_u32 s{T0}, s{T0}, s{WAVE}\ns_cmp_lg_u32 s{T0}, 4")
    A(f"s_cbranch_scc1 {nn}")
    A(f"s_load_dword s3, {sp(WS)}, {WS_NONCE}")
    A(f"v_mov_b32 v22, 0\nv_lshlrev_b32 v23, 7, v1\nv_add_u32 v23, {WS_CNT}, v23")
    A(f"global_store_dword v23, v22, {sp(WS)} sc1")
    A.label(nn)

    def publish_nonce(young):
        nn = uid("nn")
        A(f"s_lshl_b32 s{CNT}, s2, 3\ns_add_u32 s{CNT}, s{CNT}, s{WAVE}\ns_cmp_lg_u32 s{CNT}, 4")
        A(f"s_cbranch_scc1 {nn}")
        A(f"s_waitcnt vmcnt({young}) lgkmcnt(0)")
        A(f"s_add_u32 s3, s3, 1\ns_cmp_eq_u32 s3, 0\ns_cselect_b32 s3, 1, s3")
        A(f"v_mov_b32 v11, s3\nv_mov_b32 v10, 0")
        A(f"s_mov_b64 exec, 1\nglobal_store_dword v10, v11, {sp(DBG)} sc1")
        A(f"global_store_dword v10, v11, {sp(WS)} offset:{WS_NONCE}\ns_mov_b64 exec, -1")
        A.label(nn)
    if NOAUX:
        if BARP:
            A("s_barrier")
        publish_nonce(0)
        if CTW:
            for _ in range(E_("CTD", 100)):
                A("s_sleep 1")
            c_touch(A, vm)
        A("s_endpgm")
        return
    RA, RB, ROT, M0B, SOF, RV = 12, 20, 16, 17, 8, 176
    piece = make_piece(A, vm, RA, RB, ROT, M0B, SOF, RV)

    def loader_setup():
        A(f"s_lshl_b32 s{T4}, s{TI}, 18\ns_lshl_b32 s{T5}, s{TJ}, 17")
        srd(A, RA, BX, T4, 0, 0x40000)
        A(f"s_bitcmp1_b32 s{W_}, 0\ns_cselect_b32 s8, s{BIM}, s{BRE}\ns_cselect_b32 s9, s{BIM+1}, s{BRE+1}")
        srd(A, RB, 8, T5, 0, 0x20000)
        rot_setup(A, ROT, T4)
        A(f"s_lshl_b32 s{M0B}, s{W_}, 12")
        A(f"s_lshr_b32 s{T4}, s{W_}, 1\ns_and_b32 s{T5}, s{W_}, 1")
        dma_setup(A, T4, T5, RV, 96, CNT, 19)
    aux_setup_ax(A)
    aux_issue(A, vm)
    if WMODE == 0 and WPOS == 0:
        aux_setup_w(A)
        w_issue(A, vm)
    if BARP == 1:
        A("s_barrier")
    trace(A, 0, 0)
    make_F(A, 92)
    if WMODE == 0 and WPOS == 1:
        aux_setup_w(A)
        w_issue(A, vm)
    make_T(A, T, 92, 0)
    if WMODE == 0 and WPOS == 2:
        aux_setup_w(A)
        w_issue(A, vm)
    aux_pre_a(A)
    if WMODE == 0:
        aux_pre_w(A)
    if PRES:
        loader_setup()
    publish_nonce(len(vm.issued))
    trace(A, 0, 1)
    a1_task(A, vm)
    if WMODE:
        aux_setup_w(A)
        aux_pre_w(A)
    if not PRES:
        loader_setup()
    Lt = Asm()
    if not EARLY2:
        make_T(Lt, TT, 92, 1)
    later = Lt.lines
    issued = KS0
    if KS0 < NS and E_("PREK", 0):
        for n in range(8):
            piece(issued, n)
        issued += 1
    trace(A, 0, 6)
    A(f"s_setprio {LPRIO0}")
    ZLATE = ZPOS >= 11
    KS = max(WSK if WMODE else KS0, ZPOS, WTK) + LA + 1 if not ZLATE else E_("KSL", 11)
    assert KS + 2 <= 13
    for k in range(16):
        if k >= KS0:
            vm.wait_for(("st", k))
        trace(A, 0, 16 + k)
        A("s_barrier")
        while issued < min(16, k + LA + 1):
            for n in range(8):
                piece(issued, n)
            issued += 1
        if k == ZPOS:
            a1_stores(A, vm)
        if WMODE == 0 and k == WTK and WTK != ZPOS:
            wt_store(A, vm)
        if k == 2:
            if SNON:
                A(f"s_load_dword s{NONCE}, {sp(DBG)}, 0x0 glc")
            else:
                A("v_mov_b32 v20, 0")
                vm.op(f"global_load_dword v21, v20, {sp(DBG)} sc1", "nonce")
        if k in CPK:
            code_touch(A, MSK)
        if WMODE:
            if k == WK:
                w_issue(A, vm)
            if k == WK + LA + 1:
                wt_read(A)
                A("s_waitcnt lgkmcnt(0)")
                wt_sym(A)
                wt_perm(A)
            if k == WSK:
                wt_store(A, vm)
        if k == KS - 1:
            assert not later
            if not ZLATE and not EARLY2:
                a2_setup(A)
        if k == KS:
            x, y = uid("sg"), uid("sg")
            if SNON:
                A.label(x)
                A(f"s_waitcnt lgkmcnt(0)\ns_cmp_lg_u32 s{NONCE}, 0\ns_cbranch_scc1 {y}")
                A(f"s_load_dword s{NONCE}, {sp(DBG)}, 0x0 glc\ns_branch {x}")
            else:
                A(f"v_readfirstlane_b32 s{NONCE}, v21\ns_cmp_lg_u32 s{NONCE}, 0\ns_cbranch_scc1 {y}")
                get_nonce(A, 20)
            A.label(y)
        if k == KS and not ZLATE:
            x = uid("sg")
            A(f"s_cmp_lg_u32 s{W_}, 0\ns_cbranch_scc1 {x}")
            A(f"s_and_b32 s{T4}, s2, 15\ns_lshl_b32 s{T5}, s{T4}, 7\ns_add_u32 s{T5}, s{T5}, {CNT_A}")
            A(f"s_add_u32 s{MSK}, s{WS}, s{T5}\ns_addc_u32 s{MSK+1}, s{WS+1}, 0\ns_mov_b32 s{PH_RES}, 1")
            A(f"s_atomic_add s{PH_RES}, {sp(MSK)}, 0x0 glc")
            A.label(x)
        if k == KS + 2 and not ZLATE:
            x = uid("sg")
            A(f"s_cmp_lg_u32 s{W_}, 0\ns_cbranch_scc1 {x}")
            A(f"s_waitcnt lgkmcnt(0)\ns_cmp_lg_u32 s{PH_RES}, 15\ns_cbranch_scc1 {x}")
            A(f"s_and_b32 s{T4}, s2, 15\ns_lshl_b32 s{T4}, s{T4}, 2\ns_add_u32 s{T4}, s{T4}, {FLG_A}\nv_lshl_add_u32 v22, v1, 7, s{T4}\nv_mov_b32 v23, s{NONCE}")
            A(f"global_store_dword v22, v23, {sp(WS)} sc1")
            A.label(x)
        if k == CTK and CTW == 0:
            c_touch(A, vm)
        if k < KS - 1:
            for _ in range(-(-len(later) // (KS - 1 - k))):
                A(later.pop(0))
    assert issued == 16
    if ZLATE and not EARLY2:
        a2_setup(A)
    A(f"s_setprio {LPRIO}")
    aux_rest(A, vm)
    trace(A, 0, 14)
    if TRACE:
        A("s_waitcnt vmcnt(0)")
    trace(A, 0, 15)
    trace_dump(A, 0, WAVE, 1)
    stamp_end(A, kidx, WAVE)
    A("s_endpgm")


M16 = "v_mfma_f32_16x16x32_bf16"
XRW = 144
L_XC = 114688


def cpow(A, d, zr, zi, n, t):
    if isinstance(n, str):
        A(f"v_mul_f32 v{t}, {n}, v{zr}\nv_mul_f32 v{t+1}, {n}, v{zi}")
    else:
        A(f"v_mul_f32 v{t}, {fl(n)}, v{zr}\nv_mul_f32 v{t+1}, {fl(n)}, v{zi}")
    A(f"v_exp_f32 v{t}, v{t}\nv_rndne_f32 v{t+2}, v{t+1}\nv_sub_f32 v{t+1}, v{t+1}, v{t+2}")
    A(f"v_cos_f32 v{t+2}, v{t+1}\nv_sin_f32 v{t+1}, v{t+1}")
    A(f"v_mul_f32 v{d}, v{t}, v{t+2}\nv_mul_f32 v{d+1}, v{t}, v{t+1}")


def gemm_waves(A, name, kidx):
    U = lambda pg, c, idx: 64 + (pg*2 + c)*16 + 2*idx
    ACC = lambda mt, nt: 64 + ((nt & 1)*2 + (nt >> 1))*16 + 4*mt
    FR = lambda X, f: (32 if X == 0 else 144) + 4*f
    AD = lambda st, op, k2: 128 + st*4 + op*2 + k2
    LAM = lambda pg: 20 + 2*pg
    KC = lambda pg: 24 + 2*pg
    L8 = lambda pg: 176 + 2*pg
    L16 = lambda pg: 180 + 2*pg
    PP = lambda pg: 184 + 4*pg
    PW = lambda pg, idx: 208 + 16*pg + 2*idx
    Q16, Q64, Q128, Q256 = 28, 192, 30, 2
    WT_, WP = T8, T6
    A(f"s_lshr_b32 s{WT_}, s{WAVE}, 1\ns_and_b32 s{WP}, s{WAVE}, 1\ns_lshr_b32 s{PG}, s{TJ}, 3")
    A("v_and_b32 v6, 31, v1\nv_lshrrev_b32 v5, 5, v1\nv_lshlrev_b32 v11, 4, v1")
    A("v_mov_b64 v[64:65], 0\nv_mov_b64 v[66:67], 0")
    A(f"s_mul_i32 s{T0}, s{WAVE}, {16*XRW}\ns_add_u32 s{T0}, s{T0}, {L_XC}\nv_add_u32 v13, s{T0}, v11\nv_mov_b32 v12, {L_SYNC}")
    A("ds_write_b128 v13, v[64:67]\nds_write_b128 v13, v[64:67] offset:1024\nds_write_b128 v13, v[64:67] offset:2048")
    A("s_mov_b64 exec, 1\nds_write_b128 v12, v[64:67]\nds_write_b128 v12, v[64:67] offset:16\nds_write_b128 v12, v[64:67] offset:32\nds_write_b128 v12, v[64:67] offset:48\nds_write_b128 v12, v[64:67] offset:64\ns_mov_b64 exec, -1")
    A(f"s_lshl_b32 s{T0}, s{WAVE}, 2\nv_add_u32 v13, s{T0}, v12")
    A("s_waitcnt lgkmcnt(0)\ns_barrier")
    A("v_bfe_u32 v4, v1, 2, 2\nv_lshlrev_b32 v4, 3, v4\nv_and_b32 v7, 3, v1\nv_add_u32 v4, v4, v7")
    A(f"s_lshl_b32 s{T0}, s{TJ}, 6\ns_lshl_b32 s{T1}, s{WP}, 5\ns_add_u32 s{T0}, s{T0}, s{T1}")
    A(f"v_add_u32 v4, s{T0}, v4\nv_lshlrev_b32 v7, 1, v4")
    RA, RB, ROT, M0B, SOF, RV = S2, S3, 38, 39, T2, 244
    dma_setup(A, WT_, WP, RV, 14, T1, T2)
    rot_setup(A, ROT, T0)
    A(f"s_lshl_b32 s{T0}, s{TI}, 18\ns_lshl_b32 s{T1}, s{TJ}, 17\ns_lshl_b32 s{M0B}, s{WAVE}, 12")
    A("s_waitcnt lgkmcnt(0)")
    PRM = 248
    for pg in range(2):
        A(f"global_load_ushort v{PRM+3*pg}, v7, {sp(LRE)} offset:{8*pg}\nglobal_load_ushort v{PRM+1+3*pg}, v7, {sp(LIM)} offset:{8*pg}\nglobal_load_ushort v{PRM+2+3*pg}, v7, {sp(LDT)} offset:{8*pg}")
    srd(A, RA, BX, T0, 0, 0x40000)
    A(f"s_cmp_eq_u32 s{WP}, 1\ns_cselect_b32 s{T2}, s{BIM}, s{BRE}\ns_cselect_b32 s{T3}, s{BIM+1}, s{BRE+1}")
    srd(A, RB, T2, T1, 0, 0x20000)
    vm1 = VmCounter(A)

    piece = make_piece(A, vm1, RA, RB, ROT, M0B, SOF, RV)
    for n in range(8):
        piece(0, n)
    A("v_bfe_u32 v7, v1, 4, 1\nv_lshl_add_u32 v4, v7, 2, v4")
    A("v_bfe_u32 v7, v6, 1, 3\nv_xor_b32 v7, v7, v5\nv_lshlrev_b32 v7, 4, v7\nv_lshl_add_u32 v7, v6, 7, v7")
    A("v_and_b32 v8, 15, v1\nv_lshrrev_b32 v9, 4, v1")
    A("v_lshrrev_b32 v14, 1, v8\nv_xor_b32 v14, v14, v9\nv_lshlrev_b32 v14, 4, v14\nv_lshl_add_u32 v14, v8, 7, v14")
    A(f"s_lshl_b32 s{T0}, s{WT_}, 13\ns_lshl_b32 s{T1}, s{WP}, 13\ns_add_u32 s{T1}, s{T1}, 16384")
    for k2 in range(2):
        A(f"v_xor_b32 v15, {k2 << 6}, v14")
        A(f"v_add_u32 v{AD(0,0,k2)}, s{T0}, v15\nv_add_u32 v{AD(0,1,k2)}, s{T1}, v15")
        A(f"v_add_u32 v{AD(1,0,k2)}, 0x10000, v{AD(0,0,k2)}\nv_add_u32 v{AD(1,1,k2)}, 0x10000, v{AD(0,1,k2)}")
    Areal, A = A, Asm()
    srd(A, S0, WS, None, WS_EG, 0x40000)
    srd(A, S1, WS, None, WS_HT, 64*TBS)
    A(f"s_mul_i32 s{T0}, s{WP}, {32*XRW}\ns_add_u32 s{T0}, s{T0}, {L_XC + 64}\ns_lshl_b32 s{T1}, s{WT_}, 5\ns_add_u32 s{T1}, s{T1}, s{T0}")
    A(f"v_mul_u32_u24 v14, {XRW}, v6\nv_add_u32 v14, s{T0}, v14\nv_lshl_add_u32 v14, v5, 5, v14")
    A(f"v_mul_u32_u24 v15, {XRW}, v8\nv_add_u32 v15, s{T1}, v15\nv_lshl_add_u32 v15, v9, 3, v15")
    A(f"s_lshl_b32 s{T0}, s{TI}, 14\nv_lshl_add_u32 v16, v4, 4, s{T0}")
    A("v_mov_b32 v17, 0x40000000\nv_lshlrev_b32 v10, 14, v5\nv_sub_u32 v10, v16, v10")
    LA_, LX = 194, 200
    for u in range(8):
        A(f"v_subrev_u32 v{136+u}, {16384 + u*32768}, v10\nv_cmp_le_i32 vcc, 0, v{136+u}\nv_cndmask_b32 v{136+u}, v17, v{136+u}, vcc")
    A("v_lshlrev_b32 v17, 30, v5\nv_or_b32 v16, v16, v17")
    A(f"s_lshl_b32 s{T0}, s{TI}, 11\ns_add_u32 s{T0}, s{T0}, {FLG_X}\ns_lshl_b32 s{T1}, s{TJ}, 7\ns_add_u32 s{T1}, s{T1}, s{T0}\nv_mov_b32 v195, s{T1}")
    A(f"s_lshl_b32 s{T1}, s{PG}, 10\ns_add_u32 s{T0}, s{T0}, s{T1}\nv_and_b32 v196, 7, v1\nv_lshl_add_u32 v196, v196, 7, s{T0}")
    A(f"s_lshl_b32 s{T0}, s{TI}, 1\ns_add_u32 s{T0}, s{T0}, s{WT_}\ns_lshl_b32 s{T0}, s{T0}, 12\ns_add_u32 s{T0}, s{T0}, {FLG_H}")
    A(f"s_lshl_b32 s{T1}, s{PG}, 11\ns_add_u32 s{T1}, s{T1}, s{T0}\nv_lshl_add_u32 v18, v8, 7, s{T1}")
    A(f"s_lshl_b32 s{T1}, s{TJ}, 8\ns_add_u32 s{T0}, s{T0}, s{T1}\ns_lshl_b32 s{T1}, s{WP}, 7\ns_add_u32 s{T0}, s{T0}, s{T1}\nv_mov_b32 v19, s{T0}")
    A("v_lshrrev_b32 v10, 1, v9\nv_lshlrev_b32 v10, 10, v10\nv_and_b32 v17, 1, v9\nv_lshl_add_u32 v10, v17, 9, v10\nv_lshl_add_u32 v10, v8, 4, v10")
    A(f"s_lshl_b32 s{T0}, s{WT_}, 2\nv_add_u32 v9, s{T0}, v9\nv_cvt_f32_u32 v9, v9\nv_mul_f32 v9, 0x41800000, v9\nv_add_f32 v8, 0x41000000, v9")
    A("PARAMWAIT")
    ZR, ZI = 204, 206
    for pg in range(2):
        lr, li, dt, t = PRM+3*pg, PRM+1+3*pg, PRM+2+3*pg, 197
        A(f"v_lshlrev_b32 v{lr}, 16, v{lr}\nv_lshlrev_b32 v{li}, 16, v{li}\nv_lshlrev_b32 v{dt}, 16, v{dt}")
        A(f"v_mul_f32 v{dt}, 0x3fb8aa3b, v{dt}\nv_exp_f32 v{dt}, v{dt}")
        A(f"v_cvt_pk_bf16_f32 v{dt}, v{dt}, v{dt}\nv_lshlrev_b32 v{dt}, 16, v{dt}")
        A(f"v_mul_f32 v{ZR+pg}, v{dt}, v{lr}\nv_mul_f32 v{ZI+pg}, v{dt}, v{li}")
        A(f"v_mul_f32 v{ZR+pg}, 0x3fb8aa3b, v{ZR+pg}\nv_mul_f32 v{ZI+pg}, 0.15915494, v{ZI+pg}")
        cpow(A, LAM(pg), ZR+pg, ZI+pg, 1.0, t)
        A(f"v_add_f32 v{t}, -1.0, v{LAM(pg)}")
        A(f"v_mul_f32 v{t+1}, v{lr}, v{lr}\nv_fma_f32 v{t+1}, v{li}, v{li}, v{t+1}\nv_rcp_f32 v{t+1}, v{t+1}")
        A(f"v_add_f32 v{t+1}, v{t+1}, v{t+1}")
        A(f"v_mul_f32 v{t+2}, v{t}, v{lr}\nv_fma_f32 v{t+2}, v{LAM(pg)+1}, v{li}, v{t+2}\nv_mul_f32 v{KC(pg)}, v{t+2}, v{t+1}")
        A(f"v_mul_f32 v{t+2}, v{LAM(pg)+1}, v{lr}\nv_fma_f32 v{t+2}, -v{t}, v{li}, v{t+2}\nv_mul_f32 v{KC(pg)+1}, v{t+2}, v{t+1}")
        cpow(A, L8(pg), ZR+pg, ZI+pg, 8.0, t)
        cpow(A, L16(pg), ZR+pg, ZI+pg, 16.0, t)
        for e in range(2):
            cpow(A, 200, ZR+pg, ZI+pg, f"v{9-e}", t)
            A(f"v_mov_b32 v{PP(pg)+e}, v200\nv_mov_b32 v{PP(pg)+2+e}, v201")
        for idx in range(8):
            sr, si = (KC(pg), KC(pg)+1) if idx == 0 else (PW(pg, idx-1), PW(pg, idx-1)+1)
            A(f"v_mul_f32 v{t}, v{si}, v{LAM(pg)+1}\nv_mul_f32 v{t+1}, v{si}, v{LAM(pg)}")
            A(f"v_fma_f32 v{PW(pg,idx)}, v{sr}, v{LAM(pg)}, -v{t}\nv_fma_f32 v{PW(pg,idx)+1}, v{sr}, v{LAM(pg)+1}, v{t+1}")
    A(f"v_and_b32 v197, 16, v1\nv_cmp_ne_u32 vcc, 0, v197\nv_cndmask_b32 v{ZR}, v{ZR}, v{ZR+1}, vcc\nv_cndmask_b32 v{ZI}, v{ZI}, v{ZI+1}, vcc")
    for d, n in ((Q16, 16.0), (Q64, 64.0), (Q128, 128.0), (Q256, 256.0)):
        cpow(A, d, ZR, ZI, n, 197)
    A("v_lshrrev_b32 v197, 4, v1\nv_lshlrev_b32 v197, 2, v197\nv_and_b32 v198, 15, v1\nv_sub_u32 v197, v198, v197\nv_mov_b32 v198, 0x3f80\nv_mov_b32 v199, 1.0")
    for c in range(4):
        A(f"v_cmp_eq_u32 vcc, {c}, v197\nv_cndmask_b32 v{248+c}, 0, v198, vcc\nv_cndmask_b32 v{252+c}, 0, v199, vcc")

    deferred, A = A.lines, Areal
    pw = deferred.index("PARAMWAIT")
    for l in deferred[:pw]:
        A(l)
    deferred = deferred[pw+1:]
    assert KS0 <= NPRE
    if DEFER:
        for k in range(1, KS0):
            for n in range(8):
                piece(k, n)
    else:
        npre = 8
        if P1 == 0 and KS0 > 1:
            for n in range(8):
                piece(1, n)
            npre = 16
        A(f"s_waitcnt vmcnt({npre})")
        rest = [(k, n) for k in range(npre//8, KS0) for n in range(8)]
        lo, hi = int(len(deferred)*P2A/100), int(len(deferred)*P2B/100)
        at = [lo + (hi - lo)*q//max(1, len(rest)) for q in range(len(rest))]
        for i, l in enumerate(deferred):
            while at and at[0] <= i and l.startswith("v_") and not l.startswith("v_cnd"):
                at.pop(0)
                piece(*rest.pop(0))
            A(l)
        for r_ in rest:
            piece(*r_)
        deferred = []
    order = [0, 4, 5, 6, 7, 1, 2, 3]
    need = {0: 2, 1: 3, 2: 4, 3: 5, 4: 6, 8: 7, 12: 8}

    def rd(k, k2, f):
        slot = k % NS
        st, off = slot >> 1, (slot & 1)*32768
        A(f"ds_read_b128 {v(FR(k2, f), 4)}, v{AD(st, f >> 2, k2)} offset:{off + (f & 3)*2048}")
    trace_init(A, 0)
    trace(A, 0, 0)
    A(f"s_setprio {GPRIO}")
    def ring_arrive(k, t=197):
        A(f"s_mov_b64 exec, 1\nv_mov_b32 v{t}, {k}\nds_write_b32 v13, v{t} offset:{RING_D}\ns_mov_b64 exec, -1")
    vm1.wait_for(("st", 0))
    A("s_barrier")
    trace(A, 0, 1)
    for f in order:
        rd(0, 0, f)
    for k in range(16):
        for k2 in range(2):
            nk, nk2 = (k, 1) if k2 == 0 else (k+1, 0)
            have = nk < 16
            if k2 == 1:
                w = f"vmcnt({vm1.wait_for(('st', k+1), emit=False)}) " if k + 1 < KS0 else ""
                A(f"s_waitcnt {w}lgkmcnt(0)")
                if have:
                    A("s_barrier")
            if k == 13 and k2 == 0:
                assert not deferred, len(deferred)
                A(f"v_mov_b32 v8, 0\nglobal_load_dword v9, v8, {sp(DBG)} sc1")
            n = 0
            for m in range(16):
                if k2 == 0 and m in need:
                    A(f"s_waitcnt lgkmcnt({8 - need[m] + n})")
                mt, nt = m >> 2, m & 3
                if "m" not in G1X or k + k2 == 0:
                    A(f"{M16} {v(ACC(mt,nt),4)}, {v(FR(k2,mt),4)}, {v(FR(k2,4+nt),4)}, {'0' if k + k2 == 0 else v(ACC(mt,nt),4)}")
                if have and n < 8:
                    if "r" not in G1X:
                        rd(nk, nk2, order[n])
                    n += 1
                elif k >= DK0:
                    for _ in range(DEFER):
                        if deferred:
                            A(deferred.pop(0))
            if k == 15 and k2 == 0:
                nl, ng = uid("n"), uid("ng")
                A.label(nl)
                A(f"s_waitcnt vmcnt(0)\nv_readfirstlane_b32 s{NONCE}, v9\ns_cmp_lg_u32 s{NONCE}, 0\ns_cbranch_scc1 {ng}")
                A(f"global_load_dword v9, v8, {sp(DBG)} sc1\ns_branch {nl}")
                A.label(ng)
                A(f"s_getreg_b32 s{T0}, hwreg(HW_REG_XCC_ID, 0, 4)\ns_lshl_b32 s{T1}, s{NONCE}, 4\ns_or_b32 s{LOCAL}, s{T0}, s{T1}")
                A(f"v_mov_b32 v194, s{LOCAL}\nv_mov_b32 v202, s{NONCE}\nv_mov_b32 v203, s{NONCE}")
            if TRACE == 2 and k2 == 1:
                trace(A, 0, 40 + k)
    mark(A, 1)
    trace(A, 0, 2)
    bc_a = "op_sel_hi:[0,1,1]"
    bc_b = "op_sel:[1,0,0]"
    TT = 40
    for idx in range(1, 8):
        for half in range(2):
            for pg in range(2):
                L, t = v(LAM(pg), 2), TT + 4*pg
                pr, pi, ur, ui = (v(x, 2) for x in (U(pg, 0, idx-1), U(pg, 1, idx-1), U(pg, 0, idx), U(pg, 1, idx)))
                if half == 0:
                    A(f"v_pk_fma_f32 {v(t,2)}, {L}, {pr}, {ur} {bc_a}\nv_pk_fma_f32 {v(t+2,2)}, {L}, {pi}, {ui} {bc_a}")
                else:
                    A(f"v_pk_fma_f32 {ur}, {L}, {pi}, {v(t,2)} {bc_b} {N0}\nv_pk_fma_f32 {ui}, {L}, {pr}, {v(t+2,2)} {bc_b}")
    for pg in range(2):
        er, ei = U(pg, 0, 7), U(pg, 1, 7)
        horner(A, 32+2*pg, 33+2*pg, L8(pg), er, ei, er+1, ei+1, TT)
        A(f"ds_write_b64 v15, {v(32+2*pg,2)} offset:{16*XRW*pg}")
    trace(A, 0, 3)
    A("s_waitcnt lgkmcnt(0)")
    ring_arrive(17)
    l_, d_ = uid("ek"), uid("ekd")
    A.label(l_)
    A(f"ds_read_b128 v[198:201], v12 offset:{RING_D}\ns_waitcnt lgkmcnt(0)")
    A("v_min3_u32 v197, v198, v199, v200\nv_min_u32 v197, v197, v201")
    A(f"v_readfirstlane_b32 s{T0}, v197\ns_cmp_lt_u32 s{T0}, 17\ns_cbranch_scc1 {l_}")
    trace(A, 0, 4)
    SG = 48
    A(f"ds_read_b128 {v(SG,4)}, v14\nds_read_b128 {v(SG+4,4)}, v14 offset:16")
    P = 200
    A("s_waitcnt lgkmcnt(1)")
    horner(A, 32, 33, Q16, SG, SG+1, SG+2, SG+3, TT)
    A("s_waitcnt lgkmcnt(0)")
    horner(A, 34, 35, Q16, 32, 33, SG+4, SG+5, TT)
    horner(A, 32, 33, Q16, 34, 35, SG+6, SG+7, TT)
    A("v_mov_b32 v34, v32\nv_mov_b32 v35, v33\nv_permlane32_swap_b32 v32, v34\nv_permlane32_swap_b32 v33, v35")
    horner(A, P, P+1, Q64, 32, 33, 34, 35, TT)
    np_ = uid("np")
    A(f"s_cmp_lg_u32 s{WT_}, 0")
    A(f"s_cbranch_scc1 {np_}")
    A(f"buffer_store_dwordx4 {v(P,4)}, v16, {r4(S0)}, 0 offen sc1")
    A(f"s_cmp_lg_u32 s{WP}, 0")
    A(f"s_cbranch_scc1 {np_}")
    A(f"s_mov_b64 exec, 1\nglobal_store_dword v195, v194, {sp(WS)} sc1\ns_mov_b64 exec, -1")
    A.label(np_)
    mark(A, 2)
    trace(A, 0, 5)
    A(f"global_load_dword v243, v18, {sp(WS)} sc1")
    LB = 144

    def lbloads():
        for u in range(8):
            A(f"buffer_load_dwordx4 {v(LB+4*u,4)}, v{136+u}, {r4(S0)}, 0 offen sc1")
        A(f"global_load_dword v197, v196, {sp(WS)} sc1")
    QS = 32
    A("v_add_u32 v15, -56, v15")
    for pg in range(2):
        for w in range(7):
            A(f"ds_read_b64 {v(QS+14*pg+2*w,2)}, v15 offset:{16*XRW*pg + 8*w}")
    QQ = lambda pg: 128 + 4*pg
    TQ = 60
    A("s_waitcnt lgkmcnt(0)")
    for pg in range(2):
        b = QS + 14*pg
        for w in range(1, 6):
            horner(A, b+2*w, b+2*w+1, L16(pg), b+2*w-2, b+2*w-1, b+2*w, b+2*w+1, TQ)
        horner(A, QQ(pg), QQ(pg)+2, L16(pg), b+10, b+11, b+12, b+13, TQ)
        horner(A, QQ(pg)+1, QQ(pg)+3, L8(pg), QQ(pg), QQ(pg)+2, U(pg, 0, 7), U(pg, 1, 7), TQ)
    trace(A, 0, 6)
    O = 32
    cnt = 0
    if LBAT == 0:
        lbloads()
    for idx in range(8):
        for pg in range(2):
            d0, d1, K_, o = v(U(pg, 0, idx), 2), v(U(pg, 1, idx), 2), v(KC(pg), 2), O + 4*pg
            A(f"v_pk_mul_f32 {v(o,2)}, {K_}, {d0} op_sel_hi:[0,1]")
            A(f"v_pk_mul_f32 {v(o+2,2)}, {K_}, {d1} op_sel_hi:[0,1] neg_lo:[1,0] neg_hi:[1,0]")
            A(f"v_pk_fma_f32 {v(o+2,2)}, {K_}, {d0}, {v(o+2,2)} {bc_b} {N0}")
            A(f"v_pk_fma_f32 {d0}, {K_}, {d1}, {v(o,2)} {bc_b} {N0}")
            A(f"v_mov_b64 {d1}, {v(o+2,2)}")
            cnt += 1
            if cnt == LBAT:
                lbloads()
    trace(A, 0, 7)
    A("v_mov_b32 v14, 1\ns_mov_b64 exec, 1\nds_write_b32 v13, v14\ns_mov_b64 exec, -1")
    M0B, RH, RCc, SH, SC = T7, T5, T4, T3, T2
    ACC2 = lambda nt: 32 + 16*nt
    CF = lambda X, nt: 96 + 16*X + 4*nt
    XR, CV = 128, 244
    HR = lambda s_: 148 + 4*(s_ % HD)
    L_OWN = 65536
    A(f"s_xor_b32 s{T0}, s{WT_}, s{PG}\ns_xor_b32 s{T0}, s{T0}, 1\ns_lshl_b32 s{T0}, s{T0}, 6\ns_add_u32 s{T0}, s{T0}, s{WP}")
    A(f"v_lshrrev_b32 v8, 3, v1\nv_lshl_add_u32 v8, v8, 1, s{T0}\nv_lshlrev_b32 v8, 11, v8")
    A("v_and_b32 v14, 7, v1\nv_lshrrev_b32 v15, 4, v1\nv_xor_b32 v14, v14, v15\nv_lshlrev_b32 v14, 4, v14\nv_xor_b32 v15, 64, v14")
    for u in range(4):
        A(f"v_add_u32 v{CV+u}, v8, v{14 + (u & 1)}")
        if u:
            A(f"v_add_u32 v{CV+u}, {u*(16*2048 - 1024)}, v{CV+u}")
    A(f"s_and_b32 s{RCc}, s{TJ}, 7\ns_lshl_b32 s{T0}, s{RCc}, 18\ns_lshl_b32 s{T1}, s{PG}, 10\ns_add_u32 s{T0}, s{T0}, s{T1}")
    srd(A, S2, CRE, T0, 0, 0x40000, T1)
    srd(A, S3, CIM, T0, 0, 0x40000, T1)
    A(f"s_lshl_b32 s{T1}, s{RCc}, 1\ns_add_u32 s{T1}, s{T1}, s{PG}\ns_lshl_b32 s{T1}, s{T1}, 7")
    A(f"s_lshl_b32 s{SH}, s{TI}, 1\ns_add_u32 s{SH}, s{SH}, s{WT_}\ns_lshl_b32 s{T0}, s{SH}, 17\ns_add_u32 s{T0}, s{T0}, s{T1}")
    srd(A, S4, BX, T0, 0, 0x20000, T1)
    A(f"s_add_u32 s{DSK}, s{DSK}, s{T1}\ns_addc_u32 s{DSK+1}, s{DSK+1}, 0")
    A(f"s_lshl_b32 s{T1}, s{T1}, 1\ns_add_u32 s{T1}, s{T1}, 4096\ns_lshl_b32 s{T0}, s{SH}, 19\ns_add_u32 s{T0}, s{T0}, s{T1}")
    A(f"s_add_u32 s{OUT}, s{OUT}, s{T0}\ns_addc_u32 s{OUT+1}, s{OUT+1}, 0\ns_sub_u32 s{LDT}, 0x80000, s{T1}")
    A(f"s_lshl_b32 s{M0B}, s{WAVE}, 12\ns_lshl_b32 s{RH}, s{RCc}, 13\ns_lshl_b32 s{RCc}, s{RCc}, 7")
    A(f"s_lshl_b32 s{T0}, s{WT_}, 14\ns_lshl_b32 s{T1}, s{WP}, 11\ns_add_u32 s{T0}, s{T0}, s{T1}\ns_add_u32 s{T0}, s{T0}, {L_OWN}\nv_add_u32 v16, s{T0}, v10")
    A(f"s_lshl_b32 s{T0}, s{WAVE}, 13\ns_add_u32 s{T0}, s{T0}, {L_OWN}\nv_add_u32 v17, s{T0}, v11")
    for ks in range(4):
        A(f"v_xor_b32 v{20+ks}, {ks << 5}, v7\nv_add_u32 v{24+ks}, 0x10000, v{20+ks}")
    HB = LIM
    A(f"s_mul_i32 s{HB}, s{SH}, {2*TBS}\ns_lshl_b32 s{T1}, s{TJ}, 13\ns_add_u32 s{HB}, s{HB}, s{T1}\ns_lshl_b32 s{T1}, s{WP}, 11\ns_add_u32 s{HB}, s{HB}, s{T1}")
    for u in range(8):
        A(f"v_cmp_gt_u32 vcc, 0x40000, v{136+u}\nv_cndmask_b32 v{40+u}, 0, v202, vcc")
    A(f"s_mov_b32 s{T9}, 0")
    trace(A, 0, 8)
    pl, pd = uid("poll"), uid("polled")
    A.label(pl)
    A("v_mov_b32 v8, 0")
    for u in range(8):
        A(f"s_waitcnt vmcnt({8-u})")
        A(f"v_bitop3_b32 v8, v8, v{LB+4*u+2}, v{40+u} bitop3:0xf6\nv_bitop3_b32 v8, v8, v{LB+4*u+3}, v{40+u} bitop3:0xf6")
    A("s_waitcnt vmcnt(0)\nv_xor_b32 v197, v194, v197\nv_lshrrev_b32 v9, 4, v197\nv_or_b32 v8, v8, v9\nv_cmp_ne_u32 vcc, 0, v8")
    A(f"s_cbranch_vccz {pd}")
    A(f"s_add_u32 s{T9}, s{T9}, 1\ns_cmp_ge_u32 s{T9}, {SPIN_MAX}")
    A(f"s_cbranch_scc1 {pd}")
    lbloads()
    A(f"s_branch {pl}")
    A.label(pd)
    A(f"v_cmp_ne_u32 vcc, 0, v197\ns_cmp_eq_u64 vcc, 0\ns_cselect_b32 s{LOCAL}, {0 if FORCE_REMOTE else 1}, 0")
    mark(A, 3)
    trace(A, 0, 9)
    if TRACE:
        A(f"v_writelane_b32 v0, s{T9}, 63")
    vm = VmCounter(A)

    def cdma(g, us):
        for u in us:
            if u == 0:
                A(f"s_add_u32 m0, s{M0B}, {(g % R)*16384}")
                if g % 2 == 0:
                    A(f"s_add_u32 s{SC}, s{RCc}, {(g >> 1)*128}\ns_and_b32 s{SC}, s{SC}, 0x3ff")
            vm.op(f"buffer_load_dwordx4 v{CV+u}, {r4(S2 if g % 2 == 0 else S3)}, s{SC} offen offset:{u*1024}{NTC} lds", ("c", g))
    cdma(0, range(4))
    cdma(1, range(4))
    A("v_mov_b32 v14, 2\ns_mov_b64 exec, 1\nds_write_b32 v13, v14\ns_mov_b64 exec, -1")
    H0 = LB + 28
    cur = (H0, H0+1)
    for u in range(6, -1, -1):
        d = (48, 49) if cur[0] == H0 else (H0, H0+1)
        horner(A, d[0], d[1], Q256, cur[0], cur[1], LB+4*u, LB+4*u+1, TT)
        cur = d
    assert cur == (48, 49)
    A("v_mov_b32 v50, v48\nv_mov_b32 v51, v49\nv_permlane32_swap_b32 v48, v50\nv_permlane32_swap_b32 v49, v51")
    horner(A, 52, 53, Q128, 50, 51, 48, 49, TT)
    A("v_mov_b32 v54, v52\nv_mov_b32 v55, v53\nv_permlane16_swap_b32 v52, v54\nv_permlane16_swap_b32 v53, v55")
    trace(A, 0, 10)
    G = lambda pg: QQ(pg)
    for pg in range(2):
        Hh, gr, gi, pr, pi = v(52+2*pg, 2), v(G(pg), 2), v(G(pg)+2, 2), v(PP(pg), 2), v(PP(pg)+2, 2)
        A(f"v_pk_fma_f32 {gr}, {Hh}, {pr}, {gr} {bc_a}\nv_pk_fma_f32 {gi}, {Hh}, {pi}, {gi} {bc_a}")
        A(f"v_pk_fma_f32 {gr}, {Hh}, {pi}, {gr} {bc_b} {N0}\nv_pk_fma_f32 {gi}, {Hh}, {pr}, {gi} {bc_b}")
    PK = lambda pg, c, idx: 144 + (pg*2 + c)*8 + idx
    D = lambda c, X, pg: 32 + ((c*2 + X)*2 + pg)*4

    def fix(pg, idx):
        d0, d1, pw, gr, gi = v(U(pg, 0, idx), 2), v(U(pg, 1, idx), 2), v(PW(pg, idx), 2), v(G(pg), 2), v(G(pg)+2, 2)
        A(f"v_pk_fma_f32 {d0}, {pw}, {gr}, {d0} {bc_a}")
        A(f"v_pk_fma_f32 {d1}, {pw}, {gi}, {d1} {bc_a} {N0}")
        A(f"v_pk_fma_f32 {d0}, {pw}, {gi}, {d0} {bc_b} {N0}")
        A(f"v_pk_fma_f32 {d1}, {pw}, {gr}, {d1} {bc_b} {N0}")
        for c in range(2):
            A(f"v_cvt_pk_bf16_f32 v{PK(pg,c,idx)}, v{U(pg,c,idx)}, v{U(pg,c,idx)+1}")

    def tr(u):
        for c in range(2):
            for X in range(2):
                for pg in range(2):
                    A(f"{M16} {v(D(c,X,pg),4)}, {v(PK(pg,c,4*u),4)}, {v(248+4*X,4)}, 0")

    def st(u):
        for c in range(2):
            for X in range(2):
                q = 176 + 16*u + (c*2 + X)*4
                A(f"s_add_u32 s{T1}, s{HB}, {X*TBS + c*4096}")
                for jj in range(4):
                    A(f"v_cvt_pk_bf16_f32 v{q+jj}, v{D(c,X,0)+2*jj}, v{D(c,X,0)+2*jj+1}")
                vm.op(f"buffer_store_dwordx4 {v(q,4)}, v10, {r4(S1)}, s{T1} offen offset:{u*256} sc1", "hst")
                A(f"ds_write_b128 v16, {v(q,4)} offset:{X*8192 + c*4096 + u*256}")
    for u in range(2):
        for idx in range(4*u, 4*u + 4):
            for pg in range(2):
                fix(pg, idx)
            if u == 1 and idx == 5:
                st(0)
                trace(A, 0, 12)
        tr(u)
        if u == 0:
            trace(A, 0, 11)
    st(1)
    mark(A, 4)
    trace(A, 0, 13)
    NK = 64

    def arrive(val):
        A(f"v_mov_b32 v14, {val}")
        A("s_mov_b64 exec, 1\nds_write_b32 v13, v14\ns_mov_b64 exec, -1")

    def check(val, off=0, first=False):
        l, d = uid("ck"), uid("ckd")
        if first:
            A(f"ds_read_b128 v[8:11], v12 offset:{off}\ns_waitcnt lgkmcnt(0)")
        A.label(l)
        A("v_min3_u32 v15, v8, v9, v10\nv_min_u32 v15, v15, v11")
        A(f"v_readfirstlane_b32 s{T0}, v15")
        A(f"s_cmp_ge_u32 s{T0}, {val}")
        A(f"s_cbranch_scc1 {d}")
        A(f"ds_read_b128 v[8:11], v12 offset:{off}\ns_waitcnt lgkmcnt(0)")
        A(f"s_branch {l}")
        A.label(d)

    def hload(s_):
        if s_ % 4 == 0:
            A(f"s_add_u32 s{SH}, s{RH}, {(s_ >> 2)*4096}\ns_and_b32 s{SH}, s{SH}, 0xffff")
        vm.op(f"buffer_load_dwordx4 {v(HR(s_),4)}, v2, {r4(S0)}, s{SH} offen offset:{(s_ & 3)*1024} sc1", ("h", s_))

    def rd2(s_, nts):
        g, ks = s_ >> 2, s_ & 3
        slot = g % R
        base = 20 if slot < 4 else 24
        for nt in nts:
            A(f"ds_read_b128 {v(CF(s_ & 1, nt),4)}, v{base+ks} offset:{(slot & 3)*16384 + nt*4096}")

    def mf(s_, nt):
        c = "0" if s_ == 0 else v(ACC2(nt), 16)
        if E_("HACK16", 0) & 2:
            for z in range(2):
                d = ACC2(nt) + 8*(s_ & 1) + 4*z
                A(f"v_mfma_f32_16x16x32_bf16 {v(d,4)}, {v(HR(s_),4)}, {v(CF(s_ & 1, nt),4)}, {'0' if s_ < 2 else v(d,4)}")
        else:
            A(f"{MF} {v(ACC2(nt),16)}, {v(HR(s_),4)}, {v(CF(s_ & 1, nt),4)}, {c}")
    A("v_mov_b32 v2, v11")
    A(f"s_lshl_b32 s{T0}, s{TI}, 2\ns_add_u32 s{T0}, s{T0}, s{WAVE}\ns_mul_i32 s{T0}, s{T0}, {TBS}\ns_lshl_b32 s{T1}, s{PG}, 16\ns_add_u32 s{T0}, s{T0}, s{T1}")
    srd(A, S0, WS, T0, WS_HT, 0x10000)
    if not OWNFIRST and C23:
        cdma(2, range(4))
        cdma(3, range(4))
    A(f"s_waitcnt vmcnt({vm.wait_for(('c', 1), emit=False)}) lgkmcnt(0)")
    trace(A, 0, 14)
    arrive(3)
    check(3, first=True)
    trace(A, 0, 15)
    for s_ in range(8):
        A(f"ds_read_b128 {v(HR(s_),4)}, v17 offset:{s_*1024}")
    hn = [8]

    def pause():
        A(f"s_lshl_b32 s{T0}, s{WP}, 3\nv_lshl_add_u32 v17, v5, 4, s{T0}")
        A("v_lshlrev_b32 v28, 11, v17\nv_lshl_add_u32 v28, v6, 2, v28")
        A("v_lshlrev_b32 v29, 13, v17\nv_lshl_add_u32 v29, v6, 3, v29")
        A(f"v_lshlrev_b32 v30, 2, v6\nv_mov_b32 v15, s{NONCE}")
        a, b = uid("rs"), uid("rd")
        trace(A, 0, 16)
        vm.wait_for("hst")
        trace(A, 0, 17)
        A(f"s_mov_b64 exec, 1\ns_cmp_eq_u32 s{LOCAL}, 0\ns_cbranch_scc1 {a}")
        A(f"global_store_dword v19, v15, {sp(WS)}\ns_branch {b}")
        A.label(a)
        A(f"global_store_dword v19, v15, {sp(WS)} sc1")
        A.label(b)
        A("s_mov_b64 exec, -1")
        if not E_("GM", 0):
            mark(A, 5)
        check(4, first=True)
        if not NOAUX:
            check(LIMG_FREE, 16, first=True)
        if CTOUCH == 5:
            xtouch(1)
        if CTOUCH == 8:
            ctouch()
        for gg in range(4 if C23 else 2, CPOLL):
            cdma(gg, range(4))
        trace(A, 0, 18)
        wait_cnt(A, 18, 8, SLP_H)
        trace(A, 0, 19)
        vm.issued = []
        if not E_("GM", 0):
            mark(A, 6)
        if OWNFIRST:
            arrive(5)
        gg = max(4, CPOLL)
        while hn[0] < 8 + HPRE:
            hload(hn[0])
            hn[0] += 1
            if hn[0] % 4 == 0 and gg < CPRE:
                cdma(gg, range(4))
                gg += 1
        assert gg == CPRE
        if OWNFIRST:
            check(5, first=True)
        trace(A, 0, 20)
        rd2(8 if OWNFIRST else 0, range(4))

    def flag_store():
        a, b = uid("rs"), uid("rd")
        A(f"s_mov_b64 exec, 1\ns_cmp_eq_u32 s{LOCAL}, 0\ns_cbranch_scc1 {a}")
        A(f"global_store_dword v19, v15, {sp(WS)}\ns_branch {b}")
        A.label(a)
        vm.op(f"global_store_dword v19, v15, {sp(WS)} sc1", "flag")
        A.label(b)
        A("s_mov_b64 exec, -1")
    if HTAG:
        A("s_waitcnt lgkmcnt(0)")
        arrive(4)
        A(f"s_lshl_b32 s{T0}, s{WP}, 3\nv_lshl_add_u32 v17, v5, 4, s{T0}")
        A("v_lshlrev_b32 v28, 11, v17\nv_lshl_add_u32 v28, v6, 2, v28")
        A("v_lshlrev_b32 v29, 13, v17\nv_lshl_add_u32 v29, v6, 3, v29")
        A(f"v_lshlrev_b32 v30, 2, v6\nv_mov_b32 v15, s{NONCE}")
        if HTAG == 1:
            wl, wd = uid("hw"), uid("hwd")
            A(f"s_add_u32 s{T1}, s{RH}, 8192\ns_and_b32 s{T1}, s{T1}, 0xffff\ns_mov_b32 s{CNT}, 0\ns_waitcnt lgkmcnt(0)")
            A.label(wl)
            A(f"s_load_dwordx4 s[4:7], {sp(S0)}, s{T1} offset:{4096 + 1024 + 1008} glc\ns_load_dwordx4 s[8:11], {sp(S0)}, s{T1} offset:{4096 + 3072 + 1008} glc")
            A(f"s_add_u32 s{CNT}, s{CNT}, 1\ns_waitcnt lgkmcnt(0)")
            for q in range(2):
                A(f"s_xor_b64 s[{4+2*q}:{5+2*q}], s[{4+2*q}:{5+2*q}], s[{HT_+2*q}:{HT_+2*q+1}]\ns_xor_b64 s[{8+2*q}:{9+2*q}], s[{8+2*q}:{9+2*q}], s[{HT_+2*q}:{HT_+2*q+1}]")
            A("s_or_b64 s[4:5], s[4:5], s[6:7]\ns_or_b64 s[8:9], s[8:9], s[10:11]\ns_or_b64 s[4:5], s[4:5], s[8:9]\ns_or_b32 s4, s4, s5\ns_and_b32 s4, s4, 0x10001")
            A(f"s_cbranch_scc0 {wd}\ns_cmp_lt_u32 s{CNT}, {SPIN_MAX}\ns_cbranch_scc1 {wl}")
            A.label(wd)
        if HTAG == 3:
            vm.wait_for('hst')
            flag_store()
        if HTAG == 2 and HDLY:
            A(f"s_waitcnt vmcnt({vm.wait_for('hst', emit=False) + HDLY})")
        mark(A, 6)
        for s_ in range(8, 16):
            hload(s_)
        hn[0] = 16
        if HTAG != 3:
            vm.wait_for("hst")
            flag_store()
        if not E_("GM", 0):
            mark(A, 5)
        check(4, first=True)
        if not NOAUX:
            check(LIMG_FREE, 16, first=True)
        for gg in range(4, CPOLL):
            cdma(gg, range(4))
        rd2(0, range(4))
    elif OWNFIRST:
        rd2(0, range(4))
        A("s_waitcnt lgkmcnt(4)")
        arrive(4)
    else:
        A("s_waitcnt lgkmcnt(0)")
        arrive(4)
        pause()
    have_c = lambda g: any(t == ("c", g) for t in vm.issued)
    for s_ in range(NK):
        g, ks = s_ >> 2, s_ & 3
        nxt = s_ + 1
        more = nxt < NK and not (nxt == 8 and OWNFIRST)
        ws = []
        if s_ >= 8:
            ws.append(vm.wait_for(("h", s_), emit=False))
        arr = (s_ + 4) % 8 == 0 and s_ + 4 < NK and (s_ >= 8 or not OWNFIRST)
        if arr:
            gl = ((s_ + 4) >> 2) + 1
            if have_c(gl):
                ws.append(vm.wait_for(("c", gl), emit=False))
        wv = f"vmcnt({min(ws)}) " if ws else ""
        newgrp = more and nxt % 8 == 0
        full = newgrp or not more or s_ == 0
        nc = 2 if s_ >= NK - NDEF else 4
        nn = (2 if nxt >= NK - NDEF else 4) if more else 0
        if full:
            A(f"s_waitcnt {wv}lgkmcnt(0)")
            if newgrp:
                check((nxt >> 3) + 4)
                trace(A, 0, 20 + (nxt >> 3))
                if nxt == 32 and not E_('GM', 0):
                    mark(A, 7)
        else:
            A(f"s_waitcnt {wv}lgkmcnt({nc-1})")
        extra = 0
        if arr:
            arrive(((s_ + 4) >> 3) + 4)
            extra = 1
        issued_n = 0
        for nt in range(nc):
            if nt and not full:
                A(f"s_waitcnt lgkmcnt({nc - 1 - nt + extra + issued_n})")
            mf(s_, nt)
            if nt < 2 and issued_n < nn and (nt == 0 or nn == 4):
                rd2(nxt, [issued_n, issued_n + 1])
                issued_n += 2
            if nt == nc - 2:
                if s_ < 8 and OWNFIRST:
                    if C23:
                        cdma(2 + g, [ks])
                elif CPRE <= g + CD < NK//4:
                    cdma(g + CD, [ks])
        assert issued_n == nn
        if HTAG:
            if s_ < 4*(CPRE - CPOLL):
                cdma(CPOLL + g, [ks])
            if s_ == 6:
                tl, td = uid("ht"), uid("htd")
                A(f"s_mov_b32 s{CNT}, 0")
                vm.wait_for(("h", 15))
                A.label(tl)
                A("v_mov_b32 v4, 0")
                for r in range(32):
                    A(f"v_bitop3_b32 v4, v4, v{HR(8)+r}, s{HT_+(r & 3)} bitop3:0xf6")
                A(f"v_and_b32 v4, 0x10001, v4\nv_cmp_ne_u32 vcc, 0, v4\ns_cbranch_vccz {td}")
                A(f"s_add_u32 s{CNT}, s{CNT}, 1\ns_cmp_ge_u32 s{CNT}, {SPIN_MAX}\ns_cbranch_scc1 {td}")
                keep = list(vm.issued)
                for s2_ in range(8, 16):
                    hload(s2_)
                vm.issued = keep
                A(f"s_waitcnt vmcnt(0)\ns_branch {tl}")
                A.label(td)
                if STAMP == 1:
                    A(f"s_add_u32 s72, s70, s{CNT}")
            if s_ == HFI:
                vm.op(f"global_load_dword v16, v18, {sp(WS)} sc1", "fp")
            if s_ == HFC:
                fd = uid("hf")
                vm.wait_for("fp")
                A(f"v_cmp_ne_u32 vcc, s{NONCE}, v16\ns_cbranch_vccz {fd}")
                wait_cnt(A, 18, 16, 1)
                A.label(fd)
        if (s_ >= (HFC if HTAG else 8) or not (OWNFIRST or HTAG)) and hn[0] < NK:
            for _ in range(3 if HTAG else 2):
                if hn[0] < NK and hn[0] <= s_ + HD:
                    hload(hn[0])
                    hn[0] += 1
        if (s_ + 2) % 8 == 0 and s_ + 2 < NK and (s_ >= 8 or not OWNFIRST):
            A("ds_read_b128 v[8:11], v12")
        if s_ == NK - 18:
            vm.op(f"global_load_dword v31, v30, {sp(DSK)}", "dsk")
        if NK - 17 <= s_ < NK - 1:
            e = s_ - (NK - 17)
            q, r = e >> 2, e & 3
            A(f"s_mov_b32 s{T0}, {(32*(q & 1) + 4*(q >> 1) + (r & 2))*2048}")
            vm.op(f"buffer_load_dword v{XR+e}, v28, {r4(S4)}, s{T0} offen offset:{(r & 1)*2048}", ("x", e))
        if s_ == 7 and OWNFIRST:
            pause()
    mark(A, 8)
    trace(A, 0, 28)
    TG = T0
    A(f"s_mul_i32 s{TG}, s{NONCE}, 0x9e3779b1\ns_and_b32 s{TG}, s{TG}, 0xbfff0000\ns_or_b32 s{TG}, s{TG}, 0x20000000")
    A(f"s_sub_u32 s{T1}, s{NONCE}, 1\ns_xor_b32 s{T1}, s{T1}, s{TG}\ns_cmp_lt_u32 s{T1}, 0x10000\ns_cselect_b32 s{T1}, 0x10000, 0\ns_xor_b32 s{TG}, s{TG}, s{T1}")
    if INOUT:
        A(f"s_lshl_b32 s{T4}, s{PG}, 9\ns_sub_i32 s{T4}, 256, s{T4}\ns_ashr_i32 s{T5}, s{T4}, 31")
        A(f"s_add_u32 s{S2}, s{OUT}, s{T4}\ns_addc_u32 s{S2+1}, s{OUT+1}, s{T5}\ns_sub_u32 s{S2+2}, s{LDT}, s{T4}\ns_mov_b32 s{S2+3}, 0x20000")
        A(f"s_mov_b32 s{S3}, s{OUT}\ns_mov_b32 s{S3+1}, s{OUT+1}\ns_mov_b32 s{S3+2}, s{LDT}\ns_mov_b32 s{S3+3}, 0x20000")
        A(f"s_lshl_b32 s{T4}, s{WP}, 16\nv_lshrrev_b32 v3, 4, v1\nv_lshlrev_b32 v3, 13, v3\nv_and_b32 v4, 15, v1\nv_lshl_add_u32 v3, v4, 4, v3\nv_add_u32 v3, s{T4}, v3")
        xad = lambda gq: (f"s_mov_b32 s{T4}, {(16*(gq >> 1) + 4*(gq & 1))*8192}\n", f"v3, SRD, s{T4} offen")
    else:
        A(f"s_lshl_b32 s{T4}, s{TI}, 4\ns_add_u32 s{T4}, s{T4}, s{TJ}\ns_lshl_b32 s{T4}, s{T4}, 2\ns_add_u32 s{T4}, s{T4}, s{WAVE}\ns_lshl_b32 s{T4}, s{T4}, 13")
        srd(A, S2, WS, T4, WS_XB, 0x2000)
        A(f"s_xor_b32 s{T4}, s{T4}, {8 << 15}")
        srd(A, S3, WS, T4, WS_XB, 0x2000)
        A(f"s_movk_i32 s{T4}, 0x1000")
        xad = lambda gq: ("", f"v2, SRD, {'0' if gq < 4 else f's{T4}'} offen offset:{(gq & 3)*1024}")
    val = lambda n: ACC2(n & 1) + (n >> 1)
    TXR, RX = [96, 100, 244, 248, 252], 180
    for gq in range(5):
        for c in range(4):
            n = 7*gq + 2*c
            lo = f"v{val(min(n, 31))}"
            hi = f"s{TG}" if c == 3 else f"v{val(min(n+1, 31))}"
            A(f"v_cvt_pk_bf16_f32 v{TXR[gq]+c}, {lo}, {hi}")
        A(f"{xad(gq)[0]}buffer_store_dwordx4 {v(TXR[gq],4)}, {xad(gq)[1].replace('SRD', r4(S2))} sc1")

    def rx():
        for gq in range(5):
            A(f"{xad(gq)[0]}buffer_load_dwordx4 {v(RX+4*gq,4)}, {xad(gq)[1].replace('SRD', r4(S3))} sc1")
    if NDEF:
        rd2(NK - NDEF, [2, 3])
        for s_ in range(NK - NDEF, NK):
            if s_ + 1 < NK:
                rd2(s_ + 1, [2, 3])
                A("s_waitcnt lgkmcnt(2)")
            else:
                A("s_waitcnt lgkmcnt(0)")
            mf(s_, 2)
            mf(s_, 3)
    trace(A, 0, 29)
    if E_("XM", 0):
        mark(A, 3)
    A("s_waitcnt vmcnt(5)")
    if E_("XM", 0):
        mark(A, 5)
    trace(A, 0, 30)
    A("v_lshlrev_b32 v8, 16, v31\nv_and_b32 v9, 0xffff0000, v31")
    YO = lambda e: 148 + 2*e
    for e in range(16):
        t = YO(e)
        A(f"v_lshlrev_b32 v{t}, 16, v{XR+e}\nv_and_b32 v{t+1}, 0xffff0000, v{XR+e}")
        A(f"v_pk_mul_f32 {v(t,2)}, {v(t,2)}, v[8:9]")
        A(f"v_cvt_pk_bf16_f32 v10, v{t}, v{t+1}")
        A(f"v_lshlrev_b32 v{t}, 16, v10\nv_and_b32 v{t+1}, 0xffff0000, v10")
        A(f"v_add_f32 v{t}, v{t}, v{ACC2(2)+e}\nv_add_f32 v{t+1}, v{t+1}, v{ACC2(3)+e}")
    A(f"s_mov_b32 s{S1}, s{OUT}\ns_mov_b32 s{S1+1}, s{OUT+1}\ns_mov_b32 s{S1+2}, s{LDT}\ns_mov_b32 s{S1+3}, 0x20000")
    xl, xd = uid("xl"), uid("xd")
    A(f"s_mov_b32 s{CNT}, 0")
    if XPOLL:
        assert not INOUT
        wl, wd = uid("xw"), uid("xwd")
        A.label(wl)
        A(f"s_load_dword s{T1}, {sp(S3)}, {0x1000 + 63*16 + 12} glc\ns_add_u32 s{CNT}, s{CNT}, 1\ns_waitcnt lgkmcnt(0)")
        A(f"s_xor_b32 s{T1}, s{T1}, s{TG}\ns_cmp_lt_u32 s{T1}, 0x10000\ns_cbranch_scc1 {wd}")
        A(f"s_cmp_lt_u32 s{CNT}, {SPIN_MAX}\ns_cbranch_scc1 {wl}")
        A.label(wd)
        A(f"s_mov_b32 s{CNT}, 0")
    trace(A, 0, 31)
    if XPOLL != 2:
        A(f"s_waitcnt vmcnt({E_('XW', 0)})")
    if E_("XM", 0):
        mark(A, 6)
    rx()
    A.label(xl)
    A("v_mov_b32 v10, 0")
    for gq in range(5):
        A(f"s_waitcnt vmcnt({4-gq})")
        A(f"v_bitop3_b32 v10, v10, v{RX+4*gq+3}, s{TG} bitop3:0xf6")
    A("v_cmp_lt_u32 vcc, 0xffff, v10")
    A(f"s_cbranch_vccz {xd}")
    A(f"s_add_u32 s{CNT}, s{CNT}, 1\ns_cmp_ge_u32 s{CNT}, {SPIN_MAX}")
    A(f"s_cbranch_scc1 {xd}")
    rx()
    A(f"s_branch {xl}")
    A.label(xd)
    trace(A, 0, 32)
    if STAMP:
        A(f"s_add_u32 s74, s70, s{CNT}\ns_lshl_b32 s{CNT}, s{LOCAL}, 8\ns_add_u32 s74, s74, s{CNT}")
        mark(A, 4)
    for e in range(16):
        q, r = e >> 2, e & 3
        t = YO(e)
        for nt in range(2):
            n = 2*e + nt
            src = RX + 4*(n // 7) + (n % 7)//2
            if (n % 7) % 2 == 0:
                A(f"v_lshlrev_b32 v{10+nt}, 16, v{src}")
            else:
                A(f"v_and_b32 v{10+nt}, 0xffff0000, v{src}")
        A(f"v_pk_add_f32 {v(t,2)}, {v(t,2)}, v[10:11]")
        A(f"s_mov_b32 s{T4}, {(32*(q & 1) + 4*(q >> 1) + r)*8192}")
        A(f"buffer_store_dwordx2 {v(t,2)}, v29, {r4(S1)}, s{T4} offen{OSTB}")
    trace(A, 0, 33)
    if TRACE:
        A("s_waitcnt vmcnt(0)")
    trace(A, 0, 34)
    trace_dump(A, 0, WAVE, 1)
    stamp_end(A, kidx, WAVE)


def gen_fused(A, name, kidx):
    KNAME_[0] = name
    A(f".globl {name}\n.p2align 8\n.type {name},@function")
    A.label(name)
    A("s_cmp_ge_u32 s2, 256")
    A(f"s_cbranch_scc1 L_{name}_end")
    A("s_load_dwordx16 s[4:19], s[0:1], 0")
    A("s_load_dwordx8 s[20:27], s[0:1], 64")
    A("s_load_dwordx4 s[28:31], s[0:1], 96")
    A("s_load_dwordx2 s[32:33], s[0:1], 112")
    stamp_begin(A)
    A("v_lshrrev_b32 v2, 6, v0\nv_and_b32 v1, 63, v0")
    A(f"v_readfirstlane_b32 s{WAVE}, v2")
    A(f"s_and_b32 s{T0}, s2, 7\ns_lshr_b32 s{T1}, s2, 3")
    A(f"s_lshr_b32 s{TI}, s{T0}, 1\ns_lshl_b32 s{TI}, s{TI}, 2\ns_lshr_b32 s{T2}, s{T1}, 3\ns_add_u32 s{TI}, s{TI}, s{T2}")
    A(f"s_and_b32 s{TJ}, s{T0}, 1\ns_lshl_b32 s{TJ}, s{TJ}, 3\ns_and_b32 s{T2}, s{T1}, 7\ns_add_u32 s{TJ}, s{TJ}, s{T2}")
    if SWAP:
        A(f"s_xor_b32 s{WAVE}, s{WAVE}, 4")
    A(f"s_cmp_ge_u32 s{WAVE}, 4")
    A(f"s_cbranch_scc0 L_{name}_gemm")
    aux_waves(A, name, kidx)
    A.label(f"L_{name}_gemm")
    gemm_waves(A, name, kidx)
    A.label(f"L_{name}_end")
    A("s_endpgm")
    return kdesc(name, 256)
```

```python
import os
from asmlib import *
from common import *

E_ = lambda k, d: int(os.environ.get(k, str(d)))
XO, NP, RI, RJ = E_("XO", 0), E_("NP", 1), E_("RI", 1), E_("RJ", 1)
XO2, NP2 = E_("XO2", 2), E_("NP2", 1)
PRO = E_("PRO", 2)
HD = E_("HD", 24)
CD = E_("CD", 4)
NOAUX = E_("NOAUX", 0)
CODEPF = E_("CODEPF", 1)
NS = E_('NS', 3)
LASW = E_('LASW', 99)
R = 7
LA = E_('LA', 2)
FORCE_REMOTE = E_('FORCE_REMOTE', 0)
MF = "v_mfma_f32_32x32x16_bf16"
N0 = "neg_lo:[1,0,0] neg_hi:[1,0,0]"

AX, WR, WI, BX, LRE, LIM, BRE, BIM, CRE, CIM, LDT, DSK, OUT, DBG, WS = 4, 6, 8, 10, 12, 14, 16, 18, 20, 22, 24, 26, 28, 30, 32
WAVE, TI, TJ, NONCE, TBL = 34, 35, 36, 37, 38
S0, S1, S2, S3, S4 = 40, 44, 48, 52, 56
T0, T1, T2, T3, T4, T5, T6, T7, T8, T9 = range(60, 70)
MSK, CNT, LOCAL, PG = 90, 92, 100, 101
L_XCH = 122880
L_SYNC = 126976
L_AX = 131072
L_W = 147456
WS_CNT = 0x1000
CNT_A, CNT_B, CNT_W = WS_CNT, WS_CNT + 16*128, WS_CNT + 32*128
FLG_A, FLG_B, FLG_W = 0x84000, 0x86000, 0x88000
FLG_X = 0x8000
FLG_H = 0x60000
CPRO1 = E_("CPRO1", 2)
CPRO2 = E_("CPRO2", 2)
CTOUCH = E_("CTOUCH", 4)
TBS = 131072 + E_("TBPAD", 0)
FTOUCH = E_("FTOUCH", 1)
XTOUCH = E_("XTOUCH", 0)
NREP = E_("NREP", 32)
NDEF = E_("NDEF", 12)
HTAG = 0
HDLY = E_("HDLY", 0)
HFI, HFC = E_("HFI", 7), E_("HFC", 10)
XPOLL = E_("XPOLL", 2)
OWNFIRST = E_("OWNFIRST", 1) and not HTAG
C01, C23 = E_("C01", 1), E_("C23", 1)
INOUT = E_("INOUT", 0)
KS_ = 32768 if INOUT else 8192
ISH = 16384 if INOUT else 4096
CTK, CPOLL, CPRE, HPRE = E_("CTK", 14), E_("CPOLL", 6), E_("CPRE", 7), E_("HPRE", 8)
HLOC, HLK = E_("HLOC", 0), E_("HLK", 13)
LBAT = E_("LBAT", 16)
XBF = E_("XBF", 1)
SLP_H, SLP_A = E_("SLP_H", 4), E_("SLP_A", 10)
NT = " nt" if E_("NT", 1) else ""
NTX = " nt"
OST = {0: "", 1: " nt", 2: " sc1", 3: " sc1 nt", 4: " sc0 sc1 nt", 5: " sc0 nt"}[E_("OST", 1)]
NTK = E_("NTK", 0)
OSTB = {0: "", 1: " nt", 2: " sc1", 3: " sc1 nt", 4: " sc0 sc1 nt", 5: " sc0 nt"}[E_("OSTB", 1)]
NTC = " nt" if E_("NTC", 0) else ""


def sp(a):
    return f"s[{a}:{a+1}]"


def srd(A, d, base, soff=None, const=0, size=None, size_s=None):
    if soff is None and const == 0:
        A(f"s_mov_b32 s{d}, s{base}\ns_mov_b32 s{d+1}, s{base+1}")
    else:
        if soff is not None and const:
            A(f"s_add_u32 s{d+2}, s{soff}, {const}")
            o = f"s{d+2}"
        elif soff is not None:
            o = f"s{soff}"
        else:
            o = str(const)
        A(f"s_add_u32 s{d}, s{base}, {o}\ns_addc_u32 s{d+1}, s{base+1}, 0")
    if size_s is not None:
        A(f"s_sub_u32 s{d+2}, {size}, s{size_s}")
    else:
        A(f"s_mov_b32 s{d+2}, {size}")
    A(f"s_mov_b32 s{d+3}, 0x20000")


def r4(d):
    return f"s[{d}:{d+3}]"


_u = [0]


def uid(p):
    _u[0] += 1
    return f"L_{p}{_u[0]}"


def get_nonce(A, vt):
    l, d = uid("n"), uid("nd")
    A(f"v_mov_b32 v{vt}, 0")
    A.label(l)
    A(f"global_load_dword v{vt+1}, v{vt}, {sp(DBG)} sc1")
    A("s_waitcnt vmcnt(0)")
    A(f"v_readfirstlane_b32 s{NONCE}, v{vt+1}")
    A(f"s_cmp_eq_u32 s{NONCE}, 0")
    A(f"s_cbranch_scc1 {l}")


def signal(A, sshard, cnt, flg, expect, vt):
    d = uid("sg")
    A(f"s_lshl_b32 s{CNT}, s{sshard}, 7\ns_add_u32 s{CNT}, s{CNT}, {cnt}")
    A(f"v_mov_b32 v{vt}, s{CNT}\nv_mov_b32 v{vt+1}, 1")
    A("s_waitcnt vmcnt(0)")
    A("s_mov_b64 exec, 1")
    A(f"global_atomic_add v{vt+2}, v{vt}, v{vt+1}, {sp(WS)} sc0 sc1")
    A(f"v_add_u32 v{vt}, {flg - cnt}, v{vt}\nv_mov_b32 v{vt+1}, s{NONCE}")
    A("s_waitcnt vmcnt(0)")
    A(f"v_readfirstlane_b32 s{CNT}, v{vt+2}")
    A(f"s_add_u32 s{CNT}, s{CNT}, 1\ns_cmp_lg_u32 s{CNT}, {expect}")
    A(f"s_cbranch_scc1 {d}")
    A(f"global_store_dword v{vt}, v{vt+1}, {sp(WS)} sc1")
    A.label(d)
    A("s_mov_b64 exec, -1")


def set_flag(A, soff, vt):
    A(f"v_mov_b32 v{vt}, s{soff}\nv_mov_b32 v{vt+1}, s{NONCE}")
    A("s_waitcnt vmcnt(0)")
    A("s_mov_b64 exec, 1")
    A(f"global_store_dword v{vt}, v{vt+1}, {sp(WS)} sc1")
    A("s_mov_b64 exec, -1")


def wait_cnt(A, vaddr, vt, sleep):
    l, d = uid("w"), uid("wd")
    A(f"s_mov_b32 s{CNT}, 0")
    A.label(l)
    A(f"global_load_dword v{vt}, v{vaddr}, {sp(WS)} sc1")
    A("s_waitcnt vmcnt(0)")
    A(f"v_cmp_ne_u32 vcc, s{NONCE}, v{vt}")
    A(f"s_cbranch_vccz {d}")
    if sleep:
        A(f"s_sleep {sleep}")
    A(f"s_add_u32 s{CNT}, s{CNT}, 1\ns_cmp_lt_u32 s{CNT}, {SPIN_MAX}")
    A(f"s_cbranch_scc1 {l}")
    A.label(d)


F, T = 192, 224


import struct as _st


def fl(x):
    return hex(_st.unpack("<I", _st.pack("<f", x))[0])


def lane_float(A, vn, vh, t):
    A(f"v_and_b32 v{t}, 31, v1\nv_cvt_f32_u32 v{t}, v{t}\nv_lshrrev_b32 v{t+1}, 5, v1\nv_lshlrev_b32 v{t+1}, 2, v{t+1}\nv_cvt_f32_u32 v{t+1}, v{t+1}")


def make_F(A, t):
    lane_float(A, None, None, t)
    A(f"v_mul_f32 v{t+1}, v{t}, v{t+1}\nv_mul_f32 v{t+1}, {fl(1/32)}, v{t+1}")
    for i in range(16):
        c = 8*(i >> 2) + (i & 3)
        a = t + 2 + 3*(i & 1)
        A(f"v_fmamk_f32 v{a}, v{t}, {fl(c/32)}, v{t+1}\nv_fract_f32 v{a}, v{a}")
        A(f"v_cos_f32 v{a+1}, v{a}\nv_sin_f32 v{a+2}, v{a}")
        A(f"v_cvt_pk_bf16_f32 v{F+i}, v{a+1}, v{a+2}\nv_cvt_pk_bf16_f32 v{F+16+i}, -v{a+2}, v{a+1}")


def make_T(A, dst, t, half):
    lane_float(A, None, None, t)
    if not half:
        A(f"v_mul_f32 v{t+1}, v{t}, v{t+1}\nv_mul_f32 v{t+1}, {fl(1/1024)}, v{t+1}")
    else:
        A(f"v_mul_f32 v{t}, {fl(1/2048)}, v{t}\nv_fmamk_f32 v{t+1}, v{t+1}, {fl(1/64)}, v{t}")
    for i in range(16):
        c = 8*(i >> 2) + (i & 3)
        a = t + 2 + (i & 1)
        if not half:
            A(f"v_fmamk_f32 v{a}, v{t}, {fl(c/1024)}, v{t+1}")
        else:
            A(f"v_add_f32 v{a}, {fl(c/64)}, v{t+1}")
        A(f"v_cos_f32 v{dst+i}, v{a}\nv_sin_f32 v{dst+16+i}, -v{a}")


def stage1(A, src, D, stride=4):
    if "m" in os.environ.get("SK", ""):
        return
    for c in range(2):
        for s_ in range(4):
            cc = "0" if s_ == 0 else v(D+16*c, 16)
            A(f"{MF} {v(D+16*c,16)}, {v(src+stride*s_,4)}, {v(F+16*c+4*s_,4)}, {cc}")


def twiddle(A, D, dst, tmp, rng=range(16)):
    for i in (rng if "t" not in os.environ.get("SK", "") else []):
        re, im, tr, ti = D+i, D+16+i, T+i, T+16+i
        t = tmp + 2*(i & 3)
        A(f"v_mul_f32 v{t}, v{re}, v{tr}\nv_mul_f32 v{t+1}, v{re}, v{ti}")
        A(f"v_fma_f32 v{t}, -v{im}, v{ti}, v{t}\nv_fmac_f32 v{t+1}, v{im}, v{tr}")
        A(f"v_cvt_pk_bf16_f32 v{dst+i}, v{t}, v{t+1}")


def stage2(A, src, D):
    if "m" in os.environ.get("SK", ""):
        return
    for c in range(2):
        for s_ in range(4):
            cc = "0" if s_ == 0 else v(D+16*c, 16)
            A(f"{MF} {v(D+16*c,16)}, {v(F+16*c+4*s_,4)}, {v(src+4*s_,4)}, {cc}")


W_ = T6
NBW = 2048*513*2
SQ, SO, ST = 184, 185, 186
VA1, VA2, VA8, VLIN = 4, 5, 6, 7
_ph = [0]


def l_arrive(A):
    _ph[0] += 1
    A(f"v_mov_b32 v{ST+4}, {_ph[0]}")
    A(f"s_mov_b64 exec, 1\nds_write_b32 v{SO}, v{ST+4}\ns_mov_b64 exec, -1")
    return _ph[0]


def l_check(A, n, delta=0, slp=1):
    l, d = uid("lc"), uid("lcd")
    if delta:
        A(f"v_add_u32 v{ST+5}, {delta}, v{SQ}")
    A.label(l)
    A(f"ds_read_b128 {v(ST,4)}, v{ST+5 if delta else SQ}\ns_waitcnt lgkmcnt(0)")
    A(f"v_min3_u32 v{ST}, v{ST}, v{ST+1}, v{ST+2}\nv_min_u32 v{ST}, v{ST}, v{ST+3}")
    A(f"v_readfirstlane_b32 s{CNT}, v{ST}")
    A(f"s_cmp_ge_u32 s{CNT}, {n}")
    A(f"s_cbranch_scc1 {d}")
    A(f"s_sleep {slp}\ns_branch {l}")
    A.label(d)


def l_check_loose(A, n, delta):
    l = uid("ll")
    A(f"v_add_u32 v{ST+5}, {delta}, v{SQ}")
    for i in range(4):
        A(f"v_mov_b32 v{ST+i}, 0")
    A.label(l)
    A(f"ds_read_b128 {v(ST,4)}, v{ST+5}\ns_sleep 1")
    A(f"v_min3_u32 v{ST+4}, v{ST}, v{ST+1}, v{ST+2}\nv_min_u32 v{ST+4}, v{ST+4}, v{ST+3}")
    A(f"v_readfirstlane_b32 s{CNT}, v{ST+4}")
    A(f"s_cmp_lt_u32 s{CNT}, {n}")
    A(f"s_cbranch_scc1 {l}")


def l_sync(A):
    l_check(A, l_arrive(A))


def aux_setup_ax(A):
    srd(A, S2, WR, size=NBW)
    srd(A, S3, WI, size=NBW)
    A(f"s_and_b32 s{T0}, s2, 31\ns_lshr_b32 s{T1}, s2, 5\ns_lshl_b32 s{T1}, s{T1}, 7\ns_add_u32 s{T0}, s{T0}, s{T1}")
    A(f"s_lshl_b32 s{T1}, s{W_}, 5\ns_add_u32 s{T7}, s{T0}, s{T1}\ns_lshl_b32 s{T0}, s{T7}, 12")
    srd(A, AX, AX, T0, 0, 0x1000)
    A("v_lshlrev_b32 v2, 4, v1\nv_xor_b32 v3, 128, v2")
    A(f"s_lshl_b32 s{T8}, s{W_}, 12\ns_add_u32 s{T8}, s{T8}, {L_AX}")


def aux_setup_w(A):
    A(f"s_and_b32 s{T0}, s2, 7\ns_bfe_u32 s{T1}, s2, 0x10003\ns_bfe_u32 s{T2}, s2, 0x20004\ns_lshr_b32 s{T3}, s2, 6")
    A(f"s_lshr_b32 s{T4}, s{T0}, 1\ns_lshl_b32 s{T4}, s{T4}, 3\ns_lshl_b32 s{T5}, s{T1}, 2\ns_add_u32 s{T4}, s{T4}, s{T5}")
    A(f"s_and_b32 s{T5}, s{T0}, 1\ns_lshl_b32 s{T5}, s{T5}, 1\ns_add_u32 s{T4}, s{T4}, s{T5}\ns_lshl_b32 s{T4}, s{T4}, 5")
    A(f"s_lshl_b32 s{T5}, s{T2}, 3\ns_add_u32 s{T4}, s{T4}, s{T5}\ns_lshl_b32 s{T5}, s{W_}, 1\ns_add_u32 s{T4}, s{T4}, s{T5}\ns_mul_i32 s{T4}, s{T4}, 1026")
    A(f"s_lshl_b32 s{T5}, s{T3}, 8\ns_add_u32 s{T9}, s{T4}, s{T5}")
    A("v_bfe_u32 v8, v1, 4, 1\nv_mul_u32_u24 v8, 32832, v8")
    A(f"v_lshrrev_b32 v9, 5, v1\ns_mov_b32 s{T5}, 1050624\nv_mul_lo_u32 v9, s{T5}, v9\nv_add_u32 v8, v8, v9")
    A(f"v_and_b32 v9, 15, v1\ns_lshl_b32 s{T5}, s{W_}, 1\nv_xor_b32 v9, s{T5}, v9")
    A("v_lshl_add_u32 v18, v9, 4, v8\nv_xor_b32 v9, 1, v9\nv_lshl_add_u32 v19, v9, 4, v8\nv_add_u32 v19, 1026, v19")
    A(f"s_bfe_u32 s{T4}, s2, 0x20005\ns_lshl_b32 s{T4}, s{T4}, 8\ns_bfe_u32 s{T5}, s2, 0x10004\ns_lshl_b32 s{T5}, s{T5}, 6\ns_add_u32 s{T4}, s{T4}, s{T5}")
    A(f"s_bfe_u32 s{T5}, s2, 0x10003\ns_lshl_b32 s{T5}, s{T5}, 7\ns_add_u32 s{T4}, s{T4}, s{T5}\ns_and_b32 s{T5}, s2, 7\ns_lshl_b32 s{T5}, s{T5}, 2\ns_add_u32 s{T4}, s{T4}, s{T5}")
    A(f"v_bfe_u32 v8, v1, 3, 2\nv_add_u32 v8, s{T4}, v8\nv_bfe_u32 v9, v1, 2, 1\nv_lshl_add_u32 v8, v9, 5, v8\nv_bfe_u32 v9, v1, 1, 1\nv_lshl_add_u32 v8, v9, 10, v8")
    A("v_sub_u32 v9, 2048, v8\nv_and_b32 v9, 2047, v9\nv_and_b32 v10, 1, v1\nv_cmp_eq_u32 vcc, 1, v10\nv_cndmask_b32 v8, v8, v9, vcc")
    A(f"v_mul_u32_u24 v17, 1026, v8\ns_lshr_b32 s{T4}, s2, 7\ns_lshl_b32 s{T4}, s{T4}, 10\nv_add_u32 v17, s{T4}, v17")


def aux_setup2(A):
    make_F(A, 92)
    make_T(A, T, 92, 0)
    make_T(A, TT, 92, 1)


def aux_issue(A, vm):
    for c in range(2):
        A(f"s_add_u32 m0, s{T8}, {c*2048}")
        A(f"s_mov_b32 s{CNT}, {c*2048}")
        for u in range(2):
            vm.op(f"buffer_load_dwordx4 v{2+c}, {r4(AX)}, s{CNT} offen offset:{u*1024}{NT} lds", "ax")


def w_issue(A, vm):
    for bb in range(2):
        for arr in range(2):
            A(f"s_add_u32 m0, s{T8}, {L_W - L_AX + bb*2048 + arr*1024}")
            vm.op(f"buffer_load_dwordx4 v{18+bb}, {r4(S2 if arr == 0 else S3)}, s{T9} offen{NT} lds" if "1" not in SK else f"buffer_load_dword v23, v2, {r4(AX)}, 0 offen offset:4092", "w")
    nw = uid("nw")
    A(f"s_cmp_lg_u32 s{W_}, {3 if not ('1' in SK or 'p' in SK) else 9}\ns_cbranch_scc1 {nw}")
    A("s_mov_b32 exec_hi, 0")
    A(f"buffer_load_ushort v{WSP}, v17, {r4(S2)}, 0 offen{NT}")
    A(f"buffer_load_ushort v{WSP+1}, v17, {r4(S3)}, 0 offen{NT}")
    A("s_mov_b64 exec, -1")
    A.label(nw)


WSP, IN, D, MID, TMP = 88, 24, 40, 72, 168
DY, W, TT = 72, 104, 136
M_, SPC, CJ, SGN = T0, T1, T2, T3
AUXK = E_("AUXK", 5)
GATE = E_("GATE", 0)
WK = E_("WK", 1)
WMID = WK <= 12
WSK = E_("WSK", 8)
A1K = E_("A1K", 0)
FINE = E_("FINE", 1)
ZSK = E_("ZSK", A1K + 3 + FINE)
LATE = A1K >= 6
A2G = E_("A2G", 0)
A3G = E_("A3G", 0)
ZG = E_("ZG", 0)
CTW = E_("CTW", 0)
POLLK = E_("POLLK", 15)
VTLB, VTN, VTF = E_("VTLB", 0), E_("VTN", 1), (" nt" if E_("VTF", 1) else "")
TLBW = E_("TLBW", 0)
DEFER = E_("DEFER", 2)
DK0 = E_("DK0", 0)
LPOS = E_("LPOS", 6)
BARP = E_("BARP", 1)
SWAP = E_("SWAP", 1)
WPOS = E_("WPOS", 0)
ZPOS = E_("ZPOS", -1)
WTK = E_("WTK", 3)
EARLY2 = E_("EARLY2", 1)
SNON = E_("SNON", 0)
FPOLL = E_("FPOLL", 14)
WPK = E_("WPK", -1)
PRES = E_("PRES", 1)
NPRE = E_("NPRE", 3)
KS0 = E_("KS0", 2)
P1, P2A, P2B = E_("P1", 0), E_("P2A", 50), E_("P2B", 95)
LDEF = E_("LDEF", 0)
LSLP = E_("LSLP", 1)
WSH = E_("WSH", 1)
PRE1, PRE2 = E_("PRE1", 6), E_("PRE2", 12)
HALF = E_("HALF", 0)
WEARLY = E_("WEARLY", 0)
KA, KA0, KA1, KAG = E_("KA", 0), E_("KA0", 1), E_("KA1", 15), E_("KAG", 0)
G1X = os.environ.get("G1X", "")
WMODE = E_("WMODE", 0)
CPK = [int(x) for x in os.environ.get("CPK", "").split(",") if x]
WXT = E_("WXT", 0)
RSLP = E_("RSLP", 1)
PAL = E_("PAL", 0)
NREPA = E_("NREPA", 8)
AXT = E_("AXT", 0)
APRIO, GPRIO = E_("APRIO", 0), E_("GPRIO", 1)
FM, CM = E_("FM", 12), E_("CM", 4)
DMAP = os.environ.get("DMAP", "5,9,13,17,21,25,29,33")
CSP, CSP0, CSB, CSPH = E_("CSP", 0), E_("CSP0", 2), E_("CSB", 12), E_("CSPH", 1)
SK = os.environ.get("SK", "")
A2C = E_("A2C", 0)
LPRIO3 = E_("LPRIO3", 0)
LPRIO0 = E_("LPRIO0", 3)
LPRIO, LPRIO2 = E_('LPRIO', 0), E_('LPRIO2', 0)
L_IMG = 98304
LIMG_FREE = 2


def img(i):
    ka = 8*(i >> 2) + (i & 3)
    return (VA1, ka*1024) if i < 8 else (VA8, 0) if i == 8 else (VA2, (27 - ka)*1024)


def aux_pre_a(A):
    A(f"v_mov_b32 v{SQ}, {L_SYNC + 16}\ns_lshl_b32 s{T4}, s{W_}, 2\nv_add_u32 v{SO}, s{T4}, v{SQ}")
    A("v_and_b32 v8, 31, v1\nv_lshrrev_b32 v9, 5, v1\nv_and_b32 v10, 1, v1")
    A(f"v_lshrrev_b32 v11, 1, v8\nv_lshlrev_b32 v{VA1}, 6, v11\nv_lshl_add_u32 v{VA1}, v10, 4, v{VA1}\nv_lshl_add_u32 v{VA1}, v9, 12, v{VA1}")
    A(f"v_add_u32 v11, v11, v10\nv_lshlrev_b32 v11, 6, v11\nv_lshl_add_u32 v11, v10, 4, v11\nv_lshl_add_u32 v11, v9, 12, v11\nv_sub_u32 v{VA2}, {5120 + 48}, v11")
    for r in (VA1, VA2):
        A(f"v_bfe_u32 v11, v{r}, 7, 1\nv_lshlrev_b32 v11, 5, v11\nv_xor_b32 v{r}, v{r}, v11")
    A(f"v_add_u32 v{VA8}, 11264, v{VA2}\nv_and_b32 v{VA8}, 0x3fff, v{VA8}")
    A(f"s_add_u32 s{T4}, s{T4}, {L_IMG}")
    for r in (VA1, VA2, VA8):
        A(f"v_add_u32 v{r}, s{T4}, v{r}")
    A(f"v_bfe_u32 v11, v1, 3, 1\nv_lshlrev_b32 v11, 5, v11\nv_xor_b32 v{VLIN}, v2, v11")

    A("v_bfe_u32 v12, v1, 2, 1\nv_mul_u32_u24 v12, 2176, v12")
    A("v_bfe_u32 v13, v1, 3, 1\nv_lshl_add_u32 v12, v13, 6, v12\nv_lshl_add_u32 v12, v9, 8, v12")
    A("v_bfe_u32 v13, v1, 4, 1\nv_lshl_add_u32 v12, v13, 5, v12\nv_and_b32 v13, 3, v1\nv_lshl_add_u32 v12, v13, 3, v12")
    A(f"v_add_u32 v12, s{T8}, v12\nv_xor_b32 v13, 128, v12")
    if INOUT:
        A(f"s_lshl_b32 s{T4}, s{T7}, 14")
        srd(A, S0, OUT, T4, 0, 0x1000)
        srd(A, S1, OUT, T4, 0, 0x1000)
    else:
        A(f"s_lshl_b32 s{T4}, s2, 14\ns_lshl_b32 s{T5}, s{W_}, 12\ns_add_u32 s{T4}, s{T4}, s{T5}")
        srd(A, S0, WS, T4, WS_Z1, 0x1000)
        srd(A, S1, WS, T4, WS_Z3, 0x1000)


def aux_pre_w(A):
    A(f"v_and_b32 v14, 7, v1\nv_lshrrev_b32 v15, 3, v1\nv_xor_b32 v16, v14, v15\nv_lshlrev_b32 v16, 4, v16\nv_lshl_add_u32 v16, v14, 11, v16")
    A(f"s_lshr_b32 s{T4}, s{W_}, 1\ns_lshl_b32 s{T4}, s{T4}, 7\ns_and_b32 s{T5}, s{W_}, 1\ns_lshl_b32 s{T5}, s{T5}, 3\ns_add_u32 s{T4}, s{T4}, s{T5}\ns_add_u32 s{T4}, s{T4}, {L_W}")
    A(f"v_add_u32 v{VWR}, s{T4}, v16")
    A(f"v_lshlrev_b32 v15, {18 if INOUT else 16}, v15\nv_lshl_add_u32 v22, v14, 4, v15")
    A(f"s_lshl_b32 s{T4}, s{T3}, 7\ns_lshr_b32 s{T5}, s{W_}, 1\ns_lshl_b32 s{T5}, s{T5}, 6\ns_add_u32 s{T4}, s{T4}, s{T5}")
    A(f"s_and_b32 s{T5}, s{W_}, 1\ns_lshl_b32 s{T5}, s{T5}, 2\ns_add_u32 s{T4}, s{T4}, s{T5}\ns_mul_i32 s{T4}, s{T4}, {KS_}")
    A(f"s_lshr_b32 s{T5}, s{T0}, 2\ns_mul_i32 s{T5}, s{T5}, {ISH - 4096}\ns_add_u32 s{T4}, s{T4}, s{T5}")
    A(f"s_lshl_b32 s{T5}, s{T0}, 10\ns_add_u32 s{T4}, s{T4}, s{T5}\ns_lshl_b32 s{T5}, s{T1}, 9\ns_add_u32 s{T4}, s{T4}, s{T5}\ns_lshl_b32 s{T5}, s{T2}, 7\ns_add_u32 s{T4}, s{T4}, s{T5}")
    if INOUT:
        A(f"s_add_u32 s{T4}, s{T4}, 8192")
        srd(A, S4, OUT, T4, 0, 0x1000000, T4)
    else:
        srd(A, S4, WS, T4, WS_WT + 2*KS_, 0x400000, T4)


KNAME_ = [None]


def code_touch(A, t0):
    name = KNAME_[0]
    pc = uid("pc")
    per = 6
    A(f"s_getpc_b64 {sp(t0)}")
    A.label(pc)
    A(f"s_sub_u32 s{t0}, s{t0}, {pc}-{name}\ns_subb_u32 s{t0+1}, s{t0+1}, 0")
    A(f"s_lshr_b32 s{CNT}, s2, 3\ns_lshl_b32 s{CNT}, s{CNT}, 2\ns_add_u32 s{CNT}, s{CNT}, s{W_}\ns_mul_i32 s{CNT}, s{CNT}, {per*64}")
    A(f"s_min_u32 s{CNT}, s{CNT}, L_{name}_end-{name}-{per*64}")
    for q in range(per):
        A(f"s_load_dword s3, {sp(t0)}, s{CNT} offset:{q*64}")


def c_prefetch(A, p, done):
    A(f"s_load_dwordx4 s[8:11], s[0:1], 64")
    A(f"s_and_b32 s12, s{TJ}, 7\ns_lshl_b32 s13, s12, 7\ns_and_b32 s14, s{TI}, 3\ns_lshl_b32 s14, s14, 5\ns_add_u32 s13, s13, s14")
    A(f"s_sub_u32 s14, s{W_}, 1\ns_mul_i32 s14, s14, 11\ns_min_u32 s14, s14, 21\ns_add_u32 s13, s13, s14\ns_lshl_b32 s13, s13, 11")
    A(f"s_lshr_b32 s14, s{TJ}, 3\ns_lshl_b32 s14, s14, 10\ns_add_u32 s13, s13, s14\ns_waitcnt lgkmcnt(0)")
    A("s_add_u32 s4, s8, s13\ns_addc_u32 s5, s9, 0\ns_add_u32 s6, s10, s13\ns_addc_u32 s7, s11, 0")
    cnt = 0
    for n in range(CSP0, CSP0 + CSP):
        A(f"s_add_u32 s15, s12, {n}\ns_and_b32 s15, s15, 7\ns_lshl_b32 s15, s15, 7")
        for r in range(11):
            for arr in range(2):
                for sec in range(2):
                    A(f"s_load_dword s3, s[{4+2*arr}:{5+2*arr}], s15 offset:{r*2048 + sec*64}")
                    cnt += 1
                    if cnt % CSB == 0:
                        A(f"ds_read_b128 {v(ST,4)}, v{SQ}\ns_waitcnt lgkmcnt(0)")
                        A(f"v_min3_u32 v{ST}, v{ST}, v{ST+1}, v{ST+2}\nv_min_u32 v{ST}, v{ST}, v{ST+3}")
                        A(f"v_readfirstlane_b32 s{CNT}, v{ST}\ns_cmp_ge_u32 s{CNT}, {p}\ns_cbranch_scc1 {done}")


def c_touch(A, vm):
    A(f"s_and_b32 s{T4}, s2, 1\ns_lshl_b32 s{T4}, s{T4}, 10\ns_bfe_u32 s{CNT}, s2, 0x20001\ns_lshl_b32 s{CNT}, s{CNT}, 19\ns_add_u32 s{T4}, s{T4}, s{CNT}")
    A(f"s_lshr_b32 s{CNT}, s2, 3\ns_lshl_b32 s{CNT}, s{CNT}, 14\ns_add_u32 s{T4}, s{T4}, s{CNT}")
    A(f"s_lshr_b32 s{CNT}, s{W_}, 1\ns_lshl_b32 s{CNT}, s{CNT}, 13\ns_add_u32 s{T4}, s{T4}, s{CNT}")
    A(f"v_bfe_u32 v22, v1, 3, 2\nv_lshlrev_b32 v22, 11, v22\nv_and_b32 v23, 7, v1\nv_lshl_add_u32 v22, v23, 7, v22\nv_add_u32 v22, s{T4}, v22")
    A("s_mov_b32 exec_hi, 0")
    vm.op(f"global_load_dword v23, v22, s[100:101]", "touch")
    A("s_mov_b64 exec, -1")


def flag_poll(A, flg):
    A(f"s_lshl_b32 s{T4}, s2, 2\ns_add_u32 s{T4}, s{T4}, s{W_}\ns_lshr_b32 s{T4}, s{T4}, 4\ns_lshl_b32 s{T4}, s{T4}, 7\ns_add_u32 s{T4}, s{T4}, {flg}")
    A(f"s_add_u32 s24, s{WS}, s{T4}\ns_addc_u32 s25, s{WS+1}, 0")
    A(f"s_load_dwordx16 s[4:19], s[24:25], 0x0 glc")


def flag_wait(A):
    late, go, pl_ = uid("late"), uid("go"), uid("sp")
    A(f"s_mov_b32 s26, s{NONCE}\ns_mov_b32 s27, s{NONCE}\ns_mov_b32 s{CNT}, 0\ns_branch {pl_}")
    A.label(late)
    A(f"s_add_u32 s{CNT}, s{CNT}, 1\ns_cmp_ge_u32 s{CNT}, {SPIN_MAX}\ns_cbranch_scc1 {go}")
    A(f"s_sleep 8\ns_load_dwordx16 s[4:19], s[24:25], 0x0 glc")
    A.label(pl_)
    A("s_waitcnt lgkmcnt(0)")
    for q in range(8):
        A(f"s_cmp_eq_u64 s[{4+2*q}:{5+2*q}], s[26:27]\ns_cbranch_scc0 {late}")
    A.label(go)


RR = lambda arr, kind: 104 + (arr*4 + kind)*2


VWR = 21


def wt_read(A, fin=True):
    for arr in range(2):
        for kind in range(4):
            A(f"ds_read_b64 {v(RR(arr,kind),2)}, v{VWR} offset:{arr*1024 + kind*256}")


def wt_sym(A):
    A(f"s_mov_b32 s{T4}, 0x05040100\ns_mov_b32 s{T5}, 0x07060302")
    A(f"v_lshlrev_b32 v{WSP}, 16, v{WSP}\nv_lshlrev_b32 v{WSP+1}, 16, v{WSP+1}\nv_lshlrev_b32 v23, 1, v1")
    A(f"v_add_f32_dpp v{WSP+2}, v{WSP}, v{WSP} quad_perm:[1,0,3,2] row_mask:0xf bank_mask:0xf")
    A(f"v_subrev_f32_dpp v{WSP+3}, v{WSP+1}, v{WSP+1} quad_perm:[1,0,3,2] row_mask:0xf bank_mask:0xf")
    A(f"v_mul_f32 v{WSP+2}, 0.5, v{WSP+2}\nv_mul_f32 v{WSP+3}, 0.5, v{WSP+3}")
    A(f"v_cvt_pk_bf16_f32 v{WSP}, v{WSP+2}, v{WSP+3}")


def wt_perm(A):
    for kap in range(4):
        o = 120 + 4*kap
        for e in range(2):
            for h2 in range(2):
                kind = e + 2*h2
                A(f"v_perm_b32 v{o+2*e+h2}, v{RR(1,kind)+kap//2}, v{RR(0,kind)+kap//2}, s{T4 + kap % 2}")


def wt_store(A, vm):
    nw = uid("nw")
    A(f"s_cmp_lg_u32 s{W_}, 3\ns_cbranch_scc1 {nw}")
    A(f"s_lshr_b32 s{T4}, s2, 7\ns_mul_i32 s{T4}, s{T4}, {KS_}\ns_bfe_u32 s{T5}, s2, 0x10006\ns_mul_i32 s{T5}, s{T5}, {ISH}\ns_add_u32 s{T4}, s{T4}, s{T5}")
    A(f"s_and_b32 s{T5}, s2, 63\ns_lshl_b32 s{T5}, s{T5}, 6\ns_add_u32 s{T4}, s{T4}, s{T5}")
    srd(A, 4, WS, T4, WS_WT, 64)
    A("s_mov_b32 exec_lo, 0x55555555\ns_mov_b32 exec_hi, 0")
    if not E_("SKIPS", 0):
        A(f"buffer_store_dword v{WSP}, v23, {r4(4)}, 0 offen sc1")
    A("s_mov_b64 exec, -1")
    A.label(nw)
    for kap in range(0 if "2" in SK else 4):
        A(f"s_mov_b32 s{CNT}, {kap*KS_}")
        vm.op(f"buffer_store_dwordx4 {v(120+4*kap,4)}, v22, {r4(S4)}, s{CNT} offen sc1", "wst")


def a1_stores(A, vm):
    for u in range(0 if "3" in SK else 4):
        vm.op(f"buffer_store_dwordx4 {v(MID+4*u,4)}, v2, {r4(S0)}, 0 offen offset:{u*1024} sc1", "zst")
    if WMODE == 0 and WTK == ZPOS:
        wt_store(A, vm)


def a1_task(A, vm):
    vm.wait_for("ax")
    trace(A, 0, 2)
    for s_ in range(4):
        for u in range(2):
            A(f"ds_read_b64_tr_b16 {v(IN+4*s_+2*u,2)}, v{12+u} offset:{s_*512}")
    A("s_waitcnt lgkmcnt(0)")
    stage1(A, IN, D)
    twiddle(A, D, MID, TMP)
    stage2(A, MID, D)
    A(f"s_lshl_b32 s{CNT}, s{W_}, 12\ns_add_u32 s{CNT}, s{CNT}, {L_IMG}\nv_add_u32 v8, s{CNT}, v{VLIN}")
    for i in range(16):
        A(f"v_cvt_pk_bf16_f32 v{MID+i}, v{D+i}, v{D+16+i}")
        a, o = img(i)
        A(f"ds_write_b32 v{a}, v{MID+i} offset:{o}")
    trace(A, 0, 3)
    if WMODE == 0 and WPK < 0:
        vm.wait_for("w")
    A("s_waitcnt lgkmcnt(0)")
    l_sync(A)
    trace(A, 0, 4)
    for u in range(4):
        A(f"ds_read_b128 {v(MID+4*u,4)}, v8 offset:{u*1024}")
    if WMODE == 0 and WPK < 0:
        wt_read(A)
    for r in (VA1, VA2, VA8):
        A(f"v_add_u32 v{r}, {L_AX - L_IMG}, v{r}")
    A("s_waitcnt lgkmcnt(0)")
    p = l_arrive(A)
    assert p == LIMG_FREE
    if WMODE == 0 and WPK < 0:
        wt_sym(A)
        wt_perm(A)
    if EARLY2:
        make_T(A, TT, 92, 1)
        a2_setup(A)
    if ZPOS < 0:
        a1_stores(A, vm)
    trace(A, 0, 5)


def a2_setup(A):
    A(f"s_and_b32 s{M_}, s2, 7\ns_lshl_b32 s{M_}, s{M_}, 5\ns_lshr_b32 s{T4}, s2, 3\ns_add_u32 s{M_}, s{M_}, s{T4}")
    A(f"s_lshr_b32 s{T4}, s{W_}, 1\ns_xor_b32 s{T4}, s{T4}, s{W_}\ns_and_b32 s{T4}, s{T4}, 1")
    A(f"s_or_b32 s{T5}, s{T4}, s{M_}\ns_cmp_eq_u32 s{T5}, 0\ns_cselect_b32 s{SPC}, 1, 0")
    A(f"s_lshl_b32 s{T5}, s{M_}, 1\ns_add_u32 s{T4}, s{T4}, s{T5}")
    A(f"s_mul_i32 s{T4}, s{T4}, {KS_}\ns_add_u32 s{T4}, s{T4}, {8192 if INOUT else WS_WT + 2*KS_}")
    A(f"s_lshr_b32 s{T5}, s{W_}, 1\ns_mul_i32 s{T9}, s{T5}, {KS_}\ns_add_u32 s{T9}, s{T9}, {WS_WT}")
    A(f"s_cmp_eq_u32 s{SPC}, 1\ns_cselect_b32 s{T4}, s{T9}, s{T4}\ns_cselect_b32 s{T5}, 0, s{T5}")
    A(f"s_cselect_b32 s{MSK}, s{WS}, s{OUT if INOUT else WS}\ns_cselect_b32 s{MSK+1}, s{WS+1}, s{(OUT if INOUT else WS)+1}")
    A(f"s_lshl_b32 s{CJ}, s{T5}, 31\ns_or_b32 s{SGN}, s{CJ}, 0x3f800000")
    srd(A, S2, MSK, T4, 0, ISH + 4096)
    if INOUT:
        A(f"s_lshl_b32 s{T4}, s{W_}, 22\ns_lshr_b32 s{T5}, s{M_}, 6\ns_lshl_b32 s{T5}, s{T5}, 19\ns_add_u32 s{T4}, s{T4}, s{T5}")
        A(f"s_and_b32 s{T5}, s{M_}, 63\ns_lshl_b32 s{T5}, s{T5}, 6\ns_add_u32 s{T4}, s{T4}, s{T5}")
        srd(A, S3, OUT, T4, 0, 160*16384, T5)
        srd(A, S4, OUT, T4, 0, 160*16384, T5)
    else:
        A(f"s_lshl_b32 s{T4}, s{W_}, 20\ns_lshl_b32 s{T5}, s{M_}, 6\ns_add_u32 s{T4}, s{T4}, s{T5}")
        assert WS_Z1 == WS_Z3
        srd(A, S3, WS, T4, WS_Z1, 0x100000, T5)
    A("v_lshrrev_b32 v8, 2, v1\nv_lshlrev_b32 v8, 14, v8\nv_and_b32 v9, 3, v1\nv_lshrrev_b32 v10, 4, v1\nv_xor_b32 v9, v9, v10\nv_lshl_add_u32 v14, v9, 4, v8")
    A(f"v_and_b32 v8, 31, v1\nv_bfe_u32 v9, v1, 2, 2\nv_xor_b32 v9, s{W_}, v9\nv_lshlrev_b32 v9, 4, v9\nv_lshl_add_u32 v9, v8, 6, v9")
    A(f"v_lshrrev_b32 v8, 5, v1\nv_lshl_add_u32 v9, v8, 11, v9\nv_add_u32 v15, {L_AX}, v9")
    A(f"s_lshl_b32 s{T4}, s{W_}, 13\ns_add_u32 s{T4}, s{T4}, {L_AX}\nv_add_u32 v16, s{T4}, v2")
    A(f"s_xor_b32 s{T5}, s{T4}, {3 << 13}\ns_cmp_eq_u32 s{SPC}, 1\ns_cselect_b32 s{T5}, s{T4}, s{T5}\nv_add_u32 v17, s{T5}, v2")
    A(f"v_add_u32 v18, s{T8}, v2")
    A(f"s_lshr_b32 s{T4}, s{W_}, 1\ns_xor_b32 s{T4}, s{T4}, s{W_}\ns_and_b32 s{T4}, s{T4}, 1\ns_lshl_b32 s{T9}, s{T4}, 13\ns_add_u32 s{T9}, s{T9}, {L_W}\nv_add_u32 v19, s{T9}, v2")
    for kk in range(32):
        A(f"v_mul_f32 v{TT+kk}, s{SGN}, v{TT+kk}")


ZU = lambda u: (16*(u & 1) + 128*(u >> 1))*16384 if INOUT else u << 18


def a2_loads(A, z=True, w=True):
    for u in range(4 if z and '5' not in SK else 0):
        A(f"s_add_u32 m0, s{T8}, {u*1024}\ns_mov_b32 s{T4}, {ZU(u)}")
        A(f"buffer_load_dwordx4 v14, {r4(S3)}, s{T4} offen sc1 lds")
    if WSH:
        a, b = uid("ws"), uid("wd")
        A(f"s_cmp_eq_u32 s{SPC}, 1\ns_cbranch_scc1 {a}")
        A(f"s_lshr_b32 s{T4}, s{W_}, 1\ns_lshl_b32 s{T5}, s{T4}, 12\ns_mul_i32 s{T4}, s{T4}, {ISH}\ns_add_u32 m0, s{T9}, s{T5}")
        for u in range(4):
            A(f"buffer_load_dwordx4 v2, {r4(S2)}, s{T4} offen offset:{u*1024} sc1 lds")
        A(f"s_waitcnt vmcnt(0)\ns_branch {b}")
        A.label(a)
    A(f"s_movk_i32 s{T4}, {ISH}")
    for it in range(8 if w and '4' not in SK else 0):
        A(f"buffer_load_dwordx4 {v(W+4*it,4)}, v2, {r4(S2)}, {'0' if it < 4 else f's{T4}'} offen offset:{(it & 3)*1024} sc1")
    if WSH:
        A.label(b)


PH_RES = 18


def phase_atomic(A, cnt, p):
    x = uid("ph")
    A(f"s_cmp_lg_u32 s{W_}, 0\ns_cbranch_scc1 {x}")
    l_check(A, p)
    A(f"s_and_b32 s{T4}, s2, 15\ns_lshl_b32 s{T5}, s{T4}, 7\ns_add_u32 s{T5}, s{T5}, {cnt}")
    A(f"s_add_u32 s{MSK}, s{WS}, s{T5}\ns_addc_u32 s{MSK+1}, s{WS+1}, 0\ns_mov_b32 s{PH_RES}, 1")
    A(f"s_atomic_add s{PH_RES}, {sp(MSK)}, 0x0 glc")
    A.label(x)


def phase_last(A, flg, wait=True, nrep=None):
    y = uid("sg")
    A(f"s_cmp_lg_u32 s{W_}, 0\ns_cbranch_scc1 {y}")
    A(f"s_and_b32 s{T4}, s2, 15\ns_lshl_b32 s{T4}, s{T4}, 2\ns_add_u32 s{T4}, s{T4}, {flg}")
    A(f"s_add_u32 s4, s{WS}, s{T4}\ns_addc_u32 s5, s{WS+1}, 0")
    A("s_waitcnt lgkmcnt(0)")
    A(f"s_cmp_lg_u32 s{PH_RES}, 15\ns_cbranch_scc1 {y}")
    for r in range(nrep or NREP):
        A(f"s_atomic_swap s{NONCE}, s[4:5], {hex(r*128)}")
    if wait:
        A("s_waitcnt lgkmcnt(0)")
    A.label(y)


def phase_wait(A, flg, tb, nrep=None):
    x, pl_, nok = uid("ph"), uid("sp"), uid("nok")
    A(f"s_cmp_lg_u32 s{W_}, 0\ns_cbranch_scc1 {x}")
    A(f"s_and_b32 s{T4}, s2, {(nrep or NREP) - 1}\ns_lshl_b32 s{T4}, s{T4}, 7\ns_add_u32 s{T4}, s{T4}, {flg}")
    A(f"s_add_u32 s{MSK}, s{WS}, s{T4}\ns_addc_u32 s{MSK+1}, s{WS+1}, 0\ns_mov_b32 s{T4}, s{NONCE}\ns_mov_b32 s{T5}, s{NONCE}\ns_mov_b32 s{CNT}, 0")
    A(f"s_branch {pl_}")
    A.label(nok)
    A(f"s_add_u32 s{CNT}, s{CNT}, 1\ns_cmp_ge_u32 s{CNT}, {SPIN_MAX}\ns_cbranch_scc1 {x}")
    if SLP_A:
        A(f"s_sleep {SLP_A}")
    A.label(pl_)
    A(f"s_load_dwordx16 s[4:19], {sp(MSK)}, 0x0 glc\ns_waitcnt lgkmcnt(0)")
    for q in range(8):
        A(f"s_cmp_eq_u64 s[{4+2*q}:{5+2*q}], {sp(T4)}\ns_cbranch_scc0 {nok}")
    if TRACE:
        A(f"v_writelane_b32 v0, s{CNT}, {tb}")
    A.label(x)
    p2 = l_arrive(A)
    if CSP and flg == (FLG_A if CSPH == 0 else FLG_B):
        dn = uid("csp")
        A(f"s_cmp_eq_u32 s{W_}, 0\ns_cbranch_scc1 {dn}")
        c_prefetch(A, p2, dn)
        A.label(dn)
    l_check(A, p2, slp=LSLP)


def aux_rest(A, vm):
    def phase(cnt, flg, young=0):
        trace(A, 0, 48)
        A(f"s_waitcnt vmcnt({young})")
        trace(A, 0, 49)
        p = l_arrive(A)
        phase_atomic(A, cnt, p)
        phase_last(A, flg)
        trace(A, 0, 50)
        phase_wait(A, flg, 62)
        trace(A, 0, 51)
    if ZPOS >= 11:
        phase(CNT_A, FLG_A)
    elif FPOLL:
        flag_wait(A)
    else:
        phase_wait(A, FLG_A, 61, 64)
    trace(A, 0, 7)
    A(f"s_setprio {LPRIO2}")
    if A2G:
        l_check(A, A2G % 100, RING_D - 16 if A2G < 100 else -16)
    if CTW == 2:
        c_touch(A, vm)
    trace(A, 0, 8)
    a2_loads(A)
    mark(A, 7)
    A(f"s_waitcnt vmcnt({0 if '4' in SK else 8})")
    trace(A, 0, 9)
    if E_("AM", 0) in (1, 2):
        mark(A, 1)
    l_sync(A)
    trace(A, 0, 10)
    INS = 72
    for s_ in range(4):
        A(f"ds_read_b128 {v(INS+4*s_,4)}, v15 offset:{s_*4096}")
    if WSH:
        a = uid("wr")
        A(f"s_cmp_eq_u32 s{SPC}, 1\ns_cbranch_scc1 {a}")
        for it in range(8):
            A(f"ds_read_b128 {v(W+4*it,4)}, v19 offset:{it*1024}")
        A.label(a)
    A("s_waitcnt lgkmcnt(0)")
    if E_("AM", 0) == 2:
        mark(A, 2)
    p6 = l_arrive(A)
    if A2C:
        l_check(A, A2C, -16)
    A(f"s_lshl_b32 s{T4}, s{SPC}, 31\ns_or_b32 s{T4}, s{T4}, s{CJ}")
    fl, nwr = uid("fft"), uid("nwr")
    A.label(fl)
    for i in range(16):
        A(f"v_xor_b32 v{IN+i}, s{T4}, v{INS+i}")

    def pre(rng):
        for i in rng:
            w, rho, sg = W + 2*i, TT + i, TT + 16 + i
            r1, i1, r2, i2, Ar, Ai = (TMP + 8 + c for c in range(6))
            A(f"v_lshlrev_b32 v{r1}, 16, v{w}\nv_and_b32 v{i1}, 0xffff0000, v{w}")
            A(f"v_lshlrev_b32 v{r2}, 16, v{w+1}\nv_and_b32 v{i2}, 0xffff0000, v{w+1}")
            A(f"v_add_f32 v{Ar}, v{r1}, v{r2}\nv_add_f32 v{Ai}, v{i1}, v{i2}")
            A(f"v_sub_f32 v{r1}, v{r1}, v{r2}\nv_sub_f32 v{i1}, v{i1}, v{i2}")
            A(f"v_mul_f32 v{w}, v{rho}, v{r1}\nv_mul_f32 v{w+1}, v{rho}, v{i1}")
            A(f"v_fma_f32 v{rho}, v{sg}, v{r1}, v{Ar}\nv_fma_f32 v{sg}, v{sg}, v{i1}, v{Ai}")

    def once(rng):
        a = uid("once")
        A(f"s_cmp_eq_u32 s{SPC}, 2\ns_cbranch_scc1 {a}\ns_waitcnt vmcnt(0)")
        pre(rng)
        A.label(a)
    stage1(A, IN, D)
    once(range(0, PRE1))
    twiddle(A, D, IN, TMP)
    stage2(A, IN, D)
    once(range(PRE1, PRE2))
    l_check(A, p6)
    if E_("AM", 0) == 2:
        mark(A, 5)
    A(f"s_cmp_eq_u32 s{SPC}, 2\ns_cbranch_scc1 {nwr}")
    for c in range(8):
        A(f"ds_write_b128 v16, {v(D+4*c,4)} offset:{c*1024}")
    A(f"s_cmp_eq_u32 s{SPC}, 0\ns_cbranch_scc1 {nwr}")
    A(f"s_mov_b32 s{SPC}, 2\ns_mov_b32 s{T4}, 0\ns_branch {fl}")
    A.label(nwr)
    pre(range(PRE2, min(16, PRE2 + 2)))
    A("s_waitcnt lgkmcnt(0)")
    p7 = l_arrive(A)
    pre(range(min(16, PRE2 + 2), 16))

    def own(rng):
        for i in rng:
            Xr, Xi, mr, mi, t = D+i, D+16+i, TT+i, TT+16+i, TMP + (i & 1)
            A(f"v_mul_f32 v{t}, v{mi}, v{Xi}\nv_mul_f32 v{Xi}, v{mr}, v{Xi}")
            A(f"v_fmac_f32 v{Xi}, v{mi}, v{Xr}\nv_fma_f32 v{Xr}, v{mr}, v{Xr}, -v{t}")
    own(range(0, 6))
    l_check(A, p7)
    for c in range(8):
        A(f"ds_read_b128 {v(DY+4*c,4)}, v17 offset:{c*1024}")
    own(range(6, 16))
    A("s_waitcnt lgkmcnt(0)")
    if E_("AM", 0) in (1, 2):
        mark(A, 4)
    p8 = l_arrive(A)
    for i in range(16):
        Pr, Pi, Yr, Yi, gr, gi = D+i, D+16+i, DY+i, DY+16+i, W+2*i, W+2*i+1
        A(f"v_fma_f32 v{Pr}, -v{gr}, v{Yi}, v{Pr}\nv_fmac_f32 v{Pi}, v{gr}, v{Yr}")
        A(f"v_fma_f32 v{Pr}, -v{gi}, v{Yr}, v{Pr}\nv_fma_f32 v{Pi}, -v{gi}, v{Yi}, v{Pi}")
        A(f"v_cvt_pk_bf16_f32 v{IN+i}, v{Pi}, v{Pr}")
    if E_("AM", 0) == 2:
        mark(A, 6)
    stage1(A, IN, D)
    twiddle(A, D, IN, TMP)
    stage2(A, IN, D)
    A(f"s_lshr_b32 s{T4}, s{CJ}, 16")
    l_check(A, p8)
    for s_ in range(4):
        for r in range(4):
            i = 4*s_ + r
            A(f"v_cvt_pk_bf16_f32 v{IN+i}, v{D+i}, v{D+16+i}\nv_xor_b32 v{IN+i}, s{T4}, v{IN+i}")
        A(f"ds_write_b128 v15, {v(IN+4*s_,4)} offset:{s_*4096}")
    A("s_waitcnt lgkmcnt(0)")
    if E_("AM", 0) == 2:
        mark(A, 7)
    l_sync(A)
    for u in range(4):
        A(f"ds_read_b128 {v(IN+4*u,4)}, v18 offset:{u*1024}")
    for u in range(4):
        A(f"s_mov_b32 s{T4}, {ZU(u)}\ns_waitcnt lgkmcnt({3-u})")
        if "6" not in SK:
            A(f"buffer_store_dwordx4 {v(IN+4*u,4)}, v14, {r4(S3)}, s{T4} offen sc1")
    trace(A, 0, 11)
    if E_("AM", 0) != 3 and not E_("GM", 0):
        mark(A, 3)
    A(f"s_lshl_b32 s{T4}, s{T7}, 14")
    srd(A, S0, OUT, T4, 0, 0x4000)
    A("v_and_b32 v8, 31, v1\nv_lshrrev_b32 v9, 5, v1\nv_lshlrev_b32 v14, 2, v8\nv_lshl_add_u32 v14, v9, 9, v14")
    A(f"s_mov_b32 s{T4}, 0x35000000")
    for k in range(32):
        A(f"v_mul_f32 v{T+k}, s{T4}, v{T+k}")
    phase(CNT_B, FLG_B)
    A(f"s_setprio {LPRIO3}")
    if A3G:
        l_check(A, A3G, -16)
    trace(A, 0, 12)
    if E_("AM", 0) != 3:
        mark(A, 8)
    A(f"s_mov_b32 m0, s{T8}")
    for u in range(4):
        if "7" not in SK:
            A(f"buffer_load_dwordx4 v{VLIN}, {r4(S1)}, 0 offen offset:{u*1024} sc1 lds")
    A("s_waitcnt vmcnt(0)")
    trace(A, 0, 13)
    l_sync(A)
    for i in range(16):
        a, o = img(i)
        A(f"ds_read_b32 v{IN+i}, v{a} offset:{o}")
    A("s_waitcnt lgkmcnt(0)")
    stage1(A, IN, D)
    twiddle(A, D, IN, TMP)
    stage2(A, IN, D)
    A(f"s_movk_i32 s{T4}, 0x2000")
    O = 72
    for i in range(16):
        o = O + 2*i
        A(f"v_cvt_pk_bf16_f32 v{o+1}, v{D+16+i}, v{D+i}")
        A(f"v_lshlrev_b32 v{o}, 16, v{o+1}\nv_and_b32 v{o+1}, 0xffff0000, v{o+1}")
        off = (i >> 2)*1024 + (i & 3)*128
        if "8" not in SK:
            A(f"buffer_store_dword v{o}, v14, {r4(S0)}, 0 offen offset:{off}{OST}")
            A(f"buffer_store_dword v{o+1}, v14, {r4(S0)}, s{T4} offen offset:{off}{OST}")


def cmul_sq(A, d, a, t):
    A(f"v_mul_f32 {v(t)}, {v(a+1)}, {v(a+1)}")
    A(f"v_mul_f32 {v(t+1)}, {v(a)}, {v(a+1)}")
    A(f"v_fma_f32 {v(d)}, {v(a)}, {v(a)}, -{v(t)}")
    A(f"v_add_f32 {v(d+1)}, {v(t+1)}, {v(t+1)}")


def horner(A, dr, di, L, pr, pi, er, ei, t):
    assert dr not in (pr, pi) and di not in (pr, pi)
    A(f"v_fma_f32 {v(t)}, {v(L)}, {v(pr)}, {v(er)}")
    A(f"v_fma_f32 {v(t+1)}, {v(L)}, {v(pi)}, {v(ei)}")
    A(f"v_fma_f32 {v(dr)}, -{v(L+1)}, {v(pi)}, {v(t)}")
    A(f"v_fma_f32 {v(di)}, {v(L+1)}, {v(pr)}, {v(t+1)}")


RING_D, RING_LG, RING_LA = 32, 48, 64


def dma_setup(A, swt, swp, RV, t, ta, tb):
    l5, a, b_, c, d, e = (t + i for i in range(6))
    A(f"v_lshrrev_b32 v{l5}, 5, v1\nv_bfe_u32 v{a}, v1, 3, 2\nv_and_b32 v{b_}, 1, v{a}\nv_lshrrev_b32 v{c}, 1, v{a}")
    A(f"v_lshlrev_b32 v{d}, 4, v{l5}\nv_lshl_add_u32 v{d}, v{b_}, 3, v{d}\nv_add_u32 v{d}, v{d}, v{c}")
    A(f"s_lshl_b32 s{ta}, s{swt}, 6\ns_lshl_b32 s{tb}, s{swp}, 2\ns_add_u32 s{ta}, s{ta}, s{tb}")
    A(f"v_add_u32 v{d}, s{ta}, v{d}\nv_lshlrev_b32 v{d}, 11, v{d}")
    A(f"s_lshl_b32 s{ta}, s{swt}, 5")
    A(f"v_lshl_add_u32 v{e}, v{l5}, 3, v{a}\nv_add_u32 v{e}, s{ta}, v{e}\nv_lshlrev_b32 v{e}, 11, v{e}")
    A(f"v_and_b32 v{b_}, 7, v1\nv_lshrrev_b32 v{c}, 4, v1\nv_xor_b32 v{b_}, v{b_}, v{c}\nv_lshlrev_b32 v{b_}, 4, v{b_}\nv_xor_b32 v{c}, 64, v{b_}")
    A(f"v_add_u32 v{RV}, v{d}, v{b_}\nv_add_u32 v{RV+1}, v{d}, v{c}\nv_add_u32 v{RV+1}, {32*2048 - 1024}, v{RV+1}")
    A(f"v_add_u32 v{RV+2}, v{e}, v{b_}\nv_add_u32 v{RV+3}, v{e}, v{c}\nv_add_u32 v{RV+3}, {16*2048 - 1024}, v{RV+3}")


def make_piece(A, vm, RA, RB, ROT, M0B, SOF, RV):
    def piece(k, n):
        slot, u = k % NS, n & 3
        if n == 0:
            A(f"s_add_u32 s{SOF}, s{ROT}, {k*128}\ns_and_b32 s{SOF}, s{SOF}, 0x7ff")
            A(f"s_add_u32 s{SOF+1}, s{SOF}, 2048\ns_add_u32 s{SOF+2}, s{SOF}, 6144")
        if u == 0:
            A(f"s_add_u32 m0, s{M0B}, {slot*32768 + (n >> 2)*16384}")
        so = SOF if u < 2 else SOF + 1 + (n >> 2)
        if ("a" in G1X and 0 < n < 4) or ("b" in G1X and n > 4):
            return
        vm.op(f"buffer_load_dwordx4 v{RV + 2*(n >> 2) + (u & 1)}, {r4(RA if n < 4 else RB)}, s{so} offen offset:{u*1024} lds", ("st", k))
    return piece


def rot_setup(A, ROT, t):
    A(f"s_mul_i32 s{ROT}, s{TI}, {RI*128}\ns_mul_i32 s{t}, s{TJ}, {RJ*128}\ns_add_u32 s{ROT}, s{ROT}, s{t}")


def aux_waves(A, name, kidx):
    A(f"s_sub_u32 s{W_}, s{WAVE}, 4")
    A(f"s_setprio {APRIO}")
    if BARP == 0:
        A("s_barrier")
    A("s_waitcnt lgkmcnt(0)")
    A(f"s_mov_b32 s100, s{CRE}\ns_mov_b32 s101, s{CRE+1}")
    A(f"s_bitcmp1_b32 s{W_}, 0\ns_cselect_b32 s100, s{CIM}, s{CRE}\ns_cselect_b32 s101, s{CIM+1}, s{CRE+1}")
    trace_init(A, 0)
    vm = VmCounter(A)
    if CODEPF:
        pf, pc = uid("pf"), uid("pc")
        A(f"s_cmp_lg_u32 s{W_}, 1")
        A(f"s_cbranch_scc1 {pf}")
        A(f"s_lshr_b32 s{T0}, s2, 3\ns_lshl_b32 s{T0}, s{T0}, 11\nv_and_b32 v12, 15, v1\nv_lshl_add_u32 v12, v12, 7, s{T0}")
        A(f"v_min_u32 v12, L_{name}_end-{name}, v12")
        A(f"s_getpc_b64 {sp(T0)}")
        A.label(pc)
        A(f"s_sub_u32 s{T0}, s{T0}, {pc}-{name}\ns_subb_u32 s{T1}, s{T1}, 0")
        A(f"global_load_dword v23, v12, {sp(T0)}")
        A.label(pf)
    nn = uid("nn")
    A(f"s_lshl_b32 s{T0}, s2, 3\ns_add_u32 s{T0}, s{T0}, s{WAVE}\ns_cmp_lg_u32 s{T0}, 4")
    A(f"s_cbranch_scc1 {nn}")
    A(f"s_load_dword s3, {sp(WS)}, {WS_NONCE}")
    A(f"v_mov_b32 v22, 0\nv_lshlrev_b32 v23, 7, v1\nv_add_u32 v23, {WS_CNT}, v23")
    A(f"global_store_dword v23, v22, {sp(WS)} sc1")
    A.label(nn)

    def publish_nonce(young):
        nn = uid("nn")
        A(f"s_lshl_b32 s{CNT}, s2, 3\ns_add_u32 s{CNT}, s{CNT}, s{WAVE}\ns_cmp_lg_u32 s{CNT}, 4")
        A(f"s_cbranch_scc1 {nn}")
        A(f"s_waitcnt vmcnt({young}) lgkmcnt(0)")
        A(f"s_add_u32 s3, s3, 1\ns_cmp_eq_u32 s3, 0\ns_cselect_b32 s3, 1, s3")
        A(f"v_mov_b32 v11, s3\nv_mov_b32 v10, 0")
        A(f"s_mov_b64 exec, 1\nglobal_store_dword v10, v11, {sp(DBG)} sc1")
        A(f"global_store_dword v10, v11, {sp(WS)} offset:{WS_NONCE}\ns_mov_b64 exec, -1")
        A.label(nn)
    if NOAUX:
        if BARP:
            A("s_barrier")
        publish_nonce(0)
        if CTW:
            for _ in range(E_("CTD", 100)):
                A("s_sleep 1")
            c_touch(A, vm)
        A("s_endpgm")
        return
    RA, RB, ROT, M0B, SOF, RV = 12, 20, 16, 17, 8, 176
    piece = make_piece(A, vm, RA, RB, ROT, M0B, SOF, RV)

    def loader_setup():
        A(f"s_lshl_b32 s{T4}, s{TI}, 18\ns_lshl_b32 s{T5}, s{TJ}, 17")
        srd(A, RA, BX, T4, 0, 0x40000)
        A(f"s_bitcmp1_b32 s{W_}, 0\ns_cselect_b32 s8, s{BIM}, s{BRE}\ns_cselect_b32 s9, s{BIM+1}, s{BRE+1}")
        srd(A, RB, 8, T5, 0, 0x20000)
        rot_setup(A, ROT, T4)
        A(f"s_lshl_b32 s{M0B}, s{W_}, 12")
        A(f"s_lshr_b32 s{T4}, s{W_}, 1\ns_and_b32 s{T5}, s{W_}, 1")
        dma_setup(A, T4, T5, RV, 96, CNT, 19)
    aux_setup_ax(A)
    aux_issue(A, vm)
    if WMODE == 0 and WPOS == 0:
        aux_setup_w(A)
        w_issue(A, vm)
    if BARP == 1:
        A("s_barrier")
    trace(A, 0, 0)
    make_F(A, 92)
    if WMODE == 0 and WPOS == 1:
        aux_setup_w(A)
        w_issue(A, vm)
    make_T(A, T, 92, 0)
    if WMODE == 0 and WPOS == 2:
        aux_setup_w(A)
        w_issue(A, vm)
    aux_pre_a(A)
    if WMODE == 0:
        aux_pre_w(A)
    if PRES:
        loader_setup()
    publish_nonce(len(vm.issued))
    trace(A, 0, 1)
    a1_task(A, vm)
    if WMODE:
        aux_setup_w(A)
        aux_pre_w(A)
    if not PRES:
        loader_setup()
    Lt = Asm()
    if not EARLY2:
        make_T(Lt, TT, 92, 1)
    later = Lt.lines
    issued = KS0
    if KS0 < NS and E_("PREK", 0):
        for n in range(8):
            piece(issued, n)
        issued += 1
    trace(A, 0, 6)
    A(f"s_setprio {LPRIO0}")
    ZLATE = ZPOS >= 11
    KS = max(WSK if WMODE else KS0, ZPOS, WTK) + LA + 1 if not ZLATE else E_("KSL", 11)
    assert KS + 2 <= 13
    for k in range(16):
        if k >= KS0:
            vm.wait_for(("st", k))
        if WMODE == 0 and k == WPK:
            vm.wait_for("w")
        trace(A, 0, 16 + k)
        A("s_barrier")
        while issued < min(16, k + LA + 1):
            for n in range(8):
                piece(issued, n)
            issued += 1
        if WMODE == 0 and k == WPK:
            assert WPK < 2 and WTK > WPK
            wt_read(A)
            A("s_waitcnt lgkmcnt(0)")
            wt_sym(A)
            wt_perm(A)
        if k == ZPOS:
            a1_stores(A, vm)
        if WMODE == 0 and k == WTK and WTK != ZPOS:
            wt_store(A, vm)
        if k == 2:
            if SNON:
                A(f"s_load_dword s{NONCE}, {sp(DBG)}, 0x0 glc")
            else:
                A("v_mov_b32 v20, 0")
                vm.op(f"global_load_dword v21, v20, {sp(DBG)} sc1", "nonce")
        if k in CPK:
            code_touch(A, MSK)
        if WMODE:
            if k == WK:
                w_issue(A, vm)
            if k == WK + LA + 1:
                wt_read(A)
                A("s_waitcnt lgkmcnt(0)")
                wt_sym(A)
                wt_perm(A)
            if k == WSK:
                wt_store(A, vm)
        if k == KS - 1:
            assert not later
            if not ZLATE and not EARLY2:
                a2_setup(A)
        if k == KS:
            x, y = uid("sg"), uid("sg")
            if SNON:
                A.label(x)
                A(f"s_waitcnt lgkmcnt(0)\ns_cmp_lg_u32 s{NONCE}, 0\ns_cbranch_scc1 {y}")
                A(f"s_load_dword s{NONCE}, {sp(DBG)}, 0x0 glc\ns_branch {x}")
            else:
                A(f"v_readfirstlane_b32 s{NONCE}, v21\ns_cmp_lg_u32 s{NONCE}, 0\ns_cbranch_scc1 {y}")
                get_nonce(A, 20)
            A.label(y)
        if k == KS and not ZLATE:
            x = uid("sg")
            A(f"s_cmp_lg_u32 s{W_}, 0\ns_cbranch_scc1 {x}")
            A(f"s_and_b32 s{T4}, s2, 15\ns_lshl_b32 s{T5}, s{T4}, 7\ns_add_u32 s{T5}, s{T5}, {CNT_A}")
            A(f"s_add_u32 s{MSK}, s{WS}, s{T5}\ns_addc_u32 s{MSK+1}, s{WS+1}, 0\ns_mov_b32 s{PH_RES}, 1")
            A(f"s_atomic_add s{PH_RES}, {sp(MSK)}, 0x0 glc")
            A.label(x)
        if k == KS + 2 and not ZLATE:
            x = uid("sg")
            A(f"s_cmp_lg_u32 s{W_}, 0\ns_cbranch_scc1 {x}")
            A(f"s_waitcnt lgkmcnt(0)\ns_cmp_lg_u32 s{PH_RES}, 15\ns_cbranch_scc1 {x}")
            A(f"s_and_b32 s{T4}, s2, 15\ns_lshl_b32 s{T4}, s{T4}, 2\ns_add_u32 s{T4}, s{T4}, {FLG_A}\nv_lshl_add_u32 v22, v1, 7, s{T4}\nv_mov_b32 v23, s{NONCE}")
            A(f"global_store_dword v22, v23, {sp(WS)} sc1")
            A.label(x)
        if k == CTK and CTW == 0:
            c_touch(A, vm)
        if FPOLL and k == FPOLL and not ZLATE:
            assert k >= 13
            flag_poll(A, FLG_A)
        if k < KS - 1:
            for _ in range(-(-len(later) // (KS - 1 - k))):
                A(later.pop(0))
    assert issued == 16
    if ZLATE and not EARLY2:
        a2_setup(A)
    A(f"s_setprio {LPRIO}")
    aux_rest(A, vm)
    trace(A, 0, 14)
    if TRACE:
        A("s_waitcnt vmcnt(0)")
    trace(A, 0, 15)
    trace_dump(A, 0, WAVE, 1)
    stamp_end(A, kidx, WAVE)
    A("s_endpgm")


M16 = "v_mfma_f32_16x16x32_bf16"
XRW = 144
L_XC = 114688


def cpow(A, d, zr, zi, n, t):
    if isinstance(n, str):
        A(f"v_mul_f32 v{t}, {n}, v{zr}\nv_mul_f32 v{t+1}, {n}, v{zi}")
    else:
        A(f"v_mul_f32 v{t}, {fl(n)}, v{zr}\nv_mul_f32 v{t+1}, {fl(n)}, v{zi}")
    A(f"v_exp_f32 v{t}, v{t}\nv_rndne_f32 v{t+2}, v{t+1}\nv_sub_f32 v{t+1}, v{t+1}, v{t+2}")
    A(f"v_cos_f32 v{t+2}, v{t+1}\nv_sin_f32 v{t+1}, v{t+1}")
    A(f"v_mul_f32 v{d}, v{t}, v{t+2}\nv_mul_f32 v{d+1}, v{t}, v{t+1}")


def gemm_waves(A, name, kidx):
    U = lambda pg, c, idx: 64 + (pg*2 + c)*16 + 2*idx
    ACC = lambda mt, nt: 64 + ((nt & 1)*2 + (nt >> 1))*16 + 4*mt
    FR = lambda X, f: (32 if X == 0 else 144) + 4*f
    AD = lambda st, op, k2: 128 + st*4 + op*2 + k2
    LAM = lambda pg: 20 + 2*pg
    KC = lambda pg: 24 + 2*pg
    L8 = lambda pg: 176 + 2*pg
    L16 = lambda pg: 180 + 2*pg
    PP = lambda pg: 184 + 4*pg
    PW = lambda pg, idx: 208 + 16*pg + 2*idx
    Q16, Q64, Q128, Q256 = 28, 192, 30, 2
    WT_, WP = T8, T6
    A(f"s_lshr_b32 s{WT_}, s{WAVE}, 1\ns_and_b32 s{WP}, s{WAVE}, 1\ns_lshr_b32 s{PG}, s{TJ}, 3")
    A("v_and_b32 v6, 31, v1\nv_lshrrev_b32 v5, 5, v1\nv_lshlrev_b32 v11, 4, v1")
    A("v_mov_b64 v[64:65], 0\nv_mov_b64 v[66:67], 0")
    A(f"s_mul_i32 s{T0}, s{WAVE}, {16*XRW}\ns_add_u32 s{T0}, s{T0}, {L_XC}\nv_add_u32 v13, s{T0}, v11\nv_mov_b32 v12, {L_SYNC}")
    A("ds_write_b128 v13, v[64:67]\nds_write_b128 v13, v[64:67] offset:1024\nds_write_b128 v13, v[64:67] offset:2048")
    A("s_mov_b64 exec, 1\nds_write_b128 v12, v[64:67]\nds_write_b128 v12, v[64:67] offset:16\nds_write_b128 v12, v[64:67] offset:32\nds_write_b128 v12, v[64:67] offset:48\nds_write_b128 v12, v[64:67] offset:64\ns_mov_b64 exec, -1")
    A(f"s_lshl_b32 s{T0}, s{WAVE}, 2\nv_add_u32 v13, s{T0}, v12")
    A("s_waitcnt lgkmcnt(0)\ns_barrier")
    A("v_bfe_u32 v4, v1, 2, 2\nv_lshlrev_b32 v4, 3, v4\nv_and_b32 v7, 3, v1\nv_add_u32 v4, v4, v7")
    A(f"s_lshl_b32 s{T0}, s{TJ}, 6\ns_lshl_b32 s{T1}, s{WP}, 5\ns_add_u32 s{T0}, s{T0}, s{T1}")
    A(f"v_add_u32 v4, s{T0}, v4\nv_lshlrev_b32 v7, 1, v4")
    RA, RB, ROT, M0B, SOF, RV = S2, S3, 38, 39, T2, 244
    dma_setup(A, WT_, WP, RV, 14, T1, T2)
    rot_setup(A, ROT, T0)
    A(f"s_lshl_b32 s{T0}, s{TI}, 18\ns_lshl_b32 s{T1}, s{TJ}, 17\ns_lshl_b32 s{M0B}, s{WAVE}, 12")
    A("s_waitcnt lgkmcnt(0)")
    PRM = 248
    for pg in range(2):
        A(f"global_load_ushort v{PRM+3*pg}, v7, {sp(LRE)} offset:{8*pg}\nglobal_load_ushort v{PRM+1+3*pg}, v7, {sp(LIM)} offset:{8*pg}\nglobal_load_ushort v{PRM+2+3*pg}, v7, {sp(LDT)} offset:{8*pg}")
    srd(A, RA, BX, T0, 0, 0x40000)
    A(f"s_cmp_eq_u32 s{WP}, 1\ns_cselect_b32 s{T2}, s{BIM}, s{BRE}\ns_cselect_b32 s{T3}, s{BIM+1}, s{BRE+1}")
    srd(A, RB, T2, T1, 0, 0x20000)
    vm1 = VmCounter(A)

    piece = make_piece(A, vm1, RA, RB, ROT, M0B, SOF, RV)
    for n in range(8):
        piece(0, n)
    A("v_bfe_u32 v7, v1, 4, 1\nv_lshl_add_u32 v4, v7, 2, v4")
    A("v_bfe_u32 v7, v6, 1, 3\nv_xor_b32 v7, v7, v5\nv_lshlrev_b32 v7, 4, v7\nv_lshl_add_u32 v7, v6, 7, v7")
    A("v_and_b32 v8, 15, v1\nv_lshrrev_b32 v9, 4, v1")
    A("v_lshrrev_b32 v14, 1, v8\nv_xor_b32 v14, v14, v9\nv_lshlrev_b32 v14, 4, v14\nv_lshl_add_u32 v14, v8, 7, v14")
    A(f"s_lshl_b32 s{T0}, s{WT_}, 13\ns_lshl_b32 s{T1}, s{WP}, 13\ns_add_u32 s{T1}, s{T1}, 16384")
    for k2 in range(2):
        A(f"v_xor_b32 v15, {k2 << 6}, v14")
        A(f"v_add_u32 v{AD(0,0,k2)}, s{T0}, v15\nv_add_u32 v{AD(0,1,k2)}, s{T1}, v15")
        A(f"v_add_u32 v{AD(1,0,k2)}, 0x10000, v{AD(0,0,k2)}\nv_add_u32 v{AD(1,1,k2)}, 0x10000, v{AD(0,1,k2)}")
    Areal, A = A, Asm()
    srd(A, S0, WS, None, WS_EG, 0x40000)
    srd(A, S1, WS, None, WS_HT, 64*TBS)
    A(f"s_mul_i32 s{T0}, s{WP}, {32*XRW}\ns_add_u32 s{T0}, s{T0}, {L_XC + 64}\ns_lshl_b32 s{T1}, s{WT_}, 5\ns_add_u32 s{T1}, s{T1}, s{T0}")
    A(f"v_mul_u32_u24 v14, {XRW}, v6\nv_add_u32 v14, s{T0}, v14\nv_lshl_add_u32 v14, v5, 5, v14")
    A(f"v_mul_u32_u24 v15, {XRW}, v8\nv_add_u32 v15, s{T1}, v15\nv_lshl_add_u32 v15, v9, 3, v15")
    A(f"s_lshl_b32 s{T0}, s{TI}, 14\nv_lshl_add_u32 v16, v4, 4, s{T0}")
    A("v_mov_b32 v17, 0x40000000\nv_lshlrev_b32 v10, 14, v5\nv_sub_u32 v10, v16, v10")
    LA_, LX = 194, 200
    for u in range(8):
        A(f"v_subrev_u32 v{136+u}, {16384 + u*32768}, v10\nv_cmp_le_i32 vcc, 0, v{136+u}\nv_cndmask_b32 v{136+u}, v17, v{136+u}, vcc")
    A("v_lshlrev_b32 v17, 30, v5\nv_or_b32 v16, v16, v17")
    A(f"s_lshl_b32 s{T0}, s{TI}, 11\ns_add_u32 s{T0}, s{T0}, {FLG_X}\ns_lshl_b32 s{T1}, s{TJ}, 7\ns_add_u32 s{T1}, s{T1}, s{T0}\nv_mov_b32 v195, s{T1}")
    A(f"s_lshl_b32 s{T1}, s{PG}, 10\ns_add_u32 s{T0}, s{T0}, s{T1}\nv_and_b32 v196, 7, v1\nv_lshl_add_u32 v196, v196, 7, s{T0}")
    A(f"s_lshl_b32 s{T0}, s{TI}, 1\ns_add_u32 s{T0}, s{T0}, s{WT_}\ns_lshl_b32 s{T0}, s{T0}, 12\ns_add_u32 s{T0}, s{T0}, {FLG_H}")
    A(f"s_lshl_b32 s{T1}, s{PG}, 11\ns_add_u32 s{T1}, s{T1}, s{T0}\nv_lshl_add_u32 v18, v8, 7, s{T1}")
    A(f"s_lshl_b32 s{T1}, s{TJ}, 8\ns_add_u32 s{T0}, s{T0}, s{T1}\ns_lshl_b32 s{T1}, s{WP}, 7\ns_add_u32 s{T0}, s{T0}, s{T1}\nv_mov_b32 v19, s{T0}")
    A("v_lshrrev_b32 v10, 1, v9\nv_lshlrev_b32 v10, 10, v10\nv_and_b32 v17, 1, v9\nv_lshl_add_u32 v10, v17, 9, v10\nv_lshl_add_u32 v10, v8, 4, v10")
    A(f"s_lshl_b32 s{T0}, s{WT_}, 2\nv_add_u32 v9, s{T0}, v9\nv_cvt_f32_u32 v9, v9\nv_mul_f32 v9, 0x41800000, v9\nv_add_f32 v8, 0x41000000, v9")
    A("PARAMWAIT")
    ZR, ZI = 204, 206
    for pg in range(2):
        lr, li, dt, t = PRM+3*pg, PRM+1+3*pg, PRM+2+3*pg, 197
        A(f"v_lshlrev_b32 v{lr}, 16, v{lr}\nv_lshlrev_b32 v{li}, 16, v{li}\nv_lshlrev_b32 v{dt}, 16, v{dt}")
        A(f"v_mul_f32 v{dt}, 0x3fb8aa3b, v{dt}\nv_exp_f32 v{dt}, v{dt}")
        A(f"v_cvt_pk_bf16_f32 v{dt}, v{dt}, v{dt}\nv_lshlrev_b32 v{dt}, 16, v{dt}")
        A(f"v_mul_f32 v{ZR+pg}, v{dt}, v{lr}\nv_mul_f32 v{ZI+pg}, v{dt}, v{li}")
        A(f"v_mul_f32 v{ZR+pg}, 0x3fb8aa3b, v{ZR+pg}\nv_mul_f32 v{ZI+pg}, 0.15915494, v{ZI+pg}")
        cpow(A, LAM(pg), ZR+pg, ZI+pg, 1.0, t)
        A(f"v_add_f32 v{t}, -1.0, v{LAM(pg)}")
        A(f"v_mul_f32 v{t+1}, v{lr}, v{lr}\nv_fma_f32 v{t+1}, v{li}, v{li}, v{t+1}\nv_rcp_f32 v{t+1}, v{t+1}")
        A(f"v_add_f32 v{t+1}, v{t+1}, v{t+1}")
        A(f"v_mul_f32 v{t+2}, v{t}, v{lr}\nv_fma_f32 v{t+2}, v{LAM(pg)+1}, v{li}, v{t+2}\nv_mul_f32 v{KC(pg)}, v{t+2}, v{t+1}")
        A(f"v_mul_f32 v{t+2}, v{LAM(pg)+1}, v{lr}\nv_fma_f32 v{t+2}, -v{t}, v{li}, v{t+2}\nv_mul_f32 v{KC(pg)+1}, v{t+2}, v{t+1}")
        cpow(A, L8(pg), ZR+pg, ZI+pg, 8.0, t)
        cpow(A, L16(pg), ZR+pg, ZI+pg, 16.0, t)
        for e in range(2):
            cpow(A, 200, ZR+pg, ZI+pg, f"v{9-e}", t)
            A(f"v_mov_b32 v{PP(pg)+e}, v200\nv_mov_b32 v{PP(pg)+2+e}, v201")
        for idx in range(8):
            sr, si = (KC(pg), KC(pg)+1) if idx == 0 else (PW(pg, idx-1), PW(pg, idx-1)+1)
            A(f"v_mul_f32 v{t}, v{si}, v{LAM(pg)+1}\nv_mul_f32 v{t+1}, v{si}, v{LAM(pg)}")
            A(f"v_fma_f32 v{PW(pg,idx)}, v{sr}, v{LAM(pg)}, -v{t}\nv_fma_f32 v{PW(pg,idx)+1}, v{sr}, v{LAM(pg)+1}, v{t+1}")
    A(f"v_and_b32 v197, 16, v1\nv_cmp_ne_u32 vcc, 0, v197\nv_cndmask_b32 v{ZR}, v{ZR}, v{ZR+1}, vcc\nv_cndmask_b32 v{ZI}, v{ZI}, v{ZI+1}, vcc")
    for d, n in ((Q16, 16.0), (Q64, 64.0), (Q128, 128.0), (Q256, 256.0)):
        cpow(A, d, ZR, ZI, n, 197)
    A("v_lshrrev_b32 v197, 4, v1\nv_lshlrev_b32 v197, 2, v197\nv_and_b32 v198, 15, v1\nv_sub_u32 v197, v198, v197\nv_mov_b32 v198, 0x3f80\nv_mov_b32 v199, 1.0")
    for c in range(4):
        A(f"v_cmp_eq_u32 vcc, {c}, v197\nv_cndmask_b32 v{248+c}, 0, v198, vcc\nv_cndmask_b32 v{252+c}, 0, v199, vcc")

    deferred, A = A.lines, Areal
    pw = deferred.index("PARAMWAIT")
    for l in deferred[:pw]:
        A(l)
    deferred = deferred[pw+1:]
    assert KS0 <= NPRE
    if DEFER:
        for k in range(1, KS0):
            for n in range(8):
                piece(k, n)
    else:
        npre = 8
        if P1 == 0 and KS0 > 1:
            for n in range(8):
                piece(1, n)
            npre = 16
        A(f"s_waitcnt vmcnt({npre})")
        rest = [(k, n) for k in range(npre//8, KS0) for n in range(8)]
        lo, hi = int(len(deferred)*P2A/100), int(len(deferred)*P2B/100)
        at = [lo + (hi - lo)*q//max(1, len(rest)) for q in range(len(rest))]
        for i, l in enumerate(deferred):
            while at and at[0] <= i and l.startswith("v_") and not l.startswith("v_cnd"):
                at.pop(0)
                piece(*rest.pop(0))
            A(l)
        for r_ in rest:
            piece(*r_)
        deferred = []
    order = [0, 4, 5, 6, 7, 1, 2, 3]
    need = {0: 2, 1: 3, 2: 4, 3: 5, 4: 6, 8: 7, 12: 8}

    def rd(k, k2, f):
        slot = k % NS
        st, off = slot >> 1, (slot & 1)*32768
        A(f"ds_read_b128 {v(FR(k2, f), 4)}, v{AD(st, f >> 2, k2)} offset:{off + (f & 3)*2048}")
    trace_init(A, 0)
    trace(A, 0, 0)
    A(f"s_setprio {GPRIO}")
    def ring_arrive(k, t=197):
        A(f"s_mov_b64 exec, 1\nv_mov_b32 v{t}, {k}\nds_write_b32 v13, v{t} offset:{RING_D}\ns_mov_b64 exec, -1")
    vm1.wait_for(("st", 0))
    A("s_barrier")
    trace(A, 0, 1)
    for f in order:
        rd(0, 0, f)
    for k in range(16):
        for k2 in range(2):
            nk, nk2 = (k, 1) if k2 == 0 else (k+1, 0)
            have = nk < 16
            if k2 == 1:
                w = f"vmcnt({vm1.wait_for(('st', k+1), emit=False)}) " if k + 1 < KS0 else ""
                A(f"s_waitcnt {w}lgkmcnt(0)")
                if have:
                    A("s_barrier")
            if k == 13 and k2 == 0:
                assert not deferred, len(deferred)
                A(f"v_mov_b32 v8, 0\nglobal_load_dword v9, v8, {sp(DBG)} sc1")
            n = 0
            for m in range(16):
                if k2 == 0 and m in need:
                    A(f"s_waitcnt lgkmcnt({8 - need[m] + n})")
                mt, nt = m >> 2, m & 3
                if "m" not in G1X or k + k2 == 0:
                    A(f"{M16} {v(ACC(mt,nt),4)}, {v(FR(k2,mt),4)}, {v(FR(k2,4+nt),4)}, {'0' if k + k2 == 0 else v(ACC(mt,nt),4)}")
                if have and n < 8:
                    if "r" not in G1X:
                        rd(nk, nk2, order[n])
                    n += 1
                elif k >= DK0:
                    for _ in range(DEFER):
                        if deferred:
                            A(deferred.pop(0))
            if k == 15 and k2 == 0:
                nl, ng = uid("n"), uid("ng")
                A.label(nl)
                A(f"s_waitcnt vmcnt(0)\nv_readfirstlane_b32 s{NONCE}, v9\ns_cmp_lg_u32 s{NONCE}, 0\ns_cbranch_scc1 {ng}")
                A(f"global_load_dword v9, v8, {sp(DBG)} sc1\ns_branch {nl}")
                A.label(ng)
                A(f"s_getreg_b32 s{T0}, hwreg(HW_REG_XCC_ID, 0, 4)\ns_lshl_b32 s{T1}, s{NONCE}, 4\ns_or_b32 s{LOCAL}, s{T0}, s{T1}")
                A(f"v_mov_b32 v194, s{LOCAL}\nv_mov_b32 v202, s{NONCE}\nv_mov_b32 v203, s{NONCE}")
            if TRACE == 2 and k2 == 1:
                trace(A, 0, 40 + k)
    mark(A, 1)
    trace(A, 0, 2)
    bc_a = "op_sel_hi:[0,1,1]"
    bc_b = "op_sel:[1,0,0]"
    TT = 40
    for idx in range(1, 8):
        for half in range(2):
            for pg in range(2):
                L, t = v(LAM(pg), 2), TT + 4*pg
                pr, pi, ur, ui = (v(x, 2) for x in (U(pg, 0, idx-1), U(pg, 1, idx-1), U(pg, 0, idx), U(pg, 1, idx)))
                if half == 0:
                    A(f"v_pk_fma_f32 {v(t,2)}, {L}, {pr}, {ur} {bc_a}\nv_pk_fma_f32 {v(t+2,2)}, {L}, {pi}, {ui} {bc_a}")
                else:
                    A(f"v_pk_fma_f32 {ur}, {L}, {pi}, {v(t,2)} {bc_b} {N0}\nv_pk_fma_f32 {ui}, {L}, {pr}, {v(t+2,2)} {bc_b}")
    for pg in range(2):
        er, ei = U(pg, 0, 7), U(pg, 1, 7)
        horner(A, 32+2*pg, 33+2*pg, L8(pg), er, ei, er+1, ei+1, TT)
        A(f"ds_write_b64 v15, {v(32+2*pg,2)} offset:{16*XRW*pg}")
    trace(A, 0, 3)
    A("s_waitcnt lgkmcnt(0)")
    ring_arrive(17)
    l_, d_ = uid("ek"), uid("ekd")
    A.label(l_)
    A(f"ds_read_b128 v[198:201], v12 offset:{RING_D}\ns_waitcnt lgkmcnt(0)")
    A("v_min3_u32 v197, v198, v199, v200\nv_min_u32 v197, v197, v201")
    A(f"v_readfirstlane_b32 s{T0}, v197\ns_cmp_lt_u32 s{T0}, 17\ns_cbranch_scc1 {l_}")
    trace(A, 0, 4)
    SG = 48
    A(f"ds_read_b128 {v(SG,4)}, v14\nds_read_b128 {v(SG+4,4)}, v14 offset:16")
    P = 200
    A("s_waitcnt lgkmcnt(1)")
    horner(A, 32, 33, Q16, SG, SG+1, SG+2, SG+3, TT)
    A("s_waitcnt lgkmcnt(0)")
    horner(A, 34, 35, Q16, 32, 33, SG+4, SG+5, TT)
    horner(A, 32, 33, Q16, 34, 35, SG+6, SG+7, TT)
    A("v_mov_b32 v34, v32\nv_mov_b32 v35, v33\nv_permlane32_swap_b32 v32, v34\nv_permlane32_swap_b32 v33, v35")
    horner(A, P, P+1, Q64, 32, 33, 34, 35, TT)
    np_ = uid("np")
    A(f"s_cmp_lg_u32 s{WT_}, 0")
    A(f"s_cbranch_scc1 {np_}")
    A(f"buffer_store_dwordx4 {v(P,4)}, v16, {r4(S0)}, 0 offen sc1")
    A(f"s_cmp_lg_u32 s{WP}, 0")
    A(f"s_cbranch_scc1 {np_}")
    A(f"s_mov_b64 exec, 1\nglobal_store_dword v195, v194, {sp(WS)} sc1\ns_mov_b64 exec, -1")
    A.label(np_)
    mark(A, 2)
    trace(A, 0, 5)
    A(f"global_load_dword v243, v18, {sp(WS)} sc1")
    LB = 144

    def lbloads():
        for u in range(8):
            A(f"buffer_load_dwordx4 {v(LB+4*u,4)}, v{136+u}, {r4(S0)}, 0 offen sc1")
        A(f"global_load_dword v197, v196, {sp(WS)} sc1")
    QS = 32
    A("v_add_u32 v15, -56, v15")
    for pg in range(2):
        for w in range(7):
            A(f"ds_read_b64 {v(QS+14*pg+2*w,2)}, v15 offset:{16*XRW*pg + 8*w}")
    QQ = lambda pg: 128 + 4*pg
    TQ = 60
    A("s_waitcnt lgkmcnt(0)")
    for pg in range(2):
        b = QS + 14*pg
        for w in range(1, 6):
            horner(A, b+2*w, b+2*w+1, L16(pg), b+2*w-2, b+2*w-1, b+2*w, b+2*w+1, TQ)
        horner(A, QQ(pg), QQ(pg)+2, L16(pg), b+10, b+11, b+12, b+13, TQ)
        horner(A, QQ(pg)+1, QQ(pg)+3, L8(pg), QQ(pg), QQ(pg)+2, U(pg, 0, 7), U(pg, 1, 7), TQ)
    trace(A, 0, 6)
    O = 32
    cnt = 0
    if LBAT == 0:
        lbloads()
    for idx in range(8):
        for pg in range(2):
            d0, d1, K_, o = v(U(pg, 0, idx), 2), v(U(pg, 1, idx), 2), v(KC(pg), 2), O + 4*pg
            A(f"v_pk_mul_f32 {v(o,2)}, {K_}, {d0} op_sel_hi:[0,1]")
            A(f"v_pk_mul_f32 {v(o+2,2)}, {K_}, {d1} op_sel_hi:[0,1] neg_lo:[1,0] neg_hi:[1,0]")
            A(f"v_pk_fma_f32 {v(o+2,2)}, {K_}, {d0}, {v(o+2,2)} {bc_b} {N0}")
            A(f"v_pk_fma_f32 {d0}, {K_}, {d1}, {v(o,2)} {bc_b} {N0}")
            A(f"v_mov_b64 {d1}, {v(o+2,2)}")
            cnt += 1
            if cnt == LBAT:
                lbloads()
    trace(A, 0, 7)
    A("v_mov_b32 v14, 1\ns_mov_b64 exec, 1\nds_write_b32 v13, v14\ns_mov_b64 exec, -1")
    M0B, RH, RCc, SH, SC = T7, T5, T4, T3, T2
    ACC2 = lambda nt: 32 + 16*nt
    CF = lambda X, nt: 96 + 16*X + 4*nt
    XR, CV = 128, 244
    HR = lambda s_: 148 + 4*(s_ % HD)
    L_OWN = 65536
    A(f"s_xor_b32 s{T0}, s{WT_}, s{PG}\ns_xor_b32 s{T0}, s{T0}, 1\ns_lshl_b32 s{T0}, s{T0}, 6\ns_add_u32 s{T0}, s{T0}, s{WP}")
    A(f"v_lshrrev_b32 v8, 3, v1\nv_lshl_add_u32 v8, v8, 1, s{T0}\nv_lshlrev_b32 v8, 11, v8")
    A("v_and_b32 v14, 7, v1\nv_lshrrev_b32 v15, 4, v1\nv_xor_b32 v14, v14, v15\nv_lshlrev_b32 v14, 4, v14\nv_xor_b32 v15, 64, v14")
    for u in range(4):
        A(f"v_add_u32 v{CV+u}, v8, v{14 + (u & 1)}")
        if u:
            A(f"v_add_u32 v{CV+u}, {u*(16*2048 - 1024)}, v{CV+u}")
    A(f"s_and_b32 s{RCc}, s{TJ}, 7\ns_lshl_b32 s{T0}, s{RCc}, 18\ns_lshl_b32 s{T1}, s{PG}, 10\ns_add_u32 s{T0}, s{T0}, s{T1}")
    srd(A, S2, CRE, T0, 0, 0x40000, T1)
    srd(A, S3, CIM, T0, 0, 0x40000, T1)
    A(f"s_lshl_b32 s{T1}, s{RCc}, 1\ns_add_u32 s{T1}, s{T1}, s{PG}\ns_lshl_b32 s{T1}, s{T1}, 7")
    A(f"s_lshl_b32 s{SH}, s{TI}, 1\ns_add_u32 s{SH}, s{SH}, s{WT_}\ns_lshl_b32 s{T0}, s{SH}, 17\ns_add_u32 s{T0}, s{T0}, s{T1}")
    srd(A, S4, BX, T0, 0, 0x20000, T1)
    A(f"s_add_u32 s{DSK}, s{DSK}, s{T1}\ns_addc_u32 s{DSK+1}, s{DSK+1}, 0")
    A(f"s_lshl_b32 s{T1}, s{T1}, 1\ns_add_u32 s{T1}, s{T1}, 4096\ns_lshl_b32 s{T0}, s{SH}, 19\ns_add_u32 s{T0}, s{T0}, s{T1}")
    A(f"s_add_u32 s{OUT}, s{OUT}, s{T0}\ns_addc_u32 s{OUT+1}, s{OUT+1}, 0\ns_sub_u32 s{LDT}, 0x80000, s{T1}")
    A(f"s_lshl_b32 s{M0B}, s{WAVE}, 12\ns_lshl_b32 s{RH}, s{RCc}, 13\ns_lshl_b32 s{RCc}, s{RCc}, 7")
    A(f"s_lshl_b32 s{T0}, s{WT_}, 14\ns_lshl_b32 s{T1}, s{WP}, 11\ns_add_u32 s{T0}, s{T0}, s{T1}\ns_add_u32 s{T0}, s{T0}, {L_OWN}\nv_add_u32 v16, s{T0}, v10")
    A(f"s_lshl_b32 s{T0}, s{WAVE}, 13\ns_add_u32 s{T0}, s{T0}, {L_OWN}\nv_add_u32 v17, s{T0}, v11")
    for ks in range(4):
        A(f"v_xor_b32 v{20+ks}, {ks << 5}, v7\nv_add_u32 v{24+ks}, 0x10000, v{20+ks}")
    HB = LIM
    A(f"s_mul_i32 s{HB}, s{SH}, {2*TBS}\ns_lshl_b32 s{T1}, s{TJ}, 13\ns_add_u32 s{HB}, s{HB}, s{T1}\ns_lshl_b32 s{T1}, s{WP}, 11\ns_add_u32 s{HB}, s{HB}, s{T1}")
    for u in range(8):
        A(f"v_cmp_gt_u32 vcc, 0x40000, v{136+u}\nv_cndmask_b32 v{40+u}, 0, v202, vcc")
    A(f"s_mov_b32 s{T9}, 0")
    trace(A, 0, 8)
    pl, pd = uid("poll"), uid("polled")
    A.label(pl)
    A("v_mov_b32 v8, 0")
    for u in range(8):
        A(f"s_waitcnt vmcnt({8-u})")
        A(f"v_bitop3_b32 v8, v8, v{LB+4*u+2}, v{40+u} bitop3:0xf6\nv_bitop3_b32 v8, v8, v{LB+4*u+3}, v{40+u} bitop3:0xf6")
    A("s_waitcnt vmcnt(0)\nv_xor_b32 v197, v194, v197\nv_lshrrev_b32 v9, 4, v197\nv_or_b32 v8, v8, v9\nv_cmp_ne_u32 vcc, 0, v8")
    A(f"s_cbranch_vccz {pd}")
    A(f"s_add_u32 s{T9}, s{T9}, 1\ns_cmp_ge_u32 s{T9}, {SPIN_MAX}")
    A(f"s_cbranch_scc1 {pd}")
    lbloads()
    A(f"s_branch {pl}")
    A.label(pd)
    A(f"v_cmp_ne_u32 vcc, 0, v197\ns_cmp_eq_u64 vcc, 0\ns_cselect_b32 s{LOCAL}, {0 if FORCE_REMOTE else 1}, 0")
    mark(A, 3)
    trace(A, 0, 9)
    if TRACE:
        A(f"v_writelane_b32 v0, s{T9}, 63")
    vm = VmCounter(A)

    def cdma(g, us):
        for u in us:
            if u == 0:
                A(f"s_add_u32 m0, s{M0B}, {(g % R)*16384}")
                if g % 2 == 0:
                    A(f"s_add_u32 s{SC}, s{RCc}, {(g >> 1)*128}\ns_and_b32 s{SC}, s{SC}, 0x3ff")
            vm.op(f"buffer_load_dwordx4 v{CV+u}, {r4(S2 if g % 2 == 0 else S3)}, s{SC} offen offset:{u*1024}{NTC} lds", ("c", g))
    cdma(0, range(4))
    cdma(1, range(4))
    A("v_mov_b32 v14, 2\ns_mov_b64 exec, 1\nds_write_b32 v13, v14\ns_mov_b64 exec, -1")
    H0 = LB + 28
    cur = (H0, H0+1)
    for u in range(6, -1, -1):
        d = (48, 49) if cur[0] == H0 else (H0, H0+1)
        horner(A, d[0], d[1], Q256, cur[0], cur[1], LB+4*u, LB+4*u+1, TT)
        cur = d
    assert cur == (48, 49)
    A("v_mov_b32 v50, v48\nv_mov_b32 v51, v49\nv_permlane32_swap_b32 v48, v50\nv_permlane32_swap_b32 v49, v51")
    horner(A, 52, 53, Q128, 50, 51, 48, 49, TT)
    A("v_mov_b32 v54, v52\nv_mov_b32 v55, v53\nv_permlane16_swap_b32 v52, v54\nv_permlane16_swap_b32 v53, v55")
    trace(A, 0, 10)
    G = lambda pg: QQ(pg)
    for pg in range(2):
        Hh, gr, gi, pr, pi = v(52+2*pg, 2), v(G(pg), 2), v(G(pg)+2, 2), v(PP(pg), 2), v(PP(pg)+2, 2)
        A(f"v_pk_fma_f32 {gr}, {Hh}, {pr}, {gr} {bc_a}\nv_pk_fma_f32 {gi}, {Hh}, {pi}, {gi} {bc_a}")
        A(f"v_pk_fma_f32 {gr}, {Hh}, {pi}, {gr} {bc_b} {N0}\nv_pk_fma_f32 {gi}, {Hh}, {pr}, {gi} {bc_b}")
    PK = lambda pg, c, idx: 144 + (pg*2 + c)*8 + idx
    D = lambda c, X, pg: 32 + ((c*2 + X)*2 + pg)*4

    def fix(pg, idx):
        d0, d1, pw, gr, gi = v(U(pg, 0, idx), 2), v(U(pg, 1, idx), 2), v(PW(pg, idx), 2), v(G(pg), 2), v(G(pg)+2, 2)
        A(f"v_pk_fma_f32 {d0}, {pw}, {gr}, {d0} {bc_a}")
        A(f"v_pk_fma_f32 {d1}, {pw}, {gi}, {d1} {bc_a} {N0}")
        A(f"v_pk_fma_f32 {d0}, {pw}, {gi}, {d0} {bc_b} {N0}")
        A(f"v_pk_fma_f32 {d1}, {pw}, {gr}, {d1} {bc_b} {N0}")
        for c in range(2):
            A(f"v_cvt_pk_bf16_f32 v{PK(pg,c,idx)}, v{U(pg,c,idx)}, v{U(pg,c,idx)+1}")

    def tr(u):
        for c in range(2):
            for X in range(2):
                for pg in range(2):
                    A(f"{M16} {v(D(c,X,pg),4)}, {v(PK(pg,c,4*u),4)}, {v(248+4*X,4)}, 0")

    def st(u):
        for c in range(2):
            for X in range(2):
                q = 176 + 16*u + (c*2 + X)*4
                A(f"s_add_u32 s{T1}, s{HB}, {X*TBS + c*4096}")
                for jj in range(4):
                    A(f"v_cvt_pk_bf16_f32 v{q+jj}, v{D(c,X,0)+2*jj}, v{D(c,X,0)+2*jj+1}")
                vm.op(f"buffer_store_dwordx4 {v(q,4)}, v10, {r4(S1)}, s{T1} offen offset:{u*256} sc1", "hst")
                A(f"ds_write_b128 v16, {v(q,4)} offset:{X*8192 + c*4096 + u*256}")
    for u in range(2):
        for idx in range(4*u, 4*u + 4):
            for pg in range(2):
                fix(pg, idx)
            if u == 1 and idx == 5:
                st(0)
                trace(A, 0, 12)
        tr(u)
        if u == 0:
            trace(A, 0, 11)
    st(1)
    mark(A, 4)
    trace(A, 0, 13)
    NK = 64

    def arrive(val):
        A(f"v_mov_b32 v14, {val}")
        A("s_mov_b64 exec, 1\nds_write_b32 v13, v14\ns_mov_b64 exec, -1")

    def check(val, off=0, first=False):
        l, d = uid("ck"), uid("ckd")
        if first:
            A(f"ds_read_b128 v[8:11], v12 offset:{off}\ns_waitcnt lgkmcnt(0)")
        A.label(l)
        A("v_min3_u32 v15, v8, v9, v10\nv_min_u32 v15, v15, v11")
        A(f"v_readfirstlane_b32 s{T0}, v15")
        A(f"s_cmp_ge_u32 s{T0}, {val}")
        A(f"s_cbranch_scc1 {d}")
        A(f"ds_read_b128 v[8:11], v12 offset:{off}\ns_waitcnt lgkmcnt(0)")
        A(f"s_branch {l}")
        A.label(d)

    def hload(s_):
        if s_ % 4 == 0:
            A(f"s_add_u32 s{SH}, s{RH}, {(s_ >> 2)*4096}\ns_and_b32 s{SH}, s{SH}, 0xffff")
        vm.op(f"buffer_load_dwordx4 {v(HR(s_),4)}, v2, {r4(S0)}, s{SH} offen offset:{(s_ & 3)*1024} sc1", ("h", s_))

    def rd2(s_, nts):
        g, ks = s_ >> 2, s_ & 3
        slot = g % R
        base = 20 if slot < 4 else 24
        for nt in nts:
            A(f"ds_read_b128 {v(CF(s_ & 1, nt),4)}, v{base+ks} offset:{(slot & 3)*16384 + nt*4096}")

    def mf(s_, nt):
        c = "0" if s_ == 0 else v(ACC2(nt), 16)
        if E_("HACK16", 0) & 2:
            for z in range(2):
                d = ACC2(nt) + 8*(s_ & 1) + 4*z
                A(f"v_mfma_f32_16x16x32_bf16 {v(d,4)}, {v(HR(s_),4)}, {v(CF(s_ & 1, nt),4)}, {'0' if s_ < 2 else v(d,4)}")
        else:
            A(f"{MF} {v(ACC2(nt),16)}, {v(HR(s_),4)}, {v(CF(s_ & 1, nt),4)}, {c}")
    A("v_mov_b32 v2, v11")
    A(f"s_lshl_b32 s{T0}, s{TI}, 2\ns_add_u32 s{T0}, s{T0}, s{WAVE}\ns_mul_i32 s{T0}, s{T0}, {TBS}\ns_lshl_b32 s{T1}, s{PG}, 16\ns_add_u32 s{T0}, s{T0}, s{T1}")
    srd(A, S0, WS, T0, WS_HT, 0x10000)
    if not OWNFIRST and C23:
        cdma(2, range(4))
        cdma(3, range(4))
    A(f"s_waitcnt vmcnt({vm.wait_for(('c', 1), emit=False)}) lgkmcnt(0)")
    trace(A, 0, 14)
    arrive(3)
    check(3, first=True)
    trace(A, 0, 15)
    for s_ in range(8):
        A(f"ds_read_b128 {v(HR(s_),4)}, v17 offset:{s_*1024}")
    hn = [8]

    def pause():
        A(f"s_lshl_b32 s{T0}, s{WP}, 3\nv_lshl_add_u32 v17, v5, 4, s{T0}")
        A("v_lshlrev_b32 v28, 11, v17\nv_lshl_add_u32 v28, v6, 2, v28")
        A("v_lshlrev_b32 v29, 13, v17\nv_lshl_add_u32 v29, v6, 3, v29")
        A(f"v_lshlrev_b32 v30, 2, v6\nv_mov_b32 v15, s{NONCE}")
        a, b = uid("rs"), uid("rd")
        trace(A, 0, 16)
        vm.wait_for("hst")
        trace(A, 0, 17)
        A(f"s_mov_b64 exec, 1\ns_cmp_eq_u32 s{LOCAL}, 0\ns_cbranch_scc1 {a}")
        A(f"global_store_dword v19, v15, {sp(WS)}\ns_branch {b}")
        A.label(a)
        A(f"global_store_dword v19, v15, {sp(WS)} sc1")
        A.label(b)
        A("s_mov_b64 exec, -1")
        if not E_("GM", 0):
            mark(A, 5)
        check(4, first=True)
        if not NOAUX:
            check(LIMG_FREE, 16, first=True)
        if CTOUCH == 5:
            xtouch(1)
        if CTOUCH == 8:
            ctouch()
        for gg in range(4 if C23 else 2, CPOLL):
            cdma(gg, range(4))
        trace(A, 0, 18)
        wait_cnt(A, 18, 8, SLP_H)
        trace(A, 0, 19)
        vm.issued = []
        if not E_("GM", 0):
            mark(A, 6)
        if OWNFIRST:
            arrive(5)
        gg = max(4, CPOLL)
        while hn[0] < 8 + HPRE:
            hload(hn[0])
            hn[0] += 1
            if hn[0] % 4 == 0 and gg < CPRE:
                cdma(gg, range(4))
                gg += 1
        assert gg == CPRE
        if OWNFIRST:
            check(5, first=True)
        trace(A, 0, 20)
        rd2(8 if OWNFIRST else 0, range(4))

    def flag_store():
        a, b = uid("rs"), uid("rd")
        A(f"s_mov_b64 exec, 1\ns_cmp_eq_u32 s{LOCAL}, 0\ns_cbranch_scc1 {a}")
        A(f"global_store_dword v19, v15, {sp(WS)}\ns_branch {b}")
        A.label(a)
        vm.op(f"global_store_dword v19, v15, {sp(WS)} sc1", "flag")
        A.label(b)
        A("s_mov_b64 exec, -1")
    if HTAG:
        A("s_waitcnt lgkmcnt(0)")
        arrive(4)
        A(f"s_lshl_b32 s{T0}, s{WP}, 3\nv_lshl_add_u32 v17, v5, 4, s{T0}")
        A("v_lshlrev_b32 v28, 11, v17\nv_lshl_add_u32 v28, v6, 2, v28")
        A("v_lshlrev_b32 v29, 13, v17\nv_lshl_add_u32 v29, v6, 3, v29")
        A(f"v_lshlrev_b32 v30, 2, v6\nv_mov_b32 v15, s{NONCE}")
        if HTAG == 1:
            wl, wd = uid("hw"), uid("hwd")
            A(f"s_add_u32 s{T1}, s{RH}, 8192\ns_and_b32 s{T1}, s{T1}, 0xffff\ns_mov_b32 s{CNT}, 0\ns_waitcnt lgkmcnt(0)")
            A.label(wl)
            A(f"s_load_dwordx4 s[4:7], {sp(S0)}, s{T1} offset:{4096 + 1024 + 1008} glc\ns_load_dwordx4 s[8:11], {sp(S0)}, s{T1} offset:{4096 + 3072 + 1008} glc")
            A(f"s_add_u32 s{CNT}, s{CNT}, 1\ns_waitcnt lgkmcnt(0)")
            for q in range(2):
                A(f"s_xor_b64 s[{4+2*q}:{5+2*q}], s[{4+2*q}:{5+2*q}], s[{HT_+2*q}:{HT_+2*q+1}]\ns_xor_b64 s[{8+2*q}:{9+2*q}], s[{8+2*q}:{9+2*q}], s[{HT_+2*q}:{HT_+2*q+1}]")
            A("s_or_b64 s[4:5], s[4:5], s[6:7]\ns_or_b64 s[8:9], s[8:9], s[10:11]\ns_or_b64 s[4:5], s[4:5], s[8:9]\ns_or_b32 s4, s4, s5\ns_and_b32 s4, s4, 0x10001")
            A(f"s_cbranch_scc0 {wd}\ns_cmp_lt_u32 s{CNT}, {SPIN_MAX}\ns_cbranch_scc1 {wl}")
            A.label(wd)
        if HTAG == 3:
            vm.wait_for('hst')
            flag_store()
        if HTAG == 2 and HDLY:
            A(f"s_waitcnt vmcnt({vm.wait_for('hst', emit=False) + HDLY})")
        mark(A, 6)
        for s_ in range(8, 16):
            hload(s_)
        hn[0] = 16
        if HTAG != 3:
            vm.wait_for("hst")
            flag_store()
        if not E_("GM", 0):
            mark(A, 5)
        check(4, first=True)
        if not NOAUX:
            check(LIMG_FREE, 16, first=True)
        for gg in range(4, CPOLL):
            cdma(gg, range(4))
        rd2(0, range(4))
    elif OWNFIRST:
        rd2(0, range(4))
        A("s_waitcnt lgkmcnt(4)")
        arrive(4)
    else:
        A("s_waitcnt lgkmcnt(0)")
        arrive(4)
        pause()
    have_c = lambda g: any(t == ("c", g) for t in vm.issued)
    for s_ in range(NK):
        g, ks = s_ >> 2, s_ & 3
        nxt = s_ + 1
        more = nxt < NK and not (nxt == 8 and OWNFIRST)
        ws = []
        if s_ >= 8:
            ws.append(vm.wait_for(("h", s_), emit=False))
        arr = (s_ + 4) % 8 == 0 and s_ + 4 < NK and (s_ >= 8 or not OWNFIRST)
        if arr:
            gl = ((s_ + 4) >> 2) + 1
            if have_c(gl):
                ws.append(vm.wait_for(("c", gl), emit=False))
        wv = f"vmcnt({min(ws)}) " if ws else ""
        newgrp = more and nxt % 8 == 0
        full = newgrp or not more or s_ == 0
        nc = 2 if s_ >= NK - NDEF else 4
        nn = (2 if nxt >= NK - NDEF else 4) if more else 0
        if full:
            A(f"s_waitcnt {wv}lgkmcnt(0)")
            if newgrp:
                check((nxt >> 3) + 4)
                trace(A, 0, 20 + (nxt >> 3))
                if nxt == 32 and not E_('GM', 0):
                    mark(A, 7)
        else:
            A(f"s_waitcnt {wv}lgkmcnt({nc-1})")
        extra = 0
        if arr:
            arrive(((s_ + 4) >> 3) + 4)
            extra = 1
        issued_n = 0
        for nt in range(nc):
            if nt and not full:
                A(f"s_waitcnt lgkmcnt({nc - 1 - nt + extra + issued_n})")
            mf(s_, nt)
            if nt < 2 and issued_n < nn and (nt == 0 or nn == 4):
                rd2(nxt, [issued_n, issued_n + 1])
                issued_n += 2
            if nt == nc - 2:
                if s_ < 8 and OWNFIRST:
                    if C23:
                        cdma(2 + g, [ks])
                elif CPRE <= g + CD < NK//4:
                    cdma(g + CD, [ks])
        assert issued_n == nn
        if HTAG:
            if s_ < 4*(CPRE - CPOLL):
                cdma(CPOLL + g, [ks])
            if s_ == 6:
                tl, td = uid("ht"), uid("htd")
                A(f"s_mov_b32 s{CNT}, 0")
                vm.wait_for(("h", 15))
                A.label(tl)
                A("v_mov_b32 v4, 0")
                for r in range(32):
                    A(f"v_bitop3_b32 v4, v4, v{HR(8)+r}, s{HT_+(r & 3)} bitop3:0xf6")
                A(f"v_and_b32 v4, 0x10001, v4\nv_cmp_ne_u32 vcc, 0, v4\ns_cbranch_vccz {td}")
                A(f"s_add_u32 s{CNT}, s{CNT}, 1\ns_cmp_ge_u32 s{CNT}, {SPIN_MAX}\ns_cbranch_scc1 {td}")
                keep = list(vm.issued)
                for s2_ in range(8, 16):
                    hload(s2_)
                vm.issued = keep
                A(f"s_waitcnt vmcnt(0)\ns_branch {tl}")
                A.label(td)
                if STAMP == 1:
                    A(f"s_add_u32 s72, s70, s{CNT}")
            if s_ == HFI:
                vm.op(f"global_load_dword v16, v18, {sp(WS)} sc1", "fp")
            if s_ == HFC:
                fd = uid("hf")
                vm.wait_for("fp")
                A(f"v_cmp_ne_u32 vcc, s{NONCE}, v16\ns_cbranch_vccz {fd}")
                wait_cnt(A, 18, 16, 1)
                A.label(fd)
        if (s_ >= (HFC if HTAG else 8) or not (OWNFIRST or HTAG)) and hn[0] < NK:
            for _ in range(3 if HTAG else 2):
                if hn[0] < NK and hn[0] <= s_ + HD:
                    hload(hn[0])
                    hn[0] += 1
        if (s_ + 2) % 8 == 0 and s_ + 2 < NK and (s_ >= 8 or not OWNFIRST):
            A("ds_read_b128 v[8:11], v12")
        if s_ == NK - 18:
            vm.op(f"global_load_dword v31, v30, {sp(DSK)}", "dsk")
        if NK - 17 <= s_ < NK - 1:
            e = s_ - (NK - 17)
            q, r = e >> 2, e & 3
            A(f"s_mov_b32 s{T0}, {(32*(q & 1) + 4*(q >> 1) + (r & 2))*2048}")
            vm.op(f"buffer_load_dword v{XR+e}, v28, {r4(S4)}, s{T0} offen offset:{(r & 1)*2048}", ("x", e))
        if s_ == 7 and OWNFIRST:
            pause()
    mark(A, 8)
    trace(A, 0, 28)
    TG = T0
    A(f"s_mul_i32 s{TG}, s{NONCE}, 0x9e3779b1\ns_and_b32 s{TG}, s{TG}, 0xbfff0000\ns_or_b32 s{TG}, s{TG}, 0x20000000")
    A(f"s_sub_u32 s{T1}, s{NONCE}, 1\ns_xor_b32 s{T1}, s{T1}, s{TG}\ns_cmp_lt_u32 s{T1}, 0x10000\ns_cselect_b32 s{T1}, 0x10000, 0\ns_xor_b32 s{TG}, s{TG}, s{T1}")
    if INOUT:
        A(f"s_lshl_b32 s{T4}, s{PG}, 9\ns_sub_i32 s{T4}, 256, s{T4}\ns_ashr_i32 s{T5}, s{T4}, 31")
        A(f"s_add_u32 s{S2}, s{OUT}, s{T4}\ns_addc_u32 s{S2+1}, s{OUT+1}, s{T5}\ns_sub_u32 s{S2+2}, s{LDT}, s{T4}\ns_mov_b32 s{S2+3}, 0x20000")
        A(f"s_mov_b32 s{S3}, s{OUT}\ns_mov_b32 s{S3+1}, s{OUT+1}\ns_mov_b32 s{S3+2}, s{LDT}\ns_mov_b32 s{S3+3}, 0x20000")
        A(f"s_lshl_b32 s{T4}, s{WP}, 16\nv_lshrrev_b32 v3, 4, v1\nv_lshlrev_b32 v3, 13, v3\nv_and_b32 v4, 15, v1\nv_lshl_add_u32 v3, v4, 4, v3\nv_add_u32 v3, s{T4}, v3")
        xad = lambda gq: (f"s_mov_b32 s{T4}, {(16*(gq >> 1) + 4*(gq & 1))*8192}\n", f"v3, SRD, s{T4} offen")
    else:
        A(f"s_lshl_b32 s{T4}, s{TI}, 4\ns_add_u32 s{T4}, s{T4}, s{TJ}\ns_lshl_b32 s{T4}, s{T4}, 2\ns_add_u32 s{T4}, s{T4}, s{WAVE}\ns_lshl_b32 s{T4}, s{T4}, 13")
        srd(A, S2, WS, T4, WS_XB, 0x2000)
        A(f"s_xor_b32 s{T4}, s{T4}, {8 << 15}")
        srd(A, S3, WS, T4, WS_XB, 0x2000)
        A(f"s_movk_i32 s{T4}, 0x1000")
        xad = lambda gq: ("", f"v2, SRD, {'0' if gq < 4 else f's{T4}'} offen offset:{(gq & 3)*1024}")
    val = lambda n: ACC2(n & 1) + (n >> 1)
    TXR, RX = [96, 100, 244, 248, 252], 180
    for gq in range(5):
        for c in range(4):
            n = 7*gq + 2*c
            lo = f"v{val(min(n, 31))}"
            hi = f"s{TG}" if c == 3 else f"v{val(min(n+1, 31))}"
            A(f"v_cvt_pk_bf16_f32 v{TXR[gq]+c}, {lo}, {hi}")
        A(f"{xad(gq)[0]}buffer_store_dwordx4 {v(TXR[gq],4)}, {xad(gq)[1].replace('SRD', r4(S2))} sc1")

    def rx():
        for gq in range(5):
            A(f"{xad(gq)[0]}buffer_load_dwordx4 {v(RX+4*gq,4)}, {xad(gq)[1].replace('SRD', r4(S3))} sc1")
    if NDEF:
        rd2(NK - NDEF, [2, 3])
        for s_ in range(NK - NDEF, NK):
            if s_ + 1 < NK:
                rd2(s_ + 1, [2, 3])
                A("s_waitcnt lgkmcnt(2)")
            else:
                A("s_waitcnt lgkmcnt(0)")
            mf(s_, 2)
            mf(s_, 3)
    trace(A, 0, 29)
    if E_("XM", 0):
        mark(A, 3)
    A("s_waitcnt vmcnt(5)")
    if E_("XM", 0):
        mark(A, 5)
    trace(A, 0, 30)
    A("v_lshlrev_b32 v8, 16, v31\nv_and_b32 v9, 0xffff0000, v31")
    YO = lambda e: 148 + 2*e
    for e in range(16):
        t = YO(e)
        A(f"v_lshlrev_b32 v{t}, 16, v{XR+e}\nv_and_b32 v{t+1}, 0xffff0000, v{XR+e}")
        A(f"v_pk_mul_f32 {v(t,2)}, {v(t,2)}, v[8:9]")
        A(f"v_cvt_pk_bf16_f32 v10, v{t}, v{t+1}")
        A(f"v_lshlrev_b32 v{t}, 16, v10\nv_and_b32 v{t+1}, 0xffff0000, v10")
        A(f"v_add_f32 v{t}, v{t}, v{ACC2(2)+e}\nv_add_f32 v{t+1}, v{t+1}, v{ACC2(3)+e}")
    A(f"s_mov_b32 s{S1}, s{OUT}\ns_mov_b32 s{S1+1}, s{OUT+1}\ns_mov_b32 s{S1+2}, s{LDT}\ns_mov_b32 s{S1+3}, 0x20000")
    xl, xd = uid("xl"), uid("xd")
    A(f"s_mov_b32 s{CNT}, 0")
    if XPOLL:
        assert not INOUT
        wl, wd = uid("xw"), uid("xwd")
        A.label(wl)
        A(f"s_load_dword s{T1}, {sp(S3)}, {0x1000 + 63*16 + 12} glc\ns_add_u32 s{CNT}, s{CNT}, 1\ns_waitcnt lgkmcnt(0)")
        A(f"s_xor_b32 s{T1}, s{T1}, s{TG}\ns_cmp_lt_u32 s{T1}, 0x10000\ns_cbranch_scc1 {wd}")
        A(f"s_cmp_lt_u32 s{CNT}, {SPIN_MAX}\ns_cbranch_scc1 {wl}")
        A.label(wd)
        A(f"s_mov_b32 s{CNT}, 0")
    trace(A, 0, 31)
    if XPOLL != 2:
        A(f"s_waitcnt vmcnt({E_('XW', 0)})")
    if E_("XM", 0):
        mark(A, 6)
    rx()
    A.label(xl)
    A("v_mov_b32 v10, 0")
    for gq in range(5):
        A(f"s_waitcnt vmcnt({4-gq})")
        A(f"v_bitop3_b32 v10, v10, v{RX+4*gq+3}, s{TG} bitop3:0xf6")
    A("v_cmp_lt_u32 vcc, 0xffff, v10")
    A(f"s_cbranch_vccz {xd}")
    A(f"s_add_u32 s{CNT}, s{CNT}, 1\ns_cmp_ge_u32 s{CNT}, {SPIN_MAX}")
    A(f"s_cbranch_scc1 {xd}")
    rx()
    A(f"s_branch {xl}")
    A.label(xd)
    trace(A, 0, 32)
    if STAMP:
        A(f"s_add_u32 s74, s70, s{CNT}\ns_lshl_b32 s{CNT}, s{LOCAL}, 8\ns_add_u32 s74, s74, s{CNT}")
        mark(A, 4)
    for e in range(16):
        q, r = e >> 2, e & 3
        t = YO(e)
        for nt in range(2):
            n = 2*e + nt
            src = RX + 4*(n // 7) + (n % 7)//2
            if (n % 7) % 2 == 0:
                A(f"v_lshlrev_b32 v{10+nt}, 16, v{src}")
            else:
                A(f"v_and_b32 v{10+nt}, 0xffff0000, v{src}")
        A(f"v_pk_add_f32 {v(t,2)}, {v(t,2)}, v[10:11]")
        A(f"s_mov_b32 s{T4}, {(32*(q & 1) + 4*(q >> 1) + r)*8192}")
        A(f"buffer_store_dwordx2 {v(t,2)}, v29, {r4(S1)}, s{T4} offen{OSTB}")
    trace(A, 0, 33)
    if TRACE:
        A("s_waitcnt vmcnt(0)")
    trace(A, 0, 34)
    trace_dump(A, 0, WAVE, 1)
    stamp_end(A, kidx, WAVE)


def gen_fused(A, name, kidx):
    KNAME_[0] = name
    A(f".globl {name}\n.p2align 8\n.type {name},@function")
    A.label(name)
    A("s_cmp_ge_u32 s2, 256")
    A(f"s_cbranch_scc1 L_{name}_end")
    A("s_load_dwordx16 s[4:19], s[0:1], 0")
    A("s_load_dwordx8 s[20:27], s[0:1], 64")
    A("s_load_dwordx4 s[28:31], s[0:1], 96")
    A("s_load_dwordx2 s[32:33], s[0:1], 112")
    stamp_begin(A)
    A("v_lshrrev_b32 v2, 6, v0\nv_and_b32 v1, 63, v0")
    A(f"v_readfirstlane_b32 s{WAVE}, v2")
    A(f"s_and_b32 s{T0}, s2, 7\ns_lshr_b32 s{T1}, s2, 3")
    A(f"s_lshr_b32 s{TI}, s{T0}, 1\ns_lshl_b32 s{TI}, s{TI}, 2\ns_lshr_b32 s{T2}, s{T1}, 3\ns_add_u32 s{TI}, s{TI}, s{T2}")
    A(f"s_and_b32 s{TJ}, s{T0}, 1\ns_lshl_b32 s{TJ}, s{TJ}, 3\ns_and_b32 s{T2}, s{T1}, 7\ns_add_u32 s{TJ}, s{TJ}, s{T2}")
    if SWAP:
        A(f"s_xor_b32 s{WAVE}, s{WAVE}, 4")
    A(f"s_cmp_ge_u32 s{WAVE}, 4")
    A(f"s_cbranch_scc0 L_{name}_gemm")
    aux_waves(A, name, kidx)
    A.label(f"L_{name}_gemm")
    gemm_waves(A, name, kidx)
    A.label(f"L_{name}_end")
    A("s_endpgm")
    return kdesc(name, 256)
```

```python
import os
from asmlib import *
from common import *

E_ = lambda k, d: int(os.environ.get(k, str(d)))
XO, NP, RI, RJ = E_("XO", 0), E_("NP", 1), E_("RI", 1), E_("RJ", 1)
XO2, NP2 = E_("XO2", 2), E_("NP2", 1)
PRO = E_("PRO", 2)
HD = E_("HD", 24)
CD = E_("CD", 4)
NOAUX = E_("NOAUX", 0)
CODEPF = E_("CODEPF", 1)
NS = E_('NS', 3)
LASW = E_('LASW', 99)
R = 7
LA = E_('LA', 2)
FORCE_REMOTE = E_('FORCE_REMOTE', 0)
MF = "v_mfma_f32_32x32x16_bf16"
N0 = "neg_lo:[1,0,0] neg_hi:[1,0,0]"

AX, WR, WI, BX, LRE, LIM, BRE, BIM, CRE, CIM, LDT, DSK, OUT, DBG, WS = 4, 6, 8, 10, 12, 14, 16, 18, 20, 22, 24, 26, 28, 30, 32
WAVE, TI, TJ, NONCE, TBL = 34, 35, 36, 37, 38
S0, S1, S2, S3, S4 = 40, 44, 48, 52, 56
T0, T1, T2, T3, T4, T5, T6, T7, T8, T9 = range(60, 70)
MSK, CNT, LOCAL, PG = 90, 92, 100, 101
L_XCH = 122880
L_SYNC = 126976
L_AX = 131072
L_W = 147456
WS_CNT = 0x1000
CNT_A, CNT_B, CNT_W = WS_CNT, WS_CNT + 16*128, WS_CNT + 32*128
FLG_A, FLG_B, FLG_W = 0x84000, 0x86000, 0x88000
FLG_X = 0x8000
FLG_H = 0x60000
CPRO1 = E_("CPRO1", 2)
CPRO2 = E_("CPRO2", 2)
CTOUCH = E_("CTOUCH", 4)
TBS = 131072 + E_("TBPAD", 0)
FTOUCH = E_("FTOUCH", 1)
XTOUCH = E_("XTOUCH", 0)
NREP = E_("NREP", 32)
NDEF = E_("NDEF", 12)
HTAG = 0
HDLY = E_("HDLY", 0)
HFI, HFC = E_("HFI", 7), E_("HFC", 10)
XPOLL = E_("XPOLL", 2)
OWNFIRST = E_("OWNFIRST", 1) and not HTAG
C01, C23 = E_("C01", 1), E_("C23", 1)
INOUT = E_("INOUT", 0)
KS_ = 32768 if INOUT else 8192
ISH = 16384 if INOUT else 4096
CTK, CPOLL, CPRE, HPRE = E_("CTK", 14), E_("CPOLL", 6), E_("CPRE", 7), E_("HPRE", 8)
HLOC, HLK = E_("HLOC", 0), E_("HLK", 13)
LBAT = E_("LBAT", 16)
XBF = E_("XBF", 1)
SLP_H, SLP_A = E_("SLP_H", 4), E_("SLP_A", 10)
NT = " nt" if E_("NT", 1) else ""
NTX = " nt"
OST = {0: "", 1: " nt", 2: " sc1", 3: " sc1 nt", 4: " sc0 sc1 nt", 5: " sc0 nt"}[E_("OST", 1)]
NTK = E_("NTK", 0)
OSTB = {0: "", 1: " nt", 2: " sc1", 3: " sc1 nt", 4: " sc0 sc1 nt", 5: " sc0 nt"}[E_("OSTB", 1)]
NTC = " nt" if E_("NTC", 0) else ""


def sp(a):
    return f"s[{a}:{a+1}]"


def srd(A, d, base, soff=None, const=0, size=None, size_s=None):
    if soff is None and const == 0:
        A(f"s_mov_b32 s{d}, s{base}\ns_mov_b32 s{d+1}, s{base+1}")
    else:
        if soff is not None and const:
            A(f"s_add_u32 s{d+2}, s{soff}, {const}")
            o = f"s{d+2}"
        elif soff is not None:
            o = f"s{soff}"
        else:
            o = str(const)
        A(f"s_add_u32 s{d}, s{base}, {o}\ns_addc_u32 s{d+1}, s{base+1}, 0")
    if size_s is not None:
        A(f"s_sub_u32 s{d+2}, {size}, s{size_s}")
    else:
        A(f"s_mov_b32 s{d+2}, {size}")
    A(f"s_mov_b32 s{d+3}, 0x20000")


def r4(d):
    return f"s[{d}:{d+3}]"


_u = [0]


def uid(p):
    _u[0] += 1
    return f"L_{p}{_u[0]}"


def get_nonce(A, vt):
    l, d = uid("n"), uid("nd")
    A(f"v_mov_b32 v{vt}, 0")
    A.label(l)
    A(f"global_load_dword v{vt+1}, v{vt}, {sp(DBG)} sc1")
    A("s_waitcnt vmcnt(0)")
    A(f"v_readfirstlane_b32 s{NONCE}, v{vt+1}")
    A(f"s_cmp_eq_u32 s{NONCE}, 0")
    A(f"s_cbranch_scc1 {l}")


def signal(A, sshard, cnt, flg, expect, vt):
    d = uid("sg")
    A(f"s_lshl_b32 s{CNT}, s{sshard}, 7\ns_add_u32 s{CNT}, s{CNT}, {cnt}")
    A(f"v_mov_b32 v{vt}, s{CNT}\nv_mov_b32 v{vt+1}, 1")
    A("s_waitcnt vmcnt(0)")
    A("s_mov_b64 exec, 1")
    A(f"global_atomic_add v{vt+2}, v{vt}, v{vt+1}, {sp(WS)} sc0 sc1")
    A(f"v_add_u32 v{vt}, {flg - cnt}, v{vt}\nv_mov_b32 v{vt+1}, s{NONCE}")
    A("s_waitcnt vmcnt(0)")
    A(f"v_readfirstlane_b32 s{CNT}, v{vt+2}")
    A(f"s_add_u32 s{CNT}, s{CNT}, 1\ns_cmp_lg_u32 s{CNT}, {expect}")
    A(f"s_cbranch_scc1 {d}")
    A(f"global_store_dword v{vt}, v{vt+1}, {sp(WS)} sc1")
    A.label(d)
    A("s_mov_b64 exec, -1")


def set_flag(A, soff, vt):
    A(f"v_mov_b32 v{vt}, s{soff}\nv_mov_b32 v{vt+1}, s{NONCE}")
    A("s_waitcnt vmcnt(0)")
    A("s_mov_b64 exec, 1")
    A(f"global_store_dword v{vt}, v{vt+1}, {sp(WS)} sc1")
    A("s_mov_b64 exec, -1")


def wait_cnt(A, vaddr, vt, sleep):
    l, d = uid("w"), uid("wd")
    A(f"s_mov_b32 s{CNT}, 0")
    A.label(l)
    A(f"global_load_dword v{vt}, v{vaddr}, {sp(WS)} sc1")
    A("s_waitcnt vmcnt(0)")
    A(f"v_cmp_ne_u32 vcc, s{NONCE}, v{vt}")
    A(f"s_cbranch_vccz {d}")
    if sleep:
        A(f"s_sleep {sleep}")
    A(f"s_add_u32 s{CNT}, s{CNT}, 1\ns_cmp_lt_u32 s{CNT}, {SPIN_MAX}")
    A(f"s_cbranch_scc1 {l}")
    A.label(d)


F, T = 192, 224


import struct as _st


def fl(x):
    return hex(_st.unpack("<I", _st.pack("<f", x))[0])


def lane_float(A, vn, vh, t):
    A(f"v_and_b32 v{t}, 31, v1\nv_cvt_f32_u32 v{t}, v{t}\nv_lshrrev_b32 v{t+1}, 5, v1\nv_lshlrev_b32 v{t+1}, 2, v{t+1}\nv_cvt_f32_u32 v{t+1}, v{t+1}")


def make_F(A, t):
    lane_float(A, None, None, t)
    A(f"v_mul_f32 v{t+1}, v{t}, v{t+1}\nv_mul_f32 v{t+1}, {fl(1/32)}, v{t+1}")
    for i in range(16):
        c = 8*(i >> 2) + (i & 3)
        a = t + 2 + 3*(i & 1)
        A(f"v_fmamk_f32 v{a}, v{t}, {fl(c/32)}, v{t+1}\nv_fract_f32 v{a}, v{a}")
        A(f"v_cos_f32 v{a+1}, v{a}\nv_sin_f32 v{a+2}, v{a}")
        A(f"v_cvt_pk_bf16_f32 v{F+i}, v{a+1}, v{a+2}\nv_cvt_pk_bf16_f32 v{F+16+i}, -v{a+2}, v{a+1}")


def make_T(A, dst, t, half):
    lane_float(A, None, None, t)
    if not half:
        A(f"v_mul_f32 v{t+1}, v{t}, v{t+1}\nv_mul_f32 v{t+1}, {fl(1/1024)}, v{t+1}")
    else:
        A(f"v_mul_f32 v{t}, {fl(1/2048)}, v{t}\nv_fmamk_f32 v{t+1}, v{t+1}, {fl(1/64)}, v{t}")
    for i in range(16):
        c = 8*(i >> 2) + (i & 3)
        a = t + 2 + (i & 1)
        if not half:
            A(f"v_fmamk_f32 v{a}, v{t}, {fl(c/1024)}, v{t+1}")
        else:
            A(f"v_add_f32 v{a}, {fl(c/64)}, v{t+1}")
        A(f"v_cos_f32 v{dst+i}, v{a}\nv_sin_f32 v{dst+16+i}, -v{a}")


def stage1(A, src, D, stride=4):
    if "m" in os.environ.get("SK", ""):
        return
    for c in range(2):
        for s_ in range(4):
            cc = "0" if s_ == 0 else v(D+16*c, 16)
            A(f"{MF} {v(D+16*c,16)}, {v(src+stride*s_,4)}, {v(F+16*c+4*s_,4)}, {cc}")


def twiddle(A, D, dst, tmp, rng=range(16)):
    for i in (rng if "t" not in os.environ.get("SK", "") else []):
        re, im, tr, ti = D+i, D+16+i, T+i, T+16+i
        t = tmp + 2*(i & 3)
        A(f"v_mul_f32 v{t}, v{re}, v{tr}\nv_mul_f32 v{t+1}, v{re}, v{ti}")
        A(f"v_fma_f32 v{t}, -v{im}, v{ti}, v{t}\nv_fmac_f32 v{t+1}, v{im}, v{tr}")
        A(f"v_cvt_pk_bf16_f32 v{dst+i}, v{t}, v{t+1}")


def stage2(A, src, D):
    if "m" in os.environ.get("SK", ""):
        return
    for c in range(2):
        for s_ in range(4):
            cc = "0" if s_ == 0 else v(D+16*c, 16)
            A(f"{MF} {v(D+16*c,16)}, {v(F+16*c+4*s_,4)}, {v(src+4*s_,4)}, {cc}")


W_ = T6
NBW = 2048*513*2
SQ, SO, ST = 184, 185, 186
VA1, VA2, VA8, VLIN = 4, 5, 6, 7
_ph = [0]


def l_arrive(A):
    _ph[0] += 1
    A(f"v_mov_b32 v{ST+4}, {_ph[0]}")
    A(f"s_mov_b64 exec, 1\nds_write_b32 v{SO}, v{ST+4}\ns_mov_b64 exec, -1")
    return _ph[0]


def l_check(A, n, delta=0, slp=1):
    l, d = uid("lc"), uid("lcd")
    if delta:
        A(f"v_add_u32 v{ST+5}, {delta}, v{SQ}")
    A.label(l)
    A(f"ds_read_b128 {v(ST,4)}, v{ST+5 if delta else SQ}\ns_waitcnt lgkmcnt(0)")
    A(f"v_min3_u32 v{ST}, v{ST}, v{ST+1}, v{ST+2}\nv_min_u32 v{ST}, v{ST}, v{ST+3}")
    A(f"v_readfirstlane_b32 s{CNT}, v{ST}")
    A(f"s_cmp_ge_u32 s{CNT}, {n}")
    A(f"s_cbranch_scc1 {d}")
    A(f"s_sleep {slp}\ns_branch {l}")
    A.label(d)


def l_check_loose(A, n, delta):
    l = uid("ll")
    A(f"v_add_u32 v{ST+5}, {delta}, v{SQ}")
    for i in range(4):
        A(f"v_mov_b32 v{ST+i}, 0")
    A.label(l)
    A(f"ds_read_b128 {v(ST,4)}, v{ST+5}\ns_sleep 1")
    A(f"v_min3_u32 v{ST+4}, v{ST}, v{ST+1}, v{ST+2}\nv_min_u32 v{ST+4}, v{ST+4}, v{ST+3}")
    A(f"v_readfirstlane_b32 s{CNT}, v{ST+4}")
    A(f"s_cmp_lt_u32 s{CNT}, {n}")
    A(f"s_cbranch_scc1 {l}")


def l_sync(A):
    l_check(A, l_arrive(A))


def aux_setup_ax(A):
    srd(A, S2, WR, size=NBW)
    srd(A, S3, WI, size=NBW)
    A(f"s_and_b32 s{T0}, s2, 31\ns_lshr_b32 s{T1}, s2, 5\ns_lshl_b32 s{T1}, s{T1}, 7\ns_add_u32 s{T0}, s{T0}, s{T1}")
    A(f"s_lshl_b32 s{T1}, s{W_}, 5\ns_add_u32 s{T7}, s{T0}, s{T1}\ns_lshl_b32 s{T0}, s{T7}, 12")
    srd(A, AX, AX, T0, 0, 0x1000)
    A("v_lshlrev_b32 v2, 4, v1\nv_xor_b32 v3, 128, v2")
    A(f"s_lshl_b32 s{T8}, s{W_}, 12\ns_add_u32 s{T8}, s{T8}, {L_AX}")


def w_addr(A, W_):
    A(f"s_and_b32 s{T0}, s2, 7\ns_bfe_u32 s{T1}, s2, 0x10003\ns_bfe_u32 s{T2}, s2, 0x20004\ns_lshr_b32 s{T3}, s2, 6")
    A(f"s_lshr_b32 s{T4}, s{T0}, 1\ns_lshl_b32 s{T4}, s{T4}, 3\ns_lshl_b32 s{T5}, s{T1}, 2\ns_add_u32 s{T4}, s{T4}, s{T5}")
    A(f"s_and_b32 s{T5}, s{T0}, 1\ns_lshl_b32 s{T5}, s{T5}, 1\ns_add_u32 s{T4}, s{T4}, s{T5}\ns_lshl_b32 s{T4}, s{T4}, 5")
    A(f"s_lshl_b32 s{T5}, s{T2}, 3\ns_add_u32 s{T4}, s{T4}, s{T5}\ns_lshl_b32 s{T5}, s{W_}, 1\ns_add_u32 s{T4}, s{T4}, s{T5}\ns_mul_i32 s{T4}, s{T4}, 1026")
    A(f"s_lshl_b32 s{T5}, s{T3}, 8\ns_add_u32 s{T9}, s{T4}, s{T5}")
    A("v_bfe_u32 v8, v1, 4, 1\nv_mul_u32_u24 v8, 32832, v8")
    A(f"v_lshrrev_b32 v9, 5, v1\ns_mov_b32 s{T5}, 1050624\nv_mul_lo_u32 v9, s{T5}, v9\nv_add_u32 v8, v8, v9")
    A(f"v_and_b32 v9, 15, v1\ns_lshl_b32 s{T5}, s{W_}, 1\nv_xor_b32 v9, s{T5}, v9")
    A("v_lshl_add_u32 v18, v9, 4, v8\nv_xor_b32 v9, 1, v9\nv_lshl_add_u32 v19, v9, 4, v8\nv_add_u32 v19, 1026, v19")


def w_sym_addr(A):
    A(f"s_bfe_u32 s{T4}, s2, 0x20005\ns_lshl_b32 s{T4}, s{T4}, 8\ns_bfe_u32 s{T5}, s2, 0x10004\ns_lshl_b32 s{T5}, s{T5}, 6\ns_add_u32 s{T4}, s{T4}, s{T5}")
    A(f"s_bfe_u32 s{T5}, s2, 0x10003\ns_lshl_b32 s{T5}, s{T5}, 7\ns_add_u32 s{T4}, s{T4}, s{T5}\ns_and_b32 s{T5}, s2, 7\ns_lshl_b32 s{T5}, s{T5}, 2\ns_add_u32 s{T4}, s{T4}, s{T5}")
    A(f"v_bfe_u32 v8, v1, 3, 2\nv_add_u32 v8, s{T4}, v8\nv_bfe_u32 v9, v1, 2, 1\nv_lshl_add_u32 v8, v9, 5, v8\nv_bfe_u32 v9, v1, 1, 1\nv_lshl_add_u32 v8, v9, 10, v8")
    A("v_sub_u32 v9, 2048, v8\nv_and_b32 v9, 2047, v9\nv_and_b32 v10, 1, v1\nv_cmp_eq_u32 vcc, 1, v10\nv_cndmask_b32 v8, v8, v9, vcc")
    A(f"v_mul_u32_u24 v17, 1026, v8\ns_lshr_b32 s{T4}, s2, 7\ns_lshl_b32 s{T4}, s{T4}, 10\nv_add_u32 v17, s{T4}, v17")


def aux_setup_w(A):
    w_addr(A, W_)
    w_sym_addr(A)


def aux_setup2(A):
    make_F(A, 92)
    make_T(A, T, 92, 0)
    make_T(A, TT, 92, 1)


def aux_issue(A, vm):
    for c in range(2):
        A(f"s_add_u32 m0, s{T8}, {c*2048}")
        A(f"s_mov_b32 s{CNT}, {c*2048}")
        for u in range(2):
            vm.op(f"buffer_load_dwordx4 v{2+c}, {r4(AX)}, s{CNT} offen offset:{u*1024}{NT} lds", "ax")


def w_tile_issue(A, vm, sbase, const, bbs=range(2)):
    for bb in bbs:
        for arr in range(2):
            A(f"s_add_u32 m0, s{sbase}, {const + bb*2048 + arr*1024}")
            vm.op(f"buffer_load_dwordx4 v{18+bb}, {r4(S2 if arr == 0 else S3)}, s{T9} offen{NT} lds" if "1" not in SK else f"buffer_load_dword v23, v2, {r4(AX)}, 0 offen offset:4092", "w")


def w_sym_issue(A):
    nw = uid("nw")
    A(f"s_cmp_lg_u32 s{W_}, {3 if not ('1' in SK or 'p' in SK) else 9}\ns_cbranch_scc1 {nw}")
    A("s_mov_b32 exec_hi, 0")
    A(f"buffer_load_ushort v{WSP}, v17, {r4(S2)}, 0 offen{NT}")
    A(f"buffer_load_ushort v{WSP+1}, v17, {r4(S3)}, 0 offen{NT}")
    A("s_mov_b64 exec, -1")
    A.label(nw)


def w_issue(A, vm):
    w_tile_issue(A, vm, T8, L_W - L_AX)
    w_sym_issue(A)


WSP, IN, D, MID, TMP = 88, 24, 40, 72, 168
DY, W, TT = 72, 104, 136
M_, SPC, CJ, SGN = T0, T1, T2, T3
AUXK = E_("AUXK", 5)
GATE = E_("GATE", 0)
WK = E_("WK", 1)
WMID = WK <= 12
WSK = E_("WSK", 8)
A1K = E_("A1K", 0)
FINE = E_("FINE", 1)
ZSK = E_("ZSK", A1K + 3 + FINE)
LATE = A1K >= 6
A2G = E_("A2G", 0)
A3G = E_("A3G", 11)
A3S = E_("A3S", 0)
ZG = E_("ZG", 0)
CTW = E_("CTW", 0)
POLLK = E_("POLLK", 15)
VTLB, VTN, VTF = E_("VTLB", 0), E_("VTN", 1), (" nt" if E_("VTF", 1) else "")
TLBW = E_("TLBW", 0)
DEFER = E_("DEFER", 2)
DK0 = E_("DK0", 0)
LPOS = E_("LPOS", 6)
BARP = E_("BARP", 1)
SWAP = E_("SWAP", 1)
WPOS = E_("WPOS", 0)
ZPOS = E_("ZPOS", -1)
WTK = E_("WTK", 3)
EARLY2 = E_("EARLY2", 1)
SNON = E_("SNON", 0)
FPOLL = E_("FPOLL", 14)
WPK = E_("WPK", -1)
WBYG = E_("WBYG", 0)
WSPLIT = E_("WSPLIT", 0)
NZS = E_("NZS", 1)
PRES = E_("PRES", 1)
NPRE = E_("NPRE", 3)
KS0 = E_("KS0", 2)
P1, P2A, P2B = E_("P1", 0), E_("P2A", 50), E_("P2B", 95)
LDEF = E_("LDEF", 0)
LSLP = E_("LSLP", 1)
WSH = E_("WSH", 1)
PRE1, PRE2 = E_("PRE1", 6), E_("PRE2", 12)
HALF = E_("HALF", 0)
WEARLY = E_("WEARLY", 0)
KA, KA0, KA1, KAG = E_("KA", 0), E_("KA0", 1), E_("KA1", 15), E_("KAG", 0)
G1X = os.environ.get("G1X", "")
WMODE = E_("WMODE", 0)
CPK = [int(x) for x in os.environ.get("CPK", "").split(",") if x]
WXT = E_("WXT", 0)
RSLP = E_("RSLP", 1)
PAL = E_("PAL", 0)
NREPA = E_("NREPA", 8)
AXT = E_("AXT", 0)
APRIO, GPRIO = E_("APRIO", 0), E_("GPRIO", 1)
FM, CM = E_("FM", 12), E_("CM", 4)
DMAP = os.environ.get("DMAP", "5,9,13,17,21,25,29,33")
CSP, CSP0, CSB, CSPH = E_("CSP", 0), E_("CSP0", 2), E_("CSB", 12), E_("CSPH", 1)
SK = os.environ.get("SK", "")
A2C = E_("A2C", 0)
LPRIO3 = E_("LPRIO3", 0)
LPRIO0 = E_("LPRIO0", 3)
LPRIO, LPRIO2 = E_('LPRIO', 0), E_('LPRIO2', 0)
L_IMG = 98304
LIMG_FREE = 2


def img(i):
    ka = 8*(i >> 2) + (i & 3)
    return (VA1, ka*1024) if i < 8 else (VA8, 0) if i == 8 else (VA2, (27 - ka)*1024)


def aux_pre_a(A):
    A(f"v_mov_b32 v{SQ}, {L_SYNC + 16}\ns_lshl_b32 s{T4}, s{W_}, 2\nv_add_u32 v{SO}, s{T4}, v{SQ}")
    A("v_and_b32 v8, 31, v1\nv_lshrrev_b32 v9, 5, v1\nv_and_b32 v10, 1, v1")
    A(f"v_lshrrev_b32 v11, 1, v8\nv_lshlrev_b32 v{VA1}, 6, v11\nv_lshl_add_u32 v{VA1}, v10, 4, v{VA1}\nv_lshl_add_u32 v{VA1}, v9, 12, v{VA1}")
    A(f"v_add_u32 v11, v11, v10\nv_lshlrev_b32 v11, 6, v11\nv_lshl_add_u32 v11, v10, 4, v11\nv_lshl_add_u32 v11, v9, 12, v11\nv_sub_u32 v{VA2}, {5120 + 48}, v11")
    for r in (VA1, VA2):
        A(f"v_bfe_u32 v11, v{r}, 7, 1\nv_lshlrev_b32 v11, 5, v11\nv_xor_b32 v{r}, v{r}, v11")
    A(f"v_add_u32 v{VA8}, 11264, v{VA2}\nv_and_b32 v{VA8}, 0x3fff, v{VA8}")
    A(f"s_add_u32 s{T4}, s{T4}, {L_IMG}")
    for r in (VA1, VA2, VA8):
        A(f"v_add_u32 v{r}, s{T4}, v{r}")
    A(f"v_bfe_u32 v11, v1, 3, 1\nv_lshlrev_b32 v11, 5, v11\nv_xor_b32 v{VLIN}, v2, v11")

    A("v_bfe_u32 v12, v1, 2, 1\nv_mul_u32_u24 v12, 2176, v12")
    A("v_bfe_u32 v13, v1, 3, 1\nv_lshl_add_u32 v12, v13, 6, v12\nv_lshl_add_u32 v12, v9, 8, v12")
    A("v_bfe_u32 v13, v1, 4, 1\nv_lshl_add_u32 v12, v13, 5, v12\nv_and_b32 v13, 3, v1\nv_lshl_add_u32 v12, v13, 3, v12")
    A(f"v_add_u32 v12, s{T8}, v12\nv_xor_b32 v13, 128, v12")
    if INOUT:
        A(f"s_lshl_b32 s{T4}, s{T7}, 14")
        srd(A, S0, OUT, T4, 0, 0x1000)
        srd(A, S1, OUT, T4, 0, 0x1000)
    else:
        A(f"s_lshl_b32 s{T4}, s2, 14\ns_lshl_b32 s{T5}, s{W_}, 12\ns_add_u32 s{T4}, s{T4}, s{T5}")
        srd(A, S0, WS, T4, WS_Z1, 0x1000)
        srd(A, S1, WS, T4, WS_Z3, 0x1000)


def aux_pre_w(A):
    A(f"v_and_b32 v14, 7, v1\nv_lshrrev_b32 v15, 3, v1\nv_xor_b32 v16, v14, v15\nv_lshlrev_b32 v16, 4, v16\nv_lshl_add_u32 v16, v14, 11, v16")
    A(f"s_lshr_b32 s{T4}, s{W_}, 1\ns_lshl_b32 s{T4}, s{T4}, 7\ns_and_b32 s{T5}, s{W_}, 1\ns_lshl_b32 s{T5}, s{T5}, 3\ns_add_u32 s{T4}, s{T4}, s{T5}\ns_add_u32 s{T4}, s{T4}, {L_W}")
    A(f"v_add_u32 v{VWR}, s{T4}, v16")
    A(f"v_lshlrev_b32 v15, {18 if INOUT else 16}, v15\nv_lshl_add_u32 v22, v14, 4, v15")
    A(f"s_lshl_b32 s{T4}, s{T3}, 7\ns_lshr_b32 s{T5}, s{W_}, 1\ns_lshl_b32 s{T5}, s{T5}, 6\ns_add_u32 s{T4}, s{T4}, s{T5}")
    A(f"s_and_b32 s{T5}, s{W_}, 1\ns_lshl_b32 s{T5}, s{T5}, 2\ns_add_u32 s{T4}, s{T4}, s{T5}\ns_mul_i32 s{T4}, s{T4}, {KS_}")
    A(f"s_lshr_b32 s{T5}, s{T0}, 2\ns_mul_i32 s{T5}, s{T5}, {ISH - 4096}\ns_add_u32 s{T4}, s{T4}, s{T5}")
    A(f"s_lshl_b32 s{T5}, s{T0}, 10\ns_add_u32 s{T4}, s{T4}, s{T5}\ns_lshl_b32 s{T5}, s{T1}, 9\ns_add_u32 s{T4}, s{T4}, s{T5}\ns_lshl_b32 s{T5}, s{T2}, 7\ns_add_u32 s{T4}, s{T4}, s{T5}")
    if INOUT:
        A(f"s_add_u32 s{T4}, s{T4}, 8192")
        srd(A, S4, OUT, T4, 0, 0x1000000, T4)
    else:
        srd(A, S4, WS, T4, WS_WT + 2*KS_, 0x400000, T4)


KNAME_ = [None]


def code_touch(A, t0):
    name = KNAME_[0]
    pc = uid("pc")
    per = 6
    A(f"s_getpc_b64 {sp(t0)}")
    A.label(pc)
    A(f"s_sub_u32 s{t0}, s{t0}, {pc}-{name}\ns_subb_u32 s{t0+1}, s{t0+1}, 0")
    A(f"s_lshr_b32 s{CNT}, s2, 3\ns_lshl_b32 s{CNT}, s{CNT}, 2\ns_add_u32 s{CNT}, s{CNT}, s{W_}\ns_mul_i32 s{CNT}, s{CNT}, {per*64}")
    A(f"s_min_u32 s{CNT}, s{CNT}, L_{name}_end-{name}-{per*64}")
    for q in range(per):
        A(f"s_load_dword s3, {sp(t0)}, s{CNT} offset:{q*64}")


def c_prefetch(A, p, done):
    A(f"s_load_dwordx4 s[8:11], s[0:1], 64")
    A(f"s_and_b32 s12, s{TJ}, 7\ns_lshl_b32 s13, s12, 7\ns_and_b32 s14, s{TI}, 3\ns_lshl_b32 s14, s14, 5\ns_add_u32 s13, s13, s14")
    A(f"s_sub_u32 s14, s{W_}, 1\ns_mul_i32 s14, s14, 11\ns_min_u32 s14, s14, 21\ns_add_u32 s13, s13, s14\ns_lshl_b32 s13, s13, 11")
    A(f"s_lshr_b32 s14, s{TJ}, 3\ns_lshl_b32 s14, s14, 10\ns_add_u32 s13, s13, s14\ns_waitcnt lgkmcnt(0)")
    A("s_add_u32 s4, s8, s13\ns_addc_u32 s5, s9, 0\ns_add_u32 s6, s10, s13\ns_addc_u32 s7, s11, 0")
    cnt = 0
    for n in range(CSP0, CSP0 + CSP):
        A(f"s_add_u32 s15, s12, {n}\ns_and_b32 s15, s15, 7\ns_lshl_b32 s15, s15, 7")
        for r in range(11):
            for arr in range(2):
                for sec in range(2):
                    A(f"s_load_dword s3, s[{4+2*arr}:{5+2*arr}], s15 offset:{r*2048 + sec*64}")
                    cnt += 1
                    if cnt % CSB == 0:
                        A(f"ds_read_b128 {v(ST,4)}, v{SQ}\ns_waitcnt lgkmcnt(0)")
                        A(f"v_min3_u32 v{ST}, v{ST}, v{ST+1}, v{ST+2}\nv_min_u32 v{ST}, v{ST}, v{ST+3}")
                        A(f"v_readfirstlane_b32 s{CNT}, v{ST}\ns_cmp_ge_u32 s{CNT}, {p}\ns_cbranch_scc1 {done}")


def c_touch(A, vm):
    A(f"s_and_b32 s{T4}, s2, 1\ns_lshl_b32 s{T4}, s{T4}, 10\ns_bfe_u32 s{CNT}, s2, 0x20001\ns_lshl_b32 s{CNT}, s{CNT}, 19\ns_add_u32 s{T4}, s{T4}, s{CNT}")
    A(f"s_lshr_b32 s{CNT}, s2, 3\ns_lshl_b32 s{CNT}, s{CNT}, 14\ns_add_u32 s{T4}, s{T4}, s{CNT}")
    A(f"s_lshr_b32 s{CNT}, s{W_}, 1\ns_lshl_b32 s{CNT}, s{CNT}, 13\ns_add_u32 s{T4}, s{T4}, s{CNT}")
    A(f"v_bfe_u32 v22, v1, 3, 2\nv_lshlrev_b32 v22, 11, v22\nv_and_b32 v23, 7, v1\nv_lshl_add_u32 v22, v23, 7, v22\nv_add_u32 v22, s{T4}, v22")
    A("s_mov_b32 exec_hi, 0")
    vm.op(f"global_load_dword v23, v22, s[100:101]", "touch")
    A("s_mov_b64 exec, -1")


def flag_poll(A, flg):
    A(f"s_lshl_b32 s{T4}, s2, 2\ns_add_u32 s{T4}, s{T4}, s{W_}\ns_lshr_b32 s{T4}, s{T4}, 4\ns_lshl_b32 s{T4}, s{T4}, 7\ns_add_u32 s{T4}, s{T4}, {flg}")
    A(f"s_add_u32 s24, s{WS}, s{T4}\ns_addc_u32 s25, s{WS+1}, 0")
    A(f"s_load_dwordx16 s[4:19], s[24:25], 0x0 glc")


def flag_wait(A):
    late, go, pl_ = uid("late"), uid("go"), uid("sp")
    A(f"s_mov_b32 s26, s{NONCE}\ns_mov_b32 s27, s{NONCE}\ns_mov_b32 s{CNT}, 0\ns_branch {pl_}")
    A.label(late)
    A(f"s_add_u32 s{CNT}, s{CNT}, 1\ns_cmp_ge_u32 s{CNT}, {SPIN_MAX}\ns_cbranch_scc1 {go}")
    A(f"s_sleep 8\ns_load_dwordx16 s[4:19], s[24:25], 0x0 glc")
    A.label(pl_)
    A("s_waitcnt lgkmcnt(0)")
    for q in range(8):
        A(f"s_cmp_eq_u64 s[{4+2*q}:{5+2*q}], s[26:27]\ns_cbranch_scc0 {late}")
    A.label(go)


RR = lambda arr, kind: 104 + (arr*4 + kind)*2


VWR = 21


def wt_read(A, fin=True):
    for arr in range(2):
        for kind in range(4):
            A(f"ds_read_b64 {v(RR(arr,kind),2)}, v{VWR} offset:{arr*1024 + kind*256}")


def wt_sym(A):
    A(f"s_mov_b32 s{T4}, 0x05040100\ns_mov_b32 s{T5}, 0x07060302")
    A(f"v_lshlrev_b32 v{WSP}, 16, v{WSP}\nv_lshlrev_b32 v{WSP+1}, 16, v{WSP+1}\nv_lshlrev_b32 v23, 1, v1")
    A(f"v_add_f32_dpp v{WSP+2}, v{WSP}, v{WSP} quad_perm:[1,0,3,2] row_mask:0xf bank_mask:0xf")
    A(f"v_subrev_f32_dpp v{WSP+3}, v{WSP+1}, v{WSP+1} quad_perm:[1,0,3,2] row_mask:0xf bank_mask:0xf")
    A(f"v_mul_f32 v{WSP+2}, 0.5, v{WSP+2}\nv_mul_f32 v{WSP+3}, 0.5, v{WSP+3}")
    A(f"v_cvt_pk_bf16_f32 v{WSP}, v{WSP+2}, v{WSP+3}")


def wt_perm(A):
    for kap in range(4):
        o = 120 + 4*kap
        for e in range(2):
            for h2 in range(2):
                kind = e + 2*h2
                A(f"v_perm_b32 v{o+2*e+h2}, v{RR(1,kind)+kap//2}, v{RR(0,kind)+kap//2}, s{T4 + kap % 2}")


def wt_store(A, vm):
    nw = uid("nw")
    A(f"s_cmp_lg_u32 s{W_}, 3\ns_cbranch_scc1 {nw}")
    A(f"s_lshr_b32 s{T4}, s2, 7\ns_mul_i32 s{T4}, s{T4}, {KS_}\ns_bfe_u32 s{T5}, s2, 0x10006\ns_mul_i32 s{T5}, s{T5}, {ISH}\ns_add_u32 s{T4}, s{T4}, s{T5}")
    A(f"s_and_b32 s{T5}, s2, 63\ns_lshl_b32 s{T5}, s{T5}, 6\ns_add_u32 s{T4}, s{T4}, s{T5}")
    srd(A, 4, WS, T4, WS_WT, 64)
    A("s_mov_b32 exec_lo, 0x55555555\ns_mov_b32 exec_hi, 0")
    if not E_("SKIPS", 0):
        A(f"buffer_store_dword v{WSP}, v23, {r4(4)}, 0 offen sc1")
    A("s_mov_b64 exec, -1")
    A.label(nw)
    for kap in range(0 if "2" in SK else 4):
        A(f"s_mov_b32 s{CNT}, {kap*KS_}")
        vm.op(f"buffer_store_dwordx4 {v(120+4*kap,4)}, v22, {r4(S4)}, s{CNT} offen sc1", "wst")


def a1_stores(A, vm):
    for u in range(0 if "3" in SK else 4):
        vm.op(f"buffer_store_dwordx4 {v(MID+4*u,4)}, v2, {r4(S0)}, 0 offen offset:{u*1024} sc1", "zst")
    if WMODE == 0 and WTK == ZPOS:
        wt_store(A, vm)


def a1_task(A, vm):
    vm.wait_for("ax")
    trace(A, 0, 2)
    for s_ in range(4):
        for u in range(2):
            A(f"ds_read_b64_tr_b16 {v(IN+4*s_+2*u,2)}, v{12+u} offset:{s_*512}")
    A("s_waitcnt lgkmcnt(0)")
    stage1(A, IN, D)
    twiddle(A, D, MID, TMP)
    stage2(A, MID, D)
    A(f"s_lshl_b32 s{CNT}, s{W_}, 12\ns_add_u32 s{CNT}, s{CNT}, {L_IMG}\nv_add_u32 v8, s{CNT}, v{VLIN}")
    for i in range(16):
        A(f"v_cvt_pk_bf16_f32 v{MID+i}, v{D+i}, v{D+16+i}")
        a, o = img(i)
        A(f"ds_write_b32 v{a}, v{MID+i} offset:{o}")
    trace(A, 0, 3)
    if WMODE == 0 and WPK < 0:
        if WBYG:
            A("s_waitcnt vmcnt(0)")
            l_check(A, 1, RING_LG - 16)
        else:
            vm.wait_for("w")
    A("s_waitcnt lgkmcnt(0)")
    l_sync(A)
    trace(A, 0, 4)
    for u in range(4):
        A(f"ds_read_b128 {v(MID+4*u,4)}, v8 offset:{u*1024}")
    if WMODE == 0 and WPK < 0:
        wt_read(A)
    for r in (VA1, VA2, VA8):
        A(f"v_add_u32 v{r}, {L_AX - L_IMG}, v{r}")
    A("s_waitcnt lgkmcnt(0)")
    p = l_arrive(A)
    assert p == LIMG_FREE
    if NZS:
        nn = uid("nn")
        A(f"s_lshl_b32 s{CNT}, s2, 3\ns_add_u32 s{CNT}, s{CNT}, s{WAVE}\ns_cmp_lg_u32 s{CNT}, 4\ns_cbranch_scc1 {nn}")
        A(f"s_add_u32 s3, s3, 1\ns_cmp_eq_u32 s3, 0\ns_cselect_b32 s3, 1, s3")
        A(f"s_atomic_swap s3, {sp(DBG)}, 0x0\ns_atomic_swap s3, {sp(WS)}, {hex(WS_NONCE)}")
        A.label(nn)
    if WMODE == 0 and WPK < 0:
        wt_sym(A)
        wt_perm(A)
    if EARLY2:
        make_T(A, TT, 92, 1)
        a2_setup(A)
    if ZPOS < 0:
        a1_stores(A, vm)
    trace(A, 0, 5)


def a2_setup(A):
    A(f"s_and_b32 s{M_}, s2, 7\ns_lshl_b32 s{M_}, s{M_}, 5\ns_lshr_b32 s{T4}, s2, 3\ns_add_u32 s{M_}, s{M_}, s{T4}")
    A(f"s_lshr_b32 s{T4}, s{W_}, 1\ns_xor_b32 s{T4}, s{T4}, s{W_}\ns_and_b32 s{T4}, s{T4}, 1")
    A(f"s_or_b32 s{T5}, s{T4}, s{M_}\ns_cmp_eq_u32 s{T5}, 0\ns_cselect_b32 s{SPC}, 1, 0")
    A(f"s_lshl_b32 s{T5}, s{M_}, 1\ns_add_u32 s{T4}, s{T4}, s{T5}")
    A(f"s_mul_i32 s{T4}, s{T4}, {KS_}\ns_add_u32 s{T4}, s{T4}, {8192 if INOUT else WS_WT + 2*KS_}")
    A(f"s_lshr_b32 s{T5}, s{W_}, 1\ns_mul_i32 s{T9}, s{T5}, {KS_}\ns_add_u32 s{T9}, s{T9}, {WS_WT}")
    A(f"s_cmp_eq_u32 s{SPC}, 1\ns_cselect_b32 s{T4}, s{T9}, s{T4}\ns_cselect_b32 s{T5}, 0, s{T5}")
    A(f"s_cselect_b32 s{MSK}, s{WS}, s{OUT if INOUT else WS}\ns_cselect_b32 s{MSK+1}, s{WS+1}, s{(OUT if INOUT else WS)+1}")
    A(f"s_lshl_b32 s{CJ}, s{T5}, 31\ns_or_b32 s{SGN}, s{CJ}, 0x3f800000")
    srd(A, S2, MSK, T4, 0, ISH + 4096)
    if INOUT:
        A(f"s_lshl_b32 s{T4}, s{W_}, 22\ns_lshr_b32 s{T5}, s{M_}, 6\ns_lshl_b32 s{T5}, s{T5}, 19\ns_add_u32 s{T4}, s{T4}, s{T5}")
        A(f"s_and_b32 s{T5}, s{M_}, 63\ns_lshl_b32 s{T5}, s{T5}, 6\ns_add_u32 s{T4}, s{T4}, s{T5}")
        srd(A, S3, OUT, T4, 0, 160*16384, T5)
        srd(A, S4, OUT, T4, 0, 160*16384, T5)
    else:
        A(f"s_lshl_b32 s{T4}, s{W_}, 20\ns_lshl_b32 s{T5}, s{M_}, 6\ns_add_u32 s{T4}, s{T4}, s{T5}")
        assert WS_Z1 == WS_Z3
        srd(A, S3, WS, T4, WS_Z1, 0x100000, T5)
    A("v_lshrrev_b32 v8, 2, v1\nv_lshlrev_b32 v8, 14, v8\nv_and_b32 v9, 3, v1\nv_lshrrev_b32 v10, 4, v1\nv_xor_b32 v9, v9, v10\nv_lshl_add_u32 v14, v9, 4, v8")
    A(f"v_and_b32 v8, 31, v1\nv_bfe_u32 v9, v1, 2, 2\nv_xor_b32 v9, s{W_}, v9\nv_lshlrev_b32 v9, 4, v9\nv_lshl_add_u32 v9, v8, 6, v9")
    A(f"v_lshrrev_b32 v8, 5, v1\nv_lshl_add_u32 v9, v8, 11, v9\nv_add_u32 v15, {L_AX}, v9")
    A(f"s_lshl_b32 s{T4}, s{W_}, 13\ns_add_u32 s{T4}, s{T4}, {L_AX}\nv_add_u32 v16, s{T4}, v2")
    A(f"s_xor_b32 s{T5}, s{T4}, {3 << 13}\ns_cmp_eq_u32 s{SPC}, 1\ns_cselect_b32 s{T5}, s{T4}, s{T5}\nv_add_u32 v17, s{T5}, v2")
    A(f"v_add_u32 v18, s{T8}, v2")
    A(f"s_lshr_b32 s{T4}, s{W_}, 1\ns_xor_b32 s{T4}, s{T4}, s{W_}\ns_and_b32 s{T4}, s{T4}, 1\ns_lshl_b32 s{T9}, s{T4}, 13\ns_add_u32 s{T9}, s{T9}, {L_W}\nv_add_u32 v19, s{T9}, v2")
    for kk in range(32):
        A(f"v_mul_f32 v{TT+kk}, s{SGN}, v{TT+kk}")


ZU = lambda u: (16*(u & 1) + 128*(u >> 1))*16384 if INOUT else u << 18


def a2_loads(A, z=True, w=True):
    for u in range(4 if z and '5' not in SK else 0):
        A(f"s_add_u32 m0, s{T8}, {u*1024}\ns_mov_b32 s{T4}, {ZU(u)}")
        A(f"buffer_load_dwordx4 v14, {r4(S3)}, s{T4} offen sc1 lds")
    if WSH:
        a, b = uid("ws"), uid("wd")
        A(f"s_cmp_eq_u32 s{SPC}, 1\ns_cbranch_scc1 {a}")
        A(f"s_lshr_b32 s{T4}, s{W_}, 1\ns_lshl_b32 s{T5}, s{T4}, 12\ns_mul_i32 s{T4}, s{T4}, {ISH}\ns_add_u32 m0, s{T9}, s{T5}")
        for u in range(4):
            A(f"buffer_load_dwordx4 v2, {r4(S2)}, s{T4} offen offset:{u*1024} sc1 lds")
        A(f"s_waitcnt vmcnt(0)\ns_branch {b}")
        A.label(a)
    A(f"s_movk_i32 s{T4}, {ISH}")
    for it in range(8 if w and '4' not in SK else 0):
        A(f"buffer_load_dwordx4 {v(W+4*it,4)}, v2, {r4(S2)}, {'0' if it < 4 else f's{T4}'} offen offset:{(it & 3)*1024} sc1")
    if WSH:
        A.label(b)


PH_RES = 18


def phase_atomic(A, cnt, p):
    x = uid("ph")
    A(f"s_cmp_lg_u32 s{W_}, 0\ns_cbranch_scc1 {x}")
    l_check(A, p)
    A(f"s_and_b32 s{T4}, s2, 15\ns_lshl_b32 s{T5}, s{T4}, 7\ns_add_u32 s{T5}, s{T5}, {cnt}")
    A(f"s_add_u32 s{MSK}, s{WS}, s{T5}\ns_addc_u32 s{MSK+1}, s{WS+1}, 0\ns_mov_b32 s{PH_RES}, 1")
    A(f"s_atomic_add s{PH_RES}, {sp(MSK)}, 0x0 glc")
    A.label(x)


def phase_last(A, flg, wait=True, nrep=None):
    y = uid("sg")
    A(f"s_cmp_lg_u32 s{W_}, 0\ns_cbranch_scc1 {y}")
    A(f"s_and_b32 s{T4}, s2, 15\ns_lshl_b32 s{T4}, s{T4}, 2\ns_add_u32 s{T4}, s{T4}, {flg}")
    A(f"s_add_u32 s4, s{WS}, s{T4}\ns_addc_u32 s5, s{WS+1}, 0")
    A("s_waitcnt lgkmcnt(0)")
    A(f"s_cmp_lg_u32 s{PH_RES}, 15\ns_cbranch_scc1 {y}")
    for r in range(nrep or NREP):
        A(f"s_atomic_swap s{NONCE}, s[4:5], {hex(r*128)}")
    if wait:
        A("s_waitcnt lgkmcnt(0)")
    A.label(y)


def phase_wait(A, flg, tb, nrep=None):
    x, pl_, nok = uid("ph"), uid("sp"), uid("nok")
    A(f"s_cmp_lg_u32 s{W_}, 0\ns_cbranch_scc1 {x}")
    A(f"s_and_b32 s{T4}, s2, {(nrep or NREP) - 1}\ns_lshl_b32 s{T4}, s{T4}, 7\ns_add_u32 s{T4}, s{T4}, {flg}")
    A(f"s_add_u32 s{MSK}, s{WS}, s{T4}\ns_addc_u32 s{MSK+1}, s{WS+1}, 0\ns_mov_b32 s{T4}, s{NONCE}\ns_mov_b32 s{T5}, s{NONCE}\ns_mov_b32 s{CNT}, 0")
    A(f"s_branch {pl_}")
    A.label(nok)
    A(f"s_add_u32 s{CNT}, s{CNT}, 1\ns_cmp_ge_u32 s{CNT}, {SPIN_MAX}\ns_cbranch_scc1 {x}")
    if SLP_A:
        A(f"s_sleep {SLP_A}")
    A.label(pl_)
    A(f"s_load_dwordx16 s[4:19], {sp(MSK)}, 0x0 glc\ns_waitcnt lgkmcnt(0)")
    for q in range(8):
        A(f"s_cmp_eq_u64 s[{4+2*q}:{5+2*q}], {sp(T4)}\ns_cbranch_scc0 {nok}")
    if TRACE:
        A(f"v_writelane_b32 v0, s{CNT}, {tb}")
    A.label(x)
    p2 = l_arrive(A)
    if CSP and flg == (FLG_A if CSPH == 0 else FLG_B):
        dn = uid("csp")
        A(f"s_cmp_eq_u32 s{W_}, 0\ns_cbranch_scc1 {dn}")
        c_prefetch(A, p2, dn)
        A.label(dn)
    l_check(A, p2, slp=LSLP)


def aux_rest(A, vm):
    def phase(cnt, flg, young=0):
        trace(A, 0, 48)
        A(f"s_waitcnt vmcnt({young})")
        trace(A, 0, 49)
        p = l_arrive(A)
        phase_atomic(A, cnt, p)
        phase_last(A, flg)
        trace(A, 0, 50)
        phase_wait(A, flg, 62)
        trace(A, 0, 51)
    if ZPOS >= 11:
        phase(CNT_A, FLG_A)
    elif FPOLL:
        flag_wait(A)
    else:
        phase_wait(A, FLG_A, 61, 64)
    trace(A, 0, 7)
    A(f"s_setprio {LPRIO2}")
    if A2G:
        l_check(A, A2G % 100, RING_D - 16 if A2G < 100 else -16)
    if CTW == 2:
        c_touch(A, vm)
    trace(A, 0, 8)
    a2_loads(A)
    mark(A, 7)
    A(f"s_waitcnt vmcnt({0 if '4' in SK else 8})")
    trace(A, 0, 9)
    if E_("AM", 0) in (1, 2):
        mark(A, 1)
    l_sync(A)
    trace(A, 0, 10)
    INS = 72
    for s_ in range(4):
        A(f"ds_read_b128 {v(INS+4*s_,4)}, v15 offset:{s_*4096}")
    if WSH:
        a = uid("wr")
        A(f"s_cmp_eq_u32 s{SPC}, 1\ns_cbranch_scc1 {a}")
        for it in range(8):
            A(f"ds_read_b128 {v(W+4*it,4)}, v19 offset:{it*1024}")
        A.label(a)
    A("s_waitcnt lgkmcnt(0)")
    if E_("AM", 0) == 2:
        mark(A, 2)
    p6 = l_arrive(A)
    if A2C:
        l_check(A, A2C, -16)
    A(f"s_lshl_b32 s{T4}, s{SPC}, 31\ns_or_b32 s{T4}, s{T4}, s{CJ}")
    fl, nwr = uid("fft"), uid("nwr")
    A.label(fl)
    for i in range(16):
        A(f"v_xor_b32 v{IN+i}, s{T4}, v{INS+i}")

    def pre(rng):
        for i in rng:
            w, rho, sg = W + 2*i, TT + i, TT + 16 + i
            r1, i1, r2, i2, Ar, Ai = (TMP + 8 + c for c in range(6))
            A(f"v_lshlrev_b32 v{r1}, 16, v{w}\nv_and_b32 v{i1}, 0xffff0000, v{w}")
            A(f"v_lshlrev_b32 v{r2}, 16, v{w+1}\nv_and_b32 v{i2}, 0xffff0000, v{w+1}")
            A(f"v_add_f32 v{Ar}, v{r1}, v{r2}\nv_add_f32 v{Ai}, v{i1}, v{i2}")
            A(f"v_sub_f32 v{r1}, v{r1}, v{r2}\nv_sub_f32 v{i1}, v{i1}, v{i2}")
            A(f"v_mul_f32 v{w}, v{rho}, v{r1}\nv_mul_f32 v{w+1}, v{rho}, v{i1}")
            A(f"v_fma_f32 v{rho}, v{sg}, v{r1}, v{Ar}\nv_fma_f32 v{sg}, v{sg}, v{i1}, v{Ai}")

    def once(rng):
        a = uid("once")
        A(f"s_cmp_eq_u32 s{SPC}, 2\ns_cbranch_scc1 {a}\ns_waitcnt vmcnt(0)")
        pre(rng)
        A.label(a)
    stage1(A, IN, D)
    once(range(0, PRE1))
    twiddle(A, D, IN, TMP)
    stage2(A, IN, D)
    once(range(PRE1, PRE2))
    l_check(A, p6)
    if E_("AM", 0) == 2:
        mark(A, 5)
    A(f"s_cmp_eq_u32 s{SPC}, 2\ns_cbranch_scc1 {nwr}")
    for c in range(8):
        A(f"ds_write_b128 v16, {v(D+4*c,4)} offset:{c*1024}")
    A(f"s_cmp_eq_u32 s{SPC}, 0\ns_cbranch_scc1 {nwr}")
    A(f"s_mov_b32 s{SPC}, 2\ns_mov_b32 s{T4}, 0\ns_branch {fl}")
    A.label(nwr)
    pre(range(PRE2, min(16, PRE2 + 2)))
    A("s_waitcnt lgkmcnt(0)")
    p7 = l_arrive(A)
    pre(range(min(16, PRE2 + 2), 16))

    def own(rng):
        for i in rng:
            Xr, Xi, mr, mi, t = D+i, D+16+i, TT+i, TT+16+i, TMP + (i & 1)
            A(f"v_mul_f32 v{t}, v{mi}, v{Xi}\nv_mul_f32 v{Xi}, v{mr}, v{Xi}")
            A(f"v_fmac_f32 v{Xi}, v{mi}, v{Xr}\nv_fma_f32 v{Xr}, v{mr}, v{Xr}, -v{t}")
    own(range(0, 6))
    l_check(A, p7)
    for c in range(8):
        A(f"ds_read_b128 {v(DY+4*c,4)}, v17 offset:{c*1024}")
    own(range(6, 16))
    A("s_waitcnt lgkmcnt(0)")
    if E_("AM", 0) in (1, 2):
        mark(A, 4)
    p8 = l_arrive(A)
    for i in range(16):
        Pr, Pi, Yr, Yi, gr, gi = D+i, D+16+i, DY+i, DY+16+i, W+2*i, W+2*i+1
        A(f"v_fma_f32 v{Pr}, -v{gr}, v{Yi}, v{Pr}\nv_fmac_f32 v{Pi}, v{gr}, v{Yr}")
        A(f"v_fma_f32 v{Pr}, -v{gi}, v{Yr}, v{Pr}\nv_fma_f32 v{Pi}, -v{gi}, v{Yi}, v{Pi}")
        A(f"v_cvt_pk_bf16_f32 v{IN+i}, v{Pi}, v{Pr}")
    if E_("AM", 0) == 2:
        mark(A, 6)
    stage1(A, IN, D)
    twiddle(A, D, IN, TMP)
    stage2(A, IN, D)
    A(f"s_lshr_b32 s{T4}, s{CJ}, 16")
    l_check(A, p8)
    for s_ in range(4):
        for r in range(4):
            i = 4*s_ + r
            A(f"v_cvt_pk_bf16_f32 v{IN+i}, v{D+i}, v{D+16+i}\nv_xor_b32 v{IN+i}, s{T4}, v{IN+i}")
        A(f"ds_write_b128 v15, {v(IN+4*s_,4)} offset:{s_*4096}")
    A("s_waitcnt lgkmcnt(0)")
    if E_("AM", 0) == 2:
        mark(A, 7)
    l_sync(A)
    for u in range(4):
        A(f"ds_read_b128 {v(IN+4*u,4)}, v18 offset:{u*1024}")
    for u in range(4):
        A(f"s_mov_b32 s{T4}, {ZU(u)}\ns_waitcnt lgkmcnt({3-u})")
        if "6" not in SK:
            A(f"buffer_store_dwordx4 {v(IN+4*u,4)}, v14, {r4(S3)}, s{T4} offen sc1")
    trace(A, 0, 11)
    if E_("AM", 0) != 3 and not E_("GM", 0):
        mark(A, 3)
    A(f"s_lshl_b32 s{T4}, s{T7}, 14")
    srd(A, S0, OUT, T4, 0, 0x4000)
    A("v_and_b32 v8, 31, v1\nv_lshrrev_b32 v9, 5, v1\nv_lshlrev_b32 v14, 2, v8\nv_lshl_add_u32 v14, v9, 9, v14")
    A(f"s_mov_b32 s{T4}, 0x35000000")
    for k in range(32):
        A(f"v_mul_f32 v{T+k}, s{T4}, v{T+k}")
    phase(CNT_B, FLG_B)
    A(f"s_setprio {LPRIO3}")
    if A3G:
        l_check(A, A3G, -16)
    trace(A, 0, 12)
    if E_("AM", 0) != 3:
        mark(A, 8)
    A(f"s_mov_b32 m0, s{T8}")
    for u in range(4):
        if "7" not in SK:
            A(f"buffer_load_dwordx4 v{VLIN}, {r4(S1)}, 0 offen offset:{u*1024} sc1 lds")
    A("s_waitcnt vmcnt(0)")
    trace(A, 0, 13)
    l_sync(A)
    for i in range(16):
        a, o = img(i)
        A(f"ds_read_b32 v{IN+i}, v{a} offset:{o}")
    A("s_waitcnt lgkmcnt(0)")
    stage1(A, IN, D)
    twiddle(A, D, IN, TMP)
    stage2(A, IN, D)
    A(f"s_movk_i32 s{T4}, 0x2000")
    O = 72
    for part in range(2 if A3S else 1):
        if part == 1:
            l_check(A, A3S, -16)
        for i in range(16):
            o = O + 2*i
            if part == 0:
                A(f"v_cvt_pk_bf16_f32 v{o+1}, v{D+16+i}, v{D+i}")
                A(f"v_lshlrev_b32 v{o}, 16, v{o+1}\nv_and_b32 v{o+1}, 0xffff0000, v{o+1}")
            off = (i >> 2)*1024 + (i & 3)*128
            if "8" not in SK and (part == 1 or not A3S):
                A(f"buffer_store_dword v{o}, v14, {r4(S0)}, 0 offen offset:{off}{OST}")
                A(f"buffer_store_dword v{o+1}, v14, {r4(S0)}, s{T4} offen offset:{off}{OST}")


def cmul_sq(A, d, a, t):
    A(f"v_mul_f32 {v(t)}, {v(a+1)}, {v(a+1)}")
    A(f"v_mul_f32 {v(t+1)}, {v(a)}, {v(a+1)}")
    A(f"v_fma_f32 {v(d)}, {v(a)}, {v(a)}, -{v(t)}")
    A(f"v_add_f32 {v(d+1)}, {v(t+1)}, {v(t+1)}")


def horner(A, dr, di, L, pr, pi, er, ei, t):
    assert dr not in (pr, pi) and di not in (pr, pi)
    A(f"v_fma_f32 {v(t)}, {v(L)}, {v(pr)}, {v(er)}")
    A(f"v_fma_f32 {v(t+1)}, {v(L)}, {v(pi)}, {v(ei)}")
    A(f"v_fma_f32 {v(dr)}, -{v(L+1)}, {v(pi)}, {v(t)}")
    A(f"v_fma_f32 {v(di)}, {v(L+1)}, {v(pr)}, {v(t+1)}")


RING_D, RING_LG, RING_LA = 32, 48, 64


def dma_setup(A, swt, swp, RV, t, ta, tb):
    l5, a, b_, c, d, e = (t + i for i in range(6))
    A(f"v_lshrrev_b32 v{l5}, 5, v1\nv_bfe_u32 v{a}, v1, 3, 2\nv_and_b32 v{b_}, 1, v{a}\nv_lshrrev_b32 v{c}, 1, v{a}")
    A(f"v_lshlrev_b32 v{d}, 4, v{l5}\nv_lshl_add_u32 v{d}, v{b_}, 3, v{d}\nv_add_u32 v{d}, v{d}, v{c}")
    A(f"s_lshl_b32 s{ta}, s{swt}, 6\ns_lshl_b32 s{tb}, s{swp}, 2\ns_add_u32 s{ta}, s{ta}, s{tb}")
    A(f"v_add_u32 v{d}, s{ta}, v{d}\nv_lshlrev_b32 v{d}, 11, v{d}")
    A(f"s_lshl_b32 s{ta}, s{swt}, 5")
    A(f"v_lshl_add_u32 v{e}, v{l5}, 3, v{a}\nv_add_u32 v{e}, s{ta}, v{e}\nv_lshlrev_b32 v{e}, 11, v{e}")
    A(f"v_and_b32 v{b_}, 7, v1\nv_lshrrev_b32 v{c}, 4, v1\nv_xor_b32 v{b_}, v{b_}, v{c}\nv_lshlrev_b32 v{b_}, 4, v{b_}\nv_xor_b32 v{c}, 64, v{b_}")
    A(f"v_add_u32 v{RV}, v{d}, v{b_}\nv_add_u32 v{RV+1}, v{d}, v{c}\nv_add_u32 v{RV+1}, {32*2048 - 1024}, v{RV+1}")
    A(f"v_add_u32 v{RV+2}, v{e}, v{b_}\nv_add_u32 v{RV+3}, v{e}, v{c}\nv_add_u32 v{RV+3}, {16*2048 - 1024}, v{RV+3}")


def make_piece(A, vm, RA, RB, ROT, M0B, SOF, RV):
    def piece(k, n):
        slot, u = k % NS, n & 3
        if n == 0:
            A(f"s_add_u32 s{SOF}, s{ROT}, {k*128}\ns_and_b32 s{SOF}, s{SOF}, 0x7ff")
            A(f"s_add_u32 s{SOF+1}, s{SOF}, 2048\ns_add_u32 s{SOF+2}, s{SOF}, 6144")
        if u == 0:
            A(f"s_add_u32 m0, s{M0B}, {slot*32768 + (n >> 2)*16384}")
        so = SOF if u < 2 else SOF + 1 + (n >> 2)
        if ("a" in G1X and 0 < n < 4) or ("b" in G1X and n > 4):
            return
        vm.op(f"buffer_load_dwordx4 v{RV + 2*(n >> 2) + (u & 1)}, {r4(RA if n < 4 else RB)}, s{so} offen offset:{u*1024} lds", ("st", k))
    return piece


def rot_setup(A, ROT, t):
    A(f"s_mul_i32 s{ROT}, s{TI}, {RI*128}\ns_mul_i32 s{t}, s{TJ}, {RJ*128}\ns_add_u32 s{ROT}, s{ROT}, s{t}")


def aux_waves(A, name, kidx):
    A(f"s_sub_u32 s{W_}, s{WAVE}, 4")
    A(f"s_setprio {APRIO}")
    if BARP == 0:
        A("s_barrier")
    A("s_waitcnt lgkmcnt(0)")
    A(f"s_mov_b32 s100, s{CRE}\ns_mov_b32 s101, s{CRE+1}")
    A(f"s_bitcmp1_b32 s{W_}, 0\ns_cselect_b32 s100, s{CIM}, s{CRE}\ns_cselect_b32 s101, s{CIM+1}, s{CRE+1}")
    trace_init(A, 0)
    vm = VmCounter(A)
    if CODEPF:
        pf, pc = uid("pf"), uid("pc")
        A(f"s_cmp_lg_u32 s{W_}, 1")
        A(f"s_cbranch_scc1 {pf}")
        A(f"s_lshr_b32 s{T0}, s2, 3\ns_lshl_b32 s{T0}, s{T0}, 11\nv_and_b32 v12, 15, v1\nv_lshl_add_u32 v12, v12, 7, s{T0}")
        A(f"v_min_u32 v12, L_{name}_end-{name}, v12")
        A(f"s_getpc_b64 {sp(T0)}")
        A.label(pc)
        A(f"s_sub_u32 s{T0}, s{T0}, {pc}-{name}\ns_subb_u32 s{T1}, s{T1}, 0")
        A(f"global_load_dword v23, v12, {sp(T0)}")
        A.label(pf)
    nn = uid("nn")
    A(f"s_lshl_b32 s{T0}, s2, 3\ns_add_u32 s{T0}, s{T0}, s{WAVE}\ns_cmp_lg_u32 s{T0}, 4")
    A(f"s_cbranch_scc1 {nn}")
    A(f"s_load_dword s3, {sp(WS)}, {WS_NONCE}")
    if not NZS:
        A(f"v_mov_b32 v22, 0\nv_lshlrev_b32 v23, 7, v1\nv_add_u32 v23, {WS_CNT}, v23")
        A(f"global_store_dword v23, v22, {sp(WS)} sc1")
    A.label(nn)

    def clear_counters():
        nn = uid("nz")
        A(f"s_cmp_lg_u32 s2, 0\ns_cbranch_scc1 {nn}")
        A(f"s_lshl_b32 s24, s{W_}, 10\ns_add_u32 s24, s24, {WS_CNT}\ns_add_u32 s24, s{WS}, s24\ns_addc_u32 s25, s{WS+1}, 0\ns_mov_b32 s26, 0")
        for r in range(8):
            A(f"s_atomic_swap s26, s[24:25], {hex(r*128)}")
        A.label(nn)

    def publish_nonce(young):
        nn = uid("nn")
        A(f"s_lshl_b32 s{CNT}, s2, 3\ns_add_u32 s{CNT}, s{CNT}, s{WAVE}\ns_cmp_lg_u32 s{CNT}, 4")
        A(f"s_cbranch_scc1 {nn}")
        A(f"s_waitcnt vmcnt({young}) lgkmcnt(0)")
        A(f"s_add_u32 s3, s3, 1\ns_cmp_eq_u32 s3, 0\ns_cselect_b32 s3, 1, s3")
        A(f"v_mov_b32 v11, s3\nv_mov_b32 v10, 0")
        A(f"s_mov_b64 exec, 1\nglobal_store_dword v10, v11, {sp(DBG)} sc1")
        A(f"global_store_dword v10, v11, {sp(WS)} offset:{WS_NONCE}\ns_mov_b64 exec, -1")
        A.label(nn)
    if NOAUX:
        if BARP:
            A("s_barrier")
        assert not NZS
        publish_nonce(0)
        if CTW:
            for _ in range(E_("CTD", 100)):
                A("s_sleep 1")
            c_touch(A, vm)
        A("s_endpgm")
        return
    RA, RB, ROT, M0B, SOF, RV = 12, 20, 16, 17, 8, 176
    piece = make_piece(A, vm, RA, RB, ROT, M0B, SOF, RV)

    def loader_setup():
        A(f"s_lshl_b32 s{T4}, s{TI}, 18\ns_lshl_b32 s{T5}, s{TJ}, 17")
        srd(A, RA, BX, T4, 0, 0x40000)
        A(f"s_bitcmp1_b32 s{W_}, 0\ns_cselect_b32 s8, s{BIM}, s{BRE}\ns_cselect_b32 s9, s{BIM+1}, s{BRE+1}")
        srd(A, RB, 8, T5, 0, 0x20000)
        rot_setup(A, ROT, T4)
        A(f"s_lshl_b32 s{M0B}, s{W_}, 12")
        A(f"s_lshr_b32 s{T4}, s{W_}, 1\ns_and_b32 s{T5}, s{W_}, 1")
        dma_setup(A, T4, T5, RV, 96, CNT, 19)
    aux_setup_ax(A)
    aux_issue(A, vm)
    if WMODE == 0 and WPOS == 0 and not WBYG:
        aux_setup_w(A)
        if WSPLIT:
            w_tile_issue(A, vm, T8, L_W - L_AX, [0])
        else:
            w_issue(A, vm)
    if NZS:
        clear_counters()
    if BARP == 1:
        A("s_barrier")
    trace(A, 0, 0)
    make_F(A, 92)
    if WSPLIT == 1:
        w_tile_issue(A, vm, T8, L_W - L_AX, [1])
        w_sym_issue(A)
        if BARP == 2:
            A("s_barrier")
    if WMODE == 0 and WPOS == 1:
        aux_setup_w(A)
        w_issue(A, vm)
    make_T(A, T, 92, 0)
    if WSPLIT == 2:
        w_tile_issue(A, vm, T8, L_W - L_AX, [1])
        w_sym_issue(A)
        if BARP == 2:
            A("s_barrier")
    if WMODE == 0 and WPOS == 2:
        aux_setup_w(A)
        w_issue(A, vm)
    if WBYG:
        w_addr(A, W_)
        w_sym_addr(A)
        w_sym_issue(A)
    aux_pre_a(A)
    if WMODE == 0:
        aux_pre_w(A)
    if PRES:
        loader_setup()
    if not NZS:
        publish_nonce(len(vm.issued))
    trace(A, 0, 1)
    a1_task(A, vm)
    if WMODE:
        aux_setup_w(A)
        aux_pre_w(A)
    if not PRES:
        loader_setup()
    Lt = Asm()
    if not EARLY2:
        make_T(Lt, TT, 92, 1)
    later = Lt.lines
    issued = KS0
    if KS0 < NS and E_("PREK", 0):
        for n in range(8):
            piece(issued, n)
        issued += 1
    trace(A, 0, 6)
    A(f"s_setprio {LPRIO0}")
    ZLATE = ZPOS >= 11
    KS = max(WSK if WMODE else KS0, ZPOS, WTK) + LA + 1 if not ZLATE else E_("KSL", 11)
    assert KS + 2 <= 13
    for k in range(16):
        if k >= KS0:
            vm.wait_for(("st", k))
        if WMODE == 0 and k == WPK:
            vm.wait_for("w")
        trace(A, 0, 16 + k)
        A("s_barrier")
        while issued < min(16, k + LA + 1):
            for n in range(8):
                piece(issued, n)
            issued += 1
        if WMODE == 0 and k == WPK:
            assert WPK < 2 and WTK > WPK
            wt_read(A)
            A("s_waitcnt lgkmcnt(0)")
            wt_sym(A)
            wt_perm(A)
        if k == ZPOS:
            a1_stores(A, vm)
        if WMODE == 0 and k == WTK and WTK != ZPOS:
            wt_store(A, vm)
        if k == 2:
            if SNON:
                A(f"s_load_dword s{NONCE}, {sp(DBG)}, 0x0 glc")
            else:
                A("v_mov_b32 v20, 0")
                vm.op(f"global_load_dword v21, v20, {sp(DBG)} sc1", "nonce")
        if k in CPK:
            code_touch(A, MSK)
        if WMODE:
            if k == WK:
                w_issue(A, vm)
            if k == WK + LA + 1:
                wt_read(A)
                A("s_waitcnt lgkmcnt(0)")
                wt_sym(A)
                wt_perm(A)
            if k == WSK:
                wt_store(A, vm)
        if k == KS - 1:
            assert not later
            if not ZLATE and not EARLY2:
                a2_setup(A)
        if k == KS:
            x, y = uid("sg"), uid("sg")
            if SNON:
                A.label(x)
                A(f"s_waitcnt lgkmcnt(0)\ns_cmp_lg_u32 s{NONCE}, 0\ns_cbranch_scc1 {y}")
                A(f"s_load_dword s{NONCE}, {sp(DBG)}, 0x0 glc\ns_branch {x}")
            else:
                A(f"v_readfirstlane_b32 s{NONCE}, v21\ns_cmp_lg_u32 s{NONCE}, 0\ns_cbranch_scc1 {y}")
                get_nonce(A, 20)
            A.label(y)
        if k == KS and not ZLATE:
            x = uid("sg")
            A(f"s_cmp_lg_u32 s{W_}, 0\ns_cbranch_scc1 {x}")
            A(f"s_and_b32 s{T4}, s2, 15\ns_lshl_b32 s{T5}, s{T4}, 7\ns_add_u32 s{T5}, s{T5}, {CNT_A}")
            A(f"s_add_u32 s{MSK}, s{WS}, s{T5}\ns_addc_u32 s{MSK+1}, s{WS+1}, 0\ns_mov_b32 s{PH_RES}, 1")
            A(f"s_atomic_add s{PH_RES}, {sp(MSK)}, 0x0 glc")
            A.label(x)
        if k == KS + 2 and not ZLATE:
            x = uid("sg")
            A(f"s_cmp_lg_u32 s{W_}, 0\ns_cbranch_scc1 {x}")
            A(f"s_waitcnt lgkmcnt(0)\ns_cmp_lg_u32 s{PH_RES}, 15\ns_cbranch_scc1 {x}")
            A(f"s_and_b32 s{T4}, s2, 15\ns_lshl_b32 s{T4}, s{T4}, 2\ns_add_u32 s{T4}, s{T4}, {FLG_A}\nv_lshl_add_u32 v22, v1, 7, s{T4}\nv_mov_b32 v23, s{NONCE}")
            A(f"global_store_dword v22, v23, {sp(WS)} sc1")
            A.label(x)
        if k == CTK and CTW == 0:
            c_touch(A, vm)
        if FPOLL and k == FPOLL and not ZLATE:
            assert k >= 13
            flag_poll(A, FLG_A)
        if k < KS - 1:
            for _ in range(-(-len(later) // (KS - 1 - k))):
                A(later.pop(0))
    assert issued == 16
    if ZLATE and not EARLY2:
        a2_setup(A)
    A(f"s_setprio {LPRIO}")
    aux_rest(A, vm)
    trace(A, 0, 14)
    if TRACE:
        A("s_waitcnt vmcnt(0)")
    trace(A, 0, 15)
    trace_dump(A, 0, WAVE, 1)
    stamp_end(A, kidx, WAVE)
    A("s_endpgm")


M16 = "v_mfma_f32_16x16x32_bf16"
XRW = 144
L_XC = 114688


def cpow(A, d, zr, zi, n, t):
    if isinstance(n, str):
        A(f"v_mul_f32 v{t}, {n}, v{zr}\nv_mul_f32 v{t+1}, {n}, v{zi}")
    else:
        A(f"v_mul_f32 v{t}, {fl(n)}, v{zr}\nv_mul_f32 v{t+1}, {fl(n)}, v{zi}")
    A(f"v_exp_f32 v{t}, v{t}\nv_rndne_f32 v{t+2}, v{t+1}\nv_sub_f32 v{t+1}, v{t+1}, v{t+2}")
    A(f"v_cos_f32 v{t+2}, v{t+1}\nv_sin_f32 v{t+1}, v{t+1}")
    A(f"v_mul_f32 v{d}, v{t}, v{t+2}\nv_mul_f32 v{d+1}, v{t}, v{t+1}")


def gemm_waves(A, name, kidx):
    U = lambda pg, c, idx: 64 + (pg*2 + c)*16 + 2*idx
    ACC = lambda mt, nt: 64 + ((nt & 1)*2 + (nt >> 1))*16 + 4*mt
    FR = lambda X, f: (32 if X == 0 else 144) + 4*f
    AD = lambda st, op, k2: 128 + st*4 + op*2 + k2
    LAM = lambda pg: 20 + 2*pg
    KC = lambda pg: 24 + 2*pg
    L8 = lambda pg: 176 + 2*pg
    L16 = lambda pg: 180 + 2*pg
    PP = lambda pg: 184 + 4*pg
    PW = lambda pg, idx: 208 + 16*pg + 2*idx
    Q16, Q64, Q128, Q256 = 28, 192, 30, 2
    WT_, WP = T8, T6
    A(f"s_lshr_b32 s{WT_}, s{WAVE}, 1\ns_and_b32 s{WP}, s{WAVE}, 1\ns_lshr_b32 s{PG}, s{TJ}, 3")
    A("v_and_b32 v6, 31, v1\nv_lshrrev_b32 v5, 5, v1\nv_lshlrev_b32 v11, 4, v1")
    A("v_mov_b64 v[64:65], 0\nv_mov_b64 v[66:67], 0")
    A(f"s_mul_i32 s{T0}, s{WAVE}, {16*XRW}\ns_add_u32 s{T0}, s{T0}, {L_XC}\nv_add_u32 v13, s{T0}, v11\nv_mov_b32 v12, {L_SYNC}")
    A("ds_write_b128 v13, v[64:67]\nds_write_b128 v13, v[64:67] offset:1024\nds_write_b128 v13, v[64:67] offset:2048")
    A("s_mov_b64 exec, 1\nds_write_b128 v12, v[64:67]\nds_write_b128 v12, v[64:67] offset:16\nds_write_b128 v12, v[64:67] offset:32\nds_write_b128 v12, v[64:67] offset:48\nds_write_b128 v12, v[64:67] offset:64\ns_mov_b64 exec, -1")
    A(f"s_lshl_b32 s{T0}, s{WAVE}, 2\nv_add_u32 v13, s{T0}, v12")
    A("s_waitcnt lgkmcnt(0)\ns_barrier")
    A("v_bfe_u32 v4, v1, 2, 2\nv_lshlrev_b32 v4, 3, v4\nv_and_b32 v7, 3, v1\nv_add_u32 v4, v4, v7")
    A(f"s_lshl_b32 s{T0}, s{TJ}, 6\ns_lshl_b32 s{T1}, s{WP}, 5\ns_add_u32 s{T0}, s{T0}, s{T1}")
    A(f"v_add_u32 v4, s{T0}, v4\nv_lshlrev_b32 v7, 1, v4")
    RA, RB, ROT, M0B, SOF, RV = S2, S3, 38, 39, T2, 244
    vm1 = VmCounter(A)
    if WBYG:
        A("s_waitcnt lgkmcnt(0)")
        w_addr(A, WAVE)
        srd(A, S2, WR, size=NBW)
        srd(A, S3, WI, size=NBW)
        A(f"s_lshl_b32 s{T0}, s{WAVE}, 12")
        w_tile_issue(A, vm1, T0, L_W)
    dma_setup(A, WT_, WP, RV, 14, T1, T2)
    rot_setup(A, ROT, T0)
    A(f"s_lshl_b32 s{T0}, s{TI}, 18\ns_lshl_b32 s{T1}, s{TJ}, 17\ns_lshl_b32 s{M0B}, s{WAVE}, 12")
    A("s_waitcnt lgkmcnt(0)")
    PRM = 248
    for pg in range(2):
        A(f"global_load_ushort v{PRM+3*pg}, v7, {sp(LRE)} offset:{8*pg}\nglobal_load_ushort v{PRM+1+3*pg}, v7, {sp(LIM)} offset:{8*pg}\nglobal_load_ushort v{PRM+2+3*pg}, v7, {sp(LDT)} offset:{8*pg}")
    srd(A, RA, BX, T0, 0, 0x40000)
    A(f"s_cmp_eq_u32 s{WP}, 1\ns_cselect_b32 s{T2}, s{BIM}, s{BRE}\ns_cselect_b32 s{T3}, s{BIM+1}, s{BRE+1}")
    srd(A, RB, T2, T1, 0, 0x20000)
    piece = make_piece(A, vm1, RA, RB, ROT, M0B, SOF, RV)
    for n in range(8):
        piece(0, n)
    A("v_bfe_u32 v7, v1, 4, 1\nv_lshl_add_u32 v4, v7, 2, v4")
    A("v_bfe_u32 v7, v6, 1, 3\nv_xor_b32 v7, v7, v5\nv_lshlrev_b32 v7, 4, v7\nv_lshl_add_u32 v7, v6, 7, v7")
    A("v_and_b32 v8, 15, v1\nv_lshrrev_b32 v9, 4, v1")
    A("v_lshrrev_b32 v14, 1, v8\nv_xor_b32 v14, v14, v9\nv_lshlrev_b32 v14, 4, v14\nv_lshl_add_u32 v14, v8, 7, v14")
    A(f"s_lshl_b32 s{T0}, s{WT_}, 13\ns_lshl_b32 s{T1}, s{WP}, 13\ns_add_u32 s{T1}, s{T1}, 16384")
    for k2 in range(2):
        A(f"v_xor_b32 v15, {k2 << 6}, v14")
        A(f"v_add_u32 v{AD(0,0,k2)}, s{T0}, v15\nv_add_u32 v{AD(0,1,k2)}, s{T1}, v15")
        A(f"v_add_u32 v{AD(1,0,k2)}, 0x10000, v{AD(0,0,k2)}\nv_add_u32 v{AD(1,1,k2)}, 0x10000, v{AD(0,1,k2)}")
    Areal, A = A, Asm()
    srd(A, S0, WS, None, WS_EG, 0x40000)
    srd(A, S1, WS, None, WS_HT, 64*TBS)
    A(f"s_mul_i32 s{T0}, s{WP}, {32*XRW}\ns_add_u32 s{T0}, s{T0}, {L_XC + 64}\ns_lshl_b32 s{T1}, s{WT_}, 5\ns_add_u32 s{T1}, s{T1}, s{T0}")
    A(f"v_mul_u32_u24 v14, {XRW}, v6\nv_add_u32 v14, s{T0}, v14\nv_lshl_add_u32 v14, v5, 5, v14")
    A(f"v_mul_u32_u24 v15, {XRW}, v8\nv_add_u32 v15, s{T1}, v15\nv_lshl_add_u32 v15, v9, 3, v15")
    A(f"s_lshl_b32 s{T0}, s{TI}, 14\nv_lshl_add_u32 v16, v4, 4, s{T0}")
    A("v_mov_b32 v17, 0x40000000\nv_lshlrev_b32 v10, 14, v5\nv_sub_u32 v10, v16, v10")
    LA_, LX = 194, 200
    for u in range(8):
        A(f"v_subrev_u32 v{136+u}, {16384 + u*32768}, v10\nv_cmp_le_i32 vcc, 0, v{136+u}\nv_cndmask_b32 v{136+u}, v17, v{136+u}, vcc")
    A("v_lshlrev_b32 v17, 30, v5\nv_or_b32 v16, v16, v17")
    A(f"s_lshl_b32 s{T0}, s{TI}, 11\ns_add_u32 s{T0}, s{T0}, {FLG_X}\ns_lshl_b32 s{T1}, s{TJ}, 7\ns_add_u32 s{T1}, s{T1}, s{T0}\nv_mov_b32 v195, s{T1}")
    A(f"s_lshl_b32 s{T1}, s{PG}, 10\ns_add_u32 s{T0}, s{T0}, s{T1}\nv_and_b32 v196, 7, v1\nv_lshl_add_u32 v196, v196, 7, s{T0}")
    A(f"s_lshl_b32 s{T0}, s{TI}, 1\ns_add_u32 s{T0}, s{T0}, s{WT_}\ns_lshl_b32 s{T0}, s{T0}, 12\ns_add_u32 s{T0}, s{T0}, {FLG_H}")
    A(f"s_lshl_b32 s{T1}, s{PG}, 11\ns_add_u32 s{T1}, s{T1}, s{T0}\nv_lshl_add_u32 v18, v8, 7, s{T1}")
    A(f"s_lshl_b32 s{T1}, s{TJ}, 8\ns_add_u32 s{T0}, s{T0}, s{T1}\ns_lshl_b32 s{T1}, s{WP}, 7\ns_add_u32 s{T0}, s{T0}, s{T1}\nv_mov_b32 v19, s{T0}")
    A("v_lshrrev_b32 v10, 1, v9\nv_lshlrev_b32 v10, 10, v10\nv_and_b32 v17, 1, v9\nv_lshl_add_u32 v10, v17, 9, v10\nv_lshl_add_u32 v10, v8, 4, v10")
    A(f"s_lshl_b32 s{T0}, s{WT_}, 2\nv_add_u32 v9, s{T0}, v9\nv_cvt_f32_u32 v9, v9\nv_mul_f32 v9, 0x41800000, v9\nv_add_f32 v8, 0x41000000, v9")
    A("PARAMWAIT")
    ZR, ZI = 204, 206
    for pg in range(2):
        lr, li, dt, t = PRM+3*pg, PRM+1+3*pg, PRM+2+3*pg, 197
        A(f"v_lshlrev_b32 v{lr}, 16, v{lr}\nv_lshlrev_b32 v{li}, 16, v{li}\nv_lshlrev_b32 v{dt}, 16, v{dt}")
        A(f"v_mul_f32 v{dt}, 0x3fb8aa3b, v{dt}\nv_exp_f32 v{dt}, v{dt}")
        A(f"v_cvt_pk_bf16_f32 v{dt}, v{dt}, v{dt}\nv_lshlrev_b32 v{dt}, 16, v{dt}")
        A(f"v_mul_f32 v{ZR+pg}, v{dt}, v{lr}\nv_mul_f32 v{ZI+pg}, v{dt}, v{li}")
        A(f"v_mul_f32 v{ZR+pg}, 0x3fb8aa3b, v{ZR+pg}\nv_mul_f32 v{ZI+pg}, 0.15915494, v{ZI+pg}")
        cpow(A, LAM(pg), ZR+pg, ZI+pg, 1.0, t)
        A(f"v_add_f32 v{t}, -1.0, v{LAM(pg)}")
        A(f"v_mul_f32 v{t+1}, v{lr}, v{lr}\nv_fma_f32 v{t+1}, v{li}, v{li}, v{t+1}\nv_rcp_f32 v{t+1}, v{t+1}")
        A(f"v_add_f32 v{t+1}, v{t+1}, v{t+1}")
        A(f"v_mul_f32 v{t+2}, v{t}, v{lr}\nv_fma_f32 v{t+2}, v{LAM(pg)+1}, v{li}, v{t+2}\nv_mul_f32 v{KC(pg)}, v{t+2}, v{t+1}")
        A(f"v_mul_f32 v{t+2}, v{LAM(pg)+1}, v{lr}\nv_fma_f32 v{t+2}, -v{t}, v{li}, v{t+2}\nv_mul_f32 v{KC(pg)+1}, v{t+2}, v{t+1}")
        cpow(A, L8(pg), ZR+pg, ZI+pg, 8.0, t)
        cpow(A, L16(pg), ZR+pg, ZI+pg, 16.0, t)
        for e in range(2):
            cpow(A, 200, ZR+pg, ZI+pg, f"v{9-e}", t)
            A(f"v_mov_b32 v{PP(pg)+e}, v200\nv_mov_b32 v{PP(pg)+2+e}, v201")
        for idx in range(8):
            sr, si = (KC(pg), KC(pg)+1) if idx == 0 else (PW(pg, idx-1), PW(pg, idx-1)+1)
            A(f"v_mul_f32 v{t}, v{si}, v{LAM(pg)+1}\nv_mul_f32 v{t+1}, v{si}, v{LAM(pg)}")
            A(f"v_fma_f32 v{PW(pg,idx)}, v{sr}, v{LAM(pg)}, -v{t}\nv_fma_f32 v{PW(pg,idx)+1}, v{sr}, v{LAM(pg)+1}, v{t+1}")
    A(f"v_and_b32 v197, 16, v1\nv_cmp_ne_u32 vcc, 0, v197\nv_cndmask_b32 v{ZR}, v{ZR}, v{ZR+1}, vcc\nv_cndmask_b32 v{ZI}, v{ZI}, v{ZI+1}, vcc")
    for d, n in ((Q16, 16.0), (Q64, 64.0), (Q128, 128.0), (Q256, 256.0)):
        cpow(A, d, ZR, ZI, n, 197)
    A("v_lshrrev_b32 v197, 4, v1\nv_lshlrev_b32 v197, 2, v197\nv_and_b32 v198, 15, v1\nv_sub_u32 v197, v198, v197\nv_mov_b32 v198, 0x3f80\nv_mov_b32 v199, 1.0")
    for c in range(4):
        A(f"v_cmp_eq_u32 vcc, {c}, v197\nv_cndmask_b32 v{248+c}, 0, v198, vcc\nv_cndmask_b32 v{252+c}, 0, v199, vcc")

    deferred, A = A.lines, Areal
    if WBYG:
        A(f"s_waitcnt vmcnt({6 + 8})")
        A(f"s_mov_b64 exec, 1\nv_mov_b32 v197, 1\nds_write_b32 v13, v197 offset:{RING_LG}\ns_mov_b64 exec, -1")
    pw = deferred.index("PARAMWAIT")
    for l in deferred[:pw]:
        A(l)
    deferred = deferred[pw+1:]
    assert KS0 <= NPRE
    if DEFER:
        for k in range(1, KS0):
            for n in range(8):
                piece(k, n)
    else:
        npre = 8
        if P1 == 0 and KS0 > 1:
            for n in range(8):
                piece(1, n)
            npre = 16
        A(f"s_waitcnt vmcnt({npre})")
        rest = [(k, n) for k in range(npre//8, KS0) for n in range(8)]
        lo, hi = int(len(deferred)*P2A/100), int(len(deferred)*P2B/100)
        at = [lo + (hi - lo)*q//max(1, len(rest)) for q in range(len(rest))]
        for i, l in enumerate(deferred):
            while at and at[0] <= i and l.startswith("v_") and not l.startswith("v_cnd"):
                at.pop(0)
                piece(*rest.pop(0))
            A(l)
        for r_ in rest:
            piece(*r_)
        deferred = []
    order = [0, 4, 5, 6, 7, 1, 2, 3]
    need = {0: 2, 1: 3, 2: 4, 3: 5, 4: 6, 8: 7, 12: 8}

    def rd(k, k2, f):
        slot = k % NS
        st, off = slot >> 1, (slot & 1)*32768
        A(f"ds_read_b128 {v(FR(k2, f), 4)}, v{AD(st, f >> 2, k2)} offset:{off + (f & 3)*2048}")
    trace_init(A, 0)
    trace(A, 0, 0)
    A(f"s_setprio {GPRIO}")
    def ring_arrive(k, t=197):
        A(f"s_mov_b64 exec, 1\nv_mov_b32 v{t}, {k}\nds_write_b32 v13, v{t} offset:{RING_D}\ns_mov_b64 exec, -1")
    vm1.wait_for(("st", 0))
    A("s_barrier")
    trace(A, 0, 1)
    for f in order:
        rd(0, 0, f)
    for k in range(16):
        for k2 in range(2):
            nk, nk2 = (k, 1) if k2 == 0 else (k+1, 0)
            have = nk < 16
            if k2 == 1:
                w = f"vmcnt({vm1.wait_for(('st', k+1), emit=False)}) " if k + 1 < KS0 else ""
                A(f"s_waitcnt {w}lgkmcnt(0)")
                if have:
                    A("s_barrier")
            if k == 13 and k2 == 0:
                assert not deferred, len(deferred)
                A(f"v_mov_b32 v8, 0\nglobal_load_dword v9, v8, {sp(DBG)} sc1")
            n = 0
            for m in range(16):
                if k2 == 0 and m in need:
                    A(f"s_waitcnt lgkmcnt({8 - need[m] + n})")
                mt, nt = m >> 2, m & 3
                if "m" not in G1X or k + k2 == 0:
                    A(f"{M16} {v(ACC(mt,nt),4)}, {v(FR(k2,mt),4)}, {v(FR(k2,4+nt),4)}, {'0' if k + k2 == 0 else v(ACC(mt,nt),4)}")
                if have and n < 8:
                    if "r" not in G1X:
                        rd(nk, nk2, order[n])
                    n += 1
                elif k >= DK0:
                    for _ in range(DEFER):
                        if deferred:
                            A(deferred.pop(0))
            if k == 15 and k2 == 0:
                nl, ng = uid("n"), uid("ng")
                A.label(nl)
                A(f"s_waitcnt vmcnt(0)\nv_readfirstlane_b32 s{NONCE}, v9\ns_cmp_lg_u32 s{NONCE}, 0\ns_cbranch_scc1 {ng}")
                A(f"global_load_dword v9, v8, {sp(DBG)} sc1\ns_branch {nl}")
                A.label(ng)
                A(f"s_getreg_b32 s{T0}, hwreg(HW_REG_XCC_ID, 0, 4)\ns_lshl_b32 s{T1}, s{NONCE}, 4\ns_or_b32 s{LOCAL}, s{T0}, s{T1}")
                A(f"v_mov_b32 v194, s{LOCAL}\nv_mov_b32 v202, s{NONCE}\nv_mov_b32 v203, s{NONCE}")
            if TRACE == 2 and k2 == 1:
                trace(A, 0, 40 + k)
    mark(A, 1)
    trace(A, 0, 2)
    bc_a = "op_sel_hi:[0,1,1]"
    bc_b = "op_sel:[1,0,0]"
    TT = 40
    for idx in range(1, 8):
        for half in range(2):
            for pg in range(2):
                L, t = v(LAM(pg), 2), TT + 4*pg
                pr, pi, ur, ui = (v(x, 2) for x in (U(pg, 0, idx-1), U(pg, 1, idx-1), U(pg, 0, idx), U(pg, 1, idx)))
                if half == 0:
                    A(f"v_pk_fma_f32 {v(t,2)}, {L}, {pr}, {ur} {bc_a}\nv_pk_fma_f32 {v(t+2,2)}, {L}, {pi}, {ui} {bc_a}")
                else:
                    A(f"v_pk_fma_f32 {ur}, {L}, {pi}, {v(t,2)} {bc_b} {N0}\nv_pk_fma_f32 {ui}, {L}, {pr}, {v(t+2,2)} {bc_b}")
    for pg in range(2):
        er, ei = U(pg, 0, 7), U(pg, 1, 7)
        horner(A, 32+2*pg, 33+2*pg, L8(pg), er, ei, er+1, ei+1, TT)
        A(f"ds_write_b64 v15, {v(32+2*pg,2)} offset:{16*XRW*pg}")
    trace(A, 0, 3)
    A("s_waitcnt lgkmcnt(0)")
    ring_arrive(17)
    l_, d_ = uid("ek"), uid("ekd")
    A.label(l_)
    A(f"ds_read_b128 v[198:201], v12 offset:{RING_D}\ns_waitcnt lgkmcnt(0)")
    A("v_min3_u32 v197, v198, v199, v200\nv_min_u32 v197, v197, v201")
    A(f"v_readfirstlane_b32 s{T0}, v197\ns_cmp_lt_u32 s{T0}, 17\ns_cbranch_scc1 {l_}")
    trace(A, 0, 4)
    SG = 48
    A(f"ds_read_b128 {v(SG,4)}, v14\nds_read_b128 {v(SG+4,4)}, v14 offset:16")
    P = 200
    A("s_waitcnt lgkmcnt(1)")
    horner(A, 32, 33, Q16, SG, SG+1, SG+2, SG+3, TT)
    A("s_waitcnt lgkmcnt(0)")
    horner(A, 34, 35, Q16, 32, 33, SG+4, SG+5, TT)
    horner(A, 32, 33, Q16, 34, 35, SG+6, SG+7, TT)
    A("v_mov_b32 v34, v32\nv_mov_b32 v35, v33\nv_permlane32_swap_b32 v32, v34\nv_permlane32_swap_b32 v33, v35")
    horner(A, P, P+1, Q64, 32, 33, 34, 35, TT)
    np_ = uid("np")
    A(f"s_cmp_lg_u32 s{WT_}, 0")
    A(f"s_cbranch_scc1 {np_}")
    A(f"buffer_store_dwordx4 {v(P,4)}, v16, {r4(S0)}, 0 offen sc1")
    A(f"s_cmp_lg_u32 s{WP}, 0")
    A(f"s_cbranch_scc1 {np_}")
    A(f"s_mov_b64 exec, 1\nglobal_store_dword v195, v194, {sp(WS)} sc1\ns_mov_b64 exec, -1")
    A.label(np_)
    mark(A, 2)
    trace(A, 0, 5)
    A(f"global_load_dword v243, v18, {sp(WS)} sc1")
    LB = 144

    def lbloads():
        for u in range(8):
            A(f"buffer_load_dwordx4 {v(LB+4*u,4)}, v{136+u}, {r4(S0)}, 0 offen sc1")
        A(f"global_load_dword v197, v196, {sp(WS)} sc1")
    QS = 32
    A("v_add_u32 v15, -56, v15")
    for pg in range(2):
        for w in range(7):
            A(f"ds_read_b64 {v(QS+14*pg+2*w,2)}, v15 offset:{16*XRW*pg + 8*w}")
    QQ = lambda pg: 128 + 4*pg
    TQ = 60
    A("s_waitcnt lgkmcnt(0)")
    for pg in range(2):
        b = QS + 14*pg
        for w in range(1, 6):
            horner(A, b+2*w, b+2*w+1, L16(pg), b+2*w-2, b+2*w-1, b+2*w, b+2*w+1, TQ)
        horner(A, QQ(pg), QQ(pg)+2, L16(pg), b+10, b+11, b+12, b+13, TQ)
        horner(A, QQ(pg)+1, QQ(pg)+3, L8(pg), QQ(pg), QQ(pg)+2, U(pg, 0, 7), U(pg, 1, 7), TQ)
    trace(A, 0, 6)
    O = 32
    cnt = 0
    if LBAT == 0:
        lbloads()
    for idx in range(8):
        for pg in range(2):
            d0, d1, K_, o = v(U(pg, 0, idx), 2), v(U(pg, 1, idx), 2), v(KC(pg), 2), O + 4*pg
            A(f"v_pk_mul_f32 {v(o,2)}, {K_}, {d0} op_sel_hi:[0,1]")
            A(f"v_pk_mul_f32 {v(o+2,2)}, {K_}, {d1} op_sel_hi:[0,1] neg_lo:[1,0] neg_hi:[1,0]")
            A(f"v_pk_fma_f32 {v(o+2,2)}, {K_}, {d0}, {v(o+2,2)} {bc_b} {N0}")
            A(f"v_pk_fma_f32 {d0}, {K_}, {d1}, {v(o,2)} {bc_b} {N0}")
            A(f"v_mov_b64 {d1}, {v(o+2,2)}")
            cnt += 1
            if cnt == LBAT:
                lbloads()
    trace(A, 0, 7)
    A("v_mov_b32 v14, 1\ns_mov_b64 exec, 1\nds_write_b32 v13, v14\ns_mov_b64 exec, -1")
    M0B, RH, RCc, SH, SC = T7, T5, T4, T3, T2
    ACC2 = lambda nt: 32 + 16*nt
    CF = lambda X, nt: 96 + 16*X + 4*nt
    XR, CV = 128, 244
    HR = lambda s_: 148 + 4*(s_ % HD)
    L_OWN = 65536
    A(f"s_xor_b32 s{T0}, s{WT_}, s{PG}\ns_xor_b32 s{T0}, s{T0}, 1\ns_lshl_b32 s{T0}, s{T0}, 6\ns_add_u32 s{T0}, s{T0}, s{WP}")
    A(f"v_lshrrev_b32 v8, 3, v1\nv_lshl_add_u32 v8, v8, 1, s{T0}\nv_lshlrev_b32 v8, 11, v8")
    A("v_and_b32 v14, 7, v1\nv_lshrrev_b32 v15, 4, v1\nv_xor_b32 v14, v14, v15\nv_lshlrev_b32 v14, 4, v14\nv_xor_b32 v15, 64, v14")
    for u in range(4):
        A(f"v_add_u32 v{CV+u}, v8, v{14 + (u & 1)}")
        if u:
            A(f"v_add_u32 v{CV+u}, {u*(16*2048 - 1024)}, v{CV+u}")
    A(f"s_and_b32 s{RCc}, s{TJ}, 7\ns_lshl_b32 s{T0}, s{RCc}, 18\ns_lshl_b32 s{T1}, s{PG}, 10\ns_add_u32 s{T0}, s{T0}, s{T1}")
    srd(A, S2, CRE, T0, 0, 0x40000, T1)
    srd(A, S3, CIM, T0, 0, 0x40000, T1)
    A(f"s_lshl_b32 s{T1}, s{RCc}, 1\ns_add_u32 s{T1}, s{T1}, s{PG}\ns_lshl_b32 s{T1}, s{T1}, 7")
    A(f"s_lshl_b32 s{SH}, s{TI}, 1\ns_add_u32 s{SH}, s{SH}, s{WT_}\ns_lshl_b32 s{T0}, s{SH}, 17\ns_add_u32 s{T0}, s{T0}, s{T1}")
    srd(A, S4, BX, T0, 0, 0x20000, T1)
    A(f"s_add_u32 s{DSK}, s{DSK}, s{T1}\ns_addc_u32 s{DSK+1}, s{DSK+1}, 0")
    A(f"s_lshl_b32 s{T1}, s{T1}, 1\ns_add_u32 s{T1}, s{T1}, 4096\ns_lshl_b32 s{T0}, s{SH}, 19\ns_add_u32 s{T0}, s{T0}, s{T1}")
    A(f"s_add_u32 s{OUT}, s{OUT}, s{T0}\ns_addc_u32 s{OUT+1}, s{OUT+1}, 0\ns_sub_u32 s{LDT}, 0x80000, s{T1}")
    A(f"s_lshl_b32 s{M0B}, s{WAVE}, 12\ns_lshl_b32 s{RH}, s{RCc}, 13\ns_lshl_b32 s{RCc}, s{RCc}, 7")
    A(f"s_lshl_b32 s{T0}, s{WT_}, 14\ns_lshl_b32 s{T1}, s{WP}, 11\ns_add_u32 s{T0}, s{T0}, s{T1}\ns_add_u32 s{T0}, s{T0}, {L_OWN}\nv_add_u32 v16, s{T0}, v10")
    A(f"s_lshl_b32 s{T0}, s{WAVE}, 13\ns_add_u32 s{T0}, s{T0}, {L_OWN}\nv_add_u32 v17, s{T0}, v11")
    for ks in range(4):
        A(f"v_xor_b32 v{20+ks}, {ks << 5}, v7\nv_add_u32 v{24+ks}, 0x10000, v{20+ks}")
    HB = LIM
    A(f"s_mul_i32 s{HB}, s{SH}, {2*TBS}\ns_lshl_b32 s{T1}, s{TJ}, 13\ns_add_u32 s{HB}, s{HB}, s{T1}\ns_lshl_b32 s{T1}, s{WP}, 11\ns_add_u32 s{HB}, s{HB}, s{T1}")
    for u in range(8):
        A(f"v_cmp_gt_u32 vcc, 0x40000, v{136+u}\nv_cndmask_b32 v{40+u}, 0, v202, vcc")
    A(f"s_mov_b32 s{T9}, 0")
    trace(A, 0, 8)
    pl, pd = uid("poll"), uid("polled")
    A.label(pl)
    A("v_mov_b32 v8, 0")
    for u in range(8):
        A(f"s_waitcnt vmcnt({8-u})")
        A(f"v_bitop3_b32 v8, v8, v{LB+4*u+2}, v{40+u} bitop3:0xf6\nv_bitop3_b32 v8, v8, v{LB+4*u+3}, v{40+u} bitop3:0xf6")
    A("s_waitcnt vmcnt(0)\nv_xor_b32 v197, v194, v197\nv_lshrrev_b32 v9, 4, v197\nv_or_b32 v8, v8, v9\nv_cmp_ne_u32 vcc, 0, v8")
    A(f"s_cbranch_vccz {pd}")
    A(f"s_add_u32 s{T9}, s{T9}, 1\ns_cmp_ge_u32 s{T9}, {SPIN_MAX}")
    A(f"s_cbranch_scc1 {pd}")
    lbloads()
    A(f"s_branch {pl}")
    A.label(pd)
    A(f"v_cmp_ne_u32 vcc, 0, v197\ns_cmp_eq_u64 vcc, 0\ns_cselect_b32 s{LOCAL}, {0 if FORCE_REMOTE else 1}, 0")
    mark(A, 3)
    trace(A, 0, 9)
    if TRACE:
        A(f"v_writelane_b32 v0, s{T9}, 63")
    vm = VmCounter(A)

    def cdma(g, us):
        for u in us:
            if u == 0:
                A(f"s_add_u32 m0, s{M0B}, {(g % R)*16384}")
                if g % 2 == 0:
                    A(f"s_add_u32 s{SC}, s{RCc}, {(g >> 1)*128}\ns_and_b32 s{SC}, s{SC}, 0x3ff")
            vm.op(f"buffer_load_dwordx4 v{CV+u}, {r4(S2 if g % 2 == 0 else S3)}, s{SC} offen offset:{u*1024}{NTC} lds", ("c", g))
    cdma(0, range(4))
    cdma(1, range(4))
    A("v_mov_b32 v14, 2\ns_mov_b64 exec, 1\nds_write_b32 v13, v14\ns_mov_b64 exec, -1")
    H0 = LB + 28
    cur = (H0, H0+1)
    for u in range(6, -1, -1):
        d = (48, 49) if cur[0] == H0 else (H0, H0+1)
        horner(A, d[0], d[1], Q256, cur[0], cur[1], LB+4*u, LB+4*u+1, TT)
        cur = d
    assert cur == (48, 49)
    A("v_mov_b32 v50, v48\nv_mov_b32 v51, v49\nv_permlane32_swap_b32 v48, v50\nv_permlane32_swap_b32 v49, v51")
    horner(A, 52, 53, Q128, 50, 51, 48, 49, TT)
    A("v_mov_b32 v54, v52\nv_mov_b32 v55, v53\nv_permlane16_swap_b32 v52, v54\nv_permlane16_swap_b32 v53, v55")
    trace(A, 0, 10)
    G = lambda pg: QQ(pg)
    for pg in range(2):
        Hh, gr, gi, pr, pi = v(52+2*pg, 2), v(G(pg), 2), v(G(pg)+2, 2), v(PP(pg), 2), v(PP(pg)+2, 2)
        A(f"v_pk_fma_f32 {gr}, {Hh}, {pr}, {gr} {bc_a}\nv_pk_fma_f32 {gi}, {Hh}, {pi}, {gi} {bc_a}")
        A(f"v_pk_fma_f32 {gr}, {Hh}, {pi}, {gr} {bc_b} {N0}\nv_pk_fma_f32 {gi}, {Hh}, {pr}, {gi} {bc_b}")
    PK = lambda pg, c, idx: 144 + (pg*2 + c)*8 + idx
    D = lambda c, X, pg: 32 + ((c*2 + X)*2 + pg)*4

    def fix(pg, idx):
        d0, d1, pw, gr, gi = v(U(pg, 0, idx), 2), v(U(pg, 1, idx), 2), v(PW(pg, idx), 2), v(G(pg), 2), v(G(pg)+2, 2)
        A(f"v_pk_fma_f32 {d0}, {pw}, {gr}, {d0} {bc_a}")
        A(f"v_pk_fma_f32 {d1}, {pw}, {gi}, {d1} {bc_a} {N0}")
        A(f"v_pk_fma_f32 {d0}, {pw}, {gi}, {d0} {bc_b} {N0}")
        A(f"v_pk_fma_f32 {d1}, {pw}, {gr}, {d1} {bc_b} {N0}")
        for c in range(2):
            A(f"v_cvt_pk_bf16_f32 v{PK(pg,c,idx)}, v{U(pg,c,idx)}, v{U(pg,c,idx)+1}")

    def tr(u):
        for c in range(2):
            for X in range(2):
                for pg in range(2):
                    A(f"{M16} {v(D(c,X,pg),4)}, {v(PK(pg,c,4*u),4)}, {v(248+4*X,4)}, 0")

    def st(u):
        for c in range(2):
            for X in range(2):
                q = 176 + 16*u + (c*2 + X)*4
                A(f"s_add_u32 s{T1}, s{HB}, {X*TBS + c*4096}")
                for jj in range(4):
                    A(f"v_cvt_pk_bf16_f32 v{q+jj}, v{D(c,X,0)+2*jj}, v{D(c,X,0)+2*jj+1}")
                vm.op(f"buffer_store_dwordx4 {v(q,4)}, v10, {r4(S1)}, s{T1} offen offset:{u*256} sc1", "hst")
                A(f"ds_write_b128 v16, {v(q,4)} offset:{X*8192 + c*4096 + u*256}")
    for u in range(2):
        for idx in range(4*u, 4*u + 4):
            for pg in range(2):
                fix(pg, idx)
            if u == 1 and idx == 5:
                st(0)
                trace(A, 0, 12)
        tr(u)
        if u == 0:
            trace(A, 0, 11)
    st(1)
    mark(A, 4)
    trace(A, 0, 13)
    NK = 64

    def arrive(val):
        A(f"v_mov_b32 v14, {val}")
        A("s_mov_b64 exec, 1\nds_write_b32 v13, v14\ns_mov_b64 exec, -1")

    def check(val, off=0, first=False):
        l, d = uid("ck"), uid("ckd")
        if first:
            A(f"ds_read_b128 v[8:11], v12 offset:{off}\ns_waitcnt lgkmcnt(0)")
        A.label(l)
        A("v_min3_u32 v15, v8, v9, v10\nv_min_u32 v15, v15, v11")
        A(f"v_readfirstlane_b32 s{T0}, v15")
        A(f"s_cmp_ge_u32 s{T0}, {val}")
        A(f"s_cbranch_scc1 {d}")
        A(f"ds_read_b128 v[8:11], v12 offset:{off}\ns_waitcnt lgkmcnt(0)")
        A(f"s_branch {l}")
        A.label(d)

    def hload(s_):
        if s_ % 4 == 0:
            A(f"s_add_u32 s{SH}, s{RH}, {(s_ >> 2)*4096}\ns_and_b32 s{SH}, s{SH}, 0xffff")
        vm.op(f"buffer_load_dwordx4 {v(HR(s_),4)}, v2, {r4(S0)}, s{SH} offen offset:{(s_ & 3)*1024} sc1", ("h", s_))

    def rd2(s_, nts):
        g, ks = s_ >> 2, s_ & 3
        slot = g % R
        base = 20 if slot < 4 else 24
        for nt in nts:
            A(f"ds_read_b128 {v(CF(s_ & 1, nt),4)}, v{base+ks} offset:{(slot & 3)*16384 + nt*4096}")

    def mf(s_, nt):
        c = "0" if s_ == 0 else v(ACC2(nt), 16)
        if E_("HACK16", 0) & 2:
            for z in range(2):
                d = ACC2(nt) + 8*(s_ & 1) + 4*z
                A(f"v_mfma_f32_16x16x32_bf16 {v(d,4)}, {v(HR(s_),4)}, {v(CF(s_ & 1, nt),4)}, {'0' if s_ < 2 else v(d,4)}")
        else:
            A(f"{MF} {v(ACC2(nt),16)}, {v(HR(s_),4)}, {v(CF(s_ & 1, nt),4)}, {c}")
    A("v_mov_b32 v2, v11")
    A(f"s_lshl_b32 s{T0}, s{TI}, 2\ns_add_u32 s{T0}, s{T0}, s{WAVE}\ns_mul_i32 s{T0}, s{T0}, {TBS}\ns_lshl_b32 s{T1}, s{PG}, 16\ns_add_u32 s{T0}, s{T0}, s{T1}")
    srd(A, S0, WS, T0, WS_HT, 0x10000)
    if not OWNFIRST and C23:
        cdma(2, range(4))
        cdma(3, range(4))
    A(f"s_waitcnt vmcnt({vm.wait_for(('c', 1), emit=False)}) lgkmcnt(0)")
    trace(A, 0, 14)
    arrive(3)
    check(3, first=True)
    trace(A, 0, 15)
    for s_ in range(8):
        A(f"ds_read_b128 {v(HR(s_),4)}, v17 offset:{s_*1024}")
    hn = [8]

    def pause():
        A(f"s_lshl_b32 s{T0}, s{WP}, 3\nv_lshl_add_u32 v17, v5, 4, s{T0}")
        A("v_lshlrev_b32 v28, 11, v17\nv_lshl_add_u32 v28, v6, 2, v28")
        A("v_lshlrev_b32 v29, 13, v17\nv_lshl_add_u32 v29, v6, 3, v29")
        A(f"v_lshlrev_b32 v30, 2, v6\nv_mov_b32 v15, s{NONCE}")
        a, b = uid("rs"), uid("rd")
        trace(A, 0, 16)
        vm.wait_for("hst")
        trace(A, 0, 17)
        A(f"s_mov_b64 exec, 1\ns_cmp_eq_u32 s{LOCAL}, 0\ns_cbranch_scc1 {a}")
        A(f"global_store_dword v19, v15, {sp(WS)}\ns_branch {b}")
        A.label(a)
        A(f"global_store_dword v19, v15, {sp(WS)} sc1")
        A.label(b)
        A("s_mov_b64 exec, -1")
        if not E_("GM", 0):
            mark(A, 5)
        check(4, first=True)
        if not NOAUX:
            check(LIMG_FREE, 16, first=True)
        if CTOUCH == 5:
            xtouch(1)
        if CTOUCH == 8:
            ctouch()
        for gg in range(4 if C23 else 2, CPOLL):
            cdma(gg, range(4))
        trace(A, 0, 18)
        wait_cnt(A, 18, 8, SLP_H)
        trace(A, 0, 19)
        vm.issued = []
        if not E_("GM", 0):
            mark(A, 6)
        if OWNFIRST:
            arrive(5)
        gg = max(4, CPOLL)
        while hn[0] < 8 + HPRE:
            hload(hn[0])
            hn[0] += 1
            if hn[0] % 4 == 0 and gg < CPRE:
                cdma(gg, range(4))
                gg += 1
        assert gg == CPRE
        if OWNFIRST:
            check(5, first=True)
        trace(A, 0, 20)
        rd2(8 if OWNFIRST else 0, range(4))

    def flag_store():
        a, b = uid("rs"), uid("rd")
        A(f"s_mov_b64 exec, 1\ns_cmp_eq_u32 s{LOCAL}, 0\ns_cbranch_scc1 {a}")
        A(f"global_store_dword v19, v15, {sp(WS)}\ns_branch {b}")
        A.label(a)
        vm.op(f"global_store_dword v19, v15, {sp(WS)} sc1", "flag")
        A.label(b)
        A("s_mov_b64 exec, -1")
    if HTAG:
        A("s_waitcnt lgkmcnt(0)")
        arrive(4)
        A(f"s_lshl_b32 s{T0}, s{WP}, 3\nv_lshl_add_u32 v17, v5, 4, s{T0}")
        A("v_lshlrev_b32 v28, 11, v17\nv_lshl_add_u32 v28, v6, 2, v28")
        A("v_lshlrev_b32 v29, 13, v17\nv_lshl_add_u32 v29, v6, 3, v29")
        A(f"v_lshlrev_b32 v30, 2, v6\nv_mov_b32 v15, s{NONCE}")
        if HTAG == 1:
            wl, wd = uid("hw"), uid("hwd")
            A(f"s_add_u32 s{T1}, s{RH}, 8192\ns_and_b32 s{T1}, s{T1}, 0xffff\ns_mov_b32 s{CNT}, 0\ns_waitcnt lgkmcnt(0)")
            A.label(wl)
            A(f"s_load_dwordx4 s[4:7], {sp(S0)}, s{T1} offset:{4096 + 1024 + 1008} glc\ns_load_dwordx4 s[8:11], {sp(S0)}, s{T1} offset:{4096 + 3072 + 1008} glc")
            A(f"s_add_u32 s{CNT}, s{CNT}, 1\ns_waitcnt lgkmcnt(0)")
            for q in range(2):
                A(f"s_xor_b64 s[{4+2*q}:{5+2*q}], s[{4+2*q}:{5+2*q}], s[{HT_+2*q}:{HT_+2*q+1}]\ns_xor_b64 s[{8+2*q}:{9+2*q}], s[{8+2*q}:{9+2*q}], s[{HT_+2*q}:{HT_+2*q+1}]")
            A("s_or_b64 s[4:5], s[4:5], s[6:7]\ns_or_b64 s[8:9], s[8:9], s[10:11]\ns_or_b64 s[4:5], s[4:5], s[8:9]\ns_or_b32 s4, s4, s5\ns_and_b32 s4, s4, 0x10001")
            A(f"s_cbranch_scc0 {wd}\ns_cmp_lt_u32 s{CNT}, {SPIN_MAX}\ns_cbranch_scc1 {wl}")
            A.label(wd)
        if HTAG == 3:
            vm.wait_for('hst')
            flag_store()
        if HTAG == 2 and HDLY:
            A(f"s_waitcnt vmcnt({vm.wait_for('hst', emit=False) + HDLY})")
        mark(A, 6)
        for s_ in range(8, 16):
            hload(s_)
        hn[0] = 16
        if HTAG != 3:
            vm.wait_for("hst")
            flag_store()
        if not E_("GM", 0):
            mark(A, 5)
        check(4, first=True)
        if not NOAUX:
            check(LIMG_FREE, 16, first=True)
        for gg in range(4, CPOLL):
            cdma(gg, range(4))
        rd2(0, range(4))
    elif OWNFIRST:
        rd2(0, range(4))
        A("s_waitcnt lgkmcnt(4)")
        arrive(4)
    else:
        A("s_waitcnt lgkmcnt(0)")
        arrive(4)
        pause()
    have_c = lambda g: any(t == ("c", g) for t in vm.issued)
    for s_ in range(NK):
        g, ks = s_ >> 2, s_ & 3
        nxt = s_ + 1
        more = nxt < NK and not (nxt == 8 and OWNFIRST)
        ws = []
        if s_ >= 8:
            ws.append(vm.wait_for(("h", s_), emit=False))
        arr = (s_ + 4) % 8 == 0 and s_ + 4 < NK and (s_ >= 8 or not OWNFIRST)
        if arr:
            gl = ((s_ + 4) >> 2) + 1
            if have_c(gl):
                ws.append(vm.wait_for(("c", gl), emit=False))
        wv = f"vmcnt({min(ws)}) " if ws else ""
        newgrp = more and nxt % 8 == 0
        full = newgrp or not more or s_ == 0
        nc = 2 if s_ >= NK - NDEF else 4
        nn = (2 if nxt >= NK - NDEF else 4) if more else 0
        if full:
            A(f"s_waitcnt {wv}lgkmcnt(0)")
            if newgrp:
                check((nxt >> 3) + 4)
                trace(A, 0, 20 + (nxt >> 3))
                if nxt == 32 and not E_('GM', 0):
                    mark(A, 7)
        else:
            A(f"s_waitcnt {wv}lgkmcnt({nc-1})")
        extra = 0
        if arr:
            arrive(((s_ + 4) >> 3) + 4)
            extra = 1
        issued_n = 0
        for nt in range(nc):
            if nt and not full:
                A(f"s_waitcnt lgkmcnt({nc - 1 - nt + extra + issued_n})")
            mf(s_, nt)
            if nt < 2 and issued_n < nn and (nt == 0 or nn == 4):
                rd2(nxt, [issued_n, issued_n + 1])
                issued_n += 2
            if nt == nc - 2:
                if s_ < 8 and OWNFIRST:
                    if C23:
                        cdma(2 + g, [ks])
                elif CPRE <= g + CD < NK//4:
                    cdma(g + CD, [ks])
        assert issued_n == nn
        if HTAG:
            if s_ < 4*(CPRE - CPOLL):
                cdma(CPOLL + g, [ks])
            if s_ == 6:
                tl, td = uid("ht"), uid("htd")
                A(f"s_mov_b32 s{CNT}, 0")
                vm.wait_for(("h", 15))
                A.label(tl)
                A("v_mov_b32 v4, 0")
                for r in range(32):
                    A(f"v_bitop3_b32 v4, v4, v{HR(8)+r}, s{HT_+(r & 3)} bitop3:0xf6")
                A(f"v_and_b32 v4, 0x10001, v4\nv_cmp_ne_u32 vcc, 0, v4\ns_cbranch_vccz {td}")
                A(f"s_add_u32 s{CNT}, s{CNT}, 1\ns_cmp_ge_u32 s{CNT}, {SPIN_MAX}\ns_cbranch_scc1 {td}")
                keep = list(vm.issued)
                for s2_ in range(8, 16):
                    hload(s2_)
                vm.issued = keep
                A(f"s_waitcnt vmcnt(0)\ns_branch {tl}")
                A.label(td)
                if STAMP == 1:
                    A(f"s_add_u32 s72, s70, s{CNT}")
            if s_ == HFI:
                vm.op(f"global_load_dword v16, v18, {sp(WS)} sc1", "fp")
            if s_ == HFC:
                fd = uid("hf")
                vm.wait_for("fp")
                A(f"v_cmp_ne_u32 vcc, s{NONCE}, v16\ns_cbranch_vccz {fd}")
                wait_cnt(A, 18, 16, 1)
                A.label(fd)
        if (s_ >= (HFC if HTAG else 8) or not (OWNFIRST or HTAG)) and hn[0] < NK:
            for _ in range(3 if HTAG else 2):
                if hn[0] < NK and hn[0] <= s_ + HD:
                    hload(hn[0])
                    hn[0] += 1
        if (s_ + 2) % 8 == 0 and s_ + 2 < NK and (s_ >= 8 or not OWNFIRST):
            A("ds_read_b128 v[8:11], v12")
        if s_ == NK - 18:
            vm.op(f"global_load_dword v31, v30, {sp(DSK)}", "dsk")
        if NK - 17 <= s_ < NK - 1:
            e = s_ - (NK - 17)
            q, r = e >> 2, e & 3
            A(f"s_mov_b32 s{T0}, {(32*(q & 1) + 4*(q >> 1) + (r & 2))*2048}")
            vm.op(f"buffer_load_dword v{XR+e}, v28, {r4(S4)}, s{T0} offen offset:{(r & 1)*2048}", ("x", e))
        if s_ == 7 and OWNFIRST:
            pause()
    mark(A, 8)
    trace(A, 0, 28)
    TG = T0
    A(f"s_mul_i32 s{TG}, s{NONCE}, 0x9e3779b1\ns_and_b32 s{TG}, s{TG}, 0xbfff0000\ns_or_b32 s{TG}, s{TG}, 0x20000000")
    A(f"s_sub_u32 s{T1}, s{NONCE}, 1\ns_xor_b32 s{T1}, s{T1}, s{TG}\ns_cmp_lt_u32 s{T1}, 0x10000\ns_cselect_b32 s{T1}, 0x10000, 0\ns_xor_b32 s{TG}, s{TG}, s{T1}")
    if INOUT:
        A(f"s_lshl_b32 s{T4}, s{PG}, 9\ns_sub_i32 s{T4}, 256, s{T4}\ns_ashr_i32 s{T5}, s{T4}, 31")
        A(f"s_add_u32 s{S2}, s{OUT}, s{T4}\ns_addc_u32 s{S2+1}, s{OUT+1}, s{T5}\ns_sub_u32 s{S2+2}, s{LDT}, s{T4}\ns_mov_b32 s{S2+3}, 0x20000")
        A(f"s_mov_b32 s{S3}, s{OUT}\ns_mov_b32 s{S3+1}, s{OUT+1}\ns_mov_b32 s{S3+2}, s{LDT}\ns_mov_b32 s{S3+3}, 0x20000")
        A(f"s_lshl_b32 s{T4}, s{WP}, 16\nv_lshrrev_b32 v3, 4, v1\nv_lshlrev_b32 v3, 13, v3\nv_and_b32 v4, 15, v1\nv_lshl_add_u32 v3, v4, 4, v3\nv_add_u32 v3, s{T4}, v3")
        xad = lambda gq: (f"s_mov_b32 s{T4}, {(16*(gq >> 1) + 4*(gq & 1))*8192}\n", f"v3, SRD, s{T4} offen")
    else:
        A(f"s_lshl_b32 s{T4}, s{TI}, 4\ns_add_u32 s{T4}, s{T4}, s{TJ}\ns_lshl_b32 s{T4}, s{T4}, 2\ns_add_u32 s{T4}, s{T4}, s{WAVE}\ns_lshl_b32 s{T4}, s{T4}, 13")
        srd(A, S2, WS, T4, WS_XB, 0x2000)
        A(f"s_xor_b32 s{T4}, s{T4}, {8 << 15}")
        srd(A, S3, WS, T4, WS_XB, 0x2000)
        A(f"s_movk_i32 s{T4}, 0x1000")
        xad = lambda gq: ("", f"v2, SRD, {'0' if gq < 4 else f's{T4}'} offen offset:{(gq & 3)*1024}")
    val = lambda n: ACC2(n & 1) + (n >> 1)
    TXR, RX = [96, 100, 244, 248, 252], 180
    for gq in range(5):
        for c in range(4):
            n = 7*gq + 2*c
            lo = f"v{val(min(n, 31))}"
            hi = f"s{TG}" if c == 3 else f"v{val(min(n+1, 31))}"
            A(f"v_cvt_pk_bf16_f32 v{TXR[gq]+c}, {lo}, {hi}")
        A(f"{xad(gq)[0]}buffer_store_dwordx4 {v(TXR[gq],4)}, {xad(gq)[1].replace('SRD', r4(S2))} sc1")

    if A3S == 12:
        arrive(12)

    def rx():
        for gq in range(5):
            A(f"{xad(gq)[0]}buffer_load_dwordx4 {v(RX+4*gq,4)}, {xad(gq)[1].replace('SRD', r4(S3))} sc1")
    if NDEF:
        rd2(NK - NDEF, [2, 3])
        for s_ in range(NK - NDEF, NK):
            if s_ + 1 < NK:
                rd2(s_ + 1, [2, 3])
                A("s_waitcnt lgkmcnt(2)")
            else:
                A("s_waitcnt lgkmcnt(0)")
            mf(s_, 2)
            mf(s_, 3)
    if A3S == 13:
        arrive(13)
    trace(A, 0, 29)
    if E_("XM", 0):
        mark(A, 3)
    A("s_waitcnt vmcnt(5)")
    if E_("XM", 0):
        mark(A, 5)
    trace(A, 0, 30)
    A("v_lshlrev_b32 v8, 16, v31\nv_and_b32 v9, 0xffff0000, v31")
    YO = lambda e: 148 + 2*e
    for e in range(16):
        t = YO(e)
        A(f"v_lshlrev_b32 v{t}, 16, v{XR+e}\nv_and_b32 v{t+1}, 0xffff0000, v{XR+e}")
        A(f"v_pk_mul_f32 {v(t,2)}, {v(t,2)}, v[8:9]")
        A(f"v_cvt_pk_bf16_f32 v10, v{t}, v{t+1}")
        A(f"v_lshlrev_b32 v{t}, 16, v10\nv_and_b32 v{t+1}, 0xffff0000, v10")
        A(f"v_add_f32 v{t}, v{t}, v{ACC2(2)+e}\nv_add_f32 v{t+1}, v{t+1}, v{ACC2(3)+e}")
    A(f"s_mov_b32 s{S1}, s{OUT}\ns_mov_b32 s{S1+1}, s{OUT+1}\ns_mov_b32 s{S1+2}, s{LDT}\ns_mov_b32 s{S1+3}, 0x20000")
    xl, xd = uid("xl"), uid("xd")
    A(f"s_mov_b32 s{CNT}, 0")
    if XPOLL:
        assert not INOUT
        wl, wd = uid("xw"), uid("xwd")
        A.label(wl)
        A(f"s_load_dword s{T1}, {sp(S3)}, {0x1000 + 63*16 + 12} glc\ns_add_u32 s{CNT}, s{CNT}, 1\ns_waitcnt lgkmcnt(0)")
        A(f"s_xor_b32 s{T1}, s{T1}, s{TG}\ns_cmp_lt_u32 s{T1}, 0x10000\ns_cbranch_scc1 {wd}")
        A(f"s_cmp_lt_u32 s{CNT}, {SPIN_MAX}\ns_cbranch_scc1 {wl}")
        A.label(wd)
        A(f"s_mov_b32 s{CNT}, 0")
    trace(A, 0, 31)
    if XPOLL != 2:
        A(f"s_waitcnt vmcnt({E_('XW', 0)})")
    if E_("XM", 0):
        mark(A, 6)
    rx()
    A.label(xl)
    A("v_mov_b32 v10, 0")
    for gq in range(5):
        A(f"s_waitcnt vmcnt({4-gq})")
        A(f"v_bitop3_b32 v10, v10, v{RX+4*gq+3}, s{TG} bitop3:0xf6")
    A("v_cmp_lt_u32 vcc, 0xffff, v10")
    A(f"s_cbranch_vccz {xd}")
    A(f"s_add_u32 s{CNT}, s{CNT}, 1\ns_cmp_ge_u32 s{CNT}, {SPIN_MAX}")
    A(f"s_cbranch_scc1 {xd}")
    rx()
    A(f"s_branch {xl}")
    A.label(xd)
    trace(A, 0, 32)
    if STAMP:
        A(f"s_add_u32 s74, s70, s{CNT}\ns_lshl_b32 s{CNT}, s{LOCAL}, 8\ns_add_u32 s74, s74, s{CNT}")
        mark(A, 4)
    for e in range(16):
        q, r = e >> 2, e & 3
        t = YO(e)
        for nt in range(2):
            n = 2*e + nt
            src = RX + 4*(n // 7) + (n % 7)//2
            if (n % 7) % 2 == 0:
                A(f"v_lshlrev_b32 v{10+nt}, 16, v{src}")
            else:
                A(f"v_and_b32 v{10+nt}, 0xffff0000, v{src}")
        A(f"v_pk_add_f32 {v(t,2)}, {v(t,2)}, v[10:11]")
        A(f"s_mov_b32 s{T4}, {(32*(q & 1) + 4*(q >> 1) + r)*8192}")
        A(f"buffer_store_dwordx2 {v(t,2)}, v29, {r4(S1)}, s{T4} offen{OSTB}")
    trace(A, 0, 33)
    if TRACE:
        A("s_waitcnt vmcnt(0)")
    trace(A, 0, 34)
    trace_dump(A, 0, WAVE, 1)
    stamp_end(A, kidx, WAVE)


def gen_fused(A, name, kidx):
    KNAME_[0] = name
    A(f".globl {name}\n.p2align 8\n.type {name},@function")
    A.label(name)
    A("s_cmp_ge_u32 s2, 256")
    A(f"s_cbranch_scc1 L_{name}_end")
    A("s_load_dwordx16 s[4:19], s[0:1], 0")
    A("s_load_dwordx8 s[20:27], s[0:1], 64")
    A("s_load_dwordx4 s[28:31], s[0:1], 96")
    A("s_load_dwordx2 s[32:33], s[0:1], 112")
    stamp_begin(A)
    A("v_lshrrev_b32 v2, 6, v0\nv_and_b32 v1, 63, v0")
    A(f"v_readfirstlane_b32 s{WAVE}, v2")
    A(f"s_and_b32 s{T0}, s2, 7\ns_lshr_b32 s{T1}, s2, 3")
    A(f"s_lshr_b32 s{TI}, s{T0}, 1\ns_lshl_b32 s{TI}, s{TI}, 2\ns_lshr_b32 s{T2}, s{T1}, 3\ns_add_u32 s{TI}, s{TI}, s{T2}")
    A(f"s_and_b32 s{TJ}, s{T0}, 1\ns_lshl_b32 s{TJ}, s{TJ}, 3\ns_and_b32 s{T2}, s{T1}, 7\ns_add_u32 s{TJ}, s{TJ}, s{T2}")
    if SWAP:
        A(f"s_xor_b32 s{WAVE}, s{WAVE}, 4")
    A(f"s_cmp_ge_u32 s{WAVE}, 4")
    A(f"s_cbranch_scc0 L_{name}_gemm")
    aux_waves(A, name, kidx)
    A.label(f"L_{name}_gemm")
    gemm_waves(A, name, kidx)
    A.label(f"L_{name}_end")
    A("s_endpgm")
    return kdesc(name, 256)
```

```python
import os
from asmlib import *
from common import *

E_ = lambda k, d: int(os.environ.get(k, str(d)))
XO, NP, RI, RJ = E_("XO", 0), E_("NP", 1), E_("RI", 1), E_("RJ", 1)
XO2, NP2 = E_("XO2", 2), E_("NP2", 1)
PRO = E_("PRO", 2)
HD = E_("HD", 24)
CD = E_("CD", 4)
NOAUX = E_("NOAUX", 0)
CODEPF = E_("CODEPF", 1)
NS = E_('NS', 3)
LASW = E_('LASW', 99)
R = 7
LA = E_('LA', 2)
FORCE_REMOTE = E_('FORCE_REMOTE', 0)
MF = "v_mfma_f32_32x32x16_bf16"
N0 = "neg_lo:[1,0,0] neg_hi:[1,0,0]"

AX, WR, WI, BX, LRE, LIM, BRE, BIM, CRE, CIM, LDT, DSK, OUT, DBG, WS = 4, 6, 8, 10, 12, 14, 16, 18, 20, 22, 24, 26, 28, 30, 32
WAVE, TI, TJ, NONCE, TBL = 34, 35, 36, 37, 38
S0, S1, S2, S3, S4 = 40, 44, 48, 52, 56
T0, T1, T2, T3, T4, T5, T6, T7, T8, T9 = range(60, 70)
MSK, CNT, LOCAL, PG = 90, 92, 100, 101
L_XCH = 122880
L_SYNC = 126976
L_AX = 131072
L_W = 147456
WS_CNT = 0x1000
CNT_A, CNT_B, CNT_W = WS_CNT, WS_CNT + 16*128, WS_CNT + 32*128
FLG_A, FLG_B, FLG_W = 0x84000, 0x86000, 0x88000
FLG_X = 0x8000
FLG_H = 0x60000
CPRO1 = E_("CPRO1", 2)
CPRO2 = E_("CPRO2", 2)
CTOUCH = E_("CTOUCH", 4)
TBS = 131072 + E_("TBPAD", 0)
FTOUCH = E_("FTOUCH", 1)
XTOUCH = E_("XTOUCH", 0)
NREP = E_("NREP", 32)
NDEF = E_("NDEF", 12)
HTAG = 0
HDLY = E_("HDLY", 0)
HFI, HFC = E_("HFI", 7), E_("HFC", 10)
XPOLL = E_("XPOLL", 2)
OWNFIRST = E_("OWNFIRST", 1) and not HTAG
C01, C23 = E_("C01", 1), E_("C23", 1)
INOUT = E_("INOUT", 0)
KS_ = 32768 if INOUT else 8192
ISH = 16384 if INOUT else 4096
CTK, CPOLL, CPRE, HPRE = E_("CTK", 14), E_("CPOLL", 6), E_("CPRE", 7), E_("HPRE", 8)
HLOC, HLK = E_("HLOC", 0), E_("HLK", 13)
LBAT = E_("LBAT", 16)
XBF = E_("XBF", 1)
SLP_H, SLP_A = E_("SLP_H", 4), E_("SLP_A", 10)
NT = " nt" if E_("NT", 1) else ""
NTX = " nt"
OST = {0: "", 1: " nt", 2: " sc1", 3: " sc1 nt", 4: " sc0 sc1 nt", 5: " sc0 nt"}[E_("OST", 1)]
NTK = E_("NTK", 0)
OSTB = {0: "", 1: " nt", 2: " sc1", 3: " sc1 nt", 4: " sc0 sc1 nt", 5: " sc0 nt"}[E_("OSTB", 1)]
NTC = " nt" if E_("NTC", 0) else ""


def sp(a):
    return f"s[{a}:{a+1}]"


def srd(A, d, base, soff=None, const=0, size=None, size_s=None):
    if soff is None and const == 0:
        A(f"s_mov_b32 s{d}, s{base}\ns_mov_b32 s{d+1}, s{base+1}")
    else:
        if soff is not None and const:
            A(f"s_add_u32 s{d+2}, s{soff}, {const}")
            o = f"s{d+2}"
        elif soff is not None:
            o = f"s{soff}"
        else:
            o = str(const)
        A(f"s_add_u32 s{d}, s{base}, {o}\ns_addc_u32 s{d+1}, s{base+1}, 0")
    if size_s is not None:
        A(f"s_sub_u32 s{d+2}, {size}, s{size_s}")
    else:
        A(f"s_mov_b32 s{d+2}, {size}")
    A(f"s_mov_b32 s{d+3}, 0x20000")


def r4(d):
    return f"s[{d}:{d+3}]"


_u = [0]


def uid(p):
    _u[0] += 1
    return f"L_{p}{_u[0]}"


def get_nonce(A, vt):
    l, d = uid("n"), uid("nd")
    A(f"v_mov_b32 v{vt}, 0")
    A.label(l)
    A(f"global_load_dword v{vt+1}, v{vt}, {sp(DBG)} sc1")
    A("s_waitcnt vmcnt(0)")
    A(f"v_readfirstlane_b32 s{NONCE}, v{vt+1}")
    A(f"s_cmp_eq_u32 s{NONCE}, 0")
    A(f"s_cbranch_scc1 {l}")


def signal(A, sshard, cnt, flg, expect, vt):
    d = uid("sg")
    A(f"s_lshl_b32 s{CNT}, s{sshard}, 7\ns_add_u32 s{CNT}, s{CNT}, {cnt}")
    A(f"v_mov_b32 v{vt}, s{CNT}\nv_mov_b32 v{vt+1}, 1")
    A("s_waitcnt vmcnt(0)")
    A("s_mov_b64 exec, 1")
    A(f"global_atomic_add v{vt+2}, v{vt}, v{vt+1}, {sp(WS)} sc0 sc1")
    A(f"v_add_u32 v{vt}, {flg - cnt}, v{vt}\nv_mov_b32 v{vt+1}, s{NONCE}")
    A("s_waitcnt vmcnt(0)")
    A(f"v_readfirstlane_b32 s{CNT}, v{vt+2}")
    A(f"s_add_u32 s{CNT}, s{CNT}, 1\ns_cmp_lg_u32 s{CNT}, {expect}")
    A(f"s_cbranch_scc1 {d}")
    A(f"global_store_dword v{vt}, v{vt+1}, {sp(WS)} sc1")
    A.label(d)
    A("s_mov_b64 exec, -1")


def set_flag(A, soff, vt):
    A(f"v_mov_b32 v{vt}, s{soff}\nv_mov_b32 v{vt+1}, s{NONCE}")
    A("s_waitcnt vmcnt(0)")
    A("s_mov_b64 exec, 1")
    A(f"global_store_dword v{vt}, v{vt+1}, {sp(WS)} sc1")
    A("s_mov_b64 exec, -1")


def wait_cnt(A, vaddr, vt, sleep):
    l, d = uid("w"), uid("wd")
    A(f"s_mov_b32 s{CNT}, 0")
    A.label(l)
    A(f"global_load_dword v{vt}, v{vaddr}, {sp(WS)} sc1")
    A("s_waitcnt vmcnt(0)")
    A(f"v_cmp_ne_u32 vcc, s{NONCE}, v{vt}")
    A(f"s_cbranch_vccz {d}")
    if sleep:
        A(f"s_sleep {sleep}")
    A(f"s_add_u32 s{CNT}, s{CNT}, 1\ns_cmp_lt_u32 s{CNT}, {SPIN_MAX}")
    A(f"s_cbranch_scc1 {l}")
    A.label(d)


F, T = 192, 224


import struct as _st


def fl(x):
    return hex(_st.unpack("<I", _st.pack("<f", x))[0])


def lane_float(A, vn, vh, t):
    A(f"v_and_b32 v{t}, 31, v1\nv_cvt_f32_u32 v{t}, v{t}\nv_lshrrev_b32 v{t+1}, 5, v1\nv_lshlrev_b32 v{t+1}, 2, v{t+1}\nv_cvt_f32_u32 v{t+1}, v{t+1}")


def make_F(A, t):
    lane_float(A, None, None, t)
    A(f"v_mul_f32 v{t+1}, v{t}, v{t+1}\nv_mul_f32 v{t+1}, {fl(1/32)}, v{t+1}")
    for i in range(16):
        c = 8*(i >> 2) + (i & 3)
        a = t + 2 + 3*(i & 1)
        A(f"v_fmamk_f32 v{a}, v{t}, {fl(c/32)}, v{t+1}\nv_fract_f32 v{a}, v{a}")
        A(f"v_cos_f32 v{a+1}, v{a}\nv_sin_f32 v{a+2}, v{a}")
        A(f"v_cvt_pk_bf16_f32 v{F+i}, v{a+1}, v{a+2}\nv_cvt_pk_bf16_f32 v{F+16+i}, -v{a+2}, v{a+1}")


def make_T(A, dst, t, half):
    lane_float(A, None, None, t)
    if not half:
        A(f"v_mul_f32 v{t+1}, v{t}, v{t+1}\nv_mul_f32 v{t+1}, {fl(1/1024)}, v{t+1}")
    else:
        A(f"v_mul_f32 v{t}, {fl(1/2048)}, v{t}\nv_fmamk_f32 v{t+1}, v{t+1}, {fl(1/64)}, v{t}")
    for i in range(16):
        c = 8*(i >> 2) + (i & 3)
        a = t + 2 + (i & 1)
        if not half:
            A(f"v_fmamk_f32 v{a}, v{t}, {fl(c/1024)}, v{t+1}")
        else:
            A(f"v_add_f32 v{a}, {fl(c/64)}, v{t+1}")
        A(f"v_cos_f32 v{dst+i}, v{a}\nv_sin_f32 v{dst+16+i}, -v{a}")


def stage1(A, src, D, stride=4):
    if "m" in os.environ.get("SK", ""):
        return
    for c in range(2):
        for s_ in range(4):
            cc = "0" if s_ == 0 else v(D+16*c, 16)
            A(f"{MF} {v(D+16*c,16)}, {v(src+stride*s_,4)}, {v(F+16*c+4*s_,4)}, {cc}")


def twiddle(A, D, dst, tmp, rng=range(16)):
    for i in (rng if "t" not in os.environ.get("SK", "") else []):
        re, im, tr, ti = D+i, D+16+i, T+i, T+16+i
        t = tmp + 2*(i & 3)
        A(f"v_mul_f32 v{t}, v{re}, v{tr}\nv_mul_f32 v{t+1}, v{re}, v{ti}")
        A(f"v_fma_f32 v{t}, -v{im}, v{ti}, v{t}\nv_fmac_f32 v{t+1}, v{im}, v{tr}")
        A(f"v_cvt_pk_bf16_f32 v{dst+i}, v{t}, v{t+1}")


def stage2(A, src, D):
    if "m" in os.environ.get("SK", ""):
        return
    for c in range(2):
        for s_ in range(4):
            cc = "0" if s_ == 0 else v(D+16*c, 16)
            A(f"{MF} {v(D+16*c,16)}, {v(F+16*c+4*s_,4)}, {v(src+4*s_,4)}, {cc}")


W_ = T6
NBW = 2048*513*2
SQ, SO, ST = 184, 185, 186
VA1, VA2, VA8, VLIN = 4, 5, 6, 7
_ph = [0]


def l_arrive(A):
    _ph[0] += 1
    A(f"v_mov_b32 v{ST+4}, {_ph[0]}")
    A(f"s_mov_b64 exec, 1\nds_write_b32 v{SO}, v{ST+4}\ns_mov_b64 exec, -1")
    return _ph[0]


def l_check(A, n, delta=0, slp=1):
    l, d = uid("lc"), uid("lcd")
    if delta:
        A(f"v_add_u32 v{ST+5}, {delta}, v{SQ}")
    A.label(l)
    A(f"ds_read_b128 {v(ST,4)}, v{ST+5 if delta else SQ}\ns_waitcnt lgkmcnt(0)")
    A(f"v_min3_u32 v{ST}, v{ST}, v{ST+1}, v{ST+2}\nv_min_u32 v{ST}, v{ST}, v{ST+3}")
    A(f"v_readfirstlane_b32 s{CNT}, v{ST}")
    A(f"s_cmp_ge_u32 s{CNT}, {n}")
    A(f"s_cbranch_scc1 {d}")
    A(f"s_sleep {slp}\ns_branch {l}")
    A.label(d)


def l_check_loose(A, n, delta):
    l = uid("ll")
    A(f"v_add_u32 v{ST+5}, {delta}, v{SQ}")
    for i in range(4):
        A(f"v_mov_b32 v{ST+i}, 0")
    A.label(l)
    A(f"ds_read_b128 {v(ST,4)}, v{ST+5}\ns_sleep 1")
    A(f"v_min3_u32 v{ST+4}, v{ST}, v{ST+1}, v{ST+2}\nv_min_u32 v{ST+4}, v{ST+4}, v{ST+3}")
    A(f"v_readfirstlane_b32 s{CNT}, v{ST+4}")
    A(f"s_cmp_lt_u32 s{CNT}, {n}")
    A(f"s_cbranch_scc1 {l}")


def l_sync(A):
    l_check(A, l_arrive(A))


def aux_setup_ax(A):
    srd(A, S2, WR, size=NBW)
    srd(A, S3, WI, size=NBW)
    A(f"s_and_b32 s{T0}, s2, 31\ns_lshr_b32 s{T1}, s2, 5\ns_lshl_b32 s{T1}, s{T1}, 7\ns_add_u32 s{T0}, s{T0}, s{T1}")
    A(f"s_lshl_b32 s{T1}, s{W_}, 5\ns_add_u32 s{T7}, s{T0}, s{T1}\ns_lshl_b32 s{T0}, s{T7}, 12")
    srd(A, AX, AX, T0, 0, 0x1000)
    A("v_lshlrev_b32 v2, 4, v1\nv_xor_b32 v3, 128, v2")
    A(f"s_lshl_b32 s{T8}, s{W_}, 12\ns_add_u32 s{T8}, s{T8}, {L_AX}")


def w_addr(A, W_):
    A(f"s_and_b32 s{T0}, s2, 7\ns_bfe_u32 s{T1}, s2, 0x10003\ns_bfe_u32 s{T2}, s2, 0x20004\ns_lshr_b32 s{T3}, s2, 6")
    A(f"s_lshr_b32 s{T4}, s{T0}, 1\ns_lshl_b32 s{T4}, s{T4}, 3\ns_lshl_b32 s{T5}, s{T1}, 2\ns_add_u32 s{T4}, s{T4}, s{T5}")
    A(f"s_and_b32 s{T5}, s{T0}, 1\ns_lshl_b32 s{T5}, s{T5}, 1\ns_add_u32 s{T4}, s{T4}, s{T5}\ns_lshl_b32 s{T4}, s{T4}, 5")
    A(f"s_lshl_b32 s{T5}, s{T2}, 3\ns_add_u32 s{T4}, s{T4}, s{T5}\ns_lshl_b32 s{T5}, s{W_}, 1\ns_add_u32 s{T4}, s{T4}, s{T5}\ns_mul_i32 s{T4}, s{T4}, 1026")
    A(f"s_lshl_b32 s{T5}, s{T3}, 8\ns_add_u32 s{T9}, s{T4}, s{T5}")
    A("v_bfe_u32 v8, v1, 4, 1\nv_mul_u32_u24 v8, 32832, v8")
    A(f"v_lshrrev_b32 v9, 5, v1\ns_mov_b32 s{T5}, 1050624\nv_mul_lo_u32 v9, s{T5}, v9\nv_add_u32 v8, v8, v9")
    A(f"v_and_b32 v9, 15, v1\ns_lshl_b32 s{T5}, s{W_}, 1\nv_xor_b32 v9, s{T5}, v9")
    A("v_lshl_add_u32 v18, v9, 4, v8\nv_xor_b32 v9, 1, v9\nv_lshl_add_u32 v19, v9, 4, v8\nv_add_u32 v19, 1026, v19")


def w_sym_addr(A):
    A(f"s_bfe_u32 s{T4}, s2, 0x20005\ns_lshl_b32 s{T4}, s{T4}, 8\ns_bfe_u32 s{T5}, s2, 0x10004\ns_lshl_b32 s{T5}, s{T5}, 6\ns_add_u32 s{T4}, s{T4}, s{T5}")
    A(f"s_bfe_u32 s{T5}, s2, 0x10003\ns_lshl_b32 s{T5}, s{T5}, 7\ns_add_u32 s{T4}, s{T4}, s{T5}\ns_and_b32 s{T5}, s2, 7\ns_lshl_b32 s{T5}, s{T5}, 2\ns_add_u32 s{T4}, s{T4}, s{T5}")
    A(f"v_bfe_u32 v8, v1, 3, 2\nv_add_u32 v8, s{T4}, v8\nv_bfe_u32 v9, v1, 2, 1\nv_lshl_add_u32 v8, v9, 5, v8\nv_bfe_u32 v9, v1, 1, 1\nv_lshl_add_u32 v8, v9, 10, v8")
    A("v_sub_u32 v9, 2048, v8\nv_and_b32 v9, 2047, v9\nv_and_b32 v10, 1, v1\nv_cmp_eq_u32 vcc, 1, v10\nv_cndmask_b32 v8, v8, v9, vcc")
    A(f"v_mul_u32_u24 v17, 1026, v8\ns_lshr_b32 s{T4}, s2, 7\ns_lshl_b32 s{T4}, s{T4}, 10\nv_add_u32 v17, s{T4}, v17")


def aux_setup_w(A):
    w_addr(A, W_)
    w_sym_addr(A)


def aux_setup2(A):
    make_F(A, 92)
    make_T(A, T, 92, 0)
    make_T(A, TT, 92, 1)


def aux_issue(A, vm):
    for c in range(2):
        A(f"s_add_u32 m0, s{T8}, {c*2048}")
        A(f"s_mov_b32 s{CNT}, {c*2048}")
        for u in range(2):
            vm.op(f"buffer_load_dwordx4 v{2+c}, {r4(AX)}, s{CNT} offen offset:{u*1024}{NT} lds", "ax")


def w_tile_issue(A, vm, sbase, const, bbs=range(2)):
    for bb in bbs:
        for arr in range(2):
            A(f"s_add_u32 m0, s{sbase}, {const + bb*2048 + arr*1024}")
            vm.op(f"buffer_load_dwordx4 v{18+bb}, {r4(S2 if arr == 0 else S3)}, s{T9} offen{NT} lds" if "1" not in SK else f"buffer_load_dword v23, v2, {r4(AX)}, 0 offen offset:4092", "w")


def w_sym_issue(A):
    nw = uid("nw")
    A(f"s_cmp_lg_u32 s{W_}, {3 if not ('1' in SK or 'p' in SK) else 9}\ns_cbranch_scc1 {nw}")
    A("s_mov_b32 exec_hi, 0")
    A(f"buffer_load_ushort v{WSP}, v17, {r4(S2)}, 0 offen{NT}")
    A(f"buffer_load_ushort v{WSP+1}, v17, {r4(S3)}, 0 offen{NT}")
    A("s_mov_b64 exec, -1")
    A.label(nw)


def w_issue(A, vm):
    w_tile_issue(A, vm, T8, L_W - L_AX)
    w_sym_issue(A)


WSP, IN, D, MID, TMP = 88, 24, 40, 72, 168
DY, W, TT = 72, 104, 136
M_, SPC, CJ, SGN = T0, T1, T2, T3
AUXK = E_("AUXK", 5)
GATE = E_("GATE", 0)
WK = E_("WK", 1)
WMID = WK <= 12
WSK = E_("WSK", 8)
A1K = E_("A1K", 0)
FINE = E_("FINE", 1)
ZSK = E_("ZSK", A1K + 3 + FINE)
LATE = A1K >= 6
A2G = E_("A2G", 0)
A3G = E_("A3G", 11)
A3S = E_("A3S", 0)
ZG = E_("ZG", 0)
CTW = E_("CTW", 0)
POLLK = E_("POLLK", 15)
VTLB, VTN, VTF = E_("VTLB", 0), E_("VTN", 1), (" nt" if E_("VTF", 1) else "")
TLBW = E_("TLBW", 0)
DEFER = E_("DEFER", 2)
DK0 = E_("DK0", 0)
LPOS = E_("LPOS", 6)
BARP = E_("BARP", 1)
SWAP = E_("SWAP", 1)
WPOS = E_("WPOS", 0)
ZPOS = E_("ZPOS", -1)
WTK = E_("WTK", 3)
EARLY2 = E_("EARLY2", 1)
SNON = E_("SNON", 0)
FPOLL = E_("FPOLL", 14)
WPK = E_("WPK", -1)
WBYG = E_("WBYG", 0)
WSPLIT = E_("WSPLIT", 0)
NZS = E_("NZS", 1)
TLBT = E_("TLBT", 0)
PRES = E_("PRES", 1)
NPRE = E_("NPRE", 3)
KS0 = E_("KS0", 2)
P1, P2A, P2B = E_("P1", 0), E_("P2A", 50), E_("P2B", 95)
LDEF = E_("LDEF", 0)
LSLP = E_("LSLP", 1)
WSH = E_("WSH", 1)
PRE1, PRE2 = E_("PRE1", 6), E_("PRE2", 12)
HALF = E_("HALF", 0)
WEARLY = E_("WEARLY", 0)
KA, KA0, KA1, KAG = E_("KA", 0), E_("KA0", 1), E_("KA1", 15), E_("KAG", 0)
G1X = os.environ.get("G1X", "")
WMODE = E_("WMODE", 0)
CPK = [int(x) for x in os.environ.get("CPK", "").split(",") if x]
WXT = E_("WXT", 0)
RSLP = E_("RSLP", 1)
PAL = E_("PAL", 0)
NREPA = E_("NREPA", 8)
AXT = E_("AXT", 0)
APRIO, GPRIO = E_("APRIO", 0), E_("GPRIO", 1)
FM, CM = E_("FM", 12), E_("CM", 4)
DMAP = os.environ.get("DMAP", "5,9,13,17,21,25,29,33")
CSP, CSP0, CSB, CSPH = E_("CSP", 0), E_("CSP0", 2), E_("CSB", 12), E_("CSPH", 1)
SK = os.environ.get("SK", "")
A2C = E_("A2C", 0)
LPRIO3 = E_("LPRIO3", 0)
LPRIO0 = E_("LPRIO0", 3)
LPRIO, LPRIO2 = E_('LPRIO', 0), E_('LPRIO2', 0)
L_IMG = 98304
LIMG_FREE = 2


def img(i):
    ka = 8*(i >> 2) + (i & 3)
    return (VA1, ka*1024) if i < 8 else (VA8, 0) if i == 8 else (VA2, (27 - ka)*1024)


def aux_pre_a(A):
    A(f"v_mov_b32 v{SQ}, {L_SYNC + 16}\ns_lshl_b32 s{T4}, s{W_}, 2\nv_add_u32 v{SO}, s{T4}, v{SQ}")
    A("v_and_b32 v8, 31, v1\nv_lshrrev_b32 v9, 5, v1\nv_and_b32 v10, 1, v1")
    A(f"v_lshrrev_b32 v11, 1, v8\nv_lshlrev_b32 v{VA1}, 6, v11\nv_lshl_add_u32 v{VA1}, v10, 4, v{VA1}\nv_lshl_add_u32 v{VA1}, v9, 12, v{VA1}")
    A(f"v_add_u32 v11, v11, v10\nv_lshlrev_b32 v11, 6, v11\nv_lshl_add_u32 v11, v10, 4, v11\nv_lshl_add_u32 v11, v9, 12, v11\nv_sub_u32 v{VA2}, {5120 + 48}, v11")
    for r in (VA1, VA2):
        A(f"v_bfe_u32 v11, v{r}, 7, 1\nv_lshlrev_b32 v11, 5, v11\nv_xor_b32 v{r}, v{r}, v11")
    A(f"v_add_u32 v{VA8}, 11264, v{VA2}\nv_and_b32 v{VA8}, 0x3fff, v{VA8}")
    A(f"s_add_u32 s{T4}, s{T4}, {L_IMG}")
    for r in (VA1, VA2, VA8):
        A(f"v_add_u32 v{r}, s{T4}, v{r}")
    A(f"v_bfe_u32 v11, v1, 3, 1\nv_lshlrev_b32 v11, 5, v11\nv_xor_b32 v{VLIN}, v2, v11")

    A("v_bfe_u32 v12, v1, 2, 1\nv_mul_u32_u24 v12, 2176, v12")
    A("v_bfe_u32 v13, v1, 3, 1\nv_lshl_add_u32 v12, v13, 6, v12\nv_lshl_add_u32 v12, v9, 8, v12")
    A("v_bfe_u32 v13, v1, 4, 1\nv_lshl_add_u32 v12, v13, 5, v12\nv_and_b32 v13, 3, v1\nv_lshl_add_u32 v12, v13, 3, v12")
    A(f"v_add_u32 v12, s{T8}, v12\nv_xor_b32 v13, 128, v12")
    if INOUT:
        A(f"s_lshl_b32 s{T4}, s{T7}, 14")
        srd(A, S0, OUT, T4, 0, 0x1000)
        srd(A, S1, OUT, T4, 0, 0x1000)
    else:
        A(f"s_lshl_b32 s{T4}, s2, 14\ns_lshl_b32 s{T5}, s{W_}, 12\ns_add_u32 s{T4}, s{T4}, s{T5}")
        srd(A, S0, WS, T4, WS_Z1, 0x1000)
        srd(A, S1, WS, T4, WS_Z3, 0x1000)


def aux_pre_w(A):
    A(f"v_and_b32 v14, 7, v1\nv_lshrrev_b32 v15, 3, v1\nv_xor_b32 v16, v14, v15\nv_lshlrev_b32 v16, 4, v16\nv_lshl_add_u32 v16, v14, 11, v16")
    A(f"s_lshr_b32 s{T4}, s{W_}, 1\ns_lshl_b32 s{T4}, s{T4}, 7\ns_and_b32 s{T5}, s{W_}, 1\ns_lshl_b32 s{T5}, s{T5}, 3\ns_add_u32 s{T4}, s{T4}, s{T5}\ns_add_u32 s{T4}, s{T4}, {L_W}")
    A(f"v_add_u32 v{VWR}, s{T4}, v16")
    A(f"v_lshlrev_b32 v15, {18 if INOUT else 16}, v15\nv_lshl_add_u32 v22, v14, 4, v15")
    A(f"s_lshl_b32 s{T4}, s{T3}, 7\ns_lshr_b32 s{T5}, s{W_}, 1\ns_lshl_b32 s{T5}, s{T5}, 6\ns_add_u32 s{T4}, s{T4}, s{T5}")
    A(f"s_and_b32 s{T5}, s{W_}, 1\ns_lshl_b32 s{T5}, s{T5}, 2\ns_add_u32 s{T4}, s{T4}, s{T5}\ns_mul_i32 s{T4}, s{T4}, {KS_}")
    A(f"s_lshr_b32 s{T5}, s{T0}, 2\ns_mul_i32 s{T5}, s{T5}, {ISH - 4096}\ns_add_u32 s{T4}, s{T4}, s{T5}")
    A(f"s_lshl_b32 s{T5}, s{T0}, 10\ns_add_u32 s{T4}, s{T4}, s{T5}\ns_lshl_b32 s{T5}, s{T1}, 9\ns_add_u32 s{T4}, s{T4}, s{T5}\ns_lshl_b32 s{T5}, s{T2}, 7\ns_add_u32 s{T4}, s{T4}, s{T5}")
    if INOUT:
        A(f"s_add_u32 s{T4}, s{T4}, 8192")
        srd(A, S4, OUT, T4, 0, 0x1000000, T4)
    else:
        srd(A, S4, WS, T4, WS_WT + 2*KS_, 0x400000, T4)


KNAME_ = [None]


def code_touch(A, t0):
    name = KNAME_[0]
    pc = uid("pc")
    per = 6
    A(f"s_getpc_b64 {sp(t0)}")
    A.label(pc)
    A(f"s_sub_u32 s{t0}, s{t0}, {pc}-{name}\ns_subb_u32 s{t0+1}, s{t0+1}, 0")
    A(f"s_lshr_b32 s{CNT}, s2, 3\ns_lshl_b32 s{CNT}, s{CNT}, 2\ns_add_u32 s{CNT}, s{CNT}, s{W_}\ns_mul_i32 s{CNT}, s{CNT}, {per*64}")
    A(f"s_min_u32 s{CNT}, s{CNT}, L_{name}_end-{name}-{per*64}")
    for q in range(per):
        A(f"s_load_dword s3, {sp(t0)}, s{CNT} offset:{q*64}")


def c_prefetch(A, p, done):
    A(f"s_load_dwordx4 s[8:11], s[0:1], 64")
    A(f"s_and_b32 s12, s{TJ}, 7\ns_lshl_b32 s13, s12, 7\ns_and_b32 s14, s{TI}, 3\ns_lshl_b32 s14, s14, 5\ns_add_u32 s13, s13, s14")
    A(f"s_sub_u32 s14, s{W_}, 1\ns_mul_i32 s14, s14, 11\ns_min_u32 s14, s14, 21\ns_add_u32 s13, s13, s14\ns_lshl_b32 s13, s13, 11")
    A(f"s_lshr_b32 s14, s{TJ}, 3\ns_lshl_b32 s14, s14, 10\ns_add_u32 s13, s13, s14\ns_waitcnt lgkmcnt(0)")
    A("s_add_u32 s4, s8, s13\ns_addc_u32 s5, s9, 0\ns_add_u32 s6, s10, s13\ns_addc_u32 s7, s11, 0")
    cnt = 0
    for n in range(CSP0, CSP0 + CSP):
        A(f"s_add_u32 s15, s12, {n}\ns_and_b32 s15, s15, 7\ns_lshl_b32 s15, s15, 7")
        for r in range(11):
            for arr in range(2):
                for sec in range(2):
                    A(f"s_load_dword s3, s[{4+2*arr}:{5+2*arr}], s15 offset:{r*2048 + sec*64}")
                    cnt += 1
                    if cnt % CSB == 0:
                        A(f"ds_read_b128 {v(ST,4)}, v{SQ}\ns_waitcnt lgkmcnt(0)")
                        A(f"v_min3_u32 v{ST}, v{ST}, v{ST+1}, v{ST+2}\nv_min_u32 v{ST}, v{ST}, v{ST+3}")
                        A(f"v_readfirstlane_b32 s{CNT}, v{ST}\ns_cmp_ge_u32 s{CNT}, {p}\ns_cbranch_scc1 {done}")


def c_touch(A, vm):
    A(f"s_and_b32 s{T4}, s2, 1\ns_lshl_b32 s{T4}, s{T4}, 10\ns_bfe_u32 s{CNT}, s2, 0x20001\ns_lshl_b32 s{CNT}, s{CNT}, 19\ns_add_u32 s{T4}, s{T4}, s{CNT}")
    A(f"s_lshr_b32 s{CNT}, s2, 3\ns_lshl_b32 s{CNT}, s{CNT}, 14\ns_add_u32 s{T4}, s{T4}, s{CNT}")
    A(f"s_lshr_b32 s{CNT}, s{W_}, 1\ns_lshl_b32 s{CNT}, s{CNT}, 13\ns_add_u32 s{T4}, s{T4}, s{CNT}")
    A(f"v_bfe_u32 v22, v1, 3, 2\nv_lshlrev_b32 v22, 11, v22\nv_and_b32 v23, 7, v1\nv_lshl_add_u32 v22, v23, 7, v22\nv_add_u32 v22, s{T4}, v22")
    A("s_mov_b32 exec_hi, 0")
    vm.op(f"global_load_dword v23, v22, s[100:101]", "touch")
    A("s_mov_b64 exec, -1")


def flag_poll(A, flg):
    A(f"s_lshl_b32 s{T4}, s2, 2\ns_add_u32 s{T4}, s{T4}, s{W_}\ns_lshr_b32 s{T4}, s{T4}, 4\ns_lshl_b32 s{T4}, s{T4}, 7\ns_add_u32 s{T4}, s{T4}, {flg}")
    A(f"s_add_u32 s24, s{WS}, s{T4}\ns_addc_u32 s25, s{WS+1}, 0")
    A(f"s_load_dwordx16 s[4:19], s[24:25], 0x0 glc")


def flag_wait(A):
    late, go, pl_ = uid("late"), uid("go"), uid("sp")
    A(f"s_mov_b32 s26, s{NONCE}\ns_mov_b32 s27, s{NONCE}\ns_mov_b32 s{CNT}, 0\ns_branch {pl_}")
    A.label(late)
    A(f"s_add_u32 s{CNT}, s{CNT}, 1\ns_cmp_ge_u32 s{CNT}, {SPIN_MAX}\ns_cbranch_scc1 {go}")
    A(f"s_sleep 8\ns_load_dwordx16 s[4:19], s[24:25], 0x0 glc")
    A.label(pl_)
    A("s_waitcnt lgkmcnt(0)")
    for q in range(8):
        A(f"s_cmp_eq_u64 s[{4+2*q}:{5+2*q}], s[26:27]\ns_cbranch_scc0 {late}")
    A.label(go)


RR = lambda arr, kind: 104 + (arr*4 + kind)*2


VWR = 21


def wt_read(A, fin=True):
    for arr in range(2):
        for kind in range(4):
            A(f"ds_read_b64 {v(RR(arr,kind),2)}, v{VWR} offset:{arr*1024 + kind*256}")


def wt_sym(A):
    A(f"s_mov_b32 s{T4}, 0x05040100\ns_mov_b32 s{T5}, 0x07060302")
    A(f"v_lshlrev_b32 v{WSP}, 16, v{WSP}\nv_lshlrev_b32 v{WSP+1}, 16, v{WSP+1}\nv_lshlrev_b32 v23, 1, v1")
    A(f"v_add_f32_dpp v{WSP+2}, v{WSP}, v{WSP} quad_perm:[1,0,3,2] row_mask:0xf bank_mask:0xf")
    A(f"v_subrev_f32_dpp v{WSP+3}, v{WSP+1}, v{WSP+1} quad_perm:[1,0,3,2] row_mask:0xf bank_mask:0xf")
    A(f"v_mul_f32 v{WSP+2}, 0.5, v{WSP+2}\nv_mul_f32 v{WSP+3}, 0.5, v{WSP+3}")
    A(f"v_cvt_pk_bf16_f32 v{WSP}, v{WSP+2}, v{WSP+3}")


def wt_perm(A):
    for kap in range(4):
        o = 120 + 4*kap
        for e in range(2):
            for h2 in range(2):
                kind = e + 2*h2
                A(f"v_perm_b32 v{o+2*e+h2}, v{RR(1,kind)+kap//2}, v{RR(0,kind)+kap//2}, s{T4 + kap % 2}")


def wt_store(A, vm):
    nw = uid("nw")
    A(f"s_cmp_lg_u32 s{W_}, 3\ns_cbranch_scc1 {nw}")
    A(f"s_lshr_b32 s{T4}, s2, 7\ns_mul_i32 s{T4}, s{T4}, {KS_}\ns_bfe_u32 s{T5}, s2, 0x10006\ns_mul_i32 s{T5}, s{T5}, {ISH}\ns_add_u32 s{T4}, s{T4}, s{T5}")
    A(f"s_and_b32 s{T5}, s2, 63\ns_lshl_b32 s{T5}, s{T5}, 6\ns_add_u32 s{T4}, s{T4}, s{T5}")
    srd(A, 4, WS, T4, WS_WT, 64)
    A("s_mov_b32 exec_lo, 0x55555555\ns_mov_b32 exec_hi, 0")
    if not E_("SKIPS", 0):
        A(f"buffer_store_dword v{WSP}, v23, {r4(4)}, 0 offen sc1")
    A("s_mov_b64 exec, -1")
    A.label(nw)
    for kap in range(0 if "2" in SK else 4):
        A(f"s_mov_b32 s{CNT}, {kap*KS_}")
        vm.op(f"buffer_store_dwordx4 {v(120+4*kap,4)}, v22, {r4(S4)}, s{CNT} offen sc1", "wst")


def a1_stores(A, vm):
    for u in range(0 if "3" in SK else 4):
        vm.op(f"buffer_store_dwordx4 {v(MID+4*u,4)}, v2, {r4(S0)}, 0 offen offset:{u*1024} sc1", "zst")
    if WMODE == 0 and WTK == ZPOS:
        wt_store(A, vm)


def a1_task(A, vm):
    vm.wait_for("ax")
    trace(A, 0, 2)
    for s_ in range(4):
        for u in range(2):
            A(f"ds_read_b64_tr_b16 {v(IN+4*s_+2*u,2)}, v{12+u} offset:{s_*512}")
    A("s_waitcnt lgkmcnt(0)")
    stage1(A, IN, D)
    twiddle(A, D, MID, TMP)
    stage2(A, MID, D)
    A(f"s_lshl_b32 s{CNT}, s{W_}, 12\ns_add_u32 s{CNT}, s{CNT}, {L_IMG}\nv_add_u32 v8, s{CNT}, v{VLIN}")
    for i in range(16):
        A(f"v_cvt_pk_bf16_f32 v{MID+i}, v{D+i}, v{D+16+i}")
        a, o = img(i)
        A(f"ds_write_b32 v{a}, v{MID+i} offset:{o}")
    trace(A, 0, 3)
    if WMODE == 0 and WPK < 0:
        if WBYG:
            A("s_waitcnt vmcnt(0)")
            l_check(A, 1, RING_LG - 16)
        else:
            vm.wait_for("w")
    A("s_waitcnt lgkmcnt(0)")
    l_sync(A)
    trace(A, 0, 4)
    for u in range(4):
        A(f"ds_read_b128 {v(MID+4*u,4)}, v8 offset:{u*1024}")
    if WMODE == 0 and WPK < 0:
        wt_read(A)
    for r in (VA1, VA2, VA8):
        A(f"v_add_u32 v{r}, {L_AX - L_IMG}, v{r}")
    A("s_waitcnt lgkmcnt(0)")
    p = l_arrive(A)
    assert p == LIMG_FREE
    if NZS:
        nn = uid("nn")
        A(f"s_lshl_b32 s{CNT}, s2, 3\ns_add_u32 s{CNT}, s{CNT}, s{WAVE}\ns_cmp_lg_u32 s{CNT}, 4\ns_cbranch_scc1 {nn}")
        A(f"s_add_u32 s3, s3, 1\ns_cmp_eq_u32 s3, 0\ns_cselect_b32 s3, 1, s3")
        A(f"s_atomic_swap s3, {sp(DBG)}, 0x0\ns_atomic_swap s3, {sp(WS)}, {hex(WS_NONCE)}")
        A.label(nn)
    if WMODE == 0 and WPK < 0:
        wt_sym(A)
        wt_perm(A)
    if EARLY2:
        make_T(A, TT, 92, 1)
        a2_setup(A)
    if ZPOS < 0:
        a1_stores(A, vm)
    trace(A, 0, 5)


def a2_setup(A):
    A(f"s_and_b32 s{M_}, s2, 7\ns_lshl_b32 s{M_}, s{M_}, 5\ns_lshr_b32 s{T4}, s2, 3\ns_add_u32 s{M_}, s{M_}, s{T4}")
    A(f"s_lshr_b32 s{T4}, s{W_}, 1\ns_xor_b32 s{T4}, s{T4}, s{W_}\ns_and_b32 s{T4}, s{T4}, 1")
    A(f"s_or_b32 s{T5}, s{T4}, s{M_}\ns_cmp_eq_u32 s{T5}, 0\ns_cselect_b32 s{SPC}, 1, 0")
    A(f"s_lshl_b32 s{T5}, s{M_}, 1\ns_add_u32 s{T4}, s{T4}, s{T5}")
    A(f"s_mul_i32 s{T4}, s{T4}, {KS_}\ns_add_u32 s{T4}, s{T4}, {8192 if INOUT else WS_WT + 2*KS_}")
    A(f"s_lshr_b32 s{T5}, s{W_}, 1\ns_mul_i32 s{T9}, s{T5}, {KS_}\ns_add_u32 s{T9}, s{T9}, {WS_WT}")
    A(f"s_cmp_eq_u32 s{SPC}, 1\ns_cselect_b32 s{T4}, s{T9}, s{T4}\ns_cselect_b32 s{T5}, 0, s{T5}")
    A(f"s_cselect_b32 s{MSK}, s{WS}, s{OUT if INOUT else WS}\ns_cselect_b32 s{MSK+1}, s{WS+1}, s{(OUT if INOUT else WS)+1}")
    A(f"s_lshl_b32 s{CJ}, s{T5}, 31\ns_or_b32 s{SGN}, s{CJ}, 0x3f800000")
    srd(A, S2, MSK, T4, 0, ISH + 4096)
    if INOUT:
        A(f"s_lshl_b32 s{T4}, s{W_}, 22\ns_lshr_b32 s{T5}, s{M_}, 6\ns_lshl_b32 s{T5}, s{T5}, 19\ns_add_u32 s{T4}, s{T4}, s{T5}")
        A(f"s_and_b32 s{T5}, s{M_}, 63\ns_lshl_b32 s{T5}, s{T5}, 6\ns_add_u32 s{T4}, s{T4}, s{T5}")
        srd(A, S3, OUT, T4, 0, 160*16384, T5)
        srd(A, S4, OUT, T4, 0, 160*16384, T5)
    else:
        A(f"s_lshl_b32 s{T4}, s{W_}, 20\ns_lshl_b32 s{T5}, s{M_}, 6\ns_add_u32 s{T4}, s{T4}, s{T5}")
        assert WS_Z1 == WS_Z3
        srd(A, S3, WS, T4, WS_Z1, 0x100000, T5)
    A("v_lshrrev_b32 v8, 2, v1\nv_lshlrev_b32 v8, 14, v8\nv_and_b32 v9, 3, v1\nv_lshrrev_b32 v10, 4, v1\nv_xor_b32 v9, v9, v10\nv_lshl_add_u32 v14, v9, 4, v8")
    A(f"v_and_b32 v8, 31, v1\nv_bfe_u32 v9, v1, 2, 2\nv_xor_b32 v9, s{W_}, v9\nv_lshlrev_b32 v9, 4, v9\nv_lshl_add_u32 v9, v8, 6, v9")
    A(f"v_lshrrev_b32 v8, 5, v1\nv_lshl_add_u32 v9, v8, 11, v9\nv_add_u32 v15, {L_AX}, v9")
    A(f"s_lshl_b32 s{T4}, s{W_}, 13\ns_add_u32 s{T4}, s{T4}, {L_AX}\nv_add_u32 v16, s{T4}, v2")
    A(f"s_xor_b32 s{T5}, s{T4}, {3 << 13}\ns_cmp_eq_u32 s{SPC}, 1\ns_cselect_b32 s{T5}, s{T4}, s{T5}\nv_add_u32 v17, s{T5}, v2")
    A(f"v_add_u32 v18, s{T8}, v2")
    A(f"s_lshr_b32 s{T4}, s{W_}, 1\ns_xor_b32 s{T4}, s{T4}, s{W_}\ns_and_b32 s{T4}, s{T4}, 1\ns_lshl_b32 s{T9}, s{T4}, 13\ns_add_u32 s{T9}, s{T9}, {L_W}\nv_add_u32 v19, s{T9}, v2")
    for kk in range(32):
        A(f"v_mul_f32 v{TT+kk}, s{SGN}, v{TT+kk}")


ZU = lambda u: (16*(u & 1) + 128*(u >> 1))*16384 if INOUT else u << 18


def a2_loads(A, z=True, w=True):
    for u in range(4 if z and '5' not in SK else 0):
        A(f"s_add_u32 m0, s{T8}, {u*1024}\ns_mov_b32 s{T4}, {ZU(u)}")
        A(f"buffer_load_dwordx4 v14, {r4(S3)}, s{T4} offen sc1 lds")
    if WSH:
        a, b = uid("ws"), uid("wd")
        A(f"s_cmp_eq_u32 s{SPC}, 1\ns_cbranch_scc1 {a}")
        A(f"s_lshr_b32 s{T4}, s{W_}, 1\ns_lshl_b32 s{T5}, s{T4}, 12\ns_mul_i32 s{T4}, s{T4}, {ISH}\ns_add_u32 m0, s{T9}, s{T5}")
        for u in range(4):
            A(f"buffer_load_dwordx4 v2, {r4(S2)}, s{T4} offen offset:{u*1024} sc1 lds")
        A(f"s_waitcnt vmcnt(0)\ns_branch {b}")
        A.label(a)
    A(f"s_movk_i32 s{T4}, {ISH}")
    for it in range(8 if w and '4' not in SK else 0):
        A(f"buffer_load_dwordx4 {v(W+4*it,4)}, v2, {r4(S2)}, {'0' if it < 4 else f's{T4}'} offen offset:{(it & 3)*1024} sc1")
    if WSH:
        A.label(b)


PH_RES = 18


def phase_atomic(A, cnt, p):
    x = uid("ph")
    A(f"s_cmp_lg_u32 s{W_}, 0\ns_cbranch_scc1 {x}")
    l_check(A, p)
    A(f"s_and_b32 s{T4}, s2, 15\ns_lshl_b32 s{T5}, s{T4}, 7\ns_add_u32 s{T5}, s{T5}, {cnt}")
    A(f"s_add_u32 s{MSK}, s{WS}, s{T5}\ns_addc_u32 s{MSK+1}, s{WS+1}, 0\ns_mov_b32 s{PH_RES}, 1")
    A(f"s_atomic_add s{PH_RES}, {sp(MSK)}, 0x0 glc")
    A.label(x)


def phase_last(A, flg, wait=True, nrep=None):
    y = uid("sg")
    A(f"s_cmp_lg_u32 s{W_}, 0\ns_cbranch_scc1 {y}")
    A(f"s_and_b32 s{T4}, s2, 15\ns_lshl_b32 s{T4}, s{T4}, 2\ns_add_u32 s{T4}, s{T4}, {flg}")
    A(f"s_add_u32 s4, s{WS}, s{T4}\ns_addc_u32 s5, s{WS+1}, 0")
    A("s_waitcnt lgkmcnt(0)")
    A(f"s_cmp_lg_u32 s{PH_RES}, 15\ns_cbranch_scc1 {y}")
    for r in range(nrep or NREP):
        A(f"s_atomic_swap s{NONCE}, s[4:5], {hex(r*128)}")
    if wait:
        A("s_waitcnt lgkmcnt(0)")
    A.label(y)


def phase_wait(A, flg, tb, nrep=None):
    x, pl_, nok = uid("ph"), uid("sp"), uid("nok")
    A(f"s_cmp_lg_u32 s{W_}, 0\ns_cbranch_scc1 {x}")
    A(f"s_and_b32 s{T4}, s2, {(nrep or NREP) - 1}\ns_lshl_b32 s{T4}, s{T4}, 7\ns_add_u32 s{T4}, s{T4}, {flg}")
    A(f"s_add_u32 s{MSK}, s{WS}, s{T4}\ns_addc_u32 s{MSK+1}, s{WS+1}, 0\ns_mov_b32 s{T4}, s{NONCE}\ns_mov_b32 s{T5}, s{NONCE}\ns_mov_b32 s{CNT}, 0")
    A(f"s_branch {pl_}")
    A.label(nok)
    A(f"s_add_u32 s{CNT}, s{CNT}, 1\ns_cmp_ge_u32 s{CNT}, {SPIN_MAX}\ns_cbranch_scc1 {x}")
    if SLP_A:
        A(f"s_sleep {SLP_A}")
    A.label(pl_)
    A(f"s_load_dwordx16 s[4:19], {sp(MSK)}, 0x0 glc\ns_waitcnt lgkmcnt(0)")
    for q in range(8):
        A(f"s_cmp_eq_u64 s[{4+2*q}:{5+2*q}], {sp(T4)}\ns_cbranch_scc0 {nok}")
    if TRACE:
        A(f"v_writelane_b32 v0, s{CNT}, {tb}")
    A.label(x)
    p2 = l_arrive(A)
    if CSP and flg == (FLG_A if CSPH == 0 else FLG_B):
        dn = uid("csp")
        A(f"s_cmp_eq_u32 s{W_}, 0\ns_cbranch_scc1 {dn}")
        c_prefetch(A, p2, dn)
        A.label(dn)
    l_check(A, p2, slp=LSLP)


def aux_rest(A, vm):
    def phase(cnt, flg, young=0):
        trace(A, 0, 48)
        A(f"s_waitcnt vmcnt({young})")
        trace(A, 0, 49)
        p = l_arrive(A)
        phase_atomic(A, cnt, p)
        phase_last(A, flg)
        trace(A, 0, 50)
        phase_wait(A, flg, 62)
        trace(A, 0, 51)
    if ZPOS >= 11:
        phase(CNT_A, FLG_A)
    elif FPOLL:
        flag_wait(A)
    else:
        phase_wait(A, FLG_A, 61, 64)
    trace(A, 0, 7)
    A(f"s_setprio {LPRIO2}")
    if A2G:
        l_check(A, A2G % 100, RING_D - 16 if A2G < 100 else -16)
    if CTW == 2:
        c_touch(A, vm)
    trace(A, 0, 8)
    a2_loads(A)
    mark(A, 7)
    A(f"s_waitcnt vmcnt({0 if '4' in SK else 8})")
    trace(A, 0, 9)
    if E_("AM", 0) in (1, 2):
        mark(A, 1)
    l_sync(A)
    trace(A, 0, 10)
    INS = 72
    for s_ in range(4):
        A(f"ds_read_b128 {v(INS+4*s_,4)}, v15 offset:{s_*4096}")
    if WSH:
        a = uid("wr")
        A(f"s_cmp_eq_u32 s{SPC}, 1\ns_cbranch_scc1 {a}")
        for it in range(8):
            A(f"ds_read_b128 {v(W+4*it,4)}, v19 offset:{it*1024}")
        A.label(a)
    A("s_waitcnt lgkmcnt(0)")
    if E_("AM", 0) == 2:
        mark(A, 2)
    p6 = l_arrive(A)
    if A2C:
        l_check(A, A2C, -16)
    A(f"s_lshl_b32 s{T4}, s{SPC}, 31\ns_or_b32 s{T4}, s{T4}, s{CJ}")
    fl, nwr = uid("fft"), uid("nwr")
    A.label(fl)
    for i in range(16):
        A(f"v_xor_b32 v{IN+i}, s{T4}, v{INS+i}")

    def pre(rng):
        for i in rng:
            w, rho, sg = W + 2*i, TT + i, TT + 16 + i
            r1, i1, r2, i2, Ar, Ai = (TMP + 8 + c for c in range(6))
            A(f"v_lshlrev_b32 v{r1}, 16, v{w}\nv_and_b32 v{i1}, 0xffff0000, v{w}")
            A(f"v_lshlrev_b32 v{r2}, 16, v{w+1}\nv_and_b32 v{i2}, 0xffff0000, v{w+1}")
            A(f"v_add_f32 v{Ar}, v{r1}, v{r2}\nv_add_f32 v{Ai}, v{i1}, v{i2}")
            A(f"v_sub_f32 v{r1}, v{r1}, v{r2}\nv_sub_f32 v{i1}, v{i1}, v{i2}")
            A(f"v_mul_f32 v{w}, v{rho}, v{r1}\nv_mul_f32 v{w+1}, v{rho}, v{i1}")
            A(f"v_fma_f32 v{rho}, v{sg}, v{r1}, v{Ar}\nv_fma_f32 v{sg}, v{sg}, v{i1}, v{Ai}")

    def once(rng):
        a = uid("once")
        A(f"s_cmp_eq_u32 s{SPC}, 2\ns_cbranch_scc1 {a}\ns_waitcnt vmcnt(0)")
        pre(rng)
        A.label(a)
    stage1(A, IN, D)
    once(range(0, PRE1))
    twiddle(A, D, IN, TMP)
    stage2(A, IN, D)
    once(range(PRE1, PRE2))
    l_check(A, p6)
    if E_("AM", 0) == 2:
        mark(A, 5)
    A(f"s_cmp_eq_u32 s{SPC}, 2\ns_cbranch_scc1 {nwr}")
    for c in range(8):
        A(f"ds_write_b128 v16, {v(D+4*c,4)} offset:{c*1024}")
    A(f"s_cmp_eq_u32 s{SPC}, 0\ns_cbranch_scc1 {nwr}")
    A(f"s_mov_b32 s{SPC}, 2\ns_mov_b32 s{T4}, 0\ns_branch {fl}")
    A.label(nwr)
    pre(range(PRE2, min(16, PRE2 + 2)))
    A("s_waitcnt lgkmcnt(0)")
    p7 = l_arrive(A)
    pre(range(min(16, PRE2 + 2), 16))

    def own(rng):
        for i in rng:
            Xr, Xi, mr, mi, t = D+i, D+16+i, TT+i, TT+16+i, TMP + (i & 1)
            A(f"v_mul_f32 v{t}, v{mi}, v{Xi}\nv_mul_f32 v{Xi}, v{mr}, v{Xi}")
            A(f"v_fmac_f32 v{Xi}, v{mi}, v{Xr}\nv_fma_f32 v{Xr}, v{mr}, v{Xr}, -v{t}")
    own(range(0, 6))
    l_check(A, p7)
    for c in range(8):
        A(f"ds_read_b128 {v(DY+4*c,4)}, v17 offset:{c*1024}")
    own(range(6, 16))
    A("s_waitcnt lgkmcnt(0)")
    if E_("AM", 0) in (1, 2):
        mark(A, 4)
    p8 = l_arrive(A)
    for i in range(16):
        Pr, Pi, Yr, Yi, gr, gi = D+i, D+16+i, DY+i, DY+16+i, W+2*i, W+2*i+1
        A(f"v_fma_f32 v{Pr}, -v{gr}, v{Yi}, v{Pr}\nv_fmac_f32 v{Pi}, v{gr}, v{Yr}")
        A(f"v_fma_f32 v{Pr}, -v{gi}, v{Yr}, v{Pr}\nv_fma_f32 v{Pi}, -v{gi}, v{Yi}, v{Pi}")
        A(f"v_cvt_pk_bf16_f32 v{IN+i}, v{Pi}, v{Pr}")
    if E_("AM", 0) == 2:
        mark(A, 6)
    stage1(A, IN, D)
    twiddle(A, D, IN, TMP)
    stage2(A, IN, D)
    A(f"s_lshr_b32 s{T4}, s{CJ}, 16")
    l_check(A, p8)
    for s_ in range(4):
        for r in range(4):
            i = 4*s_ + r
            A(f"v_cvt_pk_bf16_f32 v{IN+i}, v{D+i}, v{D+16+i}\nv_xor_b32 v{IN+i}, s{T4}, v{IN+i}")
        A(f"ds_write_b128 v15, {v(IN+4*s_,4)} offset:{s_*4096}")
    A("s_waitcnt lgkmcnt(0)")
    if E_("AM", 0) == 2:
        mark(A, 7)
    l_sync(A)
    for u in range(4):
        A(f"ds_read_b128 {v(IN+4*u,4)}, v18 offset:{u*1024}")
    for u in range(4):
        A(f"s_mov_b32 s{T4}, {ZU(u)}\ns_waitcnt lgkmcnt({3-u})")
        if "6" not in SK:
            A(f"buffer_store_dwordx4 {v(IN+4*u,4)}, v14, {r4(S3)}, s{T4} offen sc1")
    trace(A, 0, 11)
    if E_("AM", 0) != 3 and not E_("GM", 0):
        mark(A, 3)
    A(f"s_lshl_b32 s{T4}, s{T7}, 14")
    srd(A, S0, OUT, T4, 0, 0x4000)
    A("v_and_b32 v8, 31, v1\nv_lshrrev_b32 v9, 5, v1\nv_lshlrev_b32 v14, 2, v8\nv_lshl_add_u32 v14, v9, 9, v14")
    A(f"s_mov_b32 s{T4}, 0x35000000")
    for k in range(32):
        A(f"v_mul_f32 v{T+k}, s{T4}, v{T+k}")
    phase(CNT_B, FLG_B)
    A(f"s_setprio {LPRIO3}")
    if A3G:
        l_check(A, A3G, -16)
    trace(A, 0, 12)
    if E_("AM", 0) != 3:
        mark(A, 8)
    A(f"s_mov_b32 m0, s{T8}")
    for u in range(4):
        if "7" not in SK:
            A(f"buffer_load_dwordx4 v{VLIN}, {r4(S1)}, 0 offen offset:{u*1024} sc1 lds")
    A("s_waitcnt vmcnt(0)")
    trace(A, 0, 13)
    l_sync(A)
    for i in range(16):
        a, o = img(i)
        A(f"ds_read_b32 v{IN+i}, v{a} offset:{o}")
    A("s_waitcnt lgkmcnt(0)")
    stage1(A, IN, D)
    twiddle(A, D, IN, TMP)
    stage2(A, IN, D)
    A(f"s_movk_i32 s{T4}, 0x2000")
    O = 72
    for part in range(2 if A3S else 1):
        if part == 1:
            l_check(A, A3S, -16)
        for i in range(16):
            o = O + 2*i
            if part == 0:
                A(f"v_cvt_pk_bf16_f32 v{o+1}, v{D+16+i}, v{D+i}")
                A(f"v_lshlrev_b32 v{o}, 16, v{o+1}\nv_and_b32 v{o+1}, 0xffff0000, v{o+1}")
            off = (i >> 2)*1024 + (i & 3)*128
            if "8" not in SK and (part == 1 or not A3S):
                A(f"buffer_store_dword v{o}, v14, {r4(S0)}, 0 offen offset:{off}{OST}")
                A(f"buffer_store_dword v{o+1}, v14, {r4(S0)}, s{T4} offen offset:{off}{OST}")


def cmul_sq(A, d, a, t):
    A(f"v_mul_f32 {v(t)}, {v(a+1)}, {v(a+1)}")
    A(f"v_mul_f32 {v(t+1)}, {v(a)}, {v(a+1)}")
    A(f"v_fma_f32 {v(d)}, {v(a)}, {v(a)}, -{v(t)}")
    A(f"v_add_f32 {v(d+1)}, {v(t+1)}, {v(t+1)}")


def horner(A, dr, di, L, pr, pi, er, ei, t):
    assert dr not in (pr, pi) and di not in (pr, pi)
    A(f"v_fma_f32 {v(t)}, {v(L)}, {v(pr)}, {v(er)}")
    A(f"v_fma_f32 {v(t+1)}, {v(L)}, {v(pi)}, {v(ei)}")
    A(f"v_fma_f32 {v(dr)}, -{v(L+1)}, {v(pi)}, {v(t)}")
    A(f"v_fma_f32 {v(di)}, {v(L+1)}, {v(pr)}, {v(t+1)}")


RING_D, RING_LG, RING_LA = 32, 48, 64


def dma_setup(A, swt, swp, RV, t, ta, tb):
    l5, a, b_, c, d, e = (t + i for i in range(6))
    A(f"v_lshrrev_b32 v{l5}, 5, v1\nv_bfe_u32 v{a}, v1, 3, 2\nv_and_b32 v{b_}, 1, v{a}\nv_lshrrev_b32 v{c}, 1, v{a}")
    A(f"v_lshlrev_b32 v{d}, 4, v{l5}\nv_lshl_add_u32 v{d}, v{b_}, 3, v{d}\nv_add_u32 v{d}, v{d}, v{c}")
    A(f"s_lshl_b32 s{ta}, s{swt}, 6\ns_lshl_b32 s{tb}, s{swp}, 2\ns_add_u32 s{ta}, s{ta}, s{tb}")
    A(f"v_add_u32 v{d}, s{ta}, v{d}\nv_lshlrev_b32 v{d}, 11, v{d}")
    A(f"s_lshl_b32 s{ta}, s{swt}, 5")
    A(f"v_lshl_add_u32 v{e}, v{l5}, 3, v{a}\nv_add_u32 v{e}, s{ta}, v{e}\nv_lshlrev_b32 v{e}, 11, v{e}")
    A(f"v_and_b32 v{b_}, 7, v1\nv_lshrrev_b32 v{c}, 4, v1\nv_xor_b32 v{b_}, v{b_}, v{c}\nv_lshlrev_b32 v{b_}, 4, v{b_}\nv_xor_b32 v{c}, 64, v{b_}")
    A(f"v_add_u32 v{RV}, v{d}, v{b_}\nv_add_u32 v{RV+1}, v{d}, v{c}\nv_add_u32 v{RV+1}, {32*2048 - 1024}, v{RV+1}")
    A(f"v_add_u32 v{RV+2}, v{e}, v{b_}\nv_add_u32 v{RV+3}, v{e}, v{c}\nv_add_u32 v{RV+3}, {16*2048 - 1024}, v{RV+3}")


def make_piece(A, vm, RA, RB, ROT, M0B, SOF, RV):
    def piece(k, n):
        slot, u = k % NS, n & 3
        if n == 0:
            A(f"s_add_u32 s{SOF}, s{ROT}, {k*128}\ns_and_b32 s{SOF}, s{SOF}, 0x7ff")
            A(f"s_add_u32 s{SOF+1}, s{SOF}, 2048\ns_add_u32 s{SOF+2}, s{SOF}, 6144")
        if u == 0:
            A(f"s_add_u32 m0, s{M0B}, {slot*32768 + (n >> 2)*16384}")
        so = SOF if u < 2 else SOF + 1 + (n >> 2)
        if ("a" in G1X and 0 < n < 4) or ("b" in G1X and n > 4):
            return
        vm.op(f"buffer_load_dwordx4 v{RV + 2*(n >> 2) + (u & 1)}, {r4(RA if n < 4 else RB)}, s{so} offen offset:{u*1024} lds", ("st", k))
    return piece


def rot_setup(A, ROT, t):
    A(f"s_mul_i32 s{ROT}, s{TI}, {RI*128}\ns_mul_i32 s{t}, s{TJ}, {RJ*128}\ns_add_u32 s{ROT}, s{ROT}, s{t}")


def aux_waves(A, name, kidx):
    A(f"s_sub_u32 s{W_}, s{WAVE}, 4")
    A(f"s_setprio {APRIO}")
    if BARP == 0:
        A("s_barrier")
    A("s_waitcnt lgkmcnt(0)")
    A(f"s_mov_b32 s100, s{CRE}\ns_mov_b32 s101, s{CRE+1}")
    A(f"s_bitcmp1_b32 s{W_}, 0\ns_cselect_b32 s100, s{CIM}, s{CRE}\ns_cselect_b32 s101, s{CIM+1}, s{CRE+1}")
    trace_init(A, 0)
    vm = VmCounter(A)
    if CODEPF:
        pf, pc = uid("pf"), uid("pc")
        A(f"s_cmp_lg_u32 s{W_}, 1")
        A(f"s_cbranch_scc1 {pf}")
        A(f"s_lshr_b32 s{T0}, s2, 3\ns_lshl_b32 s{T0}, s{T0}, 11\nv_and_b32 v12, 15, v1\nv_lshl_add_u32 v12, v12, 7, s{T0}")
        A(f"v_min_u32 v12, L_{name}_end-{name}, v12")
        A(f"s_getpc_b64 {sp(T0)}")
        A.label(pc)
        A(f"s_sub_u32 s{T0}, s{T0}, {pc}-{name}\ns_subb_u32 s{T1}, s{T1}, 0")
        A(f"global_load_dword v23, v12, {sp(T0)}")
        A.label(pf)
    nn = uid("nn")
    A(f"s_lshl_b32 s{T0}, s2, 3\ns_add_u32 s{T0}, s{T0}, s{WAVE}\ns_cmp_lg_u32 s{T0}, 4")
    A(f"s_cbranch_scc1 {nn}")
    A(f"s_load_dword s3, {sp(WS)}, {WS_NONCE}")
    if not NZS:
        A(f"v_mov_b32 v22, 0\nv_lshlrev_b32 v23, 7, v1\nv_add_u32 v23, {WS_CNT}, v23")
        A(f"global_store_dword v23, v22, {sp(WS)} sc1")
    A.label(nn)

    def clear_counters():
        nn = uid("nz")
        A(f"s_cmp_lg_u32 s2, 0\ns_cbranch_scc1 {nn}")
        A(f"s_lshl_b32 s24, s{W_}, 10\ns_add_u32 s24, s24, {WS_CNT}\ns_add_u32 s24, s{WS}, s24\ns_addc_u32 s25, s{WS+1}, 0\ns_mov_b32 s26, 0")
        for r in range(8):
            A(f"s_atomic_swap s26, s[24:25], {hex(r*128)}")
        A.label(nn)

    def publish_nonce(young):
        nn = uid("nn")
        A(f"s_lshl_b32 s{CNT}, s2, 3\ns_add_u32 s{CNT}, s{CNT}, s{WAVE}\ns_cmp_lg_u32 s{CNT}, 4")
        A(f"s_cbranch_scc1 {nn}")
        A(f"s_waitcnt vmcnt({young}) lgkmcnt(0)")
        A(f"s_add_u32 s3, s3, 1\ns_cmp_eq_u32 s3, 0\ns_cselect_b32 s3, 1, s3")
        A(f"v_mov_b32 v11, s3\nv_mov_b32 v10, 0")
        A(f"s_mov_b64 exec, 1\nglobal_store_dword v10, v11, {sp(DBG)} sc1")
        A(f"global_store_dword v10, v11, {sp(WS)} offset:{WS_NONCE}\ns_mov_b64 exec, -1")
        A.label(nn)
    if NOAUX:
        if BARP:
            A("s_barrier")
        assert not NZS
        publish_nonce(0)
        if CTW:
            for _ in range(E_("CTD", 100)):
                A("s_sleep 1")
            c_touch(A, vm)
        A("s_endpgm")
        return
    RA, RB, ROT, M0B, SOF, RV = 12, 20, 16, 17, 8, 176
    piece = make_piece(A, vm, RA, RB, ROT, M0B, SOF, RV)

    def loader_setup():
        A(f"s_lshl_b32 s{T4}, s{TI}, 18\ns_lshl_b32 s{T5}, s{TJ}, 17")
        srd(A, RA, BX, T4, 0, 0x40000)
        A(f"s_bitcmp1_b32 s{W_}, 0\ns_cselect_b32 s8, s{BIM}, s{BRE}\ns_cselect_b32 s9, s{BIM+1}, s{BRE+1}")
        srd(A, RB, 8, T5, 0, 0x20000)
        rot_setup(A, ROT, T4)
        A(f"s_lshl_b32 s{M0B}, s{W_}, 12")
        A(f"s_lshr_b32 s{T4}, s{W_}, 1\ns_and_b32 s{T5}, s{W_}, 1")
        dma_setup(A, T4, T5, RV, 96, CNT, 19)
    aux_setup_ax(A)
    aux_issue(A, vm)
    if WMODE == 0 and WPOS == 0 and not WBYG:
        aux_setup_w(A)
        if WSPLIT:
            w_tile_issue(A, vm, T8, L_W - L_AX, [0])
        else:
            w_issue(A, vm)
    if NZS:
        clear_counters()
    if TLBT:
        pages = [(WS, WS_Z1, 4 << 20), (WS, WS_WT, 516*8192)]
        if TLBT >= 2:
            pages += [(WS, 0, 1 << 20), (WS, WS_HT, 64*TBS), (WS, WS_XB, 8 << 20), (OUT, 0, 16 << 20), (100, 0, 2 << 20)]
        todo = [(b_, o + q) for b_, o, n in pages for q in list(range(0, n, 2 << 20)) + [n - 64]]
        for w in range(4):
            x = uid("tl")
            A(f"s_cmp_lg_u32 s{W_}, {w}\ns_cbranch_scc1 {x}")
            for b_, o in todo[w::4]:
                A(f"s_mov_b32 s27, {hex(o)}\ns_load_dword s26, {sp(b_)}, s27")
            A.label(x)
    if BARP == 1:
        A("s_barrier")
    trace(A, 0, 0)
    make_F(A, 92)
    if WSPLIT == 1:
        w_tile_issue(A, vm, T8, L_W - L_AX, [1])
        w_sym_issue(A)
        if BARP == 2:
            A("s_barrier")
    if WMODE == 0 and WPOS == 1:
        aux_setup_w(A)
        w_issue(A, vm)
    make_T(A, T, 92, 0)
    if WSPLIT == 2:
        w_tile_issue(A, vm, T8, L_W - L_AX, [1])
        w_sym_issue(A)
        if BARP == 2:
            A("s_barrier")
    if WMODE == 0 and WPOS == 2:
        aux_setup_w(A)
        w_issue(A, vm)
    if WBYG:
        w_addr(A, W_)
        w_sym_addr(A)
        w_sym_issue(A)
    aux_pre_a(A)
    if WMODE == 0:
        aux_pre_w(A)
    if PRES:
        loader_setup()
    if not NZS:
        publish_nonce(len(vm.issued))
    trace(A, 0, 1)
    a1_task(A, vm)
    if WMODE:
        aux_setup_w(A)
        aux_pre_w(A)
    if not PRES:
        loader_setup()
    Lt = Asm()
    if not EARLY2:
        make_T(Lt, TT, 92, 1)
    later = Lt.lines
    issued = KS0
    if KS0 < NS and E_("PREK", 0):
        for n in range(8):
            piece(issued, n)
        issued += 1
    trace(A, 0, 6)
    A(f"s_setprio {LPRIO0}")
    ZLATE = ZPOS >= 11
    KS = max(WSK if WMODE else KS0, ZPOS, WTK) + LA + 1 if not ZLATE else E_("KSL", 11)
    assert KS + 2 <= 13
    for k in range(16):
        if k >= KS0:
            vm.wait_for(("st", k))
        if WMODE == 0 and k == WPK:
            vm.wait_for("w")
        trace(A, 0, 16 + k)
        A("s_barrier")
        while issued < min(16, k + LA + 1):
            for n in range(8):
                piece(issued, n)
            issued += 1
        if WMODE == 0 and k == WPK:
            assert WPK < 2 and WTK > WPK
            wt_read(A)
            A("s_waitcnt lgkmcnt(0)")
            wt_sym(A)
            wt_perm(A)
        if k == ZPOS:
            a1_stores(A, vm)
        if WMODE == 0 and k == WTK and WTK != ZPOS:
            wt_store(A, vm)
        if k == 2:
            if SNON:
                A(f"s_load_dword s{NONCE}, {sp(DBG)}, 0x0 glc")
            else:
                A("v_mov_b32 v20, 0")
                vm.op(f"global_load_dword v21, v20, {sp(DBG)} sc1", "nonce")
        if k in CPK:
            code_touch(A, MSK)
        if WMODE:
            if k == WK:
                w_issue(A, vm)
            if k == WK + LA + 1:
                wt_read(A)
                A("s_waitcnt lgkmcnt(0)")
                wt_sym(A)
                wt_perm(A)
            if k == WSK:
                wt_store(A, vm)
        if k == KS - 1:
            assert not later
            if not ZLATE and not EARLY2:
                a2_setup(A)
        if k == KS:
            x, y = uid("sg"), uid("sg")
            if SNON:
                A.label(x)
                A(f"s_waitcnt lgkmcnt(0)\ns_cmp_lg_u32 s{NONCE}, 0\ns_cbranch_scc1 {y}")
                A(f"s_load_dword s{NONCE}, {sp(DBG)}, 0x0 glc\ns_branch {x}")
            else:
                A(f"v_readfirstlane_b32 s{NONCE}, v21\ns_cmp_lg_u32 s{NONCE}, 0\ns_cbranch_scc1 {y}")
                get_nonce(A, 20)
            A.label(y)
        if k == KS and not ZLATE:
            x = uid("sg")
            A(f"s_cmp_lg_u32 s{W_}, 0\ns_cbranch_scc1 {x}")
            A(f"s_and_b32 s{T4}, s2, 15\ns_lshl_b32 s{T5}, s{T4}, 7\ns_add_u32 s{T5}, s{T5}, {CNT_A}")
            A(f"s_add_u32 s{MSK}, s{WS}, s{T5}\ns_addc_u32 s{MSK+1}, s{WS+1}, 0\ns_mov_b32 s{PH_RES}, 1")
            A(f"s_atomic_add s{PH_RES}, {sp(MSK)}, 0x0 glc")
            A.label(x)
        if k == KS + 2 and not ZLATE:
            x = uid("sg")
            A(f"s_cmp_lg_u32 s{W_}, 0\ns_cbranch_scc1 {x}")
            A(f"s_waitcnt lgkmcnt(0)\ns_cmp_lg_u32 s{PH_RES}, 15\ns_cbranch_scc1 {x}")
            A(f"s_and_b32 s{T4}, s2, 15\ns_lshl_b32 s{T4}, s{T4}, 2\ns_add_u32 s{T4}, s{T4}, {FLG_A}\nv_lshl_add_u32 v22, v1, 7, s{T4}\nv_mov_b32 v23, s{NONCE}")
            A(f"global_store_dword v22, v23, {sp(WS)} sc1")
            A.label(x)
        if k == CTK and CTW == 0:
            c_touch(A, vm)
        if FPOLL and k == FPOLL and not ZLATE:
            assert k >= 13
            flag_poll(A, FLG_A)
        if k < KS - 1:
            for _ in range(-(-len(later) // (KS - 1 - k))):
                A(later.pop(0))
    assert issued == 16
    if ZLATE and not EARLY2:
        a2_setup(A)
    A(f"s_setprio {LPRIO}")
    aux_rest(A, vm)
    trace(A, 0, 14)
    if TRACE:
        A("s_waitcnt vmcnt(0)")
    trace(A, 0, 15)
    trace_dump(A, 0, WAVE, 1)
    stamp_end(A, kidx, WAVE)
    A("s_endpgm")


M16 = "v_mfma_f32_16x16x32_bf16"
XRW = 144
L_XC = 114688


def cpow(A, d, zr, zi, n, t):
    if isinstance(n, str):
        A(f"v_mul_f32 v{t}, {n}, v{zr}\nv_mul_f32 v{t+1}, {n}, v{zi}")
    else:
        A(f"v_mul_f32 v{t}, {fl(n)}, v{zr}\nv_mul_f32 v{t+1}, {fl(n)}, v{zi}")
    A(f"v_exp_f32 v{t}, v{t}\nv_rndne_f32 v{t+2}, v{t+1}\nv_sub_f32 v{t+1}, v{t+1}, v{t+2}")
    A(f"v_cos_f32 v{t+2}, v{t+1}\nv_sin_f32 v{t+1}, v{t+1}")
    A(f"v_mul_f32 v{d}, v{t}, v{t+2}\nv_mul_f32 v{d+1}, v{t}, v{t+1}")


def gemm_waves(A, name, kidx):
    U = lambda pg, c, idx: 64 + (pg*2 + c)*16 + 2*idx
    ACC = lambda mt, nt: 64 + ((nt & 1)*2 + (nt >> 1))*16 + 4*mt
    FR = lambda X, f: (32 if X == 0 else 144) + 4*f
    AD = lambda st, op, k2: 128 + st*4 + op*2 + k2
    LAM = lambda pg: 20 + 2*pg
    KC = lambda pg: 24 + 2*pg
    L8 = lambda pg: 176 + 2*pg
    L16 = lambda pg: 180 + 2*pg
    PP = lambda pg: 184 + 4*pg
    PW = lambda pg, idx: 208 + 16*pg + 2*idx
    Q16, Q64, Q128, Q256 = 28, 192, 30, 2
    WT_, WP = T8, T6
    A(f"s_lshr_b32 s{WT_}, s{WAVE}, 1\ns_and_b32 s{WP}, s{WAVE}, 1\ns_lshr_b32 s{PG}, s{TJ}, 3")
    A("v_and_b32 v6, 31, v1\nv_lshrrev_b32 v5, 5, v1\nv_lshlrev_b32 v11, 4, v1")
    A("v_mov_b64 v[64:65], 0\nv_mov_b64 v[66:67], 0")
    A(f"s_mul_i32 s{T0}, s{WAVE}, {16*XRW}\ns_add_u32 s{T0}, s{T0}, {L_XC}\nv_add_u32 v13, s{T0}, v11\nv_mov_b32 v12, {L_SYNC}")
    A("ds_write_b128 v13, v[64:67]\nds_write_b128 v13, v[64:67] offset:1024\nds_write_b128 v13, v[64:67] offset:2048")
    A("s_mov_b64 exec, 1\nds_write_b128 v12, v[64:67]\nds_write_b128 v12, v[64:67] offset:16\nds_write_b128 v12, v[64:67] offset:32\nds_write_b128 v12, v[64:67] offset:48\nds_write_b128 v12, v[64:67] offset:64\ns_mov_b64 exec, -1")
    A(f"s_lshl_b32 s{T0}, s{WAVE}, 2\nv_add_u32 v13, s{T0}, v12")
    A("s_waitcnt lgkmcnt(0)\ns_barrier")
    A("v_bfe_u32 v4, v1, 2, 2\nv_lshlrev_b32 v4, 3, v4\nv_and_b32 v7, 3, v1\nv_add_u32 v4, v4, v7")
    A(f"s_lshl_b32 s{T0}, s{TJ}, 6\ns_lshl_b32 s{T1}, s{WP}, 5\ns_add_u32 s{T0}, s{T0}, s{T1}")
    A(f"v_add_u32 v4, s{T0}, v4\nv_lshlrev_b32 v7, 1, v4")
    RA, RB, ROT, M0B, SOF, RV = S2, S3, 38, 39, T2, 244
    vm1 = VmCounter(A)
    if WBYG:
        A("s_waitcnt lgkmcnt(0)")
        w_addr(A, WAVE)
        srd(A, S2, WR, size=NBW)
        srd(A, S3, WI, size=NBW)
        A(f"s_lshl_b32 s{T0}, s{WAVE}, 12")
        w_tile_issue(A, vm1, T0, L_W)
    dma_setup(A, WT_, WP, RV, 14, T1, T2)
    rot_setup(A, ROT, T0)
    A(f"s_lshl_b32 s{T0}, s{TI}, 18\ns_lshl_b32 s{T1}, s{TJ}, 17\ns_lshl_b32 s{M0B}, s{WAVE}, 12")
    A("s_waitcnt lgkmcnt(0)")
    PRM = 248
    for pg in range(2):
        A(f"global_load_ushort v{PRM+3*pg}, v7, {sp(LRE)} offset:{8*pg}\nglobal_load_ushort v{PRM+1+3*pg}, v7, {sp(LIM)} offset:{8*pg}\nglobal_load_ushort v{PRM+2+3*pg}, v7, {sp(LDT)} offset:{8*pg}")
    srd(A, RA, BX, T0, 0, 0x40000)
    A(f"s_cmp_eq_u32 s{WP}, 1\ns_cselect_b32 s{T2}, s{BIM}, s{BRE}\ns_cselect_b32 s{T3}, s{BIM+1}, s{BRE+1}")
    srd(A, RB, T2, T1, 0, 0x20000)
    piece = make_piece(A, vm1, RA, RB, ROT, M0B, SOF, RV)
    for n in range(8):
        piece(0, n)
    A("v_bfe_u32 v7, v1, 4, 1\nv_lshl_add_u32 v4, v7, 2, v4")
    A("v_bfe_u32 v7, v6, 1, 3\nv_xor_b32 v7, v7, v5\nv_lshlrev_b32 v7, 4, v7\nv_lshl_add_u32 v7, v6, 7, v7")
    A("v_and_b32 v8, 15, v1\nv_lshrrev_b32 v9, 4, v1")
    A("v_lshrrev_b32 v14, 1, v8\nv_xor_b32 v14, v14, v9\nv_lshlrev_b32 v14, 4, v14\nv_lshl_add_u32 v14, v8, 7, v14")
    A(f"s_lshl_b32 s{T0}, s{WT_}, 13\ns_lshl_b32 s{T1}, s{WP}, 13\ns_add_u32 s{T1}, s{T1}, 16384")
    for k2 in range(2):
        A(f"v_xor_b32 v15, {k2 << 6}, v14")
        A(f"v_add_u32 v{AD(0,0,k2)}, s{T0}, v15\nv_add_u32 v{AD(0,1,k2)}, s{T1}, v15")
        A(f"v_add_u32 v{AD(1,0,k2)}, 0x10000, v{AD(0,0,k2)}\nv_add_u32 v{AD(1,1,k2)}, 0x10000, v{AD(0,1,k2)}")
    Areal, A = A, Asm()
    srd(A, S0, WS, None, WS_EG, 0x40000)
    srd(A, S1, WS, None, WS_HT, 64*TBS)
    A(f"s_mul_i32 s{T0}, s{WP}, {32*XRW}\ns_add_u32 s{T0}, s{T0}, {L_XC + 64}\ns_lshl_b32 s{T1}, s{WT_}, 5\ns_add_u32 s{T1}, s{T1}, s{T0}")
    A(f"v_mul_u32_u24 v14, {XRW}, v6\nv_add_u32 v14, s{T0}, v14\nv_lshl_add_u32 v14, v5, 5, v14")
    A(f"v_mul_u32_u24 v15, {XRW}, v8\nv_add_u32 v15, s{T1}, v15\nv_lshl_add_u32 v15, v9, 3, v15")
    A(f"s_lshl_b32 s{T0}, s{TI}, 14\nv_lshl_add_u32 v16, v4, 4, s{T0}")
    A("v_mov_b32 v17, 0x40000000\nv_lshlrev_b32 v10, 14, v5\nv_sub_u32 v10, v16, v10")
    LA_, LX = 194, 200
    for u in range(8):
        A(f"v_subrev_u32 v{136+u}, {16384 + u*32768}, v10\nv_cmp_le_i32 vcc, 0, v{136+u}\nv_cndmask_b32 v{136+u}, v17, v{136+u}, vcc")
    A("v_lshlrev_b32 v17, 30, v5\nv_or_b32 v16, v16, v17")
    A(f"s_lshl_b32 s{T0}, s{TI}, 11\ns_add_u32 s{T0}, s{T0}, {FLG_X}\ns_lshl_b32 s{T1}, s{TJ}, 7\ns_add_u32 s{T1}, s{T1}, s{T0}\nv_mov_b32 v195, s{T1}")
    A(f"s_lshl_b32 s{T1}, s{PG}, 10\ns_add_u32 s{T0}, s{T0}, s{T1}\nv_and_b32 v196, 7, v1\nv_lshl_add_u32 v196, v196, 7, s{T0}")
    A(f"s_lshl_b32 s{T0}, s{TI}, 1\ns_add_u32 s{T0}, s{T0}, s{WT_}\ns_lshl_b32 s{T0}, s{T0}, 12\ns_add_u32 s{T0}, s{T0}, {FLG_H}")
    A(f"s_lshl_b32 s{T1}, s{PG}, 11\ns_add_u32 s{T1}, s{T1}, s{T0}\nv_lshl_add_u32 v18, v8, 7, s{T1}")
    A(f"s_lshl_b32 s{T1}, s{TJ}, 8\ns_add_u32 s{T0}, s{T0}, s{T1}\ns_lshl_b32 s{T1}, s{WP}, 7\ns_add_u32 s{T0}, s{T0}, s{T1}\nv_mov_b32 v19, s{T0}")
    A("v_lshrrev_b32 v10, 1, v9\nv_lshlrev_b32 v10, 10, v10\nv_and_b32 v17, 1, v9\nv_lshl_add_u32 v10, v17, 9, v10\nv_lshl_add_u32 v10, v8, 4, v10")
    A(f"s_lshl_b32 s{T0}, s{WT_}, 2\nv_add_u32 v9, s{T0}, v9\nv_cvt_f32_u32 v9, v9\nv_mul_f32 v9, 0x41800000, v9\nv_add_f32 v8, 0x41000000, v9")
    A("PARAMWAIT")
    ZR, ZI = 204, 206
    for pg in range(2):
        lr, li, dt, t = PRM+3*pg, PRM+1+3*pg, PRM+2+3*pg, 197
        A(f"v_lshlrev_b32 v{lr}, 16, v{lr}\nv_lshlrev_b32 v{li}, 16, v{li}\nv_lshlrev_b32 v{dt}, 16, v{dt}")
        A(f"v_mul_f32 v{dt}, 0x3fb8aa3b, v{dt}\nv_exp_f32 v{dt}, v{dt}")
        A(f"v_cvt_pk_bf16_f32 v{dt}, v{dt}, v{dt}\nv_lshlrev_b32 v{dt}, 16, v{dt}")
        A(f"v_mul_f32 v{ZR+pg}, v{dt}, v{lr}\nv_mul_f32 v{ZI+pg}, v{dt}, v{li}")
        A(f"v_mul_f32 v{ZR+pg}, 0x3fb8aa3b, v{ZR+pg}\nv_mul_f32 v{ZI+pg}, 0.15915494, v{ZI+pg}")
        cpow(A, LAM(pg), ZR+pg, ZI+pg, 1.0, t)
        A(f"v_add_f32 v{t}, -1.0, v{LAM(pg)}")
        A(f"v_mul_f32 v{t+1}, v{lr}, v{lr}\nv_fma_f32 v{t+1}, v{li}, v{li}, v{t+1}\nv_rcp_f32 v{t+1}, v{t+1}")
        A(f"v_add_f32 v{t+1}, v{t+1}, v{t+1}")
        A(f"v_mul_f32 v{t+2}, v{t}, v{lr}\nv_fma_f32 v{t+2}, v{LAM(pg)+1}, v{li}, v{t+2}\nv_mul_f32 v{KC(pg)}, v{t+2}, v{t+1}")
        A(f"v_mul_f32 v{t+2}, v{LAM(pg)+1}, v{lr}\nv_fma_f32 v{t+2}, -v{t}, v{li}, v{t+2}\nv_mul_f32 v{KC(pg)+1}, v{t+2}, v{t+1}")
        cpow(A, L8(pg), ZR+pg, ZI+pg, 8.0, t)
        cpow(A, L16(pg), ZR+pg, ZI+pg, 16.0, t)
        for e in range(2):
            cpow(A, 200, ZR+pg, ZI+pg, f"v{9-e}", t)
            A(f"v_mov_b32 v{PP(pg)+e}, v200\nv_mov_b32 v{PP(pg)+2+e}, v201")
        for idx in range(8):
            sr, si = (KC(pg), KC(pg)+1) if idx == 0 else (PW(pg, idx-1), PW(pg, idx-1)+1)
            A(f"v_mul_f32 v{t}, v{si}, v{LAM(pg)+1}\nv_mul_f32 v{t+1}, v{si}, v{LAM(pg)}")
            A(f"v_fma_f32 v{PW(pg,idx)}, v{sr}, v{LAM(pg)}, -v{t}\nv_fma_f32 v{PW(pg,idx)+1}, v{sr}, v{LAM(pg)+1}, v{t+1}")
    A(f"v_and_b32 v197, 16, v1\nv_cmp_ne_u32 vcc, 0, v197\nv_cndmask_b32 v{ZR}, v{ZR}, v{ZR+1}, vcc\nv_cndmask_b32 v{ZI}, v{ZI}, v{ZI+1}, vcc")
    for d, n in ((Q16, 16.0), (Q64, 64.0), (Q128, 128.0), (Q256, 256.0)):
        cpow(A, d, ZR, ZI, n, 197)
    A("v_lshrrev_b32 v197, 4, v1\nv_lshlrev_b32 v197, 2, v197\nv_and_b32 v198, 15, v1\nv_sub_u32 v197, v198, v197\nv_mov_b32 v198, 0x3f80\nv_mov_b32 v199, 1.0")
    for c in range(4):
        A(f"v_cmp_eq_u32 vcc, {c}, v197\nv_cndmask_b32 v{248+c}, 0, v198, vcc\nv_cndmask_b32 v{252+c}, 0, v199, vcc")

    deferred, A = A.lines, Areal
    if WBYG:
        A(f"s_waitcnt vmcnt({6 + 8})")
        A(f"s_mov_b64 exec, 1\nv_mov_b32 v197, 1\nds_write_b32 v13, v197 offset:{RING_LG}\ns_mov_b64 exec, -1")
    pw = deferred.index("PARAMWAIT")
    for l in deferred[:pw]:
        A(l)
    deferred = deferred[pw+1:]
    assert KS0 <= NPRE
    if DEFER:
        for k in range(1, KS0):
            for n in range(8):
                piece(k, n)
    else:
        npre = 8
        if P1 == 0 and KS0 > 1:
            for n in range(8):
                piece(1, n)
            npre = 16
        A(f"s_waitcnt vmcnt({npre})")
        rest = [(k, n) for k in range(npre//8, KS0) for n in range(8)]
        lo, hi = int(len(deferred)*P2A/100), int(len(deferred)*P2B/100)
        at = [lo + (hi - lo)*q//max(1, len(rest)) for q in range(len(rest))]
        for i, l in enumerate(deferred):
            while at and at[0] <= i and l.startswith("v_") and not l.startswith("v_cnd"):
                at.pop(0)
                piece(*rest.pop(0))
            A(l)
        for r_ in rest:
            piece(*r_)
        deferred = []
    order = [0, 4, 5, 6, 7, 1, 2, 3]
    need = {0: 2, 1: 3, 2: 4, 3: 5, 4: 6, 8: 7, 12: 8}

    def rd(k, k2, f):
        slot = k % NS
        st, off = slot >> 1, (slot & 1)*32768
        A(f"ds_read_b128 {v(FR(k2, f), 4)}, v{AD(st, f >> 2, k2)} offset:{off + (f & 3)*2048}")
    trace_init(A, 0)
    trace(A, 0, 0)
    A(f"s_setprio {GPRIO}")
    def ring_arrive(k, t=197):
        A(f"s_mov_b64 exec, 1\nv_mov_b32 v{t}, {k}\nds_write_b32 v13, v{t} offset:{RING_D}\ns_mov_b64 exec, -1")
    vm1.wait_for(("st", 0))
    A("s_barrier")
    trace(A, 0, 1)
    for f in order:
        rd(0, 0, f)
    for k in range(16):
        for k2 in range(2):
            nk, nk2 = (k, 1) if k2 == 0 else (k+1, 0)
            have = nk < 16
            if k2 == 1:
                w = f"vmcnt({vm1.wait_for(('st', k+1), emit=False)}) " if k + 1 < KS0 else ""
                A(f"s_waitcnt {w}lgkmcnt(0)")
                if have:
                    A("s_barrier")
            if k == 13 and k2 == 0:
                assert not deferred, len(deferred)
                A(f"v_mov_b32 v8, 0\nglobal_load_dword v9, v8, {sp(DBG)} sc1")
            n = 0
            for m in range(16):
                if k2 == 0 and m in need:
                    A(f"s_waitcnt lgkmcnt({8 - need[m] + n})")
                mt, nt = m >> 2, m & 3
                if "m" not in G1X or k + k2 == 0:
                    A(f"{M16} {v(ACC(mt,nt),4)}, {v(FR(k2,mt),4)}, {v(FR(k2,4+nt),4)}, {'0' if k + k2 == 0 else v(ACC(mt,nt),4)}")
                if have and n < 8:
                    if "r" not in G1X:
                        rd(nk, nk2, order[n])
                    n += 1
                elif k >= DK0:
                    for _ in range(DEFER):
                        if deferred:
                            A(deferred.pop(0))
            if k == 15 and k2 == 0:
                nl, ng = uid("n"), uid("ng")
                A.label(nl)
                A(f"s_waitcnt vmcnt(0)\nv_readfirstlane_b32 s{NONCE}, v9\ns_cmp_lg_u32 s{NONCE}, 0\ns_cbranch_scc1 {ng}")
                A(f"global_load_dword v9, v8, {sp(DBG)} sc1\ns_branch {nl}")
                A.label(ng)
                A(f"s_getreg_b32 s{T0}, hwreg(HW_REG_XCC_ID, 0, 4)\ns_lshl_b32 s{T1}, s{NONCE}, 4\ns_or_b32 s{LOCAL}, s{T0}, s{T1}")
                A(f"v_mov_b32 v194, s{LOCAL}\nv_mov_b32 v202, s{NONCE}\nv_mov_b32 v203, s{NONCE}")
            if TRACE == 2 and k2 == 1:
                trace(A, 0, 40 + k)
    mark(A, 1)
    trace(A, 0, 2)
    bc_a = "op_sel_hi:[0,1,1]"
    bc_b = "op_sel:[1,0,0]"
    TT = 40
    for idx in range(1, 8):
        for half in range(2):
            for pg in range(2):
                L, t = v(LAM(pg), 2), TT + 4*pg
                pr, pi, ur, ui = (v(x, 2) for x in (U(pg, 0, idx-1), U(pg, 1, idx-1), U(pg, 0, idx), U(pg, 1, idx)))
                if half == 0:
                    A(f"v_pk_fma_f32 {v(t,2)}, {L}, {pr}, {ur} {bc_a}\nv_pk_fma_f32 {v(t+2,2)}, {L}, {pi}, {ui} {bc_a}")
                else:
                    A(f"v_pk_fma_f32 {ur}, {L}, {pi}, {v(t,2)} {bc_b} {N0}\nv_pk_fma_f32 {ui}, {L}, {pr}, {v(t+2,2)} {bc_b}")
    for pg in range(2):
        er, ei = U(pg, 0, 7), U(pg, 1, 7)
        horner(A, 32+2*pg, 33+2*pg, L8(pg), er, ei, er+1, ei+1, TT)
        A(f"ds_write_b64 v15, {v(32+2*pg,2)} offset:{16*XRW*pg}")
    trace(A, 0, 3)
    A("s_waitcnt lgkmcnt(0)")
    ring_arrive(17)
    l_, d_ = uid("ek"), uid("ekd")
    A.label(l_)
    A(f"ds_read_b128 v[198:201], v12 offset:{RING_D}\ns_waitcnt lgkmcnt(0)")
    A("v_min3_u32 v197, v198, v199, v200\nv_min_u32 v197, v197, v201")
    A(f"v_readfirstlane_b32 s{T0}, v197\ns_cmp_lt_u32 s{T0}, 17\ns_cbranch_scc1 {l_}")
    trace(A, 0, 4)
    SG = 48
    A(f"ds_read_b128 {v(SG,4)}, v14\nds_read_b128 {v(SG+4,4)}, v14 offset:16")
    P = 200
    A("s_waitcnt lgkmcnt(1)")
    horner(A, 32, 33, Q16, SG, SG+1, SG+2, SG+3, TT)
    A("s_waitcnt lgkmcnt(0)")
    horner(A, 34, 35, Q16, 32, 33, SG+4, SG+5, TT)
    horner(A, 32, 33, Q16, 34, 35, SG+6, SG+7, TT)
    A("v_mov_b32 v34, v32\nv_mov_b32 v35, v33\nv_permlane32_swap_b32 v32, v34\nv_permlane32_swap_b32 v33, v35")
    horner(A, P, P+1, Q64, 32, 33, 34, 35, TT)
    np_ = uid("np")
    A(f"s_cmp_lg_u32 s{WT_}, 0")
    A(f"s_cbranch_scc1 {np_}")
    A(f"buffer_store_dwordx4 {v(P,4)}, v16, {r4(S0)}, 0 offen sc1")
    A(f"s_cmp_lg_u32 s{WP}, 0")
    A(f"s_cbranch_scc1 {np_}")
    A(f"s_mov_b64 exec, 1\nglobal_store_dword v195, v194, {sp(WS)} sc1\ns_mov_b64 exec, -1")
    A.label(np_)
    mark(A, 2)
    trace(A, 0, 5)
    A(f"global_load_dword v243, v18, {sp(WS)} sc1")
    LB = 144

    def lbloads():
        for u in range(8):
            A(f"buffer_load_dwordx4 {v(LB+4*u,4)}, v{136+u}, {r4(S0)}, 0 offen sc1")
        A(f"global_load_dword v197, v196, {sp(WS)} sc1")
    QS = 32
    A("v_add_u32 v15, -56, v15")
    for pg in range(2):
        for w in range(7):
            A(f"ds_read_b64 {v(QS+14*pg+2*w,2)}, v15 offset:{16*XRW*pg + 8*w}")
    QQ = lambda pg: 128 + 4*pg
    TQ = 60
    A("s_waitcnt lgkmcnt(0)")
    for pg in range(2):
        b = QS + 14*pg
        for w in range(1, 6):
            horner(A, b+2*w, b+2*w+1, L16(pg), b+2*w-2, b+2*w-1, b+2*w, b+2*w+1, TQ)
        horner(A, QQ(pg), QQ(pg)+2, L16(pg), b+10, b+11, b+12, b+13, TQ)
        horner(A, QQ(pg)+1, QQ(pg)+3, L8(pg), QQ(pg), QQ(pg)+2, U(pg, 0, 7), U(pg, 1, 7), TQ)
    trace(A, 0, 6)
    O = 32
    cnt = 0
    if LBAT == 0:
        lbloads()
    for idx in range(8):
        for pg in range(2):
            d0, d1, K_, o = v(U(pg, 0, idx), 2), v(U(pg, 1, idx), 2), v(KC(pg), 2), O + 4*pg
            A(f"v_pk_mul_f32 {v(o,2)}, {K_}, {d0} op_sel_hi:[0,1]")
            A(f"v_pk_mul_f32 {v(o+2,2)}, {K_}, {d1} op_sel_hi:[0,1] neg_lo:[1,0] neg_hi:[1,0]")
            A(f"v_pk_fma_f32 {v(o+2,2)}, {K_}, {d0}, {v(o+2,2)} {bc_b} {N0}")
            A(f"v_pk_fma_f32 {d0}, {K_}, {d1}, {v(o,2)} {bc_b} {N0}")
            A(f"v_mov_b64 {d1}, {v(o+2,2)}")
            cnt += 1
            if cnt == LBAT:
                lbloads()
    trace(A, 0, 7)
    A("v_mov_b32 v14, 1\ns_mov_b64 exec, 1\nds_write_b32 v13, v14\ns_mov_b64 exec, -1")
    M0B, RH, RCc, SH, SC = T7, T5, T4, T3, T2
    ACC2 = lambda nt: 32 + 16*nt
    CF = lambda X, nt: 96 + 16*X + 4*nt
    XR, CV = 128, 244
    HR = lambda s_: 148 + 4*(s_ % HD)
    L_OWN = 65536
    A(f"s_xor_b32 s{T0}, s{WT_}, s{PG}\ns_xor_b32 s{T0}, s{T0}, 1\ns_lshl_b32 s{T0}, s{T0}, 6\ns_add_u32 s{T0}, s{T0}, s{WP}")
    A(f"v_lshrrev_b32 v8, 3, v1\nv_lshl_add_u32 v8, v8, 1, s{T0}\nv_lshlrev_b32 v8, 11, v8")
    A("v_and_b32 v14, 7, v1\nv_lshrrev_b32 v15, 4, v1\nv_xor_b32 v14, v14, v15\nv_lshlrev_b32 v14, 4, v14\nv_xor_b32 v15, 64, v14")
    for u in range(4):
        A(f"v_add_u32 v{CV+u}, v8, v{14 + (u & 1)}")
        if u:
            A(f"v_add_u32 v{CV+u}, {u*(16*2048 - 1024)}, v{CV+u}")
    A(f"s_and_b32 s{RCc}, s{TJ}, 7\ns_lshl_b32 s{T0}, s{RCc}, 18\ns_lshl_b32 s{T1}, s{PG}, 10\ns_add_u32 s{T0}, s{T0}, s{T1}")
    srd(A, S2, CRE, T0, 0, 0x40000, T1)
    srd(A, S3, CIM, T0, 0, 0x40000, T1)
    A(f"s_lshl_b32 s{T1}, s{RCc}, 1\ns_add_u32 s{T1}, s{T1}, s{PG}\ns_lshl_b32 s{T1}, s{T1}, 7")
    A(f"s_lshl_b32 s{SH}, s{TI}, 1\ns_add_u32 s{SH}, s{SH}, s{WT_}\ns_lshl_b32 s{T0}, s{SH}, 17\ns_add_u32 s{T0}, s{T0}, s{T1}")
    srd(A, S4, BX, T0, 0, 0x20000, T1)
    A(f"s_add_u32 s{DSK}, s{DSK}, s{T1}\ns_addc_u32 s{DSK+1}, s{DSK+1}, 0")
    A(f"s_lshl_b32 s{T1}, s{T1}, 1\ns_add_u32 s{T1}, s{T1}, 4096\ns_lshl_b32 s{T0}, s{SH}, 19\ns_add_u32 s{T0}, s{T0}, s{T1}")
    A(f"s_add_u32 s{OUT}, s{OUT}, s{T0}\ns_addc_u32 s{OUT+1}, s{OUT+1}, 0\ns_sub_u32 s{LDT}, 0x80000, s{T1}")
    A(f"s_lshl_b32 s{M0B}, s{WAVE}, 12\ns_lshl_b32 s{RH}, s{RCc}, 13\ns_lshl_b32 s{RCc}, s{RCc}, 7")
    A(f"s_lshl_b32 s{T0}, s{WT_}, 14\ns_lshl_b32 s{T1}, s{WP}, 11\ns_add_u32 s{T0}, s{T0}, s{T1}\ns_add_u32 s{T0}, s{T0}, {L_OWN}\nv_add_u32 v16, s{T0}, v10")
    A(f"s_lshl_b32 s{T0}, s{WAVE}, 13\ns_add_u32 s{T0}, s{T0}, {L_OWN}\nv_add_u32 v17, s{T0}, v11")
    for ks in range(4):
        A(f"v_xor_b32 v{20+ks}, {ks << 5}, v7\nv_add_u32 v{24+ks}, 0x10000, v{20+ks}")
    HB = LIM
    A(f"s_mul_i32 s{HB}, s{SH}, {2*TBS}\ns_lshl_b32 s{T1}, s{TJ}, 13\ns_add_u32 s{HB}, s{HB}, s{T1}\ns_lshl_b32 s{T1}, s{WP}, 11\ns_add_u32 s{HB}, s{HB}, s{T1}")
    for u in range(8):
        A(f"v_cmp_gt_u32 vcc, 0x40000, v{136+u}\nv_cndmask_b32 v{40+u}, 0, v202, vcc")
    A(f"s_mov_b32 s{T9}, 0")
    trace(A, 0, 8)
    pl, pd = uid("poll"), uid("polled")
    A.label(pl)
    A("v_mov_b32 v8, 0")
    for u in range(8):
        A(f"s_waitcnt vmcnt({8-u})")
        A(f"v_bitop3_b32 v8, v8, v{LB+4*u+2}, v{40+u} bitop3:0xf6\nv_bitop3_b32 v8, v8, v{LB+4*u+3}, v{40+u} bitop3:0xf6")
    A("s_waitcnt vmcnt(0)\nv_xor_b32 v197, v194, v197\nv_lshrrev_b32 v9, 4, v197\nv_or_b32 v8, v8, v9\nv_cmp_ne_u32 vcc, 0, v8")
    A(f"s_cbranch_vccz {pd}")
    A(f"s_add_u32 s{T9}, s{T9}, 1\ns_cmp_ge_u32 s{T9}, {SPIN_MAX}")
    A(f"s_cbranch_scc1 {pd}")
    lbloads()
    A(f"s_branch {pl}")
    A.label(pd)
    A(f"v_cmp_ne_u32 vcc, 0, v197\ns_cmp_eq_u64 vcc, 0\ns_cselect_b32 s{LOCAL}, {0 if FORCE_REMOTE else 1}, 0")
    mark(A, 3)
    trace(A, 0, 9)
    if TRACE:
        A(f"v_writelane_b32 v0, s{T9}, 63")
    vm = VmCounter(A)

    def cdma(g, us):
        for u in us:
            if u == 0:
                A(f"s_add_u32 m0, s{M0B}, {(g % R)*16384}")
                if g % 2 == 0:
                    A(f"s_add_u32 s{SC}, s{RCc}, {(g >> 1)*128}\ns_and_b32 s{SC}, s{SC}, 0x3ff")
            vm.op(f"buffer_load_dwordx4 v{CV+u}, {r4(S2 if g % 2 == 0 else S3)}, s{SC} offen offset:{u*1024}{NTC} lds", ("c", g))
    cdma(0, range(4))
    cdma(1, range(4))
    A("v_mov_b32 v14, 2\ns_mov_b64 exec, 1\nds_write_b32 v13, v14\ns_mov_b64 exec, -1")
    H0 = LB + 28
    cur = (H0, H0+1)
    for u in range(6, -1, -1):
        d = (48, 49) if cur[0] == H0 else (H0, H0+1)
        horner(A, d[0], d[1], Q256, cur[0], cur[1], LB+4*u, LB+4*u+1, TT)
        cur = d
    assert cur == (48, 49)
    A("v_mov_b32 v50, v48\nv_mov_b32 v51, v49\nv_permlane32_swap_b32 v48, v50\nv_permlane32_swap_b32 v49, v51")
    horner(A, 52, 53, Q128, 50, 51, 48, 49, TT)
    A("v_mov_b32 v54, v52\nv_mov_b32 v55, v53\nv_permlane16_swap_b32 v52, v54\nv_permlane16_swap_b32 v53, v55")
    trace(A, 0, 10)
    G = lambda pg: QQ(pg)
    for pg in range(2):
        Hh, gr, gi, pr, pi = v(52+2*pg, 2), v(G(pg), 2), v(G(pg)+2, 2), v(PP(pg), 2), v(PP(pg)+2, 2)
        A(f"v_pk_fma_f32 {gr}, {Hh}, {pr}, {gr} {bc_a}\nv_pk_fma_f32 {gi}, {Hh}, {pi}, {gi} {bc_a}")
        A(f"v_pk_fma_f32 {gr}, {Hh}, {pi}, {gr} {bc_b} {N0}\nv_pk_fma_f32 {gi}, {Hh}, {pr}, {gi} {bc_b}")
    PK = lambda pg, c, idx: 144 + (pg*2 + c)*8 + idx
    D = lambda c, X, pg: 32 + ((c*2 + X)*2 + pg)*4

    def fix(pg, idx):
        d0, d1, pw, gr, gi = v(U(pg, 0, idx), 2), v(U(pg, 1, idx), 2), v(PW(pg, idx), 2), v(G(pg), 2), v(G(pg)+2, 2)
        A(f"v_pk_fma_f32 {d0}, {pw}, {gr}, {d0} {bc_a}")
        A(f"v_pk_fma_f32 {d1}, {pw}, {gi}, {d1} {bc_a} {N0}")
        A(f"v_pk_fma_f32 {d0}, {pw}, {gi}, {d0} {bc_b} {N0}")
        A(f"v_pk_fma_f32 {d1}, {pw}, {gr}, {d1} {bc_b} {N0}")
        for c in range(2):
            A(f"v_cvt_pk_bf16_f32 v{PK(pg,c,idx)}, v{U(pg,c,idx)}, v{U(pg,c,idx)+1}")

    def tr(u):
        for c in range(2):
            for X in range(2):
                for pg in range(2):
                    A(f"{M16} {v(D(c,X,pg),4)}, {v(PK(pg,c,4*u),4)}, {v(248+4*X,4)}, 0")

    def st(u):
        for c in range(2):
            for X in range(2):
                q = 176 + 16*u + (c*2 + X)*4
                A(f"s_add_u32 s{T1}, s{HB}, {X*TBS + c*4096}")
                for jj in range(4):
                    A(f"v_cvt_pk_bf16_f32 v{q+jj}, v{D(c,X,0)+2*jj}, v{D(c,X,0)+2*jj+1}")
                vm.op(f"buffer_store_dwordx4 {v(q,4)}, v10, {r4(S1)}, s{T1} offen offset:{u*256} sc1", "hst")
                A(f"ds_write_b128 v16, {v(q,4)} offset:{X*8192 + c*4096 + u*256}")
    for u in range(2):
        for idx in range(4*u, 4*u + 4):
            for pg in range(2):
                fix(pg, idx)
            if u == 1 and idx == 5:
                st(0)
                trace(A, 0, 12)
        tr(u)
        if u == 0:
            trace(A, 0, 11)
    st(1)
    mark(A, 4)
    trace(A, 0, 13)
    NK = 64

    def arrive(val):
        A(f"v_mov_b32 v14, {val}")
        A("s_mov_b64 exec, 1\nds_write_b32 v13, v14\ns_mov_b64 exec, -1")

    def check(val, off=0, first=False):
        l, d = uid("ck"), uid("ckd")
        if first:
            A(f"ds_read_b128 v[8:11], v12 offset:{off}\ns_waitcnt lgkmcnt(0)")
        A.label(l)
        A("v_min3_u32 v15, v8, v9, v10\nv_min_u32 v15, v15, v11")
        A(f"v_readfirstlane_b32 s{T0}, v15")
        A(f"s_cmp_ge_u32 s{T0}, {val}")
        A(f"s_cbranch_scc1 {d}")
        A(f"ds_read_b128 v[8:11], v12 offset:{off}\ns_waitcnt lgkmcnt(0)")
        A(f"s_branch {l}")
        A.label(d)

    def hload(s_):
        if s_ % 4 == 0:
            A(f"s_add_u32 s{SH}, s{RH}, {(s_ >> 2)*4096}\ns_and_b32 s{SH}, s{SH}, 0xffff")
        vm.op(f"buffer_load_dwordx4 {v(HR(s_),4)}, v2, {r4(S0)}, s{SH} offen offset:{(s_ & 3)*1024} sc1", ("h", s_))

    def rd2(s_, nts):
        g, ks = s_ >> 2, s_ & 3
        slot = g % R
        base = 20 if slot < 4 else 24
        for nt in nts:
            A(f"ds_read_b128 {v(CF(s_ & 1, nt),4)}, v{base+ks} offset:{(slot & 3)*16384 + nt*4096}")

    def mf(s_, nt):
        c = "0" if s_ == 0 else v(ACC2(nt), 16)
        if E_("HACK16", 0) & 2:
            for z in range(2):
                d = ACC2(nt) + 8*(s_ & 1) + 4*z
                A(f"v_mfma_f32_16x16x32_bf16 {v(d,4)}, {v(HR(s_),4)}, {v(CF(s_ & 1, nt),4)}, {'0' if s_ < 2 else v(d,4)}")
        else:
            A(f"{MF} {v(ACC2(nt),16)}, {v(HR(s_),4)}, {v(CF(s_ & 1, nt),4)}, {c}")
    A("v_mov_b32 v2, v11")
    A(f"s_lshl_b32 s{T0}, s{TI}, 2\ns_add_u32 s{T0}, s{T0}, s{WAVE}\ns_mul_i32 s{T0}, s{T0}, {TBS}\ns_lshl_b32 s{T1}, s{PG}, 16\ns_add_u32 s{T0}, s{T0}, s{T1}")
    srd(A, S0, WS, T0, WS_HT, 0x10000)
    if not OWNFIRST and C23:
        cdma(2, range(4))
        cdma(3, range(4))
    A(f"s_waitcnt vmcnt({vm.wait_for(('c', 1), emit=False)}) lgkmcnt(0)")
    trace(A, 0, 14)
    arrive(3)
    check(3, first=True)
    trace(A, 0, 15)
    for s_ in range(8):
        A(f"ds_read_b128 {v(HR(s_),4)}, v17 offset:{s_*1024}")
    hn = [8]

    def pause():
        A(f"s_lshl_b32 s{T0}, s{WP}, 3\nv_lshl_add_u32 v17, v5, 4, s{T0}")
        A("v_lshlrev_b32 v28, 11, v17\nv_lshl_add_u32 v28, v6, 2, v28")
        A("v_lshlrev_b32 v29, 13, v17\nv_lshl_add_u32 v29, v6, 3, v29")
        A(f"v_lshlrev_b32 v30, 2, v6\nv_mov_b32 v15, s{NONCE}")
        a, b = uid("rs"), uid("rd")
        trace(A, 0, 16)
        vm.wait_for("hst")
        trace(A, 0, 17)
        A(f"s_mov_b64 exec, 1\ns_cmp_eq_u32 s{LOCAL}, 0\ns_cbranch_scc1 {a}")
        A(f"global_store_dword v19, v15, {sp(WS)}\ns_branch {b}")
        A.label(a)
        A(f"global_store_dword v19, v15, {sp(WS)} sc1")
        A.label(b)
        A("s_mov_b64 exec, -1")
        if not E_("GM", 0):
            mark(A, 5)
        check(4, first=True)
        if not NOAUX:
            check(LIMG_FREE, 16, first=True)
        if CTOUCH == 5:
            xtouch(1)
        if CTOUCH == 8:
            ctouch()
        for gg in range(4 if C23 else 2, CPOLL):
            cdma(gg, range(4))
        trace(A, 0, 18)
        wait_cnt(A, 18, 8, SLP_H)
        trace(A, 0, 19)
        vm.issued = []
        if not E_("GM", 0):
            mark(A, 6)
        if OWNFIRST:
            arrive(5)
        gg = max(4, CPOLL)
        while hn[0] < 8 + HPRE:
            hload(hn[0])
            hn[0] += 1
            if hn[0] % 4 == 0 and gg < CPRE:
                cdma(gg, range(4))
                gg += 1
        assert gg == CPRE
        if OWNFIRST:
            check(5, first=True)
        trace(A, 0, 20)
        rd2(8 if OWNFIRST else 0, range(4))

    def flag_store():
        a, b = uid("rs"), uid("rd")
        A(f"s_mov_b64 exec, 1\ns_cmp_eq_u32 s{LOCAL}, 0\ns_cbranch_scc1 {a}")
        A(f"global_store_dword v19, v15, {sp(WS)}\ns_branch {b}")
        A.label(a)
        vm.op(f"global_store_dword v19, v15, {sp(WS)} sc1", "flag")
        A.label(b)
        A("s_mov_b64 exec, -1")
    if HTAG:
        A("s_waitcnt lgkmcnt(0)")
        arrive(4)
        A(f"s_lshl_b32 s{T0}, s{WP}, 3\nv_lshl_add_u32 v17, v5, 4, s{T0}")
        A("v_lshlrev_b32 v28, 11, v17\nv_lshl_add_u32 v28, v6, 2, v28")
        A("v_lshlrev_b32 v29, 13, v17\nv_lshl_add_u32 v29, v6, 3, v29")
        A(f"v_lshlrev_b32 v30, 2, v6\nv_mov_b32 v15, s{NONCE}")
        if HTAG == 1:
            wl, wd = uid("hw"), uid("hwd")
            A(f"s_add_u32 s{T1}, s{RH}, 8192\ns_and_b32 s{T1}, s{T1}, 0xffff\ns_mov_b32 s{CNT}, 0\ns_waitcnt lgkmcnt(0)")
            A.label(wl)
            A(f"s_load_dwordx4 s[4:7], {sp(S0)}, s{T1} offset:{4096 + 1024 + 1008} glc\ns_load_dwordx4 s[8:11], {sp(S0)}, s{T1} offset:{4096 + 3072 + 1008} glc")
            A(f"s_add_u32 s{CNT}, s{CNT}, 1\ns_waitcnt lgkmcnt(0)")
            for q in range(2):
                A(f"s_xor_b64 s[{4+2*q}:{5+2*q}], s[{4+2*q}:{5+2*q}], s[{HT_+2*q}:{HT_+2*q+1}]\ns_xor_b64 s[{8+2*q}:{9+2*q}], s[{8+2*q}:{9+2*q}], s[{HT_+2*q}:{HT_+2*q+1}]")
            A("s_or_b64 s[4:5], s[4:5], s[6:7]\ns_or_b64 s[8:9], s[8:9], s[10:11]\ns_or_b64 s[4:5], s[4:5], s[8:9]\ns_or_b32 s4, s4, s5\ns_and_b32 s4, s4, 0x10001")
            A(f"s_cbranch_scc0 {wd}\ns_cmp_lt_u32 s{CNT}, {SPIN_MAX}\ns_cbranch_scc1 {wl}")
            A.label(wd)
        if HTAG == 3:
            vm.wait_for('hst')
            flag_store()
        if HTAG == 2 and HDLY:
            A(f"s_waitcnt vmcnt({vm.wait_for('hst', emit=False) + HDLY})")
        mark(A, 6)
        for s_ in range(8, 16):
            hload(s_)
        hn[0] = 16
        if HTAG != 3:
            vm.wait_for("hst")
            flag_store()
        if not E_("GM", 0):
            mark(A, 5)
        check(4, first=True)
        if not NOAUX:
            check(LIMG_FREE, 16, first=True)
        for gg in range(4, CPOLL):
            cdma(gg, range(4))
        rd2(0, range(4))
    elif OWNFIRST:
        rd2(0, range(4))
        A("s_waitcnt lgkmcnt(4)")
        arrive(4)
    else:
        A("s_waitcnt lgkmcnt(0)")
        arrive(4)
        pause()
    have_c = lambda g: any(t == ("c", g) for t in vm.issued)
    for s_ in range(NK):
        g, ks = s_ >> 2, s_ & 3
        nxt = s_ + 1
        more = nxt < NK and not (nxt == 8 and OWNFIRST)
        ws = []
        if s_ >= 8:
            ws.append(vm.wait_for(("h", s_), emit=False))
        arr = (s_ + 4) % 8 == 0 and s_ + 4 < NK and (s_ >= 8 or not OWNFIRST)
        if arr:
            gl = ((s_ + 4) >> 2) + 1
            if have_c(gl):
                ws.append(vm.wait_for(("c", gl), emit=False))
        wv = f"vmcnt({min(ws)}) " if ws else ""
        newgrp = more and nxt % 8 == 0
        full = newgrp or not more or s_ == 0
        nc = 2 if s_ >= NK - NDEF else 4
        nn = (2 if nxt >= NK - NDEF else 4) if more else 0
        if full:
            A(f"s_waitcnt {wv}lgkmcnt(0)")
            if newgrp:
                check((nxt >> 3) + 4)
                trace(A, 0, 20 + (nxt >> 3))
                if nxt == 32 and not E_('GM', 0):
                    mark(A, 7)
        else:
            A(f"s_waitcnt {wv}lgkmcnt({nc-1})")
        extra = 0
        if arr:
            arrive(((s_ + 4) >> 3) + 4)
            extra = 1
        issued_n = 0
        for nt in range(nc):
            if nt and not full:
                A(f"s_waitcnt lgkmcnt({nc - 1 - nt + extra + issued_n})")
            mf(s_, nt)
            if nt < 2 and issued_n < nn and (nt == 0 or nn == 4):
                rd2(nxt, [issued_n, issued_n + 1])
                issued_n += 2
            if nt == nc - 2:
                if s_ < 8 and OWNFIRST:
                    if C23:
                        cdma(2 + g, [ks])
                elif CPRE <= g + CD < NK//4:
                    cdma(g + CD, [ks])
        assert issued_n == nn
        if HTAG:
            if s_ < 4*(CPRE - CPOLL):
                cdma(CPOLL + g, [ks])
            if s_ == 6:
                tl, td = uid("ht"), uid("htd")
                A(f"s_mov_b32 s{CNT}, 0")
                vm.wait_for(("h", 15))
                A.label(tl)
                A("v_mov_b32 v4, 0")
                for r in range(32):
                    A(f"v_bitop3_b32 v4, v4, v{HR(8)+r}, s{HT_+(r & 3)} bitop3:0xf6")
                A(f"v_and_b32 v4, 0x10001, v4\nv_cmp_ne_u32 vcc, 0, v4\ns_cbranch_vccz {td}")
                A(f"s_add_u32 s{CNT}, s{CNT}, 1\ns_cmp_ge_u32 s{CNT}, {SPIN_MAX}\ns_cbranch_scc1 {td}")
                keep = list(vm.issued)
                for s2_ in range(8, 16):
                    hload(s2_)
                vm.issued = keep
                A(f"s_waitcnt vmcnt(0)\ns_branch {tl}")
                A.label(td)
                if STAMP == 1:
                    A(f"s_add_u32 s72, s70, s{CNT}")
            if s_ == HFI:
                vm.op(f"global_load_dword v16, v18, {sp(WS)} sc1", "fp")
            if s_ == HFC:
                fd = uid("hf")
                vm.wait_for("fp")
                A(f"v_cmp_ne_u32 vcc, s{NONCE}, v16\ns_cbranch_vccz {fd}")
                wait_cnt(A, 18, 16, 1)
                A.label(fd)
        if (s_ >= (HFC if HTAG else 8) or not (OWNFIRST or HTAG)) and hn[0] < NK:
            for _ in range(3 if HTAG else 2):
                if hn[0] < NK and hn[0] <= s_ + HD:
                    hload(hn[0])
                    hn[0] += 1
        if (s_ + 2) % 8 == 0 and s_ + 2 < NK and (s_ >= 8 or not OWNFIRST):
            A("ds_read_b128 v[8:11], v12")
        if s_ == NK - 18:
            vm.op(f"global_load_dword v31, v30, {sp(DSK)}", "dsk")
        if NK - 17 <= s_ < NK - 1:
            e = s_ - (NK - 17)
            q, r = e >> 2, e & 3
            A(f"s_mov_b32 s{T0}, {(32*(q & 1) + 4*(q >> 1) + (r & 2))*2048}")
            vm.op(f"buffer_load_dword v{XR+e}, v28, {r4(S4)}, s{T0} offen offset:{(r & 1)*2048}", ("x", e))
        if s_ == 7 and OWNFIRST:
            pause()
    mark(A, 8)
    trace(A, 0, 28)
    TG = T0
    A(f"s_mul_i32 s{TG}, s{NONCE}, 0x9e3779b1\ns_and_b32 s{TG}, s{TG}, 0xbfff0000\ns_or_b32 s{TG}, s{TG}, 0x20000000")
    A(f"s_sub_u32 s{T1}, s{NONCE}, 1\ns_xor_b32 s{T1}, s{T1}, s{TG}\ns_cmp_lt_u32 s{T1}, 0x10000\ns_cselect_b32 s{T1}, 0x10000, 0\ns_xor_b32 s{TG}, s{TG}, s{T1}")
    if INOUT:
        A(f"s_lshl_b32 s{T4}, s{PG}, 9\ns_sub_i32 s{T4}, 256, s{T4}\ns_ashr_i32 s{T5}, s{T4}, 31")
        A(f"s_add_u32 s{S2}, s{OUT}, s{T4}\ns_addc_u32 s{S2+1}, s{OUT+1}, s{T5}\ns_sub_u32 s{S2+2}, s{LDT}, s{T4}\ns_mov_b32 s{S2+3}, 0x20000")
        A(f"s_mov_b32 s{S3}, s{OUT}\ns_mov_b32 s{S3+1}, s{OUT+1}\ns_mov_b32 s{S3+2}, s{LDT}\ns_mov_b32 s{S3+3}, 0x20000")
        A(f"s_lshl_b32 s{T4}, s{WP}, 16\nv_lshrrev_b32 v3, 4, v1\nv_lshlrev_b32 v3, 13, v3\nv_and_b32 v4, 15, v1\nv_lshl_add_u32 v3, v4, 4, v3\nv_add_u32 v3, s{T4}, v3")
        xad = lambda gq: (f"s_mov_b32 s{T4}, {(16*(gq >> 1) + 4*(gq & 1))*8192}\n", f"v3, SRD, s{T4} offen")
    else:
        A(f"s_lshl_b32 s{T4}, s{TI}, 4\ns_add_u32 s{T4}, s{T4}, s{TJ}\ns_lshl_b32 s{T4}, s{T4}, 2\ns_add_u32 s{T4}, s{T4}, s{WAVE}\ns_lshl_b32 s{T4}, s{T4}, 13")
        srd(A, S2, WS, T4, WS_XB, 0x2000)
        A(f"s_xor_b32 s{T4}, s{T4}, {8 << 15}")
        srd(A, S3, WS, T4, WS_XB, 0x2000)
        A(f"s_movk_i32 s{T4}, 0x1000")
        xad = lambda gq: ("", f"v2, SRD, {'0' if gq < 4 else f's{T4}'} offen offset:{(gq & 3)*1024}")
    val = lambda n: ACC2(n & 1) + (n >> 1)
    TXR, RX = [96, 100, 244, 248, 252], 180
    for gq in range(5):
        for c in range(4):
            n = 7*gq + 2*c
            lo = f"v{val(min(n, 31))}"
            hi = f"s{TG}" if c == 3 else f"v{val(min(n+1, 31))}"
            A(f"v_cvt_pk_bf16_f32 v{TXR[gq]+c}, {lo}, {hi}")
        A(f"{xad(gq)[0]}buffer_store_dwordx4 {v(TXR[gq],4)}, {xad(gq)[1].replace('SRD', r4(S2))} sc1")

    if A3S == 12:
        arrive(12)

    def rx():
        for gq in range(5):
            A(f"{xad(gq)[0]}buffer_load_dwordx4 {v(RX+4*gq,4)}, {xad(gq)[1].replace('SRD', r4(S3))} sc1")
    if NDEF:
        rd2(NK - NDEF, [2, 3])
        for s_ in range(NK - NDEF, NK):
            if s_ + 1 < NK:
                rd2(s_ + 1, [2, 3])
                A("s_waitcnt lgkmcnt(2)")
            else:
                A("s_waitcnt lgkmcnt(0)")
            mf(s_, 2)
            mf(s_, 3)
    if A3S == 13:
        arrive(13)
    trace(A, 0, 29)
    if E_("XM", 0):
        mark(A, 3)
    A("s_waitcnt vmcnt(5)")
    if E_("XM", 0):
        mark(A, 5)
    trace(A, 0, 30)
    A("v_lshlrev_b32 v8, 16, v31\nv_and_b32 v9, 0xffff0000, v31")
    YO = lambda e: 148 + 2*e
    for e in range(16):
        t = YO(e)
        A(f"v_lshlrev_b32 v{t}, 16, v{XR+e}\nv_and_b32 v{t+1}, 0xffff0000, v{XR+e}")
        A(f"v_pk_mul_f32 {v(t,2)}, {v(t,2)}, v[8:9]")
        A(f"v_cvt_pk_bf16_f32 v10, v{t}, v{t+1}")
        A(f"v_lshlrev_b32 v{t}, 16, v10\nv_and_b32 v{t+1}, 0xffff0000, v10")
        A(f"v_add_f32 v{t}, v{t}, v{ACC2(2)+e}\nv_add_f32 v{t+1}, v{t+1}, v{ACC2(3)+e}")
    A(f"s_mov_b32 s{S1}, s{OUT}\ns_mov_b32 s{S1+1}, s{OUT+1}\ns_mov_b32 s{S1+2}, s{LDT}\ns_mov_b32 s{S1+3}, 0x20000")
    xl, xd = uid("xl"), uid("xd")
    A(f"s_mov_b32 s{CNT}, 0")
    if XPOLL:
        assert not INOUT
        wl, wd = uid("xw"), uid("xwd")
        A.label(wl)
        A(f"s_load_dword s{T1}, {sp(S3)}, {0x1000 + 63*16 + 12} glc\ns_add_u32 s{CNT}, s{CNT}, 1\ns_waitcnt lgkmcnt(0)")
        A(f"s_xor_b32 s{T1}, s{T1}, s{TG}\ns_cmp_lt_u32 s{T1}, 0x10000\ns_cbranch_scc1 {wd}")
        A(f"s_cmp_lt_u32 s{CNT}, {SPIN_MAX}\ns_cbranch_scc1 {wl}")
        A.label(wd)
        A(f"s_mov_b32 s{CNT}, 0")
    trace(A, 0, 31)
    if XPOLL != 2:
        A(f"s_waitcnt vmcnt({E_('XW', 0)})")
    if E_("XM", 0):
        mark(A, 6)
    rx()
    A.label(xl)
    A("v_mov_b32 v10, 0")
    for gq in range(5):
        A(f"s_waitcnt vmcnt({4-gq})")
        A(f"v_bitop3_b32 v10, v10, v{RX+4*gq+3}, s{TG} bitop3:0xf6")
    A("v_cmp_lt_u32 vcc, 0xffff, v10")
    A(f"s_cbranch_vccz {xd}")
    A(f"s_add_u32 s{CNT}, s{CNT}, 1\ns_cmp_ge_u32 s{CNT}, {SPIN_MAX}")
    A(f"s_cbranch_scc1 {xd}")
    rx()
    A(f"s_branch {xl}")
    A.label(xd)
    trace(A, 0, 32)
    if STAMP:
        A(f"s_add_u32 s74, s70, s{CNT}\ns_lshl_b32 s{CNT}, s{LOCAL}, 8\ns_add_u32 s74, s74, s{CNT}")
        mark(A, 4)
    for e in range(16):
        q, r = e >> 2, e & 3
        t = YO(e)
        for nt in range(2):
            n = 2*e + nt
            src = RX + 4*(n // 7) + (n % 7)//2
            if (n % 7) % 2 == 0:
                A(f"v_lshlrev_b32 v{10+nt}, 16, v{src}")
            else:
                A(f"v_and_b32 v{10+nt}, 0xffff0000, v{src}")
        A(f"v_pk_add_f32 {v(t,2)}, {v(t,2)}, v[10:11]")
        A(f"s_mov_b32 s{T4}, {(32*(q & 1) + 4*(q >> 1) + r)*8192}")
        A(f"buffer_store_dwordx2 {v(t,2)}, v29, {r4(S1)}, s{T4} offen{OSTB}")
    trace(A, 0, 33)
    if TRACE:
        A("s_waitcnt vmcnt(0)")
    trace(A, 0, 34)
    trace_dump(A, 0, WAVE, 1)
    stamp_end(A, kidx, WAVE)


def gen_fused(A, name, kidx):
    KNAME_[0] = name
    A(f".globl {name}\n.p2align 8\n.type {name},@function")
    A.label(name)
    A("s_cmp_ge_u32 s2, 256")
    A(f"s_cbranch_scc1 L_{name}_end")
    A("s_load_dwordx16 s[4:19], s[0:1], 0")
    A("s_load_dwordx8 s[20:27], s[0:1], 64")
    A("s_load_dwordx4 s[28:31], s[0:1], 96")
    A("s_load_dwordx2 s[32:33], s[0:1], 112")
    stamp_begin(A)
    A("v_lshrrev_b32 v2, 6, v0\nv_and_b32 v1, 63, v0")
    A(f"v_readfirstlane_b32 s{WAVE}, v2")
    A(f"s_and_b32 s{T0}, s2, 7\ns_lshr_b32 s{T1}, s2, 3")
    A(f"s_lshr_b32 s{TI}, s{T0}, 1\ns_lshl_b32 s{TI}, s{TI}, 2\ns_lshr_b32 s{T2}, s{T1}, 3\ns_add_u32 s{TI}, s{TI}, s{T2}")
    A(f"s_and_b32 s{TJ}, s{T0}, 1\ns_lshl_b32 s{TJ}, s{TJ}, 3\ns_and_b32 s{T2}, s{T1}, 7\ns_add_u32 s{TJ}, s{TJ}, s{T2}")
    if SWAP:
        A(f"s_xor_b32 s{WAVE}, s{WAVE}, 4")
    A(f"s_cmp_ge_u32 s{WAVE}, 4")
    A(f"s_cbranch_scc0 L_{name}_gemm")
    aux_waves(A, name, kidx)
    A.label(f"L_{name}_gemm")
    gemm_waves(A, name, kidx)
    A.label(f"L_{name}_end")
    A("s_endpgm")
    return kdesc(name, 256)
```

```python
import os
from asmlib import *
from common import *

E_ = lambda k, d: int(os.environ.get(k, str(d)))
XO, NP, RI, RJ = E_("XO", 0), E_("NP", 1), E_("RI", 1), E_("RJ", 1)
XO2, NP2 = E_("XO2", 2), E_("NP2", 1)
PRO = E_("PRO", 2)
HD = E_("HD", 24)
CD = E_("CD", 4)
NOAUX = E_("NOAUX", 0)
CODEPF = E_("CODEPF", 1)
NS = E_('NS', 3)
LASW = E_('LASW', 99)
R = 7
LA = E_('LA', 2)
FORCE_REMOTE = E_('FORCE_REMOTE', 0)
MF = "v_mfma_f32_32x32x16_bf16"
N0 = "neg_lo:[1,0,0] neg_hi:[1,0,0]"

AX, WR, WI, BX, LRE, LIM, BRE, BIM, CRE, CIM, LDT, DSK, OUT, DBG, WS = 4, 6, 8, 10, 12, 14, 16, 18, 20, 22, 24, 26, 28, 30, 32
WAVE, TI, TJ, NONCE, TBL = 34, 35, 36, 37, 38
S0, S1, S2, S3, S4 = 40, 44, 48, 52, 56
T0, T1, T2, T3, T4, T5, T6, T7, T8, T9 = range(60, 70)
MSK, CNT, LOCAL, PG = 90, 92, 100, 101
L_XCH = 122880
L_SYNC = 126976
L_AX = 131072
L_W = 147456
WS_CNT = 0x1000
CNT_A, CNT_B, CNT_W = WS_CNT, WS_CNT + 16*128, WS_CNT + 32*128
FLG_A, FLG_B, FLG_W = 0x84000, 0x86000, 0x88000
FLG_X = 0x8000
FLG_H = 0x60000
CPRO1 = E_("CPRO1", 2)
CPRO2 = E_("CPRO2", 2)
CTOUCH = E_("CTOUCH", 4)
TBS = 131072 + E_("TBPAD", 0)
FTOUCH = E_("FTOUCH", 1)
XTOUCH = E_("XTOUCH", 0)
NREP = E_("NREP", 32)
NDEF = E_("NDEF", 12)
HTAG = 0
HDLY = E_("HDLY", 0)
HFI, HFC = E_("HFI", 7), E_("HFC", 10)
XPOLL = E_("XPOLL", 2)
OWNFIRST = E_("OWNFIRST", 1) and not HTAG
C01, C23 = E_("C01", 1), E_("C23", 1)
INOUT = E_("INOUT", 0)
KS_ = 32768 if INOUT else 8192
ISH = 16384 if INOUT else 4096
CTK, CPOLL, CPRE, HPRE = E_("CTK", 14), E_("CPOLL", 6), E_("CPRE", 7), E_("HPRE", 8)
HLOC, HLK = E_("HLOC", 0), E_("HLK", 13)
LBAT = E_("LBAT", 16)
XBF = E_("XBF", 1)
SLP_H, SLP_A = E_("SLP_H", 4), E_("SLP_A", 10)
NT = " nt" if E_("NT", 1) else ""
NTX = " nt"
OST = {0: "", 1: " nt", 2: " sc1", 3: " sc1 nt", 4: " sc0 sc1 nt", 5: " sc0 nt"}[E_("OST", 1)]
NTK = E_("NTK", 0)
OSTB = {0: "", 1: " nt", 2: " sc1", 3: " sc1 nt", 4: " sc0 sc1 nt", 5: " sc0 nt"}[E_("OSTB", 1)]
NTC = " nt" if E_("NTC", 0) else ""


def sp(a):
    return f"s[{a}:{a+1}]"


def srd(A, d, base, soff=None, const=0, size=None, size_s=None):
    if soff is None and const == 0:
        A(f"s_mov_b32 s{d}, s{base}\ns_mov_b32 s{d+1}, s{base+1}")
    else:
        if soff is not None and const:
            A(f"s_add_u32 s{d+2}, s{soff}, {const}")
            o = f"s{d+2}"
        elif soff is not None:
            o = f"s{soff}"
        else:
            o = str(const)
        A(f"s_add_u32 s{d}, s{base}, {o}\ns_addc_u32 s{d+1}, s{base+1}, 0")
    if size_s is not None:
        A(f"s_sub_u32 s{d+2}, {size}, s{size_s}")
    else:
        A(f"s_mov_b32 s{d+2}, {size}")
    A(f"s_mov_b32 s{d+3}, 0x20000")


def r4(d):
    return f"s[{d}:{d+3}]"


_u = [0]


def uid(p):
    _u[0] += 1
    return f"L_{p}{_u[0]}"


def get_nonce(A, vt):
    l, d = uid("n"), uid("nd")
    A(f"v_mov_b32 v{vt}, 0")
    A.label(l)
    A(f"global_load_dword v{vt+1}, v{vt}, {sp(DBG)} sc1")
    A("s_waitcnt vmcnt(0)")
    A(f"v_readfirstlane_b32 s{NONCE}, v{vt+1}")
    A(f"s_cmp_eq_u32 s{NONCE}, 0")
    A(f"s_cbranch_scc1 {l}")


def signal(A, sshard, cnt, flg, expect, vt):
    d = uid("sg")
    A(f"s_lshl_b32 s{CNT}, s{sshard}, 7\ns_add_u32 s{CNT}, s{CNT}, {cnt}")
    A(f"v_mov_b32 v{vt}, s{CNT}\nv_mov_b32 v{vt+1}, 1")
    A("s_waitcnt vmcnt(0)")
    A("s_mov_b64 exec, 1")
    A(f"global_atomic_add v{vt+2}, v{vt}, v{vt+1}, {sp(WS)} sc0 sc1")
    A(f"v_add_u32 v{vt}, {flg - cnt}, v{vt}\nv_mov_b32 v{vt+1}, s{NONCE}")
    A("s_waitcnt vmcnt(0)")
    A(f"v_readfirstlane_b32 s{CNT}, v{vt+2}")
    A(f"s_add_u32 s{CNT}, s{CNT}, 1\ns_cmp_lg_u32 s{CNT}, {expect}")
    A(f"s_cbranch_scc1 {d}")
    A(f"global_store_dword v{vt}, v{vt+1}, {sp(WS)} sc1")
    A.label(d)
    A("s_mov_b64 exec, -1")


def set_flag(A, soff, vt):
    A(f"v_mov_b32 v{vt}, s{soff}\nv_mov_b32 v{vt+1}, s{NONCE}")
    A("s_waitcnt vmcnt(0)")
    A("s_mov_b64 exec, 1")
    A(f"global_store_dword v{vt}, v{vt+1}, {sp(WS)} sc1")
    A("s_mov_b64 exec, -1")


def wait_cnt(A, vaddr, vt, sleep):
    l, d = uid("w"), uid("wd")
    A(f"s_mov_b32 s{CNT}, 0")
    A.label(l)
    A(f"global_load_dword v{vt}, v{vaddr}, {sp(WS)} sc1")
    A("s_waitcnt vmcnt(0)")
    A(f"v_cmp_ne_u32 vcc, s{NONCE}, v{vt}")
    A(f"s_cbranch_vccz {d}")
    if sleep:
        A(f"s_sleep {sleep}")
    A(f"s_add_u32 s{CNT}, s{CNT}, 1\ns_cmp_lt_u32 s{CNT}, {SPIN_MAX}")
    A(f"s_cbranch_scc1 {l}")
    A.label(d)


F, T = 192, 224


import struct as _st


def fl(x):
    return hex(_st.unpack("<I", _st.pack("<f", x))[0])


def lane_float(A, vn, vh, t):
    A(f"v_and_b32 v{t}, 31, v1\nv_cvt_f32_u32 v{t}, v{t}\nv_lshrrev_b32 v{t+1}, 5, v1\nv_lshlrev_b32 v{t+1}, 2, v{t+1}\nv_cvt_f32_u32 v{t+1}, v{t+1}")


def make_F(A, t, F=None):
    F = F or globals()["F"]
    lane_float(A, None, None, t)
    A(f"v_mul_f32 v{t+1}, v{t}, v{t+1}\nv_mul_f32 v{t+1}, {fl(1/32)}, v{t+1}")
    for i in range(16):
        c = 8*(i >> 2) + (i & 3)
        a = t + 2 + 3*(i & 1)
        A(f"v_fmamk_f32 v{a}, v{t}, {fl(c/32)}, v{t+1}\nv_fract_f32 v{a}, v{a}")
        A(f"v_cos_f32 v{a+1}, v{a}\nv_sin_f32 v{a+2}, v{a}")
        A(f"v_cvt_pk_bf16_f32 v{F+i}, v{a+1}, v{a+2}\nv_cvt_pk_bf16_f32 v{F+16+i}, -v{a+2}, v{a+1}")


def make_T(A, dst, t, half):
    lane_float(A, None, None, t)
    if not half:
        A(f"v_mul_f32 v{t+1}, v{t}, v{t+1}\nv_mul_f32 v{t+1}, {fl(1/1024)}, v{t+1}")
    else:
        A(f"v_mul_f32 v{t}, {fl(1/2048)}, v{t}\nv_fmamk_f32 v{t+1}, v{t+1}, {fl(1/64)}, v{t}")
    for i in range(16):
        c = 8*(i >> 2) + (i & 3)
        a = t + 2 + (i & 1)
        if not half:
            A(f"v_fmamk_f32 v{a}, v{t}, {fl(c/1024)}, v{t+1}")
        else:
            A(f"v_add_f32 v{a}, {fl(c/64)}, v{t+1}")
        A(f"v_cos_f32 v{dst+i}, v{a}\nv_sin_f32 v{dst+16+i}, -v{a}")


def stage1(A, src, D, stride=4):
    if "m" in os.environ.get("SK", ""):
        return
    for c in range(2):
        for s_ in range(4):
            cc = "0" if s_ == 0 else v(D+16*c, 16)
            A(f"{MF} {v(D+16*c,16)}, {v(src+stride*s_,4)}, {v(F+16*c+4*s_,4)}, {cc}")


def twiddle(A, D, dst, tmp, rng=range(16)):
    for i in (rng if "t" not in os.environ.get("SK", "") else []):
        re, im, tr, ti = D+i, D+16+i, T+i, T+16+i
        t = tmp + 2*(i & 3)
        A(f"v_mul_f32 v{t}, v{re}, v{tr}\nv_mul_f32 v{t+1}, v{re}, v{ti}")
        A(f"v_fma_f32 v{t}, -v{im}, v{ti}, v{t}\nv_fmac_f32 v{t+1}, v{im}, v{tr}")
        A(f"v_cvt_pk_bf16_f32 v{dst+i}, v{t}, v{t+1}")


def stage2(A, src, D):
    if "m" in os.environ.get("SK", ""):
        return
    for c in range(2):
        for s_ in range(4):
            cc = "0" if s_ == 0 else v(D+16*c, 16)
            A(f"{MF} {v(D+16*c,16)}, {v(F+16*c+4*s_,4)}, {v(src+4*s_,4)}, {cc}")


W_ = T6
NBW = 2048*513*2
SQ, SO, ST = 184, 185, 186
VA1, VA2, VA8, VLIN = 4, 5, 6, 7
_ph = [0]


def l_arrive(A):
    _ph[0] += 1
    A(f"v_mov_b32 v{ST+4}, {_ph[0]}")
    A(f"s_mov_b64 exec, 1\nds_write_b32 v{SO}, v{ST+4}\ns_mov_b64 exec, -1")
    return _ph[0]


def l_check(A, n, delta=0, slp=1):
    l, d = uid("lc"), uid("lcd")
    if delta:
        A(f"v_add_u32 v{ST+5}, {delta}, v{SQ}")
    A.label(l)
    A(f"ds_read_b128 {v(ST,4)}, v{ST+5 if delta else SQ}\ns_waitcnt lgkmcnt(0)")
    A(f"v_min3_u32 v{ST}, v{ST}, v{ST+1}, v{ST+2}\nv_min_u32 v{ST}, v{ST}, v{ST+3}")
    A(f"v_readfirstlane_b32 s{CNT}, v{ST}")
    A(f"s_cmp_ge_u32 s{CNT}, {n}")
    A(f"s_cbranch_scc1 {d}")
    A(f"s_sleep {slp}\ns_branch {l}")
    A.label(d)


def l_check_loose(A, n, delta):
    l = uid("ll")
    A(f"v_add_u32 v{ST+5}, {delta}, v{SQ}")
    for i in range(4):
        A(f"v_mov_b32 v{ST+i}, 0")
    A.label(l)
    A(f"ds_read_b128 {v(ST,4)}, v{ST+5}\ns_sleep 1")
    A(f"v_min3_u32 v{ST+4}, v{ST}, v{ST+1}, v{ST+2}\nv_min_u32 v{ST+4}, v{ST+4}, v{ST+3}")
    A(f"v_readfirstlane_b32 s{CNT}, v{ST+4}")
    A(f"s_cmp_lt_u32 s{CNT}, {n}")
    A(f"s_cbranch_scc1 {l}")


def l_sync(A):
    l_check(A, l_arrive(A))


def aux_setup_ax(A):
    srd(A, S2, WR, size=NBW)
    srd(A, S3, WI, size=NBW)
    A(f"s_and_b32 s{T0}, s2, 31\ns_lshr_b32 s{T1}, s2, 5\ns_lshl_b32 s{T1}, s{T1}, 7\ns_add_u32 s{T0}, s{T0}, s{T1}")
    A(f"s_lshl_b32 s{T1}, s{W_}, 5\ns_add_u32 s{T7}, s{T0}, s{T1}\ns_lshl_b32 s{T0}, s{T7}, 12")
    srd(A, AX, AX, T0, 0, 0x1000)
    A("v_lshlrev_b32 v2, 4, v1\nv_xor_b32 v3, 128, v2")
    A(f"s_lshl_b32 s{T8}, s{W_}, 12\ns_add_u32 s{T8}, s{T8}, {L_AX}")


def w_addr(A, W_):
    A(f"s_and_b32 s{T0}, s2, 7\ns_bfe_u32 s{T1}, s2, 0x10003\ns_bfe_u32 s{T2}, s2, 0x20004\ns_lshr_b32 s{T3}, s2, 6")
    A(f"s_lshr_b32 s{T4}, s{T0}, 1\ns_lshl_b32 s{T4}, s{T4}, 3\ns_lshl_b32 s{T5}, s{T1}, 2\ns_add_u32 s{T4}, s{T4}, s{T5}")
    A(f"s_and_b32 s{T5}, s{T0}, 1\ns_lshl_b32 s{T5}, s{T5}, 1\ns_add_u32 s{T4}, s{T4}, s{T5}\ns_lshl_b32 s{T4}, s{T4}, 5")
    A(f"s_lshl_b32 s{T5}, s{T2}, 3\ns_add_u32 s{T4}, s{T4}, s{T5}\ns_lshl_b32 s{T5}, s{W_}, 1\ns_add_u32 s{T4}, s{T4}, s{T5}\ns_mul_i32 s{T4}, s{T4}, 1026")
    A(f"s_lshl_b32 s{T5}, s{T3}, 8\ns_add_u32 s{T9}, s{T4}, s{T5}")
    A("v_bfe_u32 v8, v1, 4, 1\nv_mul_u32_u24 v8, 32832, v8")
    A(f"v_lshrrev_b32 v9, 5, v1\ns_mov_b32 s{T5}, 1050624\nv_mul_lo_u32 v9, s{T5}, v9\nv_add_u32 v8, v8, v9")
    A(f"v_and_b32 v9, 15, v1\ns_lshl_b32 s{T5}, s{W_}, 1\nv_xor_b32 v9, s{T5}, v9")
    A("v_lshl_add_u32 v18, v9, 4, v8\nv_xor_b32 v9, 1, v9\nv_lshl_add_u32 v19, v9, 4, v8\nv_add_u32 v19, 1026, v19")


def w_sym_addr(A):
    A(f"s_bfe_u32 s{T4}, s2, 0x20005\ns_lshl_b32 s{T4}, s{T4}, 8\ns_bfe_u32 s{T5}, s2, 0x10004\ns_lshl_b32 s{T5}, s{T5}, 6\ns_add_u32 s{T4}, s{T4}, s{T5}")
    A(f"s_bfe_u32 s{T5}, s2, 0x10003\ns_lshl_b32 s{T5}, s{T5}, 7\ns_add_u32 s{T4}, s{T4}, s{T5}\ns_and_b32 s{T5}, s2, 7\ns_lshl_b32 s{T5}, s{T5}, 2\ns_add_u32 s{T4}, s{T4}, s{T5}")
    A(f"v_bfe_u32 v8, v1, 3, 2\nv_add_u32 v8, s{T4}, v8\nv_bfe_u32 v9, v1, 2, 1\nv_lshl_add_u32 v8, v9, 5, v8\nv_bfe_u32 v9, v1, 1, 1\nv_lshl_add_u32 v8, v9, 10, v8")
    A("v_sub_u32 v9, 2048, v8\nv_and_b32 v9, 2047, v9\nv_and_b32 v10, 1, v1\nv_cmp_eq_u32 vcc, 1, v10\nv_cndmask_b32 v8, v8, v9, vcc")
    A(f"v_mul_u32_u24 v17, 1026, v8\ns_lshr_b32 s{T4}, s2, 7\ns_lshl_b32 s{T4}, s{T4}, 10\nv_add_u32 v17, s{T4}, v17")


def aux_setup_w(A):
    w_addr(A, W_)
    w_sym_addr(A)


def aux_setup2(A):
    make_F(A, 92)
    make_T(A, T, 92, 0)
    make_T(A, TT, 92, 1)


def aux_issue(A, vm):
    for c in range(2):
        A(f"s_add_u32 m0, s{T8}, {c*2048}")
        A(f"s_mov_b32 s{CNT}, {c*2048}")
        for u in range(2):
            vm.op(f"buffer_load_dwordx4 v{2+c}, {r4(AX)}, s{CNT} offen offset:{u*1024}{NT} lds", "ax")


def w_tile_issue(A, vm, sbase, const, bbs=range(2)):
    for bb in bbs:
        for arr in range(2):
            A(f"s_add_u32 m0, s{sbase}, {const + bb*2048 + arr*1024}")
            vm.op(f"buffer_load_dwordx4 v{18+bb}, {r4(S2 if arr == 0 else S3)}, s{T9} offen{NT} lds" if "1" not in SK else f"buffer_load_dword v23, v2, {r4(AX)}, 0 offen offset:4092", "w")


def w_sym_issue(A):
    nw = uid("nw")
    A(f"s_cmp_lg_u32 s{W_}, {3 if not ('1' in SK or 'p' in SK) else 9}\ns_cbranch_scc1 {nw}")
    A("s_mov_b32 exec_hi, 0")
    A(f"buffer_load_ushort v{WSP}, v17, {r4(S2)}, 0 offen{NT}")
    A(f"buffer_load_ushort v{WSP+1}, v17, {r4(S3)}, 0 offen{NT}")
    A("s_mov_b64 exec, -1")
    A.label(nw)


def w_issue(A, vm):
    w_tile_issue(A, vm, T8, L_W - L_AX)
    w_sym_issue(A)


WSP, IN, D, MID, TMP = 88, 24, 40, 72, 168
DY, W, TT = 72, 104, 136
M_, SPC, CJ, SGN = T0, T1, T2, T3
AUXK = E_("AUXK", 5)
GATE = E_("GATE", 0)
WK = E_("WK", 1)
WMID = WK <= 12
WSK = E_("WSK", 8)
A1K = E_("A1K", 0)
FINE = E_("FINE", 1)
ZSK = E_("ZSK", A1K + 3 + FINE)
LATE = A1K >= 6
A2G = E_("A2G", 0)
XLD, XLS = E_("XLD", 2), E_("XLS", 48)
A3G = E_("A3G", 11)
A3S = E_("A3S", 0)
ZG = E_("ZG", 0)
CTW = E_("CTW", 0)
POLLK = E_("POLLK", 15)
VTLB, VTN, VTF = E_("VTLB", 0), E_("VTN", 1), (" nt" if E_("VTF", 1) else "")
TLBW = E_("TLBW", 0)
DEFER = E_("DEFER", 2)
DK0 = E_("DK0", 0)
LPOS = E_("LPOS", 6)
BARP = E_("BARP", 1)
SWAP = E_("SWAP", 1)
WPOS = E_("WPOS", 0)
ZPOS = E_("ZPOS", -1)
WTK = E_("WTK", 3)
EARLY2 = E_("EARLY2", 1)
SNON = E_("SNON", 0)
FPOLL = E_("FPOLL", 14)
WPK = E_("WPK", -1)
WBYG = E_("WBYG", 0)
WSPLIT = E_("WSPLIT", 0)
NZS = E_("NZS", 1)
TLBT, TLBO, TLBK = E_("TLBT", 0), E_("TLBO", 0), E_("TLBK", 7)
TBG = E_("TBG", 0)
L_TBL = 65536
TIMAP = E_("TIMAP", 1)
PBG = E_("PBG", 0)
CTKS = [int(x) for x in os.environ.get("CTKS", "").split(",") if x]
PRES = E_("PRES", 1)
NPRE = E_("NPRE", 3)
KS0 = E_("KS0", 2)
P1, P2A, P2B = E_("P1", 0), E_("P2A", 50), E_("P2B", 95)
LDEF = E_("LDEF", 0)
LSLP = E_("LSLP", 1)
WSH = E_("WSH", 1)
PRE1, PRE2 = E_("PRE1", 6), E_("PRE2", 12)
HALF = E_("HALF", 0)
WEARLY = E_("WEARLY", 0)
KA, KA0, KA1, KAG = E_("KA", 0), E_("KA0", 5), E_("KA1", 12), E_("KAG", 0)
G1X = os.environ.get("G1X", "")
WMODE = E_("WMODE", 0)
CPK = [int(x) for x in os.environ.get("CPK", "").split(",") if x]
WXT = E_("WXT", 0)
RSLP = E_("RSLP", 1)
PAL = E_("PAL", 0)
NREPA = E_("NREPA", 8)
AXT = E_("AXT", 0)
APRIO, GPRIO = E_("APRIO", 0), E_("GPRIO", 1)
FM, CM = E_("FM", 12), E_("CM", 4)
DMAP = os.environ.get("DMAP", "5,9,13,17,21,25,29,33")
CSP, CSP0, CSB, CSPH = E_("CSP", 0), E_("CSP0", 2), E_("CSB", 12), E_("CSPH", 1)
SK = os.environ.get("SK", "")
A2C = E_("A2C", 0)
LPRIO3 = E_("LPRIO3", 0)
LPRIO0 = E_("LPRIO0", 3)
LPRIO, LPRIO2 = E_('LPRIO', 0), E_('LPRIO2', 0)
L_IMG = 98304
LIMG_FREE = 2


def img(i):
    ka = 8*(i >> 2) + (i & 3)
    return (VA1, ka*1024) if i < 8 else (VA8, 0) if i == 8 else (VA2, (27 - ka)*1024)


def aux_pre_a(A):
    A(f"v_mov_b32 v{SQ}, {L_SYNC + 16}\ns_lshl_b32 s{T4}, s{W_}, 2\nv_add_u32 v{SO}, s{T4}, v{SQ}")
    A("v_and_b32 v8, 31, v1\nv_lshrrev_b32 v9, 5, v1\nv_and_b32 v10, 1, v1")
    A(f"v_lshrrev_b32 v11, 1, v8\nv_lshlrev_b32 v{VA1}, 6, v11\nv_lshl_add_u32 v{VA1}, v10, 4, v{VA1}\nv_lshl_add_u32 v{VA1}, v9, 12, v{VA1}")
    A(f"v_add_u32 v11, v11, v10\nv_lshlrev_b32 v11, 6, v11\nv_lshl_add_u32 v11, v10, 4, v11\nv_lshl_add_u32 v11, v9, 12, v11\nv_sub_u32 v{VA2}, {5120 + 48}, v11")
    for r in (VA1, VA2):
        A(f"v_bfe_u32 v11, v{r}, 7, 1\nv_lshlrev_b32 v11, 5, v11\nv_xor_b32 v{r}, v{r}, v11")
    A(f"v_add_u32 v{VA8}, 11264, v{VA2}\nv_and_b32 v{VA8}, 0x3fff, v{VA8}")
    A(f"s_add_u32 s{T4}, s{T4}, {L_IMG}")
    for r in (VA1, VA2, VA8):
        A(f"v_add_u32 v{r}, s{T4}, v{r}")
    A(f"v_bfe_u32 v11, v1, 3, 1\nv_lshlrev_b32 v11, 5, v11\nv_xor_b32 v{VLIN}, v2, v11")

    A("v_bfe_u32 v12, v1, 2, 1\nv_mul_u32_u24 v12, 2176, v12")
    A("v_bfe_u32 v13, v1, 3, 1\nv_lshl_add_u32 v12, v13, 6, v12\nv_lshl_add_u32 v12, v9, 8, v12")
    A("v_bfe_u32 v13, v1, 4, 1\nv_lshl_add_u32 v12, v13, 5, v12\nv_and_b32 v13, 3, v1\nv_lshl_add_u32 v12, v13, 3, v12")
    A(f"v_add_u32 v12, s{T8}, v12\nv_xor_b32 v13, 128, v12")
    if INOUT:
        A(f"s_lshl_b32 s{T4}, s{T7}, 14")
        srd(A, S0, OUT, T4, 0, 0x1000)
        srd(A, S1, OUT, T4, 0, 0x1000)
    else:
        A(f"s_lshl_b32 s{T4}, s2, 14\ns_lshl_b32 s{T5}, s{W_}, 12\ns_add_u32 s{T4}, s{T4}, s{T5}")
        srd(A, S0, WS, T4, WS_Z1, 0x1000)
        srd(A, S1, WS, T4, WS_Z3, 0x1000)


def aux_pre_w(A):
    A(f"v_and_b32 v14, 7, v1\nv_lshrrev_b32 v15, 3, v1\nv_xor_b32 v16, v14, v15\nv_lshlrev_b32 v16, 4, v16\nv_lshl_add_u32 v16, v14, 11, v16")
    A(f"s_lshr_b32 s{T4}, s{W_}, 1\ns_lshl_b32 s{T4}, s{T4}, 7\ns_and_b32 s{T5}, s{W_}, 1\ns_lshl_b32 s{T5}, s{T5}, 3\ns_add_u32 s{T4}, s{T4}, s{T5}\ns_add_u32 s{T4}, s{T4}, {L_W}")
    A(f"v_add_u32 v{VWR}, s{T4}, v16")
    A(f"v_lshlrev_b32 v15, {18 if INOUT else 16}, v15\nv_lshl_add_u32 v22, v14, 4, v15")
    A(f"s_lshl_b32 s{T4}, s{T3}, 7\ns_lshr_b32 s{T5}, s{W_}, 1\ns_lshl_b32 s{T5}, s{T5}, 6\ns_add_u32 s{T4}, s{T4}, s{T5}")
    A(f"s_and_b32 s{T5}, s{W_}, 1\ns_lshl_b32 s{T5}, s{T5}, 2\ns_add_u32 s{T4}, s{T4}, s{T5}\ns_mul_i32 s{T4}, s{T4}, {KS_}")
    A(f"s_lshr_b32 s{T5}, s{T0}, 2\ns_mul_i32 s{T5}, s{T5}, {ISH - 4096}\ns_add_u32 s{T4}, s{T4}, s{T5}")
    A(f"s_lshl_b32 s{T5}, s{T0}, 10\ns_add_u32 s{T4}, s{T4}, s{T5}\ns_lshl_b32 s{T5}, s{T1}, 9\ns_add_u32 s{T4}, s{T4}, s{T5}\ns_lshl_b32 s{T5}, s{T2}, 7\ns_add_u32 s{T4}, s{T4}, s{T5}")
    if INOUT:
        A(f"s_add_u32 s{T4}, s{T4}, 8192")
        srd(A, S4, OUT, T4, 0, 0x1000000, T4)
    else:
        srd(A, S4, WS, T4, WS_WT + 2*KS_, 0x400000, T4)


KNAME_ = [None]


def code_touch(A, t0):
    name = KNAME_[0]
    pc = uid("pc")
    per = 6
    A(f"s_getpc_b64 {sp(t0)}")
    A.label(pc)
    A(f"s_sub_u32 s{t0}, s{t0}, {pc}-{name}\ns_subb_u32 s{t0+1}, s{t0+1}, 0")
    A(f"s_lshr_b32 s{CNT}, s2, 3\ns_lshl_b32 s{CNT}, s{CNT}, 2\ns_add_u32 s{CNT}, s{CNT}, s{W_}\ns_mul_i32 s{CNT}, s{CNT}, {per*64}")
    A(f"s_min_u32 s{CNT}, s{CNT}, L_{name}_end-{name}-{per*64}")
    for q in range(per):
        A(f"s_load_dword s3, {sp(t0)}, s{CNT} offset:{q*64}")


def c_prefetch(A, p, done):
    A(f"s_load_dwordx4 s[8:11], s[0:1], 64")
    A(f"s_and_b32 s12, s{TJ}, 7\ns_lshl_b32 s13, s12, 7\ns_and_b32 s14, s{TI}, 3\ns_lshl_b32 s14, s14, 5\ns_add_u32 s13, s13, s14")
    A(f"s_sub_u32 s14, s{W_}, 1\ns_mul_i32 s14, s14, 11\ns_min_u32 s14, s14, 21\ns_add_u32 s13, s13, s14\ns_lshl_b32 s13, s13, 11")
    A(f"s_lshr_b32 s14, s{TJ}, 3\ns_lshl_b32 s14, s14, 10\ns_add_u32 s13, s13, s14\ns_waitcnt lgkmcnt(0)")
    A("s_add_u32 s4, s8, s13\ns_addc_u32 s5, s9, 0\ns_add_u32 s6, s10, s13\ns_addc_u32 s7, s11, 0")
    cnt = 0
    for n in range(CSP0, CSP0 + CSP):
        A(f"s_add_u32 s15, s12, {n}\ns_and_b32 s15, s15, 7\ns_lshl_b32 s15, s15, 7")
        for r in range(11):
            for arr in range(2):
                for sec in range(2):
                    A(f"s_load_dword s3, s[{4+2*arr}:{5+2*arr}], s15 offset:{r*2048 + sec*64}")
                    cnt += 1
                    if cnt % CSB == 0:
                        A(f"ds_read_b128 {v(ST,4)}, v{SQ}\ns_waitcnt lgkmcnt(0)")
                        A(f"v_min3_u32 v{ST}, v{ST}, v{ST+1}, v{ST+2}\nv_min_u32 v{ST}, v{ST}, v{ST+3}")
                        A(f"v_readfirstlane_b32 s{CNT}, v{ST}\ns_cmp_ge_u32 s{CNT}, {p}\ns_cbranch_scc1 {done}")


def c_touch(A, vm, mask=None):
    A(f"s_and_b32 s{T4}, s2, 1\ns_lshl_b32 s{T4}, s{T4}, 10\ns_bfe_u32 s{CNT}, s2, 0x20001\ns_lshl_b32 s{CNT}, s{CNT}, 19\ns_add_u32 s{T4}, s{T4}, s{CNT}")
    A(f"s_lshr_b32 s{CNT}, s2, 3\ns_lshl_b32 s{CNT}, s{CNT}, 14\ns_add_u32 s{T4}, s{T4}, s{CNT}")
    A(f"s_lshr_b32 s{CNT}, s{W_}, 1\ns_lshl_b32 s{CNT}, s{CNT}, 13\ns_add_u32 s{T4}, s{T4}, s{CNT}")
    A(f"v_bfe_u32 v22, v1, 3, 2\nv_lshlrev_b32 v22, 11, v22\nv_and_b32 v23, 7, v1\nv_lshl_add_u32 v22, v23, 7, v22\nv_add_u32 v22, s{T4}, v22")
    A("s_mov_b32 exec_hi, 0")
    if mask:
        A(f"s_mov_b32 exec_lo, {hex(mask)}")
    vm.op(f"global_load_dword v11, v22, s[100:101]", "touch")
    A("s_mov_b64 exec, -1")


def flag_poll(A, flg):
    A(f"s_lshl_b32 s{T4}, s2, 2\ns_add_u32 s{T4}, s{T4}, s{W_}\ns_lshr_b32 s{T4}, s{T4}, 4\ns_lshl_b32 s{T4}, s{T4}, 7\ns_add_u32 s{T4}, s{T4}, {flg}")
    A(f"s_add_u32 s24, s{WS}, s{T4}\ns_addc_u32 s25, s{WS+1}, 0")
    A(f"s_load_dwordx16 s[4:19], s[24:25], 0x0 glc")


def flag_wait(A):
    late, go, pl_ = uid("late"), uid("go"), uid("sp")
    A(f"s_mov_b32 s26, s{NONCE}\ns_mov_b32 s27, s{NONCE}\ns_mov_b32 s{CNT}, 0\ns_branch {pl_}")
    A.label(late)
    A(f"s_add_u32 s{CNT}, s{CNT}, 1\ns_cmp_ge_u32 s{CNT}, {SPIN_MAX}\ns_cbranch_scc1 {go}")
    A(f"s_sleep 8\ns_load_dwordx16 s[4:19], s[24:25], 0x0 glc")
    A.label(pl_)
    A("s_waitcnt lgkmcnt(0)")
    for q in range(8):
        A(f"s_cmp_eq_u64 s[{4+2*q}:{5+2*q}], s[26:27]\ns_cbranch_scc0 {late}")
    A.label(go)


RR = lambda arr, kind: 104 + (arr*4 + kind)*2


VWR = 21


def wt_read(A, fin=True):
    for arr in range(2):
        for kind in range(4):
            A(f"ds_read_b64 {v(RR(arr,kind),2)}, v{VWR} offset:{arr*1024 + kind*256}")


def wt_sym(A):
    A(f"s_mov_b32 s{T4}, 0x05040100\ns_mov_b32 s{T5}, 0x07060302")
    A(f"v_lshlrev_b32 v{WSP}, 16, v{WSP}\nv_lshlrev_b32 v{WSP+1}, 16, v{WSP+1}\nv_lshlrev_b32 v23, 1, v1")
    A(f"v_add_f32_dpp v{WSP+2}, v{WSP}, v{WSP} quad_perm:[1,0,3,2] row_mask:0xf bank_mask:0xf")
    A(f"v_subrev_f32_dpp v{WSP+3}, v{WSP+1}, v{WSP+1} quad_perm:[1,0,3,2] row_mask:0xf bank_mask:0xf")
    A(f"v_mul_f32 v{WSP+2}, 0.5, v{WSP+2}\nv_mul_f32 v{WSP+3}, 0.5, v{WSP+3}")
    A(f"v_cvt_pk_bf16_f32 v{WSP}, v{WSP+2}, v{WSP+3}")


def wt_perm(A):
    for kap in range(4):
        o = 120 + 4*kap
        for e in range(2):
            for h2 in range(2):
                kind = e + 2*h2
                A(f"v_perm_b32 v{o+2*e+h2}, v{RR(1,kind)+kap//2}, v{RR(0,kind)+kap//2}, s{T4 + kap % 2}")


def wt_store(A, vm):
    nw = uid("nw")
    A(f"s_cmp_lg_u32 s{W_}, 3\ns_cbranch_scc1 {nw}")
    A(f"s_lshr_b32 s{T4}, s2, 7\ns_mul_i32 s{T4}, s{T4}, {KS_}\ns_bfe_u32 s{T5}, s2, 0x10006\ns_mul_i32 s{T5}, s{T5}, {ISH}\ns_add_u32 s{T4}, s{T4}, s{T5}")
    A(f"s_and_b32 s{T5}, s2, 63\ns_lshl_b32 s{T5}, s{T5}, 6\ns_add_u32 s{T4}, s{T4}, s{T5}")
    srd(A, 4, WS, T4, WS_WT, 64)
    A("s_mov_b32 exec_lo, 0x55555555\ns_mov_b32 exec_hi, 0")
    if not E_("SKIPS", 0):
        A(f"buffer_store_dword v{WSP}, v23, {r4(4)}, 0 offen sc1")
    A("s_mov_b64 exec, -1")
    A.label(nw)
    for kap in range(0 if "2" in SK else 4):
        A(f"s_mov_b32 s{CNT}, {kap*KS_}")
        vm.op(f"buffer_store_dwordx4 {v(120+4*kap,4)}, v22, {r4(S4)}, s{CNT} offen sc1", "wst")


def a1_stores(A, vm):
    for u in range(0 if "3" in SK else 4):
        vm.op(f"buffer_store_dwordx4 {v(MID+4*u,4)}, v2, {r4(S0)}, 0 offen offset:{u*1024} sc1", "zst")
    if WMODE == 0 and WTK == ZPOS:
        wt_store(A, vm)


def a1_task(A, vm):
    vm.wait_for("ax")
    trace(A, 0, 2)
    for s_ in range(4):
        for u in range(2):
            A(f"ds_read_b64_tr_b16 {v(IN+4*s_+2*u,2)}, v{12+u} offset:{s_*512}")
    A("s_waitcnt lgkmcnt(0)")
    stage1(A, IN, D)
    twiddle(A, D, MID, TMP)
    stage2(A, MID, D)
    A(f"s_lshl_b32 s{CNT}, s{W_}, 12\ns_add_u32 s{CNT}, s{CNT}, {L_IMG}\nv_add_u32 v8, s{CNT}, v{VLIN}")
    for i in range(16):
        A(f"v_cvt_pk_bf16_f32 v{MID+i}, v{D+i}, v{D+16+i}")
        a, o = img(i)
        A(f"ds_write_b32 v{a}, v{MID+i} offset:{o}")
    trace(A, 0, 3)
    if WMODE == 0 and WPK < 0:
        if WBYG:
            A("s_waitcnt vmcnt(0)")
            l_check(A, 1, RING_LG - 16)
        else:
            vm.wait_for("w")
    A("s_waitcnt lgkmcnt(0)")
    l_sync(A)
    trace(A, 0, 4)
    for u in range(4):
        A(f"ds_read_b128 {v(MID+4*u,4)}, v8 offset:{u*1024}")
    if WMODE == 0 and WPK < 0:
        wt_read(A)
    for r in (VA1, VA2, VA8):
        A(f"v_add_u32 v{r}, {L_AX - L_IMG}, v{r}")
    A("s_waitcnt lgkmcnt(0)")
    p = l_arrive(A)
    assert p == LIMG_FREE
    if NZS:
        nn = uid("nn")
        A(f"s_lshl_b32 s{CNT}, s2, 3\ns_add_u32 s{CNT}, s{CNT}, s{WAVE}\ns_cmp_lg_u32 s{CNT}, 4\ns_cbranch_scc1 {nn}")
        A(f"s_add_u32 s3, s3, 1\ns_cmp_eq_u32 s3, 0\ns_cselect_b32 s3, 1, s3")
        A(f"s_atomic_swap s3, {sp(DBG)}, 0x0\ns_atomic_swap s3, {sp(WS)}, {hex(WS_NONCE)}")
        A.label(nn)
    if WMODE == 0 and WPK < 0:
        wt_sym(A)
        wt_perm(A)
    if EARLY2:
        if not TBG:
            make_T(A, TT, 92, 1)
        a2_setup(A)
    if ZPOS < 0:
        a1_stores(A, vm)
    trace(A, 0, 5)


def a2_setup(A):
    A(f"s_and_b32 s{M_}, s2, 7\ns_lshl_b32 s{M_}, s{M_}, 5\ns_lshr_b32 s{T4}, s2, 3\ns_add_u32 s{M_}, s{M_}, s{T4}")
    A(f"s_lshr_b32 s{T4}, s{W_}, 1\ns_xor_b32 s{T4}, s{T4}, s{W_}\ns_and_b32 s{T4}, s{T4}, 1")
    A(f"s_or_b32 s{T5}, s{T4}, s{M_}\ns_cmp_eq_u32 s{T5}, 0\ns_cselect_b32 s{SPC}, 1, 0")
    A(f"s_lshl_b32 s{T5}, s{M_}, 1\ns_add_u32 s{T4}, s{T4}, s{T5}")
    A(f"s_mul_i32 s{T4}, s{T4}, {KS_}\ns_add_u32 s{T4}, s{T4}, {8192 if INOUT else WS_WT + 2*KS_}")
    A(f"s_lshr_b32 s{T5}, s{W_}, 1\ns_mul_i32 s{T9}, s{T5}, {KS_}\ns_add_u32 s{T9}, s{T9}, {WS_WT}")
    A(f"s_cmp_eq_u32 s{SPC}, 1\ns_cselect_b32 s{T4}, s{T9}, s{T4}\ns_cselect_b32 s{T5}, 0, s{T5}")
    A(f"s_cselect_b32 s{MSK}, s{WS}, s{OUT if INOUT else WS}\ns_cselect_b32 s{MSK+1}, s{WS+1}, s{(OUT if INOUT else WS)+1}")
    A(f"s_lshl_b32 s{CJ}, s{T5}, 31\ns_or_b32 s{SGN}, s{CJ}, 0x3f800000")
    srd(A, S2, MSK, T4, 0, ISH + 4096)
    if INOUT:
        A(f"s_lshl_b32 s{T4}, s{W_}, 22\ns_lshr_b32 s{T5}, s{M_}, 6\ns_lshl_b32 s{T5}, s{T5}, 19\ns_add_u32 s{T4}, s{T4}, s{T5}")
        A(f"s_and_b32 s{T5}, s{M_}, 63\ns_lshl_b32 s{T5}, s{T5}, 6\ns_add_u32 s{T4}, s{T4}, s{T5}")
        srd(A, S3, OUT, T4, 0, 160*16384, T5)
        srd(A, S4, OUT, T4, 0, 160*16384, T5)
    else:
        A(f"s_lshl_b32 s{T4}, s{W_}, 20\ns_lshl_b32 s{T5}, s{M_}, 6\ns_add_u32 s{T4}, s{T4}, s{T5}")
        assert WS_Z1 == WS_Z3
        srd(A, S3, WS, T4, WS_Z1, 0x100000, T5)
    A("v_lshrrev_b32 v8, 2, v1\nv_lshlrev_b32 v8, 14, v8\nv_and_b32 v9, 3, v1\nv_lshrrev_b32 v10, 4, v1\nv_xor_b32 v9, v9, v10\nv_lshl_add_u32 v14, v9, 4, v8")
    A(f"v_and_b32 v8, 31, v1\nv_bfe_u32 v9, v1, 2, 2\nv_xor_b32 v9, s{W_}, v9\nv_lshlrev_b32 v9, 4, v9\nv_lshl_add_u32 v9, v8, 6, v9")
    A(f"v_lshrrev_b32 v8, 5, v1\nv_lshl_add_u32 v9, v8, 11, v9\nv_add_u32 v15, {L_AX}, v9")
    A(f"s_lshl_b32 s{T4}, s{W_}, 13\ns_add_u32 s{T4}, s{T4}, {L_AX}\nv_add_u32 v16, s{T4}, v2")
    A(f"s_xor_b32 s{T5}, s{T4}, {3 << 13}\ns_cmp_eq_u32 s{SPC}, 1\ns_cselect_b32 s{T5}, s{T4}, s{T5}\nv_add_u32 v17, s{T5}, v2")
    A(f"v_add_u32 v18, s{T8}, v2")
    A(f"s_lshr_b32 s{T4}, s{W_}, 1\ns_xor_b32 s{T4}, s{T4}, s{W_}\ns_and_b32 s{T4}, s{T4}, 1\ns_lshl_b32 s{T9}, s{T4}, 13\ns_add_u32 s{T9}, s{T9}, {L_W}\nv_add_u32 v19, s{T9}, v2")
    for kk in range(32):
        A(f"v_mul_f32 v{TT+kk}, s{SGN}, v{TT+kk}")


ZU = lambda u: (16*(u & 1) + 128*(u >> 1))*16384 if INOUT else u << 18


def a2_loads(A, z=True, w=True):
    for u in range(4 if z and '5' not in SK else 0):
        A(f"s_add_u32 m0, s{T8}, {u*1024}\ns_mov_b32 s{T4}, {ZU(u)}")
        A(f"buffer_load_dwordx4 v14, {r4(S3)}, s{T4} offen sc1 lds")
    if WSH:
        a, b = uid("ws"), uid("wd")
        A(f"s_cmp_eq_u32 s{SPC}, 1\ns_cbranch_scc1 {a}")
        A(f"s_lshr_b32 s{T4}, s{W_}, 1\ns_lshl_b32 s{T5}, s{T4}, 12\ns_mul_i32 s{T4}, s{T4}, {ISH}\ns_add_u32 m0, s{T9}, s{T5}")
        for u in range(4):
            A(f"buffer_load_dwordx4 v2, {r4(S2)}, s{T4} offen offset:{u*1024} sc1 lds")
        A(f"s_waitcnt vmcnt(0)\ns_branch {b}")
        A.label(a)
    A(f"s_movk_i32 s{T4}, {ISH}")
    for it in range(8 if w and '4' not in SK else 0):
        A(f"buffer_load_dwordx4 {v(W+4*it,4)}, v2, {r4(S2)}, {'0' if it < 4 else f's{T4}'} offen offset:{(it & 3)*1024} sc1")
    if WSH:
        A.label(b)


PH_RES = 18


def phase_atomic(A, cnt, p):
    x = uid("ph")
    A(f"s_cmp_lg_u32 s{W_}, 0\ns_cbranch_scc1 {x}")
    l_check(A, p)
    A(f"s_and_b32 s{T4}, s2, 15\ns_lshl_b32 s{T5}, s{T4}, 7\ns_add_u32 s{T5}, s{T5}, {cnt}")
    A(f"s_add_u32 s{MSK}, s{WS}, s{T5}\ns_addc_u32 s{MSK+1}, s{WS+1}, 0\ns_mov_b32 s{PH_RES}, 1")
    A(f"s_atomic_add s{PH_RES}, {sp(MSK)}, 0x0 glc")
    A.label(x)


def phase_last(A, flg, wait=True, nrep=None):
    y = uid("sg")
    A(f"s_cmp_lg_u32 s{W_}, 0\ns_cbranch_scc1 {y}")
    A(f"s_and_b32 s{T4}, s2, 15\ns_lshl_b32 s{T4}, s{T4}, 2\ns_add_u32 s{T4}, s{T4}, {flg}")
    A(f"s_add_u32 s4, s{WS}, s{T4}\ns_addc_u32 s5, s{WS+1}, 0")
    A("s_waitcnt lgkmcnt(0)")
    A(f"s_cmp_lg_u32 s{PH_RES}, 15\ns_cbranch_scc1 {y}")
    for r in range(nrep or NREP):
        A(f"s_atomic_swap s{NONCE}, s[4:5], {hex(r*128)}")
    if wait:
        A("s_waitcnt lgkmcnt(0)")
    A.label(y)


def phase_wait(A, flg, tb, nrep=None):
    x, pl_, nok = uid("ph"), uid("sp"), uid("nok")
    A(f"s_cmp_lg_u32 s{W_}, 0\ns_cbranch_scc1 {x}")
    A(f"s_and_b32 s{T4}, s2, {(nrep or NREP) - 1}\ns_lshl_b32 s{T4}, s{T4}, 7\ns_add_u32 s{T4}, s{T4}, {flg}")
    A(f"s_add_u32 s{MSK}, s{WS}, s{T4}\ns_addc_u32 s{MSK+1}, s{WS+1}, 0\ns_mov_b32 s{T4}, s{NONCE}\ns_mov_b32 s{T5}, s{NONCE}\ns_mov_b32 s{CNT}, 0")
    A(f"s_branch {pl_}")
    A.label(nok)
    A(f"s_add_u32 s{CNT}, s{CNT}, 1\ns_cmp_ge_u32 s{CNT}, {SPIN_MAX}\ns_cbranch_scc1 {x}")
    if SLP_A:
        A(f"s_sleep {SLP_A}")
    A.label(pl_)
    A(f"s_load_dwordx16 s[4:19], {sp(MSK)}, 0x0 glc\ns_waitcnt lgkmcnt(0)")
    for q in range(8):
        A(f"s_cmp_eq_u64 s[{4+2*q}:{5+2*q}], {sp(T4)}\ns_cbranch_scc0 {nok}")
    if TRACE:
        A(f"v_writelane_b32 v0, s{CNT}, {tb}")
    A.label(x)
    p2 = l_arrive(A)
    if CSP and flg == (FLG_A if CSPH == 0 else FLG_B):
        dn = uid("csp")
        A(f"s_cmp_eq_u32 s{W_}, 0\ns_cbranch_scc1 {dn}")
        c_prefetch(A, p2, dn)
        A.label(dn)
    l_check(A, p2, slp=LSLP)


def aux_rest(A, vm):
    def phase(cnt, flg, young=0):
        trace(A, 0, 48)
        A(f"s_waitcnt vmcnt({young})")
        trace(A, 0, 49)
        p = l_arrive(A)
        phase_atomic(A, cnt, p)
        phase_last(A, flg)
        trace(A, 0, 50)
        phase_wait(A, flg, 62)
        trace(A, 0, 51)
    if ZPOS >= 11:
        phase(CNT_A, FLG_A)
    elif FPOLL:
        flag_wait(A)
    else:
        phase_wait(A, FLG_A, 61, 64)
    trace(A, 0, 7)
    A(f"s_setprio {LPRIO2}")
    if A2G:
        l_check(A, A2G % 100, RING_D - 16 if A2G < 100 else -16)
    if CTW == 2:
        c_touch(A, vm)
    trace(A, 0, 8)
    a2_loads(A)
    mark(A, 7)
    A(f"s_waitcnt vmcnt({0 if '4' in SK else 8})")
    trace(A, 0, 9)
    if E_("AM", 0) in (1, 2):
        mark(A, 1)
    l_sync(A)
    trace(A, 0, 10)
    INS = 72
    for s_ in range(4):
        A(f"ds_read_b128 {v(INS+4*s_,4)}, v15 offset:{s_*4096}")
    if WSH:
        a = uid("wr")
        A(f"s_cmp_eq_u32 s{SPC}, 1\ns_cbranch_scc1 {a}")
        for it in range(8):
            A(f"ds_read_b128 {v(W+4*it,4)}, v19 offset:{it*1024}")
        A.label(a)
    A("s_waitcnt lgkmcnt(0)")
    if E_("AM", 0) == 2:
        mark(A, 2)
    p6 = l_arrive(A)
    if A2C:
        l_check(A, A2C, -16)
    A(f"s_lshl_b32 s{T4}, s{SPC}, 31\ns_or_b32 s{T4}, s{T4}, s{CJ}")
    fl, nwr = uid("fft"), uid("nwr")
    A.label(fl)
    for i in range(16):
        A(f"v_xor_b32 v{IN+i}, s{T4}, v{INS+i}")

    def pre(rng):
        for i in rng:
            w, rho, sg = W + 2*i, TT + i, TT + 16 + i
            r1, i1, r2, i2, Ar, Ai = (TMP + 8 + c for c in range(6))
            A(f"v_lshlrev_b32 v{r1}, 16, v{w}\nv_and_b32 v{i1}, 0xffff0000, v{w}")
            A(f"v_lshlrev_b32 v{r2}, 16, v{w+1}\nv_and_b32 v{i2}, 0xffff0000, v{w+1}")
            A(f"v_add_f32 v{Ar}, v{r1}, v{r2}\nv_add_f32 v{Ai}, v{i1}, v{i2}")
            A(f"v_sub_f32 v{r1}, v{r1}, v{r2}\nv_sub_f32 v{i1}, v{i1}, v{i2}")
            A(f"v_mul_f32 v{w}, v{rho}, v{r1}\nv_mul_f32 v{w+1}, v{rho}, v{i1}")
            A(f"v_fma_f32 v{rho}, v{sg}, v{r1}, v{Ar}\nv_fma_f32 v{sg}, v{sg}, v{i1}, v{Ai}")

    def once(rng):
        a = uid("once")
        A(f"s_cmp_eq_u32 s{SPC}, 2\ns_cbranch_scc1 {a}\ns_waitcnt vmcnt(0)")
        pre(rng)
        A.label(a)
    stage1(A, IN, D)
    once(range(0, PRE1))
    twiddle(A, D, IN, TMP)
    stage2(A, IN, D)
    once(range(PRE1, PRE2))
    l_check(A, p6)
    if E_("AM", 0) == 2:
        mark(A, 5)
    A(f"s_cmp_eq_u32 s{SPC}, 2\ns_cbranch_scc1 {nwr}")
    for c in range(8):
        A(f"ds_write_b128 v16, {v(D+4*c,4)} offset:{c*1024}")
    A(f"s_cmp_eq_u32 s{SPC}, 0\ns_cbranch_scc1 {nwr}")
    A(f"s_mov_b32 s{SPC}, 2\ns_mov_b32 s{T4}, 0\ns_branch {fl}")
    A.label(nwr)
    pre(range(PRE2, min(16, PRE2 + 2)))
    A("s_waitcnt lgkmcnt(0)")
    p7 = l_arrive(A)
    pre(range(min(16, PRE2 + 2), 16))

    def own(rng):
        for i in rng:
            Xr, Xi, mr, mi, t = D+i, D+16+i, TT+i, TT+16+i, TMP + (i & 1)
            A(f"v_mul_f32 v{t}, v{mi}, v{Xi}\nv_mul_f32 v{Xi}, v{mr}, v{Xi}")
            A(f"v_fmac_f32 v{Xi}, v{mi}, v{Xr}\nv_fma_f32 v{Xr}, v{mr}, v{Xr}, -v{t}")
    own(range(0, 6))
    l_check(A, p7)
    for c in range(8):
        A(f"ds_read_b128 {v(DY+4*c,4)}, v17 offset:{c*1024}")
    own(range(6, 16))
    A("s_waitcnt lgkmcnt(0)")
    if E_("AM", 0) in (1, 2):
        mark(A, 4)
    p8 = l_arrive(A)
    for i in range(16):
        Pr, Pi, Yr, Yi, gr, gi = D+i, D+16+i, DY+i, DY+16+i, W+2*i, W+2*i+1
        A(f"v_fma_f32 v{Pr}, -v{gr}, v{Yi}, v{Pr}\nv_fmac_f32 v{Pi}, v{gr}, v{Yr}")
        A(f"v_fma_f32 v{Pr}, -v{gi}, v{Yr}, v{Pr}\nv_fma_f32 v{Pi}, -v{gi}, v{Yi}, v{Pi}")
        A(f"v_cvt_pk_bf16_f32 v{IN+i}, v{Pi}, v{Pr}")
    if E_("AM", 0) == 2:
        mark(A, 6)
    stage1(A, IN, D)
    twiddle(A, D, IN, TMP)
    stage2(A, IN, D)
    A(f"s_lshr_b32 s{T4}, s{CJ}, 16")
    l_check(A, p8)
    for s_ in range(4):
        for r in range(4):
            i = 4*s_ + r
            A(f"v_cvt_pk_bf16_f32 v{IN+i}, v{D+i}, v{D+16+i}\nv_xor_b32 v{IN+i}, s{T4}, v{IN+i}")
        A(f"ds_write_b128 v15, {v(IN+4*s_,4)} offset:{s_*4096}")
    A("s_waitcnt lgkmcnt(0)")
    if E_("AM", 0) == 2:
        mark(A, 7)
    l_sync(A)
    for u in range(4):
        A(f"ds_read_b128 {v(IN+4*u,4)}, v18 offset:{u*1024}")
    for u in range(4):
        A(f"s_mov_b32 s{T4}, {ZU(u)}\ns_waitcnt lgkmcnt({3-u})")
        if "6" not in SK:
            A(f"buffer_store_dwordx4 {v(IN+4*u,4)}, v14, {r4(S3)}, s{T4} offen sc1")
    trace(A, 0, 11)
    if E_("AM", 0) != 3 and not E_("GM", 0):
        mark(A, 3)
    A(f"s_lshl_b32 s{T4}, s{T7}, 14")
    srd(A, S0, OUT, T4, 0, 0x4000)
    A("v_and_b32 v8, 31, v1\nv_lshrrev_b32 v9, 5, v1\nv_lshlrev_b32 v14, 2, v8\nv_lshl_add_u32 v14, v9, 9, v14")
    A(f"s_mov_b32 s{T4}, 0x35000000")
    for k in range(32):
        A(f"v_mul_f32 v{T+k}, s{T4}, v{T+k}")
    phase(CNT_B, FLG_B)
    A(f"s_setprio {LPRIO3}")
    if A3G:
        l_check(A, A3G, -16)
    trace(A, 0, 12)
    if E_("AM", 0) != 3:
        mark(A, 8)
    A(f"s_mov_b32 m0, s{T8}")
    for u in range(4):
        if "7" not in SK:
            A(f"buffer_load_dwordx4 v{VLIN}, {r4(S1)}, 0 offen offset:{u*1024} sc1 lds")
    A("s_waitcnt vmcnt(0)")
    trace(A, 0, 13)
    l_sync(A)
    for i in range(16):
        a, o = img(i)
        A(f"ds_read_b32 v{IN+i}, v{a} offset:{o}")
    A("s_waitcnt lgkmcnt(0)")
    stage1(A, IN, D)
    twiddle(A, D, IN, TMP)
    stage2(A, IN, D)
    A(f"s_movk_i32 s{T4}, 0x2000")
    O = 72
    for part in range(2 if A3S else 1):
        if part == 1:
            l_check(A, A3S, -16)
        for i in range(16):
            o = O + 2*i
            if part == 0:
                A(f"v_cvt_pk_bf16_f32 v{o+1}, v{D+16+i}, v{D+i}")
                A(f"v_lshlrev_b32 v{o}, 16, v{o+1}\nv_and_b32 v{o+1}, 0xffff0000, v{o+1}")
            off = (i >> 2)*1024 + (i & 3)*128
            if "8" not in SK and (part == 1 or not A3S):
                A(f"buffer_store_dword v{o}, v14, {r4(S0)}, 0 offen offset:{off}{OST}")
                A(f"buffer_store_dword v{o+1}, v14, {r4(S0)}, s{T4} offen offset:{off}{OST}")


def cmul_sq(A, d, a, t):
    A(f"v_mul_f32 {v(t)}, {v(a+1)}, {v(a+1)}")
    A(f"v_mul_f32 {v(t+1)}, {v(a)}, {v(a+1)}")
    A(f"v_fma_f32 {v(d)}, {v(a)}, {v(a)}, -{v(t)}")
    A(f"v_add_f32 {v(d+1)}, {v(t+1)}, {v(t+1)}")


def horner(A, dr, di, L, pr, pi, er, ei, t):
    assert dr not in (pr, pi) and di not in (pr, pi)
    A(f"v_fma_f32 {v(t)}, {v(L)}, {v(pr)}, {v(er)}")
    A(f"v_fma_f32 {v(t+1)}, {v(L)}, {v(pi)}, {v(ei)}")
    A(f"v_fma_f32 {v(dr)}, -{v(L+1)}, {v(pi)}, {v(t)}")
    A(f"v_fma_f32 {v(di)}, {v(L+1)}, {v(pr)}, {v(t+1)}")


RING_D, RING_LG, RING_LA = 32, 48, 64


def dma_setup(A, swt, swp, RV, t, ta, tb):
    l5, a, b_, c, d, e = (t + i for i in range(6))
    A(f"v_lshrrev_b32 v{l5}, 5, v1\nv_bfe_u32 v{a}, v1, 3, 2\nv_and_b32 v{b_}, 1, v{a}\nv_lshrrev_b32 v{c}, 1, v{a}")
    A(f"v_lshlrev_b32 v{d}, 4, v{l5}\nv_lshl_add_u32 v{d}, v{b_}, 3, v{d}\nv_add_u32 v{d}, v{d}, v{c}")
    A(f"s_lshl_b32 s{ta}, s{swt}, 6\ns_lshl_b32 s{tb}, s{swp}, 2\ns_add_u32 s{ta}, s{ta}, s{tb}")
    A(f"v_add_u32 v{d}, s{ta}, v{d}\nv_lshlrev_b32 v{d}, 11, v{d}")
    A(f"s_lshl_b32 s{ta}, s{swt}, 5")
    A(f"v_lshl_add_u32 v{e}, v{l5}, 3, v{a}\nv_add_u32 v{e}, s{ta}, v{e}\nv_lshlrev_b32 v{e}, 11, v{e}")
    A(f"v_and_b32 v{b_}, 7, v1\nv_lshrrev_b32 v{c}, 4, v1\nv_xor_b32 v{b_}, v{b_}, v{c}\nv_lshlrev_b32 v{b_}, 4, v{b_}\nv_xor_b32 v{c}, 64, v{b_}")
    A(f"v_add_u32 v{RV}, v{d}, v{b_}\nv_add_u32 v{RV+1}, v{d}, v{c}\nv_add_u32 v{RV+1}, {32*2048 - 1024}, v{RV+1}")
    A(f"v_add_u32 v{RV+2}, v{e}, v{b_}\nv_add_u32 v{RV+3}, v{e}, v{c}\nv_add_u32 v{RV+3}, {16*2048 - 1024}, v{RV+3}")


def make_piece(A, vm, RA, RB, ROT, M0B, SOF, RV):
    def piece(k, n):
        slot, u = k % NS, n & 3
        if n == 0:
            A(f"s_add_u32 s{SOF}, s{ROT}, {((k*E_('KDIR', 1)) % 16)*128}\ns_and_b32 s{SOF}, s{SOF}, 0x7ff")
            A(f"s_add_u32 s{SOF+1}, s{SOF}, 2048\ns_add_u32 s{SOF+2}, s{SOF}, 6144")
        if u == 0:
            A(f"s_add_u32 m0, s{M0B}, {slot*32768 + (n >> 2)*16384}")
        so = SOF if u < 2 else SOF + 1 + (n >> 2)
        if ("a" in G1X and 0 < n < 4) or ("b" in G1X and n > 4):
            return
        vm.op(f"buffer_load_dwordx4 v{RV + 2*(n >> 2) + (u & 1)}, {r4(RA if n < 4 else RB)}, s{so} offen offset:{u*1024} lds", ("st", k))
    return piece


def rot_setup(A, ROT, t):
    if TIMAP:
        A(f"s_bfe_u32 s{ROT}, s2, 0x20001\ns_lshl_b32 s{ROT}, s{ROT}, 2\ns_lshr_b32 s{t}, s2, 6\ns_add_u32 s{ROT}, s{ROT}, s{t}\ns_mul_i32 s{ROT}, s{ROT}, {RI*128}")
    else:
        A(f"s_mul_i32 s{ROT}, s{TI}, {RI*128}")
    A(f"s_mul_i32 s{t}, s{TJ}, {RJ*128}\ns_add_u32 s{ROT}, s{ROT}, s{t}")
    if E_("ROTFIX", 1):
        A(f"s_bfe_u32 s{t}, s{ROT}, 0x30007\ns_cmp_eq_u32 s{t}, 3\ns_cselect_b32 s{t}, {E_('ROTFIX', 1)*128}, 0\ns_add_u32 s{ROT}, s{ROT}, s{t}")
    if E_("ROTC", 0):
        A(f"s_add_u32 s{ROT}, s{ROT}, {E_('ROTC', 0)*128}")


def aux_waves(A, name, kidx):
    A(f"s_sub_u32 s{W_}, s{WAVE}, 4")
    A(f"s_setprio {APRIO}")
    if BARP == 0:
        A("s_barrier")
    A("s_waitcnt lgkmcnt(0)")
    A(f"s_mov_b32 s100, s{CRE}\ns_mov_b32 s101, s{CRE+1}")
    A(f"s_bitcmp1_b32 s{W_}, 0\ns_cselect_b32 s100, s{CIM}, s{CRE}\ns_cselect_b32 s101, s{CIM+1}, s{CRE+1}")
    trace_init(A, 0)
    vm = VmCounter(A)
    if CODEPF:
        pf, pc = uid("pf"), uid("pc")
        A(f"s_cmp_lg_u32 s{W_}, 1")
        A(f"s_cbranch_scc1 {pf}")
        A(f"s_lshr_b32 s{T0}, s2, 3\ns_lshl_b32 s{T0}, s{T0}, 11\nv_and_b32 v12, 15, v1\nv_lshl_add_u32 v12, v12, 7, s{T0}")
        A(f"v_min_u32 v12, L_{name}_end-{name}, v12")
        A(f"s_getpc_b64 {sp(T0)}")
        A.label(pc)
        A(f"s_sub_u32 s{T0}, s{T0}, {pc}-{name}\ns_subb_u32 s{T1}, s{T1}, 0")
        A(f"global_load_dword v23, v12, {sp(T0)}")
        A.label(pf)
    nn = uid("nn")
    A(f"s_lshl_b32 s{T0}, s2, 3\ns_add_u32 s{T0}, s{T0}, s{WAVE}\ns_cmp_lg_u32 s{T0}, 4")
    A(f"s_cbranch_scc1 {nn}")
    A(f"s_load_dword s3, {sp(WS)}, {WS_NONCE}")
    if not NZS:
        A(f"v_mov_b32 v22, 0\nv_lshlrev_b32 v23, 7, v1\nv_add_u32 v23, {WS_CNT}, v23")
        A(f"global_store_dword v23, v22, {sp(WS)} sc1")
    A.label(nn)

    def clear_counters():
        nn = uid("nz")
        A(f"s_cmp_lg_u32 s2, 0\ns_cbranch_scc1 {nn}")
        A(f"s_lshl_b32 s24, s{W_}, 10\ns_add_u32 s24, s24, {WS_CNT}\ns_add_u32 s24, s{WS}, s24\ns_addc_u32 s25, s{WS+1}, 0\ns_mov_b32 s26, 0")
        for r in range(8):
            A(f"s_atomic_swap s26, s[24:25], {hex(r*128)}")
        A.label(nn)

    def publish_nonce(young):
        nn = uid("nn")
        A(f"s_lshl_b32 s{CNT}, s2, 3\ns_add_u32 s{CNT}, s{CNT}, s{WAVE}\ns_cmp_lg_u32 s{CNT}, 4")
        A(f"s_cbranch_scc1 {nn}")
        A(f"s_waitcnt vmcnt({young}) lgkmcnt(0)")
        A(f"s_add_u32 s3, s3, 1\ns_cmp_eq_u32 s3, 0\ns_cselect_b32 s3, 1, s3")
        A(f"v_mov_b32 v11, s3\nv_mov_b32 v10, 0")
        A(f"s_mov_b64 exec, 1\nglobal_store_dword v10, v11, {sp(DBG)} sc1")
        A(f"global_store_dword v10, v11, {sp(WS)} offset:{WS_NONCE}\ns_mov_b64 exec, -1")
        A.label(nn)
    if NOAUX:
        if BARP:
            A("s_barrier")
        assert not NZS
        publish_nonce(0)
        if CTW:
            for _ in range(E_("CTD", 100)):
                A("s_sleep 1")
            c_touch(A, vm)
        A("s_endpgm")
        return
    RA, RB, ROT, M0B, SOF, RV = 12, 20, 16, 17, 8, 176
    piece = make_piece(A, vm, RA, RB, ROT, M0B, SOF, RV)

    def loader_setup():
        A(f"s_lshl_b32 s{T4}, s{TI}, 18\ns_lshl_b32 s{T5}, s{TJ}, 17")
        srd(A, RA, BX, T4, 0, 0x40000)
        A(f"s_bitcmp1_b32 s{W_}, 0\ns_cselect_b32 s8, s{BIM}, s{BRE}\ns_cselect_b32 s9, s{BIM+1}, s{BRE+1}")
        srd(A, RB, 8, T5, 0, 0x20000)
        rot_setup(A, ROT, T4)
        A(f"s_lshl_b32 s{M0B}, s{W_}, 12")
        A(f"s_lshr_b32 s{T4}, s{W_}, 1\ns_and_b32 s{T5}, s{W_}, 1")
        dma_setup(A, T4, T5, RV, 96, CNT, 19)
    aux_setup_ax(A)
    aux_issue(A, vm)
    if WMODE == 0 and WPOS == 0 and not WBYG:
        aux_setup_w(A)
        if WSPLIT:
            w_tile_issue(A, vm, T8, L_W - L_AX, [0])
        else:
            w_issue(A, vm)
    if NZS:
        clear_counters()
    def page_touch(pages, only=None):
        todo = [(b_, o + q) for b_, o, n in pages for q in sorted(set(list(range(0, n, 2 << 20)) + [n - 64]))]
        y = uid("tm")
        if only is not None:
            A(f"s_lshr_b32 s27, s2, 3\ns_and_b32 s27, s27, {only}\ns_cmp_lg_u32 s27, 0\ns_cbranch_scc1 {y}")
        for w in range(4):
            x = uid("tl")
            A(f"s_cmp_lg_u32 s{W_}, {w}\ns_cbranch_scc1 {x}")
            for b_, o in todo[w::4]:
                A(f"s_mov_b32 s27, {hex(o)}\ns_load_dword s26, {sp(b_)}, s27")
            A.label(x)
        A.label(y)
    LATEP = [(WS, 0, 1 << 20), (WS, WS_HT, 64*TBS), (WS, WS_XB, 8 << 20), (OUT, 0, 16 << 20)]
    if TLBT & 1:
        page_touch([(WS, WS_Z1, 4 << 20), (WS, WS_WT, 516*8192)], only=TLBO if TLBO else None)
    if TLBT & 2:
        page_touch([(BX, 0, 4 << 20), (BRE, 0, 2 << 20), (BIM, 0, 2 << 20), (LRE, 0, 64), (LIM, 0, 64), (LDT, 0, 64)], only=TLBO if TLBO else None)
    if BARP == 1:
        A("s_barrier")
    trace(A, 0, 0)
    if TBG:
        A(f"v_add_u32 v92, {L_TBL}, v2")
        for w, d in enumerate((F, T, TT)):
            for q in range(8):
                A(f"ds_read_b128 {v(d+4*q,4)}, v92 offset:{w*8192 + q*1024}")
    else:
        make_F(A, 92)
    if WSPLIT == 1:
        w_tile_issue(A, vm, T8, L_W - L_AX, [1])
        w_sym_issue(A)
        if BARP == 2:
            A("s_barrier")
    if WMODE == 0 and WPOS == 1:
        aux_setup_w(A)
        w_issue(A, vm)
    if not TBG:
        make_T(A, T, 92, 0)
    if WSPLIT == 2:
        w_tile_issue(A, vm, T8, L_W - L_AX, [1])
        w_sym_issue(A)
        if BARP == 2:
            A("s_barrier")
    if WMODE == 0 and WPOS == 2:
        aux_setup_w(A)
        w_issue(A, vm)
    if WBYG:
        w_addr(A, W_)
        w_sym_addr(A)
        w_sym_issue(A)
    aux_pre_a(A)
    if WMODE == 0:
        aux_pre_w(A)
    if PRES:
        loader_setup()
    if not NZS:
        publish_nonce(len(vm.issued))
    trace(A, 0, 1)
    a1_task(A, vm)
    if WMODE:
        aux_setup_w(A)
        aux_pre_w(A)
    if not PRES:
        loader_setup()
    Lt = Asm()
    if not EARLY2:
        make_T(Lt, TT, 92, 1)
    later = Lt.lines
    issued = KS0
    if KS0 < NS and E_("PREK", 0):
        for n in range(8):
            piece(issued, n)
        issued += 1
    trace(A, 0, 6)
    A(f"s_setprio {LPRIO0}")
    ZLATE = ZPOS >= 11
    KS = max(WSK if WMODE else KS0, ZPOS, WTK) + LA + 1 if not ZLATE else E_("KSL", 11)
    assert KS + 2 <= 13
    for k in range(16):
        if k >= KS0:
            vm.wait_for(("st", k))
        if WMODE == 0 and k == WPK:
            vm.wait_for("w")
        trace(A, 0, 16 + k)
        A("s_barrier")
        while issued < min(16, k + LA + 1):
            for n in range(8):
                piece(issued, n)
            issued += 1
        if WMODE == 0 and k == WPK:
            assert WPK < 2 and WTK > WPK
            wt_read(A)
            A("s_waitcnt lgkmcnt(0)")
            wt_sym(A)
            wt_perm(A)
        if k == ZPOS:
            a1_stores(A, vm)
        if WMODE == 0 and k == WTK and WTK != ZPOS:
            wt_store(A, vm)
        if k == 2:
            if SNON:
                A(f"s_load_dword s{NONCE}, {sp(DBG)}, 0x0 glc")
            else:
                A("v_mov_b32 v20, 0")
                vm.op(f"global_load_dword v21, v20, {sp(DBG)} sc1", "nonce")
        if k in CPK:
            code_touch(A, MSK)
        if WMODE:
            if k == WK:
                w_issue(A, vm)
            if k == WK + LA + 1:
                wt_read(A)
                A("s_waitcnt lgkmcnt(0)")
                wt_sym(A)
                wt_perm(A)
            if k == WSK:
                wt_store(A, vm)
        if k == KS - 1:
            assert not later
            if not ZLATE and not EARLY2:
                a2_setup(A)
        if k == KS:
            x, y = uid("sg"), uid("sg")
            if SNON:
                A.label(x)
                A(f"s_waitcnt lgkmcnt(0)\ns_cmp_lg_u32 s{NONCE}, 0\ns_cbranch_scc1 {y}")
                A(f"s_load_dword s{NONCE}, {sp(DBG)}, 0x0 glc\ns_branch {x}")
            else:
                A(f"v_readfirstlane_b32 s{NONCE}, v21\ns_cmp_lg_u32 s{NONCE}, 0\ns_cbranch_scc1 {y}")
                get_nonce(A, 20)
            A.label(y)
        if k == KS and not ZLATE:
            x = uid("sg")
            A(f"s_cmp_lg_u32 s{W_}, 0\ns_cbranch_scc1 {x}")
            A(f"s_and_b32 s{T4}, s2, 15\ns_lshl_b32 s{T5}, s{T4}, 7\ns_add_u32 s{T5}, s{T5}, {CNT_A}")
            A(f"s_add_u32 s{MSK}, s{WS}, s{T5}\ns_addc_u32 s{MSK+1}, s{WS+1}, 0\ns_mov_b32 s{PH_RES}, 1")
            A(f"s_atomic_add s{PH_RES}, {sp(MSK)}, 0x0 glc")
            A.label(x)
        if k == KS + 2 and not ZLATE:
            x = uid("sg")
            A(f"s_cmp_lg_u32 s{W_}, 0\ns_cbranch_scc1 {x}")
            A(f"s_waitcnt lgkmcnt(0)\ns_cmp_lg_u32 s{PH_RES}, 15\ns_cbranch_scc1 {x}")
            A(f"s_and_b32 s{T4}, s2, 15\ns_lshl_b32 s{T4}, s{T4}, 2\ns_add_u32 s{T4}, s{T4}, {FLG_A}\nv_lshl_add_u32 v22, v1, 7, s{T4}\nv_mov_b32 v23, s{NONCE}")
            A(f"global_store_dword v22, v23, {sp(WS)} sc1")
            A.label(x)
        if KA and KA0 <= k <= KA1:
            if k == KA0:
                A(f"s_and_b32 s27, s2, 1\ns_lshl_b32 s27, s27, 10\ns_bfe_u32 s26, s2, 0x20001\ns_lshl_b32 s26, s26, 19\ns_add_u32 s27, s27, s26")
                A(f"s_lshr_b32 s26, s2, 3\ns_lshl_b32 s26, s26, 14\ns_add_u32 s27, s27, s26\ns_lshr_b32 s26, s{W_}, 1\ns_lshl_b32 s26, s26, 13\ns_add_u32 s27, s27, s26")
            for n in range(KA):
                q = (k - KA0)*KA + n
                if q < 64:
                    A(f"s_load_dword s3, s[100:101], s27 offset:{(q >> 4)*2048 + (q & 15)*64}")
        if TLBT & 4 and k == TLBK:
            page_touch(LATEP, only=7)
        if k == CTK and CTW == 0 and not CTKS:
            c_touch(A, vm)
        if k in CTKS:
            n_ = 32 // len(CTKS)
            c_touch(A, vm, ((1 << n_) - 1) << (n_*CTKS.index(k)))
        if FPOLL and k == FPOLL and not ZLATE:
            assert k >= 13
            flag_poll(A, FLG_A)
        if k < KS - 1:
            for _ in range(-(-len(later) // (KS - 1 - k))):
                A(later.pop(0))
    assert issued == 16
    if ZLATE and not EARLY2:
        a2_setup(A)
    A(f"s_setprio {LPRIO}")
    aux_rest(A, vm)
    trace(A, 0, 14)
    if TRACE:
        A("s_waitcnt vmcnt(0)")
    trace(A, 0, 15)
    trace_dump(A, 0, WAVE, 1)
    stamp_end(A, kidx, WAVE)
    A("s_endpgm")


M16 = "v_mfma_f32_16x16x32_bf16"
XRW = 144
L_XC = 114688


def cpow(A, d, zr, zi, n, t):
    if isinstance(n, str):
        A(f"v_mul_f32 v{t}, {n}, v{zr}\nv_mul_f32 v{t+1}, {n}, v{zi}")
    else:
        A(f"v_mul_f32 v{t}, {fl(n)}, v{zr}\nv_mul_f32 v{t+1}, {fl(n)}, v{zi}")
    A(f"v_exp_f32 v{t}, v{t}\nv_rndne_f32 v{t+2}, v{t+1}\nv_sub_f32 v{t+1}, v{t+1}, v{t+2}")
    A(f"v_cos_f32 v{t+2}, v{t+1}\nv_sin_f32 v{t+1}, v{t+1}")
    A(f"v_mul_f32 v{d}, v{t}, v{t+2}\nv_mul_f32 v{d+1}, v{t}, v{t+1}")


def gemm_waves(A, name, kidx):
    U = lambda pg, c, idx: 64 + (pg*2 + c)*16 + 2*idx
    ACC = lambda mt, nt: 64 + ((nt & 1)*2 + (nt >> 1))*16 + 4*mt
    FR = lambda X, f: (32 if X == 0 else 144) + 4*f
    AD = lambda st, op, k2: 128 + st*4 + op*2 + k2
    LAM = lambda pg: 20 + 2*pg
    KC = lambda pg: 24 + 2*pg
    L8 = lambda pg: 176 + 2*pg
    L16 = lambda pg: 180 + 2*pg
    PP = lambda pg: 184 + 4*pg
    PW = lambda pg, idx: 208 + 16*pg + 2*idx
    Q16, Q64, Q128, Q256 = 28, 192, 30, 2
    WT_, WP = T8, T6
    A(f"s_lshr_b32 s{WT_}, s{WAVE}, 1\ns_and_b32 s{WP}, s{WAVE}, 1\ns_lshr_b32 s{PG}, s{TJ}, 3")
    A("v_and_b32 v6, 31, v1\nv_lshrrev_b32 v5, 5, v1\nv_lshlrev_b32 v11, 4, v1")
    A("v_mov_b64 v[64:65], 0\nv_mov_b64 v[66:67], 0")
    A(f"s_mul_i32 s{T0}, s{WAVE}, {16*XRW}\ns_add_u32 s{T0}, s{T0}, {L_XC}\nv_add_u32 v13, s{T0}, v11\nv_mov_b32 v12, {L_SYNC}")
    A("ds_write_b128 v13, v[64:67]\nds_write_b128 v13, v[64:67] offset:1024\nds_write_b128 v13, v[64:67] offset:2048")
    A("s_mov_b64 exec, 1\nds_write_b128 v12, v[64:67]\nds_write_b128 v12, v[64:67] offset:16\nds_write_b128 v12, v[64:67] offset:32\nds_write_b128 v12, v[64:67] offset:48\nds_write_b128 v12, v[64:67] offset:64\ns_mov_b64 exec, -1")
    A(f"s_lshl_b32 s{T0}, s{WAVE}, 2\nv_add_u32 v13, s{T0}, v12")
    if TBG:
        assert KS0 <= 2
        done = uid("tb")
        for w, mk in enumerate((lambda: make_F(A, 20, 128), lambda: make_T(A, 128, 20, 0), lambda: make_T(A, 128, 20, 1))):
            nx = uid("tb")
            A(f"s_cmp_lg_u32 s{WAVE}, {w}\ns_cbranch_scc1 {nx}")
            mk()
            A(f"v_add_u32 v20, {L_TBL + w*8192}, v11")
            for q in range(8):
                A(f"ds_write_b128 v20, {v(128+4*q,4)} offset:{q*1024}")
            A(f"s_branch {done}")
            A.label(nx)
        A.label(done)
    A("s_waitcnt lgkmcnt(0)\ns_barrier")
    A("v_bfe_u32 v4, v1, 2, 2\nv_lshlrev_b32 v4, 3, v4\nv_and_b32 v7, 3, v1\nv_add_u32 v4, v4, v7")
    A(f"s_lshl_b32 s{T0}, s{TJ}, 6\ns_lshl_b32 s{T1}, s{WP}, 5\ns_add_u32 s{T0}, s{T0}, s{T1}")
    A(f"v_add_u32 v4, s{T0}, v4\nv_lshlrev_b32 v7, 1, v4")
    RA, RB, ROT, M0B, SOF, RV = S2, S3, 38, 39, T2, 244
    vm1 = VmCounter(A)
    if WBYG:
        A("s_waitcnt lgkmcnt(0)")
        w_addr(A, WAVE)
        srd(A, S2, WR, size=NBW)
        srd(A, S3, WI, size=NBW)
        A(f"s_lshl_b32 s{T0}, s{WAVE}, 12")
        w_tile_issue(A, vm1, T0, L_W)
    dma_setup(A, WT_, WP, RV, 14, T1, T2)
    rot_setup(A, ROT, T0)
    A(f"s_lshl_b32 s{T0}, s{TI}, 18\ns_lshl_b32 s{T1}, s{TJ}, 17\ns_lshl_b32 s{M0B}, s{WAVE}, 12")
    A("s_waitcnt lgkmcnt(0)")
    PRM = 248
    for pg in range(2):
        A(f"global_load_ushort v{PRM+3*pg}, v7, {sp(LRE)} offset:{8*pg}\nglobal_load_ushort v{PRM+1+3*pg}, v7, {sp(LIM)} offset:{8*pg}\nglobal_load_ushort v{PRM+2+3*pg}, v7, {sp(LDT)} offset:{8*pg}")
    srd(A, RA, BX, T0, 0, 0x40000)
    A(f"s_cmp_eq_u32 s{WP}, 1\ns_cselect_b32 s{T2}, s{BIM}, s{BRE}\ns_cselect_b32 s{T3}, s{BIM+1}, s{BRE+1}")
    srd(A, RB, T2, T1, 0, 0x20000)
    piece = make_piece(A, vm1, RA, RB, ROT, M0B, SOF, RV)
    for n in range(8):
        piece(0, n)
    A("v_bfe_u32 v7, v1, 4, 1\nv_lshl_add_u32 v4, v7, 2, v4")
    A("v_bfe_u32 v7, v6, 1, 3\nv_xor_b32 v7, v7, v5\nv_lshlrev_b32 v7, 4, v7\nv_lshl_add_u32 v7, v6, 7, v7")
    A("v_and_b32 v8, 15, v1\nv_lshrrev_b32 v9, 4, v1")
    A("v_lshrrev_b32 v14, 1, v8\nv_xor_b32 v14, v14, v9\nv_lshlrev_b32 v14, 4, v14\nv_lshl_add_u32 v14, v8, 7, v14")
    A(f"s_lshl_b32 s{T0}, s{WT_}, 13\ns_lshl_b32 s{T1}, s{WP}, 13\ns_add_u32 s{T1}, s{T1}, 16384")
    for k2 in range(2):
        A(f"v_xor_b32 v15, {k2 << 6}, v14")
        A(f"v_add_u32 v{AD(0,0,k2)}, s{T0}, v15\nv_add_u32 v{AD(0,1,k2)}, s{T1}, v15")
        A(f"v_add_u32 v{AD(1,0,k2)}, 0x10000, v{AD(0,0,k2)}\nv_add_u32 v{AD(1,1,k2)}, 0x10000, v{AD(0,1,k2)}")
    Areal, A = A, Asm()
    srd(A, S0, WS, None, WS_EG, 0x40000)
    srd(A, S1, WS, None, WS_HT, 64*TBS)
    A(f"s_mul_i32 s{T0}, s{WP}, {32*XRW}\ns_add_u32 s{T0}, s{T0}, {L_XC + 64}\ns_lshl_b32 s{T1}, s{WT_}, 5\ns_add_u32 s{T1}, s{T1}, s{T0}")
    A(f"v_mul_u32_u24 v14, {XRW}, v6\nv_add_u32 v14, s{T0}, v14\nv_lshl_add_u32 v14, v5, 5, v14")
    A(f"v_mul_u32_u24 v15, {XRW}, v8\nv_add_u32 v15, s{T1}, v15\nv_lshl_add_u32 v15, v9, 3, v15")
    A(f"s_lshl_b32 s{T0}, s{TI}, 14\nv_lshl_add_u32 v16, v4, 4, s{T0}")
    A("v_mov_b32 v17, 0x40000000\nv_lshlrev_b32 v10, 14, v5\nv_sub_u32 v10, v16, v10")
    LA_, LX = 194, 200
    for u in range(8):
        A(f"v_subrev_u32 v{136+u}, {16384 + u*32768}, v10\nv_cmp_le_i32 vcc, 0, v{136+u}\nv_cndmask_b32 v{136+u}, v17, v{136+u}, vcc")
    A("v_lshlrev_b32 v17, 30, v5\nv_or_b32 v16, v16, v17")
    A(f"s_lshl_b32 s{T0}, s{TI}, 11\ns_add_u32 s{T0}, s{T0}, {FLG_X}\ns_lshl_b32 s{T1}, s{TJ}, 7\ns_add_u32 s{T1}, s{T1}, s{T0}\nv_mov_b32 v195, s{T1}")
    A(f"s_lshl_b32 s{T1}, s{PG}, 10\ns_add_u32 s{T0}, s{T0}, s{T1}\nv_and_b32 v196, 7, v1\nv_lshl_add_u32 v196, v196, 7, s{T0}")
    A(f"s_lshl_b32 s{T0}, s{TI}, 1\ns_add_u32 s{T0}, s{T0}, s{WT_}\ns_lshl_b32 s{T0}, s{T0}, 12\ns_add_u32 s{T0}, s{T0}, {FLG_H}")
    A(f"s_lshl_b32 s{T1}, s{PG}, 11\ns_add_u32 s{T1}, s{T1}, s{T0}\nv_lshl_add_u32 v18, v8, 7, s{T1}")
    A(f"s_lshl_b32 s{T1}, s{TJ}, 8\ns_add_u32 s{T0}, s{T0}, s{T1}\ns_lshl_b32 s{T1}, s{WP}, 7\ns_add_u32 s{T0}, s{T0}, s{T1}\nv_mov_b32 v19, s{T0}")
    A("v_lshrrev_b32 v10, 1, v9\nv_lshlrev_b32 v10, 10, v10\nv_and_b32 v17, 1, v9\nv_lshl_add_u32 v10, v17, 9, v10\nv_lshl_add_u32 v10, v8, 4, v10")
    A(f"s_lshl_b32 s{T0}, s{WT_}, 2\nv_add_u32 v9, s{T0}, v9\nv_cvt_f32_u32 v9, v9\nv_mul_f32 v9, 0x41800000, v9\nv_add_f32 v8, 0x41000000, v9")
    A("PARAMWAIT")
    ZR, ZI = 204, 206
    for pg in range(2):
        lr, li, dt, t = PRM+3*pg, PRM+1+3*pg, PRM+2+3*pg, 197
        A(f"v_lshlrev_b32 v{lr}, 16, v{lr}\nv_lshlrev_b32 v{li}, 16, v{li}\nv_lshlrev_b32 v{dt}, 16, v{dt}")
        A(f"v_mul_f32 v{dt}, 0x3fb8aa3b, v{dt}\nv_exp_f32 v{dt}, v{dt}")
        A(f"v_cvt_pk_bf16_f32 v{dt}, v{dt}, v{dt}\nv_lshlrev_b32 v{dt}, 16, v{dt}")
        A(f"v_mul_f32 v{ZR+pg}, v{dt}, v{lr}\nv_mul_f32 v{ZI+pg}, v{dt}, v{li}")
        A(f"v_mul_f32 v{ZR+pg}, 0x3fb8aa3b, v{ZR+pg}\nv_mul_f32 v{ZI+pg}, 0.15915494, v{ZI+pg}")
        cpow(A, LAM(pg), ZR+pg, ZI+pg, 1.0, t)
        A(f"v_add_f32 v{t}, -1.0, v{LAM(pg)}")
        A(f"v_mul_f32 v{t+1}, v{lr}, v{lr}\nv_fma_f32 v{t+1}, v{li}, v{li}, v{t+1}\nv_rcp_f32 v{t+1}, v{t+1}")
        A(f"v_add_f32 v{t+1}, v{t+1}, v{t+1}")
        A(f"v_mul_f32 v{t+2}, v{t}, v{lr}\nv_fma_f32 v{t+2}, v{LAM(pg)+1}, v{li}, v{t+2}\nv_mul_f32 v{KC(pg)}, v{t+2}, v{t+1}")
        A(f"v_mul_f32 v{t+2}, v{LAM(pg)+1}, v{lr}\nv_fma_f32 v{t+2}, -v{t}, v{li}, v{t+2}\nv_mul_f32 v{KC(pg)+1}, v{t+2}, v{t+1}")
        cpow(A, L8(pg), ZR+pg, ZI+pg, 8.0, t)
        cpow(A, L16(pg), ZR+pg, ZI+pg, 16.0, t)
        for e in range(2):
            cpow(A, 200, ZR+pg, ZI+pg, f"v{9-e}", t)
            A(f"v_mov_b32 v{PP(pg)+e}, v200\nv_mov_b32 v{PP(pg)+2+e}, v201")
        for idx in range(8):
            sr, si = (KC(pg), KC(pg)+1) if idx == 0 else (PW(pg, idx-1), PW(pg, idx-1)+1)
            A(f"v_mul_f32 v{t}, v{si}, v{LAM(pg)+1}\nv_mul_f32 v{t+1}, v{si}, v{LAM(pg)}")
            A(f"v_fma_f32 v{PW(pg,idx)}, v{sr}, v{LAM(pg)}, -v{t}\nv_fma_f32 v{PW(pg,idx)+1}, v{sr}, v{LAM(pg)+1}, v{t+1}")
    A(f"v_and_b32 v197, 16, v1\nv_cmp_ne_u32 vcc, 0, v197\nv_cndmask_b32 v{ZR}, v{ZR}, v{ZR+1}, vcc\nv_cndmask_b32 v{ZI}, v{ZI}, v{ZI+1}, vcc")
    for d, n in ((Q16, 16.0), (Q64, 64.0), (Q128, 128.0), (Q256, 256.0)):
        cpow(A, d, ZR, ZI, n, 197)
    A("v_lshrrev_b32 v197, 4, v1\nv_lshlrev_b32 v197, 2, v197\nv_and_b32 v198, 15, v1\nv_sub_u32 v197, v198, v197\nv_mov_b32 v198, 0x3f80\nv_mov_b32 v199, 1.0")
    for c in range(4):
        A(f"v_cmp_eq_u32 vcc, {c}, v197\nv_cndmask_b32 v{248+c}, 0, v198, vcc\nv_cndmask_b32 v{252+c}, 0, v199, vcc")

    deferred, A = A.lines, Areal
    if WBYG:
        A(f"s_waitcnt vmcnt({6 + 8})")
        A(f"s_mov_b64 exec, 1\nv_mov_b32 v197, 1\nds_write_b32 v13, v197 offset:{RING_LG}\ns_mov_b64 exec, -1")
    pw = deferred.index("PARAMWAIT")
    for l in deferred[:pw]:
        A(l)
    deferred = deferred[pw+1:]
    assert KS0 <= NPRE
    if DEFER:
        for k in range(1, KS0):
            for n in range(8):
                piece(k, n)
    else:
        npre = 8
        if P1 == 0 and KS0 > 1:
            for n in range(8):
                piece(1, n)
            npre = 16
        A(f"s_waitcnt vmcnt({npre})")
        rest = [(k, n) for k in range(npre//8, KS0) for n in range(8)]
        lo, hi = int(len(deferred)*P2A/100), int(len(deferred)*P2B/100)
        at = [lo + (hi - lo)*q//max(1, len(rest)) for q in range(len(rest))]
        for i, l in enumerate(deferred):
            while at and at[0] <= i and l.startswith("v_") and not l.startswith("v_cnd"):
                at.pop(0)
                piece(*rest.pop(0))
            A(l)
        for r_ in rest:
            piece(*r_)
        deferred = []
    order = [0, 4, 5, 6, 7, 1, 2, 3]
    need = {0: 2, 1: 3, 2: 4, 3: 5, 4: 6, 8: 7, 12: 8}

    def rd(k, k2, f):
        slot = k % NS
        st, off = slot >> 1, (slot & 1)*32768
        A(f"ds_read_b128 {v(FR(k2, f), 4)}, v{AD(st, f >> 2, k2)} offset:{off + (f & 3)*2048}")
    trace_init(A, 0)
    trace(A, 0, 0)
    A(f"s_setprio {GPRIO}")
    def ring_arrive(k, t=197):
        A(f"s_mov_b64 exec, 1\nv_mov_b32 v{t}, {k}\nds_write_b32 v13, v{t} offset:{RING_D}\ns_mov_b64 exec, -1")
    trace(A, 0, 35)
    vm1.wait_for(("st", 0))
    trace(A, 0, 36)
    A("s_barrier")
    trace(A, 0, 37)
    trace(A, 0, 1)
    for f in order:
        rd(0, 0, f)
    for k in range(16):
        for k2 in range(2):
            nk, nk2 = (k, 1) if k2 == 0 else (k+1, 0)
            have = nk < 16
            if k2 == 1:
                w = f"vmcnt({vm1.wait_for(('st', k+1), emit=False)}) " if k + 1 < KS0 else ""
                A(f"s_waitcnt {w}lgkmcnt(0)")
                if have:
                    A("s_barrier")
            if k == 13 and k2 == 0:
                assert not deferred, len(deferred)
                A(f"v_mov_b32 v8, 0\nglobal_load_dword v9, v8, {sp(DBG)} sc1")
            n = 0
            for m in range(16):
                if k2 == 0 and m in need:
                    A(f"s_waitcnt lgkmcnt({8 - need[m] + n})")
                mt, nt = m >> 2, m & 3
                if "m" not in G1X or k + k2 == 0:
                    A(f"{M16} {v(ACC(mt,nt),4)}, {v(FR(k2,mt),4)}, {v(FR(k2,4+nt),4)}, {'0' if k + k2 == 0 else v(ACC(mt,nt),4)}")
                if have and n < 8:
                    if "r" not in G1X:
                        rd(nk, nk2, order[n])
                    n += 1
                elif k >= DK0:
                    for _ in range(DEFER):
                        if deferred:
                            A(deferred.pop(0))
            if k == 15 and k2 == 0:
                nl, ng = uid("n"), uid("ng")
                A.label(nl)
                A(f"s_waitcnt vmcnt(0)\nv_readfirstlane_b32 s{NONCE}, v9\ns_cmp_lg_u32 s{NONCE}, 0\ns_cbranch_scc1 {ng}")
                A(f"global_load_dword v9, v8, {sp(DBG)} sc1\ns_branch {nl}")
                A.label(ng)
                A(f"s_getreg_b32 s{T0}, hwreg(HW_REG_XCC_ID, 0, 4)\ns_lshl_b32 s{T1}, s{NONCE}, 4\ns_or_b32 s{LOCAL}, s{T0}, s{T1}")
                A(f"v_mov_b32 v194, s{LOCAL}\nv_mov_b32 v202, s{NONCE}\nv_mov_b32 v203, s{NONCE}")
            if TRACE == 2 and k2 == 1:
                trace(A, 0, 40 + k)
    mark(A, 1)
    trace(A, 0, 2)
    bc_a = "op_sel_hi:[0,1,1]"
    bc_b = "op_sel:[1,0,0]"
    TT = 40
    for idx in range(1, 8):
        for half in range(2):
            for pg in range(2):
                L, t = v(LAM(pg), 2), TT + 4*pg
                pr, pi, ur, ui = (v(x, 2) for x in (U(pg, 0, idx-1), U(pg, 1, idx-1), U(pg, 0, idx), U(pg, 1, idx)))
                if half == 0:
                    A(f"v_pk_fma_f32 {v(t,2)}, {L}, {pr}, {ur} {bc_a}\nv_pk_fma_f32 {v(t+2,2)}, {L}, {pi}, {ui} {bc_a}")
                else:
                    A(f"v_pk_fma_f32 {ur}, {L}, {pi}, {v(t,2)} {bc_b} {N0}\nv_pk_fma_f32 {ui}, {L}, {pr}, {v(t+2,2)} {bc_b}")
    for pg in range(2):
        er, ei = U(pg, 0, 7), U(pg, 1, 7)
        horner(A, 32+2*pg, 33+2*pg, L8(pg), er, ei, er+1, ei+1, TT)
        A(f"ds_write_b64 v15, {v(32+2*pg,2)} offset:{16*XRW*pg}")
    trace(A, 0, 3)
    A("s_waitcnt lgkmcnt(0)")
    ring_arrive(17)
    l_, d_ = uid("ek"), uid("ekd")
    A.label(l_)
    A(f"ds_read_b128 v[198:201], v12 offset:{RING_D}\ns_waitcnt lgkmcnt(0)")
    A("v_min3_u32 v197, v198, v199, v200\nv_min_u32 v197, v197, v201")
    A(f"v_readfirstlane_b32 s{T0}, v197\ns_cmp_lt_u32 s{T0}, 17\ns_cbranch_scc1 {l_}")
    trace(A, 0, 4)
    SG = 48
    A(f"ds_read_b128 {v(SG,4)}, v14\nds_read_b128 {v(SG+4,4)}, v14 offset:16")
    P = 200
    A("s_waitcnt lgkmcnt(1)")
    horner(A, 32, 33, Q16, SG, SG+1, SG+2, SG+3, TT)
    A("s_waitcnt lgkmcnt(0)")
    horner(A, 34, 35, Q16, 32, 33, SG+4, SG+5, TT)
    horner(A, 32, 33, Q16, 34, 35, SG+6, SG+7, TT)
    A("v_mov_b32 v34, v32\nv_mov_b32 v35, v33\nv_permlane32_swap_b32 v32, v34\nv_permlane32_swap_b32 v33, v35")
    horner(A, P, P+1, Q64, 32, 33, 34, 35, TT)
    np_ = uid("np")
    A(f"s_cmp_lg_u32 s{WT_}, 0")
    A(f"s_cbranch_scc1 {np_}")
    A(f"buffer_store_dwordx4 {v(P,4)}, v16, {r4(S0)}, 0 offen sc1")
    A(f"s_cmp_lg_u32 s{WP}, 0")
    A(f"s_cbranch_scc1 {np_}")
    A(f"s_mov_b64 exec, 1\nglobal_store_dword v195, v194, {sp(WS)} sc1\ns_mov_b64 exec, -1")
    A.label(np_)
    mark(A, 2)
    trace(A, 0, 5)
    A(f"global_load_dword v243, v18, {sp(WS)} sc1")
    LB = 144

    def lbloads():
        for u in range(8):
            A(f"buffer_load_dwordx4 {v(LB+4*u,4)}, v{136+u}, {r4(S0)}, 0 offen sc1")
        A(f"global_load_dword v197, v196, {sp(WS)} sc1")
    QS = 32
    A("v_add_u32 v15, -56, v15")
    for pg in range(2):
        for w in range(7):
            A(f"ds_read_b64 {v(QS+14*pg+2*w,2)}, v15 offset:{16*XRW*pg + 8*w}")
    QQ = lambda pg: 128 + 4*pg
    TQ = 60
    A("s_waitcnt lgkmcnt(0)")
    for pg in range(2):
        b = QS + 14*pg
        for w in range(1, 6):
            horner(A, b+2*w, b+2*w+1, L16(pg), b+2*w-2, b+2*w-1, b+2*w, b+2*w+1, TQ)
        horner(A, QQ(pg), QQ(pg)+2, L16(pg), b+10, b+11, b+12, b+13, TQ)
        horner(A, QQ(pg)+1, QQ(pg)+3, L8(pg), QQ(pg), QQ(pg)+2, U(pg, 0, 7), U(pg, 1, 7), TQ)
    trace(A, 0, 6)
    O = 32
    cnt = 0
    if LBAT == 0:
        lbloads()
    for idx in range(8):
        for pg in range(2):
            d0, d1, K_, o = v(U(pg, 0, idx), 2), v(U(pg, 1, idx), 2), v(KC(pg), 2), O + 4*pg
            A(f"v_pk_mul_f32 {v(o,2)}, {K_}, {d0} op_sel_hi:[0,1]")
            A(f"v_pk_mul_f32 {v(o+2,2)}, {K_}, {d1} op_sel_hi:[0,1] neg_lo:[1,0] neg_hi:[1,0]")
            A(f"v_pk_fma_f32 {v(o+2,2)}, {K_}, {d0}, {v(o+2,2)} {bc_b} {N0}")
            A(f"v_pk_fma_f32 {d0}, {K_}, {d1}, {v(o,2)} {bc_b} {N0}")
            A(f"v_mov_b64 {d1}, {v(o+2,2)}")
            cnt += 1
            if cnt == LBAT:
                lbloads()
    trace(A, 0, 7)
    A("v_mov_b32 v14, 1\ns_mov_b64 exec, 1\nds_write_b32 v13, v14\ns_mov_b64 exec, -1")
    M0B, RH, RCc, SH, SC = T7, T5, T4, T3, T2
    ACC2 = lambda nt: 32 + 16*nt
    CF = lambda X, nt: 96 + 16*X + 4*nt
    XR, CV = 128, 244
    HR = lambda s_: 148 + 4*(s_ % HD)
    L_OWN = 65536
    A(f"s_xor_b32 s{T0}, s{WT_}, s{PG}\ns_xor_b32 s{T0}, s{T0}, 1\ns_lshl_b32 s{T0}, s{T0}, 6\ns_add_u32 s{T0}, s{T0}, s{WP}")
    A(f"v_lshrrev_b32 v8, 3, v1\nv_lshl_add_u32 v8, v8, 1, s{T0}\nv_lshlrev_b32 v8, 11, v8")
    A("v_and_b32 v14, 7, v1\nv_lshrrev_b32 v15, 4, v1\nv_xor_b32 v14, v14, v15\nv_lshlrev_b32 v14, 4, v14\nv_xor_b32 v15, 64, v14")
    for u in range(4):
        A(f"v_add_u32 v{CV+u}, v8, v{14 + (u & 1)}")
        if u:
            A(f"v_add_u32 v{CV+u}, {u*(16*2048 - 1024)}, v{CV+u}")
    A(f"s_and_b32 s{RCc}, s{TJ}, 7\ns_lshl_b32 s{T0}, s{RCc}, 18\ns_lshl_b32 s{T1}, s{PG}, 10\ns_add_u32 s{T0}, s{T0}, s{T1}")
    srd(A, S2, CRE, T0, 0, 0x40000, T1)
    srd(A, S3, CIM, T0, 0, 0x40000, T1)
    A(f"s_lshl_b32 s{T1}, s{RCc}, 1\ns_add_u32 s{T1}, s{T1}, s{PG}\ns_lshl_b32 s{T1}, s{T1}, 7")
    A(f"s_lshl_b32 s{SH}, s{TI}, 1\ns_add_u32 s{SH}, s{SH}, s{WT_}\ns_lshl_b32 s{T0}, s{SH}, 17\ns_add_u32 s{T0}, s{T0}, s{T1}")
    srd(A, S4, BX, T0, 0, 0x20000, T1)
    A(f"s_add_u32 s{DSK}, s{DSK}, s{T1}\ns_addc_u32 s{DSK+1}, s{DSK+1}, 0")
    A(f"s_lshl_b32 s{T1}, s{T1}, 1\ns_add_u32 s{T1}, s{T1}, 4096\ns_lshl_b32 s{T0}, s{SH}, 19\ns_add_u32 s{T0}, s{T0}, s{T1}")
    A(f"s_add_u32 s{OUT}, s{OUT}, s{T0}\ns_addc_u32 s{OUT+1}, s{OUT+1}, 0\ns_sub_u32 s{LDT}, 0x80000, s{T1}")
    A(f"s_lshl_b32 s{M0B}, s{WAVE}, 12\ns_lshl_b32 s{RH}, s{RCc}, 13\ns_lshl_b32 s{RCc}, s{RCc}, 7")
    A(f"s_lshl_b32 s{T0}, s{WT_}, 14\ns_lshl_b32 s{T1}, s{WP}, 11\ns_add_u32 s{T0}, s{T0}, s{T1}\ns_add_u32 s{T0}, s{T0}, {L_OWN}\nv_add_u32 v16, s{T0}, v10")
    A(f"s_lshl_b32 s{T0}, s{WAVE}, 13\ns_add_u32 s{T0}, s{T0}, {L_OWN}\nv_add_u32 v17, s{T0}, v11")
    for ks in range(4):
        A(f"v_xor_b32 v{20+ks}, {ks << 5}, v7\nv_add_u32 v{24+ks}, 0x10000, v{20+ks}")
    HB = LIM
    A(f"s_mul_i32 s{HB}, s{SH}, {2*TBS}\ns_lshl_b32 s{T1}, s{TJ}, 13\ns_add_u32 s{HB}, s{HB}, s{T1}\ns_lshl_b32 s{T1}, s{WP}, 11\ns_add_u32 s{HB}, s{HB}, s{T1}")
    for u in range(8):
        A(f"v_cmp_gt_u32 vcc, 0x40000, v{136+u}\nv_cndmask_b32 v{40+u}, 0, v202, vcc")
    A(f"s_mov_b32 s{T9}, 0")
    trace(A, 0, 8)
    pl, pd = uid("poll"), uid("polled")
    A.label(pl)
    A("v_mov_b32 v8, 0")
    for u in range(8):
        A(f"s_waitcnt vmcnt({8-u})")
        A(f"v_bitop3_b32 v8, v8, v{LB+4*u+2}, v{40+u} bitop3:0xf6\nv_bitop3_b32 v8, v8, v{LB+4*u+3}, v{40+u} bitop3:0xf6")
    A("s_waitcnt vmcnt(0)\nv_xor_b32 v197, v194, v197\nv_lshrrev_b32 v9, 4, v197\nv_or_b32 v8, v8, v9\nv_cmp_ne_u32 vcc, 0, v8")
    A(f"s_cbranch_vccz {pd}")
    A(f"s_add_u32 s{T9}, s{T9}, 1\ns_cmp_ge_u32 s{T9}, {SPIN_MAX}")
    A(f"s_cbranch_scc1 {pd}")
    lbloads()
    A(f"s_branch {pl}")
    A.label(pd)
    A(f"v_cmp_ne_u32 vcc, 0, v197\ns_cmp_eq_u64 vcc, 0\ns_cselect_b32 s{LOCAL}, {0 if FORCE_REMOTE else 1}, 0")
    mark(A, 3)
    trace(A, 0, 9)
    if TRACE:
        A(f"v_writelane_b32 v0, s{T9}, 63")
    vm = VmCounter(A)

    def cdma(g, us):
        for u in us:
            if u == 0:
                A(f"s_add_u32 m0, s{M0B}, {(g % R)*16384}")
                if g % 2 == 0:
                    A(f"s_add_u32 s{SC}, s{RCc}, {(g >> 1)*128}\ns_and_b32 s{SC}, s{SC}, 0x3ff")
            vm.op(f"buffer_load_dwordx4 v{CV+u}, {r4(S2 if g % 2 == 0 else S3)}, s{SC} offen offset:{u*1024}{NTC} lds", ("c", g))
    cdma(0, range(4))
    cdma(1, range(4))
    A("v_mov_b32 v14, 2\ns_mov_b64 exec, 1\nds_write_b32 v13, v14\ns_mov_b64 exec, -1")
    H0 = LB + 28
    cur = (H0, H0+1)
    for u in range(6, -1, -1):
        d = (48, 49) if cur[0] == H0 else (H0, H0+1)
        horner(A, d[0], d[1], Q256, cur[0], cur[1], LB+4*u, LB+4*u+1, TT)
        cur = d
    assert cur == (48, 49)
    A("v_mov_b32 v50, v48\nv_mov_b32 v51, v49\nv_permlane32_swap_b32 v48, v50\nv_permlane32_swap_b32 v49, v51")
    horner(A, 52, 53, Q128, 50, 51, 48, 49, TT)
    A("v_mov_b32 v54, v52\nv_mov_b32 v55, v53\nv_permlane16_swap_b32 v52, v54\nv_permlane16_swap_b32 v53, v55")
    trace(A, 0, 10)
    G = lambda pg: QQ(pg)
    for pg in range(2):
        Hh, gr, gi, pr, pi = v(52+2*pg, 2), v(G(pg), 2), v(G(pg)+2, 2), v(PP(pg), 2), v(PP(pg)+2, 2)
        A(f"v_pk_fma_f32 {gr}, {Hh}, {pr}, {gr} {bc_a}\nv_pk_fma_f32 {gi}, {Hh}, {pi}, {gi} {bc_a}")
        A(f"v_pk_fma_f32 {gr}, {Hh}, {pi}, {gr} {bc_b} {N0}\nv_pk_fma_f32 {gi}, {Hh}, {pr}, {gi} {bc_b}")
    PK = lambda pg, c, idx: 144 + (pg*2 + c)*8 + idx
    D = lambda c, X, pg: 32 + ((c*2 + X)*2 + pg)*4

    def fix(pg, idx):
        d0, d1, pw, gr, gi = v(U(pg, 0, idx), 2), v(U(pg, 1, idx), 2), v(PW(pg, idx), 2), v(G(pg), 2), v(G(pg)+2, 2)
        A(f"v_pk_fma_f32 {d0}, {pw}, {gr}, {d0} {bc_a}")
        A(f"v_pk_fma_f32 {d1}, {pw}, {gi}, {d1} {bc_a} {N0}")
        A(f"v_pk_fma_f32 {d0}, {pw}, {gi}, {d0} {bc_b} {N0}")
        A(f"v_pk_fma_f32 {d1}, {pw}, {gr}, {d1} {bc_b} {N0}")
        for c in range(2):
            A(f"v_cvt_pk_bf16_f32 v{PK(pg,c,idx)}, v{U(pg,c,idx)}, v{U(pg,c,idx)+1}")

    def tr(u):
        for c in range(2):
            for X in range(2):
                for pg in range(2):
                    A(f"{M16} {v(D(c,X,pg),4)}, {v(PK(pg,c,4*u),4)}, {v(248+4*X,4)}, 0")

    def st(u):
        for c in range(2):
            for X in range(2):
                q = 176 + 16*u + (c*2 + X)*4
                A(f"s_add_u32 s{T1}, s{HB}, {X*TBS + c*4096}")
                for jj in range(4):
                    A(f"v_cvt_pk_bf16_f32 v{q+jj}, v{D(c,X,0)+2*jj}, v{D(c,X,0)+2*jj+1}")
                vm.op(f"buffer_store_dwordx4 {v(q,4)}, v10, {r4(S1)}, s{T1} offen offset:{u*256} sc1", "hst")
                A(f"ds_write_b128 v16, {v(q,4)} offset:{X*8192 + c*4096 + u*256}")
    for u in range(2):
        for idx in range(4*u, 4*u + 4):
            for pg in range(2):
                fix(pg, idx)
            if u == 1 and idx == 5:
                st(0)
                trace(A, 0, 12)
        tr(u)
        if u == 0:
            trace(A, 0, 11)
    st(1)
    mark(A, 4)
    trace(A, 0, 13)
    NK = 64

    def arrive(val):
        A(f"v_mov_b32 v14, {val}")
        A("s_mov_b64 exec, 1\nds_write_b32 v13, v14\ns_mov_b64 exec, -1")

    def check(val, off=0, first=False):
        l, d = uid("ck"), uid("ckd")
        if first:
            A(f"ds_read_b128 v[8:11], v12 offset:{off}\ns_waitcnt lgkmcnt(0)")
        A.label(l)
        A("v_min3_u32 v15, v8, v9, v10\nv_min_u32 v15, v15, v11")
        A(f"v_readfirstlane_b32 s{T0}, v15")
        A(f"s_cmp_ge_u32 s{T0}, {val}")
        A(f"s_cbranch_scc1 {d}")
        A(f"ds_read_b128 v[8:11], v12 offset:{off}\ns_waitcnt lgkmcnt(0)")
        A(f"s_branch {l}")
        A.label(d)

    HM, JS = 38, 39

    def hpoll(n):
        l, d = uid("hp"), uid("hpd")
        A(f"s_mov_b32 s{CNT}, 0")
        A.label(l)
        A(f"global_load_dword v3, v18, {sp(WS)} sc1\ns_waitcnt vmcnt(0)")
        A(f"v_cmp_eq_u32 vcc, s{NONCE}, v3\ns_nop 1\ns_and_b32 s{HM}, vcc_lo, 0xffff")
        A(f"s_lshl_b32 s3, s{HM}, 16\ns_or_b32 s{HM}, s{HM}, s3\ns_lshr_b32 s{HM}, s{HM}, s{JS}")
        A(f"s_lshr_b32 s3, s{HM}, 1\ns_and_b32 s{HM}, s{HM}, s3")
        A(f"s_bitcmp1_b32 s{HM}, {2*n}\ns_cbranch_scc1 {d}")
        if SLP_H:
            A(f"s_sleep {SLP_H}")
        A(f"s_add_u32 s{CNT}, s{CNT}, 1\ns_cmp_lt_u32 s{CNT}, {SPIN_MAX}\ns_cbranch_scc1 {l}")
        A.label(d)

    def hload(s_):
        if PBG and s_ % 8 == 0 and s_ >= 16:
            ok = uid("hok")
            A(f"s_bitcmp1_b32 s{HM}, {2*(s_ >> 3)}\ns_cbranch_scc1 {ok}")
            hpoll(s_ >> 3)
            A.label(ok)
        if s_ % 4 == 0:
            A(f"s_add_u32 s{SH}, s{RH}, {(s_ >> 2)*4096}\ns_and_b32 s{SH}, s{SH}, 0xffff")
        vm.op(f"buffer_load_dwordx4 {v(HR(s_),4)}, v2, {r4(S0)}, s{SH} offen offset:{(s_ & 3)*1024} sc1", ("h", s_))

    def rd2(s_, nts):
        g, ks = s_ >> 2, s_ & 3
        slot = g % R
        base = 20 if slot < 4 else 24
        for nt in nts:
            A(f"ds_read_b128 {v(CF(s_ & 1, nt),4)}, v{base+ks} offset:{(slot & 3)*16384 + nt*4096}")

    def mf(s_, nt):
        c = "0" if s_ == 0 else v(ACC2(nt), 16)
        if E_("HACK16", 0) & 2:
            for z in range(2):
                d = ACC2(nt) + 8*(s_ & 1) + 4*z
                A(f"v_mfma_f32_16x16x32_bf16 {v(d,4)}, {v(HR(s_),4)}, {v(CF(s_ & 1, nt),4)}, {'0' if s_ < 2 else v(d,4)}")
        else:
            A(f"{MF} {v(ACC2(nt),16)}, {v(HR(s_),4)}, {v(CF(s_ & 1, nt),4)}, {c}")
    A("v_mov_b32 v2, v11")
    A(f"s_lshl_b32 s{T0}, s{TI}, 2\ns_add_u32 s{T0}, s{T0}, s{WAVE}\ns_mul_i32 s{T0}, s{T0}, {TBS}\ns_lshl_b32 s{T1}, s{PG}, 16\ns_add_u32 s{T0}, s{T0}, s{T1}")
    srd(A, S0, WS, T0, WS_HT, 0x10000)
    if not OWNFIRST and C23:
        cdma(2, range(4))
        cdma(3, range(4))
    A(f"s_waitcnt vmcnt({vm.wait_for(('c', 1), emit=False)}) lgkmcnt(0)")
    trace(A, 0, 14)
    arrive(3)
    check(3, first=True)
    trace(A, 0, 15)
    for s_ in range(8):
        A(f"ds_read_b128 {v(HR(s_),4)}, v17 offset:{s_*1024}")
    hn = [8]

    def pause():
        A(f"s_lshl_b32 s{T0}, s{WP}, 3\nv_lshl_add_u32 v17, v5, 4, s{T0}")
        A("v_lshlrev_b32 v28, 11, v17\nv_lshl_add_u32 v28, v6, 2, v28")
        A("v_lshlrev_b32 v29, 13, v17\nv_lshl_add_u32 v29, v6, 3, v29")
        A(f"v_lshlrev_b32 v30, 2, v6\nv_mov_b32 v15, s{NONCE}")
        a, b = uid("rs"), uid("rd")
        trace(A, 0, 16)
        vm.wait_for("hst")
        trace(A, 0, 17)
        A(f"s_mov_b64 exec, 1\ns_cmp_eq_u32 s{LOCAL}, 0\ns_cbranch_scc1 {a}")
        A(f"global_store_dword v19, v15, {sp(WS)}\ns_branch {b}")
        A.label(a)
        A(f"global_store_dword v19, v15, {sp(WS)} sc1")
        A.label(b)
        A("s_mov_b64 exec, -1")
        if not E_("GM", 0):
            mark(A, 5)
        check(4, first=True)
        if not NOAUX:
            check(LIMG_FREE, 16, first=True)
        if CTOUCH == 5:
            xtouch(1)
        if CTOUCH == 8:
            ctouch()
        for gg in range(4 if C23 else 2, CPOLL):
            cdma(gg, range(4))
        trace(A, 0, 18)
        if PBG:
            A(f"s_and_b32 s{JS}, s{TJ}, 7\ns_lshl_b32 s{JS}, s{JS}, 1")
            hpoll(1)
        else:
            wait_cnt(A, 18, 8, SLP_H)
        trace(A, 0, 19)
        vm.issued = []
        if not E_("GM", 0):
            mark(A, 6)
        if OWNFIRST:
            arrive(5)
        gg = max(4, CPOLL)
        while hn[0] < 8 + HPRE:
            hload(hn[0])
            hn[0] += 1
            if hn[0] % 4 == 0 and gg < CPRE:
                cdma(gg, range(4))
                gg += 1
        assert gg == CPRE
        if OWNFIRST:
            check(5, first=True)
        trace(A, 0, 20)
        rd2(8 if OWNFIRST else 0, range(4))

    def flag_store():
        a, b = uid("rs"), uid("rd")
        A(f"s_mov_b64 exec, 1\ns_cmp_eq_u32 s{LOCAL}, 0\ns_cbranch_scc1 {a}")
        A(f"global_store_dword v19, v15, {sp(WS)}\ns_branch {b}")
        A.label(a)
        vm.op(f"global_store_dword v19, v15, {sp(WS)} sc1", "flag")
        A.label(b)
        A("s_mov_b64 exec, -1")
    if HTAG:
        A("s_waitcnt lgkmcnt(0)")
        arrive(4)
        A(f"s_lshl_b32 s{T0}, s{WP}, 3\nv_lshl_add_u32 v17, v5, 4, s{T0}")
        A("v_lshlrev_b32 v28, 11, v17\nv_lshl_add_u32 v28, v6, 2, v28")
        A("v_lshlrev_b32 v29, 13, v17\nv_lshl_add_u32 v29, v6, 3, v29")
        A(f"v_lshlrev_b32 v30, 2, v6\nv_mov_b32 v15, s{NONCE}")
        if HTAG == 1:
            wl, wd = uid("hw"), uid("hwd")
            A(f"s_add_u32 s{T1}, s{RH}, 8192\ns_and_b32 s{T1}, s{T1}, 0xffff\ns_mov_b32 s{CNT}, 0\ns_waitcnt lgkmcnt(0)")
            A.label(wl)
            A(f"s_load_dwordx4 s[4:7], {sp(S0)}, s{T1} offset:{4096 + 1024 + 1008} glc\ns_load_dwordx4 s[8:11], {sp(S0)}, s{T1} offset:{4096 + 3072 + 1008} glc")
            A(f"s_add_u32 s{CNT}, s{CNT}, 1\ns_waitcnt lgkmcnt(0)")
            for q in range(2):
                A(f"s_xor_b64 s[{4+2*q}:{5+2*q}], s[{4+2*q}:{5+2*q}], s[{HT_+2*q}:{HT_+2*q+1}]\ns_xor_b64 s[{8+2*q}:{9+2*q}], s[{8+2*q}:{9+2*q}], s[{HT_+2*q}:{HT_+2*q+1}]")
            A("s_or_b64 s[4:5], s[4:5], s[6:7]\ns_or_b64 s[8:9], s[8:9], s[10:11]\ns_or_b64 s[4:5], s[4:5], s[8:9]\ns_or_b32 s4, s4, s5\ns_and_b32 s4, s4, 0x10001")
            A(f"s_cbranch_scc0 {wd}\ns_cmp_lt_u32 s{CNT}, {SPIN_MAX}\ns_cbranch_scc1 {wl}")
            A.label(wd)
        if HTAG == 3:
            vm.wait_for('hst')
            flag_store()
        if HTAG == 2 and HDLY:
            A(f"s_waitcnt vmcnt({vm.wait_for('hst', emit=False) + HDLY})")
        mark(A, 6)
        for s_ in range(8, 16):
            hload(s_)
        hn[0] = 16
        if HTAG != 3:
            vm.wait_for("hst")
            flag_store()
        if not E_("GM", 0):
            mark(A, 5)
        check(4, first=True)
        if not NOAUX:
            check(LIMG_FREE, 16, first=True)
        for gg in range(4, CPOLL):
            cdma(gg, range(4))
        rd2(0, range(4))
    elif OWNFIRST:
        rd2(0, range(4))
        A("s_waitcnt lgkmcnt(4)")
        arrive(4)
    else:
        A("s_waitcnt lgkmcnt(0)")
        arrive(4)
        pause()
    def xload(e, st):
        q, r = e >> 2, e & 3
        A(f"s_mov_b32 s{st}, {(32*(q & 1) + 4*(q >> 1) + (r & 2))*2048}")
        vm.op(f"buffer_load_dword v{XR+e}, v28, {r4(S4)}, s{st} offen offset:{(r & 1)*2048}", ("x", e))
    have_c = lambda g: any(t == ("c", g) for t in vm.issued)
    for s_ in range(NK):
        g, ks = s_ >> 2, s_ & 3
        nxt = s_ + 1
        more = nxt < NK and not (nxt == 8 and OWNFIRST)
        ws = []
        if s_ >= 8:
            ws.append(vm.wait_for(("h", s_), emit=False))
        arr = (s_ + 4) % 8 == 0 and s_ + 4 < NK and (s_ >= 8 or not OWNFIRST)
        if arr:
            gl = ((s_ + 4) >> 2) + 1
            if have_c(gl):
                ws.append(vm.wait_for(("c", gl), emit=False))
        wv = f"vmcnt({min(ws)}) " if ws else ""
        newgrp = more and nxt % 8 == 0
        full = newgrp or not more or s_ == 0
        nc = 2 if s_ >= NK - NDEF else 4
        nn = (2 if nxt >= NK - NDEF else 4) if more else 0
        if full:
            A(f"s_waitcnt {wv}lgkmcnt(0)")
            if newgrp:
                check((nxt >> 3) + 4)
                trace(A, 0, 20 + (nxt >> 3))
                if nxt == 32 and not E_('GM', 0):
                    mark(A, 7)
        else:
            A(f"s_waitcnt {wv}lgkmcnt({nc-1})")
        extra = 0
        if arr:
            arrive(((s_ + 4) >> 3) + 4)
            extra = 1
        issued_n = 0
        for nt in range(nc):
            if nt and not full:
                A(f"s_waitcnt lgkmcnt({nc - 1 - nt + extra + issued_n})")
            mf(s_, nt)
            if nt < 2 and issued_n < nn and (nt == 0 or nn == 4):
                rd2(nxt, [issued_n, issued_n + 1])
                issued_n += 2
            if nt == nc - 2:
                if s_ < 8 and OWNFIRST:
                    if C23:
                        cdma(2 + g, [ks])
                elif CPRE <= g + CD < NK//4:
                    cdma(g + CD, [ks])
        assert issued_n == nn
        if HTAG:
            if s_ < 4*(CPRE - CPOLL):
                cdma(CPOLL + g, [ks])
            if s_ == 6:
                tl, td = uid("ht"), uid("htd")
                A(f"s_mov_b32 s{CNT}, 0")
                vm.wait_for(("h", 15))
                A.label(tl)
                A("v_mov_b32 v4, 0")
                for r in range(32):
                    A(f"v_bitop3_b32 v4, v4, v{HR(8)+r}, s{HT_+(r & 3)} bitop3:0xf6")
                A(f"v_and_b32 v4, 0x10001, v4\nv_cmp_ne_u32 vcc, 0, v4\ns_cbranch_vccz {td}")
                A(f"s_add_u32 s{CNT}, s{CNT}, 1\ns_cmp_ge_u32 s{CNT}, {SPIN_MAX}\ns_cbranch_scc1 {td}")
                keep = list(vm.issued)
                for s2_ in range(8, 16):
                    hload(s2_)
                vm.issued = keep
                A(f"s_waitcnt vmcnt(0)\ns_branch {tl}")
                A.label(td)
                if STAMP == 1:
                    A(f"s_add_u32 s72, s70, s{CNT}")
            if s_ == HFI:
                vm.op(f"global_load_dword v16, v18, {sp(WS)} sc1", "fp")
            if s_ == HFC:
                fd = uid("hf")
                vm.wait_for("fp")
                A(f"v_cmp_ne_u32 vcc, s{NONCE}, v16\ns_cbranch_vccz {fd}")
                wait_cnt(A, 18, 16, 1)
                A.label(fd)
        if (s_ >= (HFC if HTAG else 8) or not (OWNFIRST or HTAG)) and hn[0] < NK:
            for _ in range(3 if HTAG else 2):
                if hn[0] < NK and hn[0] <= s_ + HD:
                    hload(hn[0])
                    hn[0] += 1
        if (s_ + 2) % 8 == 0 and s_ + 2 < NK and (s_ >= 8 or not OWNFIRST):
            A("ds_read_b128 v[8:11], v12")
        if XLD == 0:
            if s_ == NK - 18:
                vm.op(f"global_load_dword v31, v30, {sp(DSK)}", "dsk")
            if NK - 17 <= s_ < NK - 1:
                xload(s_ - (NK - 17), T0)
        if XLD == 2 and s_ == XLS:
            vm.op(f"global_load_dword v31, v30, {sp(DSK)}", "dsk")
            for e in range(16):
                xload(e, T0)
        if s_ == 7 and OWNFIRST:
            pause()
    mark(A, 8)
    trace(A, 0, 28)
    if XLD == 1:
        vm.op(f"global_load_dword v31, v30, {sp(DSK)}", "dsk")
        for e in range(16):
            xload(e, T0)
    TG = T0
    A(f"s_mul_i32 s{TG}, s{NONCE}, 0x9e3779b1\ns_and_b32 s{TG}, s{TG}, 0xbfff0000\ns_or_b32 s{TG}, s{TG}, 0x20000000")
    A(f"s_sub_u32 s{T1}, s{NONCE}, 1\ns_xor_b32 s{T1}, s{T1}, s{TG}\ns_cmp_lt_u32 s{T1}, 0x10000\ns_cselect_b32 s{T1}, 0x10000, 0\ns_xor_b32 s{TG}, s{TG}, s{T1}")
    if INOUT:
        A(f"s_lshl_b32 s{T4}, s{PG}, 9\ns_sub_i32 s{T4}, 256, s{T4}\ns_ashr_i32 s{T5}, s{T4}, 31")
        A(f"s_add_u32 s{S2}, s{OUT}, s{T4}\ns_addc_u32 s{S2+1}, s{OUT+1}, s{T5}\ns_sub_u32 s{S2+2}, s{LDT}, s{T4}\ns_mov_b32 s{S2+3}, 0x20000")
        A(f"s_mov_b32 s{S3}, s{OUT}\ns_mov_b32 s{S3+1}, s{OUT+1}\ns_mov_b32 s{S3+2}, s{LDT}\ns_mov_b32 s{S3+3}, 0x20000")
        A(f"s_lshl_b32 s{T4}, s{WP}, 16\nv_lshrrev_b32 v3, 4, v1\nv_lshlrev_b32 v3, 13, v3\nv_and_b32 v4, 15, v1\nv_lshl_add_u32 v3, v4, 4, v3\nv_add_u32 v3, s{T4}, v3")
        xad = lambda gq: (f"s_mov_b32 s{T4}, {(16*(gq >> 1) + 4*(gq & 1))*8192}\n", f"v3, SRD, s{T4} offen")
    else:
        A(f"s_lshl_b32 s{T4}, s{TI}, 4\ns_add_u32 s{T4}, s{T4}, s{TJ}\ns_lshl_b32 s{T4}, s{T4}, 2\ns_add_u32 s{T4}, s{T4}, s{WAVE}\ns_lshl_b32 s{T4}, s{T4}, 13")
        srd(A, S2, WS, T4, WS_XB, 0x2000)
        A(f"s_xor_b32 s{T4}, s{T4}, {8 << 15}")
        srd(A, S3, WS, T4, WS_XB, 0x2000)
        A(f"s_movk_i32 s{T4}, 0x1000")
        xad = lambda gq: ("", f"v2, SRD, {'0' if gq < 4 else f's{T4}'} offen offset:{(gq & 3)*1024}")
    val = lambda n: ACC2(n & 1) + (n >> 1)
    TXR, RX = [96, 100, 244, 248, 252], 180
    for gq in range(5):
        for c in range(4):
            n = 7*gq + 2*c
            lo = f"v{val(min(n, 31))}"
            hi = f"s{TG}" if c == 3 else f"v{val(min(n+1, 31))}"
            A(f"v_cvt_pk_bf16_f32 v{TXR[gq]+c}, {lo}, {hi}")
        A(f"{xad(gq)[0]}buffer_store_dwordx4 {v(TXR[gq],4)}, {xad(gq)[1].replace('SRD', r4(S2))} sc1")

    if XLD == 3:
        vm.op(f"global_load_dword v31, v30, {sp(DSK)}", "dsk")
        for e in range(16):
            xload(e, T5)
    if A3S == 12:
        arrive(12)

    def rx():
        for gq in range(5):
            A(f"{xad(gq)[0]}buffer_load_dwordx4 {v(RX+4*gq,4)}, {xad(gq)[1].replace('SRD', r4(S3))} sc1")
    if NDEF:
        rd2(NK - NDEF, [2, 3])
        for s_ in range(NK - NDEF, NK):
            if s_ + 1 < NK:
                rd2(s_ + 1, [2, 3])
                A("s_waitcnt lgkmcnt(2)")
            else:
                A("s_waitcnt lgkmcnt(0)")
            mf(s_, 2)
            mf(s_, 3)
    if A3S == 13:
        arrive(13)
    trace(A, 0, 29)
    if E_("XM", 0):
        mark(A, 3)
    A(f"s_waitcnt vmcnt({0 if XLD == 3 else 5})")
    if E_("XM", 0):
        mark(A, 5)
    trace(A, 0, 30)
    A("v_lshlrev_b32 v8, 16, v31\nv_and_b32 v9, 0xffff0000, v31")
    YO = lambda e: 148 + 2*e
    for e in range(16):
        t = YO(e)
        A(f"v_lshlrev_b32 v{t}, 16, v{XR+e}\nv_and_b32 v{t+1}, 0xffff0000, v{XR+e}")
        A(f"v_pk_mul_f32 {v(t,2)}, {v(t,2)}, v[8:9]")
        A(f"v_cvt_pk_bf16_f32 v10, v{t}, v{t+1}")
        A(f"v_lshlrev_b32 v{t}, 16, v10\nv_and_b32 v{t+1}, 0xffff0000, v10")
        A(f"v_add_f32 v{t}, v{t}, v{ACC2(2)+e}\nv_add_f32 v{t+1}, v{t+1}, v{ACC2(3)+e}")
    A(f"s_mov_b32 s{S1}, s{OUT}\ns_mov_b32 s{S1+1}, s{OUT+1}\ns_mov_b32 s{S1+2}, s{LDT}\ns_mov_b32 s{S1+3}, 0x20000")
    xl, xd = uid("xl"), uid("xd")
    A(f"s_mov_b32 s{CNT}, 0")
    if XPOLL:
        assert not INOUT
        wl, wd = uid("xw"), uid("xwd")
        A.label(wl)
        A(f"s_load_dword s{T1}, {sp(S3)}, {0x1000 + 63*16 + 12} glc\ns_add_u32 s{CNT}, s{CNT}, 1\ns_waitcnt lgkmcnt(0)")
        A(f"s_xor_b32 s{T1}, s{T1}, s{TG}\ns_cmp_lt_u32 s{T1}, 0x10000\ns_cbranch_scc1 {wd}")
        A(f"s_cmp_lt_u32 s{CNT}, {SPIN_MAX}\ns_cbranch_scc1 {wl}")
        A.label(wd)
        A(f"s_mov_b32 s{CNT}, 0")
    trace(A, 0, 31)
    if XPOLL != 2:
        A(f"s_waitcnt vmcnt({E_('XW', 0)})")
    if E_("XM", 0):
        mark(A, 6)
    rx()
    A.label(xl)
    A("v_mov_b32 v10, 0")
    for gq in range(5):
        A(f"s_waitcnt vmcnt({4-gq})")
        A(f"v_bitop3_b32 v10, v10, v{RX+4*gq+3}, s{TG} bitop3:0xf6")
    A("v_cmp_lt_u32 vcc, 0xffff, v10")
    A(f"s_cbranch_vccz {xd}")
    A(f"s_add_u32 s{CNT}, s{CNT}, 1\ns_cmp_ge_u32 s{CNT}, {SPIN_MAX}")
    A(f"s_cbranch_scc1 {xd}")
    rx()
    A(f"s_branch {xl}")
    A.label(xd)
    trace(A, 0, 32)
    if STAMP:
        A(f"s_add_u32 s74, s70, s{CNT}\ns_lshl_b32 s{CNT}, s{LOCAL}, 8\ns_add_u32 s74, s74, s{CNT}")
        mark(A, 4)
    for e in range(16):
        q, r = e >> 2, e & 3
        t = YO(e)
        for nt in range(2):
            n = 2*e + nt
            src = RX + 4*(n // 7) + (n % 7)//2
            if (n % 7) % 2 == 0:
                A(f"v_lshlrev_b32 v{10+nt}, 16, v{src}")
            else:
                A(f"v_and_b32 v{10+nt}, 0xffff0000, v{src}")
        A(f"v_pk_add_f32 {v(t,2)}, {v(t,2)}, v[10:11]")
        A(f"s_mov_b32 s{T4}, {(32*(q & 1) + 4*(q >> 1) + r)*8192}")
        A(f"buffer_store_dwordx2 {v(t,2)}, v29, {r4(S1)}, s{T4} offen{OSTB}")
    trace(A, 0, 33)
    if TRACE:
        A("s_waitcnt vmcnt(0)")
    trace(A, 0, 34)
    trace_dump(A, 0, WAVE, 1)
    stamp_end(A, kidx, WAVE)


def gen_fused(A, name, kidx):
    KNAME_[0] = name
    A(f".globl {name}\n.p2align 8\n.type {name},@function")
    A.label(name)
    A("s_cmp_ge_u32 s2, 256")
    A(f"s_cbranch_scc1 L_{name}_end")
    A("s_load_dwordx16 s[4:19], s[0:1], 0")
    A("s_load_dwordx8 s[20:27], s[0:1], 64")
    A("s_load_dwordx4 s[28:31], s[0:1], 96")
    A("s_load_dwordx2 s[32:33], s[0:1], 112")
    stamp_begin(A)
    A("v_lshrrev_b32 v2, 6, v0\nv_and_b32 v1, 63, v0")
    A(f"v_readfirstlane_b32 s{WAVE}, v2")
    A(f"s_and_b32 s{T0}, s2, 7\ns_lshr_b32 s{T1}, s2, 3")
    if TIMAP:
        A(f"s_lshr_b32 s{TI}, s{T0}, 1\ns_lshr_b32 s{T2}, s{T1}, 3\ns_lshl_b32 s{T2}, s{T2}, 2\ns_add_u32 s{TI}, s{TI}, s{T2}")
    else:
        A(f"s_lshr_b32 s{TI}, s{T0}, 1\ns_lshl_b32 s{TI}, s{TI}, 2\ns_lshr_b32 s{T2}, s{T1}, 3\ns_add_u32 s{TI}, s{TI}, s{T2}")
    A(f"s_and_b32 s{TJ}, s{T0}, 1\ns_lshl_b32 s{TJ}, s{TJ}, 3\ns_and_b32 s{T2}, s{T1}, 7\ns_add_u32 s{TJ}, s{TJ}, s{T2}")
    if SWAP:
        A(f"s_xor_b32 s{WAVE}, s{WAVE}, 4")
    A(f"s_cmp_ge_u32 s{WAVE}, 4")
    A(f"s_cbranch_scc0 L_{name}_gemm")
    aux_waves(A, name, kidx)
    A.label(f"L_{name}_gemm")
    gemm_waves(A, name, kidx)
    A.label(f"L_{name}_end")
    A("s_endpgm")
    return kdesc(name, 256)
```

```python
import os
from asmlib import *
from common import *

E_ = lambda k, d: int(os.environ.get(k, str(d)))
XO, NP, RI, RJ = E_("XO", 0), E_("NP", 1), E_("RI", 1), E_("RJ", 1)
XO2, NP2 = E_("XO2", 2), E_("NP2", 1)
PRO = E_("PRO", 2)
HD = E_("HD", 24)
CD = E_("CD", 4)
NOAUX = E_("NOAUX", 0)
CODEPF = E_("CODEPF", 1)
NS = E_('NS', 3)
LASW = E_('LASW', 99)
R = 7
LA = E_('LA', 2)
FORCE_REMOTE = E_('FORCE_REMOTE', 0)
MF = "v_mfma_f32_32x32x16_bf16"
N0 = "neg_lo:[1,0,0] neg_hi:[1,0,0]"

AX, WR, WI, BX, LRE, LIM, BRE, BIM, CRE, CIM, LDT, DSK, OUT, DBG, WS = 4, 6, 8, 10, 12, 14, 16, 18, 20, 22, 24, 26, 28, 30, 32
WAVE, TI, TJ, NONCE, TBL = 34, 35, 36, 37, 38
S0, S1, S2, S3, S4 = 40, 44, 48, 52, 56
T0, T1, T2, T3, T4, T5, T6, T7, T8, T9 = range(60, 70)
MSK, CNT, LOCAL, PG = 90, 92, 100, 101
L_XCH = 122880
L_SYNC = 126976
L_AX = 131072
L_W = 147456
WS_CNT = 0x1000
CNT_A, CNT_B, CNT_W = WS_CNT, WS_CNT + 16*128, WS_CNT + 32*128
FLG_A, FLG_B, FLG_W = 0x84000, 0x86000, 0x88000
FLG_X = 0x8000
FLG_H = 0x60000
CPRO1 = E_("CPRO1", 2)
CPRO2 = E_("CPRO2", 2)
CTOUCH = E_("CTOUCH", 4)
TBS = 131072 + E_("TBPAD", 0)
FTOUCH = E_("FTOUCH", 1)
XTOUCH = E_("XTOUCH", 0)
NREP = E_("NREP", 32)
NDEF = E_("NDEF", 12)
HTAG = 0
HDLY = E_("HDLY", 0)
HFI, HFC = E_("HFI", 7), E_("HFC", 10)
XPOLL = E_("XPOLL", 2)
OWNFIRST = E_("OWNFIRST", 1) and not HTAG
C01, C23 = E_("C01", 1), E_("C23", 1)
INOUT = E_("INOUT", 0)
KS_ = 32768 if INOUT else 8192
ISH = 16384 if INOUT else 4096
CTK, CPOLL, CPRE, HPRE = E_("CTK", 14), E_("CPOLL", 6), E_("CPRE", 7), E_("HPRE", 8)
HLOC, HLK = E_("HLOC", 0), E_("HLK", 13)
LBAT = E_("LBAT", 16)
XBF = E_("XBF", 1)
SLP_H, SLP_A = E_("SLP_H", 4), E_("SLP_A", 10)
NT = " nt" if E_("NT", 1) else ""
NTX = " nt"
OST = {0: "", 1: " nt", 2: " sc1", 3: " sc1 nt", 4: " sc0 sc1 nt", 5: " sc0 nt"}[E_("OST", 1)]
NTK = E_("NTK", 0)
OSTB = {0: "", 1: " nt", 2: " sc1", 3: " sc1 nt", 4: " sc0 sc1 nt", 5: " sc0 nt"}[E_("OSTB", 1)]
NTC = " nt" if E_("NTC", 0) else ""


def sp(a):
    return f"s[{a}:{a+1}]"


def srd(A, d, base, soff=None, const=0, size=None, size_s=None):
    if soff is None and const == 0:
        A(f"s_mov_b32 s{d}, s{base}\ns_mov_b32 s{d+1}, s{base+1}")
    else:
        if soff is not None and const:
            A(f"s_add_u32 s{d+2}, s{soff}, {const}")
            o = f"s{d+2}"
        elif soff is not None:
            o = f"s{soff}"
        else:
            o = str(const)
        A(f"s_add_u32 s{d}, s{base}, {o}\ns_addc_u32 s{d+1}, s{base+1}, 0")
    if size_s is not None:
        A(f"s_sub_u32 s{d+2}, {size}, s{size_s}")
    else:
        A(f"s_mov_b32 s{d+2}, {size}")
    A(f"s_mov_b32 s{d+3}, 0x20000")


def r4(d):
    return f"s[{d}:{d+3}]"


_u = [0]


def uid(p):
    _u[0] += 1
    return f"L_{p}{_u[0]}"


def get_nonce(A, vt):
    l, d = uid("n"), uid("nd")
    A(f"v_mov_b32 v{vt}, 0")
    A.label(l)
    A(f"global_load_dword v{vt+1}, v{vt}, {sp(DBG)} sc1")
    A("s_waitcnt vmcnt(0)")
    A(f"v_readfirstlane_b32 s{NONCE}, v{vt+1}")
    A(f"s_cmp_eq_u32 s{NONCE}, 0")
    A(f"s_cbranch_scc1 {l}")


def signal(A, sshard, cnt, flg, expect, vt):
    d = uid("sg")
    A(f"s_lshl_b32 s{CNT}, s{sshard}, 7\ns_add_u32 s{CNT}, s{CNT}, {cnt}")
    A(f"v_mov_b32 v{vt}, s{CNT}\nv_mov_b32 v{vt+1}, 1")
    A("s_waitcnt vmcnt(0)")
    A("s_mov_b64 exec, 1")
    A(f"global_atomic_add v{vt+2}, v{vt}, v{vt+1}, {sp(WS)} sc0 sc1")
    A(f"v_add_u32 v{vt}, {flg - cnt}, v{vt}\nv_mov_b32 v{vt+1}, s{NONCE}")
    A("s_waitcnt vmcnt(0)")
    A(f"v_readfirstlane_b32 s{CNT}, v{vt+2}")
    A(f"s_add_u32 s{CNT}, s{CNT}, 1\ns_cmp_lg_u32 s{CNT}, {expect}")
    A(f"s_cbranch_scc1 {d}")
    A(f"global_store_dword v{vt}, v{vt+1}, {sp(WS)} sc1")
    A.label(d)
    A("s_mov_b64 exec, -1")


def set_flag(A, soff, vt):
    A(f"v_mov_b32 v{vt}, s{soff}\nv_mov_b32 v{vt+1}, s{NONCE}")
    A("s_waitcnt vmcnt(0)")
    A("s_mov_b64 exec, 1")
    A(f"global_store_dword v{vt}, v{vt+1}, {sp(WS)} sc1")
    A("s_mov_b64 exec, -1")


def wait_cnt(A, vaddr, vt, sleep):
    l, d = uid("w"), uid("wd")
    A(f"s_mov_b32 s{CNT}, 0")
    A.label(l)
    A(f"global_load_dword v{vt}, v{vaddr}, {sp(WS)} sc1")
    A("s_waitcnt vmcnt(0)")
    A(f"v_cmp_ne_u32 vcc, s{NONCE}, v{vt}")
    A(f"s_cbranch_vccz {d}")
    if sleep:
        A(f"s_sleep {sleep}")
    A(f"s_add_u32 s{CNT}, s{CNT}, 1\ns_cmp_lt_u32 s{CNT}, {SPIN_MAX}")
    A(f"s_cbranch_scc1 {l}")
    A.label(d)


F, T = 192, 224


import struct as _st


def fl(x):
    return hex(_st.unpack("<I", _st.pack("<f", x))[0])


def lane_float(A, vn, vh, t):
    A(f"v_and_b32 v{t}, 31, v1\nv_cvt_f32_u32 v{t}, v{t}\nv_lshrrev_b32 v{t+1}, 5, v1\nv_lshlrev_b32 v{t+1}, 2, v{t+1}\nv_cvt_f32_u32 v{t+1}, v{t+1}")


def make_F(A, t, F=None):
    F = F or globals()["F"]
    lane_float(A, None, None, t)
    A(f"v_mul_f32 v{t+1}, v{t}, v{t+1}\nv_mul_f32 v{t+1}, {fl(1/32)}, v{t+1}")
    for i in range(16):
        c = 8*(i >> 2) + (i & 3)
        a = t + 2 + 3*(i & 1)
        A(f"v_fmamk_f32 v{a}, v{t}, {fl(c/32)}, v{t+1}\nv_fract_f32 v{a}, v{a}")
        A(f"v_cos_f32 v{a+1}, v{a}\nv_sin_f32 v{a+2}, v{a}")
        A(f"v_cvt_pk_bf16_f32 v{F+i}, v{a+1}, v{a+2}\nv_cvt_pk_bf16_f32 v{F+16+i}, -v{a+2}, v{a+1}")


def make_T(A, dst, t, half):
    lane_float(A, None, None, t)
    if not half:
        A(f"v_mul_f32 v{t+1}, v{t}, v{t+1}\nv_mul_f32 v{t+1}, {fl(1/1024)}, v{t+1}")
    else:
        A(f"v_mul_f32 v{t}, {fl(1/2048)}, v{t}\nv_fmamk_f32 v{t+1}, v{t+1}, {fl(1/64)}, v{t}")
    for i in range(16):
        c = 8*(i >> 2) + (i & 3)
        a = t + 2 + (i & 1)
        if not half:
            A(f"v_fmamk_f32 v{a}, v{t}, {fl(c/1024)}, v{t+1}")
        else:
            A(f"v_add_f32 v{a}, {fl(c/64)}, v{t+1}")
        A(f"v_cos_f32 v{dst+i}, v{a}\nv_sin_f32 v{dst+16+i}, -v{a}")


def stage1(A, src, D, stride=4):
    if "m" in os.environ.get("SK", ""):
        return
    for c in range(2):
        for s_ in range(4):
            cc = "0" if s_ == 0 else v(D+16*c, 16)
            A(f"{MF} {v(D+16*c,16)}, {v(src+stride*s_,4)}, {v(F+16*c+4*s_,4)}, {cc}")


def twiddle(A, D, dst, tmp, rng=range(16)):
    for i in (rng if "t" not in os.environ.get("SK", "") else []):
        re, im, tr, ti = D+i, D+16+i, T+i, T+16+i
        t = tmp + 2*(i & 3)
        A(f"v_mul_f32 v{t}, v{re}, v{tr}\nv_mul_f32 v{t+1}, v{re}, v{ti}")
        A(f"v_fma_f32 v{t}, -v{im}, v{ti}, v{t}\nv_fmac_f32 v{t+1}, v{im}, v{tr}")
        A(f"v_cvt_pk_bf16_f32 v{dst+i}, v{t}, v{t+1}")


def stage2(A, src, D):
    if "m" in os.environ.get("SK", ""):
        return
    for c in range(2):
        for s_ in range(4):
            cc = "0" if s_ == 0 else v(D+16*c, 16)
            A(f"{MF} {v(D+16*c,16)}, {v(F+16*c+4*s_,4)}, {v(src+4*s_,4)}, {cc}")


W_ = T6
NBW = 2048*513*2
SQ, SO, ST = 184, 185, 186
VA1, VA2, VA8, VLIN = 4, 5, 6, 7
_ph = [0]


def l_arrive(A):
    _ph[0] += 1
    A(f"v_mov_b32 v{ST+4}, {_ph[0]}")
    A(f"s_mov_b64 exec, 1\nds_write_b32 v{SO}, v{ST+4}\ns_mov_b64 exec, -1")
    return _ph[0]


def l_check(A, n, delta=0, slp=1):
    l, d = uid("lc"), uid("lcd")
    if delta:
        A(f"v_add_u32 v{ST+5}, {delta}, v{SQ}")
    A.label(l)
    A(f"ds_read_b128 {v(ST,4)}, v{ST+5 if delta else SQ}\ns_waitcnt lgkmcnt(0)")
    A(f"v_min3_u32 v{ST}, v{ST}, v{ST+1}, v{ST+2}\nv_min_u32 v{ST}, v{ST}, v{ST+3}")
    A(f"v_readfirstlane_b32 s{CNT}, v{ST}")
    A(f"s_cmp_ge_u32 s{CNT}, {n}")
    A(f"s_cbranch_scc1 {d}")
    A(f"s_sleep {slp}\ns_branch {l}")
    A.label(d)


def l_check_loose(A, n, delta):
    l = uid("ll")
    A(f"v_add_u32 v{ST+5}, {delta}, v{SQ}")
    for i in range(4):
        A(f"v_mov_b32 v{ST+i}, 0")
    A.label(l)
    A(f"ds_read_b128 {v(ST,4)}, v{ST+5}\ns_sleep 1")
    A(f"v_min3_u32 v{ST+4}, v{ST}, v{ST+1}, v{ST+2}\nv_min_u32 v{ST+4}, v{ST+4}, v{ST+3}")
    A(f"v_readfirstlane_b32 s{CNT}, v{ST+4}")
    A(f"s_cmp_lt_u32 s{CNT}, {n}")
    A(f"s_cbranch_scc1 {l}")


def l_sync(A):
    l_check(A, l_arrive(A))


def aux_setup_ax(A):
    srd(A, S2, WR, size=NBW)
    srd(A, S3, WI, size=NBW)
    A(f"s_and_b32 s{T0}, s2, 31\ns_lshr_b32 s{T1}, s2, 5\ns_lshl_b32 s{T1}, s{T1}, 7\ns_add_u32 s{T0}, s{T0}, s{T1}")
    A(f"s_lshl_b32 s{T1}, s{W_}, 5\ns_add_u32 s{T7}, s{T0}, s{T1}\ns_lshl_b32 s{T0}, s{T7}, 12")
    srd(A, AX, AX, T0, 0, 0x1000)
    A("v_lshlrev_b32 v2, 4, v1\nv_xor_b32 v3, 128, v2")
    A(f"s_lshl_b32 s{T8}, s{W_}, 12\ns_add_u32 s{T8}, s{T8}, {L_AX}")


def w_addr(A, W_):
    A(f"s_and_b32 s{T0}, s2, 7\ns_bfe_u32 s{T1}, s2, 0x10003\ns_bfe_u32 s{T2}, s2, 0x20004\ns_lshr_b32 s{T3}, s2, 6")
    A(f"s_lshr_b32 s{T4}, s{T0}, 1\ns_lshl_b32 s{T4}, s{T4}, 3\ns_lshl_b32 s{T5}, s{T1}, 2\ns_add_u32 s{T4}, s{T4}, s{T5}")
    A(f"s_and_b32 s{T5}, s{T0}, 1\ns_lshl_b32 s{T5}, s{T5}, 1\ns_add_u32 s{T4}, s{T4}, s{T5}\ns_lshl_b32 s{T4}, s{T4}, 5")
    A(f"s_lshl_b32 s{T5}, s{T2}, 3\ns_add_u32 s{T4}, s{T4}, s{T5}\ns_lshl_b32 s{T5}, s{W_}, 1\ns_add_u32 s{T4}, s{T4}, s{T5}\ns_mul_i32 s{T4}, s{T4}, 1026")
    A(f"s_lshl_b32 s{T5}, s{T3}, 8\ns_add_u32 s{T9}, s{T4}, s{T5}")
    A("v_bfe_u32 v8, v1, 4, 1\nv_mul_u32_u24 v8, 32832, v8")
    A(f"v_lshrrev_b32 v9, 5, v1\ns_mov_b32 s{T5}, 1050624\nv_mul_lo_u32 v9, s{T5}, v9\nv_add_u32 v8, v8, v9")
    A(f"v_and_b32 v9, 15, v1\ns_lshl_b32 s{T5}, s{W_}, 1\nv_xor_b32 v9, s{T5}, v9")
    A("v_lshl_add_u32 v18, v9, 4, v8\nv_xor_b32 v9, 1, v9\nv_lshl_add_u32 v19, v9, 4, v8\nv_add_u32 v19, 1026, v19")


def w_sym_addr(A):
    A(f"s_bfe_u32 s{T4}, s2, 0x20005\ns_lshl_b32 s{T4}, s{T4}, 8\ns_bfe_u32 s{T5}, s2, 0x10004\ns_lshl_b32 s{T5}, s{T5}, 6\ns_add_u32 s{T4}, s{T4}, s{T5}")
    A(f"s_bfe_u32 s{T5}, s2, 0x10003\ns_lshl_b32 s{T5}, s{T5}, 7\ns_add_u32 s{T4}, s{T4}, s{T5}\ns_and_b32 s{T5}, s2, 7\ns_lshl_b32 s{T5}, s{T5}, 2\ns_add_u32 s{T4}, s{T4}, s{T5}")
    A(f"v_bfe_u32 v8, v1, 3, 2\nv_add_u32 v8, s{T4}, v8\nv_bfe_u32 v9, v1, 2, 1\nv_lshl_add_u32 v8, v9, 5, v8\nv_bfe_u32 v9, v1, 1, 1\nv_lshl_add_u32 v8, v9, 10, v8")
    A("v_sub_u32 v9, 2048, v8\nv_and_b32 v9, 2047, v9\nv_and_b32 v10, 1, v1\nv_cmp_eq_u32 vcc, 1, v10\nv_cndmask_b32 v8, v8, v9, vcc")
    A(f"v_mul_u32_u24 v17, 1026, v8\ns_lshr_b32 s{T4}, s2, 7\ns_lshl_b32 s{T4}, s{T4}, 10\nv_add_u32 v17, s{T4}, v17")


def aux_setup_w(A):
    w_addr(A, W_)
    w_sym_addr(A)


def aux_setup2(A):
    make_F(A, 92)
    make_T(A, T, 92, 0)
    make_T(A, TT, 92, 1)


def aux_issue(A, vm):
    for c in range(2):
        A(f"s_add_u32 m0, s{T8}, {c*2048}")
        A(f"s_mov_b32 s{CNT}, {c*2048}")
        for u in range(2):
            vm.op(f"buffer_load_dwordx4 v{2+c}, {r4(AX)}, s{CNT} offen offset:{u*1024}{NT} lds", "ax")


def w_tile_issue(A, vm, sbase, const, bbs=range(2)):
    for bb in bbs:
        for arr in range(2):
            A(f"s_add_u32 m0, s{sbase}, {const + bb*2048 + arr*1024}")
            vm.op(f"buffer_load_dwordx4 v{18+bb}, {r4(S2 if arr == 0 else S3)}, s{T9} offen{NT} lds" if "1" not in SK else f"buffer_load_dword v23, v2, {r4(AX)}, 0 offen offset:4092", "w")


def w_sym_issue(A):
    nw = uid("nw")
    A(f"s_cmp_lg_u32 s{W_}, {3 if not ('1' in SK or 'p' in SK) else 9}\ns_cbranch_scc1 {nw}")
    A("s_mov_b32 exec_hi, 0")
    A(f"buffer_load_ushort v{WSP}, v17, {r4(S2)}, 0 offen{NT}")
    A(f"buffer_load_ushort v{WSP+1}, v17, {r4(S3)}, 0 offen{NT}")
    A("s_mov_b64 exec, -1")
    A.label(nw)


def w_issue(A, vm):
    w_tile_issue(A, vm, T8, L_W - L_AX)
    w_sym_issue(A)


WSP, IN, D, MID, TMP = 88, 24, 40, 72, 168
DY, W, TT = 72, 104, 136
M_, SPC, CJ, SGN = T0, T1, T2, T3
AUXK = E_("AUXK", 5)
GATE = E_("GATE", 0)
WK = E_("WK", 1)
WMID = WK <= 12
WSK = E_("WSK", 8)
A1K = E_("A1K", 0)
FINE = E_("FINE", 1)
ZSK = E_("ZSK", A1K + 3 + FINE)
LATE = A1K >= 6
A2G = E_("A2G", 0)
XLD, XLS = E_("XLD", 2), E_("XLS", 48)
A3G = E_("A3G", 11)
A3S = E_("A3S", 0)
ZG = E_("ZG", 0)
CTW = E_("CTW", 0)
POLLK = E_("POLLK", 15)
VTLB, VTN, VTF = E_("VTLB", 0), E_("VTN", 1), (" nt" if E_("VTF", 1) else "")
TLBW = E_("TLBW", 0)
DEFER = E_("DEFER", 2)
DK0 = E_("DK0", 0)
LPOS = E_("LPOS", 6)
BARP = E_("BARP", 1)
SWAP = E_("SWAP", 1)
WPOS = E_("WPOS", 0)
ZPOS = E_("ZPOS", -1)
WTK = E_("WTK", 3)
EARLY2 = E_("EARLY2", 1)
SNON = E_("SNON", 0)
FPOLL = E_("FPOLL", 14)
WPK = E_("WPK", -1)
WBYG = E_("WBYG", 0)
WSPLIT = E_("WSPLIT", 0)
NZS = E_("NZS", 1)
TLBT, TLBO, TLBK = E_("TLBT", 0), E_("TLBO", 0), E_("TLBK", 7)
TBG = E_("TBG", 0)
L_TBL = 65536
TIMAP = E_("TIMAP", 1)
PBG = E_("PBG", 0)
CTKS = [int(x) for x in os.environ.get("CTKS", "").split(",") if x]
NLDS = E_("NLDS", 1)
L_NONCE = 80
PRES = E_("PRES", 1)
NPRE = E_("NPRE", 3)
KS0 = E_("KS0", 2)
P1, P2A, P2B = E_("P1", 0), E_("P2A", 50), E_("P2B", 95)
LDEF = E_("LDEF", 0)
LSLP = E_("LSLP", 1)
WSH = E_("WSH", 1)
PRE1, PRE2 = E_("PRE1", 6), E_("PRE2", 12)
HALF = E_("HALF", 0)
WEARLY = E_("WEARLY", 0)
KA, KA0, KA1, KAG = E_("KA", 0), E_("KA0", 5), E_("KA1", 12), E_("KAG", 0)
G1X = os.environ.get("G1X", "")
WMODE = E_("WMODE", 0)
CPK = [int(x) for x in os.environ.get("CPK", "").split(",") if x]
WXT = E_("WXT", 0)
RSLP = E_("RSLP", 1)
PAL = E_("PAL", 0)
NREPA = E_("NREPA", 8)
AXT = E_("AXT", 0)
APRIO, GPRIO = E_("APRIO", 0), E_("GPRIO", 1)
FM, CM = E_("FM", 12), E_("CM", 4)
DMAP = os.environ.get("DMAP", "5,9,13,17,21,25,29,33")
CSP, CSP0, CSB, CSPH = E_("CSP", 0), E_("CSP0", 2), E_("CSB", 12), E_("CSPH", 1)
SK = os.environ.get("SK", "")
A2C = E_("A2C", 0)
LPRIO3 = E_("LPRIO3", 0)
LPRIO0 = E_("LPRIO0", 3)
LPRIO, LPRIO2 = E_('LPRIO', 0), E_('LPRIO2', 0)
L_IMG = 98304
LIMG_FREE = 2


def img(i):
    ka = 8*(i >> 2) + (i & 3)
    return (VA1, ka*1024) if i < 8 else (VA8, 0) if i == 8 else (VA2, (27 - ka)*1024)


def aux_pre_a(A):
    A(f"v_mov_b32 v{SQ}, {L_SYNC + 16}\ns_lshl_b32 s{T4}, s{W_}, 2\nv_add_u32 v{SO}, s{T4}, v{SQ}")
    A("v_and_b32 v8, 31, v1\nv_lshrrev_b32 v9, 5, v1\nv_and_b32 v10, 1, v1")
    A(f"v_lshrrev_b32 v11, 1, v8\nv_lshlrev_b32 v{VA1}, 6, v11\nv_lshl_add_u32 v{VA1}, v10, 4, v{VA1}\nv_lshl_add_u32 v{VA1}, v9, 12, v{VA1}")
    A(f"v_add_u32 v11, v11, v10\nv_lshlrev_b32 v11, 6, v11\nv_lshl_add_u32 v11, v10, 4, v11\nv_lshl_add_u32 v11, v9, 12, v11\nv_sub_u32 v{VA2}, {5120 + 48}, v11")
    for r in (VA1, VA2):
        A(f"v_bfe_u32 v11, v{r}, 7, 1\nv_lshlrev_b32 v11, 5, v11\nv_xor_b32 v{r}, v{r}, v11")
    A(f"v_add_u32 v{VA8}, 11264, v{VA2}\nv_and_b32 v{VA8}, 0x3fff, v{VA8}")
    A(f"s_add_u32 s{T4}, s{T4}, {L_IMG}")
    for r in (VA1, VA2, VA8):
        A(f"v_add_u32 v{r}, s{T4}, v{r}")
    A(f"v_bfe_u32 v11, v1, 3, 1\nv_lshlrev_b32 v11, 5, v11\nv_xor_b32 v{VLIN}, v2, v11")

    A("v_bfe_u32 v12, v1, 2, 1\nv_mul_u32_u24 v12, 2176, v12")
    A("v_bfe_u32 v13, v1, 3, 1\nv_lshl_add_u32 v12, v13, 6, v12\nv_lshl_add_u32 v12, v9, 8, v12")
    A("v_bfe_u32 v13, v1, 4, 1\nv_lshl_add_u32 v12, v13, 5, v12\nv_and_b32 v13, 3, v1\nv_lshl_add_u32 v12, v13, 3, v12")
    A(f"v_add_u32 v12, s{T8}, v12\nv_xor_b32 v13, 128, v12")
    if INOUT:
        A(f"s_lshl_b32 s{T4}, s{T7}, 14")
        srd(A, S0, OUT, T4, 0, 0x1000)
        srd(A, S1, OUT, T4, 0, 0x1000)
    else:
        A(f"s_lshl_b32 s{T4}, s2, 14\ns_lshl_b32 s{T5}, s{W_}, 12\ns_add_u32 s{T4}, s{T4}, s{T5}")
        srd(A, S0, WS, T4, WS_Z1, 0x1000)
        srd(A, S1, WS, T4, WS_Z3, 0x1000)


def aux_pre_w(A):
    A(f"v_and_b32 v14, 7, v1\nv_lshrrev_b32 v15, 3, v1\nv_xor_b32 v16, v14, v15\nv_lshlrev_b32 v16, 4, v16\nv_lshl_add_u32 v16, v14, 11, v16")
    A(f"s_lshr_b32 s{T4}, s{W_}, 1\ns_lshl_b32 s{T4}, s{T4}, 7\ns_and_b32 s{T5}, s{W_}, 1\ns_lshl_b32 s{T5}, s{T5}, 3\ns_add_u32 s{T4}, s{T4}, s{T5}\ns_add_u32 s{T4}, s{T4}, {L_W}")
    A(f"v_add_u32 v{VWR}, s{T4}, v16")
    A(f"v_lshlrev_b32 v15, {18 if INOUT else 16}, v15\nv_lshl_add_u32 v22, v14, 4, v15")
    A(f"s_lshl_b32 s{T4}, s{T3}, 7\ns_lshr_b32 s{T5}, s{W_}, 1\ns_lshl_b32 s{T5}, s{T5}, 6\ns_add_u32 s{T4}, s{T4}, s{T5}")
    A(f"s_and_b32 s{T5}, s{W_}, 1\ns_lshl_b32 s{T5}, s{T5}, 2\ns_add_u32 s{T4}, s{T4}, s{T5}\ns_mul_i32 s{T4}, s{T4}, {KS_}")
    A(f"s_lshr_b32 s{T5}, s{T0}, 2\ns_mul_i32 s{T5}, s{T5}, {ISH - 4096}\ns_add_u32 s{T4}, s{T4}, s{T5}")
    A(f"s_lshl_b32 s{T5}, s{T0}, 10\ns_add_u32 s{T4}, s{T4}, s{T5}\ns_lshl_b32 s{T5}, s{T1}, 9\ns_add_u32 s{T4}, s{T4}, s{T5}\ns_lshl_b32 s{T5}, s{T2}, 7\ns_add_u32 s{T4}, s{T4}, s{T5}")
    if INOUT:
        A(f"s_add_u32 s{T4}, s{T4}, 8192")
        srd(A, S4, OUT, T4, 0, 0x1000000, T4)
    else:
        srd(A, S4, WS, T4, WS_WT + 2*KS_, 0x400000, T4)


KNAME_ = [None]


def code_touch(A, t0):
    name = KNAME_[0]
    pc = uid("pc")
    per = 6
    A(f"s_getpc_b64 {sp(t0)}")
    A.label(pc)
    A(f"s_sub_u32 s{t0}, s{t0}, {pc}-{name}\ns_subb_u32 s{t0+1}, s{t0+1}, 0")
    A(f"s_lshr_b32 s{CNT}, s2, 3\ns_lshl_b32 s{CNT}, s{CNT}, 2\ns_add_u32 s{CNT}, s{CNT}, s{W_}\ns_mul_i32 s{CNT}, s{CNT}, {per*64}")
    A(f"s_min_u32 s{CNT}, s{CNT}, L_{name}_end-{name}-{per*64}")
    for q in range(per):
        A(f"s_load_dword s3, {sp(t0)}, s{CNT} offset:{q*64}")


def c_prefetch(A, p, done):
    A(f"s_load_dwordx4 s[8:11], s[0:1], 64")
    A(f"s_and_b32 s12, s{TJ}, 7\ns_lshl_b32 s13, s12, 7\ns_and_b32 s14, s{TI}, 3\ns_lshl_b32 s14, s14, 5\ns_add_u32 s13, s13, s14")
    A(f"s_sub_u32 s14, s{W_}, 1\ns_mul_i32 s14, s14, 11\ns_min_u32 s14, s14, 21\ns_add_u32 s13, s13, s14\ns_lshl_b32 s13, s13, 11")
    A(f"s_lshr_b32 s14, s{TJ}, 3\ns_lshl_b32 s14, s14, 10\ns_add_u32 s13, s13, s14\ns_waitcnt lgkmcnt(0)")
    A("s_add_u32 s4, s8, s13\ns_addc_u32 s5, s9, 0\ns_add_u32 s6, s10, s13\ns_addc_u32 s7, s11, 0")
    cnt = 0
    for n in range(CSP0, CSP0 + CSP):
        A(f"s_add_u32 s15, s12, {n}\ns_and_b32 s15, s15, 7\ns_lshl_b32 s15, s15, 7")
        for r in range(11):
            for arr in range(2):
                for sec in range(2):
                    A(f"s_load_dword s3, s[{4+2*arr}:{5+2*arr}], s15 offset:{r*2048 + sec*64}")
                    cnt += 1
                    if cnt % CSB == 0:
                        A(f"ds_read_b128 {v(ST,4)}, v{SQ}\ns_waitcnt lgkmcnt(0)")
                        A(f"v_min3_u32 v{ST}, v{ST}, v{ST+1}, v{ST+2}\nv_min_u32 v{ST}, v{ST}, v{ST+3}")
                        A(f"v_readfirstlane_b32 s{CNT}, v{ST}\ns_cmp_ge_u32 s{CNT}, {p}\ns_cbranch_scc1 {done}")


def c_touch(A, vm, mask=None):
    A(f"s_and_b32 s{T4}, s2, 1\ns_lshl_b32 s{T4}, s{T4}, 10\ns_bfe_u32 s{CNT}, s2, 0x20001\ns_lshl_b32 s{CNT}, s{CNT}, 19\ns_add_u32 s{T4}, s{T4}, s{CNT}")
    A(f"s_lshr_b32 s{CNT}, s2, 3\ns_lshl_b32 s{CNT}, s{CNT}, 14\ns_add_u32 s{T4}, s{T4}, s{CNT}")
    A(f"s_lshr_b32 s{CNT}, s{W_}, 1\ns_lshl_b32 s{CNT}, s{CNT}, 13\ns_add_u32 s{T4}, s{T4}, s{CNT}")
    A(f"v_bfe_u32 v22, v1, 3, 2\nv_lshlrev_b32 v22, 11, v22\nv_and_b32 v23, 7, v1\nv_lshl_add_u32 v22, v23, 7, v22\nv_add_u32 v22, s{T4}, v22")
    A("s_mov_b32 exec_hi, 0")
    if mask:
        A(f"s_mov_b32 exec_lo, {hex(mask)}")
    vm.op(f"global_load_dword v11, v22, s[100:101]", "touch")
    A("s_mov_b64 exec, -1")


def flag_poll(A, flg):
    A(f"s_lshl_b32 s{T4}, s2, 2\ns_add_u32 s{T4}, s{T4}, s{W_}\ns_lshr_b32 s{T4}, s{T4}, 4\ns_lshl_b32 s{T4}, s{T4}, 7\ns_add_u32 s{T4}, s{T4}, {flg}")
    A(f"s_add_u32 s24, s{WS}, s{T4}\ns_addc_u32 s25, s{WS+1}, 0")
    A(f"s_load_dwordx16 s[4:19], s[24:25], 0x0 glc")


def flag_wait(A):
    late, go, pl_ = uid("late"), uid("go"), uid("sp")
    A(f"s_mov_b32 s26, s{NONCE}\ns_mov_b32 s27, s{NONCE}\ns_mov_b32 s{CNT}, 0\ns_branch {pl_}")
    A.label(late)
    A(f"s_add_u32 s{CNT}, s{CNT}, 1\ns_cmp_ge_u32 s{CNT}, {SPIN_MAX}\ns_cbranch_scc1 {go}")
    A(f"s_sleep 8\ns_load_dwordx16 s[4:19], s[24:25], 0x0 glc")
    A.label(pl_)
    A("s_waitcnt lgkmcnt(0)")
    for q in range(8):
        A(f"s_cmp_eq_u64 s[{4+2*q}:{5+2*q}], s[26:27]\ns_cbranch_scc0 {late}")
    A.label(go)


RR = lambda arr, kind: 104 + (arr*4 + kind)*2


VWR = 21


def wt_read(A, fin=True):
    for arr in range(2):
        for kind in range(4):
            A(f"ds_read_b64 {v(RR(arr,kind),2)}, v{VWR} offset:{arr*1024 + kind*256}")


def wt_sym(A):
    A(f"s_mov_b32 s{T4}, 0x05040100\ns_mov_b32 s{T5}, 0x07060302")
    A(f"v_lshlrev_b32 v{WSP}, 16, v{WSP}\nv_lshlrev_b32 v{WSP+1}, 16, v{WSP+1}\nv_lshlrev_b32 v23, 1, v1")
    A(f"v_add_f32_dpp v{WSP+2}, v{WSP}, v{WSP} quad_perm:[1,0,3,2] row_mask:0xf bank_mask:0xf")
    A(f"v_subrev_f32_dpp v{WSP+3}, v{WSP+1}, v{WSP+1} quad_perm:[1,0,3,2] row_mask:0xf bank_mask:0xf")
    A(f"v_mul_f32 v{WSP+2}, 0.5, v{WSP+2}\nv_mul_f32 v{WSP+3}, 0.5, v{WSP+3}")
    A(f"v_cvt_pk_bf16_f32 v{WSP}, v{WSP+2}, v{WSP+3}")


def wt_perm(A):
    for kap in range(4):
        o = 120 + 4*kap
        for e in range(2):
            for h2 in range(2):
                kind = e + 2*h2
                A(f"v_perm_b32 v{o+2*e+h2}, v{RR(1,kind)+kap//2}, v{RR(0,kind)+kap//2}, s{T4 + kap % 2}")


def wt_store(A, vm):
    nw = uid("nw")
    A(f"s_cmp_lg_u32 s{W_}, 3\ns_cbranch_scc1 {nw}")
    A(f"s_lshr_b32 s{T4}, s2, 7\ns_mul_i32 s{T4}, s{T4}, {KS_}\ns_bfe_u32 s{T5}, s2, 0x10006\ns_mul_i32 s{T5}, s{T5}, {ISH}\ns_add_u32 s{T4}, s{T4}, s{T5}")
    A(f"s_and_b32 s{T5}, s2, 63\ns_lshl_b32 s{T5}, s{T5}, 6\ns_add_u32 s{T4}, s{T4}, s{T5}")
    srd(A, 4, WS, T4, WS_WT, 64)
    A("s_mov_b32 exec_lo, 0x55555555\ns_mov_b32 exec_hi, 0")
    if not E_("SKIPS", 0):
        A(f"buffer_store_dword v{WSP}, v23, {r4(4)}, 0 offen sc1")
    A("s_mov_b64 exec, -1")
    A.label(nw)
    for kap in range(0 if "2" in SK else 4):
        A(f"s_mov_b32 s{CNT}, {kap*KS_}")
        vm.op(f"buffer_store_dwordx4 {v(120+4*kap,4)}, v22, {r4(S4)}, s{CNT} offen sc1", "wst")


def a1_stores(A, vm):
    for u in range(0 if "3" in SK else 4):
        vm.op(f"buffer_store_dwordx4 {v(MID+4*u,4)}, v2, {r4(S0)}, 0 offen offset:{u*1024} sc1", "zst")
    if WMODE == 0 and WTK == ZPOS:
        wt_store(A, vm)


def a1_task(A, vm):
    vm.wait_for("ax")
    trace(A, 0, 2)
    for s_ in range(4):
        for u in range(2):
            A(f"ds_read_b64_tr_b16 {v(IN+4*s_+2*u,2)}, v{12+u} offset:{s_*512}")
    A("s_waitcnt lgkmcnt(0)")
    stage1(A, IN, D)
    twiddle(A, D, MID, TMP)
    stage2(A, MID, D)
    A(f"s_lshl_b32 s{CNT}, s{W_}, 12\ns_add_u32 s{CNT}, s{CNT}, {L_IMG}\nv_add_u32 v8, s{CNT}, v{VLIN}")
    for i in range(16):
        A(f"v_cvt_pk_bf16_f32 v{MID+i}, v{D+i}, v{D+16+i}")
        a, o = img(i)
        A(f"ds_write_b32 v{a}, v{MID+i} offset:{o}")
    trace(A, 0, 3)
    if WMODE == 0 and WPK < 0:
        if WBYG:
            A("s_waitcnt vmcnt(0)")
            l_check(A, 1, RING_LG - 16)
        else:
            vm.wait_for("w")
    A("s_waitcnt lgkmcnt(0)")
    l_sync(A)
    trace(A, 0, 4)
    for u in range(4):
        A(f"ds_read_b128 {v(MID+4*u,4)}, v8 offset:{u*1024}")
    if WMODE == 0 and WPK < 0:
        wt_read(A)
    for r in (VA1, VA2, VA8):
        A(f"v_add_u32 v{r}, {L_AX - L_IMG}, v{r}")
    A("s_waitcnt lgkmcnt(0)")
    p = l_arrive(A)
    assert p == LIMG_FREE
    if NZS:
        nn = uid("nn")
        A(f"s_lshl_b32 s{CNT}, s2, 3\ns_add_u32 s{CNT}, s{CNT}, s{WAVE}\ns_cmp_lg_u32 s{CNT}, 4\ns_cbranch_scc1 {nn}")
        A(f"s_add_u32 s3, s3, 1\ns_cmp_eq_u32 s3, 0\ns_cselect_b32 s3, 1, s3")
        A(f"s_atomic_swap s3, {sp(DBG)}, 0x0\ns_atomic_swap s3, {sp(WS)}, {hex(WS_NONCE)}")
        A.label(nn)
    if WMODE == 0 and WPK < 0:
        wt_sym(A)
        wt_perm(A)
    if EARLY2:
        if not TBG:
            make_T(A, TT, 92, 1)
        a2_setup(A)
    if ZPOS < 0:
        a1_stores(A, vm)
    trace(A, 0, 5)


def a2_setup(A):
    A(f"s_and_b32 s{M_}, s2, 7\ns_lshl_b32 s{M_}, s{M_}, 5\ns_lshr_b32 s{T4}, s2, 3\ns_add_u32 s{M_}, s{M_}, s{T4}")
    A(f"s_lshr_b32 s{T4}, s{W_}, 1\ns_xor_b32 s{T4}, s{T4}, s{W_}\ns_and_b32 s{T4}, s{T4}, 1")
    A(f"s_or_b32 s{T5}, s{T4}, s{M_}\ns_cmp_eq_u32 s{T5}, 0\ns_cselect_b32 s{SPC}, 1, 0")
    A(f"s_lshl_b32 s{T5}, s{M_}, 1\ns_add_u32 s{T4}, s{T4}, s{T5}")
    A(f"s_mul_i32 s{T4}, s{T4}, {KS_}\ns_add_u32 s{T4}, s{T4}, {8192 if INOUT else WS_WT + 2*KS_}")
    A(f"s_lshr_b32 s{T5}, s{W_}, 1\ns_mul_i32 s{T9}, s{T5}, {KS_}\ns_add_u32 s{T9}, s{T9}, {WS_WT}")
    A(f"s_cmp_eq_u32 s{SPC}, 1\ns_cselect_b32 s{T4}, s{T9}, s{T4}\ns_cselect_b32 s{T5}, 0, s{T5}")
    A(f"s_cselect_b32 s{MSK}, s{WS}, s{OUT if INOUT else WS}\ns_cselect_b32 s{MSK+1}, s{WS+1}, s{(OUT if INOUT else WS)+1}")
    A(f"s_lshl_b32 s{CJ}, s{T5}, 31\ns_or_b32 s{SGN}, s{CJ}, 0x3f800000")
    srd(A, S2, MSK, T4, 0, ISH + 4096)
    if INOUT:
        A(f"s_lshl_b32 s{T4}, s{W_}, 22\ns_lshr_b32 s{T5}, s{M_}, 6\ns_lshl_b32 s{T5}, s{T5}, 19\ns_add_u32 s{T4}, s{T4}, s{T5}")
        A(f"s_and_b32 s{T5}, s{M_}, 63\ns_lshl_b32 s{T5}, s{T5}, 6\ns_add_u32 s{T4}, s{T4}, s{T5}")
        srd(A, S3, OUT, T4, 0, 160*16384, T5)
        srd(A, S4, OUT, T4, 0, 160*16384, T5)
    else:
        A(f"s_lshl_b32 s{T4}, s{W_}, 20\ns_lshl_b32 s{T5}, s{M_}, 6\ns_add_u32 s{T4}, s{T4}, s{T5}")
        assert WS_Z1 == WS_Z3
        srd(A, S3, WS, T4, WS_Z1, 0x100000, T5)
    A("v_lshrrev_b32 v8, 2, v1\nv_lshlrev_b32 v8, 14, v8\nv_and_b32 v9, 3, v1\nv_lshrrev_b32 v10, 4, v1\nv_xor_b32 v9, v9, v10\nv_lshl_add_u32 v14, v9, 4, v8")
    A(f"v_and_b32 v8, 31, v1\nv_bfe_u32 v9, v1, 2, 2\nv_xor_b32 v9, s{W_}, v9\nv_lshlrev_b32 v9, 4, v9\nv_lshl_add_u32 v9, v8, 6, v9")
    A(f"v_lshrrev_b32 v8, 5, v1\nv_lshl_add_u32 v9, v8, 11, v9\nv_add_u32 v15, {L_AX}, v9")
    A(f"s_lshl_b32 s{T4}, s{W_}, 13\ns_add_u32 s{T4}, s{T4}, {L_AX}\nv_add_u32 v16, s{T4}, v2")
    A(f"s_xor_b32 s{T5}, s{T4}, {3 << 13}\ns_cmp_eq_u32 s{SPC}, 1\ns_cselect_b32 s{T5}, s{T4}, s{T5}\nv_add_u32 v17, s{T5}, v2")
    A(f"v_add_u32 v18, s{T8}, v2")
    A(f"s_lshr_b32 s{T4}, s{W_}, 1\ns_xor_b32 s{T4}, s{T4}, s{W_}\ns_and_b32 s{T4}, s{T4}, 1\ns_lshl_b32 s{T9}, s{T4}, 13\ns_add_u32 s{T9}, s{T9}, {L_W}\nv_add_u32 v19, s{T9}, v2")
    for kk in range(32):
        A(f"v_mul_f32 v{TT+kk}, s{SGN}, v{TT+kk}")


ZU = lambda u: (16*(u & 1) + 128*(u >> 1))*16384 if INOUT else u << 18


def a2_loads(A, z=True, w=True):
    for u in range(4 if z and '5' not in SK else 0):
        A(f"s_add_u32 m0, s{T8}, {u*1024}\ns_mov_b32 s{T4}, {ZU(u)}")
        A(f"buffer_load_dwordx4 v14, {r4(S3)}, s{T4} offen sc1 lds")
    if WSH:
        a, b = uid("ws"), uid("wd")
        A(f"s_cmp_eq_u32 s{SPC}, 1\ns_cbranch_scc1 {a}")
        A(f"s_lshr_b32 s{T4}, s{W_}, 1\ns_lshl_b32 s{T5}, s{T4}, 12\ns_mul_i32 s{T4}, s{T4}, {ISH}\ns_add_u32 m0, s{T9}, s{T5}")
        for u in range(4):
            A(f"buffer_load_dwordx4 v2, {r4(S2)}, s{T4} offen offset:{u*1024} sc1 lds")
        A(f"s_waitcnt vmcnt(0)\ns_branch {b}")
        A.label(a)
    A(f"s_movk_i32 s{T4}, {ISH}")
    for it in range(8 if w and '4' not in SK else 0):
        A(f"buffer_load_dwordx4 {v(W+4*it,4)}, v2, {r4(S2)}, {'0' if it < 4 else f's{T4}'} offen offset:{(it & 3)*1024} sc1")
    if WSH:
        A.label(b)


PH_RES = 18


def phase_atomic(A, cnt, p):
    x = uid("ph")
    A(f"s_cmp_lg_u32 s{W_}, 0\ns_cbranch_scc1 {x}")
    l_check(A, p)
    A(f"s_and_b32 s{T4}, s2, 15\ns_lshl_b32 s{T5}, s{T4}, 7\ns_add_u32 s{T5}, s{T5}, {cnt}")
    A(f"s_add_u32 s{MSK}, s{WS}, s{T5}\ns_addc_u32 s{MSK+1}, s{WS+1}, 0\ns_mov_b32 s{PH_RES}, 1")
    A(f"s_atomic_add s{PH_RES}, {sp(MSK)}, 0x0 glc")
    A.label(x)


def phase_last(A, flg, wait=True, nrep=None):
    y = uid("sg")
    A(f"s_cmp_lg_u32 s{W_}, 0\ns_cbranch_scc1 {y}")
    A(f"s_and_b32 s{T4}, s2, 15\ns_lshl_b32 s{T4}, s{T4}, 2\ns_add_u32 s{T4}, s{T4}, {flg}")
    A(f"s_add_u32 s4, s{WS}, s{T4}\ns_addc_u32 s5, s{WS+1}, 0")
    A("s_waitcnt lgkmcnt(0)")
    A(f"s_cmp_lg_u32 s{PH_RES}, 15\ns_cbranch_scc1 {y}")
    for r in range(nrep or NREP):
        A(f"s_atomic_swap s{NONCE}, s[4:5], {hex(r*128)}")
    if wait:
        A("s_waitcnt lgkmcnt(0)")
    A.label(y)


def phase_wait(A, flg, tb, nrep=None):
    x, pl_, nok = uid("ph"), uid("sp"), uid("nok")
    A(f"s_cmp_lg_u32 s{W_}, 0\ns_cbranch_scc1 {x}")
    A(f"s_and_b32 s{T4}, s2, {(nrep or NREP) - 1}\ns_lshl_b32 s{T4}, s{T4}, 7\ns_add_u32 s{T4}, s{T4}, {flg}")
    A(f"s_add_u32 s{MSK}, s{WS}, s{T4}\ns_addc_u32 s{MSK+1}, s{WS+1}, 0\ns_mov_b32 s{T4}, s{NONCE}\ns_mov_b32 s{T5}, s{NONCE}\ns_mov_b32 s{CNT}, 0")
    A(f"s_branch {pl_}")
    A.label(nok)
    A(f"s_add_u32 s{CNT}, s{CNT}, 1\ns_cmp_ge_u32 s{CNT}, {SPIN_MAX}\ns_cbranch_scc1 {x}")
    if SLP_A:
        A(f"s_sleep {SLP_A}")
    A.label(pl_)
    A(f"s_load_dwordx16 s[4:19], {sp(MSK)}, 0x0 glc\ns_waitcnt lgkmcnt(0)")
    for q in range(8):
        A(f"s_cmp_eq_u64 s[{4+2*q}:{5+2*q}], {sp(T4)}\ns_cbranch_scc0 {nok}")
    if TRACE:
        A(f"v_writelane_b32 v0, s{CNT}, {tb}")
    A.label(x)
    p2 = l_arrive(A)
    if CSP and flg == (FLG_A if CSPH == 0 else FLG_B):
        dn = uid("csp")
        A(f"s_cmp_eq_u32 s{W_}, 0\ns_cbranch_scc1 {dn}")
        c_prefetch(A, p2, dn)
        A.label(dn)
    l_check(A, p2, slp=LSLP)


def aux_rest(A, vm):
    def phase(cnt, flg, young=0):
        trace(A, 0, 48)
        A(f"s_waitcnt vmcnt({young})")
        trace(A, 0, 49)
        p = l_arrive(A)
        phase_atomic(A, cnt, p)
        phase_last(A, flg)
        trace(A, 0, 50)
        phase_wait(A, flg, 62)
        trace(A, 0, 51)
    if ZPOS >= 11:
        phase(CNT_A, FLG_A)
    elif FPOLL:
        flag_wait(A)
    else:
        phase_wait(A, FLG_A, 61, 64)
    trace(A, 0, 7)
    A(f"s_setprio {LPRIO2}")
    if A2G:
        l_check(A, A2G % 100, RING_D - 16 if A2G < 100 else -16)
    if CTW == 2:
        c_touch(A, vm)
    trace(A, 0, 8)
    a2_loads(A)
    mark(A, 7)
    A(f"s_waitcnt vmcnt({0 if '4' in SK else 8})")
    trace(A, 0, 9)
    if E_("AM", 0) in (1, 2):
        mark(A, 1)
    l_sync(A)
    trace(A, 0, 10)
    INS = 72
    for s_ in range(4):
        A(f"ds_read_b128 {v(INS+4*s_,4)}, v15 offset:{s_*4096}")
    if WSH:
        a = uid("wr")
        A(f"s_cmp_eq_u32 s{SPC}, 1\ns_cbranch_scc1 {a}")
        for it in range(8):
            A(f"ds_read_b128 {v(W+4*it,4)}, v19 offset:{it*1024}")
        A.label(a)
    A("s_waitcnt lgkmcnt(0)")
    if E_("AM", 0) == 2:
        mark(A, 2)
    p6 = l_arrive(A)
    if A2C:
        l_check(A, A2C, -16)
    A(f"s_lshl_b32 s{T4}, s{SPC}, 31\ns_or_b32 s{T4}, s{T4}, s{CJ}")
    fl, nwr = uid("fft"), uid("nwr")
    A.label(fl)
    for i in range(16):
        A(f"v_xor_b32 v{IN+i}, s{T4}, v{INS+i}")

    def pre(rng):
        for i in rng:
            w, rho, sg = W + 2*i, TT + i, TT + 16 + i
            r1, i1, r2, i2, Ar, Ai = (TMP + 8 + c for c in range(6))
            A(f"v_lshlrev_b32 v{r1}, 16, v{w}\nv_and_b32 v{i1}, 0xffff0000, v{w}")
            A(f"v_lshlrev_b32 v{r2}, 16, v{w+1}\nv_and_b32 v{i2}, 0xffff0000, v{w+1}")
            A(f"v_add_f32 v{Ar}, v{r1}, v{r2}\nv_add_f32 v{Ai}, v{i1}, v{i2}")
            A(f"v_sub_f32 v{r1}, v{r1}, v{r2}\nv_sub_f32 v{i1}, v{i1}, v{i2}")
            A(f"v_mul_f32 v{w}, v{rho}, v{r1}\nv_mul_f32 v{w+1}, v{rho}, v{i1}")
            A(f"v_fma_f32 v{rho}, v{sg}, v{r1}, v{Ar}\nv_fma_f32 v{sg}, v{sg}, v{i1}, v{Ai}")

    def once(rng):
        a = uid("once")
        A(f"s_cmp_eq_u32 s{SPC}, 2\ns_cbranch_scc1 {a}\ns_waitcnt vmcnt(0)")
        pre(rng)
        A.label(a)
    stage1(A, IN, D)
    once(range(0, PRE1))
    twiddle(A, D, IN, TMP)
    stage2(A, IN, D)
    once(range(PRE1, PRE2))
    l_check(A, p6)
    if E_("AM", 0) == 2:
        mark(A, 5)
    A(f"s_cmp_eq_u32 s{SPC}, 2\ns_cbranch_scc1 {nwr}")
    for c in range(8):
        A(f"ds_write_b128 v16, {v(D+4*c,4)} offset:{c*1024}")
    A(f"s_cmp_eq_u32 s{SPC}, 0\ns_cbranch_scc1 {nwr}")
    A(f"s_mov_b32 s{SPC}, 2\ns_mov_b32 s{T4}, 0\ns_branch {fl}")
    A.label(nwr)
    pre(range(PRE2, min(16, PRE2 + 2)))
    A("s_waitcnt lgkmcnt(0)")
    p7 = l_arrive(A)
    pre(range(min(16, PRE2 + 2), 16))

    def own(rng):
        for i in rng:
            Xr, Xi, mr, mi, t = D+i, D+16+i, TT+i, TT+16+i, TMP + (i & 1)
            A(f"v_mul_f32 v{t}, v{mi}, v{Xi}\nv_mul_f32 v{Xi}, v{mr}, v{Xi}")
            A(f"v_fmac_f32 v{Xi}, v{mi}, v{Xr}\nv_fma_f32 v{Xr}, v{mr}, v{Xr}, -v{t}")
    own(range(0, 6))
    l_check(A, p7)
    for c in range(8):
        A(f"ds_read_b128 {v(DY+4*c,4)}, v17 offset:{c*1024}")
    own(range(6, 16))
    A("s_waitcnt lgkmcnt(0)")
    if E_("AM", 0) in (1, 2):
        mark(A, 4)
    p8 = l_arrive(A)
    for i in range(16):
        Pr, Pi, Yr, Yi, gr, gi = D+i, D+16+i, DY+i, DY+16+i, W+2*i, W+2*i+1
        A(f"v_fma_f32 v{Pr}, -v{gr}, v{Yi}, v{Pr}\nv_fmac_f32 v{Pi}, v{gr}, v{Yr}")
        A(f"v_fma_f32 v{Pr}, -v{gi}, v{Yr}, v{Pr}\nv_fma_f32 v{Pi}, -v{gi}, v{Yi}, v{Pi}")
        A(f"v_cvt_pk_bf16_f32 v{IN+i}, v{Pi}, v{Pr}")
    if E_("AM", 0) == 2:
        mark(A, 6)
    stage1(A, IN, D)
    twiddle(A, D, IN, TMP)
    stage2(A, IN, D)
    A(f"s_lshr_b32 s{T4}, s{CJ}, 16")
    l_check(A, p8)
    for s_ in range(4):
        for r in range(4):
            i = 4*s_ + r
            A(f"v_cvt_pk_bf16_f32 v{IN+i}, v{D+i}, v{D+16+i}\nv_xor_b32 v{IN+i}, s{T4}, v{IN+i}")
        A(f"ds_write_b128 v15, {v(IN+4*s_,4)} offset:{s_*4096}")
    A("s_waitcnt lgkmcnt(0)")
    if E_("AM", 0) == 2:
        mark(A, 7)
    l_sync(A)
    for u in range(4):
        A(f"ds_read_b128 {v(IN+4*u,4)}, v18 offset:{u*1024}")
    for u in range(4):
        A(f"s_mov_b32 s{T4}, {ZU(u)}\ns_waitcnt lgkmcnt({3-u})")
        if "6" not in SK:
            A(f"buffer_store_dwordx4 {v(IN+4*u,4)}, v14, {r4(S3)}, s{T4} offen sc1")
    trace(A, 0, 11)
    if E_("AM", 0) != 3 and not E_("GM", 0):
        mark(A, 3)
    A(f"s_lshl_b32 s{T4}, s{T7}, 14")
    srd(A, S0, OUT, T4, 0, 0x4000)
    A("v_and_b32 v8, 31, v1\nv_lshrrev_b32 v9, 5, v1\nv_lshlrev_b32 v14, 2, v8\nv_lshl_add_u32 v14, v9, 9, v14")
    A(f"s_mov_b32 s{T4}, 0x35000000")
    for k in range(32):
        A(f"v_mul_f32 v{T+k}, s{T4}, v{T+k}")
    phase(CNT_B, FLG_B)
    A(f"s_setprio {LPRIO3}")
    if A3G:
        l_check(A, A3G, -16)
    trace(A, 0, 12)
    if E_("AM", 0) != 3:
        mark(A, 8)
    A(f"s_mov_b32 m0, s{T8}")
    for u in range(4):
        if "7" not in SK:
            A(f"buffer_load_dwordx4 v{VLIN}, {r4(S1)}, 0 offen offset:{u*1024} sc1 lds")
    A("s_waitcnt vmcnt(0)")
    trace(A, 0, 13)
    l_sync(A)
    for i in range(16):
        a, o = img(i)
        A(f"ds_read_b32 v{IN+i}, v{a} offset:{o}")
    A("s_waitcnt lgkmcnt(0)")
    stage1(A, IN, D)
    twiddle(A, D, IN, TMP)
    stage2(A, IN, D)
    A(f"s_movk_i32 s{T4}, 0x2000")
    O = 72
    for part in range(2 if A3S else 1):
        if part == 1:
            l_check(A, A3S, -16)
        for i in range(16):
            o = O + 2*i
            if part == 0:
                A(f"v_cvt_pk_bf16_f32 v{o+1}, v{D+16+i}, v{D+i}")
                A(f"v_lshlrev_b32 v{o}, 16, v{o+1}\nv_and_b32 v{o+1}, 0xffff0000, v{o+1}")
            off = (i >> 2)*1024 + (i & 3)*128
            if "8" not in SK and (part == 1 or not A3S):
                A(f"buffer_store_dword v{o}, v14, {r4(S0)}, 0 offen offset:{off}{OST}")
                A(f"buffer_store_dword v{o+1}, v14, {r4(S0)}, s{T4} offen offset:{off}{OST}")


def cmul_sq(A, d, a, t):
    A(f"v_mul_f32 {v(t)}, {v(a+1)}, {v(a+1)}")
    A(f"v_mul_f32 {v(t+1)}, {v(a)}, {v(a+1)}")
    A(f"v_fma_f32 {v(d)}, {v(a)}, {v(a)}, -{v(t)}")
    A(f"v_add_f32 {v(d+1)}, {v(t+1)}, {v(t+1)}")


def horner(A, dr, di, L, pr, pi, er, ei, t):
    assert dr not in (pr, pi) and di not in (pr, pi)
    A(f"v_fma_f32 {v(t)}, {v(L)}, {v(pr)}, {v(er)}")
    A(f"v_fma_f32 {v(t+1)}, {v(L)}, {v(pi)}, {v(ei)}")
    A(f"v_fma_f32 {v(dr)}, -{v(L+1)}, {v(pi)}, {v(t)}")
    A(f"v_fma_f32 {v(di)}, {v(L+1)}, {v(pr)}, {v(t+1)}")


RING_D, RING_LG, RING_LA = 32, 48, 64


def dma_setup(A, swt, swp, RV, t, ta, tb):
    l5, a, b_, c, d, e = (t + i for i in range(6))
    A(f"v_lshrrev_b32 v{l5}, 5, v1\nv_bfe_u32 v{a}, v1, 3, 2\nv_and_b32 v{b_}, 1, v{a}\nv_lshrrev_b32 v{c}, 1, v{a}")
    A(f"v_lshlrev_b32 v{d}, 4, v{l5}\nv_lshl_add_u32 v{d}, v{b_}, 3, v{d}\nv_add_u32 v{d}, v{d}, v{c}")
    A(f"s_lshl_b32 s{ta}, s{swt}, 6\ns_lshl_b32 s{tb}, s{swp}, 2\ns_add_u32 s{ta}, s{ta}, s{tb}")
    A(f"v_add_u32 v{d}, s{ta}, v{d}\nv_lshlrev_b32 v{d}, 11, v{d}")
    A(f"s_lshl_b32 s{ta}, s{swt}, 5")
    A(f"v_lshl_add_u32 v{e}, v{l5}, 3, v{a}\nv_add_u32 v{e}, s{ta}, v{e}\nv_lshlrev_b32 v{e}, 11, v{e}")
    A(f"v_and_b32 v{b_}, 7, v1\nv_lshrrev_b32 v{c}, 4, v1\nv_xor_b32 v{b_}, v{b_}, v{c}\nv_lshlrev_b32 v{b_}, 4, v{b_}\nv_xor_b32 v{c}, 64, v{b_}")
    A(f"v_add_u32 v{RV}, v{d}, v{b_}\nv_add_u32 v{RV+1}, v{d}, v{c}\nv_add_u32 v{RV+1}, {32*2048 - 1024}, v{RV+1}")
    A(f"v_add_u32 v{RV+2}, v{e}, v{b_}\nv_add_u32 v{RV+3}, v{e}, v{c}\nv_add_u32 v{RV+3}, {16*2048 - 1024}, v{RV+3}")


def make_piece(A, vm, RA, RB, ROT, M0B, SOF, RV):
    def piece(k, n):
        slot, u = k % NS, n & 3
        if n == 0:
            A(f"s_add_u32 s{SOF}, s{ROT}, {((k*E_('KDIR', 1)) % 16)*128}\ns_and_b32 s{SOF}, s{SOF}, 0x7ff")
            A(f"s_add_u32 s{SOF+1}, s{SOF}, 2048\ns_add_u32 s{SOF+2}, s{SOF}, 6144")
        if u == 0:
            A(f"s_add_u32 m0, s{M0B}, {slot*32768 + (n >> 2)*16384}")
        so = SOF if u < 2 else SOF + 1 + (n >> 2)
        if ("a" in G1X and 0 < n < 4) or ("b" in G1X and n > 4):
            return
        vm.op(f"buffer_load_dwordx4 v{RV + 2*(n >> 2) + (u & 1)}, {r4(RA if n < 4 else RB)}, s{so} offen offset:{u*1024} lds", ("st", k))
    return piece


def rot_setup(A, ROT, t):
    if TIMAP:
        A(f"s_bfe_u32 s{ROT}, s2, 0x20001\ns_lshl_b32 s{ROT}, s{ROT}, 2\ns_lshr_b32 s{t}, s2, 6\ns_add_u32 s{ROT}, s{ROT}, s{t}\ns_mul_i32 s{ROT}, s{ROT}, {RI*128}")
    else:
        A(f"s_mul_i32 s{ROT}, s{TI}, {RI*128}")
    A(f"s_mul_i32 s{t}, s{TJ}, {RJ*128}\ns_add_u32 s{ROT}, s{ROT}, s{t}")
    if E_("ROTFIX", 1):
        A(f"s_bfe_u32 s{t}, s{ROT}, 0x30007\ns_cmp_eq_u32 s{t}, 3\ns_cselect_b32 s{t}, {E_('ROTFIX', 1)*128}, 0\ns_add_u32 s{ROT}, s{ROT}, s{t}")
    if E_("ROTC", 0):
        A(f"s_add_u32 s{ROT}, s{ROT}, {E_('ROTC', 0)*128}")


def aux_waves(A, name, kidx):
    A(f"s_sub_u32 s{W_}, s{WAVE}, 4")
    A(f"s_setprio {APRIO}")
    if BARP == 0:
        A("s_barrier")
    A("s_waitcnt lgkmcnt(0)")
    A(f"s_mov_b32 s100, s{CRE}\ns_mov_b32 s101, s{CRE+1}")
    A(f"s_bitcmp1_b32 s{W_}, 0\ns_cselect_b32 s100, s{CIM}, s{CRE}\ns_cselect_b32 s101, s{CIM+1}, s{CRE+1}")
    trace_init(A, 0)
    vm = VmCounter(A)
    if CODEPF:
        pf, pc = uid("pf"), uid("pc")
        A(f"s_cmp_lg_u32 s{W_}, 1")
        A(f"s_cbranch_scc1 {pf}")
        A(f"s_lshr_b32 s{T0}, s2, 3\ns_lshl_b32 s{T0}, s{T0}, 11\nv_and_b32 v12, 15, v1\nv_lshl_add_u32 v12, v12, 7, s{T0}")
        A(f"v_min_u32 v12, L_{name}_end-{name}, v12")
        A(f"s_getpc_b64 {sp(T0)}")
        A.label(pc)
        A(f"s_sub_u32 s{T0}, s{T0}, {pc}-{name}\ns_subb_u32 s{T1}, s{T1}, 0")
        A(f"global_load_dword v23, v12, {sp(T0)}")
        A.label(pf)
    nn = uid("nn")
    A(f"s_lshl_b32 s{T0}, s2, 3\ns_add_u32 s{T0}, s{T0}, s{WAVE}\ns_cmp_lg_u32 s{T0}, 4")
    A(f"s_cbranch_scc1 {nn}")
    A(f"s_load_dword s3, {sp(WS)}, {WS_NONCE}")
    if not NZS:
        A(f"v_mov_b32 v22, 0\nv_lshlrev_b32 v23, 7, v1\nv_add_u32 v23, {WS_CNT}, v23")
        A(f"global_store_dword v23, v22, {sp(WS)} sc1")
    A.label(nn)

    def clear_counters():
        nn = uid("nz")
        A(f"s_cmp_lg_u32 s2, 0\ns_cbranch_scc1 {nn}")
        A(f"s_lshl_b32 s24, s{W_}, 10\ns_add_u32 s24, s24, {WS_CNT}\ns_add_u32 s24, s{WS}, s24\ns_addc_u32 s25, s{WS+1}, 0\ns_mov_b32 s26, 0")
        for r in range(8):
            A(f"s_atomic_swap s26, s[24:25], {hex(r*128)}")
        A.label(nn)

    def publish_nonce(young):
        nn = uid("nn")
        A(f"s_lshl_b32 s{CNT}, s2, 3\ns_add_u32 s{CNT}, s{CNT}, s{WAVE}\ns_cmp_lg_u32 s{CNT}, 4")
        A(f"s_cbranch_scc1 {nn}")
        A(f"s_waitcnt vmcnt({young}) lgkmcnt(0)")
        A(f"s_add_u32 s3, s3, 1\ns_cmp_eq_u32 s3, 0\ns_cselect_b32 s3, 1, s3")
        A(f"v_mov_b32 v11, s3\nv_mov_b32 v10, 0")
        A(f"s_mov_b64 exec, 1\nglobal_store_dword v10, v11, {sp(DBG)} sc1")
        A(f"global_store_dword v10, v11, {sp(WS)} offset:{WS_NONCE}\ns_mov_b64 exec, -1")
        A.label(nn)
    if NOAUX:
        if BARP:
            A("s_barrier")
        assert not NZS
        publish_nonce(0)
        if CTW:
            for _ in range(E_("CTD", 100)):
                A("s_sleep 1")
            c_touch(A, vm)
        A("s_endpgm")
        return
    RA, RB, ROT, M0B, SOF, RV = 12, 20, 16, 17, 8, 176
    piece = make_piece(A, vm, RA, RB, ROT, M0B, SOF, RV)

    def loader_setup():
        A(f"s_lshl_b32 s{T4}, s{TI}, 18\ns_lshl_b32 s{T5}, s{TJ}, 17")
        srd(A, RA, BX, T4, 0, 0x40000)
        A(f"s_bitcmp1_b32 s{W_}, 0\ns_cselect_b32 s8, s{BIM}, s{BRE}\ns_cselect_b32 s9, s{BIM+1}, s{BRE+1}")
        srd(A, RB, 8, T5, 0, 0x20000)
        rot_setup(A, ROT, T4)
        A(f"s_lshl_b32 s{M0B}, s{W_}, 12")
        A(f"s_lshr_b32 s{T4}, s{W_}, 1\ns_and_b32 s{T5}, s{W_}, 1")
        dma_setup(A, T4, T5, RV, 96, CNT, 19)
    aux_setup_ax(A)
    aux_issue(A, vm)
    if WMODE == 0 and WPOS == 0 and not WBYG:
        aux_setup_w(A)
        if WSPLIT:
            w_tile_issue(A, vm, T8, L_W - L_AX, [0])
        else:
            w_issue(A, vm)
    if NZS:
        clear_counters()
    def page_touch(pages, only=None):
        todo = [(b_, o + q) for b_, o, n in pages for q in sorted(set(list(range(0, n, 2 << 20)) + [n - 64]))]
        y = uid("tm")
        if only is not None:
            A(f"s_lshr_b32 s27, s2, 3\ns_and_b32 s27, s27, {only}\ns_cmp_lg_u32 s27, 0\ns_cbranch_scc1 {y}")
        for w in range(4):
            x = uid("tl")
            A(f"s_cmp_lg_u32 s{W_}, {w}\ns_cbranch_scc1 {x}")
            for b_, o in todo[w::4]:
                A(f"s_mov_b32 s27, {hex(o)}\ns_load_dword s26, {sp(b_)}, s27")
            A.label(x)
        A.label(y)
    LATEP = [(WS, 0, 1 << 20), (WS, WS_HT, 64*TBS), (WS, WS_XB, 8 << 20), (OUT, 0, 16 << 20)]
    if TLBT & 1:
        page_touch([(WS, WS_Z1, 4 << 20), (WS, WS_WT, 516*8192)], only=TLBO if TLBO else None)
    if TLBT & 2:
        page_touch([(BX, 0, 4 << 20), (BRE, 0, 2 << 20), (BIM, 0, 2 << 20), (LRE, 0, 64), (LIM, 0, 64), (LDT, 0, 64)], only=TLBO if TLBO else None)
    if BARP == 1:
        A("s_barrier")
    trace(A, 0, 0)
    if TBG:
        A(f"v_add_u32 v92, {L_TBL}, v2")
        for w, d in enumerate((F, T, TT)):
            for q in range(8):
                A(f"ds_read_b128 {v(d+4*q,4)}, v92 offset:{w*8192 + q*1024}")
    else:
        make_F(A, 92)
    if WSPLIT == 1:
        w_tile_issue(A, vm, T8, L_W - L_AX, [1])
        w_sym_issue(A)
        if BARP == 2:
            A("s_barrier")
    if WMODE == 0 and WPOS == 1:
        aux_setup_w(A)
        w_issue(A, vm)
    if not TBG:
        make_T(A, T, 92, 0)
    if WSPLIT == 2:
        w_tile_issue(A, vm, T8, L_W - L_AX, [1])
        w_sym_issue(A)
        if BARP == 2:
            A("s_barrier")
    if WMODE == 0 and WPOS == 2:
        aux_setup_w(A)
        w_issue(A, vm)
    if WBYG:
        w_addr(A, W_)
        w_sym_addr(A)
        w_sym_issue(A)
    aux_pre_a(A)
    if WMODE == 0:
        aux_pre_w(A)
    if PRES:
        loader_setup()
    if not NZS:
        publish_nonce(len(vm.issued))
    trace(A, 0, 1)
    a1_task(A, vm)
    if WMODE:
        aux_setup_w(A)
        aux_pre_w(A)
    if not PRES:
        loader_setup()
    Lt = Asm()
    if not EARLY2:
        make_T(Lt, TT, 92, 1)
    later = Lt.lines
    issued = KS0
    if KS0 < NS and E_("PREK", 0):
        for n in range(8):
            piece(issued, n)
        issued += 1
    trace(A, 0, 6)
    A(f"s_setprio {LPRIO0}")
    ZLATE = ZPOS >= 11
    KS = max(WSK if WMODE else KS0, ZPOS, WTK) + LA + 1 if not ZLATE else E_("KSL", 11)
    KS = max(KS, E_("KSX", 0))
    NONK = E_("NONK", 2)
    assert KS + 2 <= 13 and NONK < KS
    for k in range(16):
        if k >= KS0:
            vm.wait_for(("st", k))
        if WMODE == 0 and k == WPK:
            vm.wait_for("w")
        trace(A, 0, 16 + k)
        A("s_barrier")
        while issued < min(16, k + LA + 1):
            for n in range(8):
                piece(issued, n)
            issued += 1
        if WMODE == 0 and k == WPK:
            assert WPK < 2 and WTK > WPK
            wt_read(A)
            A("s_waitcnt lgkmcnt(0)")
            wt_sym(A)
            wt_perm(A)
        if k == ZPOS:
            a1_stores(A, vm)
        if WMODE == 0 and k == WTK and WTK != ZPOS:
            wt_store(A, vm)
        if k == NONK:
            if SNON:
                A(f"s_load_dword s{NONCE}, {sp(DBG)}, 0x0 glc")
            elif NLDS:
                x = uid("nl")
                A(f"s_cmp_lg_u32 s{W_}, 0\ns_cbranch_scc1 {x}")
                A(f"v_mov_b32 v20, 0\nglobal_load_dword v21, v20, {sp(DBG)} sc1")
                A.label(x)
            else:
                A("v_mov_b32 v20, 0")
                vm.op(f"global_load_dword v21, v20, {sp(DBG)} sc1", "nonce")
        if NLDS and k == 13:
            x = uid("nl")
            A(f"s_cmp_eq_u32 s{W_}, 0\ns_cbranch_scc1 {x}")
            A(f"ds_read_b32 v20, v{SQ} offset:{L_NONCE - 16}\ns_waitcnt lgkmcnt(0)\nv_readfirstlane_b32 s{NONCE}, v20")
            A.label(x)
        if k in CPK:
            code_touch(A, MSK)
        if WMODE:
            if k == WK:
                w_issue(A, vm)
            if k == WK + LA + 1:
                wt_read(A)
                A("s_waitcnt lgkmcnt(0)")
                wt_sym(A)
                wt_perm(A)
            if k == WSK:
                wt_store(A, vm)
        if k == KS - 1:
            assert not later
            if not ZLATE and not EARLY2:
                a2_setup(A)
        if k == KS:
            x, y = uid("sg"), uid("sg")
            if SNON:
                A.label(x)
                A(f"s_waitcnt lgkmcnt(0)\ns_cmp_lg_u32 s{NONCE}, 0\ns_cbranch_scc1 {y}")
                A(f"s_load_dword s{NONCE}, {sp(DBG)}, 0x0 glc\ns_branch {x}")
            elif NLDS:
                z = uid("nl")
                A(f"s_cmp_lg_u32 s{W_}, 0\ns_cbranch_scc1 {y}")
                A(f"v_readfirstlane_b32 s{NONCE}, v21\ns_cmp_lg_u32 s{NONCE}, 0\ns_cbranch_scc1 {z}")
                get_nonce(A, 20)
                A.label(z)
                A(f"v_mov_b32 v20, s{NONCE}\ns_mov_b64 exec, 1\nds_write_b32 v{SQ}, v20 offset:{L_NONCE - 16}\ns_mov_b64 exec, -1\ns_waitcnt lgkmcnt(0)")
            else:
                A(f"v_readfirstlane_b32 s{NONCE}, v21\ns_cmp_lg_u32 s{NONCE}, 0\ns_cbranch_scc1 {y}")
                get_nonce(A, 20)
            A.label(y)
        if k == KS and not ZLATE:
            x = uid("sg")
            A(f"s_cmp_lg_u32 s{W_}, 0\ns_cbranch_scc1 {x}")
            A(f"s_and_b32 s{T4}, s2, 15\ns_lshl_b32 s{T5}, s{T4}, 7\ns_add_u32 s{T5}, s{T5}, {CNT_A}")
            A(f"s_add_u32 s{MSK}, s{WS}, s{T5}\ns_addc_u32 s{MSK+1}, s{WS+1}, 0\ns_mov_b32 s{PH_RES}, 1")
            A(f"s_atomic_add s{PH_RES}, {sp(MSK)}, 0x0 glc")
            A.label(x)
        if k == KS + 2 and not ZLATE:
            x = uid("sg")
            A(f"s_cmp_lg_u32 s{W_}, 0\ns_cbranch_scc1 {x}")
            A(f"s_waitcnt lgkmcnt(0)\ns_cmp_lg_u32 s{PH_RES}, 15\ns_cbranch_scc1 {x}")
            A(f"s_and_b32 s{T4}, s2, 15\ns_lshl_b32 s{T4}, s{T4}, 2\ns_add_u32 s{T4}, s{T4}, {FLG_A}\nv_lshl_add_u32 v22, v1, 7, s{T4}\nv_mov_b32 v23, s{NONCE}")
            A(f"global_store_dword v22, v23, {sp(WS)} sc1")
            A.label(x)
        if KA and KA0 <= k <= KA1:
            if k == KA0:
                A(f"s_and_b32 s27, s2, 1\ns_lshl_b32 s27, s27, 10\ns_bfe_u32 s26, s2, 0x20001\ns_lshl_b32 s26, s26, 19\ns_add_u32 s27, s27, s26")
                A(f"s_lshr_b32 s26, s2, 3\ns_lshl_b32 s26, s26, 14\ns_add_u32 s27, s27, s26\ns_lshr_b32 s26, s{W_}, 1\ns_lshl_b32 s26, s26, 13\ns_add_u32 s27, s27, s26")
            for n in range(KA):
                q = (k - KA0)*KA + n
                if q < 64:
                    A(f"s_load_dword s3, s[100:101], s27 offset:{(q >> 4)*2048 + (q & 15)*64}")
        if TLBT & 4 and k == TLBK:
            page_touch(LATEP, only=7)
        if k == CTK and CTW == 0 and not CTKS:
            c_touch(A, vm)
        if k in CTKS:
            n_ = 32 // len(CTKS)
            c_touch(A, vm, ((1 << n_) - 1) << (n_*CTKS.index(k)))
        if FPOLL and k == FPOLL and not ZLATE:
            assert k >= 13
            flag_poll(A, FLG_A)
        if k < KS - 1:
            for _ in range(-(-len(later) // (KS - 1 - k))):
                A(later.pop(0))
    assert issued == 16
    if ZLATE and not EARLY2:
        a2_setup(A)
    A(f"s_setprio {LPRIO}")
    aux_rest(A, vm)
    trace(A, 0, 14)
    if TRACE:
        A("s_waitcnt vmcnt(0)")
    trace(A, 0, 15)
    trace_dump(A, 0, WAVE, 1)
    stamp_end(A, kidx, WAVE)
    A("s_endpgm")


M16 = "v_mfma_f32_16x16x32_bf16"
XRW = 144
L_XC = 114688


def cpow(A, d, zr, zi, n, t):
    if isinstance(n, str):
        A(f"v_mul_f32 v{t}, {n}, v{zr}\nv_mul_f32 v{t+1}, {n}, v{zi}")
    else:
        A(f"v_mul_f32 v{t}, {fl(n)}, v{zr}\nv_mul_f32 v{t+1}, {fl(n)}, v{zi}")
    A(f"v_exp_f32 v{t}, v{t}\nv_rndne_f32 v{t+2}, v{t+1}\nv_sub_f32 v{t+1}, v{t+1}, v{t+2}")
    A(f"v_cos_f32 v{t+2}, v{t+1}\nv_sin_f32 v{t+1}, v{t+1}")
    A(f"v_mul_f32 v{d}, v{t}, v{t+2}\nv_mul_f32 v{d+1}, v{t}, v{t+1}")


def gemm_waves(A, name, kidx):
    U = lambda pg, c, idx: 64 + (pg*2 + c)*16 + 2*idx
    ACC = lambda mt, nt: 64 + ((nt & 1)*2 + (nt >> 1))*16 + 4*mt
    FR = lambda X, f: (32 if X == 0 else 144) + 4*f
    AD = lambda st, op, k2: 128 + st*4 + op*2 + k2
    LAM = lambda pg: 20 + 2*pg
    KC = lambda pg: 24 + 2*pg
    L8 = lambda pg: 176 + 2*pg
    L16 = lambda pg: 180 + 2*pg
    PP = lambda pg: 184 + 4*pg
    PW = lambda pg, idx: 208 + 16*pg + 2*idx
    Q16, Q64, Q128, Q256 = 28, 192, 30, 2
    WT_, WP = T8, T6
    A(f"s_lshr_b32 s{WT_}, s{WAVE}, 1\ns_and_b32 s{WP}, s{WAVE}, 1\ns_lshr_b32 s{PG}, s{TJ}, 3")
    A("v_and_b32 v6, 31, v1\nv_lshrrev_b32 v5, 5, v1\nv_lshlrev_b32 v11, 4, v1")
    A("v_mov_b64 v[64:65], 0\nv_mov_b64 v[66:67], 0")
    A(f"s_mul_i32 s{T0}, s{WAVE}, {16*XRW}\ns_add_u32 s{T0}, s{T0}, {L_XC}\nv_add_u32 v13, s{T0}, v11\nv_mov_b32 v12, {L_SYNC}")
    A("ds_write_b128 v13, v[64:67]\nds_write_b128 v13, v[64:67] offset:1024\nds_write_b128 v13, v[64:67] offset:2048")
    A("s_mov_b64 exec, 1\nds_write_b128 v12, v[64:67]\nds_write_b128 v12, v[64:67] offset:16\nds_write_b128 v12, v[64:67] offset:32\nds_write_b128 v12, v[64:67] offset:48\nds_write_b128 v12, v[64:67] offset:64\ns_mov_b64 exec, -1")
    A(f"s_lshl_b32 s{T0}, s{WAVE}, 2\nv_add_u32 v13, s{T0}, v12")
    if TBG:
        assert KS0 <= 2
        done = uid("tb")
        for w, mk in enumerate((lambda: make_F(A, 20, 128), lambda: make_T(A, 128, 20, 0), lambda: make_T(A, 128, 20, 1))):
            nx = uid("tb")
            A(f"s_cmp_lg_u32 s{WAVE}, {w}\ns_cbranch_scc1 {nx}")
            mk()
            A(f"v_add_u32 v20, {L_TBL + w*8192}, v11")
            for q in range(8):
                A(f"ds_write_b128 v20, {v(128+4*q,4)} offset:{q*1024}")
            A(f"s_branch {done}")
            A.label(nx)
        A.label(done)
    A("s_waitcnt lgkmcnt(0)\ns_barrier")
    A("v_bfe_u32 v4, v1, 2, 2\nv_lshlrev_b32 v4, 3, v4\nv_and_b32 v7, 3, v1\nv_add_u32 v4, v4, v7")
    A(f"s_lshl_b32 s{T0}, s{TJ}, 6\ns_lshl_b32 s{T1}, s{WP}, 5\ns_add_u32 s{T0}, s{T0}, s{T1}")
    A(f"v_add_u32 v4, s{T0}, v4\nv_lshlrev_b32 v7, 1, v4")
    RA, RB, ROT, M0B, SOF, RV = S2, S3, 38, 39, T2, 244
    vm1 = VmCounter(A)
    if WBYG:
        A("s_waitcnt lgkmcnt(0)")
        w_addr(A, WAVE)
        srd(A, S2, WR, size=NBW)
        srd(A, S3, WI, size=NBW)
        A(f"s_lshl_b32 s{T0}, s{WAVE}, 12")
        w_tile_issue(A, vm1, T0, L_W)
    dma_setup(A, WT_, WP, RV, 14, T1, T2)
    rot_setup(A, ROT, T0)
    A(f"s_lshl_b32 s{T0}, s{TI}, 18\ns_lshl_b32 s{T1}, s{TJ}, 17\ns_lshl_b32 s{M0B}, s{WAVE}, 12")
    A("s_waitcnt lgkmcnt(0)")
    PRM = 248
    for pg in range(2):
        A(f"global_load_ushort v{PRM+3*pg}, v7, {sp(LRE)} offset:{8*pg}\nglobal_load_ushort v{PRM+1+3*pg}, v7, {sp(LIM)} offset:{8*pg}\nglobal_load_ushort v{PRM+2+3*pg}, v7, {sp(LDT)} offset:{8*pg}")
    srd(A, RA, BX, T0, 0, 0x40000)
    A(f"s_cmp_eq_u32 s{WP}, 1\ns_cselect_b32 s{T2}, s{BIM}, s{BRE}\ns_cselect_b32 s{T3}, s{BIM+1}, s{BRE+1}")
    srd(A, RB, T2, T1, 0, 0x20000)
    piece = make_piece(A, vm1, RA, RB, ROT, M0B, SOF, RV)
    for n in range(8):
        piece(0, n)
    A("v_bfe_u32 v7, v1, 4, 1\nv_lshl_add_u32 v4, v7, 2, v4")
    A("v_bfe_u32 v7, v6, 1, 3\nv_xor_b32 v7, v7, v5\nv_lshlrev_b32 v7, 4, v7\nv_lshl_add_u32 v7, v6, 7, v7")
    A("v_and_b32 v8, 15, v1\nv_lshrrev_b32 v9, 4, v1")
    A("v_lshrrev_b32 v14, 1, v8\nv_xor_b32 v14, v14, v9\nv_lshlrev_b32 v14, 4, v14\nv_lshl_add_u32 v14, v8, 7, v14")
    A(f"s_lshl_b32 s{T0}, s{WT_}, 13\ns_lshl_b32 s{T1}, s{WP}, 13\ns_add_u32 s{T1}, s{T1}, 16384")
    for k2 in range(2):
        A(f"v_xor_b32 v15, {k2 << 6}, v14")
        A(f"v_add_u32 v{AD(0,0,k2)}, s{T0}, v15\nv_add_u32 v{AD(0,1,k2)}, s{T1}, v15")
        A(f"v_add_u32 v{AD(1,0,k2)}, 0x10000, v{AD(0,0,k2)}\nv_add_u32 v{AD(1,1,k2)}, 0x10000, v{AD(0,1,k2)}")
    Areal, A = A, Asm()
    srd(A, S0, WS, None, WS_EG, 0x40000)
    srd(A, S1, WS, None, WS_HT, 64*TBS)
    A(f"s_mul_i32 s{T0}, s{WP}, {32*XRW}\ns_add_u32 s{T0}, s{T0}, {L_XC + 64}\ns_lshl_b32 s{T1}, s{WT_}, 5\ns_add_u32 s{T1}, s{T1}, s{T0}")
    A(f"v_mul_u32_u24 v14, {XRW}, v6\nv_add_u32 v14, s{T0}, v14\nv_lshl_add_u32 v14, v5, 5, v14")
    A(f"v_mul_u32_u24 v15, {XRW}, v8\nv_add_u32 v15, s{T1}, v15\nv_lshl_add_u32 v15, v9, 3, v15")
    A(f"s_lshl_b32 s{T0}, s{TI}, 14\nv_lshl_add_u32 v16, v4, 4, s{T0}")
    A("v_mov_b32 v17, 0x40000000\nv_lshlrev_b32 v10, 14, v5\nv_sub_u32 v10, v16, v10")
    LA_, LX = 194, 200
    for u in range(8):
        A(f"v_subrev_u32 v{136+u}, {16384 + u*32768}, v10\nv_cmp_le_i32 vcc, 0, v{136+u}\nv_cndmask_b32 v{136+u}, v17, v{136+u}, vcc")
    A("v_lshlrev_b32 v17, 30, v5\nv_or_b32 v16, v16, v17")
    A(f"s_lshl_b32 s{T0}, s{TI}, 11\ns_add_u32 s{T0}, s{T0}, {FLG_X}\ns_lshl_b32 s{T1}, s{TJ}, 7\ns_add_u32 s{T1}, s{T1}, s{T0}\nv_mov_b32 v195, s{T1}")
    A(f"s_lshl_b32 s{T1}, s{PG}, 10\ns_add_u32 s{T0}, s{T0}, s{T1}\nv_and_b32 v196, 7, v1\nv_lshl_add_u32 v196, v196, 7, s{T0}")
    A(f"s_lshl_b32 s{T0}, s{TI}, 1\ns_add_u32 s{T0}, s{T0}, s{WT_}\ns_lshl_b32 s{T0}, s{T0}, 12\ns_add_u32 s{T0}, s{T0}, {FLG_H}")
    A(f"s_lshl_b32 s{T1}, s{PG}, 11\ns_add_u32 s{T1}, s{T1}, s{T0}\nv_lshl_add_u32 v18, v8, 7, s{T1}")
    A(f"s_lshl_b32 s{T1}, s{TJ}, 8\ns_add_u32 s{T0}, s{T0}, s{T1}\ns_lshl_b32 s{T1}, s{WP}, 7\ns_add_u32 s{T0}, s{T0}, s{T1}\nv_mov_b32 v19, s{T0}")
    A("v_lshrrev_b32 v10, 1, v9\nv_lshlrev_b32 v10, 10, v10\nv_and_b32 v17, 1, v9\nv_lshl_add_u32 v10, v17, 9, v10\nv_lshl_add_u32 v10, v8, 4, v10")
    A(f"s_lshl_b32 s{T0}, s{WT_}, 2\nv_add_u32 v9, s{T0}, v9\nv_cvt_f32_u32 v9, v9\nv_mul_f32 v9, 0x41800000, v9\nv_add_f32 v8, 0x41000000, v9")
    A("PARAMWAIT")
    ZR, ZI = 204, 206
    for pg in range(2):
        lr, li, dt, t = PRM+3*pg, PRM+1+3*pg, PRM+2+3*pg, 197
        A(f"v_lshlrev_b32 v{lr}, 16, v{lr}\nv_lshlrev_b32 v{li}, 16, v{li}\nv_lshlrev_b32 v{dt}, 16, v{dt}")
        A(f"v_mul_f32 v{dt}, 0x3fb8aa3b, v{dt}\nv_exp_f32 v{dt}, v{dt}")
        A(f"v_cvt_pk_bf16_f32 v{dt}, v{dt}, v{dt}\nv_lshlrev_b32 v{dt}, 16, v{dt}")
        A(f"v_mul_f32 v{ZR+pg}, v{dt}, v{lr}\nv_mul_f32 v{ZI+pg}, v{dt}, v{li}")
        A(f"v_mul_f32 v{ZR+pg}, 0x3fb8aa3b, v{ZR+pg}\nv_mul_f32 v{ZI+pg}, 0.15915494, v{ZI+pg}")
        cpow(A, LAM(pg), ZR+pg, ZI+pg, 1.0, t)
        A(f"v_add_f32 v{t}, -1.0, v{LAM(pg)}")
        A(f"v_mul_f32 v{t+1}, v{lr}, v{lr}\nv_fma_f32 v{t+1}, v{li}, v{li}, v{t+1}\nv_rcp_f32 v{t+1}, v{t+1}")
        A(f"v_add_f32 v{t+1}, v{t+1}, v{t+1}")
        A(f"v_mul_f32 v{t+2}, v{t}, v{lr}\nv_fma_f32 v{t+2}, v{LAM(pg)+1}, v{li}, v{t+2}\nv_mul_f32 v{KC(pg)}, v{t+2}, v{t+1}")
        A(f"v_mul_f32 v{t+2}, v{LAM(pg)+1}, v{lr}\nv_fma_f32 v{t+2}, -v{t}, v{li}, v{t+2}\nv_mul_f32 v{KC(pg)+1}, v{t+2}, v{t+1}")
        cpow(A, L8(pg), ZR+pg, ZI+pg, 8.0, t)
        cpow(A, L16(pg), ZR+pg, ZI+pg, 16.0, t)
        for e in range(2):
            cpow(A, 200, ZR+pg, ZI+pg, f"v{9-e}", t)
            A(f"v_mov_b32 v{PP(pg)+e}, v200\nv_mov_b32 v{PP(pg)+2+e}, v201")
        for idx in range(8):
            sr, si = (KC(pg), KC(pg)+1) if idx == 0 else (PW(pg, idx-1), PW(pg, idx-1)+1)
            A(f"v_mul_f32 v{t}, v{si}, v{LAM(pg)+1}\nv_mul_f32 v{t+1}, v{si}, v{LAM(pg)}")
            A(f"v_fma_f32 v{PW(pg,idx)}, v{sr}, v{LAM(pg)}, -v{t}\nv_fma_f32 v{PW(pg,idx)+1}, v{sr}, v{LAM(pg)+1}, v{t+1}")
    A(f"v_and_b32 v197, 16, v1\nv_cmp_ne_u32 vcc, 0, v197\nv_cndmask_b32 v{ZR}, v{ZR}, v{ZR+1}, vcc\nv_cndmask_b32 v{ZI}, v{ZI}, v{ZI+1}, vcc")
    for d, n in ((Q16, 16.0), (Q64, 64.0), (Q128, 128.0), (Q256, 256.0)):
        cpow(A, d, ZR, ZI, n, 197)
    A("v_lshrrev_b32 v197, 4, v1\nv_lshlrev_b32 v197, 2, v197\nv_and_b32 v198, 15, v1\nv_sub_u32 v197, v198, v197\nv_mov_b32 v198, 0x3f80\nv_mov_b32 v199, 1.0")
    for c in range(4):
        A(f"v_cmp_eq_u32 vcc, {c}, v197\nv_cndmask_b32 v{248+c}, 0, v198, vcc\nv_cndmask_b32 v{252+c}, 0, v199, vcc")

    deferred, A = A.lines, Areal
    if WBYG:
        A(f"s_waitcnt vmcnt({6 + 8})")
        A(f"s_mov_b64 exec, 1\nv_mov_b32 v197, 1\nds_write_b32 v13, v197 offset:{RING_LG}\ns_mov_b64 exec, -1")
    pw = deferred.index("PARAMWAIT")
    for l in deferred[:pw]:
        A(l)
    deferred = deferred[pw+1:]
    assert KS0 <= NPRE
    if DEFER:
        for k in range(1, KS0):
            for n in range(8):
                piece(k, n)
    else:
        npre = 8
        if P1 == 0 and KS0 > 1:
            for n in range(8):
                piece(1, n)
            npre = 16
        A(f"s_waitcnt vmcnt({npre})")
        rest = [(k, n) for k in range(npre//8, KS0) for n in range(8)]
        lo, hi = int(len(deferred)*P2A/100), int(len(deferred)*P2B/100)
        at = [lo + (hi - lo)*q//max(1, len(rest)) for q in range(len(rest))]
        for i, l in enumerate(deferred):
            while at and at[0] <= i and l.startswith("v_") and not l.startswith("v_cnd"):
                at.pop(0)
                piece(*rest.pop(0))
            A(l)
        for r_ in rest:
            piece(*r_)
        deferred = []
    order = [0, 4, 5, 6, 7, 1, 2, 3]
    need = {0: 2, 1: 3, 2: 4, 3: 5, 4: 6, 8: 7, 12: 8}

    def rd(k, k2, f):
        slot = k % NS
        st, off = slot >> 1, (slot & 1)*32768
        A(f"ds_read_b128 {v(FR(k2, f), 4)}, v{AD(st, f >> 2, k2)} offset:{off + (f & 3)*2048}")
    trace_init(A, 0)
    trace(A, 0, 0)
    A(f"s_setprio {GPRIO}")
    def ring_arrive(k, t=197):
        A(f"s_mov_b64 exec, 1\nv_mov_b32 v{t}, {k}\nds_write_b32 v13, v{t} offset:{RING_D}\ns_mov_b64 exec, -1")
    trace(A, 0, 35)
    vm1.wait_for(("st", 0))
    trace(A, 0, 36)
    A("s_barrier")
    trace(A, 0, 37)
    trace(A, 0, 1)
    for f in order:
        rd(0, 0, f)
    for k in range(16):
        for k2 in range(2):
            nk, nk2 = (k, 1) if k2 == 0 else (k+1, 0)
            have = nk < 16
            if k2 == 1:
                w = f"vmcnt({vm1.wait_for(('st', k+1), emit=False)}) " if k + 1 < KS0 else ""
                A(f"s_waitcnt {w}lgkmcnt(0)")
                if have:
                    A("s_barrier")
            if k == 13 and k2 == 0:
                assert not deferred, len(deferred)
                if not NLDS:
                    A(f"v_mov_b32 v8, 0\nglobal_load_dword v9, v8, {sp(DBG)} sc1")
            n = 0
            for m in range(16):
                if k2 == 0 and m in need:
                    A(f"s_waitcnt lgkmcnt({8 - need[m] + n})")
                mt, nt = m >> 2, m & 3
                if "m" not in G1X or k + k2 == 0:
                    A(f"{M16} {v(ACC(mt,nt),4)}, {v(FR(k2,mt),4)}, {v(FR(k2,4+nt),4)}, {'0' if k + k2 == 0 else v(ACC(mt,nt),4)}")
                if have and n < 8:
                    if "r" not in G1X:
                        rd(nk, nk2, order[n])
                    n += 1
                elif k >= DK0:
                    for _ in range(DEFER):
                        if deferred:
                            A(deferred.pop(0))
            if NLDS and k == 15 and k2 == 0:
                A(f"ds_read_b32 v9, v12 offset:{L_NONCE}")
            elif NLDS and k == 15 and k2 == 1:
                A(f"v_readfirstlane_b32 s{NONCE}, v9")
                A(f"s_getreg_b32 s{T0}, hwreg(HW_REG_XCC_ID, 0, 4)\ns_lshl_b32 s{T1}, s{NONCE}, 4\ns_or_b32 s{LOCAL}, s{T0}, s{T1}")
                A(f"v_mov_b32 v194, s{LOCAL}\nv_mov_b32 v202, s{NONCE}\nv_mov_b32 v203, s{NONCE}")
            elif not NLDS and k == 15 and k2 == 0:
                nl, ng = uid("n"), uid("ng")
                A.label(nl)
                A(f"s_waitcnt vmcnt(0)\nv_readfirstlane_b32 s{NONCE}, v9\ns_cmp_lg_u32 s{NONCE}, 0\ns_cbranch_scc1 {ng}")
                A(f"global_load_dword v9, v8, {sp(DBG)} sc1\ns_branch {nl}")
                A.label(ng)
                A(f"s_getreg_b32 s{T0}, hwreg(HW_REG_XCC_ID, 0, 4)\ns_lshl_b32 s{T1}, s{NONCE}, 4\ns_or_b32 s{LOCAL}, s{T0}, s{T1}")
                A(f"v_mov_b32 v194, s{LOCAL}\nv_mov_b32 v202, s{NONCE}\nv_mov_b32 v203, s{NONCE}")
            if TRACE == 2 and k2 == 1:
                trace(A, 0, 40 + k)
    mark(A, 1)
    trace(A, 0, 2)
    bc_a = "op_sel_hi:[0,1,1]"
    bc_b = "op_sel:[1,0,0]"
    TT = 40
    for idx in range(1, 8):
        for half in range(2):
            for pg in range(2):
                L, t = v(LAM(pg), 2), TT + 4*pg
                pr, pi, ur, ui = (v(x, 2) for x in (U(pg, 0, idx-1), U(pg, 1, idx-1), U(pg, 0, idx), U(pg, 1, idx)))
                if half == 0:
                    A(f"v_pk_fma_f32 {v(t,2)}, {L}, {pr}, {ur} {bc_a}\nv_pk_fma_f32 {v(t+2,2)}, {L}, {pi}, {ui} {bc_a}")
                else:
                    A(f"v_pk_fma_f32 {ur}, {L}, {pi}, {v(t,2)} {bc_b} {N0}\nv_pk_fma_f32 {ui}, {L}, {pr}, {v(t+2,2)} {bc_b}")
    for pg in range(2):
        er, ei = U(pg, 0, 7), U(pg, 1, 7)
        horner(A, 32+2*pg, 33+2*pg, L8(pg), er, ei, er+1, ei+1, TT)
        A(f"ds_write_b64 v15, {v(32+2*pg,2)} offset:{16*XRW*pg}")
    trace(A, 0, 3)
    A("s_waitcnt lgkmcnt(0)")
    ring_arrive(17)
    l_, d_ = uid("ek"), uid("ekd")
    A.label(l_)
    A(f"ds_read_b128 v[198:201], v12 offset:{RING_D}\ns_waitcnt lgkmcnt(0)")
    A("v_min3_u32 v197, v198, v199, v200\nv_min_u32 v197, v197, v201")
    A(f"v_readfirstlane_b32 s{T0}, v197\ns_cmp_lt_u32 s{T0}, 17\ns_cbranch_scc1 {l_}")
    trace(A, 0, 4)
    SG = 48
    A(f"ds_read_b128 {v(SG,4)}, v14\nds_read_b128 {v(SG+4,4)}, v14 offset:16")
    P = 200
    A("s_waitcnt lgkmcnt(1)")
    horner(A, 32, 33, Q16, SG, SG+1, SG+2, SG+3, TT)
    A("s_waitcnt lgkmcnt(0)")
    horner(A, 34, 35, Q16, 32, 33, SG+4, SG+5, TT)
    horner(A, 32, 33, Q16, 34, 35, SG+6, SG+7, TT)
    A("v_mov_b32 v34, v32\nv_mov_b32 v35, v33\nv_permlane32_swap_b32 v32, v34\nv_permlane32_swap_b32 v33, v35")
    horner(A, P, P+1, Q64, 32, 33, 34, 35, TT)
    np_ = uid("np")
    A(f"s_cmp_lg_u32 s{WT_}, 0")
    A(f"s_cbranch_scc1 {np_}")
    A(f"buffer_store_dwordx4 {v(P,4)}, v16, {r4(S0)}, 0 offen sc1")
    A(f"s_cmp_lg_u32 s{WP}, 0")
    A(f"s_cbranch_scc1 {np_}")
    A(f"s_mov_b64 exec, 1\nglobal_store_dword v195, v194, {sp(WS)} sc1\ns_mov_b64 exec, -1")
    A.label(np_)
    mark(A, 2)
    trace(A, 0, 5)
    A(f"global_load_dword v243, v18, {sp(WS)} sc1")
    LB = 144

    def lbloads():
        for u in range(8):
            A(f"buffer_load_dwordx4 {v(LB+4*u,4)}, v{136+u}, {r4(S0)}, 0 offen sc1")
        A(f"global_load_dword v197, v196, {sp(WS)} sc1")
    QS = 32
    A("v_add_u32 v15, -56, v15")
    for pg in range(2):
        for w in range(7):
            A(f"ds_read_b64 {v(QS+14*pg+2*w,2)}, v15 offset:{16*XRW*pg + 8*w}")
    QQ = lambda pg: 128 + 4*pg
    TQ = 60
    A("s_waitcnt lgkmcnt(0)")
    for pg in range(2):
        b = QS + 14*pg
        for w in range(1, 6):
            horner(A, b+2*w, b+2*w+1, L16(pg), b+2*w-2, b+2*w-1, b+2*w, b+2*w+1, TQ)
        horner(A, QQ(pg), QQ(pg)+2, L16(pg), b+10, b+11, b+12, b+13, TQ)
        horner(A, QQ(pg)+1, QQ(pg)+3, L8(pg), QQ(pg), QQ(pg)+2, U(pg, 0, 7), U(pg, 1, 7), TQ)
    trace(A, 0, 6)
    O = 32
    cnt = 0
    if LBAT == 0:
        lbloads()
    for idx in range(8):
        for pg in range(2):
            d0, d1, K_, o = v(U(pg, 0, idx), 2), v(U(pg, 1, idx), 2), v(KC(pg), 2), O + 4*pg
            A(f"v_pk_mul_f32 {v(o,2)}, {K_}, {d0} op_sel_hi:[0,1]")
            A(f"v_pk_mul_f32 {v(o+2,2)}, {K_}, {d1} op_sel_hi:[0,1] neg_lo:[1,0] neg_hi:[1,0]")
            A(f"v_pk_fma_f32 {v(o+2,2)}, {K_}, {d0}, {v(o+2,2)} {bc_b} {N0}")
            A(f"v_pk_fma_f32 {d0}, {K_}, {d1}, {v(o,2)} {bc_b} {N0}")
            A(f"v_mov_b64 {d1}, {v(o+2,2)}")
            cnt += 1
            if cnt == LBAT:
                lbloads()
    trace(A, 0, 7)
    A("v_mov_b32 v14, 1\ns_mov_b64 exec, 1\nds_write_b32 v13, v14\ns_mov_b64 exec, -1")
    M0B, RH, RCc, SH, SC = T7, T5, T4, T3, T2
    ACC2 = lambda nt: 32 + 16*nt
    CF = lambda X, nt: 96 + 16*X + 4*nt
    XR, CV = 128, 244
    HR = lambda s_: 148 + 4*(s_ % HD)
    L_OWN = 65536
    A(f"s_xor_b32 s{T0}, s{WT_}, s{PG}\ns_xor_b32 s{T0}, s{T0}, 1\ns_lshl_b32 s{T0}, s{T0}, 6\ns_add_u32 s{T0}, s{T0}, s{WP}")
    A(f"v_lshrrev_b32 v8, 3, v1\nv_lshl_add_u32 v8, v8, 1, s{T0}\nv_lshlrev_b32 v8, 11, v8")
    A("v_and_b32 v14, 7, v1\nv_lshrrev_b32 v15, 4, v1\nv_xor_b32 v14, v14, v15\nv_lshlrev_b32 v14, 4, v14\nv_xor_b32 v15, 64, v14")
    for u in range(4):
        A(f"v_add_u32 v{CV+u}, v8, v{14 + (u & 1)}")
        if u:
            A(f"v_add_u32 v{CV+u}, {u*(16*2048 - 1024)}, v{CV+u}")
    A(f"s_and_b32 s{RCc}, s{TJ}, 7\ns_lshl_b32 s{T0}, s{RCc}, 18\ns_lshl_b32 s{T1}, s{PG}, 10\ns_add_u32 s{T0}, s{T0}, s{T1}")
    srd(A, S2, CRE, T0, 0, 0x40000, T1)
    srd(A, S3, CIM, T0, 0, 0x40000, T1)
    A(f"s_lshl_b32 s{T1}, s{RCc}, 1\ns_add_u32 s{T1}, s{T1}, s{PG}\ns_lshl_b32 s{T1}, s{T1}, 7")
    A(f"s_lshl_b32 s{SH}, s{TI}, 1\ns_add_u32 s{SH}, s{SH}, s{WT_}\ns_lshl_b32 s{T0}, s{SH}, 17\ns_add_u32 s{T0}, s{T0}, s{T1}")
    srd(A, S4, BX, T0, 0, 0x20000, T1)
    A(f"s_add_u32 s{DSK}, s{DSK}, s{T1}\ns_addc_u32 s{DSK+1}, s{DSK+1}, 0")
    A(f"s_lshl_b32 s{T1}, s{T1}, 1\ns_add_u32 s{T1}, s{T1}, 4096\ns_lshl_b32 s{T0}, s{SH}, 19\ns_add_u32 s{T0}, s{T0}, s{T1}")
    A(f"s_add_u32 s{OUT}, s{OUT}, s{T0}\ns_addc_u32 s{OUT+1}, s{OUT+1}, 0\ns_sub_u32 s{LDT}, 0x80000, s{T1}")
    A(f"s_lshl_b32 s{M0B}, s{WAVE}, 12\ns_lshl_b32 s{RH}, s{RCc}, 13\ns_lshl_b32 s{RCc}, s{RCc}, 7")
    A(f"s_lshl_b32 s{T0}, s{WT_}, 14\ns_lshl_b32 s{T1}, s{WP}, 11\ns_add_u32 s{T0}, s{T0}, s{T1}\ns_add_u32 s{T0}, s{T0}, {L_OWN}\nv_add_u32 v16, s{T0}, v10")
    A(f"s_lshl_b32 s{T0}, s{WAVE}, 13\ns_add_u32 s{T0}, s{T0}, {L_OWN}\nv_add_u32 v17, s{T0}, v11")
    for ks in range(4):
        A(f"v_xor_b32 v{20+ks}, {ks << 5}, v7\nv_add_u32 v{24+ks}, 0x10000, v{20+ks}")
    HB = LIM
    A(f"s_mul_i32 s{HB}, s{SH}, {2*TBS}\ns_lshl_b32 s{T1}, s{TJ}, 13\ns_add_u32 s{HB}, s{HB}, s{T1}\ns_lshl_b32 s{T1}, s{WP}, 11\ns_add_u32 s{HB}, s{HB}, s{T1}")
    for u in range(8):
        A(f"v_cmp_gt_u32 vcc, 0x40000, v{136+u}\nv_cndmask_b32 v{40+u}, 0, v202, vcc")
    A(f"s_mov_b32 s{T9}, 0")
    trace(A, 0, 8)
    pl, pd = uid("poll"), uid("polled")
    A.label(pl)
    A("v_mov_b32 v8, 0")
    for u in range(8):
        A(f"s_waitcnt vmcnt({8-u})")
        A(f"v_bitop3_b32 v8, v8, v{LB+4*u+2}, v{40+u} bitop3:0xf6\nv_bitop3_b32 v8, v8, v{LB+4*u+3}, v{40+u} bitop3:0xf6")
    A("s_waitcnt vmcnt(0)\nv_xor_b32 v197, v194, v197\nv_lshrrev_b32 v9, 4, v197\nv_or_b32 v8, v8, v9\nv_cmp_ne_u32 vcc, 0, v8")
    A(f"s_cbranch_vccz {pd}")
    A(f"s_add_u32 s{T9}, s{T9}, 1\ns_cmp_ge_u32 s{T9}, {SPIN_MAX}")
    A(f"s_cbranch_scc1 {pd}")
    lbloads()
    A(f"s_branch {pl}")
    A.label(pd)
    A(f"v_cmp_ne_u32 vcc, 0, v197\ns_cmp_eq_u64 vcc, 0\ns_cselect_b32 s{LOCAL}, {0 if FORCE_REMOTE else 1}, 0")
    mark(A, 3)
    trace(A, 0, 9)
    if TRACE:
        A(f"v_writelane_b32 v0, s{T9}, 63")
    vm = VmCounter(A)

    def cdma(g, us):
        for u in us:
            if u == 0:
                A(f"s_add_u32 m0, s{M0B}, {(g % R)*16384}")
                if g % 2 == 0:
                    A(f"s_add_u32 s{SC}, s{RCc}, {(g >> 1)*128}\ns_and_b32 s{SC}, s{SC}, 0x3ff")
            vm.op(f"buffer_load_dwordx4 v{CV+u}, {r4(S2 if g % 2 == 0 else S3)}, s{SC} offen offset:{u*1024}{NTC} lds", ("c", g))
    cdma(0, range(4))
    cdma(1, range(4))
    A("v_mov_b32 v14, 2\ns_mov_b64 exec, 1\nds_write_b32 v13, v14\ns_mov_b64 exec, -1")
    H0 = LB + 28
    cur = (H0, H0+1)
    for u in range(6, -1, -1):
        d = (48, 49) if cur[0] == H0 else (H0, H0+1)
        horner(A, d[0], d[1], Q256, cur[0], cur[1], LB+4*u, LB+4*u+1, TT)
        cur = d
    assert cur == (48, 49)
    A("v_mov_b32 v50, v48\nv_mov_b32 v51, v49\nv_permlane32_swap_b32 v48, v50\nv_permlane32_swap_b32 v49, v51")
    horner(A, 52, 53, Q128, 50, 51, 48, 49, TT)
    A("v_mov_b32 v54, v52\nv_mov_b32 v55, v53\nv_permlane16_swap_b32 v52, v54\nv_permlane16_swap_b32 v53, v55")
    trace(A, 0, 10)
    G = lambda pg: QQ(pg)
    for pg in range(2):
        Hh, gr, gi, pr, pi = v(52+2*pg, 2), v(G(pg), 2), v(G(pg)+2, 2), v(PP(pg), 2), v(PP(pg)+2, 2)
        A(f"v_pk_fma_f32 {gr}, {Hh}, {pr}, {gr} {bc_a}\nv_pk_fma_f32 {gi}, {Hh}, {pi}, {gi} {bc_a}")
        A(f"v_pk_fma_f32 {gr}, {Hh}, {pi}, {gr} {bc_b} {N0}\nv_pk_fma_f32 {gi}, {Hh}, {pr}, {gi} {bc_b}")
    PK = lambda pg, c, idx: 144 + (pg*2 + c)*8 + idx
    D = lambda c, X, pg: 32 + ((c*2 + X)*2 + pg)*4

    def fix(pg, idx):
        d0, d1, pw, gr, gi = v(U(pg, 0, idx), 2), v(U(pg, 1, idx), 2), v(PW(pg, idx), 2), v(G(pg), 2), v(G(pg)+2, 2)
        A(f"v_pk_fma_f32 {d0}, {pw}, {gr}, {d0} {bc_a}")
        A(f"v_pk_fma_f32 {d1}, {pw}, {gi}, {d1} {bc_a} {N0}")
        A(f"v_pk_fma_f32 {d0}, {pw}, {gi}, {d0} {bc_b} {N0}")
        A(f"v_pk_fma_f32 {d1}, {pw}, {gr}, {d1} {bc_b} {N0}")
        for c in range(2):
            A(f"v_cvt_pk_bf16_f32 v{PK(pg,c,idx)}, v{U(pg,c,idx)}, v{U(pg,c,idx)+1}")

    def tr(u):
        for c in range(2):
            for X in range(2):
                for pg in range(2):
                    A(f"{M16} {v(D(c,X,pg),4)}, {v(PK(pg,c,4*u),4)}, {v(248+4*X,4)}, 0")

    def st(u):
        for c in range(2):
            for X in range(2):
                q = 176 + 16*u + (c*2 + X)*4
                A(f"s_add_u32 s{T1}, s{HB}, {X*TBS + c*4096}")
                for jj in range(4):
                    A(f"v_cvt_pk_bf16_f32 v{q+jj}, v{D(c,X,0)+2*jj}, v{D(c,X,0)+2*jj+1}")
                vm.op(f"buffer_store_dwordx4 {v(q,4)}, v10, {r4(S1)}, s{T1} offen offset:{u*256} sc1", "hst")
                A(f"ds_write_b128 v16, {v(q,4)} offset:{X*8192 + c*4096 + u*256}")
    for u in range(2):
        for idx in range(4*u, 4*u + 4):
            for pg in range(2):
                fix(pg, idx)
            if u == 1 and idx == 5:
                st(0)
                trace(A, 0, 12)
        tr(u)
        if u == 0:
            trace(A, 0, 11)
    st(1)
    mark(A, 4)
    trace(A, 0, 13)
    NK = 64

    def arrive(val):
        A(f"v_mov_b32 v14, {val}")
        A("s_mov_b64 exec, 1\nds_write_b32 v13, v14\ns_mov_b64 exec, -1")

    def check(val, off=0, first=False):
        l, d = uid("ck"), uid("ckd")
        if first:
            A(f"ds_read_b128 v[8:11], v12 offset:{off}\ns_waitcnt lgkmcnt(0)")
        A.label(l)
        A("v_min3_u32 v15, v8, v9, v10\nv_min_u32 v15, v15, v11")
        A(f"v_readfirstlane_b32 s{T0}, v15")
        A(f"s_cmp_ge_u32 s{T0}, {val}")
        A(f"s_cbranch_scc1 {d}")
        A(f"ds_read_b128 v[8:11], v12 offset:{off}\ns_waitcnt lgkmcnt(0)")
        A(f"s_branch {l}")
        A.label(d)

    HM, JS = 38, 39

    def hpoll(n):
        l, d = uid("hp"), uid("hpd")
        A(f"s_mov_b32 s{CNT}, 0")
        A.label(l)
        A(f"global_load_dword v3, v18, {sp(WS)} sc1\ns_waitcnt vmcnt(0)")
        A(f"v_cmp_eq_u32 vcc, s{NONCE}, v3\ns_nop 1\ns_and_b32 s{HM}, vcc_lo, 0xffff")
        A(f"s_lshl_b32 s3, s{HM}, 16\ns_or_b32 s{HM}, s{HM}, s3\ns_lshr_b32 s{HM}, s{HM}, s{JS}")
        A(f"s_lshr_b32 s3, s{HM}, 1\ns_and_b32 s{HM}, s{HM}, s3")
        A(f"s_bitcmp1_b32 s{HM}, {2*n}\ns_cbranch_scc1 {d}")
        if SLP_H:
            A(f"s_sleep {SLP_H}")
        A(f"s_add_u32 s{CNT}, s{CNT}, 1\ns_cmp_lt_u32 s{CNT}, {SPIN_MAX}\ns_cbranch_scc1 {l}")
        A.label(d)

    def hload(s_):
        if PBG and s_ % 8 == 0 and s_ >= 16:
            ok = uid("hok")
            A(f"s_bitcmp1_b32 s{HM}, {2*(s_ >> 3)}\ns_cbranch_scc1 {ok}")
            hpoll(s_ >> 3)
            A.label(ok)
        if s_ % 4 == 0:
            A(f"s_add_u32 s{SH}, s{RH}, {(s_ >> 2)*4096}\ns_and_b32 s{SH}, s{SH}, 0xffff")
        vm.op(f"buffer_load_dwordx4 {v(HR(s_),4)}, v2, {r4(S0)}, s{SH} offen offset:{(s_ & 3)*1024} sc1", ("h", s_))

    def rd2(s_, nts):
        g, ks = s_ >> 2, s_ & 3
        slot = g % R
        base = 20 if slot < 4 else 24
        for nt in nts:
            A(f"ds_read_b128 {v(CF(s_ & 1, nt),4)}, v{base+ks} offset:{(slot & 3)*16384 + nt*4096}")

    def mf(s_, nt):
        c = "0" if s_ == 0 else v(ACC2(nt), 16)
        if E_("HACK16", 0) & 2:
            for z in range(2):
                d = ACC2(nt) + 8*(s_ & 1) + 4*z
                A(f"v_mfma_f32_16x16x32_bf16 {v(d,4)}, {v(HR(s_),4)}, {v(CF(s_ & 1, nt),4)}, {'0' if s_ < 2 else v(d,4)}")
        else:
            A(f"{MF} {v(ACC2(nt),16)}, {v(HR(s_),4)}, {v(CF(s_ & 1, nt),4)}, {c}")
    A("v_mov_b32 v2, v11")
    A(f"s_lshl_b32 s{T0}, s{TI}, 2\ns_add_u32 s{T0}, s{T0}, s{WAVE}\ns_mul_i32 s{T0}, s{T0}, {TBS}\ns_lshl_b32 s{T1}, s{PG}, 16\ns_add_u32 s{T0}, s{T0}, s{T1}")
    srd(A, S0, WS, T0, WS_HT, 0x10000)
    if not OWNFIRST and C23:
        cdma(2, range(4))
        cdma(3, range(4))
    A(f"s_waitcnt vmcnt({vm.wait_for(('c', 1), emit=False)}) lgkmcnt(0)")
    trace(A, 0, 14)
    arrive(3)
    check(3, first=True)
    trace(A, 0, 15)
    for s_ in range(8):
        A(f"ds_read_b128 {v(HR(s_),4)}, v17 offset:{s_*1024}")
    hn = [8]

    def pause():
        A(f"s_lshl_b32 s{T0}, s{WP}, 3\nv_lshl_add_u32 v17, v5, 4, s{T0}")
        A("v_lshlrev_b32 v28, 11, v17\nv_lshl_add_u32 v28, v6, 2, v28")
        A("v_lshlrev_b32 v29, 13, v17\nv_lshl_add_u32 v29, v6, 3, v29")
        A(f"v_lshlrev_b32 v30, 2, v6\nv_mov_b32 v15, s{NONCE}")
        a, b = uid("rs"), uid("rd")
        trace(A, 0, 16)
        vm.wait_for("hst")
        trace(A, 0, 17)
        A(f"s_mov_b64 exec, 1\ns_cmp_eq_u32 s{LOCAL}, 0\ns_cbranch_scc1 {a}")
        A(f"global_store_dword v19, v15, {sp(WS)}\ns_branch {b}")
        A.label(a)
        A(f"global_store_dword v19, v15, {sp(WS)} sc1")
        A.label(b)
        A("s_mov_b64 exec, -1")
        if not E_("GM", 0):
            mark(A, 5)
        check(4, first=True)
        if not NOAUX:
            check(LIMG_FREE, 16, first=True)
        if CTOUCH == 5:
            xtouch(1)
        if CTOUCH == 8:
            ctouch()
        for gg in range(4 if C23 else 2, CPOLL):
            cdma(gg, range(4))
        trace(A, 0, 18)
        if PBG:
            A(f"s_and_b32 s{JS}, s{TJ}, 7\ns_lshl_b32 s{JS}, s{JS}, 1")
            hpoll(1)
        else:
            wait_cnt(A, 18, 8, SLP_H)
        trace(A, 0, 19)
        vm.issued = []
        if not E_("GM", 0):
            mark(A, 6)
        if OWNFIRST:
            arrive(5)
        gg = max(4, CPOLL)
        while hn[0] < 8 + HPRE:
            hload(hn[0])
            hn[0] += 1
            if hn[0] % 4 == 0 and gg < CPRE:
                cdma(gg, range(4))
                gg += 1
        assert gg == CPRE
        if OWNFIRST:
            check(5, first=True)
        trace(A, 0, 20)
        rd2(8 if OWNFIRST else 0, range(4))

    def flag_store():
        a, b = uid("rs"), uid("rd")
        A(f"s_mov_b64 exec, 1\ns_cmp_eq_u32 s{LOCAL}, 0\ns_cbranch_scc1 {a}")
        A(f"global_store_dword v19, v15, {sp(WS)}\ns_branch {b}")
        A.label(a)
        vm.op(f"global_store_dword v19, v15, {sp(WS)} sc1", "flag")
        A.label(b)
        A("s_mov_b64 exec, -1")
    if HTAG:
        A("s_waitcnt lgkmcnt(0)")
        arrive(4)
        A(f"s_lshl_b32 s{T0}, s{WP}, 3\nv_lshl_add_u32 v17, v5, 4, s{T0}")
        A("v_lshlrev_b32 v28, 11, v17\nv_lshl_add_u32 v28, v6, 2, v28")
        A("v_lshlrev_b32 v29, 13, v17\nv_lshl_add_u32 v29, v6, 3, v29")
        A(f"v_lshlrev_b32 v30, 2, v6\nv_mov_b32 v15, s{NONCE}")
        if HTAG == 1:
            wl, wd = uid("hw"), uid("hwd")
            A(f"s_add_u32 s{T1}, s{RH}, 8192\ns_and_b32 s{T1}, s{T1}, 0xffff\ns_mov_b32 s{CNT}, 0\ns_waitcnt lgkmcnt(0)")
            A.label(wl)
            A(f"s_load_dwordx4 s[4:7], {sp(S0)}, s{T1} offset:{4096 + 1024 + 1008} glc\ns_load_dwordx4 s[8:11], {sp(S0)}, s{T1} offset:{4096 + 3072 + 1008} glc")
            A(f"s_add_u32 s{CNT}, s{CNT}, 1\ns_waitcnt lgkmcnt(0)")
            for q in range(2):
                A(f"s_xor_b64 s[{4+2*q}:{5+2*q}], s[{4+2*q}:{5+2*q}], s[{HT_+2*q}:{HT_+2*q+1}]\ns_xor_b64 s[{8+2*q}:{9+2*q}], s[{8+2*q}:{9+2*q}], s[{HT_+2*q}:{HT_+2*q+1}]")
            A("s_or_b64 s[4:5], s[4:5], s[6:7]\ns_or_b64 s[8:9], s[8:9], s[10:11]\ns_or_b64 s[4:5], s[4:5], s[8:9]\ns_or_b32 s4, s4, s5\ns_and_b32 s4, s4, 0x10001")
            A(f"s_cbranch_scc0 {wd}\ns_cmp_lt_u32 s{CNT}, {SPIN_MAX}\ns_cbranch_scc1 {wl}")
            A.label(wd)
        if HTAG == 3:
            vm.wait_for('hst')
            flag_store()
        if HTAG == 2 and HDLY:
            A(f"s_waitcnt vmcnt({vm.wait_for('hst', emit=False) + HDLY})")
        mark(A, 6)
        for s_ in range(8, 16):
            hload(s_)
        hn[0] = 16
        if HTAG != 3:
            vm.wait_for("hst")
            flag_store()
        if not E_("GM", 0):
            mark(A, 5)
        check(4, first=True)
        if not NOAUX:
            check(LIMG_FREE, 16, first=True)
        for gg in range(4, CPOLL):
            cdma(gg, range(4))
        rd2(0, range(4))
    elif OWNFIRST:
        rd2(0, range(4))
        A("s_waitcnt lgkmcnt(4)")
        arrive(4)
    else:
        A("s_waitcnt lgkmcnt(0)")
        arrive(4)
        pause()
    def xload(e, st):
        q, r = e >> 2, e & 3
        A(f"s_mov_b32 s{st}, {(32*(q & 1) + 4*(q >> 1) + (r & 2))*2048}")
        vm.op(f"buffer_load_dword v{XR+e}, v28, {r4(S4)}, s{st} offen offset:{(r & 1)*2048}", ("x", e))
    have_c = lambda g: any(t == ("c", g) for t in vm.issued)
    for s_ in range(NK):
        g, ks = s_ >> 2, s_ & 3
        nxt = s_ + 1
        more = nxt < NK and not (nxt == 8 and OWNFIRST)
        ws = []
        if s_ >= 8:
            ws.append(vm.wait_for(("h", s_), emit=False))
        arr = (s_ + 4) % 8 == 0 and s_ + 4 < NK and (s_ >= 8 or not OWNFIRST)
        if arr:
            gl = ((s_ + 4) >> 2) + 1
            if have_c(gl):
                ws.append(vm.wait_for(("c", gl), emit=False))
        wv = f"vmcnt({min(ws)}) " if ws else ""
        newgrp = more and nxt % 8 == 0
        full = newgrp or not more or s_ == 0
        nc = 2 if s_ >= NK - NDEF else 4
        nn = (2 if nxt >= NK - NDEF else 4) if more else 0
        if full:
            A(f"s_waitcnt {wv}lgkmcnt(0)")
            if newgrp:
                check((nxt >> 3) + 4)
                trace(A, 0, 20 + (nxt >> 3))
                if nxt == 32 and not E_('GM', 0):
                    mark(A, 7)
        else:
            A(f"s_waitcnt {wv}lgkmcnt({nc-1})")
        extra = 0
        if arr:
            arrive(((s_ + 4) >> 3) + 4)
            extra = 1
        issued_n = 0
        for nt in range(nc):
            if nt and not full:
                A(f"s_waitcnt lgkmcnt({nc - 1 - nt + extra + issued_n})")
            mf(s_, nt)
            if nt < 2 and issued_n < nn and (nt == 0 or nn == 4):
                rd2(nxt, [issued_n, issued_n + 1])
                issued_n += 2
            if nt == nc - 2:
                if s_ < 8 and OWNFIRST:
                    if C23:
                        cdma(2 + g, [ks])
                elif CPRE <= g + CD < NK//4:
                    cdma(g + CD, [ks])
        assert issued_n == nn
        if HTAG:
            if s_ < 4*(CPRE - CPOLL):
                cdma(CPOLL + g, [ks])
            if s_ == 6:
                tl, td = uid("ht"), uid("htd")
                A(f"s_mov_b32 s{CNT}, 0")
                vm.wait_for(("h", 15))
                A.label(tl)
                A("v_mov_b32 v4, 0")
                for r in range(32):
                    A(f"v_bitop3_b32 v4, v4, v{HR(8)+r}, s{HT_+(r & 3)} bitop3:0xf6")
                A(f"v_and_b32 v4, 0x10001, v4\nv_cmp_ne_u32 vcc, 0, v4\ns_cbranch_vccz {td}")
                A(f"s_add_u32 s{CNT}, s{CNT}, 1\ns_cmp_ge_u32 s{CNT}, {SPIN_MAX}\ns_cbranch_scc1 {td}")
                keep = list(vm.issued)
                for s2_ in range(8, 16):
                    hload(s2_)
                vm.issued = keep
                A(f"s_waitcnt vmcnt(0)\ns_branch {tl}")
                A.label(td)
                if STAMP == 1:
                    A(f"s_add_u32 s72, s70, s{CNT}")
            if s_ == HFI:
                vm.op(f"global_load_dword v16, v18, {sp(WS)} sc1", "fp")
            if s_ == HFC:
                fd = uid("hf")
                vm.wait_for("fp")
                A(f"v_cmp_ne_u32 vcc, s{NONCE}, v16\ns_cbranch_vccz {fd}")
                wait_cnt(A, 18, 16, 1)
                A.label(fd)
        if (s_ >= (HFC if HTAG else 8) or not (OWNFIRST or HTAG)) and hn[0] < NK:
            for _ in range(3 if HTAG else 2):
                if hn[0] < NK and hn[0] <= s_ + HD:
                    hload(hn[0])
                    hn[0] += 1
        if (s_ + 2) % 8 == 0 and s_ + 2 < NK and (s_ >= 8 or not OWNFIRST):
            A("ds_read_b128 v[8:11], v12")
        if XLD == 0:
            if s_ == NK - 18:
                vm.op(f"global_load_dword v31, v30, {sp(DSK)}", "dsk")
            if NK - 17 <= s_ < NK - 1:
                xload(s_ - (NK - 17), T0)
        if XLD == 2 and s_ == XLS:
            vm.op(f"global_load_dword v31, v30, {sp(DSK)}", "dsk")
            for e in range(16):
                xload(e, T0)
        if s_ == 7 and OWNFIRST:
            pause()
    mark(A, 8)
    trace(A, 0, 28)
    if XLD == 1:
        vm.op(f"global_load_dword v31, v30, {sp(DSK)}", "dsk")
        for e in range(16):
            xload(e, T0)
    TG = T0
    A(f"s_mul_i32 s{TG}, s{NONCE}, 0x9e3779b1\ns_and_b32 s{TG}, s{TG}, 0xbfff0000\ns_or_b32 s{TG}, s{TG}, 0x20000000")
    A(f"s_sub_u32 s{T1}, s{NONCE}, 1\ns_xor_b32 s{T1}, s{T1}, s{TG}\ns_cmp_lt_u32 s{T1}, 0x10000\ns_cselect_b32 s{T1}, 0x10000, 0\ns_xor_b32 s{TG}, s{TG}, s{T1}")
    if INOUT:
        A(f"s_lshl_b32 s{T4}, s{PG}, 9\ns_sub_i32 s{T4}, 256, s{T4}\ns_ashr_i32 s{T5}, s{T4}, 31")
        A(f"s_add_u32 s{S2}, s{OUT}, s{T4}\ns_addc_u32 s{S2+1}, s{OUT+1}, s{T5}\ns_sub_u32 s{S2+2}, s{LDT}, s{T4}\ns_mov_b32 s{S2+3}, 0x20000")
        A(f"s_mov_b32 s{S3}, s{OUT}\ns_mov_b32 s{S3+1}, s{OUT+1}\ns_mov_b32 s{S3+2}, s{LDT}\ns_mov_b32 s{S3+3}, 0x20000")
        A(f"s_lshl_b32 s{T4}, s{WP}, 16\nv_lshrrev_b32 v3, 4, v1\nv_lshlrev_b32 v3, 13, v3\nv_and_b32 v4, 15, v1\nv_lshl_add_u32 v3, v4, 4, v3\nv_add_u32 v3, s{T4}, v3")
        xad = lambda gq: (f"s_mov_b32 s{T4}, {(16*(gq >> 1) + 4*(gq & 1))*8192}\n", f"v3, SRD, s{T4} offen")
    else:
        A(f"s_lshl_b32 s{T4}, s{TI}, 4\ns_add_u32 s{T4}, s{T4}, s{TJ}\ns_lshl_b32 s{T4}, s{T4}, 2\ns_add_u32 s{T4}, s{T4}, s{WAVE}\ns_lshl_b32 s{T4}, s{T4}, 13")
        srd(A, S2, WS, T4, WS_XB, 0x2000)
        A(f"s_xor_b32 s{T4}, s{T4}, {8 << 15}")
        srd(A, S3, WS, T4, WS_XB, 0x2000)
        A(f"s_movk_i32 s{T4}, 0x1000")
        xad = lambda gq: ("", f"v2, SRD, {'0' if gq < 4 else f's{T4}'} offen offset:{(gq & 3)*1024}")
    val = lambda n: ACC2(n & 1) + (n >> 1)
    TXR, RX = [96, 100, 244, 248, 252], 180
    for gq in range(5):
        for c in range(4):
            n = 7*gq + 2*c
            lo = f"v{val(min(n, 31))}"
            hi = f"s{TG}" if c == 3 else f"v{val(min(n+1, 31))}"
            A(f"v_cvt_pk_bf16_f32 v{TXR[gq]+c}, {lo}, {hi}")
        A(f"{xad(gq)[0]}buffer_store_dwordx4 {v(TXR[gq],4)}, {xad(gq)[1].replace('SRD', r4(S2))} sc1")

    if XLD == 3:
        vm.op(f"global_load_dword v31, v30, {sp(DSK)}", "dsk")
        for e in range(16):
            xload(e, T5)
    if A3S == 12:
        arrive(12)

    def rx():
        for gq in range(5):
            A(f"{xad(gq)[0]}buffer_load_dwordx4 {v(RX+4*gq,4)}, {xad(gq)[1].replace('SRD', r4(S3))} sc1")
    if NDEF:
        rd2(NK - NDEF, [2, 3])
        for s_ in range(NK - NDEF, NK):
            if s_ + 1 < NK:
                rd2(s_ + 1, [2, 3])
                A("s_waitcnt lgkmcnt(2)")
            else:
                A("s_waitcnt lgkmcnt(0)")
            mf(s_, 2)
            mf(s_, 3)
    if A3S == 13:
        arrive(13)
    trace(A, 0, 29)
    if E_("XM", 0):
        mark(A, 3)
    A(f"s_waitcnt vmcnt({0 if XLD == 3 else 5})")
    if E_("XM", 0):
        mark(A, 5)
    trace(A, 0, 30)
    A("v_lshlrev_b32 v8, 16, v31\nv_and_b32 v9, 0xffff0000, v31")
    YO = lambda e: 148 + 2*e
    for e in range(16):
        t = YO(e)
        A(f"v_lshlrev_b32 v{t}, 16, v{XR+e}\nv_and_b32 v{t+1}, 0xffff0000, v{XR+e}")
        A(f"v_pk_mul_f32 {v(t,2)}, {v(t,2)}, v[8:9]")
        A(f"v_cvt_pk_bf16_f32 v10, v{t}, v{t+1}")
        A(f"v_lshlrev_b32 v{t}, 16, v10\nv_and_b32 v{t+1}, 0xffff0000, v10")
        A(f"v_add_f32 v{t}, v{t}, v{ACC2(2)+e}\nv_add_f32 v{t+1}, v{t+1}, v{ACC2(3)+e}")
    A(f"s_mov_b32 s{S1}, s{OUT}\ns_mov_b32 s{S1+1}, s{OUT+1}\ns_mov_b32 s{S1+2}, s{LDT}\ns_mov_b32 s{S1+3}, 0x20000")
    xl, xd = uid("xl"), uid("xd")
    A(f"s_mov_b32 s{CNT}, 0")
    if XPOLL:
        assert not INOUT
        wl, wd = uid("xw"), uid("xwd")
        A.label(wl)
        A(f"s_load_dword s{T1}, {sp(S3)}, {0x1000 + 63*16 + 12} glc\ns_add_u32 s{CNT}, s{CNT}, 1\ns_waitcnt lgkmcnt(0)")
        A(f"s_xor_b32 s{T1}, s{T1}, s{TG}\ns_cmp_lt_u32 s{T1}, 0x10000\ns_cbranch_scc1 {wd}")
        A(f"s_cmp_lt_u32 s{CNT}, {SPIN_MAX}\ns_cbranch_scc1 {wl}")
        A.label(wd)
        A(f"s_mov_b32 s{CNT}, 0")
    trace(A, 0, 31)
    if XPOLL != 2:
        A(f"s_waitcnt vmcnt({E_('XW', 0)})")
    if E_("XM", 0):
        mark(A, 6)
    rx()
    A.label(xl)
    A("v_mov_b32 v10, 0")
    for gq in range(5):
        A(f"s_waitcnt vmcnt({4-gq})")
        A(f"v_bitop3_b32 v10, v10, v{RX+4*gq+3}, s{TG} bitop3:0xf6")
    A("v_cmp_lt_u32 vcc, 0xffff, v10")
    A(f"s_cbranch_vccz {xd}")
    A(f"s_add_u32 s{CNT}, s{CNT}, 1\ns_cmp_ge_u32 s{CNT}, {SPIN_MAX}")
    A(f"s_cbranch_scc1 {xd}")
    rx()
    A(f"s_branch {xl}")
    A.label(xd)
    trace(A, 0, 32)
    if STAMP:
        A(f"s_add_u32 s74, s70, s{CNT}\ns_lshl_b32 s{CNT}, s{LOCAL}, 8\ns_add_u32 s74, s74, s{CNT}")
        mark(A, 4)
    for e in range(16):
        q, r = e >> 2, e & 3
        t = YO(e)
        for nt in range(2):
            n = 2*e + nt
            src = RX + 4*(n // 7) + (n % 7)//2
            if (n % 7) % 2 == 0:
                A(f"v_lshlrev_b32 v{10+nt}, 16, v{src}")
            else:
                A(f"v_and_b32 v{10+nt}, 0xffff0000, v{src}")
        A(f"v_pk_add_f32 {v(t,2)}, {v(t,2)}, v[10:11]")
        A(f"s_mov_b32 s{T4}, {(32*(q & 1) + 4*(q >> 1) + r)*8192}")
        A(f"buffer_store_dwordx2 {v(t,2)}, v29, {r4(S1)}, s{T4} offen{OSTB}")
    trace(A, 0, 33)
    if TRACE:
        A("s_waitcnt vmcnt(0)")
    trace(A, 0, 34)
    trace_dump(A, 0, WAVE, 1)
    stamp_end(A, kidx, WAVE)


def gen_fused(A, name, kidx):
    KNAME_[0] = name
    A(f".globl {name}\n.p2align 8\n.type {name},@function")
    A.label(name)
    A("s_cmp_ge_u32 s2, 256")
    A(f"s_cbranch_scc1 L_{name}_end")
    A("s_load_dwordx16 s[4:19], s[0:1], 0")
    A("s_load_dwordx8 s[20:27], s[0:1], 64")
    A("s_load_dwordx4 s[28:31], s[0:1], 96")
    A("s_load_dwordx2 s[32:33], s[0:1], 112")
    stamp_begin(A)
    A("v_lshrrev_b32 v2, 6, v0\nv_and_b32 v1, 63, v0")
    A(f"v_readfirstlane_b32 s{WAVE}, v2")
    A(f"s_and_b32 s{T0}, s2, 7\ns_lshr_b32 s{T1}, s2, 3")
    if TIMAP:
        A(f"s_lshr_b32 s{TI}, s{T0}, 1\ns_lshr_b32 s{T2}, s{T1}, 3\ns_lshl_b32 s{T2}, s{T2}, 2\ns_add_u32 s{TI}, s{TI}, s{T2}")
    else:
        A(f"s_lshr_b32 s{TI}, s{T0}, 1\ns_lshl_b32 s{TI}, s{TI}, 2\ns_lshr_b32 s{T2}, s{T1}, 3\ns_add_u32 s{TI}, s{TI}, s{T2}")
    A(f"s_and_b32 s{TJ}, s{T0}, 1\ns_lshl_b32 s{TJ}, s{TJ}, 3\ns_and_b32 s{T2}, s{T1}, 7\ns_add_u32 s{TJ}, s{TJ}, s{T2}")
    if SWAP:
        A(f"s_xor_b32 s{WAVE}, s{WAVE}, 4")
    A(f"s_cmp_ge_u32 s{WAVE}, 4")
    A(f"s_cbranch_scc0 L_{name}_gemm")
    aux_waves(A, name, kidx)
    A.label(f"L_{name}_gemm")
    gemm_waves(A, name, kidx)
    A.label(f"L_{name}_end")
    A("s_endpgm")
    return kdesc(name, 256)
```

```python
import os
from asmlib import *
from common import *

E_ = lambda k, d: int(os.environ.get(k, str(d)))
XO, NP, RI, RJ = E_("XO", 0), E_("NP", 1), E_("RI", 1), E_("RJ", 1)
XO2, NP2 = E_("XO2", 2), E_("NP2", 1)
PRO = E_("PRO", 2)
HD = E_("HD", 24)
CD = E_("CD", 4)
NOAUX = E_("NOAUX", 0)
CODEPF = E_("CODEPF", 1)
NS = E_('NS', 3)
LASW = E_('LASW', 99)
R = 7
LA = E_('LA', 2)
FORCE_REMOTE = E_('FORCE_REMOTE', 0)
MF = "v_mfma_f32_32x32x16_bf16"
N0 = "neg_lo:[1,0,0] neg_hi:[1,0,0]"

AX, WR, WI, BX, LRE, LIM, BRE, BIM, CRE, CIM, LDT, DSK, OUT, DBG, WS = 4, 6, 8, 10, 12, 14, 16, 18, 20, 22, 24, 26, 28, 30, 32
WAVE, TI, TJ, NONCE, TBL = 34, 35, 36, 37, 38
S0, S1, S2, S3, S4 = 40, 44, 48, 52, 56
T0, T1, T2, T3, T4, T5, T6, T7, T8, T9 = range(60, 70)
MSK, CNT, LOCAL, PG = 90, 92, 100, 101
L_XCH = 122880
L_SYNC = 126976
L_AX = 131072
L_W = 147456
WS_CNT = 0x1000
CNT_A, CNT_B, CNT_W = WS_CNT, WS_CNT + 16*128, WS_CNT + 32*128
FLG_A, FLG_B, FLG_W = 0x84000, 0x86000, 0x88000
FLG_X = 0x8000
FLG_H = 0x60000
CPRO1 = E_("CPRO1", 2)
CPRO2 = E_("CPRO2", 2)
CTOUCH = E_("CTOUCH", 4)
TBS = 131072 + E_("TBPAD", 0)
FTOUCH = E_("FTOUCH", 1)
XTOUCH = E_("XTOUCH", 0)
NREP = E_("NREP", 32)
NDEF = E_("NDEF", 12)
HTAG = 0
HDLY = E_("HDLY", 0)
HFI, HFC = E_("HFI", 7), E_("HFC", 10)
XPOLL = E_("XPOLL", 2)
OWNFIRST = E_("OWNFIRST", 1) and not HTAG
C01, C23 = E_("C01", 1), E_("C23", 1)
INOUT = E_("INOUT", 0)
KS_ = 32768 if INOUT else 8192
ISH = 16384 if INOUT else 4096
CTK, CPOLL, CPRE, HPRE = E_("CTK", 14), E_("CPOLL", 6), E_("CPRE", 7), E_("HPRE", 8)
HLOC, HLK = E_("HLOC", 0), E_("HLK", 13)
LBAT = E_("LBAT", 16)
XBF = E_("XBF", 1)
SLP_H, SLP_A = E_("SLP_H", 4), E_("SLP_A", 10)
NT = " nt" if E_("NT", 1) else ""
NTX = " nt"
OST = {0: "", 1: " nt", 2: " sc1", 3: " sc1 nt", 4: " sc0 sc1 nt", 5: " sc0 nt"}[E_("OST", 1)]
NTK = E_("NTK", 0)
OSTB = {0: "", 1: " nt", 2: " sc1", 3: " sc1 nt", 4: " sc0 sc1 nt", 5: " sc0 nt"}[E_("OSTB", 1)]
NTC = " nt" if E_("NTC", 0) else ""


def sp(a):
    return f"s[{a}:{a+1}]"


def srd(A, d, base, soff=None, const=0, size=None, size_s=None):
    if soff is None and const == 0:
        A(f"s_mov_b32 s{d}, s{base}\ns_mov_b32 s{d+1}, s{base+1}")
    else:
        if soff is not None and const:
            A(f"s_add_u32 s{d+2}, s{soff}, {const}")
            o = f"s{d+2}"
        elif soff is not None:
            o = f"s{soff}"
        else:
            o = str(const)
        A(f"s_add_u32 s{d}, s{base}, {o}\ns_addc_u32 s{d+1}, s{base+1}, 0")
    if size_s is not None:
        A(f"s_sub_u32 s{d+2}, {size}, s{size_s}")
    else:
        A(f"s_mov_b32 s{d+2}, {size}")
    A(f"s_mov_b32 s{d+3}, 0x20000")


def r4(d):
    return f"s[{d}:{d+3}]"


_u = [0]


def uid(p):
    _u[0] += 1
    return f"L_{p}{_u[0]}"


def get_nonce(A, vt):
    l, d = uid("n"), uid("nd")
    A(f"v_mov_b32 v{vt}, 0")
    A.label(l)
    A(f"global_load_dword v{vt+1}, v{vt}, {sp(DBG)} sc1")
    A("s_waitcnt vmcnt(0)")
    A(f"v_readfirstlane_b32 s{NONCE}, v{vt+1}")
    A(f"s_cmp_eq_u32 s{NONCE}, 0")
    A(f"s_cbranch_scc1 {l}")


def signal(A, sshard, cnt, flg, expect, vt):
    d = uid("sg")
    A(f"s_lshl_b32 s{CNT}, s{sshard}, 7\ns_add_u32 s{CNT}, s{CNT}, {cnt}")
    A(f"v_mov_b32 v{vt}, s{CNT}\nv_mov_b32 v{vt+1}, 1")
    A("s_waitcnt vmcnt(0)")
    A("s_mov_b64 exec, 1")
    A(f"global_atomic_add v{vt+2}, v{vt}, v{vt+1}, {sp(WS)} sc0 sc1")
    A(f"v_add_u32 v{vt}, {flg - cnt}, v{vt}\nv_mov_b32 v{vt+1}, s{NONCE}")
    A("s_waitcnt vmcnt(0)")
    A(f"v_readfirstlane_b32 s{CNT}, v{vt+2}")
    A(f"s_add_u32 s{CNT}, s{CNT}, 1\ns_cmp_lg_u32 s{CNT}, {expect}")
    A(f"s_cbranch_scc1 {d}")
    A(f"global_store_dword v{vt}, v{vt+1}, {sp(WS)} sc1")
    A.label(d)
    A("s_mov_b64 exec, -1")


def set_flag(A, soff, vt):
    A(f"v_mov_b32 v{vt}, s{soff}\nv_mov_b32 v{vt+1}, s{NONCE}")
    A("s_waitcnt vmcnt(0)")
    A("s_mov_b64 exec, 1")
    A(f"global_store_dword v{vt}, v{vt+1}, {sp(WS)} sc1")
    A("s_mov_b64 exec, -1")


def wait_cnt(A, vaddr, vt, sleep):
    l, d = uid("w"), uid("wd")
    A(f"s_mov_b32 s{CNT}, 0")
    A.label(l)
    A(f"global_load_dword v{vt}, v{vaddr}, {sp(WS)} sc1")
    A("s_waitcnt vmcnt(0)")
    A(f"v_cmp_ne_u32 vcc, s{NONCE}, v{vt}")
    A(f"s_cbranch_vccz {d}")
    if sleep:
        A(f"s_sleep {sleep}")
    A(f"s_add_u32 s{CNT}, s{CNT}, 1\ns_cmp_lt_u32 s{CNT}, {SPIN_MAX}")
    A(f"s_cbranch_scc1 {l}")
    A.label(d)


F, T = 192, 224


import struct as _st


def fl(x):
    return hex(_st.unpack("<I", _st.pack("<f", x))[0])


def lane_float(A, vn, vh, t):
    A(f"v_and_b32 v{t}, 31, v1\nv_cvt_f32_u32 v{t}, v{t}\nv_lshrrev_b32 v{t+1}, 5, v1\nv_lshlrev_b32 v{t+1}, 2, v{t+1}\nv_cvt_f32_u32 v{t+1}, v{t+1}")


def make_F(A, t, F=None):
    F = F or globals()["F"]
    lane_float(A, None, None, t)
    A(f"v_mul_f32 v{t+1}, v{t}, v{t+1}\nv_mul_f32 v{t+1}, {fl(1/32)}, v{t+1}")
    for i in range(16):
        c = 8*(i >> 2) + (i & 3)
        a = t + 2 + 3*(i & 1)
        A(f"v_fmamk_f32 v{a}, v{t}, {fl(c/32)}, v{t+1}\nv_fract_f32 v{a}, v{a}")
        A(f"v_cos_f32 v{a+1}, v{a}\nv_sin_f32 v{a+2}, v{a}")
        A(f"v_cvt_pk_bf16_f32 v{F+i}, v{a+1}, v{a+2}\nv_cvt_pk_bf16_f32 v{F+16+i}, -v{a+2}, v{a+1}")


def make_T(A, dst, t, half):
    lane_float(A, None, None, t)
    if not half:
        A(f"v_mul_f32 v{t+1}, v{t}, v{t+1}\nv_mul_f32 v{t+1}, {fl(1/1024)}, v{t+1}")
    else:
        A(f"v_mul_f32 v{t}, {fl(1/2048)}, v{t}\nv_fmamk_f32 v{t+1}, v{t+1}, {fl(1/64)}, v{t}")
    for i in range(16):
        c = 8*(i >> 2) + (i & 3)
        a = t + 2 + (i & 1)
        if not half:
            A(f"v_fmamk_f32 v{a}, v{t}, {fl(c/1024)}, v{t+1}")
        else:
            A(f"v_add_f32 v{a}, {fl(c/64)}, v{t+1}")
        A(f"v_cos_f32 v{dst+i}, v{a}\nv_sin_f32 v{dst+16+i}, -v{a}")


def stage1(A, src, D, stride=4):
    if "m" in os.environ.get("SK", ""):
        return
    for c in range(2):
        for s_ in range(4):
            cc = "0" if s_ == 0 else v(D+16*c, 16)
            A(f"{MF} {v(D+16*c,16)}, {v(src+stride*s_,4)}, {v(F+16*c+4*s_,4)}, {cc}")


def twiddle(A, D, dst, tmp, rng=range(16)):
    for i in (rng if "t" not in os.environ.get("SK", "") else []):
        re, im, tr, ti = D+i, D+16+i, T+i, T+16+i
        t = tmp + 2*(i & 3)
        A(f"v_mul_f32 v{t}, v{re}, v{tr}\nv_mul_f32 v{t+1}, v{re}, v{ti}")
        A(f"v_fma_f32 v{t}, -v{im}, v{ti}, v{t}\nv_fmac_f32 v{t+1}, v{im}, v{tr}")
        A(f"v_cvt_pk_bf16_f32 v{dst+i}, v{t}, v{t+1}")


def stage2(A, src, D):
    if "m" in os.environ.get("SK", ""):
        return
    for c in range(2):
        for s_ in range(4):
            cc = "0" if s_ == 0 else v(D+16*c, 16)
            A(f"{MF} {v(D+16*c,16)}, {v(F+16*c+4*s_,4)}, {v(src+4*s_,4)}, {cc}")


W_ = T6
NBW = 2048*513*2
SQ, SO, ST = 184, 185, 186
VA1, VA2, VA8, VLIN = 4, 5, 6, 7
_ph = [0]


def l_arrive(A):
    _ph[0] += 1
    A(f"v_mov_b32 v{ST+4}, {_ph[0]}")
    A(f"s_mov_b64 exec, 1\nds_write_b32 v{SO}, v{ST+4}\ns_mov_b64 exec, -1")
    return _ph[0]


def l_check(A, n, delta=0, slp=1):
    l, d = uid("lc"), uid("lcd")
    if delta:
        A(f"v_add_u32 v{ST+5}, {delta}, v{SQ}")
    A.label(l)
    A(f"ds_read_b128 {v(ST,4)}, v{ST+5 if delta else SQ}\ns_waitcnt lgkmcnt(0)")
    A(f"v_min3_u32 v{ST}, v{ST}, v{ST+1}, v{ST+2}\nv_min_u32 v{ST}, v{ST}, v{ST+3}")
    A(f"v_readfirstlane_b32 s{CNT}, v{ST}")
    A(f"s_cmp_ge_u32 s{CNT}, {n}")
    A(f"s_cbranch_scc1 {d}")
    A(f"s_sleep {slp}\ns_branch {l}")
    A.label(d)


def l_check_loose(A, n, delta):
    l = uid("ll")
    A(f"v_add_u32 v{ST+5}, {delta}, v{SQ}")
    for i in range(4):
        A(f"v_mov_b32 v{ST+i}, 0")
    A.label(l)
    A(f"ds_read_b128 {v(ST,4)}, v{ST+5}\ns_sleep 1")
    A(f"v_min3_u32 v{ST+4}, v{ST}, v{ST+1}, v{ST+2}\nv_min_u32 v{ST+4}, v{ST+4}, v{ST+3}")
    A(f"v_readfirstlane_b32 s{CNT}, v{ST+4}")
    A(f"s_cmp_lt_u32 s{CNT}, {n}")
    A(f"s_cbranch_scc1 {l}")


def l_sync(A):
    l_check(A, l_arrive(A))


def aux_setup_ax(A):
    srd(A, S2, WR, size=NBW)
    srd(A, S3, WI, size=NBW)
    A(f"s_and_b32 s{T0}, s2, 31\ns_lshr_b32 s{T1}, s2, 5\ns_lshl_b32 s{T1}, s{T1}, 7\ns_add_u32 s{T0}, s{T0}, s{T1}")
    A(f"s_lshl_b32 s{T1}, s{W_}, 5\ns_add_u32 s{T7}, s{T0}, s{T1}\ns_lshl_b32 s{T0}, s{T7}, 12")
    srd(A, AX, AX, T0, 0, 0x1000)
    A("v_lshlrev_b32 v2, 4, v1\nv_xor_b32 v3, 128, v2")
    A(f"s_lshl_b32 s{T8}, s{W_}, 12\ns_add_u32 s{T8}, s{T8}, {L_AX}")


def w_addr(A, W_):
    A(f"s_and_b32 s{T0}, s2, 7\ns_bfe_u32 s{T1}, s2, 0x10003\ns_bfe_u32 s{T2}, s2, 0x20004\ns_lshr_b32 s{T3}, s2, 6")
    A(f"s_lshr_b32 s{T4}, s{T0}, 1\ns_lshl_b32 s{T4}, s{T4}, 3\ns_lshl_b32 s{T5}, s{T1}, 2\ns_add_u32 s{T4}, s{T4}, s{T5}")
    A(f"s_and_b32 s{T5}, s{T0}, 1\ns_lshl_b32 s{T5}, s{T5}, 1\ns_add_u32 s{T4}, s{T4}, s{T5}\ns_lshl_b32 s{T4}, s{T4}, 5")
    A(f"s_lshl_b32 s{T5}, s{T2}, 3\ns_add_u32 s{T4}, s{T4}, s{T5}\ns_lshl_b32 s{T5}, s{W_}, 1\ns_add_u32 s{T4}, s{T4}, s{T5}\ns_mul_i32 s{T4}, s{T4}, 1026")
    A(f"s_lshl_b32 s{T5}, s{T3}, 8\ns_add_u32 s{T9}, s{T4}, s{T5}")
    A("v_bfe_u32 v8, v1, 4, 1\nv_mul_u32_u24 v8, 32832, v8")
    A(f"v_lshrrev_b32 v9, 5, v1\ns_mov_b32 s{T5}, 1050624\nv_mul_lo_u32 v9, s{T5}, v9\nv_add_u32 v8, v8, v9")
    A(f"v_and_b32 v9, 15, v1\ns_lshl_b32 s{T5}, s{W_}, 1\nv_xor_b32 v9, s{T5}, v9")
    A("v_lshl_add_u32 v18, v9, 4, v8\nv_xor_b32 v9, 1, v9\nv_lshl_add_u32 v19, v9, 4, v8\nv_add_u32 v19, 1026, v19")


def zw_addr(A):
    A(f"s_lshl_b32 s{T9}, s2, 2\ns_add_u32 s{T9}, s{T9}, s{W_}\ns_mul_i32 s{T9}, s{T9}, 1026")


def zw_issue(A, vm):
    for half in range(2):
        A(f"s_add_u32 s{CNT}, s{T9}, {half*1024*1026}")
        for arr in range(2):
            A(f"s_lshl_b32 s{T4}, s{W_}, 12\ns_add_u32 m0, s{T4}, {L_W + (half*2 + arr)*1024}")
            vm.op(f"buffer_load_dwordx4 v2, {r4(S2 if arr == 0 else S3)}, s{CNT} offen{NT} lds", "w")


ZR_, ZI_, ZS_ = 14, 15, 16


def zw_pre(A):
    A(f"s_lshl_b32 s{T4}, s{W_}, 8\ns_add_u32 s{T4}, s{T4}, {L_W}\nv_lshl_add_u32 v{ZR_}, v1, 2, s{T4}")
    A(f"v_bfe_u32 v8, v1, 1, 2\nv_lshlrev_b32 v8, 4, v8\nv_lshl_add_u32 v8, v1, 6, v8\nv_add_u32 v{ZI_}, s{T8}, v8")
    A(f"s_and_b32 s{T4}, s2, 6\ns_bfe_u32 s{T5}, s2, 0x10004\ns_or_b32 s{T4}, s{T4}, s{T5}")
    A(f"v_and_b32 v8, 7, v1\nv_xor_b32 v8, s{T4}, v8\nv_lshrrev_b32 v9, 3, v1")
    A(f"v_and_b32 v10, 3, v8\nv_lshlrev_b32 v11, 4, v10\nv_lshl_add_u32 v11, v9, 6, v11")
    A(f"v_bfe_u32 v{ZS_}, v9, 1, 1\nv_lshlrev_b32 v{ZS_}, 5, v{ZS_}\nv_xor_b32 v{ZS_}, v11, v{ZS_}")
    A(f"s_lshl_b32 s{T5}, s{W_}, 12\ns_add_u32 s{T5}, s{T5}, {L_IMG}\nv_add_u32 v{ZS_}, s{T5}, v{ZS_}")
    A(f"v_bfe_u32 v11, v9, 1, 2\nv_xor_b32 v11, v10, v11\nv_lshlrev_b32 v11, 4, v11\nv_lshl_add_u32 v11, v9, 6, v11\nv_add_u32 v11, s{T8}, v11")
    A(f"v_cmp_gt_u32 vcc, 4, v8\nv_cndmask_b32 v{ZS_}, v11, v{ZS_}, vcc")
    A(f"s_lshl_b32 s{T4}, s2, 15\ns_lshl_b32 s{T5}, s{W_}, 13\ns_add_u32 s{T4}, s{T4}, s{T5}")
    srd(A, S0, WS, T4, WS_ZW, 0x2000)


ZL = lambda u: 72 + 4*u if u < 4 else 120 + 4*(u - 4)


def zw_build(A):
    R_ = lambda t, half, arr: 104 + t*4 + half*2 + arr
    for t in range(4):
        for half in range(2):
            for arr in range(2):
                A(f"ds_read_b32 v{R_(t, half, arr)}, v{ZR_} offset:{(t*4 + half*2 + arr)*1024}")
    A(f"s_mov_b32 s{T4}, 0x05040100\ns_mov_b32 s{T5}, 0x07060302")
    A("s_waitcnt lgkmcnt(0)")
    for c in range(2):
        for tp in range(2):
            o = 120 + (2*c + tp)*4
            for tl in range(2):
                for half in range(2):
                    A(f"v_perm_b32 v{o + 2*tl + half}, v{R_(2*tp + tl, half, 1)}, v{R_(2*tp + tl, half, 0)}, s{T4 + c}")
            A(f"v_xor_b32 v8, {(2*c + tp) << 4}, v{ZI_}\nds_write_b128 v8, {v(o,4)}")
    A("s_waitcnt lgkmcnt(0)")
    for u in range(8):
        A(f"ds_read_b128 {v(ZL(u),4)}, v{ZS_} offset:{u*512}")


def zw_store(A, vm, us):
    for u in us:
        if u == 4:
            A(f"s_movk_i32 s{CNT}, 0x1000")
        if ("3" in SK and u < 4) or ("2" in SK and u >= 4):
            continue
        vm.op(f"buffer_store_dwordx4 {v(ZL(u),4)}, v2, {r4(S0)}, {'0' if u < 4 else f's{CNT}'} offen offset:{(u & 3)*1024} sc1", "zst" if u < 4 else "wst")


def w_sym_addr(A):
    A(f"s_bfe_u32 s{T4}, s2, 0x20005\ns_lshl_b32 s{T4}, s{T4}, 8\ns_bfe_u32 s{T5}, s2, 0x10004\ns_lshl_b32 s{T5}, s{T5}, 6\ns_add_u32 s{T4}, s{T4}, s{T5}")
    A(f"s_bfe_u32 s{T5}, s2, 0x10003\ns_lshl_b32 s{T5}, s{T5}, 7\ns_add_u32 s{T4}, s{T4}, s{T5}\ns_and_b32 s{T5}, s2, 7\ns_lshl_b32 s{T5}, s{T5}, 2\ns_add_u32 s{T4}, s{T4}, s{T5}")
    A(f"v_bfe_u32 v8, v1, 3, 2\nv_add_u32 v8, s{T4}, v8\nv_bfe_u32 v9, v1, 2, 1\nv_lshl_add_u32 v8, v9, 5, v8\nv_bfe_u32 v9, v1, 1, 1\nv_lshl_add_u32 v8, v9, 10, v8")
    A("v_sub_u32 v9, 2048, v8\nv_and_b32 v9, 2047, v9\nv_and_b32 v10, 1, v1\nv_cmp_eq_u32 vcc, 1, v10\nv_cndmask_b32 v8, v8, v9, vcc")
    A(f"v_mul_u32_u24 v17, 1026, v8\ns_lshr_b32 s{T4}, s2, 7\ns_lshl_b32 s{T4}, s{T4}, 10\nv_add_u32 v17, s{T4}, v17")


def aux_setup_w(A):
    w_addr(A, W_)
    w_sym_addr(A)


def aux_setup2(A):
    make_F(A, 92)
    make_T(A, T, 92, 0)
    make_T(A, TT, 92, 1)


def aux_issue(A, vm):
    for c in range(2):
        A(f"s_add_u32 m0, s{T8}, {c*2048}")
        A(f"s_mov_b32 s{CNT}, {c*2048}")
        for u in range(2):
            vm.op(f"buffer_load_dwordx4 v{2+c}, {r4(AX)}, s{CNT} offen offset:{u*1024}{NT} lds", "ax")


def w_tile_issue(A, vm, sbase, const, bbs=range(2)):
    for bb in bbs:
        for arr in range(2):
            A(f"s_add_u32 m0, s{sbase}, {const + bb*2048 + arr*1024}")
            vm.op(f"buffer_load_dwordx4 v{18+bb}, {r4(S2 if arr == 0 else S3)}, s{T9} offen{NT} lds" if "1" not in SK else f"buffer_load_dword v23, v2, {r4(AX)}, 0 offen offset:4092", "w")


def w_sym_issue(A):
    nw = uid("nw")
    A(f"s_cmp_lg_u32 s{W_}, {3 if not ('1' in SK or 'p' in SK) else 9}\ns_cbranch_scc1 {nw}")
    A("s_mov_b32 exec_hi, 0")
    A(f"buffer_load_ushort v{WSP}, v17, {r4(S2)}, 0 offen{NT}")
    A(f"buffer_load_ushort v{WSP+1}, v17, {r4(S3)}, 0 offen{NT}")
    A("s_mov_b64 exec, -1")
    A.label(nw)


def w_issue(A, vm):
    w_tile_issue(A, vm, T8, L_W - L_AX)
    w_sym_issue(A)


WSP, IN, D, MID, TMP = 88, 24, 40, 72, 168
DY, W, TT = 72, 104, 136
M_, SPC, CJ, SGN = T0, T1, T2, T3
AUXK = E_("AUXK", 5)
GATE = E_("GATE", 0)
WK = E_("WK", 1)
WMID = WK <= 12
WSK = E_("WSK", 8)
A1K = E_("A1K", 0)
FINE = E_("FINE", 1)
ZSK = E_("ZSK", A1K + 3 + FINE)
LATE = A1K >= 6
A2G = E_("A2G", 0)
XLD, XLS = E_("XLD", 2), E_("XLS", 48)
A3W = E_("A3W", 0)
A3G = E_("A3G", 11)
A3S = E_("A3S", 0)
ZG = E_("ZG", 0)
CTW = E_("CTW", 0)
POLLK = E_("POLLK", 15)
VTLB, VTN, VTF = E_("VTLB", 0), E_("VTN", 1), (" nt" if E_("VTF", 1) else "")
TLBW = E_("TLBW", 0)
DEFER = E_("DEFER", 2)
DK0 = E_("DK0", 0)
LPOS = E_("LPOS", 6)
BARP = E_("BARP", 1)
SWAP = E_("SWAP", 1)
WPOS = E_("WPOS", 0)
ZPOS = E_("ZPOS", -1)
WTK = E_("WTK", 3)
EARLY2 = E_("EARLY2", 1)
SNON = E_("SNON", 0)
FPOLL = E_("FPOLL", 14)
WPK = E_("WPK", -1)
WBYG = E_("WBYG", 0)
WSPLIT = E_("WSPLIT", 0)
NZS = E_("NZS", 1)
TLBT, TLBO, TLBK = E_("TLBT", 0), E_("TLBO", 0), E_("TLBK", 7)
TBG = E_("TBG", 0)
L_TBL = 65536
TIMAP = E_("TIMAP", 1)
PBG = E_("PBG", 0)
CTKS = [int(x) for x in os.environ.get("CTKS", "").split(",") if x]
NLDS = E_("NLDS", 1)
L_NONCE = 80
PRED = E_("PRED", 0)
ZW = E_("ZW", 1)
PRES = E_("PRES", 1)
NPRE = E_("NPRE", 3)
KS0 = E_("KS0", 2)
P1, P2A, P2B = E_("P1", 0), E_("P2A", 50), E_("P2B", 95)
LDEF = E_("LDEF", 0)
LSLP = E_("LSLP", 1)
WSH = E_("WSH", 1)
PRE1, PRE2 = E_("PRE1", 6), E_("PRE2", 12)
HALF = E_("HALF", 0)
WEARLY = E_("WEARLY", 0)
KA, KA0, KA1, KAG = E_("KA", 0), E_("KA0", 5), E_("KA1", 12), E_("KAG", 0)
G1X = os.environ.get("G1X", "")
WMODE = E_("WMODE", 0)
CPK = [int(x) for x in os.environ.get("CPK", "").split(",") if x]
WXT = E_("WXT", 0)
RSLP = E_("RSLP", 1)
PAL = E_("PAL", 0)
NREPA = E_("NREPA", 8)
AXT = E_("AXT", 0)
APRIO, GPRIO = E_("APRIO", 0), E_("GPRIO", 1)
FM, CM = E_("FM", 12), E_("CM", 4)
DMAP = os.environ.get("DMAP", "5,9,13,17,21,25,29,33")
CSP, CSP0, CSB, CSPH = E_("CSP", 0), E_("CSP0", 2), E_("CSB", 12), E_("CSPH", 1)
SK = os.environ.get("SK", "")
A2C = E_("A2C", 0)
LPRIO3 = E_("LPRIO3", 0)
LPRIO0 = E_("LPRIO0", 3)
LPRIO, LPRIO2 = E_('LPRIO', 0), E_('LPRIO2', 0)
L_IMG = 98304
LIMG_FREE = 2


def img(i):
    ka = 8*(i >> 2) + (i & 3)
    return (VA1, ka*1024) if i < 8 else (VA8, 0) if i == 8 else (VA2, (27 - ka)*1024)


def aux_pre_a(A):
    A(f"v_mov_b32 v{SQ}, {L_SYNC + 16}\ns_lshl_b32 s{T4}, s{W_}, 2\nv_add_u32 v{SO}, s{T4}, v{SQ}")
    A("v_and_b32 v8, 31, v1\nv_lshrrev_b32 v9, 5, v1\nv_and_b32 v10, 1, v1")
    A(f"v_lshrrev_b32 v11, 1, v8\nv_lshlrev_b32 v{VA1}, 6, v11\nv_lshl_add_u32 v{VA1}, v10, 4, v{VA1}\nv_lshl_add_u32 v{VA1}, v9, 12, v{VA1}")
    A(f"v_add_u32 v11, v11, v10\nv_lshlrev_b32 v11, 6, v11\nv_lshl_add_u32 v11, v10, 4, v11\nv_lshl_add_u32 v11, v9, 12, v11\nv_sub_u32 v{VA2}, {5120 + 48}, v11")
    for r in (VA1, VA2):
        A(f"v_bfe_u32 v11, v{r}, 7, 1\nv_lshlrev_b32 v11, 5, v11\nv_xor_b32 v{r}, v{r}, v11")
    A(f"v_add_u32 v{VA8}, 11264, v{VA2}\nv_and_b32 v{VA8}, 0x3fff, v{VA8}")
    A(f"s_add_u32 s{T4}, s{T4}, {L_IMG}")
    for r in (VA1, VA2, VA8):
        A(f"v_add_u32 v{r}, s{T4}, v{r}")
    A(f"v_bfe_u32 v11, v1, 3, 1\nv_lshlrev_b32 v11, 5, v11\nv_xor_b32 v{VLIN}, v2, v11")

    A("v_bfe_u32 v12, v1, 2, 1\nv_mul_u32_u24 v12, 2176, v12")
    A("v_bfe_u32 v13, v1, 3, 1\nv_lshl_add_u32 v12, v13, 6, v12\nv_lshl_add_u32 v12, v9, 8, v12")
    A("v_bfe_u32 v13, v1, 4, 1\nv_lshl_add_u32 v12, v13, 5, v12\nv_and_b32 v13, 3, v1\nv_lshl_add_u32 v12, v13, 3, v12")
    A(f"v_add_u32 v12, s{T8}, v12\nv_xor_b32 v13, 128, v12")
    if INOUT:
        A(f"s_lshl_b32 s{T4}, s{T7}, 14")
        srd(A, S0, OUT, T4, 0, 0x1000)
        srd(A, S1, OUT, T4, 0, 0x1000)
    else:
        A(f"s_lshl_b32 s{T4}, s2, 14\ns_lshl_b32 s{T5}, s{W_}, 12\ns_add_u32 s{T4}, s{T4}, s{T5}")
        srd(A, S0, WS, T4, WS_Z1, 0x1000)
        srd(A, S1, WS, T4, WS_Z3, 0x1000)


def aux_pre_w(A):
    A(f"v_and_b32 v14, 7, v1\nv_lshrrev_b32 v15, 3, v1\nv_xor_b32 v16, v14, v15\nv_lshlrev_b32 v16, 4, v16\nv_lshl_add_u32 v16, v14, 11, v16")
    A(f"s_lshr_b32 s{T4}, s{W_}, 1\ns_lshl_b32 s{T4}, s{T4}, 7\ns_and_b32 s{T5}, s{W_}, 1\ns_lshl_b32 s{T5}, s{T5}, 3\ns_add_u32 s{T4}, s{T4}, s{T5}\ns_add_u32 s{T4}, s{T4}, {L_W}")
    A(f"v_add_u32 v{VWR}, s{T4}, v16")
    A(f"v_lshlrev_b32 v15, {18 if INOUT else 16}, v15\nv_lshl_add_u32 v22, v14, 4, v15")
    A(f"s_lshl_b32 s{T4}, s{T3}, 7\ns_lshr_b32 s{T5}, s{W_}, 1\ns_lshl_b32 s{T5}, s{T5}, 6\ns_add_u32 s{T4}, s{T4}, s{T5}")
    A(f"s_and_b32 s{T5}, s{W_}, 1\ns_lshl_b32 s{T5}, s{T5}, 2\ns_add_u32 s{T4}, s{T4}, s{T5}\ns_mul_i32 s{T4}, s{T4}, {KS_}")
    A(f"s_lshr_b32 s{T5}, s{T0}, 2\ns_mul_i32 s{T5}, s{T5}, {ISH - 4096}\ns_add_u32 s{T4}, s{T4}, s{T5}")
    A(f"s_lshl_b32 s{T5}, s{T0}, 10\ns_add_u32 s{T4}, s{T4}, s{T5}\ns_lshl_b32 s{T5}, s{T1}, 9\ns_add_u32 s{T4}, s{T4}, s{T5}\ns_lshl_b32 s{T5}, s{T2}, 7\ns_add_u32 s{T4}, s{T4}, s{T5}")
    if INOUT:
        A(f"s_add_u32 s{T4}, s{T4}, 8192")
        srd(A, S4, OUT, T4, 0, 0x1000000, T4)
    else:
        srd(A, S4, WS, T4, WS_WT + 2*KS_, 0x400000, T4)


KNAME_ = [None]


def code_touch(A, t0):
    name = KNAME_[0]
    pc = uid("pc")
    per = 6
    A(f"s_getpc_b64 {sp(t0)}")
    A.label(pc)
    A(f"s_sub_u32 s{t0}, s{t0}, {pc}-{name}\ns_subb_u32 s{t0+1}, s{t0+1}, 0")
    A(f"s_lshr_b32 s{CNT}, s2, 3\ns_lshl_b32 s{CNT}, s{CNT}, 2\ns_add_u32 s{CNT}, s{CNT}, s{W_}\ns_mul_i32 s{CNT}, s{CNT}, {per*64}")
    A(f"s_min_u32 s{CNT}, s{CNT}, L_{name}_end-{name}-{per*64}")
    for q in range(per):
        A(f"s_load_dword s3, {sp(t0)}, s{CNT} offset:{q*64}")


def c_prefetch(A, p, done):
    A(f"s_load_dwordx4 s[8:11], s[0:1], 64")
    A(f"s_and_b32 s12, s{TJ}, 7\ns_lshl_b32 s13, s12, 7\ns_and_b32 s14, s{TI}, 3\ns_lshl_b32 s14, s14, 5\ns_add_u32 s13, s13, s14")
    A(f"s_sub_u32 s14, s{W_}, 1\ns_mul_i32 s14, s14, 11\ns_min_u32 s14, s14, 21\ns_add_u32 s13, s13, s14\ns_lshl_b32 s13, s13, 11")
    A(f"s_lshr_b32 s14, s{TJ}, 3\ns_lshl_b32 s14, s14, 10\ns_add_u32 s13, s13, s14\ns_waitcnt lgkmcnt(0)")
    A("s_add_u32 s4, s8, s13\ns_addc_u32 s5, s9, 0\ns_add_u32 s6, s10, s13\ns_addc_u32 s7, s11, 0")
    cnt = 0
    for n in range(CSP0, CSP0 + CSP):
        A(f"s_add_u32 s15, s12, {n}\ns_and_b32 s15, s15, 7\ns_lshl_b32 s15, s15, 7")
        for r in range(11):
            for arr in range(2):
                for sec in range(2):
                    A(f"s_load_dword s3, s[{4+2*arr}:{5+2*arr}], s15 offset:{r*2048 + sec*64}")
                    cnt += 1
                    if cnt % CSB == 0:
                        A(f"ds_read_b128 {v(ST,4)}, v{SQ}\ns_waitcnt lgkmcnt(0)")
                        A(f"v_min3_u32 v{ST}, v{ST}, v{ST+1}, v{ST+2}\nv_min_u32 v{ST}, v{ST}, v{ST+3}")
                        A(f"v_readfirstlane_b32 s{CNT}, v{ST}\ns_cmp_ge_u32 s{CNT}, {p}\ns_cbranch_scc1 {done}")


def c_touch(A, vm, mask=None):
    A(f"s_and_b32 s{T4}, s2, 1\ns_lshl_b32 s{T4}, s{T4}, 10\ns_bfe_u32 s{CNT}, s2, 0x20001\ns_lshl_b32 s{CNT}, s{CNT}, 19\ns_add_u32 s{T4}, s{T4}, s{CNT}")
    A(f"s_lshr_b32 s{CNT}, s2, 3\ns_lshl_b32 s{CNT}, s{CNT}, 14\ns_add_u32 s{T4}, s{T4}, s{CNT}")
    A(f"s_lshr_b32 s{CNT}, s{W_}, 1\ns_lshl_b32 s{CNT}, s{CNT}, 13\ns_add_u32 s{T4}, s{T4}, s{CNT}")
    A(f"v_bfe_u32 v22, v1, 3, 2\nv_lshlrev_b32 v22, 11, v22\nv_and_b32 v23, 7, v1\nv_lshl_add_u32 v22, v23, 7, v22\nv_add_u32 v22, s{T4}, v22")
    A("s_mov_b32 exec_hi, 0")
    if mask:
        A(f"s_mov_b32 exec_lo, {hex(mask)}")
    vm.op(f"global_load_dword v11, v22, s[100:101]", "touch")
    A("s_mov_b64 exec, -1")


def flag_poll(A, flg):
    A(f"s_lshl_b32 s{T4}, s2, 2\ns_add_u32 s{T4}, s{T4}, s{W_}\ns_lshr_b32 s{T4}, s{T4}, 4\ns_lshl_b32 s{T4}, s{T4}, 7\ns_add_u32 s{T4}, s{T4}, {flg}")
    A(f"s_add_u32 s24, s{WS}, s{T4}\ns_addc_u32 s25, s{WS+1}, 0")
    A(f"s_load_dwordx16 s[4:19], s[24:25], 0x0 glc")


def flag_wait(A):
    late, go, pl_ = uid("late"), uid("go"), uid("sp")
    A(f"s_mov_b32 s26, s{NONCE}\ns_mov_b32 s27, s{NONCE}\ns_mov_b32 s{CNT}, 0\ns_branch {pl_}")
    A.label(late)
    A(f"s_add_u32 s{CNT}, s{CNT}, 1\ns_cmp_ge_u32 s{CNT}, {SPIN_MAX}\ns_cbranch_scc1 {go}")
    A(f"s_sleep 8\ns_load_dwordx16 s[4:19], s[24:25], 0x0 glc")
    A.label(pl_)
    A("s_waitcnt lgkmcnt(0)")
    for q in range(8):
        A(f"s_cmp_eq_u64 s[{4+2*q}:{5+2*q}], s[26:27]\ns_cbranch_scc0 {late}")
    A.label(go)


RR = lambda arr, kind: 104 + (arr*4 + kind)*2


VWR = 21


def wt_read(A, fin=True):
    for arr in range(2):
        for kind in range(4):
            A(f"ds_read_b64 {v(RR(arr,kind),2)}, v{VWR} offset:{arr*1024 + kind*256}")


def wt_sym(A):
    A(f"s_mov_b32 s{T4}, 0x05040100\ns_mov_b32 s{T5}, 0x07060302")
    A(f"v_lshlrev_b32 v{WSP}, 16, v{WSP}\nv_lshlrev_b32 v{WSP+1}, 16, v{WSP+1}\nv_lshlrev_b32 v23, 1, v1")
    A(f"v_add_f32_dpp v{WSP+2}, v{WSP}, v{WSP} quad_perm:[1,0,3,2] row_mask:0xf bank_mask:0xf")
    A(f"v_subrev_f32_dpp v{WSP+3}, v{WSP+1}, v{WSP+1} quad_perm:[1,0,3,2] row_mask:0xf bank_mask:0xf")
    A(f"v_mul_f32 v{WSP+2}, 0.5, v{WSP+2}\nv_mul_f32 v{WSP+3}, 0.5, v{WSP+3}")
    A(f"v_cvt_pk_bf16_f32 v{WSP}, v{WSP+2}, v{WSP+3}")


def wt_perm(A):
    for kap in range(4):
        o = 120 + 4*kap
        for e in range(2):
            for h2 in range(2):
                kind = e + 2*h2
                A(f"v_perm_b32 v{o+2*e+h2}, v{RR(1,kind)+kap//2}, v{RR(0,kind)+kap//2}, s{T4 + kap % 2}")


def wt_store(A, vm):
    nw = uid("nw")
    A(f"s_cmp_lg_u32 s{W_}, 3\ns_cbranch_scc1 {nw}")
    A(f"s_lshr_b32 s{T4}, s2, 7\ns_mul_i32 s{T4}, s{T4}, {KS_}\ns_bfe_u32 s{T5}, s2, 0x10006\ns_mul_i32 s{T5}, s{T5}, {ISH}\ns_add_u32 s{T4}, s{T4}, s{T5}")
    A(f"s_and_b32 s{T5}, s2, 63\ns_lshl_b32 s{T5}, s{T5}, 6\ns_add_u32 s{T4}, s{T4}, s{T5}")
    srd(A, 4, WS, T4, WS_WT, 64)
    A("s_mov_b32 exec_lo, 0x55555555\ns_mov_b32 exec_hi, 0")
    if not E_("SKIPS", 0):
        A(f"buffer_store_dword v{WSP}, v23, {r4(4)}, 0 offen sc1")
    A("s_mov_b64 exec, -1")
    A.label(nw)
    if ZW:
        zw_store(A, vm, range(4, 8))
        return
    for kap in range(0 if "2" in SK else 4):
        A(f"s_mov_b32 s{CNT}, {kap*KS_}")
        vm.op(f"buffer_store_dwordx4 {v(120+4*kap,4)}, v22, {r4(S4)}, s{CNT} offen sc1", "wst")


def a1_stores(A, vm):
    if ZW:
        zw_store(A, vm, range(4))
        if WTK == ZPOS:
            wt_store(A, vm)
        return
    for u in range(0 if "3" in SK else 4):
        vm.op(f"buffer_store_dwordx4 {v(MID+4*u,4)}, v2, {r4(S0)}, 0 offen offset:{u*1024} sc1", "zst")
    if WMODE == 0 and WTK == ZPOS:
        wt_store(A, vm)


def a1_task(A, vm):
    vm.wait_for("ax")
    trace(A, 0, 2)
    for s_ in range(4):
        for u in range(2):
            A(f"ds_read_b64_tr_b16 {v(IN+4*s_+2*u,2)}, v{12+u} offset:{s_*512}")
    A("s_waitcnt lgkmcnt(0)")
    stage1(A, IN, D)
    twiddle(A, D, MID, TMP)
    stage2(A, MID, D)
    A(f"s_lshl_b32 s{CNT}, s{W_}, 12\ns_add_u32 s{CNT}, s{CNT}, {L_IMG}\nv_add_u32 v8, s{CNT}, v{VLIN}")
    for i in range(16):
        A(f"v_cvt_pk_bf16_f32 v{MID+i}, v{D+i}, v{D+16+i}")
        a, o = img(i)
        A(f"ds_write_b32 v{a}, v{MID+i} offset:{o}")
    trace(A, 0, 3)
    if WMODE == 0 and WPK < 0:
        if WBYG:
            A("s_waitcnt vmcnt(0)")
            l_check(A, 1, RING_LG - 16)
        else:
            vm.wait_for("w")
    A("s_waitcnt lgkmcnt(0)")
    l_sync(A)
    trace(A, 0, 4)
    if ZW:
        zw_build(A)
    else:
        for u in range(4):
            A(f"ds_read_b128 {v(MID+4*u,4)}, v8 offset:{u*1024}")
    if WMODE == 0 and WPK < 0 and not ZW:
        wt_read(A)
    for r in (VA1, VA2, VA8):
        A(f"v_add_u32 v{r}, {L_AX - L_IMG}, v{r}")
    A("s_waitcnt lgkmcnt(0)")
    p = l_arrive(A)
    assert p == LIMG_FREE
    if NZS:
        nn = uid("nn")
        A(f"s_lshl_b32 s{CNT}, s2, 3\ns_add_u32 s{CNT}, s{CNT}, s{WAVE}\ns_cmp_lg_u32 s{CNT}, 4\ns_cbranch_scc1 {nn}")
        A(f"s_add_u32 s3, s3, 1\ns_cmp_eq_u32 s3, 0\ns_cselect_b32 s3, 1, s3")
        A(f"s_atomic_swap s3, {sp(DBG)}, 0x0\ns_atomic_swap s3, {sp(WS)}, {hex(WS_NONCE)}")
        A.label(nn)
    if WMODE == 0 and WPK < 0:
        wt_sym(A)
        if not ZW:
            wt_perm(A)
    if EARLY2:
        if not TBG:
            make_T(A, TT, 92, 1)
        a2_setup(A)
    if ZPOS < 0:
        a1_stores(A, vm)
    trace(A, 0, 5)


def a2_setup(A):
    A(f"s_and_b32 s{M_}, s2, 7\ns_lshl_b32 s{M_}, s{M_}, 5\ns_lshr_b32 s{T4}, s2, 3\ns_add_u32 s{M_}, s{M_}, s{T4}")
    A(f"s_lshr_b32 s{T4}, s{W_}, 1\ns_xor_b32 s{T4}, s{T4}, s{W_}\ns_and_b32 s{T4}, s{T4}, 1")
    A(f"s_or_b32 s{T5}, s{T4}, s{M_}\ns_cmp_eq_u32 s{T5}, 0\ns_cselect_b32 s{SPC}, 1, 0")
    A(f"s_lshl_b32 s{T5}, s{M_}, 1\ns_add_u32 s{T4}, s{T4}, s{T5}")
    A(f"s_mul_i32 s{T4}, s{T4}, {KS_}\ns_add_u32 s{T4}, s{T4}, {8192 if INOUT else WS_WT + 2*KS_}")
    A(f"s_lshr_b32 s{T5}, s{W_}, 1\ns_mul_i32 s{T9}, s{T5}, {KS_}\ns_add_u32 s{T9}, s{T9}, {WS_WT}")
    A(f"s_cmp_eq_u32 s{SPC}, 1\ns_cselect_b32 s{T4}, s{T9}, s{T4}\ns_cselect_b32 s{T5}, 0, s{T5}")
    A(f"s_cselect_b32 s{MSK}, s{WS}, s{OUT if INOUT else WS}\ns_cselect_b32 s{MSK+1}, s{WS+1}, s{(OUT if INOUT else WS)+1}")
    A(f"s_lshl_b32 s{CJ}, s{T5}, 31\ns_or_b32 s{SGN}, s{CJ}, 0x3f800000")
    srd(A, S2, MSK, T4, 0, ISH + 4096)
    if INOUT:
        A(f"s_lshl_b32 s{T4}, s{W_}, 22\ns_lshr_b32 s{T5}, s{M_}, 6\ns_lshl_b32 s{T5}, s{T5}, 19\ns_add_u32 s{T4}, s{T4}, s{T5}")
        A(f"s_and_b32 s{T5}, s{M_}, 63\ns_lshl_b32 s{T5}, s{T5}, 6\ns_add_u32 s{T4}, s{T4}, s{T5}")
        srd(A, S3, OUT, T4, 0, 160*16384, T5)
        srd(A, S4, OUT, T4, 0, 160*16384, T5)
    else:
        A(f"s_lshl_b32 s{T4}, s{W_}, 20\ns_lshl_b32 s{T5}, s{M_}, 6\ns_add_u32 s{T4}, s{T4}, s{T5}")
        if ZW:
            srd(A, S4, WS, T4, WS_Z3, 0x100000, T5)
            A(f"s_lshl_b32 s{T4}, s{W_}, 21\ns_lshl_b32 s{T5}, s{M_}, 7\ns_add_u32 s{T4}, s{T4}, s{T5}")
            srd(A, S3, WS, T4, WS_ZW, 0x200000, T5)
        else:
            assert WS_Z1 == WS_Z3
            srd(A, S3, WS, T4, WS_Z1, 0x100000, T5)
    A("v_lshrrev_b32 v8, 2, v1\nv_lshlrev_b32 v8, 14, v8\nv_and_b32 v9, 3, v1\nv_lshrrev_b32 v10, 4, v1\nv_xor_b32 v9, v9, v10\nv_lshl_add_u32 v14, v9, 4, v8")
    A(f"v_and_b32 v8, 31, v1\nv_bfe_u32 v9, v1, 2, 2\nv_xor_b32 v9, s{W_}, v9\nv_lshlrev_b32 v9, 4, v9\nv_lshl_add_u32 v9, v8, 6, v9")
    A(f"v_lshrrev_b32 v8, 5, v1\nv_lshl_add_u32 v9, v8, 11, v9\nv_add_u32 v15, {L_AX}, v9")
    A(f"s_lshl_b32 s{T4}, s{W_}, 13\ns_add_u32 s{T4}, s{T4}, {L_AX}\nv_add_u32 v16, s{T4}, v2")
    A(f"s_xor_b32 s{T5}, s{T4}, {3 << 13}\ns_cmp_eq_u32 s{SPC}, 1\ns_cselect_b32 s{T5}, s{T4}, s{T5}\nv_add_u32 v17, s{T5}, v2")
    A(f"v_add_u32 v18, s{T8}, v2")
    A(f"s_lshr_b32 s{T4}, s{W_}, 1\ns_xor_b32 s{T4}, s{T4}, s{W_}\ns_and_b32 s{T4}, s{T4}, 1\ns_lshl_b32 s{T9}, s{T4}, 13\ns_add_u32 s{T9}, s{T9}, {L_W}\nv_add_u32 v19, s{T9}, v2")
    if ZW:
        A(f"v_and_b32 v8, 31, v1\nv_lshrrev_b32 v9, 2, v8\nv_and_b32 v10, 3, v8")
        A(f"s_lshl_b32 s{T4}, s{T4}, 1\ns_add_u32 s{T4}, s{T4}, 4")
        A(f"v_lshrrev_b32 v19, 1, v10\nv_add_u32 v19, s{T4}, v19\nv_and_b32 v11, 6, v9\nv_xor_b32 v19, v19, v11\nv_lshlrev_b32 v19, 4, v19")
        A(f"v_and_b32 v10, 1, v10\nv_lshl_add_u32 v19, v10, 3, v19\nv_lshl_add_u32 v19, v9, 7, v19")
        A(f"v_lshrrev_b32 v11, 5, v1\nv_lshl_add_u32 v19, v11, 12, v19\nv_add_u32 v19, {L_AX}, v19")
        A(f"v_and_b32 v9, 6, v8\nv_bfe_u32 v10, v8, 4, 1\nv_or_b32 v9, v9, v10\nv_xor_b32 v9, s{W_}, v9\nv_lshlrev_b32 v9, 4, v9")
        A(f"v_lshl_add_u32 v9, v8, 7, v9\nv_lshl_add_u32 v9, v11, 12, v9\nv_add_u32 v10, {L_AX}, v9")
        A(f"v_lshrrev_b32 v8, 3, v1\nv_lshlrev_b32 v8, 15, v8\nv_and_b32 v9, 7, v1\nv_lshl_add_u32 v9, v9, 4, v8")
    for kk in range(32):
        A(f"v_mul_f32 v{TT+kk}, s{SGN}, v{TT+kk}")


ZU = lambda u: (16*(u & 1) + 128*(u >> 1))*16384 if INOUT else u << 18


def a2_loads(A, z=True, w=True):
    if ZW:
        A(f"s_lshl_b32 s{T5}, s{W_}, 13\ns_add_u32 s{T5}, s{T5}, {L_AX}")
        for u in range(8 if '5' not in SK else 0):
            A(f"s_add_u32 m0, s{T5}, {u*1024}\ns_mov_b32 s{T4}, {u << 18}")
            A(f"buffer_load_dwordx4 v9, {r4(S3)}, s{T4} offen sc1 lds")
        a, b = uid("ws"), uid("wd")
        A(f"s_cmp_eq_u32 s{SPC}, 1\ns_cbranch_scc1 {a}\ns_waitcnt vmcnt(0)\ns_branch {b}")
        A.label(a)
        A(f"s_movk_i32 s{T4}, {ISH}")
        for it in range(8):
            A(f"buffer_load_dwordx4 {v(W+4*it,4)}, v2, {r4(S2)}, {'0' if it < 4 else f's{T4}'} offen offset:{(it & 3)*1024} sc1")
        A.label(b)
        return
    for u in range(4 if z and '5' not in SK else 0):
        A(f"s_add_u32 m0, s{T8}, {u*1024}\ns_mov_b32 s{T4}, {ZU(u)}")
        A(f"buffer_load_dwordx4 v14, {r4(S3)}, s{T4} offen sc1 lds")
    if WSH:
        a, b = uid("ws"), uid("wd")
        A(f"s_cmp_eq_u32 s{SPC}, 1\ns_cbranch_scc1 {a}")
        A(f"s_lshr_b32 s{T4}, s{W_}, 1\ns_lshl_b32 s{T5}, s{T4}, 12\ns_mul_i32 s{T4}, s{T4}, {ISH}\ns_add_u32 m0, s{T9}, s{T5}")
        for u in range(4 if '4' not in SK else 0):
            A(f"buffer_load_dwordx4 v2, {r4(S2)}, s{T4} offen offset:{u*1024} sc1 lds")
        A(f"s_waitcnt vmcnt(0)\ns_branch {b}")
        A.label(a)
    A(f"s_movk_i32 s{T4}, {ISH}")
    for it in range(8 if w and '4' not in SK else 0):
        A(f"buffer_load_dwordx4 {v(W+4*it,4)}, v2, {r4(S2)}, {'0' if it < 4 else f's{T4}'} offen offset:{(it & 3)*1024} sc1")
    if WSH:
        A.label(b)


PH_RES = 18


def phase_atomic(A, cnt, p):
    x = uid("ph")
    A(f"s_cmp_lg_u32 s{W_}, 0\ns_cbranch_scc1 {x}")
    l_check(A, p)
    A(f"s_and_b32 s{T4}, s2, 15\ns_lshl_b32 s{T5}, s{T4}, 7\ns_add_u32 s{T5}, s{T5}, {cnt}")
    A(f"s_add_u32 s{MSK}, s{WS}, s{T5}\ns_addc_u32 s{MSK+1}, s{WS+1}, 0\ns_mov_b32 s{PH_RES}, 1")
    A(f"s_atomic_add s{PH_RES}, {sp(MSK)}, 0x0 glc")
    A.label(x)


def phase_last(A, flg, wait=True, nrep=None):
    y = uid("sg")
    A(f"s_cmp_lg_u32 s{W_}, 0\ns_cbranch_scc1 {y}")
    A(f"s_and_b32 s{T4}, s2, 15\ns_lshl_b32 s{T4}, s{T4}, 2\ns_add_u32 s{T4}, s{T4}, {flg}")
    A(f"s_add_u32 s4, s{WS}, s{T4}\ns_addc_u32 s5, s{WS+1}, 0")
    A("s_waitcnt lgkmcnt(0)")
    A(f"s_cmp_lg_u32 s{PH_RES}, 15\ns_cbranch_scc1 {y}")
    for r in range(nrep or NREP):
        A(f"s_atomic_swap s{NONCE}, s[4:5], {hex(r*128)}")
    if wait:
        A("s_waitcnt lgkmcnt(0)")
    A.label(y)


def phase_wait(A, flg, tb, nrep=None):
    x, pl_, nok = uid("ph"), uid("sp"), uid("nok")
    A(f"s_cmp_lg_u32 s{W_}, 0\ns_cbranch_scc1 {x}")
    A(f"s_and_b32 s{T4}, s2, {(nrep or NREP) - 1}\ns_lshl_b32 s{T4}, s{T4}, 7\ns_add_u32 s{T4}, s{T4}, {flg}")
    A(f"s_add_u32 s{MSK}, s{WS}, s{T4}\ns_addc_u32 s{MSK+1}, s{WS+1}, 0\ns_mov_b32 s{T4}, s{NONCE}\ns_mov_b32 s{T5}, s{NONCE}\ns_mov_b32 s{CNT}, 0")
    A(f"s_branch {pl_}")
    A.label(nok)
    A(f"s_add_u32 s{CNT}, s{CNT}, 1\ns_cmp_ge_u32 s{CNT}, {SPIN_MAX}\ns_cbranch_scc1 {x}")
    if SLP_A:
        A(f"s_sleep {SLP_A}")
    A.label(pl_)
    A(f"s_load_dwordx16 s[4:19], {sp(MSK)}, 0x0 glc\ns_waitcnt lgkmcnt(0)")
    for q in range(8):
        A(f"s_cmp_eq_u64 s[{4+2*q}:{5+2*q}], {sp(T4)}\ns_cbranch_scc0 {nok}")
    if TRACE:
        A(f"v_writelane_b32 v0, s{CNT}, {tb}")
    A.label(x)
    p2 = l_arrive(A)
    if CSP and flg == (FLG_A if CSPH == 0 else FLG_B):
        dn = uid("csp")
        A(f"s_cmp_eq_u32 s{W_}, 0\ns_cbranch_scc1 {dn}")
        c_prefetch(A, p2, dn)
        A.label(dn)
    l_check(A, p2, slp=LSLP)


def aux_rest(A, vm):
    def phase(cnt, flg, young=0):
        trace(A, 0, 48)
        A(f"s_waitcnt vmcnt({young})")
        trace(A, 0, 49)
        p = l_arrive(A)
        phase_atomic(A, cnt, p)
        phase_last(A, flg)
        trace(A, 0, 50)
        phase_wait(A, flg, 62)
        trace(A, 0, 51)
    if ZPOS >= 11:
        phase(CNT_A, FLG_A)
    elif FPOLL:
        flag_wait(A)
    else:
        phase_wait(A, FLG_A, 61, 64)
    trace(A, 0, 7)
    A(f"s_setprio {LPRIO2}")
    if A2G:
        l_check(A, A2G % 100, RING_D - 16 if A2G < 100 else -16)
    if CTW == 2:
        c_touch(A, vm)
    trace(A, 0, 8)
    a2_loads(A)
    mark(A, 7)
    A(f"s_waitcnt vmcnt({0 if '4' in SK else 8})")
    trace(A, 0, 9)
    if E_("AM", 0) in (1, 2):
        mark(A, 1)
    l_sync(A)
    trace(A, 0, 10)
    INS = 72
    for s_ in range(4):
        if ZW:
            A(f"ds_read_b128 {v(INS+4*s_,4)}, v10 offset:{s_*8192}")
        else:
            A(f"ds_read_b128 {v(INS+4*s_,4)}, v15 offset:{s_*4096}")
    if ZW:
        a = uid("wr")
        A(f"s_cmp_eq_u32 s{SPC}, 1\ns_cbranch_scc1 {a}")
        A("v_xor_b32 v11, 16, v19")
        for i in range(16):
            A(f"ds_read_b64 {v(W+2*i,2)}, v{11 if (i >> 1) & 1 else 19} offset:{(8*(i >> 2) + (i & 3))*1024}")
        A.label(a)
    elif WSH:
        a = uid("wr")
        A(f"s_cmp_eq_u32 s{SPC}, 1\ns_cbranch_scc1 {a}")
        for it in range(8):
            A(f"ds_read_b128 {v(W+4*it,4)}, v19 offset:{it*1024}")
        A.label(a)
    A("s_waitcnt lgkmcnt(0)")
    if E_("AM", 0) == 2:
        mark(A, 2)
    p6 = l_arrive(A)
    if A2C:
        l_check(A, A2C, -16)
    A(f"s_lshl_b32 s{T4}, s{SPC}, 31\ns_or_b32 s{T4}, s{T4}, s{CJ}")
    fl, nwr = uid("fft"), uid("nwr")
    A.label(fl)
    for i in range(16):
        A(f"v_xor_b32 v{IN+i}, s{T4}, v{INS+i}")

    def pre(rng):
        for i in rng:
            w, rho, sg = W + 2*i, TT + i, TT + 16 + i
            r1, i1, r2, i2, Ar, Ai = (TMP + 8 + c for c in range(6))
            A(f"v_lshlrev_b32 v{r1}, 16, v{w}\nv_and_b32 v{i1}, 0xffff0000, v{w}")
            A(f"v_lshlrev_b32 v{r2}, 16, v{w+1}\nv_and_b32 v{i2}, 0xffff0000, v{w+1}")
            A(f"v_add_f32 v{Ar}, v{r1}, v{r2}\nv_add_f32 v{Ai}, v{i1}, v{i2}")
            A(f"v_sub_f32 v{r1}, v{r1}, v{r2}\nv_sub_f32 v{i1}, v{i1}, v{i2}")
            A(f"v_mul_f32 v{w}, v{rho}, v{r1}\nv_mul_f32 v{w+1}, v{rho}, v{i1}")
            A(f"v_fma_f32 v{rho}, v{sg}, v{r1}, v{Ar}\nv_fma_f32 v{sg}, v{sg}, v{i1}, v{Ai}")

    def once(rng):
        a = uid("once")
        A(f"s_cmp_eq_u32 s{SPC}, 2\ns_cbranch_scc1 {a}\ns_waitcnt vmcnt(0)")
        pre(rng)
        A.label(a)
    stage1(A, IN, D)
    once(range(0, PRE1))
    twiddle(A, D, IN, TMP)
    stage2(A, IN, D)
    once(range(PRE1, PRE2))
    l_check(A, p6)
    if E_("AM", 0) == 2:
        mark(A, 5)
    A(f"s_cmp_eq_u32 s{SPC}, 2\ns_cbranch_scc1 {nwr}")
    for c in range(8):
        A(f"ds_write_b128 v16, {v(D+4*c,4)} offset:{c*1024}")
    A(f"s_cmp_eq_u32 s{SPC}, 0\ns_cbranch_scc1 {nwr}")
    A(f"s_mov_b32 s{SPC}, 2\ns_mov_b32 s{T4}, 0\ns_branch {fl}")
    A.label(nwr)
    pre(range(PRE2, min(16, PRE2 + 2)))
    A("s_waitcnt lgkmcnt(0)")
    p7 = l_arrive(A)
    pre(range(min(16, PRE2 + 2), 16))

    def own(rng):
        for i in rng:
            Xr, Xi, mr, mi, t = D+i, D+16+i, TT+i, TT+16+i, TMP + (i & 1)
            A(f"v_mul_f32 v{t}, v{mi}, v{Xi}\nv_mul_f32 v{Xi}, v{mr}, v{Xi}")
            A(f"v_fmac_f32 v{Xi}, v{mi}, v{Xr}\nv_fma_f32 v{Xr}, v{mr}, v{Xr}, -v{t}")
    own(range(0, 6))
    l_check(A, p7)
    for c in range(8):
        A(f"ds_read_b128 {v(DY+4*c,4)}, v17 offset:{c*1024}")
    own(range(6, 16))
    A("s_waitcnt lgkmcnt(0)")
    if E_("AM", 0) in (1, 2):
        mark(A, 4)
    p8 = l_arrive(A)
    for i in range(16):
        Pr, Pi, Yr, Yi, gr, gi = D+i, D+16+i, DY+i, DY+16+i, W+2*i, W+2*i+1
        A(f"v_fma_f32 v{Pr}, -v{gr}, v{Yi}, v{Pr}\nv_fmac_f32 v{Pi}, v{gr}, v{Yr}")
        A(f"v_fma_f32 v{Pr}, -v{gi}, v{Yr}, v{Pr}\nv_fma_f32 v{Pi}, -v{gi}, v{Yi}, v{Pi}")
        A(f"v_cvt_pk_bf16_f32 v{IN+i}, v{Pi}, v{Pr}")
    if E_("AM", 0) == 2:
        mark(A, 6)
    stage1(A, IN, D)
    twiddle(A, D, IN, TMP)
    stage2(A, IN, D)
    A(f"s_lshr_b32 s{T4}, s{CJ}, 16")
    l_check(A, p8)
    for s_ in range(4):
        for r in range(4):
            i = 4*s_ + r
            A(f"v_cvt_pk_bf16_f32 v{IN+i}, v{D+i}, v{D+16+i}\nv_xor_b32 v{IN+i}, s{T4}, v{IN+i}")
        A(f"ds_write_b128 v15, {v(IN+4*s_,4)} offset:{s_*4096}")
    A("s_waitcnt lgkmcnt(0)")
    if E_("AM", 0) == 2:
        mark(A, 7)
    l_sync(A)
    for u in range(4):
        A(f"ds_read_b128 {v(IN+4*u,4)}, v18 offset:{u*1024}")
    for u in range(4):
        A(f"s_mov_b32 s{T4}, {ZU(u)}\ns_waitcnt lgkmcnt({3-u})")
        if "6" not in SK:
            A(f"buffer_store_dwordx4 {v(IN+4*u,4)}, v14, {r4(S4 if ZW else S3)}, s{T4} offen sc1")
    trace(A, 0, 11)
    if E_("AM", 0) != 3 and not E_("GM", 0):
        mark(A, 3)
    A(f"s_lshl_b32 s{T4}, s{T7}, 14")
    srd(A, S0, OUT, T4, 0, 0x4000)
    A("v_and_b32 v8, 31, v1\nv_lshrrev_b32 v9, 5, v1\nv_lshlrev_b32 v14, 2, v8\nv_lshl_add_u32 v14, v9, 9, v14")
    A(f"s_mov_b32 s{T4}, 0x35000000")
    for k in range(32):
        A(f"v_mul_f32 v{T+k}, s{T4}, v{T+k}")
    phase(CNT_B, FLG_B)
    A(f"s_setprio {LPRIO3}")
    if A3G:
        l_check(A, A3G, -16)
    trace(A, 0, 12)
    if E_("AM", 0) != 3:
        mark(A, 8)
    A(f"s_mov_b32 m0, s{T8}")
    for u in range(4):
        if "7" not in SK:
            A(f"buffer_load_dwordx4 v{VLIN}, {r4(S1)}, 0 offen offset:{u*1024} sc1 lds")
    A("s_waitcnt vmcnt(0)")
    trace(A, 0, 13)
    l_sync(A)
    for i in range(16):
        a, o = img(i)
        A(f"ds_read_b32 v{IN+i}, v{a} offset:{o}")
    A("s_waitcnt lgkmcnt(0)")
    stage1(A, IN, D)
    twiddle(A, D, IN, TMP)
    stage2(A, IN, D)
    A(f"s_movk_i32 s{T4}, 0x2000")
    O = 72
    if A3W:
        A(f"s_lshl_b32 s{T5}, s{W_}, 12\ns_add_u32 s{T5}, s{T5}, {L_W}\nv_add_u32 v15, s{T5}, v14\nv_add_u32 v16, s{T5}, v2")
        for i in range(16):
            o = O + 2*i
            A(f"v_cvt_pk_bf16_f32 v{o+1}, v{D+16+i}, v{D+i}")
            A(f"v_lshlrev_b32 v{o}, 16, v{o+1}\nv_and_b32 v{o+1}, 0xffff0000, v{o+1}")
            A(f"ds_write_b32 v15, v{o} offset:{(i >> 2)*1024 + (i & 3)*128}")
        RB_ = D
        for u in range(4):
            A(f"ds_read_b128 {v(RB_+4*u,4)}, v16 offset:{u*1024}")
        for i in range(16):
            A(f"ds_write_b32 v15, v{O+2*i+1} offset:{(i >> 2)*1024 + (i & 3)*128}")
        for u in range(4):
            A(f"ds_read_b128 {v(RB_+16+4*u,4)}, v16 offset:{u*1024}")
        if A3S:
            l_check(A, A3S, -16)
        for row in range(2):
            for u in range(4):
                n_out = (20 + 3 - u) if row == 0 else (3 - u)
                A(f"s_waitcnt lgkmcnt({min(n_out, 15) if row == 0 else n_out})") if not (row == 0) else None
                if row == 0 and u == 0:
                    A("s_waitcnt lgkmcnt(4)")
                if "8" not in SK:
                    A(f"buffer_store_dwordx4 {v(RB_+16*row+4*u,4)}, v2, {r4(S0)}, {'0' if row == 0 else f's{T4}'} offen offset:{u*1024}{OST}")
    for part in range(0 if A3W else 2 if A3S else 1):
        if part == 1:
            l_check(A, A3S, -16)
        for i in range(16):
            o = O + 2*i
            if part == 0:
                A(f"v_cvt_pk_bf16_f32 v{o+1}, v{D+16+i}, v{D+i}")
                A(f"v_lshlrev_b32 v{o}, 16, v{o+1}\nv_and_b32 v{o+1}, 0xffff0000, v{o+1}")
            off = (i >> 2)*1024 + (i & 3)*128
            if "8" not in SK and (part == 1 or not A3S):
                A(f"buffer_store_dword v{o}, v14, {r4(S0)}, 0 offen offset:{off}{OST}")
                A(f"buffer_store_dword v{o+1}, v14, {r4(S0)}, s{T4} offen offset:{off}{OST}")


def cmul_sq(A, d, a, t):
    A(f"v_mul_f32 {v(t)}, {v(a+1)}, {v(a+1)}")
    A(f"v_mul_f32 {v(t+1)}, {v(a)}, {v(a+1)}")
    A(f"v_fma_f32 {v(d)}, {v(a)}, {v(a)}, -{v(t)}")
    A(f"v_add_f32 {v(d+1)}, {v(t+1)}, {v(t+1)}")


def horner(A, dr, di, L, pr, pi, er, ei, t):
    assert dr not in (pr, pi) and di not in (pr, pi)
    A(f"v_fma_f32 {v(t)}, {v(L)}, {v(pr)}, {v(er)}")
    A(f"v_fma_f32 {v(t+1)}, {v(L)}, {v(pi)}, {v(ei)}")
    A(f"v_fma_f32 {v(dr)}, -{v(L+1)}, {v(pi)}, {v(t)}")
    A(f"v_fma_f32 {v(di)}, {v(L+1)}, {v(pr)}, {v(t+1)}")


RING_D, RING_LG, RING_LA = 32, 48, 64


def dma_setup(A, swt, swp, RV, t, ta, tb):
    l5, a, b_, c, d, e = (t + i for i in range(6))
    A(f"v_lshrrev_b32 v{l5}, 5, v1\nv_bfe_u32 v{a}, v1, 3, 2\nv_and_b32 v{b_}, 1, v{a}\nv_lshrrev_b32 v{c}, 1, v{a}")
    A(f"v_lshlrev_b32 v{d}, 4, v{l5}\nv_lshl_add_u32 v{d}, v{b_}, 3, v{d}\nv_add_u32 v{d}, v{d}, v{c}")
    A(f"s_lshl_b32 s{ta}, s{swt}, 6\ns_lshl_b32 s{tb}, s{swp}, 2\ns_add_u32 s{ta}, s{ta}, s{tb}")
    A(f"v_add_u32 v{d}, s{ta}, v{d}\nv_lshlrev_b32 v{d}, 11, v{d}")
    A(f"s_lshl_b32 s{ta}, s{swt}, 5")
    A(f"v_lshl_add_u32 v{e}, v{l5}, 3, v{a}\nv_add_u32 v{e}, s{ta}, v{e}\nv_lshlrev_b32 v{e}, 11, v{e}")
    A(f"v_and_b32 v{b_}, 7, v1\nv_lshrrev_b32 v{c}, 4, v1\nv_xor_b32 v{b_}, v{b_}, v{c}\nv_lshlrev_b32 v{b_}, 4, v{b_}\nv_xor_b32 v{c}, 64, v{b_}")
    A(f"v_add_u32 v{RV}, v{d}, v{b_}\nv_add_u32 v{RV+1}, v{d}, v{c}\nv_add_u32 v{RV+1}, {32*2048 - 1024}, v{RV+1}")
    A(f"v_add_u32 v{RV+2}, v{e}, v{b_}\nv_add_u32 v{RV+3}, v{e}, v{c}\nv_add_u32 v{RV+3}, {16*2048 - 1024}, v{RV+3}")


def make_piece(A, vm, RA, RB, ROT, M0B, SOF, RV):
    def piece(k, n):
        slot, u = k % NS, n & 3
        if n == 0:
            A(f"s_add_u32 s{SOF}, s{ROT}, {((k*E_('KDIR', 1)) % 16)*128}\ns_and_b32 s{SOF}, s{SOF}, 0x7ff")
            A(f"s_add_u32 s{SOF+1}, s{SOF}, 2048\ns_add_u32 s{SOF+2}, s{SOF}, 6144")
        if u == 0:
            A(f"s_add_u32 m0, s{M0B}, {slot*32768 + (n >> 2)*16384}")
        so = SOF if u < 2 else SOF + 1 + (n >> 2)
        if ("a" in G1X and 0 < n < 4) or ("b" in G1X and n > 4):
            return
        vm.op(f"buffer_load_dwordx4 v{RV + 2*(n >> 2) + (u & 1)}, {r4(RA if n < 4 else RB)}, s{so} offen offset:{u*1024} lds", ("st", k))
    return piece


def rot_setup(A, ROT, t):
    if TIMAP:
        A(f"s_bfe_u32 s{ROT}, s2, 0x20001\ns_lshl_b32 s{ROT}, s{ROT}, 2\ns_lshr_b32 s{t}, s2, 6\ns_add_u32 s{ROT}, s{ROT}, s{t}\ns_mul_i32 s{ROT}, s{ROT}, {RI*128}")
    else:
        A(f"s_mul_i32 s{ROT}, s{TI}, {RI*128}")
    A(f"s_mul_i32 s{t}, s{TJ}, {RJ*128}\ns_add_u32 s{ROT}, s{ROT}, s{t}")
    if E_("ROTFIX", 1):
        A(f"s_bfe_u32 s{t}, s{ROT}, 0x30007\ns_cmp_eq_u32 s{t}, 3\ns_cselect_b32 s{t}, {E_('ROTFIX', 1)*128}, 0\ns_add_u32 s{ROT}, s{ROT}, s{t}")
    if E_("ROTC", 0):
        A(f"s_add_u32 s{ROT}, s{ROT}, {E_('ROTC', 0)*128}")


def aux_waves(A, name, kidx):
    A(f"s_sub_u32 s{W_}, s{WAVE}, 4")
    A(f"s_setprio {APRIO}")
    if BARP == 0:
        A("s_barrier")
    A("s_waitcnt lgkmcnt(0)")
    A(f"s_mov_b32 s100, s{CRE}\ns_mov_b32 s101, s{CRE+1}")
    A(f"s_bitcmp1_b32 s{W_}, 0\ns_cselect_b32 s100, s{CIM}, s{CRE}\ns_cselect_b32 s101, s{CIM+1}, s{CRE+1}")
    trace_init(A, 0)
    vm = VmCounter(A)
    if CODEPF:
        pf, pc = uid("pf"), uid("pc")
        A(f"s_cmp_lg_u32 s{W_}, 1")
        A(f"s_cbranch_scc1 {pf}")
        A(f"s_lshr_b32 s{T0}, s2, 3\ns_lshl_b32 s{T0}, s{T0}, 11\nv_and_b32 v12, 15, v1\nv_lshl_add_u32 v12, v12, 7, s{T0}")
        A(f"v_min_u32 v12, L_{name}_end-{name}, v12")
        A(f"s_getpc_b64 {sp(T0)}")
        A.label(pc)
        A(f"s_sub_u32 s{T0}, s{T0}, {pc}-{name}\ns_subb_u32 s{T1}, s{T1}, 0")
        A(f"global_load_dword v23, v12, {sp(T0)}")
        A.label(pf)
    nn = uid("nn")
    A(f"s_lshl_b32 s{T0}, s2, 3\ns_add_u32 s{T0}, s{T0}, s{WAVE}\ns_cmp_lg_u32 s{T0}, 4")
    A(f"s_cbranch_scc1 {nn}")
    A(f"s_load_dword s3, {sp(WS)}, {WS_NONCE}")
    if not NZS:
        A(f"v_mov_b32 v22, 0\nv_lshlrev_b32 v23, 7, v1\nv_add_u32 v23, {WS_CNT}, v23")
        A(f"global_store_dword v23, v22, {sp(WS)} sc1")
    A.label(nn)

    def clear_counters():
        nn = uid("nz")
        A(f"s_cmp_lg_u32 s2, 0\ns_cbranch_scc1 {nn}")
        A(f"s_lshl_b32 s24, s{W_}, 10\ns_add_u32 s24, s24, {WS_CNT}\ns_add_u32 s24, s{WS}, s24\ns_addc_u32 s25, s{WS+1}, 0\ns_mov_b32 s26, 0")
        for r in range(8):
            A(f"s_atomic_swap s26, s[24:25], {hex(r*128)}")
        A.label(nn)

    def publish_nonce(young):
        nn = uid("nn")
        A(f"s_lshl_b32 s{CNT}, s2, 3\ns_add_u32 s{CNT}, s{CNT}, s{WAVE}\ns_cmp_lg_u32 s{CNT}, 4")
        A(f"s_cbranch_scc1 {nn}")
        A(f"s_waitcnt vmcnt({young}) lgkmcnt(0)")
        A(f"s_add_u32 s3, s3, 1\ns_cmp_eq_u32 s3, 0\ns_cselect_b32 s3, 1, s3")
        A(f"v_mov_b32 v11, s3\nv_mov_b32 v10, 0")
        A(f"s_mov_b64 exec, 1\nglobal_store_dword v10, v11, {sp(DBG)} sc1")
        A(f"global_store_dword v10, v11, {sp(WS)} offset:{WS_NONCE}\ns_mov_b64 exec, -1")
        A.label(nn)
    if NOAUX:
        if BARP:
            A("s_barrier")
        assert not NZS
        publish_nonce(0)
        if CTW:
            for _ in range(E_("CTD", 100)):
                A("s_sleep 1")
            c_touch(A, vm)
        A("s_endpgm")
        return
    RA, RB, ROT, M0B, SOF, RV = 12, 20, 16, 17, 8, 176
    piece = make_piece(A, vm, RA, RB, ROT, M0B, SOF, RV)

    def loader_setup():
        A(f"s_lshl_b32 s{T4}, s{TI}, 18\ns_lshl_b32 s{T5}, s{TJ}, 17")
        srd(A, RA, BX, T4, 0, 0x40000)
        A(f"s_bitcmp1_b32 s{W_}, 0\ns_cselect_b32 s8, s{BIM}, s{BRE}\ns_cselect_b32 s9, s{BIM+1}, s{BRE+1}")
        srd(A, RB, 8, T5, 0, 0x20000)
        rot_setup(A, ROT, T4)
        A(f"s_lshl_b32 s{M0B}, s{W_}, 12")
        A(f"s_lshr_b32 s{T4}, s{W_}, 1\ns_and_b32 s{T5}, s{W_}, 1")
        dma_setup(A, T4, T5, RV, 96, CNT, 19)
    aux_setup_ax(A)
    aux_issue(A, vm)
    if WMODE == 0 and WPOS == 0 and not WBYG:
        if ZW:
            zw_addr(A)
            zw_issue(A, vm)
            w_sym_addr(A)
            w_sym_issue(A)
        elif WSPLIT:
            aux_setup_w(A)
            w_tile_issue(A, vm, T8, L_W - L_AX, [0])
        else:
            aux_setup_w(A)
            w_issue(A, vm)
    if NZS:
        clear_counters()
    def page_touch(pages, only=None):
        todo = [(b_, o + q) for b_, o, n in pages for q in sorted(set(list(range(0, n, 2 << 20)) + [n - 64]))]
        y = uid("tm")
        if only is not None:
            A(f"s_lshr_b32 s27, s2, 3\ns_and_b32 s27, s27, {only}\ns_cmp_lg_u32 s27, 0\ns_cbranch_scc1 {y}")
        for w in range(4):
            x = uid("tl")
            A(f"s_cmp_lg_u32 s{W_}, {w}\ns_cbranch_scc1 {x}")
            for b_, o in todo[w::4]:
                A(f"s_mov_b32 s27, {hex(o)}\ns_load_dword s26, {sp(b_)}, s27")
            A.label(x)
        A.label(y)
    LATEP = [(WS, 0, 1 << 20), (WS, WS_HT, 64*TBS), (WS, WS_XB, 8 << 20), (OUT, 0, 16 << 20)]
    if TLBT & 1:
        page_touch([(WS, WS_Z1, 4 << 20), (WS, WS_WT, 516*8192)], only=TLBO if TLBO else None)
    if TLBT & 2:
        page_touch([(BX, 0, 4 << 20), (BRE, 0, 2 << 20), (BIM, 0, 2 << 20), (LRE, 0, 64), (LIM, 0, 64), (LDT, 0, 64)], only=TLBO if TLBO else None)
    if BARP == 1:
        A("s_barrier")
    trace(A, 0, 0)
    if TBG:
        A(f"v_add_u32 v92, {L_TBL}, v2")
        for w, d in enumerate((F, T, TT)):
            for q in range(8):
                A(f"ds_read_b128 {v(d+4*q,4)}, v92 offset:{w*8192 + q*1024}")
    else:
        make_F(A, 92)
    if WSPLIT == 1:
        w_tile_issue(A, vm, T8, L_W - L_AX, [1])
        w_sym_issue(A)
        if BARP == 2:
            A("s_barrier")
    if WMODE == 0 and WPOS == 1:
        aux_setup_w(A)
        w_issue(A, vm)
    if not TBG:
        make_T(A, T, 92, 0)
    if WSPLIT == 2:
        w_tile_issue(A, vm, T8, L_W - L_AX, [1])
        w_sym_issue(A)
        if BARP == 2:
            A("s_barrier")
    if WMODE == 0 and WPOS == 2:
        aux_setup_w(A)
        w_issue(A, vm)
    if WBYG:
        w_addr(A, W_)
        w_sym_addr(A)
        w_sym_issue(A)
    aux_pre_a(A)
    if ZW:
        zw_pre(A)
    elif WMODE == 0:
        aux_pre_w(A)
    if PRES:
        loader_setup()
    if not NZS:
        publish_nonce(len(vm.issued))
    trace(A, 0, 1)
    a1_task(A, vm)
    if WMODE:
        aux_setup_w(A)
        aux_pre_w(A)
    if not PRES:
        loader_setup()
    Lt = Asm()
    if not EARLY2:
        make_T(Lt, TT, 92, 1)
    later = Lt.lines
    issued = KS0
    if KS0 < NS and E_("PREK", 0):
        for n in range(8):
            piece(issued, n)
        issued += 1
    trace(A, 0, 6)
    A(f"s_setprio {LPRIO0}")
    ZLATE = ZPOS >= 11
    KS = max(WSK if WMODE else KS0, ZPOS, WTK) + LA + 1 if not ZLATE else E_("KSL", 11)
    KS = max(KS, E_("KSX", 0))
    NONK = E_("NONK", 2)
    assert KS + 2 <= 13 and NONK < KS
    for k in range(16):
        if k >= KS0:
            vm.wait_for(("st", k))
        if WMODE == 0 and k == WPK:
            vm.wait_for("w")
        trace(A, 0, 16 + k)
        A("s_barrier")
        while issued < min(16, k + LA + 1):
            for n in range(8):
                piece(issued, n)
            issued += 1
        if WMODE == 0 and k == WPK:
            assert WPK < 2 and WTK > WPK
            wt_read(A)
            A("s_waitcnt lgkmcnt(0)")
            wt_sym(A)
            wt_perm(A)
        if k == ZPOS:
            a1_stores(A, vm)
        if WMODE == 0 and k == WTK and WTK != ZPOS:
            wt_store(A, vm)
        if k == NONK:
            if SNON:
                A(f"s_load_dword s{NONCE}, {sp(DBG)}, 0x0 glc")
            elif NLDS:
                x = uid("nl")
                A(f"s_cmp_lg_u32 s{W_}, 0\ns_cbranch_scc1 {x}")
                A(f"v_mov_b32 v20, 0\nglobal_load_dword v21, v20, {sp(DBG)} sc1")
                A.label(x)
            else:
                A("v_mov_b32 v20, 0")
                vm.op(f"global_load_dword v21, v20, {sp(DBG)} sc1", "nonce")
        if NLDS and k == 13:
            x = uid("nl")
            A(f"s_cmp_eq_u32 s{W_}, 0\ns_cbranch_scc1 {x}")
            A(f"ds_read_b32 v20, v{SQ} offset:{L_NONCE - 16}\ns_waitcnt lgkmcnt(0)\nv_readfirstlane_b32 s{NONCE}, v20")
            A.label(x)
        if k in CPK:
            code_touch(A, MSK)
        if WMODE:
            if k == WK:
                w_issue(A, vm)
            if k == WK + LA + 1:
                wt_read(A)
                A("s_waitcnt lgkmcnt(0)")
                wt_sym(A)
                wt_perm(A)
            if k == WSK:
                wt_store(A, vm)
        if k == KS - 1:
            assert not later
            if not ZLATE and not EARLY2:
                a2_setup(A)
        if k == KS:
            x, y = uid("sg"), uid("sg")
            if SNON:
                A.label(x)
                A(f"s_waitcnt lgkmcnt(0)\ns_cmp_lg_u32 s{NONCE}, 0\ns_cbranch_scc1 {y}")
                A(f"s_load_dword s{NONCE}, {sp(DBG)}, 0x0 glc\ns_branch {x}")
            elif NLDS:
                z = uid("nl")
                A(f"s_cmp_lg_u32 s{W_}, 0\ns_cbranch_scc1 {y}")
                A(f"v_readfirstlane_b32 s{NONCE}, v21\ns_cmp_lg_u32 s{NONCE}, 0\ns_cbranch_scc1 {z}")
                get_nonce(A, 20)
                A.label(z)
                A(f"v_mov_b32 v20, s{NONCE}\ns_mov_b64 exec, 1\nds_write_b32 v{SQ}, v20 offset:{L_NONCE - 16}\ns_mov_b64 exec, -1\ns_waitcnt lgkmcnt(0)")
            else:
                A(f"v_readfirstlane_b32 s{NONCE}, v21\ns_cmp_lg_u32 s{NONCE}, 0\ns_cbranch_scc1 {y}")
                get_nonce(A, 20)
            A.label(y)
        if k == KS and not ZLATE:
            x = uid("sg")
            A(f"s_cmp_lg_u32 s{W_}, 0\ns_cbranch_scc1 {x}")
            A(f"s_and_b32 s{T4}, s2, 15\ns_lshl_b32 s{T5}, s{T4}, 7\ns_add_u32 s{T5}, s{T5}, {CNT_A}")
            A(f"s_add_u32 s{MSK}, s{WS}, s{T5}\ns_addc_u32 s{MSK+1}, s{WS+1}, 0\ns_mov_b32 s{PH_RES}, 1")
            A(f"s_atomic_add s{PH_RES}, {sp(MSK)}, 0x0 glc")
            A.label(x)
        if k == KS + 2 and not ZLATE:
            x = uid("sg")
            A(f"s_cmp_lg_u32 s{W_}, 0\ns_cbranch_scc1 {x}")
            A(f"s_waitcnt lgkmcnt(0)\ns_cmp_lg_u32 s{PH_RES}, 15\ns_cbranch_scc1 {x}")
            A(f"s_and_b32 s{T4}, s2, 15\ns_lshl_b32 s{T4}, s{T4}, 2\ns_add_u32 s{T4}, s{T4}, {FLG_A}\nv_lshl_add_u32 v22, v1, 7, s{T4}\nv_mov_b32 v23, s{NONCE}")
            A(f"global_store_dword v22, v23, {sp(WS)} sc1")
            A.label(x)
        if KA and KA0 <= k <= KA1:
            if k == KA0:
                A(f"s_and_b32 s27, s2, 1\ns_lshl_b32 s27, s27, 10\ns_bfe_u32 s26, s2, 0x20001\ns_lshl_b32 s26, s26, 19\ns_add_u32 s27, s27, s26")
                A(f"s_lshr_b32 s26, s2, 3\ns_lshl_b32 s26, s26, 14\ns_add_u32 s27, s27, s26\ns_lshr_b32 s26, s{W_}, 1\ns_lshl_b32 s26, s26, 13\ns_add_u32 s27, s27, s26")
            for n in range(KA):
                q = (k - KA0)*KA + n
                if q < 64:
                    A(f"s_load_dword s3, s[100:101], s27 offset:{(q >> 4)*2048 + (q & 15)*64}")
        if TLBT & 4 and k == TLBK:
            page_touch(LATEP, only=7)
        if k == CTK and CTW == 0 and not CTKS:
            c_touch(A, vm)
        if k in CTKS:
            n_ = 32 // len(CTKS)
            c_touch(A, vm, ((1 << n_) - 1) << (n_*CTKS.index(k)))
        if FPOLL and k == FPOLL and not ZLATE:
            assert k >= 13
            flag_poll(A, FLG_A)
        if k < KS - 1:
            for _ in range(-(-len(later) // (KS - 1 - k))):
                A(later.pop(0))
    assert issued == 16
    if ZLATE and not EARLY2:
        a2_setup(A)
    A(f"s_setprio {LPRIO}")
    aux_rest(A, vm)
    trace(A, 0, 14)
    if TRACE:
        A("s_waitcnt vmcnt(0)")
    trace(A, 0, 15)
    trace_dump(A, 0, WAVE, 1)
    stamp_end(A, kidx, WAVE)
    A("s_endpgm")


M16 = "v_mfma_f32_16x16x32_bf16"
XRW = 144
L_XC = 114688


def cpow(A, d, zr, zi, n, t):
    if isinstance(n, str):
        A(f"v_mul_f32 v{t}, {n}, v{zr}\nv_mul_f32 v{t+1}, {n}, v{zi}")
    else:
        A(f"v_mul_f32 v{t}, {fl(n)}, v{zr}\nv_mul_f32 v{t+1}, {fl(n)}, v{zi}")
    A(f"v_exp_f32 v{t}, v{t}\nv_rndne_f32 v{t+2}, v{t+1}\nv_sub_f32 v{t+1}, v{t+1}, v{t+2}")
    A(f"v_cos_f32 v{t+2}, v{t+1}\nv_sin_f32 v{t+1}, v{t+1}")
    A(f"v_mul_f32 v{d}, v{t}, v{t+2}\nv_mul_f32 v{d+1}, v{t}, v{t+1}")


def gemm_waves(A, name, kidx):
    U = lambda pg, c, idx: 64 + (pg*2 + c)*16 + 2*idx
    ACC = lambda mt, nt: 64 + ((nt & 1)*2 + (nt >> 1))*16 + 4*mt
    FR = lambda X, f: (32 if X == 0 else 144) + 4*f
    AD = lambda st, op, k2: 128 + st*4 + op*2 + k2
    LAM = lambda pg: 20 + 2*pg
    KC = lambda pg: 24 + 2*pg
    L8 = lambda pg: 176 + 2*pg
    L16 = lambda pg: 180 + 2*pg
    PP = lambda pg: 184 + 4*pg
    PW = lambda pg, idx: 208 + 16*pg + 2*idx
    Q16, Q64, Q128, Q256 = 28, 192, 30, 2
    WT_, WP = T8, T6
    A(f"s_lshr_b32 s{WT_}, s{WAVE}, 1\ns_and_b32 s{WP}, s{WAVE}, 1\ns_lshr_b32 s{PG}, s{TJ}, 3")
    A("v_and_b32 v6, 31, v1\nv_lshrrev_b32 v5, 5, v1\nv_lshlrev_b32 v11, 4, v1")
    A("v_mov_b64 v[64:65], 0\nv_mov_b64 v[66:67], 0")
    A(f"s_mul_i32 s{T0}, s{WAVE}, {16*XRW}\ns_add_u32 s{T0}, s{T0}, {L_XC}\nv_add_u32 v13, s{T0}, v11\nv_mov_b32 v12, {L_SYNC}")
    A("ds_write_b128 v13, v[64:67]\nds_write_b128 v13, v[64:67] offset:1024\nds_write_b128 v13, v[64:67] offset:2048")
    A("s_mov_b64 exec, 1\nds_write_b128 v12, v[64:67]\nds_write_b128 v12, v[64:67] offset:16\nds_write_b128 v12, v[64:67] offset:32\nds_write_b128 v12, v[64:67] offset:48\nds_write_b128 v12, v[64:67] offset:64\ns_mov_b64 exec, -1")
    A(f"s_lshl_b32 s{T0}, s{WAVE}, 2\nv_add_u32 v13, s{T0}, v12")
    if TBG:
        assert KS0 <= 2
        done = uid("tb")
        for w, mk in enumerate((lambda: make_F(A, 20, 128), lambda: make_T(A, 128, 20, 0), lambda: make_T(A, 128, 20, 1))):
            nx = uid("tb")
            A(f"s_cmp_lg_u32 s{WAVE}, {w}\ns_cbranch_scc1 {nx}")
            mk()
            A(f"v_add_u32 v20, {L_TBL + w*8192}, v11")
            for q in range(8):
                A(f"ds_write_b128 v20, {v(128+4*q,4)} offset:{q*1024}")
            A(f"s_branch {done}")
            A.label(nx)
        A.label(done)
    A("s_waitcnt lgkmcnt(0)\ns_barrier")
    A("v_bfe_u32 v4, v1, 2, 2\nv_lshlrev_b32 v4, 3, v4\nv_and_b32 v7, 3, v1\nv_add_u32 v4, v4, v7")
    A(f"s_lshl_b32 s{T0}, s{TJ}, 6\ns_lshl_b32 s{T1}, s{WP}, 5\ns_add_u32 s{T0}, s{T0}, s{T1}")
    A(f"v_add_u32 v4, s{T0}, v4\nv_lshlrev_b32 v7, 1, v4")
    RA, RB, ROT, M0B, SOF, RV = S2, S3, 38, 39, T2, 244
    vm1 = VmCounter(A)
    if WBYG:
        A("s_waitcnt lgkmcnt(0)")
        w_addr(A, WAVE)
        srd(A, S2, WR, size=NBW)
        srd(A, S3, WI, size=NBW)
        A(f"s_lshl_b32 s{T0}, s{WAVE}, 12")
        w_tile_issue(A, vm1, T0, L_W)
    dma_setup(A, WT_, WP, RV, 14, T1, T2)
    rot_setup(A, ROT, T0)
    A(f"s_lshl_b32 s{T0}, s{TI}, 18\ns_lshl_b32 s{T1}, s{TJ}, 17\ns_lshl_b32 s{M0B}, s{WAVE}, 12")
    A("s_waitcnt lgkmcnt(0)")
    PRM = 248
    for pg in range(2):
        A(f"global_load_ushort v{PRM+3*pg}, v7, {sp(LRE)} offset:{8*pg}\nglobal_load_ushort v{PRM+1+3*pg}, v7, {sp(LIM)} offset:{8*pg}\nglobal_load_ushort v{PRM+2+3*pg}, v7, {sp(LDT)} offset:{8*pg}")
    srd(A, RA, BX, T0, 0, 0x40000)
    A(f"s_cmp_eq_u32 s{WP}, 1\ns_cselect_b32 s{T2}, s{BIM}, s{BRE}\ns_cselect_b32 s{T3}, s{BIM+1}, s{BRE+1}")
    srd(A, RB, T2, T1, 0, 0x20000)
    piece = make_piece(A, vm1, RA, RB, ROT, M0B, SOF, RV)
    for n in range(8):
        piece(0, n)
    A("v_bfe_u32 v7, v1, 4, 1\nv_lshl_add_u32 v4, v7, 2, v4")
    A("v_bfe_u32 v7, v6, 1, 3\nv_xor_b32 v7, v7, v5\nv_lshlrev_b32 v7, 4, v7\nv_lshl_add_u32 v7, v6, 7, v7")
    A("v_and_b32 v8, 15, v1\nv_lshrrev_b32 v9, 4, v1")
    A("v_lshrrev_b32 v14, 1, v8\nv_xor_b32 v14, v14, v9\nv_lshlrev_b32 v14, 4, v14\nv_lshl_add_u32 v14, v8, 7, v14")
    A(f"s_lshl_b32 s{T0}, s{WT_}, 13\ns_lshl_b32 s{T1}, s{WP}, 13\ns_add_u32 s{T1}, s{T1}, 16384")
    for k2 in range(2):
        A(f"v_xor_b32 v15, {k2 << 6}, v14")
        A(f"v_add_u32 v{AD(0,0,k2)}, s{T0}, v15\nv_add_u32 v{AD(0,1,k2)}, s{T1}, v15")
        A(f"v_add_u32 v{AD(1,0,k2)}, 0x10000, v{AD(0,0,k2)}\nv_add_u32 v{AD(1,1,k2)}, 0x10000, v{AD(0,1,k2)}")
    Areal, A = A, Asm()
    srd(A, S0, WS, None, WS_EG, 0x40000)
    srd(A, S1, WS, None, WS_HT, 64*TBS)
    A(f"s_mul_i32 s{T0}, s{WP}, {32*XRW}\ns_add_u32 s{T0}, s{T0}, {L_XC + 64}\ns_lshl_b32 s{T1}, s{WT_}, 5\ns_add_u32 s{T1}, s{T1}, s{T0}")
    A(f"v_mul_u32_u24 v14, {XRW}, v6\nv_add_u32 v14, s{T0}, v14\nv_lshl_add_u32 v14, v5, 5, v14")
    A(f"v_mul_u32_u24 v15, {XRW}, v8\nv_add_u32 v15, s{T1}, v15\nv_lshl_add_u32 v15, v9, 3, v15")
    A(f"s_lshl_b32 s{T0}, s{TI}, 14\nv_lshl_add_u32 v16, v4, 4, s{T0}")
    A("v_mov_b32 v17, 0x40000000\nv_lshlrev_b32 v10, 14, v5\nv_sub_u32 v10, v16, v10")
    LA_, LX = 194, 200
    for u in range(8):
        A(f"v_subrev_u32 v{136+u}, {16384 + u*32768}, v10\nv_cmp_le_i32 vcc, 0, v{136+u}\nv_cndmask_b32 v{136+u}, v17, v{136+u}, vcc")
    A("v_lshlrev_b32 v17, 30, v5\nv_or_b32 v16, v16, v17")
    A(f"s_lshl_b32 s{T0}, s{TI}, 11\ns_add_u32 s{T0}, s{T0}, {FLG_X}\ns_lshl_b32 s{T1}, s{TJ}, 7\ns_add_u32 s{T1}, s{T1}, s{T0}\nv_mov_b32 v195, s{T1}")
    A(f"s_lshl_b32 s{T1}, s{PG}, 10\ns_add_u32 s{T0}, s{T0}, s{T1}\nv_and_b32 v196, 7, v1\nv_lshl_add_u32 v196, v196, 7, s{T0}")
    A(f"s_lshl_b32 s{T0}, s{TI}, 1\ns_add_u32 s{T0}, s{T0}, s{WT_}\ns_lshl_b32 s{T0}, s{T0}, 12\ns_add_u32 s{T0}, s{T0}, {FLG_H}")
    A(f"s_lshl_b32 s{T1}, s{PG}, 11\ns_add_u32 s{T1}, s{T1}, s{T0}\nv_lshl_add_u32 v18, v8, 7, s{T1}")
    A(f"s_lshl_b32 s{T1}, s{TJ}, 8\ns_add_u32 s{T0}, s{T0}, s{T1}\ns_lshl_b32 s{T1}, s{WP}, 7\ns_add_u32 s{T0}, s{T0}, s{T1}\nv_mov_b32 v19, s{T0}")
    A("v_lshrrev_b32 v10, 1, v9\nv_lshlrev_b32 v10, 10, v10\nv_and_b32 v17, 1, v9\nv_lshl_add_u32 v10, v17, 9, v10\nv_lshl_add_u32 v10, v8, 4, v10")
    A(f"s_lshl_b32 s{T0}, s{WT_}, 2\nv_add_u32 v9, s{T0}, v9\nv_cvt_f32_u32 v9, v9\nv_mul_f32 v9, 0x41800000, v9\nv_add_f32 v8, 0x41000000, v9")
    A("PARAMWAIT")
    ZR, ZI = 204, 206
    for pg in range(2):
        lr, li, dt, t = PRM+3*pg, PRM+1+3*pg, PRM+2+3*pg, 197
        A(f"v_lshlrev_b32 v{lr}, 16, v{lr}\nv_lshlrev_b32 v{li}, 16, v{li}\nv_lshlrev_b32 v{dt}, 16, v{dt}")
        A(f"v_mul_f32 v{dt}, 0x3fb8aa3b, v{dt}\nv_exp_f32 v{dt}, v{dt}")
        A(f"v_cvt_pk_bf16_f32 v{dt}, v{dt}, v{dt}\nv_lshlrev_b32 v{dt}, 16, v{dt}")
        A(f"v_mul_f32 v{ZR+pg}, v{dt}, v{lr}\nv_mul_f32 v{ZI+pg}, v{dt}, v{li}")
        A(f"v_mul_f32 v{ZR+pg}, 0x3fb8aa3b, v{ZR+pg}\nv_mul_f32 v{ZI+pg}, 0.15915494, v{ZI+pg}")
        cpow(A, LAM(pg), ZR+pg, ZI+pg, 1.0, t)
        A(f"v_add_f32 v{t}, -1.0, v{LAM(pg)}")
        A(f"v_mul_f32 v{t+1}, v{lr}, v{lr}\nv_fma_f32 v{t+1}, v{li}, v{li}, v{t+1}\nv_rcp_f32 v{t+1}, v{t+1}")
        A(f"v_add_f32 v{t+1}, v{t+1}, v{t+1}")
        A(f"v_mul_f32 v{t+2}, v{t}, v{lr}\nv_fma_f32 v{t+2}, v{LAM(pg)+1}, v{li}, v{t+2}\nv_mul_f32 v{KC(pg)}, v{t+2}, v{t+1}")
        A(f"v_mul_f32 v{t+2}, v{LAM(pg)+1}, v{lr}\nv_fma_f32 v{t+2}, -v{t}, v{li}, v{t+2}\nv_mul_f32 v{KC(pg)+1}, v{t+2}, v{t+1}")
        cpow(A, L8(pg), ZR+pg, ZI+pg, 8.0, t)
        cpow(A, L16(pg), ZR+pg, ZI+pg, 16.0, t)
        for e in range(2):
            cpow(A, 200, ZR+pg, ZI+pg, f"v{9-e}", t)
            A(f"v_mov_b32 v{PP(pg)+e}, v200\nv_mov_b32 v{PP(pg)+2+e}, v201")
        for idx in range(8):
            sr, si = (KC(pg), KC(pg)+1) if idx == 0 else (PW(pg, idx-1), PW(pg, idx-1)+1)
            A(f"v_mul_f32 v{t}, v{si}, v{LAM(pg)+1}\nv_mul_f32 v{t+1}, v{si}, v{LAM(pg)}")
            A(f"v_fma_f32 v{PW(pg,idx)}, v{sr}, v{LAM(pg)}, -v{t}\nv_fma_f32 v{PW(pg,idx)+1}, v{sr}, v{LAM(pg)+1}, v{t+1}")
    A(f"v_and_b32 v197, 16, v1\nv_cmp_ne_u32 vcc, 0, v197\nv_cndmask_b32 v{ZR}, v{ZR}, v{ZR+1}, vcc\nv_cndmask_b32 v{ZI}, v{ZI}, v{ZI+1}, vcc")
    for d, n in ((Q16, 16.0), (Q64, 64.0), (Q128, 128.0), (Q256, 256.0)):
        cpow(A, d, ZR, ZI, n, 197)
    A("v_lshrrev_b32 v197, 4, v1\nv_lshlrev_b32 v197, 2, v197\nv_and_b32 v198, 15, v1\nv_sub_u32 v197, v198, v197\nv_mov_b32 v198, 0x3f80\nv_mov_b32 v199, 1.0")
    for c in range(4):
        A(f"v_cmp_eq_u32 vcc, {c}, v197\nv_cndmask_b32 v{248+c}, 0, v198, vcc\nv_cndmask_b32 v{252+c}, 0, v199, vcc")

    deferred, A = A.lines, Areal
    if WBYG:
        A(f"s_waitcnt vmcnt({6 + 8})")
        A(f"s_mov_b64 exec, 1\nv_mov_b32 v197, 1\nds_write_b32 v13, v197 offset:{RING_LG}\ns_mov_b64 exec, -1")
    pw = deferred.index("PARAMWAIT")
    for l in deferred[:pw]:
        A(l)
    deferred = deferred[pw+1:]
    assert KS0 <= NPRE
    if DEFER:
        for k in range(1, KS0):
            for n in range(8):
                piece(k, n)
        if PRED:
            A(f"s_waitcnt vmcnt({8*KS0})")
            for _ in range(min(PRED, len(deferred))):
                A(deferred.pop(0))
    else:
        npre = 8
        if P1 == 0 and KS0 > 1:
            for n in range(8):
                piece(1, n)
            npre = 16
        A(f"s_waitcnt vmcnt({npre})")
        rest = [(k, n) for k in range(npre//8, KS0) for n in range(8)]
        lo, hi = int(len(deferred)*P2A/100), int(len(deferred)*P2B/100)
        at = [lo + (hi - lo)*q//max(1, len(rest)) for q in range(len(rest))]
        for i, l in enumerate(deferred):
            while at and at[0] <= i and l.startswith("v_") and not l.startswith("v_cnd"):
                at.pop(0)
                piece(*rest.pop(0))
            A(l)
        for r_ in rest:
            piece(*r_)
        deferred = []
    order = [0, 4, 5, 6, 7, 1, 2, 3]
    need = {0: 2, 1: 3, 2: 4, 3: 5, 4: 6, 8: 7, 12: 8}

    def rd(k, k2, f):
        slot = k % NS
        st, off = slot >> 1, (slot & 1)*32768
        A(f"ds_read_b128 {v(FR(k2, f), 4)}, v{AD(st, f >> 2, k2)} offset:{off + (f & 3)*2048}")
    trace_init(A, 0)
    trace(A, 0, 0)
    A(f"s_setprio {GPRIO}")
    def ring_arrive(k, t=197):
        A(f"s_mov_b64 exec, 1\nv_mov_b32 v{t}, {k}\nds_write_b32 v13, v{t} offset:{RING_D}\ns_mov_b64 exec, -1")
    trace(A, 0, 35)
    vm1.wait_for(("st", 0))
    trace(A, 0, 36)
    A("s_barrier")
    trace(A, 0, 37)
    trace(A, 0, 1)
    for f in order:
        rd(0, 0, f)
    for k in range(16):
        for k2 in range(2):
            nk, nk2 = (k, 1) if k2 == 0 else (k+1, 0)
            have = nk < 16
            if k2 == 1:
                w = f"vmcnt({vm1.wait_for(('st', k+1), emit=False)}) " if k + 1 < KS0 else ""
                A(f"s_waitcnt {w}lgkmcnt(0)")
                if have:
                    A("s_barrier")
            if k == 13 and k2 == 0:
                assert not deferred, len(deferred)
                if not NLDS:
                    A(f"v_mov_b32 v8, 0\nglobal_load_dword v9, v8, {sp(DBG)} sc1")
            n = 0
            for m in range(16):
                if k2 == 0 and m in need:
                    A(f"s_waitcnt lgkmcnt({8 - need[m] + n})")
                mt, nt = m >> 2, m & 3
                if "m" not in G1X or k + k2 == 0:
                    A(f"{M16} {v(ACC(mt,nt),4)}, {v(FR(k2,mt),4)}, {v(FR(k2,4+nt),4)}, {'0' if k + k2 == 0 else v(ACC(mt,nt),4)}")
                if have and n < 8:
                    if "r" not in G1X:
                        rd(nk, nk2, order[n])
                    n += 1
                elif k >= DK0:
                    for _ in range(DEFER):
                        if deferred:
                            A(deferred.pop(0))
            if NLDS and k == 15 and k2 == 0:
                A(f"ds_read_b32 v9, v12 offset:{L_NONCE}")
            elif NLDS and k == 15 and k2 == 1:
                A(f"v_readfirstlane_b32 s{NONCE}, v9")
                A(f"s_getreg_b32 s{T0}, hwreg(HW_REG_XCC_ID, 0, 4)\ns_lshl_b32 s{T1}, s{NONCE}, 4\ns_or_b32 s{LOCAL}, s{T0}, s{T1}")
                A(f"v_mov_b32 v194, s{LOCAL}\nv_mov_b32 v202, s{NONCE}\nv_mov_b32 v203, s{NONCE}")
            elif not NLDS and k == 15 and k2 == 0:
                nl, ng = uid("n"), uid("ng")
                A.label(nl)
                A(f"s_waitcnt vmcnt(0)\nv_readfirstlane_b32 s{NONCE}, v9\ns_cmp_lg_u32 s{NONCE}, 0\ns_cbranch_scc1 {ng}")
                A(f"global_load_dword v9, v8, {sp(DBG)} sc1\ns_branch {nl}")
                A.label(ng)
                A(f"s_getreg_b32 s{T0}, hwreg(HW_REG_XCC_ID, 0, 4)\ns_lshl_b32 s{T1}, s{NONCE}, 4\ns_or_b32 s{LOCAL}, s{T0}, s{T1}")
                A(f"v_mov_b32 v194, s{LOCAL}\nv_mov_b32 v202, s{NONCE}\nv_mov_b32 v203, s{NONCE}")
            if TRACE == 2 and k2 == 1:
                trace(A, 0, 40 + k)
    mark(A, 1)
    trace(A, 0, 2)
    bc_a = "op_sel_hi:[0,1,1]"
    bc_b = "op_sel:[1,0,0]"
    TT = 40
    for idx in range(1, 8):
        for half in range(2):
            for pg in range(2):
                L, t = v(LAM(pg), 2), TT + 4*pg
                pr, pi, ur, ui = (v(x, 2) for x in (U(pg, 0, idx-1), U(pg, 1, idx-1), U(pg, 0, idx), U(pg, 1, idx)))
                if half == 0:
                    A(f"v_pk_fma_f32 {v(t,2)}, {L}, {pr}, {ur} {bc_a}\nv_pk_fma_f32 {v(t+2,2)}, {L}, {pi}, {ui} {bc_a}")
                else:
                    A(f"v_pk_fma_f32 {ur}, {L}, {pi}, {v(t,2)} {bc_b} {N0}\nv_pk_fma_f32 {ui}, {L}, {pr}, {v(t+2,2)} {bc_b}")
    for pg in range(2):
        er, ei = U(pg, 0, 7), U(pg, 1, 7)
        horner(A, 32+2*pg, 33+2*pg, L8(pg), er, ei, er+1, ei+1, TT)
        A(f"ds_write_b64 v15, {v(32+2*pg,2)} offset:{16*XRW*pg}")
    trace(A, 0, 3)
    A("s_waitcnt lgkmcnt(0)")
    ring_arrive(17)
    l_, d_ = uid("ek"), uid("ekd")
    A.label(l_)
    A(f"ds_read_b128 v[198:201], v12 offset:{RING_D}\ns_waitcnt lgkmcnt(0)")
    A("v_min3_u32 v197, v198, v199, v200\nv_min_u32 v197, v197, v201")
    A(f"v_readfirstlane_b32 s{T0}, v197\ns_cmp_lt_u32 s{T0}, 17\ns_cbranch_scc1 {l_}")
    trace(A, 0, 4)
    SG = 48
    A(f"ds_read_b128 {v(SG,4)}, v14\nds_read_b128 {v(SG+4,4)}, v14 offset:16")
    P = 200
    A("s_waitcnt lgkmcnt(1)")
    horner(A, 32, 33, Q16, SG, SG+1, SG+2, SG+3, TT)
    A("s_waitcnt lgkmcnt(0)")
    horner(A, 34, 35, Q16, 32, 33, SG+4, SG+5, TT)
    horner(A, 32, 33, Q16, 34, 35, SG+6, SG+7, TT)
    A("v_mov_b32 v34, v32\nv_mov_b32 v35, v33\nv_permlane32_swap_b32 v32, v34\nv_permlane32_swap_b32 v33, v35")
    horner(A, P, P+1, Q64, 32, 33, 34, 35, TT)
    np_ = uid("np")
    A(f"s_cmp_lg_u32 s{WT_}, 0")
    A(f"s_cbranch_scc1 {np_}")
    A(f"buffer_store_dwordx4 {v(P,4)}, v16, {r4(S0)}, 0 offen sc1")
    A(f"s_cmp_lg_u32 s{WP}, 0")
    A(f"s_cbranch_scc1 {np_}")
    A(f"s_mov_b64 exec, 1\nglobal_store_dword v195, v194, {sp(WS)} sc1\ns_mov_b64 exec, -1")
    A.label(np_)
    mark(A, 2)
    trace(A, 0, 5)
    A(f"global_load_dword v243, v18, {sp(WS)} sc1")
    LB = 144

    def lbloads():
        for u in range(8):
            A(f"buffer_load_dwordx4 {v(LB+4*u,4)}, v{136+u}, {r4(S0)}, 0 offen sc1")
        A(f"global_load_dword v197, v196, {sp(WS)} sc1")
    QS = 32
    A("v_add_u32 v15, -56, v15")
    for pg in range(2):
        for w in range(7):
            A(f"ds_read_b64 {v(QS+14*pg+2*w,2)}, v15 offset:{16*XRW*pg + 8*w}")
    QQ = lambda pg: 128 + 4*pg
    TQ = 60
    A("s_waitcnt lgkmcnt(0)")
    for pg in range(2):
        b = QS + 14*pg
        for w in range(1, 6):
            horner(A, b+2*w, b+2*w+1, L16(pg), b+2*w-2, b+2*w-1, b+2*w, b+2*w+1, TQ)
        horner(A, QQ(pg), QQ(pg)+2, L16(pg), b+10, b+11, b+12, b+13, TQ)
        horner(A, QQ(pg)+1, QQ(pg)+3, L8(pg), QQ(pg), QQ(pg)+2, U(pg, 0, 7), U(pg, 1, 7), TQ)
    trace(A, 0, 6)
    O = 32
    cnt = 0
    if LBAT == 0:
        lbloads()
    for idx in range(8):
        for pg in range(2):
            d0, d1, K_, o = v(U(pg, 0, idx), 2), v(U(pg, 1, idx), 2), v(KC(pg), 2), O + 4*pg
            A(f"v_pk_mul_f32 {v(o,2)}, {K_}, {d0} op_sel_hi:[0,1]")
            A(f"v_pk_mul_f32 {v(o+2,2)}, {K_}, {d1} op_sel_hi:[0,1] neg_lo:[1,0] neg_hi:[1,0]")
            A(f"v_pk_fma_f32 {v(o+2,2)}, {K_}, {d0}, {v(o+2,2)} {bc_b} {N0}")
            A(f"v_pk_fma_f32 {d0}, {K_}, {d1}, {v(o,2)} {bc_b} {N0}")
            A(f"v_mov_b64 {d1}, {v(o+2,2)}")
            cnt += 1
            if cnt == LBAT:
                lbloads()
    trace(A, 0, 7)
    A("v_mov_b32 v14, 1\ns_mov_b64 exec, 1\nds_write_b32 v13, v14\ns_mov_b64 exec, -1")
    M0B, RH, RCc, SH, SC = T7, T5, T4, T3, T2
    ACC2 = lambda nt: 32 + 16*nt
    CF = lambda X, nt: 96 + 16*X + 4*nt
    XR, CV = 128, 244
    HR = lambda s_: 148 + 4*(s_ % HD)
    L_OWN = 65536
    A(f"s_xor_b32 s{T0}, s{WT_}, s{PG}\ns_xor_b32 s{T0}, s{T0}, 1\ns_lshl_b32 s{T0}, s{T0}, 6\ns_add_u32 s{T0}, s{T0}, s{WP}")
    A(f"v_lshrrev_b32 v8, 3, v1\nv_lshl_add_u32 v8, v8, 1, s{T0}\nv_lshlrev_b32 v8, 11, v8")
    A("v_and_b32 v14, 7, v1\nv_lshrrev_b32 v15, 4, v1\nv_xor_b32 v14, v14, v15\nv_lshlrev_b32 v14, 4, v14\nv_xor_b32 v15, 64, v14")
    for u in range(4):
        A(f"v_add_u32 v{CV+u}, v8, v{14 + (u & 1)}")
        if u:
            A(f"v_add_u32 v{CV+u}, {u*(16*2048 - 1024)}, v{CV+u}")
    A(f"s_and_b32 s{RCc}, s{TJ}, 7\ns_lshl_b32 s{T0}, s{RCc}, 18\ns_lshl_b32 s{T1}, s{PG}, 10\ns_add_u32 s{T0}, s{T0}, s{T1}")
    srd(A, S2, CRE, T0, 0, 0x40000, T1)
    srd(A, S3, CIM, T0, 0, 0x40000, T1)
    A(f"s_lshl_b32 s{T1}, s{RCc}, 1\ns_add_u32 s{T1}, s{T1}, s{PG}\ns_lshl_b32 s{T1}, s{T1}, 7")
    A(f"s_lshl_b32 s{SH}, s{TI}, 1\ns_add_u32 s{SH}, s{SH}, s{WT_}\ns_lshl_b32 s{T0}, s{SH}, 17\ns_add_u32 s{T0}, s{T0}, s{T1}")
    srd(A, S4, BX, T0, 0, 0x20000, T1)
    A(f"s_add_u32 s{DSK}, s{DSK}, s{T1}\ns_addc_u32 s{DSK+1}, s{DSK+1}, 0")
    A(f"s_lshl_b32 s{T1}, s{T1}, 1\ns_add_u32 s{T1}, s{T1}, 4096\ns_lshl_b32 s{T0}, s{SH}, 19\ns_add_u32 s{T0}, s{T0}, s{T1}")
    A(f"s_add_u32 s{OUT}, s{OUT}, s{T0}\ns_addc_u32 s{OUT+1}, s{OUT+1}, 0\ns_sub_u32 s{LDT}, 0x80000, s{T1}")
    A(f"s_lshl_b32 s{M0B}, s{WAVE}, 12\ns_lshl_b32 s{RH}, s{RCc}, 13\ns_lshl_b32 s{RCc}, s{RCc}, 7")
    A(f"s_lshl_b32 s{T0}, s{WT_}, 14\ns_lshl_b32 s{T1}, s{WP}, 11\ns_add_u32 s{T0}, s{T0}, s{T1}\ns_add_u32 s{T0}, s{T0}, {L_OWN}\nv_add_u32 v16, s{T0}, v10")
    A(f"s_lshl_b32 s{T0}, s{WAVE}, 13\ns_add_u32 s{T0}, s{T0}, {L_OWN}\nv_add_u32 v17, s{T0}, v11")
    for ks in range(4):
        A(f"v_xor_b32 v{20+ks}, {ks << 5}, v7\nv_add_u32 v{24+ks}, 0x10000, v{20+ks}")
    HB = LIM
    A(f"s_mul_i32 s{HB}, s{SH}, {2*TBS}\ns_lshl_b32 s{T1}, s{TJ}, 13\ns_add_u32 s{HB}, s{HB}, s{T1}\ns_lshl_b32 s{T1}, s{WP}, 11\ns_add_u32 s{HB}, s{HB}, s{T1}")
    for u in range(8):
        A(f"v_cmp_gt_u32 vcc, 0x40000, v{136+u}\nv_cndmask_b32 v{40+u}, 0, v202, vcc")
    A(f"s_mov_b32 s{T9}, 0")
    trace(A, 0, 8)
    pl, pd = uid("poll"), uid("polled")
    A.label(pl)
    A("v_mov_b32 v8, 0")
    for u in range(8):
        A(f"s_waitcnt vmcnt({8-u})")
        A(f"v_bitop3_b32 v8, v8, v{LB+4*u+2}, v{40+u} bitop3:0xf6\nv_bitop3_b32 v8, v8, v{LB+4*u+3}, v{40+u} bitop3:0xf6")
    A("s_waitcnt vmcnt(0)\nv_xor_b32 v197, v194, v197\nv_lshrrev_b32 v9, 4, v197\nv_or_b32 v8, v8, v9\nv_cmp_ne_u32 vcc, 0, v8")
    A(f"s_cbranch_vccz {pd}")
    A(f"s_add_u32 s{T9}, s{T9}, 1\ns_cmp_ge_u32 s{T9}, {SPIN_MAX}")
    A(f"s_cbranch_scc1 {pd}")
    lbloads()
    A(f"s_branch {pl}")
    A.label(pd)
    A(f"v_cmp_ne_u32 vcc, 0, v197\ns_cmp_eq_u64 vcc, 0\ns_cselect_b32 s{LOCAL}, {0 if FORCE_REMOTE else 1}, 0")
    mark(A, 3)
    trace(A, 0, 9)
    if TRACE:
        A(f"v_writelane_b32 v0, s{T9}, 63")
    vm = VmCounter(A)

    def cdma(g, us):
        for u in us:
            if u == 0:
                A(f"s_add_u32 m0, s{M0B}, {(g % R)*16384}")
                if g % 2 == 0:
                    A(f"s_add_u32 s{SC}, s{RCc}, {(g >> 1)*128}\ns_and_b32 s{SC}, s{SC}, 0x3ff")
            vm.op(f"buffer_load_dwordx4 v{CV+u}, {r4(S2 if g % 2 == 0 else S3)}, s{SC} offen offset:{u*1024}{NTC} lds", ("c", g))
    cdma(0, range(4))
    cdma(1, range(4))
    A("v_mov_b32 v14, 2\ns_mov_b64 exec, 1\nds_write_b32 v13, v14\ns_mov_b64 exec, -1")
    H0 = LB + 28
    cur = (H0, H0+1)
    for u in range(6, -1, -1):
        d = (48, 49) if cur[0] == H0 else (H0, H0+1)
        horner(A, d[0], d[1], Q256, cur[0], cur[1], LB+4*u, LB+4*u+1, TT)
        cur = d
    assert cur == (48, 49)
    A("v_mov_b32 v50, v48\nv_mov_b32 v51, v49\nv_permlane32_swap_b32 v48, v50\nv_permlane32_swap_b32 v49, v51")
    horner(A, 52, 53, Q128, 50, 51, 48, 49, TT)
    A("v_mov_b32 v54, v52\nv_mov_b32 v55, v53\nv_permlane16_swap_b32 v52, v54\nv_permlane16_swap_b32 v53, v55")
    trace(A, 0, 10)
    G = lambda pg: QQ(pg)
    for pg in range(2):
        Hh, gr, gi, pr, pi = v(52+2*pg, 2), v(G(pg), 2), v(G(pg)+2, 2), v(PP(pg), 2), v(PP(pg)+2, 2)
        A(f"v_pk_fma_f32 {gr}, {Hh}, {pr}, {gr} {bc_a}\nv_pk_fma_f32 {gi}, {Hh}, {pi}, {gi} {bc_a}")
        A(f"v_pk_fma_f32 {gr}, {Hh}, {pi}, {gr} {bc_b} {N0}\nv_pk_fma_f32 {gi}, {Hh}, {pr}, {gi} {bc_b}")
    PK = lambda pg, c, idx: 144 + (pg*2 + c)*8 + idx
    D = lambda c, X, pg: 32 + ((c*2 + X)*2 + pg)*4

    def fix(pg, idx):
        d0, d1, pw, gr, gi = v(U(pg, 0, idx), 2), v(U(pg, 1, idx), 2), v(PW(pg, idx), 2), v(G(pg), 2), v(G(pg)+2, 2)
        A(f"v_pk_fma_f32 {d0}, {pw}, {gr}, {d0} {bc_a}")
        A(f"v_pk_fma_f32 {d1}, {pw}, {gi}, {d1} {bc_a} {N0}")
        A(f"v_pk_fma_f32 {d0}, {pw}, {gi}, {d0} {bc_b} {N0}")
        A(f"v_pk_fma_f32 {d1}, {pw}, {gr}, {d1} {bc_b} {N0}")
        for c in range(2):
            A(f"v_cvt_pk_bf16_f32 v{PK(pg,c,idx)}, v{U(pg,c,idx)}, v{U(pg,c,idx)+1}")

    def tr(u):
        for c in range(2):
            for X in range(2):
                for pg in range(2):
                    A(f"{M16} {v(D(c,X,pg),4)}, {v(PK(pg,c,4*u),4)}, {v(248+4*X,4)}, 0")

    def st(u):
        for c in range(2):
            for X in range(2):
                q = 176 + 16*u + (c*2 + X)*4
                A(f"s_add_u32 s{T1}, s{HB}, {X*TBS + c*4096}")
                for jj in range(4):
                    A(f"v_cvt_pk_bf16_f32 v{q+jj}, v{D(c,X,0)+2*jj}, v{D(c,X,0)+2*jj+1}")
                vm.op(f"buffer_store_dwordx4 {v(q,4)}, v10, {r4(S1)}, s{T1} offen offset:{u*256} sc1", "hst")
                A(f"ds_write_b128 v16, {v(q,4)} offset:{X*8192 + c*4096 + u*256}")
    for u in range(2):
        for idx in range(4*u, 4*u + 4):
            for pg in range(2):
                fix(pg, idx)
            if u == 1 and idx == 5:
                st(0)
                trace(A, 0, 12)
        tr(u)
        if u == 0:
            trace(A, 0, 11)
    st(1)
    mark(A, 4)
    trace(A, 0, 13)
    NK = 64

    def arrive(val):
        A(f"v_mov_b32 v14, {val}")
        A("s_mov_b64 exec, 1\nds_write_b32 v13, v14\ns_mov_b64 exec, -1")

    def check(val, off=0, first=False):
        l, d = uid("ck"), uid("ckd")
        if first:
            A(f"ds_read_b128 v[8:11], v12 offset:{off}\ns_waitcnt lgkmcnt(0)")
        A.label(l)
        A("v_min3_u32 v15, v8, v9, v10\nv_min_u32 v15, v15, v11")
        A(f"v_readfirstlane_b32 s{T0}, v15")
        A(f"s_cmp_ge_u32 s{T0}, {val}")
        A(f"s_cbranch_scc1 {d}")
        A(f"ds_read_b128 v[8:11], v12 offset:{off}\ns_waitcnt lgkmcnt(0)")
        A(f"s_branch {l}")
        A.label(d)

    HM, JS = 38, 39

    def hpoll(n):
        l, d = uid("hp"), uid("hpd")
        A(f"s_mov_b32 s{CNT}, 0")
        A.label(l)
        A(f"global_load_dword v3, v18, {sp(WS)} sc1\ns_waitcnt vmcnt(0)")
        A(f"v_cmp_eq_u32 vcc, s{NONCE}, v3\ns_nop 1\ns_and_b32 s{HM}, vcc_lo, 0xffff")
        A(f"s_lshl_b32 s3, s{HM}, 16\ns_or_b32 s{HM}, s{HM}, s3\ns_lshr_b32 s{HM}, s{HM}, s{JS}")
        A(f"s_lshr_b32 s3, s{HM}, 1\ns_and_b32 s{HM}, s{HM}, s3")
        A(f"s_bitcmp1_b32 s{HM}, {2*n}\ns_cbranch_scc1 {d}")
        if SLP_H:
            A(f"s_sleep {SLP_H}")
        A(f"s_add_u32 s{CNT}, s{CNT}, 1\ns_cmp_lt_u32 s{CNT}, {SPIN_MAX}\ns_cbranch_scc1 {l}")
        A.label(d)

    def hload(s_):
        if PBG and s_ % 8 == 0 and s_ >= 16:
            ok = uid("hok")
            A(f"s_bitcmp1_b32 s{HM}, {2*(s_ >> 3)}\ns_cbranch_scc1 {ok}")
            hpoll(s_ >> 3)
            A.label(ok)
        if s_ % 4 == 0:
            A(f"s_add_u32 s{SH}, s{RH}, {(s_ >> 2)*4096}\ns_and_b32 s{SH}, s{SH}, 0xffff")
        vm.op(f"buffer_load_dwordx4 {v(HR(s_),4)}, v2, {r4(S0)}, s{SH} offen offset:{(s_ & 3)*1024} sc1", ("h", s_))

    def rd2(s_, nts):
        g, ks = s_ >> 2, s_ & 3
        slot = g % R
        base = 20 if slot < 4 else 24
        for nt in nts:
            A(f"ds_read_b128 {v(CF(s_ & 1, nt),4)}, v{base+ks} offset:{(slot & 3)*16384 + nt*4096}")

    def mf(s_, nt):
        c = "0" if s_ == 0 else v(ACC2(nt), 16)
        if E_("HACK16", 0) & 2:
            for z in range(2):
                d = ACC2(nt) + 8*(s_ & 1) + 4*z
                A(f"v_mfma_f32_16x16x32_bf16 {v(d,4)}, {v(HR(s_),4)}, {v(CF(s_ & 1, nt),4)}, {'0' if s_ < 2 else v(d,4)}")
        else:
            A(f"{MF} {v(ACC2(nt),16)}, {v(HR(s_),4)}, {v(CF(s_ & 1, nt),4)}, {c}")
    A("v_mov_b32 v2, v11")
    A(f"s_lshl_b32 s{T0}, s{TI}, 2\ns_add_u32 s{T0}, s{T0}, s{WAVE}\ns_mul_i32 s{T0}, s{T0}, {TBS}\ns_lshl_b32 s{T1}, s{PG}, 16\ns_add_u32 s{T0}, s{T0}, s{T1}")
    srd(A, S0, WS, T0, WS_HT, 0x10000)
    if not OWNFIRST and C23:
        cdma(2, range(4))
        cdma(3, range(4))
    A(f"s_waitcnt vmcnt({vm.wait_for(('c', 1), emit=False)}) lgkmcnt(0)")
    trace(A, 0, 14)
    arrive(3)
    check(3, first=True)
    trace(A, 0, 15)
    for s_ in range(8):
        A(f"ds_read_b128 {v(HR(s_),4)}, v17 offset:{s_*1024}")
    hn = [8]

    def pause():
        A(f"s_lshl_b32 s{T0}, s{WP}, 3\nv_lshl_add_u32 v17, v5, 4, s{T0}")
        A("v_lshlrev_b32 v28, 11, v17\nv_lshl_add_u32 v28, v6, 2, v28")
        A("v_lshlrev_b32 v29, 13, v17\nv_lshl_add_u32 v29, v6, 3, v29")
        A(f"v_lshlrev_b32 v30, 2, v6\nv_mov_b32 v15, s{NONCE}")
        a, b = uid("rs"), uid("rd")
        trace(A, 0, 16)
        vm.wait_for("hst")
        trace(A, 0, 17)
        A(f"s_mov_b64 exec, 1\ns_cmp_eq_u32 s{LOCAL}, 0\ns_cbranch_scc1 {a}")
        A(f"global_store_dword v19, v15, {sp(WS)}\ns_branch {b}")
        A.label(a)
        A(f"global_store_dword v19, v15, {sp(WS)} sc1")
        A.label(b)
        A("s_mov_b64 exec, -1")
        if not E_("GM", 0):
            mark(A, 5)
        check(4, first=True)
        if not NOAUX:
            check(LIMG_FREE, 16, first=True)
        if CTOUCH == 5:
            xtouch(1)
        if CTOUCH == 8:
            ctouch()
        for gg in range(4 if C23 else 2, CPOLL):
            cdma(gg, range(4))
        trace(A, 0, 18)
        if PBG:
            A(f"s_and_b32 s{JS}, s{TJ}, 7\ns_lshl_b32 s{JS}, s{JS}, 1")
            hpoll(1)
        else:
            wait_cnt(A, 18, 8, SLP_H)
        trace(A, 0, 19)
        vm.issued = []
        if not E_("GM", 0):
            mark(A, 6)
        if OWNFIRST:
            arrive(5)
        gg = max(4, CPOLL)
        while hn[0] < 8 + HPRE:
            hload(hn[0])
            hn[0] += 1
            if hn[0] % 4 == 0 and gg < CPRE:
                cdma(gg, range(4))
                gg += 1
        assert gg == CPRE
        if OWNFIRST:
            check(5, first=True)
        trace(A, 0, 20)
        rd2(8 if OWNFIRST else 0, range(4))

    def flag_store():
        a, b = uid("rs"), uid("rd")
        A(f"s_mov_b64 exec, 1\ns_cmp_eq_u32 s{LOCAL}, 0\ns_cbranch_scc1 {a}")
        A(f"global_store_dword v19, v15, {sp(WS)}\ns_branch {b}")
        A.label(a)
        vm.op(f"global_store_dword v19, v15, {sp(WS)} sc1", "flag")
        A.label(b)
        A("s_mov_b64 exec, -1")
    if HTAG:
        A("s_waitcnt lgkmcnt(0)")
        arrive(4)
        A(f"s_lshl_b32 s{T0}, s{WP}, 3\nv_lshl_add_u32 v17, v5, 4, s{T0}")
        A("v_lshlrev_b32 v28, 11, v17\nv_lshl_add_u32 v28, v6, 2, v28")
        A("v_lshlrev_b32 v29, 13, v17\nv_lshl_add_u32 v29, v6, 3, v29")
        A(f"v_lshlrev_b32 v30, 2, v6\nv_mov_b32 v15, s{NONCE}")
        if HTAG == 1:
            wl, wd = uid("hw"), uid("hwd")
            A(f"s_add_u32 s{T1}, s{RH}, 8192\ns_and_b32 s{T1}, s{T1}, 0xffff\ns_mov_b32 s{CNT}, 0\ns_waitcnt lgkmcnt(0)")
            A.label(wl)
            A(f"s_load_dwordx4 s[4:7], {sp(S0)}, s{T1} offset:{4096 + 1024 + 1008} glc\ns_load_dwordx4 s[8:11], {sp(S0)}, s{T1} offset:{4096 + 3072 + 1008} glc")
            A(f"s_add_u32 s{CNT}, s{CNT}, 1\ns_waitcnt lgkmcnt(0)")
            for q in range(2):
                A(f"s_xor_b64 s[{4+2*q}:{5+2*q}], s[{4+2*q}:{5+2*q}], s[{HT_+2*q}:{HT_+2*q+1}]\ns_xor_b64 s[{8+2*q}:{9+2*q}], s[{8+2*q}:{9+2*q}], s[{HT_+2*q}:{HT_+2*q+1}]")
            A("s_or_b64 s[4:5], s[4:5], s[6:7]\ns_or_b64 s[8:9], s[8:9], s[10:11]\ns_or_b64 s[4:5], s[4:5], s[8:9]\ns_or_b32 s4, s4, s5\ns_and_b32 s4, s4, 0x10001")
            A(f"s_cbranch_scc0 {wd}\ns_cmp_lt_u32 s{CNT}, {SPIN_MAX}\ns_cbranch_scc1 {wl}")
            A.label(wd)
        if HTAG == 3:
            vm.wait_for('hst')
            flag_store()
        if HTAG == 2 and HDLY:
            A(f"s_waitcnt vmcnt({vm.wait_for('hst', emit=False) + HDLY})")
        mark(A, 6)
        for s_ in range(8, 16):
            hload(s_)
        hn[0] = 16
        if HTAG != 3:
            vm.wait_for("hst")
            flag_store()
        if not E_("GM", 0):
            mark(A, 5)
        check(4, first=True)
        if not NOAUX:
            check(LIMG_FREE, 16, first=True)
        for gg in range(4, CPOLL):
            cdma(gg, range(4))
        rd2(0, range(4))
    elif OWNFIRST:
        rd2(0, range(4))
        A("s_waitcnt lgkmcnt(4)")
        arrive(4)
    else:
        A("s_waitcnt lgkmcnt(0)")
        arrive(4)
        pause()
    def xload(e, st):
        q, r = e >> 2, e & 3
        A(f"s_mov_b32 s{st}, {(32*(q & 1) + 4*(q >> 1) + (r & 2))*2048}")
        vm.op(f"buffer_load_dword v{XR+e}, v28, {r4(S4)}, s{st} offen offset:{(r & 1)*2048}", ("x", e))
    have_c = lambda g: any(t == ("c", g) for t in vm.issued)
    for s_ in range(NK):
        g, ks = s_ >> 2, s_ & 3
        nxt = s_ + 1
        more = nxt < NK and not (nxt == 8 and OWNFIRST)
        ws = []
        if s_ >= 8:
            ws.append(vm.wait_for(("h", s_), emit=False))
        arr = (s_ + 4) % 8 == 0 and s_ + 4 < NK and (s_ >= 8 or not OWNFIRST)
        if arr:
            gl = ((s_ + 4) >> 2) + 1
            if have_c(gl):
                ws.append(vm.wait_for(("c", gl), emit=False))
        wv = f"vmcnt({min(ws)}) " if ws else ""
        newgrp = more and nxt % 8 == 0
        full = newgrp or not more or s_ == 0
        nc = 2 if s_ >= NK - NDEF else 4
        nn = (2 if nxt >= NK - NDEF else 4) if more else 0
        if full:
            A(f"s_waitcnt {wv}lgkmcnt(0)")
            if newgrp:
                check((nxt >> 3) + 4)
                trace(A, 0, 20 + (nxt >> 3))
                if nxt == 32 and not E_('GM', 0):
                    mark(A, 7)
        else:
            A(f"s_waitcnt {wv}lgkmcnt({nc-1})")
        extra = 0
        if arr:
            arrive(((s_ + 4) >> 3) + 4)
            extra = 1
        issued_n = 0
        for nt in range(nc):
            if nt and not full:
                A(f"s_waitcnt lgkmcnt({nc - 1 - nt + extra + issued_n})")
            mf(s_, nt)
            if nt < 2 and issued_n < nn and (nt == 0 or nn == 4):
                rd2(nxt, [issued_n, issued_n + 1])
                issued_n += 2
            if nt == nc - 2:
                if s_ < 8 and OWNFIRST:
                    if C23:
                        cdma(2 + g, [ks])
                elif CPRE <= g + CD < NK//4:
                    cdma(g + CD, [ks])
        assert issued_n == nn
        if HTAG:
            if s_ < 4*(CPRE - CPOLL):
                cdma(CPOLL + g, [ks])
            if s_ == 6:
                tl, td = uid("ht"), uid("htd")
                A(f"s_mov_b32 s{CNT}, 0")
                vm.wait_for(("h", 15))
                A.label(tl)
                A("v_mov_b32 v4, 0")
                for r in range(32):
                    A(f"v_bitop3_b32 v4, v4, v{HR(8)+r}, s{HT_+(r & 3)} bitop3:0xf6")
                A(f"v_and_b32 v4, 0x10001, v4\nv_cmp_ne_u32 vcc, 0, v4\ns_cbranch_vccz {td}")
                A(f"s_add_u32 s{CNT}, s{CNT}, 1\ns_cmp_ge_u32 s{CNT}, {SPIN_MAX}\ns_cbranch_scc1 {td}")
                keep = list(vm.issued)
                for s2_ in range(8, 16):
                    hload(s2_)
                vm.issued = keep
                A(f"s_waitcnt vmcnt(0)\ns_branch {tl}")
                A.label(td)
                if STAMP == 1:
                    A(f"s_add_u32 s72, s70, s{CNT}")
            if s_ == HFI:
                vm.op(f"global_load_dword v16, v18, {sp(WS)} sc1", "fp")
            if s_ == HFC:
                fd = uid("hf")
                vm.wait_for("fp")
                A(f"v_cmp_ne_u32 vcc, s{NONCE}, v16\ns_cbranch_vccz {fd}")
                wait_cnt(A, 18, 16, 1)
                A.label(fd)
        if (s_ >= (HFC if HTAG else 8) or not (OWNFIRST or HTAG)) and hn[0] < NK:
            for _ in range(3 if HTAG else 2):
                if hn[0] < NK and hn[0] <= s_ + HD:
                    hload(hn[0])
                    hn[0] += 1
        if (s_ + 2) % 8 == 0 and s_ + 2 < NK and (s_ >= 8 or not OWNFIRST):
            A("ds_read_b128 v[8:11], v12")
        if XLD == 0:
            if s_ == NK - 18:
                vm.op(f"global_load_dword v31, v30, {sp(DSK)}", "dsk")
            if NK - 17 <= s_ < NK - 1:
                xload(s_ - (NK - 17), T0)
        if XLD == 2 and s_ == XLS:
            vm.op(f"global_load_dword v31, v30, {sp(DSK)}", "dsk")
            for e in range(16):
                xload(e, T0)
        if s_ == 7 and OWNFIRST:
            pause()
    mark(A, 8)
    trace(A, 0, 28)
    if XLD == 1:
        vm.op(f"global_load_dword v31, v30, {sp(DSK)}", "dsk")
        for e in range(16):
            xload(e, T0)
    TG = T0
    A(f"s_mul_i32 s{TG}, s{NONCE}, 0x9e3779b1\ns_and_b32 s{TG}, s{TG}, 0xbfff0000\ns_or_b32 s{TG}, s{TG}, 0x20000000")
    A(f"s_sub_u32 s{T1}, s{NONCE}, 1\ns_xor_b32 s{T1}, s{T1}, s{TG}\ns_cmp_lt_u32 s{T1}, 0x10000\ns_cselect_b32 s{T1}, 0x10000, 0\ns_xor_b32 s{TG}, s{TG}, s{T1}")
    if INOUT:
        A(f"s_lshl_b32 s{T4}, s{PG}, 9\ns_sub_i32 s{T4}, 256, s{T4}\ns_ashr_i32 s{T5}, s{T4}, 31")
        A(f"s_add_u32 s{S2}, s{OUT}, s{T4}\ns_addc_u32 s{S2+1}, s{OUT+1}, s{T5}\ns_sub_u32 s{S2+2}, s{LDT}, s{T4}\ns_mov_b32 s{S2+3}, 0x20000")
        A(f"s_mov_b32 s{S3}, s{OUT}\ns_mov_b32 s{S3+1}, s{OUT+1}\ns_mov_b32 s{S3+2}, s{LDT}\ns_mov_b32 s{S3+3}, 0x20000")
        A(f"s_lshl_b32 s{T4}, s{WP}, 16\nv_lshrrev_b32 v3, 4, v1\nv_lshlrev_b32 v3, 13, v3\nv_and_b32 v4, 15, v1\nv_lshl_add_u32 v3, v4, 4, v3\nv_add_u32 v3, s{T4}, v3")
        xad = lambda gq: (f"s_mov_b32 s{T4}, {(16*(gq >> 1) + 4*(gq & 1))*8192}\n", f"v3, SRD, s{T4} offen")
    else:
        A(f"s_lshl_b32 s{T4}, s{TI}, 4\ns_add_u32 s{T4}, s{T4}, s{TJ}\ns_lshl_b32 s{T4}, s{T4}, 2\ns_add_u32 s{T4}, s{T4}, s{WAVE}\ns_lshl_b32 s{T4}, s{T4}, 13")
        srd(A, S2, WS, T4, WS_XB, 0x2000)
        A(f"s_xor_b32 s{T4}, s{T4}, {8 << 15}")
        srd(A, S3, WS, T4, WS_XB, 0x2000)
        A(f"s_movk_i32 s{T4}, 0x1000")
        xad = lambda gq: ("", f"v2, SRD, {'0' if gq < 4 else f's{T4}'} offen offset:{(gq & 3)*1024}")
    val = lambda n: ACC2(n & 1) + (n >> 1)
    TXR, RX = [96, 100, 244, 248, 252], 180
    for gq in range(5):
        for c in range(4):
            n = 7*gq + 2*c
            lo = f"v{val(min(n, 31))}"
            hi = f"s{TG}" if c == 3 else f"v{val(min(n+1, 31))}"
            A(f"v_cvt_pk_bf16_f32 v{TXR[gq]+c}, {lo}, {hi}")
        A(f"{xad(gq)[0]}buffer_store_dwordx4 {v(TXR[gq],4)}, {xad(gq)[1].replace('SRD', r4(S2))} sc1")

    if XLD == 3:
        vm.op(f"global_load_dword v31, v30, {sp(DSK)}", "dsk")
        for e in range(16):
            xload(e, T5)
    if A3S == 12:
        arrive(12)

    def rx():
        for gq in range(5):
            A(f"{xad(gq)[0]}buffer_load_dwordx4 {v(RX+4*gq,4)}, {xad(gq)[1].replace('SRD', r4(S3))} sc1")
    if NDEF:
        rd2(NK - NDEF, [2, 3])
        for s_ in range(NK - NDEF, NK):
            if s_ + 1 < NK:
                rd2(s_ + 1, [2, 3])
                A("s_waitcnt lgkmcnt(2)")
            else:
                A("s_waitcnt lgkmcnt(0)")
            mf(s_, 2)
            mf(s_, 3)
    if A3S == 13:
        arrive(13)
    trace(A, 0, 29)
    if E_("XM", 0):
        mark(A, 3)
    A(f"s_waitcnt vmcnt({0 if XLD == 3 else 5})")
    if E_("XM", 0):
        mark(A, 5)
    trace(A, 0, 30)
    A("v_lshlrev_b32 v8, 16, v31\nv_and_b32 v9, 0xffff0000, v31")
    YO = lambda e: 148 + 2*e
    for e in range(16):
        t = YO(e)
        A(f"v_lshlrev_b32 v{t}, 16, v{XR+e}\nv_and_b32 v{t+1}, 0xffff0000, v{XR+e}")
        A(f"v_pk_mul_f32 {v(t,2)}, {v(t,2)}, v[8:9]")
        A(f"v_cvt_pk_bf16_f32 v10, v{t}, v{t+1}")
        A(f"v_lshlrev_b32 v{t}, 16, v10\nv_and_b32 v{t+1}, 0xffff0000, v10")
        A(f"v_add_f32 v{t}, v{t}, v{ACC2(2)+e}\nv_add_f32 v{t+1}, v{t+1}, v{ACC2(3)+e}")
    A(f"s_mov_b32 s{S1}, s{OUT}\ns_mov_b32 s{S1+1}, s{OUT+1}\ns_mov_b32 s{S1+2}, s{LDT}\ns_mov_b32 s{S1+3}, 0x20000")
    xl, xd = uid("xl"), uid("xd")
    A(f"s_mov_b32 s{CNT}, 0")
    if XPOLL:
        assert not INOUT
        wl, wd = uid("xw"), uid("xwd")
        A.label(wl)
        A(f"s_load_dword s{T1}, {sp(S3)}, {0x1000 + 63*16 + 12} glc\ns_add_u32 s{CNT}, s{CNT}, 1\ns_waitcnt lgkmcnt(0)")
        A(f"s_xor_b32 s{T1}, s{T1}, s{TG}\ns_cmp_lt_u32 s{T1}, 0x10000\ns_cbranch_scc1 {wd}")
        A(f"s_cmp_lt_u32 s{CNT}, {SPIN_MAX}\ns_cbranch_scc1 {wl}")
        A.label(wd)
        A(f"s_mov_b32 s{CNT}, 0")
    trace(A, 0, 31)
    if XPOLL != 2:
        A(f"s_waitcnt vmcnt({E_('XW', 0)})")
    if E_("XM", 0):
        mark(A, 6)
    rx()
    A.label(xl)
    A("v_mov_b32 v10, 0")
    for gq in range(5):
        A(f"s_waitcnt vmcnt({4-gq})")
        A(f"v_bitop3_b32 v10, v10, v{RX+4*gq+3}, s{TG} bitop3:0xf6")
    A("v_cmp_lt_u32 vcc, 0xffff, v10")
    A(f"s_cbranch_vccz {xd}")
    A(f"s_add_u32 s{CNT}, s{CNT}, 1\ns_cmp_ge_u32 s{CNT}, {SPIN_MAX}")
    A(f"s_cbranch_scc1 {xd}")
    rx()
    A(f"s_branch {xl}")
    A.label(xd)
    if A3S == 14:
        arrive(14)
    trace(A, 0, 32)
    if STAMP:
        A(f"s_add_u32 s74, s70, s{CNT}\ns_lshl_b32 s{CNT}, s{LOCAL}, 8\ns_add_u32 s74, s74, s{CNT}")
        mark(A, 4)
    for e in range(16):
        q, r = e >> 2, e & 3
        t = YO(e)
        for nt in range(2):
            n = 2*e + nt
            src = RX + 4*(n // 7) + (n % 7)//2
            if (n % 7) % 2 == 0:
                A(f"v_lshlrev_b32 v{10+nt}, 16, v{src}")
            else:
                A(f"v_and_b32 v{10+nt}, 0xffff0000, v{src}")
        A(f"v_pk_add_f32 {v(t,2)}, {v(t,2)}, v[10:11]")
        A(f"s_mov_b32 s{T4}, {(32*(q & 1) + 4*(q >> 1) + r)*8192}")
        A(f"buffer_store_dwordx2 {v(t,2)}, v29, {r4(S1)}, s{T4} offen{OSTB}")
    if A3S == 15:
        arrive(15)
    trace(A, 0, 33)
    if TRACE:
        A("s_waitcnt vmcnt(0)")
    trace(A, 0, 34)
    trace_dump(A, 0, WAVE, 1)
    stamp_end(A, kidx, WAVE)


def gen_fused(A, name, kidx):
    KNAME_[0] = name
    A(f".globl {name}\n.p2align 8\n.type {name},@function")
    A.label(name)
    A("s_cmp_ge_u32 s2, 256")
    A(f"s_cbranch_scc1 L_{name}_end")
    A("s_load_dwordx16 s[4:19], s[0:1], 0")
    A("s_load_dwordx8 s[20:27], s[0:1], 64")
    A("s_load_dwordx4 s[28:31], s[0:1], 96")
    A("s_load_dwordx2 s[32:33], s[0:1], 112")
    stamp_begin(A)
    A("v_lshrrev_b32 v2, 6, v0\nv_and_b32 v1, 63, v0")
    A(f"v_readfirstlane_b32 s{WAVE}, v2")
    A(f"s_and_b32 s{T0}, s2, 7\ns_lshr_b32 s{T1}, s2, 3")
    if TIMAP:
        A(f"s_lshr_b32 s{TI}, s{T0}, 1\ns_lshr_b32 s{T2}, s{T1}, 3\ns_lshl_b32 s{T2}, s{T2}, 2\ns_add_u32 s{TI}, s{TI}, s{T2}")
    else:
        A(f"s_lshr_b32 s{TI}, s{T0}, 1\ns_lshl_b32 s{TI}, s{TI}, 2\ns_lshr_b32 s{T2}, s{T1}, 3\ns_add_u32 s{TI}, s{TI}, s{T2}")
    A(f"s_and_b32 s{TJ}, s{T0}, 1\ns_lshl_b32 s{TJ}, s{TJ}, 3\ns_and_b32 s{T2}, s{T1}, 7\ns_add_u32 s{TJ}, s{TJ}, s{T2}")
    if SWAP:
        A(f"s_xor_b32 s{WAVE}, s{WAVE}, 4")
    A(f"s_cmp_ge_u32 s{WAVE}, 4")
    A(f"s_cbranch_scc0 L_{name}_gemm")
    aux_waves(A, name, kidx)
    A.label(f"L_{name}_gemm")
    gemm_waves(A, name, kidx)
    A.label(f"L_{name}_end")
    A("s_endpgm")
    return kdesc(name, 256)
```

```python
import os
from asmlib import *
from common import *

E_ = lambda k, d: int(os.environ.get(k, str(d)))
XO, NP, RI, RJ = E_("XO", 0), E_("NP", 1), E_("RI", 1), E_("RJ", 1)
XO2, NP2 = E_("XO2", 2), E_("NP2", 1)
PRO = E_("PRO", 2)
HD = E_("HD", 24)
CD = E_("CD", 4)
NOAUX = E_("NOAUX", 0)
CODEPF = E_("CODEPF", 1)
NS = E_('NS', 3)
LASW = E_('LASW', 99)
R = 7
LA = E_('LA', 2)
FORCE_REMOTE = E_('FORCE_REMOTE', 0)
MF = "v_mfma_f32_32x32x16_bf16"
N0 = "neg_lo:[1,0,0] neg_hi:[1,0,0]"

AX, WR, WI, BX, LRE, LIM, BRE, BIM, CRE, CIM, LDT, DSK, OUT, DBG, WS = 4, 6, 8, 10, 12, 14, 16, 18, 20, 22, 24, 26, 28, 30, 32
WAVE, TI, TJ, NONCE, TBL = 34, 35, 36, 37, 38
S0, S1, S2, S3, S4 = 40, 44, 48, 52, 56
T0, T1, T2, T3, T4, T5, T6, T7, T8, T9 = range(60, 70)
MSK, CNT, LOCAL, PG = 90, 92, 100, 101
L_XCH = 122880
L_SYNC = 126976
L_AX = 131072
L_W = 147456
WS_CNT = 0x1000
CNT_A, CNT_B, CNT_W = WS_CNT, WS_CNT + 16*128, WS_CNT + 32*128
FLG_A, FLG_B, FLG_W = 0x84000, 0x86000, 0x88000
FLG_X = 0x8000
FLG_H = 0x60000
CPRO1 = E_("CPRO1", 2)
CPRO2 = E_("CPRO2", 2)
CTOUCH = E_("CTOUCH", 4)
TBS = 131072 + E_("TBPAD", 0)
FTOUCH = E_("FTOUCH", 1)
XTOUCH = E_("XTOUCH", 0)
NREP = E_("NREP", 32)
NDEF = E_("NDEF", 12)
HTAG = 0
HDLY = E_("HDLY", 0)
HFI, HFC = E_("HFI", 7), E_("HFC", 10)
XPOLL = E_("XPOLL", 2)
OWNFIRST = E_("OWNFIRST", 1) and not HTAG
C01, C23 = E_("C01", 1), E_("C23", 1)
INOUT = E_("INOUT", 0)
KS_ = 32768 if INOUT else 8192
ISH = 16384 if INOUT else 4096
CTK, CPOLL, CPRE, HPRE = E_("CTK", 14), E_("CPOLL", 6), E_("CPRE", 7), E_("HPRE", 8)
HLOC, HLK = E_("HLOC", 0), E_("HLK", 13)
LBAT = E_("LBAT", 16)
XBF = E_("XBF", 1)
SLP_H, SLP_A = E_("SLP_H", 4), E_("SLP_A", 10)
NT = " nt" if E_("NT", 1) else ""
NTX = " nt"
OST = {0: "", 1: " nt", 2: " sc1", 3: " sc1 nt", 4: " sc0 sc1 nt", 5: " sc0 nt"}[E_("OST", 1)]
NTK = E_("NTK", 0)
OSTB = {0: "", 1: " nt", 2: " sc1", 3: " sc1 nt", 4: " sc0 sc1 nt", 5: " sc0 nt"}[E_("OSTB", 1)]
NTC = " nt" if E_("NTC", 0) else ""


def sp(a):
    return f"s[{a}:{a+1}]"


def srd(A, d, base, soff=None, const=0, size=None, size_s=None):
    if soff is None and const == 0:
        A(f"s_mov_b32 s{d}, s{base}\ns_mov_b32 s{d+1}, s{base+1}")
    else:
        if soff is not None and const:
            A(f"s_add_u32 s{d+2}, s{soff}, {const}")
            o = f"s{d+2}"
        elif soff is not None:
            o = f"s{soff}"
        else:
            o = str(const)
        A(f"s_add_u32 s{d}, s{base}, {o}\ns_addc_u32 s{d+1}, s{base+1}, 0")
    if size_s is not None:
        A(f"s_sub_u32 s{d+2}, {size}, s{size_s}")
    else:
        A(f"s_mov_b32 s{d+2}, {size}")
    A(f"s_mov_b32 s{d+3}, 0x20000")


def r4(d):
    return f"s[{d}:{d+3}]"


_u = [0]


def uid(p):
    _u[0] += 1
    return f"L_{p}{_u[0]}"


def get_nonce(A, vt):
    l, d = uid("n"), uid("nd")
    A(f"v_mov_b32 v{vt}, 0")
    A.label(l)
    A(f"global_load_dword v{vt+1}, v{vt}, {sp(DBG)} sc1")
    A("s_waitcnt vmcnt(0)")
    A(f"v_readfirstlane_b32 s{NONCE}, v{vt+1}")
    A(f"s_cmp_eq_u32 s{NONCE}, 0")
    A(f"s_cbranch_scc1 {l}")


def signal(A, sshard, cnt, flg, expect, vt):
    d = uid("sg")
    A(f"s_lshl_b32 s{CNT}, s{sshard}, 7\ns_add_u32 s{CNT}, s{CNT}, {cnt}")
    A(f"v_mov_b32 v{vt}, s{CNT}\nv_mov_b32 v{vt+1}, 1")
    A("s_waitcnt vmcnt(0)")
    A("s_mov_b64 exec, 1")
    A(f"global_atomic_add v{vt+2}, v{vt}, v{vt+1}, {sp(WS)} sc0 sc1")
    A(f"v_add_u32 v{vt}, {flg - cnt}, v{vt}\nv_mov_b32 v{vt+1}, s{NONCE}")
    A("s_waitcnt vmcnt(0)")
    A(f"v_readfirstlane_b32 s{CNT}, v{vt+2}")
    A(f"s_add_u32 s{CNT}, s{CNT}, 1\ns_cmp_lg_u32 s{CNT}, {expect}")
    A(f"s_cbranch_scc1 {d}")
    A(f"global_store_dword v{vt}, v{vt+1}, {sp(WS)} sc1")
    A.label(d)
    A("s_mov_b64 exec, -1")


def set_flag(A, soff, vt):
    A(f"v_mov_b32 v{vt}, s{soff}\nv_mov_b32 v{vt+1}, s{NONCE}")
    A("s_waitcnt vmcnt(0)")
    A("s_mov_b64 exec, 1")
    A(f"global_store_dword v{vt}, v{vt+1}, {sp(WS)} sc1")
    A("s_mov_b64 exec, -1")


def wait_cnt(A, vaddr, vt, sleep):
    l, d = uid("w"), uid("wd")
    A(f"s_mov_b32 s{CNT}, 0")
    A.label(l)
    A(f"global_load_dword v{vt}, v{vaddr}, {sp(WS)} sc1")
    A("s_waitcnt vmcnt(0)")
    A(f"v_cmp_ne_u32 vcc, s{NONCE}, v{vt}")
    A(f"s_cbranch_vccz {d}")
    if sleep:
        A(f"s_sleep {sleep}")
    A(f"s_add_u32 s{CNT}, s{CNT}, 1\ns_cmp_lt_u32 s{CNT}, {SPIN_MAX}")
    A(f"s_cbranch_scc1 {l}")
    A.label(d)


F, T = 192, 224


import struct as _st


def fl(x):
    return hex(_st.unpack("<I", _st.pack("<f", x))[0])


def lane_float(A, vn, vh, t):
    A(f"v_and_b32 v{t}, 31, v1\nv_cvt_f32_u32 v{t}, v{t}\nv_lshrrev_b32 v{t+1}, 5, v1\nv_lshlrev_b32 v{t+1}, 2, v{t+1}\nv_cvt_f32_u32 v{t+1}, v{t+1}")


def make_F(A, t, F=None):
    F = F or globals()["F"]
    lane_float(A, None, None, t)
    A(f"v_mul_f32 v{t+1}, v{t}, v{t+1}\nv_mul_f32 v{t+1}, {fl(1/32)}, v{t+1}")
    for i in range(16):
        c = 8*(i >> 2) + (i & 3)
        a = t + 2 + 3*(i & 1)
        A(f"v_fmamk_f32 v{a}, v{t}, {fl(c/32)}, v{t+1}\nv_fract_f32 v{a}, v{a}")
        A(f"v_cos_f32 v{a+1}, v{a}\nv_sin_f32 v{a+2}, v{a}")
        A(f"v_cvt_pk_bf16_f32 v{F+i}, v{a+1}, v{a+2}\nv_cvt_pk_bf16_f32 v{F+16+i}, -v{a+2}, v{a+1}")


def make_T(A, dst, t, half):
    lane_float(A, None, None, t)
    if not half:
        A(f"v_mul_f32 v{t+1}, v{t}, v{t+1}\nv_mul_f32 v{t+1}, {fl(1/1024)}, v{t+1}")
    else:
        A(f"v_mul_f32 v{t}, {fl(1/2048)}, v{t}\nv_fmamk_f32 v{t+1}, v{t+1}, {fl(1/64)}, v{t}")
    for i in range(16):
        c = 8*(i >> 2) + (i & 3)
        a = t + 2 + (i & 1)
        if not half:
            A(f"v_fmamk_f32 v{a}, v{t}, {fl(c/1024)}, v{t+1}")
        else:
            A(f"v_add_f32 v{a}, {fl(c/64)}, v{t+1}")
        A(f"v_cos_f32 v{dst+i}, v{a}\nv_sin_f32 v{dst+16+i}, -v{a}")


def stage1(A, src, D, stride=4):
    if "m" in os.environ.get("SK", ""):
        return
    for c in range(2):
        for s_ in range(4):
            cc = "0" if s_ == 0 else v(D+16*c, 16)
            A(f"{MF} {v(D+16*c,16)}, {v(src+stride*s_,4)}, {v(F+16*c+4*s_,4)}, {cc}")


def twiddle(A, D, dst, tmp, rng=range(16)):
    for i in (rng if "t" not in os.environ.get("SK", "") else []):
        re, im, tr, ti = D+i, D+16+i, T+i, T+16+i
        t = tmp + 2*(i & 3)
        A(f"v_mul_f32 v{t}, v{re}, v{tr}\nv_mul_f32 v{t+1}, v{re}, v{ti}")
        A(f"v_fma_f32 v{t}, -v{im}, v{ti}, v{t}\nv_fmac_f32 v{t+1}, v{im}, v{tr}")
        A(f"v_cvt_pk_bf16_f32 v{dst+i}, v{t}, v{t+1}")


def stage2(A, src, D):
    if "m" in os.environ.get("SK", ""):
        return
    for c in range(2):
        for s_ in range(4):
            cc = "0" if s_ == 0 else v(D+16*c, 16)
            A(f"{MF} {v(D+16*c,16)}, {v(F+16*c+4*s_,4)}, {v(src+4*s_,4)}, {cc}")


W_ = T6
NBW = 2048*513*2
SQ, SO, ST = 184, 185, 186
VA1, VA2, VA8, VLIN = 4, 5, 6, 7
_ph = [0]


def l_arrive(A):
    _ph[0] += 1
    A(f"v_mov_b32 v{ST+4}, {_ph[0]}")
    A(f"s_mov_b64 exec, 1\nds_write_b32 v{SO}, v{ST+4}\ns_mov_b64 exec, -1")
    return _ph[0]


def l_check(A, n, delta=0, slp=1):
    l, d = uid("lc"), uid("lcd")
    if delta:
        A(f"v_add_u32 v{ST+5}, {delta}, v{SQ}")
    A.label(l)
    A(f"ds_read_b128 {v(ST,4)}, v{ST+5 if delta else SQ}\ns_waitcnt lgkmcnt(0)")
    A(f"v_min3_u32 v{ST}, v{ST}, v{ST+1}, v{ST+2}\nv_min_u32 v{ST}, v{ST}, v{ST+3}")
    A(f"v_readfirstlane_b32 s{CNT}, v{ST}")
    A(f"s_cmp_ge_u32 s{CNT}, {n}")
    A(f"s_cbranch_scc1 {d}")
    A(f"s_sleep {slp}\ns_branch {l}")
    A.label(d)


def l_check_loose(A, n, delta):
    l = uid("ll")
    A(f"v_add_u32 v{ST+5}, {delta}, v{SQ}")
    for i in range(4):
        A(f"v_mov_b32 v{ST+i}, 0")
    A.label(l)
    A(f"ds_read_b128 {v(ST,4)}, v{ST+5}\ns_sleep 1")
    A(f"v_min3_u32 v{ST+4}, v{ST}, v{ST+1}, v{ST+2}\nv_min_u32 v{ST+4}, v{ST+4}, v{ST+3}")
    A(f"v_readfirstlane_b32 s{CNT}, v{ST+4}")
    A(f"s_cmp_lt_u32 s{CNT}, {n}")
    A(f"s_cbranch_scc1 {l}")


def l_sync(A):
    l_check(A, l_arrive(A))


def aux_setup_ax(A):
    srd(A, S2, WR, size=NBW)
    srd(A, S3, WI, size=NBW)
    A(f"s_and_b32 s{T0}, s2, 31\ns_lshr_b32 s{T1}, s2, 5\ns_lshl_b32 s{T1}, s{T1}, 7\ns_add_u32 s{T0}, s{T0}, s{T1}")
    A(f"s_lshl_b32 s{T1}, s{W_}, 5\ns_add_u32 s{T7}, s{T0}, s{T1}\ns_lshl_b32 s{T0}, s{T7}, 12")
    srd(A, AX, AX, T0, 0, 0x1000)
    A("v_lshlrev_b32 v2, 4, v1\nv_xor_b32 v3, 128, v2")
    A(f"s_lshl_b32 s{T8}, s{W_}, 12\ns_add_u32 s{T8}, s{T8}, {L_AX}")


def w_addr(A, W_):
    A(f"s_and_b32 s{T0}, s2, 7\ns_bfe_u32 s{T1}, s2, 0x10003\ns_bfe_u32 s{T2}, s2, 0x20004\ns_lshr_b32 s{T3}, s2, 6")
    A(f"s_lshr_b32 s{T4}, s{T0}, 1\ns_lshl_b32 s{T4}, s{T4}, 3\ns_lshl_b32 s{T5}, s{T1}, 2\ns_add_u32 s{T4}, s{T4}, s{T5}")
    A(f"s_and_b32 s{T5}, s{T0}, 1\ns_lshl_b32 s{T5}, s{T5}, 1\ns_add_u32 s{T4}, s{T4}, s{T5}\ns_lshl_b32 s{T4}, s{T4}, 5")
    A(f"s_lshl_b32 s{T5}, s{T2}, 3\ns_add_u32 s{T4}, s{T4}, s{T5}\ns_lshl_b32 s{T5}, s{W_}, 1\ns_add_u32 s{T4}, s{T4}, s{T5}\ns_mul_i32 s{T4}, s{T4}, 1026")
    A(f"s_lshl_b32 s{T5}, s{T3}, 8\ns_add_u32 s{T9}, s{T4}, s{T5}")
    A("v_bfe_u32 v8, v1, 4, 1\nv_mul_u32_u24 v8, 32832, v8")
    A(f"v_lshrrev_b32 v9, 5, v1\ns_mov_b32 s{T5}, 1050624\nv_mul_lo_u32 v9, s{T5}, v9\nv_add_u32 v8, v8, v9")
    A(f"v_and_b32 v9, 15, v1\ns_lshl_b32 s{T5}, s{W_}, 1\nv_xor_b32 v9, s{T5}, v9")
    A("v_lshl_add_u32 v18, v9, 4, v8\nv_xor_b32 v9, 1, v9\nv_lshl_add_u32 v19, v9, 4, v8\nv_add_u32 v19, 1026, v19")


def zw_addr(A):
    A(f"s_lshl_b32 s{T9}, s2, 2\ns_add_u32 s{T9}, s{T9}, s{W_}\ns_mul_i32 s{T9}, s{T9}, 1026")


def zw_issue(A, vm):
    for half in range(2):
        A(f"s_add_u32 s{CNT}, s{T9}, {half*1024*1026}")
        for arr in range(2):
            A(f"s_lshl_b32 s{T4}, s{W_}, 12\ns_add_u32 m0, s{T4}, {L_W + (half*2 + arr)*1024}")
            vm.op(f"buffer_load_dwordx4 v2, {r4(S2 if arr == 0 else S3)}, s{CNT} offen{NT} lds", "w")


ZR_, ZI_, ZS_ = 14, 15, 16


def zw_pre(A):
    A(f"s_lshl_b32 s{T4}, s{W_}, 8\ns_add_u32 s{T4}, s{T4}, {L_W}\nv_lshl_add_u32 v{ZR_}, v1, 2, s{T4}")
    A(f"v_bfe_u32 v8, v1, 1, 2\nv_lshlrev_b32 v8, 4, v8\nv_lshl_add_u32 v8, v1, 6, v8\nv_add_u32 v{ZI_}, s{T8}, v8")
    A(f"s_and_b32 s{T4}, s2, 6\ns_bfe_u32 s{T5}, s2, 0x10004\ns_or_b32 s{T4}, s{T4}, s{T5}")
    A(f"v_and_b32 v8, 7, v1\nv_xor_b32 v8, s{T4}, v8\nv_lshrrev_b32 v9, 3, v1")
    A(f"v_and_b32 v10, 3, v8\nv_lshlrev_b32 v11, 4, v10\nv_lshl_add_u32 v11, v9, 6, v11")
    A(f"v_bfe_u32 v{ZS_}, v9, 1, 1\nv_lshlrev_b32 v{ZS_}, 5, v{ZS_}\nv_xor_b32 v{ZS_}, v11, v{ZS_}")
    A(f"s_lshl_b32 s{T5}, s{W_}, 12\ns_add_u32 s{T5}, s{T5}, {L_IMG}\nv_add_u32 v{ZS_}, s{T5}, v{ZS_}")
    A(f"v_bfe_u32 v11, v9, 1, 2\nv_xor_b32 v11, v10, v11\nv_lshlrev_b32 v11, 4, v11\nv_lshl_add_u32 v11, v9, 6, v11\nv_add_u32 v11, s{T8}, v11")
    A(f"v_cmp_gt_u32 vcc, 4, v8\nv_cndmask_b32 v{ZS_}, v11, v{ZS_}, vcc")
    A(f"s_lshl_b32 s{T4}, s2, 15\ns_lshl_b32 s{T5}, s{W_}, 13\ns_add_u32 s{T4}, s{T4}, s{T5}")
    srd(A, S0, WS, T4, WS_ZW, 0x2000)


ZL = lambda u: 72 + 4*u if u < 4 else 120 + 4*(u - 4)


def zw_build(A):
    R_ = lambda t, half, arr: 104 + t*4 + half*2 + arr
    for t in range(4):
        for half in range(2):
            for arr in range(2):
                A(f"ds_read_b32 v{R_(t, half, arr)}, v{ZR_} offset:{(t*4 + half*2 + arr)*1024}")
    A(f"s_mov_b32 s{T4}, 0x05040100\ns_mov_b32 s{T5}, 0x07060302")
    A("s_waitcnt lgkmcnt(0)")
    for c in range(2):
        for tp in range(2):
            o = 120 + (2*c + tp)*4
            for tl in range(2):
                for half in range(2):
                    A(f"v_perm_b32 v{o + 2*tl + half}, v{R_(2*tp + tl, half, 1)}, v{R_(2*tp + tl, half, 0)}, s{T4 + c}")
            A(f"v_xor_b32 v8, {(2*c + tp) << 4}, v{ZI_}\nds_write_b128 v8, {v(o,4)}")
    A("s_waitcnt lgkmcnt(0)")
    for u in range(8):
        A(f"ds_read_b128 {v(ZL(u),4)}, v{ZS_} offset:{u*512}")


def zw_store(A, vm, us):
    for u in us:
        if u == 4:
            A(f"s_movk_i32 s{CNT}, 0x1000")
        if ("3" in SK and u < 4) or ("2" in SK and u >= 4):
            continue
        vm.op(f"buffer_store_dwordx4 {v(ZL(u),4)}, v2, {r4(S0)}, {'0' if u < 4 else f's{CNT}'} offen offset:{(u & 3)*1024} sc1", "zst" if u < 4 else "wst")


def w_sym_addr(A):
    A(f"s_bfe_u32 s{T4}, s2, 0x20005\ns_lshl_b32 s{T4}, s{T4}, 8\ns_bfe_u32 s{T5}, s2, 0x10004\ns_lshl_b32 s{T5}, s{T5}, 6\ns_add_u32 s{T4}, s{T4}, s{T5}")
    A(f"s_bfe_u32 s{T5}, s2, 0x10003\ns_lshl_b32 s{T5}, s{T5}, 7\ns_add_u32 s{T4}, s{T4}, s{T5}\ns_and_b32 s{T5}, s2, 7\ns_lshl_b32 s{T5}, s{T5}, 2\ns_add_u32 s{T4}, s{T4}, s{T5}")
    A(f"v_bfe_u32 v8, v1, 3, 2\nv_add_u32 v8, s{T4}, v8\nv_bfe_u32 v9, v1, 2, 1\nv_lshl_add_u32 v8, v9, 5, v8\nv_bfe_u32 v9, v1, 1, 1\nv_lshl_add_u32 v8, v9, 10, v8")
    A("v_sub_u32 v9, 2048, v8\nv_and_b32 v9, 2047, v9\nv_and_b32 v10, 1, v1\nv_cmp_eq_u32 vcc, 1, v10\nv_cndmask_b32 v8, v8, v9, vcc")
    A(f"v_mul_u32_u24 v17, 1026, v8\ns_lshr_b32 s{T4}, s2, 7\ns_lshl_b32 s{T4}, s{T4}, 10\nv_add_u32 v17, s{T4}, v17")


def aux_setup_w(A):
    w_addr(A, W_)
    w_sym_addr(A)


def aux_setup2(A):
    make_F(A, 92)
    make_T(A, T, 92, 0)
    make_T(A, TT, 92, 1)


def aux_issue(A, vm):
    for c in range(2):
        A(f"s_add_u32 m0, s{T8}, {c*2048}")
        A(f"s_mov_b32 s{CNT}, {c*2048}")
        for u in range(2):
            vm.op(f"buffer_load_dwordx4 v{2+c}, {r4(AX)}, s{CNT} offen offset:{u*1024}{NT} lds", "ax")


def w_tile_issue(A, vm, sbase, const, bbs=range(2)):
    for bb in bbs:
        for arr in range(2):
            A(f"s_add_u32 m0, s{sbase}, {const + bb*2048 + arr*1024}")
            vm.op(f"buffer_load_dwordx4 v{18+bb}, {r4(S2 if arr == 0 else S3)}, s{T9} offen{NT} lds" if "1" not in SK else f"buffer_load_dword v23, v2, {r4(AX)}, 0 offen offset:4092", "w")


def w_sym_issue(A):
    nw = uid("nw")
    A(f"s_cmp_lg_u32 s{W_}, {3 if not ('1' in SK or 'p' in SK) else 9}\ns_cbranch_scc1 {nw}")
    A("s_mov_b32 exec_hi, 0")
    A(f"buffer_load_ushort v{WSP}, v17, {r4(S2)}, 0 offen{NT}")
    A(f"buffer_load_ushort v{WSP+1}, v17, {r4(S3)}, 0 offen{NT}")
    A("s_mov_b64 exec, -1")
    A.label(nw)


def w_issue(A, vm):
    w_tile_issue(A, vm, T8, L_W - L_AX)
    w_sym_issue(A)


WSP, IN, D, MID, TMP = 88, 24, 40, 72, 168
DY, W, TT = 72, 104, 136
M_, SPC, CJ, SGN = T0, T1, T2, T3
AUXK = E_("AUXK", 5)
GATE = E_("GATE", 0)
WK = E_("WK", 1)
WMID = WK <= 12
WSK = E_("WSK", 8)
A1K = E_("A1K", 0)
FINE = E_("FINE", 1)
ZSK = E_("ZSK", A1K + 3 + FINE)
LATE = A1K >= 6
A2G = E_("A2G", 0)
XLD, XLS = E_("XLD", 2), E_("XLS", 48)
A3W = E_("A3W", 0)
A3G = E_("A3G", 11)
A3S = E_("A3S", 0)
ZG = E_("ZG", 0)
CTW = E_("CTW", 0)
POLLK = E_("POLLK", 15)
VTLB, VTN, VTF = E_("VTLB", 0), E_("VTN", 1), (" nt" if E_("VTF", 1) else "")
TLBW = E_("TLBW", 0)
DEFER = E_("DEFER", 2)
DK0 = E_("DK0", 0)
LPOS = E_("LPOS", 6)
BARP = E_("BARP", 1)
SWAP = E_("SWAP", 1)
WPOS = E_("WPOS", 0)
ZPOS = E_("ZPOS", -1)
WTK = E_("WTK", 3)
EARLY2 = E_("EARLY2", 1)
SNON = E_("SNON", 0)
FPOLL = E_("FPOLL", 14)
WPK = E_("WPK", -1)
WBYG = E_("WBYG", 0)
WSPLIT = E_("WSPLIT", 0)
NZS = E_("NZS", 1)
TLBT, TLBO, TLBK = E_("TLBT", 0), E_("TLBO", 0), E_("TLBK", 7)
TBG = E_("TBG", 0)
L_TBL = 65536
TIMAP = E_("TIMAP", 1)
PBG = E_("PBG", 0)
CTKS = [int(x) for x in os.environ.get("CTKS", "").split(",") if x]
NLDS = E_("NLDS", 1)
L_NONCE = 80
PRED = E_("PRED", 0)
ZW = E_("ZW", 1)
PB2 = E_("PB2", 0)
PRES = E_("PRES", 1)
NPRE = E_("NPRE", 3)
KS0 = E_("KS0", 2)
P1, P2A, P2B = E_("P1", 0), E_("P2A", 50), E_("P2B", 95)
LDEF = E_("LDEF", 0)
LSLP = E_("LSLP", 1)
WSH = E_("WSH", 1)
PRE1, PRE2 = E_("PRE1", 6), E_("PRE2", 12)
HALF = E_("HALF", 0)
WEARLY = E_("WEARLY", 0)
KA, KA0, KA1, KAG = E_("KA", 0), E_("KA0", 5), E_("KA1", 12), E_("KAG", 0)
G1X = os.environ.get("G1X", "")
WMODE = E_("WMODE", 0)
CPK = [int(x) for x in os.environ.get("CPK", "").split(",") if x]
WXT = E_("WXT", 0)
RSLP = E_("RSLP", 1)
PAL = E_("PAL", 0)
NREPA = E_("NREPA", 8)
AXT = E_("AXT", 0)
APRIO, GPRIO = E_("APRIO", 0), E_("GPRIO", 1)
FM, CM = E_("FM", 12), E_("CM", 4)
DMAP = os.environ.get("DMAP", "5,9,13,17,21,25,29,33")
CSP, CSP0, CSB, CSPH = E_("CSP", 0), E_("CSP0", 2), E_("CSB", 12), E_("CSPH", 1)
SK = os.environ.get("SK", "")
A2C = E_("A2C", 0)
LPRIO3 = E_("LPRIO3", 0)
LPRIO0 = E_("LPRIO0", 3)
LPRIO, LPRIO2 = E_('LPRIO', 0), E_('LPRIO2', 0)
L_IMG = 98304
LIMG_FREE = 2


def img(i):
    ka = 8*(i >> 2) + (i & 3)
    return (VA1, ka*1024) if i < 8 else (VA8, 0) if i == 8 else (VA2, (27 - ka)*1024)


def aux_pre_a(A):
    A(f"v_mov_b32 v{SQ}, {L_SYNC + 16}\ns_lshl_b32 s{T4}, s{W_}, 2\nv_add_u32 v{SO}, s{T4}, v{SQ}")
    A("v_and_b32 v8, 31, v1\nv_lshrrev_b32 v9, 5, v1\nv_and_b32 v10, 1, v1")
    A(f"v_lshrrev_b32 v11, 1, v8\nv_lshlrev_b32 v{VA1}, 6, v11\nv_lshl_add_u32 v{VA1}, v10, 4, v{VA1}\nv_lshl_add_u32 v{VA1}, v9, 12, v{VA1}")
    A(f"v_add_u32 v11, v11, v10\nv_lshlrev_b32 v11, 6, v11\nv_lshl_add_u32 v11, v10, 4, v11\nv_lshl_add_u32 v11, v9, 12, v11\nv_sub_u32 v{VA2}, {5120 + 48}, v11")
    for r in (VA1, VA2):
        A(f"v_bfe_u32 v11, v{r}, 7, 1\nv_lshlrev_b32 v11, 5, v11\nv_xor_b32 v{r}, v{r}, v11")
    A(f"v_add_u32 v{VA8}, 11264, v{VA2}\nv_and_b32 v{VA8}, 0x3fff, v{VA8}")
    A(f"s_add_u32 s{T4}, s{T4}, {L_IMG}")
    for r in (VA1, VA2, VA8):
        A(f"v_add_u32 v{r}, s{T4}, v{r}")
    A(f"v_bfe_u32 v11, v1, 3, 1\nv_lshlrev_b32 v11, 5, v11\nv_xor_b32 v{VLIN}, v2, v11")

    A("v_bfe_u32 v12, v1, 2, 1\nv_mul_u32_u24 v12, 2176, v12")
    A("v_bfe_u32 v13, v1, 3, 1\nv_lshl_add_u32 v12, v13, 6, v12\nv_lshl_add_u32 v12, v9, 8, v12")
    A("v_bfe_u32 v13, v1, 4, 1\nv_lshl_add_u32 v12, v13, 5, v12\nv_and_b32 v13, 3, v1\nv_lshl_add_u32 v12, v13, 3, v12")
    A(f"v_add_u32 v12, s{T8}, v12\nv_xor_b32 v13, 128, v12")
    if INOUT:
        A(f"s_lshl_b32 s{T4}, s{T7}, 14")
        srd(A, S0, OUT, T4, 0, 0x1000)
        srd(A, S1, OUT, T4, 0, 0x1000)
    else:
        A(f"s_lshl_b32 s{T4}, s2, 14\ns_lshl_b32 s{T5}, s{W_}, 12\ns_add_u32 s{T4}, s{T4}, s{T5}")
        srd(A, S0, WS, T4, WS_Z1, 0x1000)
        srd(A, S1, WS, T4, WS_Z3, 0x1000)


def aux_pre_w(A):
    A(f"v_and_b32 v14, 7, v1\nv_lshrrev_b32 v15, 3, v1\nv_xor_b32 v16, v14, v15\nv_lshlrev_b32 v16, 4, v16\nv_lshl_add_u32 v16, v14, 11, v16")
    A(f"s_lshr_b32 s{T4}, s{W_}, 1\ns_lshl_b32 s{T4}, s{T4}, 7\ns_and_b32 s{T5}, s{W_}, 1\ns_lshl_b32 s{T5}, s{T5}, 3\ns_add_u32 s{T4}, s{T4}, s{T5}\ns_add_u32 s{T4}, s{T4}, {L_W}")
    A(f"v_add_u32 v{VWR}, s{T4}, v16")
    A(f"v_lshlrev_b32 v15, {18 if INOUT else 16}, v15\nv_lshl_add_u32 v22, v14, 4, v15")
    A(f"s_lshl_b32 s{T4}, s{T3}, 7\ns_lshr_b32 s{T5}, s{W_}, 1\ns_lshl_b32 s{T5}, s{T5}, 6\ns_add_u32 s{T4}, s{T4}, s{T5}")
    A(f"s_and_b32 s{T5}, s{W_}, 1\ns_lshl_b32 s{T5}, s{T5}, 2\ns_add_u32 s{T4}, s{T4}, s{T5}\ns_mul_i32 s{T4}, s{T4}, {KS_}")
    A(f"s_lshr_b32 s{T5}, s{T0}, 2\ns_mul_i32 s{T5}, s{T5}, {ISH - 4096}\ns_add_u32 s{T4}, s{T4}, s{T5}")
    A(f"s_lshl_b32 s{T5}, s{T0}, 10\ns_add_u32 s{T4}, s{T4}, s{T5}\ns_lshl_b32 s{T5}, s{T1}, 9\ns_add_u32 s{T4}, s{T4}, s{T5}\ns_lshl_b32 s{T5}, s{T2}, 7\ns_add_u32 s{T4}, s{T4}, s{T5}")
    if INOUT:
        A(f"s_add_u32 s{T4}, s{T4}, 8192")
        srd(A, S4, OUT, T4, 0, 0x1000000, T4)
    else:
        srd(A, S4, WS, T4, WS_WT + 2*KS_, 0x400000, T4)


KNAME_ = [None]


def code_touch(A, t0):
    name = KNAME_[0]
    pc = uid("pc")
    per = 6
    A(f"s_getpc_b64 {sp(t0)}")
    A.label(pc)
    A(f"s_sub_u32 s{t0}, s{t0}, {pc}-{name}\ns_subb_u32 s{t0+1}, s{t0+1}, 0")
    A(f"s_lshr_b32 s{CNT}, s2, 3\ns_lshl_b32 s{CNT}, s{CNT}, 2\ns_add_u32 s{CNT}, s{CNT}, s{W_}\ns_mul_i32 s{CNT}, s{CNT}, {per*64}")
    A(f"s_min_u32 s{CNT}, s{CNT}, L_{name}_end-{name}-{per*64}")
    for q in range(per):
        A(f"s_load_dword s3, {sp(t0)}, s{CNT} offset:{q*64}")


def c_prefetch(A, p, done):
    A(f"s_load_dwordx4 s[8:11], s[0:1], 64")
    A(f"s_and_b32 s12, s{TJ}, 7\ns_lshl_b32 s13, s12, 7\ns_and_b32 s14, s{TI}, 3\ns_lshl_b32 s14, s14, 5\ns_add_u32 s13, s13, s14")
    A(f"s_sub_u32 s14, s{W_}, 1\ns_mul_i32 s14, s14, 11\ns_min_u32 s14, s14, 21\ns_add_u32 s13, s13, s14\ns_lshl_b32 s13, s13, 11")
    A(f"s_lshr_b32 s14, s{TJ}, 3\ns_lshl_b32 s14, s14, 10\ns_add_u32 s13, s13, s14\ns_waitcnt lgkmcnt(0)")
    A("s_add_u32 s4, s8, s13\ns_addc_u32 s5, s9, 0\ns_add_u32 s6, s10, s13\ns_addc_u32 s7, s11, 0")
    cnt = 0
    for n in range(CSP0, CSP0 + CSP):
        A(f"s_add_u32 s15, s12, {n}\ns_and_b32 s15, s15, 7\ns_lshl_b32 s15, s15, 7")
        for r in range(11):
            for arr in range(2):
                for sec in range(2):
                    A(f"s_load_dword s3, s[{4+2*arr}:{5+2*arr}], s15 offset:{r*2048 + sec*64}")
                    cnt += 1
                    if cnt % CSB == 0:
                        A(f"ds_read_b128 {v(ST,4)}, v{SQ}\ns_waitcnt lgkmcnt(0)")
                        A(f"v_min3_u32 v{ST}, v{ST}, v{ST+1}, v{ST+2}\nv_min_u32 v{ST}, v{ST}, v{ST+3}")
                        A(f"v_readfirstlane_b32 s{CNT}, v{ST}\ns_cmp_ge_u32 s{CNT}, {p}\ns_cbranch_scc1 {done}")


def c_touch(A, vm, mask=None):
    A(f"s_and_b32 s{T4}, s2, 1\ns_lshl_b32 s{T4}, s{T4}, 10\ns_bfe_u32 s{CNT}, s2, 0x20001\ns_lshl_b32 s{CNT}, s{CNT}, 19\ns_add_u32 s{T4}, s{T4}, s{CNT}")
    A(f"s_lshr_b32 s{CNT}, s2, 3\ns_lshl_b32 s{CNT}, s{CNT}, 14\ns_add_u32 s{T4}, s{T4}, s{CNT}")
    A(f"s_lshr_b32 s{CNT}, s{W_}, 1\ns_lshl_b32 s{CNT}, s{CNT}, 13\ns_add_u32 s{T4}, s{T4}, s{CNT}")
    A(f"v_bfe_u32 v22, v1, 3, 2\nv_lshlrev_b32 v22, 11, v22\nv_and_b32 v23, 7, v1\nv_lshl_add_u32 v22, v23, 7, v22\nv_add_u32 v22, s{T4}, v22")
    A("s_mov_b32 exec_hi, 0")
    if mask:
        A(f"s_mov_b32 exec_lo, {hex(mask)}")
    vm.op(f"global_load_dword v11, v22, s[100:101]", "touch")
    A("s_mov_b64 exec, -1")


def flag_poll(A, flg):
    A(f"s_lshl_b32 s{T4}, s2, 2\ns_add_u32 s{T4}, s{T4}, s{W_}\ns_lshr_b32 s{T4}, s{T4}, 4\ns_lshl_b32 s{T4}, s{T4}, 7\ns_add_u32 s{T4}, s{T4}, {flg}")
    A(f"s_add_u32 s24, s{WS}, s{T4}\ns_addc_u32 s25, s{WS+1}, 0")
    A(f"s_load_dwordx16 s[4:19], s[24:25], 0x0 glc")


def flag_wait(A):
    late, go, pl_ = uid("late"), uid("go"), uid("sp")
    A(f"s_mov_b32 s26, s{NONCE}\ns_mov_b32 s27, s{NONCE}\ns_mov_b32 s{CNT}, 0\ns_branch {pl_}")
    A.label(late)
    A(f"s_add_u32 s{CNT}, s{CNT}, 1\ns_cmp_ge_u32 s{CNT}, {SPIN_MAX}\ns_cbranch_scc1 {go}")
    A(f"s_sleep 8\ns_load_dwordx16 s[4:19], s[24:25], 0x0 glc")
    A.label(pl_)
    A("s_waitcnt lgkmcnt(0)")
    for q in range(8):
        A(f"s_cmp_eq_u64 s[{4+2*q}:{5+2*q}], s[26:27]\ns_cbranch_scc0 {late}")
    A.label(go)


RR = lambda arr, kind: 104 + (arr*4 + kind)*2


VWR = 21


def wt_read(A, fin=True):
    for arr in range(2):
        for kind in range(4):
            A(f"ds_read_b64 {v(RR(arr,kind),2)}, v{VWR} offset:{arr*1024 + kind*256}")


def wt_sym(A):
    A(f"s_mov_b32 s{T4}, 0x05040100\ns_mov_b32 s{T5}, 0x07060302")
    A(f"v_lshlrev_b32 v{WSP}, 16, v{WSP}\nv_lshlrev_b32 v{WSP+1}, 16, v{WSP+1}\nv_lshlrev_b32 v23, 1, v1")
    A(f"v_add_f32_dpp v{WSP+2}, v{WSP}, v{WSP} quad_perm:[1,0,3,2] row_mask:0xf bank_mask:0xf")
    A(f"v_subrev_f32_dpp v{WSP+3}, v{WSP+1}, v{WSP+1} quad_perm:[1,0,3,2] row_mask:0xf bank_mask:0xf")
    A(f"v_mul_f32 v{WSP+2}, 0.5, v{WSP+2}\nv_mul_f32 v{WSP+3}, 0.5, v{WSP+3}")
    A(f"v_cvt_pk_bf16_f32 v{WSP}, v{WSP+2}, v{WSP+3}")


def wt_perm(A):
    for kap in range(4):
        o = 120 + 4*kap
        for e in range(2):
            for h2 in range(2):
                kind = e + 2*h2
                A(f"v_perm_b32 v{o+2*e+h2}, v{RR(1,kind)+kap//2}, v{RR(0,kind)+kap//2}, s{T4 + kap % 2}")


def wt_store(A, vm):
    nw = uid("nw")
    A(f"s_cmp_lg_u32 s{W_}, 3\ns_cbranch_scc1 {nw}")
    A(f"s_lshr_b32 s{T4}, s2, 7\ns_mul_i32 s{T4}, s{T4}, {KS_}\ns_bfe_u32 s{T5}, s2, 0x10006\ns_mul_i32 s{T5}, s{T5}, {ISH}\ns_add_u32 s{T4}, s{T4}, s{T5}")
    A(f"s_and_b32 s{T5}, s2, 63\ns_lshl_b32 s{T5}, s{T5}, 6\ns_add_u32 s{T4}, s{T4}, s{T5}")
    srd(A, 4, WS, T4, WS_WT, 64)
    A("s_mov_b32 exec_lo, 0x55555555\ns_mov_b32 exec_hi, 0")
    if not E_("SKIPS", 0):
        A(f"buffer_store_dword v{WSP}, v23, {r4(4)}, 0 offen sc1")
    A("s_mov_b64 exec, -1")
    A.label(nw)
    if ZW:
        zw_store(A, vm, range(4, 8))
        return
    for kap in range(0 if "2" in SK else 4):
        A(f"s_mov_b32 s{CNT}, {kap*KS_}")
        vm.op(f"buffer_store_dwordx4 {v(120+4*kap,4)}, v22, {r4(S4)}, s{CNT} offen sc1", "wst")


def a1_stores(A, vm):
    if ZW:
        zw_store(A, vm, range(4))
        if WTK == ZPOS:
            wt_store(A, vm)
        return
    for u in range(0 if "3" in SK else 4):
        vm.op(f"buffer_store_dwordx4 {v(MID+4*u,4)}, v2, {r4(S0)}, 0 offen offset:{u*1024} sc1", "zst")
    if WMODE == 0 and WTK == ZPOS:
        wt_store(A, vm)


def a1_task(A, vm):
    vm.wait_for("ax")
    trace(A, 0, 2)
    for s_ in range(4):
        for u in range(2):
            A(f"ds_read_b64_tr_b16 {v(IN+4*s_+2*u,2)}, v{12+u} offset:{s_*512}")
    A("s_waitcnt lgkmcnt(0)")
    stage1(A, IN, D)
    twiddle(A, D, MID, TMP)
    stage2(A, MID, D)
    A(f"s_lshl_b32 s{CNT}, s{W_}, 12\ns_add_u32 s{CNT}, s{CNT}, {L_IMG}\nv_add_u32 v8, s{CNT}, v{VLIN}")
    for i in range(16):
        A(f"v_cvt_pk_bf16_f32 v{MID+i}, v{D+i}, v{D+16+i}")
        a, o = img(i)
        A(f"ds_write_b32 v{a}, v{MID+i} offset:{o}")
    trace(A, 0, 3)
    if WMODE == 0 and WPK < 0:
        if WBYG:
            A("s_waitcnt vmcnt(0)")
            l_check(A, 1, RING_LG - 16)
        else:
            vm.wait_for("w")
    A("s_waitcnt lgkmcnt(0)")
    l_sync(A)
    trace(A, 0, 4)
    if ZW:
        zw_build(A)
    else:
        for u in range(4):
            A(f"ds_read_b128 {v(MID+4*u,4)}, v8 offset:{u*1024}")
    if WMODE == 0 and WPK < 0 and not ZW:
        wt_read(A)
    for r in (VA1, VA2, VA8):
        A(f"v_add_u32 v{r}, {L_AX - L_IMG}, v{r}")
    A("s_waitcnt lgkmcnt(0)")
    p = l_arrive(A)
    assert p == LIMG_FREE
    if NZS:
        nn = uid("nn")
        A(f"s_lshl_b32 s{CNT}, s2, 3\ns_add_u32 s{CNT}, s{CNT}, s{WAVE}\ns_cmp_lg_u32 s{CNT}, 4\ns_cbranch_scc1 {nn}")
        A(f"s_add_u32 s3, s3, 1\ns_cmp_eq_u32 s3, 0\ns_cselect_b32 s3, 1, s3")
        A(f"s_atomic_swap s3, {sp(DBG)}, 0x0\ns_atomic_swap s3, {sp(WS)}, {hex(WS_NONCE)}")
        A.label(nn)
    if WMODE == 0 and WPK < 0:
        wt_sym(A)
        if not ZW:
            wt_perm(A)
    if EARLY2:
        if not TBG:
            make_T(A, TT, 92, 1)
        a2_setup(A)
    if ZPOS < 0:
        a1_stores(A, vm)
    trace(A, 0, 5)


def a2_setup(A):
    A(f"s_and_b32 s{M_}, s2, 7\ns_lshl_b32 s{M_}, s{M_}, 5\ns_lshr_b32 s{T4}, s2, 3\ns_add_u32 s{M_}, s{M_}, s{T4}")
    A(f"s_lshr_b32 s{T4}, s{W_}, 1\ns_xor_b32 s{T4}, s{T4}, s{W_}\ns_and_b32 s{T4}, s{T4}, 1")
    A(f"s_or_b32 s{T5}, s{T4}, s{M_}\ns_cmp_eq_u32 s{T5}, 0\ns_cselect_b32 s{SPC}, 1, 0")
    A(f"s_lshl_b32 s{T5}, s{M_}, 1\ns_add_u32 s{T4}, s{T4}, s{T5}")
    A(f"s_mul_i32 s{T4}, s{T4}, {KS_}\ns_add_u32 s{T4}, s{T4}, {8192 if INOUT else WS_WT + 2*KS_}")
    A(f"s_lshr_b32 s{T5}, s{W_}, 1\ns_mul_i32 s{T9}, s{T5}, {KS_}\ns_add_u32 s{T9}, s{T9}, {WS_WT}")
    A(f"s_cmp_eq_u32 s{SPC}, 1\ns_cselect_b32 s{T4}, s{T9}, s{T4}\ns_cselect_b32 s{T5}, 0, s{T5}")
    A(f"s_cselect_b32 s{MSK}, s{WS}, s{OUT if INOUT else WS}\ns_cselect_b32 s{MSK+1}, s{WS+1}, s{(OUT if INOUT else WS)+1}")
    A(f"s_lshl_b32 s{CJ}, s{T5}, 31\ns_or_b32 s{SGN}, s{CJ}, 0x3f800000")
    srd(A, S2, MSK, T4, 0, ISH + 4096)
    if INOUT:
        A(f"s_lshl_b32 s{T4}, s{W_}, 22\ns_lshr_b32 s{T5}, s{M_}, 6\ns_lshl_b32 s{T5}, s{T5}, 19\ns_add_u32 s{T4}, s{T4}, s{T5}")
        A(f"s_and_b32 s{T5}, s{M_}, 63\ns_lshl_b32 s{T5}, s{T5}, 6\ns_add_u32 s{T4}, s{T4}, s{T5}")
        srd(A, S3, OUT, T4, 0, 160*16384, T5)
        srd(A, S4, OUT, T4, 0, 160*16384, T5)
    else:
        A(f"s_lshl_b32 s{T4}, s{W_}, 20\ns_lshl_b32 s{T5}, s{M_}, 6\ns_add_u32 s{T4}, s{T4}, s{T5}")
        if ZW:
            srd(A, S4, WS, T4, WS_Z3, 0x100000, T5)
            A(f"s_lshl_b32 s{T4}, s{W_}, 21\ns_lshl_b32 s{T5}, s{M_}, 7\ns_add_u32 s{T4}, s{T4}, s{T5}")
            srd(A, S3, WS, T4, WS_ZW, 0x200000, T5)
        else:
            assert WS_Z1 == WS_Z3
            srd(A, S3, WS, T4, WS_Z1, 0x100000, T5)
    A("v_lshrrev_b32 v8, 2, v1\nv_lshlrev_b32 v8, 14, v8\nv_and_b32 v9, 3, v1\nv_lshrrev_b32 v10, 4, v1\nv_xor_b32 v9, v9, v10\nv_lshl_add_u32 v14, v9, 4, v8")
    A(f"v_and_b32 v8, 31, v1\nv_bfe_u32 v9, v1, 2, 2\nv_xor_b32 v9, s{W_}, v9\nv_lshlrev_b32 v9, 4, v9\nv_lshl_add_u32 v9, v8, 6, v9")
    A(f"v_lshrrev_b32 v8, 5, v1\nv_lshl_add_u32 v9, v8, 11, v9\nv_add_u32 v15, {L_AX}, v9")
    A(f"s_lshl_b32 s{T4}, s{W_}, 13\ns_add_u32 s{T4}, s{T4}, {L_AX}\nv_add_u32 v16, s{T4}, v2")
    A(f"s_xor_b32 s{T5}, s{T4}, {3 << 13}\ns_cmp_eq_u32 s{SPC}, 1\ns_cselect_b32 s{T5}, s{T4}, s{T5}\nv_add_u32 v17, s{T5}, v2")
    A(f"v_add_u32 v18, s{T8}, v2")
    A(f"s_lshr_b32 s{T4}, s{W_}, 1\ns_xor_b32 s{T4}, s{T4}, s{W_}\ns_and_b32 s{T4}, s{T4}, 1\ns_lshl_b32 s{T9}, s{T4}, 13\ns_add_u32 s{T9}, s{T9}, {L_W}\nv_add_u32 v19, s{T9}, v2")
    if ZW:
        A(f"v_and_b32 v8, 31, v1\nv_lshrrev_b32 v9, 2, v8\nv_and_b32 v10, 3, v8")
        A(f"s_lshl_b32 s{T4}, s{T4}, 1\ns_add_u32 s{T4}, s{T4}, 4")
        A(f"v_lshrrev_b32 v19, 1, v10\nv_add_u32 v19, s{T4}, v19\nv_and_b32 v11, 6, v9\nv_xor_b32 v19, v19, v11\nv_lshlrev_b32 v19, 4, v19")
        A(f"v_and_b32 v10, 1, v10\nv_lshl_add_u32 v19, v10, 3, v19\nv_lshl_add_u32 v19, v9, 7, v19")
        A(f"v_lshrrev_b32 v11, 5, v1\nv_lshl_add_u32 v19, v11, 12, v19\nv_add_u32 v19, {L_AX}, v19")
        A(f"v_and_b32 v9, 6, v8\nv_bfe_u32 v10, v8, 4, 1\nv_or_b32 v9, v9, v10\nv_xor_b32 v9, s{W_}, v9\nv_lshlrev_b32 v9, 4, v9")
        A(f"v_lshl_add_u32 v9, v8, 7, v9\nv_lshl_add_u32 v9, v11, 12, v9\nv_add_u32 v10, {L_AX}, v9")
        A(f"v_lshrrev_b32 v8, 3, v1\nv_lshlrev_b32 v8, 15, v8\nv_and_b32 v9, 7, v1\nv_lshl_add_u32 v9, v9, 4, v8")
    for kk in range(32):
        A(f"v_mul_f32 v{TT+kk}, s{SGN}, v{TT+kk}")


ZU = lambda u: (16*(u & 1) + 128*(u >> 1))*16384 if INOUT else u << 18


def a2_loads(A, z=True, w=True):
    if ZW:
        A(f"s_lshl_b32 s{T5}, s{W_}, 13\ns_add_u32 s{T5}, s{T5}, {L_AX}")
        for u in range(8 if '5' not in SK else 0):
            A(f"s_add_u32 m0, s{T5}, {u*1024}\ns_mov_b32 s{T4}, {u << 18}")
            A(f"buffer_load_dwordx4 v9, {r4(S3)}, s{T4} offen sc1 lds")
        a, b = uid("ws"), uid("wd")
        A(f"s_cmp_eq_u32 s{SPC}, 1\ns_cbranch_scc1 {a}\ns_waitcnt vmcnt(0)\ns_branch {b}")
        A.label(a)
        A(f"s_movk_i32 s{T4}, {ISH}")
        for it in range(8):
            A(f"buffer_load_dwordx4 {v(W+4*it,4)}, v2, {r4(S2)}, {'0' if it < 4 else f's{T4}'} offen offset:{(it & 3)*1024} sc1")
        A.label(b)
        return
    for u in range(4 if z and '5' not in SK else 0):
        A(f"s_add_u32 m0, s{T8}, {u*1024}\ns_mov_b32 s{T4}, {ZU(u)}")
        A(f"buffer_load_dwordx4 v14, {r4(S3)}, s{T4} offen sc1 lds")
    if WSH:
        a, b = uid("ws"), uid("wd")
        A(f"s_cmp_eq_u32 s{SPC}, 1\ns_cbranch_scc1 {a}")
        A(f"s_lshr_b32 s{T4}, s{W_}, 1\ns_lshl_b32 s{T5}, s{T4}, 12\ns_mul_i32 s{T4}, s{T4}, {ISH}\ns_add_u32 m0, s{T9}, s{T5}")
        for u in range(4 if '4' not in SK else 0):
            A(f"buffer_load_dwordx4 v2, {r4(S2)}, s{T4} offen offset:{u*1024} sc1 lds")
        A(f"s_waitcnt vmcnt(0)\ns_branch {b}")
        A.label(a)
    A(f"s_movk_i32 s{T4}, {ISH}")
    for it in range(8 if w and '4' not in SK else 0):
        A(f"buffer_load_dwordx4 {v(W+4*it,4)}, v2, {r4(S2)}, {'0' if it < 4 else f's{T4}'} offen offset:{(it & 3)*1024} sc1")
    if WSH:
        A.label(b)


PH_RES = 18


def phase_atomic(A, cnt, p):
    x = uid("ph")
    A(f"s_cmp_lg_u32 s{W_}, 0\ns_cbranch_scc1 {x}")
    l_check(A, p)
    A(f"s_and_b32 s{T4}, s2, 15\ns_lshl_b32 s{T5}, s{T4}, 7\ns_add_u32 s{T5}, s{T5}, {cnt}")
    A(f"s_add_u32 s{MSK}, s{WS}, s{T5}\ns_addc_u32 s{MSK+1}, s{WS+1}, 0\ns_mov_b32 s{PH_RES}, 1")
    A(f"s_atomic_add s{PH_RES}, {sp(MSK)}, 0x0 glc")
    A.label(x)


def phase_last(A, flg, wait=True, nrep=None):
    y = uid("sg")
    A(f"s_cmp_lg_u32 s{W_}, 0\ns_cbranch_scc1 {y}")
    A(f"s_and_b32 s{T4}, s2, 15\ns_lshl_b32 s{T4}, s{T4}, 2\ns_add_u32 s{T4}, s{T4}, {flg}")
    A(f"s_add_u32 s4, s{WS}, s{T4}\ns_addc_u32 s5, s{WS+1}, 0")
    A("s_waitcnt lgkmcnt(0)")
    A(f"s_cmp_lg_u32 s{PH_RES}, 15\ns_cbranch_scc1 {y}")
    for r in range(nrep or NREP):
        A(f"s_atomic_swap s{NONCE}, s[4:5], {hex(r*128)}")
    if wait:
        A("s_waitcnt lgkmcnt(0)")
    A.label(y)


def phase_wait(A, flg, tb, nrep=None):
    x, pl_, nok = uid("ph"), uid("sp"), uid("nok")
    A(f"s_cmp_lg_u32 s{W_}, 0\ns_cbranch_scc1 {x}")
    A(f"s_and_b32 s{T4}, s2, {(nrep or NREP) - 1}\ns_lshl_b32 s{T4}, s{T4}, 7\ns_add_u32 s{T4}, s{T4}, {flg}")
    A(f"s_add_u32 s{MSK}, s{WS}, s{T4}\ns_addc_u32 s{MSK+1}, s{WS+1}, 0\ns_mov_b32 s{T4}, s{NONCE}\ns_mov_b32 s{T5}, s{NONCE}\ns_mov_b32 s{CNT}, 0")
    A(f"s_branch {pl_}")
    A.label(nok)
    A(f"s_add_u32 s{CNT}, s{CNT}, 1\ns_cmp_ge_u32 s{CNT}, {SPIN_MAX}\ns_cbranch_scc1 {x}")
    if SLP_A:
        A(f"s_sleep {SLP_A}")
    A.label(pl_)
    A(f"s_load_dwordx16 s[4:19], {sp(MSK)}, 0x0 glc\ns_waitcnt lgkmcnt(0)")
    for q in range(8):
        A(f"s_cmp_eq_u64 s[{4+2*q}:{5+2*q}], {sp(T4)}\ns_cbranch_scc0 {nok}")
    if TRACE:
        A(f"v_writelane_b32 v0, s{CNT}, {tb}")
    A.label(x)
    p2 = l_arrive(A)
    if CSP and flg == (FLG_A if CSPH == 0 else FLG_B):
        dn = uid("csp")
        A(f"s_cmp_eq_u32 s{W_}, 0\ns_cbranch_scc1 {dn}")
        c_prefetch(A, p2, dn)
        A.label(dn)
    l_check(A, p2, slp=LSLP)


def aux_rest(A, vm):
    def phase(cnt, flg, young=0):
        trace(A, 0, 48)
        A(f"s_waitcnt vmcnt({young})")
        trace(A, 0, 49)
        p = l_arrive(A)
        phase_atomic(A, cnt, p)
        phase_last(A, flg)
        trace(A, 0, 50)
        phase_wait(A, flg, 62)
        trace(A, 0, 51)
    if ZPOS >= 11:
        phase(CNT_A, FLG_A)
    elif FPOLL and PB2:
        x = uid("fw")
        A(f"s_cmp_lg_u32 s{W_}, 0\ns_cbranch_scc1 {x}")
        flag_wait(A)
        A.label(x)
        l_check(A, l_arrive(A), slp=LSLP)
    elif FPOLL:
        flag_wait(A)
    else:
        phase_wait(A, FLG_A, 61, 64)
    trace(A, 0, 7)
    A(f"s_setprio {LPRIO2}")
    if A2G:
        l_check(A, A2G % 100, RING_D - 16 if A2G < 100 else -16)
    if CTW == 2:
        c_touch(A, vm)
    trace(A, 0, 8)
    a2_loads(A)
    mark(A, 7)
    A(f"s_waitcnt vmcnt({0 if '4' in SK else 8})")
    trace(A, 0, 9)
    if E_("AM", 0) in (1, 2):
        mark(A, 1)
    l_sync(A)
    trace(A, 0, 10)
    INS = 72
    for s_ in range(4):
        if ZW:
            A(f"ds_read_b128 {v(INS+4*s_,4)}, v10 offset:{s_*8192}")
        else:
            A(f"ds_read_b128 {v(INS+4*s_,4)}, v15 offset:{s_*4096}")
    if ZW:
        a = uid("wr")
        A(f"s_cmp_eq_u32 s{SPC}, 1\ns_cbranch_scc1 {a}")
        A("v_xor_b32 v11, 16, v19")
        for i in range(16):
            A(f"ds_read_b64 {v(W+2*i,2)}, v{11 if (i >> 1) & 1 else 19} offset:{(8*(i >> 2) + (i & 3))*1024}")
        A.label(a)
    elif WSH:
        a = uid("wr")
        A(f"s_cmp_eq_u32 s{SPC}, 1\ns_cbranch_scc1 {a}")
        for it in range(8):
            A(f"ds_read_b128 {v(W+4*it,4)}, v19 offset:{it*1024}")
        A.label(a)
    A("s_waitcnt lgkmcnt(0)")
    if E_("AM", 0) == 2:
        mark(A, 2)
    p6 = l_arrive(A)
    if A2C:
        l_check(A, A2C, -16)
    A(f"s_lshl_b32 s{T4}, s{SPC}, 31\ns_or_b32 s{T4}, s{T4}, s{CJ}")
    fl, nwr = uid("fft"), uid("nwr")
    A.label(fl)
    for i in range(16):
        A(f"v_xor_b32 v{IN+i}, s{T4}, v{INS+i}")

    def pre(rng):
        for i in rng:
            w, rho, sg = W + 2*i, TT + i, TT + 16 + i
            r1, i1, r2, i2, Ar, Ai = (TMP + 8 + c for c in range(6))
            A(f"v_lshlrev_b32 v{r1}, 16, v{w}\nv_and_b32 v{i1}, 0xffff0000, v{w}")
            A(f"v_lshlrev_b32 v{r2}, 16, v{w+1}\nv_and_b32 v{i2}, 0xffff0000, v{w+1}")
            A(f"v_add_f32 v{Ar}, v{r1}, v{r2}\nv_add_f32 v{Ai}, v{i1}, v{i2}")
            A(f"v_sub_f32 v{r1}, v{r1}, v{r2}\nv_sub_f32 v{i1}, v{i1}, v{i2}")
            A(f"v_mul_f32 v{w}, v{rho}, v{r1}\nv_mul_f32 v{w+1}, v{rho}, v{i1}")
            A(f"v_fma_f32 v{rho}, v{sg}, v{r1}, v{Ar}\nv_fma_f32 v{sg}, v{sg}, v{i1}, v{Ai}")

    def once(rng):
        a = uid("once")
        A(f"s_cmp_eq_u32 s{SPC}, 2\ns_cbranch_scc1 {a}\ns_waitcnt vmcnt(0)")
        pre(rng)
        A.label(a)
    stage1(A, IN, D)
    once(range(0, PRE1))
    twiddle(A, D, IN, TMP)
    stage2(A, IN, D)
    once(range(PRE1, PRE2))
    l_check(A, p6)
    if E_("AM", 0) == 2:
        mark(A, 5)
    A(f"s_cmp_eq_u32 s{SPC}, 2\ns_cbranch_scc1 {nwr}")
    for c in range(8):
        A(f"ds_write_b128 v16, {v(D+4*c,4)} offset:{c*1024}")
    A(f"s_cmp_eq_u32 s{SPC}, 0\ns_cbranch_scc1 {nwr}")
    A(f"s_mov_b32 s{SPC}, 2\ns_mov_b32 s{T4}, 0\ns_branch {fl}")
    A.label(nwr)
    pre(range(PRE2, min(16, PRE2 + 2)))
    A("s_waitcnt lgkmcnt(0)")
    p7 = l_arrive(A)
    pre(range(min(16, PRE2 + 2), 16))

    def own(rng):
        for i in rng:
            Xr, Xi, mr, mi, t = D+i, D+16+i, TT+i, TT+16+i, TMP + (i & 1)
            A(f"v_mul_f32 v{t}, v{mi}, v{Xi}\nv_mul_f32 v{Xi}, v{mr}, v{Xi}")
            A(f"v_fmac_f32 v{Xi}, v{mi}, v{Xr}\nv_fma_f32 v{Xr}, v{mr}, v{Xr}, -v{t}")
    own(range(0, 6))
    l_check(A, p7)
    for c in range(8):
        A(f"ds_read_b128 {v(DY+4*c,4)}, v17 offset:{c*1024}")
    own(range(6, 16))
    A("s_waitcnt lgkmcnt(0)")
    if E_("AM", 0) in (1, 2):
        mark(A, 4)
    p8 = l_arrive(A)
    for i in range(16):
        Pr, Pi, Yr, Yi, gr, gi = D+i, D+16+i, DY+i, DY+16+i, W+2*i, W+2*i+1
        A(f"v_fma_f32 v{Pr}, -v{gr}, v{Yi}, v{Pr}\nv_fmac_f32 v{Pi}, v{gr}, v{Yr}")
        A(f"v_fma_f32 v{Pr}, -v{gi}, v{Yr}, v{Pr}\nv_fma_f32 v{Pi}, -v{gi}, v{Yi}, v{Pi}")
        A(f"v_cvt_pk_bf16_f32 v{IN+i}, v{Pi}, v{Pr}")
    if E_("AM", 0) == 2:
        mark(A, 6)
    stage1(A, IN, D)
    twiddle(A, D, IN, TMP)
    stage2(A, IN, D)
    A(f"s_lshr_b32 s{T4}, s{CJ}, 16")
    l_check(A, p8)
    for s_ in range(4):
        for r in range(4):
            i = 4*s_ + r
            A(f"v_cvt_pk_bf16_f32 v{IN+i}, v{D+i}, v{D+16+i}\nv_xor_b32 v{IN+i}, s{T4}, v{IN+i}")
        A(f"ds_write_b128 v15, {v(IN+4*s_,4)} offset:{s_*4096}")
    A("s_waitcnt lgkmcnt(0)")
    if E_("AM", 0) == 2:
        mark(A, 7)
    l_sync(A)
    for u in range(4):
        A(f"ds_read_b128 {v(IN+4*u,4)}, v18 offset:{u*1024}")
    for u in range(4):
        A(f"s_mov_b32 s{T4}, {ZU(u)}\ns_waitcnt lgkmcnt({3-u})")
        if "6" not in SK:
            A(f"buffer_store_dwordx4 {v(IN+4*u,4)}, v14, {r4(S4 if ZW else S3)}, s{T4} offen sc1")
    trace(A, 0, 11)
    if E_("AM", 0) != 3 and not E_("GM", 0):
        mark(A, 3)
    A(f"s_lshl_b32 s{T4}, s{T7}, 14")
    srd(A, S0, OUT, T4, 0, 0x4000)
    A("v_and_b32 v8, 31, v1\nv_lshrrev_b32 v9, 5, v1\nv_lshlrev_b32 v14, 2, v8\nv_lshl_add_u32 v14, v9, 9, v14")
    A(f"s_mov_b32 s{T4}, 0x35000000")
    for k in range(32):
        A(f"v_mul_f32 v{T+k}, s{T4}, v{T+k}")
    phase(CNT_B, FLG_B)
    A(f"s_setprio {LPRIO3}")
    if A3G:
        l_check(A, A3G, -16)
    trace(A, 0, 12)
    if E_("AM", 0) != 3:
        mark(A, 8)
    A(f"s_mov_b32 m0, s{T8}")
    for u in range(4):
        if "7" not in SK:
            A(f"buffer_load_dwordx4 v{VLIN}, {r4(S1)}, 0 offen offset:{u*1024} sc1 lds")
    A("s_waitcnt vmcnt(0)")
    trace(A, 0, 13)
    l_sync(A)
    for i in range(16):
        a, o = img(i)
        A(f"ds_read_b32 v{IN+i}, v{a} offset:{o}")
    A("s_waitcnt lgkmcnt(0)")
    stage1(A, IN, D)
    twiddle(A, D, IN, TMP)
    stage2(A, IN, D)
    A(f"s_movk_i32 s{T4}, 0x2000")
    O = 72
    if A3W:
        A(f"s_lshl_b32 s{T5}, s{W_}, 12\ns_add_u32 s{T5}, s{T5}, {L_W}\nv_add_u32 v15, s{T5}, v14\nv_add_u32 v16, s{T5}, v2")
        for i in range(16):
            o = O + 2*i
            A(f"v_cvt_pk_bf16_f32 v{o+1}, v{D+16+i}, v{D+i}")
            A(f"v_lshlrev_b32 v{o}, 16, v{o+1}\nv_and_b32 v{o+1}, 0xffff0000, v{o+1}")
            A(f"ds_write_b32 v15, v{o} offset:{(i >> 2)*1024 + (i & 3)*128}")
        RB_ = D
        for u in range(4):
            A(f"ds_read_b128 {v(RB_+4*u,4)}, v16 offset:{u*1024}")
        for i in range(16):
            A(f"ds_write_b32 v15, v{O+2*i+1} offset:{(i >> 2)*1024 + (i & 3)*128}")
        for u in range(4):
            A(f"ds_read_b128 {v(RB_+16+4*u,4)}, v16 offset:{u*1024}")
        if A3S:
            l_check(A, A3S, -16)
        for row in range(2):
            for u in range(4):
                n_out = (20 + 3 - u) if row == 0 else (3 - u)
                A(f"s_waitcnt lgkmcnt({min(n_out, 15) if row == 0 else n_out})") if not (row == 0) else None
                if row == 0 and u == 0:
                    A("s_waitcnt lgkmcnt(4)")
                if "8" not in SK:
                    A(f"buffer_store_dwordx4 {v(RB_+16*row+4*u,4)}, v2, {r4(S0)}, {'0' if row == 0 else f's{T4}'} offen offset:{u*1024}{OST}")
    for part in range(0 if A3W else 2 if A3S else 1):
        if part == 1:
            l_check(A, A3S, -16)
        for i in range(16):
            o = O + 2*i
            if part == 0:
                A(f"v_cvt_pk_bf16_f32 v{o+1}, v{D+16+i}, v{D+i}")
                A(f"v_lshlrev_b32 v{o}, 16, v{o+1}\nv_and_b32 v{o+1}, 0xffff0000, v{o+1}")
            off = (i >> 2)*1024 + (i & 3)*128
            if "8" not in SK and (part == 1 or not A3S):
                A(f"buffer_store_dword v{o}, v14, {r4(S0)}, 0 offen offset:{off}{OST}")
                A(f"buffer_store_dword v{o+1}, v14, {r4(S0)}, s{T4} offen offset:{off}{OST}")


def cmul_sq(A, d, a, t):
    A(f"v_mul_f32 {v(t)}, {v(a+1)}, {v(a+1)}")
    A(f"v_mul_f32 {v(t+1)}, {v(a)}, {v(a+1)}")
    A(f"v_fma_f32 {v(d)}, {v(a)}, {v(a)}, -{v(t)}")
    A(f"v_add_f32 {v(d+1)}, {v(t+1)}, {v(t+1)}")


def horner(A, dr, di, L, pr, pi, er, ei, t):
    assert dr not in (pr, pi) and di not in (pr, pi)
    A(f"v_fma_f32 {v(t)}, {v(L)}, {v(pr)}, {v(er)}")
    A(f"v_fma_f32 {v(t+1)}, {v(L)}, {v(pi)}, {v(ei)}")
    A(f"v_fma_f32 {v(dr)}, -{v(L+1)}, {v(pi)}, {v(t)}")
    A(f"v_fma_f32 {v(di)}, {v(L+1)}, {v(pr)}, {v(t+1)}")


RING_D, RING_LG, RING_LA = 32, 48, 64


def dma_setup(A, swt, swp, RV, t, ta, tb):
    l5, a, b_, c, d, e = (t + i for i in range(6))
    A(f"v_lshrrev_b32 v{l5}, 5, v1\nv_bfe_u32 v{a}, v1, 3, 2\nv_and_b32 v{b_}, 1, v{a}\nv_lshrrev_b32 v{c}, 1, v{a}")
    A(f"v_lshlrev_b32 v{d}, 4, v{l5}\nv_lshl_add_u32 v{d}, v{b_}, 3, v{d}\nv_add_u32 v{d}, v{d}, v{c}")
    A(f"s_lshl_b32 s{ta}, s{swt}, 6\ns_lshl_b32 s{tb}, s{swp}, 2\ns_add_u32 s{ta}, s{ta}, s{tb}")
    A(f"v_add_u32 v{d}, s{ta}, v{d}\nv_lshlrev_b32 v{d}, 11, v{d}")
    A(f"s_lshl_b32 s{ta}, s{swt}, 5")
    A(f"v_lshl_add_u32 v{e}, v{l5}, 3, v{a}\nv_add_u32 v{e}, s{ta}, v{e}\nv_lshlrev_b32 v{e}, 11, v{e}")
    A(f"v_and_b32 v{b_}, 7, v1\nv_lshrrev_b32 v{c}, 4, v1\nv_xor_b32 v{b_}, v{b_}, v{c}\nv_lshlrev_b32 v{b_}, 4, v{b_}\nv_xor_b32 v{c}, 64, v{b_}")
    A(f"v_add_u32 v{RV}, v{d}, v{b_}\nv_add_u32 v{RV+1}, v{d}, v{c}\nv_add_u32 v{RV+1}, {32*2048 - 1024}, v{RV+1}")
    A(f"v_add_u32 v{RV+2}, v{e}, v{b_}\nv_add_u32 v{RV+3}, v{e}, v{c}\nv_add_u32 v{RV+3}, {16*2048 - 1024}, v{RV+3}")


def make_piece(A, vm, RA, RB, ROT, M0B, SOF, RV):
    def piece(k, n):
        slot, u = k % NS, n & 3
        if n == 0:
            A(f"s_add_u32 s{SOF}, s{ROT}, {((k*E_('KDIR', 1)) % 16)*128}\ns_and_b32 s{SOF}, s{SOF}, 0x7ff")
            A(f"s_add_u32 s{SOF+1}, s{SOF}, 2048\ns_add_u32 s{SOF+2}, s{SOF}, 6144")
        if u == 0:
            A(f"s_add_u32 m0, s{M0B}, {slot*32768 + (n >> 2)*16384}")
        so = SOF if u < 2 else SOF + 1 + (n >> 2)
        if ("a" in G1X and 0 < n < 4) or ("b" in G1X and n > 4):
            return
        vm.op(f"buffer_load_dwordx4 v{RV + 2*(n >> 2) + (u & 1)}, {r4(RA if n < 4 else RB)}, s{so} offen offset:{u*1024} lds", ("st", k))
    return piece


def rot_setup(A, ROT, t):
    if TIMAP:
        A(f"s_bfe_u32 s{ROT}, s2, 0x20001\ns_lshl_b32 s{ROT}, s{ROT}, 2\ns_lshr_b32 s{t}, s2, 6\ns_add_u32 s{ROT}, s{ROT}, s{t}\ns_mul_i32 s{ROT}, s{ROT}, {RI*128}")
    else:
        A(f"s_mul_i32 s{ROT}, s{TI}, {RI*128}")
    A(f"s_mul_i32 s{t}, s{TJ}, {RJ*128}\ns_add_u32 s{ROT}, s{ROT}, s{t}")
    if E_("ROTFIX", 1):
        A(f"s_bfe_u32 s{t}, s{ROT}, 0x30007\ns_cmp_eq_u32 s{t}, 3\ns_cselect_b32 s{t}, {E_('ROTFIX', 1)*128}, 0\ns_add_u32 s{ROT}, s{ROT}, s{t}")
    if E_("ROTC", 0):
        A(f"s_add_u32 s{ROT}, s{ROT}, {E_('ROTC', 0)*128}")


def aux_waves(A, name, kidx):
    A(f"s_sub_u32 s{W_}, s{WAVE}, 4")
    A(f"s_setprio {APRIO}")
    if BARP == 0:
        A("s_barrier")
    A("s_waitcnt lgkmcnt(0)")
    A(f"s_mov_b32 s100, s{CRE}\ns_mov_b32 s101, s{CRE+1}")
    A(f"s_bitcmp1_b32 s{W_}, 0\ns_cselect_b32 s100, s{CIM}, s{CRE}\ns_cselect_b32 s101, s{CIM+1}, s{CRE+1}")
    trace_init(A, 0)
    vm = VmCounter(A)
    if CODEPF:
        pf, pc = uid("pf"), uid("pc")
        A(f"s_cmp_lg_u32 s{W_}, 1")
        A(f"s_cbranch_scc1 {pf}")
        A(f"s_lshr_b32 s{T0}, s2, 3\ns_lshl_b32 s{T0}, s{T0}, 11\nv_and_b32 v12, 15, v1\nv_lshl_add_u32 v12, v12, 7, s{T0}")
        A(f"v_min_u32 v12, L_{name}_end-{name}, v12")
        A(f"s_getpc_b64 {sp(T0)}")
        A.label(pc)
        A(f"s_sub_u32 s{T0}, s{T0}, {pc}-{name}\ns_subb_u32 s{T1}, s{T1}, 0")
        A(f"global_load_dword v23, v12, {sp(T0)}")
        A.label(pf)
    nn = uid("nn")
    A(f"s_lshl_b32 s{T0}, s2, 3\ns_add_u32 s{T0}, s{T0}, s{WAVE}\ns_cmp_lg_u32 s{T0}, 4")
    A(f"s_cbranch_scc1 {nn}")
    A(f"s_load_dword s3, {sp(WS)}, {WS_NONCE}")
    if not NZS:
        A(f"v_mov_b32 v22, 0\nv_lshlrev_b32 v23, 7, v1\nv_add_u32 v23, {WS_CNT}, v23")
        A(f"global_store_dword v23, v22, {sp(WS)} sc1")
    A.label(nn)

    def clear_counters():
        nn = uid("nz")
        A(f"s_cmp_lg_u32 s2, 0\ns_cbranch_scc1 {nn}")
        A(f"s_lshl_b32 s24, s{W_}, 10\ns_add_u32 s24, s24, {WS_CNT}\ns_add_u32 s24, s{WS}, s24\ns_addc_u32 s25, s{WS+1}, 0\ns_mov_b32 s26, 0")
        for r in range(8):
            A(f"s_atomic_swap s26, s[24:25], {hex(r*128)}")
        A.label(nn)

    def publish_nonce(young):
        nn = uid("nn")
        A(f"s_lshl_b32 s{CNT}, s2, 3\ns_add_u32 s{CNT}, s{CNT}, s{WAVE}\ns_cmp_lg_u32 s{CNT}, 4")
        A(f"s_cbranch_scc1 {nn}")
        A(f"s_waitcnt vmcnt({young}) lgkmcnt(0)")
        A(f"s_add_u32 s3, s3, 1\ns_cmp_eq_u32 s3, 0\ns_cselect_b32 s3, 1, s3")
        A(f"v_mov_b32 v11, s3\nv_mov_b32 v10, 0")
        A(f"s_mov_b64 exec, 1\nglobal_store_dword v10, v11, {sp(DBG)} sc1")
        A(f"global_store_dword v10, v11, {sp(WS)} offset:{WS_NONCE}\ns_mov_b64 exec, -1")
        A.label(nn)
    if NOAUX:
        if BARP:
            A("s_barrier")
        assert not NZS
        publish_nonce(0)
        if CTW:
            for _ in range(E_("CTD", 100)):
                A("s_sleep 1")
            c_touch(A, vm)
        A("s_endpgm")
        return
    RA, RB, ROT, M0B, SOF, RV = 12, 20, 16, 17, 8, 176
    piece = make_piece(A, vm, RA, RB, ROT, M0B, SOF, RV)

    def loader_setup():
        A(f"s_lshl_b32 s{T4}, s{TI}, 18\ns_lshl_b32 s{T5}, s{TJ}, 17")
        srd(A, RA, BX, T4, 0, 0x40000)
        A(f"s_bitcmp1_b32 s{W_}, 0\ns_cselect_b32 s8, s{BIM}, s{BRE}\ns_cselect_b32 s9, s{BIM+1}, s{BRE+1}")
        srd(A, RB, 8, T5, 0, 0x20000)
        rot_setup(A, ROT, T4)
        A(f"s_lshl_b32 s{M0B}, s{W_}, 12")
        A(f"s_lshr_b32 s{T4}, s{W_}, 1\ns_and_b32 s{T5}, s{W_}, 1")
        dma_setup(A, T4, T5, RV, 96, CNT, 19)
    aux_setup_ax(A)
    aux_issue(A, vm)
    if WMODE == 0 and WPOS == 0 and not WBYG:
        if ZW:
            zw_addr(A)
            zw_issue(A, vm)
            w_sym_addr(A)
            w_sym_issue(A)
        elif WSPLIT:
            aux_setup_w(A)
            w_tile_issue(A, vm, T8, L_W - L_AX, [0])
        else:
            aux_setup_w(A)
            w_issue(A, vm)
    if NZS:
        clear_counters()
    def page_touch(pages, only=None):
        todo = [(b_, o + q) for b_, o, n in pages for q in sorted(set(list(range(0, n, 2 << 20)) + [n - 64]))]
        y = uid("tm")
        if only is not None:
            A(f"s_lshr_b32 s27, s2, 3\ns_and_b32 s27, s27, {only}\ns_cmp_lg_u32 s27, 0\ns_cbranch_scc1 {y}")
        for w in range(4):
            x = uid("tl")
            A(f"s_cmp_lg_u32 s{W_}, {w}\ns_cbranch_scc1 {x}")
            for b_, o in todo[w::4]:
                A(f"s_mov_b32 s27, {hex(o)}\ns_load_dword s26, {sp(b_)}, s27")
            A.label(x)
        A.label(y)
    LATEP = [(WS, 0, 1 << 20), (WS, WS_HT, 64*TBS), (WS, WS_XB, 8 << 20), (OUT, 0, 16 << 20)]
    if TLBT & 1:
        page_touch([(WS, WS_ZW, 8 << 20), (WS, WS_WT, 64)] if ZW else [(WS, WS_Z1, 4 << 20), (WS, WS_WT, 516*8192)], only=TLBO if TLBO else None)
    if TLBT & 2:
        page_touch([(BX, 0, 4 << 20), (BRE, 0, 2 << 20), (BIM, 0, 2 << 20), (LRE, 0, 64), (LIM, 0, 64), (LDT, 0, 64)], only=TLBO if TLBO else None)
    if BARP == 1:
        A("s_barrier")
    trace(A, 0, 0)
    if TBG:
        A(f"v_add_u32 v92, {L_TBL}, v2")
        for w, d in enumerate((F, T, TT)):
            for q in range(8):
                A(f"ds_read_b128 {v(d+4*q,4)}, v92 offset:{w*8192 + q*1024}")
    else:
        make_F(A, 92)
    if WSPLIT == 1:
        w_tile_issue(A, vm, T8, L_W - L_AX, [1])
        w_sym_issue(A)
        if BARP == 2:
            A("s_barrier")
    if WMODE == 0 and WPOS == 1:
        aux_setup_w(A)
        w_issue(A, vm)
    if not TBG:
        make_T(A, T, 92, 0)
    if WSPLIT == 2:
        w_tile_issue(A, vm, T8, L_W - L_AX, [1])
        w_sym_issue(A)
        if BARP == 2:
            A("s_barrier")
    if WMODE == 0 and WPOS == 2:
        aux_setup_w(A)
        w_issue(A, vm)
    if WBYG:
        w_addr(A, W_)
        w_sym_addr(A)
        w_sym_issue(A)
    aux_pre_a(A)
    if ZW:
        zw_pre(A)
    elif WMODE == 0:
        aux_pre_w(A)
    if PRES:
        loader_setup()
    if not NZS:
        publish_nonce(len(vm.issued))
    trace(A, 0, 1)
    a1_task(A, vm)
    if WMODE:
        aux_setup_w(A)
        aux_pre_w(A)
    if not PRES:
        loader_setup()
    Lt = Asm()
    if not EARLY2:
        make_T(Lt, TT, 92, 1)
    later = Lt.lines
    issued = KS0
    if KS0 < NS and E_("PREK", 0):
        for n in range(8):
            piece(issued, n)
        issued += 1
    trace(A, 0, 6)
    A(f"s_setprio {LPRIO0}")
    ZLATE = ZPOS >= 11
    KS = max(WSK if WMODE else KS0, ZPOS, WTK) + LA + 1 if not ZLATE else E_("KSL", 11)
    KS = max(KS, E_("KSX", 0))
    NONK = E_("NONK", 2)
    assert KS + 2 <= 13 and NONK < KS
    for k in range(16):
        if k >= KS0:
            vm.wait_for(("st", k))
        if WMODE == 0 and k == WPK:
            vm.wait_for("w")
        trace(A, 0, 16 + k)
        A("s_barrier")
        while issued < min(16, k + LA + 1):
            for n in range(8):
                piece(issued, n)
            issued += 1
        if WMODE == 0 and k == WPK:
            assert WPK < 2 and WTK > WPK
            wt_read(A)
            A("s_waitcnt lgkmcnt(0)")
            wt_sym(A)
            wt_perm(A)
        if k == ZPOS:
            a1_stores(A, vm)
        if WMODE == 0 and k == WTK and WTK != ZPOS:
            wt_store(A, vm)
        if k == NONK:
            if SNON:
                A(f"s_load_dword s{NONCE}, {sp(DBG)}, 0x0 glc")
            elif NLDS:
                x = uid("nl")
                A(f"s_cmp_lg_u32 s{W_}, 0\ns_cbranch_scc1 {x}")
                A(f"v_mov_b32 v20, 0\nglobal_load_dword v21, v20, {sp(DBG)} sc1")
                A.label(x)
            else:
                A("v_mov_b32 v20, 0")
                vm.op(f"global_load_dword v21, v20, {sp(DBG)} sc1", "nonce")
        if NLDS and k == 13:
            x = uid("nl")
            A(f"s_cmp_eq_u32 s{W_}, 0\ns_cbranch_scc1 {x}")
            A(f"ds_read_b32 v20, v{SQ} offset:{L_NONCE - 16}\ns_waitcnt lgkmcnt(0)\nv_readfirstlane_b32 s{NONCE}, v20")
            A.label(x)
        if k in CPK:
            code_touch(A, MSK)
        if WMODE:
            if k == WK:
                w_issue(A, vm)
            if k == WK + LA + 1:
                wt_read(A)
                A("s_waitcnt lgkmcnt(0)")
                wt_sym(A)
                wt_perm(A)
            if k == WSK:
                wt_store(A, vm)
        if k == KS - 1:
            assert not later
            if not ZLATE and not EARLY2:
                a2_setup(A)
        if k == KS:
            x, y = uid("sg"), uid("sg")
            if SNON:
                A.label(x)
                A(f"s_waitcnt lgkmcnt(0)\ns_cmp_lg_u32 s{NONCE}, 0\ns_cbranch_scc1 {y}")
                A(f"s_load_dword s{NONCE}, {sp(DBG)}, 0x0 glc\ns_branch {x}")
            elif NLDS:
                z = uid("nl")
                A(f"s_cmp_lg_u32 s{W_}, 0\ns_cbranch_scc1 {y}")
                A(f"v_readfirstlane_b32 s{NONCE}, v21\ns_cmp_lg_u32 s{NONCE}, 0\ns_cbranch_scc1 {z}")
                get_nonce(A, 20)
                A.label(z)
                A(f"v_mov_b32 v20, s{NONCE}\ns_mov_b64 exec, 1\nds_write_b32 v{SQ}, v20 offset:{L_NONCE - 16}\ns_mov_b64 exec, -1\ns_waitcnt lgkmcnt(0)")
            else:
                A(f"v_readfirstlane_b32 s{NONCE}, v21\ns_cmp_lg_u32 s{NONCE}, 0\ns_cbranch_scc1 {y}")
                get_nonce(A, 20)
            A.label(y)
        if k == KS and not ZLATE:
            x = uid("sg")
            A(f"s_cmp_lg_u32 s{W_}, 0\ns_cbranch_scc1 {x}")
            A(f"s_and_b32 s{T4}, s2, 15\ns_lshl_b32 s{T5}, s{T4}, 7\ns_add_u32 s{T5}, s{T5}, {CNT_A}")
            A(f"s_add_u32 s{MSK}, s{WS}, s{T5}\ns_addc_u32 s{MSK+1}, s{WS+1}, 0\ns_mov_b32 s{PH_RES}, 1")
            A(f"s_atomic_add s{PH_RES}, {sp(MSK)}, 0x0 glc")
            A.label(x)
        if PB2 and not ZLATE:
            if k == KS + 1:
                A("s_mov_b32 s19, 0")
            if k == KS + 2:
                x = uid("sg")
                A(f"s_cmp_lg_u32 s{W_}, 0\ns_cbranch_scc1 {x}")
                A(f"s_waitcnt lgkmcnt(0)\ns_cmp_eq_u32 s{PH_RES}, 15\ns_cselect_b32 s19, 1, 0")
                A(f"s_and_b32 s26, s2, 15\ns_lshl_b32 s26, s26, 2\ns_add_u32 s26, s26, {FLG_A}\ns_add_u32 s26, s{WS}, s26\ns_addc_u32 s27, s{WS+1}, 0")
                A.label(x)
            if KS + 2 <= k <= KS + 5:
                x = uid("sg")
                A(f"s_cmp_lg_u32 s19, 1\ns_cbranch_scc1 {x}")
                for r in range(8):
                    A(f"s_atomic_swap s{NONCE}, s[26:27], {hex((8*(k - KS - 2) + r)*128)}")
                A.label(x)
        if k == KS + 2 and not ZLATE and not PB2:
            x = uid("sg")
            A(f"s_cmp_lg_u32 s{W_}, 0\ns_cbranch_scc1 {x}")
            A(f"s_waitcnt lgkmcnt(0)\ns_cmp_lg_u32 s{PH_RES}, 15\ns_cbranch_scc1 {x}")
            A(f"s_and_b32 s{T4}, s2, 15\ns_lshl_b32 s{T4}, s{T4}, 2\ns_add_u32 s{T4}, s{T4}, {FLG_A}\nv_lshl_add_u32 v22, v1, 7, s{T4}\nv_mov_b32 v23, s{NONCE}")
            A(f"global_store_dword v22, v23, {sp(WS)} sc1")
            A.label(x)
        if KA and KA0 <= k <= KA1:
            if k == KA0:
                A(f"s_and_b32 s27, s2, 1\ns_lshl_b32 s27, s27, 10\ns_bfe_u32 s26, s2, 0x20001\ns_lshl_b32 s26, s26, 19\ns_add_u32 s27, s27, s26")
                A(f"s_lshr_b32 s26, s2, 3\ns_lshl_b32 s26, s26, 14\ns_add_u32 s27, s27, s26\ns_lshr_b32 s26, s{W_}, 1\ns_lshl_b32 s26, s26, 13\ns_add_u32 s27, s27, s26")
            for n in range(KA):
                q = (k - KA0)*KA + n
                if q < 64:
                    A(f"s_load_dword s3, s[100:101], s27 offset:{(q >> 4)*2048 + (q & 15)*64}")
        if TLBT & 4 and k == TLBK:
            page_touch(LATEP, only=7)
        if k == CTK and CTW == 0 and not CTKS:
            c_touch(A, vm)
        if k in CTKS:
            n_ = 32 // len(CTKS)
            c_touch(A, vm, ((1 << n_) - 1) << (n_*CTKS.index(k)))
        if FPOLL and k == FPOLL and not ZLATE:
            assert k >= 13
            if PB2:
                x = uid("fp")
                A(f"s_cmp_lg_u32 s{W_}, 0\ns_cbranch_scc1 {x}")
                A(f"s_and_b32 s{T4}, s2, 31\ns_lshl_b32 s{T4}, s{T4}, 7\ns_add_u32 s{T4}, s{T4}, {FLG_A}")
                A(f"s_add_u32 s24, s{WS}, s{T4}\ns_addc_u32 s25, s{WS+1}, 0\ns_load_dwordx16 s[4:19], s[24:25], 0x0 glc")
                A.label(x)
            else:
                flag_poll(A, FLG_A)
        if k < KS - 1:
            for _ in range(-(-len(later) // (KS - 1 - k))):
                A(later.pop(0))
    assert issued == 16
    if ZLATE and not EARLY2:
        a2_setup(A)
    A(f"s_setprio {LPRIO}")
    aux_rest(A, vm)
    trace(A, 0, 14)
    if TRACE:
        A("s_waitcnt vmcnt(0)")
    trace(A, 0, 15)
    trace_dump(A, 0, WAVE, 1)
    stamp_end(A, kidx, WAVE)
    A("s_endpgm")


M16 = "v_mfma_f32_16x16x32_bf16"
XRW = 144
L_XC = 114688


def cpow(A, d, zr, zi, n, t):
    if isinstance(n, str):
        A(f"v_mul_f32 v{t}, {n}, v{zr}\nv_mul_f32 v{t+1}, {n}, v{zi}")
    else:
        A(f"v_mul_f32 v{t}, {fl(n)}, v{zr}\nv_mul_f32 v{t+1}, {fl(n)}, v{zi}")
    A(f"v_exp_f32 v{t}, v{t}\nv_rndne_f32 v{t+2}, v{t+1}\nv_sub_f32 v{t+1}, v{t+1}, v{t+2}")
    A(f"v_cos_f32 v{t+2}, v{t+1}\nv_sin_f32 v{t+1}, v{t+1}")
    A(f"v_mul_f32 v{d}, v{t}, v{t+2}\nv_mul_f32 v{d+1}, v{t}, v{t+1}")


def gemm_waves(A, name, kidx):
    U = lambda pg, c, idx: 64 + (pg*2 + c)*16 + 2*idx
    ACC = lambda mt, nt: 64 + ((nt & 1)*2 + (nt >> 1))*16 + 4*mt
    FR = lambda X, f: (32 if X == 0 else 144) + 4*f
    AD = lambda st, op, k2: 128 + st*4 + op*2 + k2
    LAM = lambda pg: 20 + 2*pg
    KC = lambda pg: 24 + 2*pg
    L8 = lambda pg: 176 + 2*pg
    L16 = lambda pg: 180 + 2*pg
    PP = lambda pg: 184 + 4*pg
    PW = lambda pg, idx: 208 + 16*pg + 2*idx
    Q16, Q64, Q128, Q256 = 28, 192, 30, 2
    WT_, WP = T8, T6
    A(f"s_lshr_b32 s{WT_}, s{WAVE}, 1\ns_and_b32 s{WP}, s{WAVE}, 1\ns_lshr_b32 s{PG}, s{TJ}, 3")
    A("v_and_b32 v6, 31, v1\nv_lshrrev_b32 v5, 5, v1\nv_lshlrev_b32 v11, 4, v1")
    A("v_mov_b64 v[64:65], 0\nv_mov_b64 v[66:67], 0")
    A(f"s_mul_i32 s{T0}, s{WAVE}, {16*XRW}\ns_add_u32 s{T0}, s{T0}, {L_XC}\nv_add_u32 v13, s{T0}, v11\nv_mov_b32 v12, {L_SYNC}")
    A("ds_write_b128 v13, v[64:67]\nds_write_b128 v13, v[64:67] offset:1024\nds_write_b128 v13, v[64:67] offset:2048")
    A("s_mov_b64 exec, 1\nds_write_b128 v12, v[64:67]\nds_write_b128 v12, v[64:67] offset:16\nds_write_b128 v12, v[64:67] offset:32\nds_write_b128 v12, v[64:67] offset:48\nds_write_b128 v12, v[64:67] offset:64\ns_mov_b64 exec, -1")
    A(f"s_lshl_b32 s{T0}, s{WAVE}, 2\nv_add_u32 v13, s{T0}, v12")
    if TBG:
        assert KS0 <= 2
        done = uid("tb")
        for w, mk in enumerate((lambda: make_F(A, 20, 128), lambda: make_T(A, 128, 20, 0), lambda: make_T(A, 128, 20, 1))):
            nx = uid("tb")
            A(f"s_cmp_lg_u32 s{WAVE}, {w}\ns_cbranch_scc1 {nx}")
            mk()
            A(f"v_add_u32 v20, {L_TBL + w*8192}, v11")
            for q in range(8):
                A(f"ds_write_b128 v20, {v(128+4*q,4)} offset:{q*1024}")
            A(f"s_branch {done}")
            A.label(nx)
        A.label(done)
    A("s_waitcnt lgkmcnt(0)\ns_barrier")
    A("v_bfe_u32 v4, v1, 2, 2\nv_lshlrev_b32 v4, 3, v4\nv_and_b32 v7, 3, v1\nv_add_u32 v4, v4, v7")
    A(f"s_lshl_b32 s{T0}, s{TJ}, 6\ns_lshl_b32 s{T1}, s{WP}, 5\ns_add_u32 s{T0}, s{T0}, s{T1}")
    A(f"v_add_u32 v4, s{T0}, v4\nv_lshlrev_b32 v7, 1, v4")
    RA, RB, ROT, M0B, SOF, RV = S2, S3, 38, 39, T2, 244
    vm1 = VmCounter(A)
    if WBYG:
        A("s_waitcnt lgkmcnt(0)")
        w_addr(A, WAVE)
        srd(A, S2, WR, size=NBW)
        srd(A, S3, WI, size=NBW)
        A(f"s_lshl_b32 s{T0}, s{WAVE}, 12")
        w_tile_issue(A, vm1, T0, L_W)
    dma_setup(A, WT_, WP, RV, 14, T1, T2)
    rot_setup(A, ROT, T0)
    A(f"s_lshl_b32 s{T0}, s{TI}, 18\ns_lshl_b32 s{T1}, s{TJ}, 17\ns_lshl_b32 s{M0B}, s{WAVE}, 12")
    A("s_waitcnt lgkmcnt(0)")
    PRM = 248
    for pg in range(2):
        A(f"global_load_ushort v{PRM+3*pg}, v7, {sp(LRE)} offset:{8*pg}\nglobal_load_ushort v{PRM+1+3*pg}, v7, {sp(LIM)} offset:{8*pg}\nglobal_load_ushort v{PRM+2+3*pg}, v7, {sp(LDT)} offset:{8*pg}")
    srd(A, RA, BX, T0, 0, 0x40000)
    A(f"s_cmp_eq_u32 s{WP}, 1\ns_cselect_b32 s{T2}, s{BIM}, s{BRE}\ns_cselect_b32 s{T3}, s{BIM+1}, s{BRE+1}")
    srd(A, RB, T2, T1, 0, 0x20000)
    piece = make_piece(A, vm1, RA, RB, ROT, M0B, SOF, RV)
    for n in range(8):
        piece(0, n)
    A("v_bfe_u32 v7, v1, 4, 1\nv_lshl_add_u32 v4, v7, 2, v4")
    A("v_bfe_u32 v7, v6, 1, 3\nv_xor_b32 v7, v7, v5\nv_lshlrev_b32 v7, 4, v7\nv_lshl_add_u32 v7, v6, 7, v7")
    A("v_and_b32 v8, 15, v1\nv_lshrrev_b32 v9, 4, v1")
    A("v_lshrrev_b32 v14, 1, v8\nv_xor_b32 v14, v14, v9\nv_lshlrev_b32 v14, 4, v14\nv_lshl_add_u32 v14, v8, 7, v14")
    A(f"s_lshl_b32 s{T0}, s{WT_}, 13\ns_lshl_b32 s{T1}, s{WP}, 13\ns_add_u32 s{T1}, s{T1}, 16384")
    for k2 in range(2):
        A(f"v_xor_b32 v15, {k2 << 6}, v14")
        A(f"v_add_u32 v{AD(0,0,k2)}, s{T0}, v15\nv_add_u32 v{AD(0,1,k2)}, s{T1}, v15")
        A(f"v_add_u32 v{AD(1,0,k2)}, 0x10000, v{AD(0,0,k2)}\nv_add_u32 v{AD(1,1,k2)}, 0x10000, v{AD(0,1,k2)}")
    Areal, A = A, Asm()
    srd(A, S0, WS, None, WS_EG, 0x40000)
    srd(A, S1, WS, None, WS_HT, 64*TBS)
    A(f"s_mul_i32 s{T0}, s{WP}, {32*XRW}\ns_add_u32 s{T0}, s{T0}, {L_XC + 64}\ns_lshl_b32 s{T1}, s{WT_}, 5\ns_add_u32 s{T1}, s{T1}, s{T0}")
    A(f"v_mul_u32_u24 v14, {XRW}, v6\nv_add_u32 v14, s{T0}, v14\nv_lshl_add_u32 v14, v5, 5, v14")
    A(f"v_mul_u32_u24 v15, {XRW}, v8\nv_add_u32 v15, s{T1}, v15\nv_lshl_add_u32 v15, v9, 3, v15")
    A(f"s_lshl_b32 s{T0}, s{TI}, 14\nv_lshl_add_u32 v16, v4, 4, s{T0}")
    A("v_mov_b32 v17, 0x40000000\nv_lshlrev_b32 v10, 14, v5\nv_sub_u32 v10, v16, v10")
    LA_, LX = 194, 200
    for u in range(8):
        A(f"v_subrev_u32 v{136+u}, {16384 + u*32768}, v10\nv_cmp_le_i32 vcc, 0, v{136+u}\nv_cndmask_b32 v{136+u}, v17, v{136+u}, vcc")
    A("v_lshlrev_b32 v17, 30, v5\nv_or_b32 v16, v16, v17")
    A(f"s_lshl_b32 s{T0}, s{TI}, 11\ns_add_u32 s{T0}, s{T0}, {FLG_X}\ns_lshl_b32 s{T1}, s{TJ}, 7\ns_add_u32 s{T1}, s{T1}, s{T0}\nv_mov_b32 v195, s{T1}")
    A(f"s_lshl_b32 s{T1}, s{PG}, 10\ns_add_u32 s{T0}, s{T0}, s{T1}\nv_and_b32 v196, 7, v1\nv_lshl_add_u32 v196, v196, 7, s{T0}")
    A(f"s_lshl_b32 s{T0}, s{TI}, 1\ns_add_u32 s{T0}, s{T0}, s{WT_}\ns_lshl_b32 s{T0}, s{T0}, 12\ns_add_u32 s{T0}, s{T0}, {FLG_H}")
    A(f"s_lshl_b32 s{T1}, s{PG}, 11\ns_add_u32 s{T1}, s{T1}, s{T0}\nv_lshl_add_u32 v18, v8, 7, s{T1}")
    A(f"s_lshl_b32 s{T1}, s{TJ}, 8\ns_add_u32 s{T0}, s{T0}, s{T1}\ns_lshl_b32 s{T1}, s{WP}, 7\ns_add_u32 s{T0}, s{T0}, s{T1}\nv_mov_b32 v19, s{T0}")
    A("v_lshrrev_b32 v10, 1, v9\nv_lshlrev_b32 v10, 10, v10\nv_and_b32 v17, 1, v9\nv_lshl_add_u32 v10, v17, 9, v10\nv_lshl_add_u32 v10, v8, 4, v10")
    A(f"s_lshl_b32 s{T0}, s{WT_}, 2\nv_add_u32 v9, s{T0}, v9\nv_cvt_f32_u32 v9, v9\nv_mul_f32 v9, 0x41800000, v9\nv_add_f32 v8, 0x41000000, v9")
    A("PARAMWAIT")
    ZR, ZI = 204, 206
    for pg in range(2):
        lr, li, dt, t = PRM+3*pg, PRM+1+3*pg, PRM+2+3*pg, 197
        A(f"v_lshlrev_b32 v{lr}, 16, v{lr}\nv_lshlrev_b32 v{li}, 16, v{li}\nv_lshlrev_b32 v{dt}, 16, v{dt}")
        A(f"v_mul_f32 v{dt}, 0x3fb8aa3b, v{dt}\nv_exp_f32 v{dt}, v{dt}")
        A(f"v_cvt_pk_bf16_f32 v{dt}, v{dt}, v{dt}\nv_lshlrev_b32 v{dt}, 16, v{dt}")
        A(f"v_mul_f32 v{ZR+pg}, v{dt}, v{lr}\nv_mul_f32 v{ZI+pg}, v{dt}, v{li}")
        A(f"v_mul_f32 v{ZR+pg}, 0x3fb8aa3b, v{ZR+pg}\nv_mul_f32 v{ZI+pg}, 0.15915494, v{ZI+pg}")
        cpow(A, LAM(pg), ZR+pg, ZI+pg, 1.0, t)
        A(f"v_add_f32 v{t}, -1.0, v{LAM(pg)}")
        A(f"v_mul_f32 v{t+1}, v{lr}, v{lr}\nv_fma_f32 v{t+1}, v{li}, v{li}, v{t+1}\nv_rcp_f32 v{t+1}, v{t+1}")
        A(f"v_add_f32 v{t+1}, v{t+1}, v{t+1}")
        A(f"v_mul_f32 v{t+2}, v{t}, v{lr}\nv_fma_f32 v{t+2}, v{LAM(pg)+1}, v{li}, v{t+2}\nv_mul_f32 v{KC(pg)}, v{t+2}, v{t+1}")
        A(f"v_mul_f32 v{t+2}, v{LAM(pg)+1}, v{lr}\nv_fma_f32 v{t+2}, -v{t}, v{li}, v{t+2}\nv_mul_f32 v{KC(pg)+1}, v{t+2}, v{t+1}")
        cpow(A, L8(pg), ZR+pg, ZI+pg, 8.0, t)
        cpow(A, L16(pg), ZR+pg, ZI+pg, 16.0, t)
        for e in range(2):
            cpow(A, 200, ZR+pg, ZI+pg, f"v{9-e}", t)
            A(f"v_mov_b32 v{PP(pg)+e}, v200\nv_mov_b32 v{PP(pg)+2+e}, v201")
        for idx in range(8):
            sr, si = (KC(pg), KC(pg)+1) if idx == 0 else (PW(pg, idx-1), PW(pg, idx-1)+1)
            A(f"v_mul_f32 v{t}, v{si}, v{LAM(pg)+1}\nv_mul_f32 v{t+1}, v{si}, v{LAM(pg)}")
            A(f"v_fma_f32 v{PW(pg,idx)}, v{sr}, v{LAM(pg)}, -v{t}\nv_fma_f32 v{PW(pg,idx)+1}, v{sr}, v{LAM(pg)+1}, v{t+1}")
    A(f"v_and_b32 v197, 16, v1\nv_cmp_ne_u32 vcc, 0, v197\nv_cndmask_b32 v{ZR}, v{ZR}, v{ZR+1}, vcc\nv_cndmask_b32 v{ZI}, v{ZI}, v{ZI+1}, vcc")
    for d, n in ((Q16, 16.0), (Q64, 64.0), (Q128, 128.0), (Q256, 256.0)):
        cpow(A, d, ZR, ZI, n, 197)
    A("v_lshrrev_b32 v197, 4, v1\nv_lshlrev_b32 v197, 2, v197\nv_and_b32 v198, 15, v1\nv_sub_u32 v197, v198, v197\nv_mov_b32 v198, 0x3f80\nv_mov_b32 v199, 1.0")
    for c in range(4):
        A(f"v_cmp_eq_u32 vcc, {c}, v197\nv_cndmask_b32 v{248+c}, 0, v198, vcc\nv_cndmask_b32 v{252+c}, 0, v199, vcc")

    deferred, A = A.lines, Areal
    if WBYG:
        A(f"s_waitcnt vmcnt({6 + 8})")
        A(f"s_mov_b64 exec, 1\nv_mov_b32 v197, 1\nds_write_b32 v13, v197 offset:{RING_LG}\ns_mov_b64 exec, -1")
    pw = deferred.index("PARAMWAIT")
    for l in deferred[:pw]:
        A(l)
    deferred = deferred[pw+1:]
    assert KS0 <= NPRE
    if DEFER:
        for k in range(1, KS0):
            for n in range(8):
                piece(k, n)
        if PRED:
            A(f"s_waitcnt vmcnt({8*KS0})")
            for _ in range(min(PRED, len(deferred))):
                A(deferred.pop(0))
    else:
        npre = 8
        if P1 == 0 and KS0 > 1:
            for n in range(8):
                piece(1, n)
            npre = 16
        A(f"s_waitcnt vmcnt({npre})")
        rest = [(k, n) for k in range(npre//8, KS0) for n in range(8)]
        lo, hi = int(len(deferred)*P2A/100), int(len(deferred)*P2B/100)
        at = [lo + (hi - lo)*q//max(1, len(rest)) for q in range(len(rest))]
        for i, l in enumerate(deferred):
            while at and at[0] <= i and l.startswith("v_") and not l.startswith("v_cnd"):
                at.pop(0)
                piece(*rest.pop(0))
            A(l)
        for r_ in rest:
            piece(*r_)
        deferred = []
    order = [0, 4, 5, 6, 7, 1, 2, 3]
    need = {0: 2, 1: 3, 2: 4, 3: 5, 4: 6, 8: 7, 12: 8}

    def rd(k, k2, f):
        slot = k % NS
        st, off = slot >> 1, (slot & 1)*32768
        A(f"ds_read_b128 {v(FR(k2, f), 4)}, v{AD(st, f >> 2, k2)} offset:{off + (f & 3)*2048}")
    trace_init(A, 0)
    trace(A, 0, 0)
    A(f"s_setprio {GPRIO}")
    def ring_arrive(k, t=197):
        A(f"s_mov_b64 exec, 1\nv_mov_b32 v{t}, {k}\nds_write_b32 v13, v{t} offset:{RING_D}\ns_mov_b64 exec, -1")
    trace(A, 0, 35)
    vm1.wait_for(("st", 0))
    trace(A, 0, 36)
    A("s_barrier")
    trace(A, 0, 37)
    trace(A, 0, 1)
    for f in order:
        rd(0, 0, f)
    for k in range(16):
        for k2 in range(2):
            nk, nk2 = (k, 1) if k2 == 0 else (k+1, 0)
            have = nk < 16
            if k2 == 1:
                w = f"vmcnt({vm1.wait_for(('st', k+1), emit=False)}) " if k + 1 < KS0 else ""
                A(f"s_waitcnt {w}lgkmcnt(0)")
                if have:
                    A("s_barrier")
            if k == 13 and k2 == 0:
                assert not deferred, len(deferred)
                if not NLDS:
                    A(f"v_mov_b32 v8, 0\nglobal_load_dword v9, v8, {sp(DBG)} sc1")
            n = 0
            for m in range(16):
                if k2 == 0 and m in need:
                    A(f"s_waitcnt lgkmcnt({8 - need[m] + n})")
                mt, nt = m >> 2, m & 3
                if "m" not in G1X or k + k2 == 0:
                    A(f"{M16} {v(ACC(mt,nt),4)}, {v(FR(k2,mt),4)}, {v(FR(k2,4+nt),4)}, {'0' if k + k2 == 0 else v(ACC(mt,nt),4)}")
                if have and n < 8:
                    if "r" not in G1X:
                        rd(nk, nk2, order[n])
                    n += 1
                elif k >= DK0:
                    for _ in range(DEFER):
                        if deferred:
                            A(deferred.pop(0))
            if NLDS and k == 15 and k2 == 0:
                A(f"ds_read_b32 v9, v12 offset:{L_NONCE}")
            elif NLDS and k == 15 and k2 == 1:
                A(f"v_readfirstlane_b32 s{NONCE}, v9")
                A(f"s_getreg_b32 s{T0}, hwreg(HW_REG_XCC_ID, 0, 4)\ns_lshl_b32 s{T1}, s{NONCE}, 4\ns_or_b32 s{LOCAL}, s{T0}, s{T1}")
                A(f"v_mov_b32 v194, s{LOCAL}\nv_mov_b32 v202, s{NONCE}\nv_mov_b32 v203, s{NONCE}")
            elif not NLDS and k == 15 and k2 == 0:
                nl, ng = uid("n"), uid("ng")
                A.label(nl)
                A(f"s_waitcnt vmcnt(0)\nv_readfirstlane_b32 s{NONCE}, v9\ns_cmp_lg_u32 s{NONCE}, 0\ns_cbranch_scc1 {ng}")
                A(f"global_load_dword v9, v8, {sp(DBG)} sc1\ns_branch {nl}")
                A.label(ng)
                A(f"s_getreg_b32 s{T0}, hwreg(HW_REG_XCC_ID, 0, 4)\ns_lshl_b32 s{T1}, s{NONCE}, 4\ns_or_b32 s{LOCAL}, s{T0}, s{T1}")
                A(f"v_mov_b32 v194, s{LOCAL}\nv_mov_b32 v202, s{NONCE}\nv_mov_b32 v203, s{NONCE}")
            if TRACE == 2 and k2 == 1:
                trace(A, 0, 40 + k)
    mark(A, 1)
    trace(A, 0, 2)
    bc_a = "op_sel_hi:[0,1,1]"
    bc_b = "op_sel:[1,0,0]"
    TT = 40
    for idx in range(1, 8):
        for half in range(2):
            for pg in range(2):
                L, t = v(LAM(pg), 2), TT + 4*pg
                pr, pi, ur, ui = (v(x, 2) for x in (U(pg, 0, idx-1), U(pg, 1, idx-1), U(pg, 0, idx), U(pg, 1, idx)))
                if half == 0:
                    A(f"v_pk_fma_f32 {v(t,2)}, {L}, {pr}, {ur} {bc_a}\nv_pk_fma_f32 {v(t+2,2)}, {L}, {pi}, {ui} {bc_a}")
                else:
                    A(f"v_pk_fma_f32 {ur}, {L}, {pi}, {v(t,2)} {bc_b} {N0}\nv_pk_fma_f32 {ui}, {L}, {pr}, {v(t+2,2)} {bc_b}")
    for pg in range(2):
        er, ei = U(pg, 0, 7), U(pg, 1, 7)
        horner(A, 32+2*pg, 33+2*pg, L8(pg), er, ei, er+1, ei+1, TT)
        A(f"ds_write_b64 v15, {v(32+2*pg,2)} offset:{16*XRW*pg}")
    trace(A, 0, 3)
    A("s_waitcnt lgkmcnt(0)")
    ring_arrive(17)
    l_, d_ = uid("ek"), uid("ekd")
    A.label(l_)
    A(f"ds_read_b128 v[198:201], v12 offset:{RING_D}\ns_waitcnt lgkmcnt(0)")
    A("v_min3_u32 v197, v198, v199, v200\nv_min_u32 v197, v197, v201")
    A(f"v_readfirstlane_b32 s{T0}, v197\ns_cmp_lt_u32 s{T0}, 17\ns_cbranch_scc1 {l_}")
    trace(A, 0, 4)
    SG = 48
    A(f"ds_read_b128 {v(SG,4)}, v14\nds_read_b128 {v(SG+4,4)}, v14 offset:16")
    P = 200
    A("s_waitcnt lgkmcnt(1)")
    horner(A, 32, 33, Q16, SG, SG+1, SG+2, SG+3, TT)
    A("s_waitcnt lgkmcnt(0)")
    horner(A, 34, 35, Q16, 32, 33, SG+4, SG+5, TT)
    horner(A, 32, 33, Q16, 34, 35, SG+6, SG+7, TT)
    A("v_mov_b32 v34, v32\nv_mov_b32 v35, v33\nv_permlane32_swap_b32 v32, v34\nv_permlane32_swap_b32 v33, v35")
    horner(A, P, P+1, Q64, 32, 33, 34, 35, TT)
    np_ = uid("np")
    A(f"s_cmp_lg_u32 s{WT_}, 0")
    A(f"s_cbranch_scc1 {np_}")
    A(f"buffer_store_dwordx4 {v(P,4)}, v16, {r4(S0)}, 0 offen sc1")
    A(f"s_cmp_lg_u32 s{WP}, 0")
    A(f"s_cbranch_scc1 {np_}")
    A(f"s_mov_b64 exec, 1\nglobal_store_dword v195, v194, {sp(WS)} sc1\ns_mov_b64 exec, -1")
    A.label(np_)
    mark(A, 2)
    trace(A, 0, 5)
    A(f"global_load_dword v243, v18, {sp(WS)} sc1")
    LB = 144

    def lbloads():
        for u in range(8):
            A(f"buffer_load_dwordx4 {v(LB+4*u,4)}, v{136+u}, {r4(S0)}, 0 offen sc1")
        A(f"global_load_dword v197, v196, {sp(WS)} sc1")
    QS = 32
    A("v_add_u32 v15, -56, v15")
    for pg in range(2):
        for w in range(7):
            A(f"ds_read_b64 {v(QS+14*pg+2*w,2)}, v15 offset:{16*XRW*pg + 8*w}")
    QQ = lambda pg: 128 + 4*pg
    TQ = 60
    A("s_waitcnt lgkmcnt(0)")
    for pg in range(2):
        b = QS + 14*pg
        for w in range(1, 6):
            horner(A, b+2*w, b+2*w+1, L16(pg), b+2*w-2, b+2*w-1, b+2*w, b+2*w+1, TQ)
        horner(A, QQ(pg), QQ(pg)+2, L16(pg), b+10, b+11, b+12, b+13, TQ)
        horner(A, QQ(pg)+1, QQ(pg)+3, L8(pg), QQ(pg), QQ(pg)+2, U(pg, 0, 7), U(pg, 1, 7), TQ)
    trace(A, 0, 6)
    O = 32
    cnt = 0
    if LBAT == 0:
        lbloads()
    for idx in range(8):
        for pg in range(2):
            d0, d1, K_, o = v(U(pg, 0, idx), 2), v(U(pg, 1, idx), 2), v(KC(pg), 2), O + 4*pg
            A(f"v_pk_mul_f32 {v(o,2)}, {K_}, {d0} op_sel_hi:[0,1]")
            A(f"v_pk_mul_f32 {v(o+2,2)}, {K_}, {d1} op_sel_hi:[0,1] neg_lo:[1,0] neg_hi:[1,0]")
            A(f"v_pk_fma_f32 {v(o+2,2)}, {K_}, {d0}, {v(o+2,2)} {bc_b} {N0}")
            A(f"v_pk_fma_f32 {d0}, {K_}, {d1}, {v(o,2)} {bc_b} {N0}")
            A(f"v_mov_b64 {d1}, {v(o+2,2)}")
            cnt += 1
            if cnt == LBAT:
                lbloads()
    trace(A, 0, 7)
    A("v_mov_b32 v14, 1\ns_mov_b64 exec, 1\nds_write_b32 v13, v14\ns_mov_b64 exec, -1")
    M0B, RH, RCc, SH, SC = T7, T5, T4, T3, T2
    ACC2 = lambda nt: 32 + 16*nt
    CF = lambda X, nt: 96 + 16*X + 4*nt
    XR, CV = 128, 244
    HR = lambda s_: 148 + 4*(s_ % HD)
    L_OWN = 65536
    A(f"s_xor_b32 s{T0}, s{WT_}, s{PG}\ns_xor_b32 s{T0}, s{T0}, 1\ns_lshl_b32 s{T0}, s{T0}, 6\ns_add_u32 s{T0}, s{T0}, s{WP}")
    A(f"v_lshrrev_b32 v8, 3, v1\nv_lshl_add_u32 v8, v8, 1, s{T0}\nv_lshlrev_b32 v8, 11, v8")
    A("v_and_b32 v14, 7, v1\nv_lshrrev_b32 v15, 4, v1\nv_xor_b32 v14, v14, v15\nv_lshlrev_b32 v14, 4, v14\nv_xor_b32 v15, 64, v14")
    for u in range(4):
        A(f"v_add_u32 v{CV+u}, v8, v{14 + (u & 1)}")
        if u:
            A(f"v_add_u32 v{CV+u}, {u*(16*2048 - 1024)}, v{CV+u}")
    A(f"s_and_b32 s{RCc}, s{TJ}, 7\ns_lshl_b32 s{T0}, s{RCc}, 18\ns_lshl_b32 s{T1}, s{PG}, 10\ns_add_u32 s{T0}, s{T0}, s{T1}")
    srd(A, S2, CRE, T0, 0, 0x40000, T1)
    srd(A, S3, CIM, T0, 0, 0x40000, T1)
    A(f"s_lshl_b32 s{T1}, s{RCc}, 1\ns_add_u32 s{T1}, s{T1}, s{PG}\ns_lshl_b32 s{T1}, s{T1}, 7")
    A(f"s_lshl_b32 s{SH}, s{TI}, 1\ns_add_u32 s{SH}, s{SH}, s{WT_}\ns_lshl_b32 s{T0}, s{SH}, 17\ns_add_u32 s{T0}, s{T0}, s{T1}")
    srd(A, S4, BX, T0, 0, 0x20000, T1)
    A(f"s_add_u32 s{DSK}, s{DSK}, s{T1}\ns_addc_u32 s{DSK+1}, s{DSK+1}, 0")
    A(f"s_lshl_b32 s{T1}, s{T1}, 1\ns_add_u32 s{T1}, s{T1}, 4096\ns_lshl_b32 s{T0}, s{SH}, 19\ns_add_u32 s{T0}, s{T0}, s{T1}")
    A(f"s_add_u32 s{OUT}, s{OUT}, s{T0}\ns_addc_u32 s{OUT+1}, s{OUT+1}, 0\ns_sub_u32 s{LDT}, 0x80000, s{T1}")
    A(f"s_lshl_b32 s{M0B}, s{WAVE}, 12\ns_lshl_b32 s{RH}, s{RCc}, 13\ns_lshl_b32 s{RCc}, s{RCc}, 7")
    A(f"s_lshl_b32 s{T0}, s{WT_}, 14\ns_lshl_b32 s{T1}, s{WP}, 11\ns_add_u32 s{T0}, s{T0}, s{T1}\ns_add_u32 s{T0}, s{T0}, {L_OWN}\nv_add_u32 v16, s{T0}, v10")
    A(f"s_lshl_b32 s{T0}, s{WAVE}, 13\ns_add_u32 s{T0}, s{T0}, {L_OWN}\nv_add_u32 v17, s{T0}, v11")
    for ks in range(4):
        A(f"v_xor_b32 v{20+ks}, {ks << 5}, v7\nv_add_u32 v{24+ks}, 0x10000, v{20+ks}")
    HB = LIM
    A(f"s_mul_i32 s{HB}, s{SH}, {2*TBS}\ns_lshl_b32 s{T1}, s{TJ}, 13\ns_add_u32 s{HB}, s{HB}, s{T1}\ns_lshl_b32 s{T1}, s{WP}, 11\ns_add_u32 s{HB}, s{HB}, s{T1}")
    for u in range(8):
        A(f"v_cmp_gt_u32 vcc, 0x40000, v{136+u}\nv_cndmask_b32 v{40+u}, 0, v202, vcc")
    A(f"s_mov_b32 s{T9}, 0")
    trace(A, 0, 8)
    pl, pd = uid("poll"), uid("polled")
    A.label(pl)
    A("v_mov_b32 v8, 0")
    for u in range(8):
        A(f"s_waitcnt vmcnt({8-u})")
        A(f"v_bitop3_b32 v8, v8, v{LB+4*u+2}, v{40+u} bitop3:0xf6\nv_bitop3_b32 v8, v8, v{LB+4*u+3}, v{40+u} bitop3:0xf6")
    A("s_waitcnt vmcnt(0)\nv_xor_b32 v197, v194, v197\nv_lshrrev_b32 v9, 4, v197\nv_or_b32 v8, v8, v9\nv_cmp_ne_u32 vcc, 0, v8")
    A(f"s_cbranch_vccz {pd}")
    A(f"s_add_u32 s{T9}, s{T9}, 1\ns_cmp_ge_u32 s{T9}, {SPIN_MAX}")
    A(f"s_cbranch_scc1 {pd}")
    lbloads()
    A(f"s_branch {pl}")
    A.label(pd)
    A(f"v_cmp_ne_u32 vcc, 0, v197\ns_cmp_eq_u64 vcc, 0\ns_cselect_b32 s{LOCAL}, {0 if FORCE_REMOTE else 1}, 0")
    mark(A, 3)
    trace(A, 0, 9)
    if TRACE:
        A(f"v_writelane_b32 v0, s{T9}, 63")
    vm = VmCounter(A)

    def cdma(g, us):
        for u in us:
            if u == 0:
                A(f"s_add_u32 m0, s{M0B}, {(g % R)*16384}")
                if g % 2 == 0:
                    A(f"s_add_u32 s{SC}, s{RCc}, {(g >> 1)*128}\ns_and_b32 s{SC}, s{SC}, 0x3ff")
            vm.op(f"buffer_load_dwordx4 v{CV+u}, {r4(S2 if g % 2 == 0 else S3)}, s{SC} offen offset:{u*1024}{NTC} lds", ("c", g))
    cdma(0, range(4))
    cdma(1, range(4))
    A("v_mov_b32 v14, 2\ns_mov_b64 exec, 1\nds_write_b32 v13, v14\ns_mov_b64 exec, -1")
    H0 = LB + 28
    cur = (H0, H0+1)
    for u in range(6, -1, -1):
        d = (48, 49) if cur[0] == H0 else (H0, H0+1)
        horner(A, d[0], d[1], Q256, cur[0], cur[1], LB+4*u, LB+4*u+1, TT)
        cur = d
    assert cur == (48, 49)
    A("v_mov_b32 v50, v48\nv_mov_b32 v51, v49\nv_permlane32_swap_b32 v48, v50\nv_permlane32_swap_b32 v49, v51")
    horner(A, 52, 53, Q128, 50, 51, 48, 49, TT)
    A("v_mov_b32 v54, v52\nv_mov_b32 v55, v53\nv_permlane16_swap_b32 v52, v54\nv_permlane16_swap_b32 v53, v55")
    trace(A, 0, 10)
    G = lambda pg: QQ(pg)
    for pg in range(2):
        Hh, gr, gi, pr, pi = v(52+2*pg, 2), v(G(pg), 2), v(G(pg)+2, 2), v(PP(pg), 2), v(PP(pg)+2, 2)
        A(f"v_pk_fma_f32 {gr}, {Hh}, {pr}, {gr} {bc_a}\nv_pk_fma_f32 {gi}, {Hh}, {pi}, {gi} {bc_a}")
        A(f"v_pk_fma_f32 {gr}, {Hh}, {pi}, {gr} {bc_b} {N0}\nv_pk_fma_f32 {gi}, {Hh}, {pr}, {gi} {bc_b}")
    PK = lambda pg, c, idx: 144 + (pg*2 + c)*8 + idx
    D = lambda c, X, pg: 32 + ((c*2 + X)*2 + pg)*4

    def fix(pg, idx):
        d0, d1, pw, gr, gi = v(U(pg, 0, idx), 2), v(U(pg, 1, idx), 2), v(PW(pg, idx), 2), v(G(pg), 2), v(G(pg)+2, 2)
        A(f"v_pk_fma_f32 {d0}, {pw}, {gr}, {d0} {bc_a}")
        A(f"v_pk_fma_f32 {d1}, {pw}, {gi}, {d1} {bc_a} {N0}")
        A(f"v_pk_fma_f32 {d0}, {pw}, {gi}, {d0} {bc_b} {N0}")
        A(f"v_pk_fma_f32 {d1}, {pw}, {gr}, {d1} {bc_b} {N0}")
        for c in range(2):
            A(f"v_cvt_pk_bf16_f32 v{PK(pg,c,idx)}, v{U(pg,c,idx)}, v{U(pg,c,idx)+1}")

    def tr(u):
        for c in range(2):
            for X in range(2):
                for pg in range(2):
                    A(f"{M16} {v(D(c,X,pg),4)}, {v(PK(pg,c,4*u),4)}, {v(248+4*X,4)}, 0")

    def st(u):
        for c in range(2):
            for X in range(2):
                q = 176 + 16*u + (c*2 + X)*4
                A(f"s_add_u32 s{T1}, s{HB}, {X*TBS + c*4096}")
                for jj in range(4):
                    A(f"v_cvt_pk_bf16_f32 v{q+jj}, v{D(c,X,0)+2*jj}, v{D(c,X,0)+2*jj+1}")
                vm.op(f"buffer_store_dwordx4 {v(q,4)}, v10, {r4(S1)}, s{T1} offen offset:{u*256} sc1", "hst")
                A(f"ds_write_b128 v16, {v(q,4)} offset:{X*8192 + c*4096 + u*256}")
    for u in range(2):
        for idx in range(4*u, 4*u + 4):
            for pg in range(2):
                fix(pg, idx)
            if u == 1 and idx == 5:
                st(0)
                trace(A, 0, 12)
        tr(u)
        if u == 0:
            trace(A, 0, 11)
    st(1)
    mark(A, 4)
    trace(A, 0, 13)
    NK = 64

    def arrive(val):
        A(f"v_mov_b32 v14, {val}")
        A("s_mov_b64 exec, 1\nds_write_b32 v13, v14\ns_mov_b64 exec, -1")

    def check(val, off=0, first=False):
        l, d = uid("ck"), uid("ckd")
        if first:
            A(f"ds_read_b128 v[8:11], v12 offset:{off}\ns_waitcnt lgkmcnt(0)")
        A.label(l)
        A("v_min3_u32 v15, v8, v9, v10\nv_min_u32 v15, v15, v11")
        A(f"v_readfirstlane_b32 s{T0}, v15")
        A(f"s_cmp_ge_u32 s{T0}, {val}")
        A(f"s_cbranch_scc1 {d}")
        A(f"ds_read_b128 v[8:11], v12 offset:{off}\ns_waitcnt lgkmcnt(0)")
        A(f"s_branch {l}")
        A.label(d)

    HM, JS = 38, 39

    def hpoll(n):
        l, d = uid("hp"), uid("hpd")
        A(f"s_mov_b32 s{CNT}, 0")
        A.label(l)
        A(f"global_load_dword v3, v18, {sp(WS)} sc1\ns_waitcnt vmcnt(0)")
        A(f"v_cmp_eq_u32 vcc, s{NONCE}, v3\ns_nop 1\ns_and_b32 s{HM}, vcc_lo, 0xffff")
        A(f"s_lshl_b32 s3, s{HM}, 16\ns_or_b32 s{HM}, s{HM}, s3\ns_lshr_b32 s{HM}, s{HM}, s{JS}")
        A(f"s_lshr_b32 s3, s{HM}, 1\ns_and_b32 s{HM}, s{HM}, s3")
        A(f"s_bitcmp1_b32 s{HM}, {2*n}\ns_cbranch_scc1 {d}")
        if SLP_H:
            A(f"s_sleep {SLP_H}")
        A(f"s_add_u32 s{CNT}, s{CNT}, 1\ns_cmp_lt_u32 s{CNT}, {SPIN_MAX}\ns_cbranch_scc1 {l}")
        A.label(d)

    def hload(s_):
        if PBG and s_ % 8 == 0 and s_ >= 16:
            ok = uid("hok")
            A(f"s_bitcmp1_b32 s{HM}, {2*(s_ >> 3)}\ns_cbranch_scc1 {ok}")
            hpoll(s_ >> 3)
            A.label(ok)
        if s_ % 4 == 0:
            A(f"s_add_u32 s{SH}, s{RH}, {(s_ >> 2)*4096}\ns_and_b32 s{SH}, s{SH}, 0xffff")
        vm.op(f"buffer_load_dwordx4 {v(HR(s_),4)}, v2, {r4(S0)}, s{SH} offen offset:{(s_ & 3)*1024} sc1", ("h", s_))

    def rd2(s_, nts):
        g, ks = s_ >> 2, s_ & 3
        slot = g % R
        base = 20 if slot < 4 else 24
        for nt in nts:
            A(f"ds_read_b128 {v(CF(s_ & 1, nt),4)}, v{base+ks} offset:{(slot & 3)*16384 + nt*4096}")

    def mf(s_, nt):
        c = "0" if s_ == 0 else v(ACC2(nt), 16)
        if E_("HACK16", 0) & 2:
            for z in range(2):
                d = ACC2(nt) + 8*(s_ & 1) + 4*z
                A(f"v_mfma_f32_16x16x32_bf16 {v(d,4)}, {v(HR(s_),4)}, {v(CF(s_ & 1, nt),4)}, {'0' if s_ < 2 else v(d,4)}")
        else:
            A(f"{MF} {v(ACC2(nt),16)}, {v(HR(s_),4)}, {v(CF(s_ & 1, nt),4)}, {c}")
    A("v_mov_b32 v2, v11")
    A(f"s_lshl_b32 s{T0}, s{TI}, 2\ns_add_u32 s{T0}, s{T0}, s{WAVE}\ns_mul_i32 s{T0}, s{T0}, {TBS}\ns_lshl_b32 s{T1}, s{PG}, 16\ns_add_u32 s{T0}, s{T0}, s{T1}")
    srd(A, S0, WS, T0, WS_HT, 0x10000)
    if not OWNFIRST and C23:
        cdma(2, range(4))
        cdma(3, range(4))
    A(f"s_waitcnt vmcnt({vm.wait_for(('c', 1), emit=False)}) lgkmcnt(0)")
    trace(A, 0, 14)
    arrive(3)
    check(3, first=True)
    trace(A, 0, 15)
    for s_ in range(8):
        A(f"ds_read_b128 {v(HR(s_),4)}, v17 offset:{s_*1024}")
    hn = [8]

    def pause():
        A(f"s_lshl_b32 s{T0}, s{WP}, 3\nv_lshl_add_u32 v17, v5, 4, s{T0}")
        A("v_lshlrev_b32 v28, 11, v17\nv_lshl_add_u32 v28, v6, 2, v28")
        A("v_lshlrev_b32 v29, 13, v17\nv_lshl_add_u32 v29, v6, 3, v29")
        A(f"v_lshlrev_b32 v30, 2, v6\nv_mov_b32 v15, s{NONCE}")
        a, b = uid("rs"), uid("rd")
        trace(A, 0, 16)
        vm.wait_for("hst")
        trace(A, 0, 17)
        A(f"s_mov_b64 exec, 1\ns_cmp_eq_u32 s{LOCAL}, 0\ns_cbranch_scc1 {a}")
        A(f"global_store_dword v19, v15, {sp(WS)}\ns_branch {b}")
        A.label(a)
        A(f"global_store_dword v19, v15, {sp(WS)} sc1")
        A.label(b)
        A("s_mov_b64 exec, -1")
        if not E_("GM", 0):
            mark(A, 5)
        check(4, first=True)
        if not NOAUX:
            check(LIMG_FREE, 16, first=True)
        if CTOUCH == 5:
            xtouch(1)
        if CTOUCH == 8:
            ctouch()
        for gg in range(4 if C23 else 2, CPOLL):
            cdma(gg, range(4))
        trace(A, 0, 18)
        if PBG:
            A(f"s_and_b32 s{JS}, s{TJ}, 7\ns_lshl_b32 s{JS}, s{JS}, 1")
            hpoll(1)
        else:
            wait_cnt(A, 18, 8, SLP_H)
        trace(A, 0, 19)
        vm.issued = []
        if not E_("GM", 0):
            mark(A, 6)
        if OWNFIRST:
            arrive(5)
        gg = max(4, CPOLL)
        while hn[0] < 8 + HPRE:
            hload(hn[0])
            hn[0] += 1
            if hn[0] % 4 == 0 and gg < CPRE:
                cdma(gg, range(4))
                gg += 1
        assert gg == CPRE
        if OWNFIRST:
            check(5, first=True)
        trace(A, 0, 20)
        rd2(8 if OWNFIRST else 0, range(4))

    def flag_store():
        a, b = uid("rs"), uid("rd")
        A(f"s_mov_b64 exec, 1\ns_cmp_eq_u32 s{LOCAL}, 0\ns_cbranch_scc1 {a}")
        A(f"global_store_dword v19, v15, {sp(WS)}\ns_branch {b}")
        A.label(a)
        vm.op(f"global_store_dword v19, v15, {sp(WS)} sc1", "flag")
        A.label(b)
        A("s_mov_b64 exec, -1")
    if HTAG:
        A("s_waitcnt lgkmcnt(0)")
        arrive(4)
        A(f"s_lshl_b32 s{T0}, s{WP}, 3\nv_lshl_add_u32 v17, v5, 4, s{T0}")
        A("v_lshlrev_b32 v28, 11, v17\nv_lshl_add_u32 v28, v6, 2, v28")
        A("v_lshlrev_b32 v29, 13, v17\nv_lshl_add_u32 v29, v6, 3, v29")
        A(f"v_lshlrev_b32 v30, 2, v6\nv_mov_b32 v15, s{NONCE}")
        if HTAG == 1:
            wl, wd = uid("hw"), uid("hwd")
            A(f"s_add_u32 s{T1}, s{RH}, 8192\ns_and_b32 s{T1}, s{T1}, 0xffff\ns_mov_b32 s{CNT}, 0\ns_waitcnt lgkmcnt(0)")
            A.label(wl)
            A(f"s_load_dwordx4 s[4:7], {sp(S0)}, s{T1} offset:{4096 + 1024 + 1008} glc\ns_load_dwordx4 s[8:11], {sp(S0)}, s{T1} offset:{4096 + 3072 + 1008} glc")
            A(f"s_add_u32 s{CNT}, s{CNT}, 1\ns_waitcnt lgkmcnt(0)")
            for q in range(2):
                A(f"s_xor_b64 s[{4+2*q}:{5+2*q}], s[{4+2*q}:{5+2*q}], s[{HT_+2*q}:{HT_+2*q+1}]\ns_xor_b64 s[{8+2*q}:{9+2*q}], s[{8+2*q}:{9+2*q}], s[{HT_+2*q}:{HT_+2*q+1}]")
            A("s_or_b64 s[4:5], s[4:5], s[6:7]\ns_or_b64 s[8:9], s[8:9], s[10:11]\ns_or_b64 s[4:5], s[4:5], s[8:9]\ns_or_b32 s4, s4, s5\ns_and_b32 s4, s4, 0x10001")
            A(f"s_cbranch_scc0 {wd}\ns_cmp_lt_u32 s{CNT}, {SPIN_MAX}\ns_cbranch_scc1 {wl}")
            A.label(wd)
        if HTAG == 3:
            vm.wait_for('hst')
            flag_store()
        if HTAG == 2 and HDLY:
            A(f"s_waitcnt vmcnt({vm.wait_for('hst', emit=False) + HDLY})")
        mark(A, 6)
        for s_ in range(8, 16):
            hload(s_)
        hn[0] = 16
        if HTAG != 3:
            vm.wait_for("hst")
            flag_store()
        if not E_("GM", 0):
            mark(A, 5)
        check(4, first=True)
        if not NOAUX:
            check(LIMG_FREE, 16, first=True)
        for gg in range(4, CPOLL):
            cdma(gg, range(4))
        rd2(0, range(4))
    elif OWNFIRST:
        rd2(0, range(4))
        A("s_waitcnt lgkmcnt(4)")
        arrive(4)
    else:
        A("s_waitcnt lgkmcnt(0)")
        arrive(4)
        pause()
    def xload(e, st):
        q, r = e >> 2, e & 3
        A(f"s_mov_b32 s{st}, {(32*(q & 1) + 4*(q >> 1) + (r & 2))*2048}")
        vm.op(f"buffer_load_dword v{XR+e}, v28, {r4(S4)}, s{st} offen offset:{(r & 1)*2048}", ("x", e))
    have_c = lambda g: any(t == ("c", g) for t in vm.issued)
    for s_ in range(NK):
        g, ks = s_ >> 2, s_ & 3
        nxt = s_ + 1
        more = nxt < NK and not (nxt == 8 and OWNFIRST)
        ws = []
        if s_ >= 8:
            ws.append(vm.wait_for(("h", s_), emit=False))
        arr = (s_ + 4) % 8 == 0 and s_ + 4 < NK and (s_ >= 8 or not OWNFIRST)
        if arr:
            gl = ((s_ + 4) >> 2) + 1
            if have_c(gl):
                ws.append(vm.wait_for(("c", gl), emit=False))
        wv = f"vmcnt({min(ws)}) " if ws else ""
        newgrp = more and nxt % 8 == 0
        full = newgrp or not more or s_ == 0
        nc = 2 if s_ >= NK - NDEF else 4
        nn = (2 if nxt >= NK - NDEF else 4) if more else 0
        if full:
            A(f"s_waitcnt {wv}lgkmcnt(0)")
            if newgrp:
                check((nxt >> 3) + 4)
                trace(A, 0, 20 + (nxt >> 3))
                if nxt == 32 and not E_('GM', 0):
                    mark(A, 7)
        else:
            A(f"s_waitcnt {wv}lgkmcnt({nc-1})")
        extra = 0
        if arr:
            arrive(((s_ + 4) >> 3) + 4)
            extra = 1
        issued_n = 0
        for nt in range(nc):
            if nt and not full:
                A(f"s_waitcnt lgkmcnt({nc - 1 - nt + extra + issued_n})")
            mf(s_, nt)
            if nt < 2 and issued_n < nn and (nt == 0 or nn == 4):
                rd2(nxt, [issued_n, issued_n + 1])
                issued_n += 2
            if nt == nc - 2:
                if s_ < 8 and OWNFIRST:
                    if C23:
                        cdma(2 + g, [ks])
                elif CPRE <= g + CD < NK//4:
                    cdma(g + CD, [ks])
        assert issued_n == nn
        if HTAG:
            if s_ < 4*(CPRE - CPOLL):
                cdma(CPOLL + g, [ks])
            if s_ == 6:
                tl, td = uid("ht"), uid("htd")
                A(f"s_mov_b32 s{CNT}, 0")
                vm.wait_for(("h", 15))
                A.label(tl)
                A("v_mov_b32 v4, 0")
                for r in range(32):
                    A(f"v_bitop3_b32 v4, v4, v{HR(8)+r}, s{HT_+(r & 3)} bitop3:0xf6")
                A(f"v_and_b32 v4, 0x10001, v4\nv_cmp_ne_u32 vcc, 0, v4\ns_cbranch_vccz {td}")
                A(f"s_add_u32 s{CNT}, s{CNT}, 1\ns_cmp_ge_u32 s{CNT}, {SPIN_MAX}\ns_cbranch_scc1 {td}")
                keep = list(vm.issued)
                for s2_ in range(8, 16):
                    hload(s2_)
                vm.issued = keep
                A(f"s_waitcnt vmcnt(0)\ns_branch {tl}")
                A.label(td)
                if STAMP == 1:
                    A(f"s_add_u32 s72, s70, s{CNT}")
            if s_ == HFI:
                vm.op(f"global_load_dword v16, v18, {sp(WS)} sc1", "fp")
            if s_ == HFC:
                fd = uid("hf")
                vm.wait_for("fp")
                A(f"v_cmp_ne_u32 vcc, s{NONCE}, v16\ns_cbranch_vccz {fd}")
                wait_cnt(A, 18, 16, 1)
                A.label(fd)
        if (s_ >= (HFC if HTAG else 8) or not (OWNFIRST or HTAG)) and hn[0] < NK:
            for _ in range(3 if HTAG else 2):
                if hn[0] < NK and hn[0] <= s_ + HD:
                    hload(hn[0])
                    hn[0] += 1
        if (s_ + 2) % 8 == 0 and s_ + 2 < NK and (s_ >= 8 or not OWNFIRST):
            A("ds_read_b128 v[8:11], v12")
        if XLD == 0:
            if s_ == NK - 18:
                vm.op(f"global_load_dword v31, v30, {sp(DSK)}", "dsk")
            if NK - 17 <= s_ < NK - 1:
                xload(s_ - (NK - 17), T0)
        if XLD == 2 and s_ == XLS:
            vm.op(f"global_load_dword v31, v30, {sp(DSK)}", "dsk")
            for e in range(16):
                xload(e, T0)
        if s_ == 7 and OWNFIRST:
            pause()
    mark(A, 8)
    trace(A, 0, 28)
    if XLD == 1:
        vm.op(f"global_load_dword v31, v30, {sp(DSK)}", "dsk")
        for e in range(16):
            xload(e, T0)
    TG = T0
    A(f"s_mul_i32 s{TG}, s{NONCE}, 0x9e3779b1\ns_and_b32 s{TG}, s{TG}, 0xbfff0000\ns_or_b32 s{TG}, s{TG}, 0x20000000")
    A(f"s_sub_u32 s{T1}, s{NONCE}, 1\ns_xor_b32 s{T1}, s{T1}, s{TG}\ns_cmp_lt_u32 s{T1}, 0x10000\ns_cselect_b32 s{T1}, 0x10000, 0\ns_xor_b32 s{TG}, s{TG}, s{T1}")
    if INOUT:
        A(f"s_lshl_b32 s{T4}, s{PG}, 9\ns_sub_i32 s{T4}, 256, s{T4}\ns_ashr_i32 s{T5}, s{T4}, 31")
        A(f"s_add_u32 s{S2}, s{OUT}, s{T4}\ns_addc_u32 s{S2+1}, s{OUT+1}, s{T5}\ns_sub_u32 s{S2+2}, s{LDT}, s{T4}\ns_mov_b32 s{S2+3}, 0x20000")
        A(f"s_mov_b32 s{S3}, s{OUT}\ns_mov_b32 s{S3+1}, s{OUT+1}\ns_mov_b32 s{S3+2}, s{LDT}\ns_mov_b32 s{S3+3}, 0x20000")
        A(f"s_lshl_b32 s{T4}, s{WP}, 16\nv_lshrrev_b32 v3, 4, v1\nv_lshlrev_b32 v3, 13, v3\nv_and_b32 v4, 15, v1\nv_lshl_add_u32 v3, v4, 4, v3\nv_add_u32 v3, s{T4}, v3")
        xad = lambda gq: (f"s_mov_b32 s{T4}, {(16*(gq >> 1) + 4*(gq & 1))*8192}\n", f"v3, SRD, s{T4} offen")
    else:
        A(f"s_lshl_b32 s{T4}, s{TI}, 4\ns_add_u32 s{T4}, s{T4}, s{TJ}\ns_lshl_b32 s{T4}, s{T4}, 2\ns_add_u32 s{T4}, s{T4}, s{WAVE}\ns_lshl_b32 s{T4}, s{T4}, 13")
        srd(A, S2, WS, T4, WS_XB, 0x2000)
        A(f"s_xor_b32 s{T4}, s{T4}, {8 << 15}")
        srd(A, S3, WS, T4, WS_XB, 0x2000)
        A(f"s_movk_i32 s{T4}, 0x1000")
        xad = lambda gq: ("", f"v2, SRD, {'0' if gq < 4 else f's{T4}'} offen offset:{(gq & 3)*1024}")
    val = lambda n: ACC2(n & 1) + (n >> 1)
    TXR, RX = [96, 100, 244, 248, 252], 180
    for gq in range(5):
        for c in range(4):
            n = 7*gq + 2*c
            lo = f"v{val(min(n, 31))}"
            hi = f"s{TG}" if c == 3 else f"v{val(min(n+1, 31))}"
            A(f"v_cvt_pk_bf16_f32 v{TXR[gq]+c}, {lo}, {hi}")
        A(f"{xad(gq)[0]}buffer_store_dwordx4 {v(TXR[gq],4)}, {xad(gq)[1].replace('SRD', r4(S2))} sc1")

    if XLD == 3:
        vm.op(f"global_load_dword v31, v30, {sp(DSK)}", "dsk")
        for e in range(16):
            xload(e, T5)
    if A3S == 12:
        arrive(12)

    def rx():
        for gq in range(5):
            A(f"{xad(gq)[0]}buffer_load_dwordx4 {v(RX+4*gq,4)}, {xad(gq)[1].replace('SRD', r4(S3))} sc1")
    if NDEF:
        rd2(NK - NDEF, [2, 3])
        for s_ in range(NK - NDEF, NK):
            if s_ + 1 < NK:
                rd2(s_ + 1, [2, 3])
                A("s_waitcnt lgkmcnt(2)")
            else:
                A("s_waitcnt lgkmcnt(0)")
            mf(s_, 2)
            mf(s_, 3)
    if A3S == 13:
        arrive(13)
    trace(A, 0, 29)
    if E_("XM", 0):
        mark(A, 3)
    A(f"s_waitcnt vmcnt({0 if XLD == 3 else 5})")
    if E_("XM", 0):
        mark(A, 5)
    trace(A, 0, 30)
    A("v_lshlrev_b32 v8, 16, v31\nv_and_b32 v9, 0xffff0000, v31")
    YO = lambda e: 148 + 2*e
    for e in range(16):
        t = YO(e)
        A(f"v_lshlrev_b32 v{t}, 16, v{XR+e}\nv_and_b32 v{t+1}, 0xffff0000, v{XR+e}")
        A(f"v_pk_mul_f32 {v(t,2)}, {v(t,2)}, v[8:9]")
        A(f"v_cvt_pk_bf16_f32 v10, v{t}, v{t+1}")
        A(f"v_lshlrev_b32 v{t}, 16, v10\nv_and_b32 v{t+1}, 0xffff0000, v10")
        A(f"v_add_f32 v{t}, v{t}, v{ACC2(2)+e}\nv_add_f32 v{t+1}, v{t+1}, v{ACC2(3)+e}")
    A(f"s_mov_b32 s{S1}, s{OUT}\ns_mov_b32 s{S1+1}, s{OUT+1}\ns_mov_b32 s{S1+2}, s{LDT}\ns_mov_b32 s{S1+3}, 0x20000")
    xl, xd = uid("xl"), uid("xd")
    A(f"s_mov_b32 s{CNT}, 0")
    if XPOLL:
        assert not INOUT
        wl, wd = uid("xw"), uid("xwd")
        A.label(wl)
        A(f"s_load_dword s{T1}, {sp(S3)}, {0x1000 + 63*16 + 12} glc\ns_add_u32 s{CNT}, s{CNT}, 1\ns_waitcnt lgkmcnt(0)")
        A(f"s_xor_b32 s{T1}, s{T1}, s{TG}\ns_cmp_lt_u32 s{T1}, 0x10000\ns_cbranch_scc1 {wd}")
        A(f"s_cmp_lt_u32 s{CNT}, {SPIN_MAX}\ns_cbranch_scc1 {wl}")
        A.label(wd)
        A(f"s_mov_b32 s{CNT}, 0")
    trace(A, 0, 31)
    if XPOLL != 2:
        A(f"s_waitcnt vmcnt({E_('XW', 0)})")
    if E_("XM", 0):
        mark(A, 6)
    rx()
    A.label(xl)
    A("v_mov_b32 v10, 0")
    for gq in range(5):
        A(f"s_waitcnt vmcnt({4-gq})")
        A(f"v_bitop3_b32 v10, v10, v{RX+4*gq+3}, s{TG} bitop3:0xf6")
    A("v_cmp_lt_u32 vcc, 0xffff, v10")
    A(f"s_cbranch_vccz {xd}")
    A(f"s_add_u32 s{CNT}, s{CNT}, 1\ns_cmp_ge_u32 s{CNT}, {SPIN_MAX}")
    A(f"s_cbranch_scc1 {xd}")
    rx()
    A(f"s_branch {xl}")
    A.label(xd)
    if A3S == 14:
        arrive(14)
    trace(A, 0, 32)
    if STAMP:
        A(f"s_add_u32 s74, s70, s{CNT}\ns_lshl_b32 s{CNT}, s{LOCAL}, 8\ns_add_u32 s74, s74, s{CNT}")
        mark(A, 4)
    for e in range(16):
        q, r = e >> 2, e & 3
        t = YO(e)
        for nt in range(2):
            n = 2*e + nt
            src = RX + 4*(n // 7) + (n % 7)//2
            if (n % 7) % 2 == 0:
                A(f"v_lshlrev_b32 v{10+nt}, 16, v{src}")
            else:
                A(f"v_and_b32 v{10+nt}, 0xffff0000, v{src}")
        A(f"v_pk_add_f32 {v(t,2)}, {v(t,2)}, v[10:11]")
        A(f"s_mov_b32 s{T4}, {(32*(q & 1) + 4*(q >> 1) + r)*8192}")
        A(f"buffer_store_dwordx2 {v(t,2)}, v29, {r4(S1)}, s{T4} offen{OSTB}")
    if A3S == 15:
        arrive(15)
    trace(A, 0, 33)
    if TRACE:
        A("s_waitcnt vmcnt(0)")
    trace(A, 0, 34)
    trace_dump(A, 0, WAVE, 1)
    stamp_end(A, kidx, WAVE)


def gen_fused(A, name, kidx):
    KNAME_[0] = name
    A(f".globl {name}\n.p2align 8\n.type {name},@function")
    A.label(name)
    A("s_cmp_ge_u32 s2, 256")
    A(f"s_cbranch_scc1 L_{name}_end")
    A("s_load_dwordx16 s[4:19], s[0:1], 0")
    A("s_load_dwordx8 s[20:27], s[0:1], 64")
    A("s_load_dwordx4 s[28:31], s[0:1], 96")
    A("s_load_dwordx2 s[32:33], s[0:1], 112")
    stamp_begin(A)
    A("v_lshrrev_b32 v2, 6, v0\nv_and_b32 v1, 63, v0")
    A(f"v_readfirstlane_b32 s{WAVE}, v2")
    A(f"s_and_b32 s{T0}, s2, 7\ns_lshr_b32 s{T1}, s2, 3")
    if TIMAP:
        A(f"s_lshr_b32 s{TI}, s{T0}, 1\ns_lshr_b32 s{T2}, s{T1}, 3\ns_lshl_b32 s{T2}, s{T2}, 2\ns_add_u32 s{TI}, s{TI}, s{T2}")
    else:
        A(f"s_lshr_b32 s{TI}, s{T0}, 1\ns_lshl_b32 s{TI}, s{TI}, 2\ns_lshr_b32 s{T2}, s{T1}, 3\ns_add_u32 s{TI}, s{TI}, s{T2}")
    A(f"s_and_b32 s{TJ}, s{T0}, 1\ns_lshl_b32 s{TJ}, s{TJ}, 3\ns_and_b32 s{T2}, s{T1}, 7\ns_add_u32 s{TJ}, s{TJ}, s{T2}")
    if SWAP:
        A(f"s_xor_b32 s{WAVE}, s{WAVE}, 4")
    A(f"s_cmp_ge_u32 s{WAVE}, 4")
    A(f"s_cbranch_scc0 L_{name}_gemm")
    aux_waves(A, name, kidx)
    A.label(f"L_{name}_gemm")
    gemm_waves(A, name, kidx)
    A.label(f"L_{name}_end")
    A("s_endpgm")
    return kdesc(name, 256)
```
